```python
import torch

def _softmax(x, axis=-1):
    return torch.softmax(x, dim=axis)
def _gelu(x):
    return torch.nn.functional.gelu(x, approximate="tanh")
def _silu(x):
    return torch.nn.functional.silu(x)
def _sigmoid(x):
    return torch.sigmoid(x)
def _layernorm(x, axis=-1, eps=1e-5):
    m = x.mean(dim=axis, keepdim=True)
    v = x.var(dim=axis, keepdim=True, unbiased=False)
    return (x - m) / torch.sqrt(v + eps)
def _scatter_add(tgt, idx, src, axis=0):
    return tgt.clone().index_add_(axis, idx, src)
def _segment_sum(src, seg, n):
    out = torch.zeros((n,) + src.shape[1:], dtype=src.dtype)
    return out.index_add_(0, seg, src)
def _pad(x, pw):
    flat = tuple(v for pair in reversed(pw) for v in pair)
    return torch.nn.functional.pad(x, flat)

kernel_name = 'interleave_layers__mha_block_cached__glu_gated_reglu__decode'

def setup_inputs():

    _w = (lambda a: (lambda t: t.to(torch.bfloat16) if t.is_floating_point() else t)(torch.as_tensor(a)))
    def _A_setup():
        B, Sq, D = 2, 1, 640
        H, Sk, Dh = 32, 4096, 192
        return {
            "x": _w((lambda *s: torch.randn(*s, dtype=torch.bfloat16) * 0.05)(B, Sq, D)),
            "k_cache": _w((lambda *s: torch.randn(*s, dtype=torch.bfloat16) * 0.8)(B, H, Sk, Dh)),
            "v_cache": _w((lambda *s: torch.randn(*s, dtype=torch.bfloat16) * 0.8)(B, H, Sk, Dh)),
            "wq": _w((lambda *s: torch.randn(*s, dtype=torch.bfloat16) * 0.8)(D, H * Dh) * (D ** -0.5)),
            "wo": _w((lambda *s: torch.randn(*s, dtype=torch.bfloat16) * 0.8)(H * Dh, D) * ((H * Dh) ** -0.5)),
        }
    _A_in = _A_setup()

    def _B_setup():
        B, S, D, F = 2, 1, 640, 1536
        return {
            "x": _w((lambda *s: torch.randn(*s, dtype=torch.bfloat16) * 0.05)(B, S, D)),
            "W_gate": _w((lambda *s: torch.randn(*s, dtype=torch.bfloat16) * 0.2)(D, F) * (2.0 / D) ** 0.5),
            "W_up": _w((lambda *s: torch.randn(*s, dtype=torch.bfloat16) * 0.2)(D, F) * (2.0 / D) ** 0.5),
            "W_down": _w((lambda *s: torch.randn(*s, dtype=torch.bfloat16) * 0.2)(F, D) * (1.0 / F) ** 0.5),
        }
    _B_in = _B_setup()

    return {
        "A_x": _A_in["x"],
        "A_k_cache": _A_in["k_cache"],
        "A_v_cache": _A_in["v_cache"],
        "A_wq": _A_in["wq"],
        "A_wo": _A_in["wo"],
        "B_x": _B_in["x"],
        "B_W_gate": _B_in["W_gate"],
        "B_W_up": _B_in["W_up"],
        "B_W_down": _B_in["W_down"],
    }

def reference(A_x, A_k_cache, A_v_cache, A_wq, A_wo, B_x, B_W_gate, B_W_up, B_W_down):
    def _A_ref(x, k_cache, v_cache, wq, wo):
        B, Sq, D = x.shape
        H, Dh = 32, 192
        q = (lambda x, *d: x.permute(*d))((x @ wq).reshape(B, Sq, H, Dh), 0, 2, 1, 3)
        scores = torch.einsum("bhqd,bhkd->bhqk", q, k_cache) * (Dh ** -0.5)
        p = _softmax(scores, axis=-1)
        o = torch.einsum("bhqk,bhkd->bhqd", p, v_cache)
        return (lambda x, *d: x.permute(*d))(o, 0, 2, 1, 3).reshape(B, Sq, H * Dh) @ wo

    def _B_ref(x, W_gate, W_up, W_down):
        gate = torch.einsum("bsd,df->bsf", x, W_gate)
        up = torch.einsum("bsd,df->bsf", x, W_up)
        gate = gate * (lambda x, dt: x.to(dt))(gate > 0, gate.dtype)
        h = gate * up
        return torch.einsum("bsf,fd->bsd", h, W_down)

    x = A_x
    x = x + _A_ref(_layernorm(x, axis=-1), A_k_cache, A_v_cache, A_wq, A_wo)
    x = x + _B_ref(_layernorm(x, axis=-1), B_W_gate, B_W_up, B_W_down)
    x = x + _A_ref(_layernorm(x, axis=-1), A_k_cache, A_v_cache, A_wq, A_wo)
    x = x + _B_ref(_layernorm(x, axis=-1), B_W_gate, B_W_up, B_W_down)
    return x
```

```python
import re

TRANS = ("v_exp_f32", "v_log_f32", "v_rcp_f32", "v_rsq_f32", "v_sqrt_f32", "v_sin_f32", "v_cos_f32", "v_rcp_iflag_f32")
REG_RE = re.compile(r"^(-|\|)?(abs\()?([vas])(\d+)\)?\|?$")
RNG_RE = re.compile(r"^(-)?([vas])\[(\d+):(\d+)\]$")

def regs_of(tok):
    tok = tok.strip()
    if tok in ("vcc",): return [("s", "vcc")]
    if tok in ("vcc_lo", "vcc_hi"): return [("s", "vcc")]
    if tok == "exec": return [("s", "exec")]
    if tok == "m0": return [("s", "m0")]
    m = REG_RE.match(tok)
    if m: return [(m.group(3), int(m.group(4)))]
    m = RNG_RE.match(tok)
    if m: return [(m.group(2), i) for i in range(int(m.group(3)), int(m.group(4)) + 1)]
    return []

def split_ops(rest):
    out, depth, cur = [], 0, ""
    for ch in rest:
        if ch == "[": depth += 1
        if ch == "]": depth -= 1
        if ch == "," and depth == 0:
            out.append(cur.strip()); cur = ""
        else: cur += ch
    if cur.strip(): out.append(cur.strip())
    mods = ""
    if out:
        parts = out[-1].split(None, 1)
        if len(parts) == 2 and not parts[0].startswith("hwreg"):
            out[-1] = parts[0]; mods = parts[1]
    return out, mods

class Emit:
    def __init__(self, auto=True):
        self.lines = []
        self.t = 0
        self.wr = {}
        self.crd = {}
        self.std = {}
        self.auto = auto
        self.vmq = []
        self.lgq = []
        self.nops = 0
        self.ninst = 0
        self.uid = 0
    def raw(self, s): self.lines.append(s)
    def comment(self, s): self.lines.append("  ; " + s)
    def label(self, name):
        self.lines.append(name + ":")
    def newlabel(self, base):
        self.uid += 1
        return f"L_{base}_{self.uid}"
    def nop(self, n):
        while n > 0:
            k = min(n, 16)
            self.lines.append(f"  s_nop {k-1}")
            self.t += k; n -= k; self.nops += 1; self.ninst += 1
    def fence(self, n=8):
        self.nop(n)
    def __call__(self, text):
        text = text.strip()
        if not text: return
        sp = text.split(None, 1)
        op = sp[0]; rest = sp[1] if len(sp) > 1 else ""
        ops, mods = split_ops(rest)
        need = 0
        def since(tm): return self.t - tm
        def req(reg, dist, kinds):
            nonlocal need
            w = self.wr.get(reg)
            if w and w[1] in kinds:
                gap = self.t - w[0] - 1
                if gap < dist: need = max(need, dist - gap)
        def req_time(tm, dist):
            nonlocal need
            if tm is None: return
            gap = self.t - tm - 1
            if gap < dist: need = max(need, dist - gap)
        is_mfma = op.startswith("v_mfma")
        is_valu = op.startswith("v_") and not is_mfma
        is_ds = op.startswith("ds_")
        is_vmem = op.startswith(("buffer_", "global_", "flat_"))
        is_salu = op.startswith("s_")
        dsts, srcs = [], []
        if is_mfma:
            D = regs_of(ops[0]); A = regs_of(ops[1]); B = regs_of(ops[2]); C = regs_of(ops[3]) if len(ops) > 3 else []
            for r in A + B:
                req(r, 2, ("valu", "trans")); req(r, 8, ("mfma",))
            for r in C:
                req(r, 2, ("valu", "trans"))
                w = self.wr.get(r)
                if w and w[1] == "mfma" and w[2] != tuple(D):
                    req(r, 6, ("mfma",))
                elif w and w[1] == "mfma" and tuple(C) != tuple(D) :
                    req(r, 6, ("mfma",))
            for r in D:
                w = self.wr.get(r)
                if w and w[1] == "mfma" and not (tuple(C) == tuple(D) and w[2] == tuple(D)):
                    req(r, 8, ("mfma",))
            for r in D: req_time(self.std.get(r), 2)
            dsts = D; kind = "mfma"
        elif is_valu:
            base = op.replace("_e32", "").replace("_e64", "").replace("_dpp", "").replace("_sdwa", "")
            dpp = ("_dpp" in op) or any(k in mods for k in ("row_", "quad_perm", "wave_"))
            if base.startswith("v_cmp"):
                dsts = regs_of(ops[0]); srcs = sum((regs_of(o) for o in ops[1:]), [])
            elif base in ("v_readlane_b32", "v_readfirstlane_b32"):
                dsts = regs_of(ops[0]); srcs = sum((regs_of(o) for o in ops[1:]), [])
                for r in regs_of(ops[1]): req(r, 1, ("valu", "trans"))
                if len(ops) > 2:
                    for r in regs_of(ops[2]): req(r, 4, ("valu_s",))
            elif base in ("v_swap_b32", "v_permlane32_swap_b32", "v_permlane16_swap_b32"):
                dsts = regs_of(ops[0]) + regs_of(ops[1]); srcs = list(dsts)
                if base != "v_swap_b32":
                    for r in srcs: req(r, 2, ("valu", "trans"))
            elif base in ("v_add_co_u32", "v_addc_co_u32", "v_sub_co_u32"):
                dsts = regs_of(ops[0]) + regs_of(ops[1]); srcs = sum((regs_of(o) for o in ops[2:]), [])
            else:
                dsts = regs_of(ops[0]); srcs = sum((regs_of(o) for o in ops[1:]), [])
                if base in ("v_fmac_f32", "v_mac_f32", "v_pk_fmac_f16", "v_dot2c_f32_bf16", "v_writelane_b32"): srcs = srcs + dsts
                if base == "v_cndmask_b32" and len(ops) == 3: srcs = srcs + [("s", "vcc")]
                if base == "v_writelane_b32":
                    for r in regs_of(ops[2]): req(r, 4, ("valu_s",))
            for r in srcs:
                req(r, 8, ("mfma",))
                if r[0] == "s": req(r, 2, ("valu_s",))
                if base not in TRANS and base+"_e32" not in TRANS: req(r, 1, ("trans",))
                else: req(r, 1, ("trans",))
            if dpp:
                for r in regs_of(ops[1]): req(r, 2, ("valu", "trans"))
            for r in dsts:
                req(r, 8, ("mfma",))
                req_time(self.crd.get(r), 3)
                req_time(self.std.get(r), 2)
            kind = "trans" if base in TRANS else "valu"
        elif is_ds:
            if op.startswith(("ds_read", "ds_bpermute", "ds_permute", "ds_swizzle")):
                dsts = regs_of(ops[0]); srcs = sum((regs_of(o) for o in ops[1:]), [])
            else:
                srcs = sum((regs_of(o) for o in ops), [])
            for r in srcs: req(r, 8, ("mfma",))
            for r in dsts:
                req(r, 8, ("mfma",)); req_time(self.crd.get(r), 3)
            kind = "mem"
        elif is_vmem:
            lds = (" lds" in (" " + mods)) or "_lds_" in op
            if "load" in op and not lds:
                dsts = regs_of(ops[0]); srcs = sum((regs_of(o) for o in ops[1:]), [])
            elif "atomic" in op:
                srcs = sum((regs_of(o) for o in ops), [])
            else:
                srcs = sum((regs_of(o) for o in ops), [])
            for r in srcs:
                req(r, 8, ("mfma",))
                if r[0] == "s": req(r, 5, ("valu_s",))
            if lds: req(("s", "m0"), 1, ("salu",))
            for r in dsts:
                req(r, 8, ("mfma",)); req_time(self.crd.get(r), 3)
            kind = "mem"
        else:
            kind = "salu"
            if op in ("s_waitcnt", "s_nop", "s_barrier", "s_endpgm", "s_branch", "s_sleep", "s_setprio") or op.startswith("s_cbranch"):
                dsts = []
            elif op.startswith("s_cmp") or op.startswith("s_bitcmp"):
                dsts = []
            else:
                dsts = regs_of(ops[0]) if ops else []
                if "saveexec" in op: dsts = dsts + [("s", "exec")]
        if need > 0 and self.auto: self.nop(need)
        self.lines.append("  " + text)
        now = self.t
        if op == "s_nop":
            self.t += int(ops[0], 0) + 1
        else:
            self.t += 1
        self.ninst += 1
        if is_mfma:
            for r in dsts: self.wr[r] = (now, "mfma", tuple(dsts))
            for r in (regs_of(ops[3]) if len(ops) > 3 else []): self.crd[r] = now
        elif is_valu:
            for r in dsts:
                self.wr[r] = (now, ("valu_s" if r[0] == "s" else kind), None)
        elif is_ds or is_vmem:
            for r in dsts: self.wr[r] = (now, "mem", None)
            if is_vmem and "store" in op and ("x4" in op or "x3" in op):
                data = regs_of(ops[1]) if op.startswith("global") else regs_of(ops[0])
                for r in data: self.std[r] = now
        else:
            for r in dsts: self.wr[r] = (now, "salu", None)
    def vm(self, text, tag=None):
        self(text)
        self.vmq.append(tag)
        if len(self.vmq) > 63:
            raise RuntimeError("more than 63 vm ops outstanding (static)")
    def vm_wait(self, tag):
        idx = max(i for i, t in enumerate(self.vmq) if t == tag) if tag in self.vmq else None
        if idx is None: return
        n = len(self.vmq) - idx - 1
        self(f"s_waitcnt vmcnt({n})")
        self.vmq = self.vmq[idx + 1:]
    def vm_depth(self, n):
        if len(self.vmq) > n:
            self(f"s_waitcnt vmcnt({n})")
            self.vmq = self.vmq[len(self.vmq) - n:] if n > 0 else []
    def vm_all(self, force=False):
        if self.vmq or force:
            self("s_waitcnt vmcnt(0)")
        self.vmq = []
    def lg(self, text, tag=None):
        self(text); self.lgq.append(tag)
    def lg_wait(self, tag):
        if tag not in self.lgq: return
        idx = max(i for i, t in enumerate(self.lgq) if t == tag)
        n = len(self.lgq) - idx - 1
        self(f"s_waitcnt lgkmcnt({min(n, 15)})")
        self.lgq = self.lgq[idx + 1:]
    def lg_all(self, force=False):
        if self.lgq or force: self("s_waitcnt lgkmcnt(0)")
        self.lgq = []
    def text(self): return "\n".join(self.lines)

def vr(base, n=1, f="v"):
    return f"{f}{base}" if n == 1 else f"{f}[{base}:{base+n-1}]"
```

```python
import sys, struct
from types import SimpleNamespace as NS
from emit import Emit, vr

NAME = "interleave_layers__mha_block_cached__glu_gated_reglu__decode_kernel"

class Opt:
    NA = 12
    NA_BAR = 118
    NB = 4
    NC = 56
    stamps = False
    poll_limit = 400000
    kvflags = "nt"
    wflags = "nt"
    force_global = False

KV_BYTES = 100663296
BATCH_STRIDE = 50331648
HEAD_STRIDE = 1572864
CHUNK_STRIDE = 196608
TILE_B = 3072
SW_TILES, CW_TILES = 20, 4
OOB = 0x7fff0000

LDS_SW = 51200
SB = 153600
PART = SB
ML = SB + 6144
QARR = SB + 6208
ACT_O = SB + 6976
ACT_X = SB + 7744
ACT_H = SB + 8320
DUMMY = SB + 8576
LDS_TOTAL = 163840
ST_WQ, ST_WO, ST_WG, ST_WU, ST_WD = 0, 30720, 61440, 69120, 76800

RG = 262144
R1_REG = {0: 0, '1a': 1, '1b': 2, 2: 3}
R3_REG = {'P': 4, 0: 7, 1: 8}
R2_REG = {'P': 9, 0: 10, 1: 11, 2: 12}
L_REG = lambda inst, k: 13 + 2 * inst + k
G_OFF = lambda inst, k: 19 * RG + (2 * inst + k) * 65536
STAMP_OFF = 22 * RG
WS_REC = 24 * RG

CSCALE = (192 ** -0.5) * 1.4426950408889634
EPS = 1e-5
def f2u(x): return struct.unpack("<I", struct.pack("<f", x))[0]
def lit(x): return "0x%08x" % f2u(x)
def mask64(lanes):
    m = 0
    for l in lanes: m |= 1 << l
    return m
def set_exec(e, m):
    if m == (1 << 64) - 1: e("s_mov_b64 exec, -1"); return
    e(f"s_mov_b32 exec_lo, 0x{m & 0xffffffff:08x}")
    e(f"s_mov_b32 exec_hi, 0x{m >> 32:08x}")

S_X, S_K, S_V, S_WQ, S_WO, S_BX, S_WG, S_WU, S_WD, S_OUT, S_DBG, S_WS = 4, 6, 8, 10, 12, 14, 16, 18, 20, 22, 24, 26
S_XC, S_HQ, S_J, S_H = 28, 29, 30, 31
SRD_K, SRD_V = 32, 36
S_KV0, S_KV1, S_SOFF, S_LDSB = 40, 41, 42, 43
SRD_T = 44
SRD_WS = 48
SRD_DBG = 52
S_C = 56
S_ROWN, S_RGRP, S_LOWN, S_LGRP, S_GOWN, S_GGRP = 57, 58, 59, 60, 61, 62
S_A, S_B, S_CNT, S_T0, S_T1, S_T2 = 63, 64, 65, 66, 67, 68
S_PB = 69
S_HI32 = 70
S_MLB = 72
S_DMA = 73
S_WAVE = 3
S_STAMP = 76

def make_srd(e, srd, ptr, nbytes):
    e(f"s_mov_b32 s{srd}, s{ptr}")
    e(f"s_and_b32 s{srd+1}, s{ptr+1}, 0xffff")
    e(f"s_mov_b32 s{srd+2}, {nbytes}")
    e(f"s_mov_b32 s{srd+3}, 0x20000")

class Stamps:
    def __init__(self, e, on): self.e, self.on, self.names = e, on, []
    def __call__(self, name):
        if not self.on: return
        n = len(self.names); assert n < 12, "too many stamps"
        self.e(f"s_memrealtime s[{S_STAMP+2*n}:{S_STAMP+2*n+1}]")
        self.e.lg_all(force=True)
        self.names.append(name)
    def flush(self):
        if not self.on: return
        e = self.e
        e("s_mov_b64 exec, 1")
        e(f"s_lshl_b32 s{S_T0}, s2, 2"); e(f"s_add_u32 s{S_T0}, s{S_T0}, s{S_WAVE}"); e(f"s_lshl_b32 s{S_T0}, s{S_T0}, 7")
        e(f"s_add_u32 s{S_T0}, s{S_T0}, {STAMP_OFF}")
        e("v_mov_b32 v0, 0")
        for i in range(len(self.names)):
            e(f"v_mov_b32 v2, s{S_STAMP+2*i}"); e(f"v_mov_b32 v3, s{S_STAMP+2*i+1}")
            e(f"buffer_store_dwordx2 v[2:3], v0, s[{SRD_WS}:{SRD_WS+3}], s{S_T0} offen offset:{8*i}")
            e("s_waitcnt vmcnt(0)")

def lane_id(e, dst):
    e(f"v_mbcnt_lo_u32_b32 {vr(dst)}, -1, 0")
    e(f"v_mbcnt_hi_u32_b32 {vr(dst)}, -1, {vr(dst)}")

def attn_load_offsets(e, R, lane, t):
    i, g, u, w = t, t + 1, t + 2, t + 3
    e(f"v_and_b32 {vr(i)}, 15, {vr(lane)}")
    e(f"v_lshrrev_b32 {vr(g)}, 4, {vr(lane)}")
    e(f"v_and_b32 {vr(u)}, 7, {vr(i)}")
    e(f"v_lshrrev_b32 {vr(w)}, 3, {vr(i)}")
    e(f"v_mul_u32_u24 {vr(R.voffK)}, 384, {vr(u)}")
    e(f"v_lshl_add_u32 {vr(R.voffK)}, {vr(g)}, 4, {vr(R.voffK)}")
    e(f"v_lshl_add_u32 {vr(R.voffK)}, {vr(w)}, 6, {vr(R.voffK)}")
    e(f"v_mul_u32_u24 {vr(R.voffX)}, 768, {vr(g)}")
    e(f"v_mul_u32_u24 {vr(w)}, 384, {vr(w)}")
    e(f"v_add_u32 {vr(R.voffY)}, {vr(R.voffX)}, {vr(w)}")
    e(f"v_lshl_add_u32 {vr(R.voffY)}, {vr(u)}, 4, {vr(R.voffY)}")
    e(f"v_add_u32 {vr(R.voffY)}, 256, {vr(R.voffY)}")
    e(f"v_lshl_add_u32 {vr(R.voffX)}, {vr(i)}, 4, {vr(R.voffX)}")

def attn_selectors(e, R, lane, t):
    i, u, lo, hi = t, t + 1, t + 2, t + 3
    e(f"v_and_b32 {vr(i)}, 15, {vr(lane)}")
    e(f"v_lshrrev_b32 {vr(u)}, 3, {vr(i)}")
    e(f"v_mul_u32_u24 {vr(u)}, 0x202, {vr(u)}")
    e(f"v_add_u32 {vr(u)}, 0x100, {vr(u)}")
    e(f"v_or_b32 {vr(lo)}, 0x0c0c0000, {vr(u)}")
    e(f"v_lshlrev_b32 {vr(hi)}, 16, {vr(u)}")
    e(f"v_or_b32 {vr(hi)}, 0x0c0c, {vr(hi)}")
    e(f"v_and_b32 {vr(u)}, 1, {vr(i)}")
    e(f"v_cmp_eq_u32 vcc, 1, {vr(u)}")
    e(f"v_cndmask_b32 {vr(lo)}, {vr(lo)}, {vr(hi)}, vcc")
    e(f"v_bfe_u32 {vr(u)}, {vr(i)}, 1, 2")
    e(f"v_mov_b32 {vr(hi)}, 0x0c0c0c0c")
    for r in range(4):
        e(f"v_cmp_eq_u32 vcc, {r}, {vr(u)}")
        e(f"v_cndmask_b32 {vr(R.sel+r)}, {vr(hi)}, {vr(lo)}, vcc")

def allreduce(e, reg, tmp, op):
    for k in (8, 4, 2, 1):
        e(f"v_{op}_f32_dpp {vr(reg)}, {vr(reg)}, {vr(reg)} row_ror:{k} row_mask:0xf bank_mask:0xf")
    e(f"v_mov_b32 {vr(tmp)}, {vr(reg)}")
    e(f"v_permlane16_swap_b32 {vr(reg)}, {vr(tmp)}")
    e(f"v_{op}_f32 {vr(reg)}, {vr(reg)}, {vr(tmp)}")
    e(f"v_mov_b32 {vr(tmp)}, {vr(reg)}")
    e(f"v_permlane32_swap_b32 {vr(reg)}, {vr(tmp)}")
    e(f"v_{op}_f32 {vr(reg)}, {vr(reg)}, {vr(tmp)}")

def attn_pass(e, R, ntiles, qrow, Kfrag, Vfrag, part_sreg, ml_off, k_wait=None, qk_hook=None, mid_hook=None,
              v_wait=None, pv_hook=None, stage=None):
    L = R.tmp
    lane_id(e, L)
    e(f"v_and_b32 {vr(L+1)}, 1, {vr(L)}")
    e(f"v_lshrrev_b32 {vr(L+2)}, 4, {vr(L)}")
    e(f"v_lshlrev_b32 {vr(L+2)}, 4, {vr(L+2)}")
    e(f"v_lshl_add_u32 {vr(L+1)}, {vr(L+1)}, 6, {vr(L+2)}")
    e(f"v_add_u32 {vr(L+1)}, {QARR}, {vr(L+1)}")
    for s in range(3):
        e.lg(f"ds_read_b128 {vr(R.qA+4*s,4)}, {vr(L+1)} offset:{qrow*384 + 128*s}", ("q", s))
    e(f"v_add_u32 {vr(R.vpp)}, s{S_PB}, {vr(L+2)}")
    W = R.vpw
    e(f"v_lshrrev_b32 {vr(L+1)}, 5, {vr(L)}"); e(f"v_lshlrev_b32 {vr(W)}, 6, {vr(L+1)}")
    e(f"v_bfe_u32 {vr(L+1)}, {vr(L)}, 1, 2"); e(f"v_lshl_add_u32 {vr(W)}, {vr(L+1)}, 4, {vr(W)}")
    e(f"v_bfe_u32 {vr(L+1)}, {vr(L)}, 3, 2"); e(f"v_lshl_add_u32 {vr(W)}, {vr(L+1)}, 2, {vr(W)}")
    e(f"v_and_b32 {vr(L+1)}, 1, {vr(L)}"); e(f"v_lshl_add_u32 {vr(W)}, {vr(L+1)}, 1, {vr(W)}")
    e(f"v_add_u32 {vr(W)}, s{S_PB}, {vr(W)}")
    nsc = (ntiles + 7) // 8
    for r in range(nsc):
        if (r + 1) * 8 > ntiles: e(f"v_mov_b32 {vr(R.sc+r)}, 0xff800000")
    stg = {}
    def stage_k(T):
        if T >= ntiles: return
        for s in range(3):
            f = Kfrag(T, s)
            if isinstance(f, tuple):
                reg = stage[(3 * T + s) % len(stage)]
                e.lg(f"ds_read_b128 {vr(reg,4)}, {vr(R.vlds)} offset:{f[1]}", ("k", T, s))
                stg[(T, s)] = vr(reg, 4)
    LOOK = 2
    if k_wait: k_wait(-1)
    for T in range(min(LOOK, ntiles)): stage_k(T)
    e.lg_wait(("q", 2))
    def dpp_add(T):
        D = R.D + 4 * (T % 3)
        dst = vr(R.sc + (T >> 3)); rm = 1 << ((T >> 1) & 3)
        if T % 2 == 0: e(f"v_add_f32_dpp {dst}, {vr(D+1)}, {vr(D)} row_ror:8 row_mask:0x{rm:x} bank_mask:0x3")
        else:          e(f"v_add_f32_dpp {dst}, {vr(D)}, {vr(D+1)} row_ror:8 row_mask:0x{rm:x} bank_mask:0xc")
    for T in range(ntiles):
        if k_wait: k_wait(T)
        D = vr(R.D + 4 * (T % 3), 4)
        for s in range(3):
            f = Kfrag(T, s)
            if isinstance(f, tuple):
                e.lg_wait(("k", T, s)); f = stg[(T, s)]
            e(f"v_mfma_f32_16x16x32_bf16 {D}, {vr(R.qA+4*s,4)}, {f}, {'0' if s == 0 else D}")
        stage_k(T + LOOK)
        if qk_hook: qk_hook(T)
        if T >= 2: dpp_add(T - 2)
    for T in range(max(0, ntiles - 2), ntiles): dpp_add(T)
    t0, t1 = R.D, R.D + 1
    if nsc == 1: e(f"v_mov_b32 {vr(t0)}, {vr(R.sc)}")
    elif nsc == 2: e(f"v_max_f32 {vr(t0)}, {vr(R.sc)}, {vr(R.sc+1)}")
    else: e(f"v_max3_f32 {vr(t0)}, {vr(R.sc)}, {vr(R.sc+1)}, {vr(R.sc+2)}")
    allreduce(e, t0, t1, "max")
    e(f"v_mul_f32 {vr(R.vm)}, s{S_C}, {vr(t0)}")
    for r in range(nsc): e(f"v_fma_f32 {vr(R.sc+r)}, {vr(R.sc+r)}, s{S_C}, -{vr(R.vm)}")
    for r in range(nsc): e(f"v_exp_f32 {vr(R.sc+r)}, {vr(R.sc+r)}")
    for r in range(nsc): e(f"v_cvt_pk_bf16_f32 {vr(R.D+2+r)}, {vr(R.sc+r)}, {vr(R.sc+r)}")
    for r in range(nsc): e.lg(f"ds_write_b16 {vr(W)}, {vr(R.D+2+r)} offset:{128*r}", ("pw", r))
    nq = (ntiles + 3) // 4
    ppreg = lambda q: R.pp + 4 * (q % 2)
    if nsc == 1: e(f"v_mov_b32 {vr(R.vl)}, {vr(R.sc)}")
    else:
        e(f"v_add_f32 {vr(R.vl)}, {vr(R.sc)}, {vr(R.sc+1)}")
        if nsc == 3: e(f"v_add_f32 {vr(R.vl)}, {vr(R.vl)}, {vr(R.sc+2)}")
    e.lg(f"ds_read_b128 {vr(ppreg(0),4)}, {vr(R.vpp)}", ("pp", 0))
    if nq > 1: e.lg(f"ds_read_b128 {vr(ppreg(1),4)}, {vr(R.vpp)} offset:64", ("pp", 1))
    allreduce(e, R.vl, t1, "add")
    if mid_hook: mid_hook()
    X1, X2, Y = R.acc, R.acc + 4, R.acc + 8
    def build_A(T):
        q = T >> 2
        e.lg_wait(("pp", q))
        A = R.A + 4 * (T % 2); src = vr(ppreg(q) + (T & 3))
        return [f"v_perm_b32 {vr(A+r)}, {src}, {src}, {vr(R.sel+r)}" for r in range(4)]
    for ins in build_A(0): e(ins)
    for T in range(ntiles):
        A = vr(R.A + 4 * (T % 2), 4)
        nxt = build_A(T + 1) if T + 1 < ntiles else []
        if v_wait: v_wait(T, 0)
        e(f"v_mfma_f32_16x16x32_bf16 {vr(X1,4)}, {A}, {Vfrag(T,0)}, {'0' if T == 0 else vr(X1,4)}")
        for ins in nxt[:2]: e(ins)
        if v_wait: v_wait(T, 1)
        e(f"v_mfma_f32_16x16x32_bf16 {vr(X2,4)}, {A}, {Vfrag(T,1)}, {'0' if T == 0 else vr(X2,4)}")
        for ins in nxt[2:]: e(ins)
        if v_wait: v_wait(T, 2)
        e(f"v_mfma_f32_16x16x32_bf16 {vr(Y,4)}, {A}, {Vfrag(T,2)}, {'0' if T == 0 else vr(Y,4)}")
        if (T & 3) == 2 and (T >> 2) + 2 < nq:
            q2 = (T >> 2) + 2
            e.lg(f"ds_read_b128 {vr(ppreg(q2),4)}, {vr(R.vpp)} offset:{64*q2}", ("pp", q2))
        if pv_hook: pv_hook(T)
    p = R.pp
    lane_id(e, p)
    e(f"v_and_b32 {vr(p+1)}, 15, {vr(p)}")
    e(f"v_lshrrev_b32 {vr(p+2)}, 4, {vr(p)}")
    e(f"v_and_b32 {vr(p+3)}, 1, {vr(p+2)}")
    e(f"v_lshrrev_b32 {vr(p+2)}, 1, {vr(p+2)}")
    e(f"v_mul_u32_u24 {vr(p+2)}, 768, {vr(p+2)}")
    e(f"v_lshl_add_u32 {vr(p+2)}, {vr(p+3)}, 4, {vr(p+2)}")
    e(f"v_add_u32 {vr(p+2)}, s{part_sreg}, {vr(p+2)}")
    e(f"v_lshl_add_u32 {vr(p+4)}, {vr(p+1)}, 5, {vr(p+2)}")
    e(f"v_and_b32 {vr(p+1)}, 7, {vr(p+1)}")
    e(f"v_lshl_add_u32 {vr(p+5)}, {vr(p+1)}, 5, {vr(p+2)}")
    e(f"v_mov_b32 {vr(p+6)}, s{S_MLB}")
    e(f"v_mov_b32 {vr(R.A)}, {vr(R.vm)}"); e(f"v_mov_b32 {vr(R.A+1)}, {vr(R.vl)}")
    for r in range(4):
        e(f"v_cndmask_b32 {vr(X1+r)}, {vr(X1+r)}, {vr(X2+r)}, s[{S_HI32}:{S_HI32+1}]")
    e.lg(f"ds_write_b128 {vr(p+4)}, {vr(X1,4)}", "px")
    set_exec(e, 0xFF00FF0000FF00FF)
    e.lg(f"ds_write_b128 {vr(p+5)}, {vr(Y,4)} offset:512", "py")
    e("s_mov_b64 exec, 1")
    e.lg(f"ds_write_b64 {vr(p+6)}, {vr(R.A,2)} offset:{ml_off}", "pm")
    e("s_mov_b64 exec, -1")
    e.lg_all()

def kv_soff(e, base_sreg, T):
    e(f"s_add_u32 s{S_SOFF}, s{base_sreg}, {T*TILE_B}")
def ld_k(e, R, dst, s, tag, o):
    e.vm(f"buffer_load_dwordx4 {dst}, {vr(R.voffK)}, s[{SRD_K}:{SRD_K+3}], s{S_SOFF} offen offset:{128*s} {o.kvflags}", tag)
def ld_v(e, R, dst, w, tag, o):
    vo = R.voffY if w == 2 else R.voffX
    off = 384 if w == 1 else 0
    e.vm(f"buffer_load_dwordx4 {dst}, {vr(vo)}, s[{SRD_V}:{SRD_V+3}], s{S_SOFF} offen offset:{off} {o.kvflags}", tag)
def dma_k(e, R, slot, s, tag, o):
    e(f"s_add_u32 m0, s{S_LDSB}, {slot*1024 - 128*s + 0}") if slot*1024 - 128*s >= 0 else e(f"s_sub_u32 m0, s{S_LDSB}, {128*s - slot*1024}")
    e.vm(f"buffer_load_dwordx4 {vr(R.voffK)}, s[{SRD_K}:{SRD_K+3}], s{S_SOFF} offen offset:{128*s} {o.kvflags} lds", tag)
def dma_v(e, R, slot, w, tag, o):
    vo = R.voffY if w == 2 else R.voffX
    off = 384 if w == 1 else 0
    e(f"s_add_u32 m0, s{S_LDSB}, {slot*1024 - off}")
    e.vm(f"buffer_load_dwordx4 {vr(vo)}, s[{SRD_V}:{SRD_V+3}], s{S_SOFF} offen offset:{off} {o.kvflags} lds", tag)

def slot_reg(k):
    assert 0 <= k < 118
    return f"a[{4*k}:{4*k+3}]" if k < 64 else f"v[{40+4*(k-64)}:{40+4*(k-64)+3}]"

def stream_wave(e, o, st):
    R = NS(vlds=0, voffK=1, voffX=2, voffY=3, sel=4, qA=8, D=20, sc=32, tmp=20, vpw=35, acc=8, A=20, pp=28, vpp=36, vm=38, vl=39)
    e(f"s_sub_u32 s{S_T0}, s{S_WAVE}, 1")
    e(f"s_mul_i32 s{S_T1}, s{S_T0}, {SW_TILES*TILE_B}")
    e(f"s_add_u32 s{S_KV0}, s{S_KV0}, s{S_T1}")
    e(f"s_add_u32 s{S_KV1}, s{S_KV0}, {BATCH_STRIDE}")
    e(f"s_mul_i32 s{S_LDSB}, s{S_T0}, {LDS_SW}")
    lane_id(e, 8)
    attn_load_offsets(e, R, 8, 10)
    loads = []
    for T in range(SW_TILES):
        for s in range(3): loads.append(('K', T, s))
    for T in range(SW_TILES):
        for w in range(3): loads.append(('V', T, w))
    def k0slot(T, s): return 3 * T + s
    def v0slot(T, w): return 60 + 3 * T + w
    cur = [None]
    def issue0(item):
        kind, T, x = item
        if cur[0] != (kind, T, 0):
            kv_soff(e, S_KV0, T); cur[0] = (kind, T, 0)
        if kind == 'K': ld_k(e, R, slot_reg(k0slot(T, x)), x, ('K0', T, x), o)
        else:
            sl = v0slot(T, x)
            if sl < 118: ld_v(e, R, slot_reg(sl), x, ('V0', T, x), o)
            else: dma_v(e, R, 48 + sl - 118, x, ('V0', T, x), o)
    first = True
    for item in loads[:o.NA_BAR]:
        e.vm_depth(o.NA - 1)
        issue0(item)
        if first:
            first = False
            e(f"v_lshlrev_b32 {vr(R.vlds)}, 4, v8")
            e(f"v_add_u32 {vr(R.vlds)}, s{S_LDSB}, {vr(R.vlds)}")
            attn_selectors(e, R, 8, 10)
    st("A_issued")
    e("s_barrier")
    st("bar1")
    pend = [('0', it) for it in loads[o.NA_BAR:]]
    for T in range(16):
        for s in range(3): pend.append(('1', T, s))
    cur1 = [None]
    def issue_pend():
        it = pend.pop(0)
        if it[0] == '0': cur1[0] = None; issue0(it[1])
        else:
            _, T, s = it
            if cur1[0] != T:
                kv_soff(e, S_KV1, T); cur1[0] = T; cur[0] = None
            dma_k(e, R, 3 * T + s, s, ('K1', T, s), o)
    while pend[0][0] == '0': issue_pend()
    def Kf0(T, s): return slot_reg(k0slot(T, s))
    def Vf0(T, w):
        sl = v0slot(T, w)
        if sl < 118: return slot_reg(sl)
        return "v[32:35]" if w == 1 else "v[28:31]"
    def k_wait_A(T):
        if T == -1: e.vm_wait(('K0', SW_TILES - 1, 2))
    def pv_hook_A(T):
        left = SW_TILES - 1 - T
        target = max(o.NB, min(o.NA, 3 * left + o.NB))
        if T == SW_TILES - 2:
            e.vm_wait(('V0', SW_TILES - 1, 2))
            e.lg(f"ds_read_b128 v[32:35], {vr(R.vlds)} offset:{48*1024}", ("vo", 1))
            e.lg(f"ds_read_b128 v[28:31], {vr(R.vlds)} offset:{49*1024}", ("vo", 2))
            target = o.NB
        while pend and len(e.vmq) < target: issue_pend()
    def vwait_A(T, w):
        e.vm_wait(('V0', T, w))
        if T == SW_TILES - 1 and w >= 1: e.lg_wait(("vo", w))
    attn_pass(e, R, SW_TILES, 0, Kf0, Vf0, S_PB, 0, k_wait=k_wait_A, v_wait=vwait_A, pv_hook=pv_hook_A)
    st("A_done")
    e("s_barrier")
    while pend:
        e.vm_depth(o.NB - 1)
        issue_pend()
    st("B_issued")
    e("s_barrier")
    st("bar3")
    pend1 = []
    for T in range(16, SW_TILES):
        for s in range(3): pend1.append(('K', T, s))
    for T in range(SW_TILES):
        for w in range(3): pend1.append(('V', T, w))
    slot_of = {it: i for i, it in enumerate(pend1)}
    freed = [0]
    issued1 = [0]
    cur2 = [None]
    def issue1():
        it = pend1[issued1[0]]; kind, T, x = it
        if cur2[0] != (kind, T):
            kv_soff(e, S_KV1, T); cur2[0] = (kind, T)
        e.vm_depth(o.NC - 1)
        if kind == 'K': ld_k(e, R, slot_reg(slot_of[it]), x, ('K1', T, x), o)
        else: ld_v(e, R, slot_reg(slot_of[it]), x, ('V1', T, x), o)
        issued1[0] += 1
    def refill():
        while issued1[0] < len(pend1) and issued1[0] < freed[0]: issue1()
    def qk_hook_C1(T):
        freed[0] = 3 * (T + 1); refill()
    def pv_hook_C1(T):
        freed[0] = min(118, 60 + 3 * (T + 1)); refill(); ovf_hook_C(T)
    def ovf_hook_C(T):
        if T == SW_TILES - 2:
            e.lg(f"ds_read_b128 v[32:35], {vr(R.vlds)} offset:{48*1024}", ("vo", 1))
            e.lg(f"ds_read_b128 v[28:31], {vr(R.vlds)} offset:{49*1024}", ("vo", 2))
    def vwait_C1(T, w):
        if T == SW_TILES - 1 and w >= 1: e.lg_wait(("vo", w))
    e(f"s_add_u32 s{S_T2}, s{S_LDSB}, {48*1024}")
    attn_pass(e, R, SW_TILES, 0, Kf0, Vf0, S_T2, 32, qk_hook=qk_hook_C1, v_wait=vwait_C1, pv_hook=pv_hook_C1)
    refill()
    assert issued1[0] == len(pend1)
    st("C1_done")
    e("s_barrier")
    stage = [40 + 4 * (k - 64) for k in range(100, 112)]
    def Kf1(T, s):
        if T < 16: return ('lds', (3 * T + s) * 1024)
        return slot_reg(slot_of[('K', T, s)])
    def Vf1(T, w): return slot_reg(slot_of[('V', T, w)])
    def k_wait_C2(T):
        if T == -1: e.vm_wait(('K1', 15, 2))
        elif T >= 16: e.vm_wait(('K1', T, 2))
    def vwait_C2(T, w): e.vm_wait(('V1', T, w))
    attn_pass(e, R, SW_TILES, 1, Kf1, Vf1, S_PB, 0, k_wait=k_wait_C2, v_wait=vwait_C2, stage=stage)
    st("C2_done")
    e("s_barrier")
    e("s_barrier")
    st("bar7")
    attn_pass(e, R, SW_TILES, 1, Kf1, Vf1, S_PB, 0, stage=stage)
    st("E_done")
    e("s_barrier")
    st.flush()
    e("s_endpgm")

V_LANE, V_LG, V_R, V_PL, V_PG, V_PQ = 0, 4, 5, 6, 7, 8
V_BO, V_BX, V_BX8, V_BH, V_BH8, V_AS, V_AS8 = 9, 10, 11, 12, 13, 14, 15
V_XR, V_CSQ, V_CSG = 16, 20, 24
V_W8, V_WX, V_WH, V_ML = 28, 29, 30, 31
W0 = 32
V_SEL, V_R2, V_ST2, V_PS, V_PSQ, V_L16 = 75, 79, 80, 81, 82, 83
V_T = 84
CW_K, CW_V = 86, 134
S_N1 = 74

_off3 = (2, 6, 0)
def wq_frag(t, s): return ("a", 10 * t + _off3[s])
def wo_frag(t, s): return ("a", 120 + 24 * t + 4 * s)
def wd_frag(t, s):
    if s == 0: return ("a", 240 + 4 * t) if t < 4 else ("v", 182)
    return ("v", 186 + 2 * t)
def wg_frag(t, s): return ("v", 196 + 10 * t + _off3[s])
def wu_frag(t, s): return ("v", 226 + 10 * t + _off3[s])
def win(fr): return f"{fr[0]}[{fr[1]}:{fr[1]+3}]"

V_OOB = 74
def selmask(e, dst, val, mask, other=None):
    e(f"s_mov_b32 vcc_lo, 0x{mask & 0xffffffff:08x}"); e(f"s_mov_b32 vcc_hi, 0x{mask >> 32:08x}")
    if other is None: e(f"v_cndmask_b32 {vr(dst)}, v{V_OOB}, {vr(val)}, vcc")
    else:
        assert dst != val
        e(f"v_mov_b32 {vr(dst)}, 0x{other:08x}")
        e(f"v_cndmask_b32 {vr(dst)}, {vr(dst)}, {vr(val)}, vcc")

def rows_mask(live, n): return mask64([32 * r + g for r in live for g in range(n)])
def cols_mask(live, alist=range(4)): return mask64([16 * a + n for a in alist for n in live])

def instance_offsets(e, live, pub_live=None):
    pub_live = live if pub_live is None else pub_live
    t, u = V_T, V_T + 1
    e(f"v_and_b32 {vr(t)}, 31, v{V_LANE}"); e(f"v_lshlrev_b32 {vr(t)}, 4, {vr(t)}")
    e(f"v_lshrrev_b32 {vr(u)}, 5, v{V_LANE}"); e(f"v_lshl_add_u32 {vr(t)}, {vr(u)}, 9, {vr(t)}")
    selmask(e, V_LG, t, rows_mask(live, 20))
    selmask(e, V_R2, t, rows_mask(live, 24))
    e(f"v_and_b32 {vr(t)}, 7, v{V_LANE}"); e(f"v_lshlrev_b32 {vr(t)}, 10, {vr(t)}")
    e(f"v_lshl_add_u32 {vr(t)}, {vr(u)}, 9, {vr(t)}"); e(f"v_add_u32 {vr(t)}, 384, {vr(t)}")
    selmask(e, V_ST2, t, rows_mask(live, 32))
    e(f"v_and_b32 {vr(t)}, 15, v{V_LANE}"); e(f"v_lshrrev_b32 {vr(u)}, 4, v{V_LANE}")
    e(f"v_lshlrev_b32 v{V_PL}, 9, {vr(t)}")
    e(f"v_lshl_add_u32 v{V_PG}, {vr(u)}, 5, v{V_PL}")
    e(f"v_add_u32 v{V_PS}, 384, v{V_PL}")
    e(f"v_lshl_add_u32 v{V_PL}, {vr(u)}, 4, v{V_PL}")
    e(f"v_lshlrev_b32 v{V_PQ}, 18, {vr(t)}")
    e(f"v_add_u32 v{V_PSQ}, 768, v{V_PQ}")
    e(f"v_lshl_add_u32 v{V_PQ}, {vr(u)}, 4, v{V_PQ}")
    cm = cols_mask(pub_live)
    e(f"s_mov_b32 vcc_lo, 0x{cm & 0xffffffff:08x}"); e(f"s_mov_b32 vcc_hi, 0x{cm >> 32:08x}")
    for r in (V_PL, V_PG, V_PQ): e(f"v_cndmask_b32 v{r}, v{V_OOB}, v{r}, vcc")
    cm = cols_mask(pub_live, [0])
    e(f"s_mov_b32 vcc_lo, 0x{cm & 0xffffffff:08x}"); e(f"s_mov_b32 vcc_hi, 0x{cm >> 32:08x}")
    for r in (V_PS, V_PSQ): e(f"v_cndmask_b32 v{r}, v{V_OOB}, v{r}, vcc")

def soffs(e, off_sreg, const, two=True):
    e(f"s_add_u32 s{S_A}, s{off_sreg}, {const}")
    if two: e(f"s_add_u32 s{S_B}, s{S_A}, 4096")

def poll(e, o, loads, abort):
    lab = e.newlabel("poll")
    e(f"s_mov_b32 s{S_CNT}, {o.poll_limit}")
    e.label(lab)
    for d, vo, s, imm in loads:
        e(f"buffer_load_dwordx4 {vr(d,4)}, v{vo}, s[{SRD_WS}:{SRD_WS+3}], s{s} offen offset:{imm} sc1")
    e(f"s_sub_u32 s{S_CNT}, s{S_CNT}, 1")
    e(f"s_cbranch_scc1 {abort}")
    e("s_waitcnt vmcnt(0)")
    vals = []
    for d, _, _, _ in loads: vals += [d + 1, d + 3]
    t = V_T
    e(f"v_max3_u32 v{t}, v{vals[0]}, v{vals[1]}, v{vals[2]}")
    i = 3
    while i < len(vals):
        if i + 1 < len(vals): e(f"v_max3_u32 v{t}, v{t}, v{vals[i]}, v{vals[i+1]}"); i += 2
        else: e(f"v_max_u32 v{t}, v{t}, v{vals[i]}"); i += 1
    e(f"v_cmp_eq_u32 vcc, -1, v{t}")
    e(f"s_cbranch_vccnz {lab}")
    e.vmq = []

def gather8(e, o, vo, abort, extra=None, n=8, base=W0):
    loads = [(base + 4 * k, vo, S_A if k < 4 else S_B, (k % 4) * 1024) for k in range(n)]
    if extra: loads.append((base + 4 * n, extra, S_A, 0))
    poll(e, o, loads, abort)

def sum_loads(e, n, base=W0):
    step = 1
    while step < n:
        for k in range(0, n, 2 * step):
            if k + step < n:
                a, b = base + 4 * k, base + 4 * (k + step)
                e(f"v_pk_add_f32 {vr(a,2)}, {vr(a,2)}, {vr(b,2)}")
                e(f"v_pk_add_f32 {vr(a+2,2)}, {vr(a+2,2)}, {vr(b+2,2)}")
        step *= 2

def dpp8(e, reg, op):
    for m in ("quad_perm:[1,0,3,2]", "quad_perm:[2,3,0,1]", "row_half_mirror"):
        e(f"v_{op}_f32_dpp v{reg}, v{reg}, v{reg} {m} row_mask:0xf bank_mask:0xf")
def dpp8x2(e, r0, r1, op):
    for m in ("quad_perm:[1,0,3,2]", "quad_perm:[2,3,0,1]", "row_half_mirror"):
        e(f"v_{op}_f32_dpp v{r0}, v{r0}, v{r0} {m} row_mask:0xf bank_mask:0xf")
        e(f"v_{op}_f32_dpp v{r1}, v{r1}, v{r1} {m} row_mask:0xf bank_mask:0xf")

def ln_from_stats(e, s1, s2, mean, rstd):
    e(f"v_mul_f32 v{mean}, {lit(1/640)}, v{s1}")
    e(f"v_mul_f32 v{s2}, {lit(1/640)}, v{s2}")
    e(f"v_fma_f32 v{s2}, -v{mean}, v{mean}, v{s2}")
    e(f"v_max_f32 v{s2}, 0, v{s2}")
    e(f"v_add_f32 v{s2}, {lit(EPS)}, v{s2}")
    e(f"v_rsq_f32 v{rstd}, v{s2}")

def pub(e, D, vo, sreg, imm, fl, tag):
    e.vm(f"buffer_store_dwordx4 {vr(D,4)}, v{vo}, s[{SRD_WS}:{SRD_WS+3}], s{sreg} offen offset:{imm} {fl}", tag)

def gemv(e, tiles, Dbase, nD, store):
    lag = nD - 1
    for t, steps in enumerate(tiles):
        D = vr(Dbase + 4 * (t % nD), 4)
        for s, (A, B) in enumerate(steps):
            e(f"v_mfma_f32_16x16x32_bf16 {D}, {A}, {B}, {'0' if s == 0 else D}")
        if t >= lag: store(t - lag, Dbase + 4 * ((t - lag) % nD))
    for t in range(max(0, len(tiles) - lag), len(tiles)): store(t, Dbase + 4 * (t % nD))

def read_bx(e, B):
    e.lg(f"ds_read_b128 {vr(B,4)}, v{V_BX}", "b0"); e.lg(f"ds_read_b128 {vr(B+4,4)}, v{V_BX} offset:64", "b1")
    e.lg(f"ds_read_b64 {vr(B+8,2)}, v{V_BX8}", "b2")
    e(f"v_mov_b32 v{B+10}, 0"); e(f"v_mov_b32 v{B+11}, 0")
def read_as(e, A):
    e.lg(f"ds_read_b128 {vr(A,4)}, v{V_AS}", "a0"); e.lg(f"ds_read_b128 {vr(A+4,4)}, v{V_AS} offset:64", "a1")
    e.lg(f"ds_read_b64 {vr(A+8,2)}, v{V_AS8}", "a2")
    e(f"v_mov_b32 v{A+10}, 0"); e(f"v_mov_b32 v{A+11}, 0")

def stage_Q(e, fl, reg_index):
    B, A = W0, W0 + 12
    read_bx(e, B); read_as(e, A)
    e(f"s_add_u32 s{S_A}, s{S_ROWN}, {reg_index*RG}")
    e.lg_wait("b2")
    tiles = [[(win(wq_frag(t, s)), vr(B + 4 * s, 4)) for s in range(3)] for t in range(12)]
    def store(t, D):
        if t < 12: pub(e, D, V_PQ, S_A, 64 * t, fl, ("pq", t))
        else:
            e(f"v_cndmask_b32 v{D+1}, v{D+1}, v{D+2}, s[{S_N1}:{S_N1+1}]")
            pub(e, D, V_PSQ, S_A, 0, fl, "pqs")
    stats = [(vr(A + 4 * s, 4), vr(B + 4 * s, 4)) for s in range(3)]
    e.lg_wait("a2")
    gemv(e, tiles + [stats], W0 + 24, 4, store)

def stage_GU(e, fl, const, with_stats=True):
    B, A, Db = W0, W0 + 12, W0 + 24
    read_bx(e, B)
    if with_stats: read_as(e, A)
    e(f"s_add_u32 s{S_A}, s{S_ROWN}, {const}" if const >= 0 else f"s_sub_u32 s{S_A}, s{S_ROWN}, {-const}")
    e.lg_wait("b2")
    def tile(d, f):
        d = vr(d, 4)
        for s in range(3): e(f"v_mfma_f32_16x16x32_bf16 {d}, {f(s)}, {vr(B+4*s,4)}, {'0' if s == 0 else d}")
    def pair(t, G):
        tile(G, lambda s: win(wg_frag(t, s)))
        tile(G + 4, lambda s: win(wu_frag(t, s)))
    def store(t, G):
        U = G + 4
        e(f"v_swap_b32 v{G+2}, v{U}"); e(f"v_swap_b32 v{G+3}, v{U+1}")
        pub(e, G, V_PG, S_A, 128 * t, fl, ("pg", t, 0))
        pub(e, U, V_PG, S_A, 128 * t + 16, fl, ("pg", t, 1))
    S = W0 + 40
    if with_stats:
        e.lg_wait("a2")
        tile(Db + 8, lambda s: vr(A + 4 * s, 4))
    pair(0, Db)
    if with_stats:
        S = Db + 8
        e(f"v_cndmask_b32 v{S+1}, v{S+1}, v{S+2}, s[{S_N1}:{S_N1+1}]")
        pub(e, S, V_PS, S_A, 0, fl, "pgs")
    pair(1, Db + 8)
    store(0, Db)
    pair(2, Db)
    store(1, Db + 8)
    store(2, Db)

def stage_WO(e, fl, region):
    B = W0
    for s in range(6): e.lg(f"ds_read_b128 {vr(B+4*s,4)}, v{V_BO} offset:{64*s}", ("o", s))
    e(f"s_add_u32 s{S_A}, s{S_LOWN}, {region*RG}")
    tiles = [[(win(wo_frag(t, s)), vr(B+4*s,4)) for s in range(6)] for t in range(5)]
    e.lg_wait(("o", 5))
    gemv(e, tiles, W0 + 24, 3, lambda t, D: pub(e, D, V_PL, S_A, 64 * t, fl, ("po", t)))

def stage_D(e, fl, region):
    B = W0
    e.lg(f"ds_read_b128 {vr(B,4)}, v{V_BH}", "h0"); e.lg(f"ds_read_b64 {vr(B+4,2)}, v{V_BH8}", "h1")
    e(f"v_mov_b32 v{B+6}, 0"); e(f"v_mov_b32 v{B+7}, 0")
    e(f"s_add_u32 s{S_A}, s{S_LOWN}, {region*RG}")
    tiles = [[(win(wd_frag(t, 0)), vr(B,4)), (win(wd_frag(t, 1)), vr(B+4,4))] for t in range(5)]
    e.lg_wait("h1")
    gemv(e, tiles, W0 + 8, 5, lambda t, D: pub(e, D, V_PL, S_A, 64 * t, fl, ("pd", t)))

def hop_LG(e, o, inst, k, abort, final_only=False):
    skip = e.newlabel("notleader")
    e(f"s_cmp_lg_u32 s{S_HQ}, 0"); e(f"s_cbranch_scc1 {skip}")
    e(f"s_add_u32 s{S_A}, s{S_LGRP}, {L_REG(inst,k)*RG}")
    gather8(e, o, V_LG, abort, n=4)
    sum_loads(e, 4)
    e(f"s_add_u32 s{S_A}, s{S_GOWN}, {G_OFF(inst,k)}")
    e(f"buffer_store_dwordx4 {vr(W0,4)}, v{V_LG}, s[{SRD_WS}:{SRD_WS+3}], s{S_A} offen sc1")
    e.label(skip)
    e.vmq = ["?"]
    if final_only:
        e(f"s_cmp_lg_u32 s{S_H}, 0"); e(f"s_cbranch_scc1 L_done")
    soffs(e, S_GGRP, G_OFF(inst, k))
    e.vmq = []
    gather8(e, o, V_LG, abort)
    sum_loads(e, 8)

def residual_update(e):
    e(f"v_pk_add_f32 {vr(W0,2)}, {vr(W0,2)}, {vr(V_XR,2)}")
    e(f"v_pk_add_f32 {vr(W0+2,2)}, {vr(W0+2,2)}, {vr(V_XR+2,2)}")
    e(f"v_cvt_pk_bf16_f32 v{W0+4}, v{W0}, v{W0+1}")
    e(f"v_cvt_pk_bf16_f32 v{W0+5}, v{W0+2}, v{W0+3}")
    e.lg(f"ds_write_b64 v{V_WX}, {vr(W0+4,2)}", "wx")
    e(f"v_lshlrev_b32 v{V_XR}, 16, v{W0+4}"); e(f"v_and_b32 v{V_XR+1}, 0xffff0000, v{W0+4}")
    e(f"v_lshlrev_b32 v{V_XR+2}, 16, v{W0+5}"); e(f"v_and_b32 v{V_XR+3}, 0xffff0000, v{W0+5}")

def store_out(e, row):
    skip = e.newlabel("noout")
    e(f"s_cmp_lg_u32 s{S_H}, 0"); e(f"s_cbranch_scc1 {skip}")
    make_srd(e, SRD_T, S_OUT, 2560)
    e(f"v_and_b32 v{V_T}, 31, v{V_LANE}"); e(f"v_lshlrev_b32 v{V_T}, 3, v{V_T}")
    e(f"s_mul_i32 s{S_T0}, s{S_J}, 160"); e(f"s_add_u32 s{S_T0}, s{S_T0}, {row*1280}")
    selmask(e, V_T, V_T, rows_mask([row], 20))
    e(f"buffer_store_dwordx2 {vr(W0+4,2)}, v{V_T}, s[{SRD_T}:{SRD_T+3}], s{S_T0} offen")
    e.label(skip)

def combine_publish(e, fl, parts, mlbase, region):
    T = W0
    e(f"v_mov_b32 v{V_T}, {mlbase}")
    e.lg(f"ds_read_b128 {vr(T,4)}, v{V_T}", "ml0"); e.lg(f"ds_read_b128 {vr(T+4,4)}, v{V_T} offset:16", "ml1")
    P = T + 8
    cur = None
    for w in range(4):
        if cur is None or not (0 <= parts[w] - cur < 60000):
            e(f"v_add_u32 v{V_T+1}, {parts[w]}, v{V_L16}"); cur = parts[w]
        for par in range(2):
            e.lg(f"ds_read_b128 {vr(P+8*w+4*par,4)}, v{V_T+1} offset:{parts[w] - cur + 768*par}", ("p", w, par))
    e(f"s_add_u32 s{S_A}, s{S_ROWN}, {region*RG}")
    e.lg_wait("ml1")
    m = [T, T + 2, T + 4, T + 6]; l = [T + 1, T + 3, T + 5, T + 7]
    M, Ls = T + 40, T + 41
    e(f"v_max3_f32 v{M}, v{m[0]}, v{m[1]}, v{m[2]}"); e(f"v_max_f32 v{M}, v{M}, v{m[3]}")
    for w in range(4): e(f"v_sub_f32 v{m[w]}, v{m[w]}, v{M}")
    for w in range(4): e(f"v_exp_f32 v{m[w]}, v{m[w]}")
    e(f"v_mul_f32 v{Ls}, v{m[0]}, v{l[0]}")
    for w in range(1, 4): e(f"v_fma_f32 v{Ls}, v{m[w]}, v{l[w]}, v{Ls}")
    for w in range(4):
        e.lg_wait(("p", w, 1))
        a = P + 8 * w
        e(f"v_pk_add_f32 {vr(a,2)}, {vr(a,2)}, {vr(a+4,2)}"); e(f"v_pk_add_f32 {vr(a+2,2)}, {vr(a+2,2)}, {vr(a+6,2)}")
        for r in range(4):
            if w == 0: e(f"v_mul_f32 v{P+r}, v{m[0]}, v{P+r}")
            else: e(f"v_fmac_f32 v{P+r}, v{m[w]}, v{a+r}")
    e(f"s_mov_b32 vcc_lo, 0"); e(f"s_mov_b32 vcc_hi, 0x00010000")
    e(f"v_cndmask_b32 v{P}, v{P}, v{M}, vcc"); e(f"v_cndmask_b32 v{P+1}, v{P+1}, v{Ls}, vcc")
    pub(e, P, V_R, S_A, 0, fl, "r1")

def hop_R1(e, o, region, row, abort):
    soffs(e, S_RGRP, region * RG)
    gather8(e, o, V_R, abort, extra=V_ML)
    X = W0 + 32
    M, wv = X + 2, X + 3
    e(f"v_mov_b32 v{M}, v{X}")
    dpp8(e, M, "max")
    e(f"v_sub_f32 v{wv}, v{X}, v{M}"); e(f"v_exp_f32 v{wv}, v{wv}")
    e(f"v_mul_f32 v{X+1}, v{wv}, v{X+1}")
    dpp8(e, X + 1, "add")
    e(f"v_rcp_f32 v{X+1}, v{X+1}")
    e(f"v_mul_f32 v{wv}, v{wv}, v{X+1}")
    acc = W0 + 36
    for k in range(8):
        for r in range(4):
            opn = "v_mul_f32_dpp" if k == 0 else "v_fmac_f32_dpp"
            e(f"{opn} v{acc+r}, v{wv}, v{W0+4*k+r} row_newbcast:{k} row_mask:0xf bank_mask:0xf")
    e(f"v_cvt_pk_bf16_f32 v{acc}, v{acc}, v{acc+1}"); e(f"v_cvt_pk_bf16_f32 v{acc+1}, v{acc+2}, v{acc+3}")
    e.lg(f"ds_write_b64 v{V_W8}, {vr(acc,2)} offset:{ACT_O - SB + 384*row}", "wo")

def hop_R2(e, o, inst, abort):
    soffs(e, S_RGRP, R2_REG[inst] * RG)
    gather8(e, o, V_R2, abort, extra=V_ST2)
    X = W0 + 32
    dpp8x2(e, X, X + 1, "add")
    sum_loads(e, 8)
    mean, rstd = X + 2, X + 3
    ln_from_stats(e, X, X + 1, mean, rstd)
    for r in range(4): e(f"v_fma_f32 v{W0+r}, -v{mean}, v{V_CSG+r}, v{W0+r}")
    for r in range(4): e(f"v_mul_f32 v{W0+r}, v{rstd}, v{W0+r}")
    e(f"v_max_f32 v{W0}, 0, v{W0}"); e(f"v_max_f32 v{W0+1}, 0, v{W0+1}")
    e(f"v_mul_f32 v{W0}, v{W0}, v{W0+2}"); e(f"v_mul_f32 v{W0+1}, v{W0+1}, v{W0+3}")
    e(f"v_cvt_pk_bf16_f32 v{W0}, v{W0}, v{W0+1}")
    e.lg(f"ds_write_b32 v{V_WH}, v{W0}", "wh")

def hop_R3(e, o, region, row, abort):
    soffs(e, S_RGRP, region * RG)
    gather8(e, o, V_R, abort, extra=V_ML)
    X = W0 + 32
    dpp8x2(e, X, X + 1, "add")
    sum_loads(e, 8)
    mean, rstd = X + 2, X + 3
    ln_from_stats(e, X, X + 1, mean, rstd)
    for r in range(4): e(f"v_fma_f32 v{W0+r}, -v{mean}, v{V_CSQ+r}, v{W0+r}")
    for r in range(4): e(f"v_mul_f32 v{W0+r}, v{rstd}, v{W0+r}")
    e(f"v_cvt_pk_bf16_f32 v{W0}, v{W0}, v{W0+1}"); e(f"v_cvt_pk_bf16_f32 v{W0+1}, v{W0+2}, v{W0+3}")
    e.lg(f"ds_write_b64 v{V_W8}, {vr(W0,2)} offset:{QARR - SB + 384*row}", "wq")

def chain(e, o, fl, inst, live, abort, st):
    stage_WO(e, fl, L_REG(inst, 0))
    hop_LG(e, o, inst, 0, abort)
    residual_update(e)
    stage_GU(e, fl, R2_REG[inst] * RG)
    hop_R2(e, o, inst, abort)
    stage_D(e, fl, L_REG(inst, 1))
    hop_LG(e, o, inst, 1, abort, final_only=(inst == 2))
    residual_update(e)
    if inst == 1: store_out(e, 0)
    if inst == 2:
        store_out(e, 1); return
    qrow = 0 if inst == 0 else 1
    stage_Q(e, fl, R3_REG[inst] - qrow)
    hop_R3(e, o, R3_REG[inst], qrow, abort)
    e.lg_all()

def chain_wave(e, o, st, local):
    fl = "" if local else "sc1"
    abort = "L_abort"
    R = NS(vlds=V_L16, voffK=1, voffX=2, voffY=3, sel=V_SEL, qA=32, D=44, sc=56, tmp=57, vpw=62, acc=32, A=44, pp=52, vpp=63, vm=60, vl=61)
    e(f"v_mov_b32 v{W0}, -1"); e(f"v_mov_b32 v{W0+1}, -1"); e(f"v_mov_b32 v{W0+2}, -1"); e(f"v_mov_b32 v{W0+3}, -1")
    def reset(vo, sreg, const, f):
        e(f"s_add_u32 s{S_A}, s{sreg}, {const}")
        e.vm(f"buffer_store_dwordx4 {vr(W0,4)}, v{vo}, s[{SRD_WS}:{SRD_WS+3}], s{S_A} offen {f}", "rst")
    for r in list(R1_REG.values()) + [4, 5, 6, 7, 8]: reset(V_R, S_ROWN, r * RG, fl)
    e(f"v_and_b32 v{V_T}, 31, v{V_LANE}"); e(f"v_lshlrev_b32 v{V_T}, 4, v{V_T}")
    e(f"v_lshrrev_b32 v{V_T+1}, 5, v{V_LANE}"); e(f"v_lshl_add_u32 v{V_T}, v{V_T+1}, 9, v{V_T}")
    liv = {0: [0], 1: [0, 1], 2: [1], 'P': [0]}
    for inst in ('P', 0, 1, 2):
        selmask(e, W0 + 4, V_T, rows_mask(liv[inst], 25))
        reset(W0 + 4, S_ROWN, R2_REG[inst] * RG, fl)
        if inst == 'P': continue
        selmask(e, W0 + 4, V_T, rows_mask(liv[inst], 20))
        for k in range(2): reset(W0 + 4, S_LOWN, L_REG(inst, k) * RG, fl)
        skip = e.newlabel("norstg")
        e(f"s_cmp_lg_u32 s{S_HQ}, 0"); e(f"s_cbranch_scc1 {skip}")
        for k in range(2):
            e(f"s_add_u32 s{S_A}, s{S_GOWN}, {G_OFF(inst,k)}")
            e(f"buffer_store_dwordx4 {vr(W0,4)}, v{W0+4}, s[{SRD_WS}:{SRD_WS+3}], s{S_A} offen sc1")
        e.label(skip)
    e.vm_all(force=True)
    e(f"s_or_b32 s{S_T0}, s{S_T2}, 0x40")
    e(f"v_mov_b32 v{V_T}, s{S_T0}"); e(f"v_mov_b32 v{V_T+1}, s2")
    e("s_mov_b64 exec, 1")
    e.vm(f"buffer_store_byte v{V_T}, v{V_T+1}, s[{SRD_DBG}:{SRD_DBG+3}], 0 offen sc1", "f2")
    e("s_mov_b64 exec, -1")
    st("reset")
    i, g, r, c, t = W0, W0 + 1, W0 + 2, W0 + 3, W0 + 4
    e(f"v_and_b32 v{i}, 15, v{V_LANE}"); e(f"v_lshrrev_b32 v{g}, 4, v{V_LANE}")
    e(f"v_lshrrev_b32 v{r}, 2, v{i}"); e(f"v_and_b32 v{c}, 3, v{i}")
    def trbase(dst, stride, rows_per_g, base):
        e(f"v_mul_u32_u24 v{t}, {rows_per_g}, v{g}"); e(f"v_add_u32 v{t}, v{t}, v{r}")
        e(f"v_mul_u32_u24 v{t}, {stride}, v{t}"); e(f"v_lshl_add_u32 v{dst}, v{c}, 3, v{t}")
        if base: e(f"v_add_u32 v{dst}, {base}, v{dst}")
    def tr(frag, addr, off, k16, stride):
        f, lo = frag
        e.lg(f"ds_read_b64_tr_b16 {f}[{lo}:{lo+1}], v{addr} offset:{off}", "tr")
        if not k16: e.lg(f"ds_read_b64_tr_b16 {f}[{lo+2}:{lo+3}], v{addr} offset:{off+4*stride}", "tr")
        if len(e.lgq) >= 12: e.lg_all()
    a32, a16 = W0 + 6, W0 + 7
    for frag, nt, stride, base, ks in ((wq_frag, 12, 384, ST_WQ, (0, 32, 64)), (wo_frag, 5, 160, ST_WO, (0, 32, 64, 96, 128, 160)),
                                       (wg_frag, 3, 96, ST_WG, (0, 32, 64)), (wu_frag, 3, 96, ST_WU, (0, 32, 64)), (wd_frag, 5, 160, ST_WD, (0, 32))):
        trbase(a32, stride, 8, base); trbase(a16, stride, 4, base)
        nk = len(ks)
        for tt in range(nt):
            for s, k0 in enumerate(ks):
                k16 = (frag is not wo_frag) and s == nk - 1
                tr(frag(tt, s), a16 if k16 else a32, k0 * stride + 32 * tt, k16, stride)
    e.lg_all()
    st("weights")
    make_srd(e, SRD_T, S_X, 2560)
    e(f"v_and_b32 v{V_T}, 31, v{V_LANE}"); e(f"v_lshlrev_b32 v{V_T}, 3, v{V_T}")
    e(f"v_lshrrev_b32 v{V_T+1}, 5, v{V_LANE}"); e(f"v_mul_u32_u24 v{V_T+1}, 1280, v{V_T+1}"); e(f"v_add_u32 v{V_T}, v{V_T}, v{V_T+1}")
    selmask(e, V_T, V_T, rows_mask([0, 1], 20))
    e(f"s_mul_i32 s{S_T0}, s{S_J}, 160")
    e.vm(f"buffer_load_dwordx2 {vr(W0,2)}, v{V_T}, s[{SRD_T}:{SRD_T+3}], s{S_T0} offen", "x")
    e(f"v_mov_b32 v{W0+2}, 0x3f803f80"); e(f"v_mov_b32 v{W0+3}, 0x3f803f80")
    e(f"v_lshlrev_b32 v{W0+4}, 3, v{V_LANE}"); e(f"v_add_u32 v{W0+4}, {ACT_X+384}, v{W0+4}")
    set_exec(e, mask64(range(24)))
    e.lg(f"ds_write_b64 v{W0+4}, {vr(W0+2,2)}", "ones")
    e("s_mov_b64 exec, -1")
    e.vm_all()
    e.lg(f"ds_write_b64 v{V_WX}, {vr(W0,2)}", "wx")
    e(f"v_lshlrev_b32 v{V_XR}, 16, v{W0}"); e(f"v_and_b32 v{V_XR+1}, 0xffff0000, v{W0}")
    e(f"v_lshlrev_b32 v{V_XR+2}, 16, v{W0+1}"); e(f"v_and_b32 v{V_XR+3}, 0xffff0000, v{W0+1}")
    e.lg_all()
    lab = e.newlabel("flag2")
    e(f"v_lshlrev_b32 v{V_T+1}, 2, v{V_LANE}")
    e(f"s_mov_b32 s{S_CNT}, {o.poll_limit}")
    e.label(lab)
    e(f"buffer_load_dword v{V_T}, v{V_T+1}, s[{SRD_DBG}:{SRD_DBG+3}], 0 offen sc1")
    e(f"s_sub_u32 s{S_CNT}, s{S_CNT}, 1"); e(f"s_cbranch_scc1 {abort}")
    e("s_waitcnt vmcnt(0)")
    e(f"v_and_b32 v{V_T}, 0x40404040, v{V_T}")
    e(f"v_cmp_ne_u32 vcc, 0x40404040, v{V_T}")
    e(f"s_cbranch_vccnz {lab}")
    st("flag2")
    instance_offsets(e, [0, 1], pub_live=[0, 1, 2])
    stage_Q(e, fl, R3_REG['P'])
    soffs(e, S_RGRP, 6 * RG)
    gather8(e, o, V_R, abort)
    sum_loads(e, 8)
    for rr in range(4): e(f"v_mov_b32 v{V_CSQ+rr}, v{W0+rr}")
    hop_R3(e, o, 4, 0, abort)
    hop_R3(e, o, 5, 1, abort)
    st("q1")
    instance_offsets(e, [0, 1], pub_live=[2])
    stage_GU(e, fl, R2_REG['P'] * RG - 1024, with_stats=False)
    e(f"v_and_b32 v{V_T}, 31, v{V_LANE}"); e(f"v_lshlrev_b32 v{V_T}, 4, v{V_T}")
    selmask(e, W0 + 40, V_T, rows_mask([0, 1], 24))
    soffs(e, S_RGRP, R2_REG['P'] * RG)
    gather8(e, o, W0 + 40, abort)
    sum_loads(e, 8)
    for rr in range(4): e(f"v_mov_b32 v{V_CSG+rr}, v{W0+rr}")
    def load_tiles(base):
        for T in range(CW_TILES):
            kv_soff(e, base, T)
            for s in range(3): ld_k(e, R, vr(CW_K + 12 * T + 4 * s, 4), s, ('K', T, s), o)
        for T in range(CW_TILES):
            kv_soff(e, base, T)
            for w in range(3): ld_v(e, R, vr(CW_V + 12 * T + 4 * w, 4), w, ('V', T, w), o)
    load_tiles(S_KV0)
    instance_offsets(e, [0])
    e.lg_all()
    st("pro_done")
    e("s_barrier")
    Kf = lambda T, s: vr(CW_K + 12 * T + 4 * s, 4)
    Vf = lambda T, w: vr(CW_V + 12 * T + 4 * w, 4)
    def kw(T):
        if T >= 0: e.vm_wait(('K', T, 2))
    def vw(T, w): e.vm_wait(('V', T, w))
    attn_pass(e, R, CW_TILES, 0, Kf, Vf, S_PB, 0, k_wait=kw, v_wait=vw)
    e("s_barrier")
    st("bar2")
    parts = [PART + 1536 * w for w in range(4)]
    combine_publish(e, fl, parts, ML, R1_REG[0])
    hop_R1(e, o, R1_REG[0], 0, abort)
    chain(e, o, fl, 0, [0], abort, st)
    st("chain0")
    e("s_barrier")
    attn_pass(e, R, CW_TILES, 0, Kf, Vf, S_PB, 32)
    e("s_barrier")
    parts_early = [PART] + [LDS_SW * s + 48 * 1024 for s in range(3)]
    combine_publish(e, fl, parts_early, ML + 32, R1_REG['1a'])
    load_tiles(S_KV1)
    instance_offsets(e, [0, 1])
    hop_R1(e, o, R1_REG['1a'], 0, abort)
    e.vmq = []
    attn_pass(e, R, CW_TILES, 1, Kf, Vf, S_PB, 0)
    e("s_barrier")
    st("bar6")
    combine_publish(e, fl, parts, ML, R1_REG['1b'])
    hop_R1(e, o, R1_REG['1b'], 1, abort)
    chain_inst1(e, o, fl, abort, st)
    st("chain1")
    e("s_barrier")
    attn_pass(e, R, CW_TILES, 1, Kf, Vf, S_PB, 0)
    instance_offsets(e, [1])
    e("s_barrier")
    st("bar8")
    combine_publish(e, fl, parts, ML, R1_REG[2])
    hop_R1(e, o, R1_REG[2], 1, abort)
    chain(e, o, fl, 2, [1], abort, st)
    st("chain2")
    e("s_branch L_done")

def chain_inst1(e, o, fl, abort, st):
    stage_WO(e, fl, L_REG(1, 0))
    hop_LG(e, o, 1, 0, abort)
    residual_update(e)
    stage_GU(e, fl, R2_REG[1] * RG)
    hop_R2(e, o, 1, abort)
    stage_D(e, fl, L_REG(1, 1))
    hop_LG(e, o, 1, 1, abort)
    residual_update(e)
    store_out(e, 0)
    cm = cols_mask([1]); e(f"s_mov_b32 vcc_lo, 0x{cm & 0xffffffff:08x}"); e(f"s_mov_b32 vcc_hi, 0x{cm >> 32:08x}")
    e(f"v_cndmask_b32 v{V_PQ}, v{V_OOB}, v{V_PQ}, vcc"); e(f"v_cndmask_b32 v{V_PSQ}, v{V_OOB}, v{V_PSQ}, vcc")
    stage_Q(e, fl, R3_REG[1] - 1)
    hop_R3(e, o, R3_REG[1], 1, abort)
    e.lg_all()

def chain_wave_setup(e, o):
    L = V_LANE
    e(f"s_add_u32 s{S_KV0}, s{S_KV0}, {60*TILE_B}")
    e(f"s_add_u32 s{S_KV1}, s{S_KV0}, {BATCH_STRIDE}")
    make_srd(e, SRD_DBG, S_DBG, 256)
    e(f"v_mov_b32 v{V_OOB}, 0x{OOB:08x}")
    e(f"s_getreg_b32 s{S_T2}, hwreg(HW_REG_XCC_ID)")
    e(f"s_and_b32 s{S_T2}, s{S_T2}, 0xf"); e(f"s_or_b32 s{S_T2}, s{S_T2}, 0x80")
    lane_id(e, L)
    e(f"v_mov_b32 v{V_T}, s{S_T2}"); e(f"v_mov_b32 v{V_T+1}, s2")
    e("s_mov_b64 exec, 1")
    e.vm(f"buffer_store_byte v{V_T}, v{V_T+1}, s[{SRD_DBG}:{SRD_DBG+3}], 0 offen sc1", "f1")
    e("s_mov_b64 exec, -1")
    t, u = W0, W0 + 1
    def dma_block(ptr, nbytes, lanes_per_row, magic, shift, nlanes, row_stride, rows_per_instr, ninstr, soff0_fn, lds0):
        make_srd(e, SRD_T, ptr, nbytes)
        e(f"v_mul_u32_u24 v{t}, {magic}, v{L}"); e(f"v_lshrrev_b32 v{t}, {shift}, v{t}")
        e(f"v_mul_u32_u24 v{u}, {lanes_per_row}, v{t}"); e(f"v_sub_u32 v{u}, v{L}, v{u}")
        e(f"s_mov_b32 s{S_T1}, {row_stride}")
        e(f"v_mul_lo_u32 v{t}, v{t}, s{S_T1}"); e(f"v_lshl_add_u32 v{t}, v{u}, 4, v{t}")
        soff0_fn()
        set_exec(e, mask64(range(nlanes)))
        for i in range(ninstr):
            e(f"s_mov_b32 m0, {lds0 + i*nlanes*16}")
            if i: e(f"s_add_u32 s{S_SOFF}, s{S_SOFF}, {rows_per_instr*row_stride}")
            else: e("s_nop 0")
            e.vm_depth(40)
            e.vm(f"buffer_load_dwordx4 v{t}, s[{SRD_T}:{SRD_T+3}], s{S_SOFF} offen {o.wflags} lds", "w")
        e("s_mov_b64 exec, -1")
    def so(row_mul_reg, row_mul, row_stride, col_reg, col_mul):
        def f():
            e(f"s_mul_i32 s{S_SOFF}, s{row_mul_reg}, {row_mul*row_stride}")
            e(f"s_mul_i32 s{S_T1}, s{col_reg}, {col_mul}"); e(f"s_add_u32 s{S_SOFF}, s{S_SOFF}, s{S_T1}")
        return f
    dma_block(S_WQ, 7864320, 24, 43, 10, 48, 12288, 2, 40, so(S_J, 80, 12288, S_H, 384), ST_WQ)
    dma_block(S_WG, 1966080, 6, 43, 8, 60, 3072, 10, 8, so(S_J, 80, 3072, S_H, 96), ST_WG)
    dma_block(S_WU, 1966080, 6, 43, 8, 60, 3072, 10, 8, so(S_J, 80, 3072, S_H, 96), ST_WU)
    dma_block(S_WO, 7864320, 10, 103, 10, 60, 1280, 6, 32, so(S_H, 192, 1280, S_J, 160), ST_WO)
    dma_block(S_WD, 1966080, 10, 103, 10, 60, 1280, 6, 8, so(S_H, 48, 1280, S_J, 160), ST_WD)
    R = NS(voffK=1, voffX=2, voffY=3, sel=V_SEL)
    attn_load_offsets(e, R, L, W0); attn_selectors(e, R, L, W0)
    n, g, x = W0, W0 + 1, W0 + 2
    e(f"v_lshlrev_b32 v{V_L16}, 4, v{L}")
    selmask(e, V_R, V_L16, mask64(range(49)))
    e(f"v_mov_b32 v{W0+3}, v{V_L16}"); selmask(e, V_L16, W0 + 3, mask64(range(48)), other=0)
    e(f"v_and_b32 v{n}, 15, v{L}"); e(f"v_lshrrev_b32 v{g}, 4, v{L}")
    e(f"v_min_u32 v{x}, 1, v{n}")
    e(f"v_mul_u32_u24 v{V_BO}, 384, v{x}"); e(f"v_lshl_add_u32 v{V_BO}, v{g}, 4, v{V_BO}"); e(f"v_add_u32 v{V_BO}, {ACT_O}, v{V_BO}")
    e(f"v_lshlrev_b32 v{V_BH}, 7, v{x}"); e(f"v_lshl_add_u32 v{V_BH8}, v{g}, 3, v{V_BH}"); e(f"v_add_u32 v{V_BH8}, {ACT_H+64}, v{V_BH8}")
    e(f"v_lshl_add_u32 v{V_BH}, v{g}, 4, v{V_BH}"); e(f"v_add_u32 v{V_BH}, {ACT_H}, v{V_BH}")
    e(f"v_min_u32 v{x}, 2, v{n}")
    e(f"v_mul_u32_u24 v{V_BX}, 192, v{x}"); e(f"v_lshl_add_u32 v{V_BX8}, v{g}, 3, v{V_BX}"); e(f"v_add_u32 v{V_BX8}, {ACT_X+128}, v{V_BX8}")
    e(f"v_lshl_add_u32 v{V_BX}, v{g}, 4, v{V_BX}"); e(f"v_add_u32 v{V_BX}, {ACT_X}, v{V_BX}")
    e(f"v_subrev_u32 v{x}, 1, v{n}"); e(f"v_min_u32 v{x}, 2, v{x}")
    e(f"v_mul_u32_u24 v{V_AS}, 192, v{x}"); e(f"v_lshl_add_u32 v{V_AS8}, v{g}, 3, v{V_AS}"); e(f"v_add_u32 v{V_AS8}, {ACT_X+128}, v{V_AS8}")
    e(f"v_lshl_add_u32 v{V_AS}, v{g}, 4, v{V_AS}"); e(f"v_add_u32 v{V_AS}, {ACT_X}, v{V_AS}")
    e(f"v_lshlrev_b32 v{x}, 3, v{L}"); e(f"v_add_u32 v{x}, {SB}, v{x}"); selmask(e, V_W8, x, mask64(range(48)), other=SB+2560)
    e(f"v_and_b32 v{n}, 31, v{L}"); e(f"v_lshrrev_b32 v{g}, 5, v{L}")
    e(f"v_mul_u32_u24 v{x}, 192, v{g}"); e(f"v_lshl_add_u32 v{x}, v{n}, 3, v{x}"); e(f"v_add_u32 v{x}, {ACT_X}, v{x}")
    selmask(e, V_WX, x, rows_mask([0, 1], 20), other=DUMMY)
    e(f"v_lshlrev_b32 v{x}, 7, v{g}"); e(f"v_lshl_add_u32 v{x}, v{n}, 2, v{x}"); e(f"v_add_u32 v{x}, {ACT_H}, v{x}")
    selmask(e, V_WH, x, rows_mask([0, 1], 24), other=DUMMY)
    e(f"v_and_b32 v{x}, 7, v{L}"); e(f"v_lshlrev_b32 v{x}, 10, v{x}"); e(f"v_add_u32 v{V_ML}, 768, v{x}")
    m = mask64([16 * a + 1 for a in range(4)])
    e(f"s_mov_b32 s{S_N1}, 0x{m & 0xffffffff:08x}"); e(f"s_mov_b32 s{S_N1+1}, 0x{m >> 32:08x}")
    e(f"s_lshl_b32 s{S_RGRP}, s{S_H}, 13"); e(f"s_lshl_b32 s{S_T0}, s{S_J}, 10"); e(f"s_add_u32 s{S_ROWN}, s{S_RGRP}, s{S_T0}")
    e(f"s_lshl_b32 s{S_LGRP}, s{S_XC}, 3"); e(f"s_add_u32 s{S_LGRP}, s{S_LGRP}, s{S_J}"); e(f"s_lshl_b32 s{S_LGRP}, s{S_LGRP}, 12")
    e(f"s_lshl_b32 s{S_T0}, s{S_HQ}, 10"); e(f"s_add_u32 s{S_LOWN}, s{S_LGRP}, s{S_T0}")
    e(f"s_lshl_b32 s{S_GGRP}, s{S_J}, 13"); e(f"s_lshl_b32 s{S_T0}, s{S_XC}, 10"); e(f"s_add_u32 s{S_GOWN}, s{S_GGRP}, s{S_T0}")
    lab = e.newlabel("flag1")
    e(f"v_lshlrev_b32 v{V_T+1}, 2, v{L}")
    e(f"s_mov_b32 s{S_CNT}, {o.poll_limit}")
    e.vm_all()
    e.label(lab)
    e(f"buffer_load_dword v{W0}, v{V_T+1}, s[{SRD_DBG}:{SRD_DBG+3}], 0 offen sc1")
    e(f"s_sub_u32 s{S_CNT}, s{S_CNT}, 1"); e(f"s_cbranch_scc1 L_abort")
    e("s_waitcnt vmcnt(0)")
    e(f"v_and_b32 v{V_T}, 0x80808080, v{W0}")
    e(f"v_cmp_ne_u32 vcc, 0x80808080, v{V_T}")
    e(f"s_cbranch_vccnz {lab}")
    e(f"s_and_b32 s{S_T0}, s{S_XC}, 3"); e(f"s_lshl_b32 s{S_T0}, s{S_T0}, 3")
    e(f"v_lshrrev_b32 v{W0}, s{S_T0}, v{W0}"); e(f"v_and_b32 v{W0}, 0x0f, v{W0}")
    e(f"s_and_b32 s{S_T1}, s{S_T2}, 0x0f")
    e(f"v_cmp_ne_u32 vcc, s{S_T1}, v{W0}")
    e("s_nop 3")
    e(f"s_lshr_b32 s{S_T0}, s{S_XC}, 2")
    e(f"s_mov_b32 s{S_A}, 0x55555555"); e(f"s_lshl_b32 s{S_A}, s{S_A}, s{S_T0}")
    e(f"s_and_b32 s{S_B}, vcc_lo, s{S_A}"); e(f"s_and_b32 s{S_A}, vcc_hi, s{S_A}"); e(f"s_or_b32 s{S_A}, s{S_A}, s{S_B}")
    e(f"s_cmp_lg_u32 s{S_A}, 0")

def generate(o):
    e = Emit()
    e("s_cmp_ge_u32 s2, 256"); e("s_cbranch_scc1 L_done")
    e("s_load_dwordx16 s[4:19], s[0:1], 0"); e("s_load_dwordx8 s[20:27], s[0:1], 64")
    e("v_lshrrev_b32 v1, 6, v0")
    e(f"s_and_b32 s{S_XC}, s2, 7"); e(f"s_lshr_b32 s{S_HQ}, s2, 6")
    e(f"v_readfirstlane_b32 s{S_WAVE}, v1")
    e(f"s_lshr_b32 s{S_J}, s2, 3"); e(f"s_and_b32 s{S_J}, s{S_J}, 7")
    e(f"s_lshl_b32 s{S_H}, s{S_XC}, 2"); e(f"s_add_u32 s{S_H}, s{S_H}, s{S_HQ}")
    e(f"s_mul_i32 s{S_KV0}, s{S_H}, {HEAD_STRIDE}"); e(f"s_mul_i32 s{S_T0}, s{S_J}, {CHUNK_STRIDE}"); e(f"s_add_u32 s{S_KV0}, s{S_KV0}, s{S_T0}")
    e(f"s_mov_b32 s{S_C}, {lit(CSCALE)}")
    e(f"s_mov_b32 s{S_HI32}, 0"); e(f"s_mov_b32 s{S_HI32+1}, -1")
    e(f"s_mul_i32 s{S_PB}, s{S_WAVE}, 1536"); e(f"s_add_u32 s{S_PB}, s{S_PB}, {PART}")
    e(f"s_lshl_b32 s{S_MLB}, s{S_WAVE}, 3"); e(f"s_add_u32 s{S_MLB}, s{S_MLB}, {ML}")
    e("s_waitcnt lgkmcnt(0)")
    make_srd(e, SRD_K, S_K, KV_BYTES); make_srd(e, SRD_V, S_V, KV_BYTES); make_srd(e, SRD_WS, S_WS, WS_REC)
    e(f"s_cmp_eq_u32 s{S_WAVE}, 0"); e("s_cbranch_scc1 L_chain")
    st_s = Stamps(e, o.stamps); st_s("start")
    stream_wave(e, o, st_s)
    e.label("L_chain")
    e.vmq = []; e.lgq = []
    st_c = Stamps(e, o.stamps); st_c("start")
    chain_wave_setup(e, o)
    names = {}
    if o.force_global: e("s_branch L_global")
    else: e("s_cbranch_scc1 L_global")
    base_names = list(st_c.names)
    sv = (list(e.vmq), list(e.lgq))
    chain_wave(e, o, st_c, True)
    names['cw'] = list(st_c.names); names['sw'] = list(st_s.names)
    e.label("L_global")
    e.vmq, e.lgq = sv
    st_g = Stamps(e, o.stamps); st_g.names = list(base_names)
    chain_wave(e, o, st_g, False)
    e.label("L_abort")
    e.label("L_done")
    if o.stamps:
        e("s_cmp_ge_u32 s2, 256"); e("s_cbranch_scc1 L_exit")
        fl = Stamps(e, True); fl.names = names['cw']; fl.flush()
        e.label("L_exit")
    e("s_endpgm")
    return e, names

HEAD = """; Kernarg: A_x, K, V, wq, wo, B_x, W_gate, W_up, W_down, out, debug, ws (pointers)
; @launch grid=(256,1,1) block=(256,1,1) lds=%d
.amdgcn_target "amdgcn-amd-amdhsa--gfx950"
.text
.globl %s
.p2align 8
.type %s,@function
%s:
"""
FOOT = """
.section .rodata,"a"
.p2align 6
.amdhsa_kernel %s
  .amdhsa_next_free_vgpr 512
  .amdhsa_next_free_sgpr 102
  .amdhsa_accum_offset 256
  .amdhsa_group_segment_fixed_size 0
  .amdhsa_kernarg_size 96
  .amdhsa_user_sgpr_count 2
  .amdhsa_user_sgpr_kernarg_segment_ptr 1
  .amdhsa_system_sgpr_workgroup_id_x 1
  .amdhsa_float_denorm_mode_32 3
.end_amdhsa_kernel
"""
def build_text(o):
    e, names = generate(o)
    return HEAD % (LDS_TOTAL, NAME, NAME, NAME) + e.text() + "\n" + FOOT % NAME, names, e

if __name__ == "__main__":
    o = Opt()
    for a in sys.argv[2:]:
        k, v = a.split("=")
        cur = getattr(o, k)
        setattr(o, k, (v not in ("0", "False")) if isinstance(cur, bool) else type(cur)(v))
    txt, names, e = build_text(o)
    open(sys.argv[1], "w").write(txt)
    print("instructions:", e.ninst, "nops:", e.nops, names)
```

```python
import re

TRANS = ("v_exp_f32", "v_log_f32", "v_rcp_f32", "v_rsq_f32", "v_sqrt_f32", "v_sin_f32", "v_cos_f32", "v_rcp_iflag_f32")
REG_RE = re.compile(r"^(-|\|)?(abs\()?([vas])(\d+)\)?\|?$")
RNG_RE = re.compile(r"^(-)?([vas])\[(\d+):(\d+)\]$")

def regs_of(tok):
    tok = tok.strip()
    if tok in ("vcc",): return [("s", "vcc")]
    if tok in ("vcc_lo", "vcc_hi"): return [("s", "vcc")]
    if tok == "exec": return [("s", "exec")]
    if tok == "m0": return [("s", "m0")]
    m = REG_RE.match(tok)
    if m: return [(m.group(3), int(m.group(4)))]
    m = RNG_RE.match(tok)
    if m: return [(m.group(2), i) for i in range(int(m.group(3)), int(m.group(4)) + 1)]
    return []

def split_ops(rest):
    out, depth, cur = [], 0, ""
    for ch in rest:
        if ch == "[": depth += 1
        if ch == "]": depth -= 1
        if ch == "," and depth == 0:
            out.append(cur.strip()); cur = ""
        else: cur += ch
    if cur.strip(): out.append(cur.strip())
    mods = ""
    if out:
        parts = out[-1].split(None, 1)
        if len(parts) == 2 and not parts[0].startswith("hwreg"):
            out[-1] = parts[0]; mods = parts[1]
    return out, mods

class Emit:
    def __init__(self, auto=True):
        self.lines = []
        self.t = 0
        self.wr = {}
        self.crd = {}
        self.std = {}
        self.auto = auto
        self.vmq = []
        self.lgq = []
        self.nops = 0
        self.ninst = 0
        self.uid = 0
    def raw(self, s): self.lines.append(s)
    def comment(self, s): self.lines.append("  ; " + s)
    def label(self, name):
        self.lines.append(name + ":")
    def newlabel(self, base):
        self.uid += 1
        return f"L_{base}_{self.uid}"
    def nop(self, n):
        while n > 0:
            k = min(n, 16)
            self.lines.append(f"  s_nop {k-1}")
            self.t += k; n -= k; self.nops += 1; self.ninst += 1
    def fence(self, n=8):
        self.nop(n)
    def __call__(self, text):
        text = text.strip()
        if not text: return
        sp = text.split(None, 1)
        op = sp[0]; rest = sp[1] if len(sp) > 1 else ""
        ops, mods = split_ops(rest)
        need = 0
        def since(tm): return self.t - tm
        def req(reg, dist, kinds):
            nonlocal need
            w = self.wr.get(reg)
            if w and w[1] in kinds:
                gap = self.t - w[0] - 1
                if gap < dist: need = max(need, dist - gap)
        def req_time(tm, dist):
            nonlocal need
            if tm is None: return
            gap = self.t - tm - 1
            if gap < dist: need = max(need, dist - gap)
        is_mfma = op.startswith("v_mfma")
        is_valu = op.startswith("v_") and not is_mfma
        is_ds = op.startswith("ds_")
        is_vmem = op.startswith(("buffer_", "global_", "flat_"))
        is_salu = op.startswith("s_")
        dsts, srcs = [], []
        if is_mfma:
            D = regs_of(ops[0]); A = regs_of(ops[1]); B = regs_of(ops[2]); C = regs_of(ops[3]) if len(ops) > 3 else []
            for r in A + B:
                req(r, 2, ("valu", "trans")); req(r, 8, ("mfma",))
            for r in C:
                req(r, 2, ("valu", "trans"))
                w = self.wr.get(r)
                if w and w[1] == "mfma" and w[2] != tuple(D):
                    req(r, 6, ("mfma",))
                elif w and w[1] == "mfma" and tuple(C) != tuple(D) :
                    req(r, 6, ("mfma",))
            for r in D:
                w = self.wr.get(r)
                if w and w[1] == "mfma" and not (tuple(C) == tuple(D) and w[2] == tuple(D)):
                    req(r, 8, ("mfma",))
            for r in D: req_time(self.std.get(r), 2)
            dsts = D; kind = "mfma"
        elif is_valu:
            base = op.replace("_e32", "").replace("_e64", "").replace("_dpp", "").replace("_sdwa", "")
            dpp = ("_dpp" in op) or any(k in mods for k in ("row_", "quad_perm", "wave_"))
            if base.startswith("v_cmp"):
                dsts = regs_of(ops[0]); srcs = sum((regs_of(o) for o in ops[1:]), [])
            elif base in ("v_readlane_b32", "v_readfirstlane_b32"):
                dsts = regs_of(ops[0]); srcs = sum((regs_of(o) for o in ops[1:]), [])
                for r in regs_of(ops[1]): req(r, 1, ("valu", "trans"))
                if len(ops) > 2:
                    for r in regs_of(ops[2]): req(r, 4, ("valu_s",))
            elif base in ("v_swap_b32", "v_permlane32_swap_b32", "v_permlane16_swap_b32"):
                dsts = regs_of(ops[0]) + regs_of(ops[1]); srcs = list(dsts)
                if base != "v_swap_b32":
                    for r in srcs: req(r, 2, ("valu", "trans"))
            elif base in ("v_add_co_u32", "v_addc_co_u32", "v_sub_co_u32"):
                dsts = regs_of(ops[0]) + regs_of(ops[1]); srcs = sum((regs_of(o) for o in ops[2:]), [])
            else:
                dsts = regs_of(ops[0]); srcs = sum((regs_of(o) for o in ops[1:]), [])
                if base in ("v_fmac_f32", "v_mac_f32", "v_pk_fmac_f16", "v_dot2c_f32_bf16", "v_writelane_b32"): srcs = srcs + dsts
                if base == "v_cndmask_b32" and len(ops) == 3: srcs = srcs + [("s", "vcc")]
                if base == "v_writelane_b32":
                    for r in regs_of(ops[2]): req(r, 4, ("valu_s",))
            for r in srcs:
                req(r, 8, ("mfma",))
                if r[0] == "s": req(r, 2, ("valu_s",))
                if base not in TRANS and base+"_e32" not in TRANS: req(r, 1, ("trans",))
                else: req(r, 1, ("trans",))
            if dpp:
                for r in regs_of(ops[1]): req(r, 2, ("valu", "trans"))
            for r in dsts:
                req(r, 8, ("mfma",))
                req_time(self.crd.get(r), 3)
                req_time(self.std.get(r), 2)
            kind = "trans" if base in TRANS else "valu"
        elif is_ds:
            if op.startswith(("ds_read", "ds_bpermute", "ds_permute", "ds_swizzle")):
                dsts = regs_of(ops[0]); srcs = sum((regs_of(o) for o in ops[1:]), [])
            else:
                srcs = sum((regs_of(o) for o in ops), [])
            for r in srcs: req(r, 8, ("mfma",))
            for r in dsts:
                req(r, 8, ("mfma",)); req_time(self.crd.get(r), 3)
            kind = "mem"
        elif is_vmem:
            lds = (" lds" in (" " + mods)) or "_lds_" in op
            if "load" in op and not lds:
                dsts = regs_of(ops[0]); srcs = sum((regs_of(o) for o in ops[1:]), [])
            elif "atomic" in op:
                srcs = sum((regs_of(o) for o in ops), [])
            else:
                srcs = sum((regs_of(o) for o in ops), [])
            for r in srcs:
                req(r, 8, ("mfma",))
                if r[0] == "s": req(r, 5, ("valu_s",))
            if lds: req(("s", "m0"), 1, ("salu",))
            for r in dsts:
                req(r, 8, ("mfma",)); req_time(self.crd.get(r), 3)
            kind = "mem"
        else:
            kind = "salu"
            if op in ("s_waitcnt", "s_nop", "s_barrier", "s_endpgm", "s_branch", "s_sleep", "s_setprio") or op.startswith("s_cbranch"):
                dsts = []
            elif op.startswith("s_cmp") or op.startswith("s_bitcmp"):
                dsts = []
            else:
                dsts = regs_of(ops[0]) if ops else []
                if "saveexec" in op: dsts = dsts + [("s", "exec")]
        if need > 0 and self.auto: self.nop(need)
        self.lines.append("  " + text)
        now = self.t
        if op == "s_nop":
            self.t += int(ops[0], 0) + 1
        else:
            self.t += 1
        self.ninst += 1
        if is_mfma:
            for r in dsts: self.wr[r] = (now, "mfma", tuple(dsts))
            for r in (regs_of(ops[3]) if len(ops) > 3 else []): self.crd[r] = now
        elif is_valu:
            for r in dsts:
                self.wr[r] = (now, ("valu_s" if r[0] == "s" else kind), None)
        elif is_ds or is_vmem:
            for r in dsts: self.wr[r] = (now, "mem", None)
            if is_vmem and "store" in op and ("x4" in op or "x3" in op):
                data = regs_of(ops[1]) if op.startswith("global") else regs_of(ops[0])
                for r in data: self.std[r] = now
        else:
            for r in dsts: self.wr[r] = (now, "salu", None)
    def vm(self, text, tag=None):
        self(text)
        self.vmq.append(tag)
        if len(self.vmq) > 63:
            raise RuntimeError("more than 63 vm ops outstanding (static)")
    def vm_wait(self, tag):
        idx = max(i for i, t in enumerate(self.vmq) if t == tag) if tag in self.vmq else None
        if idx is None: return
        n = len(self.vmq) - idx - 1
        self(f"s_waitcnt vmcnt({n})")
        self.vmq = self.vmq[idx + 1:]
    def vm_depth(self, n):
        if len(self.vmq) > n:
            self(f"s_waitcnt vmcnt({n})")
            self.vmq = self.vmq[len(self.vmq) - n:] if n > 0 else []
    def vm_all(self, force=False):
        if self.vmq or force:
            self("s_waitcnt vmcnt(0)")
        self.vmq = []
    def lg(self, text, tag=None):
        self(text); self.lgq.append(tag)
    def lg_wait(self, tag):
        if tag not in self.lgq: return
        idx = max(i for i, t in enumerate(self.lgq) if t == tag)
        n = len(self.lgq) - idx - 1
        self(f"s_waitcnt lgkmcnt({min(n, 15)})")
        self.lgq = self.lgq[idx + 1:]
    def lg_wait_n(self, n):
        if len(self.lgq) > n:
            self(f"s_waitcnt lgkmcnt({min(n, 15)})")
            self.lgq = self.lgq[len(self.lgq) - n:] if n > 0 else []
    def lg_all(self, force=False):
        if self.lgq or force: self("s_waitcnt lgkmcnt(0)")
        self.lgq = []
    def text(self): return "\n".join(self.lines)

def vr(base, n=1, f="v"):
    return f"{f}{base}" if n == 1 else f"{f}[{base}:{base+n-1}]"
```

```python
import sys, struct
from types import SimpleNamespace as NS
from emit import Emit, vr

NAME = "interleave_layers__mha_block_cached__glu_gated_reglu__decode_kernel"

class Opt:
    NA = 12
    NA_BAR = 118
    NB = 4
    NC = 56
    NA0 = 12
    NA0N = 0
    light = True
    pf = 0
    pf_all = False
    NW = 24
    stamps = False
    poll_limit = 400000
    kvflags = "nt"
    wflags = "nt"
    stampset = ""
    p_sleep = 8
    mb_sleep = 0
    exp = ""
    flag_sleep = 0
    force_global = False

KV_BYTES = 100663296
BATCH_STRIDE = 50331648
HEAD_STRIDE = 1572864
CHUNK_STRIDE = 196608
TILE_B = 3072
SW_TILES, CW_TILES = 20, 4
OOB = 0x7fff0000

LDS_SW = 51200
SB = 153600
PART = SB
ML = SB + 6144
QARR = SB + 6208
ACT_O = SB + 6976
ACT_X = SB + 7744
ACT_H = SB + 8320
DUMMY = SB + 8576
WFLAG = SB + 10208
LDS_TOTAL = 163840
ST_WQ, ST_WO, ST_WG, ST_WU, ST_WD = 0, 30720, 61440, 69120, 76800

RG = 262144
R1_REG = {0: 0, '1a': 1, '1b': 2, 2: 3}
R3_REG = {'P': 4, 0: 7, 1: 8}
R2_REG = {'P': 9, 0: 10, 1: 11, 2: 12}
L_REG = lambda inst, k: 13 + 2 * inst + k
G_OFF = lambda inst, k: 19 * RG + (2 * inst + k) * 65536
STAMP_OFF = 22 * RG
WS_REC = 24 * RG

CSCALE = (192 ** -0.5) * 1.4426950408889634
EPS = 1e-5
def f2u(x): return struct.unpack("<I", struct.pack("<f", x))[0]
def lit(x): return "0x%08x" % f2u(x)
def mask64(lanes):
    m = 0
    for l in lanes: m |= 1 << l
    return m
def set_exec(e, m):
    if m == (1 << 64) - 1: e("s_mov_b64 exec, -1"); return
    e(f"s_mov_b32 exec_lo, 0x{m & 0xffffffff:08x}")
    e(f"s_mov_b32 exec_hi, 0x{m >> 32:08x}")

S_X, S_K, S_V, S_WQ, S_WO, S_BX, S_WG, S_WU, S_WD, S_OUT, S_DBG, S_WS = 4, 6, 8, 10, 12, 14, 16, 18, 20, 22, 24, 26
S_XC, S_HQ, S_J, S_H = 28, 29, 30, 31
SRD_K, SRD_V = 32, 36
S_KV0, S_KV1, S_SOFF, S_LDSB = 40, 41, 42, 43
SRD_T = 44
SRD_WS = 48
SRD_DBG = 52
S_C = 56
S_ROWN, S_RGRP, S_LOWN, S_LGRP, S_GOWN, S_GGRP = 57, 58, 59, 60, 61, 62
S_A, S_B, S_CNT, S_T0, S_T1, S_T2 = 63, 64, 65, 66, 67, 68
S_PB = 69
S_HI32 = 70
S_MLB = 72
S_DMA = 73
S_WAVE = 3
S_STAMP = 76

def make_srd(e, srd, ptr, nbytes):
    e(f"s_mov_b32 s{srd}, s{ptr}")
    e(f"s_and_b32 s{srd+1}, s{ptr+1}, 0xffff")
    e(f"s_mov_b32 s{srd+2}, {nbytes}")
    e(f"s_mov_b32 s{srd+3}, 0x20000")

class Stamps:
    select = None
    def __init__(self, e, on): self.e, self.on, self.names = e, on, []
    def __call__(self, name):
        if not self.on: return
        if Stamps.select is not None and not any(name.startswith(p) for p in Stamps.select): return
        if Stamps.select is None and "." in name: return
        n = len(self.names); assert n < 12, "too many stamps"
        self.e(f"s_memrealtime s[{S_STAMP+2*n}:{S_STAMP+2*n+1}]")
        self.e.lg_all(force=True)
        self.names.append(name)
    def flush(self):
        if not self.on: return
        e = self.e
        e("s_mov_b64 exec, 1")
        e(f"s_lshl_b32 s{S_T0}, s2, 2"); e(f"s_add_u32 s{S_T0}, s{S_T0}, s{S_WAVE}"); e(f"s_lshl_b32 s{S_T0}, s{S_T0}, 7")
        e(f"s_add_u32 s{S_T0}, s{S_T0}, {STAMP_OFF}")
        e("v_mov_b32 v0, 0")
        for i in range(len(self.names)):
            e(f"v_mov_b32 v2, s{S_STAMP+2*i}"); e(f"v_mov_b32 v3, s{S_STAMP+2*i+1}")
            e(f"buffer_store_dwordx2 v[2:3], v0, s[{SRD_WS}:{SRD_WS+3}], s{S_T0} offen offset:{8*i}")
            e("s_waitcnt vmcnt(0)")

def lane_id(e, dst):
    e(f"v_mbcnt_lo_u32_b32 {vr(dst)}, -1, 0")
    e(f"v_mbcnt_hi_u32_b32 {vr(dst)}, -1, {vr(dst)}")

def attn_load_offsets(e, R, lane, t):
    i, g, u, w = t, t + 1, t + 2, t + 3
    e(f"v_and_b32 {vr(i)}, 15, {vr(lane)}")
    e(f"v_lshrrev_b32 {vr(g)}, 4, {vr(lane)}")
    e(f"v_and_b32 {vr(u)}, 7, {vr(i)}")
    e(f"v_lshrrev_b32 {vr(w)}, 3, {vr(i)}")
    e(f"v_mul_u32_u24 {vr(R.voffK)}, 384, {vr(u)}")
    e(f"v_lshl_add_u32 {vr(R.voffK)}, {vr(g)}, 4, {vr(R.voffK)}")
    e(f"v_lshl_add_u32 {vr(R.voffK)}, {vr(w)}, 6, {vr(R.voffK)}")
    e(f"v_mul_u32_u24 {vr(R.voffX)}, 768, {vr(g)}")
    e(f"v_mul_u32_u24 {vr(w)}, 384, {vr(w)}")
    e(f"v_add_u32 {vr(R.voffY)}, {vr(R.voffX)}, {vr(w)}")
    e(f"v_lshl_add_u32 {vr(R.voffY)}, {vr(u)}, 4, {vr(R.voffY)}")
    e(f"v_add_u32 {vr(R.voffY)}, 256, {vr(R.voffY)}")
    e(f"v_lshl_add_u32 {vr(R.voffX)}, {vr(i)}, 4, {vr(R.voffX)}")

def attn_selectors(e, R, lane, t):
    i, u, lo, hi = t, t + 1, t + 2, t + 3
    e(f"v_and_b32 {vr(i)}, 15, {vr(lane)}")
    e(f"v_lshrrev_b32 {vr(u)}, 3, {vr(i)}")
    e(f"v_mul_u32_u24 {vr(u)}, 0x202, {vr(u)}")
    e(f"v_add_u32 {vr(u)}, 0x100, {vr(u)}")
    e(f"v_or_b32 {vr(lo)}, 0x0c0c0000, {vr(u)}")
    e(f"v_lshlrev_b32 {vr(hi)}, 16, {vr(u)}")
    e(f"v_or_b32 {vr(hi)}, 0x0c0c, {vr(hi)}")
    e(f"v_and_b32 {vr(u)}, 1, {vr(i)}")
    e(f"v_cmp_eq_u32 vcc, 1, {vr(u)}")
    e(f"v_cndmask_b32 {vr(lo)}, {vr(lo)}, {vr(hi)}, vcc")
    e(f"v_bfe_u32 {vr(u)}, {vr(i)}, 1, 2")
    e(f"v_mov_b32 {vr(hi)}, 0x0c0c0c0c")
    for r in range(4):
        e(f"v_cmp_eq_u32 vcc, {r}, {vr(u)}")
        e(f"v_cndmask_b32 {vr(R.sel+r)}, {vr(hi)}, {vr(lo)}, vcc")

def allreduce(e, reg, tmp, op):
    for k in (8, 4, 2, 1):
        e(f"v_{op}_f32_dpp {vr(reg)}, {vr(reg)}, {vr(reg)} row_ror:{k} row_mask:0xf bank_mask:0xf")
    e(f"v_mov_b32 {vr(tmp)}, {vr(reg)}")
    e(f"v_permlane16_swap_b32 {vr(reg)}, {vr(tmp)}")
    e(f"v_{op}_f32 {vr(reg)}, {vr(reg)}, {vr(tmp)}")
    e(f"v_mov_b32 {vr(tmp)}, {vr(reg)}")
    e(f"v_permlane32_swap_b32 {vr(reg)}, {vr(tmp)}")
    e(f"v_{op}_f32 {vr(reg)}, {vr(reg)}, {vr(tmp)}")

def attn_pass(e, R, ntiles, qrow, Kfrag, Vfrag, part_sreg, ml_off, k_wait=None, qk_hook=None, mid_hook=None,
              v_wait=None, pv_hook=None, stage=None):
    L = R.tmp
    lane_id(e, L)
    e(f"v_and_b32 {vr(L+1)}, 1, {vr(L)}")
    e(f"v_lshrrev_b32 {vr(L+2)}, 4, {vr(L)}")
    e(f"v_lshlrev_b32 {vr(L+2)}, 4, {vr(L+2)}")
    e(f"v_lshl_add_u32 {vr(L+1)}, {vr(L+1)}, 6, {vr(L+2)}")
    e(f"v_add_u32 {vr(L+1)}, {QARR}, {vr(L+1)}")
    for s in range(3):
        e.lg(f"ds_read_b128 {vr(R.qA+4*s,4)}, {vr(L+1)} offset:{qrow*384 + 128*s}", ("q", s))
    e(f"v_add_u32 {vr(R.vpp)}, s{S_PB}, {vr(L+2)}")
    W = R.vpw
    e(f"v_lshrrev_b32 {vr(L+1)}, 5, {vr(L)}"); e(f"v_lshlrev_b32 {vr(W)}, 6, {vr(L+1)}")
    e(f"v_bfe_u32 {vr(L+1)}, {vr(L)}, 1, 2"); e(f"v_lshl_add_u32 {vr(W)}, {vr(L+1)}, 4, {vr(W)}")
    e(f"v_bfe_u32 {vr(L+1)}, {vr(L)}, 3, 2"); e(f"v_lshl_add_u32 {vr(W)}, {vr(L+1)}, 2, {vr(W)}")
    e(f"v_and_b32 {vr(L+1)}, 1, {vr(L)}"); e(f"v_lshl_add_u32 {vr(W)}, {vr(L+1)}, 1, {vr(W)}")
    e(f"v_add_u32 {vr(W)}, s{S_PB}, {vr(W)}")
    nsc = (ntiles + 7) // 8
    for r in range(nsc):
        if (r + 1) * 8 > ntiles: e(f"v_mov_b32 {vr(R.sc+r)}, 0xff800000")
    stg = {}
    def stage_k(T):
        if T >= ntiles: return
        for s in range(3):
            f = Kfrag(T, s)
            if isinstance(f, tuple):
                reg = stage[(3 * T + s) % len(stage)]
                e.lg(f"ds_read_b128 {vr(reg,4)}, {vr(R.vlds)} offset:{f[1]}", ("k", T, s))
                stg[(T, s)] = vr(reg, 4)
    LOOK = 2
    if k_wait: k_wait(-1)
    for T in range(min(LOOK, ntiles)): stage_k(T)
    e.lg_wait(("q", 2))
    def dpp_add(T):
        D = R.D + 4 * (T % 3)
        dst = vr(R.sc + (T >> 3)); rm = 1 << ((T >> 1) & 3)
        if T % 2 == 0: e(f"v_add_f32_dpp {dst}, {vr(D+1)}, {vr(D)} row_ror:8 row_mask:0x{rm:x} bank_mask:0x3")
        else:          e(f"v_add_f32_dpp {dst}, {vr(D)}, {vr(D+1)} row_ror:8 row_mask:0x{rm:x} bank_mask:0xc")
    for T in range(ntiles):
        if k_wait: k_wait(T)
        D = vr(R.D + 4 * (T % 3), 4)
        for s in range(3):
            f = Kfrag(T, s)
            if isinstance(f, tuple):
                e.lg_wait(("k", T, s)); f = stg[(T, s)]
            e(f"v_mfma_f32_16x16x32_bf16 {D}, {vr(R.qA+4*s,4)}, {f}, {'0' if s == 0 else D}")
        stage_k(T + LOOK)
        if qk_hook: qk_hook(T)
        if T >= 2: dpp_add(T - 2)
    for T in range(max(0, ntiles - 2), ntiles): dpp_add(T)
    t0, t1 = R.D, R.D + 1
    if nsc == 1: e(f"v_mov_b32 {vr(t0)}, {vr(R.sc)}")
    elif nsc == 2: e(f"v_max_f32 {vr(t0)}, {vr(R.sc)}, {vr(R.sc+1)}")
    else: e(f"v_max3_f32 {vr(t0)}, {vr(R.sc)}, {vr(R.sc+1)}, {vr(R.sc+2)}")
    allreduce(e, t0, t1, "max")
    e(f"v_mul_f32 {vr(R.vm)}, s{S_C}, {vr(t0)}")
    for r in range(nsc): e(f"v_fma_f32 {vr(R.sc+r)}, {vr(R.sc+r)}, s{S_C}, -{vr(R.vm)}")
    for r in range(nsc): e(f"v_exp_f32 {vr(R.sc+r)}, {vr(R.sc+r)}")
    for r in range(nsc): e(f"v_cvt_pk_bf16_f32 {vr(R.D+2+r)}, {vr(R.sc+r)}, {vr(R.sc+r)}")
    for r in range(nsc): e.lg(f"ds_write_b16 {vr(W)}, {vr(R.D+2+r)} offset:{128*r}", ("pw", r))
    nq = (ntiles + 3) // 4
    ppreg = lambda q: R.pp + 4 * (q % 2)
    if nsc == 1: e(f"v_mov_b32 {vr(R.vl)}, {vr(R.sc)}")
    else:
        e(f"v_add_f32 {vr(R.vl)}, {vr(R.sc)}, {vr(R.sc+1)}")
        if nsc == 3: e(f"v_add_f32 {vr(R.vl)}, {vr(R.vl)}, {vr(R.sc+2)}")
    e.lg(f"ds_read_b128 {vr(ppreg(0),4)}, {vr(R.vpp)}", ("pp", 0))
    if nq > 1: e.lg(f"ds_read_b128 {vr(ppreg(1),4)}, {vr(R.vpp)} offset:64", ("pp", 1))
    allreduce(e, R.vl, t1, "add")
    if mid_hook: mid_hook()
    X1, X2, Y = R.acc, R.acc + 4, R.acc + 8
    def build_A(T):
        q = T >> 2
        e.lg_wait(("pp", q))
        A = R.A + 4 * (T % 2); src = vr(ppreg(q) + (T & 3))
        return [f"v_perm_b32 {vr(A+r)}, {src}, {src}, {vr(R.sel+r)}" for r in range(4)]
    for ins in build_A(0): e(ins)
    for T in range(ntiles):
        A = vr(R.A + 4 * (T % 2), 4)
        nxt = build_A(T + 1) if T + 1 < ntiles else []
        if v_wait: v_wait(T, 0)
        e(f"v_mfma_f32_16x16x32_bf16 {vr(X1,4)}, {A}, {Vfrag(T,0)}, {'0' if T == 0 else vr(X1,4)}")
        for ins in nxt[:2]: e(ins)
        if v_wait: v_wait(T, 1)
        e(f"v_mfma_f32_16x16x32_bf16 {vr(X2,4)}, {A}, {Vfrag(T,1)}, {'0' if T == 0 else vr(X2,4)}")
        for ins in nxt[2:]: e(ins)
        if v_wait: v_wait(T, 2)
        e(f"v_mfma_f32_16x16x32_bf16 {vr(Y,4)}, {A}, {Vfrag(T,2)}, {'0' if T == 0 else vr(Y,4)}")
        if (T & 3) == 2 and (T >> 2) + 2 < nq:
            q2 = (T >> 2) + 2
            e.lg(f"ds_read_b128 {vr(ppreg(q2),4)}, {vr(R.vpp)} offset:{64*q2}", ("pp", q2))
        if pv_hook: pv_hook(T)
    p = R.pp
    lane_id(e, p)
    e(f"v_and_b32 {vr(p+1)}, 15, {vr(p)}")
    e(f"v_lshrrev_b32 {vr(p+2)}, 4, {vr(p)}")
    e(f"v_and_b32 {vr(p+3)}, 1, {vr(p+2)}")
    e(f"v_lshrrev_b32 {vr(p+2)}, 1, {vr(p+2)}")
    e(f"v_mul_u32_u24 {vr(p+2)}, 768, {vr(p+2)}")
    e(f"v_lshl_add_u32 {vr(p+2)}, {vr(p+3)}, 4, {vr(p+2)}")
    e(f"v_add_u32 {vr(p+2)}, s{part_sreg}, {vr(p+2)}")
    e(f"v_lshl_add_u32 {vr(p+4)}, {vr(p+1)}, 5, {vr(p+2)}")
    e(f"v_and_b32 {vr(p+1)}, 7, {vr(p+1)}")
    e(f"v_lshl_add_u32 {vr(p+5)}, {vr(p+1)}, 5, {vr(p+2)}")
    e(f"v_mov_b32 {vr(p+6)}, s{S_MLB}")
    e(f"v_mov_b32 {vr(R.A)}, {vr(R.vm)}"); e(f"v_mov_b32 {vr(R.A+1)}, {vr(R.vl)}")
    for r in range(4):
        e(f"v_cndmask_b32 {vr(X1+r)}, {vr(X1+r)}, {vr(X2+r)}, s[{S_HI32}:{S_HI32+1}]")
    e.lg(f"ds_write_b128 {vr(p+4)}, {vr(X1,4)}", "px")
    set_exec(e, 0xFF00FF0000FF00FF)
    e.lg(f"ds_write_b128 {vr(p+5)}, {vr(Y,4)} offset:512", "py")
    e("s_mov_b64 exec, 1")
    e.lg(f"ds_write_b64 {vr(p+6)}, {vr(R.A,2)} offset:{ml_off}", "pm")
    e("s_mov_b64 exec, -1")
    e.lg_all()

def kv_soff(e, base_sreg, T):
    e(f"s_add_u32 s{S_SOFF}, s{base_sreg}, {T*TILE_B}")
def ld_k(e, R, dst, s, tag, o):
    e.vm(f"buffer_load_dwordx4 {dst}, {vr(R.voffK)}, s[{SRD_K}:{SRD_K+3}], s{S_SOFF} offen offset:{128*s} {o.kvflags}", tag)
def ld_v(e, R, dst, w, tag, o):
    vo = R.voffY if w == 2 else R.voffX
    off = 384 if w == 1 else 0
    e.vm(f"buffer_load_dwordx4 {dst}, {vr(vo)}, s[{SRD_V}:{SRD_V+3}], s{S_SOFF} offen offset:{off} {o.kvflags}", tag)
def dma_k(e, R, slot, s, tag, o):
    e(f"s_add_u32 m0, s{S_LDSB}, {slot*1024 - 128*s + 0}") if slot*1024 - 128*s >= 0 else e(f"s_sub_u32 m0, s{S_LDSB}, {128*s - slot*1024}")
    e.vm(f"buffer_load_dwordx4 {vr(R.voffK)}, s[{SRD_K}:{SRD_K+3}], s{S_SOFF} offen offset:{128*s} {o.kvflags} lds", tag)
def dma_v(e, R, slot, w, tag, o):
    vo = R.voffY if w == 2 else R.voffX
    off = 384 if w == 1 else 0
    e(f"s_add_u32 m0, s{S_LDSB}, {slot*1024 - off}")
    e.vm(f"buffer_load_dwordx4 {vr(vo)}, s[{SRD_V}:{SRD_V+3}], s{S_SOFF} offen offset:{off} {o.kvflags} lds", tag)

def slot_reg(k):
    assert 0 <= k < 118
    return f"a[{4*k}:{4*k+3}]" if k < 64 else f"v[{40+4*(k-64)}:{40+4*(k-64)+3}]"

def weight_dma(e, o):
    L, t, u = 8, 20, 21
    def dma_block(ptr, nbytes, lanes_per_row, magic, shift, nlanes, row_stride, rows_per_instr, ninstr, so, lds0, bar=False):
        make_srd(e, SRD_T, ptr, nbytes)
        e(f"v_mul_u32_u24 v{t}, {magic}, v{L}"); e(f"v_lshrrev_b32 v{t}, {shift}, v{t}")
        e(f"v_mul_u32_u24 v{u}, {lanes_per_row}, v{t}"); e(f"v_sub_u32 v{u}, v{L}, v{u}")
        e(f"s_mov_b32 s{S_T1}, {row_stride}")
        e(f"v_mul_lo_u32 v{t}, v{t}, s{S_T1}"); e(f"v_lshl_add_u32 v{t}, v{u}, 4, v{t}")
        rreg, rmul, creg, cmul = so
        e(f"s_mul_i32 s{S_SOFF}, s{rreg}, {rmul*row_stride}")
        e(f"s_mul_i32 s{S_T1}, s{creg}, {cmul}"); e(f"s_add_u32 s{S_SOFF}, s{S_SOFF}, s{S_T1}")
        set_exec(e, mask64(range(nlanes)))
        if bar: e("s_barrier")
        for i in range(ninstr):
            e(f"s_mov_b32 m0, {lds0 + i*nlanes*16}")
            if i: e(f"s_add_u32 s{S_SOFF}, s{S_SOFF}, {rows_per_instr*row_stride}")
            else: e("s_nop 0")
            e.vm_depth(o.NW - 1)
            e.vm(f"buffer_load_dwordx4 v{t}, s[{SRD_T}:{SRD_T+3}], s{S_SOFF} offen {o.wflags} lds", "w")
        e("s_mov_b64 exec, -1")
    l2, l3, end = e.newlabel("w2"), e.newlabel("w3"), e.newlabel("wend")
    e(f"s_cmp_eq_u32 s{S_WAVE}, 2"); e(f"s_cbranch_scc1 {l2}")
    e(f"s_cmp_eq_u32 s{S_WAVE}, 3"); e(f"s_cbranch_scc1 {l3}")
    e.vmq = []
    dma_block(S_WQ, 7864320, 24, 43, 10, 48, 12288, 2, 40, (S_J, 80, S_H, 384), ST_WQ, bar=True)
    e(f"s_branch {end}")
    e.label(l2); e.vmq = []
    dma_block(S_WO, 7864320, 10, 103, 10, 60, 1280, 6, 32, (S_H, 192, S_J, 160), ST_WO, bar=True)
    e(f"s_branch {end}")
    e.label(l3); e.vmq = []
    dma_block(S_WG, 1966080, 6, 43, 8, 60, 3072, 10, 8, (S_J, 80, S_H, 96), ST_WG, bar=True)
    dma_block(S_WU, 1966080, 6, 43, 8, 60, 3072, 10, 8, (S_J, 80, S_H, 96), ST_WU)
    dma_block(S_WD, 1966080, 10, 103, 10, 60, 1280, 6, 8, (S_H, 48, S_J, 160), ST_WD)
    e.label(end)
    e.vmq = ["w"] * o.NW

def stream_wave(e, o, st):
    R = NS(vlds=0, voffK=1, voffX=2, voffY=3, sel=4, qA=8, D=20, sc=32, tmp=20, vpw=35, acc=8, A=20, pp=28, vpp=36, vm=38, vl=39)
    e(f"s_sub_u32 s{S_T0}, s{S_WAVE}, 1")
    e(f"s_mul_i32 s{S_T1}, s{S_T0}, {SW_TILES*TILE_B}")
    e(f"s_add_u32 s{S_KV0}, s{S_KV0}, s{S_T1}")
    e(f"s_add_u32 s{S_KV1}, s{S_KV0}, {BATCH_STRIDE}")
    e(f"s_mul_i32 s{S_LDSB}, s{S_T0}, {LDS_SW}")
    lane_id(e, 8)
    if o.pf:
        skip = e.newlabel("nopf")
        e(f"s_cmp_lg_u32 s{S_WAVE}, 3"); e(f"s_cbranch_scc1 {skip}")
        if not o.pf_all:
            e(f"s_cmp_lg_u32 s{S_J}, 0"); e(f"s_cbranch_scc1 {skip}")
        e(f"s_getpc_b64 s[{SRD_T}:{SRD_T+1}]")
        e.label("L_pc")
        e(f"s_sub_u32 s{SRD_T}, s{SRD_T}, (L_pc - {NAME})"); e(f"s_subb_u32 s{SRD_T+1}, s{SRD_T+1}, 0")
        e("v_lshlrev_b32 v20, 7, v8")
        for i in range(o.pf):
            e(f"global_load_dword v39, v20, s[{SRD_T}:{SRD_T+1}]")
            e("v_add_u32 v20, 0x2000, v20")
        e.label(skip)
    if "now" in o.exp: e("s_barrier")
    else: weight_dma(e, o)
    st("s.wiss")
    attn_load_offsets(e, R, 8, 10)
    loads = []
    for T in range(SW_TILES):
        for s in range(3): loads.append(('K', T, s))
    for T in range(SW_TILES):
        for w in range(3): loads.append(('V', T, w))
    def k0slot(T, s): return 3 * T + s
    def v0slot(T, w): return 60 + 3 * T + w
    cur = [None]
    def issue0(item):
        kind, T, x = item
        if cur[0] != (kind, T, 0):
            kv_soff(e, S_KV0, T); cur[0] = (kind, T, 0)
        if kind == 'K': ld_k(e, R, slot_reg(k0slot(T, x)), x, ('K0', T, x), o)
        else:
            sl = v0slot(T, x)
            if sl < 118: ld_v(e, R, slot_reg(sl), x, ('V0', T, x), o)
            else: dma_v(e, R, 48 + sl - 118, x, ('V0', T, x), o)
    first = True
    for idx, item in enumerate(loads[:o.NA_BAR]):
        na = o.NA0 if idx < o.NA0N else o.NA
        e.vm_depth(na - 1)
        if idx == min(o.NA, o.NA0 if o.NA0N > o.NA0 else o.NA):
            e(f"s_lshl_b32 s{S_T0}, s{S_WAVE}, 2"); e(f"s_add_u32 s{S_T0}, s{S_T0}, {WFLAG-4}")
            e(f"v_mov_b32 v20, s{S_T0}"); e("v_mov_b32 v21, 1")
            e.lg("ds_write_b32 v20, v21", "wf")
            st("s.wland")
        if idx == 60: st("s.k0iss")
        if idx == 90: st("s.v30")
        issue0(item)
        if first:
            first = False
            e(f"v_lshlrev_b32 {vr(R.vlds)}, 4, v8")
            e(f"v_add_u32 {vr(R.vlds)}, s{S_LDSB}, {vr(R.vlds)}")
            attn_selectors(e, R, 8, 10)
    st("A_issued")
    e("s_barrier")
    st("bar1")
    if "nocw" in o.exp or "cw" in o.exp:
        e.vm_all(); st("s.alland"); st.flush(); e("s_endpgm")
    pend = [('0', it) for it in loads[o.NA_BAR:]]
    for T in range(16):
        for s in range(3): pend.append(('1', T, s))
    cur1 = [None]
    def issue_pend():
        it = pend.pop(0)
        if it[0] == '0': cur1[0] = None; issue0(it[1])
        else:
            _, T, s = it
            if cur1[0] != T:
                kv_soff(e, S_KV1, T); cur1[0] = T; cur[0] = None
            dma_k(e, R, 3 * T + s, s, ('K1', T, s), o)
    while pend[0][0] == '0': issue_pend()
    def Kf0(T, s): return slot_reg(k0slot(T, s))
    def Vf0(T, w):
        sl = v0slot(T, w)
        if sl < 118: return slot_reg(sl)
        return "v[32:35]" if w == 1 else "v[28:31]"
    def k_wait_A(T):
        if T == -1: e.vm_wait(('K0', SW_TILES - 1, 2))
    def pv_hook_A(T):
        left = SW_TILES - 1 - T
        target = max(o.NB, min(o.NA, 3 * left + o.NB))
        if T == SW_TILES - 2:
            e.vm_wait(('V0', SW_TILES - 1, 2))
            e.lg(f"ds_read_b128 v[32:35], {vr(R.vlds)} offset:{48*1024}", ("vo", 1))
            e.lg(f"ds_read_b128 v[28:31], {vr(R.vlds)} offset:{49*1024}", ("vo", 2))
            target = o.NB
        while pend and len(e.vmq) < target: issue_pend()
    def vwait_A(T, w):
        e.vm_wait(('V0', T, w))
        if T == SW_TILES - 1 and w >= 1: e.lg_wait(("vo", w))
    attn_pass(e, R, SW_TILES, 0, Kf0, Vf0, S_PB, 0, k_wait=k_wait_A, v_wait=vwait_A, pv_hook=pv_hook_A)
    st("A_done")
    e("s_barrier")
    while pend:
        e.vm_depth(o.NB - 1)
        issue_pend()
    st("B_issued")
    e("s_barrier")
    st("bar3")
    pend1 = []
    for T in range(16, SW_TILES):
        for s in range(3): pend1.append(('K', T, s))
    for T in range(SW_TILES):
        for w in range(3): pend1.append(('V', T, w))
    slot_of = {it: i for i, it in enumerate(pend1)}
    freed = [0]
    issued1 = [0]
    cur2 = [None]
    def issue1():
        it = pend1[issued1[0]]; kind, T, x = it
        if cur2[0] != (kind, T):
            kv_soff(e, S_KV1, T); cur2[0] = (kind, T)
        e.vm_depth(o.NC - 1)
        if kind == 'K': ld_k(e, R, slot_reg(slot_of[it]), x, ('K1', T, x), o)
        else: ld_v(e, R, slot_reg(slot_of[it]), x, ('V1', T, x), o)
        issued1[0] += 1
    def refill():
        while issued1[0] < len(pend1) and issued1[0] < freed[0]: issue1()
    def qk_hook_C1(T):
        freed[0] = 3 * (T + 1); refill()
    def pv_hook_C1(T):
        freed[0] = min(118, 60 + 3 * (T + 1)); refill(); ovf_hook_C(T)
    def ovf_hook_C(T):
        if T == SW_TILES - 2:
            e.lg(f"ds_read_b128 v[32:35], {vr(R.vlds)} offset:{48*1024}", ("vo", 1))
            e.lg(f"ds_read_b128 v[28:31], {vr(R.vlds)} offset:{49*1024}", ("vo", 2))
    def vwait_C1(T, w):
        if T == SW_TILES - 1 and w >= 1: e.lg_wait(("vo", w))
    e(f"s_add_u32 s{S_T2}, s{S_LDSB}, {48*1024}")
    attn_pass(e, R, SW_TILES, 0, Kf0, Vf0, S_T2, 32, qk_hook=qk_hook_C1, v_wait=vwait_C1, pv_hook=pv_hook_C1)
    refill()
    assert issued1[0] == len(pend1)
    st("C1_done")
    e("s_barrier")
    stage = [40 + 4 * (k - 64) for k in range(100, 112)]
    def Kf1(T, s):
        if T < 16: return ('lds', (3 * T + s) * 1024)
        return slot_reg(slot_of[('K', T, s)])
    def Vf1(T, w): return slot_reg(slot_of[('V', T, w)])
    def k_wait_C2(T):
        if T == -1: e.vm_wait(('K1', 15, 2))
        elif T >= 16: e.vm_wait(('K1', T, 2))
    def vwait_C2(T, w): e.vm_wait(('V1', T, w))
    attn_pass(e, R, SW_TILES, 1, Kf1, Vf1, S_PB, 0, k_wait=k_wait_C2, v_wait=vwait_C2, stage=stage)
    st("C2_done")
    e("s_barrier")
    e("s_barrier")
    st("bar7")
    attn_pass(e, R, SW_TILES, 1, Kf1, Vf1, S_PB, 0, stage=stage)
    st("E_done")
    e("s_barrier")
    st.flush()
    e("s_endpgm")

V_LANE, V_LG, V_R, V_PL, V_PG, V_PQ = 0, 4, 5, 6, 7, 8
V_BO, V_BX, V_BX8, V_BH, V_BH8, V_AS, V_AS8 = 9, 10, 11, 12, 13, 14, 15
V_XR, V_CSQ, V_CSG = 16, 20, 24
V_W8, V_WX, V_WH, V_ML = 28, 29, 30, 31
W0 = 32
V_SEL, V_R2, V_ST2, V_PS, V_PSQ, V_L16 = 75, 79, 80, 81, 82, 83
V_T = 84
CW_K, CW_V = 86, 134
S_N1 = 74

_off3 = (2, 6, 0)
def wq_frag(t, s): return ("a", 10 * t + _off3[s])
def wo_frag(t, s): return ("a", 120 + 24 * t + 4 * s)
def wd_frag(t, s):
    if s == 0: return ("a", 240 + 4 * t) if t < 4 else ("v", 182)
    return ("v", 186 + 2 * t)
def wg_frag(t, s): return ("v", 196 + 10 * t + _off3[s])
def wu_frag(t, s): return ("v", 226 + 10 * t + _off3[s])
def win(fr): return f"{fr[0]}[{fr[1]}:{fr[1]+3}]"

V_OOB = 74
def selmask(e, dst, val, mask, other=None):
    e(f"s_mov_b32 vcc_lo, 0x{mask & 0xffffffff:08x}"); e(f"s_mov_b32 vcc_hi, 0x{mask >> 32:08x}")
    if other is None: e(f"v_cndmask_b32 {vr(dst)}, v{V_OOB}, {vr(val)}, vcc")
    else:
        assert dst != val
        e(f"v_mov_b32 {vr(dst)}, 0x{other:08x}")
        e(f"v_cndmask_b32 {vr(dst)}, {vr(dst)}, {vr(val)}, vcc")

def rows_mask(live, n): return mask64([32 * r + g for r in live for g in range(n)])
def cols_mask(live, alist=range(4)): return mask64([16 * a + n for a in alist for n in live])

def instance_offsets(e, live, pub_live=None, q_live=None):
    pub_live = live if pub_live is None else pub_live
    q_live = pub_live if q_live is None else q_live
    t, u = V_T, V_T + 1
    e(f"v_and_b32 {vr(t)}, 31, v{V_LANE}"); e(f"v_lshlrev_b32 {vr(t)}, 4, {vr(t)}")
    e(f"v_lshrrev_b32 {vr(u)}, 5, v{V_LANE}"); e(f"v_lshl_add_u32 {vr(t)}, {vr(u)}, 9, {vr(t)}")
    selmask(e, V_LG, t, rows_mask(live, 20))
    selmask(e, V_R2, t, rows_mask(live, 24))
    e(f"v_and_b32 {vr(t)}, 7, v{V_LANE}"); e(f"v_lshlrev_b32 {vr(t)}, 10, {vr(t)}")
    e(f"v_lshl_add_u32 {vr(t)}, {vr(u)}, 9, {vr(t)}"); e(f"v_add_u32 {vr(t)}, 384, {vr(t)}")
    selmask(e, V_ST2, t, rows_mask(live, 32))
    e(f"v_and_b32 {vr(t)}, 15, v{V_LANE}"); e(f"v_lshrrev_b32 {vr(u)}, 4, v{V_LANE}")
    e(f"v_lshlrev_b32 v{V_PL}, 9, {vr(t)}")
    e(f"v_lshl_add_u32 v{V_PG}, {vr(u)}, 5, v{V_PL}")
    e(f"v_add_u32 v{V_PS}, 384, v{V_PL}")
    e(f"v_lshl_add_u32 v{V_PL}, {vr(u)}, 4, v{V_PL}")
    e(f"v_lshlrev_b32 v{V_PQ}, 18, {vr(t)}")
    e(f"v_add_u32 v{V_PSQ}, 768, v{V_PQ}")
    e(f"v_lshl_add_u32 v{V_PQ}, {vr(u)}, 4, v{V_PQ}")
    cm = cols_mask(pub_live)
    e(f"s_mov_b32 vcc_lo, 0x{cm & 0xffffffff:08x}"); e(f"s_mov_b32 vcc_hi, 0x{cm >> 32:08x}")
    for r in (V_PL, V_PG): e(f"v_cndmask_b32 v{r}, v{V_OOB}, v{r}, vcc")
    selmask(e, V_PS, V_PS, cols_mask(pub_live, [0]))
    selmask(e, V_PQ, V_PQ, cols_mask(q_live))
    selmask(e, V_PSQ, V_PSQ, cols_mask(q_live, [0]))

def soffs(e, off_sreg, const, two=True):
    e(f"s_add_u32 s{S_A}, s{off_sreg}, {const}")
    if two: e(f"s_add_u32 s{S_B}, s{S_A}, 4096")

def poll(e, o, loads, abort, sleep=0):
    lab = e.newlabel("poll")
    e(f"s_mov_b32 s{S_CNT}, {o.poll_limit}")
    e.label(lab)
    for d, vo, s, imm in loads:
        e(f"buffer_load_dwordx4 {vr(d,4)}, v{vo}, s[{SRD_WS}:{SRD_WS+3}], s{s} offen offset:{imm} sc1")
    e(f"s_sub_u32 s{S_CNT}, s{S_CNT}, 1")
    e(f"s_cbranch_scc1 {abort}")
    e("s_waitcnt vmcnt(0)")
    vals = []
    for d, _, _, _ in loads: vals += [d + 1, d + 3]
    t = V_T
    e(f"v_max3_u32 v{t}, v{vals[0]}, v{vals[1]}, v{vals[2]}")
    i = 3
    while i < len(vals):
        if i + 1 < len(vals): e(f"v_max3_u32 v{t}, v{t}, v{vals[i]}, v{vals[i+1]}"); i += 2
        else: e(f"v_max_u32 v{t}, v{t}, v{vals[i]}"); i += 1
    e(f"v_cmp_eq_u32 vcc, -1, v{t}")
    if sleep:
        ok = e.newlabel("pok"); e(f"s_cbranch_vccz {ok}"); e(f"s_sleep {sleep}"); e(f"s_branch {lab}"); e.label(ok)
    else: e(f"s_cbranch_vccnz {lab}")
    e.vmq = []

def gather8(e, o, vo, abort, extra=None, n=8, base=W0):
    loads = [(base + 4 * k, vo, S_A if k < 4 else S_B, (k % 4) * 1024) for k in range(n)]
    if extra: loads.append((base + 4 * n, extra, S_A, 0))
    poll(e, o, loads, abort)

def sum_loads(e, n, base=W0):
    step = 1
    while step < n:
        for k in range(0, n, 2 * step):
            if k + step < n:
                a, b = base + 4 * k, base + 4 * (k + step)
                e(f"v_pk_add_f32 {vr(a,2)}, {vr(a,2)}, {vr(b,2)}")
                e(f"v_pk_add_f32 {vr(a+2,2)}, {vr(a+2,2)}, {vr(b+2,2)}")
        step *= 2

def dpp8(e, reg, op):
    for m in ("quad_perm:[1,0,3,2]", "quad_perm:[2,3,0,1]", "row_half_mirror"):
        e(f"v_{op}_f32_dpp v{reg}, v{reg}, v{reg} {m} row_mask:0xf bank_mask:0xf")
def dpp8x2(e, r0, r1, op):
    for m in ("quad_perm:[1,0,3,2]", "quad_perm:[2,3,0,1]", "row_half_mirror"):
        e(f"v_{op}_f32_dpp v{r0}, v{r0}, v{r0} {m} row_mask:0xf bank_mask:0xf")
        e(f"v_{op}_f32_dpp v{r1}, v{r1}, v{r1} {m} row_mask:0xf bank_mask:0xf")

def ln_from_stats(e, s1, s2, mean, rstd):
    e(f"v_mul_f32 v{mean}, {lit(1/640)}, v{s1}")
    e(f"v_mul_f32 v{s2}, {lit(1/640)}, v{s2}")
    e(f"v_fma_f32 v{s2}, -v{mean}, v{mean}, v{s2}")
    e(f"v_max_f32 v{s2}, 0, v{s2}")
    e(f"v_add_f32 v{s2}, {lit(EPS)}, v{s2}")
    e(f"v_rsq_f32 v{rstd}, v{s2}")

def pub(e, D, vo, sreg, imm, fl, tag):
    e.vm(f"buffer_store_dwordx4 {vr(D,4)}, v{vo}, s[{SRD_WS}:{SRD_WS+3}], s{sreg} offen offset:{imm} {fl}", tag)

def gemv(e, tiles, Dbase, nD, store):
    lag = nD - 1
    for t, steps in enumerate(tiles):
        D = vr(Dbase + 4 * (t % nD), 4)
        for s, (A, B) in enumerate(steps):
            e(f"v_mfma_f32_16x16x32_bf16 {D}, {A}, {B}, {'0' if s == 0 else D}")
        if t >= lag: store(t - lag, Dbase + 4 * ((t - lag) % nD))
    for t in range(max(0, len(tiles) - lag), len(tiles)): store(t, Dbase + 4 * (t % nD))

def read_bx(e, B):
    e.lg(f"ds_read_b128 {vr(B,4)}, v{V_BX}", "b0"); e.lg(f"ds_read_b128 {vr(B+4,4)}, v{V_BX} offset:64", "b1")
    e.lg(f"ds_read_b64 {vr(B+8,2)}, v{V_BX8}", "b2")
    e(f"v_mov_b32 v{B+10}, 0"); e(f"v_mov_b32 v{B+11}, 0")
def read_as(e, A):
    e.lg(f"ds_read_b128 {vr(A,4)}, v{V_AS}", "a0"); e.lg(f"ds_read_b128 {vr(A+4,4)}, v{V_AS} offset:64", "a1")
    e.lg(f"ds_read_b64 {vr(A+8,2)}, v{V_AS8}", "a2")
    e(f"v_mov_b32 v{A+10}, 0"); e(f"v_mov_b32 v{A+11}, 0")

def stage_Q(e, fl, reg_index):
    B, A = W0, W0 + 12
    read_bx(e, B); read_as(e, A)
    e(f"s_add_u32 s{S_A}, s{S_ROWN}, {reg_index*RG}")
    e.lg_wait("b2")
    tiles = [[(win(wq_frag(t, s)), vr(B + 4 * s, 4)) for s in range(3)] for t in range(12)]
    def store(t, D):
        if t < 12: pub(e, D, V_PQ, S_A, 64 * t, fl, ("pq", t))
        else:
            e(f"v_cndmask_b32 v{D+1}, v{D+1}, v{D+2}, s[{S_N1}:{S_N1+1}]")
            pub(e, D, V_PSQ, S_A, 0, fl, "pqs")
    stats = [(vr(A + 4 * s, 4), vr(B + 4 * s, 4)) for s in range(3)]
    e.lg_wait("a2")
    gemv(e, tiles + [stats], W0 + 24, 4, store)

def stage_GU(e, fl, const, with_stats=True):
    B, A, Db = W0, W0 + 12, W0 + 24
    read_bx(e, B)
    if with_stats: read_as(e, A)
    e(f"s_add_u32 s{S_A}, s{S_ROWN}, {const}" if const >= 0 else f"s_sub_u32 s{S_A}, s{S_ROWN}, {-const}")
    e.lg_wait("b2")
    def tile(d, f):
        d = vr(d, 4)
        for s in range(3): e(f"v_mfma_f32_16x16x32_bf16 {d}, {f(s)}, {vr(B+4*s,4)}, {'0' if s == 0 else d}")
    def pair(t, G):
        tile(G, lambda s: win(wg_frag(t, s)))
        tile(G + 4, lambda s: win(wu_frag(t, s)))
    def store(t, G):
        U = G + 4
        e(f"v_swap_b32 v{G+2}, v{U}"); e(f"v_swap_b32 v{G+3}, v{U+1}")
        pub(e, G, V_PG, S_A, 128 * t, fl, ("pg", t, 0))
        pub(e, U, V_PG, S_A, 128 * t + 16, fl, ("pg", t, 1))
    S = W0 + 40
    if with_stats:
        e.lg_wait("a2")
        tile(Db + 8, lambda s: vr(A + 4 * s, 4))
    pair(0, Db)
    if with_stats:
        S = Db + 8
        e(f"v_cndmask_b32 v{S+1}, v{S+1}, v{S+2}, s[{S_N1}:{S_N1+1}]")
        pub(e, S, V_PS, S_A, 0, fl, "pgs")
    pair(1, Db + 8)
    store(0, Db)
    pair(2, Db)
    store(1, Db + 8)
    store(2, Db)

def stage_WO(e, fl, region):
    B = W0
    for s in range(6): e.lg(f"ds_read_b128 {vr(B+4*s,4)}, v{V_BO} offset:{64*s}", ("o", s))
    e(f"s_add_u32 s{S_A}, s{S_LOWN}, {region*RG}")
    tiles = [[(win(wo_frag(t, s)), vr(B+4*s,4)) for s in range(6)] for t in range(5)]
    e.lg_wait(("o", 5))
    gemv(e, tiles, W0 + 24, 3, lambda t, D: pub(e, D, V_PL, S_A, 64 * t, fl, ("po", t)))

def stage_D(e, fl, region):
    B = W0
    e.lg(f"ds_read_b128 {vr(B,4)}, v{V_BH}", "h0"); e.lg(f"ds_read_b64 {vr(B+4,2)}, v{V_BH8}", "h1")
    e(f"v_mov_b32 v{B+6}, 0"); e(f"v_mov_b32 v{B+7}, 0")
    e(f"s_add_u32 s{S_A}, s{S_LOWN}, {region*RG}")
    tiles = [[(win(wd_frag(t, 0)), vr(B,4)), (win(wd_frag(t, 1)), vr(B+4,4))] for t in range(5)]
    e.lg_wait("h1")
    gemv(e, tiles, W0 + 8, 5, lambda t, D: pub(e, D, V_PL, S_A, 64 * t, fl, ("pd", t)))

def hop_LG(e, o, inst, k, abort, final_only=False):
    skip = e.newlabel("notleader")
    e(f"s_cmp_lg_u32 s{S_HQ}, 0"); e(f"s_cbranch_scc1 {skip}")
    e(f"s_add_u32 s{S_A}, s{S_LGRP}, {L_REG(inst,k)*RG}")
    gather8(e, o, V_LG, abort, n=4)
    sum_loads(e, 4)
    e(f"s_add_u32 s{S_A}, s{S_GOWN}, {G_OFF(inst,k)}")
    e(f"buffer_store_dwordx4 {vr(W0,4)}, v{V_LG}, s[{SRD_WS}:{SRD_WS+3}], s{S_A} offen sc1")
    e.label(skip)
    e.vmq = ["?"]
    if final_only:
        e(f"s_cmp_lg_u32 s{S_H}, 0"); e(f"s_cbranch_scc1 L_done")
    soffs(e, S_GGRP, G_OFF(inst, k))
    e.vmq = []
    gather8(e, o, V_LG, abort)
    sum_loads(e, 8)

def residual_update(e):
    e(f"v_pk_add_f32 {vr(W0,2)}, {vr(W0,2)}, {vr(V_XR,2)}")
    e(f"v_pk_add_f32 {vr(W0+2,2)}, {vr(W0+2,2)}, {vr(V_XR+2,2)}")
    e(f"v_cvt_pk_bf16_f32 v{W0+4}, v{W0}, v{W0+1}")
    e(f"v_cvt_pk_bf16_f32 v{W0+5}, v{W0+2}, v{W0+3}")
    e.lg(f"ds_write_b64 v{V_WX}, {vr(W0+4,2)}", "wx")
    e(f"v_lshlrev_b32 v{V_XR}, 16, v{W0+4}"); e(f"v_and_b32 v{V_XR+1}, 0xffff0000, v{W0+4}")
    e(f"v_lshlrev_b32 v{V_XR+2}, 16, v{W0+5}"); e(f"v_and_b32 v{V_XR+3}, 0xffff0000, v{W0+5}")

def store_out(e, row):
    skip = e.newlabel("noout")
    e(f"s_cmp_lg_u32 s{S_H}, 0"); e(f"s_cbranch_scc1 {skip}")
    make_srd(e, SRD_T, S_OUT, 2560)
    e(f"v_and_b32 v{V_T}, 31, v{V_LANE}"); e(f"v_lshlrev_b32 v{V_T}, 3, v{V_T}")
    e(f"s_mul_i32 s{S_T0}, s{S_J}, 160"); e(f"s_add_u32 s{S_T0}, s{S_T0}, {row*1280}")
    selmask(e, V_T, V_T, rows_mask([row], 20))
    e(f"buffer_store_dwordx2 {vr(W0+4,2)}, v{V_T}, s[{SRD_T}:{SRD_T+3}], s{S_T0} offen")
    e.label(skip)

def combine_publish(e, fl, parts, mlbase, region):
    T = W0
    e(f"v_mov_b32 v{V_T}, {mlbase}")
    e.lg(f"ds_read_b128 {vr(T,4)}, v{V_T}", "ml0"); e.lg(f"ds_read_b128 {vr(T+4,4)}, v{V_T} offset:16", "ml1")
    P = T + 8
    cur = None
    for w in range(4):
        if cur is None or not (0 <= parts[w] - cur < 60000):
            e(f"v_add_u32 v{V_T+1}, {parts[w]}, v{V_L16}"); cur = parts[w]
        for par in range(2):
            e.lg(f"ds_read_b128 {vr(P+8*w+4*par,4)}, v{V_T+1} offset:{parts[w] - cur + 768*par}", ("p", w, par))
    e(f"s_add_u32 s{S_A}, s{S_ROWN}, {region*RG}")
    e.lg_wait("ml1")
    m = [T, T + 2, T + 4, T + 6]; l = [T + 1, T + 3, T + 5, T + 7]
    M, Ls = T + 40, T + 41
    e(f"v_max3_f32 v{M}, v{m[0]}, v{m[1]}, v{m[2]}"); e(f"v_max_f32 v{M}, v{M}, v{m[3]}")
    for w in range(4): e(f"v_sub_f32 v{m[w]}, v{m[w]}, v{M}")
    for w in range(4): e(f"v_exp_f32 v{m[w]}, v{m[w]}")
    e(f"v_mul_f32 v{Ls}, v{m[0]}, v{l[0]}")
    for w in range(1, 4): e(f"v_fma_f32 v{Ls}, v{m[w]}, v{l[w]}, v{Ls}")
    for w in range(4):
        e.lg_wait(("p", w, 1))
        a = P + 8 * w
        e(f"v_pk_add_f32 {vr(a,2)}, {vr(a,2)}, {vr(a+4,2)}"); e(f"v_pk_add_f32 {vr(a+2,2)}, {vr(a+2,2)}, {vr(a+6,2)}")
        for r in range(4):
            if w == 0: e(f"v_mul_f32 v{P+r}, v{m[0]}, v{P+r}")
            else: e(f"v_fmac_f32 v{P+r}, v{m[w]}, v{a+r}")
    e(f"s_mov_b32 vcc_lo, 0"); e(f"s_mov_b32 vcc_hi, 0x00010000")
    e(f"v_cndmask_b32 v{P}, v{P}, v{M}, vcc"); e(f"v_cndmask_b32 v{P+1}, v{P+1}, v{Ls}, vcc")
    pub(e, P, V_R, S_A, 0, fl, "r1")

def hop_R1(e, o, region, row, abort):
    soffs(e, S_RGRP, region * RG)
    gather8(e, o, V_R, abort, extra=V_ML)
    X = W0 + 32
    M, wv = X + 2, X + 3
    e(f"v_mov_b32 v{M}, v{X}")
    dpp8(e, M, "max")
    e(f"v_sub_f32 v{wv}, v{X}, v{M}"); e(f"v_exp_f32 v{wv}, v{wv}")
    e(f"v_mul_f32 v{X+1}, v{wv}, v{X+1}")
    dpp8(e, X + 1, "add")
    e(f"v_rcp_f32 v{X+1}, v{X+1}")
    e(f"v_mul_f32 v{wv}, v{wv}, v{X+1}")
    acc = W0 + 36
    for k in range(8):
        for r in range(4):
            opn = "v_mul_f32_dpp" if k == 0 else "v_fmac_f32_dpp"
            e(f"{opn} v{acc+r}, v{wv}, v{W0+4*k+r} row_newbcast:{k} row_mask:0xf bank_mask:0xf")
    e(f"v_cvt_pk_bf16_f32 v{acc}, v{acc}, v{acc+1}"); e(f"v_cvt_pk_bf16_f32 v{acc+1}, v{acc+2}, v{acc+3}")
    e.lg(f"ds_write_b64 v{V_W8}, {vr(acc,2)} offset:{ACT_O - SB + 384*row}", "wo")

def hop_R2(e, o, inst, abort):
    soffs(e, S_RGRP, R2_REG[inst] * RG)
    gather8(e, o, V_R2, abort, extra=V_ST2)
    X = W0 + 32
    dpp8x2(e, X, X + 1, "add")
    sum_loads(e, 8)
    mean, rstd = X + 2, X + 3
    ln_from_stats(e, X, X + 1, mean, rstd)
    for r in range(4): e(f"v_fma_f32 v{W0+r}, -v{mean}, v{V_CSG+r}, v{W0+r}")
    for r in range(4): e(f"v_mul_f32 v{W0+r}, v{rstd}, v{W0+r}")
    e(f"v_max_f32 v{W0}, 0, v{W0}"); e(f"v_max_f32 v{W0+1}, 0, v{W0+1}")
    e(f"v_mul_f32 v{W0}, v{W0}, v{W0+2}"); e(f"v_mul_f32 v{W0+1}, v{W0+1}, v{W0+3}")
    e(f"v_cvt_pk_bf16_f32 v{W0}, v{W0}, v{W0+1}")
    e.lg(f"ds_write_b32 v{V_WH}, v{W0}", "wh")

def q_consume(e, base, X, row):
    dpp8x2(e, X, X + 1, "add")
    sum_loads(e, 8, base)
    mean, rstd = X + 2, X + 3
    ln_from_stats(e, X, X + 1, mean, rstd)
    for r in range(4): e(f"v_fma_f32 v{base+r}, -v{mean}, v{V_CSQ+r}, v{base+r}")
    for r in range(4): e(f"v_mul_f32 v{base+r}, v{rstd}, v{base+r}")
    e(f"v_cvt_pk_bf16_f32 v{base}, v{base}, v{base+1}"); e(f"v_cvt_pk_bf16_f32 v{base+1}, v{base+2}, v{base+3}")
    e.lg(f"ds_write_b64 v{V_W8}, {vr(base,2)} offset:{QARR - SB + 384*row}", "wq")

def hop_R3(e, o, region, row, abort):
    soffs(e, S_RGRP, region * RG)
    gather8(e, o, V_R, abort, extra=V_ML)
    q_consume(e, W0, W0 + 32, row)

def chain(e, o, fl, inst, live, abort, st):
    stage_WO(e, fl, L_REG(inst, 0))
    hop_LG(e, o, inst, 0, abort)
    residual_update(e)
    stage_GU(e, fl, R2_REG[inst] * RG)
    hop_R2(e, o, inst, abort)
    stage_D(e, fl, L_REG(inst, 1))
    hop_LG(e, o, inst, 1, abort, final_only=(inst == 2))
    residual_update(e)
    if inst == 1: store_out(e, 0)
    if inst == 2:
        store_out(e, 1); return
    qrow = 0 if inst == 0 else 1
    stage_Q(e, fl, R3_REG[inst] - qrow)
    hop_R3(e, o, R3_REG[inst], qrow, abort)
    e.lg_all()

MBOX = 21 * RG
def emit_resets(e, f, first):
    e(f"v_mov_b32 v{W0}, -1"); e(f"v_mov_b32 v{W0+1}, -1"); e(f"v_mov_b32 v{W0+2}, -1"); e(f"v_mov_b32 v{W0+3}, -1")
    def reset(vo, sreg, const):
        e(f"s_add_u32 s{S_A}, s{sreg}, {const}")
        e.vm(f"buffer_store_dwordx4 {vr(W0,4)}, v{vo}, s[{SRD_WS}:{SRD_WS+3}], s{S_A} offen {f}", "rst")
    if first:
        e(f"s_lshl_b32 s{S_A}, s2, 7"); e(f"s_add_u32 s{S_A}, s{S_A}, {MBOX}")
        e(f"v_mov_b32 v{W0+4}, 0"); e(f"v_mov_b32 v{W0+5}, 0")
        e("s_mov_b64 exec, 1")
        e.vm(f"buffer_store_dwordx2 {vr(W0+4,2)}, v{W0+4}, s[{SRD_WS}:{SRD_WS+3}], s{S_A} offen sc1", "mb")
        e("s_mov_b64 exec, -1")
    again = (not first) and f == ""
    for r in ([4, 5, 6] if first else ([4, 5, 6] if again else []) + [7, 8] + list(R1_REG.values())): reset(V_R, S_ROWN, r * RG)
    e(f"v_and_b32 v{V_T}, 31, v{V_LANE}"); e(f"v_lshlrev_b32 v{V_T}, 4, v{V_T}")
    e(f"v_lshrrev_b32 v{V_T+1}, 5, v{V_LANE}"); e(f"v_lshl_add_u32 v{V_T}, v{V_T+1}, 9, v{V_T}")
    liv = {0: [0], 1: [0, 1], 2: [1], 'P': [0]}
    if first:
        selmask(e, W0 + 4, V_T, rows_mask(liv['P'], 24))
        reset(W0 + 4, S_ROWN, R2_REG['P'] * RG)
        skip = e.newlabel("norstg")
        e(f"s_cmp_lg_u32 s{S_HQ}, 0"); e(f"s_cbranch_scc1 {skip}")
        for inst in (0, 1, 2):
            selmask(e, W0 + 4, V_T, rows_mask(liv[inst], 20))
            for k in range(2):
                e(f"s_add_u32 s{S_A}, s{S_GOWN}, {G_OFF(inst,k)}")
                e(f"buffer_store_dwordx4 {vr(W0,4)}, v{W0+4}, s[{SRD_WS}:{SRD_WS+3}], s{S_A} offen sc1")
        e.label(skip)
    else:
        if again:
            selmask(e, W0 + 4, V_T, rows_mask(liv['P'], 24))
            reset(W0 + 4, S_ROWN, R2_REG['P'] * RG)
        for inst in (0, 1, 2):
            selmask(e, W0 + 4, V_T, rows_mask(liv[inst], 25))
            reset(W0 + 4, S_ROWN, R2_REG[inst] * RG)
            selmask(e, W0 + 4, V_T, rows_mask(liv[inst], 20))
            for k in range(2): reset(W0 + 4, S_LOWN, L_REG(inst, k) * RG)

def raise_flag(e, bits):
    e(f"s_or_b32 s{S_T0}, s{S_T2}, {bits}")
    e(f"v_mov_b32 v{V_T}, s{S_T0}"); e(f"v_mov_b32 v{V_T+1}, s2")
    e("s_mov_b64 exec, 1")
    e.vm(f"buffer_store_byte v{V_T}, v{V_T+1}, s[{SRD_DBG}:{SRD_DBG+3}], 0 offen sc1", "flag")
    e("s_mov_b64 exec, -1")

def leader_round(e, o, bit, word, decide):
    nolead = e.newlabel("nolead")
    e("s_cmp_ge_u32 s2, 8"); e(f"s_cbranch_scc1 {nolead}")
    lab = e.newlabel("flagpoll")
    m = bit * 0x01010101
    e(f"v_lshlrev_b32 v{V_T+1}, 2, v{V_LANE}")
    e(f"s_mov_b32 s{S_CNT}, {o.poll_limit}")
    e.label(lab)
    e(f"buffer_load_dword v{W0}, v{V_T+1}, s[{SRD_DBG}:{SRD_DBG+3}], 0 offen sc1")
    e(f"s_sub_u32 s{S_CNT}, s{S_CNT}, 1"); e(f"s_cbranch_scc1 L_abort")
    e("s_waitcnt vmcnt(0)")
    e(f"v_and_b32 v{V_T}, 0x{m:08x}, v{W0}")
    e(f"v_cmp_ne_u32 vcc, 0x{m:08x}, v{V_T}")
    e(f"s_cbranch_vccnz {lab}")
    if decide:
        e(f"s_and_b32 s{S_T0}, s{S_XC}, 3"); e(f"s_lshl_b32 s{S_T0}, s{S_T0}, 3")
        e(f"v_lshrrev_b32 v{W0}, s{S_T0}, v{W0}"); e(f"v_and_b32 v{W0}, 0x0f, v{W0}")
        e(f"s_and_b32 s{S_T1}, s{S_T2}, 0x0f")
        e(f"v_cmp_ne_u32 vcc, s{S_T1}, v{W0}")
        e("s_nop 3")
        e(f"s_lshr_b32 s{S_T0}, s{S_XC}, 2")
        e(f"s_mov_b32 s{S_A}, 0x55555555"); e(f"s_lshl_b32 s{S_A}, s{S_A}, s{S_T0}")
        e(f"s_and_b32 s{S_B}, vcc_lo, s{S_A}"); e(f"s_and_b32 s{S_A}, vcc_hi, s{S_A}"); e(f"s_or_b32 s{S_A}, s{S_A}, s{S_B}")
        e(f"s_cmp_lg_u32 s{S_A}, 0"); e(f"s_cselect_b32 s{S_T0}, 2, 1")
    else: e(f"s_mov_b32 s{S_T0}, 1")
    e(f"v_lshlrev_b32 v{V_T+1}, 10, v{V_LANE}")
    e(f"s_lshl_b32 s{S_A}, s{S_XC}, 7"); e(f"s_add_u32 s{S_A}, s{S_A}, {MBOX + 4*word}")
    e(f"v_mov_b32 v{V_T}, s{S_T0}")
    e("s_mov_b32 exec_lo, -1"); e("s_mov_b32 exec_hi, 0")
    e(f"buffer_store_dword v{V_T}, v{V_T+1}, s[{SRD_WS}:{SRD_WS+3}], s{S_A} offen sc1")
    e("s_mov_b64 exec, -1")
    e.label(nolead)
    e.vmq = ["?"]

def mailbox_wait(e, o, word):
    lab = e.newlabel("mbox")
    e(f"s_lshl_b32 s{S_A}, s2, 7"); e(f"s_add_u32 s{S_A}, s{S_A}, {MBOX + 4*word}")
    e(f"v_mov_b32 v{V_T+1}, 0")
    e(f"s_mov_b32 s{S_CNT}, {o.poll_limit}")
    e.label(lab)
    e(f"buffer_load_dword v{V_T}, v{V_T+1}, s[{SRD_WS}:{SRD_WS+3}], s{S_A} offen sc1")
    e(f"s_sub_u32 s{S_CNT}, s{S_CNT}, 1"); e(f"s_cbranch_scc1 L_abort")
    e("s_waitcnt vmcnt(0)")
    e(f"v_readfirstlane_b32 s{S_T0}, v{V_T}")
    if o.mb_sleep:
        ok = e.newlabel("mbok"); e(f"s_cmp_lg_u32 s{S_T0}, 0"); e(f"s_cbranch_scc1 {ok}"); e(f"s_sleep {o.mb_sleep}"); e(f"s_branch {lab}"); e.label(ok)
    else:
        e(f"s_cmp_eq_u32 s{S_T0}, 0"); e(f"s_cbranch_scc1 {lab}")
    e.vmq = []

def tr_block(e, items):
    i, g, r, c, t = W0, W0 + 1, W0 + 2, W0 + 3, W0 + 4
    a32, a16 = W0 + 6, W0 + 7
    def tr_setup():
        e(f"v_and_b32 v{i}, 15, v{V_LANE}"); e(f"v_lshrrev_b32 v{g}, 4, v{V_LANE}")
        e(f"v_lshrrev_b32 v{r}, 2, v{i}"); e(f"v_and_b32 v{c}, 3, v{i}")
    def trbase(dst, stride, rows_per_g, base):
        e(f"v_mul_u32_u24 v{t}, {rows_per_g}, v{g}"); e(f"v_add_u32 v{t}, v{t}, v{r}")
        e(f"v_mul_u32_u24 v{t}, {stride}, v{t}"); e(f"v_lshl_add_u32 v{dst}, v{c}, 3, v{t}")
        if base: e(f"v_add_u32 v{dst}, {base}, v{dst}")
    def tr(frag, addr, off, k16, stride):
        f, lo = frag
        e.lg(f"ds_read_b64_tr_b16 {f}[{lo}:{lo+1}], v{addr} offset:{off}", "tr")
        if not k16: e.lg(f"ds_read_b64_tr_b16 {f}[{lo+2}:{lo+3}], v{addr} offset:{off+4*stride}", "tr")
        if len(e.lgq) >= 12: e.lg_wait_n(4)
    if True:
        tr_setup()
        for frag, nt, stride, base, ks in items:
            trbase(a32, stride, 8, base); trbase(a16, stride, 4, base)
            nk = len(ks)
            for tt in range(nt):
                for s, k0 in enumerate(ks):
                    k16 = (frag is not wo_frag) and s == nk - 1
                    tr(frag(tt, s), a16 if k16 else a32, k0 * stride + 32 * tt, k16, stride)
        e.lg_all()

def prologue_weights(e, o, st):
    abort = "L_abort"
    e(f"v_mov_b32 v{W0+2}, 0x3f803f80"); e(f"v_mov_b32 v{W0+3}, 0x3f803f80")
    e(f"v_lshlrev_b32 v{W0+4}, 3, v{V_LANE}"); e(f"v_add_u32 v{W0+4}, {ACT_X+384}, v{W0+4}")
    set_exec(e, mask64(range(24)))
    e.lg(f"ds_write_b64 v{W0+4}, {vr(W0+2,2)}", "ones")
    e("s_mov_b64 exec, -1")
    e.lg(f"ds_write_b64 v{V_WX}, {vr(V_XR,2)}", "wx")
    e(f"v_lshlrev_b32 v{V_XR+2}, 16, v{V_XR+1}"); e(f"v_and_b32 v{V_XR+3}, 0xffff0000, v{V_XR+1}")
    e(f"v_and_b32 v{V_XR+1}, 0xffff0000, v{V_XR}"); e(f"v_lshlrev_b32 v{V_XR}, 16, v{V_XR}")
    e.lg_all()
    lab = e.newlabel("wflag")
    e(f"v_mov_b32 v{V_T+1}, {WFLAG}")
    e(f"s_mov_b32 s{S_CNT}, {o.poll_limit*8}")
    e.label(lab)
    e(f"ds_read_b96 {vr(W0,3)}, v{V_T+1}")
    e(f"s_sub_u32 s{S_CNT}, s{S_CNT}, 1"); e(f"s_cbranch_scc1 {abort}")
    e("s_waitcnt lgkmcnt(0)")
    e(f"v_and_b32 v{W0}, v{W0}, v{W0+1}"); e(f"v_and_b32 v{W0}, v{W0}, v{W0+2}")
    e(f"v_cmp_ne_u32 vcc, 1, v{W0}")
    e(f"s_cbranch_vccnz {lab}")
    st("p.wland")
    tr_block(e, [(wq_frag, 12, 384, ST_WQ, (0, 32, 64)), (wg_frag, 3, 96, ST_WG, (0, 32, 64)), (wu_frag, 3, 96, ST_WU, (0, 32, 64))])
    st("p.weights")

def chain_wave(e, o, st, local):
    fl = "" if local else "sc1"
    abort = "L_abort"
    R = NS(vlds=V_L16, voffK=1, voffX=2, voffY=3, sel=V_SEL, qA=32, D=44, sc=56, tmp=57, vpw=62, acc=32, A=44, pp=52, vpp=63, vm=60, vl=61)
    emit_resets(e, fl, False)
    st("reset")
    instance_offsets(e, [0, 1], pub_live=[2], q_live=[0, 1, 2])
    stage_Q(e, fl, R3_REG['P'])
    stage_GU(e, fl, R2_REG['P'] * RG - 1024, with_stats=False)
    tr_block(e, [(wo_frag, 5, 160, ST_WO, (0, 32, 64, 96, 128, 160)), (wd_frag, 5, 160, ST_WD, (0, 32))])
    GA = CW_K
    e(f"v_and_b32 v{V_T}, 31, v{V_LANE}"); e(f"v_lshlrev_b32 v{V_T}, 4, v{V_T}")
    selmask(e, W0 + 40, V_T, rows_mask([0, 1], 24))
    sr = list(range(10, 18))
    for k, reg in enumerate((4, 5, 6, R2_REG['P'])):
        e(f"s_add_u32 s{sr[2*k]}, s{S_RGRP}, {reg*RG}"); e(f"s_add_u32 s{sr[2*k+1]}, s{sr[2*k]}, 4096")
    loads = []
    for row in range(3):
        loads += [(GA + 32 * row + 4 * k, V_R, sr[2*row + (k >= 4)], (k % 4) * 1024) for k in range(8)]
    loads += [(W0 + 32, V_ML, sr[0], 0), (W0 + 36, V_ML, sr[2], 0)]
    loads += [(W0 + 4 * k, W0 + 40, sr[6 + (k >= 4)], (k % 4) * 1024) for k in range(8)]
    e(f"v_subrev_u32 v{W0+41}, {768-368}, v{V_ML}")
    light = [(W0 + 4 * k, V_ML, sr[2*k], 0) for k in range(3)] + [(W0 + 12, W0 + 41, sr[6], 0)]
    if o.light: poll(e, o, light, abort, sleep=o.p_sleep)
    poll(e, o, loads, abort, sleep=o.p_sleep)
    raise_flag(e, 0x40)
    st("p.gather")
    if "cwC" in o.exp:
        e.vm_all(force=True); e("s_barrier"); e("s_branch L_done")
    sum_loads(e, 8, GA + 64)
    for rr in range(4): e(f"v_mov_b32 v{V_CSQ+rr}, v{GA+64+rr}")
    sum_loads(e, 8, W0)
    for rr in range(4): e(f"v_mov_b32 v{V_CSG+rr}, v{W0+rr}")
    for row in range(2):
        q_consume(e, GA + 32 * row, W0 + 32 + 4 * row, row)
    st("q1")
    def load_tiles(base):
        for T in range(CW_TILES):
            kv_soff(e, base, T)
            for s in range(3): ld_k(e, R, vr(CW_K + 12 * T + 4 * s, 4), s, ('K', T, s), o)
        for T in range(CW_TILES):
            kv_soff(e, base, T)
            for w in range(3): ld_v(e, R, vr(CW_V + 12 * T + 4 * w, 4), w, ('V', T, w), o)
    load_tiles(S_KV0)
    instance_offsets(e, [0])
    e.lg_all()
    st("pro_done")
    e("s_barrier")
    Kf = lambda T, s: vr(CW_K + 12 * T + 4 * s, 4)
    Vf = lambda T, w: vr(CW_V + 12 * T + 4 * w, 4)
    def kw(T):
        if T >= 0: e.vm_wait(('K', T, 2))
    def vw(T, w): e.vm_wait(('V', T, w))
    attn_pass(e, R, CW_TILES, 0, Kf, Vf, S_PB, 0, k_wait=kw, v_wait=vw)
    leader_round(e, o, 0x40, 1, False)
    mailbox_wait(e, o, 1)
    st("p.mbox2")
    e("s_barrier")
    st("bar2")
    parts = [PART + 1536 * w for w in range(4)]
    combine_publish(e, fl, parts, ML, R1_REG[0])
    hop_R1(e, o, R1_REG[0], 0, abort)
    chain(e, o, fl, 0, [0], abort, st)
    st("chain0")
    e("s_barrier")
    attn_pass(e, R, CW_TILES, 0, Kf, Vf, S_PB, 32)
    e("s_barrier")
    parts_early = [PART] + [LDS_SW * s + 48 * 1024 for s in range(3)]
    combine_publish(e, fl, parts_early, ML + 32, R1_REG['1a'])
    load_tiles(S_KV1)
    instance_offsets(e, [0, 1])
    hop_R1(e, o, R1_REG['1a'], 0, abort)
    e.vmq = []
    attn_pass(e, R, CW_TILES, 1, Kf, Vf, S_PB, 0)
    e("s_barrier")
    st("bar6")
    combine_publish(e, fl, parts, ML, R1_REG['1b'])
    hop_R1(e, o, R1_REG['1b'], 1, abort)
    chain_inst1(e, o, fl, abort, st)
    st("chain1")
    e("s_barrier")
    attn_pass(e, R, CW_TILES, 1, Kf, Vf, S_PB, 0)
    instance_offsets(e, [1])
    e("s_barrier")
    st("bar8")
    combine_publish(e, fl, parts, ML, R1_REG[2])
    hop_R1(e, o, R1_REG[2], 1, abort)
    chain(e, o, fl, 2, [1], abort, st)
    st("chain2")
    e("s_branch L_done")

def chain_inst1(e, o, fl, abort, st):
    stage_WO(e, fl, L_REG(1, 0))
    hop_LG(e, o, 1, 0, abort)
    residual_update(e)
    stage_GU(e, fl, R2_REG[1] * RG)
    hop_R2(e, o, 1, abort)
    stage_D(e, fl, L_REG(1, 1))
    hop_LG(e, o, 1, 1, abort)
    residual_update(e)
    store_out(e, 0)
    cm = cols_mask([1]); e(f"s_mov_b32 vcc_lo, 0x{cm & 0xffffffff:08x}"); e(f"s_mov_b32 vcc_hi, 0x{cm >> 32:08x}")
    e(f"v_cndmask_b32 v{V_PQ}, v{V_OOB}, v{V_PQ}, vcc"); e(f"v_cndmask_b32 v{V_PSQ}, v{V_OOB}, v{V_PSQ}, vcc")
    stage_Q(e, fl, R3_REG[1] - 1)
    hop_R3(e, o, R3_REG[1], 1, abort)
    e.lg_all()

def chain_wave_setup(e, o, st):
    L = V_LANE
    lane_id(e, L)
    e(f"v_mov_b32 v{W0}, 0"); e(f"v_mov_b32 v{W0+1}, {WFLAG}"); e(f"v_lshl_add_u32 v{W0+1}, v{L}, 2, v{W0+1}")
    e("s_mov_b64 exec, 15")
    e.lg(f"ds_write_b32 v{W0+1}, v{W0}", "z")
    e("s_mov_b64 exec, -1")
    e(f"v_mov_b32 v{V_OOB}, 0x{OOB:08x}")
    e(f"s_lshl_b32 s{S_RGRP}, s{S_H}, 13"); e(f"s_lshl_b32 s{S_T0}, s{S_J}, 10"); e(f"s_add_u32 s{S_ROWN}, s{S_RGRP}, s{S_T0}")
    e(f"s_lshl_b32 s{S_LGRP}, s{S_XC}, 3"); e(f"s_add_u32 s{S_LGRP}, s{S_LGRP}, s{S_J}"); e(f"s_lshl_b32 s{S_LGRP}, s{S_LGRP}, 12")
    e(f"s_lshl_b32 s{S_T0}, s{S_HQ}, 10"); e(f"s_add_u32 s{S_LOWN}, s{S_LGRP}, s{S_T0}")
    e(f"s_lshl_b32 s{S_GGRP}, s{S_J}, 13"); e(f"s_lshl_b32 s{S_T0}, s{S_XC}, 10"); e(f"s_add_u32 s{S_GOWN}, s{S_GGRP}, s{S_T0}")
    e.lg_all()
    e("s_barrier")
    if "nocw" in o.exp:
        e("s_barrier")
        st("bar1x")
        e("s_branch L_done")
    e(f"v_lshlrev_b32 v{V_L16}, 4, v{L}")
    selmask(e, V_R, V_L16, mask64(range(49)))
    emit_resets(e, "sc1", True)
    make_srd(e, SRD_T, S_X, 2560)
    e(f"v_and_b32 v{V_T}, 31, v{L}"); e(f"v_lshlrev_b32 v{V_T}, 3, v{V_T}")
    e(f"v_lshrrev_b32 v{V_T+1}, 5, v{L}"); e(f"v_mul_u32_u24 v{V_T+1}, 1280, v{V_T+1}"); e(f"v_add_u32 v{V_T}, v{V_T}, v{V_T+1}")
    selmask(e, V_T, V_T, rows_mask([0, 1], 20))
    e(f"s_mul_i32 s{S_T0}, s{S_J}, 160")
    e.vm(f"buffer_load_dwordx2 {vr(V_XR,2)}, v{V_T}, s[{SRD_T}:{SRD_T+3}], s{S_T0} offen", "x")
    e(f"s_add_u32 s{S_KV0}, s{S_KV0}, {60*TILE_B}")
    e(f"s_add_u32 s{S_KV1}, s{S_KV0}, {BATCH_STRIDE}")
    make_srd(e, SRD_DBG, S_DBG, 256)
    e(f"s_getreg_b32 s{S_T2}, hwreg(HW_REG_XCC_ID)")
    e(f"s_and_b32 s{S_T2}, s{S_T2}, 0xf"); e(f"s_or_b32 s{S_T2}, s{S_T2}, 0x80")
    R = NS(voffK=1, voffX=2, voffY=3, sel=V_SEL)
    attn_load_offsets(e, R, L, W0); attn_selectors(e, R, L, W0)
    n, g, x = W0, W0 + 1, W0 + 2
    e(f"v_mov_b32 v{W0+3}, v{V_L16}"); selmask(e, V_L16, W0 + 3, mask64(range(48)), other=0)
    e(f"v_and_b32 v{n}, 15, v{L}"); e(f"v_lshrrev_b32 v{g}, 4, v{L}")
    e(f"v_min_u32 v{x}, 1, v{n}")
    e(f"v_mul_u32_u24 v{V_BO}, 384, v{x}"); e(f"v_lshl_add_u32 v{V_BO}, v{g}, 4, v{V_BO}"); e(f"v_add_u32 v{V_BO}, {ACT_O}, v{V_BO}")
    e(f"v_lshlrev_b32 v{V_BH}, 7, v{x}"); e(f"v_lshl_add_u32 v{V_BH8}, v{g}, 3, v{V_BH}"); e(f"v_add_u32 v{V_BH8}, {ACT_H+64}, v{V_BH8}")
    e(f"v_lshl_add_u32 v{V_BH}, v{g}, 4, v{V_BH}"); e(f"v_add_u32 v{V_BH}, {ACT_H}, v{V_BH}")
    e(f"v_min_u32 v{x}, 2, v{n}")
    e(f"v_mul_u32_u24 v{V_BX}, 192, v{x}"); e(f"v_lshl_add_u32 v{V_BX8}, v{g}, 3, v{V_BX}"); e(f"v_add_u32 v{V_BX8}, {ACT_X+128}, v{V_BX8}")
    e(f"v_lshl_add_u32 v{V_BX}, v{g}, 4, v{V_BX}"); e(f"v_add_u32 v{V_BX}, {ACT_X}, v{V_BX}")
    e(f"v_subrev_u32 v{x}, 1, v{n}"); e(f"v_min_u32 v{x}, 2, v{x}")
    e(f"v_mul_u32_u24 v{V_AS}, 192, v{x}"); e(f"v_lshl_add_u32 v{V_AS8}, v{g}, 3, v{V_AS}"); e(f"v_add_u32 v{V_AS8}, {ACT_X+128}, v{V_AS8}")
    e(f"v_lshl_add_u32 v{V_AS}, v{g}, 4, v{V_AS}"); e(f"v_add_u32 v{V_AS}, {ACT_X}, v{V_AS}")
    e(f"v_lshlrev_b32 v{x}, 3, v{L}"); e(f"v_add_u32 v{x}, {SB}, v{x}"); selmask(e, V_W8, x, mask64(range(48)), other=SB+2560)
    e(f"v_and_b32 v{n}, 31, v{L}"); e(f"v_lshrrev_b32 v{g}, 5, v{L}")
    e(f"v_mul_u32_u24 v{x}, 192, v{g}"); e(f"v_lshl_add_u32 v{x}, v{n}, 3, v{x}"); e(f"v_add_u32 v{x}, {ACT_X}, v{x}")
    selmask(e, V_WX, x, rows_mask([0, 1], 20), other=DUMMY)
    e(f"v_lshlrev_b32 v{x}, 7, v{g}"); e(f"v_lshl_add_u32 v{x}, v{n}, 2, v{x}"); e(f"v_add_u32 v{x}, {ACT_H}, v{x}")
    selmask(e, V_WH, x, rows_mask([0, 1], 24), other=DUMMY)
    e(f"v_and_b32 v{x}, 7, v{L}"); e(f"v_lshlrev_b32 v{x}, 10, v{x}"); e(f"v_add_u32 v{V_ML}, 768, v{x}")
    m = mask64([16 * a + 1 for a in range(4)])
    e(f"s_mov_b32 s{S_N1}, 0x{m & 0xffffffff:08x}"); e(f"s_mov_b32 s{S_N1+1}, 0x{m >> 32:08x}")
    e.vm_all(force=True)
    raise_flag(e, 0)
    st("p.flag")
    if "cwA" in o.exp:
        e.vm_all(force=True); e("s_barrier"); e("s_branch L_done")
    leader_round(e, o, 0x80, 0, True)
    prologue_weights(e, o, st)
    mailbox_wait(e, o, 0)
    st("p.mbox")
    if "cwB" in o.exp:
        e.vm_all(force=True); e("s_barrier"); e("s_branch L_done")
    e(f"s_cmp_lg_u32 s{S_T0}, 1")

def generate(o):
    Stamps.select = o.stampset.split(",") if o.stampset else None
    e = Emit()
    e("s_cmp_ge_u32 s2, 256"); e("s_cbranch_scc1 L_done")
    e("s_load_dwordx16 s[4:19], s[0:1], 0"); e("s_load_dwordx8 s[20:27], s[0:1], 64")
    e("v_lshrrev_b32 v1, 6, v0")
    e(f"s_and_b32 s{S_XC}, s2, 7"); e(f"s_lshr_b32 s{S_HQ}, s2, 6")
    e(f"v_readfirstlane_b32 s{S_WAVE}, v1")
    e(f"s_lshr_b32 s{S_J}, s2, 3"); e(f"s_and_b32 s{S_J}, s{S_J}, 7")
    e(f"s_lshl_b32 s{S_H}, s{S_XC}, 2"); e(f"s_add_u32 s{S_H}, s{S_H}, s{S_HQ}")
    e(f"s_mul_i32 s{S_KV0}, s{S_H}, {HEAD_STRIDE}"); e(f"s_mul_i32 s{S_T0}, s{S_J}, {CHUNK_STRIDE}"); e(f"s_add_u32 s{S_KV0}, s{S_KV0}, s{S_T0}")
    e(f"s_mov_b32 s{S_C}, {lit(CSCALE)}")
    e(f"s_mov_b32 s{S_HI32}, 0"); e(f"s_mov_b32 s{S_HI32+1}, -1")
    e(f"s_mul_i32 s{S_PB}, s{S_WAVE}, 1536"); e(f"s_add_u32 s{S_PB}, s{S_PB}, {PART}")
    e(f"s_lshl_b32 s{S_MLB}, s{S_WAVE}, 3"); e(f"s_add_u32 s{S_MLB}, s{S_MLB}, {ML}")
    e("s_waitcnt lgkmcnt(0)")
    make_srd(e, SRD_K, S_K, KV_BYTES); make_srd(e, SRD_V, S_V, KV_BYTES); make_srd(e, SRD_WS, S_WS, WS_REC)
    e(f"s_cmp_eq_u32 s{S_WAVE}, 0"); e("s_cbranch_scc1 L_chain")
    st_s = Stamps(e, o.stamps); st_s("start")
    stream_wave(e, o, st_s)
    e.label("L_chain")
    e.vmq = []; e.lgq = []
    st_c = Stamps(e, o.stamps); st_c("start")
    chain_wave_setup(e, o, st_c)
    names = {}
    if o.force_global: e("s_branch L_global")
    else: e("s_cbranch_scc1 L_global")
    base_names = list(st_c.names)
    sv = (list(e.vmq), list(e.lgq))
    chain_wave(e, o, st_c, True)
    names['cw'] = list(st_c.names); names['sw'] = list(st_s.names)
    e.label("L_global")
    e.vmq, e.lgq = sv
    st_g = Stamps(e, o.stamps); st_g.names = list(base_names)
    chain_wave(e, o, st_g, False)
    e.label("L_abort")
    e.label("L_done")
    if o.stamps:
        e("s_cmp_ge_u32 s2, 256"); e("s_cbranch_scc1 L_exit")
        fl = Stamps(e, True); fl.names = names['cw']; fl.flush()
        e.label("L_exit")
    e("s_endpgm")
    return e, names

HEAD = """; Kernarg: A_x, K, V, wq, wo, B_x, W_gate, W_up, W_down, out, debug, ws (pointers)
; @launch grid=(256,1,1) block=(256,1,1) lds=%d
.amdgcn_target "amdgcn-amd-amdhsa--gfx950"
.text
.globl %s
.p2align 8
.type %s,@function
%s:
"""
FOOT = """
.section .rodata,"a"
.p2align 6
.amdhsa_kernel %s
  .amdhsa_next_free_vgpr 512
  .amdhsa_next_free_sgpr 102
  .amdhsa_accum_offset 256
  .amdhsa_group_segment_fixed_size 0
  .amdhsa_kernarg_size 96
  .amdhsa_user_sgpr_count 2
  .amdhsa_user_sgpr_kernarg_segment_ptr 1
  .amdhsa_system_sgpr_workgroup_id_x 1
  .amdhsa_float_denorm_mode_32 3
.end_amdhsa_kernel
"""
def build_text(o):
    e, names = generate(o)
    return HEAD % (LDS_TOTAL, NAME, NAME, NAME) + e.text() + "\n" + FOOT % NAME, names, e

if __name__ == "__main__":
    o = Opt()
    for a in sys.argv[2:]:
        k, v = a.split("=")
        cur = getattr(o, k)
        setattr(o, k, (v not in ("0", "False")) if isinstance(cur, bool) else type(cur)(v))
    txt, names, e = build_text(o)
    open(sys.argv[1], "w").write(txt)
    print("instructions:", e.ninst, "nops:", e.nops, names)
```

```python
import sys, struct
from types import SimpleNamespace as NS
from emit import Emit, vr

NAME = "interleave_layers__mha_block_cached__glu_gated_reglu__decode_kernel"

class Opt:
    NA = 12
    NA_BAR = 118
    NB = 4
    NC = 56
    NA0 = 12
    NA0N = 0
    light = True
    pf = 0
    pf_all = False
    NW = 24
    stamps = False
    poll_limit = 400000
    kvflags = "nt"
    wflags = "nt"
    stampset = ""
    p_sleep = 8
    mb_sleep = 0
    exp = ""
    t_sleep = 0
    flag_sleep = 0
    force_global = False

KV_BYTES = 100663296
BATCH_STRIDE = 50331648
HEAD_STRIDE = 1572864
CHUNK_STRIDE = 196608
TILE_B = 3072
SW_TILES, CW_TILES = 20, 4
OOB = 0x7fff0000

LDS_SW = 51200
SB = 153600
PART = SB
ML = SB + 6144
QARR = SB + 6208
ACT_O = SB + 6976
ACT_X = SB + 7744
ACT_H = SB + 8320
DUMMY = SB + 8576
WFLAG = SB + 10208
LDS_TOTAL = 163840
ST_WQ, ST_WO, ST_WG, ST_WU, ST_WD = 0, 30720, 61440, 69120, 76800

RG = 262144
R1_REG = {0: 0, '1a': 1, '1b': 2, 2: 3}
R3_REG = {'P': 4, 0: 7, 1: 8}
R2_REG = {'P': 9, 0: 10, 1: 11, 2: 12}
L_REG = lambda inst, k: 13 + 2 * inst + k
G_OFF = lambda inst, k: 19 * RG + (2 * inst + k) * 65536
STAMP_OFF = 22 * RG
WS_REC = 24 * RG

CSCALE = (192 ** -0.5) * 1.4426950408889634
EPS = 1e-5
def f2u(x): return struct.unpack("<I", struct.pack("<f", x))[0]
def lit(x): return "0x%08x" % f2u(x)
def mask64(lanes):
    m = 0
    for l in lanes: m |= 1 << l
    return m
def set_exec(e, m):
    if m == (1 << 64) - 1: e("s_mov_b64 exec, -1"); return
    e(f"s_mov_b32 exec_lo, 0x{m & 0xffffffff:08x}")
    e(f"s_mov_b32 exec_hi, 0x{m >> 32:08x}")

S_X, S_K, S_V, S_WQ, S_WO, S_BX, S_WG, S_WU, S_WD, S_OUT, S_DBG, S_WS = 4, 6, 8, 10, 12, 14, 16, 18, 20, 22, 24, 26
S_XC, S_HQ, S_J, S_H = 28, 29, 30, 31
SRD_K, SRD_V = 32, 36
S_KV0, S_KV1, S_SOFF, S_LDSB = 40, 41, 42, 43
SRD_T = 44
SRD_WS = 48
SRD_DBG = 52
S_C = 56
S_ROWN, S_RGRP, S_LOWN, S_LGRP, S_GOWN, S_GGRP = 57, 58, 59, 60, 61, 62
S_A, S_B, S_CNT, S_T0, S_T1, S_T2 = 63, 64, 65, 66, 67, 68
S_PB = 69
S_HI32 = 70
S_MLB = 72
S_DMA = 73
S_WAVE = 3
S_STAMP = 76

def make_srd(e, srd, ptr, nbytes):
    e(f"s_mov_b32 s{srd}, s{ptr}")
    e(f"s_and_b32 s{srd+1}, s{ptr+1}, 0xffff")
    e(f"s_mov_b32 s{srd+2}, {nbytes}")
    e(f"s_mov_b32 s{srd+3}, 0x20000")

class Stamps:
    select = None
    def __init__(self, e, on): self.e, self.on, self.names = e, on, []
    def __call__(self, name):
        if not self.on: return
        if Stamps.select is not None and not any(name.startswith(p) for p in Stamps.select): return
        if Stamps.select is None and "." in name: return
        n = len(self.names); assert n < 12, "too many stamps"
        self.e(f"s_memrealtime s[{S_STAMP+2*n}:{S_STAMP+2*n+1}]")
        self.e.lg_all(force=True)
        self.names.append(name)
    def flush(self):
        if not self.on: return
        e = self.e
        e("s_mov_b64 exec, 1")
        e(f"s_lshl_b32 s{S_T0}, s2, 2"); e(f"s_add_u32 s{S_T0}, s{S_T0}, s{S_WAVE}"); e(f"s_lshl_b32 s{S_T0}, s{S_T0}, 7")
        e(f"s_add_u32 s{S_T0}, s{S_T0}, {STAMP_OFF}")
        e("v_mov_b32 v0, 0")
        for i in range(len(self.names)):
            e(f"v_mov_b32 v2, s{S_STAMP+2*i}"); e(f"v_mov_b32 v3, s{S_STAMP+2*i+1}")
            e(f"buffer_store_dwordx2 v[2:3], v0, s[{SRD_WS}:{SRD_WS+3}], s{S_T0} offen offset:{8*i}")
            e("s_waitcnt vmcnt(0)")

def lane_id(e, dst):
    e(f"v_mbcnt_lo_u32_b32 {vr(dst)}, -1, 0")
    e(f"v_mbcnt_hi_u32_b32 {vr(dst)}, -1, {vr(dst)}")

def attn_load_offsets(e, R, lane, t):
    i, g, u, w = t, t + 1, t + 2, t + 3
    e(f"v_and_b32 {vr(i)}, 15, {vr(lane)}")
    e(f"v_lshrrev_b32 {vr(g)}, 4, {vr(lane)}")
    e(f"v_and_b32 {vr(u)}, 7, {vr(i)}")
    e(f"v_lshrrev_b32 {vr(w)}, 3, {vr(i)}")
    e(f"v_mul_u32_u24 {vr(R.voffK)}, 384, {vr(u)}")
    e(f"v_lshl_add_u32 {vr(R.voffK)}, {vr(g)}, 4, {vr(R.voffK)}")
    e(f"v_lshl_add_u32 {vr(R.voffK)}, {vr(w)}, 6, {vr(R.voffK)}")
    e(f"v_mul_u32_u24 {vr(R.voffX)}, 768, {vr(g)}")
    e(f"v_mul_u32_u24 {vr(w)}, 384, {vr(w)}")
    e(f"v_add_u32 {vr(R.voffY)}, {vr(R.voffX)}, {vr(w)}")
    e(f"v_lshl_add_u32 {vr(R.voffY)}, {vr(u)}, 4, {vr(R.voffY)}")
    e(f"v_add_u32 {vr(R.voffY)}, 256, {vr(R.voffY)}")
    e(f"v_lshl_add_u32 {vr(R.voffX)}, {vr(i)}, 4, {vr(R.voffX)}")

def attn_selectors(e, R, lane, t):
    i, u, lo, hi = t, t + 1, t + 2, t + 3
    e(f"v_and_b32 {vr(i)}, 15, {vr(lane)}")
    e(f"v_lshrrev_b32 {vr(u)}, 3, {vr(i)}")
    e(f"v_mul_u32_u24 {vr(u)}, 0x202, {vr(u)}")
    e(f"v_add_u32 {vr(u)}, 0x100, {vr(u)}")
    e(f"v_or_b32 {vr(lo)}, 0x0c0c0000, {vr(u)}")
    e(f"v_lshlrev_b32 {vr(hi)}, 16, {vr(u)}")
    e(f"v_or_b32 {vr(hi)}, 0x0c0c, {vr(hi)}")
    e(f"v_and_b32 {vr(u)}, 1, {vr(i)}")
    e(f"v_cmp_eq_u32 vcc, 1, {vr(u)}")
    e(f"v_cndmask_b32 {vr(lo)}, {vr(lo)}, {vr(hi)}, vcc")
    e(f"v_bfe_u32 {vr(u)}, {vr(i)}, 1, 2")
    e(f"v_mov_b32 {vr(hi)}, 0x0c0c0c0c")
    for r in range(4):
        e(f"v_cmp_eq_u32 vcc, {r}, {vr(u)}")
        e(f"v_cndmask_b32 {vr(R.sel+r)}, {vr(hi)}, {vr(lo)}, vcc")

def allreduce(e, reg, tmp, op):
    for k in (8, 4, 2, 1):
        e(f"v_{op}_f32_dpp {vr(reg)}, {vr(reg)}, {vr(reg)} row_ror:{k} row_mask:0xf bank_mask:0xf")
    e(f"v_mov_b32 {vr(tmp)}, {vr(reg)}")
    e(f"v_permlane16_swap_b32 {vr(reg)}, {vr(tmp)}")
    e(f"v_{op}_f32 {vr(reg)}, {vr(reg)}, {vr(tmp)}")
    e(f"v_mov_b32 {vr(tmp)}, {vr(reg)}")
    e(f"v_permlane32_swap_b32 {vr(reg)}, {vr(tmp)}")
    e(f"v_{op}_f32 {vr(reg)}, {vr(reg)}, {vr(tmp)}")

def attn_pass(e, R, ntiles, qrow, Kfrag, Vfrag, part_sreg, ml_off, k_wait=None, qk_hook=None, mid_hook=None,
              v_wait=None, pv_hook=None, stage=None):
    L = R.tmp
    lane_id(e, L)
    e(f"v_and_b32 {vr(L+1)}, 1, {vr(L)}")
    e(f"v_lshrrev_b32 {vr(L+2)}, 4, {vr(L)}")
    e(f"v_lshlrev_b32 {vr(L+2)}, 4, {vr(L+2)}")
    e(f"v_lshl_add_u32 {vr(L+1)}, {vr(L+1)}, 6, {vr(L+2)}")
    e(f"v_add_u32 {vr(L+1)}, {QARR}, {vr(L+1)}")
    for s in range(3):
        e.lg(f"ds_read_b128 {vr(R.qA+4*s,4)}, {vr(L+1)} offset:{qrow*384 + 128*s}", ("q", s))
    e(f"v_add_u32 {vr(R.vpp)}, s{S_PB}, {vr(L+2)}")
    W = R.vpw
    e(f"v_lshrrev_b32 {vr(L+1)}, 5, {vr(L)}"); e(f"v_lshlrev_b32 {vr(W)}, 6, {vr(L+1)}")
    e(f"v_bfe_u32 {vr(L+1)}, {vr(L)}, 1, 2"); e(f"v_lshl_add_u32 {vr(W)}, {vr(L+1)}, 4, {vr(W)}")
    e(f"v_bfe_u32 {vr(L+1)}, {vr(L)}, 3, 2"); e(f"v_lshl_add_u32 {vr(W)}, {vr(L+1)}, 2, {vr(W)}")
    e(f"v_and_b32 {vr(L+1)}, 1, {vr(L)}"); e(f"v_lshl_add_u32 {vr(W)}, {vr(L+1)}, 1, {vr(W)}")
    e(f"v_add_u32 {vr(W)}, s{S_PB}, {vr(W)}")
    nsc = (ntiles + 7) // 8
    for r in range(nsc):
        if (r + 1) * 8 > ntiles: e(f"v_mov_b32 {vr(R.sc+r)}, 0xff800000")
    stg = {}
    def stage_k(T):
        if T >= ntiles: return
        for s in range(3):
            f = Kfrag(T, s)
            if isinstance(f, tuple):
                reg = stage[(3 * T + s) % len(stage)]
                e.lg(f"ds_read_b128 {vr(reg,4)}, {vr(R.vlds)} offset:{f[1]}", ("k", T, s))
                stg[(T, s)] = vr(reg, 4)
    LOOK = 2
    if k_wait: k_wait(-1)
    for T in range(min(LOOK, ntiles)): stage_k(T)
    e.lg_wait(("q", 2))
    def dpp_add(T):
        D = R.D + 4 * (T % 3)
        dst = vr(R.sc + (T >> 3)); rm = 1 << ((T >> 1) & 3)
        if T % 2 == 0: e(f"v_add_f32_dpp {dst}, {vr(D+1)}, {vr(D)} row_ror:8 row_mask:0x{rm:x} bank_mask:0x3")
        else:          e(f"v_add_f32_dpp {dst}, {vr(D)}, {vr(D+1)} row_ror:8 row_mask:0x{rm:x} bank_mask:0xc")
    for T in range(ntiles):
        if k_wait: k_wait(T)
        D = vr(R.D + 4 * (T % 3), 4)
        for s in range(3):
            f = Kfrag(T, s)
            if isinstance(f, tuple):
                e.lg_wait(("k", T, s)); f = stg[(T, s)]
            e(f"v_mfma_f32_16x16x32_bf16 {D}, {vr(R.qA+4*s,4)}, {f}, {'0' if s == 0 else D}")
        stage_k(T + LOOK)
        if qk_hook: qk_hook(T)
        if T >= 2: dpp_add(T - 2)
    for T in range(max(0, ntiles - 2), ntiles): dpp_add(T)
    t0, t1 = R.D, R.D + 1
    if nsc == 1: e(f"v_mov_b32 {vr(t0)}, {vr(R.sc)}")
    elif nsc == 2: e(f"v_max_f32 {vr(t0)}, {vr(R.sc)}, {vr(R.sc+1)}")
    else: e(f"v_max3_f32 {vr(t0)}, {vr(R.sc)}, {vr(R.sc+1)}, {vr(R.sc+2)}")
    allreduce(e, t0, t1, "max")
    e(f"v_mul_f32 {vr(R.vm)}, s{S_C}, {vr(t0)}")
    for r in range(nsc): e(f"v_fma_f32 {vr(R.sc+r)}, {vr(R.sc+r)}, s{S_C}, -{vr(R.vm)}")
    for r in range(nsc): e(f"v_exp_f32 {vr(R.sc+r)}, {vr(R.sc+r)}")
    for r in range(nsc): e(f"v_cvt_pk_bf16_f32 {vr(R.D+2+r)}, {vr(R.sc+r)}, {vr(R.sc+r)}")
    for r in range(nsc): e.lg(f"ds_write_b16 {vr(W)}, {vr(R.D+2+r)} offset:{128*r}", ("pw", r))
    nq = (ntiles + 3) // 4
    ppreg = lambda q: R.pp + 4 * (q % 2)
    if nsc == 1: e(f"v_mov_b32 {vr(R.vl)}, {vr(R.sc)}")
    else:
        e(f"v_add_f32 {vr(R.vl)}, {vr(R.sc)}, {vr(R.sc+1)}")
        if nsc == 3: e(f"v_add_f32 {vr(R.vl)}, {vr(R.vl)}, {vr(R.sc+2)}")
    e.lg(f"ds_read_b128 {vr(ppreg(0),4)}, {vr(R.vpp)}", ("pp", 0))
    if nq > 1: e.lg(f"ds_read_b128 {vr(ppreg(1),4)}, {vr(R.vpp)} offset:64", ("pp", 1))
    allreduce(e, R.vl, t1, "add")
    if mid_hook: mid_hook()
    X1, X2, Y = R.acc, R.acc + 4, R.acc + 8
    def build_A(T):
        q = T >> 2
        e.lg_wait(("pp", q))
        A = R.A + 4 * (T % 2); src = vr(ppreg(q) + (T & 3))
        return [f"v_perm_b32 {vr(A+r)}, {src}, {src}, {vr(R.sel+r)}" for r in range(4)]
    for ins in build_A(0): e(ins)
    for T in range(ntiles):
        A = vr(R.A + 4 * (T % 2), 4)
        nxt = build_A(T + 1) if T + 1 < ntiles else []
        if v_wait: v_wait(T, 0)
        e(f"v_mfma_f32_16x16x32_bf16 {vr(X1,4)}, {A}, {Vfrag(T,0)}, {'0' if T == 0 else vr(X1,4)}")
        for ins in nxt[:2]: e(ins)
        if v_wait: v_wait(T, 1)
        e(f"v_mfma_f32_16x16x32_bf16 {vr(X2,4)}, {A}, {Vfrag(T,1)}, {'0' if T == 0 else vr(X2,4)}")
        for ins in nxt[2:]: e(ins)
        if v_wait: v_wait(T, 2)
        e(f"v_mfma_f32_16x16x32_bf16 {vr(Y,4)}, {A}, {Vfrag(T,2)}, {'0' if T == 0 else vr(Y,4)}")
        if (T & 3) == 2 and (T >> 2) + 2 < nq:
            q2 = (T >> 2) + 2
            e.lg(f"ds_read_b128 {vr(ppreg(q2),4)}, {vr(R.vpp)} offset:{64*q2}", ("pp", q2))
        if pv_hook: pv_hook(T)
    p = R.pp
    lane_id(e, p)
    e(f"v_and_b32 {vr(p+1)}, 15, {vr(p)}")
    e(f"v_lshrrev_b32 {vr(p+2)}, 4, {vr(p)}")
    e(f"v_and_b32 {vr(p+3)}, 1, {vr(p+2)}")
    e(f"v_lshrrev_b32 {vr(p+2)}, 1, {vr(p+2)}")
    e(f"v_mul_u32_u24 {vr(p+2)}, 768, {vr(p+2)}")
    e(f"v_lshl_add_u32 {vr(p+2)}, {vr(p+3)}, 4, {vr(p+2)}")
    e(f"v_add_u32 {vr(p+2)}, s{part_sreg}, {vr(p+2)}")
    e(f"v_lshl_add_u32 {vr(p+4)}, {vr(p+1)}, 5, {vr(p+2)}")
    e(f"v_and_b32 {vr(p+1)}, 7, {vr(p+1)}")
    e(f"v_lshl_add_u32 {vr(p+5)}, {vr(p+1)}, 5, {vr(p+2)}")
    e(f"v_mov_b32 {vr(p+6)}, s{S_MLB}")
    e(f"v_mov_b32 {vr(R.A)}, {vr(R.vm)}"); e(f"v_mov_b32 {vr(R.A+1)}, {vr(R.vl)}")
    for r in range(4):
        e(f"v_cndmask_b32 {vr(X1+r)}, {vr(X1+r)}, {vr(X2+r)}, s[{S_HI32}:{S_HI32+1}]")
    e.lg(f"ds_write_b128 {vr(p+4)}, {vr(X1,4)}", "px")
    set_exec(e, 0xFF00FF0000FF00FF)
    e.lg(f"ds_write_b128 {vr(p+5)}, {vr(Y,4)} offset:512", "py")
    e("s_mov_b64 exec, 1")
    e.lg(f"ds_write_b64 {vr(p+6)}, {vr(R.A,2)} offset:{ml_off}", "pm")
    e("s_mov_b64 exec, -1")
    e.lg_all()

def kv_soff(e, base_sreg, T):
    e(f"s_add_u32 s{S_SOFF}, s{base_sreg}, {T*TILE_B}")
def ld_k(e, R, dst, s, tag, o):
    e.vm(f"buffer_load_dwordx4 {dst}, {vr(R.voffK)}, s[{SRD_K}:{SRD_K+3}], s{S_SOFF} offen offset:{128*s} {o.kvflags}", tag)
def ld_v(e, R, dst, w, tag, o):
    vo = R.voffY if w == 2 else R.voffX
    off = 384 if w == 1 else 0
    e.vm(f"buffer_load_dwordx4 {dst}, {vr(vo)}, s[{SRD_V}:{SRD_V+3}], s{S_SOFF} offen offset:{off} {o.kvflags}", tag)
def dma_k(e, R, slot, s, tag, o):
    e(f"s_add_u32 m0, s{S_LDSB}, {slot*1024 - 128*s + 0}") if slot*1024 - 128*s >= 0 else e(f"s_sub_u32 m0, s{S_LDSB}, {128*s - slot*1024}")
    e.vm(f"buffer_load_dwordx4 {vr(R.voffK)}, s[{SRD_K}:{SRD_K+3}], s{S_SOFF} offen offset:{128*s} {o.kvflags} lds", tag)
def dma_v(e, R, slot, w, tag, o):
    vo = R.voffY if w == 2 else R.voffX
    off = 384 if w == 1 else 0
    e(f"s_add_u32 m0, s{S_LDSB}, {slot*1024 - off}")
    e.vm(f"buffer_load_dwordx4 {vr(vo)}, s[{SRD_V}:{SRD_V+3}], s{S_SOFF} offen offset:{off} {o.kvflags} lds", tag)

def slot_reg(k):
    assert 0 <= k < 118
    return f"a[{4*k}:{4*k+3}]" if k < 64 else f"v[{40+4*(k-64)}:{40+4*(k-64)+3}]"

def weight_dma(e, o):
    L, t, u = 8, 20, 21
    def dma_block(ptr, nbytes, lanes_per_row, magic, shift, nlanes, row_stride, rows_per_instr, ninstr, so, lds0, bar=False):
        make_srd(e, SRD_T, ptr, nbytes)
        e(f"v_mul_u32_u24 v{t}, {magic}, v{L}"); e(f"v_lshrrev_b32 v{t}, {shift}, v{t}")
        e(f"v_mul_u32_u24 v{u}, {lanes_per_row}, v{t}"); e(f"v_sub_u32 v{u}, v{L}, v{u}")
        e(f"s_mov_b32 s{S_T1}, {row_stride}")
        e(f"v_mul_lo_u32 v{t}, v{t}, s{S_T1}"); e(f"v_lshl_add_u32 v{t}, v{u}, 4, v{t}")
        rreg, rmul, creg, cmul = so
        e(f"s_mul_i32 s{S_SOFF}, s{rreg}, {rmul*row_stride}")
        e(f"s_mul_i32 s{S_T1}, s{creg}, {cmul}"); e(f"s_add_u32 s{S_SOFF}, s{S_SOFF}, s{S_T1}")
        set_exec(e, mask64(range(nlanes)))
        if bar: e("s_barrier")
        for i in range(ninstr):
            e(f"s_mov_b32 m0, {lds0 + i*nlanes*16}")
            if i: e(f"s_add_u32 s{S_SOFF}, s{S_SOFF}, {rows_per_instr*row_stride}")
            else: e("s_nop 0")
            e.vm_depth(o.NW - 1)
            e.vm(f"buffer_load_dwordx4 v{t}, s[{SRD_T}:{SRD_T+3}], s{S_SOFF} offen {o.wflags} lds", "w")
        e("s_mov_b64 exec, -1")
    l2, l3, end = e.newlabel("w2"), e.newlabel("w3"), e.newlabel("wend")
    e(f"s_cmp_eq_u32 s{S_WAVE}, 2"); e(f"s_cbranch_scc1 {l2}")
    e(f"s_cmp_eq_u32 s{S_WAVE}, 3"); e(f"s_cbranch_scc1 {l3}")
    e.vmq = []
    dma_block(S_WQ, 7864320, 24, 43, 10, 48, 12288, 2, 40, (S_J, 80, S_H, 384), ST_WQ, bar=True)
    e(f"s_branch {end}")
    e.label(l2); e.vmq = []
    dma_block(S_WO, 7864320, 10, 103, 10, 60, 1280, 6, 32, (S_H, 192, S_J, 160), ST_WO, bar=True)
    e(f"s_branch {end}")
    e.label(l3); e.vmq = []
    dma_block(S_WG, 1966080, 6, 43, 8, 60, 3072, 10, 8, (S_J, 80, S_H, 96), ST_WG, bar=True)
    dma_block(S_WU, 1966080, 6, 43, 8, 60, 3072, 10, 8, (S_J, 80, S_H, 96), ST_WU)
    dma_block(S_WD, 1966080, 10, 103, 10, 60, 1280, 6, 8, (S_H, 48, S_J, 160), ST_WD)
    e.label(end)
    e.vmq = ["w"] * o.NW

def stream_wave(e, o, st):
    R = NS(vlds=0, voffK=1, voffX=2, voffY=3, sel=4, qA=8, D=20, sc=32, tmp=20, vpw=35, acc=8, A=20, pp=28, vpp=36, vm=38, vl=39)
    e(f"s_sub_u32 s{S_T0}, s{S_WAVE}, 1")
    e(f"s_mul_i32 s{S_T1}, s{S_T0}, {SW_TILES*TILE_B}")
    e(f"s_add_u32 s{S_KV0}, s{S_KV0}, s{S_T1}")
    e(f"s_add_u32 s{S_KV1}, s{S_KV0}, {BATCH_STRIDE}")
    e(f"s_mul_i32 s{S_LDSB}, s{S_T0}, {LDS_SW}")
    lane_id(e, 8)
    if o.pf:
        skip = e.newlabel("nopf")
        e(f"s_cmp_lg_u32 s{S_WAVE}, 3"); e(f"s_cbranch_scc1 {skip}")
        if not o.pf_all:
            e(f"s_cmp_lg_u32 s{S_J}, 0"); e(f"s_cbranch_scc1 {skip}")
        e(f"s_getpc_b64 s[{SRD_T}:{SRD_T+1}]")
        e.label("L_pc")
        e(f"s_sub_u32 s{SRD_T}, s{SRD_T}, (L_pc - {NAME})"); e(f"s_subb_u32 s{SRD_T+1}, s{SRD_T+1}, 0")
        e("v_lshlrev_b32 v20, 7, v8")
        for i in range(o.pf):
            e(f"global_load_dword v39, v20, s[{SRD_T}:{SRD_T+1}]")
            e("v_add_u32 v20, 0x2000, v20")
        e.label(skip)
    if "now" in o.exp: e("s_barrier")
    else: weight_dma(e, o)
    st("s.wiss")
    attn_load_offsets(e, R, 8, 10)
    loads = []
    for T in range(SW_TILES):
        for s in range(3): loads.append(('K', T, s))
    for T in range(SW_TILES):
        for w in range(3): loads.append(('V', T, w))
    def k0slot(T, s): return 3 * T + s
    def v0slot(T, w): return 60 + 3 * T + w
    cur = [None]
    def issue0(item):
        kind, T, x = item
        if cur[0] != (kind, T, 0):
            kv_soff(e, S_KV0, T); cur[0] = (kind, T, 0)
        if kind == 'K': ld_k(e, R, slot_reg(k0slot(T, x)), x, ('K0', T, x), o)
        else:
            sl = v0slot(T, x)
            if sl < 118: ld_v(e, R, slot_reg(sl), x, ('V0', T, x), o)
            else: dma_v(e, R, 48 + sl - 118, x, ('V0', T, x), o)
    first = True
    for idx, item in enumerate(loads[:o.NA_BAR]):
        na = o.NA0 if idx < o.NA0N else o.NA
        e.vm_depth(na - 1)
        if idx == min(o.NA, o.NA0 if o.NA0N > o.NA0 else o.NA):
            e(f"s_lshl_b32 s{S_T0}, s{S_WAVE}, 2"); e(f"s_add_u32 s{S_T0}, s{S_T0}, {WFLAG-4}")
            e(f"v_mov_b32 v20, s{S_T0}"); e("v_mov_b32 v21, 1")
            e.lg("ds_write_b32 v20, v21", "wf")
            st("s.wland")
        if idx == 60: st("s.k0iss")
        if idx == 90: st("s.v30")
        issue0(item)
        if first:
            first = False
            e(f"v_lshlrev_b32 {vr(R.vlds)}, 4, v8")
            e(f"v_add_u32 {vr(R.vlds)}, s{S_LDSB}, {vr(R.vlds)}")
            attn_selectors(e, R, 8, 10)
    st("A_issued")
    e("s_barrier")
    st("bar1")
    if "nocw" in o.exp or "cw" in o.exp:
        e.vm_all(); st("s.alland"); st.flush(); e("s_endpgm")
    pend = [('0', it) for it in loads[o.NA_BAR:]]
    for T in range(16):
        for s in range(3): pend.append(('1', T, s))
    cur1 = [None]
    def issue_pend():
        it = pend.pop(0)
        if it[0] == '0': cur1[0] = None; issue0(it[1])
        else:
            _, T, s = it
            if cur1[0] != T:
                kv_soff(e, S_KV1, T); cur1[0] = T; cur[0] = None
            dma_k(e, R, 3 * T + s, s, ('K1', T, s), o)
    while pend[0][0] == '0': issue_pend()
    def Kf0(T, s): return slot_reg(k0slot(T, s))
    def Vf0(T, w):
        sl = v0slot(T, w)
        if sl < 118: return slot_reg(sl)
        return "v[32:35]" if w == 1 else "v[28:31]"
    def k_wait_A(T):
        if T == -1: e.vm_wait(('K0', SW_TILES - 1, 2))
    def pv_hook_A(T):
        left = SW_TILES - 1 - T
        target = max(o.NB, min(o.NA, 3 * left + o.NB))
        if T == SW_TILES - 2:
            e.vm_wait(('V0', SW_TILES - 1, 2))
            e.lg(f"ds_read_b128 v[32:35], {vr(R.vlds)} offset:{48*1024}", ("vo", 1))
            e.lg(f"ds_read_b128 v[28:31], {vr(R.vlds)} offset:{49*1024}", ("vo", 2))
            target = o.NB
        while pend and len(e.vmq) < target: issue_pend()
    def vwait_A(T, w):
        e.vm_wait(('V0', T, w))
        if T == SW_TILES - 1 and w >= 1: e.lg_wait(("vo", w))
    attn_pass(e, R, SW_TILES, 0, Kf0, Vf0, S_PB, 0, k_wait=k_wait_A, v_wait=vwait_A, pv_hook=pv_hook_A)
    st("A_done")
    e("s_barrier")
    while pend:
        e.vm_depth(o.NB - 1)
        issue_pend()
    st("B_issued")
    e("s_barrier")
    st("bar3")
    pend1 = []
    for T in range(16, SW_TILES):
        for s in range(3): pend1.append(('K', T, s))
    for T in range(SW_TILES):
        for w in range(3): pend1.append(('V', T, w))
    slot_of = {it: i for i, it in enumerate(pend1)}
    freed = [0]
    issued1 = [0]
    cur2 = [None]
    def issue1():
        it = pend1[issued1[0]]; kind, T, x = it
        if cur2[0] != (kind, T):
            kv_soff(e, S_KV1, T); cur2[0] = (kind, T)
        e.vm_depth(o.NC - 1)
        if kind == 'K': ld_k(e, R, slot_reg(slot_of[it]), x, ('K1', T, x), o)
        else: ld_v(e, R, slot_reg(slot_of[it]), x, ('V1', T, x), o)
        issued1[0] += 1
    def refill():
        while issued1[0] < len(pend1) and issued1[0] < freed[0]: issue1()
    def qk_hook_C1(T):
        freed[0] = 3 * (T + 1); refill()
    def pv_hook_C1(T):
        freed[0] = min(118, 60 + 3 * (T + 1)); refill(); ovf_hook_C(T)
    def ovf_hook_C(T):
        if T == SW_TILES - 2:
            e.lg(f"ds_read_b128 v[32:35], {vr(R.vlds)} offset:{48*1024}", ("vo", 1))
            e.lg(f"ds_read_b128 v[28:31], {vr(R.vlds)} offset:{49*1024}", ("vo", 2))
    def vwait_C1(T, w):
        if T == SW_TILES - 1 and w >= 1: e.lg_wait(("vo", w))
    e(f"s_add_u32 s{S_T2}, s{S_LDSB}, {48*1024}")
    attn_pass(e, R, SW_TILES, 0, Kf0, Vf0, S_T2, 32, qk_hook=qk_hook_C1, v_wait=vwait_C1, pv_hook=pv_hook_C1)
    refill()
    assert issued1[0] == len(pend1)
    st("C1_done")
    e("s_barrier")
    stage = [40 + 4 * (k - 64) for k in range(100, 112)]
    def Kf1(T, s):
        if T < 16: return ('lds', (3 * T + s) * 1024)
        return slot_reg(slot_of[('K', T, s)])
    def Vf1(T, w): return slot_reg(slot_of[('V', T, w)])
    def k_wait_C2(T):
        if T == -1: e.vm_wait(('K1', 15, 2))
        elif T >= 16: e.vm_wait(('K1', T, 2))
    def vwait_C2(T, w): e.vm_wait(('V1', T, w))
    attn_pass(e, R, SW_TILES, 1, Kf1, Vf1, S_PB, 0, k_wait=k_wait_C2, v_wait=vwait_C2, stage=stage)
    st("C2_done")
    e("s_barrier")
    e("s_barrier")
    st("bar7")
    attn_pass(e, R, SW_TILES, 1, Kf1, Vf1, S_PB, 0, stage=stage)
    st("E_done")
    e("s_barrier")
    st.flush()
    e("s_endpgm")

V_LANE, V_LG, V_R, V_PL, V_PG, V_PQ = 0, 4, 5, 6, 7, 8
V_BO, V_BX, V_BX8, V_BH, V_BH8, V_AS, V_AS8 = 9, 10, 11, 12, 13, 14, 15
V_XR, V_CSQ, V_CSG = 16, 20, 24
V_W8, V_WX, V_WH, V_ML = 28, 29, 30, 31
W0 = 32
V_SEL, V_R2, V_ST2, V_PS, V_PSQ, V_L16 = 75, 79, 80, 81, 82, 83
V_T = 84
CW_K, CW_V = 86, 134
S_N1 = 74

_off3 = (2, 6, 0)
def wq_frag(t, s): return ("a", 10 * t + _off3[s])
def wo_frag(t, s): return ("a", 120 + 24 * t + 4 * s)
def wd_frag(t, s):
    if s == 0: return ("a", 240 + 4 * t) if t < 4 else ("v", 182)
    return ("v", 186 + 2 * t)
def wg_frag(t, s): return ("v", 196 + 10 * t + _off3[s])
def wu_frag(t, s): return ("v", 226 + 10 * t + _off3[s])
def win(fr): return f"{fr[0]}[{fr[1]}:{fr[1]+3}]"

V_OOB = 74
def selmask(e, dst, val, mask, other=None):
    e(f"s_mov_b32 vcc_lo, 0x{mask & 0xffffffff:08x}"); e(f"s_mov_b32 vcc_hi, 0x{mask >> 32:08x}")
    if other is None: e(f"v_cndmask_b32 {vr(dst)}, v{V_OOB}, {vr(val)}, vcc")
    else:
        assert dst != val
        e(f"v_mov_b32 {vr(dst)}, 0x{other:08x}")
        e(f"v_cndmask_b32 {vr(dst)}, {vr(dst)}, {vr(val)}, vcc")

def rows_mask(live, n): return mask64([32 * r + g for r in live for g in range(n)])
def cols_mask(live, alist=range(4)): return mask64([16 * a + n for a in alist for n in live])

def instance_offsets(e, live, pub_live=None, q_live=None):
    pub_live = live if pub_live is None else pub_live
    q_live = pub_live if q_live is None else q_live
    t, u = V_T, V_T + 1
    e(f"v_and_b32 {vr(t)}, 31, v{V_LANE}"); e(f"v_lshlrev_b32 {vr(t)}, 4, {vr(t)}")
    e(f"v_lshrrev_b32 {vr(u)}, 5, v{V_LANE}"); e(f"v_lshl_add_u32 {vr(t)}, {vr(u)}, 9, {vr(t)}")
    selmask(e, V_LG, t, rows_mask(live, 20))
    selmask(e, V_R2, t, rows_mask(live, 24))
    e(f"v_and_b32 {vr(t)}, 7, v{V_LANE}"); e(f"v_lshlrev_b32 {vr(t)}, 10, {vr(t)}")
    e(f"v_lshl_add_u32 {vr(t)}, {vr(u)}, 9, {vr(t)}"); e(f"v_add_u32 {vr(t)}, 384, {vr(t)}")
    selmask(e, V_ST2, t, rows_mask(live, 32))
    e(f"v_and_b32 {vr(t)}, 15, v{V_LANE}"); e(f"v_lshrrev_b32 {vr(u)}, 4, v{V_LANE}")
    e(f"v_lshlrev_b32 v{V_PL}, 9, {vr(t)}")
    e(f"v_lshl_add_u32 v{V_PG}, {vr(u)}, 5, v{V_PL}")
    e(f"v_add_u32 v{V_PS}, 384, v{V_PL}")
    e(f"v_lshl_add_u32 v{V_PL}, {vr(u)}, 4, v{V_PL}")
    e(f"v_lshlrev_b32 v{V_PQ}, 18, {vr(t)}")
    e(f"v_add_u32 v{V_PSQ}, 768, v{V_PQ}")
    e(f"v_lshl_add_u32 v{V_PQ}, {vr(u)}, 4, v{V_PQ}")
    cm = cols_mask(pub_live)
    e(f"s_mov_b32 vcc_lo, 0x{cm & 0xffffffff:08x}"); e(f"s_mov_b32 vcc_hi, 0x{cm >> 32:08x}")
    for r in (V_PL, V_PG): e(f"v_cndmask_b32 v{r}, v{V_OOB}, v{r}, vcc")
    selmask(e, V_PS, V_PS, cols_mask(pub_live, [0]))
    selmask(e, V_PQ, V_PQ, cols_mask(q_live))
    selmask(e, V_PSQ, V_PSQ, cols_mask(q_live, [0]))

def soffs(e, off_sreg, const, two=True):
    e(f"s_add_u32 s{S_A}, s{off_sreg}, {const}")
    if two: e(f"s_add_u32 s{S_B}, s{S_A}, 4096")

def poll(e, o, loads, abort, sleep=0):
    lab = e.newlabel("poll")
    e(f"s_mov_b32 s{S_CNT}, {o.poll_limit}")
    e.label(lab)
    for d, vo, s, imm in loads:
        e(f"buffer_load_dwordx4 {vr(d,4)}, v{vo}, s[{SRD_WS}:{SRD_WS+3}], s{s} offen offset:{imm} sc1")
    e(f"s_sub_u32 s{S_CNT}, s{S_CNT}, 1")
    e(f"s_cbranch_scc1 {abort}")
    e("s_waitcnt vmcnt(0)")
    vals = []
    for d, _, _, _ in loads: vals += [d + 1, d + 3]
    t = V_T
    e(f"v_max3_u32 v{t}, v{vals[0]}, v{vals[1]}, v{vals[2]}")
    i = 3
    while i < len(vals):
        if i + 1 < len(vals): e(f"v_max3_u32 v{t}, v{t}, v{vals[i]}, v{vals[i+1]}"); i += 2
        else: e(f"v_max_u32 v{t}, v{t}, v{vals[i]}"); i += 1
    e(f"v_cmp_eq_u32 vcc, -1, v{t}")
    if sleep:
        ok = e.newlabel("pok"); e(f"s_cbranch_vccz {ok}"); e(f"s_sleep {sleep}"); e(f"s_branch {lab}"); e.label(ok)
    else: e(f"s_cbranch_vccnz {lab}")
    e.vmq = []

def gather8(e, o, vo, abort, extra=None, n=8, base=W0):
    loads = [(base + 4 * k, vo, S_A if k < 4 else S_B, (k % 4) * 1024) for k in range(n)]
    if extra: loads.append((base + 4 * n, extra, S_A, 0))
    poll(e, o, loads, abort)

def sum_loads(e, n, base=W0):
    step = 1
    while step < n:
        for k in range(0, n, 2 * step):
            if k + step < n:
                a, b = base + 4 * k, base + 4 * (k + step)
                e(f"v_pk_add_f32 {vr(a,2)}, {vr(a,2)}, {vr(b,2)}")
                e(f"v_pk_add_f32 {vr(a+2,2)}, {vr(a+2,2)}, {vr(b+2,2)}")
        step *= 2

def dpp8(e, reg, op):
    for m in ("quad_perm:[1,0,3,2]", "quad_perm:[2,3,0,1]", "row_half_mirror"):
        e(f"v_{op}_f32_dpp v{reg}, v{reg}, v{reg} {m} row_mask:0xf bank_mask:0xf")
def dpp8x2(e, r0, r1, op):
    for m in ("quad_perm:[1,0,3,2]", "quad_perm:[2,3,0,1]", "row_half_mirror"):
        e(f"v_{op}_f32_dpp v{r0}, v{r0}, v{r0} {m} row_mask:0xf bank_mask:0xf")
        e(f"v_{op}_f32_dpp v{r1}, v{r1}, v{r1} {m} row_mask:0xf bank_mask:0xf")

def ln_from_stats(e, s1, s2, mean, rstd):
    e(f"v_mul_f32 v{mean}, {lit(1/640)}, v{s1}")
    e(f"v_mul_f32 v{s2}, {lit(1/640)}, v{s2}")
    e(f"v_fma_f32 v{s2}, -v{mean}, v{mean}, v{s2}")
    e(f"v_max_f32 v{s2}, 0, v{s2}")
    e(f"v_add_f32 v{s2}, {lit(EPS)}, v{s2}")
    e(f"v_rsq_f32 v{rstd}, v{s2}")

def pub(e, D, vo, sreg, imm, fl, tag):
    e.vm(f"buffer_store_dwordx4 {vr(D,4)}, v{vo}, s[{SRD_WS}:{SRD_WS+3}], s{sreg} offen offset:{imm} {fl}", tag)

def gemv(e, tiles, Dbase, nD, store):
    lag = nD - 1
    for t, steps in enumerate(tiles):
        D = vr(Dbase + 4 * (t % nD), 4)
        for s, (A, B) in enumerate(steps):
            e(f"v_mfma_f32_16x16x32_bf16 {D}, {A}, {B}, {'0' if s == 0 else D}")
        if t >= lag: store(t - lag, Dbase + 4 * ((t - lag) % nD))
    for t in range(max(0, len(tiles) - lag), len(tiles)): store(t, Dbase + 4 * (t % nD))

def read_bx(e, B):
    e.lg(f"ds_read_b128 {vr(B,4)}, v{V_BX}", "b0"); e.lg(f"ds_read_b128 {vr(B+4,4)}, v{V_BX} offset:64", "b1")
    e.lg(f"ds_read_b64 {vr(B+8,2)}, v{V_BX8}", "b2")
    e(f"v_mov_b32 v{B+10}, 0"); e(f"v_mov_b32 v{B+11}, 0")
def read_as(e, A):
    e.lg(f"ds_read_b128 {vr(A,4)}, v{V_AS}", "a0"); e.lg(f"ds_read_b128 {vr(A+4,4)}, v{V_AS} offset:64", "a1")
    e.lg(f"ds_read_b64 {vr(A+8,2)}, v{V_AS8}", "a2")
    e(f"v_mov_b32 v{A+10}, 0"); e(f"v_mov_b32 v{A+11}, 0")

def stage_Q(e, fl, reg_index):
    B, A = W0, W0 + 12
    read_bx(e, B); read_as(e, A)
    e(f"s_add_u32 s{S_A}, s{S_ROWN}, {reg_index*RG}")
    e.lg_wait("b2")
    tiles = [[(win(wq_frag(t, s)), vr(B + 4 * s, 4)) for s in range(3)] for t in range(12)]
    def store(t, D):
        if t < 12: pub(e, D, V_PQ, S_A, 64 * t, fl, ("pq", t))
        else:
            e(f"v_cndmask_b32 v{D+1}, v{D+1}, v{D+2}, s[{S_N1}:{S_N1+1}]")
            pub(e, D, V_PSQ, S_A, 0, fl, "pqs")
    stats = [(vr(A + 4 * s, 4), vr(B + 4 * s, 4)) for s in range(3)]
    e.lg_wait("a2")
    gemv(e, tiles + [stats], W0 + 24, 4, store)

def stage_GU(e, fl, const, with_stats=True):
    B, A, Db = W0, W0 + 12, W0 + 24
    read_bx(e, B)
    if with_stats: read_as(e, A)
    e(f"s_add_u32 s{S_A}, s{S_ROWN}, {const}" if const >= 0 else f"s_sub_u32 s{S_A}, s{S_ROWN}, {-const}")
    e.lg_wait("b2")
    def tile(d, f):
        d = vr(d, 4)
        for s in range(3): e(f"v_mfma_f32_16x16x32_bf16 {d}, {f(s)}, {vr(B+4*s,4)}, {'0' if s == 0 else d}")
    def pair(t, G):
        tile(G, lambda s: win(wg_frag(t, s)))
        tile(G + 4, lambda s: win(wu_frag(t, s)))
    def store(t, G):
        U = G + 4
        e(f"v_swap_b32 v{G+2}, v{U}"); e(f"v_swap_b32 v{G+3}, v{U+1}")
        pub(e, G, V_PG, S_A, 128 * t, fl, ("pg", t, 0))
        pub(e, U, V_PG, S_A, 128 * t + 16, fl, ("pg", t, 1))
    S = W0 + 40
    if with_stats:
        e.lg_wait("a2")
        tile(Db + 8, lambda s: vr(A + 4 * s, 4))
    pair(0, Db)
    if with_stats:
        S = Db + 8
        e(f"v_cndmask_b32 v{S+1}, v{S+1}, v{S+2}, s[{S_N1}:{S_N1+1}]")
        pub(e, S, V_PS, S_A, 0, fl, "pgs")
    pair(1, Db + 8)
    store(0, Db)
    pair(2, Db)
    store(1, Db + 8)
    store(2, Db)

def stage_WO(e, fl, region):
    B = W0
    for s in range(6): e.lg(f"ds_read_b128 {vr(B+4*s,4)}, v{V_BO} offset:{64*s}", ("o", s))
    e(f"s_add_u32 s{S_A}, s{S_LOWN}, {region*RG}")
    tiles = [[(win(wo_frag(t, s)), vr(B+4*s,4)) for s in range(6)] for t in range(5)]
    e.lg_wait(("o", 5))
    gemv(e, tiles, W0 + 24, 3, lambda t, D: pub(e, D, V_PL, S_A, 64 * t, fl, ("po", t)))

def stage_D(e, fl, region):
    B = W0
    e.lg(f"ds_read_b128 {vr(B,4)}, v{V_BH}", "h0"); e.lg(f"ds_read_b64 {vr(B+4,2)}, v{V_BH8}", "h1")
    e(f"v_mov_b32 v{B+6}, 0"); e(f"v_mov_b32 v{B+7}, 0")
    e(f"s_add_u32 s{S_A}, s{S_LOWN}, {region*RG}")
    tiles = [[(win(wd_frag(t, 0)), vr(B,4)), (win(wd_frag(t, 1)), vr(B+4,4))] for t in range(5)]
    e.lg_wait("h1")
    gemv(e, tiles, W0 + 8, 5, lambda t, D: pub(e, D, V_PL, S_A, 64 * t, fl, ("pd", t)))

def hop_LG(e, o, inst, k, abort, final_only=False):
    skip = e.newlabel("notleader")
    e(f"s_cmp_lg_u32 s{S_HQ}, 0"); e(f"s_cbranch_scc1 {skip}")
    e(f"s_add_u32 s{S_A}, s{S_LGRP}, {L_REG(inst,k)*RG}")
    gather8(e, o, V_LG, abort, n=4)
    sum_loads(e, 4)
    e(f"s_add_u32 s{S_A}, s{S_GOWN}, {G_OFF(inst,k)}")
    e(f"buffer_store_dwordx4 {vr(W0,4)}, v{V_LG}, s[{SRD_WS}:{SRD_WS+3}], s{S_A} offen sc1")
    e.label(skip)
    e.vmq = ["?"]
    if final_only:
        e(f"s_cmp_lg_u32 s{S_H}, 0"); e(f"s_cbranch_scc1 L_done")
    soffs(e, S_GGRP, G_OFF(inst, k))
    e.vmq = []
    gather8(e, o, V_LG, abort)
    sum_loads(e, 8)

def residual_update(e):
    e(f"v_pk_add_f32 {vr(W0,2)}, {vr(W0,2)}, {vr(V_XR,2)}")
    e(f"v_pk_add_f32 {vr(W0+2,2)}, {vr(W0+2,2)}, {vr(V_XR+2,2)}")
    e(f"v_cvt_pk_bf16_f32 v{W0+4}, v{W0}, v{W0+1}")
    e(f"v_cvt_pk_bf16_f32 v{W0+5}, v{W0+2}, v{W0+3}")
    e.lg(f"ds_write_b64 v{V_WX}, {vr(W0+4,2)}", "wx")
    e(f"v_lshlrev_b32 v{V_XR}, 16, v{W0+4}"); e(f"v_and_b32 v{V_XR+1}, 0xffff0000, v{W0+4}")
    e(f"v_lshlrev_b32 v{V_XR+2}, 16, v{W0+5}"); e(f"v_and_b32 v{V_XR+3}, 0xffff0000, v{W0+5}")

def store_out(e, row):
    skip = e.newlabel("noout")
    e(f"s_cmp_lg_u32 s{S_H}, 0"); e(f"s_cbranch_scc1 {skip}")
    make_srd(e, SRD_T, S_OUT, 2560)
    e(f"v_and_b32 v{V_T}, 31, v{V_LANE}"); e(f"v_lshlrev_b32 v{V_T}, 3, v{V_T}")
    e(f"s_mul_i32 s{S_T0}, s{S_J}, 160"); e(f"s_add_u32 s{S_T0}, s{S_T0}, {row*1280}")
    selmask(e, V_T, V_T, rows_mask([row], 20))
    e(f"buffer_store_dwordx2 {vr(W0+4,2)}, v{V_T}, s[{SRD_T}:{SRD_T+3}], s{S_T0} offen")
    e.label(skip)

def combine_publish(e, fl, parts, mlbase, region):
    T = W0
    e(f"v_mov_b32 v{V_T}, {mlbase}")
    e.lg(f"ds_read_b128 {vr(T,4)}, v{V_T}", "ml0"); e.lg(f"ds_read_b128 {vr(T+4,4)}, v{V_T} offset:16", "ml1")
    P = T + 8
    cur = None
    for w in range(4):
        if cur is None or not (0 <= parts[w] - cur < 60000):
            e(f"v_add_u32 v{V_T+1}, {parts[w]}, v{V_L16}"); cur = parts[w]
        for par in range(2):
            e.lg(f"ds_read_b128 {vr(P+8*w+4*par,4)}, v{V_T+1} offset:{parts[w] - cur + 768*par}", ("p", w, par))
    e(f"s_add_u32 s{S_A}, s{S_ROWN}, {region*RG}")
    e.lg_wait("ml1")
    m = [T, T + 2, T + 4, T + 6]; l = [T + 1, T + 3, T + 5, T + 7]
    M, Ls = T + 40, T + 41
    e(f"v_max3_f32 v{M}, v{m[0]}, v{m[1]}, v{m[2]}"); e(f"v_max_f32 v{M}, v{M}, v{m[3]}")
    for w in range(4): e(f"v_sub_f32 v{m[w]}, v{m[w]}, v{M}")
    for w in range(4): e(f"v_exp_f32 v{m[w]}, v{m[w]}")
    e(f"v_mul_f32 v{Ls}, v{m[0]}, v{l[0]}")
    for w in range(1, 4): e(f"v_fma_f32 v{Ls}, v{m[w]}, v{l[w]}, v{Ls}")
    for w in range(4):
        e.lg_wait(("p", w, 1))
        a = P + 8 * w
        e(f"v_pk_add_f32 {vr(a,2)}, {vr(a,2)}, {vr(a+4,2)}"); e(f"v_pk_add_f32 {vr(a+2,2)}, {vr(a+2,2)}, {vr(a+6,2)}")
        for r in range(4):
            if w == 0: e(f"v_mul_f32 v{P+r}, v{m[0]}, v{P+r}")
            else: e(f"v_fmac_f32 v{P+r}, v{m[w]}, v{a+r}")
    e(f"s_mov_b32 vcc_lo, 0"); e(f"s_mov_b32 vcc_hi, 0x00010000")
    e(f"v_cndmask_b32 v{P}, v{P}, v{M}, vcc"); e(f"v_cndmask_b32 v{P+1}, v{P+1}, v{Ls}, vcc")
    pub(e, P, V_R, S_A, 0, fl, "r1")

def hop_R1(e, o, region, row, abort):
    soffs(e, S_RGRP, region * RG)
    gather8(e, o, V_R, abort, extra=V_ML)
    X = W0 + 32
    M, wv = X + 2, X + 3
    e(f"v_mov_b32 v{M}, v{X}")
    dpp8(e, M, "max")
    e(f"v_sub_f32 v{wv}, v{X}, v{M}"); e(f"v_exp_f32 v{wv}, v{wv}")
    e(f"v_mul_f32 v{X+1}, v{wv}, v{X+1}")
    dpp8(e, X + 1, "add")
    e(f"v_rcp_f32 v{X+1}, v{X+1}")
    e(f"v_mul_f32 v{wv}, v{wv}, v{X+1}")
    acc = W0 + 36
    for k in range(8):
        for r in range(4):
            opn = "v_mul_f32_dpp" if k == 0 else "v_fmac_f32_dpp"
            e(f"{opn} v{acc+r}, v{wv}, v{W0+4*k+r} row_newbcast:{k} row_mask:0xf bank_mask:0xf")
    e(f"v_cvt_pk_bf16_f32 v{acc}, v{acc}, v{acc+1}"); e(f"v_cvt_pk_bf16_f32 v{acc+1}, v{acc+2}, v{acc+3}")
    e.lg(f"ds_write_b64 v{V_W8}, {vr(acc,2)} offset:{ACT_O - SB + 384*row}", "wo")

def hop_R2(e, o, inst, abort):
    soffs(e, S_RGRP, R2_REG[inst] * RG)
    gather8(e, o, V_R2, abort, extra=V_ST2)
    X = W0 + 32
    dpp8x2(e, X, X + 1, "add")
    sum_loads(e, 8)
    mean, rstd = X + 2, X + 3
    ln_from_stats(e, X, X + 1, mean, rstd)
    for r in range(4): e(f"v_fma_f32 v{W0+r}, -v{mean}, v{V_CSG+r}, v{W0+r}")
    for r in range(4): e(f"v_mul_f32 v{W0+r}, v{rstd}, v{W0+r}")
    e(f"v_max_f32 v{W0}, 0, v{W0}"); e(f"v_max_f32 v{W0+1}, 0, v{W0+1}")
    e(f"v_mul_f32 v{W0}, v{W0}, v{W0+2}"); e(f"v_mul_f32 v{W0+1}, v{W0+1}, v{W0+3}")
    e(f"v_cvt_pk_bf16_f32 v{W0}, v{W0}, v{W0+1}")
    e.lg(f"ds_write_b32 v{V_WH}, v{W0}", "wh")

def q_consume(e, base, X, row):
    dpp8x2(e, X, X + 1, "add")
    sum_loads(e, 8, base)
    mean, rstd = X + 2, X + 3
    ln_from_stats(e, X, X + 1, mean, rstd)
    for r in range(4): e(f"v_fma_f32 v{base+r}, -v{mean}, v{V_CSQ+r}, v{base+r}")
    for r in range(4): e(f"v_mul_f32 v{base+r}, v{rstd}, v{base+r}")
    e(f"v_cvt_pk_bf16_f32 v{base}, v{base}, v{base+1}"); e(f"v_cvt_pk_bf16_f32 v{base+1}, v{base+2}, v{base+3}")
    e.lg(f"ds_write_b64 v{V_W8}, {vr(base,2)} offset:{QARR - SB + 384*row}", "wq")

def hop_R3(e, o, region, row, abort):
    soffs(e, S_RGRP, region * RG)
    gather8(e, o, V_R, abort, extra=V_ML)
    q_consume(e, W0, W0 + 32, row)

def chain(e, o, fl, inst, live, abort, st):
    c = f"c{inst}."
    st(c + "R1")
    stage_WO(e, fl, L_REG(inst, 0))
    st(c + "WO")
    hop_LG(e, o, inst, 0, abort)
    st(c + "G1")
    residual_update(e)
    stage_GU(e, fl, R2_REG[inst] * RG)
    st(c + "GU")
    hop_R2(e, o, inst, abort)
    st(c + "R2")
    stage_D(e, fl, L_REG(inst, 1))
    st(c + "D")
    hop_LG(e, o, inst, 1, abort, final_only=(inst == 2))
    st(c + "G2")
    residual_update(e)
    if inst == 1: store_out(e, 0)
    if inst == 2:
        store_out(e, 1)
        e("s_cmp_lg_u32 s2, 0"); e("s_cbranch_scc1 L_done")
        e(f"v_mov_b32 v{V_T}, s{S_TAG}"); e(f"v_mov_b32 v{V_T+1}, {EPOCH_OFF}")
        e("s_mov_b64 exec, 1")
        e(f"buffer_store_dword v{V_T}, v{V_T+1}, s[{SRD_WS}:{SRD_WS+3}], 0 offen sc1")
        e("s_mov_b64 exec, -1")
        return
    qrow = 0 if inst == 0 else 1
    if inst == 1:
        cm = cols_mask([1]); e(f"s_mov_b32 vcc_lo, 0x{cm & 0xffffffff:08x}"); e(f"s_mov_b32 vcc_hi, 0x{cm >> 32:08x}")
        e(f"v_cndmask_b32 v{V_PQ}, v{V_OOB}, v{V_PQ}, vcc"); e(f"v_cndmask_b32 v{V_PSQ}, v{V_OOB}, v{V_PSQ}, vcc")
    stage_Q(e, fl, R3_REG[inst] - qrow)
    st(c + "Q")
    hop_R3(e, o, R3_REG[inst], qrow, abort)
    e.lg_all()
    st(c + "R3")

TOK1 = 21 * RG
TOK2 = TOK1 + 32768
EPOCH_OFF = 896
S_TAG = 14

def emit_resets(e, f):
    e(f"v_mov_b32 v{W0}, -1"); e(f"v_mov_b32 v{W0+1}, -1"); e(f"v_mov_b32 v{W0+2}, -1"); e(f"v_mov_b32 v{W0+3}, -1")
    def reset(vo, sreg, const):
        e(f"s_add_u32 s{S_A}, s{sreg}, {const}")
        e.vm(f"buffer_store_dwordx4 {vr(W0,4)}, v{vo}, s[{SRD_WS}:{SRD_WS+3}], s{S_A} offen {f}", "rst")
    e(f"v_and_b32 v{V_T}, 31, v{V_LANE}"); e(f"v_lshlrev_b32 v{V_T}, 4, v{V_T}")
    e(f"v_lshrrev_b32 v{V_T+1}, 5, v{V_LANE}"); e(f"v_lshl_add_u32 v{V_T}, v{V_T+1}, 9, v{V_T}")
    liv = {0: [0], 1: [0, 1], 2: [1], 'P': [0]}
    skip = e.newlabel("norstg")
    e(f"s_cmp_lg_u32 s{S_HQ}, 0"); e(f"s_cbranch_scc1 {skip}")
    for inst in (0, 1, 2):
        selmask(e, W0 + 4, V_T, rows_mask(liv[inst], 20))
        for k in range(2):
            e(f"s_add_u32 s{S_A}, s{S_GOWN}, {G_OFF(inst,k)}")
            e(f"buffer_store_dwordx4 {vr(W0,4)}, v{W0+4}, s[{SRD_WS}:{SRD_WS+3}], s{S_A} offen sc1")
    e.label(skip)
    for r in [4, 5, 6]: reset(V_R, S_ROWN, r * RG)
    selmask(e, W0 + 4, V_T, rows_mask(liv['P'], 24))
    reset(W0 + 4, S_ROWN, R2_REG['P'] * RG)
    for r in [7, 8] + list(R1_REG.values()): reset(V_R, S_ROWN, r * RG)
    for inst in (0, 1, 2):
        selmask(e, W0 + 4, V_T, rows_mask(liv[inst], 25))
        reset(W0 + 4, S_ROWN, R2_REG[inst] * RG)
        selmask(e, W0 + 4, V_T, rows_mask(liv[inst], 20))
        for k in range(2): reset(W0 + 4, S_LOWN, L_REG(inst, k) * RG)

def token_store(e, base, second):
    e(f"s_lshl_b32 s{S_A}, s2, 7"); e(f"s_add_u32 s{S_A}, s{S_A}, {base}")
    e(f"v_mov_b32 v{W0+40}, s{S_TAG}"); e(f"v_mov_b32 v{W0+41}, {second}"); e(f"v_mov_b32 v{V_T}, 0")
    e("s_mov_b64 exec, 1")
    e.vm(f"buffer_store_dwordx2 {vr(W0+40,2)}, v{V_T}, s[{SRD_WS}:{SRD_WS+3}], s{S_A} offen sc1", "tok")
    e("s_mov_b64 exec, -1")

def token_gather(e, o, base, vo, mask, sleep=0):
    lab = e.newlabel("tok")
    e(f"s_mov_b32 s{S_A}, {base}")
    set_exec(e, mask)
    e(f"s_mov_b32 s{S_CNT}, {o.poll_limit}")
    e.label(lab)
    e(f"buffer_load_dwordx2 {vr(W0,2)}, v{vo}, s[{SRD_WS}:{SRD_WS+3}], s{S_A} offen sc1")
    e(f"s_sub_u32 s{S_CNT}, s{S_CNT}, 1"); e(f"s_cbranch_scc1 L_abort")
    e("s_waitcnt vmcnt(0)")
    e(f"v_cmp_ne_u32 vcc, s{S_TAG}, v{W0}")
    if sleep:
        ok = e.newlabel("tokok"); e(f"s_cbranch_vccz {ok}"); e(f"s_sleep {sleep}"); e(f"s_branch {lab}"); e.label(ok)
    else: e(f"s_cbranch_vccnz {lab}")
    e.vmq = []

def tr_block(e, items):
    i, g, r, c, t = W0, W0 + 1, W0 + 2, W0 + 3, W0 + 4
    a32, a16 = W0 + 6, W0 + 7
    def tr_setup():
        e(f"v_and_b32 v{i}, 15, v{V_LANE}"); e(f"v_lshrrev_b32 v{g}, 4, v{V_LANE}")
        e(f"v_lshrrev_b32 v{r}, 2, v{i}"); e(f"v_and_b32 v{c}, 3, v{i}")
    def trbase(dst, stride, rows_per_g, base):
        e(f"v_mul_u32_u24 v{t}, {rows_per_g}, v{g}"); e(f"v_add_u32 v{t}, v{t}, v{r}")
        e(f"v_mul_u32_u24 v{t}, {stride}, v{t}"); e(f"v_lshl_add_u32 v{dst}, v{c}, 3, v{t}")
        if base: e(f"v_add_u32 v{dst}, {base}, v{dst}")
    def tr(frag, addr, off, k16, stride):
        f, lo = frag
        e.lg(f"ds_read_b64_tr_b16 {f}[{lo}:{lo+1}], v{addr} offset:{off}", "tr")
        if not k16: e.lg(f"ds_read_b64_tr_b16 {f}[{lo+2}:{lo+3}], v{addr} offset:{off+4*stride}", "tr")
        if len(e.lgq) >= 12: e.lg_wait_n(4)
    if True:
        tr_setup()
        for frag, nt, stride, base, ks in items:
            trbase(a32, stride, 8, base); trbase(a16, stride, 4, base)
            nk = len(ks)
            for tt in range(nt):
                for s, k0 in enumerate(ks):
                    k16 = (frag is not wo_frag) and s == nk - 1
                    tr(frag(tt, s), a16 if k16 else a32, k0 * stride + 32 * tt, k16, stride)
        e.lg_all()

def prologue_weights(e, o, st):
    abort = "L_abort"
    e(f"v_mov_b32 v{W0+2}, 0x3f803f80"); e(f"v_mov_b32 v{W0+3}, 0x3f803f80")
    e(f"v_lshlrev_b32 v{W0+4}, 3, v{V_LANE}"); e(f"v_add_u32 v{W0+4}, {ACT_X+384}, v{W0+4}")
    set_exec(e, mask64(range(24)))
    e.lg(f"ds_write_b64 v{W0+4}, {vr(W0+2,2)}", "ones")
    e("s_mov_b64 exec, -1")
    e.lg(f"ds_write_b64 v{V_WX}, {vr(V_XR,2)}", "wx")
    e(f"v_lshlrev_b32 v{V_XR+2}, 16, v{V_XR+1}"); e(f"v_and_b32 v{V_XR+3}, 0xffff0000, v{V_XR+1}")
    e(f"v_and_b32 v{V_XR+1}, 0xffff0000, v{V_XR}"); e(f"v_lshlrev_b32 v{V_XR}, 16, v{V_XR}")
    e.lg_all()
    lab = e.newlabel("wflag")
    e(f"v_mov_b32 v{V_T+1}, {WFLAG}")
    e(f"s_mov_b32 s{S_CNT}, {o.poll_limit*8}")
    e.label(lab)
    e(f"ds_read_b96 {vr(W0,3)}, v{V_T+1}")
    e(f"s_sub_u32 s{S_CNT}, s{S_CNT}, 1"); e(f"s_cbranch_scc1 {abort}")
    e("s_waitcnt lgkmcnt(0)")
    e(f"v_and_b32 v{W0}, v{W0}, v{W0+1}"); e(f"v_and_b32 v{W0}, v{W0}, v{W0+2}")
    e(f"v_cmp_ne_u32 vcc, 1, v{W0}")
    e(f"s_cbranch_vccnz {lab}")
    st("p.wland")
    tr_block(e, [(wq_frag, 12, 384, ST_WQ, (0, 32, 64)), (wg_frag, 3, 96, ST_WG, (0, 32, 64)), (wu_frag, 3, 96, ST_WU, (0, 32, 64))])
    st("p.weights")

def chain_wave(e, o, st, local):
    fl = "" if local else "sc1"
    abort = "L_abort"
    R = NS(vlds=V_L16, voffK=1, voffX=2, voffY=3, sel=V_SEL, qA=32, D=44, sc=56, tmp=57, vpw=62, acc=32, A=44, pp=52, vpp=63, vm=60, vl=61)
    emit_resets(e, fl)
    st("reset")
    prologue_weights(e, o, st)
    instance_offsets(e, [0, 1], pub_live=[2], q_live=[0, 1, 2])
    stage_Q(e, fl, R3_REG['P'])
    stage_GU(e, fl, R2_REG['P'] * RG - 1024, with_stats=False)
    e.vm_wait("rst")
    token_store(e, TOK2, 0)
    st("p.tok2")
    tr_block(e, [(wo_frag, 5, 160, ST_WO, (0, 32, 64, 96, 128, 160)), (wd_frag, 5, 160, ST_WD, (0, 32))])
    L = V_LANE; t, u = W0 + 2, W0 + 3
    e(f"v_and_b32 v{t}, 7, v{L}"); e(f"v_lshlrev_b32 v{u}, 3, v{t}")
    e(f"s_lshl_b32 s{S_T0}, s{S_HQ}, 6"); e(f"s_add_u32 s{S_T0}, s{S_T0}, s{S_XC}"); e(f"v_add_u32 v{W0+4}, s{S_T0}, v{u}")
    e(f"v_lshlrev_b32 v{u}, 6, v{t}")
    e(f"s_lshl_b32 s{S_T1}, s{S_J}, 3"); e(f"s_add_u32 s{S_T0}, s{S_T1}, s{S_XC}"); e(f"v_add_u32 v{W0+5}, s{S_T0}, v{u}")
    e(f"v_add_u32 v{W0+6}, s{S_T1}, v{t}")
    e("s_mov_b32 vcc_lo, 0x00000f00"); e("s_mov_b32 vcc_hi, 0"); e(f"v_cndmask_b32 v{W0+4}, v{W0+4}, v{W0+5}, vcc")
    e("s_mov_b32 vcc_lo, 0x00ff0000"); e(f"v_cndmask_b32 v{W0+4}, v{W0+4}, v{W0+6}, vcc")
    e(f"v_lshlrev_b32 v{W0+4}, 7, v{W0+4}")
    token_gather(e, o, TOK2, W0 + 4, 0x00ff0fff, sleep=o.t_sleep)
    e("s_mov_b64 exec, -1")
    st("p.tok2g")
    GA = CW_K
    e(f"v_and_b32 v{V_T}, 31, v{V_LANE}"); e(f"v_lshlrev_b32 v{V_T}, 4, v{V_T}")
    selmask(e, W0 + 40, V_T, rows_mask([0, 1], 24))
    sr = list(range(10, 18))
    for k, reg in enumerate((4, 5, 6, R2_REG['P'])):
        e(f"s_add_u32 s{sr[2*k]}, s{S_RGRP}, {reg*RG}"); e(f"s_add_u32 s{sr[2*k+1]}, s{sr[2*k]}, 4096")
    loads = []
    for row in range(3):
        loads += [(GA + 32 * row + 4 * k, V_R, sr[2*row + (k >= 4)], (k % 4) * 1024) for k in range(8)]
    loads += [(W0 + 32, V_ML, sr[0], 0), (W0 + 36, V_ML, sr[2], 0)]
    loads += [(W0 + 4 * k, W0 + 40, sr[6 + (k >= 4)], (k % 4) * 1024) for k in range(8)]
    e(f"v_subrev_u32 v{W0+41}, {768-368}, v{V_ML}")
    light = [(W0 + 4 * k, V_ML, sr[2*k], 0) for k in range(3)] + [(W0 + 12, W0 + 41, sr[6], 0)]
    if o.light: poll(e, o, light, abort, sleep=o.p_sleep)
    poll(e, o, loads, abort, sleep=o.p_sleep)
    st("p.gather")
    if "cwC" in o.exp:
        e.vm_all(force=True); e("s_barrier"); e("s_branch L_done")
    sum_loads(e, 8, GA + 64)
    for rr in range(4): e(f"v_mov_b32 v{V_CSQ+rr}, v{GA+64+rr}")
    sum_loads(e, 8, W0)
    for rr in range(4): e(f"v_mov_b32 v{V_CSG+rr}, v{W0+rr}")
    for row in range(2):
        q_consume(e, GA + 32 * row, W0 + 32 + 4 * row, row)
    st("q1")
    def load_tiles(base):
        for T in range(CW_TILES):
            kv_soff(e, base, T)
            for s in range(3): ld_k(e, R, vr(CW_K + 12 * T + 4 * s, 4), s, ('K', T, s), o)
        for T in range(CW_TILES):
            kv_soff(e, base, T)
            for w in range(3): ld_v(e, R, vr(CW_V + 12 * T + 4 * w, 4), w, ('V', T, w), o)
    load_tiles(S_KV0)
    instance_offsets(e, [0])
    e.lg_all()
    st("pro_done")
    e("s_barrier")
    Kf = lambda T, s: vr(CW_K + 12 * T + 4 * s, 4)
    Vf = lambda T, w: vr(CW_V + 12 * T + 4 * w, 4)
    def kw(T):
        if T >= 0: e.vm_wait(('K', T, 2))
    def vw(T, w): e.vm_wait(('V', T, w))
    attn_pass(e, R, CW_TILES, 0, Kf, Vf, S_PB, 0, k_wait=kw, v_wait=vw)
    e("s_barrier")
    st("bar2")
    parts = [PART + 1536 * w for w in range(4)]
    combine_publish(e, fl, parts, ML, R1_REG[0])
    st("c0.cmb")
    hop_R1(e, o, R1_REG[0], 0, abort)
    chain(e, o, fl, 0, [0], abort, st)
    st("chain0")
    e("s_barrier")
    attn_pass(e, R, CW_TILES, 0, Kf, Vf, S_PB, 32)
    e("s_barrier")
    parts_early = [PART] + [LDS_SW * s + 48 * 1024 for s in range(3)]
    combine_publish(e, fl, parts_early, ML + 32, R1_REG['1a'])
    load_tiles(S_KV1)
    instance_offsets(e, [0, 1])
    hop_R1(e, o, R1_REG['1a'], 0, abort)
    e.vmq = []
    attn_pass(e, R, CW_TILES, 1, Kf, Vf, S_PB, 0)
    e("s_barrier")
    st("bar6")
    combine_publish(e, fl, parts, ML, R1_REG['1b'])
    st("c1.cmb")
    hop_R1(e, o, R1_REG['1b'], 1, abort)
    chain(e, o, fl, 1, [0, 1], abort, st)
    st("chain1")
    e("s_barrier")
    attn_pass(e, R, CW_TILES, 1, Kf, Vf, S_PB, 0)
    instance_offsets(e, [1])
    e("s_barrier")
    st("bar8")
    combine_publish(e, fl, parts, ML, R1_REG[2])
    st("c2.cmb")
    hop_R1(e, o, R1_REG[2], 1, abort)
    chain(e, o, fl, 2, [1], abort, st)
    st("chain2")
    e("s_branch L_done")

def chain_wave_setup(e, o, st):
    L = V_LANE
    lane_id(e, L)
    e(f"v_mov_b32 v{W0}, 0"); e(f"v_mov_b32 v{W0+1}, {WFLAG}"); e(f"v_lshl_add_u32 v{W0+1}, v{L}, 2, v{W0+1}")
    e("s_mov_b64 exec, 15")
    e.lg(f"ds_write_b32 v{W0+1}, v{W0}", "z")
    e("s_mov_b64 exec, -1")
    e(f"v_mov_b32 v{V_OOB}, 0x{OOB:08x}")
    e(f"s_lshl_b32 s{S_RGRP}, s{S_H}, 13"); e(f"s_lshl_b32 s{S_T0}, s{S_J}, 10"); e(f"s_add_u32 s{S_ROWN}, s{S_RGRP}, s{S_T0}")
    e(f"s_lshl_b32 s{S_LGRP}, s{S_XC}, 3"); e(f"s_add_u32 s{S_LGRP}, s{S_LGRP}, s{S_J}"); e(f"s_lshl_b32 s{S_LGRP}, s{S_LGRP}, 12")
    e(f"s_lshl_b32 s{S_T0}, s{S_HQ}, 10"); e(f"s_add_u32 s{S_LOWN}, s{S_LGRP}, s{S_T0}")
    e(f"s_lshl_b32 s{S_GGRP}, s{S_J}, 13"); e(f"s_lshl_b32 s{S_T0}, s{S_XC}, 10"); e(f"s_add_u32 s{S_GOWN}, s{S_GGRP}, s{S_T0}")
    e.lg_all()
    e("s_barrier")
    if "nocw" in o.exp:
        e("s_barrier")
        st("bar1x")
        e("s_branch L_done")
    e(f"v_lshlrev_b32 v{V_L16}, 4, v{L}")
    selmask(e, V_R, V_L16, mask64(range(49)))
    e(f"s_load_dword s{S_TAG}, s[{S_WS}:{S_WS+1}], {EPOCH_OFF}")
    e(f"s_getreg_b32 s{S_T2}, hwreg(HW_REG_XCC_ID)"); e(f"s_and_b32 s{S_T2}, s{S_T2}, 0xf")
    e("s_waitcnt lgkmcnt(0)")
    e(f"s_add_u32 s{S_TAG}, s{S_TAG}, 1")
    token_store(e, TOK1, f"s{S_T2}")
    make_srd(e, SRD_T, S_X, 2560)
    e(f"v_and_b32 v{V_T}, 31, v{L}"); e(f"v_lshlrev_b32 v{V_T}, 3, v{V_T}")
    e(f"v_lshrrev_b32 v{V_T+1}, 5, v{L}"); e(f"v_mul_u32_u24 v{V_T+1}, 1280, v{V_T+1}"); e(f"v_add_u32 v{V_T}, v{V_T}, v{V_T+1}")
    selmask(e, V_T, V_T, rows_mask([0, 1], 20))
    e(f"s_mul_i32 s{S_T0}, s{S_J}, 160")
    e.vm(f"buffer_load_dwordx2 {vr(V_XR,2)}, v{V_T}, s[{SRD_T}:{SRD_T+3}], s{S_T0} offen", "x")
    e(f"s_add_u32 s{S_KV0}, s{S_KV0}, {60*TILE_B}")
    e(f"s_add_u32 s{S_KV1}, s{S_KV0}, {BATCH_STRIDE}")
    R = NS(voffK=1, voffX=2, voffY=3, sel=V_SEL)
    attn_load_offsets(e, R, L, W0); attn_selectors(e, R, L, W0)
    n, g, x = W0, W0 + 1, W0 + 2
    e(f"v_mov_b32 v{W0+3}, v{V_L16}"); selmask(e, V_L16, W0 + 3, mask64(range(48)), other=0)
    e(f"v_and_b32 v{n}, 15, v{L}"); e(f"v_lshrrev_b32 v{g}, 4, v{L}")
    e(f"v_min_u32 v{x}, 1, v{n}")
    e(f"v_mul_u32_u24 v{V_BO}, 384, v{x}"); e(f"v_lshl_add_u32 v{V_BO}, v{g}, 4, v{V_BO}"); e(f"v_add_u32 v{V_BO}, {ACT_O}, v{V_BO}")
    e(f"v_lshlrev_b32 v{V_BH}, 7, v{x}"); e(f"v_lshl_add_u32 v{V_BH8}, v{g}, 3, v{V_BH}"); e(f"v_add_u32 v{V_BH8}, {ACT_H+64}, v{V_BH8}")
    e(f"v_lshl_add_u32 v{V_BH}, v{g}, 4, v{V_BH}"); e(f"v_add_u32 v{V_BH}, {ACT_H}, v{V_BH}")
    e(f"v_min_u32 v{x}, 2, v{n}")
    e(f"v_mul_u32_u24 v{V_BX}, 192, v{x}"); e(f"v_lshl_add_u32 v{V_BX8}, v{g}, 3, v{V_BX}"); e(f"v_add_u32 v{V_BX8}, {ACT_X+128}, v{V_BX8}")
    e(f"v_lshl_add_u32 v{V_BX}, v{g}, 4, v{V_BX}"); e(f"v_add_u32 v{V_BX}, {ACT_X}, v{V_BX}")
    e(f"v_subrev_u32 v{x}, 1, v{n}"); e(f"v_min_u32 v{x}, 2, v{x}")
    e(f"v_mul_u32_u24 v{V_AS}, 192, v{x}"); e(f"v_lshl_add_u32 v{V_AS8}, v{g}, 3, v{V_AS}"); e(f"v_add_u32 v{V_AS8}, {ACT_X+128}, v{V_AS8}")
    e(f"v_lshl_add_u32 v{V_AS}, v{g}, 4, v{V_AS}"); e(f"v_add_u32 v{V_AS}, {ACT_X}, v{V_AS}")
    e(f"v_lshlrev_b32 v{x}, 3, v{L}"); e(f"v_add_u32 v{x}, {SB}, v{x}"); selmask(e, V_W8, x, mask64(range(48)), other=SB+2560)
    e(f"v_and_b32 v{n}, 31, v{L}"); e(f"v_lshrrev_b32 v{g}, 5, v{L}")
    e(f"v_mul_u32_u24 v{x}, 192, v{g}"); e(f"v_lshl_add_u32 v{x}, v{n}, 3, v{x}"); e(f"v_add_u32 v{x}, {ACT_X}, v{x}")
    selmask(e, V_WX, x, rows_mask([0, 1], 20), other=DUMMY)
    e(f"v_lshlrev_b32 v{x}, 7, v{g}"); e(f"v_lshl_add_u32 v{x}, v{n}, 2, v{x}"); e(f"v_add_u32 v{x}, {ACT_H}, v{x}")
    selmask(e, V_WH, x, rows_mask([0, 1], 24), other=DUMMY)
    e(f"v_and_b32 v{x}, 7, v{L}"); e(f"v_lshlrev_b32 v{x}, 10, v{x}"); e(f"v_add_u32 v{V_ML}, 768, v{x}")
    m = mask64([16 * a + 1 for a in range(4)])
    e(f"s_mov_b32 s{S_N1}, 0x{m & 0xffffffff:08x}"); e(f"s_mov_b32 s{S_N1+1}, 0x{m >> 32:08x}")
    e(f"v_lshlrev_b32 v{W0+4}, 10, v{L}"); e(f"s_lshl_b32 s{S_T0}, s{S_XC}, 7"); e(f"v_add_u32 v{W0+4}, s{S_T0}, v{W0+4}")
    token_gather(e, o, TOK1, W0 + 4, 0xffffffff, sleep=o.t_sleep)
    e(f"v_cmp_ne_u32 vcc, s{S_T2}, v{W0+1}")
    e("s_mov_b64 exec, -1")
    st("p.mode")
    e("s_nop 3")
    e("s_cmp_lg_u32 vcc_lo, 0")

def generate(o):
    Stamps.select = o.stampset.split(",") if o.stampset else None
    e = Emit()
    e("s_cmp_ge_u32 s2, 256"); e("s_cbranch_scc1 L_done")
    e("s_load_dwordx16 s[4:19], s[0:1], 0"); e("s_load_dwordx8 s[20:27], s[0:1], 64")
    e("v_lshrrev_b32 v1, 6, v0")
    e(f"s_and_b32 s{S_XC}, s2, 7"); e(f"s_lshr_b32 s{S_HQ}, s2, 6")
    e(f"v_readfirstlane_b32 s{S_WAVE}, v1")
    e(f"s_lshr_b32 s{S_J}, s2, 3"); e(f"s_and_b32 s{S_J}, s{S_J}, 7")
    e(f"s_lshl_b32 s{S_H}, s{S_XC}, 2"); e(f"s_add_u32 s{S_H}, s{S_H}, s{S_HQ}")
    e(f"s_mul_i32 s{S_KV0}, s{S_H}, {HEAD_STRIDE}"); e(f"s_mul_i32 s{S_T0}, s{S_J}, {CHUNK_STRIDE}"); e(f"s_add_u32 s{S_KV0}, s{S_KV0}, s{S_T0}")
    e(f"s_mov_b32 s{S_C}, {lit(CSCALE)}")
    e(f"s_mov_b32 s{S_HI32}, 0"); e(f"s_mov_b32 s{S_HI32+1}, -1")
    e(f"s_mul_i32 s{S_PB}, s{S_WAVE}, 1536"); e(f"s_add_u32 s{S_PB}, s{S_PB}, {PART}")
    e(f"s_lshl_b32 s{S_MLB}, s{S_WAVE}, 3"); e(f"s_add_u32 s{S_MLB}, s{S_MLB}, {ML}")
    e("s_waitcnt lgkmcnt(0)")
    make_srd(e, SRD_K, S_K, KV_BYTES); make_srd(e, SRD_V, S_V, KV_BYTES); make_srd(e, SRD_WS, S_WS, WS_REC)
    e(f"s_cmp_eq_u32 s{S_WAVE}, 0"); e("s_cbranch_scc1 L_chain")
    st_s = Stamps(e, o.stamps); st_s("start")
    stream_wave(e, o, st_s)
    e.label("L_chain")
    e.vmq = []; e.lgq = []
    st_c = Stamps(e, o.stamps); st_c("start")
    chain_wave_setup(e, o, st_c)
    names = {}
    if o.force_global: e("s_branch L_global")
    else: e("s_cbranch_scc1 L_global")
    base_names = list(st_c.names)
    sv = (list(e.vmq), list(e.lgq))
    chain_wave(e, o, st_c, True)
    names['cw'] = list(st_c.names); names['sw'] = list(st_s.names)
    e.label("L_global")
    e.vmq, e.lgq = sv
    st_g = Stamps(e, o.stamps); st_g.names = list(base_names)
    chain_wave(e, o, st_g, False)
    e.label("L_abort")
    e.label("L_done")
    if o.stamps:
        e("s_cmp_ge_u32 s2, 256"); e("s_cbranch_scc1 L_exit")
        fl = Stamps(e, True); fl.names = names['cw']; fl.flush()
        e.label("L_exit")
    e("s_endpgm")
    return e, names

HEAD = """; Kernarg: A_x, K, V, wq, wo, B_x, W_gate, W_up, W_down, out, debug, ws (pointers)
; @launch grid=(256,1,1) block=(256,1,1) lds=%d
.amdgcn_target "amdgcn-amd-amdhsa--gfx950"
.text
.globl %s
.p2align 8
.type %s,@function
%s:
"""
FOOT = """
.section .rodata,"a"
.p2align 6
.amdhsa_kernel %s
  .amdhsa_next_free_vgpr 512
  .amdhsa_next_free_sgpr 102
  .amdhsa_accum_offset 256
  .amdhsa_group_segment_fixed_size 0
  .amdhsa_kernarg_size 96
  .amdhsa_user_sgpr_count 2
  .amdhsa_user_sgpr_kernarg_segment_ptr 1
  .amdhsa_system_sgpr_workgroup_id_x 1
  .amdhsa_float_denorm_mode_32 3
.end_amdhsa_kernel
"""
def build_text(o):
    e, names = generate(o)
    return HEAD % (LDS_TOTAL, NAME, NAME, NAME) + e.text() + "\n" + FOOT % NAME, names, e

if __name__ == "__main__":
    o = Opt()
    for a in sys.argv[2:]:
        k, v = a.split("=")
        cur = getattr(o, k)
        setattr(o, k, (v not in ("0", "False")) if isinstance(cur, bool) else type(cur)(v))
    txt, names, e = build_text(o)
    open(sys.argv[1], "w").write(txt)
    print("instructions:", e.ninst, "nops:", e.nops, names)
```

```python
import sys, struct
from types import SimpleNamespace as NS
from emit import Emit, vr

NAME = "interleave_layers__mha_block_cached__glu_gated_reglu__decode_kernel"

class Opt:
    NA = 16
    NA_BAR = 118
    NB = 6
    NC = 56
    NA0 = 16
    NA0N = 0
    light = False
    pf = 0
    pf_all = False
    NW = 24
    stamps = False
    poll_limit = 400000
    kvflags = "nt"
    wflags = "nt"
    stampset = ""
    p_sleep = 8
    mb_sleep = 0
    exp = ""
    t_sleep = 0
    flag_sleep = 0
    force_global = False

KV_BYTES = 100663296
BATCH_STRIDE = 50331648
HEAD_STRIDE = 1572864
CHUNK_STRIDE = 196608
TILE_B = 3072
SW_TILES, CW_TILES = 20, 4
OOB = 0x7fff0000

LDS_SW = 51200
SB = 153600
PART = SB
ML = SB + 6144
QARR = SB + 6208
ACT_O = SB + 6976
ACT_X = SB + 7744
ACT_H = SB + 8320
DUMMY = SB + 8576
WFLAG = SB + 10208
LDS_TOTAL = 163840
ST_WQ, ST_WO, ST_WG, ST_WU, ST_WD = 0, 30720, 61440, 69120, 76800

RG = 262144
R1_REG = {0: 0, '1a': 1, '1b': 2, 2: 3}
R3_REG = {'P': 4, 0: 7, 1: 8}
R2_REG = {'P': 9, 0: 10, 1: 11, 2: 12}
L_REG = lambda inst, k: 13 + 2 * inst + k
G_OFF = lambda inst, k: 19 * RG + (2 * inst + k) * 65536
STAMP_OFF = 22 * RG
WS_REC = 24 * RG

CSCALE = (192 ** -0.5) * 1.4426950408889634
EPS = 1e-5
def f2u(x): return struct.unpack("<I", struct.pack("<f", x))[0]
def lit(x): return "0x%08x" % f2u(x)
def mask64(lanes):
    m = 0
    for l in lanes: m |= 1 << l
    return m
def set_exec(e, m):
    if m == (1 << 64) - 1: e("s_mov_b64 exec, -1"); return
    e(f"s_mov_b32 exec_lo, 0x{m & 0xffffffff:08x}")
    e(f"s_mov_b32 exec_hi, 0x{m >> 32:08x}")

S_X, S_K, S_V, S_WQ, S_WO, S_BX, S_WG, S_WU, S_WD, S_OUT, S_DBG, S_WS = 4, 6, 8, 10, 12, 14, 16, 18, 20, 22, 24, 26
S_XC, S_HQ, S_J, S_H = 28, 29, 30, 31
SRD_K, SRD_V = 32, 36
S_KV0, S_KV1, S_SOFF, S_LDSB = 40, 41, 42, 43
SRD_T = 44
SRD_WS = 48
SRD_DBG = 52
S_C = 56
S_ROWN, S_RGRP, S_LOWN, S_LGRP, S_GOWN, S_GGRP = 57, 58, 59, 60, 61, 62
S_A, S_B, S_CNT, S_T0, S_T1, S_T2 = 63, 64, 65, 66, 67, 68
S_PB = 69
S_HI32 = 70
S_MLB = 72
S_DMA = 73
S_WAVE = 3
S_STAMP = 76

def make_srd(e, srd, ptr, nbytes):
    e(f"s_mov_b32 s{srd}, s{ptr}")
    e(f"s_and_b32 s{srd+1}, s{ptr+1}, 0xffff")
    e(f"s_mov_b32 s{srd+2}, {nbytes}")
    e(f"s_mov_b32 s{srd+3}, 0x20000")

class Stamps:
    select = None
    def __init__(self, e, on): self.e, self.on, self.names = e, on, []
    def __call__(self, name):
        if not self.on: return
        if Stamps.select is not None and not any(name.startswith(p) for p in Stamps.select): return
        if Stamps.select is None and "." in name: return
        n = len(self.names); assert n < 12, "too many stamps"
        self.e(f"s_memrealtime s[{S_STAMP+2*n}:{S_STAMP+2*n+1}]")
        self.e.lg_all(force=True)
        self.names.append(name)
    def flush(self):
        if not self.on: return
        e = self.e
        e("s_mov_b64 exec, 1")
        e(f"s_lshl_b32 s{S_T0}, s2, 2"); e(f"s_add_u32 s{S_T0}, s{S_T0}, s{S_WAVE}"); e(f"s_lshl_b32 s{S_T0}, s{S_T0}, 7")
        e(f"s_add_u32 s{S_T0}, s{S_T0}, {STAMP_OFF}")
        e("v_mov_b32 v0, 0")
        for i in range(len(self.names)):
            e(f"v_mov_b32 v2, s{S_STAMP+2*i}"); e(f"v_mov_b32 v3, s{S_STAMP+2*i+1}")
            e(f"buffer_store_dwordx2 v[2:3], v0, s[{SRD_WS}:{SRD_WS+3}], s{S_T0} offen offset:{8*i}")
            e("s_waitcnt vmcnt(0)")

def lane_id(e, dst):
    e(f"v_mbcnt_lo_u32_b32 {vr(dst)}, -1, 0")
    e(f"v_mbcnt_hi_u32_b32 {vr(dst)}, -1, {vr(dst)}")

def attn_load_offsets(e, R, lane, t):
    i, g, u, w = t, t + 1, t + 2, t + 3
    e(f"v_and_b32 {vr(i)}, 15, {vr(lane)}")
    e(f"v_lshrrev_b32 {vr(g)}, 4, {vr(lane)}")
    e(f"v_and_b32 {vr(u)}, 7, {vr(i)}")
    e(f"v_lshrrev_b32 {vr(w)}, 3, {vr(i)}")
    e(f"v_mul_u32_u24 {vr(R.voffK)}, 384, {vr(u)}")
    e(f"v_lshl_add_u32 {vr(R.voffK)}, {vr(g)}, 4, {vr(R.voffK)}")
    e(f"v_lshl_add_u32 {vr(R.voffK)}, {vr(w)}, 6, {vr(R.voffK)}")
    e(f"v_mul_u32_u24 {vr(R.voffX)}, 768, {vr(g)}")
    e(f"v_mul_u32_u24 {vr(w)}, 384, {vr(w)}")
    e(f"v_add_u32 {vr(R.voffY)}, {vr(R.voffX)}, {vr(w)}")
    e(f"v_lshl_add_u32 {vr(R.voffY)}, {vr(u)}, 4, {vr(R.voffY)}")
    e(f"v_add_u32 {vr(R.voffY)}, 256, {vr(R.voffY)}")
    e(f"v_lshl_add_u32 {vr(R.voffX)}, {vr(i)}, 4, {vr(R.voffX)}")

def attn_selectors(e, R, lane, t):
    i, u, lo, hi = t, t + 1, t + 2, t + 3
    e(f"v_and_b32 {vr(i)}, 15, {vr(lane)}")
    e(f"v_lshrrev_b32 {vr(u)}, 3, {vr(i)}")
    e(f"v_mul_u32_u24 {vr(u)}, 0x202, {vr(u)}")
    e(f"v_add_u32 {vr(u)}, 0x100, {vr(u)}")
    e(f"v_or_b32 {vr(lo)}, 0x0c0c0000, {vr(u)}")
    e(f"v_lshlrev_b32 {vr(hi)}, 16, {vr(u)}")
    e(f"v_or_b32 {vr(hi)}, 0x0c0c, {vr(hi)}")
    e(f"v_and_b32 {vr(u)}, 1, {vr(i)}")
    e(f"v_cmp_eq_u32 vcc, 1, {vr(u)}")
    e(f"v_cndmask_b32 {vr(lo)}, {vr(lo)}, {vr(hi)}, vcc")
    e(f"v_bfe_u32 {vr(u)}, {vr(i)}, 1, 2")
    e(f"v_mov_b32 {vr(hi)}, 0x0c0c0c0c")
    for r in range(4):
        e(f"v_cmp_eq_u32 vcc, {r}, {vr(u)}")
        e(f"v_cndmask_b32 {vr(R.sel+r)}, {vr(hi)}, {vr(lo)}, vcc")

def allreduce(e, reg, tmp, op):
    for k in (8, 4, 2, 1):
        e(f"v_{op}_f32_dpp {vr(reg)}, {vr(reg)}, {vr(reg)} row_ror:{k} row_mask:0xf bank_mask:0xf")
    e(f"v_mov_b32 {vr(tmp)}, {vr(reg)}")
    e(f"v_permlane16_swap_b32 {vr(reg)}, {vr(tmp)}")
    e(f"v_{op}_f32 {vr(reg)}, {vr(reg)}, {vr(tmp)}")
    e(f"v_mov_b32 {vr(tmp)}, {vr(reg)}")
    e(f"v_permlane32_swap_b32 {vr(reg)}, {vr(tmp)}")
    e(f"v_{op}_f32 {vr(reg)}, {vr(reg)}, {vr(tmp)}")

def attn_pass(e, R, ntiles, qrow, Kfrag, Vfrag, part_sreg, ml_off, k_wait=None, qk_hook=None, mid_hook=None,
              v_wait=None, pv_hook=None, stage=None):
    L = R.tmp
    lane_id(e, L)
    e(f"v_and_b32 {vr(L+1)}, 1, {vr(L)}")
    e(f"v_lshrrev_b32 {vr(L+2)}, 4, {vr(L)}")
    e(f"v_lshlrev_b32 {vr(L+2)}, 4, {vr(L+2)}")
    e(f"v_lshl_add_u32 {vr(L+1)}, {vr(L+1)}, 6, {vr(L+2)}")
    e(f"v_add_u32 {vr(L+1)}, {QARR}, {vr(L+1)}")
    for s in range(3):
        e.lg(f"ds_read_b128 {vr(R.qA+4*s,4)}, {vr(L+1)} offset:{qrow*384 + 128*s}", ("q", s))
    e(f"v_add_u32 {vr(R.vpp)}, s{S_PB}, {vr(L+2)}")
    W = R.vpw
    e(f"v_lshrrev_b32 {vr(L+1)}, 5, {vr(L)}"); e(f"v_lshlrev_b32 {vr(W)}, 6, {vr(L+1)}")
    e(f"v_bfe_u32 {vr(L+1)}, {vr(L)}, 1, 2"); e(f"v_lshl_add_u32 {vr(W)}, {vr(L+1)}, 4, {vr(W)}")
    e(f"v_bfe_u32 {vr(L+1)}, {vr(L)}, 3, 2"); e(f"v_lshl_add_u32 {vr(W)}, {vr(L+1)}, 2, {vr(W)}")
    e(f"v_and_b32 {vr(L+1)}, 1, {vr(L)}"); e(f"v_lshl_add_u32 {vr(W)}, {vr(L+1)}, 1, {vr(W)}")
    e(f"v_add_u32 {vr(W)}, s{S_PB}, {vr(W)}")
    nsc = (ntiles + 7) // 8
    for r in range(nsc):
        if (r + 1) * 8 > ntiles: e(f"v_mov_b32 {vr(R.sc+r)}, 0xff800000")
    stg = {}
    def stage_k(T):
        if T >= ntiles: return
        for s in range(3):
            f = Kfrag(T, s)
            if isinstance(f, tuple):
                reg = stage[(3 * T + s) % len(stage)]
                e.lg(f"ds_read_b128 {vr(reg,4)}, {vr(R.vlds)} offset:{f[1]}", ("k", T, s))
                stg[(T, s)] = vr(reg, 4)
    LOOK = 2
    if k_wait: k_wait(-1)
    for T in range(min(LOOK, ntiles)): stage_k(T)
    e.lg_wait(("q", 2))
    def dpp_add(T):
        D = R.D + 4 * (T % 3)
        dst = vr(R.sc + (T >> 3)); rm = 1 << ((T >> 1) & 3)
        if T % 2 == 0: e(f"v_add_f32_dpp {dst}, {vr(D+1)}, {vr(D)} row_ror:8 row_mask:0x{rm:x} bank_mask:0x3")
        else:          e(f"v_add_f32_dpp {dst}, {vr(D)}, {vr(D+1)} row_ror:8 row_mask:0x{rm:x} bank_mask:0xc")
    for T in range(ntiles):
        if k_wait: k_wait(T)
        D = vr(R.D + 4 * (T % 3), 4)
        for s in range(3):
            f = Kfrag(T, s)
            if isinstance(f, tuple):
                e.lg_wait(("k", T, s)); f = stg[(T, s)]
            e(f"v_mfma_f32_16x16x32_bf16 {D}, {vr(R.qA+4*s,4)}, {f}, {'0' if s == 0 else D}")
        stage_k(T + LOOK)
        if qk_hook: qk_hook(T)
        if T >= 2: dpp_add(T - 2)
    for T in range(max(0, ntiles - 2), ntiles): dpp_add(T)
    t0, t1 = R.D, R.D + 1
    if nsc == 1: e(f"v_mov_b32 {vr(t0)}, {vr(R.sc)}")
    elif nsc == 2: e(f"v_max_f32 {vr(t0)}, {vr(R.sc)}, {vr(R.sc+1)}")
    else: e(f"v_max3_f32 {vr(t0)}, {vr(R.sc)}, {vr(R.sc+1)}, {vr(R.sc+2)}")
    allreduce(e, t0, t1, "max")
    e(f"v_mul_f32 {vr(R.vm)}, s{S_C}, {vr(t0)}")
    for r in range(nsc): e(f"v_fma_f32 {vr(R.sc+r)}, {vr(R.sc+r)}, s{S_C}, -{vr(R.vm)}")
    for r in range(nsc): e(f"v_exp_f32 {vr(R.sc+r)}, {vr(R.sc+r)}")
    for r in range(nsc): e(f"v_cvt_pk_bf16_f32 {vr(R.D+2+r)}, {vr(R.sc+r)}, {vr(R.sc+r)}")
    for r in range(nsc): e.lg(f"ds_write_b16 {vr(W)}, {vr(R.D+2+r)} offset:{128*r}", ("pw", r))
    nq = (ntiles + 3) // 4
    ppreg = lambda q: R.pp + 4 * (q % 2)
    if nsc == 1: e(f"v_mov_b32 {vr(R.vl)}, {vr(R.sc)}")
    else:
        e(f"v_add_f32 {vr(R.vl)}, {vr(R.sc)}, {vr(R.sc+1)}")
        if nsc == 3: e(f"v_add_f32 {vr(R.vl)}, {vr(R.vl)}, {vr(R.sc+2)}")
    e.lg(f"ds_read_b128 {vr(ppreg(0),4)}, {vr(R.vpp)}", ("pp", 0))
    if nq > 1: e.lg(f"ds_read_b128 {vr(ppreg(1),4)}, {vr(R.vpp)} offset:64", ("pp", 1))
    allreduce(e, R.vl, t1, "add")
    if mid_hook: mid_hook()
    X1, X2, Y = R.acc, R.acc + 4, R.acc + 8
    def build_A(T):
        q = T >> 2
        e.lg_wait(("pp", q))
        A = R.A + 4 * (T % 2); src = vr(ppreg(q) + (T & 3))
        return [f"v_perm_b32 {vr(A+r)}, {src}, {src}, {vr(R.sel+r)}" for r in range(4)]
    for ins in build_A(0): e(ins)
    for T in range(ntiles):
        A = vr(R.A + 4 * (T % 2), 4)
        nxt = build_A(T + 1) if T + 1 < ntiles else []
        if v_wait: v_wait(T, 0)
        e(f"v_mfma_f32_16x16x32_bf16 {vr(X1,4)}, {A}, {Vfrag(T,0)}, {'0' if T == 0 else vr(X1,4)}")
        for ins in nxt[:2]: e(ins)
        if v_wait: v_wait(T, 1)
        e(f"v_mfma_f32_16x16x32_bf16 {vr(X2,4)}, {A}, {Vfrag(T,1)}, {'0' if T == 0 else vr(X2,4)}")
        for ins in nxt[2:]: e(ins)
        if v_wait: v_wait(T, 2)
        e(f"v_mfma_f32_16x16x32_bf16 {vr(Y,4)}, {A}, {Vfrag(T,2)}, {'0' if T == 0 else vr(Y,4)}")
        if (T & 3) == 2 and (T >> 2) + 2 < nq:
            q2 = (T >> 2) + 2
            e.lg(f"ds_read_b128 {vr(ppreg(q2),4)}, {vr(R.vpp)} offset:{64*q2}", ("pp", q2))
        if pv_hook: pv_hook(T)
    p = R.pp
    lane_id(e, p)
    e(f"v_and_b32 {vr(p+1)}, 15, {vr(p)}")
    e(f"v_lshrrev_b32 {vr(p+2)}, 4, {vr(p)}")
    e(f"v_and_b32 {vr(p+3)}, 1, {vr(p+2)}")
    e(f"v_lshrrev_b32 {vr(p+2)}, 1, {vr(p+2)}")
    e(f"v_mul_u32_u24 {vr(p+2)}, 768, {vr(p+2)}")
    e(f"v_lshl_add_u32 {vr(p+2)}, {vr(p+3)}, 4, {vr(p+2)}")
    e(f"v_add_u32 {vr(p+2)}, s{part_sreg}, {vr(p+2)}")
    e(f"v_lshl_add_u32 {vr(p+4)}, {vr(p+1)}, 5, {vr(p+2)}")
    e(f"v_and_b32 {vr(p+1)}, 7, {vr(p+1)}")
    e(f"v_lshl_add_u32 {vr(p+5)}, {vr(p+1)}, 5, {vr(p+2)}")
    e(f"v_mov_b32 {vr(p+6)}, s{S_MLB}")
    e(f"v_mov_b32 {vr(R.A)}, {vr(R.vm)}"); e(f"v_mov_b32 {vr(R.A+1)}, {vr(R.vl)}")
    for r in range(4):
        e(f"v_cndmask_b32 {vr(X1+r)}, {vr(X1+r)}, {vr(X2+r)}, s[{S_HI32}:{S_HI32+1}]")
    e.lg(f"ds_write_b128 {vr(p+4)}, {vr(X1,4)}", "px")
    set_exec(e, 0xFF00FF0000FF00FF)
    e.lg(f"ds_write_b128 {vr(p+5)}, {vr(Y,4)} offset:512", "py")
    e("s_mov_b64 exec, 1")
    e.lg(f"ds_write_b64 {vr(p+6)}, {vr(R.A,2)} offset:{ml_off}", "pm")
    e("s_mov_b64 exec, -1")
    e.lg_all()

def kv_soff(e, base_sreg, T):
    e(f"s_add_u32 s{S_SOFF}, s{base_sreg}, {T*TILE_B}")
def ld_k(e, R, dst, s, tag, o):
    e.vm(f"buffer_load_dwordx4 {dst}, {vr(R.voffK)}, s[{SRD_K}:{SRD_K+3}], s{S_SOFF} offen offset:{128*s} {o.kvflags}", tag)
def ld_v(e, R, dst, w, tag, o):
    vo = R.voffY if w == 2 else R.voffX
    off = 384 if w == 1 else 0
    e.vm(f"buffer_load_dwordx4 {dst}, {vr(vo)}, s[{SRD_V}:{SRD_V+3}], s{S_SOFF} offen offset:{off} {o.kvflags}", tag)
def dma_k(e, R, slot, s, tag, o):
    e(f"s_add_u32 m0, s{S_LDSB}, {slot*1024 - 128*s + 0}") if slot*1024 - 128*s >= 0 else e(f"s_sub_u32 m0, s{S_LDSB}, {128*s - slot*1024}")
    e.vm(f"buffer_load_dwordx4 {vr(R.voffK)}, s[{SRD_K}:{SRD_K+3}], s{S_SOFF} offen offset:{128*s} {o.kvflags} lds", tag)
def dma_v(e, R, slot, w, tag, o):
    vo = R.voffY if w == 2 else R.voffX
    off = 384 if w == 1 else 0
    e(f"s_add_u32 m0, s{S_LDSB}, {slot*1024 - off}")
    e.vm(f"buffer_load_dwordx4 {vr(vo)}, s[{SRD_V}:{SRD_V+3}], s{S_SOFF} offen offset:{off} {o.kvflags} lds", tag)

def slot_reg(k):
    assert 0 <= k < 118
    return f"a[{4*k}:{4*k+3}]" if k < 64 else f"v[{40+4*(k-64)}:{40+4*(k-64)+3}]"

def weight_dma(e, o):
    L, t, u = 8, 20, 21
    def dma_block(ptr, nbytes, lanes_per_row, magic, shift, nlanes, row_stride, rows_per_instr, ninstr, so, lds0, bar=False):
        make_srd(e, SRD_T, ptr, nbytes)
        e(f"v_mul_u32_u24 v{t}, {magic}, v{L}"); e(f"v_lshrrev_b32 v{t}, {shift}, v{t}")
        e(f"v_mul_u32_u24 v{u}, {lanes_per_row}, v{t}"); e(f"v_sub_u32 v{u}, v{L}, v{u}")
        e(f"s_mov_b32 s{S_T1}, {row_stride}")
        e(f"v_mul_lo_u32 v{t}, v{t}, s{S_T1}"); e(f"v_lshl_add_u32 v{t}, v{u}, 4, v{t}")
        rreg, rmul, creg, cmul = so
        e(f"s_mul_i32 s{S_SOFF}, s{rreg}, {rmul*row_stride}")
        e(f"s_mul_i32 s{S_T1}, s{creg}, {cmul}"); e(f"s_add_u32 s{S_SOFF}, s{S_SOFF}, s{S_T1}")
        set_exec(e, mask64(range(nlanes)))
        if bar: e("s_barrier")
        for i in range(ninstr):
            e(f"s_mov_b32 m0, {lds0 + i*nlanes*16}")
            if i: e(f"s_add_u32 s{S_SOFF}, s{S_SOFF}, {rows_per_instr*row_stride}")
            else: e("s_nop 0")
            e.vm_depth(o.NW - 1)
            e.vm(f"buffer_load_dwordx4 v{t}, s[{SRD_T}:{SRD_T+3}], s{S_SOFF} offen {o.wflags} lds", "w")
        e("s_mov_b64 exec, -1")
    l2, l3, end = e.newlabel("w2"), e.newlabel("w3"), e.newlabel("wend")
    e(f"s_cmp_eq_u32 s{S_WAVE}, 2"); e(f"s_cbranch_scc1 {l2}")
    e(f"s_cmp_eq_u32 s{S_WAVE}, 3"); e(f"s_cbranch_scc1 {l3}")
    e.vmq = []
    dma_block(S_WQ, 7864320, 24, 43, 10, 48, 12288, 2, 40, (S_J, 80, S_H, 384), ST_WQ, bar=True)
    e(f"s_branch {end}")
    e.label(l2); e.vmq = []
    dma_block(S_WO, 7864320, 10, 103, 10, 60, 1280, 6, 32, (S_H, 192, S_J, 160), ST_WO, bar=True)
    e(f"s_branch {end}")
    e.label(l3); e.vmq = []
    dma_block(S_WG, 1966080, 6, 43, 8, 60, 3072, 10, 8, (S_J, 80, S_H, 96), ST_WG, bar=True)
    dma_block(S_WU, 1966080, 6, 43, 8, 60, 3072, 10, 8, (S_J, 80, S_H, 96), ST_WU)
    dma_block(S_WD, 1966080, 10, 103, 10, 60, 1280, 6, 8, (S_H, 48, S_J, 160), ST_WD)
    e.label(end)
    e.vmq = ["w"] * o.NW

def stream_wave(e, o, st):
    R = NS(vlds=0, voffK=1, voffX=2, voffY=3, sel=4, qA=8, D=20, sc=32, tmp=20, vpw=35, acc=8, A=20, pp=28, vpp=36, vm=38, vl=39)
    e(f"s_sub_u32 s{S_T0}, s{S_WAVE}, 1")
    e(f"s_mul_i32 s{S_T1}, s{S_T0}, {SW_TILES*TILE_B}")
    e(f"s_add_u32 s{S_KV0}, s{S_KV0}, s{S_T1}")
    e(f"s_add_u32 s{S_KV1}, s{S_KV0}, {BATCH_STRIDE}")
    e(f"s_mul_i32 s{S_LDSB}, s{S_T0}, {LDS_SW}")
    lane_id(e, 8)
    if o.pf:
        skip = e.newlabel("nopf")
        e(f"s_cmp_lg_u32 s{S_WAVE}, 3"); e(f"s_cbranch_scc1 {skip}")
        if not o.pf_all:
            e(f"s_cmp_lg_u32 s{S_J}, 0"); e(f"s_cbranch_scc1 {skip}")
        e(f"s_getpc_b64 s[{SRD_T}:{SRD_T+1}]")
        e.label("L_pc")
        e(f"s_sub_u32 s{SRD_T}, s{SRD_T}, (L_pc - {NAME})"); e(f"s_subb_u32 s{SRD_T+1}, s{SRD_T+1}, 0")
        e("v_lshlrev_b32 v20, 7, v8")
        for i in range(o.pf):
            e(f"global_load_dword v39, v20, s[{SRD_T}:{SRD_T+1}]")
            e("v_add_u32 v20, 0x2000, v20")
        e.label(skip)
    if "now" in o.exp: e("s_barrier")
    else: weight_dma(e, o)
    st("s.wiss")
    attn_load_offsets(e, R, 8, 10)
    loads = []
    for T in range(SW_TILES):
        for s in range(3): loads.append(('K', T, s))
    for T in range(SW_TILES):
        for w in range(3): loads.append(('V', T, w))
    def k0slot(T, s): return 3 * T + s
    def v0slot(T, w): return 60 + 3 * T + w
    cur = [None]
    def issue0(item):
        kind, T, x = item
        if cur[0] != (kind, T, 0):
            kv_soff(e, S_KV0, T); cur[0] = (kind, T, 0)
        if kind == 'K': ld_k(e, R, slot_reg(k0slot(T, x)), x, ('K0', T, x), o)
        else:
            sl = v0slot(T, x)
            if sl < 118: ld_v(e, R, slot_reg(sl), x, ('V0', T, x), o)
            else: dma_v(e, R, 48 + sl - 118, x, ('V0', T, x), o)
    first = True
    for idx, item in enumerate(loads[:o.NA_BAR]):
        na = o.NA0 if idx < o.NA0N else o.NA
        e.vm_depth(na - 1)
        if idx == min(o.NA, o.NA0 if o.NA0N > o.NA0 else o.NA):
            e(f"s_lshl_b32 s{S_T0}, s{S_WAVE}, 2"); e(f"s_add_u32 s{S_T0}, s{S_T0}, {WFLAG-4}")
            e(f"v_mov_b32 v20, s{S_T0}"); e("v_mov_b32 v21, 1")
            e.lg("ds_write_b32 v20, v21", "wf")
            st("s.wland")
        if idx == 60: st("s.k0iss")
        if idx == 90: st("s.v30")
        issue0(item)
        if first:
            first = False
            e(f"v_lshlrev_b32 {vr(R.vlds)}, 4, v8")
            e(f"v_add_u32 {vr(R.vlds)}, s{S_LDSB}, {vr(R.vlds)}")
            attn_selectors(e, R, 8, 10)
    st("A_issued")
    e("s_barrier")
    st("bar1")
    if "nocw" in o.exp or "cw" in o.exp:
        e.vm_all(); st("s.alland"); st.flush(); e("s_endpgm")
    pend = [('0', it) for it in loads[o.NA_BAR:]]
    for T in range(16):
        for s in range(3): pend.append(('1', T, s))
    cur1 = [None]
    def issue_pend():
        it = pend.pop(0)
        if it[0] == '0': cur1[0] = None; issue0(it[1])
        else:
            _, T, s = it
            if cur1[0] != T:
                kv_soff(e, S_KV1, T); cur1[0] = T; cur[0] = None
            dma_k(e, R, 3 * T + s, s, ('K1', T, s), o)
    while pend[0][0] == '0': issue_pend()
    def Kf0(T, s): return slot_reg(k0slot(T, s))
    def Vf0(T, w):
        sl = v0slot(T, w)
        if sl < 118: return slot_reg(sl)
        return "v[32:35]" if w == 1 else "v[28:31]"
    def k_wait_A(T):
        if T == -1: e.vm_wait(('K0', SW_TILES - 1, 2))
    def pv_hook_A(T):
        left = SW_TILES - 1 - T
        target = max(o.NB, min(o.NA, 3 * left + o.NB))
        if T == SW_TILES - 2:
            e.vm_wait(('V0', SW_TILES - 1, 2))
            e.lg(f"ds_read_b128 v[32:35], {vr(R.vlds)} offset:{48*1024}", ("vo", 1))
            e.lg(f"ds_read_b128 v[28:31], {vr(R.vlds)} offset:{49*1024}", ("vo", 2))
            target = o.NB
        while pend and len(e.vmq) < target: issue_pend()
    def vwait_A(T, w):
        e.vm_wait(('V0', T, w))
        if T == SW_TILES - 1 and w >= 1: e.lg_wait(("vo", w))
    attn_pass(e, R, SW_TILES, 0, Kf0, Vf0, S_PB, 0, k_wait=k_wait_A, v_wait=vwait_A, pv_hook=pv_hook_A)
    st("A_done")
    e("s_barrier")
    while pend:
        e.vm_depth(o.NB - 1)
        issue_pend()
    st("B_issued")
    e("s_barrier")
    st("bar3")
    pend1 = []
    for T in range(16, SW_TILES):
        for s in range(3): pend1.append(('K', T, s))
    for T in range(SW_TILES):
        for w in range(3): pend1.append(('V', T, w))
    slot_of = {it: i for i, it in enumerate(pend1)}
    freed = [0]
    issued1 = [0]
    cur2 = [None]
    def issue1():
        it = pend1[issued1[0]]; kind, T, x = it
        if cur2[0] != (kind, T):
            kv_soff(e, S_KV1, T); cur2[0] = (kind, T)
        e.vm_depth(o.NC - 1)
        if kind == 'K': ld_k(e, R, slot_reg(slot_of[it]), x, ('K1', T, x), o)
        else: ld_v(e, R, slot_reg(slot_of[it]), x, ('V1', T, x), o)
        issued1[0] += 1
    def refill():
        while issued1[0] < len(pend1) and issued1[0] < freed[0]: issue1()
    def qk_hook_C1(T):
        freed[0] = 3 * (T + 1); refill()
    def pv_hook_C1(T):
        freed[0] = min(118, 60 + 3 * (T + 1)); refill(); ovf_hook_C(T)
    def ovf_hook_C(T):
        if T == SW_TILES - 2:
            e.lg(f"ds_read_b128 v[32:35], {vr(R.vlds)} offset:{48*1024}", ("vo", 1))
            e.lg(f"ds_read_b128 v[28:31], {vr(R.vlds)} offset:{49*1024}", ("vo", 2))
    def vwait_C1(T, w):
        if T == SW_TILES - 1 and w >= 1: e.lg_wait(("vo", w))
    e(f"s_add_u32 s{S_T2}, s{S_LDSB}, {48*1024}")
    attn_pass(e, R, SW_TILES, 0, Kf0, Vf0, S_T2, 32, qk_hook=qk_hook_C1, v_wait=vwait_C1, pv_hook=pv_hook_C1)
    refill()
    assert issued1[0] == len(pend1)
    st("C1_done")
    e("s_barrier")
    stage = [40 + 4 * (k - 64) for k in range(100, 112)]
    def Kf1(T, s):
        if T < 16: return ('lds', (3 * T + s) * 1024)
        return slot_reg(slot_of[('K', T, s)])
    def Vf1(T, w): return slot_reg(slot_of[('V', T, w)])
    def k_wait_C2(T):
        if T == -1: e.vm_wait(('K1', 15, 2))
        elif T >= 16: e.vm_wait(('K1', T, 2))
    def vwait_C2(T, w): e.vm_wait(('V1', T, w))
    attn_pass(e, R, SW_TILES, 1, Kf1, Vf1, S_PB, 0, k_wait=k_wait_C2, v_wait=vwait_C2, stage=stage)
    st("C2_done")
    e("s_barrier")
    e("s_barrier")
    st("bar7")
    attn_pass(e, R, SW_TILES, 1, Kf1, Vf1, S_PB, 0, stage=stage)
    st("E_done")
    e("s_barrier")
    st.flush()
    e("s_endpgm")

V_LANE, V_LG, V_R, V_PL, V_PG, V_PQ = 0, 4, 5, 6, 7, 8
V_BO, V_BX, V_BX8, V_BH, V_BH8, V_AS, V_AS8 = 9, 10, 11, 12, 13, 14, 15
V_XR, V_CSQ, V_CSG = 16, 20, 24
V_W8, V_WX, V_WH, V_ML = 28, 29, 30, 31
W0 = 32
V_SEL, V_R2, V_ST2, V_PS, V_PSQ, V_L16 = 75, 79, 80, 81, 82, 83
V_T = 84
CW_K, CW_V = 86, 134
S_N1 = 74

_off3 = (2, 6, 0)
def wq_frag(t, s): return ("a", 10 * t + _off3[s])
def wo_frag(t, s): return ("a", 120 + 24 * t + 4 * s)
def wd_frag(t, s):
    if s == 0: return ("a", 240 + 4 * t) if t < 4 else ("v", 182)
    return ("v", 186 + 2 * t)
def wg_frag(t, s): return ("v", 196 + 10 * t + _off3[s])
def wu_frag(t, s): return ("v", 226 + 10 * t + _off3[s])
def win(fr): return f"{fr[0]}[{fr[1]}:{fr[1]+3}]"

V_OOB = 74
def selmask(e, dst, val, mask, other=None):
    e(f"s_mov_b32 vcc_lo, 0x{mask & 0xffffffff:08x}"); e(f"s_mov_b32 vcc_hi, 0x{mask >> 32:08x}")
    if other is None: e(f"v_cndmask_b32 {vr(dst)}, v{V_OOB}, {vr(val)}, vcc")
    else:
        assert dst != val
        e(f"v_mov_b32 {vr(dst)}, 0x{other:08x}")
        e(f"v_cndmask_b32 {vr(dst)}, {vr(dst)}, {vr(val)}, vcc")

def rows_mask(live, n): return mask64([32 * r + g for r in live for g in range(n)])
def cols_mask(live, alist=range(4)): return mask64([16 * a + n for a in alist for n in live])

def instance_offsets(e, live, pub_live=None, q_live=None):
    pub_live = live if pub_live is None else pub_live
    q_live = pub_live if q_live is None else q_live
    t, u = V_T, V_T + 1
    e(f"v_and_b32 {vr(t)}, 31, v{V_LANE}"); e(f"v_lshlrev_b32 {vr(t)}, 4, {vr(t)}")
    e(f"v_lshrrev_b32 {vr(u)}, 5, v{V_LANE}"); e(f"v_lshl_add_u32 {vr(t)}, {vr(u)}, 9, {vr(t)}")
    selmask(e, V_LG, t, rows_mask(live, 20))
    selmask(e, V_R2, t, rows_mask(live, 24))
    e(f"v_and_b32 {vr(t)}, 7, v{V_LANE}"); e(f"v_lshlrev_b32 {vr(t)}, 10, {vr(t)}")
    e(f"v_lshl_add_u32 {vr(t)}, {vr(u)}, 9, {vr(t)}"); e(f"v_add_u32 {vr(t)}, 384, {vr(t)}")
    selmask(e, V_ST2, t, rows_mask(live, 32))
    e(f"v_and_b32 {vr(t)}, 15, v{V_LANE}"); e(f"v_lshrrev_b32 {vr(u)}, 4, v{V_LANE}")
    e(f"v_lshlrev_b32 v{V_PL}, 9, {vr(t)}")
    e(f"v_lshl_add_u32 v{V_PG}, {vr(u)}, 5, v{V_PL}")
    e(f"v_add_u32 v{V_PS}, 384, v{V_PL}")
    e(f"v_lshl_add_u32 v{V_PL}, {vr(u)}, 4, v{V_PL}")
    e(f"v_lshlrev_b32 v{V_PQ}, 18, {vr(t)}")
    e(f"v_add_u32 v{V_PSQ}, 768, v{V_PQ}")
    e(f"v_lshl_add_u32 v{V_PQ}, {vr(u)}, 4, v{V_PQ}")
    cm = cols_mask(pub_live)
    e(f"s_mov_b32 vcc_lo, 0x{cm & 0xffffffff:08x}"); e(f"s_mov_b32 vcc_hi, 0x{cm >> 32:08x}")
    for r in (V_PL, V_PG): e(f"v_cndmask_b32 v{r}, v{V_OOB}, v{r}, vcc")
    selmask(e, V_PS, V_PS, cols_mask(pub_live, [0]))
    selmask(e, V_PQ, V_PQ, cols_mask(q_live))
    selmask(e, V_PSQ, V_PSQ, cols_mask(q_live, [0]))

def soffs(e, off_sreg, const, two=True):
    e(f"s_add_u32 s{S_A}, s{off_sreg}, {const}")
    if two: e(f"s_add_u32 s{S_B}, s{S_A}, 4096")

def poll(e, o, loads, abort, sleep=0):
    lab = e.newlabel("poll")
    e(f"s_mov_b32 s{S_CNT}, {o.poll_limit}")
    e.label(lab)
    for d, vo, s, imm in loads:
        e(f"buffer_load_dwordx4 {vr(d,4)}, v{vo}, s[{SRD_WS}:{SRD_WS+3}], s{s} offen offset:{imm} sc1")
    e(f"s_sub_u32 s{S_CNT}, s{S_CNT}, 1")
    e(f"s_cbranch_scc1 {abort}")
    e("s_waitcnt vmcnt(0)")
    vals = []
    for d, _, _, _ in loads: vals += [d + 1, d + 3]
    t = V_T
    e(f"v_max3_u32 v{t}, v{vals[0]}, v{vals[1]}, v{vals[2]}")
    i = 3
    while i < len(vals):
        if i + 1 < len(vals): e(f"v_max3_u32 v{t}, v{t}, v{vals[i]}, v{vals[i+1]}"); i += 2
        else: e(f"v_max_u32 v{t}, v{t}, v{vals[i]}"); i += 1
    e(f"v_cmp_eq_u32 vcc, -1, v{t}")
    if sleep:
        ok = e.newlabel("pok"); e(f"s_cbranch_vccz {ok}"); e(f"s_sleep {sleep}"); e(f"s_branch {lab}"); e.label(ok)
    else: e(f"s_cbranch_vccnz {lab}")
    e.vmq = []

def gather8(e, o, vo, abort, extra=None, n=8, base=W0):
    loads = [(base + 4 * k, vo, S_A if k < 4 else S_B, (k % 4) * 1024) for k in range(n)]
    if extra: loads.append((base + 4 * n, extra, S_A, 0))
    poll(e, o, loads, abort)

def sum_loads(e, n, base=W0):
    step = 1
    while step < n:
        for k in range(0, n, 2 * step):
            if k + step < n:
                a, b = base + 4 * k, base + 4 * (k + step)
                e(f"v_pk_add_f32 {vr(a,2)}, {vr(a,2)}, {vr(b,2)}")
                e(f"v_pk_add_f32 {vr(a+2,2)}, {vr(a+2,2)}, {vr(b+2,2)}")
        step *= 2

def dpp8(e, reg, op):
    for m in ("quad_perm:[1,0,3,2]", "quad_perm:[2,3,0,1]", "row_half_mirror"):
        e(f"v_{op}_f32_dpp v{reg}, v{reg}, v{reg} {m} row_mask:0xf bank_mask:0xf")
def dpp8x2(e, r0, r1, op):
    for m in ("quad_perm:[1,0,3,2]", "quad_perm:[2,3,0,1]", "row_half_mirror"):
        e(f"v_{op}_f32_dpp v{r0}, v{r0}, v{r0} {m} row_mask:0xf bank_mask:0xf")
        e(f"v_{op}_f32_dpp v{r1}, v{r1}, v{r1} {m} row_mask:0xf bank_mask:0xf")

def ln_from_stats(e, s1, s2, mean, rstd):
    e(f"v_mul_f32 v{mean}, {lit(1/640)}, v{s1}")
    e(f"v_mul_f32 v{s2}, {lit(1/640)}, v{s2}")
    e(f"v_fma_f32 v{s2}, -v{mean}, v{mean}, v{s2}")
    e(f"v_max_f32 v{s2}, 0, v{s2}")
    e(f"v_add_f32 v{s2}, {lit(EPS)}, v{s2}")
    e(f"v_rsq_f32 v{rstd}, v{s2}")

def pub(e, D, vo, sreg, imm, fl, tag):
    e.vm(f"buffer_store_dwordx4 {vr(D,4)}, v{vo}, s[{SRD_WS}:{SRD_WS+3}], s{sreg} offen offset:{imm} {fl}", tag)

def gemv(e, tiles, Dbase, nD, store):
    lag = nD - 1
    for t, steps in enumerate(tiles):
        D = vr(Dbase + 4 * (t % nD), 4)
        for s, (A, B) in enumerate(steps):
            e(f"v_mfma_f32_16x16x32_bf16 {D}, {A}, {B}, {'0' if s == 0 else D}")
        if t >= lag: store(t - lag, Dbase + 4 * ((t - lag) % nD))
    for t in range(max(0, len(tiles) - lag), len(tiles)): store(t, Dbase + 4 * (t % nD))

def read_bx(e, B):
    e.lg(f"ds_read_b128 {vr(B,4)}, v{V_BX}", "b0"); e.lg(f"ds_read_b128 {vr(B+4,4)}, v{V_BX} offset:64", "b1")
    e.lg(f"ds_read_b64 {vr(B+8,2)}, v{V_BX8}", "b2")
    e(f"v_mov_b32 v{B+10}, 0"); e(f"v_mov_b32 v{B+11}, 0")
def read_as(e, A):
    e.lg(f"ds_read_b128 {vr(A,4)}, v{V_AS}", "a0"); e.lg(f"ds_read_b128 {vr(A+4,4)}, v{V_AS} offset:64", "a1")
    e.lg(f"ds_read_b64 {vr(A+8,2)}, v{V_AS8}", "a2")
    e(f"v_mov_b32 v{A+10}, 0"); e(f"v_mov_b32 v{A+11}, 0")

def stage_Q(e, fl, reg_index):
    B, A = W0, W0 + 12
    read_bx(e, B); read_as(e, A)
    e(f"s_add_u32 s{S_A}, s{S_ROWN}, {reg_index*RG}")
    e.lg_wait("b2")
    tiles = [[(win(wq_frag(t, s)), vr(B + 4 * s, 4)) for s in range(3)] for t in range(12)]
    def store(t, D):
        if t < 12: pub(e, D, V_PQ, S_A, 64 * t, fl, ("pq", t))
        else:
            e(f"v_cndmask_b32 v{D+1}, v{D+1}, v{D+2}, s[{S_N1}:{S_N1+1}]")
            pub(e, D, V_PSQ, S_A, 0, fl, "pqs")
    stats = [(vr(A + 4 * s, 4), vr(B + 4 * s, 4)) for s in range(3)]
    e.lg_wait("a2")
    gemv(e, tiles + [stats], W0 + 24, 4, store)

def stage_GU(e, fl, const, with_stats=True):
    B, A, Db = W0, W0 + 12, W0 + 24
    read_bx(e, B)
    if with_stats: read_as(e, A)
    e(f"s_add_u32 s{S_A}, s{S_ROWN}, {const}" if const >= 0 else f"s_sub_u32 s{S_A}, s{S_ROWN}, {-const}")
    e.lg_wait("b2")
    def tile(d, f):
        d = vr(d, 4)
        for s in range(3): e(f"v_mfma_f32_16x16x32_bf16 {d}, {f(s)}, {vr(B+4*s,4)}, {'0' if s == 0 else d}")
    def pair(t, G):
        tile(G, lambda s: win(wg_frag(t, s)))
        tile(G + 4, lambda s: win(wu_frag(t, s)))
    def store(t, G):
        U = G + 4
        e(f"v_swap_b32 v{G+2}, v{U}"); e(f"v_swap_b32 v{G+3}, v{U+1}")
        pub(e, G, V_PG, S_A, 128 * t, fl, ("pg", t, 0))
        pub(e, U, V_PG, S_A, 128 * t + 16, fl, ("pg", t, 1))
    S = W0 + 40
    if with_stats:
        e.lg_wait("a2")
        tile(Db + 8, lambda s: vr(A + 4 * s, 4))
    pair(0, Db)
    if with_stats:
        S = Db + 8
        e(f"v_cndmask_b32 v{S+1}, v{S+1}, v{S+2}, s[{S_N1}:{S_N1+1}]")
        pub(e, S, V_PS, S_A, 0, fl, "pgs")
    pair(1, Db + 8)
    store(0, Db)
    pair(2, Db)
    store(1, Db + 8)
    store(2, Db)

def stage_WO(e, fl, region):
    B = W0
    for s in range(6): e.lg(f"ds_read_b128 {vr(B+4*s,4)}, v{V_BO} offset:{64*s}", ("o", s))
    e(f"s_add_u32 s{S_A}, s{S_LOWN}, {region*RG}")
    tiles = [[(win(wo_frag(t, s)), vr(B+4*s,4)) for s in range(6)] for t in range(5)]
    e.lg_wait(("o", 5))
    gemv(e, tiles, W0 + 24, 3, lambda t, D: pub(e, D, V_PL, S_A, 64 * t, fl, ("po", t)))

def stage_D(e, fl, region):
    B = W0
    e.lg(f"ds_read_b128 {vr(B,4)}, v{V_BH}", "h0"); e.lg(f"ds_read_b64 {vr(B+4,2)}, v{V_BH8}", "h1")
    e(f"v_mov_b32 v{B+6}, 0"); e(f"v_mov_b32 v{B+7}, 0")
    e(f"s_add_u32 s{S_A}, s{S_LOWN}, {region*RG}")
    tiles = [[(win(wd_frag(t, 0)), vr(B,4)), (win(wd_frag(t, 1)), vr(B+4,4))] for t in range(5)]
    e.lg_wait("h1")
    gemv(e, tiles, W0 + 8, 5, lambda t, D: pub(e, D, V_PL, S_A, 64 * t, fl, ("pd", t)))

def hop_LG(e, o, inst, k, abort, final_only=False):
    skip = e.newlabel("notleader")
    e(f"s_cmp_lg_u32 s{S_HQ}, 0"); e(f"s_cbranch_scc1 {skip}")
    e(f"s_add_u32 s{S_A}, s{S_LGRP}, {L_REG(inst,k)*RG}")
    gather8(e, o, V_LG, abort, n=4)
    sum_loads(e, 4)
    e(f"s_add_u32 s{S_A}, s{S_GOWN}, {G_OFF(inst,k)}")
    e(f"buffer_store_dwordx4 {vr(W0,4)}, v{V_LG}, s[{SRD_WS}:{SRD_WS+3}], s{S_A} offen sc1")
    e.label(skip)
    e.vmq = ["?"]
    if final_only:
        e(f"s_cmp_lg_u32 s{S_H}, 0"); e(f"s_cbranch_scc1 L_done")
    soffs(e, S_GGRP, G_OFF(inst, k))
    e.vmq = []
    gather8(e, o, V_LG, abort)
    sum_loads(e, 8)

def residual_update(e):
    e(f"v_pk_add_f32 {vr(W0,2)}, {vr(W0,2)}, {vr(V_XR,2)}")
    e(f"v_pk_add_f32 {vr(W0+2,2)}, {vr(W0+2,2)}, {vr(V_XR+2,2)}")
    e(f"v_cvt_pk_bf16_f32 v{W0+4}, v{W0}, v{W0+1}")
    e(f"v_cvt_pk_bf16_f32 v{W0+5}, v{W0+2}, v{W0+3}")
    e.lg(f"ds_write_b64 v{V_WX}, {vr(W0+4,2)}", "wx")
    e(f"v_lshlrev_b32 v{V_XR}, 16, v{W0+4}"); e(f"v_and_b32 v{V_XR+1}, 0xffff0000, v{W0+4}")
    e(f"v_lshlrev_b32 v{V_XR+2}, 16, v{W0+5}"); e(f"v_and_b32 v{V_XR+3}, 0xffff0000, v{W0+5}")

def store_out(e, row):
    skip = e.newlabel("noout")
    e(f"s_cmp_lg_u32 s{S_H}, 0"); e(f"s_cbranch_scc1 {skip}")
    make_srd(e, SRD_T, S_OUT, 2560)
    e(f"v_and_b32 v{V_T}, 31, v{V_LANE}"); e(f"v_lshlrev_b32 v{V_T}, 3, v{V_T}")
    e(f"s_mul_i32 s{S_T0}, s{S_J}, 160"); e(f"s_add_u32 s{S_T0}, s{S_T0}, {row*1280}")
    selmask(e, V_T, V_T, rows_mask([row], 20))
    e(f"buffer_store_dwordx2 {vr(W0+4,2)}, v{V_T}, s[{SRD_T}:{SRD_T+3}], s{S_T0} offen")
    e.label(skip)

def combine_publish(e, fl, parts, mlbase, region):
    T = W0
    e(f"v_mov_b32 v{V_T}, {mlbase}")
    e.lg(f"ds_read_b128 {vr(T,4)}, v{V_T}", "ml0"); e.lg(f"ds_read_b128 {vr(T+4,4)}, v{V_T} offset:16", "ml1")
    P = T + 8
    cur = None
    for w in range(4):
        if cur is None or not (0 <= parts[w] - cur < 60000):
            e(f"v_add_u32 v{V_T+1}, {parts[w]}, v{V_L16}"); cur = parts[w]
        for par in range(2):
            e.lg(f"ds_read_b128 {vr(P+8*w+4*par,4)}, v{V_T+1} offset:{parts[w] - cur + 768*par}", ("p", w, par))
    e(f"s_add_u32 s{S_A}, s{S_ROWN}, {region*RG}")
    e.lg_wait("ml1")
    m = [T, T + 2, T + 4, T + 6]; l = [T + 1, T + 3, T + 5, T + 7]
    M, Ls = T + 40, T + 41
    e(f"v_max3_f32 v{M}, v{m[0]}, v{m[1]}, v{m[2]}"); e(f"v_max_f32 v{M}, v{M}, v{m[3]}")
    for w in range(4): e(f"v_sub_f32 v{m[w]}, v{m[w]}, v{M}")
    for w in range(4): e(f"v_exp_f32 v{m[w]}, v{m[w]}")
    e(f"v_mul_f32 v{Ls}, v{m[0]}, v{l[0]}")
    for w in range(1, 4): e(f"v_fma_f32 v{Ls}, v{m[w]}, v{l[w]}, v{Ls}")
    for w in range(4):
        e.lg_wait(("p", w, 1))
        a = P + 8 * w
        e(f"v_pk_add_f32 {vr(a,2)}, {vr(a,2)}, {vr(a+4,2)}"); e(f"v_pk_add_f32 {vr(a+2,2)}, {vr(a+2,2)}, {vr(a+6,2)}")
        for r in range(4):
            if w == 0: e(f"v_mul_f32 v{P+r}, v{m[0]}, v{P+r}")
            else: e(f"v_fmac_f32 v{P+r}, v{m[w]}, v{a+r}")
    e(f"s_mov_b32 vcc_lo, 0"); e(f"s_mov_b32 vcc_hi, 0x00010000")
    e(f"v_cndmask_b32 v{P}, v{P}, v{M}, vcc"); e(f"v_cndmask_b32 v{P+1}, v{P+1}, v{Ls}, vcc")
    pub(e, P, V_R, S_A, 0, fl, "r1")

def hop_R1(e, o, region, row, abort):
    soffs(e, S_RGRP, region * RG)
    gather8(e, o, V_R, abort, extra=V_ML)
    X = W0 + 32
    M, wv = X + 2, X + 3
    e(f"v_mov_b32 v{M}, v{X}")
    dpp8(e, M, "max")
    e(f"v_sub_f32 v{wv}, v{X}, v{M}"); e(f"v_exp_f32 v{wv}, v{wv}")
    e(f"v_mul_f32 v{X+1}, v{wv}, v{X+1}")
    dpp8(e, X + 1, "add")
    e(f"v_rcp_f32 v{X+1}, v{X+1}")
    e(f"v_mul_f32 v{wv}, v{wv}, v{X+1}")
    acc = W0 + 36
    for k in range(8):
        for r in range(4):
            opn = "v_mul_f32_dpp" if k == 0 else "v_fmac_f32_dpp"
            e(f"{opn} v{acc+r}, v{wv}, v{W0+4*k+r} row_newbcast:{k} row_mask:0xf bank_mask:0xf")
    e(f"v_cvt_pk_bf16_f32 v{acc}, v{acc}, v{acc+1}"); e(f"v_cvt_pk_bf16_f32 v{acc+1}, v{acc+2}, v{acc+3}")
    e.lg(f"ds_write_b64 v{V_W8}, {vr(acc,2)} offset:{ACT_O - SB + 384*row}", "wo")

def hop_R2(e, o, inst, abort):
    soffs(e, S_RGRP, R2_REG[inst] * RG)
    gather8(e, o, V_R2, abort, extra=V_ST2)
    X = W0 + 32
    dpp8x2(e, X, X + 1, "add")
    sum_loads(e, 8)
    mean, rstd = X + 2, X + 3
    ln_from_stats(e, X, X + 1, mean, rstd)
    for r in range(4): e(f"v_fma_f32 v{W0+r}, -v{mean}, v{V_CSG+r}, v{W0+r}")
    for r in range(4): e(f"v_mul_f32 v{W0+r}, v{rstd}, v{W0+r}")
    e(f"v_max_f32 v{W0}, 0, v{W0}"); e(f"v_max_f32 v{W0+1}, 0, v{W0+1}")
    e(f"v_mul_f32 v{W0}, v{W0}, v{W0+2}"); e(f"v_mul_f32 v{W0+1}, v{W0+1}, v{W0+3}")
    e(f"v_cvt_pk_bf16_f32 v{W0}, v{W0}, v{W0+1}")
    e.lg(f"ds_write_b32 v{V_WH}, v{W0}", "wh")

def q_consume(e, base, X, row):
    dpp8x2(e, X, X + 1, "add")
    sum_loads(e, 8, base)
    mean, rstd = X + 2, X + 3
    ln_from_stats(e, X, X + 1, mean, rstd)
    for r in range(4): e(f"v_fma_f32 v{base+r}, -v{mean}, v{V_CSQ+r}, v{base+r}")
    for r in range(4): e(f"v_mul_f32 v{base+r}, v{rstd}, v{base+r}")
    e(f"v_cvt_pk_bf16_f32 v{base}, v{base}, v{base+1}"); e(f"v_cvt_pk_bf16_f32 v{base+1}, v{base+2}, v{base+3}")
    e.lg(f"ds_write_b64 v{V_W8}, {vr(base,2)} offset:{QARR - SB + 384*row}", "wq")

def hop_R3(e, o, region, row, abort):
    soffs(e, S_RGRP, region * RG)
    gather8(e, o, V_R, abort, extra=V_ML)
    q_consume(e, W0, W0 + 32, row)

def chain(e, o, fl, inst, live, abort, st):
    c = f"c{inst}."
    st(c + "R1")
    stage_WO(e, fl, L_REG(inst, 0))
    st(c + "WO")
    hop_LG(e, o, inst, 0, abort)
    st(c + "G1")
    residual_update(e)
    stage_GU(e, fl, R2_REG[inst] * RG)
    st(c + "GU")
    hop_R2(e, o, inst, abort)
    st(c + "R2")
    stage_D(e, fl, L_REG(inst, 1))
    st(c + "D")
    hop_LG(e, o, inst, 1, abort, final_only=(inst == 2))
    st(c + "G2")
    residual_update(e)
    if inst == 1: store_out(e, 0)
    if inst == 2:
        store_out(e, 1)
        e("s_cmp_lg_u32 s2, 0"); e("s_cbranch_scc1 L_done")
        e(f"v_mov_b32 v{V_T}, s{S_TAG}"); e(f"v_mov_b32 v{V_T+1}, {EPOCH_OFF}")
        e("s_mov_b64 exec, 1")
        e(f"buffer_store_dword v{V_T}, v{V_T+1}, s[{SRD_WS}:{SRD_WS+3}], 0 offen sc1")
        e("s_mov_b64 exec, -1")
        return
    qrow = 0 if inst == 0 else 1
    if inst == 1:
        cm = cols_mask([1]); e(f"s_mov_b32 vcc_lo, 0x{cm & 0xffffffff:08x}"); e(f"s_mov_b32 vcc_hi, 0x{cm >> 32:08x}")
        e(f"v_cndmask_b32 v{V_PQ}, v{V_OOB}, v{V_PQ}, vcc"); e(f"v_cndmask_b32 v{V_PSQ}, v{V_OOB}, v{V_PSQ}, vcc")
    stage_Q(e, fl, R3_REG[inst] - qrow)
    st(c + "Q")
    hop_R3(e, o, R3_REG[inst], qrow, abort)
    e.lg_all()
    st(c + "R3")

TOK1 = 21 * RG
TOK2 = TOK1 + 32768
EPOCH_OFF = 896
S_TAG = 14

def emit_resets(e, f):
    e(f"v_mov_b32 v{W0}, -1"); e(f"v_mov_b32 v{W0+1}, -1"); e(f"v_mov_b32 v{W0+2}, -1"); e(f"v_mov_b32 v{W0+3}, -1")
    def reset(vo, sreg, const):
        e(f"s_add_u32 s{S_A}, s{sreg}, {const}")
        e.vm(f"buffer_store_dwordx4 {vr(W0,4)}, v{vo}, s[{SRD_WS}:{SRD_WS+3}], s{S_A} offen {f}", "rst")
    e(f"v_and_b32 v{V_T}, 31, v{V_LANE}"); e(f"v_lshlrev_b32 v{V_T}, 4, v{V_T}")
    e(f"v_lshrrev_b32 v{V_T+1}, 5, v{V_LANE}"); e(f"v_lshl_add_u32 v{V_T}, v{V_T+1}, 9, v{V_T}")
    liv = {0: [0], 1: [0, 1], 2: [1], 'P': [0]}
    skip = e.newlabel("norstg")
    e(f"s_cmp_lg_u32 s{S_HQ}, 0"); e(f"s_cbranch_scc1 {skip}")
    for inst in (0, 1, 2):
        selmask(e, W0 + 4, V_T, rows_mask(liv[inst], 20))
        for k in range(2):
            e(f"s_add_u32 s{S_A}, s{S_GOWN}, {G_OFF(inst,k)}")
            e(f"buffer_store_dwordx4 {vr(W0,4)}, v{W0+4}, s[{SRD_WS}:{SRD_WS+3}], s{S_A} offen sc1")
    e.label(skip)
    for r in [4, 5, 6]: reset(V_R, S_ROWN, r * RG)
    selmask(e, W0 + 4, V_T, rows_mask(liv['P'], 24))
    reset(W0 + 4, S_ROWN, R2_REG['P'] * RG)
    for r in [7, 8] + list(R1_REG.values()): reset(V_R, S_ROWN, r * RG)
    for inst in (0, 1, 2):
        selmask(e, W0 + 4, V_T, rows_mask(liv[inst], 25))
        reset(W0 + 4, S_ROWN, R2_REG[inst] * RG)
        selmask(e, W0 + 4, V_T, rows_mask(liv[inst], 20))
        for k in range(2): reset(W0 + 4, S_LOWN, L_REG(inst, k) * RG)

def token_store(e, base, second):
    e(f"s_lshl_b32 s{S_A}, s2, 7"); e(f"s_add_u32 s{S_A}, s{S_A}, {base}")
    e(f"v_mov_b32 v{W0+40}, s{S_TAG}"); e(f"v_mov_b32 v{W0+41}, {second}"); e(f"v_mov_b32 v{V_T}, 0")
    e("s_mov_b64 exec, 1")
    e.vm(f"buffer_store_dwordx2 {vr(W0+40,2)}, v{V_T}, s[{SRD_WS}:{SRD_WS+3}], s{S_A} offen sc1", "tok")
    e("s_mov_b64 exec, -1")

def token_gather(e, o, base, vo, mask, sleep=0):
    lab = e.newlabel("tok")
    e(f"s_mov_b32 s{S_A}, {base}")
    set_exec(e, mask)
    e(f"s_mov_b32 s{S_CNT}, {o.poll_limit}")
    e.label(lab)
    e(f"buffer_load_dwordx2 {vr(W0,2)}, v{vo}, s[{SRD_WS}:{SRD_WS+3}], s{S_A} offen sc1")
    e(f"s_sub_u32 s{S_CNT}, s{S_CNT}, 1"); e(f"s_cbranch_scc1 L_abort")
    e("s_waitcnt vmcnt(0)")
    e(f"v_cmp_ne_u32 vcc, s{S_TAG}, v{W0}")
    if sleep:
        ok = e.newlabel("tokok"); e(f"s_cbranch_vccz {ok}"); e(f"s_sleep {sleep}"); e(f"s_branch {lab}"); e.label(ok)
    else: e(f"s_cbranch_vccnz {lab}")
    e.vmq = []

def tr_block(e, items):
    i, g, r, c, t = W0, W0 + 1, W0 + 2, W0 + 3, W0 + 4
    a32, a16 = W0 + 6, W0 + 7
    def tr_setup():
        e(f"v_and_b32 v{i}, 15, v{V_LANE}"); e(f"v_lshrrev_b32 v{g}, 4, v{V_LANE}")
        e(f"v_lshrrev_b32 v{r}, 2, v{i}"); e(f"v_and_b32 v{c}, 3, v{i}")
    def trbase(dst, stride, rows_per_g, base):
        e(f"v_mul_u32_u24 v{t}, {rows_per_g}, v{g}"); e(f"v_add_u32 v{t}, v{t}, v{r}")
        e(f"v_mul_u32_u24 v{t}, {stride}, v{t}"); e(f"v_lshl_add_u32 v{dst}, v{c}, 3, v{t}")
        if base: e(f"v_add_u32 v{dst}, {base}, v{dst}")
    def tr(frag, addr, off, k16, stride):
        f, lo = frag
        e.lg(f"ds_read_b64_tr_b16 {f}[{lo}:{lo+1}], v{addr} offset:{off}", "tr")
        if not k16: e.lg(f"ds_read_b64_tr_b16 {f}[{lo+2}:{lo+3}], v{addr} offset:{off+4*stride}", "tr")
        if len(e.lgq) >= 12: e.lg_wait_n(4)
    if True:
        tr_setup()
        for frag, nt, stride, base, ks in items:
            trbase(a32, stride, 8, base); trbase(a16, stride, 4, base)
            nk = len(ks)
            for tt in range(nt):
                for s, k0 in enumerate(ks):
                    k16 = (frag is not wo_frag) and s == nk - 1
                    tr(frag(tt, s), a16 if k16 else a32, k0 * stride + 32 * tt, k16, stride)
        e.lg_all()

def prologue_weights(e, o, st):
    abort = "L_abort"
    e(f"v_mov_b32 v{W0+2}, 0x3f803f80"); e(f"v_mov_b32 v{W0+3}, 0x3f803f80")
    e(f"v_lshlrev_b32 v{W0+4}, 3, v{V_LANE}"); e(f"v_add_u32 v{W0+4}, {ACT_X+384}, v{W0+4}")
    set_exec(e, mask64(range(24)))
    e.lg(f"ds_write_b64 v{W0+4}, {vr(W0+2,2)}", "ones")
    e("s_mov_b64 exec, -1")
    e.lg(f"ds_write_b64 v{V_WX}, {vr(V_XR,2)}", "wx")
    e(f"v_lshlrev_b32 v{V_XR+2}, 16, v{V_XR+1}"); e(f"v_and_b32 v{V_XR+3}, 0xffff0000, v{V_XR+1}")
    e(f"v_and_b32 v{V_XR+1}, 0xffff0000, v{V_XR}"); e(f"v_lshlrev_b32 v{V_XR}, 16, v{V_XR}")
    e.lg_all()
    lab = e.newlabel("wflag")
    e(f"v_mov_b32 v{V_T+1}, {WFLAG}")
    e(f"s_mov_b32 s{S_CNT}, {o.poll_limit*8}")
    e.label(lab)
    e(f"ds_read_b96 {vr(W0,3)}, v{V_T+1}")
    e(f"s_sub_u32 s{S_CNT}, s{S_CNT}, 1"); e(f"s_cbranch_scc1 {abort}")
    e("s_waitcnt lgkmcnt(0)")
    e(f"v_and_b32 v{W0}, v{W0}, v{W0+1}"); e(f"v_and_b32 v{W0}, v{W0}, v{W0+2}")
    e(f"v_cmp_ne_u32 vcc, 1, v{W0}")
    e(f"s_cbranch_vccnz {lab}")
    st("p.wland")
    tr_block(e, [(wq_frag, 12, 384, ST_WQ, (0, 32, 64)), (wg_frag, 3, 96, ST_WG, (0, 32, 64)), (wu_frag, 3, 96, ST_WU, (0, 32, 64))])
    st("p.weights")

def chain_wave(e, o, st, local):
    fl = "" if local else "sc1"
    abort = "L_abort"
    R = NS(vlds=V_L16, voffK=1, voffX=2, voffY=3, sel=V_SEL, qA=32, D=44, sc=56, tmp=57, vpw=62, acc=32, A=44, pp=52, vpp=63, vm=60, vl=61)
    emit_resets(e, fl)
    st("reset")
    prologue_weights(e, o, st)
    instance_offsets(e, [0, 1], pub_live=[2], q_live=[0, 1, 2])
    stage_Q(e, fl, R3_REG['P'])
    stage_GU(e, fl, R2_REG['P'] * RG - 1024, with_stats=False)
    e.vm_wait("rst")
    token_store(e, TOK2, 0)
    st("p.tok2")
    tr_block(e, [(wo_frag, 5, 160, ST_WO, (0, 32, 64, 96, 128, 160)), (wd_frag, 5, 160, ST_WD, (0, 32))])
    L = V_LANE; t, u = W0 + 2, W0 + 3
    e(f"v_and_b32 v{t}, 7, v{L}"); e(f"v_lshlrev_b32 v{u}, 3, v{t}")
    e(f"s_lshl_b32 s{S_T0}, s{S_HQ}, 6"); e(f"s_add_u32 s{S_T0}, s{S_T0}, s{S_XC}"); e(f"v_add_u32 v{W0+4}, s{S_T0}, v{u}")
    e(f"v_lshlrev_b32 v{u}, 6, v{t}")
    e(f"s_lshl_b32 s{S_T1}, s{S_J}, 3"); e(f"s_add_u32 s{S_T0}, s{S_T1}, s{S_XC}"); e(f"v_add_u32 v{W0+5}, s{S_T0}, v{u}")
    e(f"v_add_u32 v{W0+6}, s{S_T1}, v{t}")
    e("s_mov_b32 vcc_lo, 0x00000f00"); e("s_mov_b32 vcc_hi, 0"); e(f"v_cndmask_b32 v{W0+4}, v{W0+4}, v{W0+5}, vcc")
    e("s_mov_b32 vcc_lo, 0x00ff0000"); e(f"v_cndmask_b32 v{W0+4}, v{W0+4}, v{W0+6}, vcc")
    e(f"v_lshlrev_b32 v{W0+4}, 7, v{W0+4}")
    token_gather(e, o, TOK2, W0 + 4, 0x00ff0fff, sleep=o.t_sleep)
    e("s_mov_b64 exec, -1")
    st("p.tok2g")
    GA = CW_K
    e(f"v_and_b32 v{V_T}, 31, v{V_LANE}"); e(f"v_lshlrev_b32 v{V_T}, 4, v{V_T}")
    selmask(e, W0 + 40, V_T, rows_mask([0, 1], 24))
    sr = list(range(10, 18))
    for k, reg in enumerate((4, 5, 6, R2_REG['P'])):
        e(f"s_add_u32 s{sr[2*k]}, s{S_RGRP}, {reg*RG}"); e(f"s_add_u32 s{sr[2*k+1]}, s{sr[2*k]}, 4096")
    loads = []
    for row in range(3):
        loads += [(GA + 32 * row + 4 * k, V_R, sr[2*row + (k >= 4)], (k % 4) * 1024) for k in range(8)]
    loads += [(W0 + 32, V_ML, sr[0], 0), (W0 + 36, V_ML, sr[2], 0)]
    loads += [(W0 + 4 * k, W0 + 40, sr[6 + (k >= 4)], (k % 4) * 1024) for k in range(8)]
    e(f"v_subrev_u32 v{W0+41}, {768-368}, v{V_ML}")
    light = [(W0 + 4 * k, V_ML, sr[2*k], 0) for k in range(3)] + [(W0 + 12, W0 + 41, sr[6], 0)]
    if o.light: poll(e, o, light, abort, sleep=o.p_sleep)
    poll(e, o, loads, abort, sleep=o.p_sleep)
    st("p.gather")
    if "cwC" in o.exp:
        e.vm_all(force=True); e("s_barrier"); e("s_branch L_done")
    sum_loads(e, 8, GA + 64)
    for rr in range(4): e(f"v_mov_b32 v{V_CSQ+rr}, v{GA+64+rr}")
    sum_loads(e, 8, W0)
    for rr in range(4): e(f"v_mov_b32 v{V_CSG+rr}, v{W0+rr}")
    for row in range(2):
        q_consume(e, GA + 32 * row, W0 + 32 + 4 * row, row)
    st("q1")
    def load_tiles(base):
        for T in range(CW_TILES):
            kv_soff(e, base, T)
            for s in range(3): ld_k(e, R, vr(CW_K + 12 * T + 4 * s, 4), s, ('K', T, s), o)
        for T in range(CW_TILES):
            kv_soff(e, base, T)
            for w in range(3): ld_v(e, R, vr(CW_V + 12 * T + 4 * w, 4), w, ('V', T, w), o)
    load_tiles(S_KV0)
    instance_offsets(e, [0])
    e.lg_all()
    st("pro_done")
    e("s_barrier")
    Kf = lambda T, s: vr(CW_K + 12 * T + 4 * s, 4)
    Vf = lambda T, w: vr(CW_V + 12 * T + 4 * w, 4)
    def kw(T):
        if T >= 0: e.vm_wait(('K', T, 2))
    def vw(T, w): e.vm_wait(('V', T, w))
    attn_pass(e, R, CW_TILES, 0, Kf, Vf, S_PB, 0, k_wait=kw, v_wait=vw)
    e("s_barrier")
    st("bar2")
    parts = [PART + 1536 * w for w in range(4)]
    combine_publish(e, fl, parts, ML, R1_REG[0])
    st("c0.cmb")
    hop_R1(e, o, R1_REG[0], 0, abort)
    chain(e, o, fl, 0, [0], abort, st)
    st("chain0")
    e("s_barrier")
    attn_pass(e, R, CW_TILES, 0, Kf, Vf, S_PB, 32)
    e("s_barrier")
    parts_early = [PART] + [LDS_SW * s + 48 * 1024 for s in range(3)]
    combine_publish(e, fl, parts_early, ML + 32, R1_REG['1a'])
    load_tiles(S_KV1)
    instance_offsets(e, [0, 1])
    hop_R1(e, o, R1_REG['1a'], 0, abort)
    e.vmq = []
    attn_pass(e, R, CW_TILES, 1, Kf, Vf, S_PB, 0)
    e("s_barrier")
    st("bar6")
    combine_publish(e, fl, parts, ML, R1_REG['1b'])
    st("c1.cmb")
    hop_R1(e, o, R1_REG['1b'], 1, abort)
    chain(e, o, fl, 1, [0, 1], abort, st)
    st("chain1")
    e("s_barrier")
    attn_pass(e, R, CW_TILES, 1, Kf, Vf, S_PB, 0)
    instance_offsets(e, [1])
    e("s_barrier")
    st("bar8")
    combine_publish(e, fl, parts, ML, R1_REG[2])
    st("c2.cmb")
    hop_R1(e, o, R1_REG[2], 1, abort)
    chain(e, o, fl, 2, [1], abort, st)
    st("chain2")
    e("s_branch L_done")

def chain_wave_setup(e, o, st):
    L = V_LANE
    lane_id(e, L)
    e(f"v_mov_b32 v{W0}, 0"); e(f"v_mov_b32 v{W0+1}, {WFLAG}"); e(f"v_lshl_add_u32 v{W0+1}, v{L}, 2, v{W0+1}")
    e("s_mov_b64 exec, 15")
    e.lg(f"ds_write_b32 v{W0+1}, v{W0}", "z")
    e("s_mov_b64 exec, -1")
    e(f"v_mov_b32 v{V_OOB}, 0x{OOB:08x}")
    e(f"s_lshl_b32 s{S_RGRP}, s{S_H}, 13"); e(f"s_lshl_b32 s{S_T0}, s{S_J}, 10"); e(f"s_add_u32 s{S_ROWN}, s{S_RGRP}, s{S_T0}")
    e(f"s_lshl_b32 s{S_LGRP}, s{S_XC}, 3"); e(f"s_add_u32 s{S_LGRP}, s{S_LGRP}, s{S_J}"); e(f"s_lshl_b32 s{S_LGRP}, s{S_LGRP}, 12")
    e(f"s_lshl_b32 s{S_T0}, s{S_HQ}, 10"); e(f"s_add_u32 s{S_LOWN}, s{S_LGRP}, s{S_T0}")
    e(f"s_lshl_b32 s{S_GGRP}, s{S_J}, 13"); e(f"s_lshl_b32 s{S_T0}, s{S_XC}, 10"); e(f"s_add_u32 s{S_GOWN}, s{S_GGRP}, s{S_T0}")
    e.lg_all()
    e("s_barrier")
    if "nocw" in o.exp:
        e("s_barrier")
        st("bar1x")
        e("s_branch L_done")
    e(f"v_lshlrev_b32 v{V_L16}, 4, v{L}")
    selmask(e, V_R, V_L16, mask64(range(49)))
    e(f"s_load_dword s{S_TAG}, s[{S_WS}:{S_WS+1}], {EPOCH_OFF}")
    e(f"s_getreg_b32 s{S_T2}, hwreg(HW_REG_XCC_ID)"); e(f"s_and_b32 s{S_T2}, s{S_T2}, 0xf")
    e("s_waitcnt lgkmcnt(0)")
    e(f"s_add_u32 s{S_TAG}, s{S_TAG}, 1")
    token_store(e, TOK1, f"s{S_T2}")
    make_srd(e, SRD_T, S_X, 2560)
    e(f"v_and_b32 v{V_T}, 31, v{L}"); e(f"v_lshlrev_b32 v{V_T}, 3, v{V_T}")
    e(f"v_lshrrev_b32 v{V_T+1}, 5, v{L}"); e(f"v_mul_u32_u24 v{V_T+1}, 1280, v{V_T+1}"); e(f"v_add_u32 v{V_T}, v{V_T}, v{V_T+1}")
    selmask(e, V_T, V_T, rows_mask([0, 1], 20))
    e(f"s_mul_i32 s{S_T0}, s{S_J}, 160")
    e.vm(f"buffer_load_dwordx2 {vr(V_XR,2)}, v{V_T}, s[{SRD_T}:{SRD_T+3}], s{S_T0} offen", "x")
    e(f"s_add_u32 s{S_KV0}, s{S_KV0}, {60*TILE_B}")
    e(f"s_add_u32 s{S_KV1}, s{S_KV0}, {BATCH_STRIDE}")
    R = NS(voffK=1, voffX=2, voffY=3, sel=V_SEL)
    attn_load_offsets(e, R, L, W0); attn_selectors(e, R, L, W0)
    n, g, x = W0, W0 + 1, W0 + 2
    e(f"v_mov_b32 v{W0+3}, v{V_L16}"); selmask(e, V_L16, W0 + 3, mask64(range(48)), other=0)
    e(f"v_and_b32 v{n}, 15, v{L}"); e(f"v_lshrrev_b32 v{g}, 4, v{L}")
    e(f"v_min_u32 v{x}, 1, v{n}")
    e(f"v_mul_u32_u24 v{V_BO}, 384, v{x}"); e(f"v_lshl_add_u32 v{V_BO}, v{g}, 4, v{V_BO}"); e(f"v_add_u32 v{V_BO}, {ACT_O}, v{V_BO}")
    e(f"v_lshlrev_b32 v{V_BH}, 7, v{x}"); e(f"v_lshl_add_u32 v{V_BH8}, v{g}, 3, v{V_BH}"); e(f"v_add_u32 v{V_BH8}, {ACT_H+64}, v{V_BH8}")
    e(f"v_lshl_add_u32 v{V_BH}, v{g}, 4, v{V_BH}"); e(f"v_add_u32 v{V_BH}, {ACT_H}, v{V_BH}")
    e(f"v_min_u32 v{x}, 2, v{n}")
    e(f"v_mul_u32_u24 v{V_BX}, 192, v{x}"); e(f"v_lshl_add_u32 v{V_BX8}, v{g}, 3, v{V_BX}"); e(f"v_add_u32 v{V_BX8}, {ACT_X+128}, v{V_BX8}")
    e(f"v_lshl_add_u32 v{V_BX}, v{g}, 4, v{V_BX}"); e(f"v_add_u32 v{V_BX}, {ACT_X}, v{V_BX}")
    e(f"v_subrev_u32 v{x}, 1, v{n}"); e(f"v_min_u32 v{x}, 2, v{x}")
    e(f"v_mul_u32_u24 v{V_AS}, 192, v{x}"); e(f"v_lshl_add_u32 v{V_AS8}, v{g}, 3, v{V_AS}"); e(f"v_add_u32 v{V_AS8}, {ACT_X+128}, v{V_AS8}")
    e(f"v_lshl_add_u32 v{V_AS}, v{g}, 4, v{V_AS}"); e(f"v_add_u32 v{V_AS}, {ACT_X}, v{V_AS}")
    e(f"v_lshlrev_b32 v{x}, 3, v{L}"); e(f"v_add_u32 v{x}, {SB}, v{x}"); selmask(e, V_W8, x, mask64(range(48)), other=SB+2560)
    e(f"v_and_b32 v{n}, 31, v{L}"); e(f"v_lshrrev_b32 v{g}, 5, v{L}")
    e(f"v_mul_u32_u24 v{x}, 192, v{g}"); e(f"v_lshl_add_u32 v{x}, v{n}, 3, v{x}"); e(f"v_add_u32 v{x}, {ACT_X}, v{x}")
    selmask(e, V_WX, x, rows_mask([0, 1], 20), other=DUMMY)
    e(f"v_lshlrev_b32 v{x}, 7, v{g}"); e(f"v_lshl_add_u32 v{x}, v{n}, 2, v{x}"); e(f"v_add_u32 v{x}, {ACT_H}, v{x}")
    selmask(e, V_WH, x, rows_mask([0, 1], 24), other=DUMMY)
    e(f"v_and_b32 v{x}, 7, v{L}"); e(f"v_lshlrev_b32 v{x}, 10, v{x}"); e(f"v_add_u32 v{V_ML}, 768, v{x}")
    m = mask64([16 * a + 1 for a in range(4)])
    e(f"s_mov_b32 s{S_N1}, 0x{m & 0xffffffff:08x}"); e(f"s_mov_b32 s{S_N1+1}, 0x{m >> 32:08x}")
    e(f"v_lshlrev_b32 v{W0+4}, 10, v{L}"); e(f"s_lshl_b32 s{S_T0}, s{S_XC}, 7"); e(f"v_add_u32 v{W0+4}, s{S_T0}, v{W0+4}")
    token_gather(e, o, TOK1, W0 + 4, 0xffffffff, sleep=o.t_sleep)
    e(f"v_cmp_ne_u32 vcc, s{S_T2}, v{W0+1}")
    e("s_mov_b64 exec, -1")
    st("p.mode")
    e("s_nop 3")
    e("s_cmp_lg_u32 vcc_lo, 0")

def generate(o):
    Stamps.select = o.stampset.split(",") if o.stampset else None
    e = Emit()
    e("s_cmp_ge_u32 s2, 256"); e("s_cbranch_scc1 L_done")
    e("s_load_dwordx16 s[4:19], s[0:1], 0"); e("s_load_dwordx8 s[20:27], s[0:1], 64")
    e("v_lshrrev_b32 v1, 6, v0")
    e(f"s_and_b32 s{S_XC}, s2, 7"); e(f"s_lshr_b32 s{S_HQ}, s2, 6")
    e(f"v_readfirstlane_b32 s{S_WAVE}, v1")
    e(f"s_lshr_b32 s{S_J}, s2, 3"); e(f"s_and_b32 s{S_J}, s{S_J}, 7")
    e(f"s_lshl_b32 s{S_H}, s{S_XC}, 2"); e(f"s_add_u32 s{S_H}, s{S_H}, s{S_HQ}")
    e(f"s_mul_i32 s{S_KV0}, s{S_H}, {HEAD_STRIDE}"); e(f"s_mul_i32 s{S_T0}, s{S_J}, {CHUNK_STRIDE}"); e(f"s_add_u32 s{S_KV0}, s{S_KV0}, s{S_T0}")
    e(f"s_mov_b32 s{S_C}, {lit(CSCALE)}")
    e(f"s_mov_b32 s{S_HI32}, 0"); e(f"s_mov_b32 s{S_HI32+1}, -1")
    e(f"s_mul_i32 s{S_PB}, s{S_WAVE}, 1536"); e(f"s_add_u32 s{S_PB}, s{S_PB}, {PART}")
    e(f"s_lshl_b32 s{S_MLB}, s{S_WAVE}, 3"); e(f"s_add_u32 s{S_MLB}, s{S_MLB}, {ML}")
    e("s_waitcnt lgkmcnt(0)")
    make_srd(e, SRD_K, S_K, KV_BYTES); make_srd(e, SRD_V, S_V, KV_BYTES); make_srd(e, SRD_WS, S_WS, WS_REC)
    e(f"s_cmp_eq_u32 s{S_WAVE}, 0"); e("s_cbranch_scc1 L_chain")
    st_s = Stamps(e, o.stamps); st_s("start")
    stream_wave(e, o, st_s)
    e.label("L_chain")
    e.vmq = []; e.lgq = []
    st_c = Stamps(e, o.stamps); st_c("start")
    chain_wave_setup(e, o, st_c)
    names = {}
    if o.force_global: e("s_branch L_global")
    else: e("s_cbranch_scc1 L_global")
    base_names = list(st_c.names)
    sv = (list(e.vmq), list(e.lgq))
    chain_wave(e, o, st_c, True)
    names['cw'] = list(st_c.names); names['sw'] = list(st_s.names)
    e.label("L_global")
    e.vmq, e.lgq = sv
    st_g = Stamps(e, o.stamps); st_g.names = list(base_names)
    chain_wave(e, o, st_g, False)
    e.label("L_abort")
    e.label("L_done")
    if o.stamps:
        e("s_cmp_ge_u32 s2, 256"); e("s_cbranch_scc1 L_exit")
        fl = Stamps(e, True); fl.names = names['cw']; fl.flush()
        e.label("L_exit")
    e("s_endpgm")
    return e, names

HEAD = """; Kernarg: A_x, K, V, wq, wo, B_x, W_gate, W_up, W_down, out, debug, ws (pointers)
; @launch grid=(256,1,1) block=(256,1,1) lds=%d
.amdgcn_target "amdgcn-amd-amdhsa--gfx950"
.text
.globl %s
.p2align 8
.type %s,@function
%s:
"""
FOOT = """
.section .rodata,"a"
.p2align 6
.amdhsa_kernel %s
  .amdhsa_next_free_vgpr 512
  .amdhsa_next_free_sgpr 102
  .amdhsa_accum_offset 256
  .amdhsa_group_segment_fixed_size 0
  .amdhsa_kernarg_size 96
  .amdhsa_user_sgpr_count 2
  .amdhsa_user_sgpr_kernarg_segment_ptr 1
  .amdhsa_system_sgpr_workgroup_id_x 1
  .amdhsa_float_denorm_mode_32 3
.end_amdhsa_kernel
"""
def build_text(o):
    e, names = generate(o)
    return HEAD % (LDS_TOTAL, NAME, NAME, NAME) + e.text() + "\n" + FOOT % NAME, names, e

if __name__ == "__main__":
    o = Opt()
    for a in sys.argv[2:]:
        k, v = a.split("=")
        cur = getattr(o, k)
        setattr(o, k, (v not in ("0", "False")) if isinstance(cur, bool) else type(cur)(v))
    txt, names, e = build_text(o)
    open(sys.argv[1], "w").write(txt)
    print("instructions:", e.ninst, "nops:", e.nops, names)
```

```python
import sys, struct
from types import SimpleNamespace as NS
from emit import Emit, vr

NAME = "interleave_layers__mha_block_cached__glu_gated_reglu__decode_kernel"

class Opt:
    NA = 16
    NA_BAR = 118
    NB = 6
    NC = 56
    NA0 = 16
    NA0N = 0
    light = False
    pf = 0
    pf_all = False
    NF = 12
    NW = 24
    stamps = False
    poll_limit = 400000
    kvflags = "nt"
    wflags = "nt"
    stampset = ""
    p_sleep = 8
    mb_sleep = 0
    exp = ""
    t_sleep = 0
    early = False
    preR = 0
    preL = 0
    preG = 0
    flag_sleep = 0
    force_global = False

KV_BYTES = 100663296
BATCH_STRIDE = 50331648
HEAD_STRIDE = 1572864
CHUNK_STRIDE = 196608
TILE_B = 3072
SW_TILES, CW_TILES = 20, 4
OOB = 0x7fff0000

LDS_SW = 51200
SB = 153600
PART = SB
ML = SB + 6144
QARR = SB + 6208
ACT_O = SB + 6976
ACT_X = SB + 7744
ACT_H = SB + 8320
DUMMY = SB + 8576
WFLAG = SB + 10208
LDS_TOTAL = 163840
ST_WQ, ST_WO, ST_WG, ST_WU, ST_WD = 0, 30720, 61440, 69120, 76800

RG = 262144
R1_REG = {0: 0, '1a': 1, '1b': 2, 2: 3}
R3_REG = {'P': 4, 0: 7, 1: 8}
R2_REG = {'P': 9, 0: 10, 1: 11, 2: 12}
L_REG = lambda inst, k: 13 + 2 * inst + k
G_OFF = lambda inst, k: 19 * RG + (2 * inst + k) * 65536
STAMP_OFF = 22 * RG
WS_REC = 24 * RG

CSCALE = (192 ** -0.5) * 1.4426950408889634
EPS = 1e-5
def f2u(x): return struct.unpack("<I", struct.pack("<f", x))[0]
def lit(x): return "0x%08x" % f2u(x)
def mask64(lanes):
    m = 0
    for l in lanes: m |= 1 << l
    return m
def set_exec(e, m):
    if m == (1 << 64) - 1: e("s_mov_b64 exec, -1"); return
    e(f"s_mov_b32 exec_lo, 0x{m & 0xffffffff:08x}")
    e(f"s_mov_b32 exec_hi, 0x{m >> 32:08x}")

S_X, S_K, S_V, S_WQ, S_WO, S_BX, S_WG, S_WU, S_WD, S_OUT, S_DBG, S_WS = 4, 6, 8, 10, 12, 14, 16, 18, 20, 22, 24, 26
S_XC, S_HQ, S_J, S_H = 28, 29, 30, 31
SRD_K, SRD_V = 32, 36
S_KV0, S_KV1, S_SOFF, S_LDSB = 40, 41, 42, 43
SRD_T = 44
SRD_WS = 48
SRD_DBG = 52
S_C = 56
S_ROWN, S_RGRP, S_LOWN, S_LGRP, S_GOWN, S_GGRP = 57, 58, 59, 60, 61, 62
S_A, S_B, S_CNT, S_T0, S_T1, S_T2 = 63, 64, 65, 66, 67, 68
S_PB = 69
S_HI32 = 70
S_MLB = 72
S_GA, S_GB = 100, 101
S_WAVE = 3
S_STAMP = 76

def make_srd(e, srd, ptr, nbytes):
    e(f"s_mov_b32 s{srd}, s{ptr}")
    e(f"s_and_b32 s{srd+1}, s{ptr+1}, 0xffff")
    e(f"s_mov_b32 s{srd+2}, {nbytes}")
    e(f"s_mov_b32 s{srd+3}, 0x20000")

class Stamps:
    select = None
    def __init__(self, e, on): self.e, self.on, self.names = e, on, []
    def __call__(self, name):
        if not self.on: return
        if Stamps.select is not None and not any(name.startswith(p) for p in Stamps.select): return
        if Stamps.select is None and "." in name: return
        n = len(self.names); assert n < 12, "too many stamps"
        self.e(f"s_memrealtime s[{S_STAMP+2*n}:{S_STAMP+2*n+1}]")
        self.e.lg_all(force=True)
        self.names.append(name)
    def rounds(self, name):
        if not self.on: return
        if Stamps.select is None or not any(name.startswith(p) for p in Stamps.select): return
        n = len(self.names); assert n < 12
        self.e(f"s_mov_b32 s{S_STAMP+2*n}, s{S_CNT}"); self.e(f"s_mov_b32 s{S_STAMP+2*n+1}, 0")
        self.names.append(name)
    def flush(self):
        if not self.on: return
        e = self.e
        e("s_mov_b64 exec, 1")
        e(f"s_lshl_b32 s{S_T0}, s2, 2"); e(f"s_add_u32 s{S_T0}, s{S_T0}, s{S_WAVE}"); e(f"s_lshl_b32 s{S_T0}, s{S_T0}, 7")
        e(f"s_add_u32 s{S_T0}, s{S_T0}, {STAMP_OFF}")
        e("v_mov_b32 v0, 0")
        for i in range(len(self.names)):
            e(f"v_mov_b32 v2, s{S_STAMP+2*i}"); e(f"v_mov_b32 v3, s{S_STAMP+2*i+1}")
            e(f"buffer_store_dwordx2 v[2:3], v0, s[{SRD_WS}:{SRD_WS+3}], s{S_T0} offen offset:{8*i}")
            e("s_waitcnt vmcnt(0)")

def lane_id(e, dst):
    e(f"v_mbcnt_lo_u32_b32 {vr(dst)}, -1, 0")
    e(f"v_mbcnt_hi_u32_b32 {vr(dst)}, -1, {vr(dst)}")

def attn_load_offsets(e, R, lane, t):
    i, g, u, w = t, t + 1, t + 2, t + 3
    e(f"v_and_b32 {vr(i)}, 15, {vr(lane)}")
    e(f"v_lshrrev_b32 {vr(g)}, 4, {vr(lane)}")
    e(f"v_and_b32 {vr(u)}, 7, {vr(i)}")
    e(f"v_lshrrev_b32 {vr(w)}, 3, {vr(i)}")
    e(f"v_mul_u32_u24 {vr(R.voffK)}, 384, {vr(u)}")
    e(f"v_lshl_add_u32 {vr(R.voffK)}, {vr(g)}, 4, {vr(R.voffK)}")
    e(f"v_lshl_add_u32 {vr(R.voffK)}, {vr(w)}, 6, {vr(R.voffK)}")
    e(f"v_mul_u32_u24 {vr(R.voffX)}, 768, {vr(g)}")
    e(f"v_mul_u32_u24 {vr(w)}, 384, {vr(w)}")
    e(f"v_add_u32 {vr(R.voffY)}, {vr(R.voffX)}, {vr(w)}")
    e(f"v_lshl_add_u32 {vr(R.voffY)}, {vr(u)}, 4, {vr(R.voffY)}")
    e(f"v_add_u32 {vr(R.voffY)}, 256, {vr(R.voffY)}")
    e(f"v_lshl_add_u32 {vr(R.voffX)}, {vr(i)}, 4, {vr(R.voffX)}")

def attn_selectors(e, R, lane, t):
    i, u, lo, hi = t, t + 1, t + 2, t + 3
    e(f"v_and_b32 {vr(i)}, 15, {vr(lane)}")
    e(f"v_lshrrev_b32 {vr(u)}, 3, {vr(i)}")
    e(f"v_mul_u32_u24 {vr(u)}, 0x202, {vr(u)}")
    e(f"v_add_u32 {vr(u)}, 0x100, {vr(u)}")
    e(f"v_or_b32 {vr(lo)}, 0x0c0c0000, {vr(u)}")
    e(f"v_lshlrev_b32 {vr(hi)}, 16, {vr(u)}")
    e(f"v_or_b32 {vr(hi)}, 0x0c0c, {vr(hi)}")
    e(f"v_and_b32 {vr(u)}, 1, {vr(i)}")
    e(f"v_cmp_eq_u32 vcc, 1, {vr(u)}")
    e(f"v_cndmask_b32 {vr(lo)}, {vr(lo)}, {vr(hi)}, vcc")
    e(f"v_bfe_u32 {vr(u)}, {vr(i)}, 1, 2")
    e(f"v_mov_b32 {vr(hi)}, 0x0c0c0c0c")
    for r in range(4):
        e(f"v_cmp_eq_u32 vcc, {r}, {vr(u)}")
        e(f"v_cndmask_b32 {vr(R.sel+r)}, {vr(hi)}, {vr(lo)}, vcc")

def allreduce(e, reg, tmp, op):
    for k in (8, 4, 2, 1):
        e(f"v_{op}_f32_dpp {vr(reg)}, {vr(reg)}, {vr(reg)} row_ror:{k} row_mask:0xf bank_mask:0xf")
    e(f"v_mov_b32 {vr(tmp)}, {vr(reg)}")
    e(f"v_permlane16_swap_b32 {vr(reg)}, {vr(tmp)}")
    e(f"v_{op}_f32 {vr(reg)}, {vr(reg)}, {vr(tmp)}")
    e(f"v_mov_b32 {vr(tmp)}, {vr(reg)}")
    e(f"v_permlane32_swap_b32 {vr(reg)}, {vr(tmp)}")
    e(f"v_{op}_f32 {vr(reg)}, {vr(reg)}, {vr(tmp)}")

def attn_pass(e, R, ntiles, qrow, Kfrag, Vfrag, part_sreg, ml_off, k_wait=None, qk_hook=None, mid_hook=None,
              v_wait=None, pv_hook=None, stage=None):
    L = R.tmp
    lane_id(e, L)
    e(f"v_and_b32 {vr(L+1)}, 1, {vr(L)}")
    e(f"v_lshrrev_b32 {vr(L+2)}, 4, {vr(L)}")
    e(f"v_lshlrev_b32 {vr(L+2)}, 4, {vr(L+2)}")
    e(f"v_lshl_add_u32 {vr(L+1)}, {vr(L+1)}, 6, {vr(L+2)}")
    e(f"v_add_u32 {vr(L+1)}, {QARR}, {vr(L+1)}")
    for s in range(3):
        e.lg(f"ds_read_b128 {vr(R.qA+4*s,4)}, {vr(L+1)} offset:{qrow*384 + 128*s}", ("q", s))
    e(f"v_add_u32 {vr(R.vpp)}, s{S_PB}, {vr(L+2)}")
    W = R.vpw
    e(f"v_lshrrev_b32 {vr(L+1)}, 5, {vr(L)}"); e(f"v_lshlrev_b32 {vr(W)}, 6, {vr(L+1)}")
    e(f"v_bfe_u32 {vr(L+1)}, {vr(L)}, 1, 2"); e(f"v_lshl_add_u32 {vr(W)}, {vr(L+1)}, 4, {vr(W)}")
    e(f"v_bfe_u32 {vr(L+1)}, {vr(L)}, 3, 2"); e(f"v_lshl_add_u32 {vr(W)}, {vr(L+1)}, 2, {vr(W)}")
    e(f"v_and_b32 {vr(L+1)}, 1, {vr(L)}"); e(f"v_lshl_add_u32 {vr(W)}, {vr(L+1)}, 1, {vr(W)}")
    e(f"v_add_u32 {vr(W)}, s{S_PB}, {vr(W)}")
    nsc = (ntiles + 7) // 8
    for r in range(nsc):
        if (r + 1) * 8 > ntiles: e(f"v_mov_b32 {vr(R.sc+r)}, 0xff800000")
    stg = {}
    def stage_k(T):
        if T >= ntiles: return
        for s in range(3):
            f = Kfrag(T, s)
            if isinstance(f, tuple):
                reg = stage[(3 * T + s) % len(stage)]
                e.lg(f"ds_read_b128 {vr(reg,4)}, {vr(R.vlds)} offset:{f[1]}", ("k", T, s))
                stg[(T, s)] = vr(reg, 4)
    LOOK = 2
    if k_wait: k_wait(-1)
    for T in range(min(LOOK, ntiles)): stage_k(T)
    e.lg_wait(("q", 2))
    def dpp_add(T):
        D = R.D + 4 * (T % 3)
        dst = vr(R.sc + (T >> 3)); rm = 1 << ((T >> 1) & 3)
        if T % 2 == 0: e(f"v_add_f32_dpp {dst}, {vr(D+1)}, {vr(D)} row_ror:8 row_mask:0x{rm:x} bank_mask:0x3")
        else:          e(f"v_add_f32_dpp {dst}, {vr(D)}, {vr(D+1)} row_ror:8 row_mask:0x{rm:x} bank_mask:0xc")
    for T in range(ntiles):
        if k_wait: k_wait(T)
        D = vr(R.D + 4 * (T % 3), 4)
        for s in range(3):
            f = Kfrag(T, s)
            if isinstance(f, tuple):
                e.lg_wait(("k", T, s)); f = stg[(T, s)]
            e(f"v_mfma_f32_16x16x32_bf16 {D}, {vr(R.qA+4*s,4)}, {f}, {'0' if s == 0 else D}")
        stage_k(T + LOOK)
        if qk_hook: qk_hook(T)
        if T >= 2: dpp_add(T - 2)
    for T in range(max(0, ntiles - 2), ntiles): dpp_add(T)
    t0, t1 = R.D, R.D + 1
    if nsc == 1: e(f"v_mov_b32 {vr(t0)}, {vr(R.sc)}")
    elif nsc == 2: e(f"v_max_f32 {vr(t0)}, {vr(R.sc)}, {vr(R.sc+1)}")
    else: e(f"v_max3_f32 {vr(t0)}, {vr(R.sc)}, {vr(R.sc+1)}, {vr(R.sc+2)}")
    allreduce(e, t0, t1, "max")
    e(f"v_mul_f32 {vr(R.vm)}, s{S_C}, {vr(t0)}")
    for r in range(nsc): e(f"v_fma_f32 {vr(R.sc+r)}, {vr(R.sc+r)}, s{S_C}, -{vr(R.vm)}")
    for r in range(nsc): e(f"v_exp_f32 {vr(R.sc+r)}, {vr(R.sc+r)}")
    for r in range(nsc): e(f"v_cvt_pk_bf16_f32 {vr(R.D+2+r)}, {vr(R.sc+r)}, {vr(R.sc+r)}")
    for r in range(nsc): e.lg(f"ds_write_b16 {vr(W)}, {vr(R.D+2+r)} offset:{128*r}", ("pw", r))
    nq = (ntiles + 3) // 4
    ppreg = lambda q: R.pp + 4 * (q % 2)
    if nsc == 1: e(f"v_mov_b32 {vr(R.vl)}, {vr(R.sc)}")
    else:
        e(f"v_add_f32 {vr(R.vl)}, {vr(R.sc)}, {vr(R.sc+1)}")
        if nsc == 3: e(f"v_add_f32 {vr(R.vl)}, {vr(R.vl)}, {vr(R.sc+2)}")
    e.lg(f"ds_read_b128 {vr(ppreg(0),4)}, {vr(R.vpp)}", ("pp", 0))
    if nq > 1: e.lg(f"ds_read_b128 {vr(ppreg(1),4)}, {vr(R.vpp)} offset:64", ("pp", 1))
    allreduce(e, R.vl, t1, "add")
    if mid_hook: mid_hook()
    X1, X2, Y = R.acc, R.acc + 4, R.acc + 8
    def build_A(T):
        q = T >> 2
        e.lg_wait(("pp", q))
        A = R.A + 4 * (T % 2); src = vr(ppreg(q) + (T & 3))
        return [f"v_perm_b32 {vr(A+r)}, {src}, {src}, {vr(R.sel+r)}" for r in range(4)]
    for ins in build_A(0): e(ins)
    for T in range(ntiles):
        A = vr(R.A + 4 * (T % 2), 4)
        nxt = build_A(T + 1) if T + 1 < ntiles else []
        if v_wait: v_wait(T, 0)
        e(f"v_mfma_f32_16x16x32_bf16 {vr(X1,4)}, {A}, {Vfrag(T,0)}, {'0' if T == 0 else vr(X1,4)}")
        for ins in nxt[:2]: e(ins)
        if v_wait: v_wait(T, 1)
        e(f"v_mfma_f32_16x16x32_bf16 {vr(X2,4)}, {A}, {Vfrag(T,1)}, {'0' if T == 0 else vr(X2,4)}")
        for ins in nxt[2:]: e(ins)
        if v_wait: v_wait(T, 2)
        e(f"v_mfma_f32_16x16x32_bf16 {vr(Y,4)}, {A}, {Vfrag(T,2)}, {'0' if T == 0 else vr(Y,4)}")
        if (T & 3) == 2 and (T >> 2) + 2 < nq:
            q2 = (T >> 2) + 2
            e.lg(f"ds_read_b128 {vr(ppreg(q2),4)}, {vr(R.vpp)} offset:{64*q2}", ("pp", q2))
        if pv_hook: pv_hook(T)
    p = R.pp
    lane_id(e, p)
    e(f"v_and_b32 {vr(p+1)}, 15, {vr(p)}")
    e(f"v_lshrrev_b32 {vr(p+2)}, 4, {vr(p)}")
    e(f"v_and_b32 {vr(p+3)}, 1, {vr(p+2)}")
    e(f"v_lshrrev_b32 {vr(p+2)}, 1, {vr(p+2)}")
    e(f"v_mul_u32_u24 {vr(p+2)}, 768, {vr(p+2)}")
    e(f"v_lshl_add_u32 {vr(p+2)}, {vr(p+3)}, 4, {vr(p+2)}")
    e(f"v_add_u32 {vr(p+2)}, s{part_sreg}, {vr(p+2)}")
    e(f"v_lshl_add_u32 {vr(p+4)}, {vr(p+1)}, 5, {vr(p+2)}")
    e(f"v_and_b32 {vr(p+1)}, 7, {vr(p+1)}")
    e(f"v_lshl_add_u32 {vr(p+5)}, {vr(p+1)}, 5, {vr(p+2)}")
    e(f"v_mov_b32 {vr(p+6)}, s{S_MLB}")
    e(f"v_mov_b32 {vr(R.A)}, {vr(R.vm)}"); e(f"v_mov_b32 {vr(R.A+1)}, {vr(R.vl)}")
    for r in range(4):
        e(f"v_cndmask_b32 {vr(X1+r)}, {vr(X1+r)}, {vr(X2+r)}, s[{S_HI32}:{S_HI32+1}]")
    e.lg(f"ds_write_b128 {vr(p+4)}, {vr(X1,4)}", "px")
    set_exec(e, 0xFF00FF0000FF00FF)
    e.lg(f"ds_write_b128 {vr(p+5)}, {vr(Y,4)} offset:512", "py")
    e("s_mov_b64 exec, 1")
    e.lg(f"ds_write_b64 {vr(p+6)}, {vr(R.A,2)} offset:{ml_off}", "pm")
    e("s_mov_b64 exec, -1")
    e.lg_all()

def kv_soff(e, base_sreg, T):
    e(f"s_add_u32 s{S_SOFF}, s{base_sreg}, {T*TILE_B}")
def ld_k(e, R, dst, s, tag, o):
    e.vm(f"buffer_load_dwordx4 {dst}, {vr(R.voffK)}, s[{SRD_K}:{SRD_K+3}], s{S_SOFF} offen offset:{128*s} {o.kvflags}", tag)
def ld_v(e, R, dst, w, tag, o):
    vo = R.voffY if w == 2 else R.voffX
    off = 384 if w == 1 else 0
    e.vm(f"buffer_load_dwordx4 {dst}, {vr(vo)}, s[{SRD_V}:{SRD_V+3}], s{S_SOFF} offen offset:{off} {o.kvflags}", tag)
def dma_k(e, R, slot, s, tag, o):
    e(f"s_add_u32 m0, s{S_LDSB}, {slot*1024 - 128*s + 0}") if slot*1024 - 128*s >= 0 else e(f"s_sub_u32 m0, s{S_LDSB}, {128*s - slot*1024}")
    e.vm(f"buffer_load_dwordx4 {vr(R.voffK)}, s[{SRD_K}:{SRD_K+3}], s{S_SOFF} offen offset:{128*s} {o.kvflags} lds", tag)
def dma_v(e, R, slot, w, tag, o):
    vo = R.voffY if w == 2 else R.voffX
    off = 384 if w == 1 else 0
    e(f"s_add_u32 m0, s{S_LDSB}, {slot*1024 - off}")
    e.vm(f"buffer_load_dwordx4 {vr(vo)}, s[{SRD_V}:{SRD_V+3}], s{S_SOFF} offen offset:{off} {o.kvflags} lds", tag)

def slot_reg(k):
    assert 0 <= k < 118
    return f"a[{4*k}:{4*k+3}]" if k < 64 else f"v[{40+4*(k-64)}:{40+4*(k-64)+3}]"

def weight_dma(e, o):
    L, t, u = 8, 20, 21
    def dma_block(ptr, nbytes, lanes_per_row, magic, shift, nlanes, row_stride, rows_per_instr, ninstr, so, lds0, bar=False):
        make_srd(e, SRD_T, ptr, nbytes)
        e(f"v_mul_u32_u24 v{t}, {magic}, v{L}"); e(f"v_lshrrev_b32 v{t}, {shift}, v{t}")
        e(f"v_mul_u32_u24 v{u}, {lanes_per_row}, v{t}"); e(f"v_sub_u32 v{u}, v{L}, v{u}")
        e(f"s_mov_b32 s{S_T1}, {row_stride}")
        e(f"v_mul_lo_u32 v{t}, v{t}, s{S_T1}"); e(f"v_lshl_add_u32 v{t}, v{u}, 4, v{t}")
        rreg, rmul, creg, cmul = so
        e(f"s_mul_i32 s{S_SOFF}, s{rreg}, {rmul*row_stride}")
        e(f"s_mul_i32 s{S_T1}, s{creg}, {cmul}"); e(f"s_add_u32 s{S_SOFF}, s{S_SOFF}, s{S_T1}")
        set_exec(e, mask64(range(nlanes)))
        if bar: e("s_barrier")
        for i in range(ninstr):
            e(f"s_mov_b32 m0, {lds0 + i*nlanes*16}")
            if i: e(f"s_add_u32 s{S_SOFF}, s{S_SOFF}, {rows_per_instr*row_stride}")
            else: e("s_nop 0")
            e.vm_depth(o.NW - 1)
            e.vm(f"buffer_load_dwordx4 v{t}, s[{SRD_T}:{SRD_T+3}], s{S_SOFF} offen {o.wflags} lds", "w")
        e("s_mov_b64 exec, -1")
    l2, l3, end = e.newlabel("w2"), e.newlabel("w3"), e.newlabel("wend")
    e(f"s_cmp_eq_u32 s{S_WAVE}, 2"); e(f"s_cbranch_scc1 {l2}")
    e(f"s_cmp_eq_u32 s{S_WAVE}, 3"); e(f"s_cbranch_scc1 {l3}")
    base_q = list(e.vmq)
    dma_block(S_WQ, 7864320, 24, 43, 10, 48, 12288, 2, 40, (S_J, 80, S_H, 384), ST_WQ, bar=True)
    e(f"s_branch {end}")
    e.label(l2); e.vmq = list(base_q)
    dma_block(S_WO, 7864320, 10, 103, 10, 60, 1280, 6, 32, (S_H, 192, S_J, 160), ST_WO, bar=True)
    e(f"s_branch {end}")
    e.label(l3); e.vmq = list(base_q)
    dma_block(S_WG, 1966080, 6, 43, 8, 60, 3072, 10, 8, (S_J, 80, S_H, 96), ST_WG, bar=True)
    dma_block(S_WU, 1966080, 6, 43, 8, 60, 3072, 10, 8, (S_J, 80, S_H, 96), ST_WU)
    dma_block(S_WD, 1966080, 10, 103, 10, 60, 1280, 6, 8, (S_H, 48, S_J, 160), ST_WD)
    e.label(end)
    e.vmq = ["w"] * o.NW

def stream_wave(e, o, st):
    R = NS(vlds=0, voffK=1, voffX=2, voffY=3, sel=4, qA=8, D=20, sc=32, tmp=20, vpw=35, acc=8, A=20, pp=28, vpp=36, vm=38, vl=39)
    loads = []
    for T in range(SW_TILES):
        for s in range(3): loads.append(('K', T, s))
    for T in range(SW_TILES):
        for w in range(3): loads.append(('V', T, w))
    def k0slot(T, s): return 3 * T + s
    def v0slot(T, w): return 60 + 3 * T + w
    cur = [None]
    def issue0(item):
        kind, T, x = item
        if cur[0] != (kind, T, 0):
            kv_soff(e, S_KV0, T); cur[0] = (kind, T, 0)
        if kind == 'K': ld_k(e, R, slot_reg(k0slot(T, x)), x, ('K0', T, x), o)
        else:
            sl = v0slot(T, x)
            if sl < 118: ld_v(e, R, slot_reg(sl), x, ('V0', T, x), o)
            else: dma_v(e, R, 48 + sl - 118, x, ('V0', T, x), o)
    for item in loads[:o.NF]: issue0(item)
    late_common(e)
    e(f"s_add_u32 s{S_KV1}, s{S_KV0}, {BATCH_STRIDE}")
    e(f"s_sub_u32 s{S_T0}, s{S_WAVE}, 1"); e(f"s_mul_i32 s{S_LDSB}, s{S_T0}, {LDS_SW}")
    nf = list(e.vmq)
    if "now" in o.exp: e("s_barrier")
    else: weight_dma(e, o)
    e.vmq = nf + ["w"] * o.NW if len(nf) + o.NW <= 60 else ["w"] * 60
    cur[0] = None
    st("s.wiss")
    e(f"v_lshlrev_b32 {vr(R.vlds)}, 4, v8")
    e(f"v_add_u32 {vr(R.vlds)}, s{S_LDSB}, {vr(R.vlds)}")
    attn_selectors(e, R, 8, 10)
    for idx, item in enumerate(loads[:o.NA_BAR]):
        if idx < o.NF: continue
        na = o.NA0 if idx < o.NA0N else o.NA
        e.vm_depth(na - 1)
        if idx == o.NF + max(o.NA, o.NA0):
            e(f"s_lshl_b32 s{S_T0}, s{S_WAVE}, 2"); e(f"s_add_u32 s{S_T0}, s{S_T0}, {WFLAG-4}")
            e(f"v_mov_b32 v20, s{S_T0}"); e("v_mov_b32 v21, 1")
            e.lg("ds_write_b32 v20, v21", "wf")
            st("s.wland")
        if idx == 60: st("s.k0iss")
        if idx == 90: st("s.v30")
        issue0(item)
    st("A_issued")
    e("s_barrier")
    st("bar1")
    if "nocw" in o.exp or "cw" in o.exp:
        e.vm_all(); st("s.alland"); st.flush(); e("s_endpgm")
    pend = [('0', it) for it in loads[o.NA_BAR:]]
    for T in range(16):
        for s in range(3): pend.append(('1', T, s))
    cur1 = [None]
    def issue_pend():
        it = pend.pop(0)
        if it[0] == '0': cur1[0] = None; issue0(it[1])
        else:
            _, T, s = it
            if cur1[0] != T:
                kv_soff(e, S_KV1, T); cur1[0] = T; cur[0] = None
            dma_k(e, R, 3 * T + s, s, ('K1', T, s), o)
    while pend[0][0] == '0': issue_pend()
    def Kf0(T, s): return slot_reg(k0slot(T, s))
    def Vf0(T, w):
        sl = v0slot(T, w)
        if sl < 118: return slot_reg(sl)
        return "v[32:35]" if w == 1 else "v[28:31]"
    def k_wait_A(T):
        if T == -1: e.vm_wait(('K0', SW_TILES - 1, 2))
    def pv_hook_A(T):
        left = SW_TILES - 1 - T
        target = max(o.NB, min(o.NA, 3 * left + o.NB))
        if T == SW_TILES - 2:
            e.vm_wait(('V0', SW_TILES - 1, 2))
            e.lg(f"ds_read_b128 v[32:35], {vr(R.vlds)} offset:{48*1024}", ("vo", 1))
            e.lg(f"ds_read_b128 v[28:31], {vr(R.vlds)} offset:{49*1024}", ("vo", 2))
            target = o.NB
        while pend and len(e.vmq) < target: issue_pend()
    def vwait_A(T, w):
        e.vm_wait(('V0', T, w))
        if T == SW_TILES - 1 and w >= 1: e.lg_wait(("vo", w))
    attn_pass(e, R, SW_TILES, 0, Kf0, Vf0, S_PB, 0, k_wait=k_wait_A, v_wait=vwait_A, pv_hook=pv_hook_A)
    st("A_done")
    e("s_barrier")
    while pend:
        e.vm_depth(o.NB - 1)
        issue_pend()
    st("B_issued")
    e("s_barrier")
    st("bar3")
    pend1 = []
    for T in range(16, SW_TILES):
        for s in range(3): pend1.append(('K', T, s))
    for T in range(SW_TILES):
        for w in range(3): pend1.append(('V', T, w))
    slot_of = {it: i for i, it in enumerate(pend1)}
    freed = [0]
    issued1 = [0]
    cur2 = [None]
    def issue1():
        it = pend1[issued1[0]]; kind, T, x = it
        if cur2[0] != (kind, T):
            kv_soff(e, S_KV1, T); cur2[0] = (kind, T)
        e.vm_depth(o.NC - 1)
        if kind == 'K': ld_k(e, R, slot_reg(slot_of[it]), x, ('K1', T, x), o)
        else: ld_v(e, R, slot_reg(slot_of[it]), x, ('V1', T, x), o)
        issued1[0] += 1
    def refill():
        while issued1[0] < len(pend1) and issued1[0] < freed[0]: issue1()
    def qk_hook_C1(T):
        freed[0] = 3 * (T + 1); refill()
    def pv_hook_C1(T):
        freed[0] = min(118, 60 + 3 * (T + 1)); refill(); ovf_hook_C(T)
    def ovf_hook_C(T):
        if T == SW_TILES - 2:
            e.lg(f"ds_read_b128 v[32:35], {vr(R.vlds)} offset:{48*1024}", ("vo", 1))
            e.lg(f"ds_read_b128 v[28:31], {vr(R.vlds)} offset:{49*1024}", ("vo", 2))
    def vwait_C1(T, w):
        if T == SW_TILES - 1 and w >= 1: e.lg_wait(("vo", w))
    e(f"s_add_u32 s{S_T2}, s{S_LDSB}, {48*1024}")
    attn_pass(e, R, SW_TILES, 0, Kf0, Vf0, S_T2, 32, qk_hook=qk_hook_C1, v_wait=vwait_C1, pv_hook=pv_hook_C1)
    refill()
    assert issued1[0] == len(pend1)
    st("C1_done")
    e("s_barrier")
    stage = [40 + 4 * (k - 64) for k in range(100, 112)]
    def Kf1(T, s):
        if T < 16: return ('lds', (3 * T + s) * 1024)
        return slot_reg(slot_of[('K', T, s)])
    def Vf1(T, w): return slot_reg(slot_of[('V', T, w)])
    def k_wait_C2(T):
        if T == -1: e.vm_wait(('K1', 15, 2))
        elif T >= 16: e.vm_wait(('K1', T, 2))
    def vwait_C2(T, w): e.vm_wait(('V1', T, w))
    attn_pass(e, R, SW_TILES, 1, Kf1, Vf1, S_PB, 0, k_wait=k_wait_C2, v_wait=vwait_C2, stage=stage)
    st("C2_done")
    e("s_barrier")
    e("s_barrier")
    st("bar7")
    attn_pass(e, R, SW_TILES, 1, Kf1, Vf1, S_PB, 0, stage=stage)
    st("E_done")
    e("s_barrier")
    st.flush()
    e("s_endpgm")

V_LANE, V_LG, V_R, V_PL, V_PG, V_PQ = 0, 4, 5, 6, 7, 8
V_BO, V_BX, V_BX8, V_BH, V_BH8, V_AS, V_AS8 = 9, 10, 11, 12, 13, 14, 15
V_XR, V_CSQ, V_CSG = 16, 20, 24
V_W8, V_WX, V_WH, V_ML = 28, 29, 30, 31
W0 = 32
V_SEL, V_R2, V_ST2, V_PS, V_PSQ, V_L16 = 75, 79, 80, 81, 82, 83
V_T = 84
V_GL, V_LL = 72, 73
CW_K, CW_V = 86, 134
S_N1 = 74

_off3 = (2, 6, 0)
def wq_frag(t, s): return ("a", 10 * t + _off3[s])
def wo_frag(t, s): return ("a", 120 + 24 * t + 4 * s)
def wd_frag(t, s):
    if s == 0: return ("a", 240 + 4 * t) if t < 4 else ("v", 182)
    return ("v", 186 + 2 * t)
def wg_frag(t, s): return ("v", 196 + 10 * t + _off3[s])
def wu_frag(t, s): return ("v", 226 + 10 * t + _off3[s])
def win(fr): return f"{fr[0]}[{fr[1]}:{fr[1]+3}]"

V_OOB = 74
def selmask(e, dst, val, mask, other=None):
    e(f"s_mov_b32 vcc_lo, 0x{mask & 0xffffffff:08x}"); e(f"s_mov_b32 vcc_hi, 0x{mask >> 32:08x}")
    if other is None: e(f"v_cndmask_b32 {vr(dst)}, v{V_OOB}, {vr(val)}, vcc")
    else:
        assert dst != val
        e(f"v_mov_b32 {vr(dst)}, 0x{other:08x}")
        e(f"v_cndmask_b32 {vr(dst)}, {vr(dst)}, {vr(val)}, vcc")

def rows_mask(live, n): return mask64([32 * r + g for r in live for g in range(n)])
def cols_mask(live, alist=range(4)): return mask64([16 * a + n for a in alist for n in live])

def instance_offsets(e, live, pub_live=None, q_live=None):
    pub_live = live if pub_live is None else pub_live
    q_live = pub_live if q_live is None else q_live
    t, u = V_T, V_T + 1
    e(f"v_and_b32 {vr(t)}, 31, v{V_LANE}"); e(f"v_lshlrev_b32 {vr(t)}, 4, {vr(t)}")
    e(f"v_lshrrev_b32 {vr(u)}, 5, v{V_LANE}"); e(f"v_lshl_add_u32 {vr(t)}, {vr(u)}, 9, {vr(t)}")
    selmask(e, V_LG, t, rows_mask(live, 20))
    selmask(e, V_R2, t, rows_mask(live, 24))
    e(f"v_and_b32 v{V_GL}, 7, v{V_LANE}"); e(f"v_lshlrev_b32 v{V_GL}, 10, v{V_GL}"); e(f"v_add_u32 v{V_GL}, {512*live[-1] + 19*16}, v{V_GL}")
    e(f"v_and_b32 v{V_LL}, 3, v{V_LANE}"); e(f"v_lshlrev_b32 v{V_LL}, 10, v{V_LL}"); e(f"v_add_u32 v{V_LL}, {512*live[-1] + 19*16}, v{V_LL}")
    e(f"v_and_b32 {vr(t)}, 7, v{V_LANE}"); e(f"v_lshlrev_b32 {vr(t)}, 10, {vr(t)}")
    e(f"v_lshl_add_u32 {vr(t)}, {vr(u)}, 9, {vr(t)}"); e(f"v_add_u32 {vr(t)}, 384, {vr(t)}")
    selmask(e, V_ST2, t, rows_mask(live, 32))
    e(f"v_and_b32 {vr(t)}, 15, v{V_LANE}"); e(f"v_lshrrev_b32 {vr(u)}, 4, v{V_LANE}")
    e(f"v_lshlrev_b32 v{V_PL}, 9, {vr(t)}")
    e(f"v_lshl_add_u32 v{V_PG}, {vr(u)}, 5, v{V_PL}")
    e(f"v_add_u32 v{V_PS}, 384, v{V_PL}")
    e(f"v_lshl_add_u32 v{V_PL}, {vr(u)}, 4, v{V_PL}")
    e(f"v_lshlrev_b32 v{V_PQ}, 18, {vr(t)}")
    e(f"v_add_u32 v{V_PSQ}, 768, v{V_PQ}")
    e(f"v_lshl_add_u32 v{V_PQ}, {vr(u)}, 4, v{V_PQ}")
    cm = cols_mask(pub_live)
    e(f"s_mov_b32 vcc_lo, 0x{cm & 0xffffffff:08x}"); e(f"s_mov_b32 vcc_hi, 0x{cm >> 32:08x}")
    for r in (V_PL, V_PG): e(f"v_cndmask_b32 v{r}, v{V_OOB}, v{r}, vcc")
    selmask(e, V_PS, V_PS, cols_mask(pub_live, [0]))
    selmask(e, V_PQ, V_PQ, cols_mask(q_live))
    selmask(e, V_PSQ, V_PSQ, cols_mask(q_live, [0]))

def soffs(e, off_sreg, const, two=True):
    e(f"s_add_u32 s{S_A}, s{off_sreg}, {const}")
    if two: e(f"s_add_u32 s{S_B}, s{S_A}, 4096")

def poll(e, o, loads, abort, sleep=0):
    lab = e.newlabel("poll")
    e(f"s_mov_b32 s{S_CNT}, {o.poll_limit}")
    e.label(lab)
    for d, vo, s, imm in loads:
        e(f"buffer_load_dwordx4 {vr(d,4)}, v{vo}, s[{SRD_WS}:{SRD_WS+3}], s{s} offen offset:{imm} sc1")
    e(f"s_sub_u32 s{S_CNT}, s{S_CNT}, 1")
    e(f"s_cbranch_scc1 {abort}")
    e("s_waitcnt vmcnt(0)")
    vals = []
    for d, _, _, _ in loads: vals += [d + 1, d + 3]
    t = V_T
    e(f"v_max3_u32 v{t}, v{vals[0]}, v{vals[1]}, v{vals[2]}")
    i = 3
    while i < len(vals):
        if i + 1 < len(vals): e(f"v_max3_u32 v{t}, v{t}, v{vals[i]}, v{vals[i+1]}"); i += 2
        else: e(f"v_max_u32 v{t}, v{t}, v{vals[i]}"); i += 1
    e(f"v_cmp_eq_u32 vcc, -1, v{t}")
    if sleep:
        ok = e.newlabel("pok"); e(f"s_cbranch_vccz {ok}"); e(f"s_sleep {sleep}"); e(f"s_branch {lab}"); e.label(ok)
    else: e(f"s_cbranch_vccnz {lab}")
    e.vmq = []

def gather8(e, o, vo, abort, extra=None, n=8, base=W0):
    loads = [(base + 4 * k, vo, S_A if k < 4 else S_B, (k % 4) * 1024) for k in range(n)]
    if extra: loads.append((base + 4 * n, extra, S_A, 0))
    poll(e, o, loads, abort)

def sum_loads(e, n, base=W0):
    step = 1
    while step < n:
        for k in range(0, n, 2 * step):
            if k + step < n:
                a, b = base + 4 * k, base + 4 * (k + step)
                e(f"v_pk_add_f32 {vr(a,2)}, {vr(a,2)}, {vr(b,2)}")
                e(f"v_pk_add_f32 {vr(a+2,2)}, {vr(a+2,2)}, {vr(b+2,2)}")
        step *= 2

def dpp8(e, reg, op):
    for m in ("quad_perm:[1,0,3,2]", "quad_perm:[2,3,0,1]", "row_half_mirror"):
        e(f"v_{op}_f32_dpp v{reg}, v{reg}, v{reg} {m} row_mask:0xf bank_mask:0xf")
def dpp8x2(e, r0, r1, op):
    for m in ("quad_perm:[1,0,3,2]", "quad_perm:[2,3,0,1]", "row_half_mirror"):
        e(f"v_{op}_f32_dpp v{r0}, v{r0}, v{r0} {m} row_mask:0xf bank_mask:0xf")
        e(f"v_{op}_f32_dpp v{r1}, v{r1}, v{r1} {m} row_mask:0xf bank_mask:0xf")

def ln_from_stats(e, s1, s2, mean, rstd):
    e(f"v_mul_f32 v{mean}, {lit(1/640)}, v{s1}")
    e(f"v_mul_f32 v{s2}, {lit(1/640)}, v{s2}")
    e(f"v_fma_f32 v{s2}, -v{mean}, v{mean}, v{s2}")
    e(f"v_max_f32 v{s2}, 0, v{s2}")
    e(f"v_add_f32 v{s2}, {lit(EPS)}, v{s2}")
    e(f"v_rsq_f32 v{rstd}, v{s2}")

def pub(e, D, vo, sreg, imm, fl, tag):
    e.vm(f"buffer_store_dwordx4 {vr(D,4)}, v{vo}, s[{SRD_WS}:{SRD_WS+3}], s{sreg} offen offset:{imm} {fl}", tag)

def run_tiles(e, tiles, accs, store, btags=None, twait=None):
    n = len(accs); lag = n - 1
    for i, (tid, steps) in enumerate(tiles):
        D = vr(accs[i % n], 4)
        if twait and tid in twait: e.lg_wait(twait[tid])
        for s, (A, B) in enumerate(steps):
            if i == 0 and btags: e.lg_wait(btags[s])
            e(f"v_mfma_f32_16x16x32_bf16 {D}, {A}, {B}, {'0' if s == 0 else D}")
        if i >= lag: store(tiles[i - lag][0], accs[(i - lag) % n])
    for i in range(max(0, len(tiles) - lag), len(tiles)): store(tiles[i][0], accs[i % n])

def read_bx(e, B):
    e.lg(f"ds_read_b128 {vr(B,4)}, v{V_BX}", "b0"); e.lg(f"ds_read_b128 {vr(B+4,4)}, v{V_BX} offset:64", "b1")
    e.lg(f"ds_read_b64 {vr(B+8,2)}, v{V_BX8}", "b2")
    e(f"v_mov_b32 v{B+10}, 0"); e(f"v_mov_b32 v{B+11}, 0")
def read_as(e, A):
    e.lg(f"ds_read_b128 {vr(A,4)}, v{V_AS}", "a0"); e.lg(f"ds_read_b128 {vr(A+4,4)}, v{V_AS} offset:64", "a1")
    e.lg(f"ds_read_b64 {vr(A+8,2)}, v{V_AS8}", "a2")
    e(f"v_mov_b32 v{A+10}, 0"); e(f"v_mov_b32 v{A+11}, 0")

def stage_Q(e, fl, reg_index, shadow=None):
    B, A = W0 + 8, W0 + 20
    read_bx(e, B); read_as(e, A)
    e(f"s_add_u32 s{S_A}, s{S_ROWN}, {reg_index*RG}")
    if shadow: shadow()
    tiles = [(t, [(win(wq_frag(t, s)), vr(B + 4 * s, 4)) for s in range(3)]) for t in range(12)]
    tiles.insert(1, (12, [(vr(A + 4 * s, 4), vr(B + 4 * s, 4)) for s in range(3)]))
    SD = W0 + 4
    def store(t, D): pub(e, D, V_PQ, S_A, 64 * t, fl, ("pq", t))
    first, stats, rest = tiles[0], tiles[1], tiles[2:]
    run_tiles(e, [first], [W0 + 32, W0 + 36], lambda t, D: None, btags=["b0", "b1", "b2"])
    e.lg_wait("a2")
    for s, (Aop, Bop) in enumerate(stats[1]):
        e(f"v_mfma_f32_16x16x32_bf16 {vr(SD,4)}, {Aop}, {Bop}, {'0' if s == 0 else vr(SD,4)}")
    accs = [W0 + 36, W0, W0 + 20, W0 + 32]
    pend = [(0, W0 + 32)]
    for i, (t, steps) in enumerate(rest):
        D = accs[i % 4]
        for s, (Aop, Bop) in enumerate(steps):
            e(f"v_mfma_f32_16x16x32_bf16 {vr(D,4)}, {Aop}, {Bop}, {'0' if s == 0 else vr(D,4)}")
        pend.append((t, D))
        if i >= 2: store(*pend.pop(0))
    e(f"v_cndmask_b32 v{SD+1}, v{SD+1}, v{SD+2}, s[{S_N1}:{S_N1+1}]")
    while pend: store(*pend.pop(0))
    pub(e, SD, V_PSQ, S_A, 0, fl, "pqs")

def stage_GU(e, fl, const, with_stats=True, shadow=None):
    B, A = W0 + 8, W0 + 20
    read_bx(e, B)
    if with_stats: read_as(e, A)
    e(f"s_add_u32 s{S_A}, s{S_ROWN}, {const}" if const >= 0 else f"s_sub_u32 s{S_A}, s{S_ROWN}, {-const}")
    if shadow: shadow()
    def tile(d, f, waits=None):
        d = vr(d, 4)
        for s in range(3):
            if waits: e.lg_wait(waits[s])
            e(f"v_mfma_f32_16x16x32_bf16 {d}, {f(s)}, {vr(B+4*s,4)}, {'0' if s == 0 else d}")
    def store(t, G, U):
        e(f"v_swap_b32 v{G+2}, v{U}"); e(f"v_swap_b32 v{G+3}, v{U+1}")
        pub(e, G, V_PG, S_A, 128 * t, fl, ("pg", t, 0))
        pub(e, U, V_PG, S_A, 128 * t + 16, fl, ("pg", t, 1))
    g = lambda t: (lambda s: win(wg_frag(t, s)))
    u = lambda t: (lambda s: win(wu_frag(t, s)))
    P0, P1, S = (W0 + 32, W0 + 36), (W0 + 20, W0 + 24), W0
    tile(P0[0], g(0), waits=["b0", "b1", "b2"]); tile(P0[1], u(0))
    if with_stats:
        e.lg_wait("a2")
        tile(S, lambda s: vr(A + 4 * s, 4))
    tile(P1[0], g(1)); tile(P1[1], u(1))
    store(0, *P0)
    if with_stats: e(f"v_cndmask_b32 v{S+1}, v{S+1}, v{S+2}, s[{S_N1}:{S_N1+1}]")
    tile(P0[0], g(2)); tile(P0[1], u(2))
    store(1, *P1)
    store(2, *P0)
    if with_stats: pub(e, S, V_PS, S_A, 0, fl, "pgs")

def stage_WO(e, fl, region):
    B = W0
    for s in range(6): e.lg(f"ds_read_b128 {vr(B+4*s,4)}, v{V_BO} offset:{64*s}", ("o", s))
    e(f"s_add_u32 s{S_A}, s{S_LOWN}, {region*RG}")
    tiles = [(t, [(win(wo_frag(t, s)), vr(B+4*s,4)) for s in range(6)]) for t in range(5)]
    run_tiles(e, tiles, [W0 + 24, W0 + 28, W0 + 32], lambda t, D: pub(e, D, V_PL, S_A, 64 * t, fl, ("po", t)), btags=[("o", s) for s in range(6)])

def stage_D(e, fl, region):
    B = W0
    e.lg(f"ds_read_b128 {vr(B,4)}, v{V_BH}", "h0"); e.lg(f"ds_read_b64 {vr(B+4,2)}, v{V_BH8}", "h1")
    e(f"v_mov_b32 v{B+6}, 0"); e(f"v_mov_b32 v{B+7}, 0")
    e(f"s_add_u32 s{S_A}, s{S_LOWN}, {region*RG}")
    tiles = [(t, [(win(wd_frag(t, 0)), vr(B,4)), (win(wd_frag(t, 1)), vr(B+4,4))]) for t in range(5)]
    run_tiles(e, tiles, [W0 + 8 + 4 * i for i in range(5)], lambda t, D: pub(e, D, V_PL, S_A, 64 * t, fl, ("pd", t)), btags=["h0", "h1"])

def fast_gather(e, o, loads, body, abort, pre=0, early=False):
    n = len(loads); t = V_T
    lab = e.newlabel("fpoll")
    e(f"s_mov_b32 s{S_CNT}, {o.poll_limit}")
    if pre: e(f"s_sleep {pre}")
    e.label(lab)
    for d, vo, s, imm in loads:
        e(f"buffer_load_dwordx4 {vr(d,4)}, v{vo}, s[{SRD_WS}:{SRD_WS+3}], s{s} offen offset:{imm} sc1")
    e(f"s_sub_u32 s{S_CNT}, s{S_CNT}, 1")
    e(f"s_cbranch_scc1 {abort}")
    first = [True]
    if early:
        d = loads[0][0]
        e(f"s_waitcnt vmcnt({n-1})")
        e(f"v_max_u32 v{t}, v{d+1}, v{d+3}")
        e(f"v_cmp_eq_u32 vcc, -1, v{t}")
        e(f"s_cbranch_vccnz {lab}")
        first[0] = False
    def wait(k): e(f"s_waitcnt vmcnt({n-1-k})")
    def chk(k):
        d = loads[k][0]
        if first[0]: e(f"v_max_u32 v{t}, v{d+1}, v{d+3}"); first[0] = False
        else: e(f"v_max3_u32 v{t}, v{t}, v{d+1}, v{d+3}")
    body(wait, chk)
    e(f"v_cmp_eq_u32 vcc, -1, v{t}")
    e(f"s_cbranch_vccnz {lab}")
    e.vmq = []

def padd(e, a, b, neg=False):
    m = " neg_lo:[0,1] neg_hi:[0,1]" if neg else ""
    e(f"v_pk_add_f32 {vr(a,2)}, {vr(a,2)}, {vr(b,2)}{m}"); e(f"v_pk_add_f32 {vr(a+2,2)}, {vr(a+2,2)}, {vr(b+2,2)}{m}")

def g_soffs(e, off_sreg, const, two=True):
    e(f"s_add_u32 s{S_GA}, s{off_sreg}, {const}")
    if two: e(f"s_add_u32 s{S_GB}, s{S_GA}, 4096")
def g_loads(vo, n=8, base=W0): return [(base + 4 * k, vo, S_GA if k < 4 else S_GB, (k % 4) * 1024) for k in range(n)]

def hop_LG(e, o, inst, k, abort, final_only=False):
    skip = e.newlabel("notleader")
    e(f"s_cmp_lg_u32 s{S_HQ}, 0"); e(f"s_cbranch_scc1 {skip}")
    g_soffs(e, S_LGRP, L_REG(inst, k) * RG, two=False)
    e(f"s_add_u32 s{S_A}, s{S_GOWN}, {G_OFF(inst,k)}")
    X = W0 + 32
    off = 1 if o.early else 0
    def body4(wait, chk):
        wait(off + 1); chk(off); chk(off + 1); padd(e, W0, W0 + 4)
        wait(off + 2); chk(off + 2); padd(e, W0, W0 + 8)
        wait(off + 3); chk(off + 3); padd(e, W0, W0 + 12)
    fast_gather(e, o, ([(X, V_LL, S_GA, 0)] if o.early else []) + g_loads(V_LG, 4), body4, abort, pre=o.preL, early=o.early)
    e(f"buffer_store_dwordx4 {vr(W0,4)}, v{V_LG}, s[{SRD_WS}:{SRD_WS+3}], s{S_A} offen sc1")
    e.label(skip)
    if final_only:
        e(f"s_cmp_lg_u32 s{S_H}, 0"); e(f"s_cbranch_scc1 L_done")
    g_soffs(e, S_GGRP, G_OFF(inst, k))
    e.vmq = []
    def body8(wait, chk):
        c = lambda k: chk(off + k)
        w = lambda k: wait(off + k)
        w(1); c(0); c(1); padd(e, W0, V_XR); padd(e, W0, W0 + 4)
        w(3); c(2); c(3); padd(e, W0 + 8, W0 + 12); padd(e, W0, W0 + 8)
        w(5); c(4); c(5); padd(e, W0 + 16, W0 + 20); padd(e, W0, W0 + 16)
        w(6); c(6); padd(e, W0, W0 + 24)
        w(7); c(7); padd(e, W0, W0 + 28)
    fast_gather(e, o, ([(X, V_GL, S_GA, 0)] if o.early else []) + g_loads(V_LG, 8), body8, abort, pre=o.preG, early=o.early)

def residual_update(e):
    e(f"v_cvt_pk_bf16_f32 v{W0+4}, v{W0}, v{W0+1}")
    e(f"v_cvt_pk_bf16_f32 v{W0+5}, v{W0+2}, v{W0+3}")
    e.lg(f"ds_write_b64 v{V_WX}, {vr(W0+4,2)}", "wx")
def residual_unpack(e, p):
    e(f"v_lshlrev_b32 v{V_XR}, 16, v{p}"); e(f"v_and_b32 v{V_XR+1}, 0xffff0000, v{p}")
    e(f"v_lshlrev_b32 v{V_XR+2}, 16, v{p+1}"); e(f"v_and_b32 v{V_XR+3}, 0xffff0000, v{p+1}")

def store_out(e, row):
    skip = e.newlabel("noout")
    e(f"s_cmp_lg_u32 s{S_H}, 0"); e(f"s_cbranch_scc1 {skip}")
    make_srd(e, SRD_T, S_OUT, 2560)
    e(f"v_and_b32 v{V_T}, 31, v{V_LANE}"); e(f"v_lshlrev_b32 v{V_T}, 3, v{V_T}")
    e(f"s_mul_i32 s{S_T0}, s{S_J}, 160"); e(f"s_add_u32 s{S_T0}, s{S_T0}, {row*1280}")
    selmask(e, V_T, V_T, rows_mask([row], 20))
    e(f"buffer_store_dwordx2 {vr(W0+4,2)}, v{V_T}, s[{SRD_T}:{SRD_T+3}], s{S_T0} offen")
    e.label(skip)

def combine_publish(e, fl, parts, mlbase, region):
    T = W0
    e(f"v_mov_b32 v{V_T}, {mlbase}")
    e.lg(f"ds_read_b128 {vr(T,4)}, v{V_T}", "ml0"); e.lg(f"ds_read_b128 {vr(T+4,4)}, v{V_T} offset:16", "ml1")
    P = T + 8
    cur = None
    for w in range(4):
        if cur is None or not (0 <= parts[w] - cur < 60000):
            e(f"v_add_u32 v{V_T+1}, {parts[w]}, v{V_L16}"); cur = parts[w]
        for par in range(2):
            e.lg(f"ds_read_b128 {vr(P+8*w+4*par,4)}, v{V_T+1} offset:{parts[w] - cur + 768*par}", ("p", w, par))
    e(f"s_add_u32 s{S_A}, s{S_ROWN}, {region*RG}")
    e.lg_wait("ml1")
    m = [T, T + 2, T + 4, T + 6]; l = [T + 1, T + 3, T + 5, T + 7]
    M, Ls = V_T, V_T + 1
    e(f"v_max3_f32 v{M}, v{m[0]}, v{m[1]}, v{m[2]}"); e(f"v_max_f32 v{M}, v{M}, v{m[3]}")
    for w in range(4): e(f"v_sub_f32 v{m[w]}, v{m[w]}, v{M}")
    for w in range(4): e(f"v_exp_f32 v{m[w]}, v{m[w]}")
    e(f"v_mul_f32 v{Ls}, v{m[0]}, v{l[0]}")
    for w in range(1, 4): e(f"v_fma_f32 v{Ls}, v{m[w]}, v{l[w]}, v{Ls}")
    for w in range(4):
        e.lg_wait(("p", w, 1))
        a = P + 8 * w
        e(f"v_pk_add_f32 {vr(a,2)}, {vr(a,2)}, {vr(a+4,2)}"); e(f"v_pk_add_f32 {vr(a+2,2)}, {vr(a+2,2)}, {vr(a+6,2)}")
        for r in range(4):
            if w == 0: e(f"v_mul_f32 v{P+r}, v{m[0]}, v{P+r}")
            else: e(f"v_fmac_f32 v{P+r}, v{m[w]}, v{a+r}")
    e(f"s_mov_b32 vcc_lo, 0"); e(f"s_mov_b32 vcc_hi, 0x00010000")
    e(f"v_cndmask_b32 v{P}, v{P}, v{M}, vcc"); e(f"v_cndmask_b32 v{P+1}, v{P+1}, v{Ls}, vcc")
    pub(e, P, V_R, S_A, 0, fl, "r1")

SW8 = [4, 6, 8, 10, 12, 16, 18, 20]
def hop_R1(e, o, region, row, abort):
    g_soffs(e, S_RGRP, region * RG)
    X = W0 + 32
    M, wv = X + 2, X + 3
    acc = W0 + 36
    loads = [(X, V_ML, S_GA, 0)] + g_loads(V_R)
    def body(wait, chk):
        if not o.early: wait(0); chk(0)
        e(f"v_mov_b32 v{M}, v{X}")
        dpp8(e, M, "max")
        e(f"v_sub_f32 v{wv}, v{X}, v{M}"); e(f"v_exp_f32 v{wv}, v{wv}")
        wait(4); chk(1); chk(2)
        e(f"v_mul_f32 v{X+1}, v{wv}, v{X+1}")
        chk(3); chk(4)
        e(f"v_add_f32_dpp v{X+1}, v{X+1}, v{X+1} quad_perm:[1,0,3,2] row_mask:0xf bank_mask:0xf")
        wait(8); chk(5); chk(6)
        e(f"v_add_f32_dpp v{X+1}, v{X+1}, v{X+1} quad_perm:[2,3,0,1] row_mask:0xf bank_mask:0xf")
        chk(7); chk(8)
        e(f"v_add_f32_dpp v{X+1}, v{X+1}, v{X+1} row_half_mirror row_mask:0xf bank_mask:0xf")
        e(f"v_rcp_f32 v{X+1}, v{X+1}")
        e(f"v_mul_f32 v{wv}, v{wv}, v{X+1}")
        for k in range(8): e(f"v_readlane_b32 s{SW8[k]}, v{wv}, {k}")
        for k in range(8):
            for h in range(2):
                a, m = acc + 2 * h, W0 + 4 * k + 2 * h
                sp = f"s[{SW8[k]}:{SW8[k]+1}]"
                if k == 0: e(f"v_pk_mul_f32 {vr(a,2)}, {vr(m,2)}, {sp} op_sel_hi:[1,0]")
                else: e(f"v_pk_fma_f32 {vr(a,2)}, {vr(m,2)}, {sp}, {vr(a,2)} op_sel_hi:[1,0,1]")
    fast_gather(e, o, loads, body, abort, pre=o.preR, early=o.early)
    e(f"v_cvt_pk_bf16_f32 v{acc}, v{acc}, v{acc+1}"); e(f"v_cvt_pk_bf16_f32 v{acc+1}, v{acc+2}, v{acc+3}")
    e.lg(f"ds_write_b64 v{V_W8}, {vr(acc,2)} offset:{ACT_O - SB + 384*row}", "wo")

def ln_gather(e, o, vo, vstat, cs, abort):
    X = W0 + 32; mean, rstd = X + 2, X + 3; T = W0 + 36
    loads = [(X, vstat, S_GA, 0)] + g_loads(vo)
    q = lambda r, m: e(f"v_add_f32_dpp v{r}, v{r}, v{r} {m} row_mask:0xf bank_mask:0xf")
    def body(wait, chk):
        if not o.early: wait(0); chk(0)
        q(X, "quad_perm:[1,0,3,2]"); q(X + 1, "quad_perm:[1,0,3,2]")
        wait(2); chk(1)
        q(X, "quad_perm:[2,3,0,1]"); q(X + 1, "quad_perm:[2,3,0,1]")
        chk(2)
        q(X, "row_half_mirror"); q(X + 1, "row_half_mirror")
        padd(e, W0, W0 + 4)
        e(f"v_mul_f32 v{mean}, {lit(1/640)}, v{X}"); e(f"v_mul_f32 v{X+1}, {lit(1/640)}, v{X+1}")
        wait(4); chk(3); chk(4)
        e(f"v_fma_f32 v{X+1}, -v{mean}, v{mean}, v{X+1}")
        padd(e, W0 + 8, W0 + 12)
        e(f"v_max_f32 v{X+1}, 0, v{X+1}"); e(f"v_add_f32 v{X+1}, {lit(EPS)}, v{X+1}")
        padd(e, W0, W0 + 8)
        e(f"v_rsq_f32 v{rstd}, v{X+1}")
        wait(6); chk(5); chk(6)
        e(f"v_pk_mul_f32 {vr(T,2)}, {vr(cs,2)}, {vr(mean,2)} op_sel_hi:[1,0]"); e(f"v_pk_mul_f32 {vr(T+2,2)}, {vr(cs+2,2)}, {vr(mean,2)} op_sel_hi:[1,0]")
        padd(e, W0 + 16, W0 + 20); padd(e, W0, T, neg=True); padd(e, W0, W0 + 16)
        wait(7); chk(7); padd(e, W0, W0 + 24)
        wait(8); chk(8); padd(e, W0, W0 + 28)
    fast_gather(e, o, loads, body, abort, pre=o.preR, early=o.early)
    e(f"v_pk_mul_f32 {vr(W0,2)}, {vr(W0,2)}, {vr(mean,2)} op_sel:[0,1] op_sel_hi:[1,1]")
    e(f"v_pk_mul_f32 {vr(W0+2,2)}, {vr(W0+2,2)}, {vr(mean,2)} op_sel:[0,1] op_sel_hi:[1,1]")

def hop_R2(e, o, inst, abort):
    ln_gather(e, o, V_R2, V_ST2, V_CSG, abort)
    e(f"v_max_f32 v{W0}, 0, v{W0}"); e(f"v_max_f32 v{W0+1}, 0, v{W0+1}")
    e(f"v_pk_mul_f32 {vr(W0,2)}, {vr(W0,2)}, {vr(W0+2,2)}")
    e(f"v_cvt_pk_bf16_f32 v{W0}, v{W0}, v{W0+1}")
    e.lg(f"ds_write_b32 v{V_WH}, v{W0}", "wh")

def q_consume(e, base, X, row):
    dpp8x2(e, X, X + 1, "add")
    sum_loads(e, 8, base)
    mean, rstd = X + 2, X + 3
    ln_from_stats(e, X, X + 1, mean, rstd)
    for r in range(4): e(f"v_fma_f32 v{base+r}, -v{mean}, v{V_CSQ+r}, v{base+r}")
    for r in range(4): e(f"v_mul_f32 v{base+r}, v{rstd}, v{base+r}")
    e(f"v_cvt_pk_bf16_f32 v{base}, v{base}, v{base+1}"); e(f"v_cvt_pk_bf16_f32 v{base+1}, v{base+2}, v{base+3}")
    e.lg(f"ds_write_b64 v{V_W8}, {vr(base,2)} offset:{QARR - SB + 384*row}", "wq")

def hop_R3(e, o, region, row, abort):
    ln_gather(e, o, V_R, V_ML, V_CSQ, abort)
    e(f"v_cvt_pk_bf16_f32 v{W0}, v{W0}, v{W0+1}"); e(f"v_cvt_pk_bf16_f32 v{W0+1}, v{W0+2}, v{W0+3}")
    e.lg(f"ds_write_b64 v{V_W8}, {vr(W0,2)} offset:{QARR - SB + 384*row}", "wq")

def chain(e, o, fl, inst, live, abort, st):
    c = f"c{inst}."
    st.rounds(f"n{inst}.R1")
    st(c + "R1")
    stage_WO(e, fl, L_REG(inst, 0))
    st(c + "WO")
    hop_LG(e, o, inst, 0, abort)
    st.rounds(f"n{inst}.G1")
    st(c + "G1")
    residual_update(e)
    def sh_gu():
        residual_unpack(e, W0 + 4); g_soffs(e, S_RGRP, R2_REG[inst] * RG)
    stage_GU(e, fl, R2_REG[inst] * RG, shadow=sh_gu)
    st(c + "GU")
    hop_R2(e, o, inst, abort)
    st.rounds(f"n{inst}.R2")
    st(c + "R2")
    stage_D(e, fl, L_REG(inst, 1))
    st(c + "D")
    hop_LG(e, o, inst, 1, abort, final_only=(inst == 2))
    st.rounds(f"n{inst}.G2")
    st(c + "G2")
    if inst == 2:
        e(f"v_cvt_pk_bf16_f32 v{W0+4}, v{W0}, v{W0+1}"); e(f"v_cvt_pk_bf16_f32 v{W0+5}, v{W0+2}, v{W0+3}")
        store_out(e, 1)
        e("s_cmp_lg_u32 s2, 0"); e("s_cbranch_scc1 L_done")
        e(f"v_mov_b32 v{V_T}, s{S_TAG}"); e(f"v_mov_b32 v{V_T+1}, {EPOCH_OFF}")
        e("s_mov_b64 exec, 1")
        e(f"buffer_store_dword v{V_T}, v{V_T+1}, s[{SRD_WS}:{SRD_WS+3}], 0 offen sc1")
        e("s_mov_b64 exec, -1")
        return
    residual_update(e)
    qrow = 0 if inst == 0 else 1
    def sh_q():
        residual_unpack(e, W0 + 4); g_soffs(e, S_RGRP, R3_REG[inst] * RG)
        if inst == 1:
            store_out(e, 0)
            cm = cols_mask([1]); e(f"s_mov_b32 vcc_lo, 0x{cm & 0xffffffff:08x}"); e(f"s_mov_b32 vcc_hi, 0x{cm >> 32:08x}")
            e(f"v_cndmask_b32 v{V_PQ}, v{V_OOB}, v{V_PQ}, vcc"); e(f"v_cndmask_b32 v{V_PSQ}, v{V_OOB}, v{V_PSQ}, vcc")
    stage_Q(e, fl, R3_REG[inst] - qrow, shadow=sh_q)
    st(c + "Q")
    hop_R3(e, o, R3_REG[inst], qrow, abort)
    e.lg_all()
    st.rounds(f"n{inst}.R3")
    st(c + "R3")

TOK1 = 21 * RG
TOK2 = TOK1 + 32768
EPOCH_OFF = 896
S_TAG = 73

def emit_resets(e, f):
    e(f"v_mov_b32 v{W0}, -1"); e(f"v_mov_b32 v{W0+1}, -1"); e(f"v_mov_b32 v{W0+2}, -1"); e(f"v_mov_b32 v{W0+3}, -1")
    def reset(vo, sreg, const):
        e(f"s_add_u32 s{S_A}, s{sreg}, {const}")
        e.vm(f"buffer_store_dwordx4 {vr(W0,4)}, v{vo}, s[{SRD_WS}:{SRD_WS+3}], s{S_A} offen {f}", "rst")
    e(f"v_and_b32 v{V_T}, 31, v{V_LANE}"); e(f"v_lshlrev_b32 v{V_T}, 4, v{V_T}")
    e(f"v_lshrrev_b32 v{V_T+1}, 5, v{V_LANE}"); e(f"v_lshl_add_u32 v{V_T}, v{V_T+1}, 9, v{V_T}")
    liv = {0: [0], 1: [0, 1], 2: [1], 'P': [0]}
    skip = e.newlabel("norstg")
    e(f"s_cmp_lg_u32 s{S_HQ}, 0"); e(f"s_cbranch_scc1 {skip}")
    for inst in (0, 1, 2):
        selmask(e, W0 + 4, V_T, rows_mask(liv[inst], 20))
        for k in range(2):
            e(f"s_add_u32 s{S_A}, s{S_GOWN}, {G_OFF(inst,k)}")
            e(f"buffer_store_dwordx4 {vr(W0,4)}, v{W0+4}, s[{SRD_WS}:{SRD_WS+3}], s{S_A} offen sc1")
    e.label(skip)
    for r in [4, 5, 6]: reset(V_R, S_ROWN, r * RG)
    selmask(e, W0 + 4, V_T, rows_mask(liv['P'], 24))
    reset(W0 + 4, S_ROWN, R2_REG['P'] * RG)
    for r in [7, 8] + list(R1_REG.values()): reset(V_R, S_ROWN, r * RG)
    for inst in (0, 1, 2):
        selmask(e, W0 + 4, V_T, rows_mask(liv[inst], 25))
        reset(W0 + 4, S_ROWN, R2_REG[inst] * RG)
        selmask(e, W0 + 4, V_T, rows_mask(liv[inst], 20))
        for k in range(2): reset(W0 + 4, S_LOWN, L_REG(inst, k) * RG)

def token_store(e, base, second):
    e(f"s_lshl_b32 s{S_A}, s2, 7"); e(f"s_add_u32 s{S_A}, s{S_A}, {base}")
    e(f"v_mov_b32 v{W0+40}, s{S_TAG}"); e(f"v_mov_b32 v{W0+41}, {second}"); e(f"v_mov_b32 v{V_T}, 0")
    e("s_mov_b64 exec, 1")
    e.vm(f"buffer_store_dwordx2 {vr(W0+40,2)}, v{V_T}, s[{SRD_WS}:{SRD_WS+3}], s{S_A} offen sc1", "tok")
    e("s_mov_b64 exec, -1")

def token_gather(e, o, base, vo, mask, sleep=0):
    lab = e.newlabel("tok")
    e(f"s_mov_b32 s{S_A}, {base}")
    set_exec(e, mask)
    e(f"s_mov_b32 s{S_CNT}, {o.poll_limit}")
    e.label(lab)
    e(f"buffer_load_dwordx2 {vr(W0,2)}, v{vo}, s[{SRD_WS}:{SRD_WS+3}], s{S_A} offen sc1")
    e(f"s_sub_u32 s{S_CNT}, s{S_CNT}, 1"); e(f"s_cbranch_scc1 L_abort")
    e("s_waitcnt vmcnt(0)")
    e(f"v_cmp_ne_u32 vcc, s{S_TAG}, v{W0}")
    if sleep:
        ok = e.newlabel("tokok"); e(f"s_cbranch_vccz {ok}"); e(f"s_sleep {sleep}"); e(f"s_branch {lab}"); e.label(ok)
    else: e(f"s_cbranch_vccnz {lab}")
    e.vmq = []

def tr_block(e, items):
    i, g, r, c, t = W0, W0 + 1, W0 + 2, W0 + 3, W0 + 4
    a32, a16 = W0 + 6, W0 + 7
    def tr_setup():
        e(f"v_and_b32 v{i}, 15, v{V_LANE}"); e(f"v_lshrrev_b32 v{g}, 4, v{V_LANE}")
        e(f"v_lshrrev_b32 v{r}, 2, v{i}"); e(f"v_and_b32 v{c}, 3, v{i}")
    def trbase(dst, stride, rows_per_g, base):
        e(f"v_mul_u32_u24 v{t}, {rows_per_g}, v{g}"); e(f"v_add_u32 v{t}, v{t}, v{r}")
        e(f"v_mul_u32_u24 v{t}, {stride}, v{t}"); e(f"v_lshl_add_u32 v{dst}, v{c}, 3, v{t}")
        if base: e(f"v_add_u32 v{dst}, {base}, v{dst}")
    def tr(frag, addr, off, k16, stride):
        f, lo = frag
        e.lg(f"ds_read_b64_tr_b16 {f}[{lo}:{lo+1}], v{addr} offset:{off}", "tr")
        if not k16: e.lg(f"ds_read_b64_tr_b16 {f}[{lo+2}:{lo+3}], v{addr} offset:{off+4*stride}", "tr")
        if len(e.lgq) >= 12: e.lg_wait_n(4)
    if True:
        tr_setup()
        for frag, nt, stride, base, ks in items:
            trbase(a32, stride, 8, base); trbase(a16, stride, 4, base)
            nk = len(ks)
            for tt in range(nt):
                for s, k0 in enumerate(ks):
                    k16 = (frag is not wo_frag) and s == nk - 1
                    tr(frag(tt, s), a16 if k16 else a32, k0 * stride + 32 * tt, k16, stride)
        e.lg_all()

def prologue_weights(e, o, st):
    abort = "L_abort"
    e(f"v_mov_b32 v{W0+2}, 0x3f803f80"); e(f"v_mov_b32 v{W0+3}, 0x3f803f80")
    e(f"v_lshlrev_b32 v{W0+4}, 3, v{V_LANE}"); e(f"v_add_u32 v{W0+4}, {ACT_X+384}, v{W0+4}")
    set_exec(e, mask64(range(24)))
    e.lg(f"ds_write_b64 v{W0+4}, {vr(W0+2,2)}", "ones")
    e("s_mov_b64 exec, -1")
    e.lg(f"ds_write_b64 v{V_WX}, {vr(V_XR,2)}", "wx")
    e(f"v_lshlrev_b32 v{V_XR+2}, 16, v{V_XR+1}"); e(f"v_and_b32 v{V_XR+3}, 0xffff0000, v{V_XR+1}")
    e(f"v_and_b32 v{V_XR+1}, 0xffff0000, v{V_XR}"); e(f"v_lshlrev_b32 v{V_XR}, 16, v{V_XR}")
    e.lg_all()
    lab = e.newlabel("wflag")
    e(f"v_mov_b32 v{V_T+1}, {WFLAG}")
    e(f"s_mov_b32 s{S_CNT}, {o.poll_limit*8}")
    e.label(lab)
    e(f"ds_read_b96 {vr(W0,3)}, v{V_T+1}")
    e(f"s_sub_u32 s{S_CNT}, s{S_CNT}, 1"); e(f"s_cbranch_scc1 {abort}")
    e("s_waitcnt lgkmcnt(0)")
    e(f"v_and_b32 v{W0}, v{W0}, v{W0+1}"); e(f"v_and_b32 v{W0}, v{W0}, v{W0+2}")
    e(f"v_cmp_ne_u32 vcc, 1, v{W0}")
    e(f"s_cbranch_vccnz {lab}")
    st("p.wland")
    tr_block(e, [(wq_frag, 12, 384, ST_WQ, (0, 32, 64)), (wg_frag, 3, 96, ST_WG, (0, 32, 64)), (wu_frag, 3, 96, ST_WU, (0, 32, 64))])
    st("p.weights")

def chain_wave(e, o, st, local):
    fl = "" if local else "sc1"
    abort = "L_abort"
    R = NS(vlds=V_L16, voffK=1, voffX=2, voffY=3, sel=V_SEL, qA=32, D=44, sc=56, tmp=57, vpw=62, acc=32, A=44, pp=52, vpp=63, vm=60, vl=61)
    emit_resets(e, fl)
    st("reset")
    prologue_weights(e, o, st)
    instance_offsets(e, [0, 1], pub_live=[2], q_live=[0, 1, 2])
    stage_Q(e, fl, R3_REG['P'])
    stage_GU(e, fl, R2_REG['P'] * RG - 1024, with_stats=False)
    e.vm_wait("rst")
    token_store(e, TOK2, 0)
    st("p.tok2")
    tr_block(e, [(wo_frag, 5, 160, ST_WO, (0, 32, 64, 96, 128, 160)), (wd_frag, 5, 160, ST_WD, (0, 32))])
    L = V_LANE; t, u = W0 + 2, W0 + 3
    e(f"v_and_b32 v{t}, 7, v{L}"); e(f"v_lshlrev_b32 v{u}, 3, v{t}")
    e(f"s_lshl_b32 s{S_T0}, s{S_HQ}, 6"); e(f"s_add_u32 s{S_T0}, s{S_T0}, s{S_XC}"); e(f"v_add_u32 v{W0+4}, s{S_T0}, v{u}")
    e(f"v_lshlrev_b32 v{u}, 6, v{t}")
    e(f"s_lshl_b32 s{S_T1}, s{S_J}, 3"); e(f"s_add_u32 s{S_T0}, s{S_T1}, s{S_XC}"); e(f"v_add_u32 v{W0+5}, s{S_T0}, v{u}")
    e(f"v_add_u32 v{W0+6}, s{S_T1}, v{t}")
    e("s_mov_b32 vcc_lo, 0x00000f00"); e("s_mov_b32 vcc_hi, 0"); e(f"v_cndmask_b32 v{W0+4}, v{W0+4}, v{W0+5}, vcc")
    e("s_mov_b32 vcc_lo, 0x00ff0000"); e(f"v_cndmask_b32 v{W0+4}, v{W0+4}, v{W0+6}, vcc")
    e(f"v_lshlrev_b32 v{W0+4}, 7, v{W0+4}")
    token_gather(e, o, TOK2, W0 + 4, 0x00ff0fff, sleep=o.t_sleep)
    e("s_mov_b64 exec, -1")
    st("p.tok2g")
    GA = CW_K
    e(f"v_and_b32 v{V_T}, 31, v{V_LANE}"); e(f"v_lshlrev_b32 v{V_T}, 4, v{V_T}")
    selmask(e, W0 + 40, V_T, rows_mask([0, 1], 24))
    sr = list(range(10, 18))
    for k, reg in enumerate((4, 5, 6, R2_REG['P'])):
        e(f"s_add_u32 s{sr[2*k]}, s{S_RGRP}, {reg*RG}"); e(f"s_add_u32 s{sr[2*k+1]}, s{sr[2*k]}, 4096")
    loads = []
    for row in range(3):
        loads += [(GA + 32 * row + 4 * k, V_R, sr[2*row + (k >= 4)], (k % 4) * 1024) for k in range(8)]
    loads += [(W0 + 32, V_ML, sr[0], 0), (W0 + 36, V_ML, sr[2], 0)]
    loads += [(W0 + 4 * k, W0 + 40, sr[6 + (k >= 4)], (k % 4) * 1024) for k in range(8)]
    e(f"v_subrev_u32 v{W0+41}, {768-368}, v{V_ML}")
    light = [(W0 + 4 * k, V_ML, sr[2*k], 0) for k in range(3)] + [(W0 + 12, W0 + 41, sr[6], 0)]
    if o.light: poll(e, o, light, abort, sleep=o.p_sleep)
    poll(e, o, loads, abort, sleep=o.p_sleep)
    st("p.gather")
    if "cwC" in o.exp:
        e.vm_all(force=True); e("s_barrier"); e("s_branch L_done")
    sum_loads(e, 8, GA + 64)
    for rr in range(4): e(f"v_mov_b32 v{V_CSQ+rr}, v{GA+64+rr}")
    sum_loads(e, 8, W0)
    for rr in range(4): e(f"v_mov_b32 v{V_CSG+rr}, v{W0+rr}")
    for row in range(2):
        q_consume(e, GA + 32 * row, W0 + 32 + 4 * row, row)
    st("q1")
    def load_tiles(base):
        for T in range(CW_TILES):
            kv_soff(e, base, T)
            for s in range(3): ld_k(e, R, vr(CW_K + 12 * T + 4 * s, 4), s, ('K', T, s), o)
        for T in range(CW_TILES):
            kv_soff(e, base, T)
            for w in range(3): ld_v(e, R, vr(CW_V + 12 * T + 4 * w, 4), w, ('V', T, w), o)
    load_tiles(S_KV0)
    instance_offsets(e, [0])
    e.lg_all()
    st("pro_done")
    e("s_barrier")
    Kf = lambda T, s: vr(CW_K + 12 * T + 4 * s, 4)
    Vf = lambda T, w: vr(CW_V + 12 * T + 4 * w, 4)
    def kw(T):
        if T >= 0: e.vm_wait(('K', T, 2))
    def vw(T, w): e.vm_wait(('V', T, w))
    attn_pass(e, R, CW_TILES, 0, Kf, Vf, S_PB, 0, k_wait=kw, v_wait=vw)
    e("s_barrier")
    st("bar2")
    parts = [PART + 1536 * w for w in range(4)]
    combine_publish(e, fl, parts, ML, R1_REG[0])
    st("c0.cmb")
    hop_R1(e, o, R1_REG[0], 0, abort)
    chain(e, o, fl, 0, [0], abort, st)
    st("chain0")
    e("s_barrier")
    attn_pass(e, R, CW_TILES, 0, Kf, Vf, S_PB, 32)
    e("s_barrier")
    parts_early = [PART] + [LDS_SW * s + 48 * 1024 for s in range(3)]
    combine_publish(e, fl, parts_early, ML + 32, R1_REG['1a'])
    load_tiles(S_KV1)
    instance_offsets(e, [0, 1])
    hop_R1(e, o, R1_REG['1a'], 0, abort)
    e.vmq = []
    attn_pass(e, R, CW_TILES, 1, Kf, Vf, S_PB, 0)
    e("s_barrier")
    st("bar6")
    combine_publish(e, fl, parts, ML, R1_REG['1b'])
    st("c1.cmb")
    hop_R1(e, o, R1_REG['1b'], 1, abort)
    chain(e, o, fl, 1, [0, 1], abort, st)
    st("chain1")
    e("s_barrier")
    attn_pass(e, R, CW_TILES, 1, Kf, Vf, S_PB, 0)
    instance_offsets(e, [1])
    e("s_barrier")
    st("bar8")
    combine_publish(e, fl, parts, ML, R1_REG[2])
    st("c2.cmb")
    hop_R1(e, o, R1_REG[2], 1, abort)
    chain(e, o, fl, 2, [1], abort, st)
    st("chain2")
    e("s_branch L_done")

def chain_wave_setup(e, o, st):
    L = V_LANE
    lane_id(e, L)
    e(f"v_mov_b32 v{W0}, 0"); e(f"v_mov_b32 v{W0+1}, {WFLAG}"); e(f"v_lshl_add_u32 v{W0+1}, v{L}, 2, v{W0+1}")
    e("s_mov_b64 exec, 15")
    e.lg(f"ds_write_b32 v{W0+1}, v{W0}", "z")
    e("s_mov_b64 exec, -1")
    e(f"v_mov_b32 v{V_OOB}, 0x{OOB:08x}")
    e(f"s_lshl_b32 s{S_RGRP}, s{S_H}, 13"); e(f"s_lshl_b32 s{S_T0}, s{S_J}, 10"); e(f"s_add_u32 s{S_ROWN}, s{S_RGRP}, s{S_T0}")
    e(f"s_lshl_b32 s{S_LGRP}, s{S_XC}, 3"); e(f"s_add_u32 s{S_LGRP}, s{S_LGRP}, s{S_J}"); e(f"s_lshl_b32 s{S_LGRP}, s{S_LGRP}, 12")
    e(f"s_lshl_b32 s{S_T0}, s{S_HQ}, 10"); e(f"s_add_u32 s{S_LOWN}, s{S_LGRP}, s{S_T0}")
    e(f"s_lshl_b32 s{S_GGRP}, s{S_J}, 13"); e(f"s_lshl_b32 s{S_T0}, s{S_XC}, 10"); e(f"s_add_u32 s{S_GOWN}, s{S_GGRP}, s{S_T0}")
    e.lg_all()
    e("s_barrier")
    late_common(e)
    if "nocw" in o.exp:
        e("s_barrier")
        st("bar1x")
        e("s_branch L_done")
    e(f"v_lshlrev_b32 v{V_L16}, 4, v{L}")
    selmask(e, V_R, V_L16, mask64(range(49)))
    e(f"s_load_dword s{S_TAG}, s[{S_WS}:{S_WS+1}], {EPOCH_OFF}")
    e(f"s_getreg_b32 s{S_T2}, hwreg(HW_REG_XCC_ID)"); e(f"s_and_b32 s{S_T2}, s{S_T2}, 0xf")
    e("s_waitcnt lgkmcnt(0)")
    e(f"s_add_u32 s{S_TAG}, s{S_TAG}, 1")
    token_store(e, TOK1, f"s{S_T2}")
    make_srd(e, SRD_T, S_X, 2560)
    e(f"v_and_b32 v{V_T}, 31, v{L}"); e(f"v_lshlrev_b32 v{V_T}, 3, v{V_T}")
    e(f"v_lshrrev_b32 v{V_T+1}, 5, v{L}"); e(f"v_mul_u32_u24 v{V_T+1}, 1280, v{V_T+1}"); e(f"v_add_u32 v{V_T}, v{V_T}, v{V_T+1}")
    selmask(e, V_T, V_T, rows_mask([0, 1], 20))
    e(f"s_mul_i32 s{S_T0}, s{S_J}, 160")
    e.vm(f"buffer_load_dwordx2 {vr(V_XR,2)}, v{V_T}, s[{SRD_T}:{SRD_T+3}], s{S_T0} offen", "x")
    e(f"s_add_u32 s{S_KV1}, s{S_KV0}, {BATCH_STRIDE}")
    R = NS(voffK=1, voffX=2, voffY=3, sel=V_SEL)
    attn_selectors(e, R, L, W0)
    n, g, x = W0, W0 + 1, W0 + 2
    e(f"v_mov_b32 v{W0+3}, v{V_L16}"); selmask(e, V_L16, W0 + 3, mask64(range(48)), other=0)
    e(f"v_and_b32 v{n}, 15, v{L}"); e(f"v_lshrrev_b32 v{g}, 4, v{L}")
    e(f"v_min_u32 v{x}, 1, v{n}")
    e(f"v_mul_u32_u24 v{V_BO}, 384, v{x}"); e(f"v_lshl_add_u32 v{V_BO}, v{g}, 4, v{V_BO}"); e(f"v_add_u32 v{V_BO}, {ACT_O}, v{V_BO}")
    e(f"v_lshlrev_b32 v{V_BH}, 7, v{x}"); e(f"v_lshl_add_u32 v{V_BH8}, v{g}, 3, v{V_BH}"); e(f"v_add_u32 v{V_BH8}, {ACT_H+64}, v{V_BH8}")
    e(f"v_lshl_add_u32 v{V_BH}, v{g}, 4, v{V_BH}"); e(f"v_add_u32 v{V_BH}, {ACT_H}, v{V_BH}")
    e(f"v_min_u32 v{x}, 2, v{n}")
    e(f"v_mul_u32_u24 v{V_BX}, 192, v{x}"); e(f"v_lshl_add_u32 v{V_BX8}, v{g}, 3, v{V_BX}"); e(f"v_add_u32 v{V_BX8}, {ACT_X+128}, v{V_BX8}")
    e(f"v_lshl_add_u32 v{V_BX}, v{g}, 4, v{V_BX}"); e(f"v_add_u32 v{V_BX}, {ACT_X}, v{V_BX}")
    e(f"v_subrev_u32 v{x}, 1, v{n}"); e(f"v_min_u32 v{x}, 2, v{x}")
    e(f"v_mul_u32_u24 v{V_AS}, 192, v{x}"); e(f"v_lshl_add_u32 v{V_AS8}, v{g}, 3, v{V_AS}"); e(f"v_add_u32 v{V_AS8}, {ACT_X+128}, v{V_AS8}")
    e(f"v_lshl_add_u32 v{V_AS}, v{g}, 4, v{V_AS}"); e(f"v_add_u32 v{V_AS}, {ACT_X}, v{V_AS}")
    e(f"v_lshlrev_b32 v{x}, 3, v{L}"); e(f"v_add_u32 v{x}, {SB}, v{x}"); selmask(e, V_W8, x, mask64(range(48)), other=SB+2560)
    e(f"v_and_b32 v{n}, 31, v{L}"); e(f"v_lshrrev_b32 v{g}, 5, v{L}")
    e(f"v_mul_u32_u24 v{x}, 192, v{g}"); e(f"v_lshl_add_u32 v{x}, v{n}, 3, v{x}"); e(f"v_add_u32 v{x}, {ACT_X}, v{x}")
    selmask(e, V_WX, x, rows_mask([0, 1], 20), other=DUMMY)
    e(f"v_lshlrev_b32 v{x}, 7, v{g}"); e(f"v_lshl_add_u32 v{x}, v{n}, 2, v{x}"); e(f"v_add_u32 v{x}, {ACT_H}, v{x}")
    selmask(e, V_WH, x, rows_mask([0, 1], 24), other=DUMMY)
    e(f"v_and_b32 v{x}, 7, v{L}"); e(f"v_lshlrev_b32 v{x}, 10, v{x}"); e(f"v_add_u32 v{V_ML}, 768, v{x}")
    m = mask64([16 * a + 1 for a in range(4)])
    e(f"s_mov_b32 s{S_N1}, 0x{m & 0xffffffff:08x}"); e(f"s_mov_b32 s{S_N1+1}, 0x{m >> 32:08x}")
    e(f"v_lshlrev_b32 v{W0+4}, 10, v{L}"); e(f"s_lshl_b32 s{S_T0}, s{S_XC}, 7"); e(f"v_add_u32 v{W0+4}, s{S_T0}, v{W0+4}")
    token_gather(e, o, TOK1, W0 + 4, 0xffffffff, sleep=o.t_sleep)
    e(f"v_cmp_ne_u32 vcc, s{S_T2}, v{W0+1}")
    e("s_mov_b64 exec, -1")
    st("p.mode")
    e("s_nop 3")
    e("s_cmp_lg_u32 vcc_lo, 0")

def late_common(e):
    make_srd(e, SRD_V, S_V, KV_BYTES); make_srd(e, SRD_WS, S_WS, WS_REC)
    e(f"s_mov_b32 s{S_C}, {lit(CSCALE)}")
    e(f"s_mov_b32 s{S_HI32}, 0"); e(f"s_mov_b32 s{S_HI32+1}, -1")
    e(f"s_mul_i32 s{S_PB}, s{S_WAVE}, 1536"); e(f"s_add_u32 s{S_PB}, s{S_PB}, {PART}")
    e(f"s_lshl_b32 s{S_MLB}, s{S_WAVE}, 3"); e(f"s_add_u32 s{S_MLB}, s{S_MLB}, {ML}")

def generate(o):
    Stamps.select = o.stampset.split(",") if o.stampset else None
    e = Emit()
    e("s_cmp_ge_u32 s2, 256"); e("s_cbranch_scc1 L_done")
    e("s_load_dwordx16 s[4:19], s[0:1], 0"); e("s_load_dwordx8 s[20:27], s[0:1], 64")
    e("v_lshrrev_b32 v1, 6, v0")
    e(f"s_and_b32 s{S_XC}, s2, 7"); e(f"s_lshr_b32 s{S_HQ}, s2, 6")
    e(f"v_readfirstlane_b32 s{S_WAVE}, v1")
    e(f"s_lshr_b32 s{S_J}, s2, 3"); e(f"s_and_b32 s{S_J}, s{S_J}, 7")
    e(f"s_lshl_b32 s{S_H}, s{S_XC}, 2"); e(f"s_add_u32 s{S_H}, s{S_H}, s{S_HQ}")
    e(f"s_mul_i32 s{S_KV0}, s{S_H}, {HEAD_STRIDE}"); e(f"s_mul_i32 s{S_T0}, s{S_J}, {CHUNK_STRIDE}"); e(f"s_add_u32 s{S_KV0}, s{S_KV0}, s{S_T0}")
    e(f"s_add_u32 s{S_T0}, s{S_WAVE}, 3"); e(f"s_and_b32 s{S_T0}, s{S_T0}, 3")
    e(f"s_mul_i32 s{S_T1}, s{S_T0}, {SW_TILES*TILE_B}"); e(f"s_add_u32 s{S_KV0}, s{S_KV0}, s{S_T1}")
    lane_id(e, 8)
    attn_load_offsets(e, NS(voffK=1, voffX=2, voffY=3), 8, 10)
    e("s_waitcnt lgkmcnt(0)")
    make_srd(e, SRD_K, S_K, KV_BYTES)
    e(f"s_cmp_eq_u32 s{S_WAVE}, 0"); e("s_cbranch_scc1 L_chain")
    st_s = Stamps(e, o.stamps); st_s("start")
    stream_wave(e, o, st_s)
    e.label("L_chain")
    e.vmq = []; e.lgq = []
    st_c = Stamps(e, o.stamps); st_c("start")
    chain_wave_setup(e, o, st_c)
    names = {}
    if o.force_global: e("s_branch L_global")
    else: e("s_cbranch_scc1 L_global")
    base_names = list(st_c.names)
    sv = (list(e.vmq), list(e.lgq))
    chain_wave(e, o, st_c, True)
    names['cw'] = list(st_c.names); names['sw'] = list(st_s.names)
    e.label("L_global")
    e.vmq, e.lgq = sv
    st_g = Stamps(e, o.stamps); st_g.names = list(base_names)
    chain_wave(e, o, st_g, False)
    e.label("L_abort")
    e.label("L_done")
    if o.stamps:
        e("s_cmp_ge_u32 s2, 256"); e("s_cbranch_scc1 L_exit")
        fl = Stamps(e, True); fl.names = names['cw']; fl.flush()
        e.label("L_exit")
    e("s_endpgm")
    return e, names

HEAD = """; Kernarg: A_x, K, V, wq, wo, B_x, W_gate, W_up, W_down, out, debug, ws (pointers)
; @launch grid=(256,1,1) block=(256,1,1) lds=%d
.amdgcn_target "amdgcn-amd-amdhsa--gfx950"
.text
.globl %s
.p2align 8
.type %s,@function
%s:
"""
FOOT = """
.section .rodata,"a"
.p2align 6
.amdhsa_kernel %s
  .amdhsa_next_free_vgpr 512
  .amdhsa_next_free_sgpr 102
  .amdhsa_accum_offset 256
  .amdhsa_group_segment_fixed_size 0
  .amdhsa_kernarg_size 96
  .amdhsa_user_sgpr_count 2
  .amdhsa_user_sgpr_kernarg_segment_ptr 1
  .amdhsa_system_sgpr_workgroup_id_x 1
  .amdhsa_float_denorm_mode_32 3
.end_amdhsa_kernel
"""
def build_text(o):
    e, names = generate(o)
    return HEAD % (LDS_TOTAL, NAME, NAME, NAME) + e.text() + "\n" + FOOT % NAME, names, e

if __name__ == "__main__":
    o = Opt()
    for a in sys.argv[2:]:
        k, v = a.split("=")
        cur = getattr(o, k)
        setattr(o, k, (v not in ("0", "False")) if isinstance(cur, bool) else type(cur)(v))
    txt, names, e = build_text(o)
    open(sys.argv[1], "w").write(txt)
    print("instructions:", e.ninst, "nops:", e.nops, names)
```

```python
import sys, struct
from types import SimpleNamespace as NS
from emit import Emit, vr

NAME = "interleave_layers__mha_block_cached__glu_gated_reglu__decode_kernel"

class Opt:
    NA = 16
    NA_BAR = 118
    NB = 8
    NC = 56
    NA0 = 16
    NA0N = 0
    light = False
    pf = 0
    pf_all = False
    NF = 12
    NW = 24
    stamps = False
    poll_limit = 400000
    kvflags = "nt"
    wflags = "nt"
    stampset = ""
    p_sleep = 8
    mb_sleep = 0
    exp = ""
    t_sleep = 0
    early = False
    wb = 0
    preR = 0
    preL = 0
    preG = 6
    flag_sleep = 0
    force_global = False

KV_BYTES = 100663296
BATCH_STRIDE = 50331648
HEAD_STRIDE = 1572864
CHUNK_STRIDE = 196608
TILE_B = 3072
SW_TILES, CW_TILES = 20, 4
OOB = 0x7fff0000

LDS_SW = 51200
SB = 153600
PART = SB
ML = SB + 6144
QARR = SB + 6208
ACT_O = SB + 6976
ACT_X = SB + 7744
ACT_H = SB + 8320
DUMMY = SB + 8576
WFLAG = SB + 10208
LDS_TOTAL = 163840
ST_WQ, ST_WO, ST_WG, ST_WU, ST_WD = 0, 30720, 61440, 69120, 76800

RG = 262144
R1_REG = {0: 0, '1a': 1, '1b': 2, 2: 3}
R3_REG = {'P': 4, 0: 7, 1: 8}
R2_REG = {'P': 9, 0: 10, 1: 11, 2: 12}
L_REG = lambda inst, k: 13 + 2 * inst + k
G_OFF = lambda inst, k: 19 * RG + (2 * inst + k) * 65536
STAMP_OFF = 22 * RG
WS_REC = 24 * RG

CSCALE = (192 ** -0.5) * 1.4426950408889634
EPS = 1e-5
def f2u(x): return struct.unpack("<I", struct.pack("<f", x))[0]
def lit(x): return "0x%08x" % f2u(x)
def mask64(lanes):
    m = 0
    for l in lanes: m |= 1 << l
    return m
def set_exec(e, m):
    if m == (1 << 64) - 1: e("s_mov_b64 exec, -1"); return
    e(f"s_mov_b32 exec_lo, 0x{m & 0xffffffff:08x}")
    e(f"s_mov_b32 exec_hi, 0x{m >> 32:08x}")

S_X, S_K, S_V, S_WQ, S_WO, S_BX, S_WG, S_WU, S_WD, S_OUT, S_DBG, S_WS = 4, 6, 8, 10, 12, 14, 16, 18, 20, 22, 24, 26
S_XC, S_HQ, S_J, S_H = 28, 29, 30, 31
SRD_K, SRD_V = 32, 36
S_KV0, S_KV1, S_SOFF, S_LDSB = 40, 41, 42, 43
SRD_T = 44
SRD_WS = 48
SRD_DBG = 52
S_C = 56
S_ROWN, S_RGRP, S_LOWN, S_LGRP, S_GOWN, S_GGRP = 57, 58, 59, 60, 61, 62
S_A, S_B, S_CNT, S_T0, S_T1, S_T2 = 63, 64, 65, 66, 67, 68
S_PB = 69
S_HI32 = 70
S_MLB = 72
S_GA, S_GB = 100, 101
S_WAVE = 3
S_STAMP = 76

def make_srd(e, srd, ptr, nbytes):
    e(f"s_mov_b32 s{srd}, s{ptr}")
    e(f"s_and_b32 s{srd+1}, s{ptr+1}, 0xffff")
    e(f"s_mov_b32 s{srd+2}, {nbytes}")
    e(f"s_mov_b32 s{srd+3}, 0x20000")

class Stamps:
    select = None
    def __init__(self, e, on): self.e, self.on, self.names = e, on, []
    def __call__(self, name):
        if not self.on: return
        if Stamps.select is not None and not any(name.startswith(p) for p in Stamps.select): return
        if Stamps.select is None and "." in name: return
        n = len(self.names); assert n < 12, "too many stamps"
        self.e(f"s_memrealtime s[{S_STAMP+2*n}:{S_STAMP+2*n+1}]")
        self.e.lg_all(force=True)
        self.names.append(name)
    def rounds(self, name):
        if not self.on: return
        if Stamps.select is None or not any(name.startswith(p) for p in Stamps.select): return
        n = len(self.names); assert n < 12
        self.e(f"s_mov_b32 s{S_STAMP+2*n}, s{S_CNT}"); self.e(f"s_mov_b32 s{S_STAMP+2*n+1}, 0")
        self.names.append(name)
    def flush(self):
        if not self.on: return
        e = self.e
        e("s_mov_b64 exec, 1")
        e(f"s_lshl_b32 s{S_T0}, s2, 2"); e(f"s_add_u32 s{S_T0}, s{S_T0}, s{S_WAVE}"); e(f"s_lshl_b32 s{S_T0}, s{S_T0}, 7")
        e(f"s_add_u32 s{S_T0}, s{S_T0}, {STAMP_OFF}")
        e("v_mov_b32 v0, 0")
        for i in range(len(self.names)):
            e(f"v_mov_b32 v2, s{S_STAMP+2*i}"); e(f"v_mov_b32 v3, s{S_STAMP+2*i+1}")
            e(f"buffer_store_dwordx2 v[2:3], v0, s[{SRD_WS}:{SRD_WS+3}], s{S_T0} offen offset:{8*i}")
            e("s_waitcnt vmcnt(0)")

def lane_id(e, dst):
    e(f"v_mbcnt_lo_u32_b32 {vr(dst)}, -1, 0")
    e(f"v_mbcnt_hi_u32_b32 {vr(dst)}, -1, {vr(dst)}")

def attn_load_offsets(e, R, lane, t):
    i, g, u, w = t, t + 1, t + 2, t + 3
    e(f"v_and_b32 {vr(i)}, 15, {vr(lane)}")
    e(f"v_lshrrev_b32 {vr(g)}, 4, {vr(lane)}")
    e(f"v_and_b32 {vr(u)}, 7, {vr(i)}")
    e(f"v_lshrrev_b32 {vr(w)}, 3, {vr(i)}")
    e(f"v_mul_u32_u24 {vr(R.voffK)}, 384, {vr(u)}")
    e(f"v_lshl_add_u32 {vr(R.voffK)}, {vr(g)}, 4, {vr(R.voffK)}")
    e(f"v_lshl_add_u32 {vr(R.voffK)}, {vr(w)}, 6, {vr(R.voffK)}")
    e(f"v_mul_u32_u24 {vr(R.voffX)}, 768, {vr(g)}")
    e(f"v_mul_u32_u24 {vr(w)}, 384, {vr(w)}")
    e(f"v_add_u32 {vr(R.voffY)}, {vr(R.voffX)}, {vr(w)}")
    e(f"v_lshl_add_u32 {vr(R.voffY)}, {vr(u)}, 4, {vr(R.voffY)}")
    e(f"v_add_u32 {vr(R.voffY)}, 256, {vr(R.voffY)}")
    e(f"v_lshl_add_u32 {vr(R.voffX)}, {vr(i)}, 4, {vr(R.voffX)}")

def attn_selectors(e, R, lane, t):
    i, u, lo, hi = t, t + 1, t + 2, t + 3
    e(f"v_and_b32 {vr(i)}, 15, {vr(lane)}")
    e(f"v_lshrrev_b32 {vr(u)}, 3, {vr(i)}")
    e(f"v_mul_u32_u24 {vr(u)}, 0x202, {vr(u)}")
    e(f"v_add_u32 {vr(u)}, 0x100, {vr(u)}")
    e(f"v_or_b32 {vr(lo)}, 0x0c0c0000, {vr(u)}")
    e(f"v_lshlrev_b32 {vr(hi)}, 16, {vr(u)}")
    e(f"v_or_b32 {vr(hi)}, 0x0c0c, {vr(hi)}")
    e(f"v_and_b32 {vr(u)}, 1, {vr(i)}")
    e(f"v_cmp_eq_u32 vcc, 1, {vr(u)}")
    e(f"v_cndmask_b32 {vr(lo)}, {vr(lo)}, {vr(hi)}, vcc")
    e(f"v_bfe_u32 {vr(u)}, {vr(i)}, 1, 2")
    e(f"v_mov_b32 {vr(hi)}, 0x0c0c0c0c")
    for r in range(4):
        e(f"v_cmp_eq_u32 vcc, {r}, {vr(u)}")
        e(f"v_cndmask_b32 {vr(R.sel+r)}, {vr(hi)}, {vr(lo)}, vcc")

def allreduce(e, reg, tmp, op):
    for k in (8, 4, 2, 1):
        e(f"v_{op}_f32_dpp {vr(reg)}, {vr(reg)}, {vr(reg)} row_ror:{k} row_mask:0xf bank_mask:0xf")
    e(f"v_mov_b32 {vr(tmp)}, {vr(reg)}")
    e(f"v_permlane16_swap_b32 {vr(reg)}, {vr(tmp)}")
    e(f"v_{op}_f32 {vr(reg)}, {vr(reg)}, {vr(tmp)}")
    e(f"v_mov_b32 {vr(tmp)}, {vr(reg)}")
    e(f"v_permlane32_swap_b32 {vr(reg)}, {vr(tmp)}")
    e(f"v_{op}_f32 {vr(reg)}, {vr(reg)}, {vr(tmp)}")

def attn_pass(e, R, ntiles, qrow, Kfrag, Vfrag, part_sreg, ml_off, k_wait=None, qk_hook=None, mid_hook=None,
              v_wait=None, pv_hook=None, stage=None):
    L = R.tmp
    lane_id(e, L)
    e(f"v_and_b32 {vr(L+1)}, 1, {vr(L)}")
    e(f"v_lshrrev_b32 {vr(L+2)}, 4, {vr(L)}")
    e(f"v_lshlrev_b32 {vr(L+2)}, 4, {vr(L+2)}")
    e(f"v_lshl_add_u32 {vr(L+1)}, {vr(L+1)}, 6, {vr(L+2)}")
    e(f"v_add_u32 {vr(L+1)}, {QARR}, {vr(L+1)}")
    for s in range(3):
        e.lg(f"ds_read_b128 {vr(R.qA+4*s,4)}, {vr(L+1)} offset:{qrow*384 + 128*s}", ("q", s))
    e(f"v_add_u32 {vr(R.vpp)}, s{S_PB}, {vr(L+2)}")
    W = R.vpw
    e(f"v_lshrrev_b32 {vr(L+1)}, 5, {vr(L)}"); e(f"v_lshlrev_b32 {vr(W)}, 6, {vr(L+1)}")
    e(f"v_bfe_u32 {vr(L+1)}, {vr(L)}, 1, 2"); e(f"v_lshl_add_u32 {vr(W)}, {vr(L+1)}, 4, {vr(W)}")
    e(f"v_bfe_u32 {vr(L+1)}, {vr(L)}, 3, 2"); e(f"v_lshl_add_u32 {vr(W)}, {vr(L+1)}, 2, {vr(W)}")
    e(f"v_and_b32 {vr(L+1)}, 1, {vr(L)}"); e(f"v_lshl_add_u32 {vr(W)}, {vr(L+1)}, 1, {vr(W)}")
    e(f"v_add_u32 {vr(W)}, s{S_PB}, {vr(W)}")
    nsc = (ntiles + 7) // 8
    for r in range(nsc):
        if (r + 1) * 8 > ntiles: e(f"v_mov_b32 {vr(R.sc+r)}, 0xff800000")
    stg = {}
    def stage_k(T):
        if T >= ntiles: return
        for s in range(3):
            f = Kfrag(T, s)
            if isinstance(f, tuple):
                reg = stage[(3 * T + s) % len(stage)]
                e.lg(f"ds_read_b128 {vr(reg,4)}, {vr(R.vlds)} offset:{f[1]}", ("k", T, s))
                stg[(T, s)] = vr(reg, 4)
    LOOK = 2
    if k_wait: k_wait(-1)
    for T in range(min(LOOK, ntiles)): stage_k(T)
    e.lg_wait(("q", 2))
    def dpp_add(T):
        D = R.D + 4 * (T % 3)
        dst = vr(R.sc + (T >> 3)); rm = 1 << ((T >> 1) & 3)
        if T % 2 == 0: e(f"v_add_f32_dpp {dst}, {vr(D+1)}, {vr(D)} row_ror:8 row_mask:0x{rm:x} bank_mask:0x3")
        else:          e(f"v_add_f32_dpp {dst}, {vr(D)}, {vr(D+1)} row_ror:8 row_mask:0x{rm:x} bank_mask:0xc")
    for T in range(ntiles):
        if k_wait: k_wait(T)
        D = vr(R.D + 4 * (T % 3), 4)
        for s in range(3):
            f = Kfrag(T, s)
            if isinstance(f, tuple):
                e.lg_wait(("k", T, s)); f = stg[(T, s)]
            e(f"v_mfma_f32_16x16x32_bf16 {D}, {vr(R.qA+4*s,4)}, {f}, {'0' if s == 0 else D}")
        stage_k(T + LOOK)
        if qk_hook: qk_hook(T)
        if T >= 2: dpp_add(T - 2)
    for T in range(max(0, ntiles - 2), ntiles): dpp_add(T)
    t0, t1 = R.D, R.D + 1
    if nsc == 1: e(f"v_mov_b32 {vr(t0)}, {vr(R.sc)}")
    elif nsc == 2: e(f"v_max_f32 {vr(t0)}, {vr(R.sc)}, {vr(R.sc+1)}")
    else: e(f"v_max3_f32 {vr(t0)}, {vr(R.sc)}, {vr(R.sc+1)}, {vr(R.sc+2)}")
    allreduce(e, t0, t1, "max")
    e(f"v_mul_f32 {vr(R.vm)}, s{S_C}, {vr(t0)}")
    for r in range(nsc): e(f"v_fma_f32 {vr(R.sc+r)}, {vr(R.sc+r)}, s{S_C}, -{vr(R.vm)}")
    for r in range(nsc): e(f"v_exp_f32 {vr(R.sc+r)}, {vr(R.sc+r)}")
    for r in range(nsc): e(f"v_cvt_pk_bf16_f32 {vr(R.D+2+r)}, {vr(R.sc+r)}, {vr(R.sc+r)}")
    for r in range(nsc): e.lg(f"ds_write_b16 {vr(W)}, {vr(R.D+2+r)} offset:{128*r}", ("pw", r))
    nq = (ntiles + 3) // 4
    ppreg = lambda q: R.pp + 4 * (q % 2)
    if nsc == 1: e(f"v_mov_b32 {vr(R.vl)}, {vr(R.sc)}")
    else:
        e(f"v_add_f32 {vr(R.vl)}, {vr(R.sc)}, {vr(R.sc+1)}")
        if nsc == 3: e(f"v_add_f32 {vr(R.vl)}, {vr(R.vl)}, {vr(R.sc+2)}")
    e.lg(f"ds_read_b128 {vr(ppreg(0),4)}, {vr(R.vpp)}", ("pp", 0))
    if nq > 1: e.lg(f"ds_read_b128 {vr(ppreg(1),4)}, {vr(R.vpp)} offset:64", ("pp", 1))
    allreduce(e, R.vl, t1, "add")
    if mid_hook: mid_hook()
    X1, X2, Y = R.acc, R.acc + 4, R.acc + 8
    def build_A(T):
        q = T >> 2
        e.lg_wait(("pp", q))
        A = R.A + 4 * (T % 2); src = vr(ppreg(q) + (T & 3))
        return [f"v_perm_b32 {vr(A+r)}, {src}, {src}, {vr(R.sel+r)}" for r in range(4)]
    for ins in build_A(0): e(ins)
    for T in range(ntiles):
        A = vr(R.A + 4 * (T % 2), 4)
        nxt = build_A(T + 1) if T + 1 < ntiles else []
        if v_wait: v_wait(T, 0)
        e(f"v_mfma_f32_16x16x32_bf16 {vr(X1,4)}, {A}, {Vfrag(T,0)}, {'0' if T == 0 else vr(X1,4)}")
        for ins in nxt[:2]: e(ins)
        if v_wait: v_wait(T, 1)
        e(f"v_mfma_f32_16x16x32_bf16 {vr(X2,4)}, {A}, {Vfrag(T,1)}, {'0' if T == 0 else vr(X2,4)}")
        for ins in nxt[2:]: e(ins)
        if v_wait: v_wait(T, 2)
        e(f"v_mfma_f32_16x16x32_bf16 {vr(Y,4)}, {A}, {Vfrag(T,2)}, {'0' if T == 0 else vr(Y,4)}")
        if (T & 3) == 2 and (T >> 2) + 2 < nq:
            q2 = (T >> 2) + 2
            e.lg(f"ds_read_b128 {vr(ppreg(q2),4)}, {vr(R.vpp)} offset:{64*q2}", ("pp", q2))
        if pv_hook: pv_hook(T)
    p = R.pp
    lane_id(e, p)
    e(f"v_and_b32 {vr(p+1)}, 15, {vr(p)}")
    e(f"v_lshrrev_b32 {vr(p+2)}, 4, {vr(p)}")
    e(f"v_and_b32 {vr(p+3)}, 1, {vr(p+2)}")
    e(f"v_lshrrev_b32 {vr(p+2)}, 1, {vr(p+2)}")
    e(f"v_mul_u32_u24 {vr(p+2)}, 768, {vr(p+2)}")
    e(f"v_lshl_add_u32 {vr(p+2)}, {vr(p+3)}, 4, {vr(p+2)}")
    e(f"v_add_u32 {vr(p+2)}, s{part_sreg}, {vr(p+2)}")
    e(f"v_lshl_add_u32 {vr(p+4)}, {vr(p+1)}, 5, {vr(p+2)}")
    e(f"v_and_b32 {vr(p+1)}, 7, {vr(p+1)}")
    e(f"v_lshl_add_u32 {vr(p+5)}, {vr(p+1)}, 5, {vr(p+2)}")
    e(f"v_mov_b32 {vr(p+6)}, s{S_MLB}")
    e(f"v_mov_b32 {vr(R.A)}, {vr(R.vm)}"); e(f"v_mov_b32 {vr(R.A+1)}, {vr(R.vl)}")
    for r in range(4):
        e(f"v_cndmask_b32 {vr(X1+r)}, {vr(X1+r)}, {vr(X2+r)}, s[{S_HI32}:{S_HI32+1}]")
    e.lg(f"ds_write_b128 {vr(p+4)}, {vr(X1,4)}", "px")
    set_exec(e, 0xFF00FF0000FF00FF)
    e.lg(f"ds_write_b128 {vr(p+5)}, {vr(Y,4)} offset:512", "py")
    e("s_mov_b64 exec, 1")
    e.lg(f"ds_write_b64 {vr(p+6)}, {vr(R.A,2)} offset:{ml_off}", "pm")
    e("s_mov_b64 exec, -1")
    e.lg_all()

def kv_soff(e, base_sreg, T):
    e(f"s_add_u32 s{S_SOFF}, s{base_sreg}, {T*TILE_B}")
def ld_k(e, R, dst, s, tag, o):
    e.vm(f"buffer_load_dwordx4 {dst}, {vr(R.voffK)}, s[{SRD_K}:{SRD_K+3}], s{S_SOFF} offen offset:{128*s} {o.kvflags}", tag)
def ld_v(e, R, dst, w, tag, o):
    vo = R.voffY if w == 2 else R.voffX
    off = 384 if w == 1 else 0
    e.vm(f"buffer_load_dwordx4 {dst}, {vr(vo)}, s[{SRD_V}:{SRD_V+3}], s{S_SOFF} offen offset:{off} {o.kvflags}", tag)
def dma_k(e, R, slot, s, tag, o):
    e(f"s_add_u32 m0, s{S_LDSB}, {slot*1024 - 128*s + 0}") if slot*1024 - 128*s >= 0 else e(f"s_sub_u32 m0, s{S_LDSB}, {128*s - slot*1024}")
    e.vm(f"buffer_load_dwordx4 {vr(R.voffK)}, s[{SRD_K}:{SRD_K+3}], s{S_SOFF} offen offset:{128*s} {o.kvflags} lds", tag)
def dma_v(e, R, slot, w, tag, o):
    vo = R.voffY if w == 2 else R.voffX
    off = 384 if w == 1 else 0
    e(f"s_add_u32 m0, s{S_LDSB}, {slot*1024 - off}")
    e.vm(f"buffer_load_dwordx4 {vr(vo)}, s[{SRD_V}:{SRD_V+3}], s{S_SOFF} offen offset:{off} {o.kvflags} lds", tag)

def slot_reg(k):
    assert 0 <= k < 118
    return f"a[{4*k}:{4*k+3}]" if k < 64 else f"v[{40+4*(k-64)}:{40+4*(k-64)+3}]"

def weight_dma(e, o):
    L, t, u = 8, 20, 21
    def dma_block(ptr, nbytes, lanes_per_row, magic, shift, nlanes, row_stride, rows_per_instr, ninstr, so, lds0, bar=False):
        make_srd(e, SRD_T, ptr, nbytes)
        e(f"v_mul_u32_u24 v{t}, {magic}, v{L}"); e(f"v_lshrrev_b32 v{t}, {shift}, v{t}")
        e(f"v_mul_u32_u24 v{u}, {lanes_per_row}, v{t}"); e(f"v_sub_u32 v{u}, v{L}, v{u}")
        e(f"s_mov_b32 s{S_T1}, {row_stride}")
        e(f"v_mul_lo_u32 v{t}, v{t}, s{S_T1}"); e(f"v_lshl_add_u32 v{t}, v{u}, 4, v{t}")
        rreg, rmul, creg, cmul = so
        e(f"s_mul_i32 s{S_SOFF}, s{rreg}, {rmul*row_stride}")
        e(f"s_mul_i32 s{S_T1}, s{creg}, {cmul}"); e(f"s_add_u32 s{S_SOFF}, s{S_SOFF}, s{S_T1}")
        set_exec(e, mask64(range(nlanes)))
        if bar: e("s_barrier")
        for i in range(ninstr):
            e(f"s_mov_b32 m0, {lds0 + i*nlanes*16}")
            if i: e(f"s_add_u32 s{S_SOFF}, s{S_SOFF}, {rows_per_instr*row_stride}")
            else: e("s_nop 0")
            e.vm_depth(o.NW - 1)
            e.vm(f"buffer_load_dwordx4 v{t}, s[{SRD_T}:{SRD_T+3}], s{S_SOFF} offen {o.wflags} lds", "w")
        e("s_mov_b64 exec, -1")
    l2, l3, end = e.newlabel("w2"), e.newlabel("w3"), e.newlabel("wend")
    e(f"s_cmp_eq_u32 s{S_WAVE}, 2"); e(f"s_cbranch_scc1 {l2}")
    e(f"s_cmp_eq_u32 s{S_WAVE}, 3"); e(f"s_cbranch_scc1 {l3}")
    base_q = list(e.vmq)
    dma_block(S_WQ, 7864320, 24, 43, 10, 48, 12288, 2, 40, (S_J, 80, S_H, 384), ST_WQ, bar=True)
    e(f"s_branch {end}")
    e.label(l2); e.vmq = list(base_q)
    dma_block(S_WO, 7864320, 10, 103, 10, 60, 1280, 6, 32, (S_H, 192, S_J, 160), ST_WO, bar=True)
    e(f"s_branch {end}")
    e.label(l3); e.vmq = list(base_q)
    dma_block(S_WG, 1966080, 6, 43, 8, 60, 3072, 10, 8, (S_J, 80, S_H, 96), ST_WG, bar=True)
    dma_block(S_WU, 1966080, 6, 43, 8, 60, 3072, 10, 8, (S_J, 80, S_H, 96), ST_WU)
    dma_block(S_WD, 1966080, 10, 103, 10, 60, 1280, 6, 8, (S_H, 48, S_J, 160), ST_WD)
    e.label(end)
    e.vmq = ["w"] * o.NW

def emit_wb(e):
    skip = e.newlabel("nowb")
    e(f"s_cmp_lg_u32 s{S_WAVE}, 1"); e(f"s_cbranch_scc1 {skip}")
    e("s_cmp_ge_u32 s2, 8"); e(f"s_cbranch_scc1 {skip}")
    e("buffer_wbl2 sc1")
    e("s_waitcnt vmcnt(0)")
    e.label(skip)

def stream_wave(e, o, st):
    R = NS(vlds=0, voffK=1, voffX=2, voffY=3, sel=4, qA=8, D=20, sc=32, tmp=20, vpw=35, acc=8, A=20, pp=28, vpp=36, vm=38, vl=39)
    loads = []
    for T in range(SW_TILES):
        for s in range(3): loads.append(('K', T, s))
    for T in range(SW_TILES):
        for w in range(3): loads.append(('V', T, w))
    def k0slot(T, s): return 3 * T + s
    def v0slot(T, w): return 60 + 3 * T + w
    cur = [None]
    def issue0(item):
        kind, T, x = item
        if cur[0] != (kind, T, 0):
            kv_soff(e, S_KV0, T); cur[0] = (kind, T, 0)
        if kind == 'K': ld_k(e, R, slot_reg(k0slot(T, x)), x, ('K0', T, x), o)
        else:
            sl = v0slot(T, x)
            if sl < 118: ld_v(e, R, slot_reg(sl), x, ('V0', T, x), o)
            else: dma_v(e, R, 48 + sl - 118, x, ('V0', T, x), o)
    for item in loads[:o.NF]: issue0(item)
    late_common(e)
    e(f"s_add_u32 s{S_KV1}, s{S_KV0}, {BATCH_STRIDE}")
    e(f"s_sub_u32 s{S_T0}, s{S_WAVE}, 1"); e(f"s_mul_i32 s{S_LDSB}, s{S_T0}, {LDS_SW}")
    nf = list(e.vmq)
    if "now" in o.exp: e("s_barrier")
    else: weight_dma(e, o)
    e.vmq = nf + ["w"] * o.NW if len(nf) + o.NW <= 60 else ["w"] * 60
    cur[0] = None
    st("s.wiss")
    e(f"v_lshlrev_b32 {vr(R.vlds)}, 4, v8")
    e(f"v_add_u32 {vr(R.vlds)}, s{S_LDSB}, {vr(R.vlds)}")
    attn_selectors(e, R, 8, 10)
    for idx, item in enumerate(loads[:o.NA_BAR]):
        if idx < o.NF: continue
        na = o.NA0 if idx < o.NA0N else o.NA
        e.vm_depth(na - 1)
        if idx == o.NF + max(o.NA, o.NA0):
            e(f"s_lshl_b32 s{S_T0}, s{S_WAVE}, 2"); e(f"s_add_u32 s{S_T0}, s{S_T0}, {WFLAG-4}")
            e(f"v_mov_b32 v20, s{S_T0}"); e("v_mov_b32 v21, 1")
            e.lg("ds_write_b32 v20, v21", "wf")
            st("s.wland")
        if idx == 60: st("s.k0iss")
        if idx == 90: st("s.v30")
        issue0(item)
    st("A_issued")
    e("s_barrier")
    st("bar1")
    if "nocw" in o.exp or "cw" in o.exp:
        e.vm_all(); st("s.alland"); st.flush(); e("s_endpgm")
    pend = [('0', it) for it in loads[o.NA_BAR:]]
    for T in range(16):
        for s in range(3): pend.append(('1', T, s))
    cur1 = [None]
    def issue_pend():
        it = pend.pop(0)
        if it[0] == '0': cur1[0] = None; issue0(it[1])
        else:
            _, T, s = it
            if cur1[0] != T:
                kv_soff(e, S_KV1, T); cur1[0] = T; cur[0] = None
            dma_k(e, R, 3 * T + s, s, ('K1', T, s), o)
    while pend[0][0] == '0': issue_pend()
    def Kf0(T, s): return slot_reg(k0slot(T, s))
    def Vf0(T, w):
        sl = v0slot(T, w)
        if sl < 118: return slot_reg(sl)
        return "v[32:35]" if w == 1 else "v[28:31]"
    def k_wait_A(T):
        if T == -1: e.vm_wait(('K0', SW_TILES - 1, 2))
    def pv_hook_A(T):
        left = SW_TILES - 1 - T
        target = max(o.NB, min(o.NA, 3 * left + o.NB))
        if T == SW_TILES - 2:
            e.vm_wait(('V0', SW_TILES - 1, 2))
            e.lg(f"ds_read_b128 v[32:35], {vr(R.vlds)} offset:{48*1024}", ("vo", 1))
            e.lg(f"ds_read_b128 v[28:31], {vr(R.vlds)} offset:{49*1024}", ("vo", 2))
            target = o.NB
        while pend and len(e.vmq) < target: issue_pend()
    def vwait_A(T, w):
        e.vm_wait(('V0', T, w))
        if T == SW_TILES - 1 and w >= 1: e.lg_wait(("vo", w))
    attn_pass(e, R, SW_TILES, 0, Kf0, Vf0, S_PB, 0, k_wait=k_wait_A, v_wait=vwait_A, pv_hook=pv_hook_A)
    st("A_done")
    e("s_barrier")
    while pend:
        e.vm_depth(o.NB - 1)
        issue_pend()
    st("B_issued")
    e("s_barrier")
    st("bar3")
    pend1 = []
    for T in range(16, SW_TILES):
        for s in range(3): pend1.append(('K', T, s))
    for T in range(SW_TILES):
        for w in range(3): pend1.append(('V', T, w))
    slot_of = {it: i for i, it in enumerate(pend1)}
    freed = [0]
    issued1 = [0]
    cur2 = [None]
    def issue1():
        it = pend1[issued1[0]]; kind, T, x = it
        if cur2[0] != (kind, T):
            kv_soff(e, S_KV1, T); cur2[0] = (kind, T)
        e.vm_depth(o.NC - 1)
        if kind == 'K': ld_k(e, R, slot_reg(slot_of[it]), x, ('K1', T, x), o)
        else: ld_v(e, R, slot_reg(slot_of[it]), x, ('V1', T, x), o)
        issued1[0] += 1
    def refill():
        while issued1[0] < len(pend1) and issued1[0] < freed[0]: issue1()
    def qk_hook_C1(T):
        freed[0] = 3 * (T + 1); refill()
    def pv_hook_C1(T):
        freed[0] = min(118, 60 + 3 * (T + 1)); refill(); ovf_hook_C(T)
    def ovf_hook_C(T):
        if T == SW_TILES - 2:
            e.lg(f"ds_read_b128 v[32:35], {vr(R.vlds)} offset:{48*1024}", ("vo", 1))
            e.lg(f"ds_read_b128 v[28:31], {vr(R.vlds)} offset:{49*1024}", ("vo", 2))
    def vwait_C1(T, w):
        if T == SW_TILES - 1 and w >= 1: e.lg_wait(("vo", w))
    e(f"s_add_u32 s{S_T2}, s{S_LDSB}, {48*1024}")
    attn_pass(e, R, SW_TILES, 0, Kf0, Vf0, S_T2, 32, qk_hook=qk_hook_C1, v_wait=vwait_C1, pv_hook=pv_hook_C1)
    refill()
    assert issued1[0] == len(pend1)
    st("C1_done")
    e("s_barrier")
    stage = [40 + 4 * (k - 64) for k in range(100, 112)]
    def Kf1(T, s):
        if T < 16: return ('lds', (3 * T + s) * 1024)
        return slot_reg(slot_of[('K', T, s)])
    def Vf1(T, w): return slot_reg(slot_of[('V', T, w)])
    def k_wait_C2(T):
        if T == -1: e.vm_wait(('K1', 15, 2))
        elif T >= 16: e.vm_wait(('K1', T, 2))
    def vwait_C2(T, w): e.vm_wait(('V1', T, w))
    attn_pass(e, R, SW_TILES, 1, Kf1, Vf1, S_PB, 0, k_wait=k_wait_C2, v_wait=vwait_C2, stage=stage)
    st("C2_done")
    e("s_barrier")
    if o.wb == 2: emit_wb(e)
    e("s_barrier")
    st("bar7")
    attn_pass(e, R, SW_TILES, 1, Kf1, Vf1, S_PB, 0, stage=stage)
    st("E_done")
    e("s_barrier")
    if o.wb == 1: emit_wb(e)
    st.flush()
    e("s_endpgm")

V_LANE, V_LG, V_R, V_PL, V_PG, V_PQ = 0, 4, 5, 6, 7, 8
V_BO, V_BX, V_BX8, V_BH, V_BH8, V_AS, V_AS8 = 9, 10, 11, 12, 13, 14, 15
V_XR, V_CSQ, V_CSG = 16, 20, 24
V_W8, V_WX, V_WH, V_ML = 28, 29, 30, 31
W0 = 32
V_SEL, V_R2, V_ST2, V_PS, V_PSQ, V_L16 = 75, 79, 80, 81, 82, 83
V_T = 84
V_GL, V_LL = 72, 73
CW_K, CW_V = 86, 134
S_N1 = 74

_off3 = (2, 6, 0)
def wq_frag(t, s): return ("a", 10 * t + _off3[s])
def wo_frag(t, s): return ("a", 120 + 24 * t + 4 * s)
def wd_frag(t, s):
    if s == 0: return ("a", 240 + 4 * t) if t < 4 else ("v", 182)
    return ("v", 186 + 2 * t)
def wg_frag(t, s): return ("v", 196 + 10 * t + _off3[s])
def wu_frag(t, s): return ("v", 226 + 10 * t + _off3[s])
def win(fr): return f"{fr[0]}[{fr[1]}:{fr[1]+3}]"

V_OOB = 74
def selmask(e, dst, val, mask, other=None):
    e(f"s_mov_b32 vcc_lo, 0x{mask & 0xffffffff:08x}"); e(f"s_mov_b32 vcc_hi, 0x{mask >> 32:08x}")
    if other is None: e(f"v_cndmask_b32 {vr(dst)}, v{V_OOB}, {vr(val)}, vcc")
    else:
        assert dst != val
        e(f"v_mov_b32 {vr(dst)}, 0x{other:08x}")
        e(f"v_cndmask_b32 {vr(dst)}, {vr(dst)}, {vr(val)}, vcc")

def rows_mask(live, n): return mask64([32 * r + g for r in live for g in range(n)])
def cols_mask(live, alist=range(4)): return mask64([16 * a + n for a in alist for n in live])

def instance_offsets(e, live, pub_live=None, q_live=None):
    pub_live = live if pub_live is None else pub_live
    q_live = pub_live if q_live is None else q_live
    t, u = V_T, V_T + 1
    e(f"v_and_b32 {vr(t)}, 31, v{V_LANE}"); e(f"v_lshlrev_b32 {vr(t)}, 4, {vr(t)}")
    e(f"v_lshrrev_b32 {vr(u)}, 5, v{V_LANE}"); e(f"v_lshl_add_u32 {vr(t)}, {vr(u)}, 9, {vr(t)}")
    selmask(e, V_LG, t, rows_mask(live, 20))
    selmask(e, V_R2, t, rows_mask(live, 24))
    e(f"v_and_b32 v{V_GL}, 7, v{V_LANE}"); e(f"v_lshlrev_b32 v{V_GL}, 10, v{V_GL}"); e(f"v_add_u32 v{V_GL}, {512*live[-1] + 19*16}, v{V_GL}")
    e(f"v_and_b32 v{V_LL}, 3, v{V_LANE}"); e(f"v_lshlrev_b32 v{V_LL}, 10, v{V_LL}"); e(f"v_add_u32 v{V_LL}, {512*live[-1] + 19*16}, v{V_LL}")
    e(f"v_and_b32 {vr(t)}, 7, v{V_LANE}"); e(f"v_lshlrev_b32 {vr(t)}, 10, {vr(t)}")
    e(f"v_lshl_add_u32 {vr(t)}, {vr(u)}, 9, {vr(t)}"); e(f"v_add_u32 {vr(t)}, 384, {vr(t)}")
    selmask(e, V_ST2, t, rows_mask(live, 32))
    e(f"v_and_b32 {vr(t)}, 15, v{V_LANE}"); e(f"v_lshrrev_b32 {vr(u)}, 4, v{V_LANE}")
    e(f"v_lshlrev_b32 v{V_PL}, 9, {vr(t)}")
    e(f"v_lshl_add_u32 v{V_PG}, {vr(u)}, 5, v{V_PL}")
    e(f"v_add_u32 v{V_PS}, 384, v{V_PL}")
    e(f"v_lshl_add_u32 v{V_PL}, {vr(u)}, 4, v{V_PL}")
    e(f"v_lshlrev_b32 v{V_PQ}, 18, {vr(t)}")
    e(f"v_add_u32 v{V_PSQ}, 768, v{V_PQ}")
    e(f"v_lshl_add_u32 v{V_PQ}, {vr(u)}, 4, v{V_PQ}")
    cm = cols_mask(pub_live)
    e(f"s_mov_b32 vcc_lo, 0x{cm & 0xffffffff:08x}"); e(f"s_mov_b32 vcc_hi, 0x{cm >> 32:08x}")
    for r in (V_PL, V_PG): e(f"v_cndmask_b32 v{r}, v{V_OOB}, v{r}, vcc")
    selmask(e, V_PS, V_PS, cols_mask(pub_live, [0]))
    selmask(e, V_PQ, V_PQ, cols_mask(q_live))
    selmask(e, V_PSQ, V_PSQ, cols_mask(q_live, [0]))

def soffs(e, off_sreg, const, two=True):
    e(f"s_add_u32 s{S_A}, s{off_sreg}, {const}")
    if two: e(f"s_add_u32 s{S_B}, s{S_A}, 4096")

def poll(e, o, loads, abort, sleep=0):
    lab = e.newlabel("poll")
    e(f"s_mov_b32 s{S_CNT}, {o.poll_limit}")
    e.label(lab)
    for d, vo, s, imm in loads:
        e(f"buffer_load_dwordx4 {vr(d,4)}, v{vo}, s[{SRD_WS}:{SRD_WS+3}], s{s} offen offset:{imm} sc1")
    e(f"s_sub_u32 s{S_CNT}, s{S_CNT}, 1")
    e(f"s_cbranch_scc1 {abort}")
    e("s_waitcnt vmcnt(0)")
    vals = []
    for d, _, _, _ in loads: vals += [d + 1, d + 3]
    t = V_T
    e(f"v_max3_u32 v{t}, v{vals[0]}, v{vals[1]}, v{vals[2]}")
    i = 3
    while i < len(vals):
        if i + 1 < len(vals): e(f"v_max3_u32 v{t}, v{t}, v{vals[i]}, v{vals[i+1]}"); i += 2
        else: e(f"v_max_u32 v{t}, v{t}, v{vals[i]}"); i += 1
    e(f"v_cmp_eq_u32 vcc, -1, v{t}")
    if sleep:
        ok = e.newlabel("pok"); e(f"s_cbranch_vccz {ok}"); e(f"s_sleep {sleep}"); e(f"s_branch {lab}"); e.label(ok)
    else: e(f"s_cbranch_vccnz {lab}")
    e.vmq = []

def gather8(e, o, vo, abort, extra=None, n=8, base=W0):
    loads = [(base + 4 * k, vo, S_A if k < 4 else S_B, (k % 4) * 1024) for k in range(n)]
    if extra: loads.append((base + 4 * n, extra, S_A, 0))
    poll(e, o, loads, abort)

def sum_loads(e, n, base=W0):
    step = 1
    while step < n:
        for k in range(0, n, 2 * step):
            if k + step < n:
                a, b = base + 4 * k, base + 4 * (k + step)
                e(f"v_pk_add_f32 {vr(a,2)}, {vr(a,2)}, {vr(b,2)}")
                e(f"v_pk_add_f32 {vr(a+2,2)}, {vr(a+2,2)}, {vr(b+2,2)}")
        step *= 2

def dpp8(e, reg, op):
    for m in ("quad_perm:[1,0,3,2]", "quad_perm:[2,3,0,1]", "row_half_mirror"):
        e(f"v_{op}_f32_dpp v{reg}, v{reg}, v{reg} {m} row_mask:0xf bank_mask:0xf")
def dpp8x2(e, r0, r1, op):
    for m in ("quad_perm:[1,0,3,2]", "quad_perm:[2,3,0,1]", "row_half_mirror"):
        e(f"v_{op}_f32_dpp v{r0}, v{r0}, v{r0} {m} row_mask:0xf bank_mask:0xf")
        e(f"v_{op}_f32_dpp v{r1}, v{r1}, v{r1} {m} row_mask:0xf bank_mask:0xf")

def ln_from_stats(e, s1, s2, mean, rstd):
    e(f"v_mul_f32 v{mean}, {lit(1/640)}, v{s1}")
    e(f"v_mul_f32 v{s2}, {lit(1/640)}, v{s2}")
    e(f"v_fma_f32 v{s2}, -v{mean}, v{mean}, v{s2}")
    e(f"v_max_f32 v{s2}, 0, v{s2}")
    e(f"v_add_f32 v{s2}, {lit(EPS)}, v{s2}")
    e(f"v_rsq_f32 v{rstd}, v{s2}")

def pub(e, D, vo, sreg, imm, fl, tag):
    e.vm(f"buffer_store_dwordx4 {vr(D,4)}, v{vo}, s[{SRD_WS}:{SRD_WS+3}], s{sreg} offen offset:{imm} {fl}", tag)

def run_tiles(e, tiles, accs, store, btags=None, twait=None):
    n = len(accs); lag = n - 1
    for i, (tid, steps) in enumerate(tiles):
        D = vr(accs[i % n], 4)
        if twait and tid in twait: e.lg_wait(twait[tid])
        for s, (A, B) in enumerate(steps):
            if i == 0 and btags: e.lg_wait(btags[s])
            e(f"v_mfma_f32_16x16x32_bf16 {D}, {A}, {B}, {'0' if s == 0 else D}")
        if i >= lag: store(tiles[i - lag][0], accs[(i - lag) % n])
    for i in range(max(0, len(tiles) - lag), len(tiles)): store(tiles[i][0], accs[i % n])

def read_bx(e, B):
    e.lg(f"ds_read_b128 {vr(B,4)}, v{V_BX}", "b0"); e.lg(f"ds_read_b128 {vr(B+4,4)}, v{V_BX} offset:64", "b1")
    e.lg(f"ds_read_b64 {vr(B+8,2)}, v{V_BX8}", "b2")
    e(f"v_mov_b32 v{B+10}, 0"); e(f"v_mov_b32 v{B+11}, 0")
def read_as(e, A):
    e.lg(f"ds_read_b128 {vr(A,4)}, v{V_AS}", "a0"); e.lg(f"ds_read_b128 {vr(A+4,4)}, v{V_AS} offset:64", "a1")
    e.lg(f"ds_read_b64 {vr(A+8,2)}, v{V_AS8}", "a2")
    e(f"v_mov_b32 v{A+10}, 0"); e(f"v_mov_b32 v{A+11}, 0")

def stage_Q(e, fl, reg_index, shadow=None):
    B, A = W0 + 8, W0 + 20
    read_bx(e, B); read_as(e, A)
    e(f"s_add_u32 s{S_A}, s{S_ROWN}, {reg_index*RG}")
    if shadow: shadow()
    tiles = [(t, [(win(wq_frag(t, s)), vr(B + 4 * s, 4)) for s in range(3)]) for t in range(12)]
    tiles.insert(1, (12, [(vr(A + 4 * s, 4), vr(B + 4 * s, 4)) for s in range(3)]))
    SD = W0 + 4
    def store(t, D): pub(e, D, V_PQ, S_A, 64 * t, fl, ("pq", t))
    first, stats, rest = tiles[0], tiles[1], tiles[2:]
    run_tiles(e, [first], [W0 + 32, W0 + 36], lambda t, D: None, btags=["b0", "b1", "b2"])
    e.lg_wait("a2")
    for s, (Aop, Bop) in enumerate(stats[1]):
        e(f"v_mfma_f32_16x16x32_bf16 {vr(SD,4)}, {Aop}, {Bop}, {'0' if s == 0 else vr(SD,4)}")
    accs = [W0 + 36, W0, W0 + 20, W0 + 32]
    pend = [(0, W0 + 32)]
    for i, (t, steps) in enumerate(rest):
        D = accs[i % 4]
        for s, (Aop, Bop) in enumerate(steps):
            e(f"v_mfma_f32_16x16x32_bf16 {vr(D,4)}, {Aop}, {Bop}, {'0' if s == 0 else vr(D,4)}")
        pend.append((t, D))
        if i >= 2: store(*pend.pop(0))
    e(f"v_cndmask_b32 v{SD+1}, v{SD+1}, v{SD+2}, s[{S_N1}:{S_N1+1}]")
    while pend: store(*pend.pop(0))
    pub(e, SD, V_PSQ, S_A, 0, fl, "pqs")

def stage_GU(e, fl, const, with_stats=True, shadow=None):
    B, A = W0 + 8, W0 + 20
    read_bx(e, B)
    if with_stats: read_as(e, A)
    e(f"s_add_u32 s{S_A}, s{S_ROWN}, {const}" if const >= 0 else f"s_sub_u32 s{S_A}, s{S_ROWN}, {-const}")
    if shadow: shadow()
    def tile(d, f, waits=None):
        d = vr(d, 4)
        for s in range(3):
            if waits: e.lg_wait(waits[s])
            e(f"v_mfma_f32_16x16x32_bf16 {d}, {f(s)}, {vr(B+4*s,4)}, {'0' if s == 0 else d}")
    def store(t, G, U):
        e(f"v_swap_b32 v{G+2}, v{U}"); e(f"v_swap_b32 v{G+3}, v{U+1}")
        pub(e, G, V_PG, S_A, 128 * t, fl, ("pg", t, 0))
        pub(e, U, V_PG, S_A, 128 * t + 16, fl, ("pg", t, 1))
    g = lambda t: (lambda s: win(wg_frag(t, s)))
    u = lambda t: (lambda s: win(wu_frag(t, s)))
    P0, P1, S = (W0 + 32, W0 + 36), (W0 + 20, W0 + 24), W0
    tile(P0[0], g(0), waits=["b0", "b1", "b2"]); tile(P0[1], u(0))
    if with_stats:
        e.lg_wait("a2")
        tile(S, lambda s: vr(A + 4 * s, 4))
    tile(P1[0], g(1)); tile(P1[1], u(1))
    store(0, *P0)
    if with_stats: e(f"v_cndmask_b32 v{S+1}, v{S+1}, v{S+2}, s[{S_N1}:{S_N1+1}]")
    tile(P0[0], g(2)); tile(P0[1], u(2))
    store(1, *P1)
    store(2, *P0)
    if with_stats: pub(e, S, V_PS, S_A, 0, fl, "pgs")

def stage_WO(e, fl, region):
    B = W0
    for s in range(6): e.lg(f"ds_read_b128 {vr(B+4*s,4)}, v{V_BO} offset:{64*s}", ("o", s))
    e(f"s_add_u32 s{S_A}, s{S_LOWN}, {region*RG}")
    tiles = [(t, [(win(wo_frag(t, s)), vr(B+4*s,4)) for s in range(6)]) for t in range(5)]
    run_tiles(e, tiles, [W0 + 24, W0 + 28, W0 + 32], lambda t, D: pub(e, D, V_PL, S_A, 64 * t, fl, ("po", t)), btags=[("o", s) for s in range(6)])

def stage_D(e, fl, region):
    B = W0
    e.lg(f"ds_read_b128 {vr(B,4)}, v{V_BH}", "h0"); e.lg(f"ds_read_b64 {vr(B+4,2)}, v{V_BH8}", "h1")
    e(f"v_mov_b32 v{B+6}, 0"); e(f"v_mov_b32 v{B+7}, 0")
    e(f"s_add_u32 s{S_A}, s{S_LOWN}, {region*RG}")
    tiles = [(t, [(win(wd_frag(t, 0)), vr(B,4)), (win(wd_frag(t, 1)), vr(B+4,4))]) for t in range(5)]
    run_tiles(e, tiles, [W0 + 8 + 4 * i for i in range(5)], lambda t, D: pub(e, D, V_PL, S_A, 64 * t, fl, ("pd", t)), btags=["h0", "h1"])

def fast_gather(e, o, loads, body, abort, pre=0, early=False):
    n = len(loads); t = V_T
    lab = e.newlabel("fpoll")
    e(f"s_mov_b32 s{S_CNT}, {o.poll_limit}")
    if pre: e(f"s_sleep {pre}")
    e.label(lab)
    for d, vo, s, imm in loads:
        e(f"buffer_load_dwordx4 {vr(d,4)}, v{vo}, s[{SRD_WS}:{SRD_WS+3}], s{s} offen offset:{imm} sc1")
    e(f"s_sub_u32 s{S_CNT}, s{S_CNT}, 1")
    e(f"s_cbranch_scc1 {abort}")
    first = [True]
    if early:
        d = loads[0][0]
        e(f"s_waitcnt vmcnt({n-1})")
        e(f"v_max_u32 v{t}, v{d+1}, v{d+3}")
        e(f"v_cmp_eq_u32 vcc, -1, v{t}")
        e(f"s_cbranch_vccnz {lab}")
        first[0] = False
    def wait(k): e(f"s_waitcnt vmcnt({n-1-k})")
    def chk(k):
        d = loads[k][0]
        if first[0]: e(f"v_max_u32 v{t}, v{d+1}, v{d+3}"); first[0] = False
        else: e(f"v_max3_u32 v{t}, v{t}, v{d+1}, v{d+3}")
    body(wait, chk)
    e(f"v_cmp_eq_u32 vcc, -1, v{t}")
    e(f"s_cbranch_vccnz {lab}")
    e.vmq = []

def padd(e, a, b, neg=False):
    m = " neg_lo:[0,1] neg_hi:[0,1]" if neg else ""
    e(f"v_pk_add_f32 {vr(a,2)}, {vr(a,2)}, {vr(b,2)}{m}"); e(f"v_pk_add_f32 {vr(a+2,2)}, {vr(a+2,2)}, {vr(b+2,2)}{m}")

def g_soffs(e, off_sreg, const, two=True):
    e(f"s_add_u32 s{S_GA}, s{off_sreg}, {const}")
    if two: e(f"s_add_u32 s{S_GB}, s{S_GA}, 4096")
def g_loads(vo, n=8, base=W0): return [(base + 4 * k, vo, S_GA if k < 4 else S_GB, (k % 4) * 1024) for k in range(n)]

def hop_LG(e, o, inst, k, abort, final_only=False):
    skip = e.newlabel("notleader")
    e(f"s_cmp_lg_u32 s{S_HQ}, 0"); e(f"s_cbranch_scc1 {skip}")
    g_soffs(e, S_LGRP, L_REG(inst, k) * RG, two=False)
    e(f"s_add_u32 s{S_A}, s{S_GOWN}, {G_OFF(inst,k)}")
    X = W0 + 32
    off = 1 if o.early else 0
    def body4(wait, chk):
        wait(off + 1); chk(off); chk(off + 1); padd(e, W0, W0 + 4)
        wait(off + 2); chk(off + 2); padd(e, W0, W0 + 8)
        wait(off + 3); chk(off + 3); padd(e, W0, W0 + 12)
    fast_gather(e, o, ([(X, V_LL, S_GA, 0)] if o.early else []) + g_loads(V_LG, 4), body4, abort, pre=o.preL, early=o.early)
    e(f"buffer_store_dwordx4 {vr(W0,4)}, v{V_LG}, s[{SRD_WS}:{SRD_WS+3}], s{S_A} offen sc1")
    e.label(skip)
    if final_only:
        e(f"s_cmp_lg_u32 s{S_H}, 0"); e(f"s_cbranch_scc1 L_done")
    g_soffs(e, S_GGRP, G_OFF(inst, k))
    e.vmq = []
    def body8(wait, chk):
        c = lambda k: chk(off + k)
        w = lambda k: wait(off + k)
        w(1); c(0); c(1); padd(e, W0, V_XR); padd(e, W0, W0 + 4)
        w(3); c(2); c(3); padd(e, W0 + 8, W0 + 12); padd(e, W0, W0 + 8)
        w(5); c(4); c(5); padd(e, W0 + 16, W0 + 20); padd(e, W0, W0 + 16)
        w(6); c(6); padd(e, W0, W0 + 24)
        w(7); c(7); padd(e, W0, W0 + 28)
    fast_gather(e, o, ([(X, V_GL, S_GA, 0)] if o.early else []) + g_loads(V_LG, 8), body8, abort, pre=o.preG, early=o.early)

def residual_update(e):
    e(f"v_cvt_pk_bf16_f32 v{W0+4}, v{W0}, v{W0+1}")
    e(f"v_cvt_pk_bf16_f32 v{W0+5}, v{W0+2}, v{W0+3}")
    e.lg(f"ds_write_b64 v{V_WX}, {vr(W0+4,2)}", "wx")
def residual_unpack(e, p):
    e(f"v_lshlrev_b32 v{V_XR}, 16, v{p}"); e(f"v_and_b32 v{V_XR+1}, 0xffff0000, v{p}")
    e(f"v_lshlrev_b32 v{V_XR+2}, 16, v{p+1}"); e(f"v_and_b32 v{V_XR+3}, 0xffff0000, v{p+1}")

def store_out(e, row):
    skip = e.newlabel("noout")
    e(f"s_cmp_lg_u32 s{S_H}, 0"); e(f"s_cbranch_scc1 {skip}")
    make_srd(e, SRD_T, S_OUT, 2560)
    e(f"v_and_b32 v{V_T}, 31, v{V_LANE}"); e(f"v_lshlrev_b32 v{V_T}, 3, v{V_T}")
    e(f"s_mul_i32 s{S_T0}, s{S_J}, 160"); e(f"s_add_u32 s{S_T0}, s{S_T0}, {row*1280}")
    selmask(e, V_T, V_T, rows_mask([row], 20))
    e(f"buffer_store_dwordx2 {vr(W0+4,2)}, v{V_T}, s[{SRD_T}:{SRD_T+3}], s{S_T0} offen")
    e.label(skip)

def combine_publish(e, fl, parts, mlbase, region):
    T = W0
    e(f"v_mov_b32 v{V_T}, {mlbase}")
    e.lg(f"ds_read_b128 {vr(T,4)}, v{V_T}", "ml0"); e.lg(f"ds_read_b128 {vr(T+4,4)}, v{V_T} offset:16", "ml1")
    P = T + 8
    cur = None
    for w in range(4):
        if cur is None or not (0 <= parts[w] - cur < 60000):
            e(f"v_add_u32 v{V_T+1}, {parts[w]}, v{V_L16}"); cur = parts[w]
        for par in range(2):
            e.lg(f"ds_read_b128 {vr(P+8*w+4*par,4)}, v{V_T+1} offset:{parts[w] - cur + 768*par}", ("p", w, par))
    e(f"s_add_u32 s{S_A}, s{S_ROWN}, {region*RG}")
    e.lg_wait("ml1")
    m = [T, T + 2, T + 4, T + 6]; l = [T + 1, T + 3, T + 5, T + 7]
    M, Ls = V_T, V_T + 1
    e(f"v_max3_f32 v{M}, v{m[0]}, v{m[1]}, v{m[2]}"); e(f"v_max_f32 v{M}, v{M}, v{m[3]}")
    for w in range(4): e(f"v_sub_f32 v{m[w]}, v{m[w]}, v{M}")
    for w in range(4): e(f"v_exp_f32 v{m[w]}, v{m[w]}")
    e(f"v_mul_f32 v{Ls}, v{m[0]}, v{l[0]}")
    for w in range(1, 4): e(f"v_fma_f32 v{Ls}, v{m[w]}, v{l[w]}, v{Ls}")
    for w in range(4):
        e.lg_wait(("p", w, 1))
        a = P + 8 * w
        e(f"v_pk_add_f32 {vr(a,2)}, {vr(a,2)}, {vr(a+4,2)}"); e(f"v_pk_add_f32 {vr(a+2,2)}, {vr(a+2,2)}, {vr(a+6,2)}")
        for r in range(4):
            if w == 0: e(f"v_mul_f32 v{P+r}, v{m[0]}, v{P+r}")
            else: e(f"v_fmac_f32 v{P+r}, v{m[w]}, v{a+r}")
    e(f"s_mov_b32 vcc_lo, 0"); e(f"s_mov_b32 vcc_hi, 0x00010000")
    e(f"v_cndmask_b32 v{P}, v{P}, v{M}, vcc"); e(f"v_cndmask_b32 v{P+1}, v{P+1}, v{Ls}, vcc")
    pub(e, P, V_R, S_A, 0, fl, "r1")

SW8 = [4, 6, 8, 10, 12, 16, 18, 20]
def hop_R1(e, o, region, row, abort):
    g_soffs(e, S_RGRP, region * RG)
    X = W0 + 32
    M, wv = X + 2, X + 3
    acc = W0 + 36
    loads = [(X, V_ML, S_GA, 0)] + g_loads(V_R)
    def body(wait, chk):
        if not o.early: wait(0); chk(0)
        e(f"v_mov_b32 v{M}, v{X}")
        dpp8(e, M, "max")
        e(f"v_sub_f32 v{wv}, v{X}, v{M}"); e(f"v_exp_f32 v{wv}, v{wv}")
        wait(4); chk(1); chk(2)
        e(f"v_mul_f32 v{X+1}, v{wv}, v{X+1}")
        chk(3); chk(4)
        e(f"v_add_f32_dpp v{X+1}, v{X+1}, v{X+1} quad_perm:[1,0,3,2] row_mask:0xf bank_mask:0xf")
        wait(8); chk(5); chk(6)
        e(f"v_add_f32_dpp v{X+1}, v{X+1}, v{X+1} quad_perm:[2,3,0,1] row_mask:0xf bank_mask:0xf")
        chk(7); chk(8)
        e(f"v_add_f32_dpp v{X+1}, v{X+1}, v{X+1} row_half_mirror row_mask:0xf bank_mask:0xf")
        e(f"v_rcp_f32 v{X+1}, v{X+1}")
        e(f"v_mul_f32 v{wv}, v{wv}, v{X+1}")
        for k in range(8): e(f"v_readlane_b32 s{SW8[k]}, v{wv}, {k}")
        for k in range(8):
            for h in range(2):
                a, m = acc + 2 * h, W0 + 4 * k + 2 * h
                sp = f"s[{SW8[k]}:{SW8[k]+1}]"
                if k == 0: e(f"v_pk_mul_f32 {vr(a,2)}, {vr(m,2)}, {sp} op_sel_hi:[1,0]")
                else: e(f"v_pk_fma_f32 {vr(a,2)}, {vr(m,2)}, {sp}, {vr(a,2)} op_sel_hi:[1,0,1]")
    fast_gather(e, o, loads, body, abort, pre=o.preR, early=o.early)
    e(f"v_cvt_pk_bf16_f32 v{acc}, v{acc}, v{acc+1}"); e(f"v_cvt_pk_bf16_f32 v{acc+1}, v{acc+2}, v{acc+3}")
    e.lg(f"ds_write_b64 v{V_W8}, {vr(acc,2)} offset:{ACT_O - SB + 384*row}", "wo")

def ln_gather(e, o, vo, vstat, cs, abort):
    X = W0 + 32; mean, rstd = X + 2, X + 3; T = W0 + 36
    loads = [(X, vstat, S_GA, 0)] + g_loads(vo)
    q = lambda r, m: e(f"v_add_f32_dpp v{r}, v{r}, v{r} {m} row_mask:0xf bank_mask:0xf")
    def body(wait, chk):
        if not o.early: wait(0); chk(0)
        q(X, "quad_perm:[1,0,3,2]"); q(X + 1, "quad_perm:[1,0,3,2]")
        wait(2); chk(1)
        q(X, "quad_perm:[2,3,0,1]"); q(X + 1, "quad_perm:[2,3,0,1]")
        chk(2)
        q(X, "row_half_mirror"); q(X + 1, "row_half_mirror")
        padd(e, W0, W0 + 4)
        e(f"v_mul_f32 v{mean}, {lit(1/640)}, v{X}"); e(f"v_mul_f32 v{X+1}, {lit(1/640)}, v{X+1}")
        wait(4); chk(3); chk(4)
        e(f"v_fma_f32 v{X+1}, -v{mean}, v{mean}, v{X+1}")
        padd(e, W0 + 8, W0 + 12)
        e(f"v_max_f32 v{X+1}, 0, v{X+1}"); e(f"v_add_f32 v{X+1}, {lit(EPS)}, v{X+1}")
        padd(e, W0, W0 + 8)
        e(f"v_rsq_f32 v{rstd}, v{X+1}")
        wait(6); chk(5); chk(6)
        e(f"v_pk_mul_f32 {vr(T,2)}, {vr(cs,2)}, {vr(mean,2)} op_sel_hi:[1,0]"); e(f"v_pk_mul_f32 {vr(T+2,2)}, {vr(cs+2,2)}, {vr(mean,2)} op_sel_hi:[1,0]")
        padd(e, W0 + 16, W0 + 20); padd(e, W0, T, neg=True); padd(e, W0, W0 + 16)
        wait(7); chk(7); padd(e, W0, W0 + 24)
        wait(8); chk(8); padd(e, W0, W0 + 28)
    fast_gather(e, o, loads, body, abort, pre=o.preR, early=o.early)
    e(f"v_pk_mul_f32 {vr(W0,2)}, {vr(W0,2)}, {vr(mean,2)} op_sel:[0,1] op_sel_hi:[1,1]")
    e(f"v_pk_mul_f32 {vr(W0+2,2)}, {vr(W0+2,2)}, {vr(mean,2)} op_sel:[0,1] op_sel_hi:[1,1]")

def hop_R2(e, o, inst, abort):
    ln_gather(e, o, V_R2, V_ST2, V_CSG, abort)
    e(f"v_max_f32 v{W0}, 0, v{W0}"); e(f"v_max_f32 v{W0+1}, 0, v{W0+1}")
    e(f"v_pk_mul_f32 {vr(W0,2)}, {vr(W0,2)}, {vr(W0+2,2)}")
    e(f"v_cvt_pk_bf16_f32 v{W0}, v{W0}, v{W0+1}")
    e.lg(f"ds_write_b32 v{V_WH}, v{W0}", "wh")

def q_consume(e, base, X, row):
    dpp8x2(e, X, X + 1, "add")
    sum_loads(e, 8, base)
    mean, rstd = X + 2, X + 3
    ln_from_stats(e, X, X + 1, mean, rstd)
    for r in range(4): e(f"v_fma_f32 v{base+r}, -v{mean}, v{V_CSQ+r}, v{base+r}")
    for r in range(4): e(f"v_mul_f32 v{base+r}, v{rstd}, v{base+r}")
    e(f"v_cvt_pk_bf16_f32 v{base}, v{base}, v{base+1}"); e(f"v_cvt_pk_bf16_f32 v{base+1}, v{base+2}, v{base+3}")
    e.lg(f"ds_write_b64 v{V_W8}, {vr(base,2)} offset:{QARR - SB + 384*row}", "wq")

def hop_R3(e, o, region, row, abort):
    ln_gather(e, o, V_R, V_ML, V_CSQ, abort)
    e(f"v_cvt_pk_bf16_f32 v{W0}, v{W0}, v{W0+1}"); e(f"v_cvt_pk_bf16_f32 v{W0+1}, v{W0+2}, v{W0+3}")
    e.lg(f"ds_write_b64 v{V_W8}, {vr(W0,2)} offset:{QARR - SB + 384*row}", "wq")

def chain(e, o, fl, inst, live, abort, st):
    c = f"c{inst}."
    st.rounds(f"n{inst}.R1")
    st(c + "R1")
    stage_WO(e, fl, L_REG(inst, 0))
    st(c + "WO")
    hop_LG(e, o, inst, 0, abort)
    st.rounds(f"n{inst}.G1")
    st(c + "G1")
    residual_update(e)
    def sh_gu():
        residual_unpack(e, W0 + 4); g_soffs(e, S_RGRP, R2_REG[inst] * RG)
    stage_GU(e, fl, R2_REG[inst] * RG, shadow=sh_gu)
    st(c + "GU")
    hop_R2(e, o, inst, abort)
    st.rounds(f"n{inst}.R2")
    st(c + "R2")
    stage_D(e, fl, L_REG(inst, 1))
    st(c + "D")
    hop_LG(e, o, inst, 1, abort, final_only=(inst == 2))
    st.rounds(f"n{inst}.G2")
    st(c + "G2")
    if inst == 2:
        e(f"v_cvt_pk_bf16_f32 v{W0+4}, v{W0}, v{W0+1}"); e(f"v_cvt_pk_bf16_f32 v{W0+5}, v{W0+2}, v{W0+3}")
        store_out(e, 1)
        e("s_cmp_lg_u32 s2, 0"); e("s_cbranch_scc1 L_done")
        e(f"v_mov_b32 v{V_T}, s{S_TAG}"); e(f"v_mov_b32 v{V_T+1}, {EPOCH_OFF}")
        e("s_mov_b64 exec, 1")
        e(f"buffer_store_dword v{V_T}, v{V_T+1}, s[{SRD_WS}:{SRD_WS+3}], 0 offen sc1")
        e("s_mov_b64 exec, -1")
        return
    residual_update(e)
    qrow = 0 if inst == 0 else 1
    def sh_q():
        residual_unpack(e, W0 + 4); g_soffs(e, S_RGRP, R3_REG[inst] * RG)
        if inst == 1:
            store_out(e, 0)
            cm = cols_mask([1]); e(f"s_mov_b32 vcc_lo, 0x{cm & 0xffffffff:08x}"); e(f"s_mov_b32 vcc_hi, 0x{cm >> 32:08x}")
            e(f"v_cndmask_b32 v{V_PQ}, v{V_OOB}, v{V_PQ}, vcc"); e(f"v_cndmask_b32 v{V_PSQ}, v{V_OOB}, v{V_PSQ}, vcc")
    stage_Q(e, fl, R3_REG[inst] - qrow, shadow=sh_q)
    st(c + "Q")
    hop_R3(e, o, R3_REG[inst], qrow, abort)
    e.lg_all()
    st.rounds(f"n{inst}.R3")
    st(c + "R3")

TOK1 = 21 * RG
TOK2 = TOK1 + 32768
EPOCH_OFF = 896
S_TAG = 73

def emit_resets(e, f):
    e(f"v_mov_b32 v{W0}, -1"); e(f"v_mov_b32 v{W0+1}, -1"); e(f"v_mov_b32 v{W0+2}, -1"); e(f"v_mov_b32 v{W0+3}, -1")
    def reset(vo, sreg, const):
        e(f"s_add_u32 s{S_A}, s{sreg}, {const}")
        e.vm(f"buffer_store_dwordx4 {vr(W0,4)}, v{vo}, s[{SRD_WS}:{SRD_WS+3}], s{S_A} offen {f}", "rst")
    e(f"v_and_b32 v{V_T}, 31, v{V_LANE}"); e(f"v_lshlrev_b32 v{V_T}, 4, v{V_T}")
    e(f"v_lshrrev_b32 v{V_T+1}, 5, v{V_LANE}"); e(f"v_lshl_add_u32 v{V_T}, v{V_T+1}, 9, v{V_T}")
    liv = {0: [0], 1: [0, 1], 2: [1], 'P': [0]}
    skip = e.newlabel("norstg")
    e(f"s_cmp_lg_u32 s{S_HQ}, 0"); e(f"s_cbranch_scc1 {skip}")
    for inst in (0, 1, 2):
        selmask(e, W0 + 4, V_T, rows_mask(liv[inst], 20))
        for k in range(2):
            e(f"s_add_u32 s{S_A}, s{S_GOWN}, {G_OFF(inst,k)}")
            e(f"buffer_store_dwordx4 {vr(W0,4)}, v{W0+4}, s[{SRD_WS}:{SRD_WS+3}], s{S_A} offen sc1")
    e.label(skip)
    for r in [4, 5, 6]: reset(V_R, S_ROWN, r * RG)
    selmask(e, W0 + 4, V_T, rows_mask(liv['P'], 24))
    reset(W0 + 4, S_ROWN, R2_REG['P'] * RG)
    for r in [7, 8] + list(R1_REG.values()): reset(V_R, S_ROWN, r * RG)
    for inst in (0, 1, 2):
        selmask(e, W0 + 4, V_T, rows_mask(liv[inst], 25))
        reset(W0 + 4, S_ROWN, R2_REG[inst] * RG)
        selmask(e, W0 + 4, V_T, rows_mask(liv[inst], 20))
        for k in range(2): reset(W0 + 4, S_LOWN, L_REG(inst, k) * RG)

def token_store(e, base, second):
    e(f"s_lshl_b32 s{S_A}, s2, 7"); e(f"s_add_u32 s{S_A}, s{S_A}, {base}")
    e(f"v_mov_b32 v{W0+40}, s{S_TAG}"); e(f"v_mov_b32 v{W0+41}, {second}"); e(f"v_mov_b32 v{V_T}, 0")
    e("s_mov_b64 exec, 1")
    e.vm(f"buffer_store_dwordx2 {vr(W0+40,2)}, v{V_T}, s[{SRD_WS}:{SRD_WS+3}], s{S_A} offen sc1", "tok")
    e("s_mov_b64 exec, -1")

def token_gather(e, o, base, vo, mask, sleep=0):
    lab = e.newlabel("tok")
    e(f"s_mov_b32 s{S_A}, {base}")
    set_exec(e, mask)
    e(f"s_mov_b32 s{S_CNT}, {o.poll_limit}")
    e.label(lab)
    e(f"buffer_load_dwordx2 {vr(W0,2)}, v{vo}, s[{SRD_WS}:{SRD_WS+3}], s{S_A} offen sc1")
    e(f"s_sub_u32 s{S_CNT}, s{S_CNT}, 1"); e(f"s_cbranch_scc1 L_abort")
    e("s_waitcnt vmcnt(0)")
    e(f"v_cmp_ne_u32 vcc, s{S_TAG}, v{W0}")
    if sleep:
        ok = e.newlabel("tokok"); e(f"s_cbranch_vccz {ok}"); e(f"s_sleep {sleep}"); e(f"s_branch {lab}"); e.label(ok)
    else: e(f"s_cbranch_vccnz {lab}")
    e.vmq = []

def tr_block(e, items):
    i, g, r, c, t = W0, W0 + 1, W0 + 2, W0 + 3, W0 + 4
    a32, a16 = W0 + 6, W0 + 7
    def tr_setup():
        e(f"v_and_b32 v{i}, 15, v{V_LANE}"); e(f"v_lshrrev_b32 v{g}, 4, v{V_LANE}")
        e(f"v_lshrrev_b32 v{r}, 2, v{i}"); e(f"v_and_b32 v{c}, 3, v{i}")
    def trbase(dst, stride, rows_per_g, base):
        e(f"v_mul_u32_u24 v{t}, {rows_per_g}, v{g}"); e(f"v_add_u32 v{t}, v{t}, v{r}")
        e(f"v_mul_u32_u24 v{t}, {stride}, v{t}"); e(f"v_lshl_add_u32 v{dst}, v{c}, 3, v{t}")
        if base: e(f"v_add_u32 v{dst}, {base}, v{dst}")
    def tr(frag, addr, off, k16, stride):
        f, lo = frag
        e.lg(f"ds_read_b64_tr_b16 {f}[{lo}:{lo+1}], v{addr} offset:{off}", "tr")
        if not k16: e.lg(f"ds_read_b64_tr_b16 {f}[{lo+2}:{lo+3}], v{addr} offset:{off+4*stride}", "tr")
        if len(e.lgq) >= 12: e.lg_wait_n(4)
    if True:
        tr_setup()
        for frag, nt, stride, base, ks in items:
            trbase(a32, stride, 8, base); trbase(a16, stride, 4, base)
            nk = len(ks)
            for tt in range(nt):
                for s, k0 in enumerate(ks):
                    k16 = (frag is not wo_frag) and s == nk - 1
                    tr(frag(tt, s), a16 if k16 else a32, k0 * stride + 32 * tt, k16, stride)
        e.lg_all()

def prologue_weights(e, o, st):
    abort = "L_abort"
    e(f"v_mov_b32 v{W0+2}, 0x3f803f80"); e(f"v_mov_b32 v{W0+3}, 0x3f803f80")
    e(f"v_lshlrev_b32 v{W0+4}, 3, v{V_LANE}"); e(f"v_add_u32 v{W0+4}, {ACT_X+384}, v{W0+4}")
    set_exec(e, mask64(range(24)))
    e.lg(f"ds_write_b64 v{W0+4}, {vr(W0+2,2)}", "ones")
    e("s_mov_b64 exec, -1")
    e.lg(f"ds_write_b64 v{V_WX}, {vr(V_XR,2)}", "wx")
    e(f"v_lshlrev_b32 v{V_XR+2}, 16, v{V_XR+1}"); e(f"v_and_b32 v{V_XR+3}, 0xffff0000, v{V_XR+1}")
    e(f"v_and_b32 v{V_XR+1}, 0xffff0000, v{V_XR}"); e(f"v_lshlrev_b32 v{V_XR}, 16, v{V_XR}")
    e.lg_all()
    lab = e.newlabel("wflag")
    e(f"v_mov_b32 v{V_T+1}, {WFLAG}")
    e(f"s_mov_b32 s{S_CNT}, {o.poll_limit*8}")
    e.label(lab)
    e(f"ds_read_b96 {vr(W0,3)}, v{V_T+1}")
    e(f"s_sub_u32 s{S_CNT}, s{S_CNT}, 1"); e(f"s_cbranch_scc1 {abort}")
    e("s_waitcnt lgkmcnt(0)")
    e(f"v_and_b32 v{W0}, v{W0}, v{W0+1}"); e(f"v_and_b32 v{W0}, v{W0}, v{W0+2}")
    e(f"v_cmp_ne_u32 vcc, 1, v{W0}")
    e(f"s_cbranch_vccnz {lab}")
    st("p.wland")
    tr_block(e, [(wq_frag, 12, 384, ST_WQ, (0, 32, 64)), (wg_frag, 3, 96, ST_WG, (0, 32, 64)), (wu_frag, 3, 96, ST_WU, (0, 32, 64))])
    st("p.weights")

def chain_wave(e, o, st, local):
    fl = "" if local else "sc1"
    abort = "L_abort"
    R = NS(vlds=V_L16, voffK=1, voffX=2, voffY=3, sel=V_SEL, qA=32, D=44, sc=56, tmp=57, vpw=62, acc=32, A=44, pp=52, vpp=63, vm=60, vl=61)
    emit_resets(e, fl)
    st("reset")
    prologue_weights(e, o, st)
    instance_offsets(e, [0, 1], pub_live=[2], q_live=[0, 1, 2])
    stage_Q(e, fl, R3_REG['P'])
    stage_GU(e, fl, R2_REG['P'] * RG - 1024, with_stats=False)
    e.vm_wait("rst")
    token_store(e, TOK2, 0)
    st("p.tok2")
    tr_block(e, [(wo_frag, 5, 160, ST_WO, (0, 32, 64, 96, 128, 160)), (wd_frag, 5, 160, ST_WD, (0, 32))])
    L = V_LANE; t, u = W0 + 2, W0 + 3
    e(f"v_and_b32 v{t}, 7, v{L}"); e(f"v_lshlrev_b32 v{u}, 3, v{t}")
    e(f"s_lshl_b32 s{S_T0}, s{S_HQ}, 6"); e(f"s_add_u32 s{S_T0}, s{S_T0}, s{S_XC}"); e(f"v_add_u32 v{W0+4}, s{S_T0}, v{u}")
    e(f"v_lshlrev_b32 v{u}, 6, v{t}")
    e(f"s_lshl_b32 s{S_T1}, s{S_J}, 3"); e(f"s_add_u32 s{S_T0}, s{S_T1}, s{S_XC}"); e(f"v_add_u32 v{W0+5}, s{S_T0}, v{u}")
    e(f"v_add_u32 v{W0+6}, s{S_T1}, v{t}")
    e("s_mov_b32 vcc_lo, 0x00000f00"); e("s_mov_b32 vcc_hi, 0"); e(f"v_cndmask_b32 v{W0+4}, v{W0+4}, v{W0+5}, vcc")
    e("s_mov_b32 vcc_lo, 0x00ff0000"); e(f"v_cndmask_b32 v{W0+4}, v{W0+4}, v{W0+6}, vcc")
    e(f"v_lshlrev_b32 v{W0+4}, 7, v{W0+4}")
    token_gather(e, o, TOK2, W0 + 4, 0x00ff0fff, sleep=o.t_sleep)
    e("s_mov_b64 exec, -1")
    st("p.tok2g")
    GA = CW_K
    e(f"v_and_b32 v{V_T}, 31, v{V_LANE}"); e(f"v_lshlrev_b32 v{V_T}, 4, v{V_T}")
    selmask(e, W0 + 40, V_T, rows_mask([0, 1], 24))
    sr = list(range(10, 18))
    for k, reg in enumerate((4, 5, 6, R2_REG['P'])):
        e(f"s_add_u32 s{sr[2*k]}, s{S_RGRP}, {reg*RG}"); e(f"s_add_u32 s{sr[2*k+1]}, s{sr[2*k]}, 4096")
    loads = []
    for row in range(3):
        loads += [(GA + 32 * row + 4 * k, V_R, sr[2*row + (k >= 4)], (k % 4) * 1024) for k in range(8)]
    loads += [(W0 + 32, V_ML, sr[0], 0), (W0 + 36, V_ML, sr[2], 0)]
    loads += [(W0 + 4 * k, W0 + 40, sr[6 + (k >= 4)], (k % 4) * 1024) for k in range(8)]
    e(f"v_subrev_u32 v{W0+41}, {768-368}, v{V_ML}")
    light = [(W0 + 4 * k, V_ML, sr[2*k], 0) for k in range(3)] + [(W0 + 12, W0 + 41, sr[6], 0)]
    if o.light: poll(e, o, light, abort, sleep=o.p_sleep)
    poll(e, o, loads, abort, sleep=o.p_sleep)
    st("p.gather")
    if "cwC" in o.exp:
        e.vm_all(force=True); e("s_barrier"); e("s_branch L_done")
    sum_loads(e, 8, GA + 64)
    for rr in range(4): e(f"v_mov_b32 v{V_CSQ+rr}, v{GA+64+rr}")
    sum_loads(e, 8, W0)
    for rr in range(4): e(f"v_mov_b32 v{V_CSG+rr}, v{W0+rr}")
    for row in range(2):
        q_consume(e, GA + 32 * row, W0 + 32 + 4 * row, row)
    st("q1")
    def load_tiles(base):
        for T in range(CW_TILES):
            kv_soff(e, base, T)
            for s in range(3): ld_k(e, R, vr(CW_K + 12 * T + 4 * s, 4), s, ('K', T, s), o)
        for T in range(CW_TILES):
            kv_soff(e, base, T)
            for w in range(3): ld_v(e, R, vr(CW_V + 12 * T + 4 * w, 4), w, ('V', T, w), o)
    load_tiles(S_KV0)
    instance_offsets(e, [0])
    e.lg_all()
    st("pro_done")
    e("s_barrier")
    Kf = lambda T, s: vr(CW_K + 12 * T + 4 * s, 4)
    Vf = lambda T, w: vr(CW_V + 12 * T + 4 * w, 4)
    def kw(T):
        if T >= 0: e.vm_wait(('K', T, 2))
    def vw(T, w): e.vm_wait(('V', T, w))
    attn_pass(e, R, CW_TILES, 0, Kf, Vf, S_PB, 0, k_wait=kw, v_wait=vw)
    e("s_barrier")
    st("bar2")
    parts = [PART + 1536 * w for w in range(4)]
    combine_publish(e, fl, parts, ML, R1_REG[0])
    st("c0.cmb")
    hop_R1(e, o, R1_REG[0], 0, abort)
    chain(e, o, fl, 0, [0], abort, st)
    st("chain0")
    e("s_barrier")
    attn_pass(e, R, CW_TILES, 0, Kf, Vf, S_PB, 32)
    e("s_barrier")
    parts_early = [PART] + [LDS_SW * s + 48 * 1024 for s in range(3)]
    combine_publish(e, fl, parts_early, ML + 32, R1_REG['1a'])
    load_tiles(S_KV1)
    instance_offsets(e, [0, 1])
    hop_R1(e, o, R1_REG['1a'], 0, abort)
    e.vmq = []
    attn_pass(e, R, CW_TILES, 1, Kf, Vf, S_PB, 0)
    e("s_barrier")
    st("bar6")
    combine_publish(e, fl, parts, ML, R1_REG['1b'])
    st("c1.cmb")
    hop_R1(e, o, R1_REG['1b'], 1, abort)
    chain(e, o, fl, 1, [0, 1], abort, st)
    st("chain1")
    e("s_barrier")
    attn_pass(e, R, CW_TILES, 1, Kf, Vf, S_PB, 0)
    instance_offsets(e, [1])
    e("s_barrier")
    st("bar8")
    combine_publish(e, fl, parts, ML, R1_REG[2])
    st("c2.cmb")
    hop_R1(e, o, R1_REG[2], 1, abort)
    chain(e, o, fl, 2, [1], abort, st)
    st("chain2")
    e("s_branch L_done")

def chain_wave_setup(e, o, st):
    L = V_LANE
    lane_id(e, L)
    e(f"v_mov_b32 v{W0}, 0"); e(f"v_mov_b32 v{W0+1}, {WFLAG}"); e(f"v_lshl_add_u32 v{W0+1}, v{L}, 2, v{W0+1}")
    e("s_mov_b64 exec, 15")
    e.lg(f"ds_write_b32 v{W0+1}, v{W0}", "z")
    e("s_mov_b64 exec, -1")
    e(f"v_mov_b32 v{V_OOB}, 0x{OOB:08x}")
    e(f"s_lshl_b32 s{S_RGRP}, s{S_H}, 13"); e(f"s_lshl_b32 s{S_T0}, s{S_J}, 10"); e(f"s_add_u32 s{S_ROWN}, s{S_RGRP}, s{S_T0}")
    e(f"s_lshl_b32 s{S_LGRP}, s{S_XC}, 3"); e(f"s_add_u32 s{S_LGRP}, s{S_LGRP}, s{S_J}"); e(f"s_lshl_b32 s{S_LGRP}, s{S_LGRP}, 12")
    e(f"s_lshl_b32 s{S_T0}, s{S_HQ}, 10"); e(f"s_add_u32 s{S_LOWN}, s{S_LGRP}, s{S_T0}")
    e(f"s_lshl_b32 s{S_GGRP}, s{S_J}, 13"); e(f"s_lshl_b32 s{S_T0}, s{S_XC}, 10"); e(f"s_add_u32 s{S_GOWN}, s{S_GGRP}, s{S_T0}")
    e.lg_all()
    e("s_barrier")
    late_common(e)
    if "nocw" in o.exp:
        e("s_barrier")
        st("bar1x")
        e("s_branch L_done")
    e(f"v_lshlrev_b32 v{V_L16}, 4, v{L}")
    selmask(e, V_R, V_L16, mask64(range(49)))
    e(f"s_load_dword s{S_TAG}, s[{S_WS}:{S_WS+1}], {EPOCH_OFF}")
    e(f"s_getreg_b32 s{S_T2}, hwreg(HW_REG_XCC_ID)"); e(f"s_and_b32 s{S_T2}, s{S_T2}, 0xf")
    e("s_waitcnt lgkmcnt(0)")
    e(f"s_add_u32 s{S_TAG}, s{S_TAG}, 1")
    token_store(e, TOK1, f"s{S_T2}")
    make_srd(e, SRD_T, S_X, 2560)
    e(f"v_and_b32 v{V_T}, 31, v{L}"); e(f"v_lshlrev_b32 v{V_T}, 3, v{V_T}")
    e(f"v_lshrrev_b32 v{V_T+1}, 5, v{L}"); e(f"v_mul_u32_u24 v{V_T+1}, 1280, v{V_T+1}"); e(f"v_add_u32 v{V_T}, v{V_T}, v{V_T+1}")
    selmask(e, V_T, V_T, rows_mask([0, 1], 20))
    e(f"s_mul_i32 s{S_T0}, s{S_J}, 160")
    e.vm(f"buffer_load_dwordx2 {vr(V_XR,2)}, v{V_T}, s[{SRD_T}:{SRD_T+3}], s{S_T0} offen", "x")
    e(f"s_add_u32 s{S_KV1}, s{S_KV0}, {BATCH_STRIDE}")
    R = NS(voffK=1, voffX=2, voffY=3, sel=V_SEL)
    attn_selectors(e, R, L, W0)
    n, g, x = W0, W0 + 1, W0 + 2
    e(f"v_mov_b32 v{W0+3}, v{V_L16}"); selmask(e, V_L16, W0 + 3, mask64(range(48)), other=0)
    e(f"v_and_b32 v{n}, 15, v{L}"); e(f"v_lshrrev_b32 v{g}, 4, v{L}")
    e(f"v_min_u32 v{x}, 1, v{n}")
    e(f"v_mul_u32_u24 v{V_BO}, 384, v{x}"); e(f"v_lshl_add_u32 v{V_BO}, v{g}, 4, v{V_BO}"); e(f"v_add_u32 v{V_BO}, {ACT_O}, v{V_BO}")
    e(f"v_lshlrev_b32 v{V_BH}, 7, v{x}"); e(f"v_lshl_add_u32 v{V_BH8}, v{g}, 3, v{V_BH}"); e(f"v_add_u32 v{V_BH8}, {ACT_H+64}, v{V_BH8}")
    e(f"v_lshl_add_u32 v{V_BH}, v{g}, 4, v{V_BH}"); e(f"v_add_u32 v{V_BH}, {ACT_H}, v{V_BH}")
    e(f"v_min_u32 v{x}, 2, v{n}")
    e(f"v_mul_u32_u24 v{V_BX}, 192, v{x}"); e(f"v_lshl_add_u32 v{V_BX8}, v{g}, 3, v{V_BX}"); e(f"v_add_u32 v{V_BX8}, {ACT_X+128}, v{V_BX8}")
    e(f"v_lshl_add_u32 v{V_BX}, v{g}, 4, v{V_BX}"); e(f"v_add_u32 v{V_BX}, {ACT_X}, v{V_BX}")
    e(f"v_subrev_u32 v{x}, 1, v{n}"); e(f"v_min_u32 v{x}, 2, v{x}")
    e(f"v_mul_u32_u24 v{V_AS}, 192, v{x}"); e(f"v_lshl_add_u32 v{V_AS8}, v{g}, 3, v{V_AS}"); e(f"v_add_u32 v{V_AS8}, {ACT_X+128}, v{V_AS8}")
    e(f"v_lshl_add_u32 v{V_AS}, v{g}, 4, v{V_AS}"); e(f"v_add_u32 v{V_AS}, {ACT_X}, v{V_AS}")
    e(f"v_lshlrev_b32 v{x}, 3, v{L}"); e(f"v_add_u32 v{x}, {SB}, v{x}"); selmask(e, V_W8, x, mask64(range(48)), other=SB+2560)
    e(f"v_and_b32 v{n}, 31, v{L}"); e(f"v_lshrrev_b32 v{g}, 5, v{L}")
    e(f"v_mul_u32_u24 v{x}, 192, v{g}"); e(f"v_lshl_add_u32 v{x}, v{n}, 3, v{x}"); e(f"v_add_u32 v{x}, {ACT_X}, v{x}")
    selmask(e, V_WX, x, rows_mask([0, 1], 20), other=DUMMY)
    e(f"v_lshlrev_b32 v{x}, 7, v{g}"); e(f"v_lshl_add_u32 v{x}, v{n}, 2, v{x}"); e(f"v_add_u32 v{x}, {ACT_H}, v{x}")
    selmask(e, V_WH, x, rows_mask([0, 1], 24), other=DUMMY)
    e(f"v_and_b32 v{x}, 7, v{L}"); e(f"v_lshlrev_b32 v{x}, 10, v{x}"); e(f"v_add_u32 v{V_ML}, 768, v{x}")
    m = mask64([16 * a + 1 for a in range(4)])
    e(f"s_mov_b32 s{S_N1}, 0x{m & 0xffffffff:08x}"); e(f"s_mov_b32 s{S_N1+1}, 0x{m >> 32:08x}")
    e(f"v_lshlrev_b32 v{W0+4}, 10, v{L}"); e(f"s_lshl_b32 s{S_T0}, s{S_XC}, 7"); e(f"v_add_u32 v{W0+4}, s{S_T0}, v{W0+4}")
    token_gather(e, o, TOK1, W0 + 4, 0xffffffff, sleep=o.t_sleep)
    e(f"v_cmp_ne_u32 vcc, s{S_T2}, v{W0+1}")
    e("s_mov_b64 exec, -1")
    st("p.mode")
    e("s_nop 3")
    e("s_cmp_lg_u32 vcc_lo, 0")

def late_common(e):
    make_srd(e, SRD_V, S_V, KV_BYTES); make_srd(e, SRD_WS, S_WS, WS_REC)
    e(f"s_mov_b32 s{S_C}, {lit(CSCALE)}")
    e(f"s_mov_b32 s{S_HI32}, 0"); e(f"s_mov_b32 s{S_HI32+1}, -1")
    e(f"s_mul_i32 s{S_PB}, s{S_WAVE}, 1536"); e(f"s_add_u32 s{S_PB}, s{S_PB}, {PART}")
    e(f"s_lshl_b32 s{S_MLB}, s{S_WAVE}, 3"); e(f"s_add_u32 s{S_MLB}, s{S_MLB}, {ML}")

def generate(o):
    Stamps.select = o.stampset.split(",") if o.stampset else None
    e = Emit()
    e("s_cmp_ge_u32 s2, 256"); e("s_cbranch_scc1 L_done")
    e("s_load_dwordx16 s[4:19], s[0:1], 0"); e("s_load_dwordx8 s[20:27], s[0:1], 64")
    e("v_lshrrev_b32 v1, 6, v0")
    e(f"s_and_b32 s{S_XC}, s2, 7"); e(f"s_lshr_b32 s{S_HQ}, s2, 6")
    e(f"v_readfirstlane_b32 s{S_WAVE}, v1")
    e(f"s_lshr_b32 s{S_J}, s2, 3"); e(f"s_and_b32 s{S_J}, s{S_J}, 7")
    e(f"s_lshl_b32 s{S_H}, s{S_XC}, 2"); e(f"s_add_u32 s{S_H}, s{S_H}, s{S_HQ}")
    e(f"s_mul_i32 s{S_KV0}, s{S_H}, {HEAD_STRIDE}"); e(f"s_mul_i32 s{S_T0}, s{S_J}, {CHUNK_STRIDE}"); e(f"s_add_u32 s{S_KV0}, s{S_KV0}, s{S_T0}")
    e(f"s_add_u32 s{S_T0}, s{S_WAVE}, 3"); e(f"s_and_b32 s{S_T0}, s{S_T0}, 3")
    e(f"s_mul_i32 s{S_T1}, s{S_T0}, {SW_TILES*TILE_B}"); e(f"s_add_u32 s{S_KV0}, s{S_KV0}, s{S_T1}")
    lane_id(e, 8)
    attn_load_offsets(e, NS(voffK=1, voffX=2, voffY=3), 8, 10)
    e("s_waitcnt lgkmcnt(0)")
    make_srd(e, SRD_K, S_K, KV_BYTES)
    e(f"s_cmp_eq_u32 s{S_WAVE}, 0"); e("s_cbranch_scc1 L_chain")
    st_s = Stamps(e, o.stamps); st_s("start")
    stream_wave(e, o, st_s)
    e.label("L_chain")
    e.vmq = []; e.lgq = []
    st_c = Stamps(e, o.stamps); st_c("start")
    chain_wave_setup(e, o, st_c)
    names = {}
    if o.force_global: e("s_branch L_global")
    else: e("s_cbranch_scc1 L_global")
    base_names = list(st_c.names)
    sv = (list(e.vmq), list(e.lgq))
    chain_wave(e, o, st_c, True)
    names['cw'] = list(st_c.names); names['sw'] = list(st_s.names)
    e.label("L_global")
    e.vmq, e.lgq = sv
    st_g = Stamps(e, o.stamps); st_g.names = list(base_names)
    chain_wave(e, o, st_g, False)
    e.label("L_abort")
    e.label("L_done")
    if o.stamps:
        e("s_cmp_ge_u32 s2, 256"); e("s_cbranch_scc1 L_exit")
        fl = Stamps(e, True); fl.names = names['cw']; fl.flush()
        e.label("L_exit")
    e("s_endpgm")
    return e, names

HEAD = """; Kernarg: A_x, K, V, wq, wo, B_x, W_gate, W_up, W_down, out, debug, ws (pointers)
; @launch grid=(256,1,1) block=(256,1,1) lds=%d
.amdgcn_target "amdgcn-amd-amdhsa--gfx950"
.text
.globl %s
.p2align 8
.type %s,@function
%s:
"""
FOOT = """
.section .rodata,"a"
.p2align 6
.amdhsa_kernel %s
  .amdhsa_next_free_vgpr 512
  .amdhsa_next_free_sgpr 102
  .amdhsa_accum_offset 256
  .amdhsa_group_segment_fixed_size 0
  .amdhsa_kernarg_size 96
  .amdhsa_user_sgpr_count 2
  .amdhsa_user_sgpr_kernarg_segment_ptr 1
  .amdhsa_system_sgpr_workgroup_id_x 1
  .amdhsa_float_denorm_mode_32 3
.end_amdhsa_kernel
"""
def build_text(o):
    e, names = generate(o)
    return HEAD % (LDS_TOTAL, NAME, NAME, NAME) + e.text() + "\n" + FOOT % NAME, names, e

if __name__ == "__main__":
    o = Opt()
    for a in sys.argv[2:]:
        k, v = a.split("=")
        cur = getattr(o, k)
        setattr(o, k, (v not in ("0", "False")) if isinstance(cur, bool) else type(cur)(v))
    txt, names, e = build_text(o)
    open(sys.argv[1], "w").write(txt)
    print("instructions:", e.ninst, "nops:", e.nops, names)
```

```python
import sys, struct
from types import SimpleNamespace as NS
from emit import Emit, vr

NAME = "interleave_layers__mha_block_cached__glu_gated_reglu__decode_kernel"

class Opt:
    NA = 16
    NA_BAR = 118
    NB = 8
    NB1 = 3
    go_at = "G1"
    NC = 56
    NA0 = 16
    NA0N = 0
    light = False
    pf = 0
    pf_all = False
    NF = 12
    NW = 24
    stamps = False
    poll_limit = 400000
    kvflags = "nt"
    wflags = "nt"
    stampset = ""
    p_sleep = 8
    mb_sleep = 0
    exp = ""
    t_sleep = 0
    early = False
    wb = 0
    prio = 0
    late_rst = False
    preGn = 0
    direct = True
    preF = 0
    preR0 = 0
    preL0 = 0
    preG0 = 0
    preR = 0
    preL = 0
    preG = 6
    flag_sleep = 0
    force_global = False

KV_BYTES = 100663296
BATCH_STRIDE = 50331648
HEAD_STRIDE = 1572864
CHUNK_STRIDE = 196608
TILE_B = 3072
SW_TILES, CW_TILES = 20, 4
OOB = 0x7fff0000

LDS_SW = 51200
SB = 153600
PART = SB
ML = SB + 6144
QARR = SB + 6208
ACT_O = SB + 6976
ACT_X = SB + 7744
ACT_H = SB + 8320
DUMMY = SB + 8576
WFLAG = SB + 10208
LDS_TOTAL = 163840
ST_WQ, ST_WO, ST_WG, ST_WU, ST_WD = 0, 30720, 61440, 69120, 76800

RG = 262144
R1_REG = {0: 0, '1a': 1, '1b': 2, 2: 3}
R3_REG = {'P': 4, 0: 7, 1: 8}
R2_REG = {'P': 9, 0: 10, 1: 11, 2: 12}
L_REG = lambda inst, k: 13 + 2 * inst + k
G_OFF = lambda inst, k: 19 * RG + (2 * inst + k) * 65536
STAMP_OFF = 22 * RG
WS_REC = 24 * RG

CSCALE = (192 ** -0.5) * 1.4426950408889634
EPS = 1e-5
def f2u(x): return struct.unpack("<I", struct.pack("<f", x))[0]
def lit(x): return "0x%08x" % f2u(x)
def mask64(lanes):
    m = 0
    for l in lanes: m |= 1 << l
    return m
def set_exec(e, m):
    if m == (1 << 64) - 1: e("s_mov_b64 exec, -1"); return
    e(f"s_mov_b32 exec_lo, 0x{m & 0xffffffff:08x}")
    e(f"s_mov_b32 exec_hi, 0x{m >> 32:08x}")

S_X, S_K, S_V, S_WQ, S_WO, S_BX, S_WG, S_WU, S_WD, S_OUT, S_DBG, S_WS = 4, 6, 8, 10, 12, 14, 16, 18, 20, 22, 24, 26
S_XC, S_HQ, S_J, S_H = 28, 29, 30, 31
SRD_K, SRD_V = 32, 36
S_KV0, S_KV1, S_SOFF, S_LDSB = 40, 41, 42, 43
SRD_T = 44
SRD_WS = 48
SRD_DBG = 52
S_C = 56
S_ROWN, S_RGRP, S_LOWN, S_LGRP, S_GOWN, S_GGRP = 57, 58, 59, 60, 61, 62
S_A, S_B, S_CNT, S_T0, S_T1, S_T2 = 63, 64, 65, 66, 67, 68
S_PB = 69
S_HI32 = 70
S_MLB = 72
S_GA, S_GB = 100, 101
S_WAVE = 3
S_STAMP = 76

def make_srd(e, srd, ptr, nbytes):
    e(f"s_mov_b32 s{srd}, s{ptr}")
    e(f"s_and_b32 s{srd+1}, s{ptr+1}, 0xffff")
    e(f"s_mov_b32 s{srd+2}, {nbytes}")
    e(f"s_mov_b32 s{srd+3}, 0x20000")

class Stamps:
    select = None
    def __init__(self, e, on): self.e, self.on, self.names = e, on, []
    def __call__(self, name):
        if not self.on: return
        if Stamps.select is not None and not any(name.startswith(p) for p in Stamps.select): return
        if Stamps.select is None and "." in name: return
        n = len(self.names); assert n < 12, "too many stamps"
        self.e(f"s_memrealtime s[{S_STAMP+2*n}:{S_STAMP+2*n+1}]")
        self.e.lg_all(force=True)
        self.names.append(name)
    def rounds(self, name):
        if not self.on: return
        if Stamps.select is None or not any(name.startswith(p) for p in Stamps.select): return
        n = len(self.names); assert n < 12
        self.e(f"s_mov_b32 s{S_STAMP+2*n}, s{S_CNT}"); self.e(f"s_mov_b32 s{S_STAMP+2*n+1}, 0")
        self.names.append(name)
    def flush(self):
        if not self.on: return
        e = self.e
        e("s_mov_b64 exec, 1")
        e(f"s_lshl_b32 s{S_T0}, s2, 2"); e(f"s_add_u32 s{S_T0}, s{S_T0}, s{S_WAVE}"); e(f"s_lshl_b32 s{S_T0}, s{S_T0}, 7")
        e(f"s_add_u32 s{S_T0}, s{S_T0}, {STAMP_OFF}")
        e("v_mov_b32 v0, 0")
        for i in range(len(self.names)):
            e(f"v_mov_b32 v2, s{S_STAMP+2*i}"); e(f"v_mov_b32 v3, s{S_STAMP+2*i+1}")
            e(f"buffer_store_dwordx2 v[2:3], v0, s[{SRD_WS}:{SRD_WS+3}], s{S_T0} offen offset:{8*i}")
            e("s_waitcnt vmcnt(0)")

def lane_id(e, dst):
    e(f"v_mbcnt_lo_u32_b32 {vr(dst)}, -1, 0")
    e(f"v_mbcnt_hi_u32_b32 {vr(dst)}, -1, {vr(dst)}")

def attn_load_offsets(e, R, lane, t):
    i, g, u, w = t, t + 1, t + 2, t + 3
    e(f"v_and_b32 {vr(i)}, 15, {vr(lane)}")
    e(f"v_lshrrev_b32 {vr(g)}, 4, {vr(lane)}")
    e(f"v_and_b32 {vr(u)}, 7, {vr(i)}")
    e(f"v_lshrrev_b32 {vr(w)}, 3, {vr(i)}")
    e(f"v_mul_u32_u24 {vr(R.voffK)}, 384, {vr(u)}")
    e(f"v_lshl_add_u32 {vr(R.voffK)}, {vr(g)}, 4, {vr(R.voffK)}")
    e(f"v_lshl_add_u32 {vr(R.voffK)}, {vr(w)}, 6, {vr(R.voffK)}")
    e(f"v_mul_u32_u24 {vr(R.voffX)}, 768, {vr(g)}")
    e(f"v_mul_u32_u24 {vr(w)}, 384, {vr(w)}")
    e(f"v_add_u32 {vr(R.voffY)}, {vr(R.voffX)}, {vr(w)}")
    e(f"v_lshl_add_u32 {vr(R.voffY)}, {vr(u)}, 4, {vr(R.voffY)}")
    e(f"v_add_u32 {vr(R.voffY)}, 256, {vr(R.voffY)}")
    e(f"v_lshl_add_u32 {vr(R.voffX)}, {vr(i)}, 4, {vr(R.voffX)}")

def attn_selectors(e, R, lane, t):
    i, u, lo, hi = t, t + 1, t + 2, t + 3
    e(f"v_and_b32 {vr(i)}, 15, {vr(lane)}")
    e(f"v_lshrrev_b32 {vr(u)}, 3, {vr(i)}")
    e(f"v_mul_u32_u24 {vr(u)}, 0x202, {vr(u)}")
    e(f"v_add_u32 {vr(u)}, 0x100, {vr(u)}")
    e(f"v_or_b32 {vr(lo)}, 0x0c0c0000, {vr(u)}")
    e(f"v_lshlrev_b32 {vr(hi)}, 16, {vr(u)}")
    e(f"v_or_b32 {vr(hi)}, 0x0c0c, {vr(hi)}")
    e(f"v_and_b32 {vr(u)}, 1, {vr(i)}")
    e(f"v_cmp_eq_u32 vcc, 1, {vr(u)}")
    e(f"v_cndmask_b32 {vr(lo)}, {vr(lo)}, {vr(hi)}, vcc")
    e(f"v_bfe_u32 {vr(u)}, {vr(i)}, 1, 2")
    e(f"v_mov_b32 {vr(hi)}, 0x0c0c0c0c")
    for r in range(4):
        e(f"v_cmp_eq_u32 vcc, {r}, {vr(u)}")
        e(f"v_cndmask_b32 {vr(R.sel+r)}, {vr(hi)}, {vr(lo)}, vcc")

def allreduce(e, reg, tmp, op):
    for k in (8, 4, 2, 1):
        e(f"v_{op}_f32_dpp {vr(reg)}, {vr(reg)}, {vr(reg)} row_ror:{k} row_mask:0xf bank_mask:0xf")
    e(f"v_mov_b32 {vr(tmp)}, {vr(reg)}")
    e(f"v_permlane16_swap_b32 {vr(reg)}, {vr(tmp)}")
    e(f"v_{op}_f32 {vr(reg)}, {vr(reg)}, {vr(tmp)}")
    e(f"v_mov_b32 {vr(tmp)}, {vr(reg)}")
    e(f"v_permlane32_swap_b32 {vr(reg)}, {vr(tmp)}")
    e(f"v_{op}_f32 {vr(reg)}, {vr(reg)}, {vr(tmp)}")

def attn_pass(e, R, ntiles, qrow, Kfrag, Vfrag, part_sreg, ml_off, k_wait=None, qk_hook=None, mid_hook=None,
              v_wait=None, pv_hook=None, stage=None):
    L = R.tmp
    lane_id(e, L)
    e(f"v_and_b32 {vr(L+1)}, 1, {vr(L)}")
    e(f"v_lshrrev_b32 {vr(L+2)}, 4, {vr(L)}")
    e(f"v_lshlrev_b32 {vr(L+2)}, 4, {vr(L+2)}")
    e(f"v_lshl_add_u32 {vr(L+1)}, {vr(L+1)}, 6, {vr(L+2)}")
    e(f"v_add_u32 {vr(L+1)}, {QARR}, {vr(L+1)}")
    for s in range(3):
        e.lg(f"ds_read_b128 {vr(R.qA+4*s,4)}, {vr(L+1)} offset:{qrow*384 + 128*s}", ("q", s))
    e(f"v_add_u32 {vr(R.vpp)}, s{S_PB}, {vr(L+2)}")
    W = R.vpw
    e(f"v_lshrrev_b32 {vr(L+1)}, 5, {vr(L)}"); e(f"v_lshlrev_b32 {vr(W)}, 6, {vr(L+1)}")
    e(f"v_bfe_u32 {vr(L+1)}, {vr(L)}, 1, 2"); e(f"v_lshl_add_u32 {vr(W)}, {vr(L+1)}, 4, {vr(W)}")
    e(f"v_bfe_u32 {vr(L+1)}, {vr(L)}, 3, 2"); e(f"v_lshl_add_u32 {vr(W)}, {vr(L+1)}, 2, {vr(W)}")
    e(f"v_and_b32 {vr(L+1)}, 1, {vr(L)}"); e(f"v_lshl_add_u32 {vr(W)}, {vr(L+1)}, 1, {vr(W)}")
    e(f"v_add_u32 {vr(W)}, s{S_PB}, {vr(W)}")
    nsc = (ntiles + 7) // 8
    for r in range(nsc):
        if (r + 1) * 8 > ntiles: e(f"v_mov_b32 {vr(R.sc+r)}, 0xff800000")
    stg = {}
    def stage_k(T):
        if T >= ntiles: return
        for s in range(3):
            f = Kfrag(T, s)
            if isinstance(f, tuple):
                reg = stage[(3 * T + s) % len(stage)]
                e.lg(f"ds_read_b128 {vr(reg,4)}, {vr(R.vlds)} offset:{f[1]}", ("k", T, s))
                stg[(T, s)] = vr(reg, 4)
    LOOK = 2
    if k_wait: k_wait(-1)
    for T in range(min(LOOK, ntiles)): stage_k(T)
    e.lg_wait(("q", 2))
    def dpp_add(T):
        D = R.D + 4 * (T % 3)
        dst = vr(R.sc + (T >> 3)); rm = 1 << ((T >> 1) & 3)
        if T % 2 == 0: e(f"v_add_f32_dpp {dst}, {vr(D+1)}, {vr(D)} row_ror:8 row_mask:0x{rm:x} bank_mask:0x3")
        else:          e(f"v_add_f32_dpp {dst}, {vr(D)}, {vr(D+1)} row_ror:8 row_mask:0x{rm:x} bank_mask:0xc")
    for T in range(ntiles):
        if k_wait: k_wait(T)
        D = vr(R.D + 4 * (T % 3), 4)
        for s in range(3):
            f = Kfrag(T, s)
            if isinstance(f, tuple):
                e.lg_wait(("k", T, s)); f = stg[(T, s)]
            e(f"v_mfma_f32_16x16x32_bf16 {D}, {vr(R.qA+4*s,4)}, {f}, {'0' if s == 0 else D}")
        stage_k(T + LOOK)
        if qk_hook: qk_hook(T)
        if T >= 2: dpp_add(T - 2)
    for T in range(max(0, ntiles - 2), ntiles): dpp_add(T)
    t0, t1 = R.D, R.D + 1
    if nsc == 1: e(f"v_mov_b32 {vr(t0)}, {vr(R.sc)}")
    elif nsc == 2: e(f"v_max_f32 {vr(t0)}, {vr(R.sc)}, {vr(R.sc+1)}")
    else: e(f"v_max3_f32 {vr(t0)}, {vr(R.sc)}, {vr(R.sc+1)}, {vr(R.sc+2)}")
    allreduce(e, t0, t1, "max")
    e(f"v_mul_f32 {vr(R.vm)}, s{S_C}, {vr(t0)}")
    for r in range(nsc): e(f"v_fma_f32 {vr(R.sc+r)}, {vr(R.sc+r)}, s{S_C}, -{vr(R.vm)}")
    for r in range(nsc): e(f"v_exp_f32 {vr(R.sc+r)}, {vr(R.sc+r)}")
    for r in range(nsc): e(f"v_cvt_pk_bf16_f32 {vr(R.D+2+r)}, {vr(R.sc+r)}, {vr(R.sc+r)}")
    for r in range(nsc): e.lg(f"ds_write_b16 {vr(W)}, {vr(R.D+2+r)} offset:{128*r}", ("pw", r))
    nq = (ntiles + 3) // 4
    ppreg = lambda q: R.pp + 4 * (q % 2)
    if nsc == 1: e(f"v_mov_b32 {vr(R.vl)}, {vr(R.sc)}")
    else:
        e(f"v_add_f32 {vr(R.vl)}, {vr(R.sc)}, {vr(R.sc+1)}")
        if nsc == 3: e(f"v_add_f32 {vr(R.vl)}, {vr(R.vl)}, {vr(R.sc+2)}")
    e.lg(f"ds_read_b128 {vr(ppreg(0),4)}, {vr(R.vpp)}", ("pp", 0))
    if nq > 1: e.lg(f"ds_read_b128 {vr(ppreg(1),4)}, {vr(R.vpp)} offset:64", ("pp", 1))
    allreduce(e, R.vl, t1, "add")
    if mid_hook: mid_hook()
    X1, X2, Y = R.acc, R.acc + 4, R.acc + 8
    def build_A(T):
        q = T >> 2
        e.lg_wait(("pp", q))
        A = R.A + 4 * (T % 2); src = vr(ppreg(q) + (T & 3))
        return [f"v_perm_b32 {vr(A+r)}, {src}, {src}, {vr(R.sel+r)}" for r in range(4)]
    for ins in build_A(0): e(ins)
    for T in range(ntiles):
        A = vr(R.A + 4 * (T % 2), 4)
        nxt = build_A(T + 1) if T + 1 < ntiles else []
        if v_wait: v_wait(T, 0)
        e(f"v_mfma_f32_16x16x32_bf16 {vr(X1,4)}, {A}, {Vfrag(T,0)}, {'0' if T == 0 else vr(X1,4)}")
        for ins in nxt[:2]: e(ins)
        if v_wait: v_wait(T, 1)
        e(f"v_mfma_f32_16x16x32_bf16 {vr(X2,4)}, {A}, {Vfrag(T,1)}, {'0' if T == 0 else vr(X2,4)}")
        for ins in nxt[2:]: e(ins)
        if v_wait: v_wait(T, 2)
        e(f"v_mfma_f32_16x16x32_bf16 {vr(Y,4)}, {A}, {Vfrag(T,2)}, {'0' if T == 0 else vr(Y,4)}")
        if (T & 3) == 2 and (T >> 2) + 2 < nq:
            q2 = (T >> 2) + 2
            e.lg(f"ds_read_b128 {vr(ppreg(q2),4)}, {vr(R.vpp)} offset:{64*q2}", ("pp", q2))
        if pv_hook: pv_hook(T)
    p = R.pp
    lane_id(e, p)
    e(f"v_and_b32 {vr(p+1)}, 15, {vr(p)}")
    e(f"v_lshrrev_b32 {vr(p+2)}, 4, {vr(p)}")
    e(f"v_and_b32 {vr(p+3)}, 1, {vr(p+2)}")
    e(f"v_lshrrev_b32 {vr(p+2)}, 1, {vr(p+2)}")
    e(f"v_mul_u32_u24 {vr(p+2)}, 768, {vr(p+2)}")
    e(f"v_lshl_add_u32 {vr(p+2)}, {vr(p+3)}, 4, {vr(p+2)}")
    e(f"v_add_u32 {vr(p+2)}, s{part_sreg}, {vr(p+2)}")
    e(f"v_lshl_add_u32 {vr(p+4)}, {vr(p+1)}, 5, {vr(p+2)}")
    e(f"v_and_b32 {vr(p+1)}, 7, {vr(p+1)}")
    e(f"v_lshl_add_u32 {vr(p+5)}, {vr(p+1)}, 5, {vr(p+2)}")
    e(f"v_mov_b32 {vr(p+6)}, s{S_MLB}")
    e(f"v_mov_b32 {vr(R.A)}, {vr(R.vm)}"); e(f"v_mov_b32 {vr(R.A+1)}, {vr(R.vl)}")
    for r in range(4):
        e(f"v_cndmask_b32 {vr(X1+r)}, {vr(X1+r)}, {vr(X2+r)}, s[{S_HI32}:{S_HI32+1}]")
    e.lg(f"ds_write_b128 {vr(p+4)}, {vr(X1,4)}", "px")
    set_exec(e, 0xFF00FF0000FF00FF)
    e.lg(f"ds_write_b128 {vr(p+5)}, {vr(Y,4)} offset:512", "py")
    e("s_mov_b64 exec, 1")
    e.lg(f"ds_write_b64 {vr(p+6)}, {vr(R.A,2)} offset:{ml_off}", "pm")
    e("s_mov_b64 exec, -1")
    e.lg_all()

def kv_soff(e, base_sreg, T):
    e(f"s_add_u32 s{S_SOFF}, s{base_sreg}, {T*TILE_B}")
def ld_k(e, R, dst, s, tag, o):
    e.vm(f"buffer_load_dwordx4 {dst}, {vr(R.voffK)}, s[{SRD_K}:{SRD_K+3}], s{S_SOFF} offen offset:{128*s} {o.kvflags}", tag)
def ld_v(e, R, dst, w, tag, o):
    vo = R.voffY if w == 2 else R.voffX
    off = 384 if w == 1 else 0
    e.vm(f"buffer_load_dwordx4 {dst}, {vr(vo)}, s[{SRD_V}:{SRD_V+3}], s{S_SOFF} offen offset:{off} {o.kvflags}", tag)
def dma_k(e, R, slot, s, tag, o):
    e(f"s_add_u32 m0, s{S_LDSB}, {slot*1024 - 128*s + 0}") if slot*1024 - 128*s >= 0 else e(f"s_sub_u32 m0, s{S_LDSB}, {128*s - slot*1024}")
    e.vm(f"buffer_load_dwordx4 {vr(R.voffK)}, s[{SRD_K}:{SRD_K+3}], s{S_SOFF} offen offset:{128*s} {o.kvflags} lds", tag)
def dma_v(e, R, slot, w, tag, o):
    vo = R.voffY if w == 2 else R.voffX
    off = 384 if w == 1 else 0
    e(f"s_add_u32 m0, s{S_LDSB}, {slot*1024 - off}")
    e.vm(f"buffer_load_dwordx4 {vr(vo)}, s[{SRD_V}:{SRD_V+3}], s{S_SOFF} offen offset:{off} {o.kvflags} lds", tag)

def slot_reg(k):
    assert 0 <= k < 118
    return f"a[{4*k}:{4*k+3}]" if k < 64 else f"v[{40+4*(k-64)}:{40+4*(k-64)+3}]"

def weight_dma(e, o):
    L, t, u = 8, 20, 21
    def dma_block(ptr, nbytes, lanes_per_row, magic, shift, nlanes, row_stride, rows_per_instr, ninstr, so, lds0, bar=False):
        make_srd(e, SRD_T, ptr, nbytes)
        e(f"v_mul_u32_u24 v{t}, {magic}, v{L}"); e(f"v_lshrrev_b32 v{t}, {shift}, v{t}")
        e(f"v_mul_u32_u24 v{u}, {lanes_per_row}, v{t}"); e(f"v_sub_u32 v{u}, v{L}, v{u}")
        e(f"s_mov_b32 s{S_T1}, {row_stride}")
        e(f"v_mul_lo_u32 v{t}, v{t}, s{S_T1}"); e(f"v_lshl_add_u32 v{t}, v{u}, 4, v{t}")
        rreg, rmul, creg, cmul = so
        e(f"s_mul_i32 s{S_SOFF}, s{rreg}, {rmul*row_stride}")
        e(f"s_mul_i32 s{S_T1}, s{creg}, {cmul}"); e(f"s_add_u32 s{S_SOFF}, s{S_SOFF}, s{S_T1}")
        set_exec(e, mask64(range(nlanes)))
        if bar: e("s_barrier")
        for i in range(ninstr):
            e(f"s_mov_b32 m0, {lds0 + i*nlanes*16}")
            if i: e(f"s_add_u32 s{S_SOFF}, s{S_SOFF}, {rows_per_instr*row_stride}")
            else: e("s_nop 0")
            e.vm_depth(o.NW - 1)
            e.vm(f"buffer_load_dwordx4 v{t}, s[{SRD_T}:{SRD_T+3}], s{S_SOFF} offen {o.wflags} lds", "w")
        e("s_mov_b64 exec, -1")
    l2, l3, end = e.newlabel("w2"), e.newlabel("w3"), e.newlabel("wend")
    e(f"s_cmp_eq_u32 s{S_WAVE}, 2"); e(f"s_cbranch_scc1 {l2}")
    e(f"s_cmp_eq_u32 s{S_WAVE}, 3"); e(f"s_cbranch_scc1 {l3}")
    base_q = list(e.vmq)
    dma_block(S_WQ, 7864320, 24, 43, 10, 48, 12288, 2, 40, (S_J, 80, S_H, 384), ST_WQ, bar=True)
    e(f"s_branch {end}")
    e.label(l2); e.vmq = list(base_q)
    dma_block(S_WO, 7864320, 10, 103, 10, 60, 1280, 6, 32, (S_H, 192, S_J, 160), ST_WO, bar=True)
    e(f"s_branch {end}")
    e.label(l3); e.vmq = list(base_q)
    dma_block(S_WG, 1966080, 6, 43, 8, 60, 3072, 10, 8, (S_J, 80, S_H, 96), ST_WG, bar=True)
    dma_block(S_WU, 1966080, 6, 43, 8, 60, 3072, 10, 8, (S_J, 80, S_H, 96), ST_WU)
    dma_block(S_WD, 1966080, 10, 103, 10, 60, 1280, 6, 8, (S_H, 48, S_J, 160), ST_WD)
    e.label(end)
    e.vmq = ["w"] * o.NW

def emit_wb(e):
    skip = e.newlabel("nowb")
    e(f"s_cmp_lg_u32 s{S_WAVE}, 1"); e(f"s_cbranch_scc1 {skip}")
    e("s_cmp_ge_u32 s2, 8"); e(f"s_cbranch_scc1 {skip}")
    e("buffer_wbl2 sc1")
    e("s_waitcnt vmcnt(0)")
    e.label(skip)

def stream_wave(e, o, st):
    R = NS(vlds=0, voffK=1, voffX=2, voffY=3, sel=4, qA=8, D=20, sc=32, tmp=20, vpw=35, acc=8, A=20, pp=28, vpp=36, vm=38, vl=39)
    loads = []
    for T in range(SW_TILES):
        for s in range(3): loads.append(('K', T, s))
    for T in range(SW_TILES):
        for w in range(3): loads.append(('V', T, w))
    def k0slot(T, s): return 3 * T + s
    def v0slot(T, w): return 60 + 3 * T + w
    cur = [None]
    def issue0(item):
        kind, T, x = item
        if cur[0] != (kind, T, 0):
            kv_soff(e, S_KV0, T); cur[0] = (kind, T, 0)
        if kind == 'K': ld_k(e, R, slot_reg(k0slot(T, x)), x, ('K0', T, x), o)
        else:
            sl = v0slot(T, x)
            if sl < 118: ld_v(e, R, slot_reg(sl), x, ('V0', T, x), o)
            else: dma_v(e, R, 48 + sl - 118, x, ('V0', T, x), o)
    for item in loads[:o.NF]: issue0(item)
    late_common(e)
    e(f"s_add_u32 s{S_KV1}, s{S_KV0}, {BATCH_STRIDE}")
    e(f"s_sub_u32 s{S_T0}, s{S_WAVE}, 1"); e(f"s_mul_i32 s{S_LDSB}, s{S_T0}, {LDS_SW}")
    nf = list(e.vmq)
    if "now" in o.exp: e("s_barrier")
    else: weight_dma(e, o)
    e.vmq = nf + ["w"] * o.NW if len(nf) + o.NW <= 60 else ["w"] * 60
    cur[0] = None
    st("s.wiss")
    e(f"v_lshlrev_b32 {vr(R.vlds)}, 4, v8")
    e(f"v_add_u32 {vr(R.vlds)}, s{S_LDSB}, {vr(R.vlds)}")
    attn_selectors(e, R, 8, 10)
    for idx, item in enumerate(loads[:o.NA_BAR]):
        if idx < o.NF: continue
        na = o.NA0 if idx < o.NA0N else o.NA
        e.vm_depth(na - 1)
        if idx == o.NF + max(o.NA, o.NA0):
            e(f"s_lshl_b32 s{S_T0}, s{S_WAVE}, 2"); e(f"s_add_u32 s{S_T0}, s{S_T0}, {WFLAG-4}")
            e(f"v_mov_b32 v20, s{S_T0}"); e("v_mov_b32 v21, 1")
            e.lg("ds_write_b32 v20, v21", "wf")
            st("s.wland")
        if idx == 60: st("s.k0iss")
        if idx == 90: st("s.v30")
        issue0(item)
    st("A_issued")
    e("s_barrier")
    st("bar1")
    if "nocw" in o.exp or "cw" in o.exp or "stopA" in o.exp:
        e.vm_all(); st("s.alland"); st.flush(); e("s_endpgm")
    pend = [('0', it) for it in loads[o.NA_BAR:]]
    for T in range(16):
        for s in range(3): pend.append(('1', T, s))
    cur1 = [None]
    def issue_pend():
        it = pend.pop(0)
        if it[0] == '0': cur1[0] = None; issue0(it[1])
        else:
            _, T, s = it
            if cur1[0] != T:
                kv_soff(e, S_KV1, T); cur1[0] = T; cur[0] = None
            dma_k(e, R, 3 * T + s, s, ('K1', T, s), o)
    while pend[0][0] == '0': issue_pend()
    def Kf0(T, s): return slot_reg(k0slot(T, s))
    def Vf0(T, w):
        sl = v0slot(T, w)
        if sl < 118: return slot_reg(sl)
        return "v[32:35]" if w == 1 else "v[28:31]"
    def k_wait_A(T):
        if T == -1: e.vm_wait(('K0', SW_TILES - 1, 2))
    def pv_hook_A(T):
        left = SW_TILES - 1 - T
        target = max(o.NB1, min(o.NA, 3 * left + o.NB1)) if o.NB1 else 0
        if T == SW_TILES - 2:
            e.vm_wait(('V0', SW_TILES - 1, 2))
            e.lg(f"ds_read_b128 v[32:35], {vr(R.vlds)} offset:{48*1024}", ("vo", 1))
            e.lg(f"ds_read_b128 v[28:31], {vr(R.vlds)} offset:{49*1024}", ("vo", 2))
            target = o.NB1
        while pend and len(e.vmq) < target: issue_pend()
    def vwait_A(T, w):
        e.vm_wait(('V0', T, w))
        if T == SW_TILES - 1 and w >= 1: e.lg_wait(("vo", w))
    attn_pass(e, R, SW_TILES, 0, Kf0, Vf0, S_PB, 0, k_wait=k_wait_A, v_wait=vwait_A, pv_hook=pv_hook_A)
    st("A_done")
    e("s_barrier")
    if o.NB1 == o.NB:
        while pend:
            e.vm_depth(o.NB - 1)
            issue_pend()
    else:
        items = list(pend); pend.clear()
        q0 = list(e.vmq); c0 = cur1[0]
        fast = {i: e.newlabel("fastB") for i in range(len(items))}
        done = e.newlabel("doneB")
        e(f"v_mov_b32 v20, {WFLAG + 12}")
        def emit_item(it, force_soff):
            _, T, s = it
            if cur1[0] != T or force_soff:
                kv_soff(e, S_KV1, T); cur1[0] = T
            dma_k(e, R, 3 * T + s, s, ('K1', T, s), o)
        marks = [i for i, it in enumerate(items) if it[2] == 0]
        if o.NB1 == 0:
            spin = e.newlabel("spinB")
            e(f"s_mov_b32 s{S_CNT}, {o.poll_limit*8}")
            e.label(spin)
            e(f"s_sub_u32 s{S_CNT}, s{S_CNT}, 1"); e(f"s_cbranch_scc1 {fast[0]}")
            e.lg("ds_read_b32 v21, v20", "go"); e.lg_all()
            e(f"v_readfirstlane_b32 s{S_T0}, v21")
            e(f"s_cmp_lg_u32 s{S_T0}, 0"); e(f"s_cbranch_scc1 {fast[0]}")
            e("s_sleep 2"); e(f"s_branch {spin}")
        for i, it in enumerate(items if o.NB1 else []):
            if i in marks:
                e.lg("ds_read_b32 v21, v20", "go"); e.lg_all()
                e(f"v_readfirstlane_b32 s{S_T0}, v21")
                e(f"s_cmp_lg_u32 s{S_T0}, 0"); e(f"s_cbranch_scc1 {fast[i]}")
            e.vm_depth(o.NB1 - 1)
            emit_item(it, False)
        e(f"s_branch {done}")
        e.vmq = list(q0); cur1[0] = c0
        for i, it in enumerate(items):
            if i in marks: e.label(fast[i])
            e.vm_depth(o.NB - 1)
            emit_item(it, i in marks)
        e.label(done)
    st("B_issued")
    e("s_barrier")
    st("bar3")
    pend1 = []
    for T in range(16, SW_TILES):
        for s in range(3): pend1.append(('K', T, s))
    for T in range(SW_TILES):
        for w in range(3): pend1.append(('V', T, w))
    slot_of = {it: i for i, it in enumerate(pend1)}
    freed = [0]
    issued1 = [0]
    cur2 = [None]
    def issue1():
        it = pend1[issued1[0]]; kind, T, x = it
        if cur2[0] != (kind, T):
            kv_soff(e, S_KV1, T); cur2[0] = (kind, T)
        e.vm_depth(o.NC - 1)
        if kind == 'K': ld_k(e, R, slot_reg(slot_of[it]), x, ('K1', T, x), o)
        else: ld_v(e, R, slot_reg(slot_of[it]), x, ('V1', T, x), o)
        issued1[0] += 1
    def refill():
        while issued1[0] < len(pend1) and issued1[0] < freed[0]: issue1()
    def qk_hook_C1(T):
        freed[0] = 3 * (T + 1); refill()
    def pv_hook_C1(T):
        freed[0] = min(118, 60 + 3 * (T + 1)); refill(); ovf_hook_C(T)
    def ovf_hook_C(T):
        if T == SW_TILES - 2:
            e.lg(f"ds_read_b128 v[32:35], {vr(R.vlds)} offset:{48*1024}", ("vo", 1))
            e.lg(f"ds_read_b128 v[28:31], {vr(R.vlds)} offset:{49*1024}", ("vo", 2))
    def vwait_C1(T, w):
        if T == SW_TILES - 1 and w >= 1: e.lg_wait(("vo", w))
    e(f"s_add_u32 s{S_T2}, s{S_LDSB}, {48*1024}")
    attn_pass(e, R, SW_TILES, 0, Kf0, Vf0, S_T2, 32, qk_hook=qk_hook_C1, v_wait=vwait_C1, pv_hook=pv_hook_C1)
    refill()
    assert issued1[0] == len(pend1)
    st("C1_done")
    e("s_barrier")
    stage = [40 + 4 * (k - 64) for k in range(100, 112)]
    def Kf1(T, s):
        if T < 16: return ('lds', (3 * T + s) * 1024)
        return slot_reg(slot_of[('K', T, s)])
    def Vf1(T, w): return slot_reg(slot_of[('V', T, w)])
    def k_wait_C2(T):
        if T == -1: e.vm_wait(('K1', 15, 2))
        elif T >= 16: e.vm_wait(('K1', T, 2))
    def vwait_C2(T, w): e.vm_wait(('V1', T, w))
    attn_pass(e, R, SW_TILES, 1, Kf1, Vf1, S_PB, 0, k_wait=k_wait_C2, v_wait=vwait_C2, stage=stage)
    st("C2_done")
    e("s_barrier")
    if o.wb == 2: emit_wb(e)
    e("s_barrier")
    st("bar7")
    attn_pass(e, R, SW_TILES, 1, Kf1, Vf1, S_PB, 0, stage=stage)
    st("E_done")
    e("s_barrier")
    if o.wb == 1: emit_wb(e)
    st.flush()
    e("s_endpgm")

V_LANE, V_LG, V_R, V_PL, V_PG, V_PQ = 0, 4, 5, 6, 7, 8
V_BO, V_BX, V_BX8, V_BH, V_BH8, V_AS, V_AS8 = 9, 10, 11, 12, 13, 14, 15
V_XR, V_CSQ, V_CSG = 16, 20, 24
V_W8, V_WX, V_WH, V_ML = 28, 29, 30, 31
W0 = 32
V_SEL, V_R2, V_ST2, V_PS, V_PSQ, V_L16 = 75, 79, 80, 81, 82, 83
V_T = 84
V_GL, V_LL = 72, 73
CW_K, CW_V = 86, 134
S_N1 = 74

_off3 = (2, 6, 0)
def wq_frag(t, s): return ("a", 10 * t + _off3[s])
def wo_frag(t, s): return ("a", 120 + 24 * t + 4 * s)
def wd_frag(t, s):
    if s == 0: return ("a", 240 + 4 * t) if t < 4 else ("v", 182)
    return ("v", 186 + 2 * t)
def wg_frag(t, s): return ("v", 196 + 10 * t + _off3[s])
def wu_frag(t, s): return ("v", 226 + 10 * t + _off3[s])
def win(fr): return f"{fr[0]}[{fr[1]}:{fr[1]+3}]"

V_OOB = 74
def selmask(e, dst, val, mask, other=None):
    e(f"s_mov_b32 vcc_lo, 0x{mask & 0xffffffff:08x}"); e(f"s_mov_b32 vcc_hi, 0x{mask >> 32:08x}")
    if other is None: e(f"v_cndmask_b32 {vr(dst)}, v{V_OOB}, {vr(val)}, vcc")
    else:
        assert dst != val
        e(f"v_mov_b32 {vr(dst)}, 0x{other:08x}")
        e(f"v_cndmask_b32 {vr(dst)}, {vr(dst)}, {vr(val)}, vcc")

def rows_mask(live, n): return mask64([32 * r + g for r in live for g in range(n)])
def cols_mask(live, alist=range(4)): return mask64([16 * a + n for a in alist for n in live])

def instance_offsets(e, live, pub_live=None, q_live=None):
    pub_live = live if pub_live is None else pub_live
    q_live = pub_live if q_live is None else q_live
    t, u = V_T, V_T + 1
    e(f"v_and_b32 {vr(t)}, 31, v{V_LANE}"); e(f"v_lshlrev_b32 {vr(t)}, 4, {vr(t)}")
    e(f"v_lshrrev_b32 {vr(u)}, 5, v{V_LANE}"); e(f"v_lshl_add_u32 {vr(t)}, {vr(u)}, 9, {vr(t)}")
    selmask(e, V_LG, t, rows_mask(live, 20))
    selmask(e, V_R2, t, rows_mask(live, 24))
    e(f"v_and_b32 v{V_GL}, 7, v{V_LANE}"); e(f"v_lshlrev_b32 v{V_GL}, 10, v{V_GL}"); e(f"v_add_u32 v{V_GL}, {512*live[-1] + 19*16}, v{V_GL}")
    e(f"v_and_b32 v{V_LL}, 3, v{V_LANE}"); e(f"v_lshlrev_b32 v{V_LL}, 10, v{V_LL}"); e(f"v_add_u32 v{V_LL}, {512*live[-1] + 19*16}, v{V_LL}")
    e(f"v_and_b32 {vr(t)}, 7, v{V_LANE}"); e(f"v_lshlrev_b32 {vr(t)}, 10, {vr(t)}")
    e(f"v_lshl_add_u32 {vr(t)}, {vr(u)}, 9, {vr(t)}"); e(f"v_add_u32 {vr(t)}, 384, {vr(t)}")
    selmask(e, V_ST2, t, rows_mask(live, 32))
    e(f"v_and_b32 {vr(t)}, 15, v{V_LANE}"); e(f"v_lshrrev_b32 {vr(u)}, 4, v{V_LANE}")
    e(f"v_lshlrev_b32 v{V_PL}, 9, {vr(t)}")
    e(f"v_lshl_add_u32 v{V_PG}, {vr(u)}, 5, v{V_PL}")
    e(f"v_add_u32 v{V_PS}, 384, v{V_PL}")
    e(f"v_lshl_add_u32 v{V_PL}, {vr(u)}, 4, v{V_PL}")
    e(f"v_lshlrev_b32 v{V_PQ}, 18, {vr(t)}")
    e(f"v_add_u32 v{V_PSQ}, 768, v{V_PQ}")
    e(f"v_lshl_add_u32 v{V_PQ}, {vr(u)}, 4, v{V_PQ}")
    cm = cols_mask(pub_live)
    e(f"s_mov_b32 vcc_lo, 0x{cm & 0xffffffff:08x}"); e(f"s_mov_b32 vcc_hi, 0x{cm >> 32:08x}")
    for r in (V_PL, V_PG): e(f"v_cndmask_b32 v{r}, v{V_OOB}, v{r}, vcc")
    selmask(e, V_PS, V_PS, cols_mask(pub_live, [0]))
    selmask(e, V_PQ, V_PQ, cols_mask(q_live))
    selmask(e, V_PSQ, V_PSQ, cols_mask(q_live, [0]))

def soffs(e, off_sreg, const, two=True):
    e(f"s_add_u32 s{S_A}, s{off_sreg}, {const}")
    if two: e(f"s_add_u32 s{S_B}, s{S_A}, 4096")

def poll(e, o, loads, abort, sleep=0):
    lab = e.newlabel("poll")
    e(f"s_mov_b32 s{S_CNT}, {o.poll_limit}")
    e.label(lab)
    for d, vo, s, imm in loads:
        e(f"buffer_load_dwordx4 {vr(d,4)}, v{vo}, s[{SRD_WS}:{SRD_WS+3}], s{s} offen offset:{imm} sc1")
    e(f"s_sub_u32 s{S_CNT}, s{S_CNT}, 1")
    e(f"s_cbranch_scc1 {abort}")
    e("s_waitcnt vmcnt(0)")
    vals = []
    for d, _, _, _ in loads: vals += [d + 1, d + 3]
    t = V_T
    e(f"v_max3_u32 v{t}, v{vals[0]}, v{vals[1]}, v{vals[2]}")
    i = 3
    while i < len(vals):
        if i + 1 < len(vals): e(f"v_max3_u32 v{t}, v{t}, v{vals[i]}, v{vals[i+1]}"); i += 2
        else: e(f"v_max_u32 v{t}, v{t}, v{vals[i]}"); i += 1
    e(f"v_cmp_eq_u32 vcc, -1, v{t}")
    if sleep:
        ok = e.newlabel("pok"); e(f"s_cbranch_vccz {ok}"); e(f"s_sleep {sleep}"); e(f"s_branch {lab}"); e.label(ok)
    else: e(f"s_cbranch_vccnz {lab}")
    e.vmq = []

def gather8(e, o, vo, abort, extra=None, n=8, base=W0):
    loads = [(base + 4 * k, vo, S_A if k < 4 else S_B, (k % 4) * 1024) for k in range(n)]
    if extra: loads.append((base + 4 * n, extra, S_A, 0))
    poll(e, o, loads, abort)

def sum_loads(e, n, base=W0):
    step = 1
    while step < n:
        for k in range(0, n, 2 * step):
            if k + step < n:
                a, b = base + 4 * k, base + 4 * (k + step)
                e(f"v_pk_add_f32 {vr(a,2)}, {vr(a,2)}, {vr(b,2)}")
                e(f"v_pk_add_f32 {vr(a+2,2)}, {vr(a+2,2)}, {vr(b+2,2)}")
        step *= 2

def dpp8(e, reg, op):
    for m in ("quad_perm:[1,0,3,2]", "quad_perm:[2,3,0,1]", "row_half_mirror"):
        e(f"v_{op}_f32_dpp v{reg}, v{reg}, v{reg} {m} row_mask:0xf bank_mask:0xf")
def dpp8x2(e, r0, r1, op):
    for m in ("quad_perm:[1,0,3,2]", "quad_perm:[2,3,0,1]", "row_half_mirror"):
        e(f"v_{op}_f32_dpp v{r0}, v{r0}, v{r0} {m} row_mask:0xf bank_mask:0xf")
        e(f"v_{op}_f32_dpp v{r1}, v{r1}, v{r1} {m} row_mask:0xf bank_mask:0xf")

def ln_from_stats(e, s1, s2, mean, rstd):
    e(f"v_mul_f32 v{mean}, {lit(1/640)}, v{s1}")
    e(f"v_mul_f32 v{s2}, {lit(1/640)}, v{s2}")
    e(f"v_fma_f32 v{s2}, -v{mean}, v{mean}, v{s2}")
    e(f"v_max_f32 v{s2}, 0, v{s2}")
    e(f"v_add_f32 v{s2}, {lit(EPS)}, v{s2}")
    e(f"v_rsq_f32 v{rstd}, v{s2}")

def pub(e, D, vo, sreg, imm, fl, tag):
    e.vm(f"buffer_store_dwordx4 {vr(D,4)}, v{vo}, s[{SRD_WS}:{SRD_WS+3}], s{sreg} offen offset:{imm} {fl}", tag)

def run_tiles(e, tiles, accs, store, btags=None, twait=None):
    n = len(accs); lag = n - 1
    for i, (tid, steps) in enumerate(tiles):
        D = vr(accs[i % n], 4)
        if twait and tid in twait: e.lg_wait(twait[tid])
        for s, (A, B) in enumerate(steps):
            if i == 0 and btags: e.lg_wait(btags[s])
            e(f"v_mfma_f32_16x16x32_bf16 {D}, {A}, {B}, {'0' if s == 0 else D}")
        if i >= lag: store(tiles[i - lag][0], accs[(i - lag) % n])
    for i in range(max(0, len(tiles) - lag), len(tiles)): store(tiles[i][0], accs[i % n])

def read_bx(e, B):
    e.lg(f"ds_read_b128 {vr(B,4)}, v{V_BX}", "b0"); e.lg(f"ds_read_b128 {vr(B+4,4)}, v{V_BX} offset:64", "b1")
    e.lg(f"ds_read_b64 {vr(B+8,2)}, v{V_BX8}", "b2")
    e(f"v_mov_b32 v{B+10}, 0"); e(f"v_mov_b32 v{B+11}, 0")
def read_as(e, A):
    e.lg(f"ds_read_b128 {vr(A,4)}, v{V_AS}", "a0"); e.lg(f"ds_read_b128 {vr(A+4,4)}, v{V_AS} offset:64", "a1")
    e.lg(f"ds_read_b64 {vr(A+8,2)}, v{V_AS8}", "a2")
    e(f"v_mov_b32 v{A+10}, 0"); e(f"v_mov_b32 v{A+11}, 0")

def stage_Q(e, fl, reg_index, shadow=None):
    B, A = W0 + 8, W0 + 20
    read_bx(e, B); read_as(e, A)
    e(f"s_add_u32 s{S_A}, s{S_ROWN}, {reg_index*RG}")
    if shadow: shadow()
    tiles = [(t, [(win(wq_frag(t, s)), vr(B + 4 * s, 4)) for s in range(3)]) for t in range(12)]
    tiles.insert(1, (12, [(vr(A + 4 * s, 4), vr(B + 4 * s, 4)) for s in range(3)]))
    SD = W0 + 4
    def store(t, D): pub(e, D, V_PQ, S_A, 64 * t, fl, ("pq", t))
    first, stats, rest = tiles[0], tiles[1], tiles[2:]
    run_tiles(e, [first], [W0 + 32, W0 + 36], lambda t, D: None, btags=["b0", "b1", "b2"])
    e.lg_wait("a2")
    for s, (Aop, Bop) in enumerate(stats[1]):
        e(f"v_mfma_f32_16x16x32_bf16 {vr(SD,4)}, {Aop}, {Bop}, {'0' if s == 0 else vr(SD,4)}")
    accs = [W0 + 36, W0, W0 + 20, W0 + 32]
    pend = [(0, W0 + 32)]
    for i, (t, steps) in enumerate(rest):
        D = accs[i % 4]
        for s, (Aop, Bop) in enumerate(steps):
            e(f"v_mfma_f32_16x16x32_bf16 {vr(D,4)}, {Aop}, {Bop}, {'0' if s == 0 else vr(D,4)}")
        pend.append((t, D))
        if i >= 2: store(*pend.pop(0))
    e(f"v_cndmask_b32 v{SD+1}, v{SD+1}, v{SD+2}, s[{S_N1}:{S_N1+1}]")
    while pend: store(*pend.pop(0))
    pub(e, SD, V_PSQ, S_A, 0, fl, "pqs")

def stage_GU(e, fl, const, with_stats=True, shadow=None):
    B, A = W0 + 8, W0 + 20
    read_bx(e, B)
    if with_stats: read_as(e, A)
    e(f"s_add_u32 s{S_A}, s{S_ROWN}, {const}" if const >= 0 else f"s_sub_u32 s{S_A}, s{S_ROWN}, {-const}")
    if shadow: shadow()
    def tile(d, f, waits=None):
        d = vr(d, 4)
        for s in range(3):
            if waits: e.lg_wait(waits[s])
            e(f"v_mfma_f32_16x16x32_bf16 {d}, {f(s)}, {vr(B+4*s,4)}, {'0' if s == 0 else d}")
    def store(t, G, U):
        e(f"v_swap_b32 v{G+2}, v{U}"); e(f"v_swap_b32 v{G+3}, v{U+1}")
        pub(e, G, V_PG, S_A, 128 * t, fl, ("pg", t, 0))
        pub(e, U, V_PG, S_A, 128 * t + 16, fl, ("pg", t, 1))
    g = lambda t: (lambda s: win(wg_frag(t, s)))
    u = lambda t: (lambda s: win(wu_frag(t, s)))
    P0, P1, S = (W0 + 32, W0 + 36), (W0 + 20, W0 + 24), W0
    tile(P0[0], g(0), waits=["b0", "b1", "b2"]); tile(P0[1], u(0))
    if with_stats:
        e.lg_wait("a2")
        tile(S, lambda s: vr(A + 4 * s, 4))
    tile(P1[0], g(1)); tile(P1[1], u(1))
    store(0, *P0)
    if with_stats: e(f"v_cndmask_b32 v{S+1}, v{S+1}, v{S+2}, s[{S_N1}:{S_N1+1}]")
    tile(P0[0], g(2)); tile(P0[1], u(2))
    store(1, *P1)
    store(2, *P0)
    if with_stats: pub(e, S, V_PS, S_A, 0, fl, "pgs")

def stage_WO(e, fl, region):
    B = W0
    for s in range(6): e.lg(f"ds_read_b128 {vr(B+4*s,4)}, v{V_BO} offset:{64*s}", ("o", s))
    e(f"s_add_u32 s{S_A}, s{S_LOWN}, {region*RG}")
    tiles = [(t, [(win(wo_frag(t, s)), vr(B+4*s,4)) for s in range(6)]) for t in range(5)]
    run_tiles(e, tiles, [W0 + 24, W0 + 28, W0 + 32], lambda t, D: pub(e, D, V_PL, S_A, 64 * t, fl, ("po", t)), btags=[("o", s) for s in range(6)])

def stage_D(e, fl, region):
    B = W0
    e.lg(f"ds_read_b128 {vr(B,4)}, v{V_BH}", "h0"); e.lg(f"ds_read_b64 {vr(B+4,2)}, v{V_BH8}", "h1")
    e(f"v_mov_b32 v{B+6}, 0"); e(f"v_mov_b32 v{B+7}, 0")
    e(f"s_add_u32 s{S_A}, s{S_LOWN}, {region*RG}")
    tiles = [(t, [(win(wd_frag(t, 0)), vr(B,4)), (win(wd_frag(t, 1)), vr(B+4,4))]) for t in range(5)]
    run_tiles(e, tiles, [W0 + 8 + 4 * i for i in range(5)], lambda t, D: pub(e, D, V_PL, S_A, 64 * t, fl, ("pd", t)), btags=["h0", "h1"])

def fast_gather(e, o, loads, body, abort, pre=0, early=False):
    n = len(loads); t = V_T
    lab = e.newlabel("fpoll")
    e(f"s_mov_b32 s{S_CNT}, {o.poll_limit}")
    if pre: e(f"s_sleep {pre}")
    e.label(lab)
    for d, vo, s, imm in loads:
        e(f"buffer_load_dwordx4 {vr(d,4)}, v{vo}, s[{SRD_WS}:{SRD_WS+3}], s{s} offen offset:{imm} sc1")
    e(f"s_sub_u32 s{S_CNT}, s{S_CNT}, 1")
    e(f"s_cbranch_scc1 {abort}")
    first = [True]
    if early:
        d = loads[0][0]
        e(f"s_waitcnt vmcnt({n-1})")
        e(f"v_max_u32 v{t}, v{d+1}, v{d+3}")
        e(f"v_cmp_eq_u32 vcc, -1, v{t}")
        e(f"s_cbranch_vccnz {lab}")
        first[0] = False
    def wait(k): e(f"s_waitcnt vmcnt({n-1-k})")
    def chk(k):
        d = loads[k][0]
        if first[0]: e(f"v_max_u32 v{t}, v{d+1}, v{d+3}"); first[0] = False
        else: e(f"v_max3_u32 v{t}, v{t}, v{d+1}, v{d+3}")
    body(wait, chk)
    e(f"v_cmp_eq_u32 vcc, -1, v{t}")
    e(f"s_cbranch_vccnz {lab}")
    e.vmq = []

def padd(e, a, b, neg=False):
    m = " neg_lo:[0,1] neg_hi:[0,1]" if neg else ""
    e(f"v_pk_add_f32 {vr(a,2)}, {vr(a,2)}, {vr(b,2)}{m}"); e(f"v_pk_add_f32 {vr(a+2,2)}, {vr(a+2,2)}, {vr(b+2,2)}{m}")

def g_soffs(e, off_sreg, const, two=True):
    e(f"s_add_u32 s{S_GA}, s{off_sreg}, {const}")
    if two: e(f"s_add_u32 s{S_GB}, s{S_GA}, 4096")
def g_loads(vo, n=8, base=W0): return [(base + 4 * k, vo, S_GA if k < 4 else S_GB, (k % 4) * 1024) for k in range(n)]

def hop_LG(e, o, inst, k, abort, final_only=False):
    skip = e.newlabel("notleader")
    e(f"s_cmp_lg_u32 s{S_HQ}, 0"); e(f"s_cbranch_scc1 {skip}")
    g_soffs(e, S_LGRP, L_REG(inst, k) * RG, two=False)
    e(f"s_add_u32 s{S_A}, s{S_GOWN}, {G_OFF(inst,k)}")
    X = W0 + 32
    off = 1 if o.early else 0
    def body4(wait, chk):
        wait(off + 1); chk(off); chk(off + 1); padd(e, W0, W0 + 4)
        wait(off + 2); chk(off + 2); padd(e, W0, W0 + 8)
        wait(off + 3); chk(off + 3); padd(e, W0, W0 + 12)
    fast_gather(e, o, ([(X, V_LL, S_GA, 0)] if o.early else []) + g_loads(V_LG, 4), body4, abort, pre=o.preL, early=o.early)
    e(f"buffer_store_dwordx4 {vr(W0,4)}, v{V_LG}, s[{SRD_WS}:{SRD_WS+3}], s{S_A} offen sc1")
    if o.preGn:
        join = e.newlabel("lgjoin")
        e(f"s_branch {join}")
        e.label(skip)
        if not final_only: e(f"s_sleep {o.preGn}")
        e.label(join)
    else: e.label(skip)
    if final_only:
        e(f"s_cmp_lg_u32 s{S_H}, 0"); e(f"s_cbranch_scc1 L_done")
    g_soffs(e, S_GGRP, G_OFF(inst, k))
    e.vmq = []
    def body8(wait, chk):
        c = lambda k: chk(off + k)
        w = lambda k: wait(off + k)
        w(1); c(0); c(1); padd(e, W0, V_XR); padd(e, W0, W0 + 4)
        w(3); c(2); c(3); padd(e, W0 + 8, W0 + 12); padd(e, W0, W0 + 8)
        w(5); c(4); c(5); padd(e, W0 + 16, W0 + 20); padd(e, W0, W0 + 16)
        w(6); c(6); padd(e, W0, W0 + 24)
        w(7); c(7); padd(e, W0, W0 + 28)
    fast_gather(e, o, ([(X, V_GL, S_GA, 0)] if o.early else []) + g_loads(V_LG, 8), body8, abort, pre=o.preG, early=o.early)

def hop_final(e, o, abort):
    e(f"s_cmp_lg_u32 s{S_H}, 0"); e(f"s_cbranch_scc1 L_done")
    e(f"s_lshl_b32 s{S_T0}, s{S_J}, 12"); e(f"s_add_u32 s{S_T0}, s{S_T0}, {L_REG(2,1)*RG}")
    for x in range(8): e(f"s_add_u32 s{SW8[x]}, s{S_T0}, {32768*x}")
    dst = [W0 + 4 * k for k in range(8)] + [CW_K + 4 * k for k in range(24)]
    loads = [(dst[4 * x + q], V_LG, SW8[x], 1024 * q) for x in range(8) for q in range(4)]
    A0, A1 = loads[0][0], loads[1][0]
    def body(wait, chk):
        wait(1); chk(0); chk(1); padd(e, A0, V_XR)
        for k in range(2, 32):
            if k % 2 == 0: wait(min(k + 1, 31)); chk(k); chk(k + 1)
            padd(e, A0 if k % 2 == 0 else A1, loads[k][0])
        padd(e, A0, A1)
    fast_gather(e, o, loads, body, abort, pre=o.preF)

def residual_update(e):
    e(f"v_cvt_pk_bf16_f32 v{W0+4}, v{W0}, v{W0+1}")
    e(f"v_cvt_pk_bf16_f32 v{W0+5}, v{W0+2}, v{W0+3}")
    e.lg(f"ds_write_b64 v{V_WX}, {vr(W0+4,2)}", "wx")
def residual_unpack(e, p):
    e(f"v_lshlrev_b32 v{V_XR}, 16, v{p}"); e(f"v_and_b32 v{V_XR+1}, 0xffff0000, v{p}")
    e(f"v_lshlrev_b32 v{V_XR+2}, 16, v{p+1}"); e(f"v_and_b32 v{V_XR+3}, 0xffff0000, v{p+1}")

def store_out(e, row):
    skip = e.newlabel("noout")
    e(f"s_cmp_lg_u32 s{S_H}, 0"); e(f"s_cbranch_scc1 {skip}")
    make_srd(e, SRD_T, S_OUT, 2560)
    e(f"v_and_b32 v{V_T}, 31, v{V_LANE}"); e(f"v_lshlrev_b32 v{V_T}, 3, v{V_T}")
    e(f"s_mul_i32 s{S_T0}, s{S_J}, 160"); e(f"s_add_u32 s{S_T0}, s{S_T0}, {row*1280}")
    selmask(e, V_T, V_T, rows_mask([row], 20))
    e(f"buffer_store_dwordx2 {vr(W0+4,2)}, v{V_T}, s[{SRD_T}:{SRD_T+3}], s{S_T0} offen")
    e.label(skip)

def combine_publish(e, fl, parts, mlbase, region):
    T = W0
    e(f"v_mov_b32 v{V_T}, {mlbase}")
    e.lg(f"ds_read_b128 {vr(T,4)}, v{V_T}", "ml0"); e.lg(f"ds_read_b128 {vr(T+4,4)}, v{V_T} offset:16", "ml1")
    P = T + 8
    cur = None
    for w in range(4):
        if cur is None or not (0 <= parts[w] - cur < 60000):
            e(f"v_add_u32 v{V_T+1}, {parts[w]}, v{V_L16}"); cur = parts[w]
        for par in range(2):
            e.lg(f"ds_read_b128 {vr(P+8*w+4*par,4)}, v{V_T+1} offset:{parts[w] - cur + 768*par}", ("p", w, par))
    e(f"s_add_u32 s{S_A}, s{S_ROWN}, {region*RG}")
    e.lg_wait("ml1")
    m = [T, T + 2, T + 4, T + 6]; l = [T + 1, T + 3, T + 5, T + 7]
    M, Ls = V_T, V_T + 1
    e(f"v_max3_f32 v{M}, v{m[0]}, v{m[1]}, v{m[2]}"); e(f"v_max_f32 v{M}, v{M}, v{m[3]}")
    for w in range(4): e(f"v_sub_f32 v{m[w]}, v{m[w]}, v{M}")
    for w in range(4): e(f"v_exp_f32 v{m[w]}, v{m[w]}")
    e(f"v_mul_f32 v{Ls}, v{m[0]}, v{l[0]}")
    for w in range(1, 4): e(f"v_fma_f32 v{Ls}, v{m[w]}, v{l[w]}, v{Ls}")
    for w in range(4):
        e.lg_wait(("p", w, 1))
        a = P + 8 * w
        e(f"v_pk_add_f32 {vr(a,2)}, {vr(a,2)}, {vr(a+4,2)}"); e(f"v_pk_add_f32 {vr(a+2,2)}, {vr(a+2,2)}, {vr(a+6,2)}")
        for r in range(4):
            if w == 0: e(f"v_mul_f32 v{P+r}, v{m[0]}, v{P+r}")
            else: e(f"v_fmac_f32 v{P+r}, v{m[w]}, v{a+r}")
    e(f"s_mov_b32 vcc_lo, 0"); e(f"s_mov_b32 vcc_hi, 0x00010000")
    e(f"v_cndmask_b32 v{P}, v{P}, v{M}, vcc"); e(f"v_cndmask_b32 v{P+1}, v{P+1}, v{Ls}, vcc")
    pub(e, P, V_R, S_A, 0, fl, "r1")

SW8 = [4, 6, 8, 10, 12, 16, 18, 20]
def hop_R1(e, o, region, row, abort):
    g_soffs(e, S_RGRP, region * RG)
    X = W0 + 32
    M, wv = X + 2, X + 3
    acc = W0 + 36
    loads = [(X, V_ML, S_GA, 0)] + g_loads(V_R)
    def body(wait, chk):
        if not o.early: wait(0); chk(0)
        e(f"v_mov_b32 v{M}, v{X}")
        dpp8(e, M, "max")
        e(f"v_sub_f32 v{wv}, v{X}, v{M}"); e(f"v_exp_f32 v{wv}, v{wv}")
        wait(4); chk(1); chk(2)
        e(f"v_mul_f32 v{X+1}, v{wv}, v{X+1}")
        chk(3); chk(4)
        e(f"v_add_f32_dpp v{X+1}, v{X+1}, v{X+1} quad_perm:[1,0,3,2] row_mask:0xf bank_mask:0xf")
        wait(8); chk(5); chk(6)
        e(f"v_add_f32_dpp v{X+1}, v{X+1}, v{X+1} quad_perm:[2,3,0,1] row_mask:0xf bank_mask:0xf")
        chk(7); chk(8)
        e(f"v_add_f32_dpp v{X+1}, v{X+1}, v{X+1} row_half_mirror row_mask:0xf bank_mask:0xf")
        e(f"v_rcp_f32 v{X+1}, v{X+1}")
        e(f"v_mul_f32 v{wv}, v{wv}, v{X+1}")
        for k in range(8): e(f"v_readlane_b32 s{SW8[k]}, v{wv}, {k}")
        for k in range(8):
            for h in range(2):
                a, m = acc + 2 * h, W0 + 4 * k + 2 * h
                sp = f"s[{SW8[k]}:{SW8[k]+1}]"
                if k == 0: e(f"v_pk_mul_f32 {vr(a,2)}, {vr(m,2)}, {sp} op_sel_hi:[1,0]")
                else: e(f"v_pk_fma_f32 {vr(a,2)}, {vr(m,2)}, {sp}, {vr(a,2)} op_sel_hi:[1,0,1]")
    fast_gather(e, o, loads, body, abort, pre=o.preR, early=o.early)
    e(f"v_cvt_pk_bf16_f32 v{acc}, v{acc}, v{acc+1}"); e(f"v_cvt_pk_bf16_f32 v{acc+1}, v{acc+2}, v{acc+3}")
    e.lg(f"ds_write_b64 v{V_W8}, {vr(acc,2)} offset:{ACT_O - SB + 384*row}", "wo")

def ln_gather(e, o, vo, vstat, cs, abort):
    X = W0 + 32; mean, rstd = X + 2, X + 3; T = W0 + 36
    loads = [(X, vstat, S_GA, 0)] + g_loads(vo)
    q = lambda r, m: e(f"v_add_f32_dpp v{r}, v{r}, v{r} {m} row_mask:0xf bank_mask:0xf")
    def body(wait, chk):
        if not o.early: wait(0); chk(0)
        q(X, "quad_perm:[1,0,3,2]"); q(X + 1, "quad_perm:[1,0,3,2]")
        wait(2); chk(1)
        q(X, "quad_perm:[2,3,0,1]"); q(X + 1, "quad_perm:[2,3,0,1]")
        chk(2)
        q(X, "row_half_mirror"); q(X + 1, "row_half_mirror")
        padd(e, W0, W0 + 4)
        e(f"v_mul_f32 v{mean}, {lit(1/640)}, v{X}"); e(f"v_mul_f32 v{X+1}, {lit(1/640)}, v{X+1}")
        wait(4); chk(3); chk(4)
        e(f"v_fma_f32 v{X+1}, -v{mean}, v{mean}, v{X+1}")
        padd(e, W0 + 8, W0 + 12)
        e(f"v_max_f32 v{X+1}, 0, v{X+1}"); e(f"v_add_f32 v{X+1}, {lit(EPS)}, v{X+1}")
        padd(e, W0, W0 + 8)
        e(f"v_rsq_f32 v{rstd}, v{X+1}")
        wait(6); chk(5); chk(6)
        e(f"v_pk_mul_f32 {vr(T,2)}, {vr(cs,2)}, {vr(mean,2)} op_sel_hi:[1,0]"); e(f"v_pk_mul_f32 {vr(T+2,2)}, {vr(cs+2,2)}, {vr(mean,2)} op_sel_hi:[1,0]")
        padd(e, W0 + 16, W0 + 20); padd(e, W0, T, neg=True); padd(e, W0, W0 + 16)
        wait(7); chk(7); padd(e, W0, W0 + 24)
        wait(8); chk(8); padd(e, W0, W0 + 28)
    fast_gather(e, o, loads, body, abort, pre=o.preR, early=o.early)
    e(f"v_pk_mul_f32 {vr(W0,2)}, {vr(W0,2)}, {vr(mean,2)} op_sel:[0,1] op_sel_hi:[1,1]")
    e(f"v_pk_mul_f32 {vr(W0+2,2)}, {vr(W0+2,2)}, {vr(mean,2)} op_sel:[0,1] op_sel_hi:[1,1]")

def hop_R2(e, o, inst, abort):
    ln_gather(e, o, V_R2, V_ST2, V_CSG, abort)
    e(f"v_max_f32 v{W0}, 0, v{W0}"); e(f"v_max_f32 v{W0+1}, 0, v{W0+1}")
    e(f"v_pk_mul_f32 {vr(W0,2)}, {vr(W0,2)}, {vr(W0+2,2)}")
    e(f"v_cvt_pk_bf16_f32 v{W0}, v{W0}, v{W0+1}")
    e.lg(f"ds_write_b32 v{V_WH}, v{W0}", "wh")

def q_consume(e, base, X, row):
    dpp8x2(e, X, X + 1, "add")
    sum_loads(e, 8, base)
    mean, rstd = X + 2, X + 3
    ln_from_stats(e, X, X + 1, mean, rstd)
    for r in range(4): e(f"v_fma_f32 v{base+r}, -v{mean}, v{V_CSQ+r}, v{base+r}")
    for r in range(4): e(f"v_mul_f32 v{base+r}, v{rstd}, v{base+r}")
    e(f"v_cvt_pk_bf16_f32 v{base}, v{base}, v{base+1}"); e(f"v_cvt_pk_bf16_f32 v{base+1}, v{base+2}, v{base+3}")
    e.lg(f"ds_write_b64 v{V_W8}, {vr(base,2)} offset:{QARR - SB + 384*row}", "wq")

def hop_R3(e, o, region, row, abort):
    ln_gather(e, o, V_R, V_ML, V_CSQ, abort)
    e(f"v_cvt_pk_bf16_f32 v{W0}, v{W0}, v{W0+1}"); e(f"v_cvt_pk_bf16_f32 v{W0+1}, v{W0+2}, v{W0+3}")
    e.lg(f"ds_write_b64 v{V_W8}, {vr(W0,2)} offset:{QARR - SB + 384*row}", "wq")

def go_flag(e):
    e(f"v_mov_b32 v{V_T}, {WFLAG + 12}"); e(f"v_mov_b32 v{V_T+1}, 1")
    e.lg(f"ds_write_b32 v{V_T}, v{V_T+1}", "go")

def chain(e, o, fl, inst, live, abort, st):
    c = f"c{inst}."
    if inst == 0 and o.NB1 != o.NB and o.go_at == "R1": go_flag(e)
    if inst == 0: o._save = (o.preR, o.preL, o.preG); o.preL, o.preG = o.preL + o.preL0, o.preG + o.preG0
    st.rounds(f"n{inst}.R1")
    st(c + "R1")
    stage_WO(e, fl, L_REG(inst, 0))
    st(c + "WO")
    hop_LG(e, o, inst, 0, abort)
    if inst == 0 and o.NB1 != o.NB and o.go_at == "G1": go_flag(e)
    if inst == 0: o.preR, o.preL, o.preG = o._save
    st.rounds(f"n{inst}.G1")
    st(c + "G1")
    residual_update(e)
    def sh_gu():
        residual_unpack(e, W0 + 4); g_soffs(e, S_RGRP, R2_REG[inst] * RG)
    stage_GU(e, fl, R2_REG[inst] * RG, shadow=sh_gu)
    st(c + "GU")
    hop_R2(e, o, inst, abort)
    st.rounds(f"n{inst}.R2")
    st(c + "R2")
    if inst == 2 and o.direct:
        stage_D(e, "sc1", L_REG(inst, 1))
        st(c + "D")
        hop_final(e, o, abort)
    else:
        stage_D(e, fl, L_REG(inst, 1))
        st(c + "D")
        hop_LG(e, o, inst, 1, abort, final_only=(inst == 2))
    st.rounds(f"n{inst}.G2")
    st(c + "G2")
    if inst == 2:
        e(f"v_cvt_pk_bf16_f32 v{W0+4}, v{W0}, v{W0+1}"); e(f"v_cvt_pk_bf16_f32 v{W0+5}, v{W0+2}, v{W0+3}")
        store_out(e, 1)
        e("s_cmp_lg_u32 s2, 0"); e("s_cbranch_scc1 L_done")
        e(f"v_mov_b32 v{V_T}, s{S_TAG}"); e(f"v_mov_b32 v{V_T+1}, {EPOCH_OFF}")
        e("s_mov_b64 exec, 1")
        e(f"buffer_store_dword v{V_T}, v{V_T+1}, s[{SRD_WS}:{SRD_WS+3}], 0 offen sc1")
        e("s_mov_b64 exec, -1")
        return
    residual_update(e)
    qrow = 0 if inst == 0 else 1
    def sh_q():
        residual_unpack(e, W0 + 4); g_soffs(e, S_RGRP, R3_REG[inst] * RG)
        if inst == 1:
            store_out(e, 0)
            cm = cols_mask([1]); e(f"s_mov_b32 vcc_lo, 0x{cm & 0xffffffff:08x}"); e(f"s_mov_b32 vcc_hi, 0x{cm >> 32:08x}")
            e(f"v_cndmask_b32 v{V_PQ}, v{V_OOB}, v{V_PQ}, vcc"); e(f"v_cndmask_b32 v{V_PSQ}, v{V_OOB}, v{V_PSQ}, vcc")
    stage_Q(e, fl, R3_REG[inst] - qrow, shadow=sh_q)
    st(c + "Q")
    hop_R3(e, o, R3_REG[inst], qrow, abort)
    e.lg_all()
    st.rounds(f"n{inst}.R3")
    st(c + "R3")

TOK1 = 21 * RG
TOK2 = TOK1 + 32768
EPOCH_OFF = 896
S_TAG = 73

o_direct = [True]
def emit_resets_P(e):
    e(f"v_mov_b32 v{W0}, -1"); e(f"v_mov_b32 v{W0+1}, -1"); e(f"v_mov_b32 v{W0+2}, -1"); e(f"v_mov_b32 v{W0+3}, -1")
    for r in [4, 5, 6]:
        e(f"s_add_u32 s{S_A}, s{S_ROWN}, {r*RG}")
        e.vm(f"buffer_store_dwordx4 {vr(W0,4)}, v{V_R}, s[{SRD_WS}:{SRD_WS+3}], s{S_A} offen sc1", "rstp")
    e(f"v_lshlrev_b32 v{V_T}, 4, v{V_LANE}")
    selmask(e, W0 + 4, V_T, rows_mask([0], 24))
    e(f"s_add_u32 s{S_A}, s{S_ROWN}, {R2_REG['P']*RG}")
    e.vm(f"buffer_store_dwordx4 {vr(W0,4)}, v{W0+4}, s[{SRD_WS}:{SRD_WS+3}], s{S_A} offen sc1", "rstp")

def emit_resets(e, f):
    e(f"v_mov_b32 v{W0}, -1"); e(f"v_mov_b32 v{W0+1}, -1"); e(f"v_mov_b32 v{W0+2}, -1"); e(f"v_mov_b32 v{W0+3}, -1")
    def reset(vo, sreg, const):
        e(f"s_add_u32 s{S_A}, s{sreg}, {const}")
        e.vm(f"buffer_store_dwordx4 {vr(W0,4)}, v{vo}, s[{SRD_WS}:{SRD_WS+3}], s{S_A} offen {f}", "rst")
    e(f"v_and_b32 v{V_T}, 31, v{V_LANE}"); e(f"v_lshlrev_b32 v{V_T}, 4, v{V_T}")
    e(f"v_lshrrev_b32 v{V_T+1}, 5, v{V_LANE}"); e(f"v_lshl_add_u32 v{V_T}, v{V_T+1}, 9, v{V_T}")
    liv = {0: [0], 1: [0, 1], 2: [1], 'P': [0]}
    skip = e.newlabel("norstg")
    e(f"s_cmp_lg_u32 s{S_HQ}, 0"); e(f"s_cbranch_scc1 {skip}")
    for inst in (0, 1, 2):
        selmask(e, W0 + 4, V_T, rows_mask(liv[inst], 20))
        for k in range(2):
            e(f"s_add_u32 s{S_A}, s{S_GOWN}, {G_OFF(inst,k)}")
            e(f"buffer_store_dwordx4 {vr(W0,4)}, v{W0+4}, s[{SRD_WS}:{SRD_WS+3}], s{S_A} offen sc1")
    e.label(skip)
    for r in [7, 8] + list(R1_REG.values()): reset(V_R, S_ROWN, r * RG)
    for inst in (0, 1, 2):
        selmask(e, W0 + 4, V_T, rows_mask(liv[inst], 25))
        reset(W0 + 4, S_ROWN, R2_REG[inst] * RG)
        selmask(e, W0 + 4, V_T, rows_mask(liv[inst], 20))
        for k in range(2):
            if inst == 2 and k == 1 and o_direct[0]:
                e(f"s_add_u32 s{S_A}, s{S_LOWN}, {L_REG(inst, k) * RG}")
                e.vm(f"buffer_store_dwordx4 {vr(W0,4)}, v{W0+4}, s[{SRD_WS}:{SRD_WS+3}], s{S_A} offen sc1", "rst")
            else: reset(W0 + 4, S_LOWN, L_REG(inst, k) * RG)

def token_store(e, base, second):
    e(f"s_lshl_b32 s{S_A}, s2, 7"); e(f"s_add_u32 s{S_A}, s{S_A}, {base}")
    e(f"v_mov_b32 v{W0+40}, s{S_TAG}"); e(f"v_mov_b32 v{W0+41}, {second}"); e(f"v_mov_b32 v{V_T}, 0")
    e("s_mov_b64 exec, 1")
    e.vm(f"buffer_store_dwordx2 {vr(W0+40,2)}, v{V_T}, s[{SRD_WS}:{SRD_WS+3}], s{S_A} offen sc1", "tok")
    e("s_mov_b64 exec, -1")

def token_gather(e, o, base, vo, mask, sleep=0, dst=W0, between=None):
    lab = e.newlabel("tok"); chk = e.newlabel("tokchk")
    if between:
        e(f"s_mov_b32 s{S_B}, {base}")
        set_exec(e, mask)
        e(f"buffer_load_dwordx2 {vr(dst,2)}, v{vo}, s[{SRD_WS}:{SRD_WS+3}], s{S_B} offen sc1")
        e("s_mov_b64 exec, -1")
        between()
        e(f"s_mov_b32 s{S_A}, {base}")
        set_exec(e, mask)
        e(f"s_mov_b32 s{S_CNT}, {o.poll_limit}")
        e(f"s_branch {chk}")
    else:
        e(f"s_mov_b32 s{S_A}, {base}")
        set_exec(e, mask)
        e(f"s_mov_b32 s{S_CNT}, {o.poll_limit}")
    e.label(lab)
    e(f"buffer_load_dwordx2 {vr(dst,2)}, v{vo}, s[{SRD_WS}:{SRD_WS+3}], s{S_A} offen sc1")
    e(f"s_sub_u32 s{S_CNT}, s{S_CNT}, 1"); e(f"s_cbranch_scc1 L_abort")
    e.label(chk)
    e("s_waitcnt vmcnt(0)")
    e(f"v_cmp_ne_u32 vcc, s{S_TAG}, v{dst}")
    if sleep:
        ok = e.newlabel("tokok"); e(f"s_cbranch_vccz {ok}"); e(f"s_sleep {sleep}"); e(f"s_branch {lab}"); e.label(ok)
    else: e(f"s_cbranch_vccnz {lab}")
    e.vmq = []

def tr_block(e, items):
    i, g, r, c, t = W0, W0 + 1, W0 + 2, W0 + 3, W0 + 4
    a32, a16 = W0 + 6, W0 + 7
    def tr_setup():
        e(f"v_and_b32 v{i}, 15, v{V_LANE}"); e(f"v_lshrrev_b32 v{g}, 4, v{V_LANE}")
        e(f"v_lshrrev_b32 v{r}, 2, v{i}"); e(f"v_and_b32 v{c}, 3, v{i}")
    def trbase(dst, stride, rows_per_g, base):
        e(f"v_mul_u32_u24 v{t}, {rows_per_g}, v{g}"); e(f"v_add_u32 v{t}, v{t}, v{r}")
        e(f"v_mul_u32_u24 v{t}, {stride}, v{t}"); e(f"v_lshl_add_u32 v{dst}, v{c}, 3, v{t}")
        if base: e(f"v_add_u32 v{dst}, {base}, v{dst}")
    def tr(frag, addr, off, k16, stride):
        f, lo = frag
        e.lg(f"ds_read_b64_tr_b16 {f}[{lo}:{lo+1}], v{addr} offset:{off}", "tr")
        if not k16: e.lg(f"ds_read_b64_tr_b16 {f}[{lo+2}:{lo+3}], v{addr} offset:{off+4*stride}", "tr")
        if len(e.lgq) >= 12: e.lg_wait_n(4)
    if True:
        tr_setup()
        for frag, nt, stride, base, ks in items:
            trbase(a32, stride, 8, base); trbase(a16, stride, 4, base)
            nk = len(ks)
            for tt in range(nt):
                for s, k0 in enumerate(ks):
                    k16 = (frag is not wo_frag) and s == nk - 1
                    tr(frag(tt, s), a16 if k16 else a32, k0 * stride + 32 * tt, k16, stride)
        e.lg_all()

def prologue_weights(e, o, st):
    abort = "L_abort"
    e(f"v_mov_b32 v{W0+2}, 0x3f803f80"); e(f"v_mov_b32 v{W0+3}, 0x3f803f80")
    e(f"v_lshlrev_b32 v{W0+4}, 3, v{V_LANE}"); e(f"v_add_u32 v{W0+4}, {ACT_X+384}, v{W0+4}")
    set_exec(e, mask64(range(24)))
    e.lg(f"ds_write_b64 v{W0+4}, {vr(W0+2,2)}", "ones")
    e("s_mov_b64 exec, -1")
    e.lg(f"ds_write_b64 v{V_WX}, {vr(V_XR,2)}", "wx")
    e(f"v_lshlrev_b32 v{V_XR+2}, 16, v{V_XR+1}"); e(f"v_and_b32 v{V_XR+3}, 0xffff0000, v{V_XR+1}")
    e(f"v_and_b32 v{V_XR+1}, 0xffff0000, v{V_XR}"); e(f"v_lshlrev_b32 v{V_XR}, 16, v{V_XR}")
    e.lg_all()
    lab = e.newlabel("wflag")
    e(f"v_mov_b32 v{V_T+1}, {WFLAG}")
    e(f"s_mov_b32 s{S_CNT}, {o.poll_limit*8}")
    e.label(lab)
    e(f"ds_read_b96 {vr(W0,3)}, v{V_T+1}")
    e(f"s_sub_u32 s{S_CNT}, s{S_CNT}, 1"); e(f"s_cbranch_scc1 {abort}")
    e("s_waitcnt lgkmcnt(0)")
    e(f"v_and_b32 v{W0}, v{W0}, v{W0+1}"); e(f"v_and_b32 v{W0}, v{W0}, v{W0+2}")
    e(f"v_cmp_ne_u32 vcc, 1, v{W0}")
    e(f"s_cbranch_vccnz {lab}")
    st("p.wland")
    tr_block(e, [(wq_frag, 12, 384, ST_WQ, (0, 32, 64)), (wg_frag, 3, 96, ST_WG, (0, 32, 64)), (wu_frag, 3, 96, ST_WU, (0, 32, 64))])
    st("p.weights")

def chain_wave(e, o, st, local):
    fl = "" if local else "sc1"
    abort = "L_abort"
    R = NS(vlds=V_L16, voffK=1, voffX=2, voffY=3, sel=V_SEL, qA=32, D=44, sc=56, tmp=57, vpw=62, acc=32, A=44, pp=52, vpp=63, vm=60, vl=61)
    instance_offsets(e, [0, 1], pub_live=[2], q_live=[0, 1, 2])
    stage_Q(e, fl, R3_REG['P'])
    stage_GU(e, fl, R2_REG['P'] * RG - 1024, with_stats=False)
    st("p.pub")
    if "norst" in o.exp:
        pass
    else: emit_resets(e, fl)
    st("reset")
    tr_block(e, [(wo_frag, 5, 160, ST_WO, (0, 32, 64, 96, 128, 160)), (wd_frag, 5, 160, ST_WD, (0, 32))])
    GA = CW_K
    e(f"v_and_b32 v{V_T}, 31, v{V_LANE}"); e(f"v_lshlrev_b32 v{V_T}, 4, v{V_T}")
    selmask(e, W0 + 40, V_T, rows_mask([0, 1], 24))
    sr = list(range(10, 18))
    for k, reg in enumerate((4, 5, 6, R2_REG['P'])):
        e(f"s_add_u32 s{sr[2*k]}, s{S_RGRP}, {reg*RG}"); e(f"s_add_u32 s{sr[2*k+1]}, s{sr[2*k]}, 4096")
    loads = []
    for row in range(3):
        loads += [(GA + 32 * row + 4 * k, V_R, sr[2*row + (k >= 4)], (k % 4) * 1024) for k in range(8)]
    loads += [(W0 + 32, V_ML, sr[0], 0), (W0 + 36, V_ML, sr[2], 0)]
    loads += [(W0 + 4 * k, W0 + 40, sr[6 + (k >= 4)], (k % 4) * 1024) for k in range(8)]
    e(f"v_subrev_u32 v{W0+41}, {768-368}, v{V_ML}")
    light = [(W0 + 4 * k, V_ML, sr[2*k], 0) for k in range(3)] + [(W0 + 12, W0 + 41, sr[6], 0)]
    if o.light: poll(e, o, light, abort, sleep=o.p_sleep)
    if "nogath" not in o.exp: poll(e, o, loads, abort, sleep=o.p_sleep)
    else: e.vm_all(force=True)
    token_store(e, TOK2, 0)
    st("p.gather")
    if "cwC" in o.exp:
        e.vm_all(force=True); e("s_barrier"); e("s_branch L_done")
    sum_loads(e, 8, GA + 64)
    for rr in range(4): e(f"v_mov_b32 v{V_CSQ+rr}, v{GA+64+rr}")
    sum_loads(e, 8, W0)
    for rr in range(4): e(f"v_mov_b32 v{V_CSG+rr}, v{W0+rr}")
    for row in range(2):
        q_consume(e, GA + 32 * row, W0 + 32 + 4 * row, row)
    st("q1")
    def load_tiles(base):
        for T in range(CW_TILES):
            kv_soff(e, base, T)
            for s in range(3): ld_k(e, R, vr(CW_K + 12 * T + 4 * s, 4), s, ('K', T, s), o)
        for T in range(CW_TILES):
            kv_soff(e, base, T)
            for w in range(3): ld_v(e, R, vr(CW_V + 12 * T + 4 * w, 4), w, ('V', T, w), o)
    load_tiles(S_KV0)
    instance_offsets(e, [0])
    e.lg_all()
    st("pro_done")
    e("s_barrier")
    if "stopA" in o.exp: e("s_branch L_done")
    Kf = lambda T, s: vr(CW_K + 12 * T + 4 * s, 4)
    Vf = lambda T, w: vr(CW_V + 12 * T + 4 * w, 4)
    def kw(T):
        if T >= 0: e.vm_wait(('K', T, 2))
    def vw(T, w): e.vm_wait(('V', T, w))
    attn_pass(e, R, CW_TILES, 0, Kf, Vf, S_PB, 0, k_wait=kw, v_wait=vw)
    L = V_LANE; t, u = W0 + 2, W0 + 3
    e(f"v_and_b32 v{t}, 7, v{L}"); e(f"v_lshlrev_b32 v{u}, 3, v{t}")
    e(f"s_lshl_b32 s{S_T0}, s{S_HQ}, 6"); e(f"s_add_u32 s{S_T0}, s{S_T0}, s{S_XC}"); e(f"v_add_u32 v{W0+4}, s{S_T0}, v{u}")
    e(f"v_lshlrev_b32 v{u}, 6, v{t}")
    e(f"s_lshl_b32 s{S_T1}, s{S_J}, 3"); e(f"s_add_u32 s{S_T0}, s{S_T1}, s{S_XC}"); e(f"v_add_u32 v{W0+5}, s{S_T0}, v{u}")
    e(f"v_add_u32 v{W0+6}, s{S_T1}, v{t}")
    e("s_mov_b32 vcc_lo, 0x00000f00"); e("s_mov_b32 vcc_hi, 0"); e(f"v_cndmask_b32 v{W0+4}, v{W0+4}, v{W0+5}, vcc")
    e("s_mov_b32 vcc_lo, 0x00ff0000"); e(f"v_cndmask_b32 v{W0+4}, v{W0+4}, v{W0+6}, vcc")
    e(f"v_bfe_u32 v{u}, v{L}, 3, 2"); e(f"v_lshlrev_b32 v{u}, 6, v{u}"); e(f"v_add_u32 v{W0+6}, v{W0+6}, v{u}")
    e("s_mov_b32 vcc_lo, 0"); e("s_mov_b32 vcc_hi, -1"); e(f"v_cndmask_b32 v{W0+4}, v{W0+4}, v{W0+6}, vcc")
    e(f"v_lshlrev_b32 v{W0+4}, 7, v{W0+4}")
    token_gather(e, o, TOK2, W0 + 4, 0xffffffff00ff0fff if o.direct else 0x00ff0fff, sleep=o.t_sleep)
    e("s_mov_b64 exec, -1")
    st("p.tok2g")
    e("s_barrier")
    st("bar2")
    parts = [PART + 1536 * w for w in range(4)]
    combine_publish(e, fl, parts, ML, R1_REG[0])
    st("c0.cmb")
    sv = o.preR; o.preR = sv + o.preR0
    hop_R1(e, o, R1_REG[0], 0, abort)
    o.preR = sv
    chain(e, o, fl, 0, [0], abort, st)
    st("chain0")
    e("s_barrier")
    attn_pass(e, R, CW_TILES, 0, Kf, Vf, S_PB, 32)
    e("s_barrier")
    parts_early = [PART] + [LDS_SW * s + 48 * 1024 for s in range(3)]
    combine_publish(e, fl, parts_early, ML + 32, R1_REG['1a'])
    load_tiles(S_KV1)
    instance_offsets(e, [0, 1])
    hop_R1(e, o, R1_REG['1a'], 0, abort)
    e.vmq = []
    attn_pass(e, R, CW_TILES, 1, Kf, Vf, S_PB, 0)
    e("s_barrier")
    st("bar6")
    combine_publish(e, fl, parts, ML, R1_REG['1b'])
    st("c1.cmb")
    hop_R1(e, o, R1_REG['1b'], 1, abort)
    chain(e, o, fl, 1, [0, 1], abort, st)
    st("chain1")
    e("s_barrier")
    attn_pass(e, R, CW_TILES, 1, Kf, Vf, S_PB, 0)
    instance_offsets(e, [1])
    e("s_barrier")
    st("bar8")
    combine_publish(e, fl, parts, ML, R1_REG[2])
    st("c2.cmb")
    hop_R1(e, o, R1_REG[2], 1, abort)
    chain(e, o, fl, 2, [1], abort, st)
    st("chain2")
    e("s_branch L_done")

def chain_wave_setup(e, o, st):
    L = V_LANE
    if o.prio: e(f"s_setprio {o.prio}")
    lane_id(e, L)
    e(f"v_mov_b32 v{W0}, 0"); e(f"v_mov_b32 v{W0+1}, {WFLAG}"); e(f"v_lshl_add_u32 v{W0+1}, v{L}, 2, v{W0+1}")
    e("s_mov_b64 exec, 15")
    e.lg(f"ds_write_b32 v{W0+1}, v{W0}", "z")
    e("s_mov_b64 exec, -1")
    e(f"v_mov_b32 v{V_OOB}, 0x{OOB:08x}")
    e(f"s_lshl_b32 s{S_RGRP}, s{S_H}, 13"); e(f"s_lshl_b32 s{S_T0}, s{S_J}, 10"); e(f"s_add_u32 s{S_ROWN}, s{S_RGRP}, s{S_T0}")
    e(f"s_lshl_b32 s{S_LGRP}, s{S_XC}, 3"); e(f"s_add_u32 s{S_LGRP}, s{S_LGRP}, s{S_J}"); e(f"s_lshl_b32 s{S_LGRP}, s{S_LGRP}, 12")
    e(f"s_lshl_b32 s{S_T0}, s{S_HQ}, 10"); e(f"s_add_u32 s{S_LOWN}, s{S_LGRP}, s{S_T0}")
    e(f"s_lshl_b32 s{S_GGRP}, s{S_J}, 13"); e(f"s_lshl_b32 s{S_T0}, s{S_XC}, 10"); e(f"s_add_u32 s{S_GOWN}, s{S_GGRP}, s{S_T0}")
    e.lg_all()
    e("s_barrier")
    late_common(e)
    if "nocw" in o.exp:
        e("s_barrier")
        st("bar1x")
        e("s_branch L_done")
    e(f"v_lshlrev_b32 v{V_L16}, 4, v{L}")
    selmask(e, V_R, V_L16, mask64(range(49)))
    e(f"s_load_dword s{S_TAG}, s[{S_WS}:{S_WS+1}], {EPOCH_OFF}")
    emit_resets_P(e)
    e(f"s_getreg_b32 s{S_T2}, hwreg(HW_REG_XCC_ID)"); e(f"s_and_b32 s{S_T2}, s{S_T2}, 0xf")
    make_srd(e, SRD_T, S_X, 2560)
    e(f"v_and_b32 v{V_T}, 31, v{L}"); e(f"v_lshlrev_b32 v{V_T}, 3, v{V_T}")
    e(f"v_lshrrev_b32 v{V_T+1}, 5, v{L}"); e(f"v_mul_u32_u24 v{V_T+1}, 1280, v{V_T+1}"); e(f"v_add_u32 v{V_T}, v{V_T}, v{V_T+1}")
    selmask(e, V_T, V_T, rows_mask([0, 1], 20))
    e(f"s_mul_i32 s{S_T0}, s{S_J}, 160")
    e.vm(f"buffer_load_dwordx2 {vr(V_XR,2)}, v{V_T}, s[{SRD_T}:{SRD_T+3}], s{S_T0} offen", "x")
    e(f"s_add_u32 s{S_KV1}, s{S_KV0}, {BATCH_STRIDE}")
    R = NS(voffK=1, voffX=2, voffY=3, sel=V_SEL)
    attn_selectors(e, R, L, W0)
    n, g, x = W0, W0 + 1, W0 + 2
    e(f"v_mov_b32 v{W0+3}, v{V_L16}"); selmask(e, V_L16, W0 + 3, mask64(range(48)), other=0)
    e(f"v_and_b32 v{n}, 15, v{L}"); e(f"v_lshrrev_b32 v{g}, 4, v{L}")
    e(f"v_min_u32 v{x}, 1, v{n}")
    e(f"v_mul_u32_u24 v{V_BO}, 384, v{x}"); e(f"v_lshl_add_u32 v{V_BO}, v{g}, 4, v{V_BO}"); e(f"v_add_u32 v{V_BO}, {ACT_O}, v{V_BO}")
    e(f"v_lshlrev_b32 v{V_BH}, 7, v{x}"); e(f"v_lshl_add_u32 v{V_BH8}, v{g}, 3, v{V_BH}"); e(f"v_add_u32 v{V_BH8}, {ACT_H+64}, v{V_BH8}")
    e(f"v_lshl_add_u32 v{V_BH}, v{g}, 4, v{V_BH}"); e(f"v_add_u32 v{V_BH}, {ACT_H}, v{V_BH}")
    e(f"v_min_u32 v{x}, 2, v{n}")
    e(f"v_mul_u32_u24 v{V_BX}, 192, v{x}"); e(f"v_lshl_add_u32 v{V_BX8}, v{g}, 3, v{V_BX}"); e(f"v_add_u32 v{V_BX8}, {ACT_X+128}, v{V_BX8}")
    e(f"v_lshl_add_u32 v{V_BX}, v{g}, 4, v{V_BX}"); e(f"v_add_u32 v{V_BX}, {ACT_X}, v{V_BX}")
    e(f"v_subrev_u32 v{x}, 1, v{n}"); e(f"v_min_u32 v{x}, 2, v{x}")
    e(f"v_mul_u32_u24 v{V_AS}, 192, v{x}"); e(f"v_lshl_add_u32 v{V_AS8}, v{g}, 3, v{V_AS}"); e(f"v_add_u32 v{V_AS8}, {ACT_X+128}, v{V_AS8}")
    e(f"v_lshl_add_u32 v{V_AS}, v{g}, 4, v{V_AS}"); e(f"v_add_u32 v{V_AS}, {ACT_X}, v{V_AS}")
    e(f"v_lshlrev_b32 v{x}, 3, v{L}"); e(f"v_add_u32 v{x}, {SB}, v{x}"); selmask(e, V_W8, x, mask64(range(48)), other=SB+2560)
    e(f"v_and_b32 v{n}, 31, v{L}"); e(f"v_lshrrev_b32 v{g}, 5, v{L}")
    e(f"v_mul_u32_u24 v{x}, 192, v{g}"); e(f"v_lshl_add_u32 v{x}, v{n}, 3, v{x}"); e(f"v_add_u32 v{x}, {ACT_X}, v{x}")
    selmask(e, V_WX, x, rows_mask([0, 1], 20), other=DUMMY)
    e(f"v_lshlrev_b32 v{x}, 7, v{g}"); e(f"v_lshl_add_u32 v{x}, v{n}, 2, v{x}"); e(f"v_add_u32 v{x}, {ACT_H}, v{x}")
    selmask(e, V_WH, x, rows_mask([0, 1], 24), other=DUMMY)
    e(f"v_and_b32 v{x}, 7, v{L}"); e(f"v_lshlrev_b32 v{x}, 10, v{x}"); e(f"v_add_u32 v{V_ML}, 768, v{x}")
    m = mask64([16 * a + 1 for a in range(4)])
    e(f"s_mov_b32 s{S_N1}, 0x{m & 0xffffffff:08x}"); e(f"s_mov_b32 s{S_N1+1}, 0x{m >> 32:08x}")
    e("s_waitcnt lgkmcnt(0)")
    e(f"s_add_u32 s{S_TAG}, s{S_TAG}, 1")
    e.vm_all(force=True)
    token_store(e, TOK1, f"s{S_T2}")
    st("p.tok1")
    TO, TD = W0 + 38, W0 + 36
    e(f"v_lshlrev_b32 v{TO}, 10, v{L}"); e(f"s_lshl_b32 s{S_T0}, s{S_XC}, 7"); e(f"v_add_u32 v{TO}, s{S_T0}, v{TO}")
    token_gather(e, o, TOK1, TO, 0xffffffff, sleep=o.t_sleep, dst=TD, between=lambda: prologue_weights(e, o, st))
    e(f"v_cmp_ne_u32 vcc, s{S_T2}, v{TD+1}")
    e("s_mov_b64 exec, -1")
    st("p.mode")
    e("s_nop 3")
    e("s_cmp_lg_u32 vcc_lo, 0")

def late_common(e):
    make_srd(e, SRD_V, S_V, KV_BYTES); make_srd(e, SRD_WS, S_WS, WS_REC)
    e(f"s_mov_b32 s{S_C}, {lit(CSCALE)}")
    e(f"s_mov_b32 s{S_HI32}, 0"); e(f"s_mov_b32 s{S_HI32+1}, -1")
    e(f"s_mul_i32 s{S_PB}, s{S_WAVE}, 1536"); e(f"s_add_u32 s{S_PB}, s{S_PB}, {PART}")
    e(f"s_lshl_b32 s{S_MLB}, s{S_WAVE}, 3"); e(f"s_add_u32 s{S_MLB}, s{S_MLB}, {ML}")

def generate(o):
    Stamps.select = o.stampset.split(",") if o.stampset else None
    o_direct[0] = o.direct
    e = Emit()
    e("s_cmp_ge_u32 s2, 256"); e("s_cbranch_scc1 L_done")
    e("s_load_dwordx16 s[4:19], s[0:1], 0"); e("s_load_dwordx8 s[20:27], s[0:1], 64")
    e("v_lshrrev_b32 v1, 6, v0")
    e(f"s_and_b32 s{S_XC}, s2, 7"); e(f"s_lshr_b32 s{S_HQ}, s2, 6")
    e(f"v_readfirstlane_b32 s{S_WAVE}, v1")
    e(f"s_lshr_b32 s{S_J}, s2, 3"); e(f"s_and_b32 s{S_J}, s{S_J}, 7")
    e(f"s_lshl_b32 s{S_H}, s{S_XC}, 2"); e(f"s_add_u32 s{S_H}, s{S_H}, s{S_HQ}")
    e(f"s_mul_i32 s{S_KV0}, s{S_H}, {HEAD_STRIDE}"); e(f"s_mul_i32 s{S_T0}, s{S_J}, {CHUNK_STRIDE}"); e(f"s_add_u32 s{S_KV0}, s{S_KV0}, s{S_T0}")
    e(f"s_add_u32 s{S_T0}, s{S_WAVE}, 3"); e(f"s_and_b32 s{S_T0}, s{S_T0}, 3")
    e(f"s_mul_i32 s{S_T1}, s{S_T0}, {SW_TILES*TILE_B}"); e(f"s_add_u32 s{S_KV0}, s{S_KV0}, s{S_T1}")
    lane_id(e, 8)
    attn_load_offsets(e, NS(voffK=1, voffX=2, voffY=3), 8, 10)
    e("s_waitcnt lgkmcnt(0)")
    make_srd(e, SRD_K, S_K, KV_BYTES)
    e(f"s_cmp_eq_u32 s{S_WAVE}, 0"); e("s_cbranch_scc1 L_chain")
    st_s = Stamps(e, o.stamps); st_s("start")
    stream_wave(e, o, st_s)
    e.label("L_chain")
    e.vmq = []; e.lgq = []
    st_c = Stamps(e, o.stamps); st_c("start")
    chain_wave_setup(e, o, st_c)
    names = {}
    if o.force_global: e("s_branch L_global")
    else: e("s_cbranch_scc1 L_global")
    base_names = list(st_c.names)
    sv = (list(e.vmq), list(e.lgq))
    chain_wave(e, o, st_c, True)
    names['cw'] = list(st_c.names); names['sw'] = list(st_s.names)
    e.label("L_global")
    e.vmq, e.lgq = sv
    st_g = Stamps(e, o.stamps); st_g.names = list(base_names)
    chain_wave(e, o, st_g, False)
    e.label("L_abort")
    e.label("L_done")
    if o.stamps:
        e("s_cmp_ge_u32 s2, 256"); e("s_cbranch_scc1 L_exit")
        fl = Stamps(e, True); fl.names = names['cw']; fl.flush()
        e.label("L_exit")
    e("s_endpgm")
    return e, names

HEAD = """; Kernarg: A_x, K, V, wq, wo, B_x, W_gate, W_up, W_down, out, debug, ws (pointers)
; @launch grid=(256,1,1) block=(256,1,1) lds=%d
.amdgcn_target "amdgcn-amd-amdhsa--gfx950"
.text
.globl %s
.p2align 8
.type %s,@function
%s:
"""
FOOT = """
.section .rodata,"a"
.p2align 6
.amdhsa_kernel %s
  .amdhsa_next_free_vgpr 512
  .amdhsa_next_free_sgpr 102
  .amdhsa_accum_offset 256
  .amdhsa_group_segment_fixed_size 0
  .amdhsa_kernarg_size 96
  .amdhsa_user_sgpr_count 2
  .amdhsa_user_sgpr_kernarg_segment_ptr 1
  .amdhsa_system_sgpr_workgroup_id_x 1
  .amdhsa_float_denorm_mode_32 3
.end_amdhsa_kernel
"""
def build_text(o):
    e, names = generate(o)
    return HEAD % (LDS_TOTAL, NAME, NAME, NAME) + e.text() + "\n" + FOOT % NAME, names, e

if __name__ == "__main__":
    o = Opt()
    for a in sys.argv[2:]:
        k, v = a.split("=")
        cur = getattr(o, k)
        setattr(o, k, (v not in ("0", "False")) if isinstance(cur, bool) else type(cur)(v))
    txt, names, e = build_text(o)
    open(sys.argv[1], "w").write(txt)
    print("instructions:", e.ninst, "nops:", e.nops, names)
```

```python
import sys, struct
from types import SimpleNamespace as NS
from emit import Emit, vr

NAME = "interleave_layers__mha_block_cached__glu_gated_reglu__decode_kernel"

class Opt:
    NA = 16
    NA_BAR = 118
    NB = 8
    NB1 = 8
    go_at = "G1"
    NC = 56
    NA0 = 16
    NA0N = 0
    light = False
    pf = 0
    pf_all = False
    NF = 12
    NW = 24
    stamps = False
    poll_limit = 400000
    kvflags = "nt"
    wflags = "nt"
    stampset = ""
    p_sleep = 8
    mb_sleep = 0
    exp = ""
    t_sleep = 0
    early = False
    wb = 0
    prio = 0
    late_rst = False
    preGn = 0
    direct = True
    preF = 0
    look = 2
    NAe = 0
    NCe = 0
    preR0 = 0
    preL0 = 0
    preG0 = 0
    preR = 0
    preL = 0
    preG = 6
    flag_sleep = 0
    force_global = False

KV_BYTES = 100663296
BATCH_STRIDE = 50331648
HEAD_STRIDE = 1572864
CHUNK_STRIDE = 196608
TILE_B = 3072
SW_TILES, CW_TILES = 20, 4
OOB = 0x7fff0000

LDS_SW = 51200
SB = 153600
PART = SB
ML = SB + 6144
QARR = SB + 6208
ACT_O = SB + 6976
ACT_X = SB + 7744
ACT_H = SB + 8320
DUMMY = SB + 8576
WFLAG = SB + 10208
LDS_TOTAL = 163840
ST_WQ, ST_WO, ST_WG, ST_WU, ST_WD = 0, 30720, 61440, 69120, 76800

RG = 262144
R1_REG = {0: 0, '1a': 1, '1b': 2, 2: 3}
R3_REG = {'P': 4, 0: 7, 1: 8}
R2_REG = {'P': 9, 0: 10, 1: 11, 2: 12}
L_REG = lambda inst, k: 13 + 2 * inst + k
G_OFF = lambda inst, k: 19 * RG + (2 * inst + k) * 65536
STAMP_OFF = 22 * RG
WS_REC = 24 * RG

CSCALE = (192 ** -0.5) * 1.4426950408889634
EPS = 1e-5
def f2u(x): return struct.unpack("<I", struct.pack("<f", x))[0]
def lit(x): return "0x%08x" % f2u(x)
def mask64(lanes):
    m = 0
    for l in lanes: m |= 1 << l
    return m
def set_exec(e, m):
    if m == (1 << 64) - 1: e("s_mov_b64 exec, -1"); return
    e(f"s_mov_b32 exec_lo, 0x{m & 0xffffffff:08x}")
    e(f"s_mov_b32 exec_hi, 0x{m >> 32:08x}")

S_X, S_K, S_V, S_WQ, S_WO, S_BX, S_WG, S_WU, S_WD, S_OUT, S_DBG, S_WS = 4, 6, 8, 10, 12, 14, 16, 18, 20, 22, 24, 26
S_XC, S_HQ, S_J, S_H = 28, 29, 30, 31
SRD_K, SRD_V = 32, 36
S_KV0, S_KV1, S_SOFF, S_LDSB = 40, 41, 42, 43
SRD_T = 44
SRD_WS = 48
SRD_DBG = 52
S_C = 56
S_ROWN, S_RGRP, S_LOWN, S_LGRP, S_GOWN, S_GGRP = 57, 58, 59, 60, 61, 62
S_A, S_B, S_CNT, S_T0, S_T1, S_T2 = 63, 64, 65, 66, 67, 68
S_PB = 69
S_HI32 = 70
S_MLB = 72
S_GA, S_GB = 100, 101
S_WAVE = 3
S_STAMP = 76

def make_srd(e, srd, ptr, nbytes):
    e(f"s_mov_b32 s{srd}, s{ptr}")
    e(f"s_and_b32 s{srd+1}, s{ptr+1}, 0xffff")
    e(f"s_mov_b32 s{srd+2}, {nbytes}")
    e(f"s_mov_b32 s{srd+3}, 0x20000")

class Stamps:
    select = None
    def __init__(self, e, on): self.e, self.on, self.names = e, on, []
    def __call__(self, name):
        if not self.on: return
        if Stamps.select is not None and not any(name.startswith(p) for p in Stamps.select): return
        if Stamps.select is None and "." in name: return
        n = len(self.names); assert n < 12, "too many stamps"
        self.e(f"s_memrealtime s[{S_STAMP+2*n}:{S_STAMP+2*n+1}]")
        self.e.lg_all(force=True)
        self.names.append(name)
    def rounds(self, name):
        if not self.on: return
        if Stamps.select is None or not any(name.startswith(p) for p in Stamps.select): return
        n = len(self.names); assert n < 12
        self.e(f"s_mov_b32 s{S_STAMP+2*n}, s{S_CNT}"); self.e(f"s_mov_b32 s{S_STAMP+2*n+1}, 0")
        self.names.append(name)
    def flush(self):
        if not self.on: return
        e = self.e
        e("s_mov_b64 exec, 1")
        e(f"s_lshl_b32 s{S_T0}, s2, 2"); e(f"s_add_u32 s{S_T0}, s{S_T0}, s{S_WAVE}"); e(f"s_lshl_b32 s{S_T0}, s{S_T0}, 7")
        e(f"s_add_u32 s{S_T0}, s{S_T0}, {STAMP_OFF}")
        e("v_mov_b32 v0, 0")
        for i in range(len(self.names)):
            e(f"v_mov_b32 v2, s{S_STAMP+2*i}"); e(f"v_mov_b32 v3, s{S_STAMP+2*i+1}")
            e(f"buffer_store_dwordx2 v[2:3], v0, s[{SRD_WS}:{SRD_WS+3}], s{S_T0} offen offset:{8*i}")
            e("s_waitcnt vmcnt(0)")

def lane_id(e, dst):
    e(f"v_mbcnt_lo_u32_b32 {vr(dst)}, -1, 0")
    e(f"v_mbcnt_hi_u32_b32 {vr(dst)}, -1, {vr(dst)}")

def attn_load_offsets(e, R, lane, t):
    i, g, u, w = t, t + 1, t + 2, t + 3
    e(f"v_and_b32 {vr(i)}, 15, {vr(lane)}")
    e(f"v_lshrrev_b32 {vr(g)}, 4, {vr(lane)}")
    e(f"v_and_b32 {vr(u)}, 7, {vr(i)}")
    e(f"v_lshrrev_b32 {vr(w)}, 3, {vr(i)}")
    e(f"v_mul_u32_u24 {vr(R.voffK)}, 384, {vr(u)}")
    e(f"v_lshl_add_u32 {vr(R.voffK)}, {vr(g)}, 4, {vr(R.voffK)}")
    e(f"v_lshl_add_u32 {vr(R.voffK)}, {vr(w)}, 6, {vr(R.voffK)}")
    e(f"v_mul_u32_u24 {vr(R.voffX)}, 768, {vr(g)}")
    e(f"v_mul_u32_u24 {vr(w)}, 384, {vr(w)}")
    e(f"v_add_u32 {vr(R.voffY)}, {vr(R.voffX)}, {vr(w)}")
    e(f"v_lshl_add_u32 {vr(R.voffY)}, {vr(u)}, 4, {vr(R.voffY)}")
    e(f"v_add_u32 {vr(R.voffY)}, 256, {vr(R.voffY)}")
    e(f"v_lshl_add_u32 {vr(R.voffX)}, {vr(i)}, 4, {vr(R.voffX)}")

def attn_selectors(e, R, lane, t):
    i, u, lo, hi = t, t + 1, t + 2, t + 3
    e(f"v_and_b32 {vr(i)}, 15, {vr(lane)}")
    e(f"v_lshrrev_b32 {vr(u)}, 3, {vr(i)}")
    e(f"v_mul_u32_u24 {vr(u)}, 0x202, {vr(u)}")
    e(f"v_add_u32 {vr(u)}, 0x100, {vr(u)}")
    e(f"v_or_b32 {vr(lo)}, 0x0c0c0000, {vr(u)}")
    e(f"v_lshlrev_b32 {vr(hi)}, 16, {vr(u)}")
    e(f"v_or_b32 {vr(hi)}, 0x0c0c, {vr(hi)}")
    e(f"v_and_b32 {vr(u)}, 1, {vr(i)}")
    e(f"v_cmp_eq_u32 vcc, 1, {vr(u)}")
    e(f"v_cndmask_b32 {vr(lo)}, {vr(lo)}, {vr(hi)}, vcc")
    e(f"v_bfe_u32 {vr(u)}, {vr(i)}, 1, 2")
    e(f"v_mov_b32 {vr(hi)}, 0x0c0c0c0c")
    for r in range(4):
        e(f"v_cmp_eq_u32 vcc, {r}, {vr(u)}")
        e(f"v_cndmask_b32 {vr(R.sel+r)}, {vr(hi)}, {vr(lo)}, vcc")

def allreduce_list(reg, tmp, op):
    out = [f"v_{op}_f32_dpp {vr(reg)}, {vr(reg)}, {vr(reg)} row_ror:{k} row_mask:0xf bank_mask:0xf" for k in (8, 4, 2, 1)]
    out += [f"v_mov_b32 {vr(tmp)}, {vr(reg)}", f"v_permlane16_swap_b32 {vr(reg)}, {vr(tmp)}", f"v_{op}_f32 {vr(reg)}, {vr(reg)}, {vr(tmp)}",
            f"v_mov_b32 {vr(tmp)}, {vr(reg)}", f"v_permlane32_swap_b32 {vr(reg)}, {vr(tmp)}", f"v_{op}_f32 {vr(reg)}, {vr(reg)}, {vr(tmp)}"]
    return out

def allreduce(e, reg, tmp, op):
    for k in (8, 4, 2, 1):
        e(f"v_{op}_f32_dpp {vr(reg)}, {vr(reg)}, {vr(reg)} row_ror:{k} row_mask:0xf bank_mask:0xf")
    e(f"v_mov_b32 {vr(tmp)}, {vr(reg)}")
    e(f"v_permlane16_swap_b32 {vr(reg)}, {vr(tmp)}")
    e(f"v_{op}_f32 {vr(reg)}, {vr(reg)}, {vr(tmp)}")
    e(f"v_mov_b32 {vr(tmp)}, {vr(reg)}")
    e(f"v_permlane32_swap_b32 {vr(reg)}, {vr(tmp)}")
    e(f"v_{op}_f32 {vr(reg)}, {vr(reg)}, {vr(tmp)}")

def attn_pre(e, R, ntiles):
    L = R.tmp
    lane_id(e, L)
    e(f"v_and_b32 {vr(L+1)}, 1, {vr(L)}")
    e(f"v_lshrrev_b32 {vr(L+2)}, 4, {vr(L)}")
    e(f"v_lshlrev_b32 {vr(L+2)}, 4, {vr(L+2)}")
    e(f"v_lshl_add_u32 {vr(L+1)}, {vr(L+1)}, 6, {vr(L+2)}")
    e(f"v_add_u32 {vr(L+1)}, {QARR}, {vr(L+1)}")
    e(f"v_add_u32 {vr(R.vpp)}, s{S_PB}, {vr(L+2)}")
    W = R.vpw; t = L + 2
    e(f"v_lshrrev_b32 {vr(t)}, 5, {vr(L)}"); e(f"v_lshlrev_b32 {vr(W)}, 6, {vr(t)}")
    e(f"v_bfe_u32 {vr(t)}, {vr(L)}, 1, 2"); e(f"v_lshl_add_u32 {vr(W)}, {vr(t)}, 4, {vr(W)}")
    e(f"v_bfe_u32 {vr(t)}, {vr(L)}, 3, 2"); e(f"v_lshl_add_u32 {vr(W)}, {vr(t)}, 2, {vr(W)}")
    e(f"v_and_b32 {vr(t)}, 1, {vr(L)}"); e(f"v_lshl_add_u32 {vr(W)}, {vr(t)}, 1, {vr(W)}")
    e(f"v_add_u32 {vr(W)}, s{S_PB}, {vr(W)}")
    nsc = (ntiles + 7) // 8
    for r in range(nsc):
        if (r + 1) * 8 > ntiles: e(f"v_mov_b32 {vr(R.sc+r)}, 0xff800000")

def attn_pass(e, R, ntiles, qrow, Kfrag, Vfrag, part_sreg, ml_off, k_wait=None, qk_hook=None, mid_hook=None,
              v_wait=None, pv_hook=None, stage=None, pre_done=False, mark=None, look=2):
    L = R.tmp
    if not pre_done: attn_pre(e, R, ntiles)
    for s in range(3):
        e.lg(f"ds_read_b128 {vr(R.qA+4*s,4)}, {vr(L+1)} offset:{qrow*384 + 128*s}", ("q", s))
    W = R.vpw
    nsc = (ntiles + 7) // 8
    stg = {}
    def stage_k(T):
        if T >= ntiles: return
        for s in range(3):
            f = Kfrag(T, s)
            if isinstance(f, tuple):
                reg = stage[(3 * T + s) % len(stage)]
                e.lg(f"ds_read_b128 {vr(reg,4)}, {vr(R.vlds)} offset:{f[1]}", ("k", T, s))
                stg[(T, s)] = vr(reg, 4)
    LOOK = look
    if k_wait: k_wait(-1)
    for T in range(min(LOOK, ntiles)): stage_k(T)
    e.lg_wait(("q", 2))
    def dpp_add(T):
        D = R.D + 4 * (T % 3)
        dst = vr(R.sc + (T >> 3)); rm = 1 << ((T >> 1) & 3)
        if T % 2 == 0: e(f"v_add_f32_dpp {dst}, {vr(D+1)}, {vr(D)} row_ror:8 row_mask:0x{rm:x} bank_mask:0x3")
        else:          e(f"v_add_f32_dpp {dst}, {vr(D)}, {vr(D+1)} row_ror:8 row_mask:0x{rm:x} bank_mask:0xc")
    for T in range(ntiles):
        if k_wait: k_wait(T)
        D = vr(R.D + 4 * (T % 3), 4)
        for s in range(3):
            f = Kfrag(T, s)
            if isinstance(f, tuple):
                e.lg_wait(("k", T, s)); f = stg[(T, s)]
            e(f"v_mfma_f32_16x16x32_bf16 {D}, {vr(R.qA+4*s,4)}, {f}, {'0' if s == 0 else D}")
        stage_k(T + LOOK)
        if qk_hook: qk_hook(T)
        if T >= 2: dpp_add(T - 2)
    for T in range(max(0, ntiles - 2), ntiles): dpp_add(T)
    if mark: mark("qk")
    t0, t1 = R.D, R.D + 1
    if nsc == 1: e(f"v_mov_b32 {vr(t0)}, {vr(R.sc)}")
    elif nsc == 2: e(f"v_max_f32 {vr(t0)}, {vr(R.sc)}, {vr(R.sc+1)}")
    else: e(f"v_max3_f32 {vr(t0)}, {vr(R.sc)}, {vr(R.sc+1)}, {vr(R.sc+2)}")
    allreduce(e, t0, t1, "max")
    e(f"v_mul_f32 {vr(R.vm)}, s{S_C}, {vr(t0)}")
    for r in range(nsc): e(f"v_fma_f32 {vr(R.sc+r)}, {vr(R.sc+r)}, s{S_C}, -{vr(R.vm)}")
    for r in range(nsc): e(f"v_exp_f32 {vr(R.sc+r)}, {vr(R.sc+r)}")
    for r in range(nsc): e(f"v_cvt_pk_bf16_f32 {vr(R.D+2+r)}, {vr(R.sc+r)}, {vr(R.sc+r)}")
    for r in range(nsc): e.lg(f"ds_write_b16 {vr(W)}, {vr(R.D+2+r)} offset:{128*r}", ("pw", r))
    nq = (ntiles + 3) // 4
    ppreg = lambda q: R.pp + 4 * (q % 2)
    if nsc == 1: e(f"v_mov_b32 {vr(R.vl)}, {vr(R.sc)}")
    else:
        e(f"v_add_f32 {vr(R.vl)}, {vr(R.sc)}, {vr(R.sc+1)}")
        if nsc == 3: e(f"v_add_f32 {vr(R.vl)}, {vr(R.vl)}, {vr(R.sc+2)}")
    e.lg(f"ds_read_b128 {vr(ppreg(0),4)}, {vr(R.vpp)}", ("pp", 0))
    if nq > 1: e.lg(f"ds_read_b128 {vr(ppreg(1),4)}, {vr(R.vpp)} offset:64", ("pp", 1))
    lred = allreduce_list(R.vl, R.vlt, "add")
    if ntiles < 12:
        for ins in lred: e(ins)
        lred = []
    if mid_hook: mid_hook()
    if mark: mark("sm")
    X1, X2, Y = R.acc, R.acc + 4, R.acc + 8
    def build_A(T):
        q = T >> 2
        e.lg_wait(("pp", q))
        A = R.A + 4 * (T % 2); src = vr(ppreg(q) + (T & 3))
        return [f"v_perm_b32 {vr(A+r)}, {src}, {src}, {vr(R.sel+r)}" for r in range(4)]
    for ins in build_A(0): e(ins)
    for T in range(ntiles):
        A = vr(R.A + 4 * (T % 2), 4)
        nxt = build_A(T + 1) if T + 1 < ntiles else []
        if v_wait: v_wait(T, 0)
        e(f"v_mfma_f32_16x16x32_bf16 {vr(X1,4)}, {A}, {Vfrag(T,0)}, {'0' if T == 0 else vr(X1,4)}")
        for ins in nxt[:2]: e(ins)
        if v_wait: v_wait(T, 1)
        e(f"v_mfma_f32_16x16x32_bf16 {vr(X2,4)}, {A}, {Vfrag(T,1)}, {'0' if T == 0 else vr(X2,4)}")
        for ins in nxt[2:]: e(ins)
        if v_wait: v_wait(T, 2)
        e(f"v_mfma_f32_16x16x32_bf16 {vr(Y,4)}, {A}, {Vfrag(T,2)}, {'0' if T == 0 else vr(Y,4)}")
        if (T & 3) == 2 and (T >> 2) + 2 < nq:
            q2 = (T >> 2) + 2
            e.lg(f"ds_read_b128 {vr(ppreg(q2),4)}, {vr(R.vpp)} offset:{64*q2}", ("pp", q2))
        if lred and T >= 1: e(lred.pop(0))
        if pv_hook: pv_hook(T)
    assert not lred
    if mark: mark("pv")
    p = R.pp
    lane_id(e, p)
    e(f"v_and_b32 {vr(p+1)}, 15, {vr(p)}")
    e(f"v_lshrrev_b32 {vr(p+2)}, 4, {vr(p)}")
    e(f"v_and_b32 {vr(p+3)}, 1, {vr(p+2)}")
    e(f"v_lshrrev_b32 {vr(p+2)}, 1, {vr(p+2)}")
    e(f"v_mul_u32_u24 {vr(p+2)}, 768, {vr(p+2)}")
    e(f"v_lshl_add_u32 {vr(p+2)}, {vr(p+3)}, 4, {vr(p+2)}")
    e(f"v_add_u32 {vr(p+2)}, s{part_sreg}, {vr(p+2)}")
    e(f"v_lshl_add_u32 {vr(p+4)}, {vr(p+1)}, 5, {vr(p+2)}")
    e(f"v_and_b32 {vr(p+1)}, 7, {vr(p+1)}")
    e(f"v_lshl_add_u32 {vr(p+5)}, {vr(p+1)}, 5, {vr(p+2)}")
    e(f"v_mov_b32 {vr(p+6)}, s{S_MLB}")
    e(f"v_mov_b32 {vr(R.A)}, {vr(R.vm)}"); e(f"v_mov_b32 {vr(R.A+1)}, {vr(R.vl)}")
    for r in range(4):
        e(f"v_cndmask_b32 {vr(X1+r)}, {vr(X1+r)}, {vr(X2+r)}, s[{S_HI32}:{S_HI32+1}]")
    e.lg(f"ds_write_b128 {vr(p+4)}, {vr(X1,4)}", "px")
    set_exec(e, 0xFF00FF0000FF00FF)
    e.lg(f"ds_write_b128 {vr(p+5)}, {vr(Y,4)} offset:512", "py")
    e("s_mov_b64 exec, 1")
    e.lg(f"ds_write_b64 {vr(p+6)}, {vr(R.A,2)} offset:{ml_off}", "pm")
    e("s_mov_b64 exec, -1")
    e.lg_all()

def kv_soff(e, base_sreg, T):
    e(f"s_add_u32 s{S_SOFF}, s{base_sreg}, {T*TILE_B}")
def ld_k(e, R, dst, s, tag, o):
    e.vm(f"buffer_load_dwordx4 {dst}, {vr(R.voffK)}, s[{SRD_K}:{SRD_K+3}], s{S_SOFF} offen offset:{128*s} {o.kvflags}", tag)
def ld_v(e, R, dst, w, tag, o):
    vo = R.voffY if w == 2 else R.voffX
    off = 384 if w == 1 else 0
    e.vm(f"buffer_load_dwordx4 {dst}, {vr(vo)}, s[{SRD_V}:{SRD_V+3}], s{S_SOFF} offen offset:{off} {o.kvflags}", tag)
def dma_k(e, R, slot, s, tag, o):
    e(f"s_add_u32 m0, s{S_LDSB}, {slot*1024 - 128*s + 0}") if slot*1024 - 128*s >= 0 else e(f"s_sub_u32 m0, s{S_LDSB}, {128*s - slot*1024}")
    e.vm(f"buffer_load_dwordx4 {vr(R.voffK)}, s[{SRD_K}:{SRD_K+3}], s{S_SOFF} offen offset:{128*s} {o.kvflags} lds", tag)
def dma_v(e, R, slot, w, tag, o):
    vo = R.voffY if w == 2 else R.voffX
    off = 384 if w == 1 else 0
    e(f"s_add_u32 m0, s{S_LDSB}, {slot*1024 - off}")
    e.vm(f"buffer_load_dwordx4 {vr(vo)}, s[{SRD_V}:{SRD_V+3}], s{S_SOFF} offen offset:{off} {o.kvflags} lds", tag)

def slot_reg(k):
    assert 0 <= k < 118
    return f"a[{4*k}:{4*k+3}]" if k < 64 else f"v[{40+4*(k-64)}:{40+4*(k-64)+3}]"

def weight_dma(e, o):
    L, t, u = 8, 20, 21
    def dma_block(ptr, nbytes, lanes_per_row, magic, shift, nlanes, row_stride, rows_per_instr, ninstr, so, lds0, bar=False):
        make_srd(e, SRD_T, ptr, nbytes)
        e(f"v_mul_u32_u24 v{t}, {magic}, v{L}"); e(f"v_lshrrev_b32 v{t}, {shift}, v{t}")
        e(f"v_mul_u32_u24 v{u}, {lanes_per_row}, v{t}"); e(f"v_sub_u32 v{u}, v{L}, v{u}")
        e(f"s_mov_b32 s{S_T1}, {row_stride}")
        e(f"v_mul_lo_u32 v{t}, v{t}, s{S_T1}"); e(f"v_lshl_add_u32 v{t}, v{u}, 4, v{t}")
        rreg, rmul, creg, cmul = so
        e(f"s_mul_i32 s{S_SOFF}, s{rreg}, {rmul*row_stride}")
        e(f"s_mul_i32 s{S_T1}, s{creg}, {cmul}"); e(f"s_add_u32 s{S_SOFF}, s{S_SOFF}, s{S_T1}")
        set_exec(e, mask64(range(nlanes)))
        if bar: e("s_barrier")
        for i in range(ninstr):
            e(f"s_mov_b32 m0, {lds0 + i*nlanes*16}")
            if i: e(f"s_add_u32 s{S_SOFF}, s{S_SOFF}, {rows_per_instr*row_stride}")
            else: e("s_nop 0")
            e.vm_depth(o.NW - 1)
            e.vm(f"buffer_load_dwordx4 v{t}, s[{SRD_T}:{SRD_T+3}], s{S_SOFF} offen {o.wflags} lds", "w")
        e("s_mov_b64 exec, -1")
    l2, l3, end = e.newlabel("w2"), e.newlabel("w3"), e.newlabel("wend")
    e(f"s_cmp_eq_u32 s{S_WAVE}, 2"); e(f"s_cbranch_scc1 {l2}")
    e(f"s_cmp_eq_u32 s{S_WAVE}, 3"); e(f"s_cbranch_scc1 {l3}")
    base_q = list(e.vmq)
    dma_block(S_WQ, 7864320, 24, 43, 10, 48, 12288, 2, 40, (S_J, 80, S_H, 384), ST_WQ, bar=True)
    e(f"s_branch {end}")
    e.label(l2); e.vmq = list(base_q)
    dma_block(S_WO, 7864320, 10, 103, 10, 60, 1280, 6, 32, (S_H, 192, S_J, 160), ST_WO, bar=True)
    e(f"s_branch {end}")
    e.label(l3); e.vmq = list(base_q)
    dma_block(S_WG, 1966080, 6, 43, 8, 60, 3072, 10, 8, (S_J, 80, S_H, 96), ST_WG, bar=True)
    dma_block(S_WU, 1966080, 6, 43, 8, 60, 3072, 10, 8, (S_J, 80, S_H, 96), ST_WU)
    dma_block(S_WD, 1966080, 10, 103, 10, 60, 1280, 6, 8, (S_H, 48, S_J, 160), ST_WD)
    e.label(end)
    e.vmq = ["w"] * o.NW

S_XPAR = 15
def par_depth(e, n):
    lab = e.newlabel("par")
    e(f"s_cmp_lg_u32 s{S_XPAR}, 0"); e(f"s_cbranch_scc1 {lab}")
    e(f"s_waitcnt vmcnt({n-1})")
    e.label(lab)

def emit_wb(e):
    skip = e.newlabel("nowb")
    e(f"s_cmp_lg_u32 s{S_WAVE}, 1"); e(f"s_cbranch_scc1 {skip}")
    e("s_cmp_ge_u32 s2, 8"); e(f"s_cbranch_scc1 {skip}")
    e("buffer_wbl2 sc1")
    e("s_waitcnt vmcnt(0)")
    e.label(skip)

def stream_wave(e, o, st):
    R = NS(vlds=0, voffK=1, voffX=2, voffY=3, sel=4, qA=8, D=20, sc=32, tmp=20, vpw=35, acc=8, A=20, pp=28, vpp=36, vm=38, vl=39, vlt=37)
    loads = []
    for T in range(SW_TILES):
        for s in range(3): loads.append(('K', T, s))
    for T in range(SW_TILES):
        for w in range(3): loads.append(('V', T, w))
    def k0slot(T, s): return 3 * T + s
    def v0slot(T, w): return 60 + 3 * T + w
    cur = [None]
    def issue0(item):
        kind, T, x = item
        if cur[0] != (kind, T, 0):
            kv_soff(e, S_KV0, T); cur[0] = (kind, T, 0)
        if kind == 'K': ld_k(e, R, slot_reg(k0slot(T, x)), x, ('K0', T, x), o)
        else:
            sl = v0slot(T, x)
            if sl < 118: ld_v(e, R, slot_reg(sl), x, ('V0', T, x), o)
            else: dma_v(e, R, 48 + sl - 118, x, ('V0', T, x), o)
    for item in loads[:o.NF]: issue0(item)
    late_common(e)
    e(f"s_add_u32 s{S_KV1}, s{S_KV0}, {BATCH_STRIDE}")
    e(f"s_sub_u32 s{S_T0}, s{S_WAVE}, 1"); e(f"s_mul_i32 s{S_LDSB}, s{S_T0}, {LDS_SW}")
    if o.NAe or o.NCe:
        e(f"s_getreg_b32 s{S_T0}, hwreg(HW_REG_XCC_ID)"); e(f"s_and_b32 s{S_XPAR}, s{S_T0}, 1")
    nf = list(e.vmq)
    if "now" in o.exp: e("s_barrier")
    else: weight_dma(e, o)
    e.vmq = nf + ["w"] * o.NW if len(nf) + o.NW <= 60 else ["w"] * 60
    cur[0] = None
    st("s.wiss")
    e(f"v_lshlrev_b32 {vr(R.vlds)}, 4, v8")
    e(f"v_add_u32 {vr(R.vlds)}, s{S_LDSB}, {vr(R.vlds)}")
    attn_selectors(e, R, 8, 10)
    for idx, item in enumerate(loads[:o.NA_BAR]):
        if idx < o.NF: continue
        na = o.NA0 if idx < o.NA0N else o.NA
        e.vm_depth(na - 1)
        if o.NAe: par_depth(e, o.NAe)
        if idx == o.NF + max(o.NA, o.NA0):
            e(f"s_lshl_b32 s{S_T0}, s{S_WAVE}, 2"); e(f"s_add_u32 s{S_T0}, s{S_T0}, {WFLAG-4}")
            e(f"v_mov_b32 v20, s{S_T0}"); e("v_mov_b32 v21, 1")
            e.lg("ds_write_b32 v20, v21", "wf")
            st("s.wland")
        if idx == 60: st("s.k0iss")
        if idx == 90: st("s.v30")
        issue0(item)
    st("A_issued")
    attn_pre(e, R, SW_TILES)
    e("s_barrier")
    st("bar1")
    if "nocw" in o.exp or "cw" in o.exp or "stopA" in o.exp:
        e.vm_all(); st("s.alland"); st.flush(); e("s_endpgm")
    pend = [('0', it) for it in loads[o.NA_BAR:]]
    for T in range(16):
        for s in range(3): pend.append(('1', T, s))
    cur1 = [None]
    def issue_pend():
        it = pend.pop(0)
        if it[0] == '0': cur1[0] = None; issue0(it[1])
        else:
            _, T, s = it
            if cur1[0] != T:
                kv_soff(e, S_KV1, T); cur1[0] = T; cur[0] = None
            dma_k(e, R, 3 * T + s, s, ('K1', T, s), o)
    while pend[0][0] == '0': issue_pend()
    def Kf0(T, s): return slot_reg(k0slot(T, s))
    def Vf0(T, w):
        sl = v0slot(T, w)
        if sl < 118: return slot_reg(sl)
        return "v[32:35]" if w == 1 else "v[28:31]"
    def k_wait_A(T):
        if T == -1: e.vm_wait(('K0', SW_TILES - 1, 2))
    def pv_hook_A(T):
        left = SW_TILES - 1 - T
        target = max(o.NB1, min(o.NA, 3 * left + o.NB1)) if o.NB1 else 0
        if T == SW_TILES - 2:
            e.vm_wait(('V0', SW_TILES - 1, 2))
            e.lg(f"ds_read_b128 v[32:35], {vr(R.vlds)} offset:{48*1024}", ("vo", 1))
            e.lg(f"ds_read_b128 v[28:31], {vr(R.vlds)} offset:{49*1024}", ("vo", 2))
            target = o.NB1
        while pend and len(e.vmq) < target: issue_pend()
    def vwait_A(T, w):
        e.vm_wait(('V0', T, w))
        if T == SW_TILES - 1 and w >= 1: e.lg_wait(("vo", w))
    attn_pass(e, R, SW_TILES, 0, Kf0, Vf0, S_PB, 0, k_wait=k_wait_A, v_wait=vwait_A, pv_hook=pv_hook_A, pre_done=True)
    st("A_done")
    e("s_barrier")
    if o.NB1 == o.NB:
        while pend:
            e.vm_depth(o.NB - 1)
            issue_pend()
    else:
        items = list(pend); pend.clear()
        q0 = list(e.vmq); c0 = cur1[0]
        fast = {i: e.newlabel("fastB") for i in range(len(items))}
        done = e.newlabel("doneB")
        e(f"v_mov_b32 v20, {WFLAG + 12}")
        def emit_item(it, force_soff):
            _, T, s = it
            if cur1[0] != T or force_soff:
                kv_soff(e, S_KV1, T); cur1[0] = T
            dma_k(e, R, 3 * T + s, s, ('K1', T, s), o)
        marks = [i for i, it in enumerate(items) if it[2] == 0]
        if o.NB1 == 0:
            spin = e.newlabel("spinB")
            e(f"s_mov_b32 s{S_CNT}, {o.poll_limit*8}")
            e.label(spin)
            e(f"s_sub_u32 s{S_CNT}, s{S_CNT}, 1"); e(f"s_cbranch_scc1 {fast[0]}")
            e.lg("ds_read_b32 v21, v20", "go"); e.lg_all()
            e(f"v_readfirstlane_b32 s{S_T0}, v21")
            e(f"s_cmp_lg_u32 s{S_T0}, 0"); e(f"s_cbranch_scc1 {fast[0]}")
            e("s_sleep 2"); e(f"s_branch {spin}")
        for i, it in enumerate(items if o.NB1 else []):
            if i in marks:
                e.lg("ds_read_b32 v21, v20", "go"); e.lg_all()
                e(f"v_readfirstlane_b32 s{S_T0}, v21")
                e(f"s_cmp_lg_u32 s{S_T0}, 0"); e(f"s_cbranch_scc1 {fast[i]}")
            e.vm_depth(o.NB1 - 1)
            emit_item(it, False)
        e(f"s_branch {done}")
        e.vmq = list(q0); cur1[0] = c0
        for i, it in enumerate(items):
            if i in marks: e.label(fast[i])
            e.vm_depth(o.NB - 1)
            emit_item(it, i in marks)
        e.label(done)
    st("B_issued")
    attn_pre(e, R, SW_TILES)
    e("s_barrier")
    st("bar3")
    pend1 = []
    for T in range(16, SW_TILES):
        for s in range(3): pend1.append(('K', T, s))
    for T in range(SW_TILES):
        for w in range(3): pend1.append(('V', T, w))
    slot_of = {it: i for i, it in enumerate(pend1)}
    freed = [0]
    issued1 = [0]
    cur2 = [None]
    def issue1():
        it = pend1[issued1[0]]; kind, T, x = it
        if cur2[0] != (kind, T):
            kv_soff(e, S_KV1, T); cur2[0] = (kind, T)
        e.vm_depth(o.NC - 1)
        if o.NCe: par_depth(e, o.NCe)
        if kind == 'K': ld_k(e, R, slot_reg(slot_of[it]), x, ('K1', T, x), o)
        else: ld_v(e, R, slot_reg(slot_of[it]), x, ('V1', T, x), o)
        issued1[0] += 1
    def refill():
        while issued1[0] < len(pend1) and issued1[0] < freed[0]: issue1()
    def qk_hook_C1(T):
        freed[0] = 3 * (T + 1); refill()
    def pv_hook_C1(T):
        freed[0] = min(118, 60 + 3 * (T + 1)); refill(); ovf_hook_C(T)
    def ovf_hook_C(T):
        if T == SW_TILES - 2:
            e.lg(f"ds_read_b128 v[32:35], {vr(R.vlds)} offset:{48*1024}", ("vo", 1))
            e.lg(f"ds_read_b128 v[28:31], {vr(R.vlds)} offset:{49*1024}", ("vo", 2))
    def vwait_C1(T, w):
        if T == SW_TILES - 1 and w >= 1: e.lg_wait(("vo", w))
    e(f"s_add_u32 s{S_T2}, s{S_LDSB}, {48*1024}")
    attn_pass(e, R, SW_TILES, 0, Kf0, Vf0, S_T2, 32, qk_hook=qk_hook_C1, v_wait=vwait_C1, pv_hook=pv_hook_C1, pre_done=True)
    refill()
    assert issued1[0] == len(pend1)
    st("C1_done")
    e("s_barrier")
    stage = [40 + 4 * (k - 64) for k in range(100, 112)]
    def Kf1(T, s):
        if T < 16: return ('lds', (3 * T + s) * 1024)
        return slot_reg(slot_of[('K', T, s)])
    def Vf1(T, w): return slot_reg(slot_of[('V', T, w)])
    def k_wait_C2(T):
        if T == -1: e.vm_wait(('K1', 15, 2))
        elif T >= 16: e.vm_wait(('K1', T, 2))
    def vwait_C2(T, w): e.vm_wait(('V1', T, w))
    attn_pass(e, R, SW_TILES, 1, Kf1, Vf1, S_PB, 0, k_wait=k_wait_C2, v_wait=vwait_C2, stage=stage, look=o.look)
    st("C2_done")
    e("s_barrier")
    if o.wb == 2: emit_wb(e)
    attn_pre(e, R, SW_TILES)
    e("s_barrier")
    st("bar7")
    attn_pass(e, R, SW_TILES, 1, Kf1, Vf1, S_PB, 0, stage=stage, pre_done=True, mark=lambda n: st("e." + n), look=o.look)
    st("E_done")
    e("s_barrier")
    if o.wb == 1: emit_wb(e)
    st.flush()
    e("s_endpgm")

V_LANE, V_LG, V_R, V_PL, V_PG, V_PQ = 0, 4, 5, 6, 7, 8
V_BO, V_BX, V_BX8, V_BH, V_BH8, V_AS, V_AS8 = 9, 10, 11, 12, 13, 14, 15
V_XR, V_CSQ, V_CSG = 16, 20, 24
V_W8, V_WX, V_WH, V_ML = 28, 29, 30, 31
W0 = 32
V_SEL, V_R2, V_ST2, V_PS, V_PSQ, V_L16 = 75, 79, 80, 81, 82, 83
V_T = 84
V_GL, V_LL = 72, 73
CW_K, CW_V = 86, 134
S_N1 = 74

_off3 = (2, 6, 0)
def wq_frag(t, s): return ("a", 10 * t + _off3[s])
def wo_frag(t, s): return ("a", 120 + 24 * t + 4 * s)
def wd_frag(t, s):
    if s == 0: return ("a", 240 + 4 * t) if t < 4 else ("v", 182)
    return ("v", 186 + 2 * t)
def wg_frag(t, s): return ("v", 196 + 10 * t + _off3[s])
def wu_frag(t, s): return ("v", 226 + 10 * t + _off3[s])
def win(fr): return f"{fr[0]}[{fr[1]}:{fr[1]+3}]"

V_OOB = 74
def selmask(e, dst, val, mask, other=None):
    e(f"s_mov_b32 vcc_lo, 0x{mask & 0xffffffff:08x}"); e(f"s_mov_b32 vcc_hi, 0x{mask >> 32:08x}")
    if other is None: e(f"v_cndmask_b32 {vr(dst)}, v{V_OOB}, {vr(val)}, vcc")
    else:
        assert dst != val
        e(f"v_mov_b32 {vr(dst)}, 0x{other:08x}")
        e(f"v_cndmask_b32 {vr(dst)}, {vr(dst)}, {vr(val)}, vcc")

def rows_mask(live, n): return mask64([32 * r + g for r in live for g in range(n)])
def cols_mask(live, alist=range(4)): return mask64([16 * a + n for a in alist for n in live])

def instance_offsets(e, live, pub_live=None, q_live=None):
    pub_live = live if pub_live is None else pub_live
    q_live = pub_live if q_live is None else q_live
    t, u = V_T, V_T + 1
    e(f"v_and_b32 {vr(t)}, 31, v{V_LANE}"); e(f"v_lshlrev_b32 {vr(t)}, 4, {vr(t)}")
    e(f"v_lshrrev_b32 {vr(u)}, 5, v{V_LANE}"); e(f"v_lshl_add_u32 {vr(t)}, {vr(u)}, 9, {vr(t)}")
    selmask(e, V_LG, t, rows_mask(live, 20))
    selmask(e, V_R2, t, rows_mask(live, 24))
    e(f"v_and_b32 v{V_GL}, 7, v{V_LANE}"); e(f"v_lshlrev_b32 v{V_GL}, 10, v{V_GL}"); e(f"v_add_u32 v{V_GL}, {512*live[-1] + 19*16}, v{V_GL}")
    e(f"v_and_b32 v{V_LL}, 3, v{V_LANE}"); e(f"v_lshlrev_b32 v{V_LL}, 10, v{V_LL}"); e(f"v_add_u32 v{V_LL}, {512*live[-1] + 19*16}, v{V_LL}")
    e(f"v_and_b32 {vr(t)}, 7, v{V_LANE}"); e(f"v_lshlrev_b32 {vr(t)}, 10, {vr(t)}")
    e(f"v_lshl_add_u32 {vr(t)}, {vr(u)}, 9, {vr(t)}"); e(f"v_add_u32 {vr(t)}, 384, {vr(t)}")
    selmask(e, V_ST2, t, rows_mask(live, 32))
    e(f"v_and_b32 {vr(t)}, 15, v{V_LANE}"); e(f"v_lshrrev_b32 {vr(u)}, 4, v{V_LANE}")
    e(f"v_lshlrev_b32 v{V_PL}, 9, {vr(t)}")
    e(f"v_lshl_add_u32 v{V_PG}, {vr(u)}, 5, v{V_PL}")
    e(f"v_add_u32 v{V_PS}, 384, v{V_PL}")
    e(f"v_lshl_add_u32 v{V_PL}, {vr(u)}, 4, v{V_PL}")
    e(f"v_lshlrev_b32 v{V_PQ}, 18, {vr(t)}")
    e(f"v_add_u32 v{V_PSQ}, 768, v{V_PQ}")
    e(f"v_lshl_add_u32 v{V_PQ}, {vr(u)}, 4, v{V_PQ}")
    cm = cols_mask(pub_live)
    e(f"s_mov_b32 vcc_lo, 0x{cm & 0xffffffff:08x}"); e(f"s_mov_b32 vcc_hi, 0x{cm >> 32:08x}")
    for r in (V_PL, V_PG): e(f"v_cndmask_b32 v{r}, v{V_OOB}, v{r}, vcc")
    selmask(e, V_PS, V_PS, cols_mask(pub_live, [0]))
    selmask(e, V_PQ, V_PQ, cols_mask(q_live))
    selmask(e, V_PSQ, V_PSQ, cols_mask(q_live, [0]))

def soffs(e, off_sreg, const, two=True):
    e(f"s_add_u32 s{S_A}, s{off_sreg}, {const}")
    if two: e(f"s_add_u32 s{S_B}, s{S_A}, 4096")

def poll(e, o, loads, abort, sleep=0):
    lab = e.newlabel("poll")
    e(f"s_mov_b32 s{S_CNT}, {o.poll_limit}")
    e.label(lab)
    for d, vo, s, imm in loads:
        e(f"buffer_load_dwordx4 {vr(d,4)}, v{vo}, s[{SRD_WS}:{SRD_WS+3}], s{s} offen offset:{imm} sc1")
    e(f"s_sub_u32 s{S_CNT}, s{S_CNT}, 1")
    e(f"s_cbranch_scc1 {abort}")
    e("s_waitcnt vmcnt(0)")
    vals = []
    for d, _, _, _ in loads: vals += [d + 1, d + 3]
    t = V_T
    e(f"v_max3_u32 v{t}, v{vals[0]}, v{vals[1]}, v{vals[2]}")
    i = 3
    while i < len(vals):
        if i + 1 < len(vals): e(f"v_max3_u32 v{t}, v{t}, v{vals[i]}, v{vals[i+1]}"); i += 2
        else: e(f"v_max_u32 v{t}, v{t}, v{vals[i]}"); i += 1
    e(f"v_cmp_eq_u32 vcc, -1, v{t}")
    if sleep:
        ok = e.newlabel("pok"); e(f"s_cbranch_vccz {ok}"); e(f"s_sleep {sleep}"); e(f"s_branch {lab}"); e.label(ok)
    else: e(f"s_cbranch_vccnz {lab}")
    e.vmq = []

def gather8(e, o, vo, abort, extra=None, n=8, base=W0):
    loads = [(base + 4 * k, vo, S_A if k < 4 else S_B, (k % 4) * 1024) for k in range(n)]
    if extra: loads.append((base + 4 * n, extra, S_A, 0))
    poll(e, o, loads, abort)

def sum_loads(e, n, base=W0):
    step = 1
    while step < n:
        for k in range(0, n, 2 * step):
            if k + step < n:
                a, b = base + 4 * k, base + 4 * (k + step)
                e(f"v_pk_add_f32 {vr(a,2)}, {vr(a,2)}, {vr(b,2)}")
                e(f"v_pk_add_f32 {vr(a+2,2)}, {vr(a+2,2)}, {vr(b+2,2)}")
        step *= 2

def dpp8(e, reg, op):
    for m in ("quad_perm:[1,0,3,2]", "quad_perm:[2,3,0,1]", "row_half_mirror"):
        e(f"v_{op}_f32_dpp v{reg}, v{reg}, v{reg} {m} row_mask:0xf bank_mask:0xf")
def dpp8x2(e, r0, r1, op):
    for m in ("quad_perm:[1,0,3,2]", "quad_perm:[2,3,0,1]", "row_half_mirror"):
        e(f"v_{op}_f32_dpp v{r0}, v{r0}, v{r0} {m} row_mask:0xf bank_mask:0xf")
        e(f"v_{op}_f32_dpp v{r1}, v{r1}, v{r1} {m} row_mask:0xf bank_mask:0xf")

def ln_from_stats(e, s1, s2, mean, rstd):
    e(f"v_mul_f32 v{mean}, {lit(1/640)}, v{s1}")
    e(f"v_mul_f32 v{s2}, {lit(1/640)}, v{s2}")
    e(f"v_fma_f32 v{s2}, -v{mean}, v{mean}, v{s2}")
    e(f"v_max_f32 v{s2}, 0, v{s2}")
    e(f"v_add_f32 v{s2}, {lit(EPS)}, v{s2}")
    e(f"v_rsq_f32 v{rstd}, v{s2}")

def pub(e, D, vo, sreg, imm, fl, tag):
    e.vm(f"buffer_store_dwordx4 {vr(D,4)}, v{vo}, s[{SRD_WS}:{SRD_WS+3}], s{sreg} offen offset:{imm} {fl}", tag)

def run_tiles(e, tiles, accs, store, btags=None, twait=None):
    n = len(accs); lag = n - 1
    for i, (tid, steps) in enumerate(tiles):
        D = vr(accs[i % n], 4)
        if twait and tid in twait: e.lg_wait(twait[tid])
        for s, (A, B) in enumerate(steps):
            if i == 0 and btags: e.lg_wait(btags[s])
            e(f"v_mfma_f32_16x16x32_bf16 {D}, {A}, {B}, {'0' if s == 0 else D}")
        if i >= lag: store(tiles[i - lag][0], accs[(i - lag) % n])
    for i in range(max(0, len(tiles) - lag), len(tiles)): store(tiles[i][0], accs[i % n])

def read_bx(e, B):
    e.lg(f"ds_read_b128 {vr(B,4)}, v{V_BX}", "b0"); e.lg(f"ds_read_b128 {vr(B+4,4)}, v{V_BX} offset:64", "b1")
    e.lg(f"ds_read_b64 {vr(B+8,2)}, v{V_BX8}", "b2")
    e(f"v_mov_b32 v{B+10}, 0"); e(f"v_mov_b32 v{B+11}, 0")
def read_as(e, A):
    e.lg(f"ds_read_b128 {vr(A,4)}, v{V_AS}", "a0"); e.lg(f"ds_read_b128 {vr(A+4,4)}, v{V_AS} offset:64", "a1")
    e.lg(f"ds_read_b64 {vr(A+8,2)}, v{V_AS8}", "a2")
    e(f"v_mov_b32 v{A+10}, 0"); e(f"v_mov_b32 v{A+11}, 0")

def stage_Q(e, fl, reg_index, shadow=None):
    B, A = W0 + 8, W0 + 20
    read_bx(e, B); read_as(e, A)
    e(f"s_add_u32 s{S_A}, s{S_ROWN}, {reg_index*RG}")
    if shadow: shadow()
    tiles = [(t, [(win(wq_frag(t, s)), vr(B + 4 * s, 4)) for s in range(3)]) for t in range(12)]
    tiles.insert(1, (12, [(vr(A + 4 * s, 4), vr(B + 4 * s, 4)) for s in range(3)]))
    SD = W0 + 4
    def store(t, D): pub(e, D, V_PQ, S_A, 64 * t, fl, ("pq", t))
    first, stats, rest = tiles[0], tiles[1], tiles[2:]
    run_tiles(e, [first], [W0 + 32, W0 + 36], lambda t, D: None, btags=["b0", "b1", "b2"])
    e.lg_wait("a2")
    for s, (Aop, Bop) in enumerate(stats[1]):
        e(f"v_mfma_f32_16x16x32_bf16 {vr(SD,4)}, {Aop}, {Bop}, {'0' if s == 0 else vr(SD,4)}")
    accs = [W0 + 36, W0, W0 + 20, W0 + 32]
    pend = [(0, W0 + 32)]
    for i, (t, steps) in enumerate(rest):
        D = accs[i % 4]
        for s, (Aop, Bop) in enumerate(steps):
            e(f"v_mfma_f32_16x16x32_bf16 {vr(D,4)}, {Aop}, {Bop}, {'0' if s == 0 else vr(D,4)}")
        pend.append((t, D))
        if i >= 2: store(*pend.pop(0))
    e(f"v_cndmask_b32 v{SD+1}, v{SD+1}, v{SD+2}, s[{S_N1}:{S_N1+1}]")
    while pend: store(*pend.pop(0))
    pub(e, SD, V_PSQ, S_A, 0, fl, "pqs")

def stage_GU(e, fl, const, with_stats=True, shadow=None):
    B, A = W0 + 8, W0 + 20
    read_bx(e, B)
    if with_stats: read_as(e, A)
    e(f"s_add_u32 s{S_A}, s{S_ROWN}, {const}" if const >= 0 else f"s_sub_u32 s{S_A}, s{S_ROWN}, {-const}")
    if shadow: shadow()
    def tile(d, f, waits=None):
        d = vr(d, 4)
        for s in range(3):
            if waits: e.lg_wait(waits[s])
            e(f"v_mfma_f32_16x16x32_bf16 {d}, {f(s)}, {vr(B+4*s,4)}, {'0' if s == 0 else d}")
    def store(t, G, U):
        e(f"v_swap_b32 v{G+2}, v{U}"); e(f"v_swap_b32 v{G+3}, v{U+1}")
        pub(e, G, V_PG, S_A, 128 * t, fl, ("pg", t, 0))
        pub(e, U, V_PG, S_A, 128 * t + 16, fl, ("pg", t, 1))
    g = lambda t: (lambda s: win(wg_frag(t, s)))
    u = lambda t: (lambda s: win(wu_frag(t, s)))
    P0, P1, S = (W0 + 32, W0 + 36), (W0 + 20, W0 + 24), W0
    tile(P0[0], g(0), waits=["b0", "b1", "b2"]); tile(P0[1], u(0))
    if with_stats:
        e.lg_wait("a2")
        tile(S, lambda s: vr(A + 4 * s, 4))
    tile(P1[0], g(1)); tile(P1[1], u(1))
    store(0, *P0)
    if with_stats: e(f"v_cndmask_b32 v{S+1}, v{S+1}, v{S+2}, s[{S_N1}:{S_N1+1}]")
    tile(P0[0], g(2)); tile(P0[1], u(2))
    store(1, *P1)
    store(2, *P0)
    if with_stats: pub(e, S, V_PS, S_A, 0, fl, "pgs")

def stage_WO(e, fl, region):
    B = W0
    for s in range(6): e.lg(f"ds_read_b128 {vr(B+4*s,4)}, v{V_BO} offset:{64*s}", ("o", s))
    e(f"s_add_u32 s{S_A}, s{S_LOWN}, {region*RG}")
    tiles = [(t, [(win(wo_frag(t, s)), vr(B+4*s,4)) for s in range(6)]) for t in range(5)]
    run_tiles(e, tiles, [W0 + 24, W0 + 28, W0 + 32], lambda t, D: pub(e, D, V_PL, S_A, 64 * t, fl, ("po", t)), btags=[("o", s) for s in range(6)])

def stage_D(e, fl, region):
    B = W0
    e.lg(f"ds_read_b128 {vr(B,4)}, v{V_BH}", "h0"); e.lg(f"ds_read_b64 {vr(B+4,2)}, v{V_BH8}", "h1")
    e(f"v_mov_b32 v{B+6}, 0"); e(f"v_mov_b32 v{B+7}, 0")
    e(f"s_add_u32 s{S_A}, s{S_LOWN}, {region*RG}")
    tiles = [(t, [(win(wd_frag(t, 0)), vr(B,4)), (win(wd_frag(t, 1)), vr(B+4,4))]) for t in range(5)]
    run_tiles(e, tiles, [W0 + 8 + 4 * i for i in range(5)], lambda t, D: pub(e, D, V_PL, S_A, 64 * t, fl, ("pd", t)), btags=["h0", "h1"])

def fast_gather(e, o, loads, body, abort, pre=0, early=False):
    n = len(loads); t = V_T
    lab = e.newlabel("fpoll")
    e(f"s_mov_b32 s{S_CNT}, {o.poll_limit}")
    if pre: e(f"s_sleep {pre}")
    e.label(lab)
    for d, vo, s, imm in loads:
        e(f"buffer_load_dwordx4 {vr(d,4)}, v{vo}, s[{SRD_WS}:{SRD_WS+3}], s{s} offen offset:{imm} sc1")
    e(f"s_sub_u32 s{S_CNT}, s{S_CNT}, 1")
    e(f"s_cbranch_scc1 {abort}")
    first = [True]
    if early:
        d = loads[0][0]
        e(f"s_waitcnt vmcnt({n-1})")
        e(f"v_max_u32 v{t}, v{d+1}, v{d+3}")
        e(f"v_cmp_eq_u32 vcc, -1, v{t}")
        e(f"s_cbranch_vccnz {lab}")
        first[0] = False
    def wait(k): e(f"s_waitcnt vmcnt({n-1-k})")
    def chk(k):
        d = loads[k][0]
        if first[0]: e(f"v_max_u32 v{t}, v{d+1}, v{d+3}"); first[0] = False
        else: e(f"v_max3_u32 v{t}, v{t}, v{d+1}, v{d+3}")
    body(wait, chk)
    e(f"v_cmp_eq_u32 vcc, -1, v{t}")
    e(f"s_cbranch_vccnz {lab}")
    e.vmq = []

def padd(e, a, b, neg=False):
    m = " neg_lo:[0,1] neg_hi:[0,1]" if neg else ""
    e(f"v_pk_add_f32 {vr(a,2)}, {vr(a,2)}, {vr(b,2)}{m}"); e(f"v_pk_add_f32 {vr(a+2,2)}, {vr(a+2,2)}, {vr(b+2,2)}{m}")

def g_soffs(e, off_sreg, const, two=True):
    e(f"s_add_u32 s{S_GA}, s{off_sreg}, {const}")
    if two: e(f"s_add_u32 s{S_GB}, s{S_GA}, 4096")
def g_loads(vo, n=8, base=W0): return [(base + 4 * k, vo, S_GA if k < 4 else S_GB, (k % 4) * 1024) for k in range(n)]

def hop_LG(e, o, inst, k, abort, final_only=False):
    skip = e.newlabel("notleader")
    e(f"s_cmp_lg_u32 s{S_HQ}, 0"); e(f"s_cbranch_scc1 {skip}")
    g_soffs(e, S_LGRP, L_REG(inst, k) * RG, two=False)
    e(f"s_add_u32 s{S_A}, s{S_GOWN}, {G_OFF(inst,k)}")
    X = W0 + 32
    off = 1 if o.early else 0
    def body4(wait, chk):
        wait(off + 1); chk(off); chk(off + 1); padd(e, W0, W0 + 4)
        wait(off + 2); chk(off + 2); padd(e, W0, W0 + 8)
        wait(off + 3); chk(off + 3); padd(e, W0, W0 + 12)
    fast_gather(e, o, ([(X, V_LL, S_GA, 0)] if o.early else []) + g_loads(V_LG, 4), body4, abort, pre=o.preL, early=o.early)
    e(f"buffer_store_dwordx4 {vr(W0,4)}, v{V_LG}, s[{SRD_WS}:{SRD_WS+3}], s{S_A} offen sc1")
    if o.preGn:
        join = e.newlabel("lgjoin")
        e(f"s_branch {join}")
        e.label(skip)
        if not final_only: e(f"s_sleep {o.preGn}")
        e.label(join)
    else: e.label(skip)
    if final_only:
        e(f"s_cmp_lg_u32 s{S_H}, 0"); e(f"s_cbranch_scc1 L_done")
    g_soffs(e, S_GGRP, G_OFF(inst, k))
    e.vmq = []
    def body8(wait, chk):
        c = lambda k: chk(off + k)
        w = lambda k: wait(off + k)
        w(1); c(0); c(1); padd(e, W0, V_XR); padd(e, W0, W0 + 4)
        w(3); c(2); c(3); padd(e, W0 + 8, W0 + 12); padd(e, W0, W0 + 8)
        w(5); c(4); c(5); padd(e, W0 + 16, W0 + 20); padd(e, W0, W0 + 16)
        w(6); c(6); padd(e, W0, W0 + 24)
        w(7); c(7); padd(e, W0, W0 + 28)
    fast_gather(e, o, ([(X, V_GL, S_GA, 0)] if o.early else []) + g_loads(V_LG, 8), body8, abort, pre=o.preG, early=o.early)

def hop_final(e, o, abort):
    e(f"s_cmp_lg_u32 s{S_H}, 0"); e(f"s_cbranch_scc1 L_done")
    e(f"s_lshl_b32 s{S_T0}, s{S_J}, 12"); e(f"s_add_u32 s{S_T0}, s{S_T0}, {L_REG(2,1)*RG}")
    for x in range(8): e(f"s_add_u32 s{SW8[x]}, s{S_T0}, {32768*x}")
    dst = [W0 + 4 * k for k in range(8)] + [CW_K + 4 * k for k in range(24)]
    loads = [(dst[4 * x + q], V_LG, SW8[x], 1024 * q) for x in range(8) for q in range(4)]
    A0, A1 = loads[0][0], loads[1][0]
    def body(wait, chk):
        wait(1); chk(0); chk(1); padd(e, A0, V_XR)
        for k in range(2, 32):
            if k % 2 == 0: wait(min(k + 1, 31)); chk(k); chk(k + 1)
            padd(e, A0 if k % 2 == 0 else A1, loads[k][0])
        padd(e, A0, A1)
    fast_gather(e, o, loads, body, abort, pre=o.preF)

def residual_update(e):
    e(f"v_cvt_pk_bf16_f32 v{W0+4}, v{W0}, v{W0+1}")
    e(f"v_cvt_pk_bf16_f32 v{W0+5}, v{W0+2}, v{W0+3}")
    e.lg(f"ds_write_b64 v{V_WX}, {vr(W0+4,2)}", "wx")
def residual_unpack(e, p):
    e(f"v_lshlrev_b32 v{V_XR}, 16, v{p}"); e(f"v_and_b32 v{V_XR+1}, 0xffff0000, v{p}")
    e(f"v_lshlrev_b32 v{V_XR+2}, 16, v{p+1}"); e(f"v_and_b32 v{V_XR+3}, 0xffff0000, v{p+1}")

def store_out(e, row):
    skip = e.newlabel("noout")
    e(f"s_cmp_lg_u32 s{S_H}, 0"); e(f"s_cbranch_scc1 {skip}")
    make_srd(e, SRD_T, S_OUT, 2560)
    e(f"v_and_b32 v{V_T}, 31, v{V_LANE}"); e(f"v_lshlrev_b32 v{V_T}, 3, v{V_T}")
    e(f"s_mul_i32 s{S_T0}, s{S_J}, 160"); e(f"s_add_u32 s{S_T0}, s{S_T0}, {row*1280}")
    selmask(e, V_T, V_T, rows_mask([row], 20))
    e(f"buffer_store_dwordx2 {vr(W0+4,2)}, v{V_T}, s[{SRD_T}:{SRD_T+3}], s{S_T0} offen")
    e.label(skip)

def combine_publish(e, fl, parts, mlbase, region):
    T = W0
    e(f"v_mov_b32 v{V_T}, {mlbase}")
    e.lg(f"ds_read_b128 {vr(T,4)}, v{V_T}", "ml0"); e.lg(f"ds_read_b128 {vr(T+4,4)}, v{V_T} offset:16", "ml1")
    P = T + 8
    cur = None
    for w in range(4):
        if cur is None or not (0 <= parts[w] - cur < 60000):
            e(f"v_add_u32 v{V_T+1}, {parts[w]}, v{V_L16}"); cur = parts[w]
        for par in range(2):
            e.lg(f"ds_read_b128 {vr(P+8*w+4*par,4)}, v{V_T+1} offset:{parts[w] - cur + 768*par}", ("p", w, par))
    e(f"s_add_u32 s{S_A}, s{S_ROWN}, {region*RG}")
    e.lg_wait("ml1")
    m = [T, T + 2, T + 4, T + 6]; l = [T + 1, T + 3, T + 5, T + 7]
    M, Ls = V_T, V_T + 1
    e(f"v_max3_f32 v{M}, v{m[0]}, v{m[1]}, v{m[2]}"); e(f"v_max_f32 v{M}, v{M}, v{m[3]}")
    for w in range(4): e(f"v_sub_f32 v{m[w]}, v{m[w]}, v{M}")
    for w in range(4): e(f"v_exp_f32 v{m[w]}, v{m[w]}")
    e(f"v_mul_f32 v{Ls}, v{m[0]}, v{l[0]}")
    for w in range(1, 4): e(f"v_fma_f32 v{Ls}, v{m[w]}, v{l[w]}, v{Ls}")
    for w in range(4):
        e.lg_wait(("p", w, 1))
        a = P + 8 * w
        e(f"v_pk_add_f32 {vr(a,2)}, {vr(a,2)}, {vr(a+4,2)}"); e(f"v_pk_add_f32 {vr(a+2,2)}, {vr(a+2,2)}, {vr(a+6,2)}")
        for r in range(4):
            if w == 0: e(f"v_mul_f32 v{P+r}, v{m[0]}, v{P+r}")
            else: e(f"v_fmac_f32 v{P+r}, v{m[w]}, v{a+r}")
    e(f"s_mov_b32 vcc_lo, 0"); e(f"s_mov_b32 vcc_hi, 0x00010000")
    e(f"v_cndmask_b32 v{P}, v{P}, v{M}, vcc"); e(f"v_cndmask_b32 v{P+1}, v{P+1}, v{Ls}, vcc")
    pub(e, P, V_R, S_A, 0, fl, "r1")

SW8 = [4, 6, 8, 10, 12, 16, 18, 20]
def hop_R1(e, o, region, row, abort):
    g_soffs(e, S_RGRP, region * RG)
    X = W0 + 32
    M, wv = X + 2, X + 3
    acc = W0 + 36
    loads = [(X, V_ML, S_GA, 0)] + g_loads(V_R)
    def body(wait, chk):
        if not o.early: wait(0); chk(0)
        e(f"v_mov_b32 v{M}, v{X}")
        dpp8(e, M, "max")
        e(f"v_sub_f32 v{wv}, v{X}, v{M}"); e(f"v_exp_f32 v{wv}, v{wv}")
        wait(4); chk(1); chk(2)
        e(f"v_mul_f32 v{X+1}, v{wv}, v{X+1}")
        chk(3); chk(4)
        e(f"v_add_f32_dpp v{X+1}, v{X+1}, v{X+1} quad_perm:[1,0,3,2] row_mask:0xf bank_mask:0xf")
        wait(8); chk(5); chk(6)
        e(f"v_add_f32_dpp v{X+1}, v{X+1}, v{X+1} quad_perm:[2,3,0,1] row_mask:0xf bank_mask:0xf")
        chk(7); chk(8)
        e(f"v_add_f32_dpp v{X+1}, v{X+1}, v{X+1} row_half_mirror row_mask:0xf bank_mask:0xf")
        e(f"v_rcp_f32 v{X+1}, v{X+1}")
        e(f"v_mul_f32 v{wv}, v{wv}, v{X+1}")
        for k in range(8): e(f"v_readlane_b32 s{SW8[k]}, v{wv}, {k}")
        for k in range(8):
            for h in range(2):
                a, m = acc + 2 * h, W0 + 4 * k + 2 * h
                sp = f"s[{SW8[k]}:{SW8[k]+1}]"
                if k == 0: e(f"v_pk_mul_f32 {vr(a,2)}, {vr(m,2)}, {sp} op_sel_hi:[1,0]")
                else: e(f"v_pk_fma_f32 {vr(a,2)}, {vr(m,2)}, {sp}, {vr(a,2)} op_sel_hi:[1,0,1]")
    fast_gather(e, o, loads, body, abort, pre=o.preR, early=o.early)
    e(f"v_cvt_pk_bf16_f32 v{acc}, v{acc}, v{acc+1}"); e(f"v_cvt_pk_bf16_f32 v{acc+1}, v{acc+2}, v{acc+3}")
    e.lg(f"ds_write_b64 v{V_W8}, {vr(acc,2)} offset:{ACT_O - SB + 384*row}", "wo")

def ln_gather(e, o, vo, vstat, cs, abort):
    X = W0 + 32; mean, rstd = X + 2, X + 3; T = W0 + 36
    loads = [(X, vstat, S_GA, 0)] + g_loads(vo)
    q = lambda r, m: e(f"v_add_f32_dpp v{r}, v{r}, v{r} {m} row_mask:0xf bank_mask:0xf")
    def body(wait, chk):
        if not o.early: wait(0); chk(0)
        q(X, "quad_perm:[1,0,3,2]"); q(X + 1, "quad_perm:[1,0,3,2]")
        wait(2); chk(1)
        q(X, "quad_perm:[2,3,0,1]"); q(X + 1, "quad_perm:[2,3,0,1]")
        chk(2)
        q(X, "row_half_mirror"); q(X + 1, "row_half_mirror")
        padd(e, W0, W0 + 4)
        e(f"v_mul_f32 v{mean}, {lit(1/640)}, v{X}"); e(f"v_mul_f32 v{X+1}, {lit(1/640)}, v{X+1}")
        wait(4); chk(3); chk(4)
        e(f"v_fma_f32 v{X+1}, -v{mean}, v{mean}, v{X+1}")
        padd(e, W0 + 8, W0 + 12)
        e(f"v_max_f32 v{X+1}, 0, v{X+1}"); e(f"v_add_f32 v{X+1}, {lit(EPS)}, v{X+1}")
        padd(e, W0, W0 + 8)
        e(f"v_rsq_f32 v{rstd}, v{X+1}")
        wait(6); chk(5); chk(6)
        e(f"v_pk_mul_f32 {vr(T,2)}, {vr(cs,2)}, {vr(mean,2)} op_sel_hi:[1,0]"); e(f"v_pk_mul_f32 {vr(T+2,2)}, {vr(cs+2,2)}, {vr(mean,2)} op_sel_hi:[1,0]")
        padd(e, W0 + 16, W0 + 20); padd(e, W0, T, neg=True); padd(e, W0, W0 + 16)
        wait(7); chk(7); padd(e, W0, W0 + 24)
        wait(8); chk(8); padd(e, W0, W0 + 28)
    fast_gather(e, o, loads, body, abort, pre=o.preR, early=o.early)
    e(f"v_pk_mul_f32 {vr(W0,2)}, {vr(W0,2)}, {vr(mean,2)} op_sel:[0,1] op_sel_hi:[1,1]")
    e(f"v_pk_mul_f32 {vr(W0+2,2)}, {vr(W0+2,2)}, {vr(mean,2)} op_sel:[0,1] op_sel_hi:[1,1]")

def hop_R2(e, o, inst, abort):
    ln_gather(e, o, V_R2, V_ST2, V_CSG, abort)
    e(f"v_max_f32 v{W0}, 0, v{W0}"); e(f"v_max_f32 v{W0+1}, 0, v{W0+1}")
    e(f"v_pk_mul_f32 {vr(W0,2)}, {vr(W0,2)}, {vr(W0+2,2)}")
    e(f"v_cvt_pk_bf16_f32 v{W0}, v{W0}, v{W0+1}")
    e.lg(f"ds_write_b32 v{V_WH}, v{W0}", "wh")

def q_consume(e, base, X, row):
    dpp8x2(e, X, X + 1, "add")
    sum_loads(e, 8, base)
    mean, rstd = X + 2, X + 3
    ln_from_stats(e, X, X + 1, mean, rstd)
    for r in range(4): e(f"v_fma_f32 v{base+r}, -v{mean}, v{V_CSQ+r}, v{base+r}")
    for r in range(4): e(f"v_mul_f32 v{base+r}, v{rstd}, v{base+r}")
    e(f"v_cvt_pk_bf16_f32 v{base}, v{base}, v{base+1}"); e(f"v_cvt_pk_bf16_f32 v{base+1}, v{base+2}, v{base+3}")
    e.lg(f"ds_write_b64 v{V_W8}, {vr(base,2)} offset:{QARR - SB + 384*row}", "wq")

def hop_R3(e, o, region, row, abort):
    ln_gather(e, o, V_R, V_ML, V_CSQ, abort)
    e(f"v_cvt_pk_bf16_f32 v{W0}, v{W0}, v{W0+1}"); e(f"v_cvt_pk_bf16_f32 v{W0+1}, v{W0+2}, v{W0+3}")
    e.lg(f"ds_write_b64 v{V_W8}, {vr(W0,2)} offset:{QARR - SB + 384*row}", "wq")

def go_flag(e):
    e(f"v_mov_b32 v{V_T}, {WFLAG + 12}"); e(f"v_mov_b32 v{V_T+1}, 1")
    e.lg(f"ds_write_b32 v{V_T}, v{V_T+1}", "go")

def chain(e, o, fl, inst, live, abort, st):
    c = f"c{inst}."
    if inst == 0 and o.NB1 != o.NB and o.go_at == "R1": go_flag(e)
    if inst == 0: o._save = (o.preR, o.preL, o.preG); o.preL, o.preG = o.preL + o.preL0, o.preG + o.preG0
    st.rounds(f"n{inst}.R1")
    st(c + "R1")
    stage_WO(e, fl, L_REG(inst, 0))
    st(c + "WO")
    hop_LG(e, o, inst, 0, abort)
    if inst == 0 and o.NB1 != o.NB and o.go_at == "G1": go_flag(e)
    if inst == 0: o.preR, o.preL, o.preG = o._save
    st.rounds(f"n{inst}.G1")
    st(c + "G1")
    residual_update(e)
    def sh_gu():
        residual_unpack(e, W0 + 4); g_soffs(e, S_RGRP, R2_REG[inst] * RG)
    stage_GU(e, fl, R2_REG[inst] * RG, shadow=sh_gu)
    st(c + "GU")
    hop_R2(e, o, inst, abort)
    st.rounds(f"n{inst}.R2")
    st(c + "R2")
    if inst == 2 and o.direct:
        stage_D(e, "sc1", L_REG(inst, 1))
        st(c + "D")
        hop_final(e, o, abort)
    else:
        stage_D(e, fl, L_REG(inst, 1))
        st(c + "D")
        hop_LG(e, o, inst, 1, abort, final_only=(inst == 2))
    st.rounds(f"n{inst}.G2")
    st(c + "G2")
    if inst == 2:
        e(f"v_cvt_pk_bf16_f32 v{W0+4}, v{W0}, v{W0+1}"); e(f"v_cvt_pk_bf16_f32 v{W0+5}, v{W0+2}, v{W0+3}")
        store_out(e, 1)
        e("s_cmp_lg_u32 s2, 0"); e("s_cbranch_scc1 L_done")
        e(f"v_mov_b32 v{V_T}, s{S_TAG}"); e(f"v_mov_b32 v{V_T+1}, {EPOCH_OFF}")
        e("s_mov_b64 exec, 1")
        e(f"buffer_store_dword v{V_T}, v{V_T+1}, s[{SRD_WS}:{SRD_WS+3}], 0 offen sc1")
        e("s_mov_b64 exec, -1")
        return
    residual_update(e)
    qrow = 0 if inst == 0 else 1
    def sh_q():
        residual_unpack(e, W0 + 4); g_soffs(e, S_RGRP, R3_REG[inst] * RG)
        if inst == 1:
            store_out(e, 0)
            cm = cols_mask([1]); e(f"s_mov_b32 vcc_lo, 0x{cm & 0xffffffff:08x}"); e(f"s_mov_b32 vcc_hi, 0x{cm >> 32:08x}")
            e(f"v_cndmask_b32 v{V_PQ}, v{V_OOB}, v{V_PQ}, vcc"); e(f"v_cndmask_b32 v{V_PSQ}, v{V_OOB}, v{V_PSQ}, vcc")
    stage_Q(e, fl, R3_REG[inst] - qrow, shadow=sh_q)
    st(c + "Q")
    hop_R3(e, o, R3_REG[inst], qrow, abort)
    e.lg_all()
    st.rounds(f"n{inst}.R3")
    st(c + "R3")

TOK1 = 21 * RG
TOK2 = TOK1 + 32768
EPOCH_OFF = 896
S_TAG = 73

o_direct = [True]
def emit_resets_P(e):
    e(f"v_mov_b32 v{W0}, -1"); e(f"v_mov_b32 v{W0+1}, -1"); e(f"v_mov_b32 v{W0+2}, -1"); e(f"v_mov_b32 v{W0+3}, -1")
    for r in [4, 5, 6]:
        e(f"s_add_u32 s{S_A}, s{S_ROWN}, {r*RG}")
        e.vm(f"buffer_store_dwordx4 {vr(W0,4)}, v{V_R}, s[{SRD_WS}:{SRD_WS+3}], s{S_A} offen sc1", "rstp")
    e(f"v_lshlrev_b32 v{V_T}, 4, v{V_LANE}")
    selmask(e, W0 + 4, V_T, rows_mask([0], 24))
    e(f"s_add_u32 s{S_A}, s{S_ROWN}, {R2_REG['P']*RG}")
    e.vm(f"buffer_store_dwordx4 {vr(W0,4)}, v{W0+4}, s[{SRD_WS}:{SRD_WS+3}], s{S_A} offen sc1", "rstp")

def emit_resets(e, f):
    e(f"v_mov_b32 v{W0}, -1"); e(f"v_mov_b32 v{W0+1}, -1"); e(f"v_mov_b32 v{W0+2}, -1"); e(f"v_mov_b32 v{W0+3}, -1")
    def reset(vo, sreg, const):
        e(f"s_add_u32 s{S_A}, s{sreg}, {const}")
        e.vm(f"buffer_store_dwordx4 {vr(W0,4)}, v{vo}, s[{SRD_WS}:{SRD_WS+3}], s{S_A} offen {f}", "rst")
    e(f"v_and_b32 v{V_T}, 31, v{V_LANE}"); e(f"v_lshlrev_b32 v{V_T}, 4, v{V_T}")
    e(f"v_lshrrev_b32 v{V_T+1}, 5, v{V_LANE}"); e(f"v_lshl_add_u32 v{V_T}, v{V_T+1}, 9, v{V_T}")
    liv = {0: [0], 1: [0, 1], 2: [1], 'P': [0]}
    skip = e.newlabel("norstg")
    e(f"s_cmp_lg_u32 s{S_HQ}, 0"); e(f"s_cbranch_scc1 {skip}")
    for inst in (0, 1, 2):
        selmask(e, W0 + 4, V_T, rows_mask(liv[inst], 20))
        for k in range(2):
            e(f"s_add_u32 s{S_A}, s{S_GOWN}, {G_OFF(inst,k)}")
            e(f"buffer_store_dwordx4 {vr(W0,4)}, v{W0+4}, s[{SRD_WS}:{SRD_WS+3}], s{S_A} offen sc1")
    e.label(skip)
    for r in [7, 8] + list(R1_REG.values()): reset(V_R, S_ROWN, r * RG)
    for inst in (0, 1, 2):
        selmask(e, W0 + 4, V_T, rows_mask(liv[inst], 25))
        reset(W0 + 4, S_ROWN, R2_REG[inst] * RG)
        selmask(e, W0 + 4, V_T, rows_mask(liv[inst], 20))
        for k in range(2):
            if inst == 2 and k == 1 and o_direct[0]:
                e(f"s_add_u32 s{S_A}, s{S_LOWN}, {L_REG(inst, k) * RG}")
                e.vm(f"buffer_store_dwordx4 {vr(W0,4)}, v{W0+4}, s[{SRD_WS}:{SRD_WS+3}], s{S_A} offen sc1", "rst")
            else: reset(W0 + 4, S_LOWN, L_REG(inst, k) * RG)

def token_store(e, base, second):
    e(f"s_lshl_b32 s{S_A}, s2, 7"); e(f"s_add_u32 s{S_A}, s{S_A}, {base}")
    e(f"v_mov_b32 v{W0+40}, s{S_TAG}"); e(f"v_mov_b32 v{W0+41}, {second}"); e(f"v_mov_b32 v{V_T}, 0")
    e("s_mov_b64 exec, 1")
    e.vm(f"buffer_store_dwordx2 {vr(W0+40,2)}, v{V_T}, s[{SRD_WS}:{SRD_WS+3}], s{S_A} offen sc1", "tok")
    e("s_mov_b64 exec, -1")

def token_gather(e, o, base, vo, mask, sleep=0, dst=W0, between=None):
    lab = e.newlabel("tok"); chk = e.newlabel("tokchk")
    if between:
        e(f"s_mov_b32 s{S_B}, {base}")
        set_exec(e, mask)
        e(f"buffer_load_dwordx2 {vr(dst,2)}, v{vo}, s[{SRD_WS}:{SRD_WS+3}], s{S_B} offen sc1")
        e("s_mov_b64 exec, -1")
        between()
        e(f"s_mov_b32 s{S_A}, {base}")
        set_exec(e, mask)
        e(f"s_mov_b32 s{S_CNT}, {o.poll_limit}")
        e(f"s_branch {chk}")
    else:
        e(f"s_mov_b32 s{S_A}, {base}")
        set_exec(e, mask)
        e(f"s_mov_b32 s{S_CNT}, {o.poll_limit}")
    e.label(lab)
    e(f"buffer_load_dwordx2 {vr(dst,2)}, v{vo}, s[{SRD_WS}:{SRD_WS+3}], s{S_A} offen sc1")
    e(f"s_sub_u32 s{S_CNT}, s{S_CNT}, 1"); e(f"s_cbranch_scc1 L_abort")
    e.label(chk)
    e("s_waitcnt vmcnt(0)")
    e(f"v_cmp_ne_u32 vcc, s{S_TAG}, v{dst}")
    if sleep:
        ok = e.newlabel("tokok"); e(f"s_cbranch_vccz {ok}"); e(f"s_sleep {sleep}"); e(f"s_branch {lab}"); e.label(ok)
    else: e(f"s_cbranch_vccnz {lab}")
    e.vmq = []

def tr_block(e, items):
    i, g, r, c, t = W0, W0 + 1, W0 + 2, W0 + 3, W0 + 4
    a32, a16 = W0 + 6, W0 + 7
    def tr_setup():
        e(f"v_and_b32 v{i}, 15, v{V_LANE}"); e(f"v_lshrrev_b32 v{g}, 4, v{V_LANE}")
        e(f"v_lshrrev_b32 v{r}, 2, v{i}"); e(f"v_and_b32 v{c}, 3, v{i}")
    def trbase(dst, stride, rows_per_g, base):
        e(f"v_mul_u32_u24 v{t}, {rows_per_g}, v{g}"); e(f"v_add_u32 v{t}, v{t}, v{r}")
        e(f"v_mul_u32_u24 v{t}, {stride}, v{t}"); e(f"v_lshl_add_u32 v{dst}, v{c}, 3, v{t}")
        if base: e(f"v_add_u32 v{dst}, {base}, v{dst}")
    def tr(frag, addr, off, k16, stride):
        f, lo = frag
        e.lg(f"ds_read_b64_tr_b16 {f}[{lo}:{lo+1}], v{addr} offset:{off}", "tr")
        if not k16: e.lg(f"ds_read_b64_tr_b16 {f}[{lo+2}:{lo+3}], v{addr} offset:{off+4*stride}", "tr")
        if len(e.lgq) >= 12: e.lg_wait_n(4)
    if True:
        tr_setup()
        for frag, nt, stride, base, ks in items:
            trbase(a32, stride, 8, base); trbase(a16, stride, 4, base)
            nk = len(ks)
            for tt in range(nt):
                for s, k0 in enumerate(ks):
                    k16 = (frag is not wo_frag) and s == nk - 1
                    tr(frag(tt, s), a16 if k16 else a32, k0 * stride + 32 * tt, k16, stride)
        e.lg_all()

def prologue_weights(e, o, st):
    abort = "L_abort"
    e(f"v_mov_b32 v{W0+2}, 0x3f803f80"); e(f"v_mov_b32 v{W0+3}, 0x3f803f80")
    e(f"v_lshlrev_b32 v{W0+4}, 3, v{V_LANE}"); e(f"v_add_u32 v{W0+4}, {ACT_X+384}, v{W0+4}")
    set_exec(e, mask64(range(24)))
    e.lg(f"ds_write_b64 v{W0+4}, {vr(W0+2,2)}", "ones")
    e("s_mov_b64 exec, -1")
    e.lg(f"ds_write_b64 v{V_WX}, {vr(V_XR,2)}", "wx")
    e(f"v_lshlrev_b32 v{V_XR+2}, 16, v{V_XR+1}"); e(f"v_and_b32 v{V_XR+3}, 0xffff0000, v{V_XR+1}")
    e(f"v_and_b32 v{V_XR+1}, 0xffff0000, v{V_XR}"); e(f"v_lshlrev_b32 v{V_XR}, 16, v{V_XR}")
    e.lg_all()
    lab = e.newlabel("wflag")
    e(f"v_mov_b32 v{V_T+1}, {WFLAG}")
    e(f"s_mov_b32 s{S_CNT}, {o.poll_limit*8}")
    e.label(lab)
    e(f"ds_read_b96 {vr(W0,3)}, v{V_T+1}")
    e(f"s_sub_u32 s{S_CNT}, s{S_CNT}, 1"); e(f"s_cbranch_scc1 {abort}")
    e("s_waitcnt lgkmcnt(0)")
    e(f"v_and_b32 v{W0}, v{W0}, v{W0+1}"); e(f"v_and_b32 v{W0}, v{W0}, v{W0+2}")
    e(f"v_cmp_ne_u32 vcc, 1, v{W0}")
    e(f"s_cbranch_vccnz {lab}")
    st("p.wland")
    tr_block(e, [(wq_frag, 12, 384, ST_WQ, (0, 32, 64)), (wg_frag, 3, 96, ST_WG, (0, 32, 64)), (wu_frag, 3, 96, ST_WU, (0, 32, 64))])
    st("p.weights")

def chain_wave(e, o, st, local):
    fl = "" if local else "sc1"
    abort = "L_abort"
    R = NS(vlds=V_L16, voffK=1, voffX=2, voffY=3, sel=V_SEL, qA=32, D=44, sc=56, tmp=57, vpw=62, acc=32, A=44, pp=52, vpp=63, vm=60, vl=61, vlt=59)
    instance_offsets(e, [0, 1], pub_live=[2], q_live=[0, 1, 2])
    stage_Q(e, fl, R3_REG['P'])
    stage_GU(e, fl, R2_REG['P'] * RG - 1024, with_stats=False)
    st("p.pub")
    if "norst" in o.exp:
        pass
    else: emit_resets(e, fl)
    st("reset")
    tr_block(e, [(wo_frag, 5, 160, ST_WO, (0, 32, 64, 96, 128, 160)), (wd_frag, 5, 160, ST_WD, (0, 32))])
    GA = CW_K
    e(f"v_and_b32 v{V_T}, 31, v{V_LANE}"); e(f"v_lshlrev_b32 v{V_T}, 4, v{V_T}")
    selmask(e, W0 + 40, V_T, rows_mask([0, 1], 24))
    sr = list(range(10, 18))
    for k, reg in enumerate((4, 5, 6, R2_REG['P'])):
        e(f"s_add_u32 s{sr[2*k]}, s{S_RGRP}, {reg*RG}"); e(f"s_add_u32 s{sr[2*k+1]}, s{sr[2*k]}, 4096")
    loads = []
    for row in range(3):
        loads += [(GA + 32 * row + 4 * k, V_R, sr[2*row + (k >= 4)], (k % 4) * 1024) for k in range(8)]
    loads += [(W0 + 32, V_ML, sr[0], 0), (W0 + 36, V_ML, sr[2], 0)]
    loads += [(W0 + 4 * k, W0 + 40, sr[6 + (k >= 4)], (k % 4) * 1024) for k in range(8)]
    e(f"v_subrev_u32 v{W0+41}, {768-368}, v{V_ML}")
    light = [(W0 + 4 * k, V_ML, sr[2*k], 0) for k in range(3)] + [(W0 + 12, W0 + 41, sr[6], 0)]
    if o.light: poll(e, o, light, abort, sleep=o.p_sleep)
    if "nogath" not in o.exp: poll(e, o, loads, abort, sleep=o.p_sleep)
    else: e.vm_all(force=True)
    token_store(e, TOK2, 0)
    st("p.gather")
    if "cwC" in o.exp:
        e.vm_all(force=True); e("s_barrier"); e("s_branch L_done")
    sum_loads(e, 8, GA + 64)
    for rr in range(4): e(f"v_mov_b32 v{V_CSQ+rr}, v{GA+64+rr}")
    sum_loads(e, 8, W0)
    for rr in range(4): e(f"v_mov_b32 v{V_CSG+rr}, v{W0+rr}")
    for row in range(2):
        q_consume(e, GA + 32 * row, W0 + 32 + 4 * row, row)
    st("q1")
    def load_tiles(base):
        for T in range(CW_TILES):
            kv_soff(e, base, T)
            for s in range(3): ld_k(e, R, vr(CW_K + 12 * T + 4 * s, 4), s, ('K', T, s), o)
        for T in range(CW_TILES):
            kv_soff(e, base, T)
            for w in range(3): ld_v(e, R, vr(CW_V + 12 * T + 4 * w, 4), w, ('V', T, w), o)
    load_tiles(S_KV0)
    instance_offsets(e, [0])
    e.lg_all()
    st("pro_done")
    e("s_barrier")
    if "stopA" in o.exp: e("s_branch L_done")
    Kf = lambda T, s: vr(CW_K + 12 * T + 4 * s, 4)
    Vf = lambda T, w: vr(CW_V + 12 * T + 4 * w, 4)
    def kw(T):
        if T >= 0: e.vm_wait(('K', T, 2))
    def vw(T, w): e.vm_wait(('V', T, w))
    attn_pass(e, R, CW_TILES, 0, Kf, Vf, S_PB, 0, k_wait=kw, v_wait=vw)
    L = V_LANE; t, u = W0 + 2, W0 + 3
    e(f"v_and_b32 v{t}, 7, v{L}"); e(f"v_lshlrev_b32 v{u}, 3, v{t}")
    e(f"s_lshl_b32 s{S_T0}, s{S_HQ}, 6"); e(f"s_add_u32 s{S_T0}, s{S_T0}, s{S_XC}"); e(f"v_add_u32 v{W0+4}, s{S_T0}, v{u}")
    e(f"v_lshlrev_b32 v{u}, 6, v{t}")
    e(f"s_lshl_b32 s{S_T1}, s{S_J}, 3"); e(f"s_add_u32 s{S_T0}, s{S_T1}, s{S_XC}"); e(f"v_add_u32 v{W0+5}, s{S_T0}, v{u}")
    e(f"v_add_u32 v{W0+6}, s{S_T1}, v{t}")
    e("s_mov_b32 vcc_lo, 0x00000f00"); e("s_mov_b32 vcc_hi, 0"); e(f"v_cndmask_b32 v{W0+4}, v{W0+4}, v{W0+5}, vcc")
    e("s_mov_b32 vcc_lo, 0x00ff0000"); e(f"v_cndmask_b32 v{W0+4}, v{W0+4}, v{W0+6}, vcc")
    e(f"v_bfe_u32 v{u}, v{L}, 3, 2"); e(f"v_lshlrev_b32 v{u}, 6, v{u}"); e(f"v_add_u32 v{W0+6}, v{W0+6}, v{u}")
    e("s_mov_b32 vcc_lo, 0"); e("s_mov_b32 vcc_hi, -1"); e(f"v_cndmask_b32 v{W0+4}, v{W0+4}, v{W0+6}, vcc")
    e(f"v_lshlrev_b32 v{W0+4}, 7, v{W0+4}")
    token_gather(e, o, TOK2, W0 + 4, 0xffffffff00ff0fff if o.direct else 0x00ff0fff, sleep=o.t_sleep)
    e("s_mov_b64 exec, -1")
    st("p.tok2g")
    e("s_barrier")
    st("bar2")
    parts = [PART + 1536 * w for w in range(4)]
    combine_publish(e, fl, parts, ML, R1_REG[0])
    st("c0.cmb")
    sv = o.preR; o.preR = sv + o.preR0
    hop_R1(e, o, R1_REG[0], 0, abort)
    o.preR = sv
    chain(e, o, fl, 0, [0], abort, st)
    st("chain0")
    e("s_barrier")
    attn_pass(e, R, CW_TILES, 0, Kf, Vf, S_PB, 32)
    e("s_barrier")
    parts_early = [PART] + [LDS_SW * s + 48 * 1024 for s in range(3)]
    combine_publish(e, fl, parts_early, ML + 32, R1_REG['1a'])
    load_tiles(S_KV1)
    instance_offsets(e, [0, 1])
    hop_R1(e, o, R1_REG['1a'], 0, abort)
    e.vmq = []
    attn_pass(e, R, CW_TILES, 1, Kf, Vf, S_PB, 0)
    e("s_barrier")
    st("bar6")
    combine_publish(e, fl, parts, ML, R1_REG['1b'])
    st("c1.cmb")
    hop_R1(e, o, R1_REG['1b'], 1, abort)
    chain(e, o, fl, 1, [0, 1], abort, st)
    st("chain1")
    e("s_barrier")
    attn_pass(e, R, CW_TILES, 1, Kf, Vf, S_PB, 0)
    instance_offsets(e, [1])
    e("s_barrier")
    st("bar8")
    combine_publish(e, fl, parts, ML, R1_REG[2])
    st("c2.cmb")
    hop_R1(e, o, R1_REG[2], 1, abort)
    chain(e, o, fl, 2, [1], abort, st)
    st("chain2")
    e("s_branch L_done")

def chain_wave_setup(e, o, st):
    L = V_LANE
    if o.prio: e(f"s_setprio {o.prio}")
    lane_id(e, L)
    e(f"v_mov_b32 v{W0}, 0"); e(f"v_mov_b32 v{W0+1}, {WFLAG}"); e(f"v_lshl_add_u32 v{W0+1}, v{L}, 2, v{W0+1}")
    e("s_mov_b64 exec, 15")
    e.lg(f"ds_write_b32 v{W0+1}, v{W0}", "z")
    e("s_mov_b64 exec, -1")
    e(f"v_mov_b32 v{V_OOB}, 0x{OOB:08x}")
    e(f"s_lshl_b32 s{S_RGRP}, s{S_H}, 13"); e(f"s_lshl_b32 s{S_T0}, s{S_J}, 10"); e(f"s_add_u32 s{S_ROWN}, s{S_RGRP}, s{S_T0}")
    e(f"s_lshl_b32 s{S_LGRP}, s{S_XC}, 3"); e(f"s_add_u32 s{S_LGRP}, s{S_LGRP}, s{S_J}"); e(f"s_lshl_b32 s{S_LGRP}, s{S_LGRP}, 12")
    e(f"s_lshl_b32 s{S_T0}, s{S_HQ}, 10"); e(f"s_add_u32 s{S_LOWN}, s{S_LGRP}, s{S_T0}")
    e(f"s_lshl_b32 s{S_GGRP}, s{S_J}, 13"); e(f"s_lshl_b32 s{S_T0}, s{S_XC}, 10"); e(f"s_add_u32 s{S_GOWN}, s{S_GGRP}, s{S_T0}")
    e.lg_all()
    e("s_barrier")
    late_common(e)
    if "nocw" in o.exp:
        e("s_barrier")
        st("bar1x")
        e("s_branch L_done")
    e(f"v_lshlrev_b32 v{V_L16}, 4, v{L}")
    selmask(e, V_R, V_L16, mask64(range(49)))
    e(f"s_load_dword s{S_TAG}, s[{S_WS}:{S_WS+1}], {EPOCH_OFF}")
    emit_resets_P(e)
    e(f"s_getreg_b32 s{S_T2}, hwreg(HW_REG_XCC_ID)"); e(f"s_and_b32 s{S_T2}, s{S_T2}, 0xf")
    make_srd(e, SRD_T, S_X, 2560)
    e(f"v_and_b32 v{V_T}, 31, v{L}"); e(f"v_lshlrev_b32 v{V_T}, 3, v{V_T}")
    e(f"v_lshrrev_b32 v{V_T+1}, 5, v{L}"); e(f"v_mul_u32_u24 v{V_T+1}, 1280, v{V_T+1}"); e(f"v_add_u32 v{V_T}, v{V_T}, v{V_T+1}")
    selmask(e, V_T, V_T, rows_mask([0, 1], 20))
    e(f"s_mul_i32 s{S_T0}, s{S_J}, 160")
    e.vm(f"buffer_load_dwordx2 {vr(V_XR,2)}, v{V_T}, s[{SRD_T}:{SRD_T+3}], s{S_T0} offen", "x")
    e(f"s_add_u32 s{S_KV1}, s{S_KV0}, {BATCH_STRIDE}")
    R = NS(voffK=1, voffX=2, voffY=3, sel=V_SEL)
    attn_selectors(e, R, L, W0)
    n, g, x = W0, W0 + 1, W0 + 2
    e(f"v_mov_b32 v{W0+3}, v{V_L16}"); selmask(e, V_L16, W0 + 3, mask64(range(48)), other=0)
    e(f"v_and_b32 v{n}, 15, v{L}"); e(f"v_lshrrev_b32 v{g}, 4, v{L}")
    e(f"v_min_u32 v{x}, 1, v{n}")
    e(f"v_mul_u32_u24 v{V_BO}, 384, v{x}"); e(f"v_lshl_add_u32 v{V_BO}, v{g}, 4, v{V_BO}"); e(f"v_add_u32 v{V_BO}, {ACT_O}, v{V_BO}")
    e(f"v_lshlrev_b32 v{V_BH}, 7, v{x}"); e(f"v_lshl_add_u32 v{V_BH8}, v{g}, 3, v{V_BH}"); e(f"v_add_u32 v{V_BH8}, {ACT_H+64}, v{V_BH8}")
    e(f"v_lshl_add_u32 v{V_BH}, v{g}, 4, v{V_BH}"); e(f"v_add_u32 v{V_BH}, {ACT_H}, v{V_BH}")
    e(f"v_min_u32 v{x}, 2, v{n}")
    e(f"v_mul_u32_u24 v{V_BX}, 192, v{x}"); e(f"v_lshl_add_u32 v{V_BX8}, v{g}, 3, v{V_BX}"); e(f"v_add_u32 v{V_BX8}, {ACT_X+128}, v{V_BX8}")
    e(f"v_lshl_add_u32 v{V_BX}, v{g}, 4, v{V_BX}"); e(f"v_add_u32 v{V_BX}, {ACT_X}, v{V_BX}")
    e(f"v_subrev_u32 v{x}, 1, v{n}"); e(f"v_min_u32 v{x}, 2, v{x}")
    e(f"v_mul_u32_u24 v{V_AS}, 192, v{x}"); e(f"v_lshl_add_u32 v{V_AS8}, v{g}, 3, v{V_AS}"); e(f"v_add_u32 v{V_AS8}, {ACT_X+128}, v{V_AS8}")
    e(f"v_lshl_add_u32 v{V_AS}, v{g}, 4, v{V_AS}"); e(f"v_add_u32 v{V_AS}, {ACT_X}, v{V_AS}")
    e(f"v_lshlrev_b32 v{x}, 3, v{L}"); e(f"v_add_u32 v{x}, {SB}, v{x}"); selmask(e, V_W8, x, mask64(range(48)), other=SB+2560)
    e(f"v_and_b32 v{n}, 31, v{L}"); e(f"v_lshrrev_b32 v{g}, 5, v{L}")
    e(f"v_mul_u32_u24 v{x}, 192, v{g}"); e(f"v_lshl_add_u32 v{x}, v{n}, 3, v{x}"); e(f"v_add_u32 v{x}, {ACT_X}, v{x}")
    selmask(e, V_WX, x, rows_mask([0, 1], 20), other=DUMMY)
    e(f"v_lshlrev_b32 v{x}, 7, v{g}"); e(f"v_lshl_add_u32 v{x}, v{n}, 2, v{x}"); e(f"v_add_u32 v{x}, {ACT_H}, v{x}")
    selmask(e, V_WH, x, rows_mask([0, 1], 24), other=DUMMY)
    e(f"v_and_b32 v{x}, 7, v{L}"); e(f"v_lshlrev_b32 v{x}, 10, v{x}"); e(f"v_add_u32 v{V_ML}, 768, v{x}")
    m = mask64([16 * a + 1 for a in range(4)])
    e(f"s_mov_b32 s{S_N1}, 0x{m & 0xffffffff:08x}"); e(f"s_mov_b32 s{S_N1+1}, 0x{m >> 32:08x}")
    e("s_waitcnt lgkmcnt(0)")
    e(f"s_add_u32 s{S_TAG}, s{S_TAG}, 1")
    e.vm_all(force=True)
    token_store(e, TOK1, f"s{S_T2}")
    st("p.tok1")
    TO, TD = W0 + 38, W0 + 36
    e(f"v_lshlrev_b32 v{TO}, 10, v{L}"); e(f"s_lshl_b32 s{S_T0}, s{S_XC}, 7"); e(f"v_add_u32 v{TO}, s{S_T0}, v{TO}")
    token_gather(e, o, TOK1, TO, 0xffffffff, sleep=o.t_sleep, dst=TD, between=lambda: prologue_weights(e, o, st))
    e(f"v_cmp_ne_u32 vcc, s{S_T2}, v{TD+1}")
    e("s_mov_b64 exec, -1")
    st("p.mode")
    e("s_nop 3")
    e("s_cmp_lg_u32 vcc_lo, 0")

def late_common(e):
    make_srd(e, SRD_V, S_V, KV_BYTES); make_srd(e, SRD_WS, S_WS, WS_REC)
    e(f"s_mov_b32 s{S_C}, {lit(CSCALE)}")
    e(f"s_mov_b32 s{S_HI32}, 0"); e(f"s_mov_b32 s{S_HI32+1}, -1")
    e(f"s_mul_i32 s{S_PB}, s{S_WAVE}, 1536"); e(f"s_add_u32 s{S_PB}, s{S_PB}, {PART}")
    e(f"s_lshl_b32 s{S_MLB}, s{S_WAVE}, 3"); e(f"s_add_u32 s{S_MLB}, s{S_MLB}, {ML}")

def generate(o):
    Stamps.select = o.stampset.split(",") if o.stampset else None
    o_direct[0] = o.direct
    e = Emit()
    e("s_cmp_ge_u32 s2, 256"); e("s_cbranch_scc1 L_done")
    e("s_load_dwordx16 s[4:19], s[0:1], 0"); e("s_load_dwordx8 s[20:27], s[0:1], 64")
    e("v_lshrrev_b32 v1, 6, v0")
    e(f"s_and_b32 s{S_XC}, s2, 7"); e(f"s_lshr_b32 s{S_HQ}, s2, 6")
    e(f"v_readfirstlane_b32 s{S_WAVE}, v1")
    e(f"s_lshr_b32 s{S_J}, s2, 3"); e(f"s_and_b32 s{S_J}, s{S_J}, 7")
    e(f"s_lshl_b32 s{S_H}, s{S_XC}, 2"); e(f"s_add_u32 s{S_H}, s{S_H}, s{S_HQ}")
    e(f"s_mul_i32 s{S_KV0}, s{S_H}, {HEAD_STRIDE}"); e(f"s_mul_i32 s{S_T0}, s{S_J}, {CHUNK_STRIDE}"); e(f"s_add_u32 s{S_KV0}, s{S_KV0}, s{S_T0}")
    e(f"s_add_u32 s{S_T0}, s{S_WAVE}, 3"); e(f"s_and_b32 s{S_T0}, s{S_T0}, 3")
    e(f"s_mul_i32 s{S_T1}, s{S_T0}, {SW_TILES*TILE_B}"); e(f"s_add_u32 s{S_KV0}, s{S_KV0}, s{S_T1}")
    lane_id(e, 8)
    attn_load_offsets(e, NS(voffK=1, voffX=2, voffY=3), 8, 10)
    e("s_waitcnt lgkmcnt(0)")
    make_srd(e, SRD_K, S_K, KV_BYTES)
    e(f"s_cmp_eq_u32 s{S_WAVE}, 0"); e("s_cbranch_scc1 L_chain")
    st_s = Stamps(e, o.stamps); st_s("start")
    stream_wave(e, o, st_s)
    e.label("L_chain")
    e.vmq = []; e.lgq = []
    st_c = Stamps(e, o.stamps); st_c("start")
    chain_wave_setup(e, o, st_c)
    names = {}
    if o.force_global: e("s_branch L_global")
    else: e("s_cbranch_scc1 L_global")
    base_names = list(st_c.names)
    sv = (list(e.vmq), list(e.lgq))
    chain_wave(e, o, st_c, True)
    names['cw'] = list(st_c.names); names['sw'] = list(st_s.names)
    e.label("L_global")
    e.vmq, e.lgq = sv
    st_g = Stamps(e, o.stamps); st_g.names = list(base_names)
    chain_wave(e, o, st_g, False)
    e.label("L_abort")
    e.label("L_done")
    if o.stamps:
        e("s_cmp_ge_u32 s2, 256"); e("s_cbranch_scc1 L_exit")
        fl = Stamps(e, True); fl.names = names['cw']; fl.flush()
        e.label("L_exit")
    e("s_endpgm")
    return e, names

HEAD = """; Kernarg: A_x, K, V, wq, wo, B_x, W_gate, W_up, W_down, out, debug, ws (pointers)
; @launch grid=(256,1,1) block=(256,1,1) lds=%d
.amdgcn_target "amdgcn-amd-amdhsa--gfx950"
.text
.globl %s
.p2align 8
.type %s,@function
%s:
"""
FOOT = """
.section .rodata,"a"
.p2align 6
.amdhsa_kernel %s
  .amdhsa_next_free_vgpr 512
  .amdhsa_next_free_sgpr 102
  .amdhsa_accum_offset 256
  .amdhsa_group_segment_fixed_size 0
  .amdhsa_kernarg_size 96
  .amdhsa_user_sgpr_count 2
  .amdhsa_user_sgpr_kernarg_segment_ptr 1
  .amdhsa_system_sgpr_workgroup_id_x 1
  .amdhsa_float_denorm_mode_32 3
.end_amdhsa_kernel
"""
def build_text(o):
    e, names = generate(o)
    return HEAD % (LDS_TOTAL, NAME, NAME, NAME) + e.text() + "\n" + FOOT % NAME, names, e

if __name__ == "__main__":
    o = Opt()
    for a in sys.argv[2:]:
        k, v = a.split("=")
        cur = getattr(o, k)
        setattr(o, k, (v not in ("0", "False")) if isinstance(cur, bool) else type(cur)(v))
    txt, names, e = build_text(o)
    open(sys.argv[1], "w").write(txt)
    print("instructions:", e.ninst, "nops:", e.nops, names)
```

```python
import sys, struct
from types import SimpleNamespace as NS
from emit import Emit, vr

NAME = "interleave_layers__mha_block_cached__glu_gated_reglu__decode_kernel"

class Opt:
    NA = 24
    NA_BAR = 118
    NB = 8
    NB1 = 8
    go_at = "G1"
    NC = 56
    NA0 = 24
    NA0N = 0
    light = False
    pf = 0
    pf_all = False
    NF = 12
    NW = 24
    stamps = False
    poll_limit = 400000
    kvflags = "nt"
    wflags = "nt"
    stampset = ""
    p_sleep = 8
    mb_sleep = 0
    exp = ""
    t_sleep = 0
    early = False
    wb = 0
    prio = 0
    late_rst = False
    preGn = 0
    direct = True
    preF = 0
    look = 2
    NAe = 14
    NCe = 24
    preR0 = 0
    preL0 = 0
    preG0 = 0
    preR = 0
    preL = 0
    preG = 6
    flag_sleep = 0
    force_global = False

KV_BYTES = 100663296
BATCH_STRIDE = 50331648
HEAD_STRIDE = 1572864
CHUNK_STRIDE = 196608
TILE_B = 3072
SW_TILES, CW_TILES = 20, 4
OOB = 0x7fff0000

LDS_SW = 51200
SB = 153600
PART = SB
ML = SB + 6144
QARR = SB + 6208
ACT_O = SB + 6976
ACT_X = SB + 7744
ACT_H = SB + 8320
DUMMY = SB + 8576
WFLAG = SB + 10208
LDS_TOTAL = 163840
ST_WQ, ST_WO, ST_WG, ST_WU, ST_WD = 0, 30720, 61440, 69120, 76800

RG = 262144
R1_REG = {0: 0, '1a': 1, '1b': 2, 2: 3}
R3_REG = {'P': 4, 0: 7, 1: 8}
R2_REG = {'P': 9, 0: 10, 1: 11, 2: 12}
L_REG = lambda inst, k: 13 + 2 * inst + k
G_OFF = lambda inst, k: 19 * RG + (2 * inst + k) * 65536
STAMP_OFF = 22 * RG
WS_REC = 24 * RG

CSCALE = (192 ** -0.5) * 1.4426950408889634
EPS = 1e-5
def f2u(x): return struct.unpack("<I", struct.pack("<f", x))[0]
def lit(x): return "0x%08x" % f2u(x)
def mask64(lanes):
    m = 0
    for l in lanes: m |= 1 << l
    return m
def set_exec(e, m):
    if m == (1 << 64) - 1: e("s_mov_b64 exec, -1"); return
    e(f"s_mov_b32 exec_lo, 0x{m & 0xffffffff:08x}")
    e(f"s_mov_b32 exec_hi, 0x{m >> 32:08x}")

S_X, S_K, S_V, S_WQ, S_WO, S_BX, S_WG, S_WU, S_WD, S_OUT, S_DBG, S_WS = 4, 6, 8, 10, 12, 14, 16, 18, 20, 22, 24, 26
S_XC, S_HQ, S_J, S_H = 28, 29, 30, 31
SRD_K, SRD_V = 32, 36
S_KV0, S_KV1, S_SOFF, S_LDSB = 40, 41, 42, 43
SRD_T = 44
SRD_WS = 48
SRD_DBG = 52
S_C = 56
S_ROWN, S_RGRP, S_LOWN, S_LGRP, S_GOWN, S_GGRP = 57, 58, 59, 60, 61, 62
S_A, S_B, S_CNT, S_T0, S_T1, S_T2 = 63, 64, 65, 66, 67, 68
S_PB = 69
S_HI32 = 70
S_MLB = 72
S_GA, S_GB = 100, 101
S_WAVE = 3
S_STAMP = 76

def make_srd(e, srd, ptr, nbytes):
    e(f"s_mov_b32 s{srd}, s{ptr}")
    e(f"s_and_b32 s{srd+1}, s{ptr+1}, 0xffff")
    e(f"s_mov_b32 s{srd+2}, {nbytes}")
    e(f"s_mov_b32 s{srd+3}, 0x20000")

class Stamps:
    select = None
    def __init__(self, e, on): self.e, self.on, self.names = e, on, []
    def __call__(self, name):
        if not self.on: return
        if Stamps.select is not None and not any(name.startswith(p) for p in Stamps.select): return
        if Stamps.select is None and "." in name: return
        n = len(self.names); assert n < 12, "too many stamps"
        self.e(f"s_memrealtime s[{S_STAMP+2*n}:{S_STAMP+2*n+1}]")
        self.e.lg_all(force=True)
        self.names.append(name)
    def rounds(self, name):
        if not self.on: return
        if Stamps.select is None or not any(name.startswith(p) for p in Stamps.select): return
        n = len(self.names); assert n < 12
        self.e(f"s_mov_b32 s{S_STAMP+2*n}, s{S_CNT}"); self.e(f"s_mov_b32 s{S_STAMP+2*n+1}, 0")
        self.names.append(name)
    def flush(self):
        if not self.on: return
        e = self.e
        e("s_mov_b64 exec, 1")
        e(f"s_lshl_b32 s{S_T0}, s2, 2"); e(f"s_add_u32 s{S_T0}, s{S_T0}, s{S_WAVE}"); e(f"s_lshl_b32 s{S_T0}, s{S_T0}, 7")
        e(f"s_add_u32 s{S_T0}, s{S_T0}, {STAMP_OFF}")
        e("v_mov_b32 v0, 0")
        for i in range(len(self.names)):
            e(f"v_mov_b32 v2, s{S_STAMP+2*i}"); e(f"v_mov_b32 v3, s{S_STAMP+2*i+1}")
            e(f"buffer_store_dwordx2 v[2:3], v0, s[{SRD_WS}:{SRD_WS+3}], s{S_T0} offen offset:{8*i}")
            e("s_waitcnt vmcnt(0)")

def lane_id(e, dst):
    e(f"v_mbcnt_lo_u32_b32 {vr(dst)}, -1, 0")
    e(f"v_mbcnt_hi_u32_b32 {vr(dst)}, -1, {vr(dst)}")

def attn_load_offsets(e, R, lane, t):
    i, g, u, w = t, t + 1, t + 2, t + 3
    e(f"v_and_b32 {vr(i)}, 15, {vr(lane)}")
    e(f"v_lshrrev_b32 {vr(g)}, 4, {vr(lane)}")
    e(f"v_and_b32 {vr(u)}, 7, {vr(i)}")
    e(f"v_lshrrev_b32 {vr(w)}, 3, {vr(i)}")
    e(f"v_mul_u32_u24 {vr(R.voffK)}, 384, {vr(u)}")
    e(f"v_lshl_add_u32 {vr(R.voffK)}, {vr(g)}, 4, {vr(R.voffK)}")
    e(f"v_lshl_add_u32 {vr(R.voffK)}, {vr(w)}, 6, {vr(R.voffK)}")
    e(f"v_mul_u32_u24 {vr(R.voffX)}, 768, {vr(g)}")
    e(f"v_mul_u32_u24 {vr(w)}, 384, {vr(w)}")
    e(f"v_add_u32 {vr(R.voffY)}, {vr(R.voffX)}, {vr(w)}")
    e(f"v_lshl_add_u32 {vr(R.voffY)}, {vr(u)}, 4, {vr(R.voffY)}")
    e(f"v_add_u32 {vr(R.voffY)}, 256, {vr(R.voffY)}")
    e(f"v_lshl_add_u32 {vr(R.voffX)}, {vr(i)}, 4, {vr(R.voffX)}")

def attn_selectors(e, R, lane, t):
    i, u, lo, hi = t, t + 1, t + 2, t + 3
    e(f"v_and_b32 {vr(i)}, 15, {vr(lane)}")
    e(f"v_lshrrev_b32 {vr(u)}, 3, {vr(i)}")
    e(f"v_mul_u32_u24 {vr(u)}, 0x202, {vr(u)}")
    e(f"v_add_u32 {vr(u)}, 0x100, {vr(u)}")
    e(f"v_or_b32 {vr(lo)}, 0x0c0c0000, {vr(u)}")
    e(f"v_lshlrev_b32 {vr(hi)}, 16, {vr(u)}")
    e(f"v_or_b32 {vr(hi)}, 0x0c0c, {vr(hi)}")
    e(f"v_and_b32 {vr(u)}, 1, {vr(i)}")
    e(f"v_cmp_eq_u32 vcc, 1, {vr(u)}")
    e(f"v_cndmask_b32 {vr(lo)}, {vr(lo)}, {vr(hi)}, vcc")
    e(f"v_bfe_u32 {vr(u)}, {vr(i)}, 1, 2")
    e(f"v_mov_b32 {vr(hi)}, 0x0c0c0c0c")
    for r in range(4):
        e(f"v_cmp_eq_u32 vcc, {r}, {vr(u)}")
        e(f"v_cndmask_b32 {vr(R.sel+r)}, {vr(hi)}, {vr(lo)}, vcc")

def allreduce_list(reg, tmp, op):
    out = [f"v_{op}_f32_dpp {vr(reg)}, {vr(reg)}, {vr(reg)} row_ror:{k} row_mask:0xf bank_mask:0xf" for k in (8, 4, 2, 1)]
    out += [f"v_mov_b32 {vr(tmp)}, {vr(reg)}", f"v_permlane16_swap_b32 {vr(reg)}, {vr(tmp)}", f"v_{op}_f32 {vr(reg)}, {vr(reg)}, {vr(tmp)}",
            f"v_mov_b32 {vr(tmp)}, {vr(reg)}", f"v_permlane32_swap_b32 {vr(reg)}, {vr(tmp)}", f"v_{op}_f32 {vr(reg)}, {vr(reg)}, {vr(tmp)}"]
    return out

def allreduce(e, reg, tmp, op):
    for k in (8, 4, 2, 1):
        e(f"v_{op}_f32_dpp {vr(reg)}, {vr(reg)}, {vr(reg)} row_ror:{k} row_mask:0xf bank_mask:0xf")
    e(f"v_mov_b32 {vr(tmp)}, {vr(reg)}")
    e(f"v_permlane16_swap_b32 {vr(reg)}, {vr(tmp)}")
    e(f"v_{op}_f32 {vr(reg)}, {vr(reg)}, {vr(tmp)}")
    e(f"v_mov_b32 {vr(tmp)}, {vr(reg)}")
    e(f"v_permlane32_swap_b32 {vr(reg)}, {vr(tmp)}")
    e(f"v_{op}_f32 {vr(reg)}, {vr(reg)}, {vr(tmp)}")

def attn_pre(e, R, ntiles):
    L = R.tmp
    lane_id(e, L)
    e(f"v_and_b32 {vr(L+1)}, 1, {vr(L)}")
    e(f"v_lshrrev_b32 {vr(L+2)}, 4, {vr(L)}")
    e(f"v_lshlrev_b32 {vr(L+2)}, 4, {vr(L+2)}")
    e(f"v_lshl_add_u32 {vr(L+1)}, {vr(L+1)}, 6, {vr(L+2)}")
    e(f"v_add_u32 {vr(L+1)}, {QARR}, {vr(L+1)}")
    e(f"v_add_u32 {vr(R.vpp)}, s{S_PB}, {vr(L+2)}")
    W = R.vpw; t = L + 2
    e(f"v_lshrrev_b32 {vr(t)}, 5, {vr(L)}"); e(f"v_lshlrev_b32 {vr(W)}, 6, {vr(t)}")
    e(f"v_bfe_u32 {vr(t)}, {vr(L)}, 1, 2"); e(f"v_lshl_add_u32 {vr(W)}, {vr(t)}, 4, {vr(W)}")
    e(f"v_bfe_u32 {vr(t)}, {vr(L)}, 3, 2"); e(f"v_lshl_add_u32 {vr(W)}, {vr(t)}, 2, {vr(W)}")
    e(f"v_and_b32 {vr(t)}, 1, {vr(L)}"); e(f"v_lshl_add_u32 {vr(W)}, {vr(t)}, 1, {vr(W)}")
    e(f"v_add_u32 {vr(W)}, s{S_PB}, {vr(W)}")
    nsc = (ntiles + 7) // 8
    for r in range(nsc):
        if (r + 1) * 8 > ntiles: e(f"v_mov_b32 {vr(R.sc+r)}, 0xff800000")

def attn_pass(e, R, ntiles, qrow, Kfrag, Vfrag, part_sreg, ml_off, k_wait=None, qk_hook=None, mid_hook=None,
              v_wait=None, pv_hook=None, stage=None, pre_done=False, mark=None, look=2):
    L = R.tmp
    if not pre_done: attn_pre(e, R, ntiles)
    for s in range(3):
        e.lg(f"ds_read_b128 {vr(R.qA+4*s,4)}, {vr(L+1)} offset:{qrow*384 + 128*s}", ("q", s))
    W = R.vpw
    nsc = (ntiles + 7) // 8
    stg = {}
    def stage_k(T):
        if T >= ntiles: return
        for s in range(3):
            f = Kfrag(T, s)
            if isinstance(f, tuple):
                reg = stage[(3 * T + s) % len(stage)]
                e.lg(f"ds_read_b128 {vr(reg,4)}, {vr(R.vlds)} offset:{f[1]}", ("k", T, s))
                stg[(T, s)] = vr(reg, 4)
    LOOK = look
    if k_wait: k_wait(-1)
    for T in range(min(LOOK, ntiles)): stage_k(T)
    e.lg_wait(("q", 2))
    def dpp_add(T):
        D = R.D + 4 * (T % 3)
        dst = vr(R.sc + (T >> 3)); rm = 1 << ((T >> 1) & 3)
        if T % 2 == 0: e(f"v_add_f32_dpp {dst}, {vr(D+1)}, {vr(D)} row_ror:8 row_mask:0x{rm:x} bank_mask:0x3")
        else:          e(f"v_add_f32_dpp {dst}, {vr(D)}, {vr(D+1)} row_ror:8 row_mask:0x{rm:x} bank_mask:0xc")
    for T in range(ntiles):
        if k_wait: k_wait(T)
        D = vr(R.D + 4 * (T % 3), 4)
        for s in range(3):
            f = Kfrag(T, s)
            if isinstance(f, tuple):
                e.lg_wait(("k", T, s)); f = stg[(T, s)]
            e(f"v_mfma_f32_16x16x32_bf16 {D}, {vr(R.qA+4*s,4)}, {f}, {'0' if s == 0 else D}")
        stage_k(T + LOOK)
        if qk_hook: qk_hook(T)
        if T >= 2: dpp_add(T - 2)
    for T in range(max(0, ntiles - 2), ntiles): dpp_add(T)
    if mark: mark("qk")
    t0, t1 = R.D, R.D + 1
    if nsc == 1: e(f"v_mov_b32 {vr(t0)}, {vr(R.sc)}")
    elif nsc == 2: e(f"v_max_f32 {vr(t0)}, {vr(R.sc)}, {vr(R.sc+1)}")
    else: e(f"v_max3_f32 {vr(t0)}, {vr(R.sc)}, {vr(R.sc+1)}, {vr(R.sc+2)}")
    allreduce(e, t0, t1, "max")
    e(f"v_mul_f32 {vr(R.vm)}, s{S_C}, {vr(t0)}")
    for r in range(nsc): e(f"v_fma_f32 {vr(R.sc+r)}, {vr(R.sc+r)}, s{S_C}, -{vr(R.vm)}")
    for r in range(nsc): e(f"v_exp_f32 {vr(R.sc+r)}, {vr(R.sc+r)}")
    for r in range(nsc): e(f"v_cvt_pk_bf16_f32 {vr(R.D+2+r)}, {vr(R.sc+r)}, {vr(R.sc+r)}")
    for r in range(nsc): e.lg(f"ds_write_b16 {vr(W)}, {vr(R.D+2+r)} offset:{128*r}", ("pw", r))
    nq = (ntiles + 3) // 4
    ppreg = lambda q: R.pp + 4 * (q % 2)
    if nsc == 1: e(f"v_mov_b32 {vr(R.vl)}, {vr(R.sc)}")
    else:
        e(f"v_add_f32 {vr(R.vl)}, {vr(R.sc)}, {vr(R.sc+1)}")
        if nsc == 3: e(f"v_add_f32 {vr(R.vl)}, {vr(R.vl)}, {vr(R.sc+2)}")
    e.lg(f"ds_read_b128 {vr(ppreg(0),4)}, {vr(R.vpp)}", ("pp", 0))
    if nq > 1: e.lg(f"ds_read_b128 {vr(ppreg(1),4)}, {vr(R.vpp)} offset:64", ("pp", 1))
    lred = allreduce_list(R.vl, R.vlt, "add")
    if ntiles < 12:
        for ins in lred: e(ins)
        lred = []
    if mid_hook: mid_hook()
    if mark: mark("sm")
    X1, X2, Y = R.acc, R.acc + 4, R.acc + 8
    def build_A(T):
        q = T >> 2
        e.lg_wait(("pp", q))
        A = R.A + 4 * (T % 2); src = vr(ppreg(q) + (T & 3))
        return [f"v_perm_b32 {vr(A+r)}, {src}, {src}, {vr(R.sel+r)}" for r in range(4)]
    for ins in build_A(0): e(ins)
    for T in range(ntiles):
        A = vr(R.A + 4 * (T % 2), 4)
        nxt = build_A(T + 1) if T + 1 < ntiles else []
        if v_wait: v_wait(T, 0)
        e(f"v_mfma_f32_16x16x32_bf16 {vr(X1,4)}, {A}, {Vfrag(T,0)}, {'0' if T == 0 else vr(X1,4)}")
        for ins in nxt[:2]: e(ins)
        if v_wait: v_wait(T, 1)
        e(f"v_mfma_f32_16x16x32_bf16 {vr(X2,4)}, {A}, {Vfrag(T,1)}, {'0' if T == 0 else vr(X2,4)}")
        for ins in nxt[2:]: e(ins)
        if v_wait: v_wait(T, 2)
        e(f"v_mfma_f32_16x16x32_bf16 {vr(Y,4)}, {A}, {Vfrag(T,2)}, {'0' if T == 0 else vr(Y,4)}")
        if (T & 3) == 2 and (T >> 2) + 2 < nq:
            q2 = (T >> 2) + 2
            e.lg(f"ds_read_b128 {vr(ppreg(q2),4)}, {vr(R.vpp)} offset:{64*q2}", ("pp", q2))
        if lred and T >= 1: e(lred.pop(0))
        if pv_hook: pv_hook(T)
    assert not lred
    if mark: mark("pv")
    p = R.pp
    lane_id(e, p)
    e(f"v_and_b32 {vr(p+1)}, 15, {vr(p)}")
    e(f"v_lshrrev_b32 {vr(p+2)}, 4, {vr(p)}")
    e(f"v_and_b32 {vr(p+3)}, 1, {vr(p+2)}")
    e(f"v_lshrrev_b32 {vr(p+2)}, 1, {vr(p+2)}")
    e(f"v_mul_u32_u24 {vr(p+2)}, 768, {vr(p+2)}")
    e(f"v_lshl_add_u32 {vr(p+2)}, {vr(p+3)}, 4, {vr(p+2)}")
    e(f"v_add_u32 {vr(p+2)}, s{part_sreg}, {vr(p+2)}")
    e(f"v_lshl_add_u32 {vr(p+4)}, {vr(p+1)}, 5, {vr(p+2)}")
    e(f"v_and_b32 {vr(p+1)}, 7, {vr(p+1)}")
    e(f"v_lshl_add_u32 {vr(p+5)}, {vr(p+1)}, 5, {vr(p+2)}")
    e(f"v_mov_b32 {vr(p+6)}, s{S_MLB}")
    e(f"v_mov_b32 {vr(R.A)}, {vr(R.vm)}"); e(f"v_mov_b32 {vr(R.A+1)}, {vr(R.vl)}")
    for r in range(4):
        e(f"v_cndmask_b32 {vr(X1+r)}, {vr(X1+r)}, {vr(X2+r)}, s[{S_HI32}:{S_HI32+1}]")
    e.lg(f"ds_write_b128 {vr(p+4)}, {vr(X1,4)}", "px")
    set_exec(e, 0xFF00FF0000FF00FF)
    e.lg(f"ds_write_b128 {vr(p+5)}, {vr(Y,4)} offset:512", "py")
    e("s_mov_b64 exec, 1")
    e.lg(f"ds_write_b64 {vr(p+6)}, {vr(R.A,2)} offset:{ml_off}", "pm")
    e("s_mov_b64 exec, -1")
    e.lg_all()

def kv_soff(e, base_sreg, T):
    e(f"s_add_u32 s{S_SOFF}, s{base_sreg}, {T*TILE_B}")
def ld_k(e, R, dst, s, tag, o):
    e.vm(f"buffer_load_dwordx4 {dst}, {vr(R.voffK)}, s[{SRD_K}:{SRD_K+3}], s{S_SOFF} offen offset:{128*s} {o.kvflags}", tag)
def ld_v(e, R, dst, w, tag, o):
    vo = R.voffY if w == 2 else R.voffX
    off = 384 if w == 1 else 0
    e.vm(f"buffer_load_dwordx4 {dst}, {vr(vo)}, s[{SRD_V}:{SRD_V+3}], s{S_SOFF} offen offset:{off} {o.kvflags}", tag)
def dma_k(e, R, slot, s, tag, o):
    e(f"s_add_u32 m0, s{S_LDSB}, {slot*1024 - 128*s + 0}") if slot*1024 - 128*s >= 0 else e(f"s_sub_u32 m0, s{S_LDSB}, {128*s - slot*1024}")
    e.vm(f"buffer_load_dwordx4 {vr(R.voffK)}, s[{SRD_K}:{SRD_K+3}], s{S_SOFF} offen offset:{128*s} {o.kvflags} lds", tag)
def dma_v(e, R, slot, w, tag, o):
    vo = R.voffY if w == 2 else R.voffX
    off = 384 if w == 1 else 0
    e(f"s_add_u32 m0, s{S_LDSB}, {slot*1024 - off}")
    e.vm(f"buffer_load_dwordx4 {vr(vo)}, s[{SRD_V}:{SRD_V+3}], s{S_SOFF} offen offset:{off} {o.kvflags} lds", tag)

def slot_reg(k):
    assert 0 <= k < 118
    return f"a[{4*k}:{4*k+3}]" if k < 64 else f"v[{40+4*(k-64)}:{40+4*(k-64)+3}]"

def weight_dma(e, o):
    L, t, u = 8, 20, 21
    def dma_block(ptr, nbytes, lanes_per_row, magic, shift, nlanes, row_stride, rows_per_instr, ninstr, so, lds0, bar=False):
        make_srd(e, SRD_T, ptr, nbytes)
        e(f"v_mul_u32_u24 v{t}, {magic}, v{L}"); e(f"v_lshrrev_b32 v{t}, {shift}, v{t}")
        e(f"v_mul_u32_u24 v{u}, {lanes_per_row}, v{t}"); e(f"v_sub_u32 v{u}, v{L}, v{u}")
        e(f"s_mov_b32 s{S_T1}, {row_stride}")
        e(f"v_mul_lo_u32 v{t}, v{t}, s{S_T1}"); e(f"v_lshl_add_u32 v{t}, v{u}, 4, v{t}")
        rreg, rmul, creg, cmul = so
        e(f"s_mul_i32 s{S_SOFF}, s{rreg}, {rmul*row_stride}")
        e(f"s_mul_i32 s{S_T1}, s{creg}, {cmul}"); e(f"s_add_u32 s{S_SOFF}, s{S_SOFF}, s{S_T1}")
        set_exec(e, mask64(range(nlanes)))
        if bar: e("s_barrier")
        for i in range(ninstr):
            e(f"s_mov_b32 m0, {lds0 + i*nlanes*16}")
            if i: e(f"s_add_u32 s{S_SOFF}, s{S_SOFF}, {rows_per_instr*row_stride}")
            else: e("s_nop 0")
            e.vm_depth(o.NW - 1)
            e.vm(f"buffer_load_dwordx4 v{t}, s[{SRD_T}:{SRD_T+3}], s{S_SOFF} offen {o.wflags} lds", "w")
        e("s_mov_b64 exec, -1")
    l2, l3, end = e.newlabel("w2"), e.newlabel("w3"), e.newlabel("wend")
    e(f"s_cmp_eq_u32 s{S_WAVE}, 2"); e(f"s_cbranch_scc1 {l2}")
    e(f"s_cmp_eq_u32 s{S_WAVE}, 3"); e(f"s_cbranch_scc1 {l3}")
    base_q = list(e.vmq)
    dma_block(S_WQ, 7864320, 24, 43, 10, 48, 12288, 2, 40, (S_J, 80, S_H, 384), ST_WQ, bar=True)
    e(f"s_branch {end}")
    e.label(l2); e.vmq = list(base_q)
    dma_block(S_WO, 7864320, 10, 103, 10, 60, 1280, 6, 32, (S_H, 192, S_J, 160), ST_WO, bar=True)
    e(f"s_branch {end}")
    e.label(l3); e.vmq = list(base_q)
    dma_block(S_WG, 1966080, 6, 43, 8, 60, 3072, 10, 8, (S_J, 80, S_H, 96), ST_WG, bar=True)
    dma_block(S_WU, 1966080, 6, 43, 8, 60, 3072, 10, 8, (S_J, 80, S_H, 96), ST_WU)
    dma_block(S_WD, 1966080, 10, 103, 10, 60, 1280, 6, 8, (S_H, 48, S_J, 160), ST_WD)
    e.label(end)
    e.vmq = ["w"] * o.NW

S_XPAR = 15
def par_depth(e, n):
    lab = e.newlabel("par")
    e(f"s_cmp_lg_u32 s{S_XPAR}, 0"); e(f"s_cbranch_scc1 {lab}")
    e(f"s_waitcnt vmcnt({n-1})")
    e.label(lab)

def emit_wb(e):
    skip = e.newlabel("nowb")
    e(f"s_cmp_lg_u32 s{S_WAVE}, 1"); e(f"s_cbranch_scc1 {skip}")
    e("s_cmp_ge_u32 s2, 8"); e(f"s_cbranch_scc1 {skip}")
    e("buffer_wbl2 sc1")
    e("s_waitcnt vmcnt(0)")
    e.label(skip)

def stream_wave(e, o, st):
    R = NS(vlds=0, voffK=1, voffX=2, voffY=3, sel=4, qA=8, D=20, sc=32, tmp=20, vpw=35, acc=8, A=20, pp=28, vpp=36, vm=38, vl=39, vlt=37)
    loads = []
    for T in range(SW_TILES):
        for s in range(3): loads.append(('K', T, s))
    for T in range(SW_TILES):
        for w in range(3): loads.append(('V', T, w))
    def k0slot(T, s): return 3 * T + s
    def v0slot(T, w): return 60 + 3 * T + w
    cur = [None]
    def issue0(item):
        kind, T, x = item
        if cur[0] != (kind, T, 0):
            kv_soff(e, S_KV0, T); cur[0] = (kind, T, 0)
        if kind == 'K': ld_k(e, R, slot_reg(k0slot(T, x)), x, ('K0', T, x), o)
        else:
            sl = v0slot(T, x)
            if sl < 118: ld_v(e, R, slot_reg(sl), x, ('V0', T, x), o)
            else: dma_v(e, R, 48 + sl - 118, x, ('V0', T, x), o)
    for item in loads[:o.NF]: issue0(item)
    late_common(e)
    e(f"s_add_u32 s{S_KV1}, s{S_KV0}, {BATCH_STRIDE}")
    e(f"s_sub_u32 s{S_T0}, s{S_WAVE}, 1"); e(f"s_mul_i32 s{S_LDSB}, s{S_T0}, {LDS_SW}")
    if o.NAe or o.NCe:
        e(f"s_getreg_b32 s{S_T0}, hwreg(HW_REG_XCC_ID)"); e(f"s_and_b32 s{S_XPAR}, s{S_T0}, 1")
    nf = list(e.vmq)
    if "now" in o.exp: e("s_barrier")
    else: weight_dma(e, o)
    e.vmq = nf + ["w"] * o.NW if len(nf) + o.NW <= 60 else ["w"] * 60
    cur[0] = None
    st("s.wiss")
    e(f"v_lshlrev_b32 {vr(R.vlds)}, 4, v8")
    e(f"v_add_u32 {vr(R.vlds)}, s{S_LDSB}, {vr(R.vlds)}")
    attn_selectors(e, R, 8, 10)
    for idx, item in enumerate(loads[:o.NA_BAR]):
        if idx < o.NF: continue
        na = o.NA0 if idx < o.NA0N else o.NA
        e.vm_depth(na - 1)
        if o.NAe: par_depth(e, o.NAe)
        if idx == o.NF + max(o.NA, o.NA0):
            e(f"s_lshl_b32 s{S_T0}, s{S_WAVE}, 2"); e(f"s_add_u32 s{S_T0}, s{S_T0}, {WFLAG-4}")
            e(f"v_mov_b32 v20, s{S_T0}"); e("v_mov_b32 v21, 1")
            e.lg("ds_write_b32 v20, v21", "wf")
            st("s.wland")
        if idx == 60: st("s.k0iss")
        if idx == 90: st("s.v30")
        issue0(item)
    st("A_issued")
    attn_pre(e, R, SW_TILES)
    e("s_barrier")
    st("bar1")
    if "nocw" in o.exp or "cw" in o.exp or "stopA" in o.exp:
        e.vm_all(); st("s.alland"); st.flush(); e("s_endpgm")
    pend = [('0', it) for it in loads[o.NA_BAR:]]
    for T in range(16):
        for s in range(3): pend.append(('1', T, s))
    cur1 = [None]
    def issue_pend():
        it = pend.pop(0)
        if it[0] == '0': cur1[0] = None; issue0(it[1])
        else:
            _, T, s = it
            if cur1[0] != T:
                kv_soff(e, S_KV1, T); cur1[0] = T; cur[0] = None
            dma_k(e, R, 3 * T + s, s, ('K1', T, s), o)
    while pend[0][0] == '0': issue_pend()
    def Kf0(T, s): return slot_reg(k0slot(T, s))
    def Vf0(T, w):
        sl = v0slot(T, w)
        if sl < 118: return slot_reg(sl)
        return "v[32:35]" if w == 1 else "v[28:31]"
    def k_wait_A(T):
        if T == -1: e.vm_wait(('K0', SW_TILES - 1, 2))
    def pv_hook_A(T):
        left = SW_TILES - 1 - T
        target = max(o.NB1, min(o.NA, 3 * left + o.NB1)) if o.NB1 else 0
        if T == SW_TILES - 2:
            e.vm_wait(('V0', SW_TILES - 1, 2))
            e.lg(f"ds_read_b128 v[32:35], {vr(R.vlds)} offset:{48*1024}", ("vo", 1))
            e.lg(f"ds_read_b128 v[28:31], {vr(R.vlds)} offset:{49*1024}", ("vo", 2))
            target = o.NB1
        while pend and len(e.vmq) < target: issue_pend()
    def vwait_A(T, w):
        e.vm_wait(('V0', T, w))
        if T == SW_TILES - 1 and w >= 1: e.lg_wait(("vo", w))
    attn_pass(e, R, SW_TILES, 0, Kf0, Vf0, S_PB, 0, k_wait=k_wait_A, v_wait=vwait_A, pv_hook=pv_hook_A, pre_done=True)
    st("A_done")
    e("s_barrier")
    if o.NB1 == o.NB:
        while pend:
            e.vm_depth(o.NB - 1)
            issue_pend()
    else:
        items = list(pend); pend.clear()
        q0 = list(e.vmq); c0 = cur1[0]
        fast = {i: e.newlabel("fastB") for i in range(len(items))}
        done = e.newlabel("doneB")
        e(f"v_mov_b32 v20, {WFLAG + 12}")
        def emit_item(it, force_soff):
            _, T, s = it
            if cur1[0] != T or force_soff:
                kv_soff(e, S_KV1, T); cur1[0] = T
            dma_k(e, R, 3 * T + s, s, ('K1', T, s), o)
        marks = [i for i, it in enumerate(items) if it[2] == 0]
        if o.NB1 == 0:
            spin = e.newlabel("spinB")
            e(f"s_mov_b32 s{S_CNT}, {o.poll_limit*8}")
            e.label(spin)
            e(f"s_sub_u32 s{S_CNT}, s{S_CNT}, 1"); e(f"s_cbranch_scc1 {fast[0]}")
            e.lg("ds_read_b32 v21, v20", "go"); e.lg_all()
            e(f"v_readfirstlane_b32 s{S_T0}, v21")
            e(f"s_cmp_lg_u32 s{S_T0}, 0"); e(f"s_cbranch_scc1 {fast[0]}")
            e("s_sleep 2"); e(f"s_branch {spin}")
        for i, it in enumerate(items if o.NB1 else []):
            if i in marks:
                e.lg("ds_read_b32 v21, v20", "go"); e.lg_all()
                e(f"v_readfirstlane_b32 s{S_T0}, v21")
                e(f"s_cmp_lg_u32 s{S_T0}, 0"); e(f"s_cbranch_scc1 {fast[i]}")
            e.vm_depth(o.NB1 - 1)
            emit_item(it, False)
        e(f"s_branch {done}")
        e.vmq = list(q0); cur1[0] = c0
        for i, it in enumerate(items):
            if i in marks: e.label(fast[i])
            e.vm_depth(o.NB - 1)
            emit_item(it, i in marks)
        e.label(done)
    st("B_issued")
    attn_pre(e, R, SW_TILES)
    e("s_barrier")
    st("bar3")
    pend1 = []
    for T in range(16, SW_TILES):
        for s in range(3): pend1.append(('K', T, s))
    for T in range(SW_TILES):
        for w in range(3): pend1.append(('V', T, w))
    slot_of = {it: i for i, it in enumerate(pend1)}
    freed = [0]
    issued1 = [0]
    cur2 = [None]
    def issue1():
        it = pend1[issued1[0]]; kind, T, x = it
        if cur2[0] != (kind, T):
            kv_soff(e, S_KV1, T); cur2[0] = (kind, T)
        e.vm_depth(o.NC - 1)
        if o.NCe: par_depth(e, o.NCe)
        if kind == 'K': ld_k(e, R, slot_reg(slot_of[it]), x, ('K1', T, x), o)
        else: ld_v(e, R, slot_reg(slot_of[it]), x, ('V1', T, x), o)
        issued1[0] += 1
    def refill():
        while issued1[0] < len(pend1) and issued1[0] < freed[0]: issue1()
    def qk_hook_C1(T):
        freed[0] = 3 * (T + 1); refill()
    def pv_hook_C1(T):
        freed[0] = min(118, 60 + 3 * (T + 1)); refill(); ovf_hook_C(T)
    def ovf_hook_C(T):
        if T == SW_TILES - 2:
            e.lg(f"ds_read_b128 v[32:35], {vr(R.vlds)} offset:{48*1024}", ("vo", 1))
            e.lg(f"ds_read_b128 v[28:31], {vr(R.vlds)} offset:{49*1024}", ("vo", 2))
    def vwait_C1(T, w):
        if T == SW_TILES - 1 and w >= 1: e.lg_wait(("vo", w))
    e(f"s_add_u32 s{S_T2}, s{S_LDSB}, {48*1024}")
    attn_pass(e, R, SW_TILES, 0, Kf0, Vf0, S_T2, 32, qk_hook=qk_hook_C1, v_wait=vwait_C1, pv_hook=pv_hook_C1, pre_done=True)
    refill()
    assert issued1[0] == len(pend1)
    st("C1_done")
    e("s_barrier")
    stage = [40 + 4 * (k - 64) for k in range(100, 112)]
    def Kf1(T, s):
        if T < 16: return ('lds', (3 * T + s) * 1024)
        return slot_reg(slot_of[('K', T, s)])
    def Vf1(T, w): return slot_reg(slot_of[('V', T, w)])
    def k_wait_C2(T):
        if T == -1: e.vm_wait(('K1', 15, 2))
        elif T >= 16: e.vm_wait(('K1', T, 2))
    def vwait_C2(T, w): e.vm_wait(('V1', T, w))
    attn_pass(e, R, SW_TILES, 1, Kf1, Vf1, S_PB, 0, k_wait=k_wait_C2, v_wait=vwait_C2, stage=stage, look=o.look)
    st("C2_done")
    e("s_barrier")
    if o.wb == 2: emit_wb(e)
    attn_pre(e, R, SW_TILES)
    e("s_barrier")
    st("bar7")
    attn_pass(e, R, SW_TILES, 1, Kf1, Vf1, S_PB, 0, stage=stage, pre_done=True, mark=lambda n: st("e." + n), look=o.look)
    st("E_done")
    e("s_barrier")
    if o.wb == 1: emit_wb(e)
    st.flush()
    e("s_endpgm")

V_LANE, V_LG, V_R, V_PL, V_PG, V_PQ = 0, 4, 5, 6, 7, 8
V_BO, V_BX, V_BX8, V_BH, V_BH8, V_AS, V_AS8 = 9, 10, 11, 12, 13, 14, 15
V_XR, V_CSQ, V_CSG = 16, 20, 24
V_W8, V_WX, V_WH, V_ML = 28, 29, 30, 31
W0 = 32
V_SEL, V_R2, V_ST2, V_PS, V_PSQ, V_L16 = 75, 79, 80, 81, 82, 83
V_T = 84
V_GL, V_LL = 72, 73
CW_K, CW_V = 86, 134
S_N1 = 74

_off3 = (2, 6, 0)
def wq_frag(t, s): return ("a", 10 * t + _off3[s])
def wo_frag(t, s): return ("a", 120 + 24 * t + 4 * s)
def wd_frag(t, s):
    if s == 0: return ("a", 240 + 4 * t) if t < 4 else ("v", 182)
    return ("v", 186 + 2 * t)
def wg_frag(t, s): return ("v", 196 + 10 * t + _off3[s])
def wu_frag(t, s): return ("v", 226 + 10 * t + _off3[s])
def win(fr): return f"{fr[0]}[{fr[1]}:{fr[1]+3}]"

V_OOB = 74
def selmask(e, dst, val, mask, other=None):
    e(f"s_mov_b32 vcc_lo, 0x{mask & 0xffffffff:08x}"); e(f"s_mov_b32 vcc_hi, 0x{mask >> 32:08x}")
    if other is None: e(f"v_cndmask_b32 {vr(dst)}, v{V_OOB}, {vr(val)}, vcc")
    else:
        assert dst != val
        e(f"v_mov_b32 {vr(dst)}, 0x{other:08x}")
        e(f"v_cndmask_b32 {vr(dst)}, {vr(dst)}, {vr(val)}, vcc")

def rows_mask(live, n): return mask64([32 * r + g for r in live for g in range(n)])
def cols_mask(live, alist=range(4)): return mask64([16 * a + n for a in alist for n in live])

def instance_offsets(e, live, pub_live=None, q_live=None):
    pub_live = live if pub_live is None else pub_live
    q_live = pub_live if q_live is None else q_live
    t, u = V_T, V_T + 1
    e(f"v_and_b32 {vr(t)}, 31, v{V_LANE}"); e(f"v_lshlrev_b32 {vr(t)}, 4, {vr(t)}")
    e(f"v_lshrrev_b32 {vr(u)}, 5, v{V_LANE}"); e(f"v_lshl_add_u32 {vr(t)}, {vr(u)}, 9, {vr(t)}")
    selmask(e, V_LG, t, rows_mask(live, 20))
    selmask(e, V_R2, t, rows_mask(live, 24))
    e(f"v_and_b32 v{V_GL}, 7, v{V_LANE}"); e(f"v_lshlrev_b32 v{V_GL}, 10, v{V_GL}"); e(f"v_add_u32 v{V_GL}, {512*live[-1] + 19*16}, v{V_GL}")
    e(f"v_and_b32 v{V_LL}, 3, v{V_LANE}"); e(f"v_lshlrev_b32 v{V_LL}, 10, v{V_LL}"); e(f"v_add_u32 v{V_LL}, {512*live[-1] + 19*16}, v{V_LL}")
    e(f"v_and_b32 {vr(t)}, 7, v{V_LANE}"); e(f"v_lshlrev_b32 {vr(t)}, 10, {vr(t)}")
    e(f"v_lshl_add_u32 {vr(t)}, {vr(u)}, 9, {vr(t)}"); e(f"v_add_u32 {vr(t)}, 384, {vr(t)}")
    selmask(e, V_ST2, t, rows_mask(live, 32))
    e(f"v_and_b32 {vr(t)}, 15, v{V_LANE}"); e(f"v_lshrrev_b32 {vr(u)}, 4, v{V_LANE}")
    e(f"v_lshlrev_b32 v{V_PL}, 9, {vr(t)}")
    e(f"v_lshl_add_u32 v{V_PG}, {vr(u)}, 5, v{V_PL}")
    e(f"v_add_u32 v{V_PS}, 384, v{V_PL}")
    e(f"v_lshl_add_u32 v{V_PL}, {vr(u)}, 4, v{V_PL}")
    e(f"v_lshlrev_b32 v{V_PQ}, 18, {vr(t)}")
    e(f"v_add_u32 v{V_PSQ}, 768, v{V_PQ}")
    e(f"v_lshl_add_u32 v{V_PQ}, {vr(u)}, 4, v{V_PQ}")
    cm = cols_mask(pub_live)
    e(f"s_mov_b32 vcc_lo, 0x{cm & 0xffffffff:08x}"); e(f"s_mov_b32 vcc_hi, 0x{cm >> 32:08x}")
    for r in (V_PL, V_PG): e(f"v_cndmask_b32 v{r}, v{V_OOB}, v{r}, vcc")
    selmask(e, V_PS, V_PS, cols_mask(pub_live, [0]))
    selmask(e, V_PQ, V_PQ, cols_mask(q_live))
    selmask(e, V_PSQ, V_PSQ, cols_mask(q_live, [0]))

def soffs(e, off_sreg, const, two=True):
    e(f"s_add_u32 s{S_A}, s{off_sreg}, {const}")
    if two: e(f"s_add_u32 s{S_B}, s{S_A}, 4096")

def poll(e, o, loads, abort, sleep=0):
    lab = e.newlabel("poll")
    e(f"s_mov_b32 s{S_CNT}, {o.poll_limit}")
    e.label(lab)
    for d, vo, s, imm in loads:
        e(f"buffer_load_dwordx4 {vr(d,4)}, v{vo}, s[{SRD_WS}:{SRD_WS+3}], s{s} offen offset:{imm} sc1")
    e(f"s_sub_u32 s{S_CNT}, s{S_CNT}, 1")
    e(f"s_cbranch_scc1 {abort}")
    e("s_waitcnt vmcnt(0)")
    vals = []
    for d, _, _, _ in loads: vals += [d + 1, d + 3]
    t = V_T
    e(f"v_max3_u32 v{t}, v{vals[0]}, v{vals[1]}, v{vals[2]}")
    i = 3
    while i < len(vals):
        if i + 1 < len(vals): e(f"v_max3_u32 v{t}, v{t}, v{vals[i]}, v{vals[i+1]}"); i += 2
        else: e(f"v_max_u32 v{t}, v{t}, v{vals[i]}"); i += 1
    e(f"v_cmp_eq_u32 vcc, -1, v{t}")
    if sleep:
        ok = e.newlabel("pok"); e(f"s_cbranch_vccz {ok}"); e(f"s_sleep {sleep}"); e(f"s_branch {lab}"); e.label(ok)
    else: e(f"s_cbranch_vccnz {lab}")
    e.vmq = []

def gather8(e, o, vo, abort, extra=None, n=8, base=W0):
    loads = [(base + 4 * k, vo, S_A if k < 4 else S_B, (k % 4) * 1024) for k in range(n)]
    if extra: loads.append((base + 4 * n, extra, S_A, 0))
    poll(e, o, loads, abort)

def sum_loads(e, n, base=W0):
    step = 1
    while step < n:
        for k in range(0, n, 2 * step):
            if k + step < n:
                a, b = base + 4 * k, base + 4 * (k + step)
                e(f"v_pk_add_f32 {vr(a,2)}, {vr(a,2)}, {vr(b,2)}")
                e(f"v_pk_add_f32 {vr(a+2,2)}, {vr(a+2,2)}, {vr(b+2,2)}")
        step *= 2

def dpp8(e, reg, op):
    for m in ("quad_perm:[1,0,3,2]", "quad_perm:[2,3,0,1]", "row_half_mirror"):
        e(f"v_{op}_f32_dpp v{reg}, v{reg}, v{reg} {m} row_mask:0xf bank_mask:0xf")
def dpp8x2(e, r0, r1, op):
    for m in ("quad_perm:[1,0,3,2]", "quad_perm:[2,3,0,1]", "row_half_mirror"):
        e(f"v_{op}_f32_dpp v{r0}, v{r0}, v{r0} {m} row_mask:0xf bank_mask:0xf")
        e(f"v_{op}_f32_dpp v{r1}, v{r1}, v{r1} {m} row_mask:0xf bank_mask:0xf")

def ln_from_stats(e, s1, s2, mean, rstd):
    e(f"v_mul_f32 v{mean}, {lit(1/640)}, v{s1}")
    e(f"v_mul_f32 v{s2}, {lit(1/640)}, v{s2}")
    e(f"v_fma_f32 v{s2}, -v{mean}, v{mean}, v{s2}")
    e(f"v_max_f32 v{s2}, 0, v{s2}")
    e(f"v_add_f32 v{s2}, {lit(EPS)}, v{s2}")
    e(f"v_rsq_f32 v{rstd}, v{s2}")

def pub(e, D, vo, sreg, imm, fl, tag):
    e.vm(f"buffer_store_dwordx4 {vr(D,4)}, v{vo}, s[{SRD_WS}:{SRD_WS+3}], s{sreg} offen offset:{imm} {fl}", tag)

def run_tiles(e, tiles, accs, store, btags=None, twait=None):
    n = len(accs); lag = n - 1
    for i, (tid, steps) in enumerate(tiles):
        D = vr(accs[i % n], 4)
        if twait and tid in twait: e.lg_wait(twait[tid])
        for s, (A, B) in enumerate(steps):
            if i == 0 and btags: e.lg_wait(btags[s])
            e(f"v_mfma_f32_16x16x32_bf16 {D}, {A}, {B}, {'0' if s == 0 else D}")
        if i >= lag: store(tiles[i - lag][0], accs[(i - lag) % n])
    for i in range(max(0, len(tiles) - lag), len(tiles)): store(tiles[i][0], accs[i % n])

def read_bx(e, B):
    e.lg(f"ds_read_b128 {vr(B,4)}, v{V_BX}", "b0"); e.lg(f"ds_read_b128 {vr(B+4,4)}, v{V_BX} offset:64", "b1")
    e.lg(f"ds_read_b64 {vr(B+8,2)}, v{V_BX8}", "b2")
    e(f"v_mov_b32 v{B+10}, 0"); e(f"v_mov_b32 v{B+11}, 0")
def read_as(e, A):
    e.lg(f"ds_read_b128 {vr(A,4)}, v{V_AS}", "a0"); e.lg(f"ds_read_b128 {vr(A+4,4)}, v{V_AS} offset:64", "a1")
    e.lg(f"ds_read_b64 {vr(A+8,2)}, v{V_AS8}", "a2")
    e(f"v_mov_b32 v{A+10}, 0"); e(f"v_mov_b32 v{A+11}, 0")

def stage_Q(e, fl, reg_index, shadow=None):
    B, A = W0 + 8, W0 + 20
    read_bx(e, B); read_as(e, A)
    e(f"s_add_u32 s{S_A}, s{S_ROWN}, {reg_index*RG}")
    if shadow: shadow()
    tiles = [(t, [(win(wq_frag(t, s)), vr(B + 4 * s, 4)) for s in range(3)]) for t in range(12)]
    tiles.insert(1, (12, [(vr(A + 4 * s, 4), vr(B + 4 * s, 4)) for s in range(3)]))
    SD = W0 + 4
    def store(t, D): pub(e, D, V_PQ, S_A, 64 * t, fl, ("pq", t))
    first, stats, rest = tiles[0], tiles[1], tiles[2:]
    run_tiles(e, [first], [W0 + 32, W0 + 36], lambda t, D: None, btags=["b0", "b1", "b2"])
    e.lg_wait("a2")
    for s, (Aop, Bop) in enumerate(stats[1]):
        e(f"v_mfma_f32_16x16x32_bf16 {vr(SD,4)}, {Aop}, {Bop}, {'0' if s == 0 else vr(SD,4)}")
    accs = [W0 + 36, W0, W0 + 20, W0 + 32]
    pend = [(0, W0 + 32)]
    for i, (t, steps) in enumerate(rest):
        D = accs[i % 4]
        for s, (Aop, Bop) in enumerate(steps):
            e(f"v_mfma_f32_16x16x32_bf16 {vr(D,4)}, {Aop}, {Bop}, {'0' if s == 0 else vr(D,4)}")
        pend.append((t, D))
        if i >= 2: store(*pend.pop(0))
    e(f"v_cndmask_b32 v{SD+1}, v{SD+1}, v{SD+2}, s[{S_N1}:{S_N1+1}]")
    while pend: store(*pend.pop(0))
    pub(e, SD, V_PSQ, S_A, 0, fl, "pqs")

def stage_GU(e, fl, const, with_stats=True, shadow=None):
    B, A = W0 + 8, W0 + 20
    read_bx(e, B)
    if with_stats: read_as(e, A)
    e(f"s_add_u32 s{S_A}, s{S_ROWN}, {const}" if const >= 0 else f"s_sub_u32 s{S_A}, s{S_ROWN}, {-const}")
    if shadow: shadow()
    def tile(d, f, waits=None):
        d = vr(d, 4)
        for s in range(3):
            if waits: e.lg_wait(waits[s])
            e(f"v_mfma_f32_16x16x32_bf16 {d}, {f(s)}, {vr(B+4*s,4)}, {'0' if s == 0 else d}")
    def store(t, G, U):
        e(f"v_swap_b32 v{G+2}, v{U}"); e(f"v_swap_b32 v{G+3}, v{U+1}")
        pub(e, G, V_PG, S_A, 128 * t, fl, ("pg", t, 0))
        pub(e, U, V_PG, S_A, 128 * t + 16, fl, ("pg", t, 1))
    g = lambda t: (lambda s: win(wg_frag(t, s)))
    u = lambda t: (lambda s: win(wu_frag(t, s)))
    P0, P1, S = (W0 + 32, W0 + 36), (W0 + 20, W0 + 24), W0
    tile(P0[0], g(0), waits=["b0", "b1", "b2"]); tile(P0[1], u(0))
    if with_stats:
        e.lg_wait("a2")
        tile(S, lambda s: vr(A + 4 * s, 4))
    tile(P1[0], g(1)); tile(P1[1], u(1))
    store(0, *P0)
    if with_stats: e(f"v_cndmask_b32 v{S+1}, v{S+1}, v{S+2}, s[{S_N1}:{S_N1+1}]")
    tile(P0[0], g(2)); tile(P0[1], u(2))
    store(1, *P1)
    store(2, *P0)
    if with_stats: pub(e, S, V_PS, S_A, 0, fl, "pgs")

def stage_WO(e, fl, region):
    B = W0
    for s in range(6): e.lg(f"ds_read_b128 {vr(B+4*s,4)}, v{V_BO} offset:{64*s}", ("o", s))
    e(f"s_add_u32 s{S_A}, s{S_LOWN}, {region*RG}")
    tiles = [(t, [(win(wo_frag(t, s)), vr(B+4*s,4)) for s in range(6)]) for t in range(5)]
    run_tiles(e, tiles, [W0 + 24, W0 + 28, W0 + 32], lambda t, D: pub(e, D, V_PL, S_A, 64 * t, fl, ("po", t)), btags=[("o", s) for s in range(6)])

def stage_D(e, fl, region):
    B = W0
    e.lg(f"ds_read_b128 {vr(B,4)}, v{V_BH}", "h0"); e.lg(f"ds_read_b64 {vr(B+4,2)}, v{V_BH8}", "h1")
    e(f"v_mov_b32 v{B+6}, 0"); e(f"v_mov_b32 v{B+7}, 0")
    e(f"s_add_u32 s{S_A}, s{S_LOWN}, {region*RG}")
    tiles = [(t, [(win(wd_frag(t, 0)), vr(B,4)), (win(wd_frag(t, 1)), vr(B+4,4))]) for t in range(5)]
    run_tiles(e, tiles, [W0 + 8 + 4 * i for i in range(5)], lambda t, D: pub(e, D, V_PL, S_A, 64 * t, fl, ("pd", t)), btags=["h0", "h1"])

def fast_gather(e, o, loads, body, abort, pre=0, early=False):
    n = len(loads); t = V_T
    lab = e.newlabel("fpoll")
    e(f"s_mov_b32 s{S_CNT}, {o.poll_limit}")
    if pre: e(f"s_sleep {pre}")
    e.label(lab)
    for d, vo, s, imm in loads:
        e(f"buffer_load_dwordx4 {vr(d,4)}, v{vo}, s[{SRD_WS}:{SRD_WS+3}], s{s} offen offset:{imm} sc1")
    e(f"s_sub_u32 s{S_CNT}, s{S_CNT}, 1")
    e(f"s_cbranch_scc1 {abort}")
    first = [True]
    if early:
        d = loads[0][0]
        e(f"s_waitcnt vmcnt({n-1})")
        e(f"v_max_u32 v{t}, v{d+1}, v{d+3}")
        e(f"v_cmp_eq_u32 vcc, -1, v{t}")
        e(f"s_cbranch_vccnz {lab}")
        first[0] = False
    def wait(k): e(f"s_waitcnt vmcnt({n-1-k})")
    def chk(k):
        d = loads[k][0]
        if first[0]: e(f"v_max_u32 v{t}, v{d+1}, v{d+3}"); first[0] = False
        else: e(f"v_max3_u32 v{t}, v{t}, v{d+1}, v{d+3}")
    body(wait, chk)
    e(f"v_cmp_eq_u32 vcc, -1, v{t}")
    e(f"s_cbranch_vccnz {lab}")
    e.vmq = []

def padd(e, a, b, neg=False):
    m = " neg_lo:[0,1] neg_hi:[0,1]" if neg else ""
    e(f"v_pk_add_f32 {vr(a,2)}, {vr(a,2)}, {vr(b,2)}{m}"); e(f"v_pk_add_f32 {vr(a+2,2)}, {vr(a+2,2)}, {vr(b+2,2)}{m}")

def g_soffs(e, off_sreg, const, two=True):
    e(f"s_add_u32 s{S_GA}, s{off_sreg}, {const}")
    if two: e(f"s_add_u32 s{S_GB}, s{S_GA}, 4096")
def g_loads(vo, n=8, base=W0): return [(base + 4 * k, vo, S_GA if k < 4 else S_GB, (k % 4) * 1024) for k in range(n)]

def hop_LG(e, o, inst, k, abort, final_only=False):
    skip = e.newlabel("notleader")
    e(f"s_cmp_lg_u32 s{S_HQ}, 0"); e(f"s_cbranch_scc1 {skip}")
    g_soffs(e, S_LGRP, L_REG(inst, k) * RG, two=False)
    e(f"s_add_u32 s{S_A}, s{S_GOWN}, {G_OFF(inst,k)}")
    X = W0 + 32
    off = 1 if o.early else 0
    def body4(wait, chk):
        wait(off + 1); chk(off); chk(off + 1); padd(e, W0, W0 + 4)
        wait(off + 2); chk(off + 2); padd(e, W0, W0 + 8)
        wait(off + 3); chk(off + 3); padd(e, W0, W0 + 12)
    fast_gather(e, o, ([(X, V_LL, S_GA, 0)] if o.early else []) + g_loads(V_LG, 4), body4, abort, pre=o.preL, early=o.early)
    e(f"buffer_store_dwordx4 {vr(W0,4)}, v{V_LG}, s[{SRD_WS}:{SRD_WS+3}], s{S_A} offen sc1")
    if o.preGn:
        join = e.newlabel("lgjoin")
        e(f"s_branch {join}")
        e.label(skip)
        if not final_only: e(f"s_sleep {o.preGn}")
        e.label(join)
    else: e.label(skip)
    if final_only:
        e(f"s_cmp_lg_u32 s{S_H}, 0"); e(f"s_cbranch_scc1 L_done")
    g_soffs(e, S_GGRP, G_OFF(inst, k))
    e.vmq = []
    def body8(wait, chk):
        c = lambda k: chk(off + k)
        w = lambda k: wait(off + k)
        w(1); c(0); c(1); padd(e, W0, V_XR); padd(e, W0, W0 + 4)
        w(3); c(2); c(3); padd(e, W0 + 8, W0 + 12); padd(e, W0, W0 + 8)
        w(5); c(4); c(5); padd(e, W0 + 16, W0 + 20); padd(e, W0, W0 + 16)
        w(6); c(6); padd(e, W0, W0 + 24)
        w(7); c(7); padd(e, W0, W0 + 28)
    fast_gather(e, o, ([(X, V_GL, S_GA, 0)] if o.early else []) + g_loads(V_LG, 8), body8, abort, pre=o.preG, early=o.early)

def hop_final(e, o, abort):
    e(f"s_cmp_lg_u32 s{S_H}, 0"); e(f"s_cbranch_scc1 L_done")
    e(f"s_lshl_b32 s{S_T0}, s{S_J}, 12"); e(f"s_add_u32 s{S_T0}, s{S_T0}, {L_REG(2,1)*RG}")
    for x in range(8): e(f"s_add_u32 s{SW8[x]}, s{S_T0}, {32768*x}")
    dst = [W0 + 4 * k for k in range(8)] + [CW_K + 4 * k for k in range(24)]
    loads = [(dst[4 * x + q], V_LG, SW8[x], 1024 * q) for x in range(8) for q in range(4)]
    A0, A1 = loads[0][0], loads[1][0]
    def body(wait, chk):
        wait(1); chk(0); chk(1); padd(e, A0, V_XR)
        for k in range(2, 32):
            if k % 2 == 0: wait(min(k + 1, 31)); chk(k); chk(k + 1)
            padd(e, A0 if k % 2 == 0 else A1, loads[k][0])
        padd(e, A0, A1)
    fast_gather(e, o, loads, body, abort, pre=o.preF)

def residual_update(e):
    e(f"v_cvt_pk_bf16_f32 v{W0+4}, v{W0}, v{W0+1}")
    e(f"v_cvt_pk_bf16_f32 v{W0+5}, v{W0+2}, v{W0+3}")
    e.lg(f"ds_write_b64 v{V_WX}, {vr(W0+4,2)}", "wx")
def residual_unpack(e, p):
    e(f"v_lshlrev_b32 v{V_XR}, 16, v{p}"); e(f"v_and_b32 v{V_XR+1}, 0xffff0000, v{p}")
    e(f"v_lshlrev_b32 v{V_XR+2}, 16, v{p+1}"); e(f"v_and_b32 v{V_XR+3}, 0xffff0000, v{p+1}")

def store_out(e, row):
    skip = e.newlabel("noout")
    e(f"s_cmp_lg_u32 s{S_H}, 0"); e(f"s_cbranch_scc1 {skip}")
    make_srd(e, SRD_T, S_OUT, 2560)
    e(f"v_and_b32 v{V_T}, 31, v{V_LANE}"); e(f"v_lshlrev_b32 v{V_T}, 3, v{V_T}")
    e(f"s_mul_i32 s{S_T0}, s{S_J}, 160"); e(f"s_add_u32 s{S_T0}, s{S_T0}, {row*1280}")
    selmask(e, V_T, V_T, rows_mask([row], 20))
    e(f"buffer_store_dwordx2 {vr(W0+4,2)}, v{V_T}, s[{SRD_T}:{SRD_T+3}], s{S_T0} offen")
    e.label(skip)

def combine_publish(e, fl, parts, mlbase, region):
    T = W0
    e(f"v_mov_b32 v{V_T}, {mlbase}")
    e.lg(f"ds_read_b128 {vr(T,4)}, v{V_T}", "ml0"); e.lg(f"ds_read_b128 {vr(T+4,4)}, v{V_T} offset:16", "ml1")
    P = T + 8
    cur = None
    for w in range(4):
        if cur is None or not (0 <= parts[w] - cur < 60000):
            e(f"v_add_u32 v{V_T+1}, {parts[w]}, v{V_L16}"); cur = parts[w]
        for par in range(2):
            e.lg(f"ds_read_b128 {vr(P+8*w+4*par,4)}, v{V_T+1} offset:{parts[w] - cur + 768*par}", ("p", w, par))
    e(f"s_add_u32 s{S_A}, s{S_ROWN}, {region*RG}")
    e.lg_wait("ml1")
    m = [T, T + 2, T + 4, T + 6]; l = [T + 1, T + 3, T + 5, T + 7]
    M, Ls = V_T, V_T + 1
    e(f"v_max3_f32 v{M}, v{m[0]}, v{m[1]}, v{m[2]}"); e(f"v_max_f32 v{M}, v{M}, v{m[3]}")
    for w in range(4): e(f"v_sub_f32 v{m[w]}, v{m[w]}, v{M}")
    for w in range(4): e(f"v_exp_f32 v{m[w]}, v{m[w]}")
    e(f"v_mul_f32 v{Ls}, v{m[0]}, v{l[0]}")
    for w in range(1, 4): e(f"v_fma_f32 v{Ls}, v{m[w]}, v{l[w]}, v{Ls}")
    for w in range(4):
        e.lg_wait(("p", w, 1))
        a = P + 8 * w
        e(f"v_pk_add_f32 {vr(a,2)}, {vr(a,2)}, {vr(a+4,2)}"); e(f"v_pk_add_f32 {vr(a+2,2)}, {vr(a+2,2)}, {vr(a+6,2)}")
        for r in range(4):
            if w == 0: e(f"v_mul_f32 v{P+r}, v{m[0]}, v{P+r}")
            else: e(f"v_fmac_f32 v{P+r}, v{m[w]}, v{a+r}")
    e(f"s_mov_b32 vcc_lo, 0"); e(f"s_mov_b32 vcc_hi, 0x00010000")
    e(f"v_cndmask_b32 v{P}, v{P}, v{M}, vcc"); e(f"v_cndmask_b32 v{P+1}, v{P+1}, v{Ls}, vcc")
    pub(e, P, V_R, S_A, 0, fl, "r1")

SW8 = [4, 6, 8, 10, 12, 16, 18, 20]
def hop_R1(e, o, region, row, abort):
    g_soffs(e, S_RGRP, region * RG)
    X = W0 + 32
    M, wv = X + 2, X + 3
    acc = W0 + 36
    loads = [(X, V_ML, S_GA, 0)] + g_loads(V_R)
    def body(wait, chk):
        if not o.early: wait(0); chk(0)
        e(f"v_mov_b32 v{M}, v{X}")
        dpp8(e, M, "max")
        e(f"v_sub_f32 v{wv}, v{X}, v{M}"); e(f"v_exp_f32 v{wv}, v{wv}")
        wait(4); chk(1); chk(2)
        e(f"v_mul_f32 v{X+1}, v{wv}, v{X+1}")
        chk(3); chk(4)
        e(f"v_add_f32_dpp v{X+1}, v{X+1}, v{X+1} quad_perm:[1,0,3,2] row_mask:0xf bank_mask:0xf")
        wait(8); chk(5); chk(6)
        e(f"v_add_f32_dpp v{X+1}, v{X+1}, v{X+1} quad_perm:[2,3,0,1] row_mask:0xf bank_mask:0xf")
        chk(7); chk(8)
        e(f"v_add_f32_dpp v{X+1}, v{X+1}, v{X+1} row_half_mirror row_mask:0xf bank_mask:0xf")
        e(f"v_rcp_f32 v{X+1}, v{X+1}")
        e(f"v_mul_f32 v{wv}, v{wv}, v{X+1}")
        for k in range(8): e(f"v_readlane_b32 s{SW8[k]}, v{wv}, {k}")
        for k in range(8):
            for h in range(2):
                a, m = acc + 2 * h, W0 + 4 * k + 2 * h
                sp = f"s[{SW8[k]}:{SW8[k]+1}]"
                if k == 0: e(f"v_pk_mul_f32 {vr(a,2)}, {vr(m,2)}, {sp} op_sel_hi:[1,0]")
                else: e(f"v_pk_fma_f32 {vr(a,2)}, {vr(m,2)}, {sp}, {vr(a,2)} op_sel_hi:[1,0,1]")
    fast_gather(e, o, loads, body, abort, pre=o.preR, early=o.early)
    e(f"v_cvt_pk_bf16_f32 v{acc}, v{acc}, v{acc+1}"); e(f"v_cvt_pk_bf16_f32 v{acc+1}, v{acc+2}, v{acc+3}")
    e.lg(f"ds_write_b64 v{V_W8}, {vr(acc,2)} offset:{ACT_O - SB + 384*row}", "wo")

def ln_gather(e, o, vo, vstat, cs, abort):
    X = W0 + 32; mean, rstd = X + 2, X + 3; T = W0 + 36
    loads = [(X, vstat, S_GA, 0)] + g_loads(vo)
    q = lambda r, m: e(f"v_add_f32_dpp v{r}, v{r}, v{r} {m} row_mask:0xf bank_mask:0xf")
    def body(wait, chk):
        if not o.early: wait(0); chk(0)
        q(X, "quad_perm:[1,0,3,2]"); q(X + 1, "quad_perm:[1,0,3,2]")
        wait(2); chk(1)
        q(X, "quad_perm:[2,3,0,1]"); q(X + 1, "quad_perm:[2,3,0,1]")
        chk(2)
        q(X, "row_half_mirror"); q(X + 1, "row_half_mirror")
        padd(e, W0, W0 + 4)
        e(f"v_mul_f32 v{mean}, {lit(1/640)}, v{X}"); e(f"v_mul_f32 v{X+1}, {lit(1/640)}, v{X+1}")
        wait(4); chk(3); chk(4)
        e(f"v_fma_f32 v{X+1}, -v{mean}, v{mean}, v{X+1}")
        padd(e, W0 + 8, W0 + 12)
        e(f"v_max_f32 v{X+1}, 0, v{X+1}"); e(f"v_add_f32 v{X+1}, {lit(EPS)}, v{X+1}")
        padd(e, W0, W0 + 8)
        e(f"v_rsq_f32 v{rstd}, v{X+1}")
        wait(6); chk(5); chk(6)
        e(f"v_pk_mul_f32 {vr(T,2)}, {vr(cs,2)}, {vr(mean,2)} op_sel_hi:[1,0]"); e(f"v_pk_mul_f32 {vr(T+2,2)}, {vr(cs+2,2)}, {vr(mean,2)} op_sel_hi:[1,0]")
        padd(e, W0 + 16, W0 + 20); padd(e, W0, T, neg=True); padd(e, W0, W0 + 16)
        wait(7); chk(7); padd(e, W0, W0 + 24)
        wait(8); chk(8); padd(e, W0, W0 + 28)
    fast_gather(e, o, loads, body, abort, pre=o.preR, early=o.early)
    e(f"v_pk_mul_f32 {vr(W0,2)}, {vr(W0,2)}, {vr(mean,2)} op_sel:[0,1] op_sel_hi:[1,1]")
    e(f"v_pk_mul_f32 {vr(W0+2,2)}, {vr(W0+2,2)}, {vr(mean,2)} op_sel:[0,1] op_sel_hi:[1,1]")

def hop_R2(e, o, inst, abort):
    ln_gather(e, o, V_R2, V_ST2, V_CSG, abort)
    e(f"v_max_f32 v{W0}, 0, v{W0}"); e(f"v_max_f32 v{W0+1}, 0, v{W0+1}")
    e(f"v_pk_mul_f32 {vr(W0,2)}, {vr(W0,2)}, {vr(W0+2,2)}")
    e(f"v_cvt_pk_bf16_f32 v{W0}, v{W0}, v{W0+1}")
    e.lg(f"ds_write_b32 v{V_WH}, v{W0}", "wh")

def q_consume(e, base, X, row):
    dpp8x2(e, X, X + 1, "add")
    sum_loads(e, 8, base)
    mean, rstd = X + 2, X + 3
    ln_from_stats(e, X, X + 1, mean, rstd)
    for r in range(4): e(f"v_fma_f32 v{base+r}, -v{mean}, v{V_CSQ+r}, v{base+r}")
    for r in range(4): e(f"v_mul_f32 v{base+r}, v{rstd}, v{base+r}")
    e(f"v_cvt_pk_bf16_f32 v{base}, v{base}, v{base+1}"); e(f"v_cvt_pk_bf16_f32 v{base+1}, v{base+2}, v{base+3}")
    e.lg(f"ds_write_b64 v{V_W8}, {vr(base,2)} offset:{QARR - SB + 384*row}", "wq")

def hop_R3(e, o, region, row, abort):
    ln_gather(e, o, V_R, V_ML, V_CSQ, abort)
    e(f"v_cvt_pk_bf16_f32 v{W0}, v{W0}, v{W0+1}"); e(f"v_cvt_pk_bf16_f32 v{W0+1}, v{W0+2}, v{W0+3}")
    e.lg(f"ds_write_b64 v{V_W8}, {vr(W0,2)} offset:{QARR - SB + 384*row}", "wq")

def go_flag(e):
    e(f"v_mov_b32 v{V_T}, {WFLAG + 12}"); e(f"v_mov_b32 v{V_T+1}, 1")
    e.lg(f"ds_write_b32 v{V_T}, v{V_T+1}", "go")

def chain(e, o, fl, inst, live, abort, st):
    c = f"c{inst}."
    if inst == 0 and o.NB1 != o.NB and o.go_at == "R1": go_flag(e)
    if inst == 0: o._save = (o.preR, o.preL, o.preG); o.preL, o.preG = o.preL + o.preL0, o.preG + o.preG0
    st.rounds(f"n{inst}.R1")
    st(c + "R1")
    stage_WO(e, fl, L_REG(inst, 0))
    st(c + "WO")
    hop_LG(e, o, inst, 0, abort)
    if inst == 0 and o.NB1 != o.NB and o.go_at == "G1": go_flag(e)
    if inst == 0: o.preR, o.preL, o.preG = o._save
    st.rounds(f"n{inst}.G1")
    st(c + "G1")
    residual_update(e)
    def sh_gu():
        residual_unpack(e, W0 + 4); g_soffs(e, S_RGRP, R2_REG[inst] * RG)
    stage_GU(e, fl, R2_REG[inst] * RG, shadow=sh_gu)
    st(c + "GU")
    hop_R2(e, o, inst, abort)
    st.rounds(f"n{inst}.R2")
    st(c + "R2")
    if inst == 2 and o.direct:
        stage_D(e, "sc1", L_REG(inst, 1))
        st(c + "D")
        hop_final(e, o, abort)
    else:
        stage_D(e, fl, L_REG(inst, 1))
        st(c + "D")
        hop_LG(e, o, inst, 1, abort, final_only=(inst == 2))
    st.rounds(f"n{inst}.G2")
    st(c + "G2")
    if inst == 2:
        e(f"v_cvt_pk_bf16_f32 v{W0+4}, v{W0}, v{W0+1}"); e(f"v_cvt_pk_bf16_f32 v{W0+5}, v{W0+2}, v{W0+3}")
        store_out(e, 1)
        e("s_cmp_lg_u32 s2, 0"); e("s_cbranch_scc1 L_done")
        e(f"v_mov_b32 v{V_T}, s{S_TAG}"); e(f"v_mov_b32 v{V_T+1}, {EPOCH_OFF}")
        e("s_mov_b64 exec, 1")
        e(f"buffer_store_dword v{V_T}, v{V_T+1}, s[{SRD_WS}:{SRD_WS+3}], 0 offen sc1")
        e("s_mov_b64 exec, -1")
        return
    residual_update(e)
    qrow = 0 if inst == 0 else 1
    def sh_q():
        residual_unpack(e, W0 + 4); g_soffs(e, S_RGRP, R3_REG[inst] * RG)
        if inst == 1:
            store_out(e, 0)
            cm = cols_mask([1]); e(f"s_mov_b32 vcc_lo, 0x{cm & 0xffffffff:08x}"); e(f"s_mov_b32 vcc_hi, 0x{cm >> 32:08x}")
            e(f"v_cndmask_b32 v{V_PQ}, v{V_OOB}, v{V_PQ}, vcc"); e(f"v_cndmask_b32 v{V_PSQ}, v{V_OOB}, v{V_PSQ}, vcc")
    stage_Q(e, fl, R3_REG[inst] - qrow, shadow=sh_q)
    st(c + "Q")
    hop_R3(e, o, R3_REG[inst], qrow, abort)
    e.lg_all()
    st.rounds(f"n{inst}.R3")
    st(c + "R3")

TOK1 = 21 * RG
TOK2 = TOK1 + 32768
EPOCH_OFF = 896
S_TAG = 73

o_direct = [True]
def emit_resets_P(e):
    e(f"v_mov_b32 v{W0}, -1"); e(f"v_mov_b32 v{W0+1}, -1"); e(f"v_mov_b32 v{W0+2}, -1"); e(f"v_mov_b32 v{W0+3}, -1")
    for r in [4, 5, 6]:
        e(f"s_add_u32 s{S_A}, s{S_ROWN}, {r*RG}")
        e.vm(f"buffer_store_dwordx4 {vr(W0,4)}, v{V_R}, s[{SRD_WS}:{SRD_WS+3}], s{S_A} offen sc1", "rstp")
    e(f"v_lshlrev_b32 v{V_T}, 4, v{V_LANE}")
    selmask(e, W0 + 4, V_T, rows_mask([0], 24))
    e(f"s_add_u32 s{S_A}, s{S_ROWN}, {R2_REG['P']*RG}")
    e.vm(f"buffer_store_dwordx4 {vr(W0,4)}, v{W0+4}, s[{SRD_WS}:{SRD_WS+3}], s{S_A} offen sc1", "rstp")

def emit_resets(e, f):
    e(f"v_mov_b32 v{W0}, -1"); e(f"v_mov_b32 v{W0+1}, -1"); e(f"v_mov_b32 v{W0+2}, -1"); e(f"v_mov_b32 v{W0+3}, -1")
    def reset(vo, sreg, const):
        e(f"s_add_u32 s{S_A}, s{sreg}, {const}")
        e.vm(f"buffer_store_dwordx4 {vr(W0,4)}, v{vo}, s[{SRD_WS}:{SRD_WS+3}], s{S_A} offen {f}", "rst")
    e(f"v_and_b32 v{V_T}, 31, v{V_LANE}"); e(f"v_lshlrev_b32 v{V_T}, 4, v{V_T}")
    e(f"v_lshrrev_b32 v{V_T+1}, 5, v{V_LANE}"); e(f"v_lshl_add_u32 v{V_T}, v{V_T+1}, 9, v{V_T}")
    liv = {0: [0], 1: [0, 1], 2: [1], 'P': [0]}
    skip = e.newlabel("norstg")
    e(f"s_cmp_lg_u32 s{S_HQ}, 0"); e(f"s_cbranch_scc1 {skip}")
    for inst in (0, 1, 2):
        selmask(e, W0 + 4, V_T, rows_mask(liv[inst], 20))
        for k in range(2):
            e(f"s_add_u32 s{S_A}, s{S_GOWN}, {G_OFF(inst,k)}")
            e(f"buffer_store_dwordx4 {vr(W0,4)}, v{W0+4}, s[{SRD_WS}:{SRD_WS+3}], s{S_A} offen sc1")
    e.label(skip)
    for r in [7, 8] + list(R1_REG.values()): reset(V_R, S_ROWN, r * RG)
    for inst in (0, 1, 2):
        selmask(e, W0 + 4, V_T, rows_mask(liv[inst], 25))
        reset(W0 + 4, S_ROWN, R2_REG[inst] * RG)
        selmask(e, W0 + 4, V_T, rows_mask(liv[inst], 20))
        for k in range(2):
            if inst == 2 and k == 1 and o_direct[0]:
                e(f"s_add_u32 s{S_A}, s{S_LOWN}, {L_REG(inst, k) * RG}")
                e.vm(f"buffer_store_dwordx4 {vr(W0,4)}, v{W0+4}, s[{SRD_WS}:{SRD_WS+3}], s{S_A} offen sc1", "rst")
            else: reset(W0 + 4, S_LOWN, L_REG(inst, k) * RG)

def token_store(e, base, second):
    e(f"s_lshl_b32 s{S_A}, s2, 7"); e(f"s_add_u32 s{S_A}, s{S_A}, {base}")
    e(f"v_mov_b32 v{W0+40}, s{S_TAG}"); e(f"v_mov_b32 v{W0+41}, {second}"); e(f"v_mov_b32 v{V_T}, 0")
    e("s_mov_b64 exec, 1")
    e.vm(f"buffer_store_dwordx2 {vr(W0+40,2)}, v{V_T}, s[{SRD_WS}:{SRD_WS+3}], s{S_A} offen sc1", "tok")
    e("s_mov_b64 exec, -1")

def token_gather(e, o, base, vo, mask, sleep=0, dst=W0, between=None):
    lab = e.newlabel("tok"); chk = e.newlabel("tokchk")
    if between:
        e(f"s_mov_b32 s{S_B}, {base}")
        set_exec(e, mask)
        e(f"buffer_load_dwordx2 {vr(dst,2)}, v{vo}, s[{SRD_WS}:{SRD_WS+3}], s{S_B} offen sc1")
        e("s_mov_b64 exec, -1")
        between()
        e(f"s_mov_b32 s{S_A}, {base}")
        set_exec(e, mask)
        e(f"s_mov_b32 s{S_CNT}, {o.poll_limit}")
        e(f"s_branch {chk}")
    else:
        e(f"s_mov_b32 s{S_A}, {base}")
        set_exec(e, mask)
        e(f"s_mov_b32 s{S_CNT}, {o.poll_limit}")
    e.label(lab)
    e(f"buffer_load_dwordx2 {vr(dst,2)}, v{vo}, s[{SRD_WS}:{SRD_WS+3}], s{S_A} offen sc1")
    e(f"s_sub_u32 s{S_CNT}, s{S_CNT}, 1"); e(f"s_cbranch_scc1 L_abort")
    e.label(chk)
    e("s_waitcnt vmcnt(0)")
    e(f"v_cmp_ne_u32 vcc, s{S_TAG}, v{dst}")
    if sleep:
        ok = e.newlabel("tokok"); e(f"s_cbranch_vccz {ok}"); e(f"s_sleep {sleep}"); e(f"s_branch {lab}"); e.label(ok)
    else: e(f"s_cbranch_vccnz {lab}")
    e.vmq = []

def tr_block(e, items):
    i, g, r, c, t = W0, W0 + 1, W0 + 2, W0 + 3, W0 + 4
    a32, a16 = W0 + 6, W0 + 7
    def tr_setup():
        e(f"v_and_b32 v{i}, 15, v{V_LANE}"); e(f"v_lshrrev_b32 v{g}, 4, v{V_LANE}")
        e(f"v_lshrrev_b32 v{r}, 2, v{i}"); e(f"v_and_b32 v{c}, 3, v{i}")
    def trbase(dst, stride, rows_per_g, base):
        e(f"v_mul_u32_u24 v{t}, {rows_per_g}, v{g}"); e(f"v_add_u32 v{t}, v{t}, v{r}")
        e(f"v_mul_u32_u24 v{t}, {stride}, v{t}"); e(f"v_lshl_add_u32 v{dst}, v{c}, 3, v{t}")
        if base: e(f"v_add_u32 v{dst}, {base}, v{dst}")
    def tr(frag, addr, off, k16, stride):
        f, lo = frag
        e.lg(f"ds_read_b64_tr_b16 {f}[{lo}:{lo+1}], v{addr} offset:{off}", "tr")
        if not k16: e.lg(f"ds_read_b64_tr_b16 {f}[{lo+2}:{lo+3}], v{addr} offset:{off+4*stride}", "tr")
        if len(e.lgq) >= 12: e.lg_wait_n(4)
    if True:
        tr_setup()
        for frag, nt, stride, base, ks in items:
            trbase(a32, stride, 8, base); trbase(a16, stride, 4, base)
            nk = len(ks)
            for tt in range(nt):
                for s, k0 in enumerate(ks):
                    k16 = (frag is not wo_frag) and s == nk - 1
                    tr(frag(tt, s), a16 if k16 else a32, k0 * stride + 32 * tt, k16, stride)
        e.lg_all()

def prologue_weights(e, o, st):
    abort = "L_abort"
    e(f"v_mov_b32 v{W0+2}, 0x3f803f80"); e(f"v_mov_b32 v{W0+3}, 0x3f803f80")
    e(f"v_lshlrev_b32 v{W0+4}, 3, v{V_LANE}"); e(f"v_add_u32 v{W0+4}, {ACT_X+384}, v{W0+4}")
    set_exec(e, mask64(range(24)))
    e.lg(f"ds_write_b64 v{W0+4}, {vr(W0+2,2)}", "ones")
    e("s_mov_b64 exec, -1")
    e.lg(f"ds_write_b64 v{V_WX}, {vr(V_XR,2)}", "wx")
    e(f"v_lshlrev_b32 v{V_XR+2}, 16, v{V_XR+1}"); e(f"v_and_b32 v{V_XR+3}, 0xffff0000, v{V_XR+1}")
    e(f"v_and_b32 v{V_XR+1}, 0xffff0000, v{V_XR}"); e(f"v_lshlrev_b32 v{V_XR}, 16, v{V_XR}")
    e.lg_all()
    lab = e.newlabel("wflag")
    e(f"v_mov_b32 v{V_T+1}, {WFLAG}")
    e(f"s_mov_b32 s{S_CNT}, {o.poll_limit*8}")
    e.label(lab)
    e(f"ds_read_b96 {vr(W0,3)}, v{V_T+1}")
    e(f"s_sub_u32 s{S_CNT}, s{S_CNT}, 1"); e(f"s_cbranch_scc1 {abort}")
    e("s_waitcnt lgkmcnt(0)")
    e(f"v_and_b32 v{W0}, v{W0}, v{W0+1}"); e(f"v_and_b32 v{W0}, v{W0}, v{W0+2}")
    e(f"v_cmp_ne_u32 vcc, 1, v{W0}")
    e(f"s_cbranch_vccnz {lab}")
    st("p.wland")
    tr_block(e, [(wq_frag, 12, 384, ST_WQ, (0, 32, 64)), (wg_frag, 3, 96, ST_WG, (0, 32, 64)), (wu_frag, 3, 96, ST_WU, (0, 32, 64))])
    st("p.weights")

def cw_load_tiles(e, o, base):
    R = NS(voffK=1, voffX=2, voffY=3)
    for T in range(CW_TILES):
        kv_soff(e, base, T)
        for s in range(3): ld_k(e, R, vr(CW_K + 12 * T + 4 * s, 4), s, ('K', T, s), o)
    for T in range(CW_TILES):
        kv_soff(e, base, T)
        for w in range(3): ld_v(e, R, vr(CW_V + 12 * T + 4 * w, 4), w, ('V', T, w), o)

def chain_wave(e, o, st, local):
    fl = "" if local else "sc1"
    abort = "L_abort"
    R = NS(vlds=V_L16, voffK=1, voffX=2, voffY=3, sel=V_SEL, qA=32, D=44, sc=56, tmp=57, vpw=62, acc=32, A=44, pp=52, vpp=63, vm=60, vl=61, vlt=59)
    instance_offsets(e, [0, 1], pub_live=[2], q_live=[0, 1, 2])
    stage_Q(e, fl, R3_REG['P'])
    stage_GU(e, fl, R2_REG['P'] * RG - 1024, with_stats=False)
    st("p.pub")
    emit_resets(e, fl)
    st("reset")
    tr_block(e, [(wo_frag, 5, 160, ST_WO, (0, 32, 64, 96, 128, 160)), (wd_frag, 5, 160, ST_WD, (0, 32))])
    GA = CW_K
    e(f"v_and_b32 v{V_T}, 31, v{V_LANE}"); e(f"v_lshlrev_b32 v{V_T}, 4, v{V_T}")
    selmask(e, W0 + 40, V_T, rows_mask([0, 1], 24))
    sr = list(range(10, 18))
    for k, reg in enumerate((4, 5, 6, R2_REG['P'])):
        e(f"s_add_u32 s{sr[2*k]}, s{S_RGRP}, {reg*RG}"); e(f"s_add_u32 s{sr[2*k+1]}, s{sr[2*k]}, 4096")
    loads = []
    for row in range(3):
        loads += [(GA + 32 * row + 4 * k, V_R, sr[2*row + (k >= 4)], (k % 4) * 1024) for k in range(8)]
    loads += [(W0 + 32, V_ML, sr[0], 0), (W0 + 36, V_ML, sr[2], 0)]
    loads += [(W0 + 4 * k, W0 + 40, sr[6 + (k >= 4)], (k % 4) * 1024) for k in range(8)]
    poll(e, o, loads, abort, sleep=o.p_sleep)
    token_store(e, TOK2, 0)
    st("p.gather")
    sum_loads(e, 8, GA + 64)
    for rr in range(4): e(f"v_mov_b32 v{V_CSQ+rr}, v{GA+64+rr}")
    sum_loads(e, 8, W0)
    for rr in range(4): e(f"v_mov_b32 v{V_CSG+rr}, v{W0+rr}")
    for row in range(2):
        q_consume(e, GA + 32 * row, W0 + 32 + 4 * row, row)
    st("q1")
    def load_tiles(base): cw_load_tiles(e, o, base)
    load_tiles(S_KV0)
    instance_offsets(e, [0])
    L = V_LANE; t, u = W0 + 2, W0 + 3
    TO, TD = W0 + 38, W0 + 36
    e(f"v_and_b32 v{t}, 7, v{L}"); e(f"v_lshlrev_b32 v{u}, 3, v{t}")
    e(f"s_lshl_b32 s{S_T0}, s{S_HQ}, 6"); e(f"s_add_u32 s{S_T0}, s{S_T0}, s{S_XC}"); e(f"v_add_u32 v{W0+4}, s{S_T0}, v{u}")
    e(f"v_lshlrev_b32 v{u}, 6, v{t}")
    e(f"s_lshl_b32 s{S_T1}, s{S_J}, 3"); e(f"s_add_u32 s{S_T0}, s{S_T1}, s{S_XC}"); e(f"v_add_u32 v{W0+5}, s{S_T0}, v{u}")
    e(f"v_add_u32 v{W0+6}, s{S_T1}, v{t}")
    e("s_mov_b32 vcc_lo, 0x00000f00"); e("s_mov_b32 vcc_hi, 0"); e(f"v_cndmask_b32 v{W0+4}, v{W0+4}, v{W0+5}, vcc")
    e("s_mov_b32 vcc_lo, 0x00ff0000"); e(f"v_cndmask_b32 v{W0+4}, v{W0+4}, v{W0+6}, vcc")
    e(f"v_bfe_u32 v{u}, v{L}, 3, 2"); e(f"v_lshlrev_b32 v{u}, 6, v{u}"); e(f"v_add_u32 v{W0+6}, v{W0+6}, v{u}")
    e("s_mov_b32 vcc_lo, 0"); e("s_mov_b32 vcc_hi, -1"); e(f"v_cndmask_b32 v{W0+4}, v{W0+4}, v{W0+6}, vcc")
    e(f"v_lshlrev_b32 v{TO}, 7, v{W0+4}")
    tmask = 0xffffffff00ff0fff if o.direct else 0x00ff0fff
    def first_pass():
        e.vmq.append("tok2")
        e.lg_all()
        st("pro_done")
        e("s_barrier")
        if "stopA" in o.exp: e("s_branch L_done")
        def kw(T):
            if T >= 0: e.vm_wait(('K', T, 2))
        def vw(T, w): e.vm_wait(('V', T, w))
        attn_pass(e, R, CW_TILES, 0, Kf, Vf, S_PB, 0, k_wait=kw, v_wait=vw)
    Kf = lambda T, s: vr(CW_K + 12 * T + 4 * s, 4)
    Vf = lambda T, w: vr(CW_V + 12 * T + 4 * w, 4)
    token_gather(e, o, TOK2, TO, tmask, sleep=o.t_sleep, dst=TD, between=first_pass)
    e("s_mov_b64 exec, -1")
    st("p.tok2g")
    e("s_barrier")
    st("bar2")
    parts = [PART + 1536 * w for w in range(4)]
    combine_publish(e, fl, parts, ML, R1_REG[0])
    st("c0.cmb")
    sv = o.preR; o.preR = sv + o.preR0
    hop_R1(e, o, R1_REG[0], 0, abort)
    o.preR = sv
    chain(e, o, fl, 0, [0], abort, st)
    st("chain0")
    e("s_barrier")
    attn_pass(e, R, CW_TILES, 0, Kf, Vf, S_PB, 32)
    e("s_barrier")
    parts_early = [PART] + [LDS_SW * s + 48 * 1024 for s in range(3)]
    combine_publish(e, fl, parts_early, ML + 32, R1_REG['1a'])
    load_tiles(S_KV1)
    instance_offsets(e, [0, 1])
    hop_R1(e, o, R1_REG['1a'], 0, abort)
    e.vmq = []
    attn_pass(e, R, CW_TILES, 1, Kf, Vf, S_PB, 0)
    e("s_barrier")
    st("bar6")
    combine_publish(e, fl, parts, ML, R1_REG['1b'])
    st("c1.cmb")
    hop_R1(e, o, R1_REG['1b'], 1, abort)
    chain(e, o, fl, 1, [0, 1], abort, st)
    st("chain1")
    e("s_barrier")
    attn_pass(e, R, CW_TILES, 1, Kf, Vf, S_PB, 0)
    instance_offsets(e, [1])
    e("s_barrier")
    st("bar8")
    combine_publish(e, fl, parts, ML, R1_REG[2])
    st("c2.cmb")
    hop_R1(e, o, R1_REG[2], 1, abort)
    chain(e, o, fl, 2, [1], abort, st)
    st("chain2")
    e("s_branch L_done")

def chain_wave_setup(e, o, st):
    L = V_LANE
    if o.prio: e(f"s_setprio {o.prio}")
    lane_id(e, L)
    e(f"v_mov_b32 v{W0}, 0"); e(f"v_mov_b32 v{W0+1}, {WFLAG}"); e(f"v_lshl_add_u32 v{W0+1}, v{L}, 2, v{W0+1}")
    e("s_mov_b64 exec, 15")
    e.lg(f"ds_write_b32 v{W0+1}, v{W0}", "z")
    e("s_mov_b64 exec, -1")
    e(f"v_mov_b32 v{V_OOB}, 0x{OOB:08x}")
    e(f"s_lshl_b32 s{S_RGRP}, s{S_H}, 13"); e(f"s_lshl_b32 s{S_T0}, s{S_J}, 10"); e(f"s_add_u32 s{S_ROWN}, s{S_RGRP}, s{S_T0}")
    e(f"s_lshl_b32 s{S_LGRP}, s{S_XC}, 3"); e(f"s_add_u32 s{S_LGRP}, s{S_LGRP}, s{S_J}"); e(f"s_lshl_b32 s{S_LGRP}, s{S_LGRP}, 12")
    e(f"s_lshl_b32 s{S_T0}, s{S_HQ}, 10"); e(f"s_add_u32 s{S_LOWN}, s{S_LGRP}, s{S_T0}")
    e(f"s_lshl_b32 s{S_GGRP}, s{S_J}, 13"); e(f"s_lshl_b32 s{S_T0}, s{S_XC}, 10"); e(f"s_add_u32 s{S_GOWN}, s{S_GGRP}, s{S_T0}")
    e.lg_all()
    e("s_barrier")
    late_common(e)
    if "nocw" in o.exp:
        e("s_barrier")
        st("bar1x")
        e("s_branch L_done")
    e(f"v_lshlrev_b32 v{V_L16}, 4, v{L}")
    selmask(e, V_R, V_L16, mask64(range(49)))
    e(f"s_load_dword s{S_TAG}, s[{S_WS}:{S_WS+1}], {EPOCH_OFF}")
    emit_resets_P(e)
    e(f"s_getreg_b32 s{S_T2}, hwreg(HW_REG_XCC_ID)"); e(f"s_and_b32 s{S_T2}, s{S_T2}, 0xf")
    make_srd(e, SRD_T, S_X, 2560)
    e(f"v_and_b32 v{V_T}, 31, v{L}"); e(f"v_lshlrev_b32 v{V_T}, 3, v{V_T}")
    e(f"v_lshrrev_b32 v{V_T+1}, 5, v{L}"); e(f"v_mul_u32_u24 v{V_T+1}, 1280, v{V_T+1}"); e(f"v_add_u32 v{V_T}, v{V_T}, v{V_T+1}")
    selmask(e, V_T, V_T, rows_mask([0, 1], 20))
    e(f"s_mul_i32 s{S_T0}, s{S_J}, 160")
    e.vm(f"buffer_load_dwordx2 {vr(V_XR,2)}, v{V_T}, s[{SRD_T}:{SRD_T+3}], s{S_T0} offen", "x")
    e(f"s_add_u32 s{S_KV1}, s{S_KV0}, {BATCH_STRIDE}")
    R = NS(voffK=1, voffX=2, voffY=3, sel=V_SEL)
    attn_selectors(e, R, L, W0)
    n, g, x = W0, W0 + 1, W0 + 2
    e(f"v_mov_b32 v{W0+3}, v{V_L16}"); selmask(e, V_L16, W0 + 3, mask64(range(48)), other=0)
    e(f"v_and_b32 v{n}, 15, v{L}"); e(f"v_lshrrev_b32 v{g}, 4, v{L}")
    e(f"v_min_u32 v{x}, 1, v{n}")
    e(f"v_mul_u32_u24 v{V_BO}, 384, v{x}"); e(f"v_lshl_add_u32 v{V_BO}, v{g}, 4, v{V_BO}"); e(f"v_add_u32 v{V_BO}, {ACT_O}, v{V_BO}")
    e(f"v_lshlrev_b32 v{V_BH}, 7, v{x}"); e(f"v_lshl_add_u32 v{V_BH8}, v{g}, 3, v{V_BH}"); e(f"v_add_u32 v{V_BH8}, {ACT_H+64}, v{V_BH8}")
    e(f"v_lshl_add_u32 v{V_BH}, v{g}, 4, v{V_BH}"); e(f"v_add_u32 v{V_BH}, {ACT_H}, v{V_BH}")
    e(f"v_min_u32 v{x}, 2, v{n}")
    e(f"v_mul_u32_u24 v{V_BX}, 192, v{x}"); e(f"v_lshl_add_u32 v{V_BX8}, v{g}, 3, v{V_BX}"); e(f"v_add_u32 v{V_BX8}, {ACT_X+128}, v{V_BX8}")
    e(f"v_lshl_add_u32 v{V_BX}, v{g}, 4, v{V_BX}"); e(f"v_add_u32 v{V_BX}, {ACT_X}, v{V_BX}")
    e(f"v_subrev_u32 v{x}, 1, v{n}"); e(f"v_min_u32 v{x}, 2, v{x}")
    e(f"v_mul_u32_u24 v{V_AS}, 192, v{x}"); e(f"v_lshl_add_u32 v{V_AS8}, v{g}, 3, v{V_AS}"); e(f"v_add_u32 v{V_AS8}, {ACT_X+128}, v{V_AS8}")
    e(f"v_lshl_add_u32 v{V_AS}, v{g}, 4, v{V_AS}"); e(f"v_add_u32 v{V_AS}, {ACT_X}, v{V_AS}")
    e(f"v_lshlrev_b32 v{x}, 3, v{L}"); e(f"v_add_u32 v{x}, {SB}, v{x}"); selmask(e, V_W8, x, mask64(range(48)), other=SB+2560)
    e(f"v_and_b32 v{n}, 31, v{L}"); e(f"v_lshrrev_b32 v{g}, 5, v{L}")
    e(f"v_mul_u32_u24 v{x}, 192, v{g}"); e(f"v_lshl_add_u32 v{x}, v{n}, 3, v{x}"); e(f"v_add_u32 v{x}, {ACT_X}, v{x}")
    selmask(e, V_WX, x, rows_mask([0, 1], 20), other=DUMMY)
    e(f"v_lshlrev_b32 v{x}, 7, v{g}"); e(f"v_lshl_add_u32 v{x}, v{n}, 2, v{x}"); e(f"v_add_u32 v{x}, {ACT_H}, v{x}")
    selmask(e, V_WH, x, rows_mask([0, 1], 24), other=DUMMY)
    e(f"v_and_b32 v{x}, 7, v{L}"); e(f"v_lshlrev_b32 v{x}, 10, v{x}"); e(f"v_add_u32 v{V_ML}, 768, v{x}")
    m = mask64([16 * a + 1 for a in range(4)])
    e(f"s_mov_b32 s{S_N1}, 0x{m & 0xffffffff:08x}"); e(f"s_mov_b32 s{S_N1+1}, 0x{m >> 32:08x}")
    e("s_waitcnt lgkmcnt(0)")
    e(f"s_add_u32 s{S_TAG}, s{S_TAG}, 1")
    e.vm_all(force=True)
    token_store(e, TOK1, f"s{S_T2}")
    st("p.tok1")
    TO, TD = W0 + 38, W0 + 36
    e(f"v_lshlrev_b32 v{TO}, 10, v{L}"); e(f"s_lshl_b32 s{S_T0}, s{S_XC}, 7"); e(f"v_add_u32 v{TO}, s{S_T0}, v{TO}")
    token_gather(e, o, TOK1, TO, 0xffffffff, sleep=o.t_sleep, dst=TD, between=lambda: prologue_weights(e, o, st))
    e(f"v_cmp_ne_u32 vcc, s{S_T2}, v{TD+1}")
    e("s_mov_b64 exec, -1")
    st("p.mode")
    e("s_nop 3")
    e("s_cmp_lg_u32 vcc_lo, 0")

def late_common(e):
    make_srd(e, SRD_V, S_V, KV_BYTES); make_srd(e, SRD_WS, S_WS, WS_REC)
    e(f"s_mov_b32 s{S_C}, {lit(CSCALE)}")
    e(f"s_mov_b32 s{S_HI32}, 0"); e(f"s_mov_b32 s{S_HI32+1}, -1")
    e(f"s_mul_i32 s{S_PB}, s{S_WAVE}, 1536"); e(f"s_add_u32 s{S_PB}, s{S_PB}, {PART}")
    e(f"s_lshl_b32 s{S_MLB}, s{S_WAVE}, 3"); e(f"s_add_u32 s{S_MLB}, s{S_MLB}, {ML}")

def generate(o):
    Stamps.select = o.stampset.split(",") if o.stampset else None
    o_direct[0] = o.direct
    e = Emit()
    e("s_cmp_ge_u32 s2, 256"); e("s_cbranch_scc1 L_done")
    e("s_load_dwordx16 s[4:19], s[0:1], 0"); e("s_load_dwordx8 s[20:27], s[0:1], 64")
    e("v_lshrrev_b32 v1, 6, v0")
    e(f"s_and_b32 s{S_XC}, s2, 7"); e(f"s_lshr_b32 s{S_HQ}, s2, 6")
    e(f"v_readfirstlane_b32 s{S_WAVE}, v1")
    e(f"s_lshr_b32 s{S_J}, s2, 3"); e(f"s_and_b32 s{S_J}, s{S_J}, 7")
    e(f"s_lshl_b32 s{S_H}, s{S_XC}, 2"); e(f"s_add_u32 s{S_H}, s{S_H}, s{S_HQ}")
    e(f"s_mul_i32 s{S_KV0}, s{S_H}, {HEAD_STRIDE}"); e(f"s_mul_i32 s{S_T0}, s{S_J}, {CHUNK_STRIDE}"); e(f"s_add_u32 s{S_KV0}, s{S_KV0}, s{S_T0}")
    e(f"s_add_u32 s{S_T0}, s{S_WAVE}, 3"); e(f"s_and_b32 s{S_T0}, s{S_T0}, 3")
    e(f"s_mul_i32 s{S_T1}, s{S_T0}, {SW_TILES*TILE_B}"); e(f"s_add_u32 s{S_KV0}, s{S_KV0}, s{S_T1}")
    lane_id(e, 8)
    attn_load_offsets(e, NS(voffK=1, voffX=2, voffY=3), 8, 10)
    e("s_waitcnt lgkmcnt(0)")
    make_srd(e, SRD_K, S_K, KV_BYTES)
    e(f"s_cmp_eq_u32 s{S_WAVE}, 0"); e("s_cbranch_scc1 L_chain")
    st_s = Stamps(e, o.stamps); st_s("start")
    stream_wave(e, o, st_s)
    e.label("L_chain")
    e.vmq = []; e.lgq = []
    st_c = Stamps(e, o.stamps); st_c("start")
    chain_wave_setup(e, o, st_c)
    names = {}
    if o.force_global: e("s_branch L_global")
    else: e("s_cbranch_scc1 L_global")
    base_names = list(st_c.names)
    sv = (list(e.vmq), list(e.lgq))
    chain_wave(e, o, st_c, True)
    names['cw'] = list(st_c.names); names['sw'] = list(st_s.names)
    e.label("L_global")
    e.vmq, e.lgq = sv
    st_g = Stamps(e, o.stamps); st_g.names = list(base_names)
    chain_wave(e, o, st_g, False)
    e.label("L_abort")
    e.label("L_done")
    if o.stamps:
        e("s_cmp_ge_u32 s2, 256"); e("s_cbranch_scc1 L_exit")
        fl = Stamps(e, True); fl.names = names['cw']; fl.flush()
        e.label("L_exit")
    e("s_endpgm")
    return e, names

HEAD = """; Kernarg: A_x, K, V, wq, wo, B_x, W_gate, W_up, W_down, out, debug, ws (pointers)
; @launch grid=(256,1,1) block=(256,1,1) lds=%d
.amdgcn_target "amdgcn-amd-amdhsa--gfx950"
.text
.globl %s
.p2align 8
.type %s,@function
%s:
"""
FOOT = """
.section .rodata,"a"
.p2align 6
.amdhsa_kernel %s
  .amdhsa_next_free_vgpr 512
  .amdhsa_next_free_sgpr 102
  .amdhsa_accum_offset 256
  .amdhsa_group_segment_fixed_size 0
  .amdhsa_kernarg_size 96
  .amdhsa_user_sgpr_count 2
  .amdhsa_user_sgpr_kernarg_segment_ptr 1
  .amdhsa_system_sgpr_workgroup_id_x 1
  .amdhsa_float_denorm_mode_32 3
.end_amdhsa_kernel
"""
def build_text(o):
    e, names = generate(o)
    return HEAD % (LDS_TOTAL, NAME, NAME, NAME) + e.text() + "\n" + FOOT % NAME, names, e

if __name__ == "__main__":
    o = Opt()
    for a in sys.argv[2:]:
        k, v = a.split("=")
        cur = getattr(o, k)
        setattr(o, k, (v not in ("0", "False")) if isinstance(cur, bool) else type(cur)(v))
    txt, names, e = build_text(o)
    open(sys.argv[1], "w").write(txt)
    print("instructions:", e.ninst, "nops:", e.nops, names)
```

```python
import sys, struct
from types import SimpleNamespace as NS
from emit import Emit, vr

NAME = "interleave_layers__mha_block_cached__glu_gated_reglu__decode_kernel"

class Opt:
    NA = 24
    NA_BAR = 118
    NB = 8
    NB1 = 8
    go_at = "G1"
    NC = 56
    NA0 = 24
    NA0N = 0
    light = False
    pf = 0
    pf_all = False
    NF = 12
    NW = 24
    stamps = False
    poll_limit = 400000
    kvflags = "nt"
    wflags = "nt"
    stampset = ""
    p_sleep = 8
    mb_sleep = 0
    exp = ""
    t_sleep = 0
    early = False
    wb = 0
    prio = 0
    late_rst = False
    preGn = 0
    direct0 = False
    preF0 = 0
    direct = True
    preF = 0
    look = 2
    NAe = 14
    NCe = 24
    preR0 = 0
    preL0 = 0
    preG0 = 0
    preR = 0
    preL = 0
    preG = 6
    flag_sleep = 0
    force_global = False

KV_BYTES = 100663296
BATCH_STRIDE = 50331648
HEAD_STRIDE = 1572864
CHUNK_STRIDE = 196608
TILE_B = 3072
SW_TILES, CW_TILES = 20, 4
OOB = 0x7fff0000

LDS_SW = 51200
SB = 153600
PART = SB
ML = SB + 6144
QARR = SB + 6208
ACT_O = SB + 6976
ACT_X = SB + 7744
ACT_H = SB + 8320
DUMMY = SB + 8576
WFLAG = SB + 10208
LDS_TOTAL = 163840
ST_WQ, ST_WO, ST_WG, ST_WU, ST_WD = 0, 30720, 61440, 69120, 76800

RG = 262144
R1_REG = {0: 0, '1a': 1, '1b': 2, 2: 3}
R3_REG = {'P': 4, 0: 7, 1: 8}
R2_REG = {'P': 9, 0: 10, 1: 11, 2: 12}
L_REG = lambda inst, k: 13 + 2 * inst + k
G_OFF = lambda inst, k: 19 * RG + (2 * inst + k) * 65536
STAMP_OFF = 22 * RG
WS_REC = 24 * RG

CSCALE = (192 ** -0.5) * 1.4426950408889634
EPS = 1e-5
def f2u(x): return struct.unpack("<I", struct.pack("<f", x))[0]
def lit(x): return "0x%08x" % f2u(x)
def mask64(lanes):
    m = 0
    for l in lanes: m |= 1 << l
    return m
def set_exec(e, m):
    if m == (1 << 64) - 1: e("s_mov_b64 exec, -1"); return
    e(f"s_mov_b32 exec_lo, 0x{m & 0xffffffff:08x}")
    e(f"s_mov_b32 exec_hi, 0x{m >> 32:08x}")

S_X, S_K, S_V, S_WQ, S_WO, S_BX, S_WG, S_WU, S_WD, S_OUT, S_DBG, S_WS = 4, 6, 8, 10, 12, 14, 16, 18, 20, 22, 24, 26
S_XC, S_HQ, S_J, S_H = 28, 29, 30, 31
SRD_K, SRD_V = 32, 36
S_KV0, S_KV1, S_SOFF, S_LDSB = 40, 41, 42, 43
SRD_T = 44
SRD_WS = 48
SRD_DBG = 52
S_C = 56
S_ROWN, S_RGRP, S_LOWN, S_LGRP, S_GOWN, S_GGRP = 57, 58, 59, 60, 61, 62
S_A, S_B, S_CNT, S_T0, S_T1, S_T2 = 63, 64, 65, 66, 67, 68
S_PB = 69
S_HI32 = 70
S_MLB = 72
S_GA, S_GB = 100, 101
S_WAVE = 3
S_STAMP = 76

def make_srd(e, srd, ptr, nbytes):
    e(f"s_mov_b32 s{srd}, s{ptr}")
    e(f"s_and_b32 s{srd+1}, s{ptr+1}, 0xffff")
    e(f"s_mov_b32 s{srd+2}, {nbytes}")
    e(f"s_mov_b32 s{srd+3}, 0x20000")

class Stamps:
    select = None
    def __init__(self, e, on): self.e, self.on, self.names = e, on, []
    def __call__(self, name):
        if not self.on: return
        if Stamps.select is not None and not any(name.startswith(p) for p in Stamps.select): return
        if Stamps.select is None and "." in name: return
        n = len(self.names); assert n < 12, "too many stamps"
        self.e(f"s_memrealtime s[{S_STAMP+2*n}:{S_STAMP+2*n+1}]")
        self.e.lg_all(force=True)
        self.names.append(name)
    def rounds(self, name):
        if not self.on: return
        if Stamps.select is None or not any(name.startswith(p) for p in Stamps.select): return
        n = len(self.names); assert n < 12
        self.e(f"s_mov_b32 s{S_STAMP+2*n}, s{S_CNT}"); self.e(f"s_mov_b32 s{S_STAMP+2*n+1}, 0")
        self.names.append(name)
    def flush(self):
        if not self.on: return
        e = self.e
        e("s_mov_b64 exec, 1")
        e(f"s_lshl_b32 s{S_T0}, s2, 2"); e(f"s_add_u32 s{S_T0}, s{S_T0}, s{S_WAVE}"); e(f"s_lshl_b32 s{S_T0}, s{S_T0}, 7")
        e(f"s_add_u32 s{S_T0}, s{S_T0}, {STAMP_OFF}")
        e("v_mov_b32 v0, 0")
        for i in range(len(self.names)):
            e(f"v_mov_b32 v2, s{S_STAMP+2*i}"); e(f"v_mov_b32 v3, s{S_STAMP+2*i+1}")
            e(f"buffer_store_dwordx2 v[2:3], v0, s[{SRD_WS}:{SRD_WS+3}], s{S_T0} offen offset:{8*i}")
            e("s_waitcnt vmcnt(0)")

def lane_id(e, dst):
    e(f"v_mbcnt_lo_u32_b32 {vr(dst)}, -1, 0")
    e(f"v_mbcnt_hi_u32_b32 {vr(dst)}, -1, {vr(dst)}")

def attn_load_offsets(e, R, lane, t):
    i, g, u, w = t, t + 1, t + 2, t + 3
    e(f"v_and_b32 {vr(i)}, 15, {vr(lane)}")
    e(f"v_lshrrev_b32 {vr(g)}, 4, {vr(lane)}")
    e(f"v_and_b32 {vr(u)}, 7, {vr(i)}")
    e(f"v_lshrrev_b32 {vr(w)}, 3, {vr(i)}")
    e(f"v_mul_u32_u24 {vr(R.voffK)}, 384, {vr(u)}")
    e(f"v_lshl_add_u32 {vr(R.voffK)}, {vr(g)}, 4, {vr(R.voffK)}")
    e(f"v_lshl_add_u32 {vr(R.voffK)}, {vr(w)}, 6, {vr(R.voffK)}")
    e(f"v_mul_u32_u24 {vr(R.voffX)}, 768, {vr(g)}")
    e(f"v_mul_u32_u24 {vr(w)}, 384, {vr(w)}")
    e(f"v_add_u32 {vr(R.voffY)}, {vr(R.voffX)}, {vr(w)}")
    e(f"v_lshl_add_u32 {vr(R.voffY)}, {vr(u)}, 4, {vr(R.voffY)}")
    e(f"v_add_u32 {vr(R.voffY)}, 256, {vr(R.voffY)}")
    e(f"v_lshl_add_u32 {vr(R.voffX)}, {vr(i)}, 4, {vr(R.voffX)}")

def attn_selectors(e, R, lane, t):
    i, u, lo, hi = t, t + 1, t + 2, t + 3
    e(f"v_and_b32 {vr(i)}, 15, {vr(lane)}")
    e(f"v_lshrrev_b32 {vr(u)}, 3, {vr(i)}")
    e(f"v_mul_u32_u24 {vr(u)}, 0x202, {vr(u)}")
    e(f"v_add_u32 {vr(u)}, 0x100, {vr(u)}")
    e(f"v_or_b32 {vr(lo)}, 0x0c0c0000, {vr(u)}")
    e(f"v_lshlrev_b32 {vr(hi)}, 16, {vr(u)}")
    e(f"v_or_b32 {vr(hi)}, 0x0c0c, {vr(hi)}")
    e(f"v_and_b32 {vr(u)}, 1, {vr(i)}")
    e(f"v_cmp_eq_u32 vcc, 1, {vr(u)}")
    e(f"v_cndmask_b32 {vr(lo)}, {vr(lo)}, {vr(hi)}, vcc")
    e(f"v_bfe_u32 {vr(u)}, {vr(i)}, 1, 2")
    e(f"v_mov_b32 {vr(hi)}, 0x0c0c0c0c")
    for r in range(4):
        e(f"v_cmp_eq_u32 vcc, {r}, {vr(u)}")
        e(f"v_cndmask_b32 {vr(R.sel+r)}, {vr(hi)}, {vr(lo)}, vcc")

def allreduce_list(reg, tmp, op):
    out = [f"v_{op}_f32_dpp {vr(reg)}, {vr(reg)}, {vr(reg)} row_ror:{k} row_mask:0xf bank_mask:0xf" for k in (8, 4, 2, 1)]
    out += [f"v_mov_b32 {vr(tmp)}, {vr(reg)}", f"v_permlane16_swap_b32 {vr(reg)}, {vr(tmp)}", f"v_{op}_f32 {vr(reg)}, {vr(reg)}, {vr(tmp)}",
            f"v_mov_b32 {vr(tmp)}, {vr(reg)}", f"v_permlane32_swap_b32 {vr(reg)}, {vr(tmp)}", f"v_{op}_f32 {vr(reg)}, {vr(reg)}, {vr(tmp)}"]
    return out

def allreduce(e, reg, tmp, op):
    for k in (8, 4, 2, 1):
        e(f"v_{op}_f32_dpp {vr(reg)}, {vr(reg)}, {vr(reg)} row_ror:{k} row_mask:0xf bank_mask:0xf")
    e(f"v_mov_b32 {vr(tmp)}, {vr(reg)}")
    e(f"v_permlane16_swap_b32 {vr(reg)}, {vr(tmp)}")
    e(f"v_{op}_f32 {vr(reg)}, {vr(reg)}, {vr(tmp)}")
    e(f"v_mov_b32 {vr(tmp)}, {vr(reg)}")
    e(f"v_permlane32_swap_b32 {vr(reg)}, {vr(tmp)}")
    e(f"v_{op}_f32 {vr(reg)}, {vr(reg)}, {vr(tmp)}")

def attn_pre(e, R, ntiles):
    L = R.tmp
    lane_id(e, L)
    e(f"v_and_b32 {vr(L+1)}, 1, {vr(L)}")
    e(f"v_lshrrev_b32 {vr(L+2)}, 4, {vr(L)}")
    e(f"v_lshlrev_b32 {vr(L+2)}, 4, {vr(L+2)}")
    e(f"v_lshl_add_u32 {vr(L+1)}, {vr(L+1)}, 6, {vr(L+2)}")
    e(f"v_add_u32 {vr(L+1)}, {QARR}, {vr(L+1)}")
    e(f"v_add_u32 {vr(R.vpp)}, s{S_PB}, {vr(L+2)}")
    W = R.vpw; t = L + 2
    e(f"v_lshrrev_b32 {vr(t)}, 5, {vr(L)}"); e(f"v_lshlrev_b32 {vr(W)}, 6, {vr(t)}")
    e(f"v_bfe_u32 {vr(t)}, {vr(L)}, 1, 2"); e(f"v_lshl_add_u32 {vr(W)}, {vr(t)}, 4, {vr(W)}")
    e(f"v_bfe_u32 {vr(t)}, {vr(L)}, 3, 2"); e(f"v_lshl_add_u32 {vr(W)}, {vr(t)}, 2, {vr(W)}")
    e(f"v_and_b32 {vr(t)}, 1, {vr(L)}"); e(f"v_lshl_add_u32 {vr(W)}, {vr(t)}, 1, {vr(W)}")
    e(f"v_add_u32 {vr(W)}, s{S_PB}, {vr(W)}")
    nsc = (ntiles + 7) // 8
    for r in range(nsc):
        if (r + 1) * 8 > ntiles: e(f"v_mov_b32 {vr(R.sc+r)}, 0xff800000")

def attn_pass(e, R, ntiles, qrow, Kfrag, Vfrag, part_sreg, ml_off, k_wait=None, qk_hook=None, mid_hook=None,
              v_wait=None, pv_hook=None, stage=None, pre_done=False, mark=None, look=2):
    L = R.tmp
    if not pre_done: attn_pre(e, R, ntiles)
    for s in range(3):
        e.lg(f"ds_read_b128 {vr(R.qA+4*s,4)}, {vr(L+1)} offset:{qrow*384 + 128*s}", ("q", s))
    W = R.vpw
    nsc = (ntiles + 7) // 8
    stg = {}
    def stage_k(T):
        if T >= ntiles: return
        for s in range(3):
            f = Kfrag(T, s)
            if isinstance(f, tuple):
                reg = stage[(3 * T + s) % len(stage)]
                e.lg(f"ds_read_b128 {vr(reg,4)}, {vr(R.vlds)} offset:{f[1]}", ("k", T, s))
                stg[(T, s)] = vr(reg, 4)
    LOOK = look
    if k_wait: k_wait(-1)
    for T in range(min(LOOK, ntiles)): stage_k(T)
    e.lg_wait(("q", 2))
    def dpp_add(T):
        D = R.D + 4 * (T % 3)
        dst = vr(R.sc + (T >> 3)); rm = 1 << ((T >> 1) & 3)
        if T % 2 == 0: e(f"v_add_f32_dpp {dst}, {vr(D+1)}, {vr(D)} row_ror:8 row_mask:0x{rm:x} bank_mask:0x3")
        else:          e(f"v_add_f32_dpp {dst}, {vr(D)}, {vr(D+1)} row_ror:8 row_mask:0x{rm:x} bank_mask:0xc")
    for T in range(ntiles):
        if k_wait: k_wait(T)
        D = vr(R.D + 4 * (T % 3), 4)
        for s in range(3):
            f = Kfrag(T, s)
            if isinstance(f, tuple):
                e.lg_wait(("k", T, s)); f = stg[(T, s)]
            e(f"v_mfma_f32_16x16x32_bf16 {D}, {vr(R.qA+4*s,4)}, {f}, {'0' if s == 0 else D}")
        stage_k(T + LOOK)
        if qk_hook: qk_hook(T)
        if T >= 2: dpp_add(T - 2)
    for T in range(max(0, ntiles - 2), ntiles): dpp_add(T)
    if mark: mark("qk")
    t0, t1 = R.D, R.D + 1
    if nsc == 1: e(f"v_mov_b32 {vr(t0)}, {vr(R.sc)}")
    elif nsc == 2: e(f"v_max_f32 {vr(t0)}, {vr(R.sc)}, {vr(R.sc+1)}")
    else: e(f"v_max3_f32 {vr(t0)}, {vr(R.sc)}, {vr(R.sc+1)}, {vr(R.sc+2)}")
    allreduce(e, t0, t1, "max")
    e(f"v_mul_f32 {vr(R.vm)}, s{S_C}, {vr(t0)}")
    for r in range(nsc): e(f"v_fma_f32 {vr(R.sc+r)}, {vr(R.sc+r)}, s{S_C}, -{vr(R.vm)}")
    for r in range(nsc): e(f"v_exp_f32 {vr(R.sc+r)}, {vr(R.sc+r)}")
    for r in range(nsc): e(f"v_cvt_pk_bf16_f32 {vr(R.D+2+r)}, {vr(R.sc+r)}, {vr(R.sc+r)}")
    for r in range(nsc): e.lg(f"ds_write_b16 {vr(W)}, {vr(R.D+2+r)} offset:{128*r}", ("pw", r))
    nq = (ntiles + 3) // 4
    ppreg = lambda q: R.pp + 4 * (q % 2)
    if nsc == 1: e(f"v_mov_b32 {vr(R.vl)}, {vr(R.sc)}")
    else:
        e(f"v_add_f32 {vr(R.vl)}, {vr(R.sc)}, {vr(R.sc+1)}")
        if nsc == 3: e(f"v_add_f32 {vr(R.vl)}, {vr(R.vl)}, {vr(R.sc+2)}")
    e.lg(f"ds_read_b128 {vr(ppreg(0),4)}, {vr(R.vpp)}", ("pp", 0))
    if nq > 1: e.lg(f"ds_read_b128 {vr(ppreg(1),4)}, {vr(R.vpp)} offset:64", ("pp", 1))
    lred = allreduce_list(R.vl, R.vlt, "add")
    if ntiles < 12:
        for ins in lred: e(ins)
        lred = []
    if mid_hook: mid_hook()
    if mark: mark("sm")
    X1, X2, Y = R.acc, R.acc + 4, R.acc + 8
    def build_A(T):
        q = T >> 2
        e.lg_wait(("pp", q))
        A = R.A + 4 * (T % 2); src = vr(ppreg(q) + (T & 3))
        return [f"v_perm_b32 {vr(A+r)}, {src}, {src}, {vr(R.sel+r)}" for r in range(4)]
    for ins in build_A(0): e(ins)
    for T in range(ntiles):
        A = vr(R.A + 4 * (T % 2), 4)
        nxt = build_A(T + 1) if T + 1 < ntiles else []
        if v_wait: v_wait(T, 0)
        e(f"v_mfma_f32_16x16x32_bf16 {vr(X1,4)}, {A}, {Vfrag(T,0)}, {'0' if T == 0 else vr(X1,4)}")
        for ins in nxt[:2]: e(ins)
        if v_wait: v_wait(T, 1)
        e(f"v_mfma_f32_16x16x32_bf16 {vr(X2,4)}, {A}, {Vfrag(T,1)}, {'0' if T == 0 else vr(X2,4)}")
        for ins in nxt[2:]: e(ins)
        if v_wait: v_wait(T, 2)
        e(f"v_mfma_f32_16x16x32_bf16 {vr(Y,4)}, {A}, {Vfrag(T,2)}, {'0' if T == 0 else vr(Y,4)}")
        if (T & 3) == 2 and (T >> 2) + 2 < nq:
            q2 = (T >> 2) + 2
            e.lg(f"ds_read_b128 {vr(ppreg(q2),4)}, {vr(R.vpp)} offset:{64*q2}", ("pp", q2))
        if lred and T >= 1: e(lred.pop(0))
        if pv_hook: pv_hook(T)
    assert not lred
    if mark: mark("pv")
    p = R.pp
    lane_id(e, p)
    e(f"v_and_b32 {vr(p+1)}, 15, {vr(p)}")
    e(f"v_lshrrev_b32 {vr(p+2)}, 4, {vr(p)}")
    e(f"v_and_b32 {vr(p+3)}, 1, {vr(p+2)}")
    e(f"v_lshrrev_b32 {vr(p+2)}, 1, {vr(p+2)}")
    e(f"v_mul_u32_u24 {vr(p+2)}, 768, {vr(p+2)}")
    e(f"v_lshl_add_u32 {vr(p+2)}, {vr(p+3)}, 4, {vr(p+2)}")
    e(f"v_add_u32 {vr(p+2)}, s{part_sreg}, {vr(p+2)}")
    e(f"v_lshl_add_u32 {vr(p+4)}, {vr(p+1)}, 5, {vr(p+2)}")
    e(f"v_and_b32 {vr(p+1)}, 7, {vr(p+1)}")
    e(f"v_lshl_add_u32 {vr(p+5)}, {vr(p+1)}, 5, {vr(p+2)}")
    e(f"v_mov_b32 {vr(p+6)}, s{S_MLB}")
    e(f"v_mov_b32 {vr(R.A)}, {vr(R.vm)}"); e(f"v_mov_b32 {vr(R.A+1)}, {vr(R.vl)}")
    for r in range(4):
        e(f"v_cndmask_b32 {vr(X1+r)}, {vr(X1+r)}, {vr(X2+r)}, s[{S_HI32}:{S_HI32+1}]")
    e.lg(f"ds_write_b128 {vr(p+4)}, {vr(X1,4)}", "px")
    set_exec(e, 0xFF00FF0000FF00FF)
    e.lg(f"ds_write_b128 {vr(p+5)}, {vr(Y,4)} offset:512", "py")
    e("s_mov_b64 exec, 1")
    e.lg(f"ds_write_b64 {vr(p+6)}, {vr(R.A,2)} offset:{ml_off}", "pm")
    e("s_mov_b64 exec, -1")
    e.lg_all()

def kv_soff(e, base_sreg, T):
    e(f"s_add_u32 s{S_SOFF}, s{base_sreg}, {T*TILE_B}")
def ld_k(e, R, dst, s, tag, o):
    e.vm(f"buffer_load_dwordx4 {dst}, {vr(R.voffK)}, s[{SRD_K}:{SRD_K+3}], s{S_SOFF} offen offset:{128*s} {o.kvflags}", tag)
def ld_v(e, R, dst, w, tag, o):
    vo = R.voffY if w == 2 else R.voffX
    off = 384 if w == 1 else 0
    e.vm(f"buffer_load_dwordx4 {dst}, {vr(vo)}, s[{SRD_V}:{SRD_V+3}], s{S_SOFF} offen offset:{off} {o.kvflags}", tag)
def dma_k(e, R, slot, s, tag, o):
    e(f"s_add_u32 m0, s{S_LDSB}, {slot*1024 - 128*s + 0}") if slot*1024 - 128*s >= 0 else e(f"s_sub_u32 m0, s{S_LDSB}, {128*s - slot*1024}")
    e.vm(f"buffer_load_dwordx4 {vr(R.voffK)}, s[{SRD_K}:{SRD_K+3}], s{S_SOFF} offen offset:{128*s} {o.kvflags} lds", tag)
def dma_v(e, R, slot, w, tag, o):
    vo = R.voffY if w == 2 else R.voffX
    off = 384 if w == 1 else 0
    e(f"s_add_u32 m0, s{S_LDSB}, {slot*1024 - off}")
    e.vm(f"buffer_load_dwordx4 {vr(vo)}, s[{SRD_V}:{SRD_V+3}], s{S_SOFF} offen offset:{off} {o.kvflags} lds", tag)

def slot_reg(k):
    assert 0 <= k < 118
    return f"a[{4*k}:{4*k+3}]" if k < 64 else f"v[{40+4*(k-64)}:{40+4*(k-64)+3}]"

def weight_dma(e, o):
    L, t, u = 8, 20, 21
    def dma_block(ptr, nbytes, lanes_per_row, magic, shift, nlanes, row_stride, rows_per_instr, ninstr, so, lds0, bar=False):
        make_srd(e, SRD_T, ptr, nbytes)
        e(f"v_mul_u32_u24 v{t}, {magic}, v{L}"); e(f"v_lshrrev_b32 v{t}, {shift}, v{t}")
        e(f"v_mul_u32_u24 v{u}, {lanes_per_row}, v{t}"); e(f"v_sub_u32 v{u}, v{L}, v{u}")
        e(f"s_mov_b32 s{S_T1}, {row_stride}")
        e(f"v_mul_lo_u32 v{t}, v{t}, s{S_T1}"); e(f"v_lshl_add_u32 v{t}, v{u}, 4, v{t}")
        rreg, rmul, creg, cmul = so
        e(f"s_mul_i32 s{S_SOFF}, s{rreg}, {rmul*row_stride}")
        e(f"s_mul_i32 s{S_T1}, s{creg}, {cmul}"); e(f"s_add_u32 s{S_SOFF}, s{S_SOFF}, s{S_T1}")
        set_exec(e, mask64(range(nlanes)))
        if bar: e("s_barrier")
        for i in range(ninstr):
            e(f"s_mov_b32 m0, {lds0 + i*nlanes*16}")
            if i: e(f"s_add_u32 s{S_SOFF}, s{S_SOFF}, {rows_per_instr*row_stride}")
            else: e("s_nop 0")
            e.vm_depth(o.NW - 1)
            e.vm(f"buffer_load_dwordx4 v{t}, s[{SRD_T}:{SRD_T+3}], s{S_SOFF} offen {o.wflags} lds", "w")
        e("s_mov_b64 exec, -1")
    l2, l3, end = e.newlabel("w2"), e.newlabel("w3"), e.newlabel("wend")
    e(f"s_cmp_eq_u32 s{S_WAVE}, 2"); e(f"s_cbranch_scc1 {l2}")
    e(f"s_cmp_eq_u32 s{S_WAVE}, 3"); e(f"s_cbranch_scc1 {l3}")
    base_q = list(e.vmq)
    dma_block(S_WQ, 7864320, 24, 43, 10, 48, 12288, 2, 40, (S_J, 80, S_H, 384), ST_WQ, bar=True)
    e(f"s_branch {end}")
    e.label(l2); e.vmq = list(base_q)
    dma_block(S_WO, 7864320, 10, 103, 10, 60, 1280, 6, 32, (S_H, 192, S_J, 160), ST_WO, bar=True)
    e(f"s_branch {end}")
    e.label(l3); e.vmq = list(base_q)
    dma_block(S_WG, 1966080, 6, 43, 8, 60, 3072, 10, 8, (S_J, 80, S_H, 96), ST_WG, bar=True)
    dma_block(S_WU, 1966080, 6, 43, 8, 60, 3072, 10, 8, (S_J, 80, S_H, 96), ST_WU)
    dma_block(S_WD, 1966080, 10, 103, 10, 60, 1280, 6, 8, (S_H, 48, S_J, 160), ST_WD)
    e.label(end)
    e.vmq = ["w"] * o.NW

S_XPAR = 15
def par_depth(e, n):
    lab = e.newlabel("par")
    e(f"s_cmp_lg_u32 s{S_XPAR}, 0"); e(f"s_cbranch_scc1 {lab}")
    e(f"s_waitcnt vmcnt({n-1})")
    e.label(lab)

def emit_wb(e):
    skip = e.newlabel("nowb")
    e(f"s_cmp_lg_u32 s{S_WAVE}, 1"); e(f"s_cbranch_scc1 {skip}")
    e("s_cmp_ge_u32 s2, 8"); e(f"s_cbranch_scc1 {skip}")
    e("buffer_wbl2 sc1")
    e("s_waitcnt vmcnt(0)")
    e.label(skip)

def stream_wave(e, o, st):
    R = NS(vlds=0, voffK=1, voffX=2, voffY=3, sel=4, qA=8, D=20, sc=32, tmp=20, vpw=35, acc=8, A=20, pp=28, vpp=36, vm=38, vl=39, vlt=37)
    loads = []
    for T in range(SW_TILES):
        for s in range(3): loads.append(('K', T, s))
    for T in range(SW_TILES):
        for w in range(3): loads.append(('V', T, w))
    def k0slot(T, s): return 3 * T + s
    def v0slot(T, w): return 60 + 3 * T + w
    cur = [None]
    def issue0(item):
        kind, T, x = item
        if cur[0] != (kind, T, 0):
            kv_soff(e, S_KV0, T); cur[0] = (kind, T, 0)
        if kind == 'K': ld_k(e, R, slot_reg(k0slot(T, x)), x, ('K0', T, x), o)
        else:
            sl = v0slot(T, x)
            if sl < 118: ld_v(e, R, slot_reg(sl), x, ('V0', T, x), o)
            else: dma_v(e, R, 48 + sl - 118, x, ('V0', T, x), o)
    for item in loads[:o.NF]: issue0(item)
    late_common(e)
    e(f"s_add_u32 s{S_KV1}, s{S_KV0}, {BATCH_STRIDE}")
    e(f"s_sub_u32 s{S_T0}, s{S_WAVE}, 1"); e(f"s_mul_i32 s{S_LDSB}, s{S_T0}, {LDS_SW}")
    if o.NAe or o.NCe:
        e(f"s_getreg_b32 s{S_T0}, hwreg(HW_REG_XCC_ID)"); e(f"s_and_b32 s{S_XPAR}, s{S_T0}, 1")
    nf = list(e.vmq)
    if "now" in o.exp: e("s_barrier")
    else: weight_dma(e, o)
    e.vmq = nf + ["w"] * o.NW if len(nf) + o.NW <= 60 else ["w"] * 60
    cur[0] = None
    st("s.wiss")
    e(f"v_lshlrev_b32 {vr(R.vlds)}, 4, v8")
    e(f"v_add_u32 {vr(R.vlds)}, s{S_LDSB}, {vr(R.vlds)}")
    attn_selectors(e, R, 8, 10)
    for idx, item in enumerate(loads[:o.NA_BAR]):
        if idx < o.NF: continue
        na = o.NA0 if idx < o.NA0N else o.NA
        e.vm_depth(na - 1)
        if o.NAe: par_depth(e, o.NAe)
        if idx == o.NF + max(o.NA, o.NA0):
            e(f"s_lshl_b32 s{S_T0}, s{S_WAVE}, 2"); e(f"s_add_u32 s{S_T0}, s{S_T0}, {WFLAG-4}")
            e(f"v_mov_b32 v20, s{S_T0}"); e("v_mov_b32 v21, 1")
            e.lg("ds_write_b32 v20, v21", "wf")
            st("s.wland")
        if idx == 60: st("s.k0iss")
        if idx == 90: st("s.v30")
        issue0(item)
    st("A_issued")
    attn_pre(e, R, SW_TILES)
    e("s_barrier")
    st("bar1")
    if "nocw" in o.exp or "cw" in o.exp or "stopA" in o.exp:
        e.vm_all(); st("s.alland"); st.flush(); e("s_endpgm")
    pend = [('0', it) for it in loads[o.NA_BAR:]]
    for T in range(16):
        for s in range(3): pend.append(('1', T, s))
    cur1 = [None]
    def issue_pend():
        it = pend.pop(0)
        if it[0] == '0': cur1[0] = None; issue0(it[1])
        else:
            _, T, s = it
            if cur1[0] != T:
                kv_soff(e, S_KV1, T); cur1[0] = T; cur[0] = None
            dma_k(e, R, 3 * T + s, s, ('K1', T, s), o)
    while pend[0][0] == '0': issue_pend()
    def Kf0(T, s): return slot_reg(k0slot(T, s))
    def Vf0(T, w):
        sl = v0slot(T, w)
        if sl < 118: return slot_reg(sl)
        return "v[32:35]" if w == 1 else "v[28:31]"
    def k_wait_A(T):
        if T == -1: e.vm_wait(('K0', SW_TILES - 1, 2))
    def pv_hook_A(T):
        left = SW_TILES - 1 - T
        target = max(o.NB1, min(o.NA, 3 * left + o.NB1)) if o.NB1 else 0
        if T == SW_TILES - 2:
            e.vm_wait(('V0', SW_TILES - 1, 2))
            e.lg(f"ds_read_b128 v[32:35], {vr(R.vlds)} offset:{48*1024}", ("vo", 1))
            e.lg(f"ds_read_b128 v[28:31], {vr(R.vlds)} offset:{49*1024}", ("vo", 2))
            target = o.NB1
        while pend and len(e.vmq) < target: issue_pend()
    def vwait_A(T, w):
        e.vm_wait(('V0', T, w))
        if T == SW_TILES - 1 and w >= 1: e.lg_wait(("vo", w))
    attn_pass(e, R, SW_TILES, 0, Kf0, Vf0, S_PB, 0, k_wait=k_wait_A, v_wait=vwait_A, pv_hook=pv_hook_A, pre_done=True)
    st("A_done")
    e("s_barrier")
    if o.NB1 == o.NB:
        while pend:
            e.vm_depth(o.NB - 1)
            issue_pend()
    else:
        items = list(pend); pend.clear()
        q0 = list(e.vmq); c0 = cur1[0]
        fast = {i: e.newlabel("fastB") for i in range(len(items))}
        done = e.newlabel("doneB")
        e(f"v_mov_b32 v20, {WFLAG + 12}")
        def emit_item(it, force_soff):
            _, T, s = it
            if cur1[0] != T or force_soff:
                kv_soff(e, S_KV1, T); cur1[0] = T
            dma_k(e, R, 3 * T + s, s, ('K1', T, s), o)
        marks = [i for i, it in enumerate(items) if it[2] == 0]
        if o.NB1 == 0:
            spin = e.newlabel("spinB")
            e(f"s_mov_b32 s{S_CNT}, {o.poll_limit*8}")
            e.label(spin)
            e(f"s_sub_u32 s{S_CNT}, s{S_CNT}, 1"); e(f"s_cbranch_scc1 {fast[0]}")
            e.lg("ds_read_b32 v21, v20", "go"); e.lg_all()
            e(f"v_readfirstlane_b32 s{S_T0}, v21")
            e(f"s_cmp_lg_u32 s{S_T0}, 0"); e(f"s_cbranch_scc1 {fast[0]}")
            e("s_sleep 2"); e(f"s_branch {spin}")
        for i, it in enumerate(items if o.NB1 else []):
            if i in marks:
                e.lg("ds_read_b32 v21, v20", "go"); e.lg_all()
                e(f"v_readfirstlane_b32 s{S_T0}, v21")
                e(f"s_cmp_lg_u32 s{S_T0}, 0"); e(f"s_cbranch_scc1 {fast[i]}")
            e.vm_depth(o.NB1 - 1)
            emit_item(it, False)
        e(f"s_branch {done}")
        e.vmq = list(q0); cur1[0] = c0
        for i, it in enumerate(items):
            if i in marks: e.label(fast[i])
            e.vm_depth(o.NB - 1)
            emit_item(it, i in marks)
        e.label(done)
    st("B_issued")
    attn_pre(e, R, SW_TILES)
    e("s_barrier")
    st("bar3")
    pend1 = []
    for T in range(16, SW_TILES):
        for s in range(3): pend1.append(('K', T, s))
    for T in range(SW_TILES):
        for w in range(3): pend1.append(('V', T, w))
    slot_of = {it: i for i, it in enumerate(pend1)}
    freed = [0]
    issued1 = [0]
    cur2 = [None]
    def issue1():
        it = pend1[issued1[0]]; kind, T, x = it
        if cur2[0] != (kind, T):
            kv_soff(e, S_KV1, T); cur2[0] = (kind, T)
        e.vm_depth(o.NC - 1)
        if o.NCe: par_depth(e, o.NCe)
        if kind == 'K': ld_k(e, R, slot_reg(slot_of[it]), x, ('K1', T, x), o)
        else: ld_v(e, R, slot_reg(slot_of[it]), x, ('V1', T, x), o)
        issued1[0] += 1
    def refill():
        while issued1[0] < len(pend1) and issued1[0] < freed[0]: issue1()
    def qk_hook_C1(T):
        freed[0] = 3 * (T + 1); refill()
    def pv_hook_C1(T):
        freed[0] = min(118, 60 + 3 * (T + 1)); refill(); ovf_hook_C(T)
    def ovf_hook_C(T):
        if T == SW_TILES - 2:
            e.lg(f"ds_read_b128 v[32:35], {vr(R.vlds)} offset:{48*1024}", ("vo", 1))
            e.lg(f"ds_read_b128 v[28:31], {vr(R.vlds)} offset:{49*1024}", ("vo", 2))
    def vwait_C1(T, w):
        if T == SW_TILES - 1 and w >= 1: e.lg_wait(("vo", w))
    e(f"s_add_u32 s{S_T2}, s{S_LDSB}, {48*1024}")
    attn_pass(e, R, SW_TILES, 0, Kf0, Vf0, S_T2, 32, qk_hook=qk_hook_C1, v_wait=vwait_C1, pv_hook=pv_hook_C1, pre_done=True)
    refill()
    assert issued1[0] == len(pend1)
    st("C1_done")
    e("s_barrier")
    stage = [40 + 4 * (k - 64) for k in range(100, 112)]
    def Kf1(T, s):
        if T < 16: return ('lds', (3 * T + s) * 1024)
        return slot_reg(slot_of[('K', T, s)])
    def Vf1(T, w): return slot_reg(slot_of[('V', T, w)])
    def k_wait_C2(T):
        if T == -1: e.vm_wait(('K1', 15, 2))
        elif T >= 16: e.vm_wait(('K1', T, 2))
    def vwait_C2(T, w): e.vm_wait(('V1', T, w))
    attn_pass(e, R, SW_TILES, 1, Kf1, Vf1, S_PB, 0, k_wait=k_wait_C2, v_wait=vwait_C2, stage=stage, look=o.look)
    st("C2_done")
    e("s_barrier")
    if o.wb == 2: emit_wb(e)
    attn_pre(e, R, SW_TILES)
    e("s_barrier")
    st("bar7")
    attn_pass(e, R, SW_TILES, 1, Kf1, Vf1, S_PB, 0, stage=stage, pre_done=True, mark=lambda n: st("e." + n), look=o.look)
    st("E_done")
    e("s_barrier")
    if o.wb == 1: emit_wb(e)
    st.flush()
    e("s_endpgm")

V_LANE, V_LG, V_R, V_PL, V_PG, V_PQ = 0, 4, 5, 6, 7, 8
V_BO, V_BX, V_BX8, V_BH, V_BH8, V_AS, V_AS8 = 9, 10, 11, 12, 13, 14, 15
V_XR, V_CSQ, V_CSG = 16, 20, 24
V_W8, V_WX, V_WH, V_ML = 28, 29, 30, 31
W0 = 32
V_SEL, V_R2, V_ST2, V_PS, V_PSQ, V_L16 = 75, 79, 80, 81, 82, 83
V_T = 84
V_GL, V_LL = 72, 73
CW_K, CW_V = 86, 134
S_N1 = 74

_off3 = (2, 6, 0)
def wq_frag(t, s): return ("a", 10 * t + _off3[s])
def wo_frag(t, s): return ("a", 120 + 24 * t + 4 * s)
def wd_frag(t, s):
    if s == 0: return ("a", 240 + 4 * t) if t < 4 else ("v", 182)
    return ("v", 186 + 2 * t)
def wg_frag(t, s): return ("v", 196 + 10 * t + _off3[s])
def wu_frag(t, s): return ("v", 226 + 10 * t + _off3[s])
def win(fr): return f"{fr[0]}[{fr[1]}:{fr[1]+3}]"

V_OOB = 74
def selmask(e, dst, val, mask, other=None):
    e(f"s_mov_b32 vcc_lo, 0x{mask & 0xffffffff:08x}"); e(f"s_mov_b32 vcc_hi, 0x{mask >> 32:08x}")
    if other is None: e(f"v_cndmask_b32 {vr(dst)}, v{V_OOB}, {vr(val)}, vcc")
    else:
        assert dst != val
        e(f"v_mov_b32 {vr(dst)}, 0x{other:08x}")
        e(f"v_cndmask_b32 {vr(dst)}, {vr(dst)}, {vr(val)}, vcc")

def rows_mask(live, n): return mask64([32 * r + g for r in live for g in range(n)])
def cols_mask(live, alist=range(4)): return mask64([16 * a + n for a in alist for n in live])

def instance_offsets(e, live, pub_live=None, q_live=None):
    pub_live = live if pub_live is None else pub_live
    q_live = pub_live if q_live is None else q_live
    t, u = V_T, V_T + 1
    e(f"v_and_b32 {vr(t)}, 31, v{V_LANE}"); e(f"v_lshlrev_b32 {vr(t)}, 4, {vr(t)}")
    e(f"v_lshrrev_b32 {vr(u)}, 5, v{V_LANE}"); e(f"v_lshl_add_u32 {vr(t)}, {vr(u)}, 9, {vr(t)}")
    selmask(e, V_LG, t, rows_mask(live, 20))
    selmask(e, V_R2, t, rows_mask(live, 24))
    e(f"v_and_b32 v{V_GL}, 7, v{V_LANE}"); e(f"v_lshlrev_b32 v{V_GL}, 10, v{V_GL}"); e(f"v_add_u32 v{V_GL}, {512*live[-1] + 19*16}, v{V_GL}")
    e(f"v_and_b32 v{V_LL}, 3, v{V_LANE}"); e(f"v_lshlrev_b32 v{V_LL}, 10, v{V_LL}"); e(f"v_add_u32 v{V_LL}, {512*live[-1] + 19*16}, v{V_LL}")
    e(f"v_and_b32 {vr(t)}, 7, v{V_LANE}"); e(f"v_lshlrev_b32 {vr(t)}, 10, {vr(t)}")
    e(f"v_lshl_add_u32 {vr(t)}, {vr(u)}, 9, {vr(t)}"); e(f"v_add_u32 {vr(t)}, 384, {vr(t)}")
    selmask(e, V_ST2, t, rows_mask(live, 32))
    e(f"v_and_b32 {vr(t)}, 15, v{V_LANE}"); e(f"v_lshrrev_b32 {vr(u)}, 4, v{V_LANE}")
    e(f"v_lshlrev_b32 v{V_PL}, 9, {vr(t)}")
    e(f"v_lshl_add_u32 v{V_PG}, {vr(u)}, 5, v{V_PL}")
    e(f"v_add_u32 v{V_PS}, 384, v{V_PL}")
    e(f"v_lshl_add_u32 v{V_PL}, {vr(u)}, 4, v{V_PL}")
    e(f"v_lshlrev_b32 v{V_PQ}, 18, {vr(t)}")
    e(f"v_add_u32 v{V_PSQ}, 768, v{V_PQ}")
    e(f"v_lshl_add_u32 v{V_PQ}, {vr(u)}, 4, v{V_PQ}")
    cm = cols_mask(pub_live)
    e(f"s_mov_b32 vcc_lo, 0x{cm & 0xffffffff:08x}"); e(f"s_mov_b32 vcc_hi, 0x{cm >> 32:08x}")
    for r in (V_PL, V_PG): e(f"v_cndmask_b32 v{r}, v{V_OOB}, v{r}, vcc")
    selmask(e, V_PS, V_PS, cols_mask(pub_live, [0]))
    selmask(e, V_PQ, V_PQ, cols_mask(q_live))
    selmask(e, V_PSQ, V_PSQ, cols_mask(q_live, [0]))

def soffs(e, off_sreg, const, two=True):
    e(f"s_add_u32 s{S_A}, s{off_sreg}, {const}")
    if two: e(f"s_add_u32 s{S_B}, s{S_A}, 4096")

def poll(e, o, loads, abort, sleep=0):
    lab = e.newlabel("poll")
    e(f"s_mov_b32 s{S_CNT}, {o.poll_limit}")
    e.label(lab)
    for d, vo, s, imm in loads:
        e(f"buffer_load_dwordx4 {vr(d,4)}, v{vo}, s[{SRD_WS}:{SRD_WS+3}], s{s} offen offset:{imm} sc1")
    e(f"s_sub_u32 s{S_CNT}, s{S_CNT}, 1")
    e(f"s_cbranch_scc1 {abort}")
    e("s_waitcnt vmcnt(0)")
    vals = []
    for d, _, _, _ in loads: vals += [d + 1, d + 3]
    t = V_T
    e(f"v_max3_u32 v{t}, v{vals[0]}, v{vals[1]}, v{vals[2]}")
    i = 3
    while i < len(vals):
        if i + 1 < len(vals): e(f"v_max3_u32 v{t}, v{t}, v{vals[i]}, v{vals[i+1]}"); i += 2
        else: e(f"v_max_u32 v{t}, v{t}, v{vals[i]}"); i += 1
    e(f"v_cmp_eq_u32 vcc, -1, v{t}")
    if sleep:
        ok = e.newlabel("pok"); e(f"s_cbranch_vccz {ok}"); e(f"s_sleep {sleep}"); e(f"s_branch {lab}"); e.label(ok)
    else: e(f"s_cbranch_vccnz {lab}")
    e.vmq = []

def gather8(e, o, vo, abort, extra=None, n=8, base=W0):
    loads = [(base + 4 * k, vo, S_A if k < 4 else S_B, (k % 4) * 1024) for k in range(n)]
    if extra: loads.append((base + 4 * n, extra, S_A, 0))
    poll(e, o, loads, abort)

def sum_loads(e, n, base=W0):
    step = 1
    while step < n:
        for k in range(0, n, 2 * step):
            if k + step < n:
                a, b = base + 4 * k, base + 4 * (k + step)
                e(f"v_pk_add_f32 {vr(a,2)}, {vr(a,2)}, {vr(b,2)}")
                e(f"v_pk_add_f32 {vr(a+2,2)}, {vr(a+2,2)}, {vr(b+2,2)}")
        step *= 2

def dpp8(e, reg, op):
    for m in ("quad_perm:[1,0,3,2]", "quad_perm:[2,3,0,1]", "row_half_mirror"):
        e(f"v_{op}_f32_dpp v{reg}, v{reg}, v{reg} {m} row_mask:0xf bank_mask:0xf")
def dpp8x2(e, r0, r1, op):
    for m in ("quad_perm:[1,0,3,2]", "quad_perm:[2,3,0,1]", "row_half_mirror"):
        e(f"v_{op}_f32_dpp v{r0}, v{r0}, v{r0} {m} row_mask:0xf bank_mask:0xf")
        e(f"v_{op}_f32_dpp v{r1}, v{r1}, v{r1} {m} row_mask:0xf bank_mask:0xf")

def ln_from_stats(e, s1, s2, mean, rstd):
    e(f"v_mul_f32 v{mean}, {lit(1/640)}, v{s1}")
    e(f"v_mul_f32 v{s2}, {lit(1/640)}, v{s2}")
    e(f"v_fma_f32 v{s2}, -v{mean}, v{mean}, v{s2}")
    e(f"v_max_f32 v{s2}, 0, v{s2}")
    e(f"v_add_f32 v{s2}, {lit(EPS)}, v{s2}")
    e(f"v_rsq_f32 v{rstd}, v{s2}")

def pub(e, D, vo, sreg, imm, fl, tag):
    e.vm(f"buffer_store_dwordx4 {vr(D,4)}, v{vo}, s[{SRD_WS}:{SRD_WS+3}], s{sreg} offen offset:{imm} {fl}", tag)

def run_tiles(e, tiles, accs, store, btags=None, twait=None):
    n = len(accs); lag = n - 1
    for i, (tid, steps) in enumerate(tiles):
        D = vr(accs[i % n], 4)
        if twait and tid in twait: e.lg_wait(twait[tid])
        for s, (A, B) in enumerate(steps):
            if i == 0 and btags: e.lg_wait(btags[s])
            e(f"v_mfma_f32_16x16x32_bf16 {D}, {A}, {B}, {'0' if s == 0 else D}")
        if i >= lag: store(tiles[i - lag][0], accs[(i - lag) % n])
    for i in range(max(0, len(tiles) - lag), len(tiles)): store(tiles[i][0], accs[i % n])

def read_bx(e, B):
    e.lg(f"ds_read_b128 {vr(B,4)}, v{V_BX}", "b0"); e.lg(f"ds_read_b128 {vr(B+4,4)}, v{V_BX} offset:64", "b1")
    e.lg(f"ds_read_b64 {vr(B+8,2)}, v{V_BX8}", "b2")
    e(f"v_mov_b32 v{B+10}, 0"); e(f"v_mov_b32 v{B+11}, 0")
def read_as(e, A):
    e.lg(f"ds_read_b128 {vr(A,4)}, v{V_AS}", "a0"); e.lg(f"ds_read_b128 {vr(A+4,4)}, v{V_AS} offset:64", "a1")
    e.lg(f"ds_read_b64 {vr(A+8,2)}, v{V_AS8}", "a2")
    e(f"v_mov_b32 v{A+10}, 0"); e(f"v_mov_b32 v{A+11}, 0")

def stage_Q(e, fl, reg_index, shadow=None):
    B, A = W0 + 8, W0 + 20
    read_bx(e, B); read_as(e, A)
    e(f"s_add_u32 s{S_A}, s{S_ROWN}, {reg_index*RG}")
    if shadow: shadow()
    tiles = [(t, [(win(wq_frag(t, s)), vr(B + 4 * s, 4)) for s in range(3)]) for t in range(12)]
    tiles.insert(1, (12, [(vr(A + 4 * s, 4), vr(B + 4 * s, 4)) for s in range(3)]))
    SD = W0 + 4
    def store(t, D): pub(e, D, V_PQ, S_A, 64 * t, fl, ("pq", t))
    first, stats, rest = tiles[0], tiles[1], tiles[2:]
    run_tiles(e, [first], [W0 + 32, W0 + 36], lambda t, D: None, btags=["b0", "b1", "b2"])
    e.lg_wait("a2")
    for s, (Aop, Bop) in enumerate(stats[1]):
        e(f"v_mfma_f32_16x16x32_bf16 {vr(SD,4)}, {Aop}, {Bop}, {'0' if s == 0 else vr(SD,4)}")
    accs = [W0 + 36, W0, W0 + 20, W0 + 32]
    pend = [(0, W0 + 32)]
    for i, (t, steps) in enumerate(rest):
        D = accs[i % 4]
        for s, (Aop, Bop) in enumerate(steps):
            e(f"v_mfma_f32_16x16x32_bf16 {vr(D,4)}, {Aop}, {Bop}, {'0' if s == 0 else vr(D,4)}")
        pend.append((t, D))
        if i >= 2: store(*pend.pop(0))
    e(f"v_cndmask_b32 v{SD+1}, v{SD+1}, v{SD+2}, s[{S_N1}:{S_N1+1}]")
    while pend: store(*pend.pop(0))
    pub(e, SD, V_PSQ, S_A, 0, fl, "pqs")

def stage_GU(e, fl, const, with_stats=True, shadow=None):
    B, A = W0 + 8, W0 + 20
    read_bx(e, B)
    if with_stats: read_as(e, A)
    e(f"s_add_u32 s{S_A}, s{S_ROWN}, {const}" if const >= 0 else f"s_sub_u32 s{S_A}, s{S_ROWN}, {-const}")
    if shadow: shadow()
    def tile(d, f, waits=None):
        d = vr(d, 4)
        for s in range(3):
            if waits: e.lg_wait(waits[s])
            e(f"v_mfma_f32_16x16x32_bf16 {d}, {f(s)}, {vr(B+4*s,4)}, {'0' if s == 0 else d}")
    def store(t, G, U):
        e(f"v_swap_b32 v{G+2}, v{U}"); e(f"v_swap_b32 v{G+3}, v{U+1}")
        pub(e, G, V_PG, S_A, 128 * t, fl, ("pg", t, 0))
        pub(e, U, V_PG, S_A, 128 * t + 16, fl, ("pg", t, 1))
    g = lambda t: (lambda s: win(wg_frag(t, s)))
    u = lambda t: (lambda s: win(wu_frag(t, s)))
    P0, P1, S = (W0 + 32, W0 + 36), (W0 + 20, W0 + 24), W0
    tile(P0[0], g(0), waits=["b0", "b1", "b2"]); tile(P0[1], u(0))
    if with_stats:
        e.lg_wait("a2")
        tile(S, lambda s: vr(A + 4 * s, 4))
    tile(P1[0], g(1)); tile(P1[1], u(1))
    store(0, *P0)
    if with_stats: e(f"v_cndmask_b32 v{S+1}, v{S+1}, v{S+2}, s[{S_N1}:{S_N1+1}]")
    tile(P0[0], g(2)); tile(P0[1], u(2))
    store(1, *P1)
    store(2, *P0)
    if with_stats: pub(e, S, V_PS, S_A, 0, fl, "pgs")

def stage_WO(e, fl, region):
    B = W0
    for s in range(6): e.lg(f"ds_read_b128 {vr(B+4*s,4)}, v{V_BO} offset:{64*s}", ("o", s))
    e(f"s_add_u32 s{S_A}, s{S_LOWN}, {region*RG}")
    tiles = [(t, [(win(wo_frag(t, s)), vr(B+4*s,4)) for s in range(6)]) for t in range(5)]
    run_tiles(e, tiles, [W0 + 24, W0 + 28, W0 + 32], lambda t, D: pub(e, D, V_PL, S_A, 64 * t, fl, ("po", t)), btags=[("o", s) for s in range(6)])

def stage_D(e, fl, region):
    B = W0
    e.lg(f"ds_read_b128 {vr(B,4)}, v{V_BH}", "h0"); e.lg(f"ds_read_b64 {vr(B+4,2)}, v{V_BH8}", "h1")
    e(f"v_mov_b32 v{B+6}, 0"); e(f"v_mov_b32 v{B+7}, 0")
    e(f"s_add_u32 s{S_A}, s{S_LOWN}, {region*RG}")
    tiles = [(t, [(win(wd_frag(t, 0)), vr(B,4)), (win(wd_frag(t, 1)), vr(B+4,4))]) for t in range(5)]
    run_tiles(e, tiles, [W0 + 8 + 4 * i for i in range(5)], lambda t, D: pub(e, D, V_PL, S_A, 64 * t, fl, ("pd", t)), btags=["h0", "h1"])

def fast_gather(e, o, loads, body, abort, pre=0, early=False):
    n = len(loads); t = V_T
    lab = e.newlabel("fpoll")
    e(f"s_mov_b32 s{S_CNT}, {o.poll_limit}")
    if pre: e(f"s_sleep {pre}")
    e.label(lab)
    for d, vo, s, imm in loads:
        e(f"buffer_load_dwordx4 {vr(d,4)}, v{vo}, s[{SRD_WS}:{SRD_WS+3}], s{s} offen offset:{imm} sc1")
    e(f"s_sub_u32 s{S_CNT}, s{S_CNT}, 1")
    e(f"s_cbranch_scc1 {abort}")
    first = [True]
    if early:
        d = loads[0][0]
        e(f"s_waitcnt vmcnt({n-1})")
        e(f"v_max_u32 v{t}, v{d+1}, v{d+3}")
        e(f"v_cmp_eq_u32 vcc, -1, v{t}")
        e(f"s_cbranch_vccnz {lab}")
        first[0] = False
    def wait(k): e(f"s_waitcnt vmcnt({n-1-k})")
    def chk(k):
        d = loads[k][0]
        if first[0]: e(f"v_max_u32 v{t}, v{d+1}, v{d+3}"); first[0] = False
        else: e(f"v_max3_u32 v{t}, v{t}, v{d+1}, v{d+3}")
    body(wait, chk)
    e(f"v_cmp_eq_u32 vcc, -1, v{t}")
    e(f"s_cbranch_vccnz {lab}")
    e.vmq = []

def padd(e, a, b, neg=False):
    m = " neg_lo:[0,1] neg_hi:[0,1]" if neg else ""
    e(f"v_pk_add_f32 {vr(a,2)}, {vr(a,2)}, {vr(b,2)}{m}"); e(f"v_pk_add_f32 {vr(a+2,2)}, {vr(a+2,2)}, {vr(b+2,2)}{m}")

def g_soffs(e, off_sreg, const, two=True):
    e(f"s_add_u32 s{S_GA}, s{off_sreg}, {const}")
    if two: e(f"s_add_u32 s{S_GB}, s{S_GA}, 4096")
def g_loads(vo, n=8, base=W0): return [(base + 4 * k, vo, S_GA if k < 4 else S_GB, (k % 4) * 1024) for k in range(n)]

def hop_LG(e, o, inst, k, abort, final_only=False):
    skip = e.newlabel("notleader")
    e(f"s_cmp_lg_u32 s{S_HQ}, 0"); e(f"s_cbranch_scc1 {skip}")
    g_soffs(e, S_LGRP, L_REG(inst, k) * RG, two=False)
    e(f"s_add_u32 s{S_A}, s{S_GOWN}, {G_OFF(inst,k)}")
    X = W0 + 32
    off = 1 if o.early else 0
    def body4(wait, chk):
        wait(off + 1); chk(off); chk(off + 1); padd(e, W0, W0 + 4)
        wait(off + 2); chk(off + 2); padd(e, W0, W0 + 8)
        wait(off + 3); chk(off + 3); padd(e, W0, W0 + 12)
    fast_gather(e, o, ([(X, V_LL, S_GA, 0)] if o.early else []) + g_loads(V_LG, 4), body4, abort, pre=o.preL, early=o.early)
    e(f"buffer_store_dwordx4 {vr(W0,4)}, v{V_LG}, s[{SRD_WS}:{SRD_WS+3}], s{S_A} offen sc1")
    if o.preGn:
        join = e.newlabel("lgjoin")
        e(f"s_branch {join}")
        e.label(skip)
        if not final_only: e(f"s_sleep {o.preGn}")
        e.label(join)
    else: e.label(skip)
    if final_only:
        e(f"s_cmp_lg_u32 s{S_H}, 0"); e(f"s_cbranch_scc1 L_done")
    g_soffs(e, S_GGRP, G_OFF(inst, k))
    e.vmq = []
    def body8(wait, chk):
        c = lambda k: chk(off + k)
        w = lambda k: wait(off + k)
        w(1); c(0); c(1); padd(e, W0, V_XR); padd(e, W0, W0 + 4)
        w(3); c(2); c(3); padd(e, W0 + 8, W0 + 12); padd(e, W0, W0 + 8)
        w(5); c(4); c(5); padd(e, W0 + 16, W0 + 20); padd(e, W0, W0 + 16)
        w(6); c(6); padd(e, W0, W0 + 24)
        w(7); c(7); padd(e, W0, W0 + 28)
    fast_gather(e, o, ([(X, V_GL, S_GA, 0)] if o.early else []) + g_loads(V_LG, 8), body8, abort, pre=o.preG, early=o.early)

def hop_final(e, o, abort, k=1):
    if k == 1:
        e(f"s_cmp_lg_u32 s{S_H}, 0"); e(f"s_cbranch_scc1 L_done")
    e(f"s_lshl_b32 s{S_T0}, s{S_J}, 12"); e(f"s_add_u32 s{S_T0}, s{S_T0}, {L_REG(2,k)*RG}")
    for x in range(8): e(f"s_add_u32 s{SW8[x]}, s{S_T0}, {32768*x}")
    dst = [W0 + 4 * k for k in range(8)] + [CW_K + 4 * k for k in range(24)]
    loads = [(dst[4 * x + q], V_LG, SW8[x], 1024 * q) for x in range(8) for q in range(4)]
    A0, A1 = loads[0][0], loads[1][0]
    def body(wait, chk):
        wait(1); chk(0); chk(1); padd(e, A0, V_XR)
        for k in range(2, 32):
            if k % 2 == 0: wait(min(k + 1, 31)); chk(k); chk(k + 1)
            padd(e, A0 if k % 2 == 0 else A1, loads[k][0])
        padd(e, A0, A1)
    fast_gather(e, o, loads, body, abort, pre=o.preF if k == 1 else o.preF0)

def residual_update(e):
    e(f"v_cvt_pk_bf16_f32 v{W0+4}, v{W0}, v{W0+1}")
    e(f"v_cvt_pk_bf16_f32 v{W0+5}, v{W0+2}, v{W0+3}")
    e.lg(f"ds_write_b64 v{V_WX}, {vr(W0+4,2)}", "wx")
def residual_unpack(e, p):
    e(f"v_lshlrev_b32 v{V_XR}, 16, v{p}"); e(f"v_and_b32 v{V_XR+1}, 0xffff0000, v{p}")
    e(f"v_lshlrev_b32 v{V_XR+2}, 16, v{p+1}"); e(f"v_and_b32 v{V_XR+3}, 0xffff0000, v{p+1}")

def store_out(e, row):
    skip = e.newlabel("noout")
    e(f"s_cmp_lg_u32 s{S_H}, 0"); e(f"s_cbranch_scc1 {skip}")
    make_srd(e, SRD_T, S_OUT, 2560)
    e(f"v_and_b32 v{V_T}, 31, v{V_LANE}"); e(f"v_lshlrev_b32 v{V_T}, 3, v{V_T}")
    e(f"s_mul_i32 s{S_T0}, s{S_J}, 160"); e(f"s_add_u32 s{S_T0}, s{S_T0}, {row*1280}")
    selmask(e, V_T, V_T, rows_mask([row], 20))
    e(f"buffer_store_dwordx2 {vr(W0+4,2)}, v{V_T}, s[{SRD_T}:{SRD_T+3}], s{S_T0} offen")
    e.label(skip)

def combine_publish(e, fl, parts, mlbase, region):
    T = W0
    e(f"v_mov_b32 v{V_T}, {mlbase}")
    e.lg(f"ds_read_b128 {vr(T,4)}, v{V_T}", "ml0"); e.lg(f"ds_read_b128 {vr(T+4,4)}, v{V_T} offset:16", "ml1")
    P = T + 8
    cur = None
    for w in range(4):
        if cur is None or not (0 <= parts[w] - cur < 60000):
            e(f"v_add_u32 v{V_T+1}, {parts[w]}, v{V_L16}"); cur = parts[w]
        for par in range(2):
            e.lg(f"ds_read_b128 {vr(P+8*w+4*par,4)}, v{V_T+1} offset:{parts[w] - cur + 768*par}", ("p", w, par))
    e(f"s_add_u32 s{S_A}, s{S_ROWN}, {region*RG}")
    e.lg_wait("ml1")
    m = [T, T + 2, T + 4, T + 6]; l = [T + 1, T + 3, T + 5, T + 7]
    M, Ls = V_T, V_T + 1
    e(f"v_max3_f32 v{M}, v{m[0]}, v{m[1]}, v{m[2]}"); e(f"v_max_f32 v{M}, v{M}, v{m[3]}")
    for w in range(4): e(f"v_sub_f32 v{m[w]}, v{m[w]}, v{M}")
    for w in range(4): e(f"v_exp_f32 v{m[w]}, v{m[w]}")
    e(f"v_mul_f32 v{Ls}, v{m[0]}, v{l[0]}")
    for w in range(1, 4): e(f"v_fma_f32 v{Ls}, v{m[w]}, v{l[w]}, v{Ls}")
    for w in range(4):
        e.lg_wait(("p", w, 1))
        a = P + 8 * w
        e(f"v_pk_add_f32 {vr(a,2)}, {vr(a,2)}, {vr(a+4,2)}"); e(f"v_pk_add_f32 {vr(a+2,2)}, {vr(a+2,2)}, {vr(a+6,2)}")
        for r in range(4):
            if w == 0: e(f"v_mul_f32 v{P+r}, v{m[0]}, v{P+r}")
            else: e(f"v_fmac_f32 v{P+r}, v{m[w]}, v{a+r}")
    e(f"s_mov_b32 vcc_lo, 0"); e(f"s_mov_b32 vcc_hi, 0x00010000")
    e(f"v_cndmask_b32 v{P}, v{P}, v{M}, vcc"); e(f"v_cndmask_b32 v{P+1}, v{P+1}, v{Ls}, vcc")
    pub(e, P, V_R, S_A, 0, fl, "r1")

SW8 = [4, 6, 8, 10, 12, 16, 18, 20]
def hop_R1(e, o, region, row, abort):
    g_soffs(e, S_RGRP, region * RG)
    X = W0 + 32
    M, wv = X + 2, X + 3
    acc = W0 + 36
    loads = [(X, V_ML, S_GA, 0)] + g_loads(V_R)
    def body(wait, chk):
        if not o.early: wait(0); chk(0)
        e(f"v_mov_b32 v{M}, v{X}")
        dpp8(e, M, "max")
        e(f"v_sub_f32 v{wv}, v{X}, v{M}"); e(f"v_exp_f32 v{wv}, v{wv}")
        wait(4); chk(1); chk(2)
        e(f"v_mul_f32 v{X+1}, v{wv}, v{X+1}")
        chk(3); chk(4)
        e(f"v_add_f32_dpp v{X+1}, v{X+1}, v{X+1} quad_perm:[1,0,3,2] row_mask:0xf bank_mask:0xf")
        wait(8); chk(5); chk(6)
        e(f"v_add_f32_dpp v{X+1}, v{X+1}, v{X+1} quad_perm:[2,3,0,1] row_mask:0xf bank_mask:0xf")
        chk(7); chk(8)
        e(f"v_add_f32_dpp v{X+1}, v{X+1}, v{X+1} row_half_mirror row_mask:0xf bank_mask:0xf")
        e(f"v_rcp_f32 v{X+1}, v{X+1}")
        e(f"v_mul_f32 v{wv}, v{wv}, v{X+1}")
        for k in range(8): e(f"v_readlane_b32 s{SW8[k]}, v{wv}, {k}")
        for k in range(8):
            for h in range(2):
                a, m = acc + 2 * h, W0 + 4 * k + 2 * h
                sp = f"s[{SW8[k]}:{SW8[k]+1}]"
                if k == 0: e(f"v_pk_mul_f32 {vr(a,2)}, {vr(m,2)}, {sp} op_sel_hi:[1,0]")
                else: e(f"v_pk_fma_f32 {vr(a,2)}, {vr(m,2)}, {sp}, {vr(a,2)} op_sel_hi:[1,0,1]")
    fast_gather(e, o, loads, body, abort, pre=o.preR, early=o.early)
    e(f"v_cvt_pk_bf16_f32 v{acc}, v{acc}, v{acc+1}"); e(f"v_cvt_pk_bf16_f32 v{acc+1}, v{acc+2}, v{acc+3}")
    e.lg(f"ds_write_b64 v{V_W8}, {vr(acc,2)} offset:{ACT_O - SB + 384*row}", "wo")

def ln_gather(e, o, vo, vstat, cs, abort):
    X = W0 + 32; mean, rstd = X + 2, X + 3; T = W0 + 36
    loads = [(X, vstat, S_GA, 0)] + g_loads(vo)
    q = lambda r, m: e(f"v_add_f32_dpp v{r}, v{r}, v{r} {m} row_mask:0xf bank_mask:0xf")
    def body(wait, chk):
        if not o.early: wait(0); chk(0)
        q(X, "quad_perm:[1,0,3,2]"); q(X + 1, "quad_perm:[1,0,3,2]")
        wait(2); chk(1)
        q(X, "quad_perm:[2,3,0,1]"); q(X + 1, "quad_perm:[2,3,0,1]")
        chk(2)
        q(X, "row_half_mirror"); q(X + 1, "row_half_mirror")
        padd(e, W0, W0 + 4)
        e(f"v_mul_f32 v{mean}, {lit(1/640)}, v{X}"); e(f"v_mul_f32 v{X+1}, {lit(1/640)}, v{X+1}")
        wait(4); chk(3); chk(4)
        e(f"v_fma_f32 v{X+1}, -v{mean}, v{mean}, v{X+1}")
        padd(e, W0 + 8, W0 + 12)
        e(f"v_max_f32 v{X+1}, 0, v{X+1}"); e(f"v_add_f32 v{X+1}, {lit(EPS)}, v{X+1}")
        padd(e, W0, W0 + 8)
        e(f"v_rsq_f32 v{rstd}, v{X+1}")
        wait(6); chk(5); chk(6)
        e(f"v_pk_mul_f32 {vr(T,2)}, {vr(cs,2)}, {vr(mean,2)} op_sel_hi:[1,0]"); e(f"v_pk_mul_f32 {vr(T+2,2)}, {vr(cs+2,2)}, {vr(mean,2)} op_sel_hi:[1,0]")
        padd(e, W0 + 16, W0 + 20); padd(e, W0, T, neg=True); padd(e, W0, W0 + 16)
        wait(7); chk(7); padd(e, W0, W0 + 24)
        wait(8); chk(8); padd(e, W0, W0 + 28)
    fast_gather(e, o, loads, body, abort, pre=o.preR, early=o.early)
    e(f"v_pk_mul_f32 {vr(W0,2)}, {vr(W0,2)}, {vr(mean,2)} op_sel:[0,1] op_sel_hi:[1,1]")
    e(f"v_pk_mul_f32 {vr(W0+2,2)}, {vr(W0+2,2)}, {vr(mean,2)} op_sel:[0,1] op_sel_hi:[1,1]")

def hop_R2(e, o, inst, abort):
    ln_gather(e, o, V_R2, V_ST2, V_CSG, abort)
    e(f"v_max_f32 v{W0}, 0, v{W0}"); e(f"v_max_f32 v{W0+1}, 0, v{W0+1}")
    e(f"v_pk_mul_f32 {vr(W0,2)}, {vr(W0,2)}, {vr(W0+2,2)}")
    e(f"v_cvt_pk_bf16_f32 v{W0}, v{W0}, v{W0+1}")
    e.lg(f"ds_write_b32 v{V_WH}, v{W0}", "wh")

def q_consume(e, base, X, row):
    dpp8x2(e, X, X + 1, "add")
    sum_loads(e, 8, base)
    mean, rstd = X + 2, X + 3
    ln_from_stats(e, X, X + 1, mean, rstd)
    for r in range(4): e(f"v_fma_f32 v{base+r}, -v{mean}, v{V_CSQ+r}, v{base+r}")
    for r in range(4): e(f"v_mul_f32 v{base+r}, v{rstd}, v{base+r}")
    e(f"v_cvt_pk_bf16_f32 v{base}, v{base}, v{base+1}"); e(f"v_cvt_pk_bf16_f32 v{base+1}, v{base+2}, v{base+3}")
    e.lg(f"ds_write_b64 v{V_W8}, {vr(base,2)} offset:{QARR - SB + 384*row}", "wq")

def hop_R3(e, o, region, row, abort):
    ln_gather(e, o, V_R, V_ML, V_CSQ, abort)
    e(f"v_cvt_pk_bf16_f32 v{W0}, v{W0}, v{W0+1}"); e(f"v_cvt_pk_bf16_f32 v{W0+1}, v{W0+2}, v{W0+3}")
    e.lg(f"ds_write_b64 v{V_W8}, {vr(W0,2)} offset:{QARR - SB + 384*row}", "wq")

def go_flag(e):
    e(f"v_mov_b32 v{V_T}, {WFLAG + 12}"); e(f"v_mov_b32 v{V_T+1}, 1")
    e.lg(f"ds_write_b32 v{V_T}, v{V_T+1}", "go")

def chain(e, o, fl, inst, live, abort, st):
    c = f"c{inst}."
    if inst == 0 and o.NB1 != o.NB and o.go_at == "R1": go_flag(e)
    if inst == 0: o._save = (o.preR, o.preL, o.preG); o.preL, o.preG = o.preL + o.preL0, o.preG + o.preG0
    st.rounds(f"n{inst}.R1")
    st(c + "R1")
    if inst == 2 and o.direct0:
        stage_WO(e, "sc1", L_REG(inst, 0))
        st(c + "WO")
        hop_final(e, o, abort, k=0)
    else:
        stage_WO(e, fl, L_REG(inst, 0))
        st(c + "WO")
        hop_LG(e, o, inst, 0, abort)
    if inst == 0 and o.NB1 != o.NB and o.go_at == "G1": go_flag(e)
    if inst == 0: o.preR, o.preL, o.preG = o._save
    st.rounds(f"n{inst}.G1")
    st(c + "G1")
    residual_update(e)
    def sh_gu():
        residual_unpack(e, W0 + 4); g_soffs(e, S_RGRP, R2_REG[inst] * RG)
    stage_GU(e, fl, R2_REG[inst] * RG, shadow=sh_gu)
    st(c + "GU")
    hop_R2(e, o, inst, abort)
    st.rounds(f"n{inst}.R2")
    st(c + "R2")
    if inst == 2 and o.direct:
        stage_D(e, "sc1", L_REG(inst, 1))
        st(c + "D")
        hop_final(e, o, abort)
    else:
        stage_D(e, fl, L_REG(inst, 1))
        st(c + "D")
        hop_LG(e, o, inst, 1, abort, final_only=(inst == 2))
    st.rounds(f"n{inst}.G2")
    st(c + "G2")
    if inst == 2:
        e(f"v_cvt_pk_bf16_f32 v{W0+4}, v{W0}, v{W0+1}"); e(f"v_cvt_pk_bf16_f32 v{W0+5}, v{W0+2}, v{W0+3}")
        store_out(e, 1)
        e("s_cmp_lg_u32 s2, 0"); e("s_cbranch_scc1 L_done")
        e(f"v_mov_b32 v{V_T}, s{S_TAG}"); e(f"v_mov_b32 v{V_T+1}, {EPOCH_OFF}")
        e("s_mov_b64 exec, 1")
        e(f"buffer_store_dword v{V_T}, v{V_T+1}, s[{SRD_WS}:{SRD_WS+3}], 0 offen sc1")
        e("s_mov_b64 exec, -1")
        return
    residual_update(e)
    qrow = 0 if inst == 0 else 1
    def sh_q():
        residual_unpack(e, W0 + 4); g_soffs(e, S_RGRP, R3_REG[inst] * RG)
        if inst == 1:
            store_out(e, 0)
            cm = cols_mask([1]); e(f"s_mov_b32 vcc_lo, 0x{cm & 0xffffffff:08x}"); e(f"s_mov_b32 vcc_hi, 0x{cm >> 32:08x}")
            e(f"v_cndmask_b32 v{V_PQ}, v{V_OOB}, v{V_PQ}, vcc"); e(f"v_cndmask_b32 v{V_PSQ}, v{V_OOB}, v{V_PSQ}, vcc")
    stage_Q(e, fl, R3_REG[inst] - qrow, shadow=sh_q)
    st(c + "Q")
    hop_R3(e, o, R3_REG[inst], qrow, abort)
    e.lg_all()
    st.rounds(f"n{inst}.R3")
    st(c + "R3")

TOK1 = 21 * RG
TOK2 = TOK1 + 32768
EPOCH_OFF = 896
S_TAG = 73

o_direct = [True, False]
def emit_resets_P(e):
    e(f"v_mov_b32 v{W0}, -1"); e(f"v_mov_b32 v{W0+1}, -1"); e(f"v_mov_b32 v{W0+2}, -1"); e(f"v_mov_b32 v{W0+3}, -1")
    for r in [4, 5, 6]:
        e(f"s_add_u32 s{S_A}, s{S_ROWN}, {r*RG}")
        e.vm(f"buffer_store_dwordx4 {vr(W0,4)}, v{V_R}, s[{SRD_WS}:{SRD_WS+3}], s{S_A} offen sc1", "rstp")
    e(f"v_lshlrev_b32 v{V_T}, 4, v{V_LANE}")
    selmask(e, W0 + 4, V_T, rows_mask([0], 24))
    e(f"s_add_u32 s{S_A}, s{S_ROWN}, {R2_REG['P']*RG}")
    e.vm(f"buffer_store_dwordx4 {vr(W0,4)}, v{W0+4}, s[{SRD_WS}:{SRD_WS+3}], s{S_A} offen sc1", "rstp")

def emit_resets(e, f):
    e(f"v_mov_b32 v{W0}, -1"); e(f"v_mov_b32 v{W0+1}, -1"); e(f"v_mov_b32 v{W0+2}, -1"); e(f"v_mov_b32 v{W0+3}, -1")
    def reset(vo, sreg, const):
        e(f"s_add_u32 s{S_A}, s{sreg}, {const}")
        e.vm(f"buffer_store_dwordx4 {vr(W0,4)}, v{vo}, s[{SRD_WS}:{SRD_WS+3}], s{S_A} offen {f}", "rst")
    e(f"v_and_b32 v{V_T}, 31, v{V_LANE}"); e(f"v_lshlrev_b32 v{V_T}, 4, v{V_T}")
    e(f"v_lshrrev_b32 v{V_T+1}, 5, v{V_LANE}"); e(f"v_lshl_add_u32 v{V_T}, v{V_T+1}, 9, v{V_T}")
    liv = {0: [0], 1: [0, 1], 2: [1], 'P': [0]}
    skip = e.newlabel("norstg")
    e(f"s_cmp_lg_u32 s{S_HQ}, 0"); e(f"s_cbranch_scc1 {skip}")
    for inst in (0, 1, 2):
        selmask(e, W0 + 4, V_T, rows_mask(liv[inst], 20))
        for k in range(2):
            e(f"s_add_u32 s{S_A}, s{S_GOWN}, {G_OFF(inst,k)}")
            e(f"buffer_store_dwordx4 {vr(W0,4)}, v{W0+4}, s[{SRD_WS}:{SRD_WS+3}], s{S_A} offen sc1")
    e.label(skip)
    for r in [7, 8] + list(R1_REG.values()): reset(V_R, S_ROWN, r * RG)
    for inst in (0, 1, 2):
        selmask(e, W0 + 4, V_T, rows_mask(liv[inst], 25))
        reset(W0 + 4, S_ROWN, R2_REG[inst] * RG)
        selmask(e, W0 + 4, V_T, rows_mask(liv[inst], 20))
        for k in range(2):
            if inst == 2 and ((k == 1 and o_direct[0]) or (k == 0 and o_direct[1])):
                e(f"s_add_u32 s{S_A}, s{S_LOWN}, {L_REG(inst, k) * RG}")
                e.vm(f"buffer_store_dwordx4 {vr(W0,4)}, v{W0+4}, s[{SRD_WS}:{SRD_WS+3}], s{S_A} offen sc1", "rst")
            else: reset(W0 + 4, S_LOWN, L_REG(inst, k) * RG)

def token_store(e, base, second):
    e(f"s_lshl_b32 s{S_A}, s2, 7"); e(f"s_add_u32 s{S_A}, s{S_A}, {base}")
    e(f"v_mov_b32 v{W0+40}, s{S_TAG}"); e(f"v_mov_b32 v{W0+41}, {second}"); e(f"v_mov_b32 v{V_T}, 0")
    e("s_mov_b64 exec, 1")
    e.vm(f"buffer_store_dwordx2 {vr(W0+40,2)}, v{V_T}, s[{SRD_WS}:{SRD_WS+3}], s{S_A} offen sc1", "tok")
    e("s_mov_b64 exec, -1")

def token_gather(e, o, base, vo, mask, sleep=0, dst=W0, between=None):
    lab = e.newlabel("tok"); chk = e.newlabel("tokchk")
    if between:
        e(f"s_mov_b32 s{S_B}, {base}")
        set_exec(e, mask)
        e(f"buffer_load_dwordx2 {vr(dst,2)}, v{vo}, s[{SRD_WS}:{SRD_WS+3}], s{S_B} offen sc1")
        e("s_mov_b64 exec, -1")
        between()
        e(f"s_mov_b32 s{S_A}, {base}")
        set_exec(e, mask)
        e(f"s_mov_b32 s{S_CNT}, {o.poll_limit}")
        e(f"s_branch {chk}")
    else:
        e(f"s_mov_b32 s{S_A}, {base}")
        set_exec(e, mask)
        e(f"s_mov_b32 s{S_CNT}, {o.poll_limit}")
    e.label(lab)
    e(f"buffer_load_dwordx2 {vr(dst,2)}, v{vo}, s[{SRD_WS}:{SRD_WS+3}], s{S_A} offen sc1")
    e(f"s_sub_u32 s{S_CNT}, s{S_CNT}, 1"); e(f"s_cbranch_scc1 L_abort")
    e.label(chk)
    e("s_waitcnt vmcnt(0)")
    e(f"v_cmp_ne_u32 vcc, s{S_TAG}, v{dst}")
    if sleep:
        ok = e.newlabel("tokok"); e(f"s_cbranch_vccz {ok}"); e(f"s_sleep {sleep}"); e(f"s_branch {lab}"); e.label(ok)
    else: e(f"s_cbranch_vccnz {lab}")
    e.vmq = []

def tr_block(e, items):
    i, g, r, c, t = W0, W0 + 1, W0 + 2, W0 + 3, W0 + 4
    a32, a16 = W0 + 6, W0 + 7
    def tr_setup():
        e(f"v_and_b32 v{i}, 15, v{V_LANE}"); e(f"v_lshrrev_b32 v{g}, 4, v{V_LANE}")
        e(f"v_lshrrev_b32 v{r}, 2, v{i}"); e(f"v_and_b32 v{c}, 3, v{i}")
    def trbase(dst, stride, rows_per_g, base):
        e(f"v_mul_u32_u24 v{t}, {rows_per_g}, v{g}"); e(f"v_add_u32 v{t}, v{t}, v{r}")
        e(f"v_mul_u32_u24 v{t}, {stride}, v{t}"); e(f"v_lshl_add_u32 v{dst}, v{c}, 3, v{t}")
        if base: e(f"v_add_u32 v{dst}, {base}, v{dst}")
    def tr(frag, addr, off, k16, stride):
        f, lo = frag
        e.lg(f"ds_read_b64_tr_b16 {f}[{lo}:{lo+1}], v{addr} offset:{off}", "tr")
        if not k16: e.lg(f"ds_read_b64_tr_b16 {f}[{lo+2}:{lo+3}], v{addr} offset:{off+4*stride}", "tr")
        if len(e.lgq) >= 12: e.lg_wait_n(4)
    if True:
        tr_setup()
        for frag, nt, stride, base, ks in items:
            trbase(a32, stride, 8, base); trbase(a16, stride, 4, base)
            nk = len(ks)
            for tt in range(nt):
                for s, k0 in enumerate(ks):
                    k16 = (frag is not wo_frag) and s == nk - 1
                    tr(frag(tt, s), a16 if k16 else a32, k0 * stride + 32 * tt, k16, stride)
        e.lg_all()

def prologue_weights(e, o, st):
    abort = "L_abort"
    e(f"v_mov_b32 v{W0+2}, 0x3f803f80"); e(f"v_mov_b32 v{W0+3}, 0x3f803f80")
    e(f"v_lshlrev_b32 v{W0+4}, 3, v{V_LANE}"); e(f"v_add_u32 v{W0+4}, {ACT_X+384}, v{W0+4}")
    set_exec(e, mask64(range(24)))
    e.lg(f"ds_write_b64 v{W0+4}, {vr(W0+2,2)}", "ones")
    e("s_mov_b64 exec, -1")
    e.lg(f"ds_write_b64 v{V_WX}, {vr(V_XR,2)}", "wx")
    e(f"v_lshlrev_b32 v{V_XR+2}, 16, v{V_XR+1}"); e(f"v_and_b32 v{V_XR+3}, 0xffff0000, v{V_XR+1}")
    e(f"v_and_b32 v{V_XR+1}, 0xffff0000, v{V_XR}"); e(f"v_lshlrev_b32 v{V_XR}, 16, v{V_XR}")
    e.lg_all()
    lab = e.newlabel("wflag")
    e(f"v_mov_b32 v{V_T+1}, {WFLAG}")
    e(f"s_mov_b32 s{S_CNT}, {o.poll_limit*8}")
    e.label(lab)
    e(f"ds_read_b96 {vr(W0,3)}, v{V_T+1}")
    e(f"s_sub_u32 s{S_CNT}, s{S_CNT}, 1"); e(f"s_cbranch_scc1 {abort}")
    e("s_waitcnt lgkmcnt(0)")
    e(f"v_and_b32 v{W0}, v{W0}, v{W0+1}"); e(f"v_and_b32 v{W0}, v{W0}, v{W0+2}")
    e(f"v_cmp_ne_u32 vcc, 1, v{W0}")
    e(f"s_cbranch_vccnz {lab}")
    st("p.wland")
    tr_block(e, [(wq_frag, 12, 384, ST_WQ, (0, 32, 64)), (wg_frag, 3, 96, ST_WG, (0, 32, 64)), (wu_frag, 3, 96, ST_WU, (0, 32, 64))])
    st("p.weights")

def cw_load_tiles(e, o, base):
    R = NS(voffK=1, voffX=2, voffY=3)
    for T in range(CW_TILES):
        kv_soff(e, base, T)
        for s in range(3): ld_k(e, R, vr(CW_K + 12 * T + 4 * s, 4), s, ('K', T, s), o)
    for T in range(CW_TILES):
        kv_soff(e, base, T)
        for w in range(3): ld_v(e, R, vr(CW_V + 12 * T + 4 * w, 4), w, ('V', T, w), o)

def chain_wave(e, o, st, local):
    fl = "" if local else "sc1"
    abort = "L_abort"
    R = NS(vlds=V_L16, voffK=1, voffX=2, voffY=3, sel=V_SEL, qA=32, D=44, sc=56, tmp=57, vpw=62, acc=32, A=44, pp=52, vpp=63, vm=60, vl=61, vlt=59)
    instance_offsets(e, [0, 1], pub_live=[2], q_live=[0, 1, 2])
    stage_Q(e, fl, R3_REG['P'])
    stage_GU(e, fl, R2_REG['P'] * RG - 1024, with_stats=False)
    st("p.pub")
    emit_resets(e, fl)
    st("reset")
    tr_block(e, [(wo_frag, 5, 160, ST_WO, (0, 32, 64, 96, 128, 160)), (wd_frag, 5, 160, ST_WD, (0, 32))])
    GA = CW_K
    e(f"v_and_b32 v{V_T}, 31, v{V_LANE}"); e(f"v_lshlrev_b32 v{V_T}, 4, v{V_T}")
    selmask(e, W0 + 40, V_T, rows_mask([0, 1], 24))
    sr = list(range(10, 18))
    for k, reg in enumerate((4, 5, 6, R2_REG['P'])):
        e(f"s_add_u32 s{sr[2*k]}, s{S_RGRP}, {reg*RG}"); e(f"s_add_u32 s{sr[2*k+1]}, s{sr[2*k]}, 4096")
    loads = []
    for row in range(3):
        loads += [(GA + 32 * row + 4 * k, V_R, sr[2*row + (k >= 4)], (k % 4) * 1024) for k in range(8)]
    loads += [(W0 + 32, V_ML, sr[0], 0), (W0 + 36, V_ML, sr[2], 0)]
    loads += [(W0 + 4 * k, W0 + 40, sr[6 + (k >= 4)], (k % 4) * 1024) for k in range(8)]
    poll(e, o, loads, abort, sleep=o.p_sleep)
    token_store(e, TOK2, 0)
    st("p.gather")
    sum_loads(e, 8, GA + 64)
    for rr in range(4): e(f"v_mov_b32 v{V_CSQ+rr}, v{GA+64+rr}")
    sum_loads(e, 8, W0)
    for rr in range(4): e(f"v_mov_b32 v{V_CSG+rr}, v{W0+rr}")
    for row in range(2):
        q_consume(e, GA + 32 * row, W0 + 32 + 4 * row, row)
    st("q1")
    def load_tiles(base): cw_load_tiles(e, o, base)
    load_tiles(S_KV0)
    instance_offsets(e, [0])
    L = V_LANE; t, u = W0 + 2, W0 + 3
    TO, TD = W0 + 38, W0 + 36
    e(f"v_and_b32 v{t}, 7, v{L}"); e(f"v_lshlrev_b32 v{u}, 3, v{t}")
    e(f"s_lshl_b32 s{S_T0}, s{S_HQ}, 6"); e(f"s_add_u32 s{S_T0}, s{S_T0}, s{S_XC}"); e(f"v_add_u32 v{W0+4}, s{S_T0}, v{u}")
    e(f"v_lshlrev_b32 v{u}, 6, v{t}")
    e(f"s_lshl_b32 s{S_T1}, s{S_J}, 3"); e(f"s_add_u32 s{S_T0}, s{S_T1}, s{S_XC}"); e(f"v_add_u32 v{W0+5}, s{S_T0}, v{u}")
    e(f"v_add_u32 v{W0+6}, s{S_T1}, v{t}")
    e("s_mov_b32 vcc_lo, 0x00000f00"); e("s_mov_b32 vcc_hi, 0"); e(f"v_cndmask_b32 v{W0+4}, v{W0+4}, v{W0+5}, vcc")
    e("s_mov_b32 vcc_lo, 0x00ff0000"); e(f"v_cndmask_b32 v{W0+4}, v{W0+4}, v{W0+6}, vcc")
    e(f"v_bfe_u32 v{u}, v{L}, 3, 2"); e(f"v_lshlrev_b32 v{u}, 6, v{u}"); e(f"v_add_u32 v{W0+6}, v{W0+6}, v{u}")
    e("s_mov_b32 vcc_lo, 0"); e("s_mov_b32 vcc_hi, -1"); e(f"v_cndmask_b32 v{W0+4}, v{W0+4}, v{W0+6}, vcc")
    e(f"v_lshlrev_b32 v{TO}, 7, v{W0+4}")
    tmask = 0xffffffff00ff0fff if o.direct else 0x00ff0fff
    def first_pass():
        e.vmq.append("tok2")
        e.lg_all()
        st("pro_done")
        e("s_barrier")
        if "stopA" in o.exp: e("s_branch L_done")
        def kw(T):
            if T >= 0: e.vm_wait(('K', T, 2))
        def vw(T, w): e.vm_wait(('V', T, w))
        attn_pass(e, R, CW_TILES, 0, Kf, Vf, S_PB, 0, k_wait=kw, v_wait=vw)
    Kf = lambda T, s: vr(CW_K + 12 * T + 4 * s, 4)
    Vf = lambda T, w: vr(CW_V + 12 * T + 4 * w, 4)
    token_gather(e, o, TOK2, TO, tmask, sleep=o.t_sleep, dst=TD, between=first_pass)
    e("s_mov_b64 exec, -1")
    st("p.tok2g")
    e("s_barrier")
    st("bar2")
    parts = [PART + 1536 * w for w in range(4)]
    combine_publish(e, fl, parts, ML, R1_REG[0])
    st("c0.cmb")
    sv = o.preR; o.preR = sv + o.preR0
    hop_R1(e, o, R1_REG[0], 0, abort)
    o.preR = sv
    chain(e, o, fl, 0, [0], abort, st)
    st("chain0")
    e("s_barrier")
    attn_pass(e, R, CW_TILES, 0, Kf, Vf, S_PB, 32)
    e("s_barrier")
    parts_early = [PART] + [LDS_SW * s + 48 * 1024 for s in range(3)]
    combine_publish(e, fl, parts_early, ML + 32, R1_REG['1a'])
    load_tiles(S_KV1)
    instance_offsets(e, [0, 1])
    hop_R1(e, o, R1_REG['1a'], 0, abort)
    e.vmq = []
    attn_pass(e, R, CW_TILES, 1, Kf, Vf, S_PB, 0)
    e("s_barrier")
    st("bar6")
    combine_publish(e, fl, parts, ML, R1_REG['1b'])
    st("c1.cmb")
    hop_R1(e, o, R1_REG['1b'], 1, abort)
    chain(e, o, fl, 1, [0, 1], abort, st)
    st("chain1")
    e("s_barrier")
    attn_pass(e, R, CW_TILES, 1, Kf, Vf, S_PB, 0)
    instance_offsets(e, [1])
    e("s_barrier")
    st("bar8")
    combine_publish(e, fl, parts, ML, R1_REG[2])
    st("c2.cmb")
    hop_R1(e, o, R1_REG[2], 1, abort)
    chain(e, o, fl, 2, [1], abort, st)
    st("chain2")
    e("s_branch L_done")

def chain_wave_setup(e, o, st):
    L = V_LANE
    if o.prio: e(f"s_setprio {o.prio}")
    lane_id(e, L)
    e(f"v_mov_b32 v{W0}, 0"); e(f"v_mov_b32 v{W0+1}, {WFLAG}"); e(f"v_lshl_add_u32 v{W0+1}, v{L}, 2, v{W0+1}")
    e("s_mov_b64 exec, 15")
    e.lg(f"ds_write_b32 v{W0+1}, v{W0}", "z")
    e("s_mov_b64 exec, -1")
    e(f"v_mov_b32 v{V_OOB}, 0x{OOB:08x}")
    e(f"s_lshl_b32 s{S_RGRP}, s{S_H}, 13"); e(f"s_lshl_b32 s{S_T0}, s{S_J}, 10"); e(f"s_add_u32 s{S_ROWN}, s{S_RGRP}, s{S_T0}")
    e(f"s_lshl_b32 s{S_LGRP}, s{S_XC}, 3"); e(f"s_add_u32 s{S_LGRP}, s{S_LGRP}, s{S_J}"); e(f"s_lshl_b32 s{S_LGRP}, s{S_LGRP}, 12")
    e(f"s_lshl_b32 s{S_T0}, s{S_HQ}, 10"); e(f"s_add_u32 s{S_LOWN}, s{S_LGRP}, s{S_T0}")
    e(f"s_lshl_b32 s{S_GGRP}, s{S_J}, 13"); e(f"s_lshl_b32 s{S_T0}, s{S_XC}, 10"); e(f"s_add_u32 s{S_GOWN}, s{S_GGRP}, s{S_T0}")
    e.lg_all()
    e("s_barrier")
    late_common(e)
    if "nocw" in o.exp:
        e("s_barrier")
        st("bar1x")
        e("s_branch L_done")
    e(f"v_lshlrev_b32 v{V_L16}, 4, v{L}")
    selmask(e, V_R, V_L16, mask64(range(49)))
    e(f"s_load_dword s{S_TAG}, s[{S_WS}:{S_WS+1}], {EPOCH_OFF}")
    emit_resets_P(e)
    e(f"s_getreg_b32 s{S_T2}, hwreg(HW_REG_XCC_ID)"); e(f"s_and_b32 s{S_T2}, s{S_T2}, 0xf")
    make_srd(e, SRD_T, S_X, 2560)
    e(f"v_and_b32 v{V_T}, 31, v{L}"); e(f"v_lshlrev_b32 v{V_T}, 3, v{V_T}")
    e(f"v_lshrrev_b32 v{V_T+1}, 5, v{L}"); e(f"v_mul_u32_u24 v{V_T+1}, 1280, v{V_T+1}"); e(f"v_add_u32 v{V_T}, v{V_T}, v{V_T+1}")
    selmask(e, V_T, V_T, rows_mask([0, 1], 20))
    e(f"s_mul_i32 s{S_T0}, s{S_J}, 160")
    e.vm(f"buffer_load_dwordx2 {vr(V_XR,2)}, v{V_T}, s[{SRD_T}:{SRD_T+3}], s{S_T0} offen", "x")
    e(f"s_add_u32 s{S_KV1}, s{S_KV0}, {BATCH_STRIDE}")
    R = NS(voffK=1, voffX=2, voffY=3, sel=V_SEL)
    attn_selectors(e, R, L, W0)
    n, g, x = W0, W0 + 1, W0 + 2
    e(f"v_mov_b32 v{W0+3}, v{V_L16}"); selmask(e, V_L16, W0 + 3, mask64(range(48)), other=0)
    e(f"v_and_b32 v{n}, 15, v{L}"); e(f"v_lshrrev_b32 v{g}, 4, v{L}")
    e(f"v_min_u32 v{x}, 1, v{n}")
    e(f"v_mul_u32_u24 v{V_BO}, 384, v{x}"); e(f"v_lshl_add_u32 v{V_BO}, v{g}, 4, v{V_BO}"); e(f"v_add_u32 v{V_BO}, {ACT_O}, v{V_BO}")
    e(f"v_lshlrev_b32 v{V_BH}, 7, v{x}"); e(f"v_lshl_add_u32 v{V_BH8}, v{g}, 3, v{V_BH}"); e(f"v_add_u32 v{V_BH8}, {ACT_H+64}, v{V_BH8}")
    e(f"v_lshl_add_u32 v{V_BH}, v{g}, 4, v{V_BH}"); e(f"v_add_u32 v{V_BH}, {ACT_H}, v{V_BH}")
    e(f"v_min_u32 v{x}, 2, v{n}")
    e(f"v_mul_u32_u24 v{V_BX}, 192, v{x}"); e(f"v_lshl_add_u32 v{V_BX8}, v{g}, 3, v{V_BX}"); e(f"v_add_u32 v{V_BX8}, {ACT_X+128}, v{V_BX8}")
    e(f"v_lshl_add_u32 v{V_BX}, v{g}, 4, v{V_BX}"); e(f"v_add_u32 v{V_BX}, {ACT_X}, v{V_BX}")
    e(f"v_subrev_u32 v{x}, 1, v{n}"); e(f"v_min_u32 v{x}, 2, v{x}")
    e(f"v_mul_u32_u24 v{V_AS}, 192, v{x}"); e(f"v_lshl_add_u32 v{V_AS8}, v{g}, 3, v{V_AS}"); e(f"v_add_u32 v{V_AS8}, {ACT_X+128}, v{V_AS8}")
    e(f"v_lshl_add_u32 v{V_AS}, v{g}, 4, v{V_AS}"); e(f"v_add_u32 v{V_AS}, {ACT_X}, v{V_AS}")
    e(f"v_lshlrev_b32 v{x}, 3, v{L}"); e(f"v_add_u32 v{x}, {SB}, v{x}"); selmask(e, V_W8, x, mask64(range(48)), other=SB+2560)
    e(f"v_and_b32 v{n}, 31, v{L}"); e(f"v_lshrrev_b32 v{g}, 5, v{L}")
    e(f"v_mul_u32_u24 v{x}, 192, v{g}"); e(f"v_lshl_add_u32 v{x}, v{n}, 3, v{x}"); e(f"v_add_u32 v{x}, {ACT_X}, v{x}")
    selmask(e, V_WX, x, rows_mask([0, 1], 20), other=DUMMY)
    e(f"v_lshlrev_b32 v{x}, 7, v{g}"); e(f"v_lshl_add_u32 v{x}, v{n}, 2, v{x}"); e(f"v_add_u32 v{x}, {ACT_H}, v{x}")
    selmask(e, V_WH, x, rows_mask([0, 1], 24), other=DUMMY)
    e(f"v_and_b32 v{x}, 7, v{L}"); e(f"v_lshlrev_b32 v{x}, 10, v{x}"); e(f"v_add_u32 v{V_ML}, 768, v{x}")
    m = mask64([16 * a + 1 for a in range(4)])
    e(f"s_mov_b32 s{S_N1}, 0x{m & 0xffffffff:08x}"); e(f"s_mov_b32 s{S_N1+1}, 0x{m >> 32:08x}")
    e("s_waitcnt lgkmcnt(0)")
    e(f"s_add_u32 s{S_TAG}, s{S_TAG}, 1")
    e.vm_all(force=True)
    token_store(e, TOK1, f"s{S_T2}")
    st("p.tok1")
    TO, TD = W0 + 38, W0 + 36
    e(f"v_lshlrev_b32 v{TO}, 10, v{L}"); e(f"s_lshl_b32 s{S_T0}, s{S_XC}, 7"); e(f"v_add_u32 v{TO}, s{S_T0}, v{TO}")
    token_gather(e, o, TOK1, TO, 0xffffffff, sleep=o.t_sleep, dst=TD, between=lambda: prologue_weights(e, o, st))
    e(f"v_cmp_ne_u32 vcc, s{S_T2}, v{TD+1}")
    e("s_mov_b64 exec, -1")
    st("p.mode")
    e("s_nop 3")
    e("s_cmp_lg_u32 vcc_lo, 0")

def late_common(e):
    make_srd(e, SRD_V, S_V, KV_BYTES); make_srd(e, SRD_WS, S_WS, WS_REC)
    e(f"s_mov_b32 s{S_C}, {lit(CSCALE)}")
    e(f"s_mov_b32 s{S_HI32}, 0"); e(f"s_mov_b32 s{S_HI32+1}, -1")
    e(f"s_mul_i32 s{S_PB}, s{S_WAVE}, 1536"); e(f"s_add_u32 s{S_PB}, s{S_PB}, {PART}")
    e(f"s_lshl_b32 s{S_MLB}, s{S_WAVE}, 3"); e(f"s_add_u32 s{S_MLB}, s{S_MLB}, {ML}")

def generate(o):
    Stamps.select = o.stampset.split(",") if o.stampset else None
    o_direct[0] = o.direct; o_direct[1] = o.direct0
    e = Emit()
    e("s_cmp_ge_u32 s2, 256"); e("s_cbranch_scc1 L_done")
    e("s_load_dwordx16 s[4:19], s[0:1], 0"); e("s_load_dwordx8 s[20:27], s[0:1], 64")
    e("v_lshrrev_b32 v1, 6, v0")
    e(f"s_and_b32 s{S_XC}, s2, 7"); e(f"s_lshr_b32 s{S_HQ}, s2, 6")
    e(f"v_readfirstlane_b32 s{S_WAVE}, v1")
    e(f"s_lshr_b32 s{S_J}, s2, 3"); e(f"s_and_b32 s{S_J}, s{S_J}, 7")
    e(f"s_lshl_b32 s{S_H}, s{S_XC}, 2"); e(f"s_add_u32 s{S_H}, s{S_H}, s{S_HQ}")
    e(f"s_mul_i32 s{S_KV0}, s{S_H}, {HEAD_STRIDE}"); e(f"s_mul_i32 s{S_T0}, s{S_J}, {CHUNK_STRIDE}"); e(f"s_add_u32 s{S_KV0}, s{S_KV0}, s{S_T0}")
    e(f"s_add_u32 s{S_T0}, s{S_WAVE}, 3"); e(f"s_and_b32 s{S_T0}, s{S_T0}, 3")
    e(f"s_mul_i32 s{S_T1}, s{S_T0}, {SW_TILES*TILE_B}"); e(f"s_add_u32 s{S_KV0}, s{S_KV0}, s{S_T1}")
    lane_id(e, 8)
    attn_load_offsets(e, NS(voffK=1, voffX=2, voffY=3), 8, 10)
    e("s_waitcnt lgkmcnt(0)")
    make_srd(e, SRD_K, S_K, KV_BYTES)
    e(f"s_cmp_eq_u32 s{S_WAVE}, 0"); e("s_cbranch_scc1 L_chain")
    st_s = Stamps(e, o.stamps); st_s("start")
    stream_wave(e, o, st_s)
    e.label("L_chain")
    e.vmq = []; e.lgq = []
    st_c = Stamps(e, o.stamps); st_c("start")
    chain_wave_setup(e, o, st_c)
    names = {}
    if o.force_global: e("s_branch L_global")
    else: e("s_cbranch_scc1 L_global")
    base_names = list(st_c.names)
    sv = (list(e.vmq), list(e.lgq))
    chain_wave(e, o, st_c, True)
    names['cw'] = list(st_c.names); names['sw'] = list(st_s.names)
    e.label("L_global")
    e.vmq, e.lgq = sv
    st_g = Stamps(e, o.stamps); st_g.names = list(base_names)
    chain_wave(e, o, st_g, False)
    e.label("L_abort")
    e.label("L_done")
    if o.stamps:
        e("s_cmp_ge_u32 s2, 256"); e("s_cbranch_scc1 L_exit")
        fl = Stamps(e, True); fl.names = names['cw']; fl.flush()
        e.label("L_exit")
    e("s_endpgm")
    return e, names

HEAD = """; Kernarg: A_x, K, V, wq, wo, B_x, W_gate, W_up, W_down, out, debug, ws (pointers)
; @launch grid=(256,1,1) block=(256,1,1) lds=%d
.amdgcn_target "amdgcn-amd-amdhsa--gfx950"
.text
.globl %s
.p2align 8
.type %s,@function
%s:
"""
FOOT = """
.section .rodata,"a"
.p2align 6
.amdhsa_kernel %s
  .amdhsa_next_free_vgpr 512
  .amdhsa_next_free_sgpr 102
  .amdhsa_accum_offset 256
  .amdhsa_group_segment_fixed_size 0
  .amdhsa_kernarg_size 96
  .amdhsa_user_sgpr_count 2
  .amdhsa_user_sgpr_kernarg_segment_ptr 1
  .amdhsa_system_sgpr_workgroup_id_x 1
  .amdhsa_float_denorm_mode_32 3
.end_amdhsa_kernel
"""
def build_text(o):
    e, names = generate(o)
    return HEAD % (LDS_TOTAL, NAME, NAME, NAME) + e.text() + "\n" + FOOT % NAME, names, e

if __name__ == "__main__":
    o = Opt()
    for a in sys.argv[2:]:
        k, v = a.split("=")
        cur = getattr(o, k)
        setattr(o, k, (v not in ("0", "False")) if isinstance(cur, bool) else type(cur)(v))
    txt, names, e = build_text(o)
    open(sys.argv[1], "w").write(txt)
    print("instructions:", e.ninst, "nops:", e.nops, names)
```

```python
import sys, struct
from types import SimpleNamespace as NS
from emit import Emit, vr

NAME = "interleave_layers__mha_block_cached__glu_gated_reglu__decode_kernel"

class Opt:
    NA = 24
    NA_BAR = 118
    NB = 8
    NB1 = 8
    go_at = "G1"
    NC = 56
    NA0 = 24
    NA0N = 0
    light = False
    pf = 0
    pf_all = False
    NF = 12
    NW = 24
    stamps = False
    poll_limit = 400000
    kvflags = "nt"
    wflags = "nt"
    stampset = ""
    p_sleep = 8
    mb_sleep = 0
    exp = ""
    t_sleep = 0
    early = False
    wb = 0
    prio = 0
    late_rst = False
    preGn = 0
    packed = ""
    preP0 = 0
    preP1 = 0
    direct0 = True
    preF0 = 16
    direct = True
    preF = 0
    look = 2
    NAe = 14
    NCe = 24
    split_tok = True
    preR0 = 0
    preL0 = 0
    preG0 = 0
    preR = 0
    preL = 0
    preG = 6
    flag_sleep = 0
    force_global = False

KV_BYTES = 100663296
BATCH_STRIDE = 50331648
HEAD_STRIDE = 1572864
CHUNK_STRIDE = 196608
TILE_B = 3072
SW_TILES, CW_TILES = 20, 4
OOB = 0x7fff0000

LDS_SW = 51200
SB = 153600
PART = SB
ML = SB + 6144
QARR = SB + 6208
ACT_O = SB + 6976
ACT_X = SB + 7744
ACT_H = SB + 8320
DUMMY = SB + 8576
WFLAG = SB + 10208
LDS_TOTAL = 163840
ST_WQ, ST_WO, ST_WG, ST_WU, ST_WD = 0, 30720, 61440, 69120, 76800

RG = 262144
R1_REG = {0: 0, '1a': 1, '1b': 2, 2: 3}
R3_REG = {'P': 4, 0: 7, 1: 8}
R2_REG = {'P': 9, 0: 10, 1: 11, 2: 12}
L_REG = lambda inst, k: 13 + 2 * inst + k
G_OFF = lambda inst, k: 19 * RG + (2 * inst + k) * 65536
STAMP_OFF = 22 * RG
WS_REC = 24 * RG

CSCALE = (192 ** -0.5) * 1.4426950408889634
EPS = 1e-5
def f2u(x): return struct.unpack("<I", struct.pack("<f", x))[0]
def lit(x): return "0x%08x" % f2u(x)
def mask64(lanes):
    m = 0
    for l in lanes: m |= 1 << l
    return m
def set_exec(e, m):
    if m == (1 << 64) - 1: e("s_mov_b64 exec, -1"); return
    e(f"s_mov_b32 exec_lo, 0x{m & 0xffffffff:08x}")
    e(f"s_mov_b32 exec_hi, 0x{m >> 32:08x}")

S_X, S_K, S_V, S_WQ, S_WO, S_BX, S_WG, S_WU, S_WD, S_OUT, S_DBG, S_WS = 4, 6, 8, 10, 12, 14, 16, 18, 20, 22, 24, 26
S_XC, S_HQ, S_J, S_H = 28, 29, 30, 31
SRD_K, SRD_V = 32, 36
S_KV0, S_KV1, S_SOFF, S_LDSB = 40, 41, 42, 43
SRD_T = 44
SRD_WS = 48
SRD_DBG = 52
S_C = 56
S_ROWN, S_RGRP, S_LOWN, S_LGRP, S_GOWN, S_GGRP = 57, 58, 59, 60, 61, 62
S_A, S_B, S_CNT, S_T0, S_T1, S_T2 = 63, 64, 65, 66, 67, 68
S_PB = 69
S_HI32 = 70
S_MLB = 72
S_GA, S_GB = 100, 101
S_WAVE = 3
S_STAMP = 76

def make_srd(e, srd, ptr, nbytes):
    e(f"s_mov_b32 s{srd}, s{ptr}")
    e(f"s_and_b32 s{srd+1}, s{ptr+1}, 0xffff")
    e(f"s_mov_b32 s{srd+2}, {nbytes}")
    e(f"s_mov_b32 s{srd+3}, 0x20000")

class Stamps:
    select = None
    def __init__(self, e, on): self.e, self.on, self.names = e, on, []
    def __call__(self, name):
        if not self.on: return
        if Stamps.select is not None and not any(name.startswith(p) for p in Stamps.select): return
        if Stamps.select is None and "." in name: return
        n = len(self.names); assert n < 12, "too many stamps"
        self.e(f"s_memrealtime s[{S_STAMP+2*n}:{S_STAMP+2*n+1}]")
        self.e.lg_all(force=True)
        self.names.append(name)
    def rounds(self, name):
        if not self.on: return
        if Stamps.select is None or not any(name.startswith(p) for p in Stamps.select): return
        n = len(self.names); assert n < 12
        self.e(f"s_mov_b32 s{S_STAMP+2*n}, s{S_CNT}"); self.e(f"s_mov_b32 s{S_STAMP+2*n+1}, 0")
        self.names.append(name)
    def flush(self):
        if not self.on: return
        e = self.e
        e("s_mov_b64 exec, 1")
        e(f"s_lshl_b32 s{S_T0}, s2, 2"); e(f"s_add_u32 s{S_T0}, s{S_T0}, s{S_WAVE}"); e(f"s_lshl_b32 s{S_T0}, s{S_T0}, 7")
        e(f"s_add_u32 s{S_T0}, s{S_T0}, {STAMP_OFF}")
        e("v_mov_b32 v0, 0")
        for i in range(len(self.names)):
            e(f"v_mov_b32 v2, s{S_STAMP+2*i}"); e(f"v_mov_b32 v3, s{S_STAMP+2*i+1}")
            e(f"buffer_store_dwordx2 v[2:3], v0, s[{SRD_WS}:{SRD_WS+3}], s{S_T0} offen offset:{8*i}")
            e("s_waitcnt vmcnt(0)")

def lane_id(e, dst):
    e(f"v_mbcnt_lo_u32_b32 {vr(dst)}, -1, 0")
    e(f"v_mbcnt_hi_u32_b32 {vr(dst)}, -1, {vr(dst)}")

def attn_load_offsets(e, R, lane, t):
    i, g, u, w = t, t + 1, t + 2, t + 3
    e(f"v_and_b32 {vr(i)}, 15, {vr(lane)}")
    e(f"v_lshrrev_b32 {vr(g)}, 4, {vr(lane)}")
    e(f"v_and_b32 {vr(u)}, 7, {vr(i)}")
    e(f"v_lshrrev_b32 {vr(w)}, 3, {vr(i)}")
    e(f"v_mul_u32_u24 {vr(R.voffK)}, 384, {vr(u)}")
    e(f"v_lshl_add_u32 {vr(R.voffK)}, {vr(g)}, 4, {vr(R.voffK)}")
    e(f"v_lshl_add_u32 {vr(R.voffK)}, {vr(w)}, 6, {vr(R.voffK)}")
    e(f"v_mul_u32_u24 {vr(R.voffX)}, 768, {vr(g)}")
    e(f"v_mul_u32_u24 {vr(w)}, 384, {vr(w)}")
    e(f"v_add_u32 {vr(R.voffY)}, {vr(R.voffX)}, {vr(w)}")
    e(f"v_lshl_add_u32 {vr(R.voffY)}, {vr(u)}, 4, {vr(R.voffY)}")
    e(f"v_add_u32 {vr(R.voffY)}, 256, {vr(R.voffY)}")
    e(f"v_lshl_add_u32 {vr(R.voffX)}, {vr(i)}, 4, {vr(R.voffX)}")

def attn_selectors(e, R, lane, t):
    i, u, lo, hi = t, t + 1, t + 2, t + 3
    e(f"v_and_b32 {vr(i)}, 15, {vr(lane)}")
    e(f"v_lshrrev_b32 {vr(u)}, 3, {vr(i)}")
    e(f"v_mul_u32_u24 {vr(u)}, 0x202, {vr(u)}")
    e(f"v_add_u32 {vr(u)}, 0x100, {vr(u)}")
    e(f"v_or_b32 {vr(lo)}, 0x0c0c0000, {vr(u)}")
    e(f"v_lshlrev_b32 {vr(hi)}, 16, {vr(u)}")
    e(f"v_or_b32 {vr(hi)}, 0x0c0c, {vr(hi)}")
    e(f"v_and_b32 {vr(u)}, 1, {vr(i)}")
    e(f"v_cmp_eq_u32 vcc, 1, {vr(u)}")
    e(f"v_cndmask_b32 {vr(lo)}, {vr(lo)}, {vr(hi)}, vcc")
    e(f"v_bfe_u32 {vr(u)}, {vr(i)}, 1, 2")
    e(f"v_mov_b32 {vr(hi)}, 0x0c0c0c0c")
    for r in range(4):
        e(f"v_cmp_eq_u32 vcc, {r}, {vr(u)}")
        e(f"v_cndmask_b32 {vr(R.sel+r)}, {vr(hi)}, {vr(lo)}, vcc")

def allreduce_list(reg, tmp, op):
    out = [f"v_{op}_f32_dpp {vr(reg)}, {vr(reg)}, {vr(reg)} row_ror:{k} row_mask:0xf bank_mask:0xf" for k in (8, 4, 2, 1)]
    out += [f"v_mov_b32 {vr(tmp)}, {vr(reg)}", f"v_permlane16_swap_b32 {vr(reg)}, {vr(tmp)}", f"v_{op}_f32 {vr(reg)}, {vr(reg)}, {vr(tmp)}",
            f"v_mov_b32 {vr(tmp)}, {vr(reg)}", f"v_permlane32_swap_b32 {vr(reg)}, {vr(tmp)}", f"v_{op}_f32 {vr(reg)}, {vr(reg)}, {vr(tmp)}"]
    return out

def allreduce(e, reg, tmp, op):
    for k in (8, 4, 2, 1):
        e(f"v_{op}_f32_dpp {vr(reg)}, {vr(reg)}, {vr(reg)} row_ror:{k} row_mask:0xf bank_mask:0xf")
    e(f"v_mov_b32 {vr(tmp)}, {vr(reg)}")
    e(f"v_permlane16_swap_b32 {vr(reg)}, {vr(tmp)}")
    e(f"v_{op}_f32 {vr(reg)}, {vr(reg)}, {vr(tmp)}")
    e(f"v_mov_b32 {vr(tmp)}, {vr(reg)}")
    e(f"v_permlane32_swap_b32 {vr(reg)}, {vr(tmp)}")
    e(f"v_{op}_f32 {vr(reg)}, {vr(reg)}, {vr(tmp)}")

def attn_pre(e, R, ntiles):
    L = R.tmp
    lane_id(e, L)
    e(f"v_and_b32 {vr(L+1)}, 1, {vr(L)}")
    e(f"v_lshrrev_b32 {vr(L+2)}, 4, {vr(L)}")
    e(f"v_lshlrev_b32 {vr(L+2)}, 4, {vr(L+2)}")
    e(f"v_lshl_add_u32 {vr(L+1)}, {vr(L+1)}, 6, {vr(L+2)}")
    e(f"v_add_u32 {vr(L+1)}, {QARR}, {vr(L+1)}")
    e(f"v_add_u32 {vr(R.vpp)}, s{S_PB}, {vr(L+2)}")
    W = R.vpw; t = L + 2
    e(f"v_lshrrev_b32 {vr(t)}, 5, {vr(L)}"); e(f"v_lshlrev_b32 {vr(W)}, 6, {vr(t)}")
    e(f"v_bfe_u32 {vr(t)}, {vr(L)}, 1, 2"); e(f"v_lshl_add_u32 {vr(W)}, {vr(t)}, 4, {vr(W)}")
    e(f"v_bfe_u32 {vr(t)}, {vr(L)}, 3, 2"); e(f"v_lshl_add_u32 {vr(W)}, {vr(t)}, 2, {vr(W)}")
    e(f"v_and_b32 {vr(t)}, 1, {vr(L)}"); e(f"v_lshl_add_u32 {vr(W)}, {vr(t)}, 1, {vr(W)}")
    e(f"v_add_u32 {vr(W)}, s{S_PB}, {vr(W)}")
    nsc = (ntiles + 7) // 8
    for r in range(nsc):
        if (r + 1) * 8 > ntiles: e(f"v_mov_b32 {vr(R.sc+r)}, 0xff800000")

def attn_pass(e, R, ntiles, qrow, Kfrag, Vfrag, part_sreg, ml_off, k_wait=None, qk_hook=None, mid_hook=None,
              v_wait=None, pv_hook=None, stage=None, pre_done=False, mark=None, look=2):
    L = R.tmp
    if not pre_done: attn_pre(e, R, ntiles)
    for s in range(3):
        e.lg(f"ds_read_b128 {vr(R.qA+4*s,4)}, {vr(L+1)} offset:{qrow*384 + 128*s}", ("q", s))
    W = R.vpw
    nsc = (ntiles + 7) // 8
    stg = {}
    def stage_k(T):
        if T >= ntiles: return
        for s in range(3):
            f = Kfrag(T, s)
            if isinstance(f, tuple):
                reg = stage[(3 * T + s) % len(stage)]
                e.lg(f"ds_read_b128 {vr(reg,4)}, {vr(R.vlds)} offset:{f[1]}", ("k", T, s))
                stg[(T, s)] = vr(reg, 4)
    LOOK = look
    if k_wait: k_wait(-1)
    for T in range(min(LOOK, ntiles)): stage_k(T)
    e.lg_wait(("q", 2))
    def dpp_add(T):
        D = R.D + 4 * (T % 3)
        dst = vr(R.sc + (T >> 3)); rm = 1 << ((T >> 1) & 3)
        if T % 2 == 0: e(f"v_add_f32_dpp {dst}, {vr(D+1)}, {vr(D)} row_ror:8 row_mask:0x{rm:x} bank_mask:0x3")
        else:          e(f"v_add_f32_dpp {dst}, {vr(D)}, {vr(D+1)} row_ror:8 row_mask:0x{rm:x} bank_mask:0xc")
    for T in range(ntiles):
        if k_wait: k_wait(T)
        D = vr(R.D + 4 * (T % 3), 4)
        for s in range(3):
            f = Kfrag(T, s)
            if isinstance(f, tuple):
                e.lg_wait(("k", T, s)); f = stg[(T, s)]
            e(f"v_mfma_f32_16x16x32_bf16 {D}, {vr(R.qA+4*s,4)}, {f}, {'0' if s == 0 else D}")
        stage_k(T + LOOK)
        if qk_hook: qk_hook(T)
        if T >= 2: dpp_add(T - 2)
    for T in range(max(0, ntiles - 2), ntiles): dpp_add(T)
    if mark: mark("qk")
    t0, t1 = R.D, R.D + 1
    if nsc == 1: e(f"v_mov_b32 {vr(t0)}, {vr(R.sc)}")
    elif nsc == 2: e(f"v_max_f32 {vr(t0)}, {vr(R.sc)}, {vr(R.sc+1)}")
    else: e(f"v_max3_f32 {vr(t0)}, {vr(R.sc)}, {vr(R.sc+1)}, {vr(R.sc+2)}")
    allreduce(e, t0, t1, "max")
    e(f"v_mul_f32 {vr(R.vm)}, s{S_C}, {vr(t0)}")
    for r in range(nsc): e(f"v_fma_f32 {vr(R.sc+r)}, {vr(R.sc+r)}, s{S_C}, -{vr(R.vm)}")
    for r in range(nsc): e(f"v_exp_f32 {vr(R.sc+r)}, {vr(R.sc+r)}")
    for r in range(nsc): e(f"v_cvt_pk_bf16_f32 {vr(R.D+2+r)}, {vr(R.sc+r)}, {vr(R.sc+r)}")
    for r in range(nsc): e.lg(f"ds_write_b16 {vr(W)}, {vr(R.D+2+r)} offset:{128*r}", ("pw", r))
    nq = (ntiles + 3) // 4
    ppreg = lambda q: R.pp + 4 * (q % 2)
    if nsc == 1: e(f"v_mov_b32 {vr(R.vl)}, {vr(R.sc)}")
    else:
        e(f"v_add_f32 {vr(R.vl)}, {vr(R.sc)}, {vr(R.sc+1)}")
        if nsc == 3: e(f"v_add_f32 {vr(R.vl)}, {vr(R.vl)}, {vr(R.sc+2)}")
    e.lg(f"ds_read_b128 {vr(ppreg(0),4)}, {vr(R.vpp)}", ("pp", 0))
    if nq > 1: e.lg(f"ds_read_b128 {vr(ppreg(1),4)}, {vr(R.vpp)} offset:64", ("pp", 1))
    lred = allreduce_list(R.vl, R.vlt, "add")
    if ntiles < 12:
        for ins in lred: e(ins)
        lred = []
    if mid_hook: mid_hook()
    if mark: mark("sm")
    X1, X2, Y = R.acc, R.acc + 4, R.acc + 8
    def build_A(T):
        q = T >> 2
        e.lg_wait(("pp", q))
        A = R.A + 4 * (T % 2); src = vr(ppreg(q) + (T & 3))
        return [f"v_perm_b32 {vr(A+r)}, {src}, {src}, {vr(R.sel+r)}" for r in range(4)]
    for ins in build_A(0): e(ins)
    for T in range(ntiles):
        A = vr(R.A + 4 * (T % 2), 4)
        nxt = build_A(T + 1) if T + 1 < ntiles else []
        if v_wait: v_wait(T, 0)
        e(f"v_mfma_f32_16x16x32_bf16 {vr(X1,4)}, {A}, {Vfrag(T,0)}, {'0' if T == 0 else vr(X1,4)}")
        for ins in nxt[:2]: e(ins)
        if v_wait: v_wait(T, 1)
        e(f"v_mfma_f32_16x16x32_bf16 {vr(X2,4)}, {A}, {Vfrag(T,1)}, {'0' if T == 0 else vr(X2,4)}")
        for ins in nxt[2:]: e(ins)
        if v_wait: v_wait(T, 2)
        e(f"v_mfma_f32_16x16x32_bf16 {vr(Y,4)}, {A}, {Vfrag(T,2)}, {'0' if T == 0 else vr(Y,4)}")
        if (T & 3) == 2 and (T >> 2) + 2 < nq:
            q2 = (T >> 2) + 2
            e.lg(f"ds_read_b128 {vr(ppreg(q2),4)}, {vr(R.vpp)} offset:{64*q2}", ("pp", q2))
        if lred and T >= 1: e(lred.pop(0))
        if pv_hook: pv_hook(T)
    assert not lred
    if mark: mark("pv")
    p = R.pp
    lane_id(e, p)
    e(f"v_and_b32 {vr(p+1)}, 15, {vr(p)}")
    e(f"v_lshrrev_b32 {vr(p+2)}, 4, {vr(p)}")
    e(f"v_and_b32 {vr(p+3)}, 1, {vr(p+2)}")
    e(f"v_lshrrev_b32 {vr(p+2)}, 1, {vr(p+2)}")
    e(f"v_mul_u32_u24 {vr(p+2)}, 768, {vr(p+2)}")
    e(f"v_lshl_add_u32 {vr(p+2)}, {vr(p+3)}, 4, {vr(p+2)}")
    e(f"v_add_u32 {vr(p+2)}, s{part_sreg}, {vr(p+2)}")
    e(f"v_lshl_add_u32 {vr(p+4)}, {vr(p+1)}, 5, {vr(p+2)}")
    e(f"v_and_b32 {vr(p+1)}, 7, {vr(p+1)}")
    e(f"v_lshl_add_u32 {vr(p+5)}, {vr(p+1)}, 5, {vr(p+2)}")
    e(f"v_mov_b32 {vr(p+6)}, s{S_MLB}")
    e(f"v_mov_b32 {vr(R.A)}, {vr(R.vm)}"); e(f"v_mov_b32 {vr(R.A+1)}, {vr(R.vl)}")
    for r in range(4):
        e(f"v_cndmask_b32 {vr(X1+r)}, {vr(X1+r)}, {vr(X2+r)}, s[{S_HI32}:{S_HI32+1}]")
    e.lg(f"ds_write_b128 {vr(p+4)}, {vr(X1,4)}", "px")
    set_exec(e, 0xFF00FF0000FF00FF)
    e.lg(f"ds_write_b128 {vr(p+5)}, {vr(Y,4)} offset:512", "py")
    e("s_mov_b64 exec, 1")
    e.lg(f"ds_write_b64 {vr(p+6)}, {vr(R.A,2)} offset:{ml_off}", "pm")
    e("s_mov_b64 exec, -1")
    e.lg_all()

def kv_soff(e, base_sreg, T):
    e(f"s_add_u32 s{S_SOFF}, s{base_sreg}, {T*TILE_B}")
def ld_k(e, R, dst, s, tag, o):
    e.vm(f"buffer_load_dwordx4 {dst}, {vr(R.voffK)}, s[{SRD_K}:{SRD_K+3}], s{S_SOFF} offen offset:{128*s} {o.kvflags}", tag)
def ld_v(e, R, dst, w, tag, o):
    vo = R.voffY if w == 2 else R.voffX
    off = 384 if w == 1 else 0
    e.vm(f"buffer_load_dwordx4 {dst}, {vr(vo)}, s[{SRD_V}:{SRD_V+3}], s{S_SOFF} offen offset:{off} {o.kvflags}", tag)
def dma_k(e, R, slot, s, tag, o):
    e(f"s_add_u32 m0, s{S_LDSB}, {slot*1024 - 128*s + 0}") if slot*1024 - 128*s >= 0 else e(f"s_sub_u32 m0, s{S_LDSB}, {128*s - slot*1024}")
    e.vm(f"buffer_load_dwordx4 {vr(R.voffK)}, s[{SRD_K}:{SRD_K+3}], s{S_SOFF} offen offset:{128*s} {o.kvflags} lds", tag)
def dma_v(e, R, slot, w, tag, o):
    vo = R.voffY if w == 2 else R.voffX
    off = 384 if w == 1 else 0
    e(f"s_add_u32 m0, s{S_LDSB}, {slot*1024 - off}")
    e.vm(f"buffer_load_dwordx4 {vr(vo)}, s[{SRD_V}:{SRD_V+3}], s{S_SOFF} offen offset:{off} {o.kvflags} lds", tag)

def slot_reg(k):
    assert 0 <= k < 118
    return f"a[{4*k}:{4*k+3}]" if k < 64 else f"v[{40+4*(k-64)}:{40+4*(k-64)+3}]"

def weight_dma(e, o):
    L, t, u = 8, 20, 21
    def dma_block(ptr, nbytes, lanes_per_row, magic, shift, nlanes, row_stride, rows_per_instr, ninstr, so, lds0, bar=False):
        make_srd(e, SRD_T, ptr, nbytes)
        e(f"v_mul_u32_u24 v{t}, {magic}, v{L}"); e(f"v_lshrrev_b32 v{t}, {shift}, v{t}")
        e(f"v_mul_u32_u24 v{u}, {lanes_per_row}, v{t}"); e(f"v_sub_u32 v{u}, v{L}, v{u}")
        e(f"s_mov_b32 s{S_T1}, {row_stride}")
        e(f"v_mul_lo_u32 v{t}, v{t}, s{S_T1}"); e(f"v_lshl_add_u32 v{t}, v{u}, 4, v{t}")
        rreg, rmul, creg, cmul = so
        e(f"s_mul_i32 s{S_SOFF}, s{rreg}, {rmul*row_stride}")
        e(f"s_mul_i32 s{S_T1}, s{creg}, {cmul}"); e(f"s_add_u32 s{S_SOFF}, s{S_SOFF}, s{S_T1}")
        set_exec(e, mask64(range(nlanes)))
        if bar: e("s_barrier")
        for i in range(ninstr):
            e(f"s_mov_b32 m0, {lds0 + i*nlanes*16}")
            if i: e(f"s_add_u32 s{S_SOFF}, s{S_SOFF}, {rows_per_instr*row_stride}")
            else: e("s_nop 0")
            e.vm_depth(o.NW - 1)
            e.vm(f"buffer_load_dwordx4 v{t}, s[{SRD_T}:{SRD_T+3}], s{S_SOFF} offen {o.wflags} lds", "w")
        e("s_mov_b64 exec, -1")
    l2, l3, end = e.newlabel("w2"), e.newlabel("w3"), e.newlabel("wend")
    e(f"s_cmp_eq_u32 s{S_WAVE}, 2"); e(f"s_cbranch_scc1 {l2}")
    e(f"s_cmp_eq_u32 s{S_WAVE}, 3"); e(f"s_cbranch_scc1 {l3}")
    base_q = list(e.vmq)
    dma_block(S_WQ, 7864320, 24, 43, 10, 48, 12288, 2, 40, (S_J, 80, S_H, 384), ST_WQ, bar=True)
    e(f"s_branch {end}")
    e.label(l2); e.vmq = list(base_q)
    dma_block(S_WO, 7864320, 10, 103, 10, 60, 1280, 6, 32, (S_H, 192, S_J, 160), ST_WO, bar=True)
    e(f"s_branch {end}")
    e.label(l3); e.vmq = list(base_q)
    dma_block(S_WG, 1966080, 6, 43, 8, 60, 3072, 10, 8, (S_J, 80, S_H, 96), ST_WG, bar=True)
    dma_block(S_WU, 1966080, 6, 43, 8, 60, 3072, 10, 8, (S_J, 80, S_H, 96), ST_WU)
    dma_block(S_WD, 1966080, 10, 103, 10, 60, 1280, 6, 8, (S_H, 48, S_J, 160), ST_WD)
    e.label(end)
    e.vmq = ["w"] * o.NW

S_XPAR = 15
def par_depth(e, n):
    lab = e.newlabel("par")
    e(f"s_cmp_lg_u32 s{S_XPAR}, 0"); e(f"s_cbranch_scc1 {lab}")
    e(f"s_waitcnt vmcnt({n-1})")
    e.label(lab)

def emit_wb(e):
    skip = e.newlabel("nowb")
    e(f"s_cmp_lg_u32 s{S_WAVE}, 1"); e(f"s_cbranch_scc1 {skip}")
    e("s_cmp_ge_u32 s2, 8"); e(f"s_cbranch_scc1 {skip}")
    e("buffer_wbl2 sc1")
    e("s_waitcnt vmcnt(0)")
    e.label(skip)

def stream_wave(e, o, st):
    R = NS(vlds=0, voffK=1, voffX=2, voffY=3, sel=4, qA=8, D=20, sc=32, tmp=20, vpw=35, acc=8, A=20, pp=28, vpp=36, vm=38, vl=39, vlt=37)
    loads = []
    for T in range(SW_TILES):
        for s in range(3): loads.append(('K', T, s))
    for T in range(SW_TILES):
        for w in range(3): loads.append(('V', T, w))
    def k0slot(T, s): return 3 * T + s
    def v0slot(T, w): return 60 + 3 * T + w
    cur = [None]
    def issue0(item):
        kind, T, x = item
        if cur[0] != (kind, T, 0):
            kv_soff(e, S_KV0, T); cur[0] = (kind, T, 0)
        if kind == 'K': ld_k(e, R, slot_reg(k0slot(T, x)), x, ('K0', T, x), o)
        else:
            sl = v0slot(T, x)
            if sl < 118: ld_v(e, R, slot_reg(sl), x, ('V0', T, x), o)
            else: dma_v(e, R, 48 + sl - 118, x, ('V0', T, x), o)
    for item in loads[:o.NF]: issue0(item)
    late_common(e)
    e(f"s_add_u32 s{S_KV1}, s{S_KV0}, {BATCH_STRIDE}")
    e(f"s_sub_u32 s{S_T0}, s{S_WAVE}, 1"); e(f"s_mul_i32 s{S_LDSB}, s{S_T0}, {LDS_SW}")
    if o.NAe or o.NCe:
        e(f"s_getreg_b32 s{S_T0}, hwreg(HW_REG_XCC_ID)"); e(f"s_and_b32 s{S_XPAR}, s{S_T0}, 1")
    nf = list(e.vmq)
    if "now" in o.exp: e("s_barrier")
    else: weight_dma(e, o)
    e.vmq = nf + ["w"] * o.NW if len(nf) + o.NW <= 60 else ["w"] * 60
    cur[0] = None
    st("s.wiss")
    e(f"v_lshlrev_b32 {vr(R.vlds)}, 4, v8")
    e(f"v_add_u32 {vr(R.vlds)}, s{S_LDSB}, {vr(R.vlds)}")
    attn_selectors(e, R, 8, 10)
    for idx, item in enumerate(loads[:o.NA_BAR]):
        if idx < o.NF: continue
        na = o.NA0 if idx < o.NA0N else o.NA
        e.vm_depth(na - 1)
        if o.NAe: par_depth(e, o.NAe)
        if idx == o.NF + max(o.NA, o.NA0):
            e(f"s_lshl_b32 s{S_T0}, s{S_WAVE}, 2"); e(f"s_add_u32 s{S_T0}, s{S_T0}, {WFLAG-4}")
            e(f"v_mov_b32 v20, s{S_T0}"); e("v_mov_b32 v21, 1")
            e.lg("ds_write_b32 v20, v21", "wf")
            st("s.wland")
        if idx == 60: st("s.k0iss")
        if idx == 90: st("s.v30")
        issue0(item)
    st("A_issued")
    attn_pre(e, R, SW_TILES)
    e("s_barrier")
    st("bar1")
    if "nocw" in o.exp or "cw" in o.exp or "stopA" in o.exp:
        e.vm_all(); st("s.alland"); st.flush(); e("s_endpgm")
    pend = [('0', it) for it in loads[o.NA_BAR:]]
    for T in range(16):
        for s in range(3): pend.append(('1', T, s))
    cur1 = [None]
    def issue_pend():
        it = pend.pop(0)
        if it[0] == '0': cur1[0] = None; issue0(it[1])
        else:
            _, T, s = it
            if cur1[0] != T:
                kv_soff(e, S_KV1, T); cur1[0] = T; cur[0] = None
            dma_k(e, R, 3 * T + s, s, ('K1', T, s), o)
    while pend[0][0] == '0': issue_pend()
    def Kf0(T, s): return slot_reg(k0slot(T, s))
    def Vf0(T, w):
        sl = v0slot(T, w)
        if sl < 118: return slot_reg(sl)
        return "v[32:35]" if w == 1 else "v[28:31]"
    def k_wait_A(T):
        if T == -1: e.vm_wait(('K0', SW_TILES - 1, 2))
    def pv_hook_A(T):
        left = SW_TILES - 1 - T
        target = max(o.NB1, min(o.NA, 3 * left + o.NB1)) if o.NB1 else 0
        if T == SW_TILES - 2:
            e.vm_wait(('V0', SW_TILES - 1, 2))
            e.lg(f"ds_read_b128 v[32:35], {vr(R.vlds)} offset:{48*1024}", ("vo", 1))
            e.lg(f"ds_read_b128 v[28:31], {vr(R.vlds)} offset:{49*1024}", ("vo", 2))
            target = o.NB1
        while pend and len(e.vmq) < target: issue_pend()
    def vwait_A(T, w):
        e.vm_wait(('V0', T, w))
        if T == SW_TILES - 1 and w >= 1: e.lg_wait(("vo", w))
    attn_pass(e, R, SW_TILES, 0, Kf0, Vf0, S_PB, 0, k_wait=k_wait_A, v_wait=vwait_A, pv_hook=pv_hook_A, pre_done=True)
    st("A_done")
    e("s_barrier")
    if o.NB1 == o.NB:
        while pend:
            e.vm_depth(o.NB - 1)
            issue_pend()
    else:
        items = list(pend); pend.clear()
        q0 = list(e.vmq); c0 = cur1[0]
        fast = {i: e.newlabel("fastB") for i in range(len(items))}
        done = e.newlabel("doneB")
        e(f"v_mov_b32 v20, {WFLAG + 12}")
        def emit_item(it, force_soff):
            _, T, s = it
            if cur1[0] != T or force_soff:
                kv_soff(e, S_KV1, T); cur1[0] = T
            dma_k(e, R, 3 * T + s, s, ('K1', T, s), o)
        marks = [i for i, it in enumerate(items) if it[2] == 0]
        if o.NB1 == 0:
            spin = e.newlabel("spinB")
            e(f"s_mov_b32 s{S_CNT}, {o.poll_limit*8}")
            e.label(spin)
            e(f"s_sub_u32 s{S_CNT}, s{S_CNT}, 1"); e(f"s_cbranch_scc1 {fast[0]}")
            e.lg("ds_read_b32 v21, v20", "go"); e.lg_all()
            e(f"v_readfirstlane_b32 s{S_T0}, v21")
            e(f"s_cmp_lg_u32 s{S_T0}, 0"); e(f"s_cbranch_scc1 {fast[0]}")
            e("s_sleep 2"); e(f"s_branch {spin}")
        for i, it in enumerate(items if o.NB1 else []):
            if i in marks:
                e.lg("ds_read_b32 v21, v20", "go"); e.lg_all()
                e(f"v_readfirstlane_b32 s{S_T0}, v21")
                e(f"s_cmp_lg_u32 s{S_T0}, 0"); e(f"s_cbranch_scc1 {fast[i]}")
            e.vm_depth(o.NB1 - 1)
            emit_item(it, False)
        e(f"s_branch {done}")
        e.vmq = list(q0); cur1[0] = c0
        for i, it in enumerate(items):
            if i in marks: e.label(fast[i])
            e.vm_depth(o.NB - 1)
            emit_item(it, i in marks)
        e.label(done)
    st("B_issued")
    attn_pre(e, R, SW_TILES)
    e("s_barrier")
    st("bar3")
    pend1 = []
    for T in range(16, SW_TILES):
        for s in range(3): pend1.append(('K', T, s))
    for T in range(SW_TILES):
        for w in range(3): pend1.append(('V', T, w))
    slot_of = {it: i for i, it in enumerate(pend1)}
    freed = [0]
    issued1 = [0]
    cur2 = [None]
    def issue1():
        it = pend1[issued1[0]]; kind, T, x = it
        if cur2[0] != (kind, T):
            kv_soff(e, S_KV1, T); cur2[0] = (kind, T)
        e.vm_depth(o.NC - 1)
        if o.NCe: par_depth(e, o.NCe)
        if kind == 'K': ld_k(e, R, slot_reg(slot_of[it]), x, ('K1', T, x), o)
        else: ld_v(e, R, slot_reg(slot_of[it]), x, ('V1', T, x), o)
        issued1[0] += 1
    def refill():
        while issued1[0] < len(pend1) and issued1[0] < freed[0]: issue1()
    def qk_hook_C1(T):
        freed[0] = 3 * (T + 1); refill()
    def pv_hook_C1(T):
        freed[0] = min(118, 60 + 3 * (T + 1)); refill(); ovf_hook_C(T)
    def ovf_hook_C(T):
        if T == SW_TILES - 2:
            e.lg(f"ds_read_b128 v[32:35], {vr(R.vlds)} offset:{48*1024}", ("vo", 1))
            e.lg(f"ds_read_b128 v[28:31], {vr(R.vlds)} offset:{49*1024}", ("vo", 2))
    def vwait_C1(T, w):
        if T == SW_TILES - 1 and w >= 1: e.lg_wait(("vo", w))
    e(f"s_add_u32 s{S_T2}, s{S_LDSB}, {48*1024}")
    attn_pass(e, R, SW_TILES, 0, Kf0, Vf0, S_T2, 32, qk_hook=qk_hook_C1, v_wait=vwait_C1, pv_hook=pv_hook_C1, pre_done=True)
    refill()
    assert issued1[0] == len(pend1)
    st("C1_done")
    e("s_barrier")
    stage = [40 + 4 * (k - 64) for k in range(100, 112)]
    def Kf1(T, s):
        if T < 16: return ('lds', (3 * T + s) * 1024)
        return slot_reg(slot_of[('K', T, s)])
    def Vf1(T, w): return slot_reg(slot_of[('V', T, w)])
    def k_wait_C2(T):
        if T == -1: e.vm_wait(('K1', 15, 2))
        elif T >= 16: e.vm_wait(('K1', T, 2))
    def vwait_C2(T, w): e.vm_wait(('V1', T, w))
    attn_pass(e, R, SW_TILES, 1, Kf1, Vf1, S_PB, 0, k_wait=k_wait_C2, v_wait=vwait_C2, stage=stage, look=o.look)
    st("C2_done")
    e("s_barrier")
    if o.wb == 2: emit_wb(e)
    attn_pre(e, R, SW_TILES)
    e("s_barrier")
    st("bar7")
    attn_pass(e, R, SW_TILES, 1, Kf1, Vf1, S_PB, 0, stage=stage, pre_done=True, mark=lambda n: st("e." + n), look=o.look)
    st("E_done")
    e("s_barrier")
    if o.wb == 1: emit_wb(e)
    st.flush()
    e("s_endpgm")

V_LANE, V_LG, V_R, V_PL, V_PG, V_PQ = 0, 4, 5, 6, 7, 8
V_BO, V_BX, V_BX8, V_BH, V_BH8, V_AS, V_AS8 = 9, 10, 11, 12, 13, 14, 15
V_XR, V_CSQ, V_CSG = 16, 20, 24
V_W8, V_WX, V_WH, V_ML = 28, 29, 30, 31
W0 = 32
V_SEL, V_R2, V_ST2, V_PS, V_PSQ, V_L16 = 75, 79, 80, 81, 82, 83
V_T = 84
V_GL, V_LL = 72, 73
V_DA, V_DB = 72, 73
CW_K, CW_V = 86, 134
S_N1 = 74

_off3 = (2, 6, 0)
def wq_frag(t, s): return ("a", 10 * t + _off3[s])
def wo_frag(t, s): return ("a", 120 + 24 * t + 4 * s)
def wd_frag(t, s):
    if s == 0: return ("a", 240 + 4 * t) if t < 4 else ("v", 182)
    return ("v", 186 + 2 * t)
def wg_frag(t, s): return ("v", 196 + 10 * t + _off3[s])
def wu_frag(t, s): return ("v", 226 + 10 * t + _off3[s])
def win(fr): return f"{fr[0]}[{fr[1]}:{fr[1]+3}]"

V_OOB = 74
def selmask(e, dst, val, mask, other=None):
    e(f"s_mov_b32 vcc_lo, 0x{mask & 0xffffffff:08x}"); e(f"s_mov_b32 vcc_hi, 0x{mask >> 32:08x}")
    if other is None: e(f"v_cndmask_b32 {vr(dst)}, v{V_OOB}, {vr(val)}, vcc")
    else:
        assert dst != val
        e(f"v_mov_b32 {vr(dst)}, 0x{other:08x}")
        e(f"v_cndmask_b32 {vr(dst)}, {vr(dst)}, {vr(val)}, vcc")

def rows_mask(live, n): return mask64([32 * r + g for r in live for g in range(n)])
def cols_mask(live, alist=range(4)): return mask64([16 * a + n for a in alist for n in live])

def instance_offsets(e, live, pub_live=None, q_live=None):
    pub_live = live if pub_live is None else pub_live
    q_live = pub_live if q_live is None else q_live
    t, u = V_T, V_T + 1
    e(f"v_and_b32 {vr(t)}, 31, v{V_LANE}"); e(f"v_lshlrev_b32 {vr(t)}, 4, {vr(t)}")
    e(f"v_lshrrev_b32 {vr(u)}, 5, v{V_LANE}"); e(f"v_lshl_add_u32 {vr(t)}, {vr(u)}, 9, {vr(t)}")
    selmask(e, V_LG, t, rows_mask(live, 20))
    selmask(e, V_R2, t, rows_mask(live, 24))
    if o_packed[0]:
        row = live[-1]
        e(f"v_lshrrev_b32 {vr(t)}, 4, v{V_LANE}"); e(f"v_and_b32 {vr(u)}, 15, v{V_LANE}")
        e(f"v_lshlrev_b32 v{V_DA}, 10, {vr(t)}"); e(f"v_lshl_add_u32 v{V_DA}, {vr(u)}, 4, v{V_DA}"); e(f"v_add_u32 v{V_DA}, {512*row}, v{V_DA}")
        e(f"v_lshlrev_b32 v{V_DB}, 15, {vr(t)}"); e(f"v_bfe_u32 {vr(u)}, v{V_LANE}, 2, 2"); e(f"v_lshl_add_u32 v{V_DB}, {vr(u)}, 10, v{V_DB}")
        e(f"v_and_b32 {vr(u)}, 3, v{V_LANE}"); e(f"v_lshl_add_u32 v{V_DB}, {vr(u)}, 4, v{V_DB}"); e(f"v_add_u32 v{V_DB}, {512*row + 256}, v{V_DB}")
        e(f"v_lshrrev_b32 {vr(u)}, 5, v{V_LANE}")
    else:
        e(f"v_and_b32 v{V_GL}, 7, v{V_LANE}"); e(f"v_lshlrev_b32 v{V_GL}, 10, v{V_GL}"); e(f"v_add_u32 v{V_GL}, {512*live[-1] + 19*16}, v{V_GL}")
        e(f"v_and_b32 v{V_LL}, 3, v{V_LANE}"); e(f"v_lshlrev_b32 v{V_LL}, 10, v{V_LL}"); e(f"v_add_u32 v{V_LL}, {512*live[-1] + 19*16}, v{V_LL}")
    e(f"v_and_b32 {vr(t)}, 7, v{V_LANE}"); e(f"v_lshlrev_b32 {vr(t)}, 10, {vr(t)}")
    e(f"v_lshl_add_u32 {vr(t)}, {vr(u)}, 9, {vr(t)}"); e(f"v_add_u32 {vr(t)}, 384, {vr(t)}")
    selmask(e, V_ST2, t, rows_mask(live, 32))
    e(f"v_and_b32 {vr(t)}, 15, v{V_LANE}"); e(f"v_lshrrev_b32 {vr(u)}, 4, v{V_LANE}")
    e(f"v_lshlrev_b32 v{V_PL}, 9, {vr(t)}")
    e(f"v_lshl_add_u32 v{V_PG}, {vr(u)}, 5, v{V_PL}")
    e(f"v_add_u32 v{V_PS}, 384, v{V_PL}")
    e(f"v_lshl_add_u32 v{V_PL}, {vr(u)}, 4, v{V_PL}")
    e(f"v_lshlrev_b32 v{V_PQ}, 18, {vr(t)}")
    e(f"v_add_u32 v{V_PSQ}, 768, v{V_PQ}")
    e(f"v_lshl_add_u32 v{V_PQ}, {vr(u)}, 4, v{V_PQ}")
    cm = cols_mask(pub_live)
    e(f"s_mov_b32 vcc_lo, 0x{cm & 0xffffffff:08x}"); e(f"s_mov_b32 vcc_hi, 0x{cm >> 32:08x}")
    for r in (V_PL, V_PG): e(f"v_cndmask_b32 v{r}, v{V_OOB}, v{r}, vcc")
    selmask(e, V_PS, V_PS, cols_mask(pub_live, [0]))
    selmask(e, V_PQ, V_PQ, cols_mask(q_live))
    selmask(e, V_PSQ, V_PSQ, cols_mask(q_live, [0]))

def soffs(e, off_sreg, const, two=True):
    e(f"s_add_u32 s{S_A}, s{off_sreg}, {const}")
    if two: e(f"s_add_u32 s{S_B}, s{S_A}, 4096")

def poll(e, o, loads, abort, sleep=0):
    lab = e.newlabel("poll")
    e(f"s_mov_b32 s{S_CNT}, {o.poll_limit}")
    e.label(lab)
    for d, vo, s, imm in loads:
        e(f"buffer_load_dwordx4 {vr(d,4)}, v{vo}, s[{SRD_WS}:{SRD_WS+3}], s{s} offen offset:{imm} sc1")
    e(f"s_sub_u32 s{S_CNT}, s{S_CNT}, 1")
    e(f"s_cbranch_scc1 {abort}")
    e("s_waitcnt vmcnt(0)")
    vals = []
    for d, _, _, _ in loads: vals += [d + 1, d + 3]
    t = V_T
    e(f"v_max3_u32 v{t}, v{vals[0]}, v{vals[1]}, v{vals[2]}")
    i = 3
    while i < len(vals):
        if i + 1 < len(vals): e(f"v_max3_u32 v{t}, v{t}, v{vals[i]}, v{vals[i+1]}"); i += 2
        else: e(f"v_max_u32 v{t}, v{t}, v{vals[i]}"); i += 1
    e(f"v_cmp_eq_u32 vcc, -1, v{t}")
    if sleep:
        ok = e.newlabel("pok"); e(f"s_cbranch_vccz {ok}"); e(f"s_sleep {sleep}"); e(f"s_branch {lab}"); e.label(ok)
    else: e(f"s_cbranch_vccnz {lab}")
    e.vmq = []

def gather8(e, o, vo, abort, extra=None, n=8, base=W0):
    loads = [(base + 4 * k, vo, S_A if k < 4 else S_B, (k % 4) * 1024) for k in range(n)]
    if extra: loads.append((base + 4 * n, extra, S_A, 0))
    poll(e, o, loads, abort)

def sum_loads(e, n, base=W0):
    step = 1
    while step < n:
        for k in range(0, n, 2 * step):
            if k + step < n:
                a, b = base + 4 * k, base + 4 * (k + step)
                e(f"v_pk_add_f32 {vr(a,2)}, {vr(a,2)}, {vr(b,2)}")
                e(f"v_pk_add_f32 {vr(a+2,2)}, {vr(a+2,2)}, {vr(b+2,2)}")
        step *= 2

def dpp8(e, reg, op):
    for m in ("quad_perm:[1,0,3,2]", "quad_perm:[2,3,0,1]", "row_half_mirror"):
        e(f"v_{op}_f32_dpp v{reg}, v{reg}, v{reg} {m} row_mask:0xf bank_mask:0xf")
def dpp8x2(e, r0, r1, op):
    for m in ("quad_perm:[1,0,3,2]", "quad_perm:[2,3,0,1]", "row_half_mirror"):
        e(f"v_{op}_f32_dpp v{r0}, v{r0}, v{r0} {m} row_mask:0xf bank_mask:0xf")
        e(f"v_{op}_f32_dpp v{r1}, v{r1}, v{r1} {m} row_mask:0xf bank_mask:0xf")

def ln_from_stats(e, s1, s2, mean, rstd):
    e(f"v_mul_f32 v{mean}, {lit(1/640)}, v{s1}")
    e(f"v_mul_f32 v{s2}, {lit(1/640)}, v{s2}")
    e(f"v_fma_f32 v{s2}, -v{mean}, v{mean}, v{s2}")
    e(f"v_max_f32 v{s2}, 0, v{s2}")
    e(f"v_add_f32 v{s2}, {lit(EPS)}, v{s2}")
    e(f"v_rsq_f32 v{rstd}, v{s2}")

def pub(e, D, vo, sreg, imm, fl, tag):
    e.vm(f"buffer_store_dwordx4 {vr(D,4)}, v{vo}, s[{SRD_WS}:{SRD_WS+3}], s{sreg} offen offset:{imm} {fl}", tag)

def run_tiles(e, tiles, accs, store, btags=None, twait=None):
    n = len(accs); lag = n - 1
    for i, (tid, steps) in enumerate(tiles):
        D = vr(accs[i % n], 4)
        if twait and tid in twait: e.lg_wait(twait[tid])
        for s, (A, B) in enumerate(steps):
            if i == 0 and btags: e.lg_wait(btags[s])
            e(f"v_mfma_f32_16x16x32_bf16 {D}, {A}, {B}, {'0' if s == 0 else D}")
        if i >= lag: store(tiles[i - lag][0], accs[(i - lag) % n])
    for i in range(max(0, len(tiles) - lag), len(tiles)): store(tiles[i][0], accs[i % n])

def read_bx(e, B):
    e.lg(f"ds_read_b128 {vr(B,4)}, v{V_BX}", "b0"); e.lg(f"ds_read_b128 {vr(B+4,4)}, v{V_BX} offset:64", "b1")
    e.lg(f"ds_read_b64 {vr(B+8,2)}, v{V_BX8}", "b2")
    e(f"v_mov_b32 v{B+10}, 0"); e(f"v_mov_b32 v{B+11}, 0")
def read_as(e, A):
    e.lg(f"ds_read_b128 {vr(A,4)}, v{V_AS}", "a0"); e.lg(f"ds_read_b128 {vr(A+4,4)}, v{V_AS} offset:64", "a1")
    e.lg(f"ds_read_b64 {vr(A+8,2)}, v{V_AS8}", "a2")
    e(f"v_mov_b32 v{A+10}, 0"); e(f"v_mov_b32 v{A+11}, 0")

def stage_Q(e, fl, reg_index, shadow=None):
    B, A = W0 + 8, W0 + 20
    read_bx(e, B); read_as(e, A)
    e(f"s_add_u32 s{S_A}, s{S_ROWN}, {reg_index*RG}")
    if shadow: shadow()
    tiles = [(t, [(win(wq_frag(t, s)), vr(B + 4 * s, 4)) for s in range(3)]) for t in range(12)]
    tiles.insert(1, (12, [(vr(A + 4 * s, 4), vr(B + 4 * s, 4)) for s in range(3)]))
    SD = W0 + 4
    def store(t, D): pub(e, D, V_PQ, S_A, 64 * t, fl, ("pq", t))
    first, stats, rest = tiles[0], tiles[1], tiles[2:]
    run_tiles(e, [first], [W0 + 32, W0 + 36], lambda t, D: None, btags=["b0", "b1", "b2"])
    e.lg_wait("a2")
    for s, (Aop, Bop) in enumerate(stats[1]):
        e(f"v_mfma_f32_16x16x32_bf16 {vr(SD,4)}, {Aop}, {Bop}, {'0' if s == 0 else vr(SD,4)}")
    accs = [W0 + 36, W0, W0 + 20, W0 + 32]
    pend = [(0, W0 + 32)]
    for i, (t, steps) in enumerate(rest):
        D = accs[i % 4]
        for s, (Aop, Bop) in enumerate(steps):
            e(f"v_mfma_f32_16x16x32_bf16 {vr(D,4)}, {Aop}, {Bop}, {'0' if s == 0 else vr(D,4)}")
        pend.append((t, D))
        if i >= 2: store(*pend.pop(0))
    e(f"v_cndmask_b32 v{SD+1}, v{SD+1}, v{SD+2}, s[{S_N1}:{S_N1+1}]")
    while pend: store(*pend.pop(0))
    pub(e, SD, V_PSQ, S_A, 0, fl, "pqs")

def stage_GU(e, fl, const, with_stats=True, shadow=None):
    B, A = W0 + 8, W0 + 20
    read_bx(e, B)
    if with_stats: read_as(e, A)
    e(f"s_add_u32 s{S_A}, s{S_ROWN}, {const}" if const >= 0 else f"s_sub_u32 s{S_A}, s{S_ROWN}, {-const}")
    if shadow: shadow()
    def tile(d, f, waits=None):
        d = vr(d, 4)
        for s in range(3):
            if waits: e.lg_wait(waits[s])
            e(f"v_mfma_f32_16x16x32_bf16 {d}, {f(s)}, {vr(B+4*s,4)}, {'0' if s == 0 else d}")
    def store(t, G, U):
        e(f"v_swap_b32 v{G+2}, v{U}"); e(f"v_swap_b32 v{G+3}, v{U+1}")
        pub(e, G, V_PG, S_A, 128 * t, fl, ("pg", t, 0))
        pub(e, U, V_PG, S_A, 128 * t + 16, fl, ("pg", t, 1))
    g = lambda t: (lambda s: win(wg_frag(t, s)))
    u = lambda t: (lambda s: win(wu_frag(t, s)))
    P0, P1, S = (W0 + 32, W0 + 36), (W0 + 20, W0 + 24), W0
    tile(P0[0], g(0), waits=["b0", "b1", "b2"]); tile(P0[1], u(0))
    if with_stats:
        e.lg_wait("a2")
        tile(S, lambda s: vr(A + 4 * s, 4))
    tile(P1[0], g(1)); tile(P1[1], u(1))
    store(0, *P0)
    if with_stats: e(f"v_cndmask_b32 v{S+1}, v{S+1}, v{S+2}, s[{S_N1}:{S_N1+1}]")
    tile(P0[0], g(2)); tile(P0[1], u(2))
    store(1, *P1)
    store(2, *P0)
    if with_stats: pub(e, S, V_PS, S_A, 0, fl, "pgs")

def stage_WO(e, fl, region, shadow=None):
    B = W0
    for s in range(6): e.lg(f"ds_read_b128 {vr(B+4*s,4)}, v{V_BO} offset:{64*s}", ("o", s))
    e(f"s_add_u32 s{S_A}, s{S_LOWN}, {region*RG}")
    if shadow: shadow()
    tiles = [(t, [(win(wo_frag(t, s)), vr(B+4*s,4)) for s in range(6)]) for t in range(5)]
    run_tiles(e, tiles, [W0 + 24, W0 + 28, W0 + 32], lambda t, D: pub(e, D, V_PL, S_A, 64 * t, fl, ("po", t)), btags=[("o", s) for s in range(6)])

def stage_D(e, fl, region):
    B = W0
    e.lg(f"ds_read_b128 {vr(B,4)}, v{V_BH}", "h0"); e.lg(f"ds_read_b64 {vr(B+4,2)}, v{V_BH8}", "h1")
    e(f"v_mov_b32 v{B+6}, 0"); e(f"v_mov_b32 v{B+7}, 0")
    e(f"s_add_u32 s{S_A}, s{S_LOWN}, {region*RG}")
    tiles = [(t, [(win(wd_frag(t, 0)), vr(B,4)), (win(wd_frag(t, 1)), vr(B+4,4))]) for t in range(5)]
    run_tiles(e, tiles, [W0 + 8 + 4 * i for i in range(5)], lambda t, D: pub(e, D, V_PL, S_A, 64 * t, fl, ("pd", t)), btags=["h0", "h1"])

def fast_gather(e, o, loads, body, abort, pre=0, early=False):
    n = len(loads); t = V_T
    lab = e.newlabel("fpoll")
    e(f"s_mov_b32 s{S_CNT}, {o.poll_limit}")
    if pre: e(f"s_sleep {pre}")
    e.label(lab)
    for d, vo, s, imm in loads:
        e(f"buffer_load_dwordx4 {vr(d,4)}, v{vo}, s[{SRD_WS}:{SRD_WS+3}], s{s} offen offset:{imm} sc1")
    e(f"s_sub_u32 s{S_CNT}, s{S_CNT}, 1")
    e(f"s_cbranch_scc1 {abort}")
    first = [True]
    if early:
        d = loads[0][0]
        e(f"s_waitcnt vmcnt({n-1})")
        e(f"v_max_u32 v{t}, v{d+1}, v{d+3}")
        e(f"v_cmp_eq_u32 vcc, -1, v{t}")
        e(f"s_cbranch_vccnz {lab}")
        first[0] = False
    def wait(k): e(f"s_waitcnt vmcnt({n-1-k})")
    def chk(k):
        d = loads[k][0]
        if first[0]: e(f"v_max_u32 v{t}, v{d+1}, v{d+3}"); first[0] = False
        else: e(f"v_max3_u32 v{t}, v{t}, v{d+1}, v{d+3}")
    body(wait, chk)
    e(f"v_cmp_eq_u32 vcc, -1, v{t}")
    e(f"s_cbranch_vccnz {lab}")
    e.vmq = []

def padd(e, a, b, neg=False):
    m = " neg_lo:[0,1] neg_hi:[0,1]" if neg else ""
    e(f"v_pk_add_f32 {vr(a,2)}, {vr(a,2)}, {vr(b,2)}{m}"); e(f"v_pk_add_f32 {vr(a+2,2)}, {vr(a+2,2)}, {vr(b+2,2)}{m}")

def g_soffs(e, off_sreg, const, two=True):
    e(f"s_add_u32 s{S_GA}, s{off_sreg}, {const}")
    if two: e(f"s_add_u32 s{S_GB}, s{S_GA}, 4096")
def g_loads(vo, n=8, base=W0): return [(base + 4 * k, vo, S_GA if k < 4 else S_GB, (k % 4) * 1024) for k in range(n)]

def hop_LG(e, o, inst, k, abort, final_only=False):
    skip = e.newlabel("notleader")
    e(f"s_cmp_lg_u32 s{S_HQ}, 0"); e(f"s_cbranch_scc1 {skip}")
    g_soffs(e, S_LGRP, L_REG(inst, k) * RG, two=False)
    e(f"s_add_u32 s{S_A}, s{S_GOWN}, {G_OFF(inst,k)}")
    X = W0 + 32
    off = 1 if o.early else 0
    def body4(wait, chk):
        wait(off + 1); chk(off); chk(off + 1); padd(e, W0, W0 + 4)
        wait(off + 2); chk(off + 2); padd(e, W0, W0 + 8)
        wait(off + 3); chk(off + 3); padd(e, W0, W0 + 12)
    fast_gather(e, o, ([(X, V_LL, S_GA, 0)] if o.early else []) + g_loads(V_LG, 4), body4, abort, pre=o.preL, early=o.early)
    e(f"buffer_store_dwordx4 {vr(W0,4)}, v{V_LG}, s[{SRD_WS}:{SRD_WS+3}], s{S_A} offen sc1")
    if o.preGn:
        join = e.newlabel("lgjoin")
        e(f"s_branch {join}")
        e.label(skip)
        if not final_only: e(f"s_sleep {o.preGn}")
        e.label(join)
    else: e.label(skip)
    if final_only:
        e(f"s_cmp_lg_u32 s{S_H}, 0"); e(f"s_cbranch_scc1 L_done")
    g_soffs(e, S_GGRP, G_OFF(inst, k))
    e.vmq = []
    def body8(wait, chk):
        c = lambda k: chk(off + k)
        w = lambda k: wait(off + k)
        w(1); c(0); c(1); padd(e, W0, V_XR); padd(e, W0, W0 + 4)
        w(3); c(2); c(3); padd(e, W0 + 8, W0 + 12); padd(e, W0, W0 + 8)
        w(5); c(4); c(5); padd(e, W0 + 16, W0 + 20); padd(e, W0, W0 + 16)
        w(6); c(6); padd(e, W0, W0 + 24)
        w(7); c(7); padd(e, W0, W0 + 28)
    fast_gather(e, o, ([(X, V_GL, S_GA, 0)] if o.early else []) + g_loads(V_LG, 8), body8, abort, pre=o.preG, early=o.early)

def hop_packed(e, o, abort, inst, k, pre):
    if inst == 2 and k == 1:
        e(f"s_cmp_lg_u32 s{S_H}, 0"); e(f"s_cbranch_scc1 L_done")
    e(f"s_lshl_b32 s{S_T0}, s{S_J}, 12"); e(f"s_add_u32 s{S_T0}, s{S_T0}, {L_REG(inst,k)*RG}")
    for x in range(8): e(f"s_add_u32 s{SW8[x]}, s{S_T0}, {32768*x}")
    B0 = W0 + 32
    loads = [(B0, V_DB, SW8[0], 0), (B0 + 4, V_DB, SW8[4], 0)] + [(W0 + 4 * x, V_DA, SW8[x], 0) for x in range(8)]
    T = V_T + 1
    def xrow(a):
        for sw in ("v_permlane16_swap_b32", "v_permlane32_swap_b32"):
            for r in range(4):
                t = B0 + 4 + r
                e(f"v_mov_b32 v{t}, v{a+r}")
            for r in range(4): e(f"{sw} v{a+r}, v{B0+4+r}")
            for h in range(2): e(f"v_pk_add_f32 {vr(a+2*h,2)}, {vr(a+2*h,2)}, {vr(B0+4+2*h,2)}")
    def body(wait, chk):
        wait(1); chk(0); chk(1); padd(e, B0, B0 + 4)
        for m in ("row_ror:4", "row_ror:8"):
            for r in range(4): e(f"v_add_f32_dpp v{B0+r}, v{B0+r}, v{B0+r} {m} row_mask:0xf bank_mask:0xf")
        wait(3); chk(2); chk(3); padd(e, W0, W0 + 4)
        xrow(B0)
        wait(5); chk(4); chk(5); padd(e, W0 + 8, W0 + 12); padd(e, W0, W0 + 8)
        wait(7); chk(6); chk(7); padd(e, W0 + 16, W0 + 20); padd(e, W0, W0 + 16)
        wait(8); chk(8); padd(e, W0, W0 + 24)
        wait(9); chk(9); padd(e, W0, W0 + 28)
    fast_gather(e, o, loads, body, abort, pre=pre)
    xrow(W0)
    e("s_mov_b32 vcc_lo, 0xffff0000"); e("s_mov_b32 vcc_hi, 0xffff0000")
    for r in range(4): e(f"v_cndmask_b32 v{W0+r}, v{W0+r}, v{B0+r}, vcc")
    m = rows_mask([0 if inst == 0 else 1], 20)
    e(f"s_mov_b32 vcc_lo, 0x{m & 0xffffffff:08x}"); e(f"s_mov_b32 vcc_hi, 0x{m >> 32:08x}")
    for r in range(4): e(f"v_cndmask_b32 v{W0+r}, 0, v{W0+r}, vcc")
    padd(e, W0, V_XR)

def hop_final(e, o, abort, k=1):
    if k == 1:
        e(f"s_cmp_lg_u32 s{S_H}, 0"); e(f"s_cbranch_scc1 L_done")
    e(f"s_lshl_b32 s{S_T0}, s{S_J}, 12"); e(f"s_add_u32 s{S_T0}, s{S_T0}, {L_REG(2,k)*RG}")
    for x in range(8): e(f"s_add_u32 s{SW8[x]}, s{S_T0}, {32768*x}")
    dst = [W0 + 4 * k for k in range(8)] + [CW_K + 4 * k for k in range(24)]
    loads = [(dst[4 * x + q], V_LG, SW8[x], 1024 * q) for x in range(8) for q in range(4)]
    A0, A1 = loads[0][0], loads[1][0]
    def body(wait, chk):
        wait(1); chk(0); chk(1); padd(e, A0, V_XR)
        for k in range(2, 32):
            if k % 2 == 0: wait(min(k + 1, 31)); chk(k); chk(k + 1)
            padd(e, A0 if k % 2 == 0 else A1, loads[k][0])
        padd(e, A0, A1)
    fast_gather(e, o, loads, body, abort, pre=o.preF if k == 1 else o.preF0)

def residual_update(e):
    e(f"v_cvt_pk_bf16_f32 v{W0+4}, v{W0}, v{W0+1}")
    e(f"v_cvt_pk_bf16_f32 v{W0+5}, v{W0+2}, v{W0+3}")
    e.lg(f"ds_write_b64 v{V_WX}, {vr(W0+4,2)}", "wx")
def residual_unpack(e, p):
    e(f"v_lshlrev_b32 v{V_XR}, 16, v{p}"); e(f"v_and_b32 v{V_XR+1}, 0xffff0000, v{p}")
    e(f"v_lshlrev_b32 v{V_XR+2}, 16, v{p+1}"); e(f"v_and_b32 v{V_XR+3}, 0xffff0000, v{p+1}")

def store_out(e, row):
    skip = e.newlabel("noout")
    e(f"s_cmp_lg_u32 s{S_H}, 0"); e(f"s_cbranch_scc1 {skip}")
    make_srd(e, SRD_T, S_OUT, 2560)
    e(f"v_and_b32 v{V_T}, 31, v{V_LANE}"); e(f"v_lshlrev_b32 v{V_T}, 3, v{V_T}")
    e(f"s_mul_i32 s{S_T0}, s{S_J}, 160"); e(f"s_add_u32 s{S_T0}, s{S_T0}, {row*1280}")
    selmask(e, V_T, V_T, rows_mask([row], 20))
    e(f"buffer_store_dwordx2 {vr(W0+4,2)}, v{V_T}, s[{SRD_T}:{SRD_T+3}], s{S_T0} offen")
    e.label(skip)

def combine_publish(e, fl, parts, mlbase, region):
    T = W0
    e(f"v_mov_b32 v{V_T}, {mlbase}")
    e.lg(f"ds_read_b128 {vr(T,4)}, v{V_T}", "ml0"); e.lg(f"ds_read_b128 {vr(T+4,4)}, v{V_T} offset:16", "ml1")
    P = T + 8
    cur = None
    for w in range(4):
        if cur is None or not (0 <= parts[w] - cur < 60000):
            e(f"v_add_u32 v{V_T+1}, {parts[w]}, v{V_L16}"); cur = parts[w]
        for par in range(2):
            e.lg(f"ds_read_b128 {vr(P+8*w+4*par,4)}, v{V_T+1} offset:{parts[w] - cur + 768*par}", ("p", w, par))
    e(f"s_add_u32 s{S_A}, s{S_ROWN}, {region*RG}")
    e.lg_wait("ml1")
    m = [T, T + 2, T + 4, T + 6]; l = [T + 1, T + 3, T + 5, T + 7]
    M, Ls = V_T, V_T + 1
    e(f"v_max3_f32 v{M}, v{m[0]}, v{m[1]}, v{m[2]}"); e(f"v_max_f32 v{M}, v{M}, v{m[3]}")
    for w in range(4): e(f"v_sub_f32 v{m[w]}, v{m[w]}, v{M}")
    for w in range(4): e(f"v_exp_f32 v{m[w]}, v{m[w]}")
    e(f"v_mul_f32 v{Ls}, v{m[0]}, v{l[0]}")
    for w in range(1, 4): e(f"v_fma_f32 v{Ls}, v{m[w]}, v{l[w]}, v{Ls}")
    for w in range(4):
        e.lg_wait(("p", w, 1))
        a = P + 8 * w
        e(f"v_pk_add_f32 {vr(a,2)}, {vr(a,2)}, {vr(a+4,2)}"); e(f"v_pk_add_f32 {vr(a+2,2)}, {vr(a+2,2)}, {vr(a+6,2)}")
        for r in range(4):
            if w == 0: e(f"v_mul_f32 v{P+r}, v{m[0]}, v{P+r}")
            else: e(f"v_fmac_f32 v{P+r}, v{m[w]}, v{a+r}")
    e(f"s_mov_b32 vcc_lo, 0"); e(f"s_mov_b32 vcc_hi, 0x00010000")
    e(f"v_cndmask_b32 v{P}, v{P}, v{M}, vcc"); e(f"v_cndmask_b32 v{P+1}, v{P+1}, v{Ls}, vcc")
    pub(e, P, V_R, S_A, 0, fl, "r1")

SW8 = [4, 6, 8, 10, 12, 16, 18, 20]
def hop_R1(e, o, region, row, abort):
    g_soffs(e, S_RGRP, region * RG)
    X = W0 + 32
    M, wv = X + 2, X + 3
    acc = W0 + 36
    loads = [(X, V_ML, S_GA, 0)] + g_loads(V_R)
    def body(wait, chk):
        if not o.early: wait(0); chk(0)
        e(f"v_mov_b32 v{M}, v{X}")
        dpp8(e, M, "max")
        e(f"v_sub_f32 v{wv}, v{X}, v{M}"); e(f"v_exp_f32 v{wv}, v{wv}")
        wait(4); chk(1); chk(2)
        e(f"v_mul_f32 v{X+1}, v{wv}, v{X+1}")
        chk(3); chk(4)
        e(f"v_add_f32_dpp v{X+1}, v{X+1}, v{X+1} quad_perm:[1,0,3,2] row_mask:0xf bank_mask:0xf")
        wait(8); chk(5); chk(6)
        e(f"v_add_f32_dpp v{X+1}, v{X+1}, v{X+1} quad_perm:[2,3,0,1] row_mask:0xf bank_mask:0xf")
        chk(7); chk(8)
        e(f"v_add_f32_dpp v{X+1}, v{X+1}, v{X+1} row_half_mirror row_mask:0xf bank_mask:0xf")
        e(f"v_rcp_f32 v{X+1}, v{X+1}")
        e(f"v_mul_f32 v{wv}, v{wv}, v{X+1}")
        for k in range(8): e(f"v_readlane_b32 s{SW8[k]}, v{wv}, {k}")
        for k in range(8):
            for h in range(2):
                a, m = acc + 2 * h, W0 + 4 * k + 2 * h
                sp = f"s[{SW8[k]}:{SW8[k]+1}]"
                if k == 0: e(f"v_pk_mul_f32 {vr(a,2)}, {vr(m,2)}, {sp} op_sel_hi:[1,0]")
                else: e(f"v_pk_fma_f32 {vr(a,2)}, {vr(m,2)}, {sp}, {vr(a,2)} op_sel_hi:[1,0,1]")
    fast_gather(e, o, loads, body, abort, pre=o.preR, early=o.early)
    e(f"v_cvt_pk_bf16_f32 v{acc}, v{acc}, v{acc+1}"); e(f"v_cvt_pk_bf16_f32 v{acc+1}, v{acc+2}, v{acc+3}")
    e.lg(f"ds_write_b64 v{V_W8}, {vr(acc,2)} offset:{ACT_O - SB + 384*row}", "wo")

def ln_gather(e, o, vo, vstat, cs, abort):
    X = W0 + 32; mean, rstd = X + 2, X + 3; T = W0 + 36
    loads = [(X, vstat, S_GA, 0)] + g_loads(vo)
    q = lambda r, m: e(f"v_add_f32_dpp v{r}, v{r}, v{r} {m} row_mask:0xf bank_mask:0xf")
    def body(wait, chk):
        if not o.early: wait(0); chk(0)
        q(X, "quad_perm:[1,0,3,2]"); q(X + 1, "quad_perm:[1,0,3,2]")
        wait(2); chk(1)
        q(X, "quad_perm:[2,3,0,1]"); q(X + 1, "quad_perm:[2,3,0,1]")
        chk(2)
        q(X, "row_half_mirror"); q(X + 1, "row_half_mirror")
        padd(e, W0, W0 + 4)
        e(f"v_mul_f32 v{mean}, {lit(1/640)}, v{X}"); e(f"v_mul_f32 v{X+1}, {lit(1/640)}, v{X+1}")
        wait(4); chk(3); chk(4)
        e(f"v_fma_f32 v{X+1}, -v{mean}, v{mean}, v{X+1}")
        padd(e, W0 + 8, W0 + 12)
        e(f"v_max_f32 v{X+1}, 0, v{X+1}"); e(f"v_add_f32 v{X+1}, {lit(EPS)}, v{X+1}")
        padd(e, W0, W0 + 8)
        e(f"v_rsq_f32 v{rstd}, v{X+1}")
        wait(6); chk(5); chk(6)
        e(f"v_pk_mul_f32 {vr(T,2)}, {vr(cs,2)}, {vr(mean,2)} op_sel_hi:[1,0]"); e(f"v_pk_mul_f32 {vr(T+2,2)}, {vr(cs+2,2)}, {vr(mean,2)} op_sel_hi:[1,0]")
        padd(e, W0 + 16, W0 + 20); padd(e, W0, T, neg=True); padd(e, W0, W0 + 16)
        wait(7); chk(7); padd(e, W0, W0 + 24)
        wait(8); chk(8); padd(e, W0, W0 + 28)
    fast_gather(e, o, loads, body, abort, pre=o.preR, early=o.early)
    e(f"v_pk_mul_f32 {vr(W0,2)}, {vr(W0,2)}, {vr(mean,2)} op_sel:[0,1] op_sel_hi:[1,1]")
    e(f"v_pk_mul_f32 {vr(W0+2,2)}, {vr(W0+2,2)}, {vr(mean,2)} op_sel:[0,1] op_sel_hi:[1,1]")

def hop_R2(e, o, inst, abort):
    ln_gather(e, o, V_R2, V_ST2, V_CSG, abort)
    e(f"v_max_f32 v{W0}, 0, v{W0}"); e(f"v_max_f32 v{W0+1}, 0, v{W0+1}")
    e(f"v_pk_mul_f32 {vr(W0,2)}, {vr(W0,2)}, {vr(W0+2,2)}")
    e(f"v_cvt_pk_bf16_f32 v{W0}, v{W0}, v{W0+1}")
    e.lg(f"ds_write_b32 v{V_WH}, v{W0}", "wh")

def q_consume(e, base, X, row):
    dpp8x2(e, X, X + 1, "add")
    sum_loads(e, 8, base)
    mean, rstd = X + 2, X + 3
    ln_from_stats(e, X, X + 1, mean, rstd)
    for r in range(4): e(f"v_fma_f32 v{base+r}, -v{mean}, v{V_CSQ+r}, v{base+r}")
    for r in range(4): e(f"v_mul_f32 v{base+r}, v{rstd}, v{base+r}")
    e(f"v_cvt_pk_bf16_f32 v{base}, v{base}, v{base+1}"); e(f"v_cvt_pk_bf16_f32 v{base+1}, v{base+2}, v{base+3}")
    e.lg(f"ds_write_b64 v{V_W8}, {vr(base,2)} offset:{QARR - SB + 384*row}", "wq")

def hop_R3(e, o, region, row, abort):
    ln_gather(e, o, V_R, V_ML, V_CSQ, abort)
    e(f"v_cvt_pk_bf16_f32 v{W0}, v{W0}, v{W0+1}"); e(f"v_cvt_pk_bf16_f32 v{W0+1}, v{W0+2}, v{W0+3}")
    e.lg(f"ds_write_b64 v{V_W8}, {vr(W0,2)} offset:{QARR - SB + 384*row}", "wq")

def go_flag(e):
    e(f"v_mov_b32 v{V_T}, {WFLAG + 12}"); e(f"v_mov_b32 v{V_T+1}, 1")
    e.lg(f"ds_write_b32 v{V_T}, v{V_T+1}", "go")

def chain(e, o, fl, inst, live, abort, st):
    c = f"c{inst}."
    if inst == 0 and o.NB1 != o.NB and o.go_at == "R1": go_flag(e)
    if inst == 0: o._save = (o.preR, o.preL, o.preG); o.preL, o.preG = o.preL + o.preL0, o.preG + o.preG0
    st.rounds(f"n{inst}.R1")
    st(c + "R1")
    pk = o.packed.split(",") if o.packed else []
    if inst == 0 and o.split_tok:
        assert "00" not in pk
        TO, TD = W0 + 38, W0 + 36
        omask = 0xffffffff00ff0000
        def shadow():
            tok2_offsets(e, TO, W0 + 24, others_only=True)
            e(f"s_mov_b32 s{S_B}, {TOK2}")
            set_exec(e, omask)
            e.vm(f"buffer_load_dwordx2 {vr(TD,2)}, v{TO}, s[{SRD_WS}:{SRD_WS+3}], s{S_B} offen sc1", "tok2b")
            e("s_mov_b64 exec, -1")
        stage_WO(e, fl, L_REG(inst, 0), shadow=shadow)
        ok, lab = e.newlabel("tok2ok"), e.newlabel("tok2re")
        e.vm_wait("tok2b")
        set_exec(e, omask)
        e(f"v_cmp_ne_u32 vcc, s{S_TAG}, v{TD}")
        e(f"s_cbranch_vccz {ok}")
        e(f"s_mov_b32 s{S_CNT}, {o.poll_limit}")
        e.label(lab)
        e(f"buffer_load_dwordx2 {vr(TD,2)}, v{TO}, s[{SRD_WS}:{SRD_WS+3}], s{S_B} offen sc1")
        e(f"s_sub_u32 s{S_CNT}, s{S_CNT}, 1"); e(f"s_cbranch_scc1 {abort}")
        e("s_waitcnt vmcnt(0)")
        e(f"v_cmp_ne_u32 vcc, s{S_TAG}, v{TD}")
        e(f"s_cbranch_vccnz {lab}")
        e.label(ok)
        e("s_mov_b64 exec, -1")
        st(c + "WO")
        hop_LG(e, o, inst, 0, abort)
    elif f"{inst}0" in pk:
        stage_WO(e, "sc1", L_REG(inst, 0))
        st(c + "WO")
        hop_packed(e, o, abort, inst, 0, o.preP0 if inst == 0 else o.preF0)
    elif inst == 2 and o.direct0:
        stage_WO(e, "sc1", L_REG(inst, 0))
        st(c + "WO")
        hop_final(e, o, abort, k=0)
    else:
        stage_WO(e, fl, L_REG(inst, 0))
        st(c + "WO")
        hop_LG(e, o, inst, 0, abort)
    if inst == 0 and o.NB1 != o.NB and o.go_at == "G1": go_flag(e)
    if inst == 0: o.preR, o.preL, o.preG = o._save
    st.rounds(f"n{inst}.G1")
    st(c + "G1")
    residual_update(e)
    def sh_gu():
        residual_unpack(e, W0 + 4); g_soffs(e, S_RGRP, R2_REG[inst] * RG)
    stage_GU(e, fl, R2_REG[inst] * RG, shadow=sh_gu)
    st(c + "GU")
    hop_R2(e, o, inst, abort)
    st.rounds(f"n{inst}.R2")
    st(c + "R2")
    if f"{inst}1" in pk:
        stage_D(e, "sc1", L_REG(inst, 1))
        st(c + "D")
        hop_packed(e, o, abort, inst, 1, o.preP1 if inst == 0 else o.preF)
    elif inst == 2 and o.direct:
        stage_D(e, "sc1", L_REG(inst, 1))
        st(c + "D")
        hop_final(e, o, abort)
    else:
        stage_D(e, fl, L_REG(inst, 1))
        st(c + "D")
        hop_LG(e, o, inst, 1, abort, final_only=(inst == 2))
    st.rounds(f"n{inst}.G2")
    st(c + "G2")
    if inst == 2:
        e(f"v_cvt_pk_bf16_f32 v{W0+4}, v{W0}, v{W0+1}"); e(f"v_cvt_pk_bf16_f32 v{W0+5}, v{W0+2}, v{W0+3}")
        store_out(e, 1)
        e("s_cmp_lg_u32 s2, 0"); e("s_cbranch_scc1 L_done")
        e(f"v_mov_b32 v{V_T}, s{S_TAG}"); e(f"v_mov_b32 v{V_T+1}, {EPOCH_OFF}")
        e("s_mov_b64 exec, 1")
        e(f"buffer_store_dword v{V_T}, v{V_T+1}, s[{SRD_WS}:{SRD_WS+3}], 0 offen sc1")
        e("s_mov_b64 exec, -1")
        return
    residual_update(e)
    qrow = 0 if inst == 0 else 1
    def sh_q():
        residual_unpack(e, W0 + 4); g_soffs(e, S_RGRP, R3_REG[inst] * RG)
        if inst == 1:
            store_out(e, 0)
            cm = cols_mask([1]); e(f"s_mov_b32 vcc_lo, 0x{cm & 0xffffffff:08x}"); e(f"s_mov_b32 vcc_hi, 0x{cm >> 32:08x}")
            e(f"v_cndmask_b32 v{V_PQ}, v{V_OOB}, v{V_PQ}, vcc"); e(f"v_cndmask_b32 v{V_PSQ}, v{V_OOB}, v{V_PSQ}, vcc")
    stage_Q(e, fl, R3_REG[inst] - qrow, shadow=sh_q)
    st(c + "Q")
    hop_R3(e, o, R3_REG[inst], qrow, abort)
    e.lg_all()
    st.rounds(f"n{inst}.R3")
    st(c + "R3")

TOK1 = 21 * RG
TOK2 = TOK1 + 32768
EPOCH_OFF = 896
S_TAG = 73

o_direct = [True, False]
o_packed = [False]
o_dset = set()
def emit_resets_P(e):
    e(f"v_mov_b32 v{W0}, -1"); e(f"v_mov_b32 v{W0+1}, -1"); e(f"v_mov_b32 v{W0+2}, -1"); e(f"v_mov_b32 v{W0+3}, -1")
    for r in [4, 5, 6]:
        e(f"s_add_u32 s{S_A}, s{S_ROWN}, {r*RG}")
        e.vm(f"buffer_store_dwordx4 {vr(W0,4)}, v{V_R}, s[{SRD_WS}:{SRD_WS+3}], s{S_A} offen sc1", "rstp")
    e(f"v_lshlrev_b32 v{V_T}, 4, v{V_LANE}")
    selmask(e, W0 + 4, V_T, rows_mask([0], 24))
    e(f"s_add_u32 s{S_A}, s{S_ROWN}, {R2_REG['P']*RG}")
    e.vm(f"buffer_store_dwordx4 {vr(W0,4)}, v{W0+4}, s[{SRD_WS}:{SRD_WS+3}], s{S_A} offen sc1", "rstp")

def emit_resets(e, f):
    e(f"v_mov_b32 v{W0}, -1"); e(f"v_mov_b32 v{W0+1}, -1"); e(f"v_mov_b32 v{W0+2}, -1"); e(f"v_mov_b32 v{W0+3}, -1")
    def reset(vo, sreg, const):
        e(f"s_add_u32 s{S_A}, s{sreg}, {const}")
        e.vm(f"buffer_store_dwordx4 {vr(W0,4)}, v{vo}, s[{SRD_WS}:{SRD_WS+3}], s{S_A} offen {f}", "rst")
    e(f"v_and_b32 v{V_T}, 31, v{V_LANE}"); e(f"v_lshlrev_b32 v{V_T}, 4, v{V_T}")
    e(f"v_lshrrev_b32 v{V_T+1}, 5, v{V_LANE}"); e(f"v_lshl_add_u32 v{V_T}, v{V_T+1}, 9, v{V_T}")
    liv = {0: [0], 1: [0, 1], 2: [1], 'P': [0]}
    skip = e.newlabel("norstg")
    e(f"s_cmp_lg_u32 s{S_HQ}, 0"); e(f"s_cbranch_scc1 {skip}")
    for inst in (0, 1, 2):
        selmask(e, W0 + 4, V_T, rows_mask(liv[inst], 20))
        for k in range(2):
            e(f"s_add_u32 s{S_A}, s{S_GOWN}, {G_OFF(inst,k)}")
            e(f"buffer_store_dwordx4 {vr(W0,4)}, v{W0+4}, s[{SRD_WS}:{SRD_WS+3}], s{S_A} offen sc1")
    e.label(skip)
    for r in [7, 8] + list(R1_REG.values()): reset(V_R, S_ROWN, r * RG)
    for inst in (0, 1, 2):
        selmask(e, W0 + 4, V_T, rows_mask(liv[inst], 25))
        reset(W0 + 4, S_ROWN, R2_REG[inst] * RG)
        selmask(e, W0 + 4, V_T, rows_mask(liv[inst], 20))
        for k in range(2):
            if (inst, k) in o_dset:
                e(f"s_add_u32 s{S_A}, s{S_LOWN}, {L_REG(inst, k) * RG}")
                e.vm(f"buffer_store_dwordx4 {vr(W0,4)}, v{W0+4}, s[{SRD_WS}:{SRD_WS+3}], s{S_A} offen sc1", "rst")
            else: reset(W0 + 4, S_LOWN, L_REG(inst, k) * RG)

def token_store(e, base, second):
    e(f"s_lshl_b32 s{S_A}, s2, 7"); e(f"s_add_u32 s{S_A}, s{S_A}, {base}")
    e(f"v_mov_b32 v{W0+40}, s{S_TAG}"); e(f"v_mov_b32 v{W0+41}, {second}"); e(f"v_mov_b32 v{V_T}, 0")
    e("s_mov_b64 exec, 1")
    e.vm(f"buffer_store_dwordx2 {vr(W0+40,2)}, v{V_T}, s[{SRD_WS}:{SRD_WS+3}], s{S_A} offen sc1", "tok")
    e("s_mov_b64 exec, -1")

def token_gather(e, o, base, vo, mask, sleep=0, dst=W0, between=None):
    lab = e.newlabel("tok"); chk = e.newlabel("tokchk")
    if between:
        e(f"s_mov_b32 s{S_B}, {base}")
        set_exec(e, mask)
        e(f"buffer_load_dwordx2 {vr(dst,2)}, v{vo}, s[{SRD_WS}:{SRD_WS+3}], s{S_B} offen sc1")
        e("s_mov_b64 exec, -1")
        between()
        e(f"s_mov_b32 s{S_A}, {base}")
        set_exec(e, mask)
        e(f"s_mov_b32 s{S_CNT}, {o.poll_limit}")
        e(f"s_branch {chk}")
    else:
        e(f"s_mov_b32 s{S_A}, {base}")
        set_exec(e, mask)
        e(f"s_mov_b32 s{S_CNT}, {o.poll_limit}")
    e.label(lab)
    e(f"buffer_load_dwordx2 {vr(dst,2)}, v{vo}, s[{SRD_WS}:{SRD_WS+3}], s{S_A} offen sc1")
    e(f"s_sub_u32 s{S_CNT}, s{S_CNT}, 1"); e(f"s_cbranch_scc1 L_abort")
    e.label(chk)
    e("s_waitcnt vmcnt(0)")
    e(f"v_cmp_ne_u32 vcc, s{S_TAG}, v{dst}")
    if sleep:
        ok = e.newlabel("tokok"); e(f"s_cbranch_vccz {ok}"); e(f"s_sleep {sleep}"); e(f"s_branch {lab}"); e.label(ok)
    else: e(f"s_cbranch_vccnz {lab}")
    e.vmq = []

def tr_block(e, items):
    i, g, r, c, t = W0, W0 + 1, W0 + 2, W0 + 3, W0 + 4
    a32, a16 = W0 + 6, W0 + 7
    def tr_setup():
        e(f"v_and_b32 v{i}, 15, v{V_LANE}"); e(f"v_lshrrev_b32 v{g}, 4, v{V_LANE}")
        e(f"v_lshrrev_b32 v{r}, 2, v{i}"); e(f"v_and_b32 v{c}, 3, v{i}")
    def trbase(dst, stride, rows_per_g, base):
        e(f"v_mul_u32_u24 v{t}, {rows_per_g}, v{g}"); e(f"v_add_u32 v{t}, v{t}, v{r}")
        e(f"v_mul_u32_u24 v{t}, {stride}, v{t}"); e(f"v_lshl_add_u32 v{dst}, v{c}, 3, v{t}")
        if base: e(f"v_add_u32 v{dst}, {base}, v{dst}")
    def tr(frag, addr, off, k16, stride):
        f, lo = frag
        e.lg(f"ds_read_b64_tr_b16 {f}[{lo}:{lo+1}], v{addr} offset:{off}", "tr")
        if not k16: e.lg(f"ds_read_b64_tr_b16 {f}[{lo+2}:{lo+3}], v{addr} offset:{off+4*stride}", "tr")
        if len(e.lgq) >= 12: e.lg_wait_n(4)
    if True:
        tr_setup()
        for frag, nt, stride, base, ks in items:
            trbase(a32, stride, 8, base); trbase(a16, stride, 4, base)
            nk = len(ks)
            for tt in range(nt):
                for s, k0 in enumerate(ks):
                    k16 = (frag is not wo_frag) and s == nk - 1
                    tr(frag(tt, s), a16 if k16 else a32, k0 * stride + 32 * tt, k16, stride)
        e.lg_all()

def prologue_weights(e, o, st):
    abort = "L_abort"
    e(f"v_mov_b32 v{W0+2}, 0x3f803f80"); e(f"v_mov_b32 v{W0+3}, 0x3f803f80")
    e(f"v_lshlrev_b32 v{W0+4}, 3, v{V_LANE}"); e(f"v_add_u32 v{W0+4}, {ACT_X+384}, v{W0+4}")
    set_exec(e, mask64(range(24)))
    e.lg(f"ds_write_b64 v{W0+4}, {vr(W0+2,2)}", "ones")
    e("s_mov_b64 exec, -1")
    e.lg(f"ds_write_b64 v{V_WX}, {vr(V_XR,2)}", "wx")
    e(f"v_lshlrev_b32 v{V_XR+2}, 16, v{V_XR+1}"); e(f"v_and_b32 v{V_XR+3}, 0xffff0000, v{V_XR+1}")
    e(f"v_and_b32 v{V_XR+1}, 0xffff0000, v{V_XR}"); e(f"v_lshlrev_b32 v{V_XR}, 16, v{V_XR}")
    e.lg_all()
    lab = e.newlabel("wflag")
    e(f"v_mov_b32 v{V_T+1}, {WFLAG}")
    e(f"s_mov_b32 s{S_CNT}, {o.poll_limit*8}")
    e.label(lab)
    e(f"ds_read_b96 {vr(W0,3)}, v{V_T+1}")
    e(f"s_sub_u32 s{S_CNT}, s{S_CNT}, 1"); e(f"s_cbranch_scc1 {abort}")
    e("s_waitcnt lgkmcnt(0)")
    e(f"v_and_b32 v{W0}, v{W0}, v{W0+1}"); e(f"v_and_b32 v{W0}, v{W0}, v{W0+2}")
    e(f"v_cmp_ne_u32 vcc, 1, v{W0}")
    e(f"s_cbranch_vccnz {lab}")
    st("p.wland")
    tr_block(e, [(wq_frag, 12, 384, ST_WQ, (0, 32, 64)), (wg_frag, 3, 96, ST_WG, (0, 32, 64)), (wu_frag, 3, 96, ST_WU, (0, 32, 64))])
    st("p.weights")

def tok2_offsets(e, TO, tmp, others_only=False):
    L = V_LANE; t, u, a, b, c = tmp, tmp + 1, tmp + 2, tmp + 3, tmp + 4
    e(f"v_and_b32 v{t}, 7, v{L}")
    e(f"s_lshl_b32 s{S_T1}, s{S_J}, 3")
    e(f"v_add_u32 v{c}, s{S_T1}, v{t}")
    if not others_only:
        e(f"v_lshlrev_b32 v{u}, 3, v{t}")
        e(f"s_lshl_b32 s{S_T0}, s{S_HQ}, 6"); e(f"s_add_u32 s{S_T0}, s{S_T0}, s{S_XC}"); e(f"v_add_u32 v{a}, s{S_T0}, v{u}")
        e(f"v_lshlrev_b32 v{u}, 6, v{t}")
        e(f"s_add_u32 s{S_T0}, s{S_T1}, s{S_XC}"); e(f"v_add_u32 v{b}, s{S_T0}, v{u}")
        e("s_mov_b32 vcc_lo, 0x00000f00"); e("s_mov_b32 vcc_hi, 0"); e(f"v_cndmask_b32 v{a}, v{a}, v{b}, vcc")
        e("s_mov_b32 vcc_lo, 0x00ff0000"); e(f"v_cndmask_b32 v{a}, v{a}, v{c}, vcc")
    else: e(f"v_mov_b32 v{a}, v{c}")
    e(f"v_bfe_u32 v{u}, v{L}, 3, 2"); e(f"v_lshlrev_b32 v{u}, 6, v{u}"); e(f"v_add_u32 v{c}, v{c}, v{u}")
    e("s_mov_b32 vcc_lo, 0"); e("s_mov_b32 vcc_hi, -1"); e(f"v_cndmask_b32 v{a}, v{a}, v{c}, vcc")
    e(f"v_lshlrev_b32 v{TO}, 7, v{a}")

def cw_load_tiles(e, o, base):
    R = NS(voffK=1, voffX=2, voffY=3)
    for T in range(CW_TILES):
        kv_soff(e, base, T)
        for s in range(3): ld_k(e, R, vr(CW_K + 12 * T + 4 * s, 4), s, ('K', T, s), o)
    for T in range(CW_TILES):
        kv_soff(e, base, T)
        for w in range(3): ld_v(e, R, vr(CW_V + 12 * T + 4 * w, 4), w, ('V', T, w), o)

def chain_wave(e, o, st, local):
    fl = "" if local else "sc1"
    abort = "L_abort"
    R = NS(vlds=V_L16, voffK=1, voffX=2, voffY=3, sel=V_SEL, qA=32, D=44, sc=56, tmp=57, vpw=62, acc=32, A=44, pp=52, vpp=63, vm=60, vl=61, vlt=59)
    instance_offsets(e, [0, 1], pub_live=[2], q_live=[0, 1, 2])
    stage_Q(e, fl, R3_REG['P'])
    stage_GU(e, fl, R2_REG['P'] * RG - 1024, with_stats=False)
    st("p.pub")
    emit_resets(e, fl)
    st("reset")
    tr_block(e, [(wo_frag, 5, 160, ST_WO, (0, 32, 64, 96, 128, 160)), (wd_frag, 5, 160, ST_WD, (0, 32))])
    GA = CW_K
    e(f"v_and_b32 v{V_T}, 31, v{V_LANE}"); e(f"v_lshlrev_b32 v{V_T}, 4, v{V_T}")
    selmask(e, W0 + 40, V_T, rows_mask([0, 1], 24))
    sr = list(range(10, 18))
    for k, reg in enumerate((4, 5, 6, R2_REG['P'])):
        e(f"s_add_u32 s{sr[2*k]}, s{S_RGRP}, {reg*RG}"); e(f"s_add_u32 s{sr[2*k+1]}, s{sr[2*k]}, 4096")
    loads = []
    for row in range(3):
        loads += [(GA + 32 * row + 4 * k, V_R, sr[2*row + (k >= 4)], (k % 4) * 1024) for k in range(8)]
    loads += [(W0 + 32, V_ML, sr[0], 0), (W0 + 36, V_ML, sr[2], 0)]
    loads += [(W0 + 4 * k, W0 + 40, sr[6 + (k >= 4)], (k % 4) * 1024) for k in range(8)]
    poll(e, o, loads, abort, sleep=o.p_sleep)
    token_store(e, TOK2, 0)
    st("p.gather")
    sum_loads(e, 8, GA + 64)
    for rr in range(4): e(f"v_mov_b32 v{V_CSQ+rr}, v{GA+64+rr}")
    sum_loads(e, 8, W0)
    for rr in range(4): e(f"v_mov_b32 v{V_CSG+rr}, v{W0+rr}")
    for row in range(2):
        q_consume(e, GA + 32 * row, W0 + 32 + 4 * row, row)
    st("q1")
    def load_tiles(base): cw_load_tiles(e, o, base)
    load_tiles(S_KV0)
    instance_offsets(e, [0])
    TO, TD = W0 + 38, W0 + 36
    tok2_offsets(e, TO, W0 + 2)
    tmask = 0x00000fff if o.split_tok else (0xffffffff00ff0fff if o.direct else 0x00ff0fff)
    def first_pass():
        e.vmq.append("tok2")
        e.lg_all()
        st("pro_done")
        e("s_barrier")
        if "stopA" in o.exp: e("s_branch L_done")
        def kw(T):
            if T >= 0: e.vm_wait(('K', T, 2))
        def vw(T, w): e.vm_wait(('V', T, w))
        attn_pass(e, R, CW_TILES, 0, Kf, Vf, S_PB, 0, k_wait=kw, v_wait=vw)
    Kf = lambda T, s: vr(CW_K + 12 * T + 4 * s, 4)
    Vf = lambda T, w: vr(CW_V + 12 * T + 4 * w, 4)
    token_gather(e, o, TOK2, TO, tmask, sleep=o.t_sleep, dst=TD, between=first_pass)
    e("s_mov_b64 exec, -1")
    st("p.tok2g")
    e("s_barrier")
    st("bar2")
    parts = [PART + 1536 * w for w in range(4)]
    combine_publish(e, fl, parts, ML, R1_REG[0])
    st("c0.cmb")
    sv = o.preR; o.preR = sv + o.preR0
    hop_R1(e, o, R1_REG[0], 0, abort)
    o.preR = sv
    chain(e, o, fl, 0, [0], abort, st)
    st("chain0")
    e("s_barrier")
    attn_pass(e, R, CW_TILES, 0, Kf, Vf, S_PB, 32)
    e("s_barrier")
    parts_early = [PART] + [LDS_SW * s + 48 * 1024 for s in range(3)]
    combine_publish(e, fl, parts_early, ML + 32, R1_REG['1a'])
    load_tiles(S_KV1)
    instance_offsets(e, [0, 1])
    hop_R1(e, o, R1_REG['1a'], 0, abort)
    e.vmq = []
    attn_pass(e, R, CW_TILES, 1, Kf, Vf, S_PB, 0)
    e("s_barrier")
    st("bar6")
    combine_publish(e, fl, parts, ML, R1_REG['1b'])
    st("c1.cmb")
    hop_R1(e, o, R1_REG['1b'], 1, abort)
    chain(e, o, fl, 1, [0, 1], abort, st)
    st("chain1")
    e("s_barrier")
    attn_pass(e, R, CW_TILES, 1, Kf, Vf, S_PB, 0)
    instance_offsets(e, [1])
    e("s_barrier")
    st("bar8")
    combine_publish(e, fl, parts, ML, R1_REG[2])
    st("c2.cmb")
    hop_R1(e, o, R1_REG[2], 1, abort)
    chain(e, o, fl, 2, [1], abort, st)
    st("chain2")
    e("s_branch L_done")

def chain_wave_setup(e, o, st):
    L = V_LANE
    if o.prio: e(f"s_setprio {o.prio}")
    lane_id(e, L)
    e(f"v_mov_b32 v{W0}, 0"); e(f"v_mov_b32 v{W0+1}, {WFLAG}"); e(f"v_lshl_add_u32 v{W0+1}, v{L}, 2, v{W0+1}")
    e("s_mov_b64 exec, 15")
    e.lg(f"ds_write_b32 v{W0+1}, v{W0}", "z")
    e("s_mov_b64 exec, -1")
    e(f"v_mov_b32 v{V_OOB}, 0x{OOB:08x}")
    e(f"s_lshl_b32 s{S_RGRP}, s{S_H}, 13"); e(f"s_lshl_b32 s{S_T0}, s{S_J}, 10"); e(f"s_add_u32 s{S_ROWN}, s{S_RGRP}, s{S_T0}")
    e(f"s_lshl_b32 s{S_LGRP}, s{S_XC}, 3"); e(f"s_add_u32 s{S_LGRP}, s{S_LGRP}, s{S_J}"); e(f"s_lshl_b32 s{S_LGRP}, s{S_LGRP}, 12")
    e(f"s_lshl_b32 s{S_T0}, s{S_HQ}, 10"); e(f"s_add_u32 s{S_LOWN}, s{S_LGRP}, s{S_T0}")
    e(f"s_lshl_b32 s{S_GGRP}, s{S_J}, 13"); e(f"s_lshl_b32 s{S_T0}, s{S_XC}, 10"); e(f"s_add_u32 s{S_GOWN}, s{S_GGRP}, s{S_T0}")
    e.lg_all()
    e("s_barrier")
    late_common(e)
    if "nocw" in o.exp:
        e("s_barrier")
        st("bar1x")
        e("s_branch L_done")
    e(f"v_lshlrev_b32 v{V_L16}, 4, v{L}")
    selmask(e, V_R, V_L16, mask64(range(49)))
    e(f"s_load_dword s{S_TAG}, s[{S_WS}:{S_WS+1}], {EPOCH_OFF}")
    emit_resets_P(e)
    e(f"s_getreg_b32 s{S_T2}, hwreg(HW_REG_XCC_ID)"); e(f"s_and_b32 s{S_T2}, s{S_T2}, 0xf")
    make_srd(e, SRD_T, S_X, 2560)
    e(f"v_and_b32 v{V_T}, 31, v{L}"); e(f"v_lshlrev_b32 v{V_T}, 3, v{V_T}")
    e(f"v_lshrrev_b32 v{V_T+1}, 5, v{L}"); e(f"v_mul_u32_u24 v{V_T+1}, 1280, v{V_T+1}"); e(f"v_add_u32 v{V_T}, v{V_T}, v{V_T+1}")
    selmask(e, V_T, V_T, rows_mask([0, 1], 20))
    e(f"s_mul_i32 s{S_T0}, s{S_J}, 160")
    e.vm(f"buffer_load_dwordx2 {vr(V_XR,2)}, v{V_T}, s[{SRD_T}:{SRD_T+3}], s{S_T0} offen", "x")
    e(f"s_add_u32 s{S_KV1}, s{S_KV0}, {BATCH_STRIDE}")
    R = NS(voffK=1, voffX=2, voffY=3, sel=V_SEL)
    attn_selectors(e, R, L, W0)
    n, g, x = W0, W0 + 1, W0 + 2
    e(f"v_mov_b32 v{W0+3}, v{V_L16}"); selmask(e, V_L16, W0 + 3, mask64(range(48)), other=0)
    e(f"v_and_b32 v{n}, 15, v{L}"); e(f"v_lshrrev_b32 v{g}, 4, v{L}")
    e(f"v_min_u32 v{x}, 1, v{n}")
    e(f"v_mul_u32_u24 v{V_BO}, 384, v{x}"); e(f"v_lshl_add_u32 v{V_BO}, v{g}, 4, v{V_BO}"); e(f"v_add_u32 v{V_BO}, {ACT_O}, v{V_BO}")
    e(f"v_lshlrev_b32 v{V_BH}, 7, v{x}"); e(f"v_lshl_add_u32 v{V_BH8}, v{g}, 3, v{V_BH}"); e(f"v_add_u32 v{V_BH8}, {ACT_H+64}, v{V_BH8}")
    e(f"v_lshl_add_u32 v{V_BH}, v{g}, 4, v{V_BH}"); e(f"v_add_u32 v{V_BH}, {ACT_H}, v{V_BH}")
    e(f"v_min_u32 v{x}, 2, v{n}")
    e(f"v_mul_u32_u24 v{V_BX}, 192, v{x}"); e(f"v_lshl_add_u32 v{V_BX8}, v{g}, 3, v{V_BX}"); e(f"v_add_u32 v{V_BX8}, {ACT_X+128}, v{V_BX8}")
    e(f"v_lshl_add_u32 v{V_BX}, v{g}, 4, v{V_BX}"); e(f"v_add_u32 v{V_BX}, {ACT_X}, v{V_BX}")
    e(f"v_subrev_u32 v{x}, 1, v{n}"); e(f"v_min_u32 v{x}, 2, v{x}")
    e(f"v_mul_u32_u24 v{V_AS}, 192, v{x}"); e(f"v_lshl_add_u32 v{V_AS8}, v{g}, 3, v{V_AS}"); e(f"v_add_u32 v{V_AS8}, {ACT_X+128}, v{V_AS8}")
    e(f"v_lshl_add_u32 v{V_AS}, v{g}, 4, v{V_AS}"); e(f"v_add_u32 v{V_AS}, {ACT_X}, v{V_AS}")
    e(f"v_lshlrev_b32 v{x}, 3, v{L}"); e(f"v_add_u32 v{x}, {SB}, v{x}"); selmask(e, V_W8, x, mask64(range(48)), other=SB+2560)
    e(f"v_and_b32 v{n}, 31, v{L}"); e(f"v_lshrrev_b32 v{g}, 5, v{L}")
    e(f"v_mul_u32_u24 v{x}, 192, v{g}"); e(f"v_lshl_add_u32 v{x}, v{n}, 3, v{x}"); e(f"v_add_u32 v{x}, {ACT_X}, v{x}")
    selmask(e, V_WX, x, rows_mask([0, 1], 20), other=DUMMY)
    e(f"v_lshlrev_b32 v{x}, 7, v{g}"); e(f"v_lshl_add_u32 v{x}, v{n}, 2, v{x}"); e(f"v_add_u32 v{x}, {ACT_H}, v{x}")
    selmask(e, V_WH, x, rows_mask([0, 1], 24), other=DUMMY)
    e(f"v_and_b32 v{x}, 7, v{L}"); e(f"v_lshlrev_b32 v{x}, 10, v{x}"); e(f"v_add_u32 v{V_ML}, 768, v{x}")
    m = mask64([16 * a + 1 for a in range(4)])
    e(f"s_mov_b32 s{S_N1}, 0x{m & 0xffffffff:08x}"); e(f"s_mov_b32 s{S_N1+1}, 0x{m >> 32:08x}")
    e("s_waitcnt lgkmcnt(0)")
    e(f"s_add_u32 s{S_TAG}, s{S_TAG}, 1")
    e.vm_all(force=True)
    token_store(e, TOK1, f"s{S_T2}")
    st("p.tok1")
    TO, TD = W0 + 38, W0 + 36
    e(f"v_lshlrev_b32 v{TO}, 10, v{L}"); e(f"s_lshl_b32 s{S_T0}, s{S_XC}, 7"); e(f"v_add_u32 v{TO}, s{S_T0}, v{TO}")
    token_gather(e, o, TOK1, TO, 0xffffffff, sleep=o.t_sleep, dst=TD, between=lambda: prologue_weights(e, o, st))
    e(f"v_cmp_ne_u32 vcc, s{S_T2}, v{TD+1}")
    e("s_mov_b64 exec, -1")
    st("p.mode")
    e("s_nop 3")
    e("s_cmp_lg_u32 vcc_lo, 0")

def late_common(e):
    make_srd(e, SRD_V, S_V, KV_BYTES); make_srd(e, SRD_WS, S_WS, WS_REC)
    e(f"s_mov_b32 s{S_C}, {lit(CSCALE)}")
    e(f"s_mov_b32 s{S_HI32}, 0"); e(f"s_mov_b32 s{S_HI32+1}, -1")
    e(f"s_mul_i32 s{S_PB}, s{S_WAVE}, 1536"); e(f"s_add_u32 s{S_PB}, s{S_PB}, {PART}")
    e(f"s_lshl_b32 s{S_MLB}, s{S_WAVE}, 3"); e(f"s_add_u32 s{S_MLB}, s{S_MLB}, {ML}")

def generate(o):
    Stamps.select = o.stampset.split(",") if o.stampset else None
    o_direct[0] = o.direct; o_direct[1] = o.direct0
    o_packed[0] = bool(o.packed)
    o_dset.clear()
    if o.packed: o_dset.update({(int(c[0]), int(c[1])) for c in o.packed.split(",")})
    if o.direct: o_dset.add((2, 1))
    if o.direct0: o_dset.add((2, 0))
    e = Emit()
    e("s_cmp_ge_u32 s2, 256"); e("s_cbranch_scc1 L_done")
    e("s_load_dwordx16 s[4:19], s[0:1], 0"); e("s_load_dwordx8 s[20:27], s[0:1], 64")
    e("v_lshrrev_b32 v1, 6, v0")
    e(f"s_and_b32 s{S_XC}, s2, 7"); e(f"s_lshr_b32 s{S_HQ}, s2, 6")
    e(f"v_readfirstlane_b32 s{S_WAVE}, v1")
    e(f"s_lshr_b32 s{S_J}, s2, 3"); e(f"s_and_b32 s{S_J}, s{S_J}, 7")
    e(f"s_lshl_b32 s{S_H}, s{S_XC}, 2"); e(f"s_add_u32 s{S_H}, s{S_H}, s{S_HQ}")
    e(f"s_mul_i32 s{S_KV0}, s{S_H}, {HEAD_STRIDE}"); e(f"s_mul_i32 s{S_T0}, s{S_J}, {CHUNK_STRIDE}"); e(f"s_add_u32 s{S_KV0}, s{S_KV0}, s{S_T0}")
    e(f"s_add_u32 s{S_T0}, s{S_WAVE}, 3"); e(f"s_and_b32 s{S_T0}, s{S_T0}, 3")
    e(f"s_mul_i32 s{S_T1}, s{S_T0}, {SW_TILES*TILE_B}"); e(f"s_add_u32 s{S_KV0}, s{S_KV0}, s{S_T1}")
    lane_id(e, 8)
    attn_load_offsets(e, NS(voffK=1, voffX=2, voffY=3), 8, 10)
    e("s_waitcnt lgkmcnt(0)")
    make_srd(e, SRD_K, S_K, KV_BYTES)
    e(f"s_cmp_eq_u32 s{S_WAVE}, 0"); e("s_cbranch_scc1 L_chain")
    st_s = Stamps(e, o.stamps); st_s("start")
    stream_wave(e, o, st_s)
    e.label("L_chain")
    e.vmq = []; e.lgq = []
    st_c = Stamps(e, o.stamps); st_c("start")
    chain_wave_setup(e, o, st_c)
    names = {}
    if o.force_global: e("s_branch L_global")
    else: e("s_cbranch_scc1 L_global")
    base_names = list(st_c.names)
    sv = (list(e.vmq), list(e.lgq))
    chain_wave(e, o, st_c, True)
    names['cw'] = list(st_c.names); names['sw'] = list(st_s.names)
    e.label("L_global")
    e.vmq, e.lgq = sv
    st_g = Stamps(e, o.stamps); st_g.names = list(base_names)
    chain_wave(e, o, st_g, False)
    e.label("L_abort")
    e.label("L_done")
    if o.stamps:
        e("s_cmp_ge_u32 s2, 256"); e("s_cbranch_scc1 L_exit")
        fl = Stamps(e, True); fl.names = names['cw']; fl.flush()
        e.label("L_exit")
    e("s_endpgm")
    return e, names

HEAD = """; Kernarg: A_x, K, V, wq, wo, B_x, W_gate, W_up, W_down, out, debug, ws (pointers)
; @launch grid=(256,1,1) block=(256,1,1) lds=%d
.amdgcn_target "amdgcn-amd-amdhsa--gfx950"
.text
.globl %s
.p2align 8
.type %s,@function
%s:
"""
FOOT = """
.section .rodata,"a"
.p2align 6
.amdhsa_kernel %s
  .amdhsa_next_free_vgpr 512
  .amdhsa_next_free_sgpr 102
  .amdhsa_accum_offset 256
  .amdhsa_group_segment_fixed_size 0
  .amdhsa_kernarg_size 96
  .amdhsa_user_sgpr_count 2
  .amdhsa_user_sgpr_kernarg_segment_ptr 1
  .amdhsa_system_sgpr_workgroup_id_x 1
  .amdhsa_float_denorm_mode_32 3
.end_amdhsa_kernel
"""
def build_text(o):
    e, names = generate(o)
    return HEAD % (LDS_TOTAL, NAME, NAME, NAME) + e.text() + "\n" + FOOT % NAME, names, e

if __name__ == "__main__":
    o = Opt()
    for a in sys.argv[2:]:
        k, v = a.split("=")
        cur = getattr(o, k)
        setattr(o, k, (v not in ("0", "False")) if isinstance(cur, bool) else type(cur)(v))
    txt, names, e = build_text(o)
    open(sys.argv[1], "w").write(txt)
    print("instructions:", e.ninst, "nops:", e.nops, names)
```

```python
import sys, struct
from types import SimpleNamespace as NS
from emit import Emit, vr

NAME = "interleave_layers__mha_block_cached__glu_gated_reglu__decode_kernel"

class Opt:
    NA = 24
    NA_BAR = 118
    NB = 8
    NB1 = 8
    go_at = "G1"
    NC = 56
    NA0 = 24
    NA0N = 0
    light = False
    pf = 0
    pf_all = False
    NF = 12
    NW = 24
    stamps = False
    poll_limit = 400000
    kvflags = "nt"
    wflags = "nt"
    stampset = ""
    p_sleep = 8
    mb_sleep = 0
    exp = ""
    t_sleep = 0
    early = False
    wb = 0
    prio = 0
    late_rst = False
    preGn = 0
    packed = ""
    preP0 = 0
    preP1 = 0
    direct0 = True
    preF0 = 16
    direct = True
    preF = 0
    look = 2
    NAe = 14
    NCe = 24
    split_tok = True
    preR0 = 0
    preL0 = 0
    preG0 = 0
    preR = 0
    preL = 0
    preG = 6
    flag_sleep = 0
    force_global = False

KV_BYTES = 100663296
BATCH_STRIDE = 50331648
HEAD_STRIDE = 1572864
CHUNK_STRIDE = 196608
TILE_B = 3072
SW_TILES, CW_TILES = 20, 4
OOB = 0x7fff0000

LDS_SW = 51200
SB = 153600
PART = SB
ML = SB + 6144
QARR = SB + 6208
ACT_O = SB + 6976
ACT_X = SB + 7744
ACT_H = SB + 8320
DUMMY = SB + 8576
WFLAG = SB + 10208
LDS_TOTAL = 163840
ST_WQ, ST_WO, ST_WG, ST_WU, ST_WD = 0, 30720, 61440, 69120, 76800

RG = 262144
R1_REG = {0: 0, '1a': 1, '1b': 2, 2: 3}
R3_REG = {'P': 4, 0: 7, 1: 8}
R2_REG = {'P': 9, 0: 10, 1: 11, 2: 12}
L_REG = lambda inst, k: 13 + 2 * inst + k
G_OFF = lambda inst, k: 19 * RG + (2 * inst + k) * 65536
STAMP_OFF = 22 * RG
WS_REC = 24 * RG

CSCALE = (192 ** -0.5) * 1.4426950408889634
EPS = 1e-5
def f2u(x): return struct.unpack("<I", struct.pack("<f", x))[0]
def lit(x): return "0x%08x" % f2u(x)
def mask64(lanes):
    m = 0
    for l in lanes: m |= 1 << l
    return m
def set_exec(e, m):
    if m == (1 << 64) - 1: e("s_mov_b64 exec, -1"); return
    e(f"s_mov_b32 exec_lo, 0x{m & 0xffffffff:08x}")
    e(f"s_mov_b32 exec_hi, 0x{m >> 32:08x}")

S_X, S_K, S_V, S_WQ, S_WO, S_BX, S_WG, S_WU, S_WD, S_OUT, S_DBG, S_WS = 4, 6, 8, 10, 12, 14, 16, 18, 20, 22, 24, 26
S_XC, S_HQ, S_J, S_H = 28, 29, 30, 31
SRD_K, SRD_V = 32, 36
S_KV0, S_KV1, S_SOFF, S_LDSB = 40, 41, 42, 43
SRD_T = 44
SRD_WS = 48
SRD_DBG = 52
S_C = 56
S_ROWN, S_RGRP, S_LOWN, S_LGRP, S_GOWN, S_GGRP = 57, 58, 59, 60, 61, 62
S_A, S_B, S_CNT, S_T0, S_T1, S_T2 = 63, 64, 65, 66, 67, 68
S_PB = 69
S_HI32 = 70
S_MLB = 72
S_GA, S_GB = 100, 101
S_WAVE = 3
S_STAMP = 76

def make_srd(e, srd, ptr, nbytes):
    e(f"s_mov_b32 s{srd}, s{ptr}")
    e(f"s_and_b32 s{srd+1}, s{ptr+1}, 0xffff")
    e(f"s_mov_b32 s{srd+2}, {nbytes}")
    e(f"s_mov_b32 s{srd+3}, 0x20000")

class Stamps:
    select = None
    def __init__(self, e, on): self.e, self.on, self.names = e, on, []
    def __call__(self, name):
        if not self.on: return
        if Stamps.select is not None and not any(name.startswith(p) for p in Stamps.select): return
        if Stamps.select is None and "." in name: return
        n = len(self.names); assert n < 12, "too many stamps"
        self.e(f"s_memrealtime s[{S_STAMP+2*n}:{S_STAMP+2*n+1}]")
        self.e.lg_all(force=True)
        self.names.append(name)
    def rounds(self, name):
        if not self.on: return
        if Stamps.select is None or not any(name.startswith(p) for p in Stamps.select): return
        n = len(self.names); assert n < 12
        self.e(f"s_mov_b32 s{S_STAMP+2*n}, s{S_CNT}"); self.e(f"s_mov_b32 s{S_STAMP+2*n+1}, 0")
        self.names.append(name)
    def flush(self):
        if not self.on: return
        e = self.e
        e("s_mov_b64 exec, 1")
        e(f"s_lshl_b32 s{S_T0}, s2, 2"); e(f"s_add_u32 s{S_T0}, s{S_T0}, s{S_WAVE}"); e(f"s_lshl_b32 s{S_T0}, s{S_T0}, 7")
        e(f"s_add_u32 s{S_T0}, s{S_T0}, {STAMP_OFF}")
        e("v_mov_b32 v0, 0")
        for i in range(len(self.names)):
            e(f"v_mov_b32 v2, s{S_STAMP+2*i}"); e(f"v_mov_b32 v3, s{S_STAMP+2*i+1}")
            e(f"buffer_store_dwordx2 v[2:3], v0, s[{SRD_WS}:{SRD_WS+3}], s{S_T0} offen offset:{8*i}")
            e("s_waitcnt vmcnt(0)")

def lane_id(e, dst):
    e(f"v_mbcnt_lo_u32_b32 {vr(dst)}, -1, 0")
    e(f"v_mbcnt_hi_u32_b32 {vr(dst)}, -1, {vr(dst)}")

def attn_load_offsets(e, R, lane, t):
    i, g, u, w = t, t + 1, t + 2, t + 3
    e(f"v_and_b32 {vr(i)}, 15, {vr(lane)}")
    e(f"v_lshrrev_b32 {vr(g)}, 4, {vr(lane)}")
    e(f"v_and_b32 {vr(u)}, 7, {vr(i)}")
    e(f"v_lshrrev_b32 {vr(w)}, 3, {vr(i)}")
    e(f"v_mul_u32_u24 {vr(R.voffK)}, 384, {vr(u)}")
    e(f"v_lshl_add_u32 {vr(R.voffK)}, {vr(g)}, 4, {vr(R.voffK)}")
    e(f"v_lshl_add_u32 {vr(R.voffK)}, {vr(w)}, 6, {vr(R.voffK)}")
    e(f"v_mul_u32_u24 {vr(R.voffX)}, 768, {vr(g)}")
    e(f"v_mul_u32_u24 {vr(w)}, 384, {vr(w)}")
    e(f"v_add_u32 {vr(R.voffY)}, {vr(R.voffX)}, {vr(w)}")
    e(f"v_lshl_add_u32 {vr(R.voffY)}, {vr(u)}, 4, {vr(R.voffY)}")
    e(f"v_add_u32 {vr(R.voffY)}, 256, {vr(R.voffY)}")
    e(f"v_lshl_add_u32 {vr(R.voffX)}, {vr(i)}, 4, {vr(R.voffX)}")

def attn_selectors(e, R, lane, t):
    i, u, lo, hi = t, t + 1, t + 2, t + 3
    e(f"v_and_b32 {vr(i)}, 15, {vr(lane)}")
    e(f"v_lshrrev_b32 {vr(u)}, 3, {vr(i)}")
    e(f"v_mul_u32_u24 {vr(u)}, 0x202, {vr(u)}")
    e(f"v_add_u32 {vr(u)}, 0x100, {vr(u)}")
    e(f"v_or_b32 {vr(lo)}, 0x0c0c0000, {vr(u)}")
    e(f"v_lshlrev_b32 {vr(hi)}, 16, {vr(u)}")
    e(f"v_or_b32 {vr(hi)}, 0x0c0c, {vr(hi)}")
    e(f"v_and_b32 {vr(u)}, 1, {vr(i)}")
    e(f"v_cmp_eq_u32 vcc, 1, {vr(u)}")
    e(f"v_cndmask_b32 {vr(lo)}, {vr(lo)}, {vr(hi)}, vcc")
    e(f"v_bfe_u32 {vr(u)}, {vr(i)}, 1, 2")
    e(f"v_mov_b32 {vr(hi)}, 0x0c0c0c0c")
    for r in range(4):
        e(f"v_cmp_eq_u32 vcc, {r}, {vr(u)}")
        e(f"v_cndmask_b32 {vr(R.sel+r)}, {vr(hi)}, {vr(lo)}, vcc")

def allreduce_list(reg, tmp, op):
    out = [f"v_{op}_f32_dpp {vr(reg)}, {vr(reg)}, {vr(reg)} row_ror:{k} row_mask:0xf bank_mask:0xf" for k in (8, 4, 2, 1)]
    out += [f"v_mov_b32 {vr(tmp)}, {vr(reg)}", f"v_permlane16_swap_b32 {vr(reg)}, {vr(tmp)}", f"v_{op}_f32 {vr(reg)}, {vr(reg)}, {vr(tmp)}",
            f"v_mov_b32 {vr(tmp)}, {vr(reg)}", f"v_permlane32_swap_b32 {vr(reg)}, {vr(tmp)}", f"v_{op}_f32 {vr(reg)}, {vr(reg)}, {vr(tmp)}"]
    return out

def allreduce(e, reg, tmp, op):
    for k in (8, 4, 2, 1):
        e(f"v_{op}_f32_dpp {vr(reg)}, {vr(reg)}, {vr(reg)} row_ror:{k} row_mask:0xf bank_mask:0xf")
    e(f"v_mov_b32 {vr(tmp)}, {vr(reg)}")
    e(f"v_permlane16_swap_b32 {vr(reg)}, {vr(tmp)}")
    e(f"v_{op}_f32 {vr(reg)}, {vr(reg)}, {vr(tmp)}")
    e(f"v_mov_b32 {vr(tmp)}, {vr(reg)}")
    e(f"v_permlane32_swap_b32 {vr(reg)}, {vr(tmp)}")
    e(f"v_{op}_f32 {vr(reg)}, {vr(reg)}, {vr(tmp)}")

def attn_pre(e, R, ntiles):
    L = R.tmp
    lane_id(e, L)
    e(f"v_and_b32 {vr(L+1)}, 1, {vr(L)}")
    e(f"v_lshrrev_b32 {vr(L+2)}, 4, {vr(L)}")
    e(f"v_lshlrev_b32 {vr(L+2)}, 4, {vr(L+2)}")
    e(f"v_lshl_add_u32 {vr(L+1)}, {vr(L+1)}, 6, {vr(L+2)}")
    e(f"v_add_u32 {vr(L+1)}, {QARR}, {vr(L+1)}")
    e(f"v_add_u32 {vr(R.vpp)}, s{S_PB}, {vr(L+2)}")
    W = R.vpw; t = L + 2
    e(f"v_lshrrev_b32 {vr(t)}, 5, {vr(L)}"); e(f"v_lshlrev_b32 {vr(W)}, 6, {vr(t)}")
    e(f"v_bfe_u32 {vr(t)}, {vr(L)}, 1, 2"); e(f"v_lshl_add_u32 {vr(W)}, {vr(t)}, 4, {vr(W)}")
    e(f"v_bfe_u32 {vr(t)}, {vr(L)}, 3, 2"); e(f"v_lshl_add_u32 {vr(W)}, {vr(t)}, 2, {vr(W)}")
    e(f"v_and_b32 {vr(t)}, 1, {vr(L)}"); e(f"v_lshl_add_u32 {vr(W)}, {vr(t)}, 1, {vr(W)}")
    e(f"v_add_u32 {vr(W)}, s{S_PB}, {vr(W)}")
    nsc = (ntiles + 7) // 8
    for r in range(nsc):
        if (r + 1) * 8 > ntiles: e(f"v_mov_b32 {vr(R.sc+r)}, 0xff800000")

def attn_pass(e, R, ntiles, qrow, Kfrag, Vfrag, part_sreg, ml_off, k_wait=None, qk_hook=None, mid_hook=None,
              v_wait=None, pv_hook=None, stage=None, pre_done=False, mark=None, look=2):
    L = R.tmp
    if not pre_done: attn_pre(e, R, ntiles)
    for s in range(3):
        e.lg(f"ds_read_b128 {vr(R.qA+4*s,4)}, {vr(L+1)} offset:{qrow*384 + 128*s}", ("q", s))
    W = R.vpw
    nsc = (ntiles + 7) // 8
    stg = {}
    def stage_k(T):
        if T >= ntiles: return
        for s in range(3):
            f = Kfrag(T, s)
            if isinstance(f, tuple):
                reg = stage[(3 * T + s) % len(stage)]
                e.lg(f"ds_read_b128 {vr(reg,4)}, {vr(R.vlds)} offset:{f[1]}", ("k", T, s))
                stg[(T, s)] = vr(reg, 4)
    LOOK = look
    if k_wait: k_wait(-1)
    for T in range(min(LOOK, ntiles)): stage_k(T)
    e.lg_wait(("q", 2))
    def dpp_add(T):
        D = R.D + 4 * (T % 3)
        dst = vr(R.sc + (T >> 3)); rm = 1 << ((T >> 1) & 3)
        if T % 2 == 0: e(f"v_add_f32_dpp {dst}, {vr(D+1)}, {vr(D)} row_ror:8 row_mask:0x{rm:x} bank_mask:0x3")
        else:          e(f"v_add_f32_dpp {dst}, {vr(D)}, {vr(D+1)} row_ror:8 row_mask:0x{rm:x} bank_mask:0xc")
    for T in range(ntiles):
        if k_wait: k_wait(T)
        D = vr(R.D + 4 * (T % 3), 4)
        for s in range(3):
            f = Kfrag(T, s)
            if isinstance(f, tuple):
                e.lg_wait(("k", T, s)); f = stg[(T, s)]
            e(f"v_mfma_f32_16x16x32_bf16 {D}, {vr(R.qA+4*s,4)}, {f}, {'0' if s == 0 else D}")
        stage_k(T + LOOK)
        if qk_hook: qk_hook(T)
        if T >= 2: dpp_add(T - 2)
    for T in range(max(0, ntiles - 2), ntiles): dpp_add(T)
    if mark: mark("qk")
    t0, t1 = R.D, R.D + 1
    if nsc == 1: e(f"v_mov_b32 {vr(t0)}, {vr(R.sc)}")
    elif nsc == 2: e(f"v_max_f32 {vr(t0)}, {vr(R.sc)}, {vr(R.sc+1)}")
    else: e(f"v_max3_f32 {vr(t0)}, {vr(R.sc)}, {vr(R.sc+1)}, {vr(R.sc+2)}")
    allreduce(e, t0, t1, "max")
    e(f"v_mul_f32 {vr(R.vm)}, s{S_C}, {vr(t0)}")
    for r in range(nsc): e(f"v_fma_f32 {vr(R.sc+r)}, {vr(R.sc+r)}, s{S_C}, -{vr(R.vm)}")
    for r in range(nsc): e(f"v_exp_f32 {vr(R.sc+r)}, {vr(R.sc+r)}")
    for r in range(nsc): e(f"v_cvt_pk_bf16_f32 {vr(R.D+2+r)}, {vr(R.sc+r)}, {vr(R.sc+r)}")
    for r in range(nsc): e.lg(f"ds_write_b16 {vr(W)}, {vr(R.D+2+r)} offset:{128*r}", ("pw", r))
    nq = (ntiles + 3) // 4
    ppreg = lambda q: R.pp + 4 * (q % 2)
    if nsc == 1: e(f"v_mov_b32 {vr(R.vl)}, {vr(R.sc)}")
    else:
        e(f"v_add_f32 {vr(R.vl)}, {vr(R.sc)}, {vr(R.sc+1)}")
        if nsc == 3: e(f"v_add_f32 {vr(R.vl)}, {vr(R.vl)}, {vr(R.sc+2)}")
    e.lg(f"ds_read_b128 {vr(ppreg(0),4)}, {vr(R.vpp)}", ("pp", 0))
    if nq > 1: e.lg(f"ds_read_b128 {vr(ppreg(1),4)}, {vr(R.vpp)} offset:64", ("pp", 1))
    lred = allreduce_list(R.vl, R.vlt, "add")
    if ntiles < 12:
        for ins in lred: e(ins)
        lred = []
    if mid_hook: mid_hook()
    if mark: mark("sm")
    X1, X2, Y = R.acc, R.acc + 4, R.acc + 8
    def build_A(T):
        q = T >> 2
        e.lg_wait(("pp", q))
        A = R.A + 4 * (T % 2); src = vr(ppreg(q) + (T & 3))
        return [f"v_perm_b32 {vr(A+r)}, {src}, {src}, {vr(R.sel+r)}" for r in range(4)]
    for ins in build_A(0): e(ins)
    for T in range(ntiles):
        A = vr(R.A + 4 * (T % 2), 4)
        nxt = build_A(T + 1) if T + 1 < ntiles else []
        if v_wait: v_wait(T, 0)
        e(f"v_mfma_f32_16x16x32_bf16 {vr(X1,4)}, {A}, {Vfrag(T,0)}, {'0' if T == 0 else vr(X1,4)}")
        for ins in nxt[:2]: e(ins)
        if v_wait: v_wait(T, 1)
        e(f"v_mfma_f32_16x16x32_bf16 {vr(X2,4)}, {A}, {Vfrag(T,1)}, {'0' if T == 0 else vr(X2,4)}")
        for ins in nxt[2:]: e(ins)
        if v_wait: v_wait(T, 2)
        e(f"v_mfma_f32_16x16x32_bf16 {vr(Y,4)}, {A}, {Vfrag(T,2)}, {'0' if T == 0 else vr(Y,4)}")
        if (T & 3) == 2 and (T >> 2) + 2 < nq:
            q2 = (T >> 2) + 2
            e.lg(f"ds_read_b128 {vr(ppreg(q2),4)}, {vr(R.vpp)} offset:{64*q2}", ("pp", q2))
        if lred and T >= 1: e(lred.pop(0))
        if pv_hook: pv_hook(T)
    assert not lred
    if mark: mark("pv")
    p = R.pp
    lane_id(e, p)
    e(f"v_and_b32 {vr(p+1)}, 15, {vr(p)}")
    e(f"v_lshrrev_b32 {vr(p+2)}, 4, {vr(p)}")
    e(f"v_and_b32 {vr(p+3)}, 1, {vr(p+2)}")
    e(f"v_lshrrev_b32 {vr(p+2)}, 1, {vr(p+2)}")
    e(f"v_mul_u32_u24 {vr(p+2)}, 768, {vr(p+2)}")
    e(f"v_lshl_add_u32 {vr(p+2)}, {vr(p+3)}, 4, {vr(p+2)}")
    e(f"v_add_u32 {vr(p+2)}, s{part_sreg}, {vr(p+2)}")
    e(f"v_lshl_add_u32 {vr(p+4)}, {vr(p+1)}, 5, {vr(p+2)}")
    e(f"v_and_b32 {vr(p+1)}, 7, {vr(p+1)}")
    e(f"v_lshl_add_u32 {vr(p+5)}, {vr(p+1)}, 5, {vr(p+2)}")
    e(f"v_mov_b32 {vr(p+6)}, s{S_MLB}")
    e(f"v_mov_b32 {vr(R.A)}, {vr(R.vm)}"); e(f"v_mov_b32 {vr(R.A+1)}, {vr(R.vl)}")
    for r in range(4):
        e(f"v_cndmask_b32 {vr(X1+r)}, {vr(X1+r)}, {vr(X2+r)}, s[{S_HI32}:{S_HI32+1}]")
    e.lg(f"ds_write_b128 {vr(p+4)}, {vr(X1,4)}", "px")
    set_exec(e, 0xFF00FF0000FF00FF)
    e.lg(f"ds_write_b128 {vr(p+5)}, {vr(Y,4)} offset:512", "py")
    e("s_mov_b64 exec, 1")
    e.lg(f"ds_write_b64 {vr(p+6)}, {vr(R.A,2)} offset:{ml_off}", "pm")
    e("s_mov_b64 exec, -1")
    e.lg_all()

def kv_soff(e, base_sreg, T):
    e(f"s_add_u32 s{S_SOFF}, s{base_sreg}, {T*TILE_B}")
def ld_k(e, R, dst, s, tag, o):
    e.vm(f"buffer_load_dwordx4 {dst}, {vr(R.voffK)}, s[{SRD_K}:{SRD_K+3}], s{S_SOFF} offen offset:{128*s} {o.kvflags}", tag)
def ld_v(e, R, dst, w, tag, o):
    vo = R.voffY if w == 2 else R.voffX
    off = 384 if w == 1 else 0
    e.vm(f"buffer_load_dwordx4 {dst}, {vr(vo)}, s[{SRD_V}:{SRD_V+3}], s{S_SOFF} offen offset:{off} {o.kvflags}", tag)
def dma_k(e, R, slot, s, tag, o):
    e(f"s_add_u32 m0, s{S_LDSB}, {slot*1024 - 128*s + 0}") if slot*1024 - 128*s >= 0 else e(f"s_sub_u32 m0, s{S_LDSB}, {128*s - slot*1024}")
    e.vm(f"buffer_load_dwordx4 {vr(R.voffK)}, s[{SRD_K}:{SRD_K+3}], s{S_SOFF} offen offset:{128*s} {o.kvflags} lds", tag)
def dma_v(e, R, slot, w, tag, o):
    vo = R.voffY if w == 2 else R.voffX
    off = 384 if w == 1 else 0
    e(f"s_add_u32 m0, s{S_LDSB}, {slot*1024 - off}")
    e.vm(f"buffer_load_dwordx4 {vr(vo)}, s[{SRD_V}:{SRD_V+3}], s{S_SOFF} offen offset:{off} {o.kvflags} lds", tag)

def slot_reg(k):
    assert 0 <= k < 118
    return f"a[{4*k}:{4*k+3}]" if k < 64 else f"v[{40+4*(k-64)}:{40+4*(k-64)+3}]"

def weight_dma(e, o):
    L, t, u = 8, 20, 21
    def dma_block(ptr, nbytes, lanes_per_row, magic, shift, nlanes, row_stride, rows_per_instr, ninstr, so, lds0, bar=False):
        make_srd(e, SRD_T, ptr, nbytes)
        e(f"v_mul_u32_u24 v{t}, {magic}, v{L}"); e(f"v_lshrrev_b32 v{t}, {shift}, v{t}")
        e(f"v_mul_u32_u24 v{u}, {lanes_per_row}, v{t}"); e(f"v_sub_u32 v{u}, v{L}, v{u}")
        e(f"s_mov_b32 s{S_T1}, {row_stride}")
        e(f"v_mul_lo_u32 v{t}, v{t}, s{S_T1}"); e(f"v_lshl_add_u32 v{t}, v{u}, 4, v{t}")
        rreg, rmul, creg, cmul = so
        e(f"s_mul_i32 s{S_SOFF}, s{rreg}, {rmul*row_stride}")
        e(f"s_mul_i32 s{S_T1}, s{creg}, {cmul}"); e(f"s_add_u32 s{S_SOFF}, s{S_SOFF}, s{S_T1}")
        set_exec(e, mask64(range(nlanes)))
        for i in range(ninstr):
            e(f"s_mov_b32 m0, {lds0 + i*nlanes*16}")
            if i: e(f"s_add_u32 s{S_SOFF}, s{S_SOFF}, {rows_per_instr*row_stride}")
            else: e("s_nop 0")
            e.vm_depth(o.NW - 1)
            e.vm(f"buffer_load_dwordx4 v{t}, s[{SRD_T}:{SRD_T+3}], s{S_SOFF} offen {o.wflags} lds", "w")
        e("s_mov_b64 exec, -1")
    l2, l3, end = e.newlabel("w2"), e.newlabel("w3"), e.newlabel("wend")
    e(f"s_cmp_eq_u32 s{S_WAVE}, 2"); e(f"s_cbranch_scc1 {l2}")
    e(f"s_cmp_eq_u32 s{S_WAVE}, 3"); e(f"s_cbranch_scc1 {l3}")
    base_q = list(e.vmq)
    dma_block(S_WQ, 7864320, 24, 43, 10, 48, 12288, 2, 40, (S_J, 80, S_H, 384), ST_WQ, bar=True)
    e(f"s_branch {end}")
    e.label(l2); e.vmq = list(base_q)
    dma_block(S_WO, 7864320, 10, 103, 10, 60, 1280, 6, 32, (S_H, 192, S_J, 160), ST_WO, bar=True)
    e(f"s_branch {end}")
    e.label(l3); e.vmq = list(base_q)
    dma_block(S_WG, 1966080, 6, 43, 8, 60, 3072, 10, 8, (S_J, 80, S_H, 96), ST_WG, bar=True)
    dma_block(S_WU, 1966080, 6, 43, 8, 60, 3072, 10, 8, (S_J, 80, S_H, 96), ST_WU)
    dma_block(S_WD, 1966080, 10, 103, 10, 60, 1280, 6, 8, (S_H, 48, S_J, 160), ST_WD)
    e.label(end)
    e.vmq = ["w"] * o.NW

S_XPAR = 15
def par_depth(e, n):
    lab = e.newlabel("par")
    e(f"s_cmp_lg_u32 s{S_XPAR}, 0"); e(f"s_cbranch_scc1 {lab}")
    e(f"s_waitcnt vmcnt({n-1})")
    e.label(lab)

def emit_wb(e):
    skip = e.newlabel("nowb")
    e(f"s_cmp_lg_u32 s{S_WAVE}, 1"); e(f"s_cbranch_scc1 {skip}")
    e("s_cmp_ge_u32 s2, 8"); e(f"s_cbranch_scc1 {skip}")
    e("buffer_wbl2 sc1")
    e("s_waitcnt vmcnt(0)")
    e.label(skip)

def stream_wave(e, o, st):
    R = NS(vlds=0, voffK=1, voffX=2, voffY=3, sel=4, qA=8, D=20, sc=32, tmp=20, vpw=35, acc=8, A=20, pp=28, vpp=36, vm=38, vl=39, vlt=37)
    loads = []
    for T in range(SW_TILES):
        for s in range(3): loads.append(('K', T, s))
    for T in range(SW_TILES):
        for w in range(3): loads.append(('V', T, w))
    def k0slot(T, s): return 3 * T + s
    def v0slot(T, w): return 60 + 3 * T + w
    cur = [None]
    def issue0(item):
        kind, T, x = item
        if cur[0] != (kind, T, 0):
            kv_soff(e, S_KV0, T); cur[0] = (kind, T, 0)
        if kind == 'K': ld_k(e, R, slot_reg(k0slot(T, x)), x, ('K0', T, x), o)
        else:
            sl = v0slot(T, x)
            if sl < 118: ld_v(e, R, slot_reg(sl), x, ('V0', T, x), o)
            else: dma_v(e, R, 48 + sl - 118, x, ('V0', T, x), o)
    for item in loads[:o.NF]: issue0(item)
    late_common(e)
    e(f"s_add_u32 s{S_KV1}, s{S_KV0}, {BATCH_STRIDE}")
    e(f"s_sub_u32 s{S_T0}, s{S_WAVE}, 1"); e(f"s_mul_i32 s{S_LDSB}, s{S_T0}, {LDS_SW}")
    if o.NAe or o.NCe:
        e(f"s_getreg_b32 s{S_T0}, hwreg(HW_REG_XCC_ID)"); e(f"s_and_b32 s{S_XPAR}, s{S_T0}, 1")
    nf = list(e.vmq)
    if "now" not in o.exp: weight_dma(e, o)
    e.vmq = nf + ["w"] * o.NW if len(nf) + o.NW <= 60 else ["w"] * 60
    cur[0] = None
    st("s.wiss")
    e(f"v_lshlrev_b32 {vr(R.vlds)}, 4, v8")
    e(f"v_add_u32 {vr(R.vlds)}, s{S_LDSB}, {vr(R.vlds)}")
    attn_selectors(e, R, 8, 10)
    for idx, item in enumerate(loads[:o.NA_BAR]):
        if idx < o.NF: continue
        na = o.NA0 if idx < o.NA0N else o.NA
        e.vm_depth(na - 1)
        if o.NAe: par_depth(e, o.NAe)
        if idx == o.NF + max(o.NA, o.NA0):
            e(f"s_lshl_b32 s{S_T0}, s{S_WAVE}, 2"); e(f"s_add_u32 s{S_T0}, s{S_T0}, {WFLAG-4}")
            e(f"v_mov_b32 v20, s{S_T0}"); e("v_mov_b32 v21, 1")
            e.lg("ds_write_b32 v20, v21", "wf")
            st("s.wland")
        if idx == 60: st("s.k0iss")
        if idx == 90: st("s.v30")
        issue0(item)
    st("A_issued")
    attn_pre(e, R, SW_TILES)
    e("s_barrier")
    st("bar1")
    if "nocw" in o.exp or "cw" in o.exp or "stopA" in o.exp:
        e.vm_all(); st("s.alland"); st.flush(); e("s_endpgm")
    pend = [('0', it) for it in loads[o.NA_BAR:]]
    for T in range(16):
        for s in range(3): pend.append(('1', T, s))
    cur1 = [None]
    def issue_pend():
        it = pend.pop(0)
        if it[0] == '0': cur1[0] = None; issue0(it[1])
        else:
            _, T, s = it
            if cur1[0] != T:
                kv_soff(e, S_KV1, T); cur1[0] = T; cur[0] = None
            dma_k(e, R, 3 * T + s, s, ('K1', T, s), o)
    while pend[0][0] == '0': issue_pend()
    def Kf0(T, s): return slot_reg(k0slot(T, s))
    def Vf0(T, w):
        sl = v0slot(T, w)
        if sl < 118: return slot_reg(sl)
        return "v[32:35]" if w == 1 else "v[28:31]"
    def k_wait_A(T):
        if T == -1: e.vm_wait(('K0', SW_TILES - 1, 2))
    def pv_hook_A(T):
        left = SW_TILES - 1 - T
        target = max(o.NB1, min(o.NA, 3 * left + o.NB1)) if o.NB1 else 0
        if T == SW_TILES - 2:
            e.vm_wait(('V0', SW_TILES - 1, 2))
            e.lg(f"ds_read_b128 v[32:35], {vr(R.vlds)} offset:{48*1024}", ("vo", 1))
            e.lg(f"ds_read_b128 v[28:31], {vr(R.vlds)} offset:{49*1024}", ("vo", 2))
            target = o.NB1
        while pend and len(e.vmq) < target: issue_pend()
    def vwait_A(T, w):
        e.vm_wait(('V0', T, w))
        if T == SW_TILES - 1 and w >= 1: e.lg_wait(("vo", w))
    attn_pass(e, R, SW_TILES, 0, Kf0, Vf0, S_PB, 0, k_wait=k_wait_A, v_wait=vwait_A, pv_hook=pv_hook_A, pre_done=True)
    st("A_done")
    e("s_barrier")
    if o.NB1 == o.NB:
        while pend:
            e.vm_depth(o.NB - 1)
            issue_pend()
    else:
        items = list(pend); pend.clear()
        q0 = list(e.vmq); c0 = cur1[0]
        fast = {i: e.newlabel("fastB") for i in range(len(items))}
        done = e.newlabel("doneB")
        e(f"v_mov_b32 v20, {WFLAG + 12}")
        def emit_item(it, force_soff):
            _, T, s = it
            if cur1[0] != T or force_soff:
                kv_soff(e, S_KV1, T); cur1[0] = T
            dma_k(e, R, 3 * T + s, s, ('K1', T, s), o)
        marks = [i for i, it in enumerate(items) if it[2] == 0]
        if o.NB1 == 0:
            spin = e.newlabel("spinB")
            e(f"s_mov_b32 s{S_CNT}, {o.poll_limit*8}")
            e.label(spin)
            e(f"s_sub_u32 s{S_CNT}, s{S_CNT}, 1"); e(f"s_cbranch_scc1 {fast[0]}")
            e.lg("ds_read_b32 v21, v20", "go"); e.lg_all()
            e(f"v_readfirstlane_b32 s{S_T0}, v21")
            e(f"s_cmp_lg_u32 s{S_T0}, 0"); e(f"s_cbranch_scc1 {fast[0]}")
            e("s_sleep 2"); e(f"s_branch {spin}")
        for i, it in enumerate(items if o.NB1 else []):
            if i in marks:
                e.lg("ds_read_b32 v21, v20", "go"); e.lg_all()
                e(f"v_readfirstlane_b32 s{S_T0}, v21")
                e(f"s_cmp_lg_u32 s{S_T0}, 0"); e(f"s_cbranch_scc1 {fast[i]}")
            e.vm_depth(o.NB1 - 1)
            emit_item(it, False)
        e(f"s_branch {done}")
        e.vmq = list(q0); cur1[0] = c0
        for i, it in enumerate(items):
            if i in marks: e.label(fast[i])
            e.vm_depth(o.NB - 1)
            emit_item(it, i in marks)
        e.label(done)
    st("B_issued")
    attn_pre(e, R, SW_TILES)
    e("s_barrier")
    st("bar3")
    pend1 = []
    for T in range(16, SW_TILES):
        for s in range(3): pend1.append(('K', T, s))
    for T in range(SW_TILES):
        for w in range(3): pend1.append(('V', T, w))
    slot_of = {it: i for i, it in enumerate(pend1)}
    freed = [0]
    issued1 = [0]
    cur2 = [None]
    def issue1():
        it = pend1[issued1[0]]; kind, T, x = it
        if cur2[0] != (kind, T):
            kv_soff(e, S_KV1, T); cur2[0] = (kind, T)
        e.vm_depth(o.NC - 1)
        if o.NCe: par_depth(e, o.NCe)
        if kind == 'K': ld_k(e, R, slot_reg(slot_of[it]), x, ('K1', T, x), o)
        else: ld_v(e, R, slot_reg(slot_of[it]), x, ('V1', T, x), o)
        issued1[0] += 1
    def refill():
        while issued1[0] < len(pend1) and issued1[0] < freed[0]: issue1()
    def qk_hook_C1(T):
        freed[0] = 3 * (T + 1); refill()
    def pv_hook_C1(T):
        freed[0] = min(118, 60 + 3 * (T + 1)); refill(); ovf_hook_C(T)
    def ovf_hook_C(T):
        if T == SW_TILES - 2:
            e.lg(f"ds_read_b128 v[32:35], {vr(R.vlds)} offset:{48*1024}", ("vo", 1))
            e.lg(f"ds_read_b128 v[28:31], {vr(R.vlds)} offset:{49*1024}", ("vo", 2))
    def vwait_C1(T, w):
        if T == SW_TILES - 1 and w >= 1: e.lg_wait(("vo", w))
    e(f"s_add_u32 s{S_T2}, s{S_LDSB}, {48*1024}")
    attn_pass(e, R, SW_TILES, 0, Kf0, Vf0, S_T2, 32, qk_hook=qk_hook_C1, v_wait=vwait_C1, pv_hook=pv_hook_C1, pre_done=True)
    refill()
    assert issued1[0] == len(pend1)
    st("C1_done")
    e("s_barrier")
    stage = [40 + 4 * (k - 64) for k in range(100, 112)]
    def Kf1(T, s):
        if T < 16: return ('lds', (3 * T + s) * 1024)
        return slot_reg(slot_of[('K', T, s)])
    def Vf1(T, w): return slot_reg(slot_of[('V', T, w)])
    def k_wait_C2(T):
        if T == -1: e.vm_wait(('K1', 15, 2))
        elif T >= 16: e.vm_wait(('K1', T, 2))
    def vwait_C2(T, w): e.vm_wait(('V1', T, w))
    attn_pass(e, R, SW_TILES, 1, Kf1, Vf1, S_PB, 0, k_wait=k_wait_C2, v_wait=vwait_C2, stage=stage, look=o.look)
    st("C2_done")
    e("s_barrier")
    if o.wb == 2: emit_wb(e)
    attn_pre(e, R, SW_TILES)
    e("s_barrier")
    st("bar7")
    attn_pass(e, R, SW_TILES, 1, Kf1, Vf1, S_PB, 0, stage=stage, pre_done=True, mark=lambda n: st("e." + n), look=o.look)
    st("E_done")
    e("s_barrier")
    if o.wb == 1: emit_wb(e)
    st.flush()
    e("s_endpgm")

V_LANE, V_LG, V_R, V_PL, V_PG, V_PQ = 0, 4, 5, 6, 7, 8
V_BO, V_BX, V_BX8, V_BH, V_BH8, V_AS, V_AS8 = 9, 10, 11, 12, 13, 14, 15
V_XR, V_CSQ, V_CSG = 16, 20, 24
V_W8, V_WX, V_WH, V_ML = 28, 29, 30, 31
W0 = 32
V_SEL, V_R2, V_ST2, V_PS, V_PSQ, V_L16 = 75, 79, 80, 81, 82, 83
V_T = 84
V_GL, V_LL = 72, 73
V_DA, V_DB = 72, 73
CW_K, CW_V = 86, 134
S_N1 = 74

_off3 = (2, 6, 0)
def wq_frag(t, s): return ("a", 10 * t + _off3[s])
def wo_frag(t, s): return ("a", 120 + 24 * t + 4 * s)
def wd_frag(t, s):
    if s == 0: return ("a", 240 + 4 * t) if t < 4 else ("v", 182)
    return ("v", 186 + 2 * t)
def wg_frag(t, s): return ("v", 196 + 10 * t + _off3[s])
def wu_frag(t, s): return ("v", 226 + 10 * t + _off3[s])
def win(fr): return f"{fr[0]}[{fr[1]}:{fr[1]+3}]"

V_OOB = 74
def selmask(e, dst, val, mask, other=None):
    e(f"s_mov_b32 vcc_lo, 0x{mask & 0xffffffff:08x}"); e(f"s_mov_b32 vcc_hi, 0x{mask >> 32:08x}")
    if other is None: e(f"v_cndmask_b32 {vr(dst)}, v{V_OOB}, {vr(val)}, vcc")
    else:
        assert dst != val
        e(f"v_mov_b32 {vr(dst)}, 0x{other:08x}")
        e(f"v_cndmask_b32 {vr(dst)}, {vr(dst)}, {vr(val)}, vcc")

def rows_mask(live, n): return mask64([32 * r + g for r in live for g in range(n)])
def cols_mask(live, alist=range(4)): return mask64([16 * a + n for a in alist for n in live])

def instance_offsets(e, live, pub_live=None, q_live=None):
    pub_live = live if pub_live is None else pub_live
    q_live = pub_live if q_live is None else q_live
    t, u = V_T, V_T + 1
    e(f"v_and_b32 {vr(t)}, 31, v{V_LANE}"); e(f"v_lshlrev_b32 {vr(t)}, 4, {vr(t)}")
    e(f"v_lshrrev_b32 {vr(u)}, 5, v{V_LANE}"); e(f"v_lshl_add_u32 {vr(t)}, {vr(u)}, 9, {vr(t)}")
    selmask(e, V_LG, t, rows_mask(live, 20))
    selmask(e, V_R2, t, rows_mask(live, 24))
    if o_packed[0]:
        row = live[-1]
        e(f"v_lshrrev_b32 {vr(t)}, 4, v{V_LANE}"); e(f"v_and_b32 {vr(u)}, 15, v{V_LANE}")
        e(f"v_lshlrev_b32 v{V_DA}, 10, {vr(t)}"); e(f"v_lshl_add_u32 v{V_DA}, {vr(u)}, 4, v{V_DA}"); e(f"v_add_u32 v{V_DA}, {512*row}, v{V_DA}")
        e(f"v_lshlrev_b32 v{V_DB}, 15, {vr(t)}"); e(f"v_bfe_u32 {vr(u)}, v{V_LANE}, 2, 2"); e(f"v_lshl_add_u32 v{V_DB}, {vr(u)}, 10, v{V_DB}")
        e(f"v_and_b32 {vr(u)}, 3, v{V_LANE}"); e(f"v_lshl_add_u32 v{V_DB}, {vr(u)}, 4, v{V_DB}"); e(f"v_add_u32 v{V_DB}, {512*row + 256}, v{V_DB}")
        e(f"v_lshrrev_b32 {vr(u)}, 5, v{V_LANE}")
    else:
        e(f"v_and_b32 v{V_GL}, 7, v{V_LANE}"); e(f"v_lshlrev_b32 v{V_GL}, 10, v{V_GL}"); e(f"v_add_u32 v{V_GL}, {512*live[-1] + 19*16}, v{V_GL}")
        e(f"v_and_b32 v{V_LL}, 3, v{V_LANE}"); e(f"v_lshlrev_b32 v{V_LL}, 10, v{V_LL}"); e(f"v_add_u32 v{V_LL}, {512*live[-1] + 19*16}, v{V_LL}")
    e(f"v_and_b32 {vr(t)}, 7, v{V_LANE}"); e(f"v_lshlrev_b32 {vr(t)}, 10, {vr(t)}")
    e(f"v_lshl_add_u32 {vr(t)}, {vr(u)}, 9, {vr(t)}"); e(f"v_add_u32 {vr(t)}, 384, {vr(t)}")
    selmask(e, V_ST2, t, rows_mask(live, 32))
    e(f"v_and_b32 {vr(t)}, 15, v{V_LANE}"); e(f"v_lshrrev_b32 {vr(u)}, 4, v{V_LANE}")
    e(f"v_lshlrev_b32 v{V_PL}, 9, {vr(t)}")
    e(f"v_lshl_add_u32 v{V_PG}, {vr(u)}, 5, v{V_PL}")
    e(f"v_add_u32 v{V_PS}, 384, v{V_PL}")
    e(f"v_lshl_add_u32 v{V_PL}, {vr(u)}, 4, v{V_PL}")
    e(f"v_lshlrev_b32 v{V_PQ}, 18, {vr(t)}")
    e(f"v_add_u32 v{V_PSQ}, 768, v{V_PQ}")
    e(f"v_lshl_add_u32 v{V_PQ}, {vr(u)}, 4, v{V_PQ}")
    cm = cols_mask(pub_live)
    e(f"s_mov_b32 vcc_lo, 0x{cm & 0xffffffff:08x}"); e(f"s_mov_b32 vcc_hi, 0x{cm >> 32:08x}")
    for r in (V_PL, V_PG): e(f"v_cndmask_b32 v{r}, v{V_OOB}, v{r}, vcc")
    selmask(e, V_PS, V_PS, cols_mask(pub_live, [0]))
    selmask(e, V_PQ, V_PQ, cols_mask(q_live))
    selmask(e, V_PSQ, V_PSQ, cols_mask(q_live, [0]))

def soffs(e, off_sreg, const, two=True):
    e(f"s_add_u32 s{S_A}, s{off_sreg}, {const}")
    if two: e(f"s_add_u32 s{S_B}, s{S_A}, 4096")

def poll(e, o, loads, abort, sleep=0):
    lab = e.newlabel("poll")
    e(f"s_mov_b32 s{S_CNT}, {o.poll_limit}")
    e.label(lab)
    for d, vo, s, imm in loads:
        e(f"buffer_load_dwordx4 {vr(d,4)}, v{vo}, s[{SRD_WS}:{SRD_WS+3}], s{s} offen offset:{imm} sc1")
    e(f"s_sub_u32 s{S_CNT}, s{S_CNT}, 1")
    e(f"s_cbranch_scc1 {abort}")
    e("s_waitcnt vmcnt(0)")
    vals = []
    for d, _, _, _ in loads: vals += [d + 1, d + 3]
    t = V_T
    e(f"v_max3_u32 v{t}, v{vals[0]}, v{vals[1]}, v{vals[2]}")
    i = 3
    while i < len(vals):
        if i + 1 < len(vals): e(f"v_max3_u32 v{t}, v{t}, v{vals[i]}, v{vals[i+1]}"); i += 2
        else: e(f"v_max_u32 v{t}, v{t}, v{vals[i]}"); i += 1
    e(f"v_cmp_eq_u32 vcc, -1, v{t}")
    if sleep:
        ok = e.newlabel("pok"); e(f"s_cbranch_vccz {ok}"); e(f"s_sleep {sleep}"); e(f"s_branch {lab}"); e.label(ok)
    else: e(f"s_cbranch_vccnz {lab}")
    e.vmq = []

def gather8(e, o, vo, abort, extra=None, n=8, base=W0):
    loads = [(base + 4 * k, vo, S_A if k < 4 else S_B, (k % 4) * 1024) for k in range(n)]
    if extra: loads.append((base + 4 * n, extra, S_A, 0))
    poll(e, o, loads, abort)

def sum_loads(e, n, base=W0):
    step = 1
    while step < n:
        for k in range(0, n, 2 * step):
            if k + step < n:
                a, b = base + 4 * k, base + 4 * (k + step)
                e(f"v_pk_add_f32 {vr(a,2)}, {vr(a,2)}, {vr(b,2)}")
                e(f"v_pk_add_f32 {vr(a+2,2)}, {vr(a+2,2)}, {vr(b+2,2)}")
        step *= 2

def dpp8(e, reg, op):
    for m in ("quad_perm:[1,0,3,2]", "quad_perm:[2,3,0,1]", "row_half_mirror"):
        e(f"v_{op}_f32_dpp v{reg}, v{reg}, v{reg} {m} row_mask:0xf bank_mask:0xf")
def dpp8x2(e, r0, r1, op):
    for m in ("quad_perm:[1,0,3,2]", "quad_perm:[2,3,0,1]", "row_half_mirror"):
        e(f"v_{op}_f32_dpp v{r0}, v{r0}, v{r0} {m} row_mask:0xf bank_mask:0xf")
        e(f"v_{op}_f32_dpp v{r1}, v{r1}, v{r1} {m} row_mask:0xf bank_mask:0xf")

def ln_from_stats(e, s1, s2, mean, rstd):
    e(f"v_mul_f32 v{mean}, {lit(1/640)}, v{s1}")
    e(f"v_mul_f32 v{s2}, {lit(1/640)}, v{s2}")
    e(f"v_fma_f32 v{s2}, -v{mean}, v{mean}, v{s2}")
    e(f"v_max_f32 v{s2}, 0, v{s2}")
    e(f"v_add_f32 v{s2}, {lit(EPS)}, v{s2}")
    e(f"v_rsq_f32 v{rstd}, v{s2}")

def pub(e, D, vo, sreg, imm, fl, tag):
    e.vm(f"buffer_store_dwordx4 {vr(D,4)}, v{vo}, s[{SRD_WS}:{SRD_WS+3}], s{sreg} offen offset:{imm} {fl}", tag)

def run_tiles(e, tiles, accs, store, btags=None, twait=None):
    n = len(accs); lag = n - 1
    for i, (tid, steps) in enumerate(tiles):
        D = vr(accs[i % n], 4)
        if twait and tid in twait: e.lg_wait(twait[tid])
        for s, (A, B) in enumerate(steps):
            if i == 0 and btags: e.lg_wait(btags[s])
            e(f"v_mfma_f32_16x16x32_bf16 {D}, {A}, {B}, {'0' if s == 0 else D}")
        if i >= lag: store(tiles[i - lag][0], accs[(i - lag) % n])
    for i in range(max(0, len(tiles) - lag), len(tiles)): store(tiles[i][0], accs[i % n])

def read_bx(e, B):
    e.lg(f"ds_read_b128 {vr(B,4)}, v{V_BX}", "b0"); e.lg(f"ds_read_b128 {vr(B+4,4)}, v{V_BX} offset:64", "b1")
    e.lg(f"ds_read_b64 {vr(B+8,2)}, v{V_BX8}", "b2")
    e(f"v_mov_b32 v{B+10}, 0"); e(f"v_mov_b32 v{B+11}, 0")
def read_as(e, A):
    e.lg(f"ds_read_b128 {vr(A,4)}, v{V_AS}", "a0"); e.lg(f"ds_read_b128 {vr(A+4,4)}, v{V_AS} offset:64", "a1")
    e.lg(f"ds_read_b64 {vr(A+8,2)}, v{V_AS8}", "a2")
    e(f"v_mov_b32 v{A+10}, 0"); e(f"v_mov_b32 v{A+11}, 0")

def stage_Q(e, fl, reg_index, shadow=None):
    B, A = W0 + 8, W0 + 20
    read_bx(e, B); read_as(e, A)
    e(f"s_add_u32 s{S_A}, s{S_ROWN}, {reg_index*RG}")
    if shadow: shadow()
    tiles = [(t, [(win(wq_frag(t, s)), vr(B + 4 * s, 4)) for s in range(3)]) for t in range(12)]
    tiles.insert(1, (12, [(vr(A + 4 * s, 4), vr(B + 4 * s, 4)) for s in range(3)]))
    SD = W0 + 4
    def store(t, D): pub(e, D, V_PQ, S_A, 64 * t, fl, ("pq", t))
    first, stats, rest = tiles[0], tiles[1], tiles[2:]
    run_tiles(e, [first], [W0 + 32, W0 + 36], lambda t, D: None, btags=["b0", "b1", "b2"])
    e.lg_wait("a2")
    for s, (Aop, Bop) in enumerate(stats[1]):
        e(f"v_mfma_f32_16x16x32_bf16 {vr(SD,4)}, {Aop}, {Bop}, {'0' if s == 0 else vr(SD,4)}")
    accs = [W0 + 36, W0, W0 + 20, W0 + 32]
    pend = [(0, W0 + 32)]
    for i, (t, steps) in enumerate(rest):
        D = accs[i % 4]
        for s, (Aop, Bop) in enumerate(steps):
            e(f"v_mfma_f32_16x16x32_bf16 {vr(D,4)}, {Aop}, {Bop}, {'0' if s == 0 else vr(D,4)}")
        pend.append((t, D))
        if i >= 2: store(*pend.pop(0))
    e(f"v_cndmask_b32 v{SD+1}, v{SD+1}, v{SD+2}, s[{S_N1}:{S_N1+1}]")
    while pend: store(*pend.pop(0))
    pub(e, SD, V_PSQ, S_A, 0, fl, "pqs")

def stage_GU(e, fl, const, with_stats=True, shadow=None):
    B, A = W0 + 8, W0 + 20
    read_bx(e, B)
    if with_stats: read_as(e, A)
    e(f"s_add_u32 s{S_A}, s{S_ROWN}, {const}" if const >= 0 else f"s_sub_u32 s{S_A}, s{S_ROWN}, {-const}")
    if shadow: shadow()
    def tile(d, f, waits=None):
        d = vr(d, 4)
        for s in range(3):
            if waits: e.lg_wait(waits[s])
            e(f"v_mfma_f32_16x16x32_bf16 {d}, {f(s)}, {vr(B+4*s,4)}, {'0' if s == 0 else d}")
    def store(t, G, U):
        e(f"v_swap_b32 v{G+2}, v{U}"); e(f"v_swap_b32 v{G+3}, v{U+1}")
        pub(e, G, V_PG, S_A, 128 * t, fl, ("pg", t, 0))
        pub(e, U, V_PG, S_A, 128 * t + 16, fl, ("pg", t, 1))
    g = lambda t: (lambda s: win(wg_frag(t, s)))
    u = lambda t: (lambda s: win(wu_frag(t, s)))
    P0, P1, S = (W0 + 32, W0 + 36), (W0 + 20, W0 + 24), W0
    tile(P0[0], g(0), waits=["b0", "b1", "b2"]); tile(P0[1], u(0))
    if with_stats:
        e.lg_wait("a2")
        tile(S, lambda s: vr(A + 4 * s, 4))
    tile(P1[0], g(1)); tile(P1[1], u(1))
    store(0, *P0)
    if with_stats: e(f"v_cndmask_b32 v{S+1}, v{S+1}, v{S+2}, s[{S_N1}:{S_N1+1}]")
    tile(P0[0], g(2)); tile(P0[1], u(2))
    store(1, *P1)
    store(2, *P0)
    if with_stats: pub(e, S, V_PS, S_A, 0, fl, "pgs")

def stage_WO(e, fl, region, shadow=None):
    B = W0
    for s in range(6): e.lg(f"ds_read_b128 {vr(B+4*s,4)}, v{V_BO} offset:{64*s}", ("o", s))
    e(f"s_add_u32 s{S_A}, s{S_LOWN}, {region*RG}")
    if shadow: shadow()
    tiles = [(t, [(win(wo_frag(t, s)), vr(B+4*s,4)) for s in range(6)]) for t in range(5)]
    run_tiles(e, tiles, [W0 + 24, W0 + 28, W0 + 32], lambda t, D: pub(e, D, V_PL, S_A, 64 * t, fl, ("po", t)), btags=[("o", s) for s in range(6)])

def stage_D(e, fl, region):
    B = W0
    e.lg(f"ds_read_b128 {vr(B,4)}, v{V_BH}", "h0"); e.lg(f"ds_read_b64 {vr(B+4,2)}, v{V_BH8}", "h1")
    e(f"v_mov_b32 v{B+6}, 0"); e(f"v_mov_b32 v{B+7}, 0")
    e(f"s_add_u32 s{S_A}, s{S_LOWN}, {region*RG}")
    tiles = [(t, [(win(wd_frag(t, 0)), vr(B,4)), (win(wd_frag(t, 1)), vr(B+4,4))]) for t in range(5)]
    run_tiles(e, tiles, [W0 + 8 + 4 * i for i in range(5)], lambda t, D: pub(e, D, V_PL, S_A, 64 * t, fl, ("pd", t)), btags=["h0", "h1"])

def fast_gather(e, o, loads, body, abort, pre=0, early=False):
    n = len(loads); t = V_T
    lab = e.newlabel("fpoll")
    e(f"s_mov_b32 s{S_CNT}, {o.poll_limit}")
    if pre: e(f"s_sleep {pre}")
    e.label(lab)
    for d, vo, s, imm in loads:
        e(f"buffer_load_dwordx4 {vr(d,4)}, v{vo}, s[{SRD_WS}:{SRD_WS+3}], s{s} offen offset:{imm} sc1")
    e(f"s_sub_u32 s{S_CNT}, s{S_CNT}, 1")
    e(f"s_cbranch_scc1 {abort}")
    first = [True]
    if early:
        d = loads[0][0]
        e(f"s_waitcnt vmcnt({n-1})")
        e(f"v_max_u32 v{t}, v{d+1}, v{d+3}")
        e(f"v_cmp_eq_u32 vcc, -1, v{t}")
        e(f"s_cbranch_vccnz {lab}")
        first[0] = False
    def wait(k): e(f"s_waitcnt vmcnt({n-1-k})")
    def chk(k):
        d = loads[k][0]
        if first[0]: e(f"v_max_u32 v{t}, v{d+1}, v{d+3}"); first[0] = False
        else: e(f"v_max3_u32 v{t}, v{t}, v{d+1}, v{d+3}")
    body(wait, chk)
    e(f"v_cmp_eq_u32 vcc, -1, v{t}")
    e(f"s_cbranch_vccnz {lab}")
    e.vmq = []

def padd(e, a, b, neg=False):
    m = " neg_lo:[0,1] neg_hi:[0,1]" if neg else ""
    e(f"v_pk_add_f32 {vr(a,2)}, {vr(a,2)}, {vr(b,2)}{m}"); e(f"v_pk_add_f32 {vr(a+2,2)}, {vr(a+2,2)}, {vr(b+2,2)}{m}")

def g_soffs(e, off_sreg, const, two=True):
    e(f"s_add_u32 s{S_GA}, s{off_sreg}, {const}")
    if two: e(f"s_add_u32 s{S_GB}, s{S_GA}, 4096")
def g_loads(vo, n=8, base=W0): return [(base + 4 * k, vo, S_GA if k < 4 else S_GB, (k % 4) * 1024) for k in range(n)]

def hop_LG(e, o, inst, k, abort, final_only=False):
    skip = e.newlabel("notleader")
    e(f"s_cmp_lg_u32 s{S_HQ}, 0"); e(f"s_cbranch_scc1 {skip}")
    g_soffs(e, S_LGRP, L_REG(inst, k) * RG, two=False)
    e(f"s_add_u32 s{S_A}, s{S_GOWN}, {G_OFF(inst,k)}")
    X = W0 + 32
    off = 1 if o.early else 0
    def body4(wait, chk):
        wait(off + 1); chk(off); chk(off + 1); padd(e, W0, W0 + 4)
        wait(off + 2); chk(off + 2); padd(e, W0, W0 + 8)
        wait(off + 3); chk(off + 3); padd(e, W0, W0 + 12)
    fast_gather(e, o, ([(X, V_LL, S_GA, 0)] if o.early else []) + g_loads(V_LG, 4), body4, abort, pre=o.preL, early=o.early)
    e(f"buffer_store_dwordx4 {vr(W0,4)}, v{V_LG}, s[{SRD_WS}:{SRD_WS+3}], s{S_A} offen sc1")
    if o.preGn:
        join = e.newlabel("lgjoin")
        e(f"s_branch {join}")
        e.label(skip)
        if not final_only: e(f"s_sleep {o.preGn}")
        e.label(join)
    else: e.label(skip)
    if final_only:
        e(f"s_cmp_lg_u32 s{S_H}, 0"); e(f"s_cbranch_scc1 L_done")
    g_soffs(e, S_GGRP, G_OFF(inst, k))
    e.vmq = []
    def body8(wait, chk):
        c = lambda k: chk(off + k)
        w = lambda k: wait(off + k)
        w(1); c(0); c(1); padd(e, W0, V_XR); padd(e, W0, W0 + 4)
        w(3); c(2); c(3); padd(e, W0 + 8, W0 + 12); padd(e, W0, W0 + 8)
        w(5); c(4); c(5); padd(e, W0 + 16, W0 + 20); padd(e, W0, W0 + 16)
        w(6); c(6); padd(e, W0, W0 + 24)
        w(7); c(7); padd(e, W0, W0 + 28)
    fast_gather(e, o, ([(X, V_GL, S_GA, 0)] if o.early else []) + g_loads(V_LG, 8), body8, abort, pre=o.preG, early=o.early)

def hop_packed(e, o, abort, inst, k, pre):
    if inst == 2 and k == 1:
        e(f"s_cmp_lg_u32 s{S_H}, 0"); e(f"s_cbranch_scc1 L_done")
    e(f"s_lshl_b32 s{S_T0}, s{S_J}, 12"); e(f"s_add_u32 s{S_T0}, s{S_T0}, {L_REG(inst,k)*RG}")
    for x in range(8): e(f"s_add_u32 s{SW8[x]}, s{S_T0}, {32768*x}")
    B0 = W0 + 32
    loads = [(B0, V_DB, SW8[0], 0), (B0 + 4, V_DB, SW8[4], 0)] + [(W0 + 4 * x, V_DA, SW8[x], 0) for x in range(8)]
    T = V_T + 1
    def xrow(a):
        for sw in ("v_permlane16_swap_b32", "v_permlane32_swap_b32"):
            for r in range(4):
                t = B0 + 4 + r
                e(f"v_mov_b32 v{t}, v{a+r}")
            for r in range(4): e(f"{sw} v{a+r}, v{B0+4+r}")
            for h in range(2): e(f"v_pk_add_f32 {vr(a+2*h,2)}, {vr(a+2*h,2)}, {vr(B0+4+2*h,2)}")
    def body(wait, chk):
        wait(1); chk(0); chk(1); padd(e, B0, B0 + 4)
        for m in ("row_ror:4", "row_ror:8"):
            for r in range(4): e(f"v_add_f32_dpp v{B0+r}, v{B0+r}, v{B0+r} {m} row_mask:0xf bank_mask:0xf")
        wait(3); chk(2); chk(3); padd(e, W0, W0 + 4)
        xrow(B0)
        wait(5); chk(4); chk(5); padd(e, W0 + 8, W0 + 12); padd(e, W0, W0 + 8)
        wait(7); chk(6); chk(7); padd(e, W0 + 16, W0 + 20); padd(e, W0, W0 + 16)
        wait(8); chk(8); padd(e, W0, W0 + 24)
        wait(9); chk(9); padd(e, W0, W0 + 28)
    fast_gather(e, o, loads, body, abort, pre=pre)
    xrow(W0)
    e("s_mov_b32 vcc_lo, 0xffff0000"); e("s_mov_b32 vcc_hi, 0xffff0000")
    for r in range(4): e(f"v_cndmask_b32 v{W0+r}, v{W0+r}, v{B0+r}, vcc")
    m = rows_mask([0 if inst == 0 else 1], 20)
    e(f"s_mov_b32 vcc_lo, 0x{m & 0xffffffff:08x}"); e(f"s_mov_b32 vcc_hi, 0x{m >> 32:08x}")
    for r in range(4): e(f"v_cndmask_b32 v{W0+r}, 0, v{W0+r}, vcc")
    padd(e, W0, V_XR)

def hop_final(e, o, abort, k=1):
    if k == 1:
        e(f"s_cmp_lg_u32 s{S_H}, 0"); e(f"s_cbranch_scc1 L_done")
    e(f"s_lshl_b32 s{S_T0}, s{S_J}, 12"); e(f"s_add_u32 s{S_T0}, s{S_T0}, {L_REG(2,k)*RG}")
    for x in range(8): e(f"s_add_u32 s{SW8[x]}, s{S_T0}, {32768*x}")
    dst = [W0 + 4 * k for k in range(8)] + [CW_K + 4 * k for k in range(24)]
    loads = [(dst[4 * x + q], V_LG, SW8[x], 1024 * q) for x in range(8) for q in range(4)]
    A0, A1 = loads[0][0], loads[1][0]
    def body(wait, chk):
        wait(1); chk(0); chk(1); padd(e, A0, V_XR)
        for k in range(2, 32):
            if k % 2 == 0: wait(min(k + 1, 31)); chk(k); chk(k + 1)
            padd(e, A0 if k % 2 == 0 else A1, loads[k][0])
        padd(e, A0, A1)
    fast_gather(e, o, loads, body, abort, pre=o.preF if k == 1 else o.preF0)

def residual_update(e):
    e(f"v_cvt_pk_bf16_f32 v{W0+4}, v{W0}, v{W0+1}")
    e(f"v_cvt_pk_bf16_f32 v{W0+5}, v{W0+2}, v{W0+3}")
    e.lg(f"ds_write_b64 v{V_WX}, {vr(W0+4,2)}", "wx")
def residual_unpack(e, p):
    e(f"v_lshlrev_b32 v{V_XR}, 16, v{p}"); e(f"v_and_b32 v{V_XR+1}, 0xffff0000, v{p}")
    e(f"v_lshlrev_b32 v{V_XR+2}, 16, v{p+1}"); e(f"v_and_b32 v{V_XR+3}, 0xffff0000, v{p+1}")

def store_out(e, row):
    skip = e.newlabel("noout")
    e(f"s_cmp_lg_u32 s{S_H}, 0"); e(f"s_cbranch_scc1 {skip}")
    make_srd(e, SRD_T, S_OUT, 2560)
    e(f"v_and_b32 v{V_T}, 31, v{V_LANE}"); e(f"v_lshlrev_b32 v{V_T}, 3, v{V_T}")
    e(f"s_mul_i32 s{S_T0}, s{S_J}, 160"); e(f"s_add_u32 s{S_T0}, s{S_T0}, {row*1280}")
    selmask(e, V_T, V_T, rows_mask([row], 20))
    e(f"buffer_store_dwordx2 {vr(W0+4,2)}, v{V_T}, s[{SRD_T}:{SRD_T+3}], s{S_T0} offen")
    e.label(skip)

def combine_publish(e, fl, parts, mlbase, region):
    T = W0
    e(f"v_mov_b32 v{V_T}, {mlbase}")
    e.lg(f"ds_read_b128 {vr(T,4)}, v{V_T}", "ml0"); e.lg(f"ds_read_b128 {vr(T+4,4)}, v{V_T} offset:16", "ml1")
    P = T + 8
    cur = None
    for w in range(4):
        if cur is None or not (0 <= parts[w] - cur < 60000):
            e(f"v_add_u32 v{V_T+1}, {parts[w]}, v{V_L16}"); cur = parts[w]
        for par in range(2):
            e.lg(f"ds_read_b128 {vr(P+8*w+4*par,4)}, v{V_T+1} offset:{parts[w] - cur + 768*par}", ("p", w, par))
    e(f"s_add_u32 s{S_A}, s{S_ROWN}, {region*RG}")
    e.lg_wait("ml1")
    m = [T, T + 2, T + 4, T + 6]; l = [T + 1, T + 3, T + 5, T + 7]
    M, Ls = V_T, V_T + 1
    e(f"v_max3_f32 v{M}, v{m[0]}, v{m[1]}, v{m[2]}"); e(f"v_max_f32 v{M}, v{M}, v{m[3]}")
    for w in range(4): e(f"v_sub_f32 v{m[w]}, v{m[w]}, v{M}")
    for w in range(4): e(f"v_exp_f32 v{m[w]}, v{m[w]}")
    e(f"v_mul_f32 v{Ls}, v{m[0]}, v{l[0]}")
    for w in range(1, 4): e(f"v_fma_f32 v{Ls}, v{m[w]}, v{l[w]}, v{Ls}")
    for w in range(4):
        e.lg_wait(("p", w, 1))
        a = P + 8 * w
        e(f"v_pk_add_f32 {vr(a,2)}, {vr(a,2)}, {vr(a+4,2)}"); e(f"v_pk_add_f32 {vr(a+2,2)}, {vr(a+2,2)}, {vr(a+6,2)}")
        for r in range(4):
            if w == 0: e(f"v_mul_f32 v{P+r}, v{m[0]}, v{P+r}")
            else: e(f"v_fmac_f32 v{P+r}, v{m[w]}, v{a+r}")
    e(f"s_mov_b32 vcc_lo, 0"); e(f"s_mov_b32 vcc_hi, 0x00010000")
    e(f"v_cndmask_b32 v{P}, v{P}, v{M}, vcc"); e(f"v_cndmask_b32 v{P+1}, v{P+1}, v{Ls}, vcc")
    pub(e, P, V_R, S_A, 0, fl, "r1")

SW8 = [4, 6, 8, 10, 12, 16, 18, 20]
def hop_R1(e, o, region, row, abort):
    g_soffs(e, S_RGRP, region * RG)
    X = W0 + 32
    M, wv = X + 2, X + 3
    acc = W0 + 36
    loads = [(X, V_ML, S_GA, 0)] + g_loads(V_R)
    def body(wait, chk):
        if not o.early: wait(0); chk(0)
        e(f"v_mov_b32 v{M}, v{X}")
        dpp8(e, M, "max")
        e(f"v_sub_f32 v{wv}, v{X}, v{M}"); e(f"v_exp_f32 v{wv}, v{wv}")
        wait(4); chk(1); chk(2)
        e(f"v_mul_f32 v{X+1}, v{wv}, v{X+1}")
        chk(3); chk(4)
        e(f"v_add_f32_dpp v{X+1}, v{X+1}, v{X+1} quad_perm:[1,0,3,2] row_mask:0xf bank_mask:0xf")
        wait(8); chk(5); chk(6)
        e(f"v_add_f32_dpp v{X+1}, v{X+1}, v{X+1} quad_perm:[2,3,0,1] row_mask:0xf bank_mask:0xf")
        chk(7); chk(8)
        e(f"v_add_f32_dpp v{X+1}, v{X+1}, v{X+1} row_half_mirror row_mask:0xf bank_mask:0xf")
        e(f"v_rcp_f32 v{X+1}, v{X+1}")
        e(f"v_mul_f32 v{wv}, v{wv}, v{X+1}")
        for k in range(8): e(f"v_readlane_b32 s{SW8[k]}, v{wv}, {k}")
        for k in range(8):
            for h in range(2):
                a, m = acc + 2 * h, W0 + 4 * k + 2 * h
                sp = f"s[{SW8[k]}:{SW8[k]+1}]"
                if k == 0: e(f"v_pk_mul_f32 {vr(a,2)}, {vr(m,2)}, {sp} op_sel_hi:[1,0]")
                else: e(f"v_pk_fma_f32 {vr(a,2)}, {vr(m,2)}, {sp}, {vr(a,2)} op_sel_hi:[1,0,1]")
    fast_gather(e, o, loads, body, abort, pre=o.preR, early=o.early)
    e(f"v_cvt_pk_bf16_f32 v{acc}, v{acc}, v{acc+1}"); e(f"v_cvt_pk_bf16_f32 v{acc+1}, v{acc+2}, v{acc+3}")
    e.lg(f"ds_write_b64 v{V_W8}, {vr(acc,2)} offset:{ACT_O - SB + 384*row}", "wo")

def ln_gather(e, o, vo, vstat, cs, abort):
    X = W0 + 32; mean, rstd = X + 2, X + 3; T = W0 + 36
    loads = [(X, vstat, S_GA, 0)] + g_loads(vo)
    q = lambda r, m: e(f"v_add_f32_dpp v{r}, v{r}, v{r} {m} row_mask:0xf bank_mask:0xf")
    def body(wait, chk):
        if not o.early: wait(0); chk(0)
        q(X, "quad_perm:[1,0,3,2]"); q(X + 1, "quad_perm:[1,0,3,2]")
        wait(2); chk(1)
        q(X, "quad_perm:[2,3,0,1]"); q(X + 1, "quad_perm:[2,3,0,1]")
        chk(2)
        q(X, "row_half_mirror"); q(X + 1, "row_half_mirror")
        padd(e, W0, W0 + 4)
        e(f"v_mul_f32 v{mean}, {lit(1/640)}, v{X}"); e(f"v_mul_f32 v{X+1}, {lit(1/640)}, v{X+1}")
        wait(4); chk(3); chk(4)
        e(f"v_fma_f32 v{X+1}, -v{mean}, v{mean}, v{X+1}")
        padd(e, W0 + 8, W0 + 12)
        e(f"v_max_f32 v{X+1}, 0, v{X+1}"); e(f"v_add_f32 v{X+1}, {lit(EPS)}, v{X+1}")
        padd(e, W0, W0 + 8)
        e(f"v_rsq_f32 v{rstd}, v{X+1}")
        wait(6); chk(5); chk(6)
        e(f"v_pk_mul_f32 {vr(T,2)}, {vr(cs,2)}, {vr(mean,2)} op_sel_hi:[1,0]"); e(f"v_pk_mul_f32 {vr(T+2,2)}, {vr(cs+2,2)}, {vr(mean,2)} op_sel_hi:[1,0]")
        padd(e, W0 + 16, W0 + 20); padd(e, W0, T, neg=True); padd(e, W0, W0 + 16)
        wait(7); chk(7); padd(e, W0, W0 + 24)
        wait(8); chk(8); padd(e, W0, W0 + 28)
    fast_gather(e, o, loads, body, abort, pre=o.preR, early=o.early)
    e(f"v_pk_mul_f32 {vr(W0,2)}, {vr(W0,2)}, {vr(mean,2)} op_sel:[0,1] op_sel_hi:[1,1]")
    e(f"v_pk_mul_f32 {vr(W0+2,2)}, {vr(W0+2,2)}, {vr(mean,2)} op_sel:[0,1] op_sel_hi:[1,1]")

def hop_R2(e, o, inst, abort):
    ln_gather(e, o, V_R2, V_ST2, V_CSG, abort)
    e(f"v_max_f32 v{W0}, 0, v{W0}"); e(f"v_max_f32 v{W0+1}, 0, v{W0+1}")
    e(f"v_pk_mul_f32 {vr(W0,2)}, {vr(W0,2)}, {vr(W0+2,2)}")
    e(f"v_cvt_pk_bf16_f32 v{W0}, v{W0}, v{W0+1}")
    e.lg(f"ds_write_b32 v{V_WH}, v{W0}", "wh")

def q_consume(e, base, X, row):
    dpp8x2(e, X, X + 1, "add")
    sum_loads(e, 8, base)
    mean, rstd = X + 2, X + 3
    ln_from_stats(e, X, X + 1, mean, rstd)
    for r in range(4): e(f"v_fma_f32 v{base+r}, -v{mean}, v{V_CSQ+r}, v{base+r}")
    for r in range(4): e(f"v_mul_f32 v{base+r}, v{rstd}, v{base+r}")
    e(f"v_cvt_pk_bf16_f32 v{base}, v{base}, v{base+1}"); e(f"v_cvt_pk_bf16_f32 v{base+1}, v{base+2}, v{base+3}")
    e.lg(f"ds_write_b64 v{V_W8}, {vr(base,2)} offset:{QARR - SB + 384*row}", "wq")

def hop_R3(e, o, region, row, abort):
    ln_gather(e, o, V_R, V_ML, V_CSQ, abort)
    e(f"v_cvt_pk_bf16_f32 v{W0}, v{W0}, v{W0+1}"); e(f"v_cvt_pk_bf16_f32 v{W0+1}, v{W0+2}, v{W0+3}")
    e.lg(f"ds_write_b64 v{V_W8}, {vr(W0,2)} offset:{QARR - SB + 384*row}", "wq")

def go_flag(e):
    e(f"v_mov_b32 v{V_T}, {WFLAG + 12}"); e(f"v_mov_b32 v{V_T+1}, 1")
    e.lg(f"ds_write_b32 v{V_T}, v{V_T+1}", "go")

def chain(e, o, fl, inst, live, abort, st):
    c = f"c{inst}."
    if inst == 0 and o.NB1 != o.NB and o.go_at == "R1": go_flag(e)
    if inst == 0: o._save = (o.preR, o.preL, o.preG); o.preL, o.preG = o.preL + o.preL0, o.preG + o.preG0
    st.rounds(f"n{inst}.R1")
    st(c + "R1")
    pk = o.packed.split(",") if o.packed else []
    if inst == 0 and o.split_tok:
        assert "00" not in pk
        TO, TD = W0 + 38, W0 + 36
        omask = 0xffffffff00ff0000
        def shadow():
            tok2_offsets(e, TO, W0 + 24, others_only=True)
            e(f"s_mov_b32 s{S_B}, {TOK2}")
            set_exec(e, omask)
            e.vm(f"buffer_load_dwordx2 {vr(TD,2)}, v{TO}, s[{SRD_WS}:{SRD_WS+3}], s{S_B} offen sc1", "tok2b")
            e("s_mov_b64 exec, -1")
        stage_WO(e, fl, L_REG(inst, 0), shadow=shadow)
        ok, lab = e.newlabel("tok2ok"), e.newlabel("tok2re")
        e.vm_wait("tok2b")
        set_exec(e, omask)
        e(f"v_cmp_ne_u32 vcc, s{S_TAG}, v{TD}")
        e(f"s_cbranch_vccz {ok}")
        e(f"s_mov_b32 s{S_CNT}, {o.poll_limit}")
        e.label(lab)
        e(f"buffer_load_dwordx2 {vr(TD,2)}, v{TO}, s[{SRD_WS}:{SRD_WS+3}], s{S_B} offen sc1")
        e(f"s_sub_u32 s{S_CNT}, s{S_CNT}, 1"); e(f"s_cbranch_scc1 {abort}")
        e("s_waitcnt vmcnt(0)")
        e(f"v_cmp_ne_u32 vcc, s{S_TAG}, v{TD}")
        e(f"s_cbranch_vccnz {lab}")
        e.label(ok)
        e("s_mov_b64 exec, -1")
        st(c + "WO")
        hop_LG(e, o, inst, 0, abort)
    elif f"{inst}0" in pk:
        stage_WO(e, "sc1", L_REG(inst, 0))
        st(c + "WO")
        hop_packed(e, o, abort, inst, 0, o.preP0 if inst == 0 else o.preF0)
    elif inst == 2 and o.direct0:
        stage_WO(e, "sc1", L_REG(inst, 0))
        st(c + "WO")
        hop_final(e, o, abort, k=0)
    else:
        stage_WO(e, fl, L_REG(inst, 0))
        st(c + "WO")
        hop_LG(e, o, inst, 0, abort)
    if inst == 0 and o.NB1 != o.NB and o.go_at == "G1": go_flag(e)
    if inst == 0: o.preR, o.preL, o.preG = o._save
    st.rounds(f"n{inst}.G1")
    st(c + "G1")
    residual_update(e)
    def sh_gu():
        residual_unpack(e, W0 + 4); g_soffs(e, S_RGRP, R2_REG[inst] * RG)
    stage_GU(e, fl, R2_REG[inst] * RG, shadow=sh_gu)
    st(c + "GU")
    hop_R2(e, o, inst, abort)
    st.rounds(f"n{inst}.R2")
    st(c + "R2")
    if f"{inst}1" in pk:
        stage_D(e, "sc1", L_REG(inst, 1))
        st(c + "D")
        hop_packed(e, o, abort, inst, 1, o.preP1 if inst == 0 else o.preF)
    elif inst == 2 and o.direct:
        stage_D(e, "sc1", L_REG(inst, 1))
        st(c + "D")
        hop_final(e, o, abort)
    else:
        stage_D(e, fl, L_REG(inst, 1))
        st(c + "D")
        hop_LG(e, o, inst, 1, abort, final_only=(inst == 2))
    st.rounds(f"n{inst}.G2")
    st(c + "G2")
    if inst == 2:
        e(f"v_cvt_pk_bf16_f32 v{W0+4}, v{W0}, v{W0+1}"); e(f"v_cvt_pk_bf16_f32 v{W0+5}, v{W0+2}, v{W0+3}")
        store_out(e, 1)
        e("s_cmp_lg_u32 s2, 0"); e("s_cbranch_scc1 L_done")
        e(f"v_mov_b32 v{V_T}, s{S_TAG}"); e(f"v_mov_b32 v{V_T+1}, {EPOCH_OFF}")
        e("s_mov_b64 exec, 1")
        e(f"buffer_store_dword v{V_T}, v{V_T+1}, s[{SRD_WS}:{SRD_WS+3}], 0 offen sc1")
        e("s_mov_b64 exec, -1")
        return
    residual_update(e)
    qrow = 0 if inst == 0 else 1
    def sh_q():
        residual_unpack(e, W0 + 4); g_soffs(e, S_RGRP, R3_REG[inst] * RG)
        if inst == 1:
            store_out(e, 0)
            cm = cols_mask([1]); e(f"s_mov_b32 vcc_lo, 0x{cm & 0xffffffff:08x}"); e(f"s_mov_b32 vcc_hi, 0x{cm >> 32:08x}")
            e(f"v_cndmask_b32 v{V_PQ}, v{V_OOB}, v{V_PQ}, vcc"); e(f"v_cndmask_b32 v{V_PSQ}, v{V_OOB}, v{V_PSQ}, vcc")
    stage_Q(e, fl, R3_REG[inst] - qrow, shadow=sh_q)
    st(c + "Q")
    hop_R3(e, o, R3_REG[inst], qrow, abort)
    e.lg_all()
    st.rounds(f"n{inst}.R3")
    st(c + "R3")

TOK1 = 21 * RG
TOK2 = TOK1 + 32768
EPOCH_OFF = 896
S_TAG = 73

o_direct = [True, False]
o_packed = [False]
o_dset = set()
def emit_resets_P(e):
    e(f"v_mov_b32 v{W0}, -1"); e(f"v_mov_b32 v{W0+1}, -1"); e(f"v_mov_b32 v{W0+2}, -1"); e(f"v_mov_b32 v{W0+3}, -1")
    for r in [4, 5, 6]:
        e(f"s_add_u32 s{S_A}, s{S_ROWN}, {r*RG}")
        e.vm(f"buffer_store_dwordx4 {vr(W0,4)}, v{V_R}, s[{SRD_WS}:{SRD_WS+3}], s{S_A} offen sc1", "rstp")
    e(f"v_lshlrev_b32 v{V_T}, 4, v{V_LANE}")
    selmask(e, W0 + 4, V_T, rows_mask([0], 24))
    e(f"s_add_u32 s{S_A}, s{S_ROWN}, {R2_REG['P']*RG}")
    e.vm(f"buffer_store_dwordx4 {vr(W0,4)}, v{W0+4}, s[{SRD_WS}:{SRD_WS+3}], s{S_A} offen sc1", "rstp")

def emit_resets(e, f):
    e(f"v_mov_b32 v{W0}, -1"); e(f"v_mov_b32 v{W0+1}, -1"); e(f"v_mov_b32 v{W0+2}, -1"); e(f"v_mov_b32 v{W0+3}, -1")
    def reset(vo, sreg, const):
        e(f"s_add_u32 s{S_A}, s{sreg}, {const}")
        e.vm(f"buffer_store_dwordx4 {vr(W0,4)}, v{vo}, s[{SRD_WS}:{SRD_WS+3}], s{S_A} offen {f}", "rst")
    e(f"v_and_b32 v{V_T}, 31, v{V_LANE}"); e(f"v_lshlrev_b32 v{V_T}, 4, v{V_T}")
    e(f"v_lshrrev_b32 v{V_T+1}, 5, v{V_LANE}"); e(f"v_lshl_add_u32 v{V_T}, v{V_T+1}, 9, v{V_T}")
    liv = {0: [0], 1: [0, 1], 2: [1], 'P': [0]}
    skip = e.newlabel("norstg")
    e(f"s_cmp_lg_u32 s{S_HQ}, 0"); e(f"s_cbranch_scc1 {skip}")
    for inst in (0, 1, 2):
        selmask(e, W0 + 4, V_T, rows_mask(liv[inst], 20))
        for k in range(2):
            e(f"s_add_u32 s{S_A}, s{S_GOWN}, {G_OFF(inst,k)}")
            e(f"buffer_store_dwordx4 {vr(W0,4)}, v{W0+4}, s[{SRD_WS}:{SRD_WS+3}], s{S_A} offen sc1")
    e.label(skip)
    for r in [7, 8] + list(R1_REG.values()): reset(V_R, S_ROWN, r * RG)
    for inst in (0, 1, 2):
        selmask(e, W0 + 4, V_T, rows_mask(liv[inst], 25))
        reset(W0 + 4, S_ROWN, R2_REG[inst] * RG)
        selmask(e, W0 + 4, V_T, rows_mask(liv[inst], 20))
        for k in range(2):
            if (inst, k) in o_dset:
                e(f"s_add_u32 s{S_A}, s{S_LOWN}, {L_REG(inst, k) * RG}")
                e.vm(f"buffer_store_dwordx4 {vr(W0,4)}, v{W0+4}, s[{SRD_WS}:{SRD_WS+3}], s{S_A} offen sc1", "rst")
            else: reset(W0 + 4, S_LOWN, L_REG(inst, k) * RG)

def token_store(e, base, second):
    e(f"s_lshl_b32 s{S_A}, s2, 7"); e(f"s_add_u32 s{S_A}, s{S_A}, {base}")
    e(f"v_mov_b32 v{W0+40}, s{S_TAG}"); e(f"v_mov_b32 v{W0+41}, {second}"); e(f"v_mov_b32 v{V_T}, 0")
    e("s_mov_b64 exec, 1")
    e.vm(f"buffer_store_dwordx2 {vr(W0+40,2)}, v{V_T}, s[{SRD_WS}:{SRD_WS+3}], s{S_A} offen sc1", "tok")
    e("s_mov_b64 exec, -1")

def token_gather(e, o, base, vo, mask, sleep=0, dst=W0, between=None):
    lab = e.newlabel("tok"); chk = e.newlabel("tokchk")
    if between:
        e(f"s_mov_b32 s{S_B}, {base}")
        set_exec(e, mask)
        e(f"buffer_load_dwordx2 {vr(dst,2)}, v{vo}, s[{SRD_WS}:{SRD_WS+3}], s{S_B} offen sc1")
        e("s_mov_b64 exec, -1")
        between()
        e(f"s_mov_b32 s{S_A}, {base}")
        set_exec(e, mask)
        e(f"s_mov_b32 s{S_CNT}, {o.poll_limit}")
        e(f"s_branch {chk}")
    else:
        e(f"s_mov_b32 s{S_A}, {base}")
        set_exec(e, mask)
        e(f"s_mov_b32 s{S_CNT}, {o.poll_limit}")
    e.label(lab)
    e(f"buffer_load_dwordx2 {vr(dst,2)}, v{vo}, s[{SRD_WS}:{SRD_WS+3}], s{S_A} offen sc1")
    e(f"s_sub_u32 s{S_CNT}, s{S_CNT}, 1"); e(f"s_cbranch_scc1 L_abort")
    e.label(chk)
    e("s_waitcnt vmcnt(0)")
    e(f"v_cmp_ne_u32 vcc, s{S_TAG}, v{dst}")
    if sleep:
        ok = e.newlabel("tokok"); e(f"s_cbranch_vccz {ok}"); e(f"s_sleep {sleep}"); e(f"s_branch {lab}"); e.label(ok)
    else: e(f"s_cbranch_vccnz {lab}")
    e.vmq = []

def tr_block(e, items):
    i, g, r, c, t = W0, W0 + 1, W0 + 2, W0 + 3, W0 + 4
    a32, a16 = W0 + 6, W0 + 7
    def tr_setup():
        e(f"v_and_b32 v{i}, 15, v{V_LANE}"); e(f"v_lshrrev_b32 v{g}, 4, v{V_LANE}")
        e(f"v_lshrrev_b32 v{r}, 2, v{i}"); e(f"v_and_b32 v{c}, 3, v{i}")
    def trbase(dst, stride, rows_per_g, base):
        e(f"v_mul_u32_u24 v{t}, {rows_per_g}, v{g}"); e(f"v_add_u32 v{t}, v{t}, v{r}")
        e(f"v_mul_u32_u24 v{t}, {stride}, v{t}"); e(f"v_lshl_add_u32 v{dst}, v{c}, 3, v{t}")
        if base: e(f"v_add_u32 v{dst}, {base}, v{dst}")
    def tr(frag, addr, off, k16, stride):
        f, lo = frag
        e.lg(f"ds_read_b64_tr_b16 {f}[{lo}:{lo+1}], v{addr} offset:{off}", "tr")
        if not k16: e.lg(f"ds_read_b64_tr_b16 {f}[{lo+2}:{lo+3}], v{addr} offset:{off+4*stride}", "tr")
        if len(e.lgq) >= 12: e.lg_wait_n(4)
    if True:
        tr_setup()
        for frag, nt, stride, base, ks in items:
            trbase(a32, stride, 8, base); trbase(a16, stride, 4, base)
            nk = len(ks)
            for tt in range(nt):
                for s, k0 in enumerate(ks):
                    k16 = (frag is not wo_frag) and s == nk - 1
                    tr(frag(tt, s), a16 if k16 else a32, k0 * stride + 32 * tt, k16, stride)
        e.lg_all()

def prologue_weights(e, o, st):
    abort = "L_abort"
    e(f"v_mov_b32 v{W0+2}, 0x3f803f80"); e(f"v_mov_b32 v{W0+3}, 0x3f803f80")
    e(f"v_lshlrev_b32 v{W0+4}, 3, v{V_LANE}"); e(f"v_add_u32 v{W0+4}, {ACT_X+384}, v{W0+4}")
    set_exec(e, mask64(range(24)))
    e.lg(f"ds_write_b64 v{W0+4}, {vr(W0+2,2)}", "ones")
    e("s_mov_b64 exec, -1")
    e.lg(f"ds_write_b64 v{V_WX}, {vr(V_XR,2)}", "wx")
    e(f"v_lshlrev_b32 v{V_XR+2}, 16, v{V_XR+1}"); e(f"v_and_b32 v{V_XR+3}, 0xffff0000, v{V_XR+1}")
    e(f"v_and_b32 v{V_XR+1}, 0xffff0000, v{V_XR}"); e(f"v_lshlrev_b32 v{V_XR}, 16, v{V_XR}")
    e.lg_all()
    lab = e.newlabel("wflag")
    e(f"v_mov_b32 v{V_T+1}, {WFLAG}")
    e(f"s_mov_b32 s{S_CNT}, {o.poll_limit*8}")
    e.label(lab)
    e(f"ds_read_b96 {vr(W0,3)}, v{V_T+1}")
    e(f"s_sub_u32 s{S_CNT}, s{S_CNT}, 1"); e(f"s_cbranch_scc1 {abort}")
    e("s_waitcnt lgkmcnt(0)")
    e(f"v_and_b32 v{W0}, v{W0}, v{W0+1}"); e(f"v_and_b32 v{W0}, v{W0}, v{W0+2}")
    e(f"v_cmp_ne_u32 vcc, 1, v{W0}")
    e(f"s_cbranch_vccnz {lab}")
    st("p.wland")
    tr_block(e, [(wq_frag, 12, 384, ST_WQ, (0, 32, 64)), (wg_frag, 3, 96, ST_WG, (0, 32, 64)), (wu_frag, 3, 96, ST_WU, (0, 32, 64))])
    st("p.weights")

def tok2_offsets(e, TO, tmp, others_only=False):
    L = V_LANE; t, u, a, b, c = tmp, tmp + 1, tmp + 2, tmp + 3, tmp + 4
    e(f"v_and_b32 v{t}, 7, v{L}")
    e(f"s_lshl_b32 s{S_T1}, s{S_J}, 3")
    e(f"v_add_u32 v{c}, s{S_T1}, v{t}")
    if not others_only:
        e(f"v_lshlrev_b32 v{u}, 3, v{t}")
        e(f"s_lshl_b32 s{S_T0}, s{S_HQ}, 6"); e(f"s_add_u32 s{S_T0}, s{S_T0}, s{S_XC}"); e(f"v_add_u32 v{a}, s{S_T0}, v{u}")
        e(f"v_lshlrev_b32 v{u}, 6, v{t}")
        e(f"s_add_u32 s{S_T0}, s{S_T1}, s{S_XC}"); e(f"v_add_u32 v{b}, s{S_T0}, v{u}")
        e("s_mov_b32 vcc_lo, 0x00000f00"); e("s_mov_b32 vcc_hi, 0"); e(f"v_cndmask_b32 v{a}, v{a}, v{b}, vcc")
        e("s_mov_b32 vcc_lo, 0x00ff0000"); e(f"v_cndmask_b32 v{a}, v{a}, v{c}, vcc")
    else: e(f"v_mov_b32 v{a}, v{c}")
    e(f"v_bfe_u32 v{u}, v{L}, 3, 2"); e(f"v_lshlrev_b32 v{u}, 6, v{u}"); e(f"v_add_u32 v{c}, v{c}, v{u}")
    e("s_mov_b32 vcc_lo, 0"); e("s_mov_b32 vcc_hi, -1"); e(f"v_cndmask_b32 v{a}, v{a}, v{c}, vcc")
    e(f"v_lshlrev_b32 v{TO}, 7, v{a}")

def cw_load_tiles(e, o, base):
    R = NS(voffK=1, voffX=2, voffY=3)
    for T in range(CW_TILES):
        kv_soff(e, base, T)
        for s in range(3): ld_k(e, R, vr(CW_K + 12 * T + 4 * s, 4), s, ('K', T, s), o)
    for T in range(CW_TILES):
        kv_soff(e, base, T)
        for w in range(3): ld_v(e, R, vr(CW_V + 12 * T + 4 * w, 4), w, ('V', T, w), o)

def chain_wave(e, o, st, local):
    fl = "" if local else "sc1"
    abort = "L_abort"
    R = NS(vlds=V_L16, voffK=1, voffX=2, voffY=3, sel=V_SEL, qA=32, D=44, sc=56, tmp=57, vpw=62, acc=32, A=44, pp=52, vpp=63, vm=60, vl=61, vlt=59)
    instance_offsets(e, [0, 1], pub_live=[2], q_live=[0, 1, 2])
    stage_Q(e, fl, R3_REG['P'])
    stage_GU(e, fl, R2_REG['P'] * RG - 1024, with_stats=False)
    st("p.pub")
    emit_resets(e, fl)
    st("reset")
    tr_block(e, [(wo_frag, 5, 160, ST_WO, (0, 32, 64, 96, 128, 160)), (wd_frag, 5, 160, ST_WD, (0, 32))])
    GA = CW_K
    e(f"v_and_b32 v{V_T}, 31, v{V_LANE}"); e(f"v_lshlrev_b32 v{V_T}, 4, v{V_T}")
    selmask(e, W0 + 40, V_T, rows_mask([0, 1], 24))
    sr = list(range(10, 18))
    for k, reg in enumerate((4, 5, 6, R2_REG['P'])):
        e(f"s_add_u32 s{sr[2*k]}, s{S_RGRP}, {reg*RG}"); e(f"s_add_u32 s{sr[2*k+1]}, s{sr[2*k]}, 4096")
    loads = []
    for row in range(3):
        loads += [(GA + 32 * row + 4 * k, V_R, sr[2*row + (k >= 4)], (k % 4) * 1024) for k in range(8)]
    loads += [(W0 + 32, V_ML, sr[0], 0), (W0 + 36, V_ML, sr[2], 0)]
    loads += [(W0 + 4 * k, W0 + 40, sr[6 + (k >= 4)], (k % 4) * 1024) for k in range(8)]
    poll(e, o, loads, abort, sleep=o.p_sleep)
    token_store(e, TOK2, 0)
    st("p.gather")
    sum_loads(e, 8, GA + 64)
    for rr in range(4): e(f"v_mov_b32 v{V_CSQ+rr}, v{GA+64+rr}")
    sum_loads(e, 8, W0)
    for rr in range(4): e(f"v_mov_b32 v{V_CSG+rr}, v{W0+rr}")
    for row in range(2):
        q_consume(e, GA + 32 * row, W0 + 32 + 4 * row, row)
    st("q1")
    def load_tiles(base): cw_load_tiles(e, o, base)
    load_tiles(S_KV0)
    instance_offsets(e, [0])
    TO, TD = W0 + 38, W0 + 36
    tok2_offsets(e, TO, W0 + 2)
    tmask = 0x00000fff if o.split_tok else (0xffffffff00ff0fff if o.direct else 0x00ff0fff)
    def first_pass():
        e.vmq.append("tok2")
        e.lg_all()
        st("pro_done")
        e("s_barrier")
        if "stopA" in o.exp: e("s_branch L_done")
        def kw(T):
            if T >= 0: e.vm_wait(('K', T, 2))
        def vw(T, w): e.vm_wait(('V', T, w))
        attn_pass(e, R, CW_TILES, 0, Kf, Vf, S_PB, 0, k_wait=kw, v_wait=vw)
    Kf = lambda T, s: vr(CW_K + 12 * T + 4 * s, 4)
    Vf = lambda T, w: vr(CW_V + 12 * T + 4 * w, 4)
    token_gather(e, o, TOK2, TO, tmask, sleep=o.t_sleep, dst=TD, between=first_pass)
    e("s_mov_b64 exec, -1")
    st("p.tok2g")
    e("s_barrier")
    st("bar2")
    parts = [PART + 1536 * w for w in range(4)]
    combine_publish(e, fl, parts, ML, R1_REG[0])
    st("c0.cmb")
    sv = o.preR; o.preR = sv + o.preR0
    hop_R1(e, o, R1_REG[0], 0, abort)
    o.preR = sv
    chain(e, o, fl, 0, [0], abort, st)
    st("chain0")
    e("s_barrier")
    attn_pass(e, R, CW_TILES, 0, Kf, Vf, S_PB, 32)
    e("s_barrier")
    parts_early = [PART] + [LDS_SW * s + 48 * 1024 for s in range(3)]
    combine_publish(e, fl, parts_early, ML + 32, R1_REG['1a'])
    load_tiles(S_KV1)
    instance_offsets(e, [0, 1])
    hop_R1(e, o, R1_REG['1a'], 0, abort)
    e.vmq = []
    attn_pass(e, R, CW_TILES, 1, Kf, Vf, S_PB, 0)
    e("s_barrier")
    st("bar6")
    combine_publish(e, fl, parts, ML, R1_REG['1b'])
    st("c1.cmb")
    hop_R1(e, o, R1_REG['1b'], 1, abort)
    chain(e, o, fl, 1, [0, 1], abort, st)
    st("chain1")
    e("s_barrier")
    attn_pass(e, R, CW_TILES, 1, Kf, Vf, S_PB, 0)
    instance_offsets(e, [1])
    e("s_barrier")
    st("bar8")
    combine_publish(e, fl, parts, ML, R1_REG[2])
    st("c2.cmb")
    hop_R1(e, o, R1_REG[2], 1, abort)
    chain(e, o, fl, 2, [1], abort, st)
    st("chain2")
    e("s_branch L_done")

def chain_wave_setup(e, o, st):
    L = V_LANE
    if o.prio: e(f"s_setprio {o.prio}")
    lane_id(e, L)
    e(f"v_mov_b32 v{V_OOB}, 0x{OOB:08x}")
    e(f"s_lshl_b32 s{S_RGRP}, s{S_H}, 13"); e(f"s_lshl_b32 s{S_T0}, s{S_J}, 10"); e(f"s_add_u32 s{S_ROWN}, s{S_RGRP}, s{S_T0}")
    e(f"s_lshl_b32 s{S_LGRP}, s{S_XC}, 3"); e(f"s_add_u32 s{S_LGRP}, s{S_LGRP}, s{S_J}"); e(f"s_lshl_b32 s{S_LGRP}, s{S_LGRP}, 12")
    e(f"s_lshl_b32 s{S_T0}, s{S_HQ}, 10"); e(f"s_add_u32 s{S_LOWN}, s{S_LGRP}, s{S_T0}")
    e(f"s_lshl_b32 s{S_GGRP}, s{S_J}, 13"); e(f"s_lshl_b32 s{S_T0}, s{S_XC}, 10"); e(f"s_add_u32 s{S_GOWN}, s{S_GGRP}, s{S_T0}")
    late_common(e)
    if "nocw" in o.exp:
        e("s_barrier")
        st("bar1x")
        e("s_branch L_done")
    e(f"v_lshlrev_b32 v{V_L16}, 4, v{L}")
    selmask(e, V_R, V_L16, mask64(range(49)))
    e(f"s_load_dword s{S_TAG}, s[{S_WS}:{S_WS+1}], {EPOCH_OFF}")
    emit_resets_P(e)
    e(f"s_getreg_b32 s{S_T2}, hwreg(HW_REG_XCC_ID)"); e(f"s_and_b32 s{S_T2}, s{S_T2}, 0xf")
    make_srd(e, SRD_T, S_X, 2560)
    e(f"v_and_b32 v{V_T}, 31, v{L}"); e(f"v_lshlrev_b32 v{V_T}, 3, v{V_T}")
    e(f"v_lshrrev_b32 v{V_T+1}, 5, v{L}"); e(f"v_mul_u32_u24 v{V_T+1}, 1280, v{V_T+1}"); e(f"v_add_u32 v{V_T}, v{V_T}, v{V_T+1}")
    selmask(e, V_T, V_T, rows_mask([0, 1], 20))
    e(f"s_mul_i32 s{S_T0}, s{S_J}, 160")
    e.vm(f"buffer_load_dwordx2 {vr(V_XR,2)}, v{V_T}, s[{SRD_T}:{SRD_T+3}], s{S_T0} offen", "x")
    e(f"s_add_u32 s{S_KV1}, s{S_KV0}, {BATCH_STRIDE}")
    R = NS(voffK=1, voffX=2, voffY=3, sel=V_SEL)
    attn_selectors(e, R, L, W0)
    n, g, x = W0, W0 + 1, W0 + 2
    e(f"v_mov_b32 v{W0+3}, v{V_L16}"); selmask(e, V_L16, W0 + 3, mask64(range(48)), other=0)
    e(f"v_and_b32 v{n}, 15, v{L}"); e(f"v_lshrrev_b32 v{g}, 4, v{L}")
    e(f"v_min_u32 v{x}, 1, v{n}")
    e(f"v_mul_u32_u24 v{V_BO}, 384, v{x}"); e(f"v_lshl_add_u32 v{V_BO}, v{g}, 4, v{V_BO}"); e(f"v_add_u32 v{V_BO}, {ACT_O}, v{V_BO}")
    e(f"v_lshlrev_b32 v{V_BH}, 7, v{x}"); e(f"v_lshl_add_u32 v{V_BH8}, v{g}, 3, v{V_BH}"); e(f"v_add_u32 v{V_BH8}, {ACT_H+64}, v{V_BH8}")
    e(f"v_lshl_add_u32 v{V_BH}, v{g}, 4, v{V_BH}"); e(f"v_add_u32 v{V_BH}, {ACT_H}, v{V_BH}")
    e(f"v_min_u32 v{x}, 2, v{n}")
    e(f"v_mul_u32_u24 v{V_BX}, 192, v{x}"); e(f"v_lshl_add_u32 v{V_BX8}, v{g}, 3, v{V_BX}"); e(f"v_add_u32 v{V_BX8}, {ACT_X+128}, v{V_BX8}")
    e(f"v_lshl_add_u32 v{V_BX}, v{g}, 4, v{V_BX}"); e(f"v_add_u32 v{V_BX}, {ACT_X}, v{V_BX}")
    e(f"v_subrev_u32 v{x}, 1, v{n}"); e(f"v_min_u32 v{x}, 2, v{x}")
    e(f"v_mul_u32_u24 v{V_AS}, 192, v{x}"); e(f"v_lshl_add_u32 v{V_AS8}, v{g}, 3, v{V_AS}"); e(f"v_add_u32 v{V_AS8}, {ACT_X+128}, v{V_AS8}")
    e(f"v_lshl_add_u32 v{V_AS}, v{g}, 4, v{V_AS}"); e(f"v_add_u32 v{V_AS}, {ACT_X}, v{V_AS}")
    e(f"v_lshlrev_b32 v{x}, 3, v{L}"); e(f"v_add_u32 v{x}, {SB}, v{x}"); selmask(e, V_W8, x, mask64(range(48)), other=SB+2560)
    e(f"v_and_b32 v{n}, 31, v{L}"); e(f"v_lshrrev_b32 v{g}, 5, v{L}")
    e(f"v_mul_u32_u24 v{x}, 192, v{g}"); e(f"v_lshl_add_u32 v{x}, v{n}, 3, v{x}"); e(f"v_add_u32 v{x}, {ACT_X}, v{x}")
    selmask(e, V_WX, x, rows_mask([0, 1], 20), other=DUMMY)
    e(f"v_lshlrev_b32 v{x}, 7, v{g}"); e(f"v_lshl_add_u32 v{x}, v{n}, 2, v{x}"); e(f"v_add_u32 v{x}, {ACT_H}, v{x}")
    selmask(e, V_WH, x, rows_mask([0, 1], 24), other=DUMMY)
    e(f"v_and_b32 v{x}, 7, v{L}"); e(f"v_lshlrev_b32 v{x}, 10, v{x}"); e(f"v_add_u32 v{V_ML}, 768, v{x}")
    m = mask64([16 * a + 1 for a in range(4)])
    e(f"s_mov_b32 s{S_N1}, 0x{m & 0xffffffff:08x}"); e(f"s_mov_b32 s{S_N1+1}, 0x{m >> 32:08x}")
    e("s_waitcnt lgkmcnt(0)")
    e(f"s_add_u32 s{S_TAG}, s{S_TAG}, 1")
    e.vm_all(force=True)
    token_store(e, TOK1, f"s{S_T2}")
    st("p.tok1")
    TO, TD = W0 + 38, W0 + 36
    e(f"v_lshlrev_b32 v{TO}, 10, v{L}"); e(f"s_lshl_b32 s{S_T0}, s{S_XC}, 7"); e(f"v_add_u32 v{TO}, s{S_T0}, v{TO}")
    token_gather(e, o, TOK1, TO, 0xffffffff, sleep=o.t_sleep, dst=TD, between=lambda: prologue_weights(e, o, st))
    e(f"v_cmp_ne_u32 vcc, s{S_T2}, v{TD+1}")
    e("s_mov_b64 exec, -1")
    st("p.mode")
    e("s_nop 3")
    e("s_cmp_lg_u32 vcc_lo, 0")

def late_common(e):
    make_srd(e, SRD_V, S_V, KV_BYTES); make_srd(e, SRD_WS, S_WS, WS_REC)
    e(f"s_mov_b32 s{S_C}, {lit(CSCALE)}")
    e(f"s_mov_b32 s{S_HI32}, 0"); e(f"s_mov_b32 s{S_HI32+1}, -1")
    e(f"s_mul_i32 s{S_PB}, s{S_WAVE}, 1536"); e(f"s_add_u32 s{S_PB}, s{S_PB}, {PART}")
    e(f"s_lshl_b32 s{S_MLB}, s{S_WAVE}, 3"); e(f"s_add_u32 s{S_MLB}, s{S_MLB}, {ML}")

def generate(o):
    Stamps.select = o.stampset.split(",") if o.stampset else None
    o_direct[0] = o.direct; o_direct[1] = o.direct0
    o_packed[0] = bool(o.packed)
    o_dset.clear()
    if o.packed: o_dset.update({(int(c[0]), int(c[1])) for c in o.packed.split(",")})
    if o.direct: o_dset.add((2, 1))
    if o.direct0: o_dset.add((2, 0))
    e = Emit()
    e("s_cmp_ge_u32 s2, 256"); e("s_cbranch_scc1 L_done")
    e("s_load_dwordx16 s[4:19], s[0:1], 0"); e("s_load_dwordx8 s[20:27], s[0:1], 64")
    e("v_lshrrev_b32 v1, 6, v0")
    e(f"s_and_b32 s{S_XC}, s2, 7"); e(f"s_lshr_b32 s{S_HQ}, s2, 6")
    e(f"v_readfirstlane_b32 s{S_WAVE}, v1")
    e(f"s_lshr_b32 s{S_J}, s2, 3"); e(f"s_and_b32 s{S_J}, s{S_J}, 7")
    e(f"s_lshl_b32 s{S_H}, s{S_XC}, 2"); e(f"s_add_u32 s{S_H}, s{S_H}, s{S_HQ}")
    e(f"s_mul_i32 s{S_KV0}, s{S_H}, {HEAD_STRIDE}"); e(f"s_mul_i32 s{S_T0}, s{S_J}, {CHUNK_STRIDE}"); e(f"s_add_u32 s{S_KV0}, s{S_KV0}, s{S_T0}")
    e(f"s_add_u32 s{S_T0}, s{S_WAVE}, 3"); e(f"s_and_b32 s{S_T0}, s{S_T0}, 3")
    e(f"s_mul_i32 s{S_T1}, s{S_T0}, {SW_TILES*TILE_B}"); e(f"s_add_u32 s{S_KV0}, s{S_KV0}, s{S_T1}")
    lane_id(e, 8)
    e("v_mov_b32 v14, 0"); e(f"v_mov_b32 v15, {WFLAG}"); e("v_lshl_add_u32 v15, v8, 2, v15")
    e("s_mov_b64 exec, 15")
    e("ds_write_b32 v15, v14")
    e("s_mov_b64 exec, -1")
    attn_load_offsets(e, NS(voffK=1, voffX=2, voffY=3), 8, 10)
    e("s_waitcnt lgkmcnt(0)")
    e("s_barrier")
    make_srd(e, SRD_K, S_K, KV_BYTES)
    e(f"s_cmp_eq_u32 s{S_WAVE}, 0"); e("s_cbranch_scc1 L_chain")
    st_s = Stamps(e, o.stamps); st_s("start")
    stream_wave(e, o, st_s)
    e.label("L_chain")
    e.vmq = []; e.lgq = []
    st_c = Stamps(e, o.stamps); st_c("start")
    chain_wave_setup(e, o, st_c)
    names = {}
    if o.force_global: e("s_branch L_global")
    else: e("s_cbranch_scc1 L_global")
    base_names = list(st_c.names)
    sv = (list(e.vmq), list(e.lgq))
    chain_wave(e, o, st_c, True)
    names['cw'] = list(st_c.names); names['sw'] = list(st_s.names)
    e.label("L_global")
    e.vmq, e.lgq = sv
    st_g = Stamps(e, o.stamps); st_g.names = list(base_names)
    chain_wave(e, o, st_g, False)
    e.label("L_abort")
    e.label("L_done")
    if o.stamps:
        e("s_cmp_ge_u32 s2, 256"); e("s_cbranch_scc1 L_exit")
        fl = Stamps(e, True); fl.names = names['cw']; fl.flush()
        e.label("L_exit")
    e("s_endpgm")
    return e, names

HEAD = """; Kernarg: A_x, K, V, wq, wo, B_x, W_gate, W_up, W_down, out, debug, ws (pointers)
; @launch grid=(256,1,1) block=(256,1,1) lds=%d
.amdgcn_target "amdgcn-amd-amdhsa--gfx950"
.text
.globl %s
.p2align 8
.type %s,@function
%s:
"""
FOOT = """
.section .rodata,"a"
.p2align 6
.amdhsa_kernel %s
  .amdhsa_next_free_vgpr 512
  .amdhsa_next_free_sgpr 102
  .amdhsa_accum_offset 256
  .amdhsa_group_segment_fixed_size 0
  .amdhsa_kernarg_size 96
  .amdhsa_user_sgpr_count 2
  .amdhsa_user_sgpr_kernarg_segment_ptr 1
  .amdhsa_system_sgpr_workgroup_id_x 1
  .amdhsa_float_denorm_mode_32 3
.end_amdhsa_kernel
"""
def build_text(o):
    e, names = generate(o)
    return HEAD % (LDS_TOTAL, NAME, NAME, NAME) + e.text() + "\n" + FOOT % NAME, names, e

if __name__ == "__main__":
    o = Opt()
    for a in sys.argv[2:]:
        k, v = a.split("=")
        cur = getattr(o, k)
        setattr(o, k, (v not in ("0", "False")) if isinstance(cur, bool) else type(cur)(v))
    txt, names, e = build_text(o)
    open(sys.argv[1], "w").write(txt)
    print("instructions:", e.ninst, "nops:", e.nops, names)
```

```python
import sys, struct
from types import SimpleNamespace as NS
from emit import Emit, vr

NAME = "interleave_layers__mha_block_cached__glu_gated_reglu__decode_kernel"

class Opt:
    NA = 24
    NA_BAR = 118
    NB = 8
    NB1 = 8
    go_at = "G1"
    NC = 56
    NA0 = 24
    NA0N = 0
    light = False
    pf = 0
    pf_all = False
    NF = 12
    NW = 24
    stamps = False
    poll_limit = 400000
    kvflags = "nt"
    wflags = "nt"
    stampset = ""
    p_sleep = 8
    mb_sleep = 0
    exp = ""
    t_sleep = 0
    early = False
    wb = 0
    prio = 0
    late_rst = False
    preGn = 0
    packed = "10,11"
    preF1 = 16
    preP0 = 0
    preP1 = 0
    direct0 = True
    preF0 = 16
    direct = True
    preF = 0
    look = 2
    NAe = 14
    NCe = 24
    late_b0 = True
    split_tok = True
    preR0 = 0
    preL0 = 0
    preG0 = 0
    preR = 0
    preL = 0
    preG = 6
    flag_sleep = 0
    force_global = False

KV_BYTES = 100663296
BATCH_STRIDE = 50331648
HEAD_STRIDE = 1572864
CHUNK_STRIDE = 196608
TILE_B = 3072
SW_TILES, CW_TILES = 20, 4
OOB = 0x7fff0000

LDS_SW = 51200
SB = 153600
PART = SB
ML = SB + 6144
QARR = SB + 6208
ACT_O = SB + 6976
ACT_X = SB + 7744
ACT_H = SB + 8320
DUMMY = SB + 8576
WFLAG = SB + 10208
LDS_TOTAL = 163840
ST_WQ, ST_WO, ST_WG, ST_WU, ST_WD = 0, 30720, 61440, 69120, 76800

RG = 262144
R1_REG = {0: 0, '1a': 1, '1b': 2, 2: 3}
R3_REG = {'P': 4, 0: 7, 1: 8}
R2_REG = {'P': 9, 0: 10, 1: 11, 2: 12}
L_REG = lambda inst, k: 13 + 2 * inst + k
G_OFF = lambda inst, k: 19 * RG + (2 * inst + k) * 65536
STAMP_OFF = 22 * RG
WS_REC = 24 * RG

CSCALE = (192 ** -0.5) * 1.4426950408889634
EPS = 1e-5
def f2u(x): return struct.unpack("<I", struct.pack("<f", x))[0]
def lit(x): return "0x%08x" % f2u(x)
def mask64(lanes):
    m = 0
    for l in lanes: m |= 1 << l
    return m
def set_exec(e, m):
    if m == (1 << 64) - 1: e("s_mov_b64 exec, -1"); return
    e(f"s_mov_b32 exec_lo, 0x{m & 0xffffffff:08x}")
    e(f"s_mov_b32 exec_hi, 0x{m >> 32:08x}")

S_X, S_K, S_V, S_WQ, S_WO, S_BX, S_WG, S_WU, S_WD, S_OUT, S_DBG, S_WS = 4, 6, 8, 10, 12, 14, 16, 18, 20, 22, 24, 26
S_XC, S_HQ, S_J, S_H = 28, 29, 30, 31
SRD_K, SRD_V = 32, 36
S_KV0, S_KV1, S_SOFF, S_LDSB = 40, 41, 42, 43
SRD_T = 44
SRD_WS = 48
SRD_DBG = 52
S_C = 56
S_ROWN, S_RGRP, S_LOWN, S_LGRP, S_GOWN, S_GGRP = 57, 58, 59, 60, 61, 62
S_A, S_B, S_CNT, S_T0, S_T1, S_T2 = 63, 64, 65, 66, 67, 68
S_PB = 69
S_HI32 = 70
S_MLB = 72
S_GA, S_GB = 100, 101
S_WAVE = 3
S_STAMP = 76

def make_srd(e, srd, ptr, nbytes):
    e(f"s_mov_b32 s{srd}, s{ptr}")
    e(f"s_and_b32 s{srd+1}, s{ptr+1}, 0xffff")
    e(f"s_mov_b32 s{srd+2}, {nbytes}")
    e(f"s_mov_b32 s{srd+3}, 0x20000")

class Stamps:
    select = None
    def __init__(self, e, on): self.e, self.on, self.names = e, on, []
    def __call__(self, name):
        if not self.on: return
        if Stamps.select is not None and not any(name.startswith(p) for p in Stamps.select): return
        if Stamps.select is None and "." in name: return
        n = len(self.names); assert n < 12, "too many stamps"
        self.e(f"s_memrealtime s[{S_STAMP+2*n}:{S_STAMP+2*n+1}]")
        self.e.lg_all(force=True)
        self.names.append(name)
    def rounds(self, name):
        if not self.on: return
        if Stamps.select is None or not any(name.startswith(p) for p in Stamps.select): return
        n = len(self.names); assert n < 12
        self.e(f"s_mov_b32 s{S_STAMP+2*n}, s{S_CNT}"); self.e(f"s_mov_b32 s{S_STAMP+2*n+1}, 0")
        self.names.append(name)
    def flush(self):
        if not self.on: return
        e = self.e
        e("s_mov_b64 exec, 1")
        e(f"s_lshl_b32 s{S_T0}, s2, 2"); e(f"s_add_u32 s{S_T0}, s{S_T0}, s{S_WAVE}"); e(f"s_lshl_b32 s{S_T0}, s{S_T0}, 7")
        e(f"s_add_u32 s{S_T0}, s{S_T0}, {STAMP_OFF}")
        e("v_mov_b32 v0, 0")
        for i in range(len(self.names)):
            e(f"v_mov_b32 v2, s{S_STAMP+2*i}"); e(f"v_mov_b32 v3, s{S_STAMP+2*i+1}")
            e(f"buffer_store_dwordx2 v[2:3], v0, s[{SRD_WS}:{SRD_WS+3}], s{S_T0} offen offset:{8*i}")
            e("s_waitcnt vmcnt(0)")

def lane_id(e, dst):
    e(f"v_mbcnt_lo_u32_b32 {vr(dst)}, -1, 0")
    e(f"v_mbcnt_hi_u32_b32 {vr(dst)}, -1, {vr(dst)}")

def attn_load_offsets(e, R, lane, t):
    i, g, u, w = t, t + 1, t + 2, t + 3
    e(f"v_and_b32 {vr(i)}, 15, {vr(lane)}")
    e(f"v_lshrrev_b32 {vr(g)}, 4, {vr(lane)}")
    e(f"v_and_b32 {vr(u)}, 7, {vr(i)}")
    e(f"v_lshrrev_b32 {vr(w)}, 3, {vr(i)}")
    e(f"v_mul_u32_u24 {vr(R.voffK)}, 384, {vr(u)}")
    e(f"v_lshl_add_u32 {vr(R.voffK)}, {vr(g)}, 4, {vr(R.voffK)}")
    e(f"v_lshl_add_u32 {vr(R.voffK)}, {vr(w)}, 6, {vr(R.voffK)}")
    e(f"v_mul_u32_u24 {vr(R.voffX)}, 768, {vr(g)}")
    e(f"v_mul_u32_u24 {vr(w)}, 384, {vr(w)}")
    e(f"v_add_u32 {vr(R.voffY)}, {vr(R.voffX)}, {vr(w)}")
    e(f"v_lshl_add_u32 {vr(R.voffY)}, {vr(u)}, 4, {vr(R.voffY)}")
    e(f"v_add_u32 {vr(R.voffY)}, 256, {vr(R.voffY)}")
    e(f"v_lshl_add_u32 {vr(R.voffX)}, {vr(i)}, 4, {vr(R.voffX)}")

def attn_selectors(e, R, lane, t):
    i, u, lo, hi = t, t + 1, t + 2, t + 3
    e(f"v_and_b32 {vr(i)}, 15, {vr(lane)}")
    e(f"v_lshrrev_b32 {vr(u)}, 3, {vr(i)}")
    e(f"v_mul_u32_u24 {vr(u)}, 0x202, {vr(u)}")
    e(f"v_add_u32 {vr(u)}, 0x100, {vr(u)}")
    e(f"v_or_b32 {vr(lo)}, 0x0c0c0000, {vr(u)}")
    e(f"v_lshlrev_b32 {vr(hi)}, 16, {vr(u)}")
    e(f"v_or_b32 {vr(hi)}, 0x0c0c, {vr(hi)}")
    e(f"v_and_b32 {vr(u)}, 1, {vr(i)}")
    e(f"v_cmp_eq_u32 vcc, 1, {vr(u)}")
    e(f"v_cndmask_b32 {vr(lo)}, {vr(lo)}, {vr(hi)}, vcc")
    e(f"v_bfe_u32 {vr(u)}, {vr(i)}, 1, 2")
    e(f"v_mov_b32 {vr(hi)}, 0x0c0c0c0c")
    for r in range(4):
        e(f"v_cmp_eq_u32 vcc, {r}, {vr(u)}")
        e(f"v_cndmask_b32 {vr(R.sel+r)}, {vr(hi)}, {vr(lo)}, vcc")

def allreduce_list(reg, tmp, op):
    out = [f"v_{op}_f32_dpp {vr(reg)}, {vr(reg)}, {vr(reg)} row_ror:{k} row_mask:0xf bank_mask:0xf" for k in (8, 4, 2, 1)]
    out += [f"v_mov_b32 {vr(tmp)}, {vr(reg)}", f"v_permlane16_swap_b32 {vr(reg)}, {vr(tmp)}", f"v_{op}_f32 {vr(reg)}, {vr(reg)}, {vr(tmp)}",
            f"v_mov_b32 {vr(tmp)}, {vr(reg)}", f"v_permlane32_swap_b32 {vr(reg)}, {vr(tmp)}", f"v_{op}_f32 {vr(reg)}, {vr(reg)}, {vr(tmp)}"]
    return out

def allreduce(e, reg, tmp, op):
    for k in (8, 4, 2, 1):
        e(f"v_{op}_f32_dpp {vr(reg)}, {vr(reg)}, {vr(reg)} row_ror:{k} row_mask:0xf bank_mask:0xf")
    e(f"v_mov_b32 {vr(tmp)}, {vr(reg)}")
    e(f"v_permlane16_swap_b32 {vr(reg)}, {vr(tmp)}")
    e(f"v_{op}_f32 {vr(reg)}, {vr(reg)}, {vr(tmp)}")
    e(f"v_mov_b32 {vr(tmp)}, {vr(reg)}")
    e(f"v_permlane32_swap_b32 {vr(reg)}, {vr(tmp)}")
    e(f"v_{op}_f32 {vr(reg)}, {vr(reg)}, {vr(tmp)}")

def attn_pre(e, R, ntiles):
    L = R.tmp
    lane_id(e, L)
    e(f"v_and_b32 {vr(L+1)}, 1, {vr(L)}")
    e(f"v_lshrrev_b32 {vr(L+2)}, 4, {vr(L)}")
    e(f"v_lshlrev_b32 {vr(L+2)}, 4, {vr(L+2)}")
    e(f"v_lshl_add_u32 {vr(L+1)}, {vr(L+1)}, 6, {vr(L+2)}")
    e(f"v_add_u32 {vr(L+1)}, {QARR}, {vr(L+1)}")
    e(f"v_add_u32 {vr(R.vpp)}, s{S_PB}, {vr(L+2)}")
    W = R.vpw; t = L + 2
    e(f"v_lshrrev_b32 {vr(t)}, 5, {vr(L)}"); e(f"v_lshlrev_b32 {vr(W)}, 6, {vr(t)}")
    e(f"v_bfe_u32 {vr(t)}, {vr(L)}, 1, 2"); e(f"v_lshl_add_u32 {vr(W)}, {vr(t)}, 4, {vr(W)}")
    e(f"v_bfe_u32 {vr(t)}, {vr(L)}, 3, 2"); e(f"v_lshl_add_u32 {vr(W)}, {vr(t)}, 2, {vr(W)}")
    e(f"v_and_b32 {vr(t)}, 1, {vr(L)}"); e(f"v_lshl_add_u32 {vr(W)}, {vr(t)}, 1, {vr(W)}")
    e(f"v_add_u32 {vr(W)}, s{S_PB}, {vr(W)}")
    nsc = (ntiles + 7) // 8
    for r in range(nsc):
        if (r + 1) * 8 > ntiles: e(f"v_mov_b32 {vr(R.sc+r)}, 0xff800000")

def attn_pass(e, R, ntiles, qrow, Kfrag, Vfrag, part_sreg, ml_off, k_wait=None, qk_hook=None, mid_hook=None,
              v_wait=None, pv_hook=None, stage=None, pre_done=False, mark=None, look=2):
    L = R.tmp
    if not pre_done: attn_pre(e, R, ntiles)
    for s in range(3):
        e.lg(f"ds_read_b128 {vr(R.qA+4*s,4)}, {vr(L+1)} offset:{qrow*384 + 128*s}", ("q", s))
    W = R.vpw
    nsc = (ntiles + 7) // 8
    stg = {}
    def stage_k(T):
        if T >= ntiles: return
        for s in range(3):
            f = Kfrag(T, s)
            if isinstance(f, tuple):
                reg = stage[(3 * T + s) % len(stage)]
                e.lg(f"ds_read_b128 {vr(reg,4)}, {vr(R.vlds)} offset:{f[1]}", ("k", T, s))
                stg[(T, s)] = vr(reg, 4)
    LOOK = look
    if k_wait: k_wait(-1)
    for T in range(min(LOOK, ntiles)): stage_k(T)
    e.lg_wait(("q", 2))
    def dpp_add(T):
        D = R.D + 4 * (T % 3)
        dst = vr(R.sc + (T >> 3)); rm = 1 << ((T >> 1) & 3)
        if T % 2 == 0: e(f"v_add_f32_dpp {dst}, {vr(D+1)}, {vr(D)} row_ror:8 row_mask:0x{rm:x} bank_mask:0x3")
        else:          e(f"v_add_f32_dpp {dst}, {vr(D)}, {vr(D+1)} row_ror:8 row_mask:0x{rm:x} bank_mask:0xc")
    for T in range(ntiles):
        if k_wait: k_wait(T)
        D = vr(R.D + 4 * (T % 3), 4)
        for s in range(3):
            f = Kfrag(T, s)
            if isinstance(f, tuple):
                e.lg_wait(("k", T, s)); f = stg[(T, s)]
            e(f"v_mfma_f32_16x16x32_bf16 {D}, {vr(R.qA+4*s,4)}, {f}, {'0' if s == 0 else D}")
        stage_k(T + LOOK)
        if qk_hook: qk_hook(T)
        if T >= 2: dpp_add(T - 2)
    for T in range(max(0, ntiles - 2), ntiles): dpp_add(T)
    if mark: mark("qk")
    t0, t1 = R.D, R.D + 1
    if nsc == 1: e(f"v_mov_b32 {vr(t0)}, {vr(R.sc)}")
    elif nsc == 2: e(f"v_max_f32 {vr(t0)}, {vr(R.sc)}, {vr(R.sc+1)}")
    else: e(f"v_max3_f32 {vr(t0)}, {vr(R.sc)}, {vr(R.sc+1)}, {vr(R.sc+2)}")
    allreduce(e, t0, t1, "max")
    e(f"v_mul_f32 {vr(R.vm)}, s{S_C}, {vr(t0)}")
    for r in range(nsc): e(f"v_fma_f32 {vr(R.sc+r)}, {vr(R.sc+r)}, s{S_C}, -{vr(R.vm)}")
    for r in range(nsc): e(f"v_exp_f32 {vr(R.sc+r)}, {vr(R.sc+r)}")
    for r in range(nsc): e(f"v_cvt_pk_bf16_f32 {vr(R.D+2+r)}, {vr(R.sc+r)}, {vr(R.sc+r)}")
    for r in range(nsc): e.lg(f"ds_write_b16 {vr(W)}, {vr(R.D+2+r)} offset:{128*r}", ("pw", r))
    nq = (ntiles + 3) // 4
    ppreg = lambda q: R.pp + 4 * (q % 2)
    if nsc == 1: e(f"v_mov_b32 {vr(R.vl)}, {vr(R.sc)}")
    else:
        e(f"v_add_f32 {vr(R.vl)}, {vr(R.sc)}, {vr(R.sc+1)}")
        if nsc == 3: e(f"v_add_f32 {vr(R.vl)}, {vr(R.vl)}, {vr(R.sc+2)}")
    e.lg(f"ds_read_b128 {vr(ppreg(0),4)}, {vr(R.vpp)}", ("pp", 0))
    if nq > 1: e.lg(f"ds_read_b128 {vr(ppreg(1),4)}, {vr(R.vpp)} offset:64", ("pp", 1))
    lred = allreduce_list(R.vl, R.vlt, "add")
    if ntiles < 12:
        for ins in lred: e(ins)
        lred = []
    if mid_hook: mid_hook()
    if mark: mark("sm")
    X1, X2, Y = R.acc, R.acc + 4, R.acc + 8
    def build_A(T):
        q = T >> 2
        e.lg_wait(("pp", q))
        A = R.A + 4 * (T % 2); src = vr(ppreg(q) + (T & 3))
        return [f"v_perm_b32 {vr(A+r)}, {src}, {src}, {vr(R.sel+r)}" for r in range(4)]
    for ins in build_A(0): e(ins)
    for T in range(ntiles):
        A = vr(R.A + 4 * (T % 2), 4)
        nxt = build_A(T + 1) if T + 1 < ntiles else []
        if v_wait: v_wait(T, 0)
        e(f"v_mfma_f32_16x16x32_bf16 {vr(X1,4)}, {A}, {Vfrag(T,0)}, {'0' if T == 0 else vr(X1,4)}")
        for ins in nxt[:2]: e(ins)
        if v_wait: v_wait(T, 1)
        e(f"v_mfma_f32_16x16x32_bf16 {vr(X2,4)}, {A}, {Vfrag(T,1)}, {'0' if T == 0 else vr(X2,4)}")
        for ins in nxt[2:]: e(ins)
        if v_wait: v_wait(T, 2)
        e(f"v_mfma_f32_16x16x32_bf16 {vr(Y,4)}, {A}, {Vfrag(T,2)}, {'0' if T == 0 else vr(Y,4)}")
        if (T & 3) == 2 and (T >> 2) + 2 < nq:
            q2 = (T >> 2) + 2
            e.lg(f"ds_read_b128 {vr(ppreg(q2),4)}, {vr(R.vpp)} offset:{64*q2}", ("pp", q2))
        if lred and T >= 1: e(lred.pop(0))
        if pv_hook: pv_hook(T)
    assert not lred
    if mark: mark("pv")
    p = R.pp
    lane_id(e, p)
    e(f"v_and_b32 {vr(p+1)}, 15, {vr(p)}")
    e(f"v_lshrrev_b32 {vr(p+2)}, 4, {vr(p)}")
    e(f"v_and_b32 {vr(p+3)}, 1, {vr(p+2)}")
    e(f"v_lshrrev_b32 {vr(p+2)}, 1, {vr(p+2)}")
    e(f"v_mul_u32_u24 {vr(p+2)}, 768, {vr(p+2)}")
    e(f"v_lshl_add_u32 {vr(p+2)}, {vr(p+3)}, 4, {vr(p+2)}")
    e(f"v_add_u32 {vr(p+2)}, s{part_sreg}, {vr(p+2)}")
    e(f"v_lshl_add_u32 {vr(p+4)}, {vr(p+1)}, 5, {vr(p+2)}")
    e(f"v_and_b32 {vr(p+1)}, 7, {vr(p+1)}")
    e(f"v_lshl_add_u32 {vr(p+5)}, {vr(p+1)}, 5, {vr(p+2)}")
    e(f"v_mov_b32 {vr(p+6)}, s{S_MLB}")
    e(f"v_mov_b32 {vr(R.A)}, {vr(R.vm)}"); e(f"v_mov_b32 {vr(R.A+1)}, {vr(R.vl)}")
    for r in range(4):
        e(f"v_cndmask_b32 {vr(X1+r)}, {vr(X1+r)}, {vr(X2+r)}, s[{S_HI32}:{S_HI32+1}]")
    e.lg(f"ds_write_b128 {vr(p+4)}, {vr(X1,4)}", "px")
    set_exec(e, 0xFF00FF0000FF00FF)
    e.lg(f"ds_write_b128 {vr(p+5)}, {vr(Y,4)} offset:512", "py")
    e("s_mov_b64 exec, 1")
    e.lg(f"ds_write_b64 {vr(p+6)}, {vr(R.A,2)} offset:{ml_off}", "pm")
    e("s_mov_b64 exec, -1")
    e.lg_all()

def kv_soff(e, base_sreg, T):
    e(f"s_add_u32 s{S_SOFF}, s{base_sreg}, {T*TILE_B}")
def ld_k(e, R, dst, s, tag, o):
    e.vm(f"buffer_load_dwordx4 {dst}, {vr(R.voffK)}, s[{SRD_K}:{SRD_K+3}], s{S_SOFF} offen offset:{128*s} {o.kvflags}", tag)
def ld_v(e, R, dst, w, tag, o):
    vo = R.voffY if w == 2 else R.voffX
    off = 384 if w == 1 else 0
    e.vm(f"buffer_load_dwordx4 {dst}, {vr(vo)}, s[{SRD_V}:{SRD_V+3}], s{S_SOFF} offen offset:{off} {o.kvflags}", tag)
def dma_k(e, R, slot, s, tag, o):
    e(f"s_add_u32 m0, s{S_LDSB}, {slot*1024 - 128*s + 0}") if slot*1024 - 128*s >= 0 else e(f"s_sub_u32 m0, s{S_LDSB}, {128*s - slot*1024}")
    e.vm(f"buffer_load_dwordx4 {vr(R.voffK)}, s[{SRD_K}:{SRD_K+3}], s{S_SOFF} offen offset:{128*s} {o.kvflags} lds", tag)
def dma_v(e, R, slot, w, tag, o):
    vo = R.voffY if w == 2 else R.voffX
    off = 384 if w == 1 else 0
    e(f"s_add_u32 m0, s{S_LDSB}, {slot*1024 - off}")
    e.vm(f"buffer_load_dwordx4 {vr(vo)}, s[{SRD_V}:{SRD_V+3}], s{S_SOFF} offen offset:{off} {o.kvflags} lds", tag)

def slot_reg(k):
    assert 0 <= k < 118
    return f"a[{4*k}:{4*k+3}]" if k < 64 else f"v[{40+4*(k-64)}:{40+4*(k-64)+3}]"

def weight_dma(e, o):
    L, t, u = 8, 20, 21
    def dma_block(ptr, nbytes, lanes_per_row, magic, shift, nlanes, row_stride, rows_per_instr, ninstr, so, lds0, bar=False):
        make_srd(e, SRD_T, ptr, nbytes)
        e(f"v_mul_u32_u24 v{t}, {magic}, v{L}"); e(f"v_lshrrev_b32 v{t}, {shift}, v{t}")
        e(f"v_mul_u32_u24 v{u}, {lanes_per_row}, v{t}"); e(f"v_sub_u32 v{u}, v{L}, v{u}")
        e(f"s_mov_b32 s{S_T1}, {row_stride}")
        e(f"v_mul_lo_u32 v{t}, v{t}, s{S_T1}"); e(f"v_lshl_add_u32 v{t}, v{u}, 4, v{t}")
        rreg, rmul, creg, cmul = so
        e(f"s_mul_i32 s{S_SOFF}, s{rreg}, {rmul*row_stride}")
        e(f"s_mul_i32 s{S_T1}, s{creg}, {cmul}"); e(f"s_add_u32 s{S_SOFF}, s{S_SOFF}, s{S_T1}")
        set_exec(e, mask64(range(nlanes)))
        for i in range(ninstr):
            e(f"s_mov_b32 m0, {lds0 + i*nlanes*16}")
            if i: e(f"s_add_u32 s{S_SOFF}, s{S_SOFF}, {rows_per_instr*row_stride}")
            else: e("s_nop 0")
            e.vm_depth(o.NW - 1)
            e.vm(f"buffer_load_dwordx4 v{t}, s[{SRD_T}:{SRD_T+3}], s{S_SOFF} offen {o.wflags} lds", "w")
        e("s_mov_b64 exec, -1")
    l2, l3, end = e.newlabel("w2"), e.newlabel("w3"), e.newlabel("wend")
    e(f"s_cmp_eq_u32 s{S_WAVE}, 2"); e(f"s_cbranch_scc1 {l2}")
    e(f"s_cmp_eq_u32 s{S_WAVE}, 3"); e(f"s_cbranch_scc1 {l3}")
    base_q = list(e.vmq)
    dma_block(S_WQ, 7864320, 24, 43, 10, 48, 12288, 2, 40, (S_J, 80, S_H, 384), ST_WQ, bar=True)
    e(f"s_branch {end}")
    e.label(l2); e.vmq = list(base_q)
    dma_block(S_WO, 7864320, 10, 103, 10, 60, 1280, 6, 32, (S_H, 192, S_J, 160), ST_WO, bar=True)
    e(f"s_branch {end}")
    e.label(l3); e.vmq = list(base_q)
    dma_block(S_WG, 1966080, 6, 43, 8, 60, 3072, 10, 8, (S_J, 80, S_H, 96), ST_WG, bar=True)
    dma_block(S_WU, 1966080, 6, 43, 8, 60, 3072, 10, 8, (S_J, 80, S_H, 96), ST_WU)
    dma_block(S_WD, 1966080, 10, 103, 10, 60, 1280, 6, 8, (S_H, 48, S_J, 160), ST_WD)
    e.label(end)
    e.vmq = ["w"] * o.NW

S_XPAR = 15
def par_depth(e, n):
    lab = e.newlabel("par")
    e(f"s_cmp_lg_u32 s{S_XPAR}, 0"); e(f"s_cbranch_scc1 {lab}")
    e(f"s_waitcnt vmcnt({n-1})")
    e.label(lab)

def emit_wb(e):
    skip = e.newlabel("nowb")
    e(f"s_cmp_lg_u32 s{S_WAVE}, 1"); e(f"s_cbranch_scc1 {skip}")
    e("s_cmp_ge_u32 s2, 8"); e(f"s_cbranch_scc1 {skip}")
    e("buffer_wbl2 sc1")
    e("s_waitcnt vmcnt(0)")
    e.label(skip)

def stream_wave(e, o, st):
    R = NS(vlds=0, voffK=1, voffX=2, voffY=3, sel=4, qA=8, D=20, sc=32, tmp=20, vpw=35, acc=8, A=20, pp=28, vpp=36, vm=38, vl=39, vlt=37)
    loads = []
    for T in range(SW_TILES):
        for s in range(3): loads.append(('K', T, s))
    for T in range(SW_TILES):
        for w in range(3): loads.append(('V', T, w))
    def k0slot(T, s): return 3 * T + s
    def v0slot(T, w): return 60 + 3 * T + w
    cur = [None]
    def issue0(item):
        kind, T, x = item
        if cur[0] != (kind, T, 0):
            kv_soff(e, S_KV0, T); cur[0] = (kind, T, 0)
        if kind == 'K': ld_k(e, R, slot_reg(k0slot(T, x)), x, ('K0', T, x), o)
        else:
            sl = v0slot(T, x)
            if sl < 118: ld_v(e, R, slot_reg(sl), x, ('V0', T, x), o)
            else: dma_v(e, R, 48 + sl - 118, x, ('V0', T, x), o)
    for item in loads[:o.NF]: issue0(item)
    late_common(e)
    e(f"s_add_u32 s{S_KV1}, s{S_KV0}, {BATCH_STRIDE}")
    e(f"s_sub_u32 s{S_T0}, s{S_WAVE}, 1"); e(f"s_mul_i32 s{S_LDSB}, s{S_T0}, {LDS_SW}")
    if o.NAe or o.NCe:
        e(f"s_getreg_b32 s{S_T0}, hwreg(HW_REG_XCC_ID)"); e(f"s_and_b32 s{S_XPAR}, s{S_T0}, 1")
    nf = list(e.vmq)
    if "now" not in o.exp: weight_dma(e, o)
    e.vmq = nf + ["w"] * o.NW if len(nf) + o.NW <= 60 else ["w"] * 60
    cur[0] = None
    st("s.wiss")
    e(f"v_lshlrev_b32 {vr(R.vlds)}, 4, v8")
    e(f"v_add_u32 {vr(R.vlds)}, s{S_LDSB}, {vr(R.vlds)}")
    attn_selectors(e, R, 8, 10)
    for idx, item in enumerate(loads[:o.NA_BAR]):
        if idx < o.NF: continue
        na = o.NA0 if idx < o.NA0N else o.NA
        e.vm_depth(na - 1)
        if o.NAe: par_depth(e, o.NAe)
        if idx == o.NF + max(o.NA, o.NA0):
            e(f"s_lshl_b32 s{S_T0}, s{S_WAVE}, 2"); e(f"s_add_u32 s{S_T0}, s{S_T0}, {WFLAG-4}")
            e(f"v_mov_b32 v20, s{S_T0}"); e("v_mov_b32 v21, 1")
            e.lg("ds_write_b32 v20, v21", "wf")
            st("s.wland")
        if idx == 60: st("s.k0iss")
        if idx == 90: st("s.v30")
        issue0(item)
    st("A_issued")
    attn_pre(e, R, SW_TILES)
    e("s_barrier")
    st("bar1")
    if "nocw" in o.exp or "cw" in o.exp or "stopA" in o.exp:
        e.vm_all(); st("s.alland"); st.flush(); e("s_endpgm")
    pend = [('0', it) for it in loads[o.NA_BAR:]]
    for T in range(16):
        for s in range(3): pend.append(('1', T, s))
    cur1 = [None]
    def issue_pend():
        it = pend.pop(0)
        if it[0] == '0': cur1[0] = None; issue0(it[1])
        else:
            _, T, s = it
            if cur1[0] != T:
                kv_soff(e, S_KV1, T); cur1[0] = T; cur[0] = None
            dma_k(e, R, 3 * T + s, s, ('K1', T, s), o)
    while pend[0][0] == '0': issue_pend()
    def Kf0(T, s): return slot_reg(k0slot(T, s))
    def Vf0(T, w):
        sl = v0slot(T, w)
        if sl < 118: return slot_reg(sl)
        return "v[32:35]" if w == 1 else "v[28:31]"
    def k_wait_A(T):
        if T == -1: e.vm_wait(('K0', SW_TILES - 1, 2))
    def pv_hook_A(T):
        left = SW_TILES - 1 - T
        target = max(o.NB1, min(o.NA, 3 * left + o.NB1)) if o.NB1 else 0
        if T == SW_TILES - 2:
            e.vm_wait(('V0', SW_TILES - 1, 2))
            e.lg(f"ds_read_b128 v[32:35], {vr(R.vlds)} offset:{48*1024}", ("vo", 1))
            e.lg(f"ds_read_b128 v[28:31], {vr(R.vlds)} offset:{49*1024}", ("vo", 2))
            target = o.NB1
        while pend and len(e.vmq) < target: issue_pend()
    def vwait_A(T, w):
        e.vm_wait(('V0', T, w))
        if T == SW_TILES - 1 and w >= 1: e.lg_wait(("vo", w))
    attn_pass(e, R, SW_TILES, 0, Kf0, Vf0, S_PB, 0, k_wait=k_wait_A, v_wait=vwait_A, pv_hook=pv_hook_A, pre_done=True)
    st("A_done")
    e("s_barrier")
    if o.NB1 == o.NB:
        while pend:
            e.vm_depth(o.NB - 1)
            issue_pend()
    else:
        items = list(pend); pend.clear()
        q0 = list(e.vmq); c0 = cur1[0]
        fast = {i: e.newlabel("fastB") for i in range(len(items))}
        done = e.newlabel("doneB")
        e(f"v_mov_b32 v20, {WFLAG + 12}")
        def emit_item(it, force_soff):
            _, T, s = it
            if cur1[0] != T or force_soff:
                kv_soff(e, S_KV1, T); cur1[0] = T
            dma_k(e, R, 3 * T + s, s, ('K1', T, s), o)
        marks = [i for i, it in enumerate(items) if it[2] == 0]
        if o.NB1 == 0:
            spin = e.newlabel("spinB")
            e(f"s_mov_b32 s{S_CNT}, {o.poll_limit*8}")
            e.label(spin)
            e(f"s_sub_u32 s{S_CNT}, s{S_CNT}, 1"); e(f"s_cbranch_scc1 {fast[0]}")
            e.lg("ds_read_b32 v21, v20", "go"); e.lg_all()
            e(f"v_readfirstlane_b32 s{S_T0}, v21")
            e(f"s_cmp_lg_u32 s{S_T0}, 0"); e(f"s_cbranch_scc1 {fast[0]}")
            e("s_sleep 2"); e(f"s_branch {spin}")
        for i, it in enumerate(items if o.NB1 else []):
            if i in marks:
                e.lg("ds_read_b32 v21, v20", "go"); e.lg_all()
                e(f"v_readfirstlane_b32 s{S_T0}, v21")
                e(f"s_cmp_lg_u32 s{S_T0}, 0"); e(f"s_cbranch_scc1 {fast[i]}")
            e.vm_depth(o.NB1 - 1)
            emit_item(it, False)
        e(f"s_branch {done}")
        e.vmq = list(q0); cur1[0] = c0
        for i, it in enumerate(items):
            if i in marks: e.label(fast[i])
            e.vm_depth(o.NB - 1)
            emit_item(it, i in marks)
        e.label(done)
    st("B_issued")
    attn_pre(e, R, SW_TILES)
    e("s_barrier")
    st("bar3")
    pend1 = []
    for T in range(16, SW_TILES):
        for s in range(3): pend1.append(('K', T, s))
    for T in range(SW_TILES):
        for w in range(3): pend1.append(('V', T, w))
    slot_of = {it: i for i, it in enumerate(pend1)}
    freed = [0]
    issued1 = [0]
    cur2 = [None]
    def issue1():
        it = pend1[issued1[0]]; kind, T, x = it
        if cur2[0] != (kind, T):
            kv_soff(e, S_KV1, T); cur2[0] = (kind, T)
        e.vm_depth(o.NC - 1)
        if o.NCe: par_depth(e, o.NCe)
        if kind == 'K': ld_k(e, R, slot_reg(slot_of[it]), x, ('K1', T, x), o)
        else: ld_v(e, R, slot_reg(slot_of[it]), x, ('V1', T, x), o)
        issued1[0] += 1
    def refill():
        while issued1[0] < len(pend1) and issued1[0] < freed[0]: issue1()
    def qk_hook_C1(T):
        freed[0] = 3 * (T + 1); refill()
    def pv_hook_C1(T):
        freed[0] = min(118, 60 + 3 * (T + 1)); refill(); ovf_hook_C(T)
    def ovf_hook_C(T):
        if T == SW_TILES - 2:
            e.lg(f"ds_read_b128 v[32:35], {vr(R.vlds)} offset:{48*1024}", ("vo", 1))
            e.lg(f"ds_read_b128 v[28:31], {vr(R.vlds)} offset:{49*1024}", ("vo", 2))
    def vwait_C1(T, w):
        if T == SW_TILES - 1 and w >= 1: e.lg_wait(("vo", w))
    e(f"s_add_u32 s{S_T2}, s{S_LDSB}, {48*1024}")
    attn_pass(e, R, SW_TILES, 0, Kf0, Vf0, S_T2, 32, qk_hook=qk_hook_C1, v_wait=vwait_C1, pv_hook=pv_hook_C1, pre_done=True)
    refill()
    assert issued1[0] == len(pend1)
    st("C1_done")
    e("s_barrier")
    stage = [40 + 4 * (k - 64) for k in range(100, 112)]
    def Kf1(T, s):
        if T < 16: return ('lds', (3 * T + s) * 1024)
        return slot_reg(slot_of[('K', T, s)])
    def Vf1(T, w): return slot_reg(slot_of[('V', T, w)])
    def k_wait_C2(T):
        if T == -1: e.vm_wait(('K1', 15, 2))
        elif T >= 16: e.vm_wait(('K1', T, 2))
    def vwait_C2(T, w): e.vm_wait(('V1', T, w))
    attn_pass(e, R, SW_TILES, 1, Kf1, Vf1, S_PB, 0, k_wait=k_wait_C2, v_wait=vwait_C2, stage=stage, look=o.look)
    st("C2_done")
    e("s_barrier")
    if o.wb == 2: emit_wb(e)
    attn_pre(e, R, SW_TILES)
    e("s_barrier")
    st("bar7")
    attn_pass(e, R, SW_TILES, 1, Kf1, Vf1, S_PB, 0, stage=stage, pre_done=True, mark=lambda n: st("e." + n), look=o.look)
    st("E_done")
    e("s_barrier")
    if o.wb == 1: emit_wb(e)
    st.flush()
    e("s_endpgm")

V_LANE, V_LG, V_R, V_PL, V_PG, V_PQ = 0, 4, 5, 6, 7, 8
V_BO, V_BX, V_BX8, V_BH, V_BH8, V_AS, V_AS8 = 9, 10, 11, 12, 13, 14, 15
V_XR, V_CSQ, V_CSG = 16, 20, 24
V_W8, V_WX, V_WH, V_ML = 28, 29, 30, 31
W0 = 32
V_SEL, V_R2, V_ST2, V_PS, V_PSQ, V_L16 = 75, 79, 80, 81, 82, 83
V_T = 84
V_GL, V_LL = 72, 73
V_DA, V_DB = 72, 73
CW_K, CW_V = 86, 134
S_N1 = 74

_off3 = (2, 6, 0)
def wq_frag(t, s): return ("a", 10 * t + _off3[s])
def wo_frag(t, s): return ("a", 120 + 24 * t + 4 * s)
def wd_frag(t, s):
    if s == 0: return ("a", 240 + 4 * t) if t < 4 else ("v", 182)
    return ("v", 186 + 2 * t)
def wg_frag(t, s): return ("v", 196 + 10 * t + _off3[s])
def wu_frag(t, s): return ("v", 226 + 10 * t + _off3[s])
def win(fr): return f"{fr[0]}[{fr[1]}:{fr[1]+3}]"

V_OOB = 74
def selmask(e, dst, val, mask, other=None):
    e(f"s_mov_b32 vcc_lo, 0x{mask & 0xffffffff:08x}"); e(f"s_mov_b32 vcc_hi, 0x{mask >> 32:08x}")
    if other is None: e(f"v_cndmask_b32 {vr(dst)}, v{V_OOB}, {vr(val)}, vcc")
    else:
        assert dst != val
        e(f"v_mov_b32 {vr(dst)}, 0x{other:08x}")
        e(f"v_cndmask_b32 {vr(dst)}, {vr(dst)}, {vr(val)}, vcc")

def rows_mask(live, n): return mask64([32 * r + g for r in live for g in range(n)])
def cols_mask(live, alist=range(4)): return mask64([16 * a + n for a in alist for n in live])

def instance_offsets(e, live, pub_live=None, q_live=None):
    pub_live = live if pub_live is None else pub_live
    q_live = pub_live if q_live is None else q_live
    t, u = V_T, V_T + 1
    e(f"v_and_b32 {vr(t)}, 31, v{V_LANE}"); e(f"v_lshlrev_b32 {vr(t)}, 4, {vr(t)}")
    e(f"v_lshrrev_b32 {vr(u)}, 5, v{V_LANE}"); e(f"v_lshl_add_u32 {vr(t)}, {vr(u)}, 9, {vr(t)}")
    selmask(e, V_LG, t, rows_mask(live, 20))
    selmask(e, V_R2, t, rows_mask(live, 24))
    if o_packed[0]:
        row = live[-1]
        e(f"v_lshrrev_b32 {vr(t)}, 4, v{V_LANE}"); e(f"v_and_b32 {vr(u)}, 15, v{V_LANE}")
        e(f"v_lshlrev_b32 v{V_DA}, 10, {vr(t)}"); e(f"v_lshl_add_u32 v{V_DA}, {vr(u)}, 4, v{V_DA}"); e(f"v_add_u32 v{V_DA}, {512*row}, v{V_DA}")
        e(f"v_lshlrev_b32 v{V_DB}, 15, {vr(t)}"); e(f"v_bfe_u32 {vr(u)}, v{V_LANE}, 2, 2"); e(f"v_lshl_add_u32 v{V_DB}, {vr(u)}, 10, v{V_DB}")
        e(f"v_and_b32 {vr(u)}, 3, v{V_LANE}"); e(f"v_lshl_add_u32 v{V_DB}, {vr(u)}, 4, v{V_DB}"); e(f"v_add_u32 v{V_DB}, {512*row + 256}, v{V_DB}")
        e(f"v_lshrrev_b32 {vr(u)}, 5, v{V_LANE}")
    else:
        e(f"v_and_b32 v{V_GL}, 7, v{V_LANE}"); e(f"v_lshlrev_b32 v{V_GL}, 10, v{V_GL}"); e(f"v_add_u32 v{V_GL}, {512*live[-1] + 19*16}, v{V_GL}")
        e(f"v_and_b32 v{V_LL}, 3, v{V_LANE}"); e(f"v_lshlrev_b32 v{V_LL}, 10, v{V_LL}"); e(f"v_add_u32 v{V_LL}, {512*live[-1] + 19*16}, v{V_LL}")
    e(f"v_and_b32 {vr(t)}, 7, v{V_LANE}"); e(f"v_lshlrev_b32 {vr(t)}, 10, {vr(t)}")
    e(f"v_lshl_add_u32 {vr(t)}, {vr(u)}, 9, {vr(t)}"); e(f"v_add_u32 {vr(t)}, 384, {vr(t)}")
    selmask(e, V_ST2, t, rows_mask(live, 32))
    e(f"v_and_b32 {vr(t)}, 15, v{V_LANE}"); e(f"v_lshrrev_b32 {vr(u)}, 4, v{V_LANE}")
    e(f"v_lshlrev_b32 v{V_PL}, 9, {vr(t)}")
    e(f"v_lshl_add_u32 v{V_PG}, {vr(u)}, 5, v{V_PL}")
    e(f"v_add_u32 v{V_PS}, 384, v{V_PL}")
    e(f"v_lshl_add_u32 v{V_PL}, {vr(u)}, 4, v{V_PL}")
    e(f"v_lshlrev_b32 v{V_PQ}, 18, {vr(t)}")
    e(f"v_add_u32 v{V_PSQ}, 768, v{V_PQ}")
    e(f"v_lshl_add_u32 v{V_PQ}, {vr(u)}, 4, v{V_PQ}")
    cm = cols_mask(pub_live)
    e(f"s_mov_b32 vcc_lo, 0x{cm & 0xffffffff:08x}"); e(f"s_mov_b32 vcc_hi, 0x{cm >> 32:08x}")
    for r in (V_PL, V_PG): e(f"v_cndmask_b32 v{r}, v{V_OOB}, v{r}, vcc")
    selmask(e, V_PS, V_PS, cols_mask(pub_live, [0]))
    selmask(e, V_PQ, V_PQ, cols_mask(q_live))
    selmask(e, V_PSQ, V_PSQ, cols_mask(q_live, [0]))

def soffs(e, off_sreg, const, two=True):
    e(f"s_add_u32 s{S_A}, s{off_sreg}, {const}")
    if two: e(f"s_add_u32 s{S_B}, s{S_A}, 4096")

def poll(e, o, loads, abort, sleep=0):
    lab = e.newlabel("poll")
    e(f"s_mov_b32 s{S_CNT}, {o.poll_limit}")
    e.label(lab)
    for d, vo, s, imm in loads:
        e(f"buffer_load_dwordx4 {vr(d,4)}, v{vo}, s[{SRD_WS}:{SRD_WS+3}], s{s} offen offset:{imm} sc1")
    e(f"s_sub_u32 s{S_CNT}, s{S_CNT}, 1")
    e(f"s_cbranch_scc1 {abort}")
    e("s_waitcnt vmcnt(0)")
    vals = []
    for d, _, _, _ in loads: vals += [d + 1, d + 3]
    t = V_T
    e(f"v_max3_u32 v{t}, v{vals[0]}, v{vals[1]}, v{vals[2]}")
    i = 3
    while i < len(vals):
        if i + 1 < len(vals): e(f"v_max3_u32 v{t}, v{t}, v{vals[i]}, v{vals[i+1]}"); i += 2
        else: e(f"v_max_u32 v{t}, v{t}, v{vals[i]}"); i += 1
    e(f"v_cmp_eq_u32 vcc, -1, v{t}")
    if sleep:
        ok = e.newlabel("pok"); e(f"s_cbranch_vccz {ok}"); e(f"s_sleep {sleep}"); e(f"s_branch {lab}"); e.label(ok)
    else: e(f"s_cbranch_vccnz {lab}")
    e.vmq = []

def gather8(e, o, vo, abort, extra=None, n=8, base=W0):
    loads = [(base + 4 * k, vo, S_A if k < 4 else S_B, (k % 4) * 1024) for k in range(n)]
    if extra: loads.append((base + 4 * n, extra, S_A, 0))
    poll(e, o, loads, abort)

def sum_loads(e, n, base=W0):
    step = 1
    while step < n:
        for k in range(0, n, 2 * step):
            if k + step < n:
                a, b = base + 4 * k, base + 4 * (k + step)
                e(f"v_pk_add_f32 {vr(a,2)}, {vr(a,2)}, {vr(b,2)}")
                e(f"v_pk_add_f32 {vr(a+2,2)}, {vr(a+2,2)}, {vr(b+2,2)}")
        step *= 2

def dpp8(e, reg, op):
    for m in ("quad_perm:[1,0,3,2]", "quad_perm:[2,3,0,1]", "row_half_mirror"):
        e(f"v_{op}_f32_dpp v{reg}, v{reg}, v{reg} {m} row_mask:0xf bank_mask:0xf")
def dpp8x2(e, r0, r1, op):
    for m in ("quad_perm:[1,0,3,2]", "quad_perm:[2,3,0,1]", "row_half_mirror"):
        e(f"v_{op}_f32_dpp v{r0}, v{r0}, v{r0} {m} row_mask:0xf bank_mask:0xf")
        e(f"v_{op}_f32_dpp v{r1}, v{r1}, v{r1} {m} row_mask:0xf bank_mask:0xf")

def ln_from_stats(e, s1, s2, mean, rstd):
    e(f"v_mul_f32 v{mean}, {lit(1/640)}, v{s1}")
    e(f"v_mul_f32 v{s2}, {lit(1/640)}, v{s2}")
    e(f"v_fma_f32 v{s2}, -v{mean}, v{mean}, v{s2}")
    e(f"v_max_f32 v{s2}, 0, v{s2}")
    e(f"v_add_f32 v{s2}, {lit(EPS)}, v{s2}")
    e(f"v_rsq_f32 v{rstd}, v{s2}")

def pub(e, D, vo, sreg, imm, fl, tag):
    e.vm(f"buffer_store_dwordx4 {vr(D,4)}, v{vo}, s[{SRD_WS}:{SRD_WS+3}], s{sreg} offen offset:{imm} {fl}", tag)

def run_tiles(e, tiles, accs, store, btags=None, twait=None):
    n = len(accs); lag = n - 1
    for i, (tid, steps) in enumerate(tiles):
        D = vr(accs[i % n], 4)
        if twait and tid in twait: e.lg_wait(twait[tid])
        for s, (A, B) in enumerate(steps):
            if i == 0 and btags: e.lg_wait(btags[s])
            e(f"v_mfma_f32_16x16x32_bf16 {D}, {A}, {B}, {'0' if s == 0 else D}")
        if i >= lag: store(tiles[i - lag][0], accs[(i - lag) % n])
    for i in range(max(0, len(tiles) - lag), len(tiles)): store(tiles[i][0], accs[i % n])

def read_bx(e, B):
    e.lg(f"ds_read_b128 {vr(B,4)}, v{V_BX}", "b0"); e.lg(f"ds_read_b128 {vr(B+4,4)}, v{V_BX} offset:64", "b1")
    e.lg(f"ds_read_b64 {vr(B+8,2)}, v{V_BX8}", "b2")
    e(f"v_mov_b32 v{B+10}, 0"); e(f"v_mov_b32 v{B+11}, 0")
def read_as(e, A):
    e.lg(f"ds_read_b128 {vr(A,4)}, v{V_AS}", "a0"); e.lg(f"ds_read_b128 {vr(A+4,4)}, v{V_AS} offset:64", "a1")
    e.lg(f"ds_read_b64 {vr(A+8,2)}, v{V_AS8}", "a2")
    e(f"v_mov_b32 v{A+10}, 0"); e(f"v_mov_b32 v{A+11}, 0")

def stage_Q(e, fl, reg_index, shadow=None):
    B, A = W0 + 8, W0 + 20
    read_bx(e, B); read_as(e, A)
    e(f"s_add_u32 s{S_A}, s{S_ROWN}, {reg_index*RG}")
    if shadow: shadow()
    tiles = [(t, [(win(wq_frag(t, s)), vr(B + 4 * s, 4)) for s in range(3)]) for t in range(12)]
    tiles.insert(1, (12, [(vr(A + 4 * s, 4), vr(B + 4 * s, 4)) for s in range(3)]))
    SD = W0 + 4
    def store(t, D): pub(e, D, V_PQ, S_A, 64 * t, fl, ("pq", t))
    first, stats, rest = tiles[0], tiles[1], tiles[2:]
    run_tiles(e, [first], [W0 + 32, W0 + 36], lambda t, D: None, btags=["b0", "b1", "b2"])
    e.lg_wait("a2")
    for s, (Aop, Bop) in enumerate(stats[1]):
        e(f"v_mfma_f32_16x16x32_bf16 {vr(SD,4)}, {Aop}, {Bop}, {'0' if s == 0 else vr(SD,4)}")
    accs = [W0 + 36, W0, W0 + 20, W0 + 32]
    pend = [(0, W0 + 32)]
    for i, (t, steps) in enumerate(rest):
        D = accs[i % 4]
        for s, (Aop, Bop) in enumerate(steps):
            e(f"v_mfma_f32_16x16x32_bf16 {vr(D,4)}, {Aop}, {Bop}, {'0' if s == 0 else vr(D,4)}")
        pend.append((t, D))
        if i >= 2: store(*pend.pop(0))
    e(f"v_cndmask_b32 v{SD+1}, v{SD+1}, v{SD+2}, s[{S_N1}:{S_N1+1}]")
    while pend: store(*pend.pop(0))
    pub(e, SD, V_PSQ, S_A, 0, fl, "pqs")

def stage_GU(e, fl, const, with_stats=True, shadow=None):
    B, A = W0 + 8, W0 + 20
    read_bx(e, B)
    if with_stats: read_as(e, A)
    e(f"s_add_u32 s{S_A}, s{S_ROWN}, {const}" if const >= 0 else f"s_sub_u32 s{S_A}, s{S_ROWN}, {-const}")
    if shadow: shadow()
    def tile(d, f, waits=None):
        d = vr(d, 4)
        for s in range(3):
            if waits: e.lg_wait(waits[s])
            e(f"v_mfma_f32_16x16x32_bf16 {d}, {f(s)}, {vr(B+4*s,4)}, {'0' if s == 0 else d}")
    def store(t, G, U):
        e(f"v_swap_b32 v{G+2}, v{U}"); e(f"v_swap_b32 v{G+3}, v{U+1}")
        pub(e, G, V_PG, S_A, 128 * t, fl, ("pg", t, 0))
        pub(e, U, V_PG, S_A, 128 * t + 16, fl, ("pg", t, 1))
    g = lambda t: (lambda s: win(wg_frag(t, s)))
    u = lambda t: (lambda s: win(wu_frag(t, s)))
    P0, P1, S = (W0 + 32, W0 + 36), (W0 + 20, W0 + 24), W0
    tile(P0[0], g(0), waits=["b0", "b1", "b2"]); tile(P0[1], u(0))
    if with_stats:
        e.lg_wait("a2")
        tile(S, lambda s: vr(A + 4 * s, 4))
    tile(P1[0], g(1)); tile(P1[1], u(1))
    store(0, *P0)
    if with_stats: e(f"v_cndmask_b32 v{S+1}, v{S+1}, v{S+2}, s[{S_N1}:{S_N1+1}]")
    tile(P0[0], g(2)); tile(P0[1], u(2))
    store(1, *P1)
    store(2, *P0)
    if with_stats: pub(e, S, V_PS, S_A, 0, fl, "pgs")

def stage_WO(e, fl, region, shadow=None):
    B = W0
    for s in range(6): e.lg(f"ds_read_b128 {vr(B+4*s,4)}, v{V_BO} offset:{64*s}", ("o", s))
    e(f"s_add_u32 s{S_A}, s{S_LOWN}, {region*RG}")
    if shadow: shadow()
    tiles = [(t, [(win(wo_frag(t, s)), vr(B+4*s,4)) for s in range(6)]) for t in range(5)]
    run_tiles(e, tiles, [W0 + 24, W0 + 28, W0 + 32], lambda t, D: pub(e, D, V_PL, S_A, 64 * t, fl, ("po", t)), btags=[("o", s) for s in range(6)])

def stage_D(e, fl, region):
    B = W0
    e.lg(f"ds_read_b128 {vr(B,4)}, v{V_BH}", "h0"); e.lg(f"ds_read_b64 {vr(B+4,2)}, v{V_BH8}", "h1")
    e(f"v_mov_b32 v{B+6}, 0"); e(f"v_mov_b32 v{B+7}, 0")
    e(f"s_add_u32 s{S_A}, s{S_LOWN}, {region*RG}")
    tiles = [(t, [(win(wd_frag(t, 0)), vr(B,4)), (win(wd_frag(t, 1)), vr(B+4,4))]) for t in range(5)]
    run_tiles(e, tiles, [W0 + 8 + 4 * i for i in range(5)], lambda t, D: pub(e, D, V_PL, S_A, 64 * t, fl, ("pd", t)), btags=["h0", "h1"])

def fast_gather(e, o, loads, body, abort, pre=0, early=False):
    n = len(loads); t = V_T
    lab = e.newlabel("fpoll")
    e(f"s_mov_b32 s{S_CNT}, {o.poll_limit}")
    if pre: e(f"s_sleep {pre}")
    e.label(lab)
    for d, vo, s, imm in loads:
        e(f"buffer_load_dwordx4 {vr(d,4)}, v{vo}, s[{SRD_WS}:{SRD_WS+3}], s{s} offen offset:{imm} sc1")
    e(f"s_sub_u32 s{S_CNT}, s{S_CNT}, 1")
    e(f"s_cbranch_scc1 {abort}")
    first = [True]
    if early:
        d = loads[0][0]
        e(f"s_waitcnt vmcnt({n-1})")
        e(f"v_max_u32 v{t}, v{d+1}, v{d+3}")
        e(f"v_cmp_eq_u32 vcc, -1, v{t}")
        e(f"s_cbranch_vccnz {lab}")
        first[0] = False
    def wait(k): e(f"s_waitcnt vmcnt({n-1-k})")
    def chk(k):
        d = loads[k][0]
        if first[0]: e(f"v_max_u32 v{t}, v{d+1}, v{d+3}"); first[0] = False
        else: e(f"v_max3_u32 v{t}, v{t}, v{d+1}, v{d+3}")
    body(wait, chk)
    e(f"v_cmp_eq_u32 vcc, -1, v{t}")
    e(f"s_cbranch_vccnz {lab}")
    e.vmq = []

def padd(e, a, b, neg=False):
    m = " neg_lo:[0,1] neg_hi:[0,1]" if neg else ""
    e(f"v_pk_add_f32 {vr(a,2)}, {vr(a,2)}, {vr(b,2)}{m}"); e(f"v_pk_add_f32 {vr(a+2,2)}, {vr(a+2,2)}, {vr(b+2,2)}{m}")

def g_soffs(e, off_sreg, const, two=True):
    e(f"s_add_u32 s{S_GA}, s{off_sreg}, {const}")
    if two: e(f"s_add_u32 s{S_GB}, s{S_GA}, 4096")
def g_loads(vo, n=8, base=W0): return [(base + 4 * k, vo, S_GA if k < 4 else S_GB, (k % 4) * 1024) for k in range(n)]

def hop_LG(e, o, inst, k, abort, final_only=False):
    skip = e.newlabel("notleader")
    e(f"s_cmp_lg_u32 s{S_HQ}, 0"); e(f"s_cbranch_scc1 {skip}")
    g_soffs(e, S_LGRP, L_REG(inst, k) * RG, two=False)
    e(f"s_add_u32 s{S_A}, s{S_GOWN}, {G_OFF(inst,k)}")
    X = W0 + 32
    off = 1 if o.early else 0
    def body4(wait, chk):
        wait(off + 1); chk(off); chk(off + 1); padd(e, W0, W0 + 4)
        wait(off + 2); chk(off + 2); padd(e, W0, W0 + 8)
        wait(off + 3); chk(off + 3); padd(e, W0, W0 + 12)
    fast_gather(e, o, ([(X, V_LL, S_GA, 0)] if o.early else []) + g_loads(V_LG, 4), body4, abort, pre=o.preL, early=o.early)
    e(f"buffer_store_dwordx4 {vr(W0,4)}, v{V_LG}, s[{SRD_WS}:{SRD_WS+3}], s{S_A} offen sc1")
    if o.preGn:
        join = e.newlabel("lgjoin")
        e(f"s_branch {join}")
        e.label(skip)
        if not final_only: e(f"s_sleep {o.preGn}")
        e.label(join)
    else: e.label(skip)
    if final_only:
        e(f"s_cmp_lg_u32 s{S_H}, 0"); e(f"s_cbranch_scc1 L_done")
    g_soffs(e, S_GGRP, G_OFF(inst, k))
    e.vmq = []
    def body8(wait, chk):
        c = lambda k: chk(off + k)
        w = lambda k: wait(off + k)
        w(1); c(0); c(1); padd(e, W0, V_XR); padd(e, W0, W0 + 4)
        w(3); c(2); c(3); padd(e, W0 + 8, W0 + 12); padd(e, W0, W0 + 8)
        w(5); c(4); c(5); padd(e, W0 + 16, W0 + 20); padd(e, W0, W0 + 16)
        w(6); c(6); padd(e, W0, W0 + 24)
        w(7); c(7); padd(e, W0, W0 + 28)
    fast_gather(e, o, ([(X, V_GL, S_GA, 0)] if o.early else []) + g_loads(V_LG, 8), body8, abort, pre=o.preG, early=o.early)

def hop_packed(e, o, abort, inst, k, pre):
    if inst == 2 and k == 1:
        e(f"s_cmp_lg_u32 s{S_H}, 0"); e(f"s_cbranch_scc1 L_done")
    e(f"s_lshl_b32 s{S_T0}, s{S_J}, 12"); e(f"s_add_u32 s{S_T0}, s{S_T0}, {L_REG(inst,k)*RG}")
    for x in range(8): e(f"s_add_u32 s{SW8[x]}, s{S_T0}, {32768*x}")
    B0 = W0 + 32
    loads = [(B0, V_DB, SW8[0], 0), (B0 + 4, V_DB, SW8[4], 0)] + [(W0 + 4 * x, V_DA, SW8[x], 0) for x in range(8)]
    T = V_T + 1
    def xrow(a):
        for sw in ("v_permlane16_swap_b32", "v_permlane32_swap_b32"):
            for r in range(4):
                t = B0 + 4 + r
                e(f"v_mov_b32 v{t}, v{a+r}")
            for r in range(4): e(f"{sw} v{a+r}, v{B0+4+r}")
            for h in range(2): e(f"v_pk_add_f32 {vr(a+2*h,2)}, {vr(a+2*h,2)}, {vr(B0+4+2*h,2)}")
    def body(wait, chk):
        wait(1); chk(0); chk(1); padd(e, B0, B0 + 4)
        for m in ("row_ror:4", "row_ror:8"):
            for r in range(4): e(f"v_add_f32_dpp v{B0+r}, v{B0+r}, v{B0+r} {m} row_mask:0xf bank_mask:0xf")
        wait(3); chk(2); chk(3); padd(e, W0, W0 + 4)
        xrow(B0)
        wait(5); chk(4); chk(5); padd(e, W0 + 8, W0 + 12); padd(e, W0, W0 + 8)
        wait(7); chk(6); chk(7); padd(e, W0 + 16, W0 + 20); padd(e, W0, W0 + 16)
        wait(8); chk(8); padd(e, W0, W0 + 24)
        wait(9); chk(9); padd(e, W0, W0 + 28)
    fast_gather(e, o, loads, body, abort, pre=pre)
    xrow(W0)
    e("s_mov_b32 vcc_lo, 0xffff0000"); e("s_mov_b32 vcc_hi, 0xffff0000")
    for r in range(4): e(f"v_cndmask_b32 v{W0+r}, v{W0+r}, v{B0+r}, vcc")
    m = rows_mask([LIVE[inst][-1]], 20)
    e(f"s_mov_b32 vcc_lo, 0x{m & 0xffffffff:08x}"); e(f"s_mov_b32 vcc_hi, 0x{m >> 32:08x}")
    for r in range(4): e(f"v_cndmask_b32 v{W0+r}, 0, v{W0+r}, vcc")
    padd(e, W0, V_XR)

def hop_final(e, o, abort, k=1):
    if k == 1:
        e(f"s_cmp_lg_u32 s{S_H}, 0"); e(f"s_cbranch_scc1 L_done")
    e(f"s_lshl_b32 s{S_T0}, s{S_J}, 12"); e(f"s_add_u32 s{S_T0}, s{S_T0}, {L_REG(2,k)*RG}")
    for x in range(8): e(f"s_add_u32 s{SW8[x]}, s{S_T0}, {32768*x}")
    dst = [W0 + 4 * k for k in range(8)] + [CW_K + 4 * k for k in range(24)]
    loads = [(dst[4 * x + q], V_LG, SW8[x], 1024 * q) for x in range(8) for q in range(4)]
    A0, A1 = loads[0][0], loads[1][0]
    def body(wait, chk):
        wait(1); chk(0); chk(1); padd(e, A0, V_XR)
        for k in range(2, 32):
            if k % 2 == 0: wait(min(k + 1, 31)); chk(k); chk(k + 1)
            padd(e, A0 if k % 2 == 0 else A1, loads[k][0])
        padd(e, A0, A1)
    fast_gather(e, o, loads, body, abort, pre=o.preF if k == 1 else o.preF0)

def residual_update(e):
    e(f"v_cvt_pk_bf16_f32 v{W0+4}, v{W0}, v{W0+1}")
    e(f"v_cvt_pk_bf16_f32 v{W0+5}, v{W0+2}, v{W0+3}")
    e.lg(f"ds_write_b64 v{V_WX}, {vr(W0+4,2)}", "wx")
def residual_unpack(e, p):
    e(f"v_lshlrev_b32 v{V_XR}, 16, v{p}"); e(f"v_and_b32 v{V_XR+1}, 0xffff0000, v{p}")
    e(f"v_lshlrev_b32 v{V_XR+2}, 16, v{p+1}"); e(f"v_and_b32 v{V_XR+3}, 0xffff0000, v{p+1}")

def store_out(e, row, only=True):
    skip = e.newlabel("noout")
    e(f"s_cmp_lg_u32 s{S_H}, 0"); e(f"s_cbranch_scc1 {skip}")
    make_srd(e, SRD_T, S_OUT, 2560)
    e(f"v_and_b32 v{V_T}, 31, v{V_LANE}"); e(f"v_lshlrev_b32 v{V_T}, 3, v{V_T}")
    e(f"s_mul_i32 s{S_T0}, s{S_J}, 160"); e(f"s_add_u32 s{S_T0}, s{S_T0}, {row*1280}")
    selmask(e, V_T, V_T, rows_mask([row], 20))
    e(f"buffer_store_dwordx2 {vr(W0+4,2)}, v{V_T}, s[{SRD_T}:{SRD_T+3}], s{S_T0} offen")
    e.label(skip)

def combine_publish(e, fl, parts, mlbase, region):
    T = W0
    e(f"v_mov_b32 v{V_T}, {mlbase}")
    e.lg(f"ds_read_b128 {vr(T,4)}, v{V_T}", "ml0"); e.lg(f"ds_read_b128 {vr(T+4,4)}, v{V_T} offset:16", "ml1")
    P = T + 8
    cur = None
    for w in range(4):
        if cur is None or not (0 <= parts[w] - cur < 60000):
            e(f"v_add_u32 v{V_T+1}, {parts[w]}, v{V_L16}"); cur = parts[w]
        for par in range(2):
            e.lg(f"ds_read_b128 {vr(P+8*w+4*par,4)}, v{V_T+1} offset:{parts[w] - cur + 768*par}", ("p", w, par))
    e(f"s_add_u32 s{S_A}, s{S_ROWN}, {region*RG}")
    e.lg_wait("ml1")
    m = [T, T + 2, T + 4, T + 6]; l = [T + 1, T + 3, T + 5, T + 7]
    M, Ls = V_T, V_T + 1
    e(f"v_max3_f32 v{M}, v{m[0]}, v{m[1]}, v{m[2]}"); e(f"v_max_f32 v{M}, v{M}, v{m[3]}")
    for w in range(4): e(f"v_sub_f32 v{m[w]}, v{m[w]}, v{M}")
    for w in range(4): e(f"v_exp_f32 v{m[w]}, v{m[w]}")
    e(f"v_mul_f32 v{Ls}, v{m[0]}, v{l[0]}")
    for w in range(1, 4): e(f"v_fma_f32 v{Ls}, v{m[w]}, v{l[w]}, v{Ls}")
    for w in range(4):
        e.lg_wait(("p", w, 1))
        a = P + 8 * w
        e(f"v_pk_add_f32 {vr(a,2)}, {vr(a,2)}, {vr(a+4,2)}"); e(f"v_pk_add_f32 {vr(a+2,2)}, {vr(a+2,2)}, {vr(a+6,2)}")
        for r in range(4):
            if w == 0: e(f"v_mul_f32 v{P+r}, v{m[0]}, v{P+r}")
            else: e(f"v_fmac_f32 v{P+r}, v{m[w]}, v{a+r}")
    e(f"s_mov_b32 vcc_lo, 0"); e(f"s_mov_b32 vcc_hi, 0x00010000")
    e(f"v_cndmask_b32 v{P}, v{P}, v{M}, vcc"); e(f"v_cndmask_b32 v{P+1}, v{P+1}, v{Ls}, vcc")
    pub(e, P, V_R, S_A, 0, fl, "r1")

SW8 = [4, 6, 8, 10, 12, 16, 18, 20]
def hop_R1(e, o, region, row, abort):
    g_soffs(e, S_RGRP, region * RG)
    X = W0 + 32
    M, wv = X + 2, X + 3
    acc = W0 + 36
    loads = [(X, V_ML, S_GA, 0)] + g_loads(V_R)
    def body(wait, chk):
        if not o.early: wait(0); chk(0)
        e(f"v_mov_b32 v{M}, v{X}")
        dpp8(e, M, "max")
        e(f"v_sub_f32 v{wv}, v{X}, v{M}"); e(f"v_exp_f32 v{wv}, v{wv}")
        wait(4); chk(1); chk(2)
        e(f"v_mul_f32 v{X+1}, v{wv}, v{X+1}")
        chk(3); chk(4)
        e(f"v_add_f32_dpp v{X+1}, v{X+1}, v{X+1} quad_perm:[1,0,3,2] row_mask:0xf bank_mask:0xf")
        wait(8); chk(5); chk(6)
        e(f"v_add_f32_dpp v{X+1}, v{X+1}, v{X+1} quad_perm:[2,3,0,1] row_mask:0xf bank_mask:0xf")
        chk(7); chk(8)
        e(f"v_add_f32_dpp v{X+1}, v{X+1}, v{X+1} row_half_mirror row_mask:0xf bank_mask:0xf")
        e(f"v_rcp_f32 v{X+1}, v{X+1}")
        e(f"v_mul_f32 v{wv}, v{wv}, v{X+1}")
        for k in range(8): e(f"v_readlane_b32 s{SW8[k]}, v{wv}, {k}")
        for k in range(8):
            for h in range(2):
                a, m = acc + 2 * h, W0 + 4 * k + 2 * h
                sp = f"s[{SW8[k]}:{SW8[k]+1}]"
                if k == 0: e(f"v_pk_mul_f32 {vr(a,2)}, {vr(m,2)}, {sp} op_sel_hi:[1,0]")
                else: e(f"v_pk_fma_f32 {vr(a,2)}, {vr(m,2)}, {sp}, {vr(a,2)} op_sel_hi:[1,0,1]")
    fast_gather(e, o, loads, body, abort, pre=o.preR, early=o.early)
    e(f"v_cvt_pk_bf16_f32 v{acc}, v{acc}, v{acc+1}"); e(f"v_cvt_pk_bf16_f32 v{acc+1}, v{acc+2}, v{acc+3}")
    e.lg(f"ds_write_b64 v{V_W8}, {vr(acc,2)} offset:{ACT_O - SB + 384*row}", "wo")

def ln_gather(e, o, vo, vstat, cs, abort):
    X = W0 + 32; mean, rstd = X + 2, X + 3; T = W0 + 36
    loads = [(X, vstat, S_GA, 0)] + g_loads(vo)
    q = lambda r, m: e(f"v_add_f32_dpp v{r}, v{r}, v{r} {m} row_mask:0xf bank_mask:0xf")
    def body(wait, chk):
        if not o.early: wait(0); chk(0)
        q(X, "quad_perm:[1,0,3,2]"); q(X + 1, "quad_perm:[1,0,3,2]")
        wait(2); chk(1)
        q(X, "quad_perm:[2,3,0,1]"); q(X + 1, "quad_perm:[2,3,0,1]")
        chk(2)
        q(X, "row_half_mirror"); q(X + 1, "row_half_mirror")
        padd(e, W0, W0 + 4)
        e(f"v_mul_f32 v{mean}, {lit(1/640)}, v{X}"); e(f"v_mul_f32 v{X+1}, {lit(1/640)}, v{X+1}")
        wait(4); chk(3); chk(4)
        e(f"v_fma_f32 v{X+1}, -v{mean}, v{mean}, v{X+1}")
        padd(e, W0 + 8, W0 + 12)
        e(f"v_max_f32 v{X+1}, 0, v{X+1}"); e(f"v_add_f32 v{X+1}, {lit(EPS)}, v{X+1}")
        padd(e, W0, W0 + 8)
        e(f"v_rsq_f32 v{rstd}, v{X+1}")
        wait(6); chk(5); chk(6)
        e(f"v_pk_mul_f32 {vr(T,2)}, {vr(cs,2)}, {vr(mean,2)} op_sel_hi:[1,0]"); e(f"v_pk_mul_f32 {vr(T+2,2)}, {vr(cs+2,2)}, {vr(mean,2)} op_sel_hi:[1,0]")
        padd(e, W0 + 16, W0 + 20); padd(e, W0, T, neg=True); padd(e, W0, W0 + 16)
        wait(7); chk(7); padd(e, W0, W0 + 24)
        wait(8); chk(8); padd(e, W0, W0 + 28)
    fast_gather(e, o, loads, body, abort, pre=o.preR, early=o.early)
    e(f"v_pk_mul_f32 {vr(W0,2)}, {vr(W0,2)}, {vr(mean,2)} op_sel:[0,1] op_sel_hi:[1,1]")
    e(f"v_pk_mul_f32 {vr(W0+2,2)}, {vr(W0+2,2)}, {vr(mean,2)} op_sel:[0,1] op_sel_hi:[1,1]")

def hop_R2(e, o, inst, abort):
    ln_gather(e, o, V_R2, V_ST2, V_CSG, abort)
    e(f"v_max_f32 v{W0}, 0, v{W0}"); e(f"v_max_f32 v{W0+1}, 0, v{W0+1}")
    e(f"v_pk_mul_f32 {vr(W0,2)}, {vr(W0,2)}, {vr(W0+2,2)}")
    e(f"v_cvt_pk_bf16_f32 v{W0}, v{W0}, v{W0+1}")
    e.lg(f"ds_write_b32 v{V_WH}, v{W0}", "wh")

def q_consume(e, base, X, row):
    dpp8x2(e, X, X + 1, "add")
    sum_loads(e, 8, base)
    mean, rstd = X + 2, X + 3
    ln_from_stats(e, X, X + 1, mean, rstd)
    for r in range(4): e(f"v_fma_f32 v{base+r}, -v{mean}, v{V_CSQ+r}, v{base+r}")
    for r in range(4): e(f"v_mul_f32 v{base+r}, v{rstd}, v{base+r}")
    e(f"v_cvt_pk_bf16_f32 v{base}, v{base}, v{base+1}"); e(f"v_cvt_pk_bf16_f32 v{base+1}, v{base+2}, v{base+3}")
    e.lg(f"ds_write_b64 v{V_W8}, {vr(base,2)} offset:{QARR - SB + 384*row}", "wq")

def hop_R3(e, o, region, row, abort):
    ln_gather(e, o, V_R, V_ML, V_CSQ, abort)
    e(f"v_cvt_pk_bf16_f32 v{W0}, v{W0}, v{W0+1}"); e(f"v_cvt_pk_bf16_f32 v{W0+1}, v{W0+2}, v{W0+3}")
    e.lg(f"ds_write_b64 v{V_W8}, {vr(W0,2)} offset:{QARR - SB + 384*row}", "wq")

def go_flag(e):
    e(f"v_mov_b32 v{V_T}, {WFLAG + 12}"); e(f"v_mov_b32 v{V_T+1}, 1")
    e.lg(f"ds_write_b32 v{V_T}, v{V_T+1}", "go")

def chain(e, o, fl, inst, live, abort, st):
    c = f"c{inst}."
    if inst == 0 and o.NB1 != o.NB and o.go_at == "R1": go_flag(e)
    if inst == 0: o._save = (o.preR, o.preL, o.preG); o.preL, o.preG = o.preL + o.preL0, o.preG + o.preG0
    st.rounds(f"n{inst}.R1")
    st(c + "R1")
    pk = o.packed.split(",") if o.packed else []
    if inst == 0 and o.split_tok:
        assert "00" not in pk
        TO, TD = W0 + 38, W0 + 36
        omask = 0xffffffff00ff0000
        def shadow():
            tok2_offsets(e, TO, W0 + 24, others_only=True)
            e(f"s_mov_b32 s{S_B}, {TOK2}")
            set_exec(e, omask)
            e.vm(f"buffer_load_dwordx2 {vr(TD,2)}, v{TO}, s[{SRD_WS}:{SRD_WS+3}], s{S_B} offen sc1", "tok2b")
            e("s_mov_b64 exec, -1")
        stage_WO(e, fl, L_REG(inst, 0), shadow=shadow)
        ok, lab = e.newlabel("tok2ok"), e.newlabel("tok2re")
        e.vm_wait("tok2b")
        set_exec(e, omask)
        e(f"v_cmp_ne_u32 vcc, s{S_TAG}, v{TD}")
        e(f"s_cbranch_vccz {ok}")
        e(f"s_mov_b32 s{S_CNT}, {o.poll_limit}")
        e.label(lab)
        e(f"buffer_load_dwordx2 {vr(TD,2)}, v{TO}, s[{SRD_WS}:{SRD_WS+3}], s{S_B} offen sc1")
        e(f"s_sub_u32 s{S_CNT}, s{S_CNT}, 1"); e(f"s_cbranch_scc1 {abort}")
        e("s_waitcnt vmcnt(0)")
        e(f"v_cmp_ne_u32 vcc, s{S_TAG}, v{TD}")
        e(f"s_cbranch_vccnz {lab}")
        e.label(ok)
        e("s_mov_b64 exec, -1")
        st(c + "WO")
        hop_LG(e, o, inst, 0, abort)
    elif f"{inst}0" in pk:
        stage_WO(e, "sc1", L_REG(inst, 0))
        st(c + "WO")
        hop_packed(e, o, abort, inst, 0, o.preP0 if inst == 0 else o.preF0)
    elif inst == 2 and o.direct0:
        stage_WO(e, "sc1", L_REG(inst, 0))
        st(c + "WO")
        hop_final(e, o, abort, k=0)
    else:
        stage_WO(e, fl, L_REG(inst, 0))
        st(c + "WO")
        hop_LG(e, o, inst, 0, abort)
    if inst == 0 and o.NB1 != o.NB and o.go_at == "G1": go_flag(e)
    if inst == 0: o.preR, o.preL, o.preG = o._save
    st.rounds(f"n{inst}.G1")
    st(c + "G1")
    residual_update(e)
    def sh_gu():
        residual_unpack(e, W0 + 4); g_soffs(e, S_RGRP, R2_REG[inst] * RG)
    stage_GU(e, fl, R2_REG[inst] * RG, shadow=sh_gu)
    st(c + "GU")
    hop_R2(e, o, inst, abort)
    st.rounds(f"n{inst}.R2")
    st(c + "R2")
    if f"{inst}1" in pk:
        stage_D(e, "sc1", L_REG(inst, 1))
        st(c + "D")
        hop_packed(e, o, abort, inst, 1, o.preP1 if inst == 0 else (o.preF if inst == 2 else o.preF1))
    elif inst == 2 and o.direct:
        stage_D(e, "sc1", L_REG(inst, 1))
        st(c + "D")
        hop_final(e, o, abort)
    else:
        stage_D(e, fl, L_REG(inst, 1))
        st(c + "D")
        hop_LG(e, o, inst, 1, abort, final_only=(inst == 2))
    st.rounds(f"n{inst}.G2")
    st(c + "G2")
    if inst == 2:
        e(f"v_cvt_pk_bf16_f32 v{W0+4}, v{W0}, v{W0+1}"); e(f"v_cvt_pk_bf16_f32 v{W0+5}, v{W0+2}, v{W0+3}")
        for r in LIVE[2]: store_out(e, r, only=len(LIVE[2]) == 1)
        e("s_cmp_lg_u32 s2, 0"); e("s_cbranch_scc1 L_done")
        e(f"v_mov_b32 v{V_T}, s{S_TAG}"); e(f"v_mov_b32 v{V_T+1}, {EPOCH_OFF}")
        e("s_mov_b64 exec, 1")
        e(f"buffer_store_dword v{V_T}, v{V_T+1}, s[{SRD_WS}:{SRD_WS+3}], 0 offen sc1")
        e("s_mov_b64 exec, -1")
        return
    residual_update(e)
    qrow = 0 if inst == 0 else 1
    def sh_q():
        residual_unpack(e, W0 + 4); g_soffs(e, S_RGRP, R3_REG[inst] * RG)
        if inst == 1 and 0 in LIVE[1]:
            store_out(e, 0)
            cm = cols_mask([1]); e(f"s_mov_b32 vcc_lo, 0x{cm & 0xffffffff:08x}"); e(f"s_mov_b32 vcc_hi, 0x{cm >> 32:08x}")
            e(f"v_cndmask_b32 v{V_PQ}, v{V_OOB}, v{V_PQ}, vcc"); e(f"v_cndmask_b32 v{V_PSQ}, v{V_OOB}, v{V_PSQ}, vcc")
    stage_Q(e, fl, R3_REG[inst] - qrow, shadow=sh_q)
    st(c + "Q")
    hop_R3(e, o, R3_REG[inst], qrow, abort)
    e.lg_all()
    st.rounds(f"n{inst}.R3")
    st(c + "R3")

TOK1 = 21 * RG
TOK2 = TOK1 + 32768
EPOCH_OFF = 896
S_TAG = 73

LIVE = {0: [0], 1: [0, 1], 2: [1]}
o_direct = [True, False]
o_packed = [False]
o_dset = set()
def emit_resets_P(e):
    e(f"v_mov_b32 v{W0}, -1"); e(f"v_mov_b32 v{W0+1}, -1"); e(f"v_mov_b32 v{W0+2}, -1"); e(f"v_mov_b32 v{W0+3}, -1")
    for r in [4, 5, 6]:
        e(f"s_add_u32 s{S_A}, s{S_ROWN}, {r*RG}")
        e.vm(f"buffer_store_dwordx4 {vr(W0,4)}, v{V_R}, s[{SRD_WS}:{SRD_WS+3}], s{S_A} offen sc1", "rstp")
    e(f"v_lshlrev_b32 v{V_T}, 4, v{V_LANE}")
    selmask(e, W0 + 4, V_T, rows_mask([0], 24))
    e(f"s_add_u32 s{S_A}, s{S_ROWN}, {R2_REG['P']*RG}")
    e.vm(f"buffer_store_dwordx4 {vr(W0,4)}, v{W0+4}, s[{SRD_WS}:{SRD_WS+3}], s{S_A} offen sc1", "rstp")

def emit_resets(e, f):
    e(f"v_mov_b32 v{W0}, -1"); e(f"v_mov_b32 v{W0+1}, -1"); e(f"v_mov_b32 v{W0+2}, -1"); e(f"v_mov_b32 v{W0+3}, -1")
    def reset(vo, sreg, const):
        e(f"s_add_u32 s{S_A}, s{sreg}, {const}")
        e.vm(f"buffer_store_dwordx4 {vr(W0,4)}, v{vo}, s[{SRD_WS}:{SRD_WS+3}], s{S_A} offen {f}", "rst")
    e(f"v_and_b32 v{V_T}, 31, v{V_LANE}"); e(f"v_lshlrev_b32 v{V_T}, 4, v{V_T}")
    e(f"v_lshrrev_b32 v{V_T+1}, 5, v{V_LANE}"); e(f"v_lshl_add_u32 v{V_T}, v{V_T+1}, 9, v{V_T}")
    liv = dict(LIVE); liv['P'] = [0]
    skip = e.newlabel("norstg")
    e(f"s_cmp_lg_u32 s{S_HQ}, 0"); e(f"s_cbranch_scc1 {skip}")
    for inst in (0, 1, 2):
        selmask(e, W0 + 4, V_T, rows_mask(liv[inst], 20))
        for k in range(2):
            e(f"s_add_u32 s{S_A}, s{S_GOWN}, {G_OFF(inst,k)}")
            e(f"buffer_store_dwordx4 {vr(W0,4)}, v{W0+4}, s[{SRD_WS}:{SRD_WS+3}], s{S_A} offen sc1")
    e.label(skip)
    for r in [7, 8] + list(R1_REG.values()): reset(V_R, S_ROWN, r * RG)
    for inst in (0, 1, 2):
        selmask(e, W0 + 4, V_T, rows_mask(liv[inst], 25))
        reset(W0 + 4, S_ROWN, R2_REG[inst] * RG)
        selmask(e, W0 + 4, V_T, rows_mask(liv[inst], 20))
        for k in range(2):
            if (inst, k) in o_dset:
                e(f"s_add_u32 s{S_A}, s{S_LOWN}, {L_REG(inst, k) * RG}")
                e.vm(f"buffer_store_dwordx4 {vr(W0,4)}, v{W0+4}, s[{SRD_WS}:{SRD_WS+3}], s{S_A} offen sc1", "rst")
            else: reset(W0 + 4, S_LOWN, L_REG(inst, k) * RG)

def token_store(e, base, second):
    e(f"s_lshl_b32 s{S_A}, s2, 7"); e(f"s_add_u32 s{S_A}, s{S_A}, {base}")
    e(f"v_mov_b32 v{W0+40}, s{S_TAG}"); e(f"v_mov_b32 v{W0+41}, {second}"); e(f"v_mov_b32 v{V_T}, 0")
    e("s_mov_b64 exec, 1")
    e.vm(f"buffer_store_dwordx2 {vr(W0+40,2)}, v{V_T}, s[{SRD_WS}:{SRD_WS+3}], s{S_A} offen sc1", "tok")
    e("s_mov_b64 exec, -1")

def token_gather(e, o, base, vo, mask, sleep=0, dst=W0, between=None):
    lab = e.newlabel("tok"); chk = e.newlabel("tokchk")
    if between:
        e(f"s_mov_b32 s{S_B}, {base}")
        set_exec(e, mask)
        e(f"buffer_load_dwordx2 {vr(dst,2)}, v{vo}, s[{SRD_WS}:{SRD_WS+3}], s{S_B} offen sc1")
        e("s_mov_b64 exec, -1")
        between()
        e(f"s_mov_b32 s{S_A}, {base}")
        set_exec(e, mask)
        e(f"s_mov_b32 s{S_CNT}, {o.poll_limit}")
        e(f"s_branch {chk}")
    else:
        e(f"s_mov_b32 s{S_A}, {base}")
        set_exec(e, mask)
        e(f"s_mov_b32 s{S_CNT}, {o.poll_limit}")
    e.label(lab)
    e(f"buffer_load_dwordx2 {vr(dst,2)}, v{vo}, s[{SRD_WS}:{SRD_WS+3}], s{S_A} offen sc1")
    e(f"s_sub_u32 s{S_CNT}, s{S_CNT}, 1"); e(f"s_cbranch_scc1 L_abort")
    e.label(chk)
    e("s_waitcnt vmcnt(0)")
    e(f"v_cmp_ne_u32 vcc, s{S_TAG}, v{dst}")
    if sleep:
        ok = e.newlabel("tokok"); e(f"s_cbranch_vccz {ok}"); e(f"s_sleep {sleep}"); e(f"s_branch {lab}"); e.label(ok)
    else: e(f"s_cbranch_vccnz {lab}")
    e.vmq = []

def tr_block(e, items):
    i, g, r, c, t = W0, W0 + 1, W0 + 2, W0 + 3, W0 + 4
    a32, a16 = W0 + 6, W0 + 7
    def tr_setup():
        e(f"v_and_b32 v{i}, 15, v{V_LANE}"); e(f"v_lshrrev_b32 v{g}, 4, v{V_LANE}")
        e(f"v_lshrrev_b32 v{r}, 2, v{i}"); e(f"v_and_b32 v{c}, 3, v{i}")
    def trbase(dst, stride, rows_per_g, base):
        e(f"v_mul_u32_u24 v{t}, {rows_per_g}, v{g}"); e(f"v_add_u32 v{t}, v{t}, v{r}")
        e(f"v_mul_u32_u24 v{t}, {stride}, v{t}"); e(f"v_lshl_add_u32 v{dst}, v{c}, 3, v{t}")
        if base: e(f"v_add_u32 v{dst}, {base}, v{dst}")
    def tr(frag, addr, off, k16, stride):
        f, lo = frag
        e.lg(f"ds_read_b64_tr_b16 {f}[{lo}:{lo+1}], v{addr} offset:{off}", "tr")
        if not k16: e.lg(f"ds_read_b64_tr_b16 {f}[{lo+2}:{lo+3}], v{addr} offset:{off+4*stride}", "tr")
        if len(e.lgq) >= 12: e.lg_wait_n(4)
    if True:
        tr_setup()
        for frag, nt, stride, base, ks in items:
            trbase(a32, stride, 8, base); trbase(a16, stride, 4, base)
            nk = len(ks)
            for tt in range(nt):
                for s, k0 in enumerate(ks):
                    k16 = (frag is not wo_frag) and s == nk - 1
                    tr(frag(tt, s), a16 if k16 else a32, k0 * stride + 32 * tt, k16, stride)
        e.lg_all()

def prologue_weights(e, o, st):
    abort = "L_abort"
    e(f"v_mov_b32 v{W0+2}, 0x3f803f80"); e(f"v_mov_b32 v{W0+3}, 0x3f803f80")
    e(f"v_lshlrev_b32 v{W0+4}, 3, v{V_LANE}"); e(f"v_add_u32 v{W0+4}, {ACT_X+384}, v{W0+4}")
    set_exec(e, mask64(range(24)))
    e.lg(f"ds_write_b64 v{W0+4}, {vr(W0+2,2)}", "ones")
    e("s_mov_b64 exec, -1")
    e.lg(f"ds_write_b64 v{V_WX}, {vr(V_XR,2)}", "wx")
    e(f"v_lshlrev_b32 v{V_XR+2}, 16, v{V_XR+1}"); e(f"v_and_b32 v{V_XR+3}, 0xffff0000, v{V_XR+1}")
    e(f"v_and_b32 v{V_XR+1}, 0xffff0000, v{V_XR}"); e(f"v_lshlrev_b32 v{V_XR}, 16, v{V_XR}")
    e.lg_all()
    lab = e.newlabel("wflag")
    e(f"v_mov_b32 v{V_T+1}, {WFLAG}")
    e(f"s_mov_b32 s{S_CNT}, {o.poll_limit*8}")
    e.label(lab)
    e(f"ds_read_b96 {vr(W0,3)}, v{V_T+1}")
    e(f"s_sub_u32 s{S_CNT}, s{S_CNT}, 1"); e(f"s_cbranch_scc1 {abort}")
    e("s_waitcnt lgkmcnt(0)")
    e(f"v_and_b32 v{W0}, v{W0}, v{W0+1}"); e(f"v_and_b32 v{W0}, v{W0}, v{W0+2}")
    e(f"v_cmp_ne_u32 vcc, 1, v{W0}")
    e(f"s_cbranch_vccnz {lab}")
    st("p.wland")
    tr_block(e, [(wq_frag, 12, 384, ST_WQ, (0, 32, 64)), (wg_frag, 3, 96, ST_WG, (0, 32, 64)), (wu_frag, 3, 96, ST_WU, (0, 32, 64))])
    st("p.weights")

def tok2_offsets(e, TO, tmp, others_only=False):
    L = V_LANE; t, u, a, b, c = tmp, tmp + 1, tmp + 2, tmp + 3, tmp + 4
    e(f"v_and_b32 v{t}, 7, v{L}")
    e(f"s_lshl_b32 s{S_T1}, s{S_J}, 3")
    e(f"v_add_u32 v{c}, s{S_T1}, v{t}")
    if not others_only:
        e(f"v_lshlrev_b32 v{u}, 3, v{t}")
        e(f"s_lshl_b32 s{S_T0}, s{S_HQ}, 6"); e(f"s_add_u32 s{S_T0}, s{S_T0}, s{S_XC}"); e(f"v_add_u32 v{a}, s{S_T0}, v{u}")
        e(f"v_lshlrev_b32 v{u}, 6, v{t}")
        e(f"s_add_u32 s{S_T0}, s{S_T1}, s{S_XC}"); e(f"v_add_u32 v{b}, s{S_T0}, v{u}")
        e("s_mov_b32 vcc_lo, 0x00000f00"); e("s_mov_b32 vcc_hi, 0"); e(f"v_cndmask_b32 v{a}, v{a}, v{b}, vcc")
        e("s_mov_b32 vcc_lo, 0x00ff0000"); e(f"v_cndmask_b32 v{a}, v{a}, v{c}, vcc")
    else: e(f"v_mov_b32 v{a}, v{c}")
    e(f"v_bfe_u32 v{u}, v{L}, 3, 2"); e(f"v_lshlrev_b32 v{u}, 6, v{u}"); e(f"v_add_u32 v{c}, v{c}, v{u}")
    e("s_mov_b32 vcc_lo, 0"); e("s_mov_b32 vcc_hi, -1"); e(f"v_cndmask_b32 v{a}, v{a}, v{c}, vcc")
    e(f"v_lshlrev_b32 v{TO}, 7, v{a}")

def cw_load_tiles(e, o, base):
    R = NS(voffK=1, voffX=2, voffY=3)
    for T in range(CW_TILES):
        kv_soff(e, base, T)
        for s in range(3): ld_k(e, R, vr(CW_K + 12 * T + 4 * s, 4), s, ('K', T, s), o)
    for T in range(CW_TILES):
        kv_soff(e, base, T)
        for w in range(3): ld_v(e, R, vr(CW_V + 12 * T + 4 * w, 4), w, ('V', T, w), o)

def chain_wave(e, o, st, local):
    fl = "" if local else "sc1"
    abort = "L_abort"
    R = NS(vlds=V_L16, voffK=1, voffX=2, voffY=3, sel=V_SEL, qA=32, D=44, sc=56, tmp=57, vpw=62, acc=32, A=44, pp=52, vpp=63, vm=60, vl=61, vlt=59)
    instance_offsets(e, [0, 1], pub_live=[2], q_live=[0, 1, 2])
    stage_Q(e, fl, R3_REG['P'])
    stage_GU(e, fl, R2_REG['P'] * RG - 1024, with_stats=False)
    st("p.pub")
    emit_resets(e, fl)
    st("reset")
    tr_block(e, [(wo_frag, 5, 160, ST_WO, (0, 32, 64, 96, 128, 160)), (wd_frag, 5, 160, ST_WD, (0, 32))])
    GA = CW_K
    e(f"v_and_b32 v{V_T}, 31, v{V_LANE}"); e(f"v_lshlrev_b32 v{V_T}, 4, v{V_T}")
    selmask(e, W0 + 40, V_T, rows_mask([0, 1], 24))
    sr = list(range(10, 18))
    for k, reg in enumerate((4, 5, 6, R2_REG['P'])):
        e(f"s_add_u32 s{sr[2*k]}, s{S_RGRP}, {reg*RG}"); e(f"s_add_u32 s{sr[2*k+1]}, s{sr[2*k]}, 4096")
    loads = []
    for row in range(3):
        loads += [(GA + 32 * row + 4 * k, V_R, sr[2*row + (k >= 4)], (k % 4) * 1024) for k in range(8)]
    loads += [(W0 + 32, V_ML, sr[0], 0), (W0 + 36, V_ML, sr[2], 0)]
    loads += [(W0 + 4 * k, W0 + 40, sr[6 + (k >= 4)], (k % 4) * 1024) for k in range(8)]
    poll(e, o, loads, abort, sleep=o.p_sleep)
    token_store(e, TOK2, 0)
    st("p.gather")
    sum_loads(e, 8, GA + 64)
    for rr in range(4): e(f"v_mov_b32 v{V_CSQ+rr}, v{GA+64+rr}")
    sum_loads(e, 8, W0)
    for rr in range(4): e(f"v_mov_b32 v{V_CSG+rr}, v{W0+rr}")
    for row in range(2):
        q_consume(e, GA + 32 * row, W0 + 32 + 4 * row, row)
    st("q1")
    def load_tiles(base): cw_load_tiles(e, o, base)
    load_tiles(S_KV0)
    instance_offsets(e, [0])
    TO, TD = W0 + 38, W0 + 36
    tok2_offsets(e, TO, W0 + 2)
    tmask = 0x00000fff if o.split_tok else (0xffffffff00ff0fff if o.direct else 0x00ff0fff)
    def first_pass():
        e.vmq.append("tok2")
        e.lg_all()
        st("pro_done")
        e("s_barrier")
        if "stopA" in o.exp: e("s_branch L_done")
        def kw(T):
            if T >= 0: e.vm_wait(('K', T, 2))
        def vw(T, w): e.vm_wait(('V', T, w))
        attn_pass(e, R, CW_TILES, 0, Kf, Vf, S_PB, 0, k_wait=kw, v_wait=vw)
    Kf = lambda T, s: vr(CW_K + 12 * T + 4 * s, 4)
    Vf = lambda T, w: vr(CW_V + 12 * T + 4 * w, 4)
    token_gather(e, o, TOK2, TO, tmask, sleep=o.t_sleep, dst=TD, between=first_pass)
    e("s_mov_b64 exec, -1")
    st("p.tok2g")
    e("s_barrier")
    st("bar2")
    parts = [PART + 1536 * w for w in range(4)]
    combine_publish(e, fl, parts, ML, R1_REG[0])
    st("c0.cmb")
    sv = o.preR; o.preR = sv + o.preR0
    hop_R1(e, o, R1_REG[0], 0, abort)
    o.preR = sv
    chain(e, o, fl, 0, [0], abort, st)
    st("chain0")
    e("s_barrier")
    attn_pass(e, R, CW_TILES, 0, Kf, Vf, S_PB, 32)
    e("s_barrier")
    parts_early = [PART] + [LDS_SW * s + 48 * 1024 for s in range(3)]
    combine_publish(e, fl, parts_early, ML + 32, R1_REG['1a'])
    load_tiles(S_KV1)
    instance_offsets(e, LIVE[1])
    hop_R1(e, o, R1_REG['1a'], 0, abort)
    e.vmq = []
    attn_pass(e, R, CW_TILES, 1, Kf, Vf, S_PB, 0)
    e("s_barrier")
    st("bar6")
    combine_publish(e, fl, parts, ML, R1_REG['1b'])
    st("c1.cmb")
    hop_R1(e, o, R1_REG['1b'], 1, abort)
    chain(e, o, fl, 1, [0, 1], abort, st)
    st("chain1")
    e("s_barrier")
    attn_pass(e, R, CW_TILES, 1, Kf, Vf, S_PB, 0)
    instance_offsets(e, LIVE[2])
    e("s_barrier")
    st("bar8")
    combine_publish(e, fl, parts, ML, R1_REG[2])
    st("c2.cmb")
    hop_R1(e, o, R1_REG[2], 1, abort)
    chain(e, o, fl, 2, [1], abort, st)
    st("chain2")
    e("s_branch L_done")

def chain_wave_setup(e, o, st):
    L = V_LANE
    if o.prio: e(f"s_setprio {o.prio}")
    lane_id(e, L)
    e(f"v_mov_b32 v{V_OOB}, 0x{OOB:08x}")
    e(f"s_lshl_b32 s{S_RGRP}, s{S_H}, 13"); e(f"s_lshl_b32 s{S_T0}, s{S_J}, 10"); e(f"s_add_u32 s{S_ROWN}, s{S_RGRP}, s{S_T0}")
    e(f"s_lshl_b32 s{S_LGRP}, s{S_XC}, 3"); e(f"s_add_u32 s{S_LGRP}, s{S_LGRP}, s{S_J}"); e(f"s_lshl_b32 s{S_LGRP}, s{S_LGRP}, 12")
    e(f"s_lshl_b32 s{S_T0}, s{S_HQ}, 10"); e(f"s_add_u32 s{S_LOWN}, s{S_LGRP}, s{S_T0}")
    e(f"s_lshl_b32 s{S_GGRP}, s{S_J}, 13"); e(f"s_lshl_b32 s{S_T0}, s{S_XC}, 10"); e(f"s_add_u32 s{S_GOWN}, s{S_GGRP}, s{S_T0}")
    late_common(e)
    if "nocw" in o.exp:
        e("s_barrier")
        st("bar1x")
        e("s_branch L_done")
    e(f"v_lshlrev_b32 v{V_L16}, 4, v{L}")
    selmask(e, V_R, V_L16, mask64(range(49)))
    e(f"s_load_dword s{S_TAG}, s[{S_WS}:{S_WS+1}], {EPOCH_OFF}")
    emit_resets_P(e)
    e(f"s_getreg_b32 s{S_T2}, hwreg(HW_REG_XCC_ID)"); e(f"s_and_b32 s{S_T2}, s{S_T2}, 0xf")
    make_srd(e, SRD_T, S_X, 2560)
    e(f"v_and_b32 v{V_T}, 31, v{L}"); e(f"v_lshlrev_b32 v{V_T}, 3, v{V_T}")
    e(f"v_lshrrev_b32 v{V_T+1}, 5, v{L}"); e(f"v_mul_u32_u24 v{V_T+1}, 1280, v{V_T+1}"); e(f"v_add_u32 v{V_T}, v{V_T}, v{V_T+1}")
    selmask(e, V_T, V_T, rows_mask([0, 1], 20))
    e(f"s_mul_i32 s{S_T0}, s{S_J}, 160")
    e.vm(f"buffer_load_dwordx2 {vr(V_XR,2)}, v{V_T}, s[{SRD_T}:{SRD_T+3}], s{S_T0} offen", "x")
    e(f"s_add_u32 s{S_KV1}, s{S_KV0}, {BATCH_STRIDE}")
    R = NS(voffK=1, voffX=2, voffY=3, sel=V_SEL)
    attn_selectors(e, R, L, W0)
    n, g, x = W0, W0 + 1, W0 + 2
    e(f"v_mov_b32 v{W0+3}, v{V_L16}"); selmask(e, V_L16, W0 + 3, mask64(range(48)), other=0)
    e(f"v_and_b32 v{n}, 15, v{L}"); e(f"v_lshrrev_b32 v{g}, 4, v{L}")
    e(f"v_min_u32 v{x}, 1, v{n}")
    e(f"v_mul_u32_u24 v{V_BO}, 384, v{x}"); e(f"v_lshl_add_u32 v{V_BO}, v{g}, 4, v{V_BO}"); e(f"v_add_u32 v{V_BO}, {ACT_O}, v{V_BO}")
    e(f"v_lshlrev_b32 v{V_BH}, 7, v{x}"); e(f"v_lshl_add_u32 v{V_BH8}, v{g}, 3, v{V_BH}"); e(f"v_add_u32 v{V_BH8}, {ACT_H+64}, v{V_BH8}")
    e(f"v_lshl_add_u32 v{V_BH}, v{g}, 4, v{V_BH}"); e(f"v_add_u32 v{V_BH}, {ACT_H}, v{V_BH}")
    e(f"v_min_u32 v{x}, 2, v{n}")
    e(f"v_mul_u32_u24 v{V_BX}, 192, v{x}"); e(f"v_lshl_add_u32 v{V_BX8}, v{g}, 3, v{V_BX}"); e(f"v_add_u32 v{V_BX8}, {ACT_X+128}, v{V_BX8}")
    e(f"v_lshl_add_u32 v{V_BX}, v{g}, 4, v{V_BX}"); e(f"v_add_u32 v{V_BX}, {ACT_X}, v{V_BX}")
    e(f"v_subrev_u32 v{x}, 1, v{n}"); e(f"v_min_u32 v{x}, 2, v{x}")
    e(f"v_mul_u32_u24 v{V_AS}, 192, v{x}"); e(f"v_lshl_add_u32 v{V_AS8}, v{g}, 3, v{V_AS}"); e(f"v_add_u32 v{V_AS8}, {ACT_X+128}, v{V_AS8}")
    e(f"v_lshl_add_u32 v{V_AS}, v{g}, 4, v{V_AS}"); e(f"v_add_u32 v{V_AS}, {ACT_X}, v{V_AS}")
    e(f"v_lshlrev_b32 v{x}, 3, v{L}"); e(f"v_add_u32 v{x}, {SB}, v{x}"); selmask(e, V_W8, x, mask64(range(48)), other=SB+2560)
    e(f"v_and_b32 v{n}, 31, v{L}"); e(f"v_lshrrev_b32 v{g}, 5, v{L}")
    e(f"v_mul_u32_u24 v{x}, 192, v{g}"); e(f"v_lshl_add_u32 v{x}, v{n}, 3, v{x}"); e(f"v_add_u32 v{x}, {ACT_X}, v{x}")
    selmask(e, V_WX, x, rows_mask([0, 1], 20), other=DUMMY)
    e(f"v_lshlrev_b32 v{x}, 7, v{g}"); e(f"v_lshl_add_u32 v{x}, v{n}, 2, v{x}"); e(f"v_add_u32 v{x}, {ACT_H}, v{x}")
    selmask(e, V_WH, x, rows_mask([0, 1], 24), other=DUMMY)
    e(f"v_and_b32 v{x}, 7, v{L}"); e(f"v_lshlrev_b32 v{x}, 10, v{x}"); e(f"v_add_u32 v{V_ML}, 768, v{x}")
    m = mask64([16 * a + 1 for a in range(4)])
    e(f"s_mov_b32 s{S_N1}, 0x{m & 0xffffffff:08x}"); e(f"s_mov_b32 s{S_N1+1}, 0x{m >> 32:08x}")
    e("s_waitcnt lgkmcnt(0)")
    e(f"s_add_u32 s{S_TAG}, s{S_TAG}, 1")
    e.vm_all(force=True)
    token_store(e, TOK1, f"s{S_T2}")
    st("p.tok1")
    TO, TD = W0 + 38, W0 + 36
    e(f"v_lshlrev_b32 v{TO}, 10, v{L}"); e(f"s_lshl_b32 s{S_T0}, s{S_XC}, 7"); e(f"v_add_u32 v{TO}, s{S_T0}, v{TO}")
    token_gather(e, o, TOK1, TO, 0xffffffff, sleep=o.t_sleep, dst=TD, between=lambda: prologue_weights(e, o, st))
    e(f"v_cmp_ne_u32 vcc, s{S_T2}, v{TD+1}")
    e("s_mov_b64 exec, -1")
    st("p.mode")
    e("s_nop 3")
    e("s_cmp_lg_u32 vcc_lo, 0")

def late_common(e):
    make_srd(e, SRD_V, S_V, KV_BYTES); make_srd(e, SRD_WS, S_WS, WS_REC)
    e(f"s_mov_b32 s{S_C}, {lit(CSCALE)}")
    e(f"s_mov_b32 s{S_HI32}, 0"); e(f"s_mov_b32 s{S_HI32+1}, -1")
    e(f"s_mul_i32 s{S_PB}, s{S_WAVE}, 1536"); e(f"s_add_u32 s{S_PB}, s{S_PB}, {PART}")
    e(f"s_lshl_b32 s{S_MLB}, s{S_WAVE}, 3"); e(f"s_add_u32 s{S_MLB}, s{S_MLB}, {ML}")

def generate(o):
    Stamps.select = o.stampset.split(",") if o.stampset else None
    o_direct[0] = o.direct; o_direct[1] = o.direct0
    LIVE.update({1: [1], 2: [0, 1]} if o.late_b0 else {1: [0, 1], 2: [1]})
    o_packed[0] = bool(o.packed)
    o_dset.clear()
    if o.packed: o_dset.update({(int(c[0]), int(c[1])) for c in o.packed.split(",")})
    if o.direct: o_dset.add((2, 1))
    if o.direct0: o_dset.add((2, 0))
    e = Emit()
    e("s_cmp_ge_u32 s2, 256"); e("s_cbranch_scc1 L_done")
    e("s_load_dwordx16 s[4:19], s[0:1], 0"); e("s_load_dwordx8 s[20:27], s[0:1], 64")
    e("v_lshrrev_b32 v1, 6, v0")
    e(f"s_and_b32 s{S_XC}, s2, 7"); e(f"s_lshr_b32 s{S_HQ}, s2, 6")
    e(f"v_readfirstlane_b32 s{S_WAVE}, v1")
    e(f"s_lshr_b32 s{S_J}, s2, 3"); e(f"s_and_b32 s{S_J}, s{S_J}, 7")
    e(f"s_lshl_b32 s{S_H}, s{S_XC}, 2"); e(f"s_add_u32 s{S_H}, s{S_H}, s{S_HQ}")
    e(f"s_mul_i32 s{S_KV0}, s{S_H}, {HEAD_STRIDE}"); e(f"s_mul_i32 s{S_T0}, s{S_J}, {CHUNK_STRIDE}"); e(f"s_add_u32 s{S_KV0}, s{S_KV0}, s{S_T0}")
    e(f"s_add_u32 s{S_T0}, s{S_WAVE}, 3"); e(f"s_and_b32 s{S_T0}, s{S_T0}, 3")
    e(f"s_mul_i32 s{S_T1}, s{S_T0}, {SW_TILES*TILE_B}"); e(f"s_add_u32 s{S_KV0}, s{S_KV0}, s{S_T1}")
    lane_id(e, 8)
    e("v_mov_b32 v14, 0"); e(f"v_mov_b32 v15, {WFLAG}"); e("v_lshl_add_u32 v15, v8, 2, v15")
    e("s_mov_b64 exec, 15")
    e("ds_write_b32 v15, v14")
    e("s_mov_b64 exec, -1")
    attn_load_offsets(e, NS(voffK=1, voffX=2, voffY=3), 8, 10)
    e("s_waitcnt lgkmcnt(0)")
    e("s_barrier")
    make_srd(e, SRD_K, S_K, KV_BYTES)
    e(f"s_cmp_eq_u32 s{S_WAVE}, 0"); e("s_cbranch_scc1 L_chain")
    st_s = Stamps(e, o.stamps); st_s("start")
    stream_wave(e, o, st_s)
    e.label("L_chain")
    e.vmq = []; e.lgq = []
    st_c = Stamps(e, o.stamps); st_c("start")
    chain_wave_setup(e, o, st_c)
    names = {}
    if o.force_global: e("s_branch L_global")
    else: e("s_cbranch_scc1 L_global")
    base_names = list(st_c.names)
    sv = (list(e.vmq), list(e.lgq))
    chain_wave(e, o, st_c, True)
    names['cw'] = list(st_c.names); names['sw'] = list(st_s.names)
    e.label("L_global")
    e.vmq, e.lgq = sv
    st_g = Stamps(e, o.stamps); st_g.names = list(base_names)
    chain_wave(e, o, st_g, False)
    e.label("L_abort")
    e.label("L_done")
    if o.stamps:
        e("s_cmp_ge_u32 s2, 256"); e("s_cbranch_scc1 L_exit")
        fl = Stamps(e, True); fl.names = names['cw']; fl.flush()
        e.label("L_exit")
    e("s_endpgm")
    return e, names

HEAD = """; Kernarg: A_x, K, V, wq, wo, B_x, W_gate, W_up, W_down, out, debug, ws (pointers)
; @launch grid=(256,1,1) block=(256,1,1) lds=%d
.amdgcn_target "amdgcn-amd-amdhsa--gfx950"
.text
.globl %s
.p2align 8
.type %s,@function
%s:
"""
FOOT = """
.section .rodata,"a"
.p2align 6
.amdhsa_kernel %s
  .amdhsa_next_free_vgpr 512
  .amdhsa_next_free_sgpr 102
  .amdhsa_accum_offset 256
  .amdhsa_group_segment_fixed_size 0
  .amdhsa_kernarg_size 96
  .amdhsa_user_sgpr_count 2
  .amdhsa_user_sgpr_kernarg_segment_ptr 1
  .amdhsa_system_sgpr_workgroup_id_x 1
  .amdhsa_float_denorm_mode_32 3
.end_amdhsa_kernel
"""
def build_text(o):
    e, names = generate(o)
    return HEAD % (LDS_TOTAL, NAME, NAME, NAME) + e.text() + "\n" + FOOT % NAME, names, e

if __name__ == "__main__":
    o = Opt()
    for a in sys.argv[2:]:
        k, v = a.split("=")
        cur = getattr(o, k)
        setattr(o, k, (v not in ("0", "False")) if isinstance(cur, bool) else type(cur)(v))
    txt, names, e = build_text(o)
    open(sys.argv[1], "w").write(txt)
    print("instructions:", e.ninst, "nops:", e.nops, names)
```

```python
import sys, struct
from types import SimpleNamespace as NS
from emit import Emit, vr

NAME = "interleave_layers__mha_block_cached__glu_gated_reglu__decode_kernel"

class Opt:
    NA = 24
    NA_BAR = 118
    NB = 8
    NB1 = 8
    go_at = "G1"
    NC = 56
    NA0 = 24
    NA0N = 0
    light = False
    pf = 0
    pf_all = False
    NF = 12
    NW = 24
    stamps = False
    poll_limit = 400000
    kvflags = "nt"
    wflags = "nt"
    stampset = ""
    p_sleep = 8
    mb_sleep = 0
    exp = ""
    t_sleep = 0
    early = False
    wb = 0
    prio = 0
    late_rst = False
    preGn = 0
    packed = "10,11"
    preF1 = 16
    preP0 = 0
    preP1 = 0
    direct0 = True
    preF0 = 16
    direct = True
    preF = 0
    look = 2
    NAe = 14
    NCe = 24
    late_b0 = True
    split_tok = True
    preR0 = 0
    preL0 = 0
    preG0 = 0
    preR = 0
    preL = 0
    preG = 6
    flag_sleep = 0
    force_global = False

KV_BYTES = 100663296
BATCH_STRIDE = 50331648
HEAD_STRIDE = 1572864
CHUNK_STRIDE = 196608
TILE_B = 3072
SW_TILES, CW_TILES = 20, 4
OOB = 0x7fff0000

LDS_SW = 51200
SB = 153600
PART = SB
ML = SB + 6144
QARR = SB + 6208
ACT_O = SB + 6976
ACT_X = SB + 7744
ACT_H = SB + 8320
DUMMY = SB + 8576
WFLAG = SB + 10208
LDS_TOTAL = 163840
ST_WQ, ST_WO, ST_WG, ST_WU, ST_WD = 0, 30720, 61440, 69120, 76800

RG = 262144
R1_REG = {0: 0, '1a': 1, '1b': 2, 2: 3}
R3_REG = {'P': 4, 0: 7, 1: 8}
R2_REG = {'P': 9, 0: 10, 1: 11, 2: 12}
L_REG = lambda inst, k: 13 + 2 * inst + k
G_OFF = lambda inst, k: 19 * RG + (2 * inst + k) * 65536
STAMP_OFF = 22 * RG
WS_REC = 24 * RG

CSCALE = (192 ** -0.5) * 1.4426950408889634
EPS = 1e-5
def f2u(x): return struct.unpack("<I", struct.pack("<f", x))[0]
def lit(x): return "0x%08x" % f2u(x)
def mask64(lanes):
    m = 0
    for l in lanes: m |= 1 << l
    return m
def set_exec(e, m):
    if m == (1 << 64) - 1: e("s_mov_b64 exec, -1"); return
    e(f"s_mov_b32 exec_lo, 0x{m & 0xffffffff:08x}")
    e(f"s_mov_b32 exec_hi, 0x{m >> 32:08x}")

S_X, S_K, S_V, S_WQ, S_WO, S_BX, S_WG, S_WU, S_WD, S_OUT, S_DBG, S_WS = 4, 6, 8, 10, 12, 14, 16, 18, 20, 22, 24, 26
S_XC, S_HQ, S_J, S_H = 28, 29, 30, 31
SRD_K, SRD_V = 32, 36
S_KV0, S_KV1, S_SOFF, S_LDSB = 40, 41, 42, 43
SRD_T = 44
SRD_WS = 48
SRD_DBG = 52
S_C = 56
S_ROWN, S_RGRP, S_LOWN, S_LGRP, S_GOWN, S_GGRP = 57, 58, 59, 60, 61, 62
S_A, S_B, S_CNT, S_T0, S_T1, S_T2 = 63, 64, 65, 66, 67, 68
S_PB = 69
S_HI32 = 70
S_MLB = 72
S_GA, S_GB = 100, 101
S_WAVE = 3
S_STAMP = 76

def make_srd(e, srd, ptr, nbytes):
    e(f"s_mov_b32 s{srd}, s{ptr}")
    e(f"s_and_b32 s{srd+1}, s{ptr+1}, 0xffff")
    e(f"s_mov_b32 s{srd+2}, {nbytes}")
    e(f"s_mov_b32 s{srd+3}, 0x20000")

class Stamps:
    select = None
    def __init__(self, e, on): self.e, self.on, self.names = e, on, []
    def __call__(self, name):
        if not self.on: return
        if Stamps.select is not None and not any(name.startswith(p) for p in Stamps.select): return
        if Stamps.select is None and "." in name: return
        n = len(self.names); assert n < 12, "too many stamps"
        self.e(f"s_memrealtime s[{S_STAMP+2*n}:{S_STAMP+2*n+1}]")
        self.e.lg_all(force=True)
        self.names.append(name)
    def rounds(self, name):
        if not self.on: return
        if Stamps.select is None or not any(name.startswith(p) for p in Stamps.select): return
        n = len(self.names); assert n < 12
        self.e(f"s_mov_b32 s{S_STAMP+2*n}, s{S_CNT}"); self.e(f"s_mov_b32 s{S_STAMP+2*n+1}, 0")
        self.names.append(name)
    def flush(self):
        if not self.on: return
        e = self.e
        e("s_mov_b64 exec, 1")
        e(f"s_lshl_b32 s{S_T0}, s2, 2"); e(f"s_add_u32 s{S_T0}, s{S_T0}, s{S_WAVE}"); e(f"s_lshl_b32 s{S_T0}, s{S_T0}, 7")
        e(f"s_add_u32 s{S_T0}, s{S_T0}, {STAMP_OFF}")
        e("v_mov_b32 v0, 0")
        for i in range(len(self.names)):
            e(f"v_mov_b32 v2, s{S_STAMP+2*i}"); e(f"v_mov_b32 v3, s{S_STAMP+2*i+1}")
            e(f"buffer_store_dwordx2 v[2:3], v0, s[{SRD_WS}:{SRD_WS+3}], s{S_T0} offen offset:{8*i}")
            e("s_waitcnt vmcnt(0)")

def lane_id(e, dst):
    e(f"v_mbcnt_lo_u32_b32 {vr(dst)}, -1, 0")
    e(f"v_mbcnt_hi_u32_b32 {vr(dst)}, -1, {vr(dst)}")

def attn_load_offsets(e, R, lane, t):
    i, g, u, w = t, t + 1, t + 2, t + 3
    e(f"v_and_b32 {vr(i)}, 15, {vr(lane)}")
    e(f"v_lshrrev_b32 {vr(g)}, 4, {vr(lane)}")
    e(f"v_and_b32 {vr(u)}, 7, {vr(i)}")
    e(f"v_lshrrev_b32 {vr(w)}, 3, {vr(i)}")
    e(f"v_mul_u32_u24 {vr(R.voffK)}, 384, {vr(u)}")
    e(f"v_lshl_add_u32 {vr(R.voffK)}, {vr(g)}, 4, {vr(R.voffK)}")
    e(f"v_lshl_add_u32 {vr(R.voffK)}, {vr(w)}, 6, {vr(R.voffK)}")
    e(f"v_mul_u32_u24 {vr(R.voffX)}, 768, {vr(g)}")
    e(f"v_mul_u32_u24 {vr(w)}, 384, {vr(w)}")
    e(f"v_add_u32 {vr(R.voffY)}, {vr(R.voffX)}, {vr(w)}")
    e(f"v_lshl_add_u32 {vr(R.voffY)}, {vr(u)}, 4, {vr(R.voffY)}")
    e(f"v_add_u32 {vr(R.voffY)}, 256, {vr(R.voffY)}")
    e(f"v_lshl_add_u32 {vr(R.voffX)}, {vr(i)}, 4, {vr(R.voffX)}")

def attn_selectors(e, R, lane, t):
    i, u, lo, hi = t, t + 1, t + 2, t + 3
    e(f"v_and_b32 {vr(i)}, 15, {vr(lane)}")
    e(f"v_lshrrev_b32 {vr(u)}, 3, {vr(i)}")
    e(f"v_mul_u32_u24 {vr(u)}, 0x202, {vr(u)}")
    e(f"v_add_u32 {vr(u)}, 0x100, {vr(u)}")
    e(f"v_or_b32 {vr(lo)}, 0x0c0c0000, {vr(u)}")
    e(f"v_lshlrev_b32 {vr(hi)}, 16, {vr(u)}")
    e(f"v_or_b32 {vr(hi)}, 0x0c0c, {vr(hi)}")
    e(f"v_and_b32 {vr(u)}, 1, {vr(i)}")
    e(f"v_cmp_eq_u32 vcc, 1, {vr(u)}")
    e(f"v_cndmask_b32 {vr(lo)}, {vr(lo)}, {vr(hi)}, vcc")
    e(f"v_bfe_u32 {vr(u)}, {vr(i)}, 1, 2")
    e(f"v_mov_b32 {vr(hi)}, 0x0c0c0c0c")
    for r in range(4):
        e(f"v_cmp_eq_u32 vcc, {r}, {vr(u)}")
        e(f"v_cndmask_b32 {vr(R.sel+r)}, {vr(hi)}, {vr(lo)}, vcc")

def allreduce_list(reg, tmp, op):
    out = [f"v_{op}_f32_dpp {vr(reg)}, {vr(reg)}, {vr(reg)} row_ror:{k} row_mask:0xf bank_mask:0xf" for k in (8, 4, 2, 1)]
    out += [f"v_mov_b32 {vr(tmp)}, {vr(reg)}", f"v_permlane16_swap_b32 {vr(reg)}, {vr(tmp)}", f"v_{op}_f32 {vr(reg)}, {vr(reg)}, {vr(tmp)}",
            f"v_mov_b32 {vr(tmp)}, {vr(reg)}", f"v_permlane32_swap_b32 {vr(reg)}, {vr(tmp)}", f"v_{op}_f32 {vr(reg)}, {vr(reg)}, {vr(tmp)}"]
    return out

def allreduce(e, reg, tmp, op):
    for k in (8, 4, 2, 1):
        e(f"v_{op}_f32_dpp {vr(reg)}, {vr(reg)}, {vr(reg)} row_ror:{k} row_mask:0xf bank_mask:0xf")
    e(f"v_mov_b32 {vr(tmp)}, {vr(reg)}")
    e(f"v_permlane16_swap_b32 {vr(reg)}, {vr(tmp)}")
    e(f"v_{op}_f32 {vr(reg)}, {vr(reg)}, {vr(tmp)}")
    e(f"v_mov_b32 {vr(tmp)}, {vr(reg)}")
    e(f"v_permlane32_swap_b32 {vr(reg)}, {vr(tmp)}")
    e(f"v_{op}_f32 {vr(reg)}, {vr(reg)}, {vr(tmp)}")

def attn_pre(e, R, ntiles):
    L = R.tmp
    lane_id(e, L)
    e(f"v_and_b32 {vr(L+1)}, 1, {vr(L)}")
    e(f"v_lshrrev_b32 {vr(L+2)}, 4, {vr(L)}")
    e(f"v_lshlrev_b32 {vr(L+2)}, 4, {vr(L+2)}")
    e(f"v_lshl_add_u32 {vr(L+1)}, {vr(L+1)}, 6, {vr(L+2)}")
    e(f"v_add_u32 {vr(L+1)}, {QARR}, {vr(L+1)}")
    e(f"v_add_u32 {vr(R.vpp)}, s{S_PB}, {vr(L+2)}")
    W = R.vpw; t = L + 2
    e(f"v_lshrrev_b32 {vr(t)}, 5, {vr(L)}"); e(f"v_lshlrev_b32 {vr(W)}, 6, {vr(t)}")
    e(f"v_bfe_u32 {vr(t)}, {vr(L)}, 1, 2"); e(f"v_lshl_add_u32 {vr(W)}, {vr(t)}, 4, {vr(W)}")
    e(f"v_bfe_u32 {vr(t)}, {vr(L)}, 3, 2"); e(f"v_lshl_add_u32 {vr(W)}, {vr(t)}, 2, {vr(W)}")
    e(f"v_and_b32 {vr(t)}, 1, {vr(L)}"); e(f"v_lshl_add_u32 {vr(W)}, {vr(t)}, 1, {vr(W)}")
    e(f"v_add_u32 {vr(W)}, s{S_PB}, {vr(W)}")
    nsc = (ntiles + 7) // 8
    for r in range(nsc):
        if (r + 1) * 8 > ntiles: e(f"v_mov_b32 {vr(R.sc+r)}, 0xff800000")

def attn_pass(e, R, ntiles, qrow, Kfrag, Vfrag, part_sreg, ml_off, k_wait=None, qk_hook=None, mid_hook=None,
              v_wait=None, pv_hook=None, stage=None, pre_done=False, mark=None, look=2):
    L = R.tmp
    if not pre_done: attn_pre(e, R, ntiles)
    for s in range(3):
        e.lg(f"ds_read_b128 {vr(R.qA+4*s,4)}, {vr(L+1)} offset:{qrow*384 + 128*s}", ("q", s))
    W = R.vpw
    nsc = (ntiles + 7) // 8
    stg = {}
    def stage_k(T):
        if T >= ntiles: return
        for s in range(3):
            f = Kfrag(T, s)
            if isinstance(f, tuple):
                reg = stage[(3 * T + s) % len(stage)]
                e.lg(f"ds_read_b128 {vr(reg,4)}, {vr(R.vlds)} offset:{f[1]}", ("k", T, s))
                stg[(T, s)] = vr(reg, 4)
    LOOK = look
    if k_wait: k_wait(-1)
    for T in range(min(LOOK, ntiles)): stage_k(T)
    e.lg_wait(("q", 2))
    def dpp_add(T):
        D = R.D + 4 * (T % 3)
        dst = vr(R.sc + (T >> 3)); rm = 1 << ((T >> 1) & 3)
        if T % 2 == 0: e(f"v_add_f32_dpp {dst}, {vr(D+1)}, {vr(D)} row_ror:8 row_mask:0x{rm:x} bank_mask:0x3")
        else:          e(f"v_add_f32_dpp {dst}, {vr(D)}, {vr(D+1)} row_ror:8 row_mask:0x{rm:x} bank_mask:0xc")
    for T in range(ntiles):
        if k_wait: k_wait(T)
        D = vr(R.D + 4 * (T % 3), 4)
        for s in range(3):
            f = Kfrag(T, s)
            if isinstance(f, tuple):
                e.lg_wait(("k", T, s)); f = stg[(T, s)]
            e(f"v_mfma_f32_16x16x32_bf16 {D}, {vr(R.qA+4*s,4)}, {f}, {'0' if s == 0 else D}")
        stage_k(T + LOOK)
        if qk_hook: qk_hook(T)
        if T >= 2: dpp_add(T - 2)
    for T in range(max(0, ntiles - 2), ntiles): dpp_add(T)
    if mark: mark("qk")
    t0, t1 = R.D, R.D + 1
    if nsc == 1: e(f"v_mov_b32 {vr(t0)}, {vr(R.sc)}")
    elif nsc == 2: e(f"v_max_f32 {vr(t0)}, {vr(R.sc)}, {vr(R.sc+1)}")
    else: e(f"v_max3_f32 {vr(t0)}, {vr(R.sc)}, {vr(R.sc+1)}, {vr(R.sc+2)}")
    allreduce(e, t0, t1, "max")
    e(f"v_mul_f32 {vr(R.vm)}, s{S_C}, {vr(t0)}")
    for r in range(nsc): e(f"v_fma_f32 {vr(R.sc+r)}, {vr(R.sc+r)}, s{S_C}, -{vr(R.vm)}")
    for r in range(nsc): e(f"v_exp_f32 {vr(R.sc+r)}, {vr(R.sc+r)}")
    for r in range(nsc): e(f"v_cvt_pk_bf16_f32 {vr(R.D+2+r)}, {vr(R.sc+r)}, {vr(R.sc+r)}")
    for r in range(nsc): e.lg(f"ds_write_b16 {vr(W)}, {vr(R.D+2+r)} offset:{128*r}", ("pw", r))
    nq = (ntiles + 3) // 4
    ppreg = lambda q: R.pp + 4 * (q % 2)
    if nsc == 1: e(f"v_mov_b32 {vr(R.vl)}, {vr(R.sc)}")
    else:
        e(f"v_add_f32 {vr(R.vl)}, {vr(R.sc)}, {vr(R.sc+1)}")
        if nsc == 3: e(f"v_add_f32 {vr(R.vl)}, {vr(R.vl)}, {vr(R.sc+2)}")
    e.lg(f"ds_read_b128 {vr(ppreg(0),4)}, {vr(R.vpp)}", ("pp", 0))
    if nq > 1: e.lg(f"ds_read_b128 {vr(ppreg(1),4)}, {vr(R.vpp)} offset:64", ("pp", 1))
    lred = allreduce_list(R.vl, R.vlt, "add")
    if ntiles < 12:
        for ins in lred: e(ins)
        lred = []
    if mid_hook: mid_hook()
    if mark: mark("sm")
    X1, X2, Y = R.acc, R.acc + 4, R.acc + 8
    def build_A(T):
        q = T >> 2
        e.lg_wait(("pp", q))
        A = R.A + 4 * (T % 2); src = vr(ppreg(q) + (T & 3))
        return [f"v_perm_b32 {vr(A+r)}, {src}, {src}, {vr(R.sel+r)}" for r in range(4)]
    for ins in build_A(0): e(ins)
    for T in range(ntiles):
        A = vr(R.A + 4 * (T % 2), 4)
        nxt = build_A(T + 1) if T + 1 < ntiles else []
        if v_wait: v_wait(T, 0)
        e(f"v_mfma_f32_16x16x32_bf16 {vr(X1,4)}, {A}, {Vfrag(T,0)}, {'0' if T == 0 else vr(X1,4)}")
        for ins in nxt[:2]: e(ins)
        if v_wait: v_wait(T, 1)
        e(f"v_mfma_f32_16x16x32_bf16 {vr(X2,4)}, {A}, {Vfrag(T,1)}, {'0' if T == 0 else vr(X2,4)}")
        for ins in nxt[2:]: e(ins)
        if v_wait: v_wait(T, 2)
        e(f"v_mfma_f32_16x16x32_bf16 {vr(Y,4)}, {A}, {Vfrag(T,2)}, {'0' if T == 0 else vr(Y,4)}")
        if (T & 3) == 2 and (T >> 2) + 2 < nq:
            q2 = (T >> 2) + 2
            e.lg(f"ds_read_b128 {vr(ppreg(q2),4)}, {vr(R.vpp)} offset:{64*q2}", ("pp", q2))
        if lred and T >= 1: e(lred.pop(0))
        if pv_hook: pv_hook(T)
    assert not lred
    if mark: mark("pv")
    p = R.pp
    lane_id(e, p)
    e(f"v_and_b32 {vr(p+1)}, 15, {vr(p)}")
    e(f"v_lshrrev_b32 {vr(p+2)}, 4, {vr(p)}")
    e(f"v_and_b32 {vr(p+3)}, 1, {vr(p+2)}")
    e(f"v_lshrrev_b32 {vr(p+2)}, 1, {vr(p+2)}")
    e(f"v_mul_u32_u24 {vr(p+2)}, 768, {vr(p+2)}")
    e(f"v_lshl_add_u32 {vr(p+2)}, {vr(p+3)}, 4, {vr(p+2)}")
    e(f"v_add_u32 {vr(p+2)}, s{part_sreg}, {vr(p+2)}")
    e(f"v_lshl_add_u32 {vr(p+4)}, {vr(p+1)}, 5, {vr(p+2)}")
    e(f"v_and_b32 {vr(p+1)}, 7, {vr(p+1)}")
    e(f"v_lshl_add_u32 {vr(p+5)}, {vr(p+1)}, 5, {vr(p+2)}")
    e(f"v_mov_b32 {vr(p+6)}, s{S_MLB}")
    e(f"v_mov_b32 {vr(R.A)}, {vr(R.vm)}"); e(f"v_mov_b32 {vr(R.A+1)}, {vr(R.vl)}")
    for r in range(4):
        e(f"v_cndmask_b32 {vr(X1+r)}, {vr(X1+r)}, {vr(X2+r)}, s[{S_HI32}:{S_HI32+1}]")
    e.lg(f"ds_write_b128 {vr(p+4)}, {vr(X1,4)}", "px")
    set_exec(e, 0xFF00FF0000FF00FF)
    e.lg(f"ds_write_b128 {vr(p+5)}, {vr(Y,4)} offset:512", "py")
    e("s_mov_b64 exec, 1")
    e.lg(f"ds_write_b64 {vr(p+6)}, {vr(R.A,2)} offset:{ml_off}", "pm")
    e("s_mov_b64 exec, -1")
    e.lg_all()

def kv_soff(e, base_sreg, T):
    e(f"s_add_u32 s{S_SOFF}, s{base_sreg}, {T*TILE_B}")
def ld_k(e, R, dst, s, tag, o):
    e.vm(f"buffer_load_dwordx4 {dst}, {vr(R.voffK)}, s[{SRD_K}:{SRD_K+3}], s{S_SOFF} offen offset:{128*s} {o.kvflags}", tag)
def ld_v(e, R, dst, w, tag, o):
    vo = R.voffY if w == 2 else R.voffX
    off = 384 if w == 1 else 0
    e.vm(f"buffer_load_dwordx4 {dst}, {vr(vo)}, s[{SRD_V}:{SRD_V+3}], s{S_SOFF} offen offset:{off} {o.kvflags}", tag)
def dma_k(e, R, slot, s, tag, o):
    e(f"s_add_u32 m0, s{S_LDSB}, {slot*1024 - 128*s + 0}") if slot*1024 - 128*s >= 0 else e(f"s_sub_u32 m0, s{S_LDSB}, {128*s - slot*1024}")
    e.vm(f"buffer_load_dwordx4 {vr(R.voffK)}, s[{SRD_K}:{SRD_K+3}], s{S_SOFF} offen offset:{128*s} {o.kvflags} lds", tag)
def dma_v(e, R, slot, w, tag, o):
    vo = R.voffY if w == 2 else R.voffX
    off = 384 if w == 1 else 0
    e(f"s_add_u32 m0, s{S_LDSB}, {slot*1024 - off}")
    e.vm(f"buffer_load_dwordx4 {vr(vo)}, s[{SRD_V}:{SRD_V+3}], s{S_SOFF} offen offset:{off} {o.kvflags} lds", tag)

def slot_reg(k):
    assert 0 <= k < 118
    return f"a[{4*k}:{4*k+3}]" if k < 64 else f"v[{40+4*(k-64)}:{40+4*(k-64)+3}]"

def weight_dma(e, o):
    L, t, u = 8, 20, 21
    def dma_block(ptr, nbytes, lanes_per_row, magic, shift, nlanes, row_stride, rows_per_instr, ninstr, so, lds0, bar=False):
        make_srd(e, SRD_T, ptr, nbytes)
        e(f"v_mul_u32_u24 v{t}, {magic}, v{L}"); e(f"v_lshrrev_b32 v{t}, {shift}, v{t}")
        e(f"v_mul_u32_u24 v{u}, {lanes_per_row}, v{t}"); e(f"v_sub_u32 v{u}, v{L}, v{u}")
        e(f"s_mov_b32 s{S_T1}, {row_stride}")
        e(f"v_mul_lo_u32 v{t}, v{t}, s{S_T1}"); e(f"v_lshl_add_u32 v{t}, v{u}, 4, v{t}")
        rreg, rmul, creg, cmul = so
        e(f"s_mul_i32 s{S_SOFF}, s{rreg}, {rmul*row_stride}")
        e(f"s_mul_i32 s{S_T1}, s{creg}, {cmul}"); e(f"s_add_u32 s{S_SOFF}, s{S_SOFF}, s{S_T1}")
        set_exec(e, mask64(range(nlanes)))
        for i in range(ninstr):
            e(f"s_mov_b32 m0, {lds0 + i*nlanes*16}")
            if i: e(f"s_add_u32 s{S_SOFF}, s{S_SOFF}, {rows_per_instr*row_stride}")
            else: e("s_nop 0")
            e.vm_depth(o.NW - 1)
            e.vm(f"buffer_load_dwordx4 v{t}, s[{SRD_T}:{SRD_T+3}], s{S_SOFF} offen {o.wflags} lds", "w")
        e("s_mov_b64 exec, -1")
    l2, l3, end = e.newlabel("w2"), e.newlabel("w3"), e.newlabel("wend")
    e(f"s_cmp_eq_u32 s{S_WAVE}, 2"); e(f"s_cbranch_scc1 {l2}")
    e(f"s_cmp_eq_u32 s{S_WAVE}, 3"); e(f"s_cbranch_scc1 {l3}")
    base_q = list(e.vmq)
    dma_block(S_WQ, 7864320, 24, 43, 10, 48, 12288, 2, 40, (S_J, 80, S_H, 384), ST_WQ, bar=True)
    e(f"s_branch {end}")
    e.label(l2); e.vmq = list(base_q)
    dma_block(S_WO, 7864320, 10, 103, 10, 60, 1280, 6, 32, (S_H, 192, S_J, 160), ST_WO, bar=True)
    e(f"s_branch {end}")
    e.label(l3); e.vmq = list(base_q)
    dma_block(S_WG, 1966080, 6, 43, 8, 60, 3072, 10, 8, (S_J, 80, S_H, 96), ST_WG, bar=True)
    dma_block(S_WU, 1966080, 6, 43, 8, 60, 3072, 10, 8, (S_J, 80, S_H, 96), ST_WU)
    dma_block(S_WD, 1966080, 10, 103, 10, 60, 1280, 6, 8, (S_H, 48, S_J, 160), ST_WD)
    e.label(end)
    e.vmq = ["w"] * o.NW

S_XPAR = 15
def par_depth(e, n):
    lab = e.newlabel("par")
    e(f"s_cmp_lg_u32 s{S_XPAR}, 0"); e(f"s_cbranch_scc1 {lab}")
    e(f"s_waitcnt vmcnt({n-1})")
    e.label(lab)

def emit_wb(e):
    skip = e.newlabel("nowb")
    e(f"s_cmp_lg_u32 s{S_WAVE}, 1"); e(f"s_cbranch_scc1 {skip}")
    e("s_cmp_ge_u32 s2, 8"); e(f"s_cbranch_scc1 {skip}")
    e("buffer_wbl2 sc1")
    e("s_waitcnt vmcnt(0)")
    e.label(skip)

def stream_wave(e, o, st):
    R = NS(vlds=0, voffK=1, voffX=2, voffY=3, sel=4, qA=8, D=20, sc=32, tmp=20, vpw=35, acc=8, A=20, pp=28, vpp=36, vm=38, vl=39, vlt=37)
    loads = []
    for T in range(SW_TILES):
        for s in range(3): loads.append(('K', T, s))
    for T in range(SW_TILES):
        for w in range(3): loads.append(('V', T, w))
    def k0slot(T, s): return 3 * T + s
    def v0slot(T, w): return 60 + 3 * T + w
    cur = [None]
    def issue0(item):
        kind, T, x = item
        if cur[0] != (kind, T, 0):
            kv_soff(e, S_KV0, T); cur[0] = (kind, T, 0)
        if kind == 'K': ld_k(e, R, slot_reg(k0slot(T, x)), x, ('K0', T, x), o)
        else:
            sl = v0slot(T, x)
            if sl < 118: ld_v(e, R, slot_reg(sl), x, ('V0', T, x), o)
            else: dma_v(e, R, 48 + sl - 118, x, ('V0', T, x), o)
    for item in loads[:o.NF]: issue0(item)
    late_common(e)
    e(f"s_add_u32 s{S_KV1}, s{S_KV0}, {BATCH_STRIDE}")
    e(f"s_sub_u32 s{S_T0}, s{S_WAVE}, 1"); e(f"s_mul_i32 s{S_LDSB}, s{S_T0}, {LDS_SW}")
    if o.NAe or o.NCe:
        e(f"s_getreg_b32 s{S_T0}, hwreg(HW_REG_XCC_ID)"); e(f"s_and_b32 s{S_XPAR}, s{S_T0}, 1")
    nf = list(e.vmq)
    if "now" not in o.exp: weight_dma(e, o)
    e.vmq = nf + ["w"] * o.NW if len(nf) + o.NW <= 60 else ["w"] * 60
    cur[0] = None
    st("s.wiss")
    e(f"v_lshlrev_b32 {vr(R.vlds)}, 4, v8")
    e(f"v_add_u32 {vr(R.vlds)}, s{S_LDSB}, {vr(R.vlds)}")
    attn_selectors(e, R, 8, 10)
    for idx, item in enumerate(loads[:o.NA_BAR]):
        if idx < o.NF: continue
        na = o.NA0 if idx < o.NA0N else o.NA
        e.vm_depth(na - 1)
        if o.NAe: par_depth(e, o.NAe)
        if idx == o.NF + max(o.NA, o.NA0):
            e(f"s_lshl_b32 s{S_T0}, s{S_WAVE}, 2"); e(f"s_add_u32 s{S_T0}, s{S_T0}, {WFLAG-4}")
            e(f"v_mov_b32 v20, s{S_T0}"); e("v_mov_b32 v21, 1")
            e.lg("ds_write_b32 v20, v21", "wf")
            st("s.wland")
        if idx == 60: st("s.k0iss")
        if idx == 90: st("s.v30")
        issue0(item)
    st("A_issued")
    attn_pre(e, R, SW_TILES)
    e("s_barrier")
    st("bar1")
    if "nocw" in o.exp or "cw" in o.exp or "stopA" in o.exp:
        e.vm_all(); st("s.alland"); st.flush(); e("s_endpgm")
    pend = [('0', it) for it in loads[o.NA_BAR:]]
    for T in range(16):
        for s in range(3): pend.append(('1', T, s))
    cur1 = [None]
    def issue_pend():
        it = pend.pop(0)
        if it[0] == '0': cur1[0] = None; issue0(it[1])
        else:
            _, T, s = it
            if cur1[0] != T:
                kv_soff(e, S_KV1, T); cur1[0] = T; cur[0] = None
            dma_k(e, R, 3 * T + s, s, ('K1', T, s), o)
    while pend[0][0] == '0': issue_pend()
    def Kf0(T, s): return slot_reg(k0slot(T, s))
    def Vf0(T, w):
        sl = v0slot(T, w)
        if sl < 118: return slot_reg(sl)
        return "v[32:35]" if w == 1 else "v[28:31]"
    def k_wait_A(T):
        if T == -1: e.vm_wait(('K0', SW_TILES - 1, 2))
    def pv_hook_A(T):
        left = SW_TILES - 1 - T
        target = max(o.NB1, min(o.NA, 3 * left + o.NB1)) if o.NB1 else 0
        if T == SW_TILES - 2:
            e.vm_wait(('V0', SW_TILES - 1, 2))
            e.lg(f"ds_read_b128 v[32:35], {vr(R.vlds)} offset:{48*1024}", ("vo", 1))
            e.lg(f"ds_read_b128 v[28:31], {vr(R.vlds)} offset:{49*1024}", ("vo", 2))
            target = o.NB1
        while pend and len(e.vmq) < target: issue_pend()
    def vwait_A(T, w):
        e.vm_wait(('V0', T, w))
        if T == SW_TILES - 1 and w >= 1: e.lg_wait(("vo", w))
    attn_pass(e, R, SW_TILES, 0, Kf0, Vf0, S_PB, 0, k_wait=k_wait_A, v_wait=vwait_A, pv_hook=pv_hook_A, pre_done=True)
    st("A_done")
    e("s_barrier")
    if o.NB1 == o.NB:
        while pend:
            e.vm_depth(o.NB - 1)
            issue_pend()
    else:
        items = list(pend); pend.clear()
        q0 = list(e.vmq); c0 = cur1[0]
        fast = {i: e.newlabel("fastB") for i in range(len(items))}
        done = e.newlabel("doneB")
        e(f"v_mov_b32 v20, {WFLAG + 12}")
        def emit_item(it, force_soff):
            _, T, s = it
            if cur1[0] != T or force_soff:
                kv_soff(e, S_KV1, T); cur1[0] = T
            dma_k(e, R, 3 * T + s, s, ('K1', T, s), o)
        marks = [i for i, it in enumerate(items) if it[2] == 0]
        if o.NB1 == 0:
            spin = e.newlabel("spinB")
            e(f"s_mov_b32 s{S_CNT}, {o.poll_limit*8}")
            e.label(spin)
            e(f"s_sub_u32 s{S_CNT}, s{S_CNT}, 1"); e(f"s_cbranch_scc1 {fast[0]}")
            e.lg("ds_read_b32 v21, v20", "go"); e.lg_all()
            e(f"v_readfirstlane_b32 s{S_T0}, v21")
            e(f"s_cmp_lg_u32 s{S_T0}, 0"); e(f"s_cbranch_scc1 {fast[0]}")
            e("s_sleep 2"); e(f"s_branch {spin}")
        for i, it in enumerate(items if o.NB1 else []):
            if i in marks:
                e.lg("ds_read_b32 v21, v20", "go"); e.lg_all()
                e(f"v_readfirstlane_b32 s{S_T0}, v21")
                e(f"s_cmp_lg_u32 s{S_T0}, 0"); e(f"s_cbranch_scc1 {fast[i]}")
            e.vm_depth(o.NB1 - 1)
            emit_item(it, False)
        e(f"s_branch {done}")
        e.vmq = list(q0); cur1[0] = c0
        for i, it in enumerate(items):
            if i in marks: e.label(fast[i])
            e.vm_depth(o.NB - 1)
            emit_item(it, i in marks)
        e.label(done)
    st("B_issued")
    attn_pre(e, R, SW_TILES)
    e("s_barrier")
    st("bar3")
    pend1 = []
    for T in range(16, SW_TILES):
        for s in range(3): pend1.append(('K', T, s))
    for T in range(SW_TILES):
        for w in range(3): pend1.append(('V', T, w))
    slot_of = {it: i for i, it in enumerate(pend1)}
    freed = [0]
    issued1 = [0]
    cur2 = [None]
    def issue1():
        it = pend1[issued1[0]]; kind, T, x = it
        if cur2[0] != (kind, T):
            kv_soff(e, S_KV1, T); cur2[0] = (kind, T)
        e.vm_depth(o.NC - 1)
        if o.NCe: par_depth(e, o.NCe)
        if kind == 'K': ld_k(e, R, slot_reg(slot_of[it]), x, ('K1', T, x), o)
        else: ld_v(e, R, slot_reg(slot_of[it]), x, ('V1', T, x), o)
        issued1[0] += 1
    def refill():
        while issued1[0] < len(pend1) and issued1[0] < freed[0]: issue1()
    def qk_hook_C1(T):
        freed[0] = 3 * (T + 1); refill()
    def pv_hook_C1(T):
        freed[0] = min(118, 60 + 3 * (T + 1)); refill(); ovf_hook_C(T)
    def ovf_hook_C(T):
        if T == SW_TILES - 2:
            e.lg(f"ds_read_b128 v[32:35], {vr(R.vlds)} offset:{48*1024}", ("vo", 1))
            e.lg(f"ds_read_b128 v[28:31], {vr(R.vlds)} offset:{49*1024}", ("vo", 2))
    def vwait_C1(T, w):
        if T == SW_TILES - 1 and w >= 1: e.lg_wait(("vo", w))
    e(f"s_add_u32 s{S_T2}, s{S_LDSB}, {48*1024}")
    attn_pass(e, R, SW_TILES, 0, Kf0, Vf0, S_T2, 32, qk_hook=qk_hook_C1, v_wait=vwait_C1, pv_hook=pv_hook_C1, pre_done=True)
    refill()
    assert issued1[0] == len(pend1)
    st("C1_done")
    e("s_barrier")
    stage = [40 + 4 * (k - 64) for k in range(100, 112)]
    def Kf1(T, s):
        if T < 16: return ('lds', (3 * T + s) * 1024)
        return slot_reg(slot_of[('K', T, s)])
    def Vf1(T, w): return slot_reg(slot_of[('V', T, w)])
    def k_wait_C2(T):
        if T == -1: e.vm_wait(('K1', 15, 2))
        elif T >= 16: e.vm_wait(('K1', T, 2))
    def vwait_C2(T, w): e.vm_wait(('V1', T, w))
    attn_pass(e, R, SW_TILES, 1, Kf1, Vf1, S_PB, 0, k_wait=k_wait_C2, v_wait=vwait_C2, stage=stage, look=o.look)
    st("C2_done")
    e("s_barrier")
    if o.wb == 2: emit_wb(e)
    attn_pre(e, R, SW_TILES)
    e("s_barrier")
    st("bar7")
    attn_pass(e, R, SW_TILES, 1, Kf1, Vf1, S_PB, 0, stage=stage, pre_done=True, mark=lambda n: st("e." + n), look=o.look)
    st("E_done")
    e("s_barrier")
    if o.wb == 1: emit_wb(e)
    st.flush()
    e("s_endpgm")

V_LANE, V_LG, V_R, V_PL, V_PG, V_PQ = 0, 4, 5, 6, 7, 8
V_BO, V_BX, V_BX8, V_BH, V_BH8, V_AS, V_AS8 = 9, 10, 11, 12, 13, 14, 15
V_XR, V_CSQ, V_CSG = 16, 20, 24
V_W8, V_WX, V_WH, V_ML = 28, 29, 30, 31
W0 = 32
V_SEL, V_R2, V_ST2, V_PS, V_PSQ, V_L16 = 75, 79, 80, 81, 82, 83
V_T = 84
V_GL, V_LL = 72, 73
V_DA, V_DB = 72, 73
CW_K, CW_V = 86, 134
S_N1 = 74

_off3 = (2, 6, 0)
def wq_frag(t, s): return ("a", 10 * t + _off3[s])
def wo_frag(t, s): return ("a", 120 + 24 * t + 4 * s)
def wd_frag(t, s):
    if s == 0: return ("a", 240 + 4 * t) if t < 4 else ("v", 182)
    return ("v", 186 + 2 * t)
def wg_frag(t, s): return ("v", 196 + 10 * t + _off3[s])
def wu_frag(t, s): return ("v", 226 + 10 * t + _off3[s])
def win(fr): return f"{fr[0]}[{fr[1]}:{fr[1]+3}]"

V_OOB = 74
def selmask(e, dst, val, mask, other=None):
    e(f"s_mov_b32 vcc_lo, 0x{mask & 0xffffffff:08x}"); e(f"s_mov_b32 vcc_hi, 0x{mask >> 32:08x}")
    if other is None: e(f"v_cndmask_b32 {vr(dst)}, v{V_OOB}, {vr(val)}, vcc")
    else:
        assert dst != val
        e(f"v_mov_b32 {vr(dst)}, 0x{other:08x}")
        e(f"v_cndmask_b32 {vr(dst)}, {vr(dst)}, {vr(val)}, vcc")

def rows_mask(live, n): return mask64([32 * r + g for r in live for g in range(n)])
def cols_mask(live, alist=range(4)): return mask64([16 * a + n for a in alist for n in live])

def instance_offsets(e, live, pub_live=None, q_live=None):
    pub_live = live if pub_live is None else pub_live
    q_live = pub_live if q_live is None else q_live
    t, u = V_T, V_T + 1
    e(f"v_and_b32 {vr(t)}, 31, v{V_LANE}"); e(f"v_lshlrev_b32 {vr(t)}, 4, {vr(t)}")
    e(f"v_lshrrev_b32 {vr(u)}, 5, v{V_LANE}"); e(f"v_lshl_add_u32 {vr(t)}, {vr(u)}, 9, {vr(t)}")
    selmask(e, V_LG, t, rows_mask(live, 20))
    selmask(e, V_R2, t, rows_mask(live, 24))
    if o_packed[0]:
        row = live[-1]
        e(f"v_lshrrev_b32 {vr(t)}, 4, v{V_LANE}"); e(f"v_and_b32 {vr(u)}, 15, v{V_LANE}")
        e(f"v_lshlrev_b32 v{V_DA}, 10, {vr(t)}"); e(f"v_lshl_add_u32 v{V_DA}, {vr(u)}, 4, v{V_DA}"); e(f"v_add_u32 v{V_DA}, {512*row}, v{V_DA}")
        e(f"v_lshlrev_b32 v{V_DB}, 15, {vr(t)}"); e(f"v_bfe_u32 {vr(u)}, v{V_LANE}, 2, 2"); e(f"v_lshl_add_u32 v{V_DB}, {vr(u)}, 10, v{V_DB}")
        e(f"v_and_b32 {vr(u)}, 3, v{V_LANE}"); e(f"v_lshl_add_u32 v{V_DB}, {vr(u)}, 4, v{V_DB}"); e(f"v_add_u32 v{V_DB}, {512*row + 256}, v{V_DB}")
        e(f"v_lshrrev_b32 {vr(u)}, 5, v{V_LANE}")
    else:
        e(f"v_and_b32 v{V_GL}, 7, v{V_LANE}"); e(f"v_lshlrev_b32 v{V_GL}, 10, v{V_GL}"); e(f"v_add_u32 v{V_GL}, {512*live[-1] + 19*16}, v{V_GL}")
        e(f"v_and_b32 v{V_LL}, 3, v{V_LANE}"); e(f"v_lshlrev_b32 v{V_LL}, 10, v{V_LL}"); e(f"v_add_u32 v{V_LL}, {512*live[-1] + 19*16}, v{V_LL}")
    e(f"v_and_b32 {vr(t)}, 7, v{V_LANE}"); e(f"v_lshlrev_b32 {vr(t)}, 10, {vr(t)}")
    e(f"v_lshl_add_u32 {vr(t)}, {vr(u)}, 9, {vr(t)}"); e(f"v_add_u32 {vr(t)}, 384, {vr(t)}")
    selmask(e, V_ST2, t, rows_mask(live, 32))
    e(f"v_and_b32 {vr(t)}, 15, v{V_LANE}"); e(f"v_lshrrev_b32 {vr(u)}, 4, v{V_LANE}")
    e(f"v_lshlrev_b32 v{V_PL}, 9, {vr(t)}")
    e(f"v_lshl_add_u32 v{V_PG}, {vr(u)}, 5, v{V_PL}")
    e(f"v_add_u32 v{V_PS}, 384, v{V_PL}")
    e(f"v_lshl_add_u32 v{V_PL}, {vr(u)}, 4, v{V_PL}")
    e(f"v_lshlrev_b32 v{V_PQ}, 18, {vr(t)}")
    e(f"v_add_u32 v{V_PSQ}, 768, v{V_PQ}")
    e(f"v_lshl_add_u32 v{V_PQ}, {vr(u)}, 4, v{V_PQ}")
    cm = cols_mask(pub_live)
    e(f"s_mov_b32 vcc_lo, 0x{cm & 0xffffffff:08x}"); e(f"s_mov_b32 vcc_hi, 0x{cm >> 32:08x}")
    for r in (V_PL, V_PG): e(f"v_cndmask_b32 v{r}, v{V_OOB}, v{r}, vcc")
    selmask(e, V_PS, V_PS, cols_mask(pub_live, [0]))
    selmask(e, V_PQ, V_PQ, cols_mask(q_live))
    selmask(e, V_PSQ, V_PSQ, cols_mask(q_live, [0]))

def soffs(e, off_sreg, const, two=True):
    e(f"s_add_u32 s{S_A}, s{off_sreg}, {const}")
    if two: e(f"s_add_u32 s{S_B}, s{S_A}, 4096")

def poll(e, o, loads, abort, sleep=0):
    lab = e.newlabel("poll")
    e(f"s_mov_b32 s{S_CNT}, {o.poll_limit}")
    e.label(lab)
    for d, vo, s, imm in loads:
        e(f"buffer_load_dwordx4 {vr(d,4)}, v{vo}, s[{SRD_WS}:{SRD_WS+3}], s{s} offen offset:{imm} sc1")
    e(f"s_sub_u32 s{S_CNT}, s{S_CNT}, 1")
    e(f"s_cbranch_scc1 {abort}")
    e("s_waitcnt vmcnt(0)")
    vals = []
    for d, _, _, _ in loads: vals += [d + 1, d + 3]
    t = V_T
    e(f"v_max3_u32 v{t}, v{vals[0]}, v{vals[1]}, v{vals[2]}")
    i = 3
    while i < len(vals):
        if i + 1 < len(vals): e(f"v_max3_u32 v{t}, v{t}, v{vals[i]}, v{vals[i+1]}"); i += 2
        else: e(f"v_max_u32 v{t}, v{t}, v{vals[i]}"); i += 1
    e(f"v_cmp_eq_u32 vcc, -1, v{t}")
    if sleep:
        ok = e.newlabel("pok"); e(f"s_cbranch_vccz {ok}"); e(f"s_sleep {sleep}"); e(f"s_branch {lab}"); e.label(ok)
    else: e(f"s_cbranch_vccnz {lab}")
    e.vmq = []

def gather8(e, o, vo, abort, extra=None, n=8, base=W0):
    loads = [(base + 4 * k, vo, S_A if k < 4 else S_B, (k % 4) * 1024) for k in range(n)]
    if extra: loads.append((base + 4 * n, extra, S_A, 0))
    poll(e, o, loads, abort)

def sum_loads(e, n, base=W0):
    step = 1
    while step < n:
        for k in range(0, n, 2 * step):
            if k + step < n:
                a, b = base + 4 * k, base + 4 * (k + step)
                e(f"v_pk_add_f32 {vr(a,2)}, {vr(a,2)}, {vr(b,2)}")
                e(f"v_pk_add_f32 {vr(a+2,2)}, {vr(a+2,2)}, {vr(b+2,2)}")
        step *= 2

def dpp8(e, reg, op):
    for m in ("quad_perm:[1,0,3,2]", "quad_perm:[2,3,0,1]", "row_half_mirror"):
        e(f"v_{op}_f32_dpp v{reg}, v{reg}, v{reg} {m} row_mask:0xf bank_mask:0xf")
def dpp8x2(e, r0, r1, op):
    for m in ("quad_perm:[1,0,3,2]", "quad_perm:[2,3,0,1]", "row_half_mirror"):
        e(f"v_{op}_f32_dpp v{r0}, v{r0}, v{r0} {m} row_mask:0xf bank_mask:0xf")
        e(f"v_{op}_f32_dpp v{r1}, v{r1}, v{r1} {m} row_mask:0xf bank_mask:0xf")

def ln_from_stats(e, s1, s2, mean, rstd):
    e(f"v_mul_f32 v{mean}, {lit(1/640)}, v{s1}")
    e(f"v_mul_f32 v{s2}, {lit(1/640)}, v{s2}")
    e(f"v_fma_f32 v{s2}, -v{mean}, v{mean}, v{s2}")
    e(f"v_max_f32 v{s2}, 0, v{s2}")
    e(f"v_add_f32 v{s2}, {lit(EPS)}, v{s2}")
    e(f"v_rsq_f32 v{rstd}, v{s2}")

def pub(e, D, vo, sreg, imm, fl, tag):
    e.vm(f"buffer_store_dwordx4 {vr(D,4)}, v{vo}, s[{SRD_WS}:{SRD_WS+3}], s{sreg} offen offset:{imm} {fl}", tag)

def run_tiles(e, tiles, accs, store, btags=None, twait=None):
    n = len(accs); lag = n - 1
    for i, (tid, steps) in enumerate(tiles):
        D = vr(accs[i % n], 4)
        if twait and tid in twait: e.lg_wait(twait[tid])
        for s, (A, B) in enumerate(steps):
            if i == 0 and btags: e.lg_wait(btags[s])
            e(f"v_mfma_f32_16x16x32_bf16 {D}, {A}, {B}, {'0' if s == 0 else D}")
        if i >= lag: store(tiles[i - lag][0], accs[(i - lag) % n])
    for i in range(max(0, len(tiles) - lag), len(tiles)): store(tiles[i][0], accs[i % n])

def read_bx(e, B):
    e.lg(f"ds_read_b128 {vr(B,4)}, v{V_BX}", "b0"); e.lg(f"ds_read_b128 {vr(B+4,4)}, v{V_BX} offset:64", "b1")
    e.lg(f"ds_read_b64 {vr(B+8,2)}, v{V_BX8}", "b2")
    e(f"v_mov_b32 v{B+10}, 0"); e(f"v_mov_b32 v{B+11}, 0")
def read_as(e, A):
    e.lg(f"ds_read_b128 {vr(A,4)}, v{V_AS}", "a0"); e.lg(f"ds_read_b128 {vr(A+4,4)}, v{V_AS} offset:64", "a1")
    e.lg(f"ds_read_b64 {vr(A+8,2)}, v{V_AS8}", "a2")
    e(f"v_mov_b32 v{A+10}, 0"); e(f"v_mov_b32 v{A+11}, 0")

def stage_Q(e, fl, reg_index, shadow=None):
    B, A = W0 + 8, W0 + 20
    read_bx(e, B); read_as(e, A)
    e(f"s_add_u32 s{S_A}, s{S_ROWN}, {reg_index*RG}")
    if shadow: shadow()
    tiles = [(t, [(win(wq_frag(t, s)), vr(B + 4 * s, 4)) for s in range(3)]) for t in range(12)]
    tiles.insert(1, (12, [(vr(A + 4 * s, 4), vr(B + 4 * s, 4)) for s in range(3)]))
    SD = W0 + 4
    def store(t, D): pub(e, D, V_PQ, S_A, 64 * t, fl, ("pq", t))
    first, stats, rest = tiles[0], tiles[1], tiles[2:]
    run_tiles(e, [first], [W0 + 32, W0 + 36], lambda t, D: None, btags=["b0", "b1", "b2"])
    e.lg_wait("a2")
    for s, (Aop, Bop) in enumerate(stats[1]):
        e(f"v_mfma_f32_16x16x32_bf16 {vr(SD,4)}, {Aop}, {Bop}, {'0' if s == 0 else vr(SD,4)}")
    accs = [W0 + 36, W0, W0 + 20, W0 + 32]
    pend = [(0, W0 + 32)]
    for i, (t, steps) in enumerate(rest):
        D = accs[i % 4]
        for s, (Aop, Bop) in enumerate(steps):
            e(f"v_mfma_f32_16x16x32_bf16 {vr(D,4)}, {Aop}, {Bop}, {'0' if s == 0 else vr(D,4)}")
        pend.append((t, D))
        if i >= 2: store(*pend.pop(0))
    e(f"v_cndmask_b32 v{SD+1}, v{SD+1}, v{SD+2}, s[{S_N1}:{S_N1+1}]")
    while pend: store(*pend.pop(0))
    pub(e, SD, V_PSQ, S_A, 0, fl, "pqs")

def stage_GU(e, fl, const, with_stats=True, shadow=None):
    B, A = W0 + 8, W0 + 20
    read_bx(e, B)
    if with_stats: read_as(e, A)
    e(f"s_add_u32 s{S_A}, s{S_ROWN}, {const}" if const >= 0 else f"s_sub_u32 s{S_A}, s{S_ROWN}, {-const}")
    if shadow: shadow()
    def tile(d, f, waits=None):
        d = vr(d, 4)
        for s in range(3):
            if waits: e.lg_wait(waits[s])
            e(f"v_mfma_f32_16x16x32_bf16 {d}, {f(s)}, {vr(B+4*s,4)}, {'0' if s == 0 else d}")
    def store(t, G, U):
        e(f"v_swap_b32 v{G+2}, v{U}"); e(f"v_swap_b32 v{G+3}, v{U+1}")
        pub(e, G, V_PG, S_A, 128 * t, fl, ("pg", t, 0))
        pub(e, U, V_PG, S_A, 128 * t + 16, fl, ("pg", t, 1))
    g = lambda t: (lambda s: win(wg_frag(t, s)))
    u = lambda t: (lambda s: win(wu_frag(t, s)))
    P0, P1, S = (W0 + 32, W0 + 36), (W0 + 20, W0 + 24), W0
    tile(P0[0], g(0), waits=["b0", "b1", "b2"]); tile(P0[1], u(0))
    if with_stats:
        e.lg_wait("a2")
        tile(S, lambda s: vr(A + 4 * s, 4))
    tile(P1[0], g(1)); tile(P1[1], u(1))
    store(0, *P0)
    if with_stats: e(f"v_cndmask_b32 v{S+1}, v{S+1}, v{S+2}, s[{S_N1}:{S_N1+1}]")
    tile(P0[0], g(2)); tile(P0[1], u(2))
    store(1, *P1)
    store(2, *P0)
    if with_stats: pub(e, S, V_PS, S_A, 0, fl, "pgs")

def stage_WO(e, fl, region, shadow=None):
    B = W0
    for s in range(6): e.lg(f"ds_read_b128 {vr(B+4*s,4)}, v{V_BO} offset:{64*s}", ("o", s))
    e(f"s_add_u32 s{S_A}, s{S_LOWN}, {region*RG}")
    if shadow: shadow()
    tiles = [(t, [(win(wo_frag(t, s)), vr(B+4*s,4)) for s in range(6)]) for t in range(5)]
    run_tiles(e, tiles, [W0 + 24, W0 + 28, W0 + 32], lambda t, D: pub(e, D, V_PL, S_A, 64 * t, fl, ("po", t)), btags=[("o", s) for s in range(6)])

def stage_D(e, fl, region):
    B = W0
    e.lg(f"ds_read_b128 {vr(B,4)}, v{V_BH}", "h0"); e.lg(f"ds_read_b64 {vr(B+4,2)}, v{V_BH8}", "h1")
    e(f"v_mov_b32 v{B+6}, 0"); e(f"v_mov_b32 v{B+7}, 0")
    e(f"s_add_u32 s{S_A}, s{S_LOWN}, {region*RG}")
    tiles = [(t, [(win(wd_frag(t, 0)), vr(B,4)), (win(wd_frag(t, 1)), vr(B+4,4))]) for t in range(5)]
    run_tiles(e, tiles, [W0 + 8 + 4 * i for i in range(5)], lambda t, D: pub(e, D, V_PL, S_A, 64 * t, fl, ("pd", t)), btags=["h0", "h1"])

def fast_gather(e, o, loads, body, abort, pre=0, early=False):
    n = len(loads); t = V_T
    lab = e.newlabel("fpoll")
    e(f"s_mov_b32 s{S_CNT}, {o.poll_limit}")
    if pre: e(f"s_sleep {pre}")
    e.label(lab)
    for d, vo, s, imm in loads:
        e(f"buffer_load_dwordx4 {vr(d,4)}, v{vo}, s[{SRD_WS}:{SRD_WS+3}], s{s} offen offset:{imm} sc1")
    e(f"s_sub_u32 s{S_CNT}, s{S_CNT}, 1")
    e(f"s_cbranch_scc1 {abort}")
    first = [True]
    if early:
        d = loads[0][0]
        e(f"s_waitcnt vmcnt({n-1})")
        e(f"v_max_u32 v{t}, v{d+1}, v{d+3}")
        e(f"v_cmp_eq_u32 vcc, -1, v{t}")
        e(f"s_cbranch_vccnz {lab}")
        first[0] = False
    def wait(k): e(f"s_waitcnt vmcnt({n-1-k})")
    def chk(k):
        d = loads[k][0]
        if first[0]: e(f"v_max_u32 v{t}, v{d+1}, v{d+3}"); first[0] = False
        else: e(f"v_max3_u32 v{t}, v{t}, v{d+1}, v{d+3}")
    body(wait, chk)
    e(f"v_cmp_eq_u32 vcc, -1, v{t}")
    e(f"s_cbranch_vccnz {lab}")
    e.vmq = []

def padd(e, a, b, neg=False):
    m = " neg_lo:[0,1] neg_hi:[0,1]" if neg else ""
    e(f"v_pk_add_f32 {vr(a,2)}, {vr(a,2)}, {vr(b,2)}{m}"); e(f"v_pk_add_f32 {vr(a+2,2)}, {vr(a+2,2)}, {vr(b+2,2)}{m}")

def g_soffs(e, off_sreg, const, two=True):
    e(f"s_add_u32 s{S_GA}, s{off_sreg}, {const}")
    if two: e(f"s_add_u32 s{S_GB}, s{S_GA}, 4096")
def g_loads(vo, n=8, base=W0): return [(base + 4 * k, vo, S_GA if k < 4 else S_GB, (k % 4) * 1024) for k in range(n)]

def hop_LG(e, o, inst, k, abort, final_only=False):
    skip = e.newlabel("notleader")
    e(f"s_cmp_lg_u32 s{S_HQ}, 0"); e(f"s_cbranch_scc1 {skip}")
    g_soffs(e, S_LGRP, L_REG(inst, k) * RG, two=False)
    e(f"s_add_u32 s{S_A}, s{S_GOWN}, {G_OFF(inst,k)}")
    X = W0 + 32
    off = 1 if o.early else 0
    def body4(wait, chk):
        wait(off + 1); chk(off); chk(off + 1); padd(e, W0, W0 + 4)
        wait(off + 2); chk(off + 2); padd(e, W0, W0 + 8)
        wait(off + 3); chk(off + 3); padd(e, W0, W0 + 12)
    fast_gather(e, o, ([(X, V_LL, S_GA, 0)] if o.early else []) + g_loads(V_LG, 4), body4, abort, pre=o.preL, early=o.early)
    e(f"buffer_store_dwordx4 {vr(W0,4)}, v{V_LG}, s[{SRD_WS}:{SRD_WS+3}], s{S_A} offen sc1")
    if o.preGn:
        join = e.newlabel("lgjoin")
        e(f"s_branch {join}")
        e.label(skip)
        if not final_only: e(f"s_sleep {o.preGn}")
        e.label(join)
    else: e.label(skip)
    if final_only:
        e(f"s_cmp_lg_u32 s{S_H}, 0"); e(f"s_cbranch_scc1 L_done")
    g_soffs(e, S_GGRP, G_OFF(inst, k))
    e.vmq = []
    def body8(wait, chk):
        c = lambda k: chk(off + k)
        w = lambda k: wait(off + k)
        w(1); c(0); c(1); padd(e, W0, V_XR); padd(e, W0, W0 + 4)
        w(3); c(2); c(3); padd(e, W0 + 8, W0 + 12); padd(e, W0, W0 + 8)
        w(5); c(4); c(5); padd(e, W0 + 16, W0 + 20); padd(e, W0, W0 + 16)
        w(6); c(6); padd(e, W0, W0 + 24)
        w(7); c(7); padd(e, W0, W0 + 28)
    fast_gather(e, o, ([(X, V_GL, S_GA, 0)] if o.early else []) + g_loads(V_LG, 8), body8, abort, pre=o.preG, early=o.early)

def hop_packed(e, o, abort, inst, k, pre):
    if inst == 2 and k == 1:
        e(f"s_cmp_lg_u32 s{S_H}, 0"); e(f"s_cbranch_scc1 L_done")
    e(f"s_lshl_b32 s{S_T0}, s{S_J}, 12"); e(f"s_add_u32 s{S_T0}, s{S_T0}, {L_REG(inst,k)*RG}")
    for x in range(8): e(f"s_add_u32 s{SW8[x]}, s{S_T0}, {32768*x}")
    B0 = W0 + 32
    loads = [(B0, V_DB, SW8[0], 0), (B0 + 4, V_DB, SW8[4], 0)] + [(W0 + 4 * x, V_DA, SW8[x], 0) for x in range(8)]
    T = V_T + 1
    def xrow(a):
        for sw in ("v_permlane16_swap_b32", "v_permlane32_swap_b32"):
            for r in range(4):
                t = B0 + 4 + r
                e(f"v_mov_b32 v{t}, v{a+r}")
            for r in range(4): e(f"{sw} v{a+r}, v{B0+4+r}")
            for h in range(2): e(f"v_pk_add_f32 {vr(a+2*h,2)}, {vr(a+2*h,2)}, {vr(B0+4+2*h,2)}")
    def body(wait, chk):
        wait(1); chk(0); chk(1); padd(e, B0, B0 + 4)
        for m in ("row_ror:4", "row_ror:8"):
            for r in range(4): e(f"v_add_f32_dpp v{B0+r}, v{B0+r}, v{B0+r} {m} row_mask:0xf bank_mask:0xf")
        wait(3); chk(2); chk(3); padd(e, W0, W0 + 4)
        xrow(B0)
        wait(5); chk(4); chk(5); padd(e, W0 + 8, W0 + 12); padd(e, W0, W0 + 8)
        wait(7); chk(6); chk(7); padd(e, W0 + 16, W0 + 20); padd(e, W0, W0 + 16)
        wait(8); chk(8); padd(e, W0, W0 + 24)
        wait(9); chk(9); padd(e, W0, W0 + 28)
    fast_gather(e, o, loads, body, abort, pre=pre)
    xrow(W0)
    e("s_mov_b32 vcc_lo, 0xffff0000"); e("s_mov_b32 vcc_hi, 0xffff0000")
    for r in range(4): e(f"v_cndmask_b32 v{W0+r}, v{W0+r}, v{B0+r}, vcc")
    m = rows_mask([LIVE[inst][-1]], 20)
    e(f"s_mov_b32 vcc_lo, 0x{m & 0xffffffff:08x}"); e(f"s_mov_b32 vcc_hi, 0x{m >> 32:08x}")
    for r in range(4): e(f"v_cndmask_b32 v{W0+r}, 0, v{W0+r}, vcc")
    padd(e, W0, V_XR)

def hop_final(e, o, abort, k=1):
    if k == 1:
        e(f"s_cmp_lg_u32 s{S_H}, 0"); e(f"s_cbranch_scc1 L_done")
    e(f"s_lshl_b32 s{S_T0}, s{S_J}, 12"); e(f"s_add_u32 s{S_T0}, s{S_T0}, {L_REG(2,k)*RG}")
    for x in range(8): e(f"s_add_u32 s{SW8[x]}, s{S_T0}, {32768*x}")
    dst = [W0 + 4 * k for k in range(8)] + [CW_K + 4 * k for k in range(24)]
    loads = [(dst[4 * x + q], V_LG, SW8[x], 1024 * q) for x in range(8) for q in range(4)]
    A0, A1 = loads[0][0], loads[1][0]
    def body(wait, chk):
        wait(1); chk(0); chk(1); padd(e, A0, V_XR)
        for k in range(2, 32):
            if k % 2 == 0: wait(min(k + 1, 31)); chk(k); chk(k + 1)
            padd(e, A0 if k % 2 == 0 else A1, loads[k][0])
        padd(e, A0, A1)
    fast_gather(e, o, loads, body, abort, pre=o.preF if k == 1 else o.preF0)

def residual_update(e):
    e(f"v_cvt_pk_bf16_f32 v{W0+4}, v{W0}, v{W0+1}")
    e(f"v_cvt_pk_bf16_f32 v{W0+5}, v{W0+2}, v{W0+3}")
    e.lg(f"ds_write_b64 v{V_WX}, {vr(W0+4,2)}", "wx")
def residual_unpack(e, p):
    e(f"v_lshlrev_b32 v{V_XR}, 16, v{p}"); e(f"v_and_b32 v{V_XR+1}, 0xffff0000, v{p}")
    e(f"v_lshlrev_b32 v{V_XR+2}, 16, v{p+1}"); e(f"v_and_b32 v{V_XR+3}, 0xffff0000, v{p+1}")

def store_out(e, row, only=True):
    skip = e.newlabel("noout")
    e(f"s_cmp_lg_u32 s{S_H}, 0"); e(f"s_cbranch_scc1 {skip}")
    make_srd(e, SRD_T, S_OUT, 2560)
    e(f"v_and_b32 v{V_T}, 31, v{V_LANE}"); e(f"v_lshlrev_b32 v{V_T}, 3, v{V_T}")
    e(f"s_mul_i32 s{S_T0}, s{S_J}, 160"); e(f"s_add_u32 s{S_T0}, s{S_T0}, {row*1280}")
    selmask(e, V_T, V_T, rows_mask([row], 20))
    e(f"buffer_store_dwordx2 {vr(W0+4,2)}, v{V_T}, s[{SRD_T}:{SRD_T+3}], s{S_T0} offen")
    e.label(skip)

def combine_publish(e, fl, parts, mlbase, region):
    T = W0
    e(f"v_mov_b32 v{V_T}, {mlbase}")
    e.lg(f"ds_read_b128 {vr(T,4)}, v{V_T}", "ml0"); e.lg(f"ds_read_b128 {vr(T+4,4)}, v{V_T} offset:16", "ml1")
    P = T + 8
    cur = None
    for w in range(4):
        if cur is None or not (0 <= parts[w] - cur < 60000):
            e(f"v_add_u32 v{V_T+1}, {parts[w]}, v{V_L16}"); cur = parts[w]
        for par in range(2):
            e.lg(f"ds_read_b128 {vr(P+8*w+4*par,4)}, v{V_T+1} offset:{parts[w] - cur + 768*par}", ("p", w, par))
    e(f"s_add_u32 s{S_A}, s{S_ROWN}, {region*RG}")
    e.lg_wait("ml1")
    m = [T, T + 2, T + 4, T + 6]; l = [T + 1, T + 3, T + 5, T + 7]
    M, Ls = V_T, V_T + 1
    e(f"v_max3_f32 v{M}, v{m[0]}, v{m[1]}, v{m[2]}"); e(f"v_max_f32 v{M}, v{M}, v{m[3]}")
    for w in range(4): e(f"v_sub_f32 v{m[w]}, v{m[w]}, v{M}")
    for w in range(4): e(f"v_exp_f32 v{m[w]}, v{m[w]}")
    e(f"v_mul_f32 v{Ls}, v{m[0]}, v{l[0]}")
    for w in range(1, 4): e(f"v_fma_f32 v{Ls}, v{m[w]}, v{l[w]}, v{Ls}")
    for w in range(4):
        e.lg_wait(("p", w, 1))
        a = P + 8 * w
        e(f"v_pk_add_f32 {vr(a,2)}, {vr(a,2)}, {vr(a+4,2)}"); e(f"v_pk_add_f32 {vr(a+2,2)}, {vr(a+2,2)}, {vr(a+6,2)}")
        for r in range(4):
            if w == 0: e(f"v_mul_f32 v{P+r}, v{m[0]}, v{P+r}")
            else: e(f"v_fmac_f32 v{P+r}, v{m[w]}, v{a+r}")
    e(f"s_mov_b32 vcc_lo, 0"); e(f"s_mov_b32 vcc_hi, 0x00010000")
    e(f"v_cndmask_b32 v{P}, v{P}, v{M}, vcc"); e(f"v_cndmask_b32 v{P+1}, v{P+1}, v{Ls}, vcc")
    pub(e, P, V_R, S_A, 0, fl, "r1")

SW8 = [4, 6, 8, 10, 12, 16, 18, 20]
def hop_R1(e, o, region, row, abort):
    g_soffs(e, S_RGRP, region * RG)
    X = W0 + 32
    M, wv = X + 2, X + 3
    acc = W0 + 36
    loads = [(X, V_ML, S_GA, 0)] + g_loads(V_R)
    def body(wait, chk):
        if not o.early: wait(0); chk(0)
        e(f"v_mov_b32 v{M}, v{X}")
        dpp8(e, M, "max")
        e(f"v_sub_f32 v{wv}, v{X}, v{M}"); e(f"v_exp_f32 v{wv}, v{wv}")
        wait(4); chk(1); chk(2)
        e(f"v_mul_f32 v{X+1}, v{wv}, v{X+1}")
        chk(3); chk(4)
        e(f"v_add_f32_dpp v{X+1}, v{X+1}, v{X+1} quad_perm:[1,0,3,2] row_mask:0xf bank_mask:0xf")
        wait(8); chk(5); chk(6)
        e(f"v_add_f32_dpp v{X+1}, v{X+1}, v{X+1} quad_perm:[2,3,0,1] row_mask:0xf bank_mask:0xf")
        chk(7); chk(8)
        e(f"v_add_f32_dpp v{X+1}, v{X+1}, v{X+1} row_half_mirror row_mask:0xf bank_mask:0xf")
        e(f"v_rcp_f32 v{X+1}, v{X+1}")
        e(f"v_mul_f32 v{wv}, v{wv}, v{X+1}")
        for k in range(8): e(f"v_readlane_b32 s{SW8[k]}, v{wv}, {k}")
        for k in range(8):
            for h in range(2):
                a, m = acc + 2 * h, W0 + 4 * k + 2 * h
                sp = f"s[{SW8[k]}:{SW8[k]+1}]"
                if k == 0: e(f"v_pk_mul_f32 {vr(a,2)}, {vr(m,2)}, {sp} op_sel_hi:[1,0]")
                else: e(f"v_pk_fma_f32 {vr(a,2)}, {vr(m,2)}, {sp}, {vr(a,2)} op_sel_hi:[1,0,1]")
    fast_gather(e, o, loads, body, abort, pre=o.preR, early=o.early)
    e(f"v_cvt_pk_bf16_f32 v{acc}, v{acc}, v{acc+1}"); e(f"v_cvt_pk_bf16_f32 v{acc+1}, v{acc+2}, v{acc+3}")
    e.lg(f"ds_write_b64 v{V_W8}, {vr(acc,2)} offset:{ACT_O - SB + 384*row}", "wo")

def ln_gather(e, o, vo, vstat, cs, abort):
    X = W0 + 32; mean, rstd = X + 2, X + 3; T = W0 + 36
    loads = [(X, vstat, S_GA, 0)] + g_loads(vo)
    q = lambda r, m: e(f"v_add_f32_dpp v{r}, v{r}, v{r} {m} row_mask:0xf bank_mask:0xf")
    def body(wait, chk):
        if not o.early: wait(0); chk(0)
        q(X, "quad_perm:[1,0,3,2]"); q(X + 1, "quad_perm:[1,0,3,2]")
        wait(2); chk(1)
        q(X, "quad_perm:[2,3,0,1]"); q(X + 1, "quad_perm:[2,3,0,1]")
        chk(2)
        q(X, "row_half_mirror"); q(X + 1, "row_half_mirror")
        padd(e, W0, W0 + 4)
        e(f"v_mul_f32 v{mean}, {lit(1/640)}, v{X}"); e(f"v_mul_f32 v{X+1}, {lit(1/640)}, v{X+1}")
        wait(4); chk(3); chk(4)
        e(f"v_fma_f32 v{X+1}, -v{mean}, v{mean}, v{X+1}")
        padd(e, W0 + 8, W0 + 12)
        e(f"v_max_f32 v{X+1}, 0, v{X+1}"); e(f"v_add_f32 v{X+1}, {lit(EPS)}, v{X+1}")
        padd(e, W0, W0 + 8)
        e(f"v_rsq_f32 v{rstd}, v{X+1}")
        wait(6); chk(5); chk(6)
        e(f"v_pk_mul_f32 {vr(T,2)}, {vr(cs,2)}, {vr(mean,2)} op_sel_hi:[1,0]"); e(f"v_pk_mul_f32 {vr(T+2,2)}, {vr(cs+2,2)}, {vr(mean,2)} op_sel_hi:[1,0]")
        padd(e, W0 + 16, W0 + 20); padd(e, W0, T, neg=True); padd(e, W0, W0 + 16)
        wait(7); chk(7); padd(e, W0, W0 + 24)
        wait(8); chk(8); padd(e, W0, W0 + 28)
    fast_gather(e, o, loads, body, abort, pre=o.preR, early=o.early)
    e(f"v_pk_mul_f32 {vr(W0,2)}, {vr(W0,2)}, {vr(mean,2)} op_sel:[0,1] op_sel_hi:[1,1]")
    e(f"v_pk_mul_f32 {vr(W0+2,2)}, {vr(W0+2,2)}, {vr(mean,2)} op_sel:[0,1] op_sel_hi:[1,1]")

def hop_R2(e, o, inst, abort):
    ln_gather(e, o, V_R2, V_ST2, V_CSG, abort)
    e(f"v_max_f32 v{W0}, 0, v{W0}"); e(f"v_max_f32 v{W0+1}, 0, v{W0+1}")
    e(f"v_pk_mul_f32 {vr(W0,2)}, {vr(W0,2)}, {vr(W0+2,2)}")
    e(f"v_cvt_pk_bf16_f32 v{W0}, v{W0}, v{W0+1}")
    e.lg(f"ds_write_b32 v{V_WH}, v{W0}", "wh")

def q_consume(e, base, X, row):
    dpp8x2(e, X, X + 1, "add")
    sum_loads(e, 8, base)
    mean, rstd = X + 2, X + 3
    ln_from_stats(e, X, X + 1, mean, rstd)
    for r in range(4): e(f"v_fma_f32 v{base+r}, -v{mean}, v{V_CSQ+r}, v{base+r}")
    for r in range(4): e(f"v_mul_f32 v{base+r}, v{rstd}, v{base+r}")
    e(f"v_cvt_pk_bf16_f32 v{base}, v{base}, v{base+1}"); e(f"v_cvt_pk_bf16_f32 v{base+1}, v{base+2}, v{base+3}")
    e.lg(f"ds_write_b64 v{V_W8}, {vr(base,2)} offset:{QARR - SB + 384*row}", "wq")

def hop_R3(e, o, region, row, abort):
    ln_gather(e, o, V_R, V_ML, V_CSQ, abort)
    e(f"v_cvt_pk_bf16_f32 v{W0}, v{W0}, v{W0+1}"); e(f"v_cvt_pk_bf16_f32 v{W0+1}, v{W0+2}, v{W0+3}")
    e.lg(f"ds_write_b64 v{V_W8}, {vr(W0,2)} offset:{QARR - SB + 384*row}", "wq")

def go_flag(e):
    e(f"v_mov_b32 v{V_T}, {WFLAG + 12}"); e(f"v_mov_b32 v{V_T+1}, 1")
    e.lg(f"ds_write_b32 v{V_T}, v{V_T+1}", "go")

def chain(e, o, fl, inst, live, abort, st):
    c = f"c{inst}."
    if inst == 0 and o.NB1 != o.NB and o.go_at == "R1": go_flag(e)
    if inst == 0: o._save = (o.preR, o.preL, o.preG); o.preL, o.preG = o.preL + o.preL0, o.preG + o.preG0
    st.rounds(f"n{inst}.R1")
    st(c + "R1")
    pk = o.packed.split(",") if o.packed else []
    if inst == 0 and o.split_tok:
        assert "00" not in pk
        TO, TD = W0 + 38, W0 + 36
        omask = 0xffffffff00ff0000
        def shadow():
            tok2_offsets(e, TO, W0 + 24, others_only=True)
            e(f"s_mov_b32 s{S_B}, {TOK2}")
            set_exec(e, omask)
            e.vm(f"buffer_load_dwordx2 {vr(TD,2)}, v{TO}, s[{SRD_WS}:{SRD_WS+3}], s{S_B} offen sc1", "tok2b")
            e("s_mov_b64 exec, -1")
        stage_WO(e, fl, L_REG(inst, 0), shadow=shadow)
        ok, lab = e.newlabel("tok2ok"), e.newlabel("tok2re")
        e.vm_wait("tok2b")
        set_exec(e, omask)
        e(f"v_cmp_ne_u32 vcc, s{S_TAG}, v{TD}")
        e(f"s_cbranch_vccz {ok}")
        e(f"s_mov_b32 s{S_CNT}, {o.poll_limit}")
        e.label(lab)
        e(f"buffer_load_dwordx2 {vr(TD,2)}, v{TO}, s[{SRD_WS}:{SRD_WS+3}], s{S_B} offen sc1")
        e(f"s_sub_u32 s{S_CNT}, s{S_CNT}, 1"); e(f"s_cbranch_scc1 {abort}")
        e("s_waitcnt vmcnt(0)")
        e(f"v_cmp_ne_u32 vcc, s{S_TAG}, v{TD}")
        e(f"s_cbranch_vccnz {lab}")
        e.label(ok)
        e("s_mov_b64 exec, -1")
        st(c + "WO")
        hop_LG(e, o, inst, 0, abort)
    elif f"{inst}0" in pk:
        stage_WO(e, "sc1", L_REG(inst, 0))
        st(c + "WO")
        hop_packed(e, o, abort, inst, 0, o.preP0 if inst == 0 else o.preF0)
    elif inst == 2 and o.direct0:
        stage_WO(e, "sc1", L_REG(inst, 0))
        st(c + "WO")
        hop_final(e, o, abort, k=0)
    else:
        stage_WO(e, fl, L_REG(inst, 0))
        st(c + "WO")
        hop_LG(e, o, inst, 0, abort)
    if inst == 0 and o.NB1 != o.NB and o.go_at == "G1": go_flag(e)
    if inst == 0: o.preR, o.preL, o.preG = o._save
    st.rounds(f"n{inst}.G1")
    st(c + "G1")
    residual_update(e)
    def sh_gu():
        residual_unpack(e, W0 + 4); g_soffs(e, S_RGRP, R2_REG[inst] * RG)
    stage_GU(e, fl, R2_REG[inst] * RG, shadow=sh_gu)
    st(c + "GU")
    hop_R2(e, o, inst, abort)
    st.rounds(f"n{inst}.R2")
    st(c + "R2")
    if f"{inst}1" in pk:
        stage_D(e, "sc1", L_REG(inst, 1))
        st(c + "D")
        hop_packed(e, o, abort, inst, 1, o.preP1 if inst == 0 else (o.preF if inst == 2 else o.preF1))
    elif inst == 2 and o.direct:
        stage_D(e, "sc1", L_REG(inst, 1))
        st(c + "D")
        hop_final(e, o, abort)
    else:
        stage_D(e, fl, L_REG(inst, 1))
        st(c + "D")
        hop_LG(e, o, inst, 1, abort, final_only=(inst == 2))
    st.rounds(f"n{inst}.G2")
    st(c + "G2")
    if inst == 2:
        e(f"v_cvt_pk_bf16_f32 v{W0+4}, v{W0}, v{W0+1}"); e(f"v_cvt_pk_bf16_f32 v{W0+5}, v{W0+2}, v{W0+3}")
        for r in LIVE[2]: store_out(e, r, only=len(LIVE[2]) == 1)
        e("s_cmp_lg_u32 s2, 0"); e("s_cbranch_scc1 L_done")
        e(f"v_mov_b32 v{V_T}, s{S_TAG}"); e(f"v_mov_b32 v{V_T+1}, {EPOCH_OFF}")
        e("s_mov_b64 exec, 1")
        e(f"buffer_store_dword v{V_T}, v{V_T+1}, s[{SRD_WS}:{SRD_WS+3}], 0 offen sc1")
        e("s_mov_b64 exec, -1")
        return
    residual_update(e)
    qrow = 0 if inst == 0 else 1
    def sh_q():
        residual_unpack(e, W0 + 4); g_soffs(e, S_RGRP, R3_REG[inst] * RG)
        if inst == 1 and 0 in LIVE[1]:
            store_out(e, 0)
            cm = cols_mask([1]); e(f"s_mov_b32 vcc_lo, 0x{cm & 0xffffffff:08x}"); e(f"s_mov_b32 vcc_hi, 0x{cm >> 32:08x}")
            e(f"v_cndmask_b32 v{V_PQ}, v{V_OOB}, v{V_PQ}, vcc"); e(f"v_cndmask_b32 v{V_PSQ}, v{V_OOB}, v{V_PSQ}, vcc")
    stage_Q(e, fl, R3_REG[inst] - qrow, shadow=sh_q)
    st(c + "Q")
    hop_R3(e, o, R3_REG[inst], qrow, abort)
    e.lg_all()
    st.rounds(f"n{inst}.R3")
    st(c + "R3")

TOK1 = 21 * RG
TOK2 = TOK1 + 32768
EPOCH_OFF = 896
S_TAG = 73

LIVE = {0: [0], 1: [0, 1], 2: [1]}
o_direct = [True, False]
o_packed = [False]
o_exp = ['']
o_dset = set()
def emit_resets_P(e):
    e(f"v_mov_b32 v{W0}, -1"); e(f"v_mov_b32 v{W0+1}, -1"); e(f"v_mov_b32 v{W0+2}, -1"); e(f"v_mov_b32 v{W0+3}, -1")
    for r in [4, 5, 6]:
        e(f"s_add_u32 s{S_A}, s{S_ROWN}, {r*RG}")
        e.vm(f"buffer_store_dwordx4 {vr(W0,4)}, v{V_R}, s[{SRD_WS}:{SRD_WS+3}], s{S_A} offen sc1", "rstp")
    e(f"v_lshlrev_b32 v{V_T}, 4, v{V_LANE}")
    selmask(e, W0 + 4, V_T, rows_mask([0], 24))
    e(f"s_add_u32 s{S_A}, s{S_ROWN}, {R2_REG['P']*RG}")
    e.vm(f"buffer_store_dwordx4 {vr(W0,4)}, v{W0+4}, s[{SRD_WS}:{SRD_WS+3}], s{S_A} offen sc1", "rstp")

def emit_resets(e, f):
    e(f"v_mov_b32 v{W0}, -1"); e(f"v_mov_b32 v{W0+1}, -1"); e(f"v_mov_b32 v{W0+2}, -1"); e(f"v_mov_b32 v{W0+3}, -1")
    def reset(vo, sreg, const):
        e(f"s_add_u32 s{S_A}, s{sreg}, {const}")
        e.vm(f"buffer_store_dwordx4 {vr(W0,4)}, v{vo}, s[{SRD_WS}:{SRD_WS+3}], s{S_A} offen {f}", "rst")
    e(f"v_and_b32 v{V_T}, 31, v{V_LANE}"); e(f"v_lshlrev_b32 v{V_T}, 4, v{V_T}")
    e(f"v_lshrrev_b32 v{V_T+1}, 5, v{V_LANE}"); e(f"v_lshl_add_u32 v{V_T}, v{V_T+1}, 9, v{V_T}")
    liv = dict(LIVE); liv['P'] = [0]
    skip = e.newlabel("norstg")
    e(f"s_cmp_lg_u32 s{S_HQ}, 0"); e(f"s_cbranch_scc1 {skip}")
    for inst in (0, 1, 2):
        ks = [k for k in range(2) if (inst, k) not in o_dset]
        if not ks: continue
        selmask(e, W0 + 4, V_T, rows_mask(liv[inst], 20))
        for k in ks:
            e(f"s_add_u32 s{S_A}, s{S_GOWN}, {G_OFF(inst,k)}")
            e(f"buffer_store_dwordx4 {vr(W0,4)}, v{W0+4}, s[{SRD_WS}:{SRD_WS+3}], s{S_A} offen sc1")
    e.label(skip)
    for r in [7, 8] + list(R1_REG.values()): reset(V_R, S_ROWN, r * RG)
    for inst in (0, 1, 2):
        selmask(e, W0 + 4, V_T, rows_mask(liv[inst], 25))
        reset(W0 + 4, S_ROWN, R2_REG[inst] * RG)
        selmask(e, W0 + 4, V_T, rows_mask(liv[inst], 20))
        for k in range(2):
            if (inst, k) in o_dset:
                if o_exp[0] and "noLrst" in o_exp[0]: continue
                e(f"s_add_u32 s{S_A}, s{S_LOWN}, {L_REG(inst, k) * RG}")
                e.vm(f"buffer_store_dwordx4 {vr(W0,4)}, v{W0+4}, s[{SRD_WS}:{SRD_WS+3}], s{S_A} offen sc1", "rst")
            else: reset(W0 + 4, S_LOWN, L_REG(inst, k) * RG)

def token_store(e, base, second):
    e(f"s_lshl_b32 s{S_A}, s2, 7"); e(f"s_add_u32 s{S_A}, s{S_A}, {base}")
    e(f"v_mov_b32 v{W0+40}, s{S_TAG}"); e(f"v_mov_b32 v{W0+41}, {second}"); e(f"v_mov_b32 v{V_T}, 0")
    e("s_mov_b64 exec, 1")
    e.vm(f"buffer_store_dwordx2 {vr(W0+40,2)}, v{V_T}, s[{SRD_WS}:{SRD_WS+3}], s{S_A} offen sc1", "tok")
    e("s_mov_b64 exec, -1")

def token_gather(e, o, base, vo, mask, sleep=0, dst=W0, between=None):
    lab = e.newlabel("tok"); chk = e.newlabel("tokchk")
    if between:
        e(f"s_mov_b32 s{S_B}, {base}")
        set_exec(e, mask)
        e(f"buffer_load_dwordx2 {vr(dst,2)}, v{vo}, s[{SRD_WS}:{SRD_WS+3}], s{S_B} offen sc1")
        e("s_mov_b64 exec, -1")
        between()
        e(f"s_mov_b32 s{S_A}, {base}")
        set_exec(e, mask)
        e(f"s_mov_b32 s{S_CNT}, {o.poll_limit}")
        e(f"s_branch {chk}")
    else:
        e(f"s_mov_b32 s{S_A}, {base}")
        set_exec(e, mask)
        e(f"s_mov_b32 s{S_CNT}, {o.poll_limit}")
    e.label(lab)
    e(f"buffer_load_dwordx2 {vr(dst,2)}, v{vo}, s[{SRD_WS}:{SRD_WS+3}], s{S_A} offen sc1")
    e(f"s_sub_u32 s{S_CNT}, s{S_CNT}, 1"); e(f"s_cbranch_scc1 L_abort")
    e.label(chk)
    e("s_waitcnt vmcnt(0)")
    e(f"v_cmp_ne_u32 vcc, s{S_TAG}, v{dst}")
    if sleep:
        ok = e.newlabel("tokok"); e(f"s_cbranch_vccz {ok}"); e(f"s_sleep {sleep}"); e(f"s_branch {lab}"); e.label(ok)
    else: e(f"s_cbranch_vccnz {lab}")
    e.vmq = []

def tr_block(e, items):
    i, g, r, c, t = W0, W0 + 1, W0 + 2, W0 + 3, W0 + 4
    a32, a16 = W0 + 6, W0 + 7
    def tr_setup():
        e(f"v_and_b32 v{i}, 15, v{V_LANE}"); e(f"v_lshrrev_b32 v{g}, 4, v{V_LANE}")
        e(f"v_lshrrev_b32 v{r}, 2, v{i}"); e(f"v_and_b32 v{c}, 3, v{i}")
    def trbase(dst, stride, rows_per_g, base):
        e(f"v_mul_u32_u24 v{t}, {rows_per_g}, v{g}"); e(f"v_add_u32 v{t}, v{t}, v{r}")
        e(f"v_mul_u32_u24 v{t}, {stride}, v{t}"); e(f"v_lshl_add_u32 v{dst}, v{c}, 3, v{t}")
        if base: e(f"v_add_u32 v{dst}, {base}, v{dst}")
    def tr(frag, addr, off, k16, stride):
        f, lo = frag
        e.lg(f"ds_read_b64_tr_b16 {f}[{lo}:{lo+1}], v{addr} offset:{off}", "tr")
        if not k16: e.lg(f"ds_read_b64_tr_b16 {f}[{lo+2}:{lo+3}], v{addr} offset:{off+4*stride}", "tr")
        if len(e.lgq) >= 12: e.lg_wait_n(4)
    if True:
        tr_setup()
        for frag, nt, stride, base, ks in items:
            trbase(a32, stride, 8, base); trbase(a16, stride, 4, base)
            nk = len(ks)
            for tt in range(nt):
                for s, k0 in enumerate(ks):
                    k16 = (frag is not wo_frag) and s == nk - 1
                    tr(frag(tt, s), a16 if k16 else a32, k0 * stride + 32 * tt, k16, stride)
        e.lg_all()

def prologue_weights(e, o, st):
    abort = "L_abort"
    e(f"v_mov_b32 v{W0+2}, 0x3f803f80"); e(f"v_mov_b32 v{W0+3}, 0x3f803f80")
    e(f"v_lshlrev_b32 v{W0+4}, 3, v{V_LANE}"); e(f"v_add_u32 v{W0+4}, {ACT_X+384}, v{W0+4}")
    set_exec(e, mask64(range(24)))
    e.lg(f"ds_write_b64 v{W0+4}, {vr(W0+2,2)}", "ones")
    e("s_mov_b64 exec, -1")
    e.lg(f"ds_write_b64 v{V_WX}, {vr(V_XR,2)}", "wx")
    e(f"v_lshlrev_b32 v{V_XR+2}, 16, v{V_XR+1}"); e(f"v_and_b32 v{V_XR+3}, 0xffff0000, v{V_XR+1}")
    e(f"v_and_b32 v{V_XR+1}, 0xffff0000, v{V_XR}"); e(f"v_lshlrev_b32 v{V_XR}, 16, v{V_XR}")
    e.lg_all()
    lab = e.newlabel("wflag")
    e(f"v_mov_b32 v{V_T+1}, {WFLAG}")
    e(f"s_mov_b32 s{S_CNT}, {o.poll_limit*8}")
    e.label(lab)
    e(f"ds_read_b96 {vr(W0,3)}, v{V_T+1}")
    e(f"s_sub_u32 s{S_CNT}, s{S_CNT}, 1"); e(f"s_cbranch_scc1 {abort}")
    e("s_waitcnt lgkmcnt(0)")
    e(f"v_and_b32 v{W0}, v{W0}, v{W0+1}"); e(f"v_and_b32 v{W0}, v{W0}, v{W0+2}")
    e(f"v_cmp_ne_u32 vcc, 1, v{W0}")
    e(f"s_cbranch_vccnz {lab}")
    st("p.wland")
    tr_block(e, [(wq_frag, 12, 384, ST_WQ, (0, 32, 64)), (wg_frag, 3, 96, ST_WG, (0, 32, 64)), (wu_frag, 3, 96, ST_WU, (0, 32, 64))])
    st("p.weights")

def tok2_offsets(e, TO, tmp, others_only=False):
    L = V_LANE; t, u, a, b, c = tmp, tmp + 1, tmp + 2, tmp + 3, tmp + 4
    e(f"v_and_b32 v{t}, 7, v{L}")
    e(f"s_lshl_b32 s{S_T1}, s{S_J}, 3")
    e(f"v_add_u32 v{c}, s{S_T1}, v{t}")
    if not others_only:
        e(f"v_lshlrev_b32 v{u}, 3, v{t}")
        e(f"s_lshl_b32 s{S_T0}, s{S_HQ}, 6"); e(f"s_add_u32 s{S_T0}, s{S_T0}, s{S_XC}"); e(f"v_add_u32 v{a}, s{S_T0}, v{u}")
        e(f"v_lshlrev_b32 v{u}, 6, v{t}")
        e(f"s_add_u32 s{S_T0}, s{S_T1}, s{S_XC}"); e(f"v_add_u32 v{b}, s{S_T0}, v{u}")
        e("s_mov_b32 vcc_lo, 0x00000f00"); e("s_mov_b32 vcc_hi, 0"); e(f"v_cndmask_b32 v{a}, v{a}, v{b}, vcc")
        e("s_mov_b32 vcc_lo, 0x00ff0000"); e(f"v_cndmask_b32 v{a}, v{a}, v{c}, vcc")
    else: e(f"v_mov_b32 v{a}, v{c}")
    e(f"v_bfe_u32 v{u}, v{L}, 3, 2"); e(f"v_lshlrev_b32 v{u}, 6, v{u}"); e(f"v_add_u32 v{c}, v{c}, v{u}")
    e("s_mov_b32 vcc_lo, 0"); e("s_mov_b32 vcc_hi, -1"); e(f"v_cndmask_b32 v{a}, v{a}, v{c}, vcc")
    e(f"v_lshlrev_b32 v{TO}, 7, v{a}")

def cw_load_tiles(e, o, base):
    R = NS(voffK=1, voffX=2, voffY=3)
    for T in range(CW_TILES):
        kv_soff(e, base, T)
        for s in range(3): ld_k(e, R, vr(CW_K + 12 * T + 4 * s, 4), s, ('K', T, s), o)
    for T in range(CW_TILES):
        kv_soff(e, base, T)
        for w in range(3): ld_v(e, R, vr(CW_V + 12 * T + 4 * w, 4), w, ('V', T, w), o)

def chain_wave(e, o, st, local):
    fl = "" if local else "sc1"
    abort = "L_abort"
    R = NS(vlds=V_L16, voffK=1, voffX=2, voffY=3, sel=V_SEL, qA=32, D=44, sc=56, tmp=57, vpw=62, acc=32, A=44, pp=52, vpp=63, vm=60, vl=61, vlt=59)
    instance_offsets(e, [0, 1], pub_live=[2], q_live=[0, 1, 2])
    stage_Q(e, fl, R3_REG['P'])
    stage_GU(e, fl, R2_REG['P'] * RG - 1024, with_stats=False)
    st("p.pub")
    emit_resets(e, fl)
    st("reset")
    tr_block(e, [(wo_frag, 5, 160, ST_WO, (0, 32, 64, 96, 128, 160)), (wd_frag, 5, 160, ST_WD, (0, 32))])
    GA = CW_K
    e(f"v_and_b32 v{V_T}, 31, v{V_LANE}"); e(f"v_lshlrev_b32 v{V_T}, 4, v{V_T}")
    selmask(e, W0 + 40, V_T, rows_mask([0, 1], 24))
    sr = list(range(10, 18))
    for k, reg in enumerate((4, 5, 6, R2_REG['P'])):
        e(f"s_add_u32 s{sr[2*k]}, s{S_RGRP}, {reg*RG}"); e(f"s_add_u32 s{sr[2*k+1]}, s{sr[2*k]}, 4096")
    loads = []
    for row in range(3):
        loads += [(GA + 32 * row + 4 * k, V_R, sr[2*row + (k >= 4)], (k % 4) * 1024) for k in range(8)]
    loads += [(W0 + 32, V_ML, sr[0], 0), (W0 + 36, V_ML, sr[2], 0)]
    loads += [(W0 + 4 * k, W0 + 40, sr[6 + (k >= 4)], (k % 4) * 1024) for k in range(8)]
    poll(e, o, loads, abort, sleep=o.p_sleep)
    token_store(e, TOK2, 0)
    st("p.gather")
    sum_loads(e, 8, GA + 64)
    for rr in range(4): e(f"v_mov_b32 v{V_CSQ+rr}, v{GA+64+rr}")
    sum_loads(e, 8, W0)
    for rr in range(4): e(f"v_mov_b32 v{V_CSG+rr}, v{W0+rr}")
    for row in range(2):
        q_consume(e, GA + 32 * row, W0 + 32 + 4 * row, row)
    st("q1")
    def load_tiles(base): cw_load_tiles(e, o, base)
    load_tiles(S_KV0)
    instance_offsets(e, [0])
    TO, TD = W0 + 38, W0 + 36
    tok2_offsets(e, TO, W0 + 2)
    tmask = 0x00000fff if o.split_tok else (0xffffffff00ff0fff if o.direct else 0x00ff0fff)
    def first_pass():
        e.vmq.append("tok2")
        e.lg_all()
        st("pro_done")
        e("s_barrier")
        if "stopA" in o.exp: e("s_branch L_done")
        def kw(T):
            if T >= 0: e.vm_wait(('K', T, 2))
        def vw(T, w): e.vm_wait(('V', T, w))
        attn_pass(e, R, CW_TILES, 0, Kf, Vf, S_PB, 0, k_wait=kw, v_wait=vw)
    Kf = lambda T, s: vr(CW_K + 12 * T + 4 * s, 4)
    Vf = lambda T, w: vr(CW_V + 12 * T + 4 * w, 4)
    token_gather(e, o, TOK2, TO, tmask, sleep=o.t_sleep, dst=TD, between=first_pass)
    e("s_mov_b64 exec, -1")
    st("p.tok2g")
    e("s_barrier")
    st("bar2")
    parts = [PART + 1536 * w for w in range(4)]
    combine_publish(e, fl, parts, ML, R1_REG[0])
    st("c0.cmb")
    sv = o.preR; o.preR = sv + o.preR0
    hop_R1(e, o, R1_REG[0], 0, abort)
    o.preR = sv
    chain(e, o, fl, 0, [0], abort, st)
    st("chain0")
    e("s_barrier")
    attn_pass(e, R, CW_TILES, 0, Kf, Vf, S_PB, 32)
    e("s_barrier")
    parts_early = [PART] + [LDS_SW * s + 48 * 1024 for s in range(3)]
    combine_publish(e, fl, parts_early, ML + 32, R1_REG['1a'])
    load_tiles(S_KV1)
    instance_offsets(e, LIVE[1])
    hop_R1(e, o, R1_REG['1a'], 0, abort)
    e.vmq = []
    attn_pass(e, R, CW_TILES, 1, Kf, Vf, S_PB, 0)
    e("s_barrier")
    st("bar6")
    combine_publish(e, fl, parts, ML, R1_REG['1b'])
    st("c1.cmb")
    hop_R1(e, o, R1_REG['1b'], 1, abort)
    chain(e, o, fl, 1, [0, 1], abort, st)
    st("chain1")
    e("s_barrier")
    attn_pass(e, R, CW_TILES, 1, Kf, Vf, S_PB, 0)
    instance_offsets(e, LIVE[2])
    e("s_barrier")
    st("bar8")
    combine_publish(e, fl, parts, ML, R1_REG[2])
    st("c2.cmb")
    hop_R1(e, o, R1_REG[2], 1, abort)
    chain(e, o, fl, 2, [1], abort, st)
    st("chain2")
    e("s_branch L_done")

def chain_wave_setup(e, o, st):
    L = V_LANE
    if o.prio: e(f"s_setprio {o.prio}")
    lane_id(e, L)
    e(f"v_mov_b32 v{V_OOB}, 0x{OOB:08x}")
    e(f"s_lshl_b32 s{S_RGRP}, s{S_H}, 13"); e(f"s_lshl_b32 s{S_T0}, s{S_J}, 10"); e(f"s_add_u32 s{S_ROWN}, s{S_RGRP}, s{S_T0}")
    e(f"s_lshl_b32 s{S_LGRP}, s{S_XC}, 3"); e(f"s_add_u32 s{S_LGRP}, s{S_LGRP}, s{S_J}"); e(f"s_lshl_b32 s{S_LGRP}, s{S_LGRP}, 12")
    e(f"s_lshl_b32 s{S_T0}, s{S_HQ}, 10"); e(f"s_add_u32 s{S_LOWN}, s{S_LGRP}, s{S_T0}")
    e(f"s_lshl_b32 s{S_GGRP}, s{S_J}, 13"); e(f"s_lshl_b32 s{S_T0}, s{S_XC}, 10"); e(f"s_add_u32 s{S_GOWN}, s{S_GGRP}, s{S_T0}")
    late_common(e)
    if "nocw" in o.exp:
        e("s_barrier")
        st("bar1x")
        e("s_branch L_done")
    e(f"v_lshlrev_b32 v{V_L16}, 4, v{L}")
    selmask(e, V_R, V_L16, mask64(range(49)))
    e(f"s_load_dword s{S_TAG}, s[{S_WS}:{S_WS+1}], {EPOCH_OFF}")
    if "noPrst" not in o.exp: emit_resets_P(e)
    e(f"s_getreg_b32 s{S_T2}, hwreg(HW_REG_XCC_ID)"); e(f"s_and_b32 s{S_T2}, s{S_T2}, 0xf")
    make_srd(e, SRD_T, S_X, 2560)
    e(f"v_and_b32 v{V_T}, 31, v{L}"); e(f"v_lshlrev_b32 v{V_T}, 3, v{V_T}")
    e(f"v_lshrrev_b32 v{V_T+1}, 5, v{L}"); e(f"v_mul_u32_u24 v{V_T+1}, 1280, v{V_T+1}"); e(f"v_add_u32 v{V_T}, v{V_T}, v{V_T+1}")
    selmask(e, V_T, V_T, rows_mask([0, 1], 20))
    e(f"s_mul_i32 s{S_T0}, s{S_J}, 160")
    e.vm(f"buffer_load_dwordx2 {vr(V_XR,2)}, v{V_T}, s[{SRD_T}:{SRD_T+3}], s{S_T0} offen", "x")
    e(f"s_add_u32 s{S_KV1}, s{S_KV0}, {BATCH_STRIDE}")
    R = NS(voffK=1, voffX=2, voffY=3, sel=V_SEL)
    attn_selectors(e, R, L, W0)
    n, g, x = W0, W0 + 1, W0 + 2
    e(f"v_mov_b32 v{W0+3}, v{V_L16}"); selmask(e, V_L16, W0 + 3, mask64(range(48)), other=0)
    e(f"v_and_b32 v{n}, 15, v{L}"); e(f"v_lshrrev_b32 v{g}, 4, v{L}")
    e(f"v_min_u32 v{x}, 1, v{n}")
    e(f"v_mul_u32_u24 v{V_BO}, 384, v{x}"); e(f"v_lshl_add_u32 v{V_BO}, v{g}, 4, v{V_BO}"); e(f"v_add_u32 v{V_BO}, {ACT_O}, v{V_BO}")
    e(f"v_lshlrev_b32 v{V_BH}, 7, v{x}"); e(f"v_lshl_add_u32 v{V_BH8}, v{g}, 3, v{V_BH}"); e(f"v_add_u32 v{V_BH8}, {ACT_H+64}, v{V_BH8}")
    e(f"v_lshl_add_u32 v{V_BH}, v{g}, 4, v{V_BH}"); e(f"v_add_u32 v{V_BH}, {ACT_H}, v{V_BH}")
    e(f"v_min_u32 v{x}, 2, v{n}")
    e(f"v_mul_u32_u24 v{V_BX}, 192, v{x}"); e(f"v_lshl_add_u32 v{V_BX8}, v{g}, 3, v{V_BX}"); e(f"v_add_u32 v{V_BX8}, {ACT_X+128}, v{V_BX8}")
    e(f"v_lshl_add_u32 v{V_BX}, v{g}, 4, v{V_BX}"); e(f"v_add_u32 v{V_BX}, {ACT_X}, v{V_BX}")
    e(f"v_subrev_u32 v{x}, 1, v{n}"); e(f"v_min_u32 v{x}, 2, v{x}")
    e(f"v_mul_u32_u24 v{V_AS}, 192, v{x}"); e(f"v_lshl_add_u32 v{V_AS8}, v{g}, 3, v{V_AS}"); e(f"v_add_u32 v{V_AS8}, {ACT_X+128}, v{V_AS8}")
    e(f"v_lshl_add_u32 v{V_AS}, v{g}, 4, v{V_AS}"); e(f"v_add_u32 v{V_AS}, {ACT_X}, v{V_AS}")
    e(f"v_lshlrev_b32 v{x}, 3, v{L}"); e(f"v_add_u32 v{x}, {SB}, v{x}"); selmask(e, V_W8, x, mask64(range(48)), other=SB+2560)
    e(f"v_and_b32 v{n}, 31, v{L}"); e(f"v_lshrrev_b32 v{g}, 5, v{L}")
    e(f"v_mul_u32_u24 v{x}, 192, v{g}"); e(f"v_lshl_add_u32 v{x}, v{n}, 3, v{x}"); e(f"v_add_u32 v{x}, {ACT_X}, v{x}")
    selmask(e, V_WX, x, rows_mask([0, 1], 20), other=DUMMY)
    e(f"v_lshlrev_b32 v{x}, 7, v{g}"); e(f"v_lshl_add_u32 v{x}, v{n}, 2, v{x}"); e(f"v_add_u32 v{x}, {ACT_H}, v{x}")
    selmask(e, V_WH, x, rows_mask([0, 1], 24), other=DUMMY)
    e(f"v_and_b32 v{x}, 7, v{L}"); e(f"v_lshlrev_b32 v{x}, 10, v{x}"); e(f"v_add_u32 v{V_ML}, 768, v{x}")
    m = mask64([16 * a + 1 for a in range(4)])
    e(f"s_mov_b32 s{S_N1}, 0x{m & 0xffffffff:08x}"); e(f"s_mov_b32 s{S_N1+1}, 0x{m >> 32:08x}")
    e("s_waitcnt lgkmcnt(0)")
    e(f"s_add_u32 s{S_TAG}, s{S_TAG}, 1")
    e.vm_all(force=True)
    token_store(e, TOK1, f"s{S_T2}")
    st("p.tok1")
    TO, TD = W0 + 38, W0 + 36
    e(f"v_lshlrev_b32 v{TO}, 10, v{L}"); e(f"s_lshl_b32 s{S_T0}, s{S_XC}, 7"); e(f"v_add_u32 v{TO}, s{S_T0}, v{TO}")
    token_gather(e, o, TOK1, TO, 0xffffffff, sleep=o.t_sleep, dst=TD, between=lambda: prologue_weights(e, o, st))
    e(f"v_cmp_ne_u32 vcc, s{S_T2}, v{TD+1}")
    e("s_mov_b64 exec, -1")
    st("p.mode")
    e("s_nop 3")
    e("s_cmp_lg_u32 vcc_lo, 0")

def late_common(e):
    make_srd(e, SRD_V, S_V, KV_BYTES); make_srd(e, SRD_WS, S_WS, WS_REC)
    e(f"s_mov_b32 s{S_C}, {lit(CSCALE)}")
    e(f"s_mov_b32 s{S_HI32}, 0"); e(f"s_mov_b32 s{S_HI32+1}, -1")
    e(f"s_mul_i32 s{S_PB}, s{S_WAVE}, 1536"); e(f"s_add_u32 s{S_PB}, s{S_PB}, {PART}")
    e(f"s_lshl_b32 s{S_MLB}, s{S_WAVE}, 3"); e(f"s_add_u32 s{S_MLB}, s{S_MLB}, {ML}")

def generate(o):
    Stamps.select = o.stampset.split(",") if o.stampset else None
    o_direct[0] = o.direct; o_direct[1] = o.direct0
    LIVE.update({1: [1], 2: [0, 1]} if o.late_b0 else {1: [0, 1], 2: [1]})
    o_packed[0] = bool(o.packed)
    o_exp[0] = o.exp
    o_dset.clear()
    if o.packed: o_dset.update({(int(c[0]), int(c[1])) for c in o.packed.split(",")})
    if o.direct: o_dset.add((2, 1))
    if o.direct0: o_dset.add((2, 0))
    e = Emit()
    e("s_cmp_ge_u32 s2, 256"); e("s_cbranch_scc1 L_done")
    e("s_load_dwordx16 s[4:19], s[0:1], 0"); e("s_load_dwordx8 s[20:27], s[0:1], 64")
    e("v_lshrrev_b32 v1, 6, v0")
    e(f"s_and_b32 s{S_XC}, s2, 7"); e(f"s_lshr_b32 s{S_HQ}, s2, 6")
    e(f"v_readfirstlane_b32 s{S_WAVE}, v1")
    e(f"s_lshr_b32 s{S_J}, s2, 3"); e(f"s_and_b32 s{S_J}, s{S_J}, 7")
    e(f"s_lshl_b32 s{S_H}, s{S_XC}, 2"); e(f"s_add_u32 s{S_H}, s{S_H}, s{S_HQ}")
    e(f"s_mul_i32 s{S_KV0}, s{S_H}, {HEAD_STRIDE}"); e(f"s_mul_i32 s{S_T0}, s{S_J}, {CHUNK_STRIDE}"); e(f"s_add_u32 s{S_KV0}, s{S_KV0}, s{S_T0}")
    e(f"s_add_u32 s{S_T0}, s{S_WAVE}, 3"); e(f"s_and_b32 s{S_T0}, s{S_T0}, 3")
    e(f"s_mul_i32 s{S_T1}, s{S_T0}, {SW_TILES*TILE_B}"); e(f"s_add_u32 s{S_KV0}, s{S_KV0}, s{S_T1}")
    lane_id(e, 8)
    e("v_mov_b32 v14, 0"); e(f"v_mov_b32 v15, {WFLAG}"); e("v_lshl_add_u32 v15, v8, 2, v15")
    e("s_mov_b64 exec, 15")
    e("ds_write_b32 v15, v14")
    e("s_mov_b64 exec, -1")
    attn_load_offsets(e, NS(voffK=1, voffX=2, voffY=3), 8, 10)
    e("s_waitcnt lgkmcnt(0)")
    e("s_barrier")
    make_srd(e, SRD_K, S_K, KV_BYTES)
    e(f"s_cmp_eq_u32 s{S_WAVE}, 0"); e("s_cbranch_scc1 L_chain")
    st_s = Stamps(e, o.stamps); st_s("start")
    stream_wave(e, o, st_s)
    e.label("L_chain")
    e.vmq = []; e.lgq = []
    st_c = Stamps(e, o.stamps); st_c("start")
    chain_wave_setup(e, o, st_c)
    names = {}
    if o.force_global: e("s_branch L_global")
    else: e("s_cbranch_scc1 L_global")
    base_names = list(st_c.names)
    sv = (list(e.vmq), list(e.lgq))
    chain_wave(e, o, st_c, True)
    names['cw'] = list(st_c.names); names['sw'] = list(st_s.names)
    e.label("L_global")
    e.vmq, e.lgq = sv
    st_g = Stamps(e, o.stamps); st_g.names = list(base_names)
    chain_wave(e, o, st_g, False)
    e.label("L_abort")
    e.label("L_done")
    if o.stamps:
        e("s_cmp_ge_u32 s2, 256"); e("s_cbranch_scc1 L_exit")
        fl = Stamps(e, True); fl.names = names['cw']; fl.flush()
        e.label("L_exit")
    e("s_endpgm")
    return e, names

HEAD = """; Fused two-layer decode step (attention over a cached K/V + ReGLU FFN, twice), one persistent launch.
; @launch grid=(256,1,1) block=(256,1,1) lds=%d
;
.amdgcn_target "amdgcn-amd-amdhsa--gfx950"
.text
.globl %s
.p2align 8
.type %s,@function
%s:
"""
FOOT = """
.section .rodata,"a"
.p2align 6
.amdhsa_kernel %s
  .amdhsa_next_free_vgpr 512
  .amdhsa_next_free_sgpr 102
  .amdhsa_accum_offset 256
  .amdhsa_group_segment_fixed_size 0
  .amdhsa_kernarg_size 96
  .amdhsa_user_sgpr_count 2
  .amdhsa_user_sgpr_kernarg_segment_ptr 1
  .amdhsa_system_sgpr_workgroup_id_x 1
  .amdhsa_float_denorm_mode_32 3
.end_amdhsa_kernel
"""
def build_text(o):
    e, names = generate(o)
    return HEAD % (LDS_TOTAL, NAME, NAME, NAME) + e.text() + "\n" + FOOT % NAME, names, e

if __name__ == "__main__":
    o = Opt()
    for a in sys.argv[2:]:
        k, v = a.split("=")
        cur = getattr(o, k)
        setattr(o, k, (v not in ("0", "False")) if isinstance(cur, bool) else type(cur)(v))
    txt, names, e = build_text(o)
    open(sys.argv[1], "w").write(txt)
    print("instructions:", e.ninst, "nops:", e.nops, names)
```

```python
import sys, struct
from types import SimpleNamespace as NS
from emit import Emit, vr

NAME = "interleave_layers__mha_block_cached__glu_gated_reglu__decode_kernel"

class Opt:
    NA = 24
    NA_BAR = 118
    NB = 8
    NB1 = 8
    go_at = "G1"
    NC = 56
    NA0 = 24
    NA0N = 0
    light = False
    pf = 0
    pf_all = False
    NF = 12
    NW = 24
    stamps = False
    poll_limit = 400000
    kvflags = "nt"
    wflags = "nt"
    stampset = ""
    p_sleep = 8
    mb_sleep = 0
    exp = ""
    t_sleep = 0
    early = False
    wb = 0
    prio = 0
    late_rst = False
    preGn = 0
    packed = "10,11"
    preF1 = 16
    preP0 = 0
    preP1 = 0
    direct0 = True
    preF0 = 16
    direct = True
    preF = 0
    look = 2
    NAe = 14
    NCe = 24
    late_b0 = True
    split_tok = True
    rotA = 0
    rotB = 0
    preR0 = 0
    preL0 = 0
    preG0 = 0
    preR = 0
    preL = 0
    preG = 6
    flag_sleep = 0
    force_global = False

KV_BYTES = 100663296
BATCH_STRIDE = 50331648
HEAD_STRIDE = 1572864
CHUNK_STRIDE = 196608
TILE_B = 3072
SW_TILES, CW_TILES = 20, 4
OOB = 0x7fff0000

LDS_SW = 51200
SB = 153600
PART = SB
ML = SB + 6144
QARR = SB + 6208
ACT_O = SB + 6976
ACT_X = SB + 7744
ACT_H = SB + 8320
DUMMY = SB + 8576
WFLAG = SB + 10208
LDS_TOTAL = 163840
ST_WQ, ST_WO, ST_WG, ST_WU, ST_WD = 0, 30720, 61440, 69120, 76800

RG = 262144
R1_REG = {0: 0, '1a': 1, '1b': 2, 2: 3}
R3_REG = {'P': 4, 0: 7, 1: 8}
R2_REG = {'P': 9, 0: 10, 1: 11, 2: 12}
L_REG = lambda inst, k: 13 + 2 * inst + k
G_OFF = lambda inst, k: 19 * RG + (2 * inst + k) * 65536
STAMP_OFF = 22 * RG
WS_REC = 24 * RG

CSCALE = (192 ** -0.5) * 1.4426950408889634
EPS = 1e-5
def f2u(x): return struct.unpack("<I", struct.pack("<f", x))[0]
def lit(x): return "0x%08x" % f2u(x)
def mask64(lanes):
    m = 0
    for l in lanes: m |= 1 << l
    return m
def set_exec(e, m):
    if m == (1 << 64) - 1: e("s_mov_b64 exec, -1"); return
    e(f"s_mov_b32 exec_lo, 0x{m & 0xffffffff:08x}")
    e(f"s_mov_b32 exec_hi, 0x{m >> 32:08x}")

S_X, S_K, S_V, S_WQ, S_WO, S_BX, S_WG, S_WU, S_WD, S_OUT, S_DBG, S_WS = 4, 6, 8, 10, 12, 14, 16, 18, 20, 22, 24, 26
S_XC, S_HQ, S_J, S_H = 28, 29, 30, 31
SRD_K, SRD_V = 32, 36
S_KV0, S_KV1, S_SOFF, S_LDSB = 40, 41, 42, 43
SRD_T = 44
SRD_WS = 48
SRD_DBG = 52
S_C = 56
S_ROWN, S_RGRP, S_LOWN, S_LGRP, S_GOWN, S_GGRP = 57, 58, 59, 60, 61, 62
S_A, S_B, S_CNT, S_T0, S_T1, S_T2 = 63, 64, 65, 66, 67, 68
S_PB = 69
S_HI32 = 70
S_MLB = 72
S_GA, S_GB = 100, 101
S_WAVE = 3
S_STAMP = 76

def make_srd(e, srd, ptr, nbytes):
    e(f"s_mov_b32 s{srd}, s{ptr}")
    e(f"s_and_b32 s{srd+1}, s{ptr+1}, 0xffff")
    e(f"s_mov_b32 s{srd+2}, {nbytes}")
    e(f"s_mov_b32 s{srd+3}, 0x20000")

class Stamps:
    select = None
    def __init__(self, e, on): self.e, self.on, self.names = e, on, []
    def __call__(self, name):
        if not self.on: return
        if Stamps.select is not None and not any(name.startswith(p) for p in Stamps.select): return
        if Stamps.select is None and "." in name: return
        n = len(self.names); assert n < 12, "too many stamps"
        self.e(f"s_memrealtime s[{S_STAMP+2*n}:{S_STAMP+2*n+1}]")
        self.e.lg_all(force=True)
        self.names.append(name)
    def rounds(self, name):
        if not self.on: return
        if Stamps.select is None or not any(name.startswith(p) for p in Stamps.select): return
        n = len(self.names); assert n < 12
        self.e(f"s_mov_b32 s{S_STAMP+2*n}, s{S_CNT}"); self.e(f"s_mov_b32 s{S_STAMP+2*n+1}, 0")
        self.names.append(name)
    def flush(self):
        if not self.on: return
        e = self.e
        e("s_mov_b64 exec, 1")
        e(f"s_lshl_b32 s{S_T0}, s2, 2"); e(f"s_add_u32 s{S_T0}, s{S_T0}, s{S_WAVE}"); e(f"s_lshl_b32 s{S_T0}, s{S_T0}, 7")
        e(f"s_add_u32 s{S_T0}, s{S_T0}, {STAMP_OFF}")
        e("v_mov_b32 v0, 0")
        for i in range(len(self.names)):
            e(f"v_mov_b32 v2, s{S_STAMP+2*i}"); e(f"v_mov_b32 v3, s{S_STAMP+2*i+1}")
            e(f"buffer_store_dwordx2 v[2:3], v0, s[{SRD_WS}:{SRD_WS+3}], s{S_T0} offen offset:{8*i}")
            e("s_waitcnt vmcnt(0)")

def lane_id(e, dst):
    e(f"v_mbcnt_lo_u32_b32 {vr(dst)}, -1, 0")
    e(f"v_mbcnt_hi_u32_b32 {vr(dst)}, -1, {vr(dst)}")

def attn_load_offsets(e, R, lane, t):
    i, g, u, w = t, t + 1, t + 2, t + 3
    e(f"v_and_b32 {vr(i)}, 15, {vr(lane)}")
    e(f"v_lshrrev_b32 {vr(g)}, 4, {vr(lane)}")
    e(f"v_and_b32 {vr(u)}, 7, {vr(i)}")
    e(f"v_lshrrev_b32 {vr(w)}, 3, {vr(i)}")
    e(f"v_mul_u32_u24 {vr(R.voffK)}, 384, {vr(u)}")
    e(f"v_lshl_add_u32 {vr(R.voffK)}, {vr(g)}, 4, {vr(R.voffK)}")
    e(f"v_lshl_add_u32 {vr(R.voffK)}, {vr(w)}, 6, {vr(R.voffK)}")
    e(f"v_mul_u32_u24 {vr(R.voffX)}, 768, {vr(g)}")
    e(f"v_mul_u32_u24 {vr(w)}, 384, {vr(w)}")
    e(f"v_add_u32 {vr(R.voffY)}, {vr(R.voffX)}, {vr(w)}")
    e(f"v_lshl_add_u32 {vr(R.voffY)}, {vr(u)}, 4, {vr(R.voffY)}")
    e(f"v_add_u32 {vr(R.voffY)}, 256, {vr(R.voffY)}")
    e(f"v_lshl_add_u32 {vr(R.voffX)}, {vr(i)}, 4, {vr(R.voffX)}")

def attn_selectors(e, R, lane, t):
    i, u, lo, hi = t, t + 1, t + 2, t + 3
    e(f"v_and_b32 {vr(i)}, 15, {vr(lane)}")
    e(f"v_lshrrev_b32 {vr(u)}, 3, {vr(i)}")
    e(f"v_mul_u32_u24 {vr(u)}, 0x202, {vr(u)}")
    e(f"v_add_u32 {vr(u)}, 0x100, {vr(u)}")
    e(f"v_or_b32 {vr(lo)}, 0x0c0c0000, {vr(u)}")
    e(f"v_lshlrev_b32 {vr(hi)}, 16, {vr(u)}")
    e(f"v_or_b32 {vr(hi)}, 0x0c0c, {vr(hi)}")
    e(f"v_and_b32 {vr(u)}, 1, {vr(i)}")
    e(f"v_cmp_eq_u32 vcc, 1, {vr(u)}")
    e(f"v_cndmask_b32 {vr(lo)}, {vr(lo)}, {vr(hi)}, vcc")
    e(f"v_bfe_u32 {vr(u)}, {vr(i)}, 1, 2")
    e(f"v_mov_b32 {vr(hi)}, 0x0c0c0c0c")
    for r in range(4):
        e(f"v_cmp_eq_u32 vcc, {r}, {vr(u)}")
        e(f"v_cndmask_b32 {vr(R.sel+r)}, {vr(hi)}, {vr(lo)}, vcc")

def allreduce_list(reg, tmp, op):
    out = [f"v_{op}_f32_dpp {vr(reg)}, {vr(reg)}, {vr(reg)} row_ror:{k} row_mask:0xf bank_mask:0xf" for k in (8, 4, 2, 1)]
    out += [f"v_mov_b32 {vr(tmp)}, {vr(reg)}", f"v_permlane16_swap_b32 {vr(reg)}, {vr(tmp)}", f"v_{op}_f32 {vr(reg)}, {vr(reg)}, {vr(tmp)}",
            f"v_mov_b32 {vr(tmp)}, {vr(reg)}", f"v_permlane32_swap_b32 {vr(reg)}, {vr(tmp)}", f"v_{op}_f32 {vr(reg)}, {vr(reg)}, {vr(tmp)}"]
    return out

def allreduce(e, reg, tmp, op):
    for k in (8, 4, 2, 1):
        e(f"v_{op}_f32_dpp {vr(reg)}, {vr(reg)}, {vr(reg)} row_ror:{k} row_mask:0xf bank_mask:0xf")
    e(f"v_mov_b32 {vr(tmp)}, {vr(reg)}")
    e(f"v_permlane16_swap_b32 {vr(reg)}, {vr(tmp)}")
    e(f"v_{op}_f32 {vr(reg)}, {vr(reg)}, {vr(tmp)}")
    e(f"v_mov_b32 {vr(tmp)}, {vr(reg)}")
    e(f"v_permlane32_swap_b32 {vr(reg)}, {vr(tmp)}")
    e(f"v_{op}_f32 {vr(reg)}, {vr(reg)}, {vr(tmp)}")

def attn_pre(e, R, ntiles):
    L = R.tmp
    lane_id(e, L)
    e(f"v_and_b32 {vr(L+1)}, 1, {vr(L)}")
    e(f"v_lshrrev_b32 {vr(L+2)}, 4, {vr(L)}")
    e(f"v_lshlrev_b32 {vr(L+2)}, 4, {vr(L+2)}")
    e(f"v_lshl_add_u32 {vr(L+1)}, {vr(L+1)}, 6, {vr(L+2)}")
    e(f"v_add_u32 {vr(L+1)}, {QARR}, {vr(L+1)}")
    e(f"v_add_u32 {vr(R.vpp)}, s{S_PB}, {vr(L+2)}")
    W = R.vpw; t = L + 2
    e(f"v_lshrrev_b32 {vr(t)}, 5, {vr(L)}"); e(f"v_lshlrev_b32 {vr(W)}, 6, {vr(t)}")
    e(f"v_bfe_u32 {vr(t)}, {vr(L)}, 1, 2"); e(f"v_lshl_add_u32 {vr(W)}, {vr(t)}, 4, {vr(W)}")
    e(f"v_bfe_u32 {vr(t)}, {vr(L)}, 3, 2"); e(f"v_lshl_add_u32 {vr(W)}, {vr(t)}, 2, {vr(W)}")
    e(f"v_and_b32 {vr(t)}, 1, {vr(L)}"); e(f"v_lshl_add_u32 {vr(W)}, {vr(t)}, 1, {vr(W)}")
    e(f"v_add_u32 {vr(W)}, s{S_PB}, {vr(W)}")
    nsc = (ntiles + 7) // 8
    for r in range(nsc):
        if (r + 1) * 8 > ntiles: e(f"v_mov_b32 {vr(R.sc+r)}, 0xff800000")

def attn_pass(e, R, ntiles, qrow, Kfrag, Vfrag, part_sreg, ml_off, k_wait=None, qk_hook=None, mid_hook=None,
              v_wait=None, pv_hook=None, stage=None, pre_done=False, mark=None, look=2):
    L = R.tmp
    if not pre_done: attn_pre(e, R, ntiles)
    for s in range(3):
        e.lg(f"ds_read_b128 {vr(R.qA+4*s,4)}, {vr(L+1)} offset:{qrow*384 + 128*s}", ("q", s))
    W = R.vpw
    nsc = (ntiles + 7) // 8
    stg = {}
    def stage_k(T):
        if T >= ntiles: return
        for s in range(3):
            f = Kfrag(T, s)
            if isinstance(f, tuple):
                reg = stage[(3 * T + s) % len(stage)]
                e.lg(f"ds_read_b128 {vr(reg,4)}, {vr(R.vlds)} offset:{f[1]}", ("k", T, s))
                stg[(T, s)] = vr(reg, 4)
    LOOK = look
    if k_wait: k_wait(-1)
    for T in range(min(LOOK, ntiles)): stage_k(T)
    e.lg_wait(("q", 2))
    def dpp_add(T):
        D = R.D + 4 * (T % 3)
        dst = vr(R.sc + (T >> 3)); rm = 1 << ((T >> 1) & 3)
        if T % 2 == 0: e(f"v_add_f32_dpp {dst}, {vr(D+1)}, {vr(D)} row_ror:8 row_mask:0x{rm:x} bank_mask:0x3")
        else:          e(f"v_add_f32_dpp {dst}, {vr(D)}, {vr(D+1)} row_ror:8 row_mask:0x{rm:x} bank_mask:0xc")
    for T in range(ntiles):
        if k_wait: k_wait(T)
        D = vr(R.D + 4 * (T % 3), 4)
        for s in range(3):
            f = Kfrag(T, s)
            if isinstance(f, tuple):
                e.lg_wait(("k", T, s)); f = stg[(T, s)]
            e(f"v_mfma_f32_16x16x32_bf16 {D}, {vr(R.qA+4*s,4)}, {f}, {'0' if s == 0 else D}")
        stage_k(T + LOOK)
        if qk_hook: qk_hook(T)
        if T >= 2: dpp_add(T - 2)
    for T in range(max(0, ntiles - 2), ntiles): dpp_add(T)
    if mark: mark("qk")
    t0, t1 = R.D, R.D + 1
    if nsc == 1: e(f"v_mov_b32 {vr(t0)}, {vr(R.sc)}")
    elif nsc == 2: e(f"v_max_f32 {vr(t0)}, {vr(R.sc)}, {vr(R.sc+1)}")
    else: e(f"v_max3_f32 {vr(t0)}, {vr(R.sc)}, {vr(R.sc+1)}, {vr(R.sc+2)}")
    allreduce(e, t0, t1, "max")
    e(f"v_mul_f32 {vr(R.vm)}, s{S_C}, {vr(t0)}")
    for r in range(nsc): e(f"v_fma_f32 {vr(R.sc+r)}, {vr(R.sc+r)}, s{S_C}, -{vr(R.vm)}")
    for r in range(nsc): e(f"v_exp_f32 {vr(R.sc+r)}, {vr(R.sc+r)}")
    for r in range(nsc): e(f"v_cvt_pk_bf16_f32 {vr(R.D+2+r)}, {vr(R.sc+r)}, {vr(R.sc+r)}")
    for r in range(nsc): e.lg(f"ds_write_b16 {vr(W)}, {vr(R.D+2+r)} offset:{128*r}", ("pw", r))
    nq = (ntiles + 3) // 4
    ppreg = lambda q: R.pp + 4 * (q % 2)
    if nsc == 1: e(f"v_mov_b32 {vr(R.vl)}, {vr(R.sc)}")
    else:
        e(f"v_add_f32 {vr(R.vl)}, {vr(R.sc)}, {vr(R.sc+1)}")
        if nsc == 3: e(f"v_add_f32 {vr(R.vl)}, {vr(R.vl)}, {vr(R.sc+2)}")
    e.lg(f"ds_read_b128 {vr(ppreg(0),4)}, {vr(R.vpp)}", ("pp", 0))
    if nq > 1: e.lg(f"ds_read_b128 {vr(ppreg(1),4)}, {vr(R.vpp)} offset:64", ("pp", 1))
    lred = allreduce_list(R.vl, R.vlt, "add")
    if ntiles < 12:
        for ins in lred: e(ins)
        lred = []
    if mid_hook: mid_hook()
    if mark: mark("sm")
    X1, X2, Y = R.acc, R.acc + 4, R.acc + 8
    def build_A(T):
        q = T >> 2
        e.lg_wait(("pp", q))
        A = R.A + 4 * (T % 2); src = vr(ppreg(q) + (T & 3))
        return [f"v_perm_b32 {vr(A+r)}, {src}, {src}, {vr(R.sel+r)}" for r in range(4)]
    for ins in build_A(0): e(ins)
    for T in range(ntiles):
        A = vr(R.A + 4 * (T % 2), 4)
        nxt = build_A(T + 1) if T + 1 < ntiles else []
        if v_wait: v_wait(T, 0)
        e(f"v_mfma_f32_16x16x32_bf16 {vr(X1,4)}, {A}, {Vfrag(T,0)}, {'0' if T == 0 else vr(X1,4)}")
        for ins in nxt[:2]: e(ins)
        if v_wait: v_wait(T, 1)
        e(f"v_mfma_f32_16x16x32_bf16 {vr(X2,4)}, {A}, {Vfrag(T,1)}, {'0' if T == 0 else vr(X2,4)}")
        for ins in nxt[2:]: e(ins)
        if v_wait: v_wait(T, 2)
        e(f"v_mfma_f32_16x16x32_bf16 {vr(Y,4)}, {A}, {Vfrag(T,2)}, {'0' if T == 0 else vr(Y,4)}")
        if (T & 3) == 2 and (T >> 2) + 2 < nq:
            q2 = (T >> 2) + 2
            e.lg(f"ds_read_b128 {vr(ppreg(q2),4)}, {vr(R.vpp)} offset:{64*q2}", ("pp", q2))
        if lred and T >= 1: e(lred.pop(0))
        if pv_hook: pv_hook(T)
    assert not lred
    if mark: mark("pv")
    p = R.pp
    lane_id(e, p)
    e(f"v_and_b32 {vr(p+1)}, 15, {vr(p)}")
    e(f"v_lshrrev_b32 {vr(p+2)}, 4, {vr(p)}")
    e(f"v_and_b32 {vr(p+3)}, 1, {vr(p+2)}")
    e(f"v_lshrrev_b32 {vr(p+2)}, 1, {vr(p+2)}")
    e(f"v_mul_u32_u24 {vr(p+2)}, 768, {vr(p+2)}")
    e(f"v_lshl_add_u32 {vr(p+2)}, {vr(p+3)}, 4, {vr(p+2)}")
    e(f"v_add_u32 {vr(p+2)}, s{part_sreg}, {vr(p+2)}")
    e(f"v_lshl_add_u32 {vr(p+4)}, {vr(p+1)}, 5, {vr(p+2)}")
    e(f"v_and_b32 {vr(p+1)}, 7, {vr(p+1)}")
    e(f"v_lshl_add_u32 {vr(p+5)}, {vr(p+1)}, 5, {vr(p+2)}")
    e(f"v_mov_b32 {vr(p+6)}, s{S_MLB}")
    e(f"v_mov_b32 {vr(R.A)}, {vr(R.vm)}"); e(f"v_mov_b32 {vr(R.A+1)}, {vr(R.vl)}")
    for r in range(4):
        e(f"v_cndmask_b32 {vr(X1+r)}, {vr(X1+r)}, {vr(X2+r)}, s[{S_HI32}:{S_HI32+1}]")
    e.lg(f"ds_write_b128 {vr(p+4)}, {vr(X1,4)}", "px")
    set_exec(e, 0xFF00FF0000FF00FF)
    e.lg(f"ds_write_b128 {vr(p+5)}, {vr(Y,4)} offset:512", "py")
    e("s_mov_b64 exec, 1")
    e.lg(f"ds_write_b64 {vr(p+6)}, {vr(R.A,2)} offset:{ml_off}", "pm")
    e("s_mov_b64 exec, -1")
    e.lg_all()

S_ROT, S_RT = 74, 75
rot_on = [False]
def kv_soff(e, base_sreg, T):
    if rot_on[0]:
        span = SW_TILES * TILE_B
        e(f"s_add_u32 s{S_SOFF}, s{S_ROT}, {T*TILE_B}")
        e(f"s_cmp_ge_u32 s{S_SOFF}, {span}"); e(f"s_cselect_b32 s{S_RT}, {span}, 0")
        e(f"s_sub_u32 s{S_SOFF}, s{S_SOFF}, s{S_RT}"); e(f"s_add_u32 s{S_SOFF}, s{S_SOFF}, s{base_sreg}")
    else: e(f"s_add_u32 s{S_SOFF}, s{base_sreg}, {T*TILE_B}")
def ld_k(e, R, dst, s, tag, o):
    e.vm(f"buffer_load_dwordx4 {dst}, {vr(R.voffK)}, s[{SRD_K}:{SRD_K+3}], s{S_SOFF} offen offset:{128*s} {o.kvflags}", tag)
def ld_v(e, R, dst, w, tag, o):
    vo = R.voffY if w == 2 else R.voffX
    off = 384 if w == 1 else 0
    e.vm(f"buffer_load_dwordx4 {dst}, {vr(vo)}, s[{SRD_V}:{SRD_V+3}], s{S_SOFF} offen offset:{off} {o.kvflags}", tag)
def dma_k(e, R, slot, s, tag, o):
    e(f"s_add_u32 m0, s{S_LDSB}, {slot*1024 - 128*s + 0}") if slot*1024 - 128*s >= 0 else e(f"s_sub_u32 m0, s{S_LDSB}, {128*s - slot*1024}")
    e.vm(f"buffer_load_dwordx4 {vr(R.voffK)}, s[{SRD_K}:{SRD_K+3}], s{S_SOFF} offen offset:{128*s} {o.kvflags} lds", tag)
def dma_v(e, R, slot, w, tag, o):
    vo = R.voffY if w == 2 else R.voffX
    off = 384 if w == 1 else 0
    e(f"s_add_u32 m0, s{S_LDSB}, {slot*1024 - off}")
    e.vm(f"buffer_load_dwordx4 {vr(vo)}, s[{SRD_V}:{SRD_V+3}], s{S_SOFF} offen offset:{off} {o.kvflags} lds", tag)

def slot_reg(k):
    assert 0 <= k < 118
    return f"a[{4*k}:{4*k+3}]" if k < 64 else f"v[{40+4*(k-64)}:{40+4*(k-64)+3}]"

def weight_dma(e, o):
    L, t, u = 8, 20, 21
    def dma_block(ptr, nbytes, lanes_per_row, magic, shift, nlanes, row_stride, rows_per_instr, ninstr, so, lds0, bar=False):
        make_srd(e, SRD_T, ptr, nbytes)
        e(f"v_mul_u32_u24 v{t}, {magic}, v{L}"); e(f"v_lshrrev_b32 v{t}, {shift}, v{t}")
        e(f"v_mul_u32_u24 v{u}, {lanes_per_row}, v{t}"); e(f"v_sub_u32 v{u}, v{L}, v{u}")
        e(f"s_mov_b32 s{S_T1}, {row_stride}")
        e(f"v_mul_lo_u32 v{t}, v{t}, s{S_T1}"); e(f"v_lshl_add_u32 v{t}, v{u}, 4, v{t}")
        rreg, rmul, creg, cmul = so
        e(f"s_mul_i32 s{S_SOFF}, s{rreg}, {rmul*row_stride}")
        e(f"s_mul_i32 s{S_T1}, s{creg}, {cmul}"); e(f"s_add_u32 s{S_SOFF}, s{S_SOFF}, s{S_T1}")
        set_exec(e, mask64(range(nlanes)))
        for i in range(ninstr):
            e(f"s_mov_b32 m0, {lds0 + i*nlanes*16}")
            if i: e(f"s_add_u32 s{S_SOFF}, s{S_SOFF}, {rows_per_instr*row_stride}")
            else: e("s_nop 0")
            e.vm_depth(o.NW - 1)
            e.vm(f"buffer_load_dwordx4 v{t}, s[{SRD_T}:{SRD_T+3}], s{S_SOFF} offen {o.wflags} lds", "w")
        e("s_mov_b64 exec, -1")
    l2, l3, end = e.newlabel("w2"), e.newlabel("w3"), e.newlabel("wend")
    e(f"s_cmp_eq_u32 s{S_WAVE}, 2"); e(f"s_cbranch_scc1 {l2}")
    e(f"s_cmp_eq_u32 s{S_WAVE}, 3"); e(f"s_cbranch_scc1 {l3}")
    base_q = list(e.vmq)
    dma_block(S_WQ, 7864320, 24, 43, 10, 48, 12288, 2, 40, (S_J, 80, S_H, 384), ST_WQ, bar=True)
    e(f"s_branch {end}")
    e.label(l2); e.vmq = list(base_q)
    dma_block(S_WO, 7864320, 10, 103, 10, 60, 1280, 6, 32, (S_H, 192, S_J, 160), ST_WO, bar=True)
    e(f"s_branch {end}")
    e.label(l3); e.vmq = list(base_q)
    dma_block(S_WG, 1966080, 6, 43, 8, 60, 3072, 10, 8, (S_J, 80, S_H, 96), ST_WG, bar=True)
    dma_block(S_WU, 1966080, 6, 43, 8, 60, 3072, 10, 8, (S_J, 80, S_H, 96), ST_WU)
    dma_block(S_WD, 1966080, 10, 103, 10, 60, 1280, 6, 8, (S_H, 48, S_J, 160), ST_WD)
    e.label(end)
    e.vmq = ["w"] * o.NW

S_XPAR = 15
def par_depth(e, n):
    lab = e.newlabel("par")
    e(f"s_cmp_lg_u32 s{S_XPAR}, 0"); e(f"s_cbranch_scc1 {lab}")
    e(f"s_waitcnt vmcnt({n-1})")
    e.label(lab)

def emit_wb(e):
    skip = e.newlabel("nowb")
    e(f"s_cmp_lg_u32 s{S_WAVE}, 1"); e(f"s_cbranch_scc1 {skip}")
    e("s_cmp_ge_u32 s2, 8"); e(f"s_cbranch_scc1 {skip}")
    e("buffer_wbl2 sc1")
    e("s_waitcnt vmcnt(0)")
    e.label(skip)

def stream_wave(e, o, st):
    if o.rotA or o.rotB:
        e(f"s_mul_i32 s{S_ROT}, s2, {o.rotA}"); e(f"s_mul_i32 s{S_RT}, s{S_WAVE}, {o.rotB}"); e(f"s_add_u32 s{S_ROT}, s{S_ROT}, s{S_RT}")
        e(f"s_mul_i32 s{S_RT}, s{S_ROT}, 52429"); e(f"s_lshr_b32 s{S_RT}, s{S_RT}, 20"); e(f"s_mul_i32 s{S_RT}, s{S_RT}, 20")
        e(f"s_sub_u32 s{S_ROT}, s{S_ROT}, s{S_RT}"); e(f"s_mul_i32 s{S_ROT}, s{S_ROT}, {TILE_B}")
        rot_on[0] = True
    _stream_wave(e, o, st)
    rot_on[0] = False

def _stream_wave(e, o, st):
    R = NS(vlds=0, voffK=1, voffX=2, voffY=3, sel=4, qA=8, D=20, sc=32, tmp=20, vpw=35, acc=8, A=20, pp=28, vpp=36, vm=38, vl=39, vlt=37)
    loads = []
    for T in range(SW_TILES):
        for s in range(3): loads.append(('K', T, s))
    for T in range(SW_TILES):
        for w in range(3): loads.append(('V', T, w))
    def k0slot(T, s): return 3 * T + s
    def v0slot(T, w): return 60 + 3 * T + w
    cur = [None]
    def issue0(item):
        kind, T, x = item
        if cur[0] != (kind, T, 0):
            kv_soff(e, S_KV0, T); cur[0] = (kind, T, 0)
        if kind == 'K': ld_k(e, R, slot_reg(k0slot(T, x)), x, ('K0', T, x), o)
        else:
            sl = v0slot(T, x)
            if sl < 118: ld_v(e, R, slot_reg(sl), x, ('V0', T, x), o)
            else: dma_v(e, R, 48 + sl - 118, x, ('V0', T, x), o)
    for item in loads[:o.NF]: issue0(item)
    late_common(e)
    e(f"s_add_u32 s{S_KV1}, s{S_KV0}, {BATCH_STRIDE}")
    e(f"s_sub_u32 s{S_T0}, s{S_WAVE}, 1"); e(f"s_mul_i32 s{S_LDSB}, s{S_T0}, {LDS_SW}")
    if o.NAe or o.NCe:
        e(f"s_getreg_b32 s{S_T0}, hwreg(HW_REG_XCC_ID)"); e(f"s_and_b32 s{S_XPAR}, s{S_T0}, 1")
    nf = list(e.vmq)
    if "now" not in o.exp: weight_dma(e, o)
    e.vmq = nf + ["w"] * o.NW if len(nf) + o.NW <= 60 else ["w"] * 60
    cur[0] = None
    st("s.wiss")
    e(f"v_lshlrev_b32 {vr(R.vlds)}, 4, v8")
    e(f"v_add_u32 {vr(R.vlds)}, s{S_LDSB}, {vr(R.vlds)}")
    attn_selectors(e, R, 8, 10)
    for idx, item in enumerate(loads[:o.NA_BAR]):
        if idx < o.NF: continue
        na = o.NA0 if idx < o.NA0N else o.NA
        e.vm_depth(na - 1)
        if o.NAe: par_depth(e, o.NAe)
        if idx == o.NF + max(o.NA, o.NA0):
            e(f"s_lshl_b32 s{S_T0}, s{S_WAVE}, 2"); e(f"s_add_u32 s{S_T0}, s{S_T0}, {WFLAG-4}")
            e(f"v_mov_b32 v20, s{S_T0}"); e("v_mov_b32 v21, 1")
            e.lg("ds_write_b32 v20, v21", "wf")
            st("s.wland")
        if idx == 60: st("s.k0iss")
        if idx == 90: st("s.v30")
        issue0(item)
    st("A_issued")
    attn_pre(e, R, SW_TILES)
    e("s_barrier")
    st("bar1")
    if "nocw" in o.exp or "cw" in o.exp or "stopA" in o.exp:
        e.vm_all(); st("s.alland"); st.flush(); e("s_endpgm")
    pend = [('0', it) for it in loads[o.NA_BAR:]]
    for T in range(16):
        for s in range(3): pend.append(('1', T, s))
    cur1 = [None]
    def issue_pend():
        it = pend.pop(0)
        if it[0] == '0': cur1[0] = None; issue0(it[1])
        else:
            _, T, s = it
            if cur1[0] != T:
                kv_soff(e, S_KV1, T); cur1[0] = T; cur[0] = None
            dma_k(e, R, 3 * T + s, s, ('K1', T, s), o)
    while pend[0][0] == '0': issue_pend()
    def Kf0(T, s): return slot_reg(k0slot(T, s))
    def Vf0(T, w):
        sl = v0slot(T, w)
        if sl < 118: return slot_reg(sl)
        return "v[32:35]" if w == 1 else "v[28:31]"
    def k_wait_A(T):
        if T == -1: e.vm_wait(('K0', SW_TILES - 1, 2))
    def pv_hook_A(T):
        left = SW_TILES - 1 - T
        target = max(o.NB1, min(o.NA, 3 * left + o.NB1)) if o.NB1 else 0
        if T == SW_TILES - 2:
            e.vm_wait(('V0', SW_TILES - 1, 2))
            e.lg(f"ds_read_b128 v[32:35], {vr(R.vlds)} offset:{48*1024}", ("vo", 1))
            e.lg(f"ds_read_b128 v[28:31], {vr(R.vlds)} offset:{49*1024}", ("vo", 2))
            target = o.NB1
        while pend and len(e.vmq) < target: issue_pend()
    def vwait_A(T, w):
        e.vm_wait(('V0', T, w))
        if T == SW_TILES - 1 and w >= 1: e.lg_wait(("vo", w))
    attn_pass(e, R, SW_TILES, 0, Kf0, Vf0, S_PB, 0, k_wait=k_wait_A, v_wait=vwait_A, pv_hook=pv_hook_A, pre_done=True)
    st("A_done")
    e("s_barrier")
    if o.NB1 == o.NB:
        while pend:
            e.vm_depth(o.NB - 1)
            issue_pend()
    else:
        items = list(pend); pend.clear()
        q0 = list(e.vmq); c0 = cur1[0]
        fast = {i: e.newlabel("fastB") for i in range(len(items))}
        done = e.newlabel("doneB")
        e(f"v_mov_b32 v20, {WFLAG + 12}")
        def emit_item(it, force_soff):
            _, T, s = it
            if cur1[0] != T or force_soff:
                kv_soff(e, S_KV1, T); cur1[0] = T
            dma_k(e, R, 3 * T + s, s, ('K1', T, s), o)
        marks = [i for i, it in enumerate(items) if it[2] == 0]
        if o.NB1 == 0:
            spin = e.newlabel("spinB")
            e(f"s_mov_b32 s{S_CNT}, {o.poll_limit*8}")
            e.label(spin)
            e(f"s_sub_u32 s{S_CNT}, s{S_CNT}, 1"); e(f"s_cbranch_scc1 {fast[0]}")
            e.lg("ds_read_b32 v21, v20", "go"); e.lg_all()
            e(f"v_readfirstlane_b32 s{S_T0}, v21")
            e(f"s_cmp_lg_u32 s{S_T0}, 0"); e(f"s_cbranch_scc1 {fast[0]}")
            e("s_sleep 2"); e(f"s_branch {spin}")
        for i, it in enumerate(items if o.NB1 else []):
            if i in marks:
                e.lg("ds_read_b32 v21, v20", "go"); e.lg_all()
                e(f"v_readfirstlane_b32 s{S_T0}, v21")
                e(f"s_cmp_lg_u32 s{S_T0}, 0"); e(f"s_cbranch_scc1 {fast[i]}")
            e.vm_depth(o.NB1 - 1)
            emit_item(it, False)
        e(f"s_branch {done}")
        e.vmq = list(q0); cur1[0] = c0
        for i, it in enumerate(items):
            if i in marks: e.label(fast[i])
            e.vm_depth(o.NB - 1)
            emit_item(it, i in marks)
        e.label(done)
    st("B_issued")
    attn_pre(e, R, SW_TILES)
    e("s_barrier")
    st("bar3")
    pend1 = []
    for T in range(16, SW_TILES):
        for s in range(3): pend1.append(('K', T, s))
    for T in range(SW_TILES):
        for w in range(3): pend1.append(('V', T, w))
    slot_of = {it: i for i, it in enumerate(pend1)}
    freed = [0]
    issued1 = [0]
    cur2 = [None]
    def issue1():
        it = pend1[issued1[0]]; kind, T, x = it
        if cur2[0] != (kind, T):
            kv_soff(e, S_KV1, T); cur2[0] = (kind, T)
        e.vm_depth(o.NC - 1)
        if o.NCe: par_depth(e, o.NCe)
        if kind == 'K': ld_k(e, R, slot_reg(slot_of[it]), x, ('K1', T, x), o)
        else: ld_v(e, R, slot_reg(slot_of[it]), x, ('V1', T, x), o)
        issued1[0] += 1
    def refill():
        while issued1[0] < len(pend1) and issued1[0] < freed[0]: issue1()
    def qk_hook_C1(T):
        freed[0] = 3 * (T + 1); refill()
    def pv_hook_C1(T):
        freed[0] = min(118, 60 + 3 * (T + 1)); refill(); ovf_hook_C(T)
    def ovf_hook_C(T):
        if T == SW_TILES - 2:
            e.lg(f"ds_read_b128 v[32:35], {vr(R.vlds)} offset:{48*1024}", ("vo", 1))
            e.lg(f"ds_read_b128 v[28:31], {vr(R.vlds)} offset:{49*1024}", ("vo", 2))
    def vwait_C1(T, w):
        if T == SW_TILES - 1 and w >= 1: e.lg_wait(("vo", w))
    e(f"s_add_u32 s{S_T2}, s{S_LDSB}, {48*1024}")
    attn_pass(e, R, SW_TILES, 0, Kf0, Vf0, S_T2, 32, qk_hook=qk_hook_C1, v_wait=vwait_C1, pv_hook=pv_hook_C1, pre_done=True)
    refill()
    assert issued1[0] == len(pend1)
    st("C1_done")
    e("s_barrier")
    stage = [40 + 4 * (k - 64) for k in range(100, 112)]
    def Kf1(T, s):
        if T < 16: return ('lds', (3 * T + s) * 1024)
        return slot_reg(slot_of[('K', T, s)])
    def Vf1(T, w): return slot_reg(slot_of[('V', T, w)])
    def k_wait_C2(T):
        if T == -1: e.vm_wait(('K1', 15, 2))
        elif T >= 16: e.vm_wait(('K1', T, 2))
    def vwait_C2(T, w): e.vm_wait(('V1', T, w))
    attn_pass(e, R, SW_TILES, 1, Kf1, Vf1, S_PB, 0, k_wait=k_wait_C2, v_wait=vwait_C2, stage=stage, look=o.look)
    st("C2_done")
    e("s_barrier")
    if o.wb == 2: emit_wb(e)
    attn_pre(e, R, SW_TILES)
    e("s_barrier")
    st("bar7")
    attn_pass(e, R, SW_TILES, 1, Kf1, Vf1, S_PB, 0, stage=stage, pre_done=True, mark=lambda n: st("e." + n), look=o.look)
    st("E_done")
    e("s_barrier")
    if o.wb == 1: emit_wb(e)
    st.flush()
    e("s_endpgm")

V_LANE, V_LG, V_R, V_PL, V_PG, V_PQ = 0, 4, 5, 6, 7, 8
V_BO, V_BX, V_BX8, V_BH, V_BH8, V_AS, V_AS8 = 9, 10, 11, 12, 13, 14, 15
V_XR, V_CSQ, V_CSG = 16, 20, 24
V_W8, V_WX, V_WH, V_ML = 28, 29, 30, 31
W0 = 32
V_SEL, V_R2, V_ST2, V_PS, V_PSQ, V_L16 = 75, 79, 80, 81, 82, 83
V_T = 84
V_GL, V_LL = 72, 73
V_DA, V_DB = 72, 73
CW_K, CW_V = 86, 134
S_N1 = 74

_off3 = (2, 6, 0)
def wq_frag(t, s): return ("a", 10 * t + _off3[s])
def wo_frag(t, s): return ("a", 120 + 24 * t + 4 * s)
def wd_frag(t, s):
    if s == 0: return ("a", 240 + 4 * t) if t < 4 else ("v", 182)
    return ("v", 186 + 2 * t)
def wg_frag(t, s): return ("v", 196 + 10 * t + _off3[s])
def wu_frag(t, s): return ("v", 226 + 10 * t + _off3[s])
def win(fr): return f"{fr[0]}[{fr[1]}:{fr[1]+3}]"

V_OOB = 74
def selmask(e, dst, val, mask, other=None):
    e(f"s_mov_b32 vcc_lo, 0x{mask & 0xffffffff:08x}"); e(f"s_mov_b32 vcc_hi, 0x{mask >> 32:08x}")
    if other is None: e(f"v_cndmask_b32 {vr(dst)}, v{V_OOB}, {vr(val)}, vcc")
    else:
        assert dst != val
        e(f"v_mov_b32 {vr(dst)}, 0x{other:08x}")
        e(f"v_cndmask_b32 {vr(dst)}, {vr(dst)}, {vr(val)}, vcc")

def rows_mask(live, n): return mask64([32 * r + g for r in live for g in range(n)])
def cols_mask(live, alist=range(4)): return mask64([16 * a + n for a in alist for n in live])

def instance_offsets(e, live, pub_live=None, q_live=None):
    pub_live = live if pub_live is None else pub_live
    q_live = pub_live if q_live is None else q_live
    t, u = V_T, V_T + 1
    e(f"v_and_b32 {vr(t)}, 31, v{V_LANE}"); e(f"v_lshlrev_b32 {vr(t)}, 4, {vr(t)}")
    e(f"v_lshrrev_b32 {vr(u)}, 5, v{V_LANE}"); e(f"v_lshl_add_u32 {vr(t)}, {vr(u)}, 9, {vr(t)}")
    selmask(e, V_LG, t, rows_mask(live, 20))
    selmask(e, V_R2, t, rows_mask(live, 24))
    if o_packed[0]:
        row = live[-1]
        e(f"v_lshrrev_b32 {vr(t)}, 4, v{V_LANE}"); e(f"v_and_b32 {vr(u)}, 15, v{V_LANE}")
        e(f"v_lshlrev_b32 v{V_DA}, 10, {vr(t)}"); e(f"v_lshl_add_u32 v{V_DA}, {vr(u)}, 4, v{V_DA}"); e(f"v_add_u32 v{V_DA}, {512*row}, v{V_DA}")
        e(f"v_lshlrev_b32 v{V_DB}, 15, {vr(t)}"); e(f"v_bfe_u32 {vr(u)}, v{V_LANE}, 2, 2"); e(f"v_lshl_add_u32 v{V_DB}, {vr(u)}, 10, v{V_DB}")
        e(f"v_and_b32 {vr(u)}, 3, v{V_LANE}"); e(f"v_lshl_add_u32 v{V_DB}, {vr(u)}, 4, v{V_DB}"); e(f"v_add_u32 v{V_DB}, {512*row + 256}, v{V_DB}")
        e(f"v_lshrrev_b32 {vr(u)}, 5, v{V_LANE}")
    else:
        e(f"v_and_b32 v{V_GL}, 7, v{V_LANE}"); e(f"v_lshlrev_b32 v{V_GL}, 10, v{V_GL}"); e(f"v_add_u32 v{V_GL}, {512*live[-1] + 19*16}, v{V_GL}")
        e(f"v_and_b32 v{V_LL}, 3, v{V_LANE}"); e(f"v_lshlrev_b32 v{V_LL}, 10, v{V_LL}"); e(f"v_add_u32 v{V_LL}, {512*live[-1] + 19*16}, v{V_LL}")
    e(f"v_and_b32 {vr(t)}, 7, v{V_LANE}"); e(f"v_lshlrev_b32 {vr(t)}, 10, {vr(t)}")
    e(f"v_lshl_add_u32 {vr(t)}, {vr(u)}, 9, {vr(t)}"); e(f"v_add_u32 {vr(t)}, 384, {vr(t)}")
    selmask(e, V_ST2, t, rows_mask(live, 32))
    e(f"v_and_b32 {vr(t)}, 15, v{V_LANE}"); e(f"v_lshrrev_b32 {vr(u)}, 4, v{V_LANE}")
    e(f"v_lshlrev_b32 v{V_PL}, 9, {vr(t)}")
    e(f"v_lshl_add_u32 v{V_PG}, {vr(u)}, 5, v{V_PL}")
    e(f"v_add_u32 v{V_PS}, 384, v{V_PL}")
    e(f"v_lshl_add_u32 v{V_PL}, {vr(u)}, 4, v{V_PL}")
    e(f"v_lshlrev_b32 v{V_PQ}, 18, {vr(t)}")
    e(f"v_add_u32 v{V_PSQ}, 768, v{V_PQ}")
    e(f"v_lshl_add_u32 v{V_PQ}, {vr(u)}, 4, v{V_PQ}")
    cm = cols_mask(pub_live)
    e(f"s_mov_b32 vcc_lo, 0x{cm & 0xffffffff:08x}"); e(f"s_mov_b32 vcc_hi, 0x{cm >> 32:08x}")
    for r in (V_PL, V_PG): e(f"v_cndmask_b32 v{r}, v{V_OOB}, v{r}, vcc")
    selmask(e, V_PS, V_PS, cols_mask(pub_live, [0]))
    selmask(e, V_PQ, V_PQ, cols_mask(q_live))
    selmask(e, V_PSQ, V_PSQ, cols_mask(q_live, [0]))

def soffs(e, off_sreg, const, two=True):
    e(f"s_add_u32 s{S_A}, s{off_sreg}, {const}")
    if two: e(f"s_add_u32 s{S_B}, s{S_A}, 4096")

def poll(e, o, loads, abort, sleep=0):
    lab = e.newlabel("poll")
    e(f"s_mov_b32 s{S_CNT}, {o.poll_limit}")
    e.label(lab)
    for d, vo, s, imm in loads:
        e(f"buffer_load_dwordx4 {vr(d,4)}, v{vo}, s[{SRD_WS}:{SRD_WS+3}], s{s} offen offset:{imm} sc1")
    e(f"s_sub_u32 s{S_CNT}, s{S_CNT}, 1")
    e(f"s_cbranch_scc1 {abort}")
    e("s_waitcnt vmcnt(0)")
    vals = []
    for d, _, _, _ in loads: vals += [d + 1, d + 3]
    t = V_T
    e(f"v_max3_u32 v{t}, v{vals[0]}, v{vals[1]}, v{vals[2]}")
    i = 3
    while i < len(vals):
        if i + 1 < len(vals): e(f"v_max3_u32 v{t}, v{t}, v{vals[i]}, v{vals[i+1]}"); i += 2
        else: e(f"v_max_u32 v{t}, v{t}, v{vals[i]}"); i += 1
    e(f"v_cmp_eq_u32 vcc, -1, v{t}")
    if sleep:
        ok = e.newlabel("pok"); e(f"s_cbranch_vccz {ok}"); e(f"s_sleep {sleep}"); e(f"s_branch {lab}"); e.label(ok)
    else: e(f"s_cbranch_vccnz {lab}")
    e.vmq = []

def gather8(e, o, vo, abort, extra=None, n=8, base=W0):
    loads = [(base + 4 * k, vo, S_A if k < 4 else S_B, (k % 4) * 1024) for k in range(n)]
    if extra: loads.append((base + 4 * n, extra, S_A, 0))
    poll(e, o, loads, abort)

def sum_loads(e, n, base=W0):
    step = 1
    while step < n:
        for k in range(0, n, 2 * step):
            if k + step < n:
                a, b = base + 4 * k, base + 4 * (k + step)
                e(f"v_pk_add_f32 {vr(a,2)}, {vr(a,2)}, {vr(b,2)}")
                e(f"v_pk_add_f32 {vr(a+2,2)}, {vr(a+2,2)}, {vr(b+2,2)}")
        step *= 2

def dpp8(e, reg, op):
    for m in ("quad_perm:[1,0,3,2]", "quad_perm:[2,3,0,1]", "row_half_mirror"):
        e(f"v_{op}_f32_dpp v{reg}, v{reg}, v{reg} {m} row_mask:0xf bank_mask:0xf")
def dpp8x2(e, r0, r1, op):
    for m in ("quad_perm:[1,0,3,2]", "quad_perm:[2,3,0,1]", "row_half_mirror"):
        e(f"v_{op}_f32_dpp v{r0}, v{r0}, v{r0} {m} row_mask:0xf bank_mask:0xf")
        e(f"v_{op}_f32_dpp v{r1}, v{r1}, v{r1} {m} row_mask:0xf bank_mask:0xf")

def ln_from_stats(e, s1, s2, mean, rstd):
    e(f"v_mul_f32 v{mean}, {lit(1/640)}, v{s1}")
    e(f"v_mul_f32 v{s2}, {lit(1/640)}, v{s2}")
    e(f"v_fma_f32 v{s2}, -v{mean}, v{mean}, v{s2}")
    e(f"v_max_f32 v{s2}, 0, v{s2}")
    e(f"v_add_f32 v{s2}, {lit(EPS)}, v{s2}")
    e(f"v_rsq_f32 v{rstd}, v{s2}")

def pub(e, D, vo, sreg, imm, fl, tag):
    e.vm(f"buffer_store_dwordx4 {vr(D,4)}, v{vo}, s[{SRD_WS}:{SRD_WS+3}], s{sreg} offen offset:{imm} {fl}", tag)

def run_tiles(e, tiles, accs, store, btags=None, twait=None):
    n = len(accs); lag = n - 1
    for i, (tid, steps) in enumerate(tiles):
        D = vr(accs[i % n], 4)
        if twait and tid in twait: e.lg_wait(twait[tid])
        for s, (A, B) in enumerate(steps):
            if i == 0 and btags: e.lg_wait(btags[s])
            e(f"v_mfma_f32_16x16x32_bf16 {D}, {A}, {B}, {'0' if s == 0 else D}")
        if i >= lag: store(tiles[i - lag][0], accs[(i - lag) % n])
    for i in range(max(0, len(tiles) - lag), len(tiles)): store(tiles[i][0], accs[i % n])

def read_bx(e, B):
    e.lg(f"ds_read_b128 {vr(B,4)}, v{V_BX}", "b0"); e.lg(f"ds_read_b128 {vr(B+4,4)}, v{V_BX} offset:64", "b1")
    e.lg(f"ds_read_b64 {vr(B+8,2)}, v{V_BX8}", "b2")
    e(f"v_mov_b32 v{B+10}, 0"); e(f"v_mov_b32 v{B+11}, 0")
def read_as(e, A):
    e.lg(f"ds_read_b128 {vr(A,4)}, v{V_AS}", "a0"); e.lg(f"ds_read_b128 {vr(A+4,4)}, v{V_AS} offset:64", "a1")
    e.lg(f"ds_read_b64 {vr(A+8,2)}, v{V_AS8}", "a2")
    e(f"v_mov_b32 v{A+10}, 0"); e(f"v_mov_b32 v{A+11}, 0")

def stage_Q(e, fl, reg_index, shadow=None):
    B, A = W0 + 8, W0 + 20
    read_bx(e, B); read_as(e, A)
    e(f"s_add_u32 s{S_A}, s{S_ROWN}, {reg_index*RG}")
    if shadow: shadow()
    tiles = [(t, [(win(wq_frag(t, s)), vr(B + 4 * s, 4)) for s in range(3)]) for t in range(12)]
    tiles.insert(1, (12, [(vr(A + 4 * s, 4), vr(B + 4 * s, 4)) for s in range(3)]))
    SD = W0 + 4
    def store(t, D): pub(e, D, V_PQ, S_A, 64 * t, fl, ("pq", t))
    first, stats, rest = tiles[0], tiles[1], tiles[2:]
    run_tiles(e, [first], [W0 + 32, W0 + 36], lambda t, D: None, btags=["b0", "b1", "b2"])
    e.lg_wait("a2")
    for s, (Aop, Bop) in enumerate(stats[1]):
        e(f"v_mfma_f32_16x16x32_bf16 {vr(SD,4)}, {Aop}, {Bop}, {'0' if s == 0 else vr(SD,4)}")
    accs = [W0 + 36, W0, W0 + 20, W0 + 32]
    pend = [(0, W0 + 32)]
    for i, (t, steps) in enumerate(rest):
        D = accs[i % 4]
        for s, (Aop, Bop) in enumerate(steps):
            e(f"v_mfma_f32_16x16x32_bf16 {vr(D,4)}, {Aop}, {Bop}, {'0' if s == 0 else vr(D,4)}")
        pend.append((t, D))
        if i >= 2: store(*pend.pop(0))
    e(f"v_cndmask_b32 v{SD+1}, v{SD+1}, v{SD+2}, s[{S_N1}:{S_N1+1}]")
    while pend: store(*pend.pop(0))
    pub(e, SD, V_PSQ, S_A, 0, fl, "pqs")

def stage_GU(e, fl, const, with_stats=True, shadow=None):
    B, A = W0 + 8, W0 + 20
    read_bx(e, B)
    if with_stats: read_as(e, A)
    e(f"s_add_u32 s{S_A}, s{S_ROWN}, {const}" if const >= 0 else f"s_sub_u32 s{S_A}, s{S_ROWN}, {-const}")
    if shadow: shadow()
    def tile(d, f, waits=None):
        d = vr(d, 4)
        for s in range(3):
            if waits: e.lg_wait(waits[s])
            e(f"v_mfma_f32_16x16x32_bf16 {d}, {f(s)}, {vr(B+4*s,4)}, {'0' if s == 0 else d}")
    def store(t, G, U):
        e(f"v_swap_b32 v{G+2}, v{U}"); e(f"v_swap_b32 v{G+3}, v{U+1}")
        pub(e, G, V_PG, S_A, 128 * t, fl, ("pg", t, 0))
        pub(e, U, V_PG, S_A, 128 * t + 16, fl, ("pg", t, 1))
    g = lambda t: (lambda s: win(wg_frag(t, s)))
    u = lambda t: (lambda s: win(wu_frag(t, s)))
    P0, P1, S = (W0 + 32, W0 + 36), (W0 + 20, W0 + 24), W0
    tile(P0[0], g(0), waits=["b0", "b1", "b2"]); tile(P0[1], u(0))
    if with_stats:
        e.lg_wait("a2")
        tile(S, lambda s: vr(A + 4 * s, 4))
    tile(P1[0], g(1)); tile(P1[1], u(1))
    store(0, *P0)
    if with_stats: e(f"v_cndmask_b32 v{S+1}, v{S+1}, v{S+2}, s[{S_N1}:{S_N1+1}]")
    tile(P0[0], g(2)); tile(P0[1], u(2))
    store(1, *P1)
    store(2, *P0)
    if with_stats: pub(e, S, V_PS, S_A, 0, fl, "pgs")

def stage_WO(e, fl, region, shadow=None):
    B = W0
    for s in range(6): e.lg(f"ds_read_b128 {vr(B+4*s,4)}, v{V_BO} offset:{64*s}", ("o", s))
    e(f"s_add_u32 s{S_A}, s{S_LOWN}, {region*RG}")
    if shadow: shadow()
    tiles = [(t, [(win(wo_frag(t, s)), vr(B+4*s,4)) for s in range(6)]) for t in range(5)]
    run_tiles(e, tiles, [W0 + 24, W0 + 28, W0 + 32], lambda t, D: pub(e, D, V_PL, S_A, 64 * t, fl, ("po", t)), btags=[("o", s) for s in range(6)])

def stage_D(e, fl, region):
    B = W0
    e.lg(f"ds_read_b128 {vr(B,4)}, v{V_BH}", "h0"); e.lg(f"ds_read_b64 {vr(B+4,2)}, v{V_BH8}", "h1")
    e(f"v_mov_b32 v{B+6}, 0"); e(f"v_mov_b32 v{B+7}, 0")
    e(f"s_add_u32 s{S_A}, s{S_LOWN}, {region*RG}")
    tiles = [(t, [(win(wd_frag(t, 0)), vr(B,4)), (win(wd_frag(t, 1)), vr(B+4,4))]) for t in range(5)]
    run_tiles(e, tiles, [W0 + 8 + 4 * i for i in range(5)], lambda t, D: pub(e, D, V_PL, S_A, 64 * t, fl, ("pd", t)), btags=["h0", "h1"])

def fast_gather(e, o, loads, body, abort, pre=0, early=False):
    n = len(loads); t = V_T
    lab = e.newlabel("fpoll")
    e(f"s_mov_b32 s{S_CNT}, {o.poll_limit}")
    if pre: e(f"s_sleep {pre}")
    e.label(lab)
    for d, vo, s, imm in loads:
        e(f"buffer_load_dwordx4 {vr(d,4)}, v{vo}, s[{SRD_WS}:{SRD_WS+3}], s{s} offen offset:{imm} sc1")
    e(f"s_sub_u32 s{S_CNT}, s{S_CNT}, 1")
    e(f"s_cbranch_scc1 {abort}")
    first = [True]
    if early:
        d = loads[0][0]
        e(f"s_waitcnt vmcnt({n-1})")
        e(f"v_max_u32 v{t}, v{d+1}, v{d+3}")
        e(f"v_cmp_eq_u32 vcc, -1, v{t}")
        e(f"s_cbranch_vccnz {lab}")
        first[0] = False
    def wait(k): e(f"s_waitcnt vmcnt({n-1-k})")
    def chk(k):
        d = loads[k][0]
        if first[0]: e(f"v_max_u32 v{t}, v{d+1}, v{d+3}"); first[0] = False
        else: e(f"v_max3_u32 v{t}, v{t}, v{d+1}, v{d+3}")
    body(wait, chk)
    e(f"v_cmp_eq_u32 vcc, -1, v{t}")
    e(f"s_cbranch_vccnz {lab}")
    e.vmq = []

def padd(e, a, b, neg=False):
    m = " neg_lo:[0,1] neg_hi:[0,1]" if neg else ""
    e(f"v_pk_add_f32 {vr(a,2)}, {vr(a,2)}, {vr(b,2)}{m}"); e(f"v_pk_add_f32 {vr(a+2,2)}, {vr(a+2,2)}, {vr(b+2,2)}{m}")

def g_soffs(e, off_sreg, const, two=True):
    e(f"s_add_u32 s{S_GA}, s{off_sreg}, {const}")
    if two: e(f"s_add_u32 s{S_GB}, s{S_GA}, 4096")
def g_loads(vo, n=8, base=W0): return [(base + 4 * k, vo, S_GA if k < 4 else S_GB, (k % 4) * 1024) for k in range(n)]

def hop_LG(e, o, inst, k, abort, final_only=False):
    skip = e.newlabel("notleader")
    e(f"s_cmp_lg_u32 s{S_HQ}, 0"); e(f"s_cbranch_scc1 {skip}")
    g_soffs(e, S_LGRP, L_REG(inst, k) * RG, two=False)
    e(f"s_add_u32 s{S_A}, s{S_GOWN}, {G_OFF(inst,k)}")
    X = W0 + 32
    off = 1 if o.early else 0
    def body4(wait, chk):
        wait(off + 1); chk(off); chk(off + 1); padd(e, W0, W0 + 4)
        wait(off + 2); chk(off + 2); padd(e, W0, W0 + 8)
        wait(off + 3); chk(off + 3); padd(e, W0, W0 + 12)
    fast_gather(e, o, ([(X, V_LL, S_GA, 0)] if o.early else []) + g_loads(V_LG, 4), body4, abort, pre=o.preL, early=o.early)
    e(f"buffer_store_dwordx4 {vr(W0,4)}, v{V_LG}, s[{SRD_WS}:{SRD_WS+3}], s{S_A} offen sc1")
    if o.preGn:
        join = e.newlabel("lgjoin")
        e(f"s_branch {join}")
        e.label(skip)
        if not final_only: e(f"s_sleep {o.preGn}")
        e.label(join)
    else: e.label(skip)
    if final_only:
        e(f"s_cmp_lg_u32 s{S_H}, 0"); e(f"s_cbranch_scc1 L_done")
    g_soffs(e, S_GGRP, G_OFF(inst, k))
    e.vmq = []
    def body8(wait, chk):
        c = lambda k: chk(off + k)
        w = lambda k: wait(off + k)
        w(1); c(0); c(1); padd(e, W0, V_XR); padd(e, W0, W0 + 4)
        w(3); c(2); c(3); padd(e, W0 + 8, W0 + 12); padd(e, W0, W0 + 8)
        w(5); c(4); c(5); padd(e, W0 + 16, W0 + 20); padd(e, W0, W0 + 16)
        w(6); c(6); padd(e, W0, W0 + 24)
        w(7); c(7); padd(e, W0, W0 + 28)
    fast_gather(e, o, ([(X, V_GL, S_GA, 0)] if o.early else []) + g_loads(V_LG, 8), body8, abort, pre=o.preG, early=o.early)

def hop_packed(e, o, abort, inst, k, pre):
    if inst == 2 and k == 1:
        e(f"s_cmp_lg_u32 s{S_H}, 0"); e(f"s_cbranch_scc1 L_done")
    e(f"s_lshl_b32 s{S_T0}, s{S_J}, 12"); e(f"s_add_u32 s{S_T0}, s{S_T0}, {L_REG(inst,k)*RG}")
    for x in range(8): e(f"s_add_u32 s{SW8[x]}, s{S_T0}, {32768*x}")
    B0 = W0 + 32
    loads = [(B0, V_DB, SW8[0], 0), (B0 + 4, V_DB, SW8[4], 0)] + [(W0 + 4 * x, V_DA, SW8[x], 0) for x in range(8)]
    T = V_T + 1
    def xrow(a):
        for sw in ("v_permlane16_swap_b32", "v_permlane32_swap_b32"):
            for r in range(4):
                t = B0 + 4 + r
                e(f"v_mov_b32 v{t}, v{a+r}")
            for r in range(4): e(f"{sw} v{a+r}, v{B0+4+r}")
            for h in range(2): e(f"v_pk_add_f32 {vr(a+2*h,2)}, {vr(a+2*h,2)}, {vr(B0+4+2*h,2)}")
    def body(wait, chk):
        wait(1); chk(0); chk(1); padd(e, B0, B0 + 4)
        for m in ("row_ror:4", "row_ror:8"):
            for r in range(4): e(f"v_add_f32_dpp v{B0+r}, v{B0+r}, v{B0+r} {m} row_mask:0xf bank_mask:0xf")
        wait(3); chk(2); chk(3); padd(e, W0, W0 + 4)
        xrow(B0)
        wait(5); chk(4); chk(5); padd(e, W0 + 8, W0 + 12); padd(e, W0, W0 + 8)
        wait(7); chk(6); chk(7); padd(e, W0 + 16, W0 + 20); padd(e, W0, W0 + 16)
        wait(8); chk(8); padd(e, W0, W0 + 24)
        wait(9); chk(9); padd(e, W0, W0 + 28)
    fast_gather(e, o, loads, body, abort, pre=pre)
    xrow(W0)
    e("s_mov_b32 vcc_lo, 0xffff0000"); e("s_mov_b32 vcc_hi, 0xffff0000")
    for r in range(4): e(f"v_cndmask_b32 v{W0+r}, v{W0+r}, v{B0+r}, vcc")
    m = rows_mask([LIVE[inst][-1]], 20)
    e(f"s_mov_b32 vcc_lo, 0x{m & 0xffffffff:08x}"); e(f"s_mov_b32 vcc_hi, 0x{m >> 32:08x}")
    for r in range(4): e(f"v_cndmask_b32 v{W0+r}, 0, v{W0+r}, vcc")
    padd(e, W0, V_XR)

def hop_final(e, o, abort, k=1):
    if k == 1:
        e(f"s_cmp_lg_u32 s{S_H}, 0"); e(f"s_cbranch_scc1 L_done")
    e(f"s_lshl_b32 s{S_T0}, s{S_J}, 12"); e(f"s_add_u32 s{S_T0}, s{S_T0}, {L_REG(2,k)*RG}")
    for x in range(8): e(f"s_add_u32 s{SW8[x]}, s{S_T0}, {32768*x}")
    dst = [W0 + 4 * k for k in range(8)] + [CW_K + 4 * k for k in range(24)]
    loads = [(dst[4 * x + q], V_LG, SW8[x], 1024 * q) for x in range(8) for q in range(4)]
    A0, A1 = loads[0][0], loads[1][0]
    def body(wait, chk):
        wait(1); chk(0); chk(1); padd(e, A0, V_XR)
        for k in range(2, 32):
            if k % 2 == 0: wait(min(k + 1, 31)); chk(k); chk(k + 1)
            padd(e, A0 if k % 2 == 0 else A1, loads[k][0])
        padd(e, A0, A1)
    fast_gather(e, o, loads, body, abort, pre=o.preF if k == 1 else o.preF0)

def residual_update(e):
    e(f"v_cvt_pk_bf16_f32 v{W0+4}, v{W0}, v{W0+1}")
    e(f"v_cvt_pk_bf16_f32 v{W0+5}, v{W0+2}, v{W0+3}")
    e.lg(f"ds_write_b64 v{V_WX}, {vr(W0+4,2)}", "wx")
def residual_unpack(e, p):
    e(f"v_lshlrev_b32 v{V_XR}, 16, v{p}"); e(f"v_and_b32 v{V_XR+1}, 0xffff0000, v{p}")
    e(f"v_lshlrev_b32 v{V_XR+2}, 16, v{p+1}"); e(f"v_and_b32 v{V_XR+3}, 0xffff0000, v{p+1}")

def store_out(e, row, only=True):
    skip = e.newlabel("noout")
    e(f"s_cmp_lg_u32 s{S_H}, 0"); e(f"s_cbranch_scc1 {skip}")
    make_srd(e, SRD_T, S_OUT, 2560)
    e(f"v_and_b32 v{V_T}, 31, v{V_LANE}"); e(f"v_lshlrev_b32 v{V_T}, 3, v{V_T}")
    e(f"s_mul_i32 s{S_T0}, s{S_J}, 160"); e(f"s_add_u32 s{S_T0}, s{S_T0}, {row*1280}")
    selmask(e, V_T, V_T, rows_mask([row], 20))
    e(f"buffer_store_dwordx2 {vr(W0+4,2)}, v{V_T}, s[{SRD_T}:{SRD_T+3}], s{S_T0} offen")
    e.label(skip)

def combine_publish(e, fl, parts, mlbase, region):
    T = W0
    e(f"v_mov_b32 v{V_T}, {mlbase}")
    e.lg(f"ds_read_b128 {vr(T,4)}, v{V_T}", "ml0"); e.lg(f"ds_read_b128 {vr(T+4,4)}, v{V_T} offset:16", "ml1")
    P = T + 8
    cur = None
    for w in range(4):
        if cur is None or not (0 <= parts[w] - cur < 60000):
            e(f"v_add_u32 v{V_T+1}, {parts[w]}, v{V_L16}"); cur = parts[w]
        for par in range(2):
            e.lg(f"ds_read_b128 {vr(P+8*w+4*par,4)}, v{V_T+1} offset:{parts[w] - cur + 768*par}", ("p", w, par))
    e(f"s_add_u32 s{S_A}, s{S_ROWN}, {region*RG}")
    e.lg_wait("ml1")
    m = [T, T + 2, T + 4, T + 6]; l = [T + 1, T + 3, T + 5, T + 7]
    M, Ls = V_T, V_T + 1
    e(f"v_max3_f32 v{M}, v{m[0]}, v{m[1]}, v{m[2]}"); e(f"v_max_f32 v{M}, v{M}, v{m[3]}")
    for w in range(4): e(f"v_sub_f32 v{m[w]}, v{m[w]}, v{M}")
    for w in range(4): e(f"v_exp_f32 v{m[w]}, v{m[w]}")
    e(f"v_mul_f32 v{Ls}, v{m[0]}, v{l[0]}")
    for w in range(1, 4): e(f"v_fma_f32 v{Ls}, v{m[w]}, v{l[w]}, v{Ls}")
    for w in range(4):
        e.lg_wait(("p", w, 1))
        a = P + 8 * w
        e(f"v_pk_add_f32 {vr(a,2)}, {vr(a,2)}, {vr(a+4,2)}"); e(f"v_pk_add_f32 {vr(a+2,2)}, {vr(a+2,2)}, {vr(a+6,2)}")
        for r in range(4):
            if w == 0: e(f"v_mul_f32 v{P+r}, v{m[0]}, v{P+r}")
            else: e(f"v_fmac_f32 v{P+r}, v{m[w]}, v{a+r}")
    e(f"s_mov_b32 vcc_lo, 0"); e(f"s_mov_b32 vcc_hi, 0x00010000")
    e(f"v_cndmask_b32 v{P}, v{P}, v{M}, vcc"); e(f"v_cndmask_b32 v{P+1}, v{P+1}, v{Ls}, vcc")
    pub(e, P, V_R, S_A, 0, fl, "r1")

SW8 = [4, 6, 8, 10, 12, 16, 18, 20]
def hop_R1(e, o, region, row, abort):
    g_soffs(e, S_RGRP, region * RG)
    X = W0 + 32
    M, wv = X + 2, X + 3
    acc = W0 + 36
    loads = [(X, V_ML, S_GA, 0)] + g_loads(V_R)
    def body(wait, chk):
        if not o.early: wait(0); chk(0)
        e(f"v_mov_b32 v{M}, v{X}")
        dpp8(e, M, "max")
        e(f"v_sub_f32 v{wv}, v{X}, v{M}"); e(f"v_exp_f32 v{wv}, v{wv}")
        wait(4); chk(1); chk(2)
        e(f"v_mul_f32 v{X+1}, v{wv}, v{X+1}")
        chk(3); chk(4)
        e(f"v_add_f32_dpp v{X+1}, v{X+1}, v{X+1} quad_perm:[1,0,3,2] row_mask:0xf bank_mask:0xf")
        wait(8); chk(5); chk(6)
        e(f"v_add_f32_dpp v{X+1}, v{X+1}, v{X+1} quad_perm:[2,3,0,1] row_mask:0xf bank_mask:0xf")
        chk(7); chk(8)
        e(f"v_add_f32_dpp v{X+1}, v{X+1}, v{X+1} row_half_mirror row_mask:0xf bank_mask:0xf")
        e(f"v_rcp_f32 v{X+1}, v{X+1}")
        e(f"v_mul_f32 v{wv}, v{wv}, v{X+1}")
        for k in range(8): e(f"v_readlane_b32 s{SW8[k]}, v{wv}, {k}")
        for k in range(8):
            for h in range(2):
                a, m = acc + 2 * h, W0 + 4 * k + 2 * h
                sp = f"s[{SW8[k]}:{SW8[k]+1}]"
                if k == 0: e(f"v_pk_mul_f32 {vr(a,2)}, {vr(m,2)}, {sp} op_sel_hi:[1,0]")
                else: e(f"v_pk_fma_f32 {vr(a,2)}, {vr(m,2)}, {sp}, {vr(a,2)} op_sel_hi:[1,0,1]")
    fast_gather(e, o, loads, body, abort, pre=o.preR, early=o.early)
    e(f"v_cvt_pk_bf16_f32 v{acc}, v{acc}, v{acc+1}"); e(f"v_cvt_pk_bf16_f32 v{acc+1}, v{acc+2}, v{acc+3}")
    e.lg(f"ds_write_b64 v{V_W8}, {vr(acc,2)} offset:{ACT_O - SB + 384*row}", "wo")

def ln_gather(e, o, vo, vstat, cs, abort):
    X = W0 + 32; mean, rstd = X + 2, X + 3; T = W0 + 36
    loads = [(X, vstat, S_GA, 0)] + g_loads(vo)
    q = lambda r, m: e(f"v_add_f32_dpp v{r}, v{r}, v{r} {m} row_mask:0xf bank_mask:0xf")
    def body(wait, chk):
        if not o.early: wait(0); chk(0)
        q(X, "quad_perm:[1,0,3,2]"); q(X + 1, "quad_perm:[1,0,3,2]")
        wait(2); chk(1)
        q(X, "quad_perm:[2,3,0,1]"); q(X + 1, "quad_perm:[2,3,0,1]")
        chk(2)
        q(X, "row_half_mirror"); q(X + 1, "row_half_mirror")
        padd(e, W0, W0 + 4)
        e(f"v_mul_f32 v{mean}, {lit(1/640)}, v{X}"); e(f"v_mul_f32 v{X+1}, {lit(1/640)}, v{X+1}")
        wait(4); chk(3); chk(4)
        e(f"v_fma_f32 v{X+1}, -v{mean}, v{mean}, v{X+1}")
        padd(e, W0 + 8, W0 + 12)
        e(f"v_max_f32 v{X+1}, 0, v{X+1}"); e(f"v_add_f32 v{X+1}, {lit(EPS)}, v{X+1}")
        padd(e, W0, W0 + 8)
        e(f"v_rsq_f32 v{rstd}, v{X+1}")
        wait(6); chk(5); chk(6)
        e(f"v_pk_mul_f32 {vr(T,2)}, {vr(cs,2)}, {vr(mean,2)} op_sel_hi:[1,0]"); e(f"v_pk_mul_f32 {vr(T+2,2)}, {vr(cs+2,2)}, {vr(mean,2)} op_sel_hi:[1,0]")
        padd(e, W0 + 16, W0 + 20); padd(e, W0, T, neg=True); padd(e, W0, W0 + 16)
        wait(7); chk(7); padd(e, W0, W0 + 24)
        wait(8); chk(8); padd(e, W0, W0 + 28)
    fast_gather(e, o, loads, body, abort, pre=o.preR, early=o.early)
    e(f"v_pk_mul_f32 {vr(W0,2)}, {vr(W0,2)}, {vr(mean,2)} op_sel:[0,1] op_sel_hi:[1,1]")
    e(f"v_pk_mul_f32 {vr(W0+2,2)}, {vr(W0+2,2)}, {vr(mean,2)} op_sel:[0,1] op_sel_hi:[1,1]")

def hop_R2(e, o, inst, abort):
    ln_gather(e, o, V_R2, V_ST2, V_CSG, abort)
    e(f"v_max_f32 v{W0}, 0, v{W0}"); e(f"v_max_f32 v{W0+1}, 0, v{W0+1}")
    e(f"v_pk_mul_f32 {vr(W0,2)}, {vr(W0,2)}, {vr(W0+2,2)}")
    e(f"v_cvt_pk_bf16_f32 v{W0}, v{W0}, v{W0+1}")
    e.lg(f"ds_write_b32 v{V_WH}, v{W0}", "wh")

def q_consume(e, base, X, row):
    dpp8x2(e, X, X + 1, "add")
    sum_loads(e, 8, base)
    mean, rstd = X + 2, X + 3
    ln_from_stats(e, X, X + 1, mean, rstd)
    for r in range(4): e(f"v_fma_f32 v{base+r}, -v{mean}, v{V_CSQ+r}, v{base+r}")
    for r in range(4): e(f"v_mul_f32 v{base+r}, v{rstd}, v{base+r}")
    e(f"v_cvt_pk_bf16_f32 v{base}, v{base}, v{base+1}"); e(f"v_cvt_pk_bf16_f32 v{base+1}, v{base+2}, v{base+3}")
    e.lg(f"ds_write_b64 v{V_W8}, {vr(base,2)} offset:{QARR - SB + 384*row}", "wq")

def hop_R3(e, o, region, row, abort):
    ln_gather(e, o, V_R, V_ML, V_CSQ, abort)
    e(f"v_cvt_pk_bf16_f32 v{W0}, v{W0}, v{W0+1}"); e(f"v_cvt_pk_bf16_f32 v{W0+1}, v{W0+2}, v{W0+3}")
    e.lg(f"ds_write_b64 v{V_W8}, {vr(W0,2)} offset:{QARR - SB + 384*row}", "wq")

def go_flag(e):
    e(f"v_mov_b32 v{V_T}, {WFLAG + 12}"); e(f"v_mov_b32 v{V_T+1}, 1")
    e.lg(f"ds_write_b32 v{V_T}, v{V_T+1}", "go")

def chain(e, o, fl, inst, live, abort, st):
    c = f"c{inst}."
    if inst == 0 and o.NB1 != o.NB and o.go_at == "R1": go_flag(e)
    if inst == 0: o._save = (o.preR, o.preL, o.preG); o.preL, o.preG = o.preL + o.preL0, o.preG + o.preG0
    st.rounds(f"n{inst}.R1")
    st(c + "R1")
    pk = o.packed.split(",") if o.packed else []
    if inst == 0 and o.split_tok:
        TO, TD = W0 + 38, W0 + 36
        omask = 0xffffffff00ff0000
        def shadow():
            tok2_offsets(e, TO, W0 + 24, others_only=True)
            e(f"s_mov_b32 s{S_B}, {TOK2}")
            set_exec(e, omask)
            e.vm(f"buffer_load_dwordx2 {vr(TD,2)}, v{TO}, s[{SRD_WS}:{SRD_WS+3}], s{S_B} offen sc1", "tok2b")
            e("s_mov_b64 exec, -1")
        stage_WO(e, "sc1" if "00" in pk else fl, L_REG(inst, 0), shadow=shadow)
        ok, lab = e.newlabel("tok2ok"), e.newlabel("tok2re")
        e.vm_wait("tok2b")
        set_exec(e, omask)
        e(f"v_cmp_ne_u32 vcc, s{S_TAG}, v{TD}")
        e(f"s_cbranch_vccz {ok}")
        e(f"s_mov_b32 s{S_CNT}, {o.poll_limit}")
        e.label(lab)
        e(f"buffer_load_dwordx2 {vr(TD,2)}, v{TO}, s[{SRD_WS}:{SRD_WS+3}], s{S_B} offen sc1")
        e(f"s_sub_u32 s{S_CNT}, s{S_CNT}, 1"); e(f"s_cbranch_scc1 {abort}")
        e("s_waitcnt vmcnt(0)")
        e(f"v_cmp_ne_u32 vcc, s{S_TAG}, v{TD}")
        e(f"s_cbranch_vccnz {lab}")
        e.label(ok)
        e("s_mov_b64 exec, -1")
        st(c + "WO")
        if "00" in pk: hop_packed(e, o, abort, inst, 0, o.preP0)
        else: hop_LG(e, o, inst, 0, abort)
    elif f"{inst}0" in pk:
        stage_WO(e, "sc1", L_REG(inst, 0))
        st(c + "WO")
        hop_packed(e, o, abort, inst, 0, o.preP0 if inst == 0 else o.preF0)
    elif inst == 2 and o.direct0:
        stage_WO(e, "sc1", L_REG(inst, 0))
        st(c + "WO")
        hop_final(e, o, abort, k=0)
    else:
        stage_WO(e, fl, L_REG(inst, 0))
        st(c + "WO")
        hop_LG(e, o, inst, 0, abort)
    if inst == 0 and o.NB1 != o.NB and o.go_at == "G1": go_flag(e)
    if inst == 0: o.preR, o.preL, o.preG = o._save
    st.rounds(f"n{inst}.G1")
    st(c + "G1")
    residual_update(e)
    def sh_gu():
        residual_unpack(e, W0 + 4); g_soffs(e, S_RGRP, R2_REG[inst] * RG)
    stage_GU(e, fl, R2_REG[inst] * RG, shadow=sh_gu)
    st(c + "GU")
    hop_R2(e, o, inst, abort)
    st.rounds(f"n{inst}.R2")
    st(c + "R2")
    if f"{inst}1" in pk:
        stage_D(e, "sc1", L_REG(inst, 1))
        st(c + "D")
        hop_packed(e, o, abort, inst, 1, o.preP1 if inst == 0 else (o.preF if inst == 2 else o.preF1))
    elif inst == 2 and o.direct:
        stage_D(e, "sc1", L_REG(inst, 1))
        st(c + "D")
        hop_final(e, o, abort)
    else:
        stage_D(e, fl, L_REG(inst, 1))
        st(c + "D")
        hop_LG(e, o, inst, 1, abort, final_only=(inst == 2))
    st.rounds(f"n{inst}.G2")
    st(c + "G2")
    if inst == 2:
        e(f"v_cvt_pk_bf16_f32 v{W0+4}, v{W0}, v{W0+1}"); e(f"v_cvt_pk_bf16_f32 v{W0+5}, v{W0+2}, v{W0+3}")
        for r in LIVE[2]: store_out(e, r, only=len(LIVE[2]) == 1)
        e("s_cmp_lg_u32 s2, 0"); e("s_cbranch_scc1 L_done")
        e(f"v_mov_b32 v{V_T}, s{S_TAG}"); e(f"v_mov_b32 v{V_T+1}, {EPOCH_OFF}")
        e("s_mov_b64 exec, 1")
        e(f"buffer_store_dword v{V_T}, v{V_T+1}, s[{SRD_WS}:{SRD_WS+3}], 0 offen sc1")
        e("s_mov_b64 exec, -1")
        return
    residual_update(e)
    qrow = 0 if inst == 0 else 1
    def sh_q():
        residual_unpack(e, W0 + 4); g_soffs(e, S_RGRP, R3_REG[inst] * RG)
        if inst == 1 and 0 in LIVE[1]:
            store_out(e, 0)
            cm = cols_mask([1]); e(f"s_mov_b32 vcc_lo, 0x{cm & 0xffffffff:08x}"); e(f"s_mov_b32 vcc_hi, 0x{cm >> 32:08x}")
            e(f"v_cndmask_b32 v{V_PQ}, v{V_OOB}, v{V_PQ}, vcc"); e(f"v_cndmask_b32 v{V_PSQ}, v{V_OOB}, v{V_PSQ}, vcc")
    stage_Q(e, fl, R3_REG[inst] - qrow, shadow=sh_q)
    st(c + "Q")
    hop_R3(e, o, R3_REG[inst], qrow, abort)
    e.lg_all()
    st.rounds(f"n{inst}.R3")
    st(c + "R3")

TOK1 = 21 * RG
TOK2 = TOK1 + 32768
EPOCH_OFF = 896
S_TAG = 73

LIVE = {0: [0], 1: [0, 1], 2: [1]}
o_direct = [True, False]
o_packed = [False]
o_exp = ['']
o_dset = set()
def emit_resets_P(e):
    e(f"v_mov_b32 v{W0}, -1"); e(f"v_mov_b32 v{W0+1}, -1"); e(f"v_mov_b32 v{W0+2}, -1"); e(f"v_mov_b32 v{W0+3}, -1")
    for r in [4, 5, 6]:
        e(f"s_add_u32 s{S_A}, s{S_ROWN}, {r*RG}")
        e.vm(f"buffer_store_dwordx4 {vr(W0,4)}, v{V_R}, s[{SRD_WS}:{SRD_WS+3}], s{S_A} offen sc1", "rstp")
    e(f"v_lshlrev_b32 v{V_T}, 4, v{V_LANE}")
    selmask(e, W0 + 4, V_T, rows_mask([0], 24))
    e(f"s_add_u32 s{S_A}, s{S_ROWN}, {R2_REG['P']*RG}")
    e.vm(f"buffer_store_dwordx4 {vr(W0,4)}, v{W0+4}, s[{SRD_WS}:{SRD_WS+3}], s{S_A} offen sc1", "rstp")

def emit_resets(e, f):
    e(f"v_mov_b32 v{W0}, -1"); e(f"v_mov_b32 v{W0+1}, -1"); e(f"v_mov_b32 v{W0+2}, -1"); e(f"v_mov_b32 v{W0+3}, -1")
    def reset(vo, sreg, const):
        e(f"s_add_u32 s{S_A}, s{sreg}, {const}")
        e.vm(f"buffer_store_dwordx4 {vr(W0,4)}, v{vo}, s[{SRD_WS}:{SRD_WS+3}], s{S_A} offen {f}", "rst")
    e(f"v_and_b32 v{V_T}, 31, v{V_LANE}"); e(f"v_lshlrev_b32 v{V_T}, 4, v{V_T}")
    e(f"v_lshrrev_b32 v{V_T+1}, 5, v{V_LANE}"); e(f"v_lshl_add_u32 v{V_T}, v{V_T+1}, 9, v{V_T}")
    liv = dict(LIVE); liv['P'] = [0]
    skip = e.newlabel("norstg")
    e(f"s_cmp_lg_u32 s{S_HQ}, 0"); e(f"s_cbranch_scc1 {skip}")
    for inst in (0, 1, 2):
        ks = [k for k in range(2) if (inst, k) not in o_dset]
        if not ks: continue
        selmask(e, W0 + 4, V_T, rows_mask(liv[inst], 20))
        for k in ks:
            e(f"s_add_u32 s{S_A}, s{S_GOWN}, {G_OFF(inst,k)}")
            e(f"buffer_store_dwordx4 {vr(W0,4)}, v{W0+4}, s[{SRD_WS}:{SRD_WS+3}], s{S_A} offen sc1")
    e.label(skip)
    for r in [7, 8] + list(R1_REG.values()): reset(V_R, S_ROWN, r * RG)
    for inst in (0, 1, 2):
        selmask(e, W0 + 4, V_T, rows_mask(liv[inst], 25))
        reset(W0 + 4, S_ROWN, R2_REG[inst] * RG)
        selmask(e, W0 + 4, V_T, rows_mask(liv[inst], 20))
        for k in range(2):
            if (inst, k) in o_dset:
                if o_exp[0] and "noLrst" in o_exp[0]: continue
                e(f"s_add_u32 s{S_A}, s{S_LOWN}, {L_REG(inst, k) * RG}")
                e.vm(f"buffer_store_dwordx4 {vr(W0,4)}, v{W0+4}, s[{SRD_WS}:{SRD_WS+3}], s{S_A} offen sc1", "rst")
            else: reset(W0 + 4, S_LOWN, L_REG(inst, k) * RG)

def token_store(e, base, second):
    e(f"s_lshl_b32 s{S_A}, s2, 7"); e(f"s_add_u32 s{S_A}, s{S_A}, {base}")
    e(f"v_mov_b32 v{W0+40}, s{S_TAG}"); e(f"v_mov_b32 v{W0+41}, {second}"); e(f"v_mov_b32 v{V_T}, 0")
    e("s_mov_b64 exec, 1")
    e.vm(f"buffer_store_dwordx2 {vr(W0+40,2)}, v{V_T}, s[{SRD_WS}:{SRD_WS+3}], s{S_A} offen sc1", "tok")
    e("s_mov_b64 exec, -1")

def token_gather(e, o, base, vo, mask, sleep=0, dst=W0, between=None):
    lab = e.newlabel("tok"); chk = e.newlabel("tokchk")
    if between:
        e(f"s_mov_b32 s{S_B}, {base}")
        set_exec(e, mask)
        e(f"buffer_load_dwordx2 {vr(dst,2)}, v{vo}, s[{SRD_WS}:{SRD_WS+3}], s{S_B} offen sc1")
        e("s_mov_b64 exec, -1")
        between()
        e(f"s_mov_b32 s{S_A}, {base}")
        set_exec(e, mask)
        e(f"s_mov_b32 s{S_CNT}, {o.poll_limit}")
        e(f"s_branch {chk}")
    else:
        e(f"s_mov_b32 s{S_A}, {base}")
        set_exec(e, mask)
        e(f"s_mov_b32 s{S_CNT}, {o.poll_limit}")
    e.label(lab)
    e(f"buffer_load_dwordx2 {vr(dst,2)}, v{vo}, s[{SRD_WS}:{SRD_WS+3}], s{S_A} offen sc1")
    e(f"s_sub_u32 s{S_CNT}, s{S_CNT}, 1"); e(f"s_cbranch_scc1 L_abort")
    e.label(chk)
    e("s_waitcnt vmcnt(0)")
    e(f"v_cmp_ne_u32 vcc, s{S_TAG}, v{dst}")
    if sleep:
        ok = e.newlabel("tokok"); e(f"s_cbranch_vccz {ok}"); e(f"s_sleep {sleep}"); e(f"s_branch {lab}"); e.label(ok)
    else: e(f"s_cbranch_vccnz {lab}")
    e.vmq = []

def tr_block(e, items):
    i, g, r, c, t = W0, W0 + 1, W0 + 2, W0 + 3, W0 + 4
    a32, a16 = W0 + 6, W0 + 7
    def tr_setup():
        e(f"v_and_b32 v{i}, 15, v{V_LANE}"); e(f"v_lshrrev_b32 v{g}, 4, v{V_LANE}")
        e(f"v_lshrrev_b32 v{r}, 2, v{i}"); e(f"v_and_b32 v{c}, 3, v{i}")
    def trbase(dst, stride, rows_per_g, base):
        e(f"v_mul_u32_u24 v{t}, {rows_per_g}, v{g}"); e(f"v_add_u32 v{t}, v{t}, v{r}")
        e(f"v_mul_u32_u24 v{t}, {stride}, v{t}"); e(f"v_lshl_add_u32 v{dst}, v{c}, 3, v{t}")
        if base: e(f"v_add_u32 v{dst}, {base}, v{dst}")
    def tr(frag, addr, off, k16, stride):
        f, lo = frag
        e.lg(f"ds_read_b64_tr_b16 {f}[{lo}:{lo+1}], v{addr} offset:{off}", "tr")
        if not k16: e.lg(f"ds_read_b64_tr_b16 {f}[{lo+2}:{lo+3}], v{addr} offset:{off+4*stride}", "tr")
        if len(e.lgq) >= 12: e.lg_wait_n(4)
    if True:
        tr_setup()
        for frag, nt, stride, base, ks in items:
            trbase(a32, stride, 8, base); trbase(a16, stride, 4, base)
            nk = len(ks)
            for tt in range(nt):
                for s, k0 in enumerate(ks):
                    k16 = (frag is not wo_frag) and s == nk - 1
                    tr(frag(tt, s), a16 if k16 else a32, k0 * stride + 32 * tt, k16, stride)
        e.lg_all()

def prologue_weights(e, o, st):
    abort = "L_abort"
    e(f"v_mov_b32 v{W0+2}, 0x3f803f80"); e(f"v_mov_b32 v{W0+3}, 0x3f803f80")
    e(f"v_lshlrev_b32 v{W0+4}, 3, v{V_LANE}"); e(f"v_add_u32 v{W0+4}, {ACT_X+384}, v{W0+4}")
    set_exec(e, mask64(range(24)))
    e.lg(f"ds_write_b64 v{W0+4}, {vr(W0+2,2)}", "ones")
    e("s_mov_b64 exec, -1")
    e.lg(f"ds_write_b64 v{V_WX}, {vr(V_XR,2)}", "wx")
    e(f"v_lshlrev_b32 v{V_XR+2}, 16, v{V_XR+1}"); e(f"v_and_b32 v{V_XR+3}, 0xffff0000, v{V_XR+1}")
    e(f"v_and_b32 v{V_XR+1}, 0xffff0000, v{V_XR}"); e(f"v_lshlrev_b32 v{V_XR}, 16, v{V_XR}")
    e.lg_all()
    lab = e.newlabel("wflag")
    e(f"v_mov_b32 v{V_T+1}, {WFLAG}")
    e(f"s_mov_b32 s{S_CNT}, {o.poll_limit*8}")
    e.label(lab)
    e(f"ds_read_b96 {vr(W0,3)}, v{V_T+1}")
    e(f"s_sub_u32 s{S_CNT}, s{S_CNT}, 1"); e(f"s_cbranch_scc1 {abort}")
    e("s_waitcnt lgkmcnt(0)")
    e(f"v_and_b32 v{W0}, v{W0}, v{W0+1}"); e(f"v_and_b32 v{W0}, v{W0}, v{W0+2}")
    e(f"v_cmp_ne_u32 vcc, 1, v{W0}")
    e(f"s_cbranch_vccnz {lab}")
    st("p.wland")
    tr_block(e, [(wq_frag, 12, 384, ST_WQ, (0, 32, 64)), (wg_frag, 3, 96, ST_WG, (0, 32, 64)), (wu_frag, 3, 96, ST_WU, (0, 32, 64))])
    st("p.weights")

def tok2_offsets(e, TO, tmp, others_only=False):
    L = V_LANE; t, u, a, b, c = tmp, tmp + 1, tmp + 2, tmp + 3, tmp + 4
    e(f"v_and_b32 v{t}, 7, v{L}")
    e(f"s_lshl_b32 s{S_T1}, s{S_J}, 3")
    e(f"v_add_u32 v{c}, s{S_T1}, v{t}")
    if not others_only:
        e(f"v_lshlrev_b32 v{u}, 3, v{t}")
        e(f"s_lshl_b32 s{S_T0}, s{S_HQ}, 6"); e(f"s_add_u32 s{S_T0}, s{S_T0}, s{S_XC}"); e(f"v_add_u32 v{a}, s{S_T0}, v{u}")
        e(f"v_lshlrev_b32 v{u}, 6, v{t}")
        e(f"s_add_u32 s{S_T0}, s{S_T1}, s{S_XC}"); e(f"v_add_u32 v{b}, s{S_T0}, v{u}")
        e("s_mov_b32 vcc_lo, 0x00000f00"); e("s_mov_b32 vcc_hi, 0"); e(f"v_cndmask_b32 v{a}, v{a}, v{b}, vcc")
        e("s_mov_b32 vcc_lo, 0x00ff0000"); e(f"v_cndmask_b32 v{a}, v{a}, v{c}, vcc")
    else: e(f"v_mov_b32 v{a}, v{c}")
    e(f"v_bfe_u32 v{u}, v{L}, 3, 2"); e(f"v_lshlrev_b32 v{u}, 6, v{u}"); e(f"v_add_u32 v{c}, v{c}, v{u}")
    e("s_mov_b32 vcc_lo, 0"); e("s_mov_b32 vcc_hi, -1"); e(f"v_cndmask_b32 v{a}, v{a}, v{c}, vcc")
    e(f"v_lshlrev_b32 v{TO}, 7, v{a}")

def cw_load_tiles(e, o, base):
    R = NS(voffK=1, voffX=2, voffY=3)
    for T in range(CW_TILES):
        kv_soff(e, base, T)
        for s in range(3): ld_k(e, R, vr(CW_K + 12 * T + 4 * s, 4), s, ('K', T, s), o)
    for T in range(CW_TILES):
        kv_soff(e, base, T)
        for w in range(3): ld_v(e, R, vr(CW_V + 12 * T + 4 * w, 4), w, ('V', T, w), o)

def chain_wave(e, o, st, local):
    fl = "" if local else "sc1"
    abort = "L_abort"
    R = NS(vlds=V_L16, voffK=1, voffX=2, voffY=3, sel=V_SEL, qA=32, D=44, sc=56, tmp=57, vpw=62, acc=32, A=44, pp=52, vpp=63, vm=60, vl=61, vlt=59)
    instance_offsets(e, [0, 1], pub_live=[2], q_live=[0, 1, 2])
    stage_Q(e, fl, R3_REG['P'])
    stage_GU(e, fl, R2_REG['P'] * RG - 1024, with_stats=False)
    st("p.pub")
    emit_resets(e, fl)
    st("reset")
    tr_block(e, [(wo_frag, 5, 160, ST_WO, (0, 32, 64, 96, 128, 160)), (wd_frag, 5, 160, ST_WD, (0, 32))])
    GA = CW_K
    e(f"v_and_b32 v{V_T}, 31, v{V_LANE}"); e(f"v_lshlrev_b32 v{V_T}, 4, v{V_T}")
    selmask(e, W0 + 40, V_T, rows_mask([0, 1], 24))
    sr = list(range(10, 18))
    for k, reg in enumerate((4, 5, 6, R2_REG['P'])):
        e(f"s_add_u32 s{sr[2*k]}, s{S_RGRP}, {reg*RG}"); e(f"s_add_u32 s{sr[2*k+1]}, s{sr[2*k]}, 4096")
    loads = []
    for row in range(3):
        loads += [(GA + 32 * row + 4 * k, V_R, sr[2*row + (k >= 4)], (k % 4) * 1024) for k in range(8)]
    loads += [(W0 + 32, V_ML, sr[0], 0), (W0 + 36, V_ML, sr[2], 0)]
    loads += [(W0 + 4 * k, W0 + 40, sr[6 + (k >= 4)], (k % 4) * 1024) for k in range(8)]
    poll(e, o, loads, abort, sleep=o.p_sleep)
    token_store(e, TOK2, 0)
    st("p.gather")
    sum_loads(e, 8, GA + 64)
    for rr in range(4): e(f"v_mov_b32 v{V_CSQ+rr}, v{GA+64+rr}")
    sum_loads(e, 8, W0)
    for rr in range(4): e(f"v_mov_b32 v{V_CSG+rr}, v{W0+rr}")
    for row in range(2):
        q_consume(e, GA + 32 * row, W0 + 32 + 4 * row, row)
    st("q1")
    def load_tiles(base): cw_load_tiles(e, o, base)
    load_tiles(S_KV0)
    instance_offsets(e, [0])
    TO, TD = W0 + 38, W0 + 36
    tok2_offsets(e, TO, W0 + 2)
    tmask = 0x00000fff if o.split_tok else (0xffffffff00ff0fff if o.direct else 0x00ff0fff)
    def first_pass():
        e.vmq.append("tok2")
        e.lg_all()
        st("pro_done")
        e("s_barrier")
        if "stopA" in o.exp: e("s_branch L_done")
        def kw(T):
            if T >= 0: e.vm_wait(('K', T, 2))
        def vw(T, w): e.vm_wait(('V', T, w))
        attn_pass(e, R, CW_TILES, 0, Kf, Vf, S_PB, 0, k_wait=kw, v_wait=vw)
    Kf = lambda T, s: vr(CW_K + 12 * T + 4 * s, 4)
    Vf = lambda T, w: vr(CW_V + 12 * T + 4 * w, 4)
    token_gather(e, o, TOK2, TO, tmask, sleep=o.t_sleep, dst=TD, between=first_pass)
    e("s_mov_b64 exec, -1")
    st("p.tok2g")
    e("s_barrier")
    st("bar2")
    parts = [PART + 1536 * w for w in range(4)]
    combine_publish(e, fl, parts, ML, R1_REG[0])
    st("c0.cmb")
    sv = o.preR; o.preR = sv + o.preR0
    hop_R1(e, o, R1_REG[0], 0, abort)
    o.preR = sv
    chain(e, o, fl, 0, [0], abort, st)
    st("chain0")
    e("s_barrier")
    attn_pass(e, R, CW_TILES, 0, Kf, Vf, S_PB, 32)
    e("s_barrier")
    parts_early = [PART] + [LDS_SW * s + 48 * 1024 for s in range(3)]
    combine_publish(e, fl, parts_early, ML + 32, R1_REG['1a'])
    load_tiles(S_KV1)
    instance_offsets(e, LIVE[1])
    hop_R1(e, o, R1_REG['1a'], 0, abort)
    e.vmq = []
    attn_pass(e, R, CW_TILES, 1, Kf, Vf, S_PB, 0)
    e("s_barrier")
    st("bar6")
    combine_publish(e, fl, parts, ML, R1_REG['1b'])
    st("c1.cmb")
    hop_R1(e, o, R1_REG['1b'], 1, abort)
    chain(e, o, fl, 1, [0, 1], abort, st)
    st("chain1")
    e("s_barrier")
    attn_pass(e, R, CW_TILES, 1, Kf, Vf, S_PB, 0)
    instance_offsets(e, LIVE[2])
    e("s_barrier")
    st("bar8")
    combine_publish(e, fl, parts, ML, R1_REG[2])
    st("c2.cmb")
    hop_R1(e, o, R1_REG[2], 1, abort)
    chain(e, o, fl, 2, [1], abort, st)
    st("chain2")
    e("s_branch L_done")

def chain_wave_setup(e, o, st):
    L = V_LANE
    if o.prio: e(f"s_setprio {o.prio}")
    lane_id(e, L)
    e(f"v_mov_b32 v{V_OOB}, 0x{OOB:08x}")
    e(f"s_lshl_b32 s{S_RGRP}, s{S_H}, 13"); e(f"s_lshl_b32 s{S_T0}, s{S_J}, 10"); e(f"s_add_u32 s{S_ROWN}, s{S_RGRP}, s{S_T0}")
    e(f"s_lshl_b32 s{S_LGRP}, s{S_XC}, 3"); e(f"s_add_u32 s{S_LGRP}, s{S_LGRP}, s{S_J}"); e(f"s_lshl_b32 s{S_LGRP}, s{S_LGRP}, 12")
    e(f"s_lshl_b32 s{S_T0}, s{S_HQ}, 10"); e(f"s_add_u32 s{S_LOWN}, s{S_LGRP}, s{S_T0}")
    e(f"s_lshl_b32 s{S_GGRP}, s{S_J}, 13"); e(f"s_lshl_b32 s{S_T0}, s{S_XC}, 10"); e(f"s_add_u32 s{S_GOWN}, s{S_GGRP}, s{S_T0}")
    late_common(e)
    if "nocw" in o.exp:
        e("s_barrier")
        st("bar1x")
        e("s_branch L_done")
    e(f"v_lshlrev_b32 v{V_L16}, 4, v{L}")
    selmask(e, V_R, V_L16, mask64(range(49)))
    e(f"s_load_dword s{S_TAG}, s[{S_WS}:{S_WS+1}], {EPOCH_OFF}")
    if "noPrst" not in o.exp: emit_resets_P(e)
    e(f"s_getreg_b32 s{S_T2}, hwreg(HW_REG_XCC_ID)"); e(f"s_and_b32 s{S_T2}, s{S_T2}, 0xf")
    make_srd(e, SRD_T, S_X, 2560)
    e(f"v_and_b32 v{V_T}, 31, v{L}"); e(f"v_lshlrev_b32 v{V_T}, 3, v{V_T}")
    e(f"v_lshrrev_b32 v{V_T+1}, 5, v{L}"); e(f"v_mul_u32_u24 v{V_T+1}, 1280, v{V_T+1}"); e(f"v_add_u32 v{V_T}, v{V_T}, v{V_T+1}")
    selmask(e, V_T, V_T, rows_mask([0, 1], 20))
    e(f"s_mul_i32 s{S_T0}, s{S_J}, 160")
    e.vm(f"buffer_load_dwordx2 {vr(V_XR,2)}, v{V_T}, s[{SRD_T}:{SRD_T+3}], s{S_T0} offen", "x")
    e(f"s_add_u32 s{S_KV1}, s{S_KV0}, {BATCH_STRIDE}")
    R = NS(voffK=1, voffX=2, voffY=3, sel=V_SEL)
    attn_selectors(e, R, L, W0)
    n, g, x = W0, W0 + 1, W0 + 2
    e(f"v_mov_b32 v{W0+3}, v{V_L16}"); selmask(e, V_L16, W0 + 3, mask64(range(48)), other=0)
    e(f"v_and_b32 v{n}, 15, v{L}"); e(f"v_lshrrev_b32 v{g}, 4, v{L}")
    e(f"v_min_u32 v{x}, 1, v{n}")
    e(f"v_mul_u32_u24 v{V_BO}, 384, v{x}"); e(f"v_lshl_add_u32 v{V_BO}, v{g}, 4, v{V_BO}"); e(f"v_add_u32 v{V_BO}, {ACT_O}, v{V_BO}")
    e(f"v_lshlrev_b32 v{V_BH}, 7, v{x}"); e(f"v_lshl_add_u32 v{V_BH8}, v{g}, 3, v{V_BH}"); e(f"v_add_u32 v{V_BH8}, {ACT_H+64}, v{V_BH8}")
    e(f"v_lshl_add_u32 v{V_BH}, v{g}, 4, v{V_BH}"); e(f"v_add_u32 v{V_BH}, {ACT_H}, v{V_BH}")
    e(f"v_min_u32 v{x}, 2, v{n}")
    e(f"v_mul_u32_u24 v{V_BX}, 192, v{x}"); e(f"v_lshl_add_u32 v{V_BX8}, v{g}, 3, v{V_BX}"); e(f"v_add_u32 v{V_BX8}, {ACT_X+128}, v{V_BX8}")
    e(f"v_lshl_add_u32 v{V_BX}, v{g}, 4, v{V_BX}"); e(f"v_add_u32 v{V_BX}, {ACT_X}, v{V_BX}")
    e(f"v_subrev_u32 v{x}, 1, v{n}"); e(f"v_min_u32 v{x}, 2, v{x}")
    e(f"v_mul_u32_u24 v{V_AS}, 192, v{x}"); e(f"v_lshl_add_u32 v{V_AS8}, v{g}, 3, v{V_AS}"); e(f"v_add_u32 v{V_AS8}, {ACT_X+128}, v{V_AS8}")
    e(f"v_lshl_add_u32 v{V_AS}, v{g}, 4, v{V_AS}"); e(f"v_add_u32 v{V_AS}, {ACT_X}, v{V_AS}")
    e(f"v_lshlrev_b32 v{x}, 3, v{L}"); e(f"v_add_u32 v{x}, {SB}, v{x}"); selmask(e, V_W8, x, mask64(range(48)), other=SB+2560)
    e(f"v_and_b32 v{n}, 31, v{L}"); e(f"v_lshrrev_b32 v{g}, 5, v{L}")
    e(f"v_mul_u32_u24 v{x}, 192, v{g}"); e(f"v_lshl_add_u32 v{x}, v{n}, 3, v{x}"); e(f"v_add_u32 v{x}, {ACT_X}, v{x}")
    selmask(e, V_WX, x, rows_mask([0, 1], 20), other=DUMMY)
    e(f"v_lshlrev_b32 v{x}, 7, v{g}"); e(f"v_lshl_add_u32 v{x}, v{n}, 2, v{x}"); e(f"v_add_u32 v{x}, {ACT_H}, v{x}")
    selmask(e, V_WH, x, rows_mask([0, 1], 24), other=DUMMY)
    e(f"v_and_b32 v{x}, 7, v{L}"); e(f"v_lshlrev_b32 v{x}, 10, v{x}"); e(f"v_add_u32 v{V_ML}, 768, v{x}")
    m = mask64([16 * a + 1 for a in range(4)])
    e(f"s_mov_b32 s{S_N1}, 0x{m & 0xffffffff:08x}"); e(f"s_mov_b32 s{S_N1+1}, 0x{m >> 32:08x}")
    e("s_waitcnt lgkmcnt(0)")
    e(f"s_add_u32 s{S_TAG}, s{S_TAG}, 1")
    e.vm_all(force=True)
    token_store(e, TOK1, f"s{S_T2}")
    st("p.tok1")
    TO, TD = W0 + 38, W0 + 36
    e(f"v_lshlrev_b32 v{TO}, 10, v{L}"); e(f"s_lshl_b32 s{S_T0}, s{S_XC}, 7"); e(f"v_add_u32 v{TO}, s{S_T0}, v{TO}")
    token_gather(e, o, TOK1, TO, 0xffffffff, sleep=o.t_sleep, dst=TD, between=lambda: prologue_weights(e, o, st))
    e(f"v_cmp_ne_u32 vcc, s{S_T2}, v{TD+1}")
    e("s_mov_b64 exec, -1")
    st("p.mode")
    e("s_nop 3")
    e("s_cmp_lg_u32 vcc_lo, 0")

def late_common(e):
    make_srd(e, SRD_V, S_V, KV_BYTES); make_srd(e, SRD_WS, S_WS, WS_REC)
    e(f"s_mov_b32 s{S_C}, {lit(CSCALE)}")
    e(f"s_mov_b32 s{S_HI32}, 0"); e(f"s_mov_b32 s{S_HI32+1}, -1")
    e(f"s_mul_i32 s{S_PB}, s{S_WAVE}, 1536"); e(f"s_add_u32 s{S_PB}, s{S_PB}, {PART}")
    e(f"s_lshl_b32 s{S_MLB}, s{S_WAVE}, 3"); e(f"s_add_u32 s{S_MLB}, s{S_MLB}, {ML}")

def generate(o):
    Stamps.select = o.stampset.split(",") if o.stampset else None
    o_direct[0] = o.direct; o_direct[1] = o.direct0
    LIVE.update({1: [1], 2: [0, 1]} if o.late_b0 else {1: [0, 1], 2: [1]})
    o_packed[0] = bool(o.packed)
    o_exp[0] = o.exp
    o_dset.clear()
    if o.packed: o_dset.update({(int(c[0]), int(c[1])) for c in o.packed.split(",")})
    if o.direct: o_dset.add((2, 1))
    if o.direct0: o_dset.add((2, 0))
    e = Emit()
    e("s_cmp_ge_u32 s2, 256"); e("s_cbranch_scc1 L_done")
    e("s_load_dwordx16 s[4:19], s[0:1], 0"); e("s_load_dwordx8 s[20:27], s[0:1], 64")
    e("v_lshrrev_b32 v1, 6, v0")
    e(f"s_and_b32 s{S_XC}, s2, 7"); e(f"s_lshr_b32 s{S_HQ}, s2, 6")
    e(f"v_readfirstlane_b32 s{S_WAVE}, v1")
    e(f"s_lshr_b32 s{S_J}, s2, 3"); e(f"s_and_b32 s{S_J}, s{S_J}, 7")
    e(f"s_lshl_b32 s{S_H}, s{S_XC}, 2"); e(f"s_add_u32 s{S_H}, s{S_H}, s{S_HQ}")
    e(f"s_mul_i32 s{S_KV0}, s{S_H}, {HEAD_STRIDE}"); e(f"s_mul_i32 s{S_T0}, s{S_J}, {CHUNK_STRIDE}"); e(f"s_add_u32 s{S_KV0}, s{S_KV0}, s{S_T0}")
    e(f"s_add_u32 s{S_T0}, s{S_WAVE}, 3"); e(f"s_and_b32 s{S_T0}, s{S_T0}, 3")
    e(f"s_mul_i32 s{S_T1}, s{S_T0}, {SW_TILES*TILE_B}"); e(f"s_add_u32 s{S_KV0}, s{S_KV0}, s{S_T1}")
    lane_id(e, 8)
    e("v_mov_b32 v14, 0"); e(f"v_mov_b32 v15, {WFLAG}"); e("v_lshl_add_u32 v15, v8, 2, v15")
    e("s_mov_b64 exec, 15")
    e("ds_write_b32 v15, v14")
    e("s_mov_b64 exec, -1")
    attn_load_offsets(e, NS(voffK=1, voffX=2, voffY=3), 8, 10)
    e("s_waitcnt lgkmcnt(0)")
    e("s_barrier")
    make_srd(e, SRD_K, S_K, KV_BYTES)
    e(f"s_cmp_eq_u32 s{S_WAVE}, 0"); e("s_cbranch_scc1 L_chain")
    st_s = Stamps(e, o.stamps); st_s("start")
    stream_wave(e, o, st_s)
    e.label("L_chain")
    e.vmq = []; e.lgq = []
    st_c = Stamps(e, o.stamps); st_c("start")
    chain_wave_setup(e, o, st_c)
    names = {}
    if o.force_global: e("s_branch L_global")
    else: e("s_cbranch_scc1 L_global")
    base_names = list(st_c.names)
    sv = (list(e.vmq), list(e.lgq))
    chain_wave(e, o, st_c, True)
    names['cw'] = list(st_c.names); names['sw'] = list(st_s.names)
    e.label("L_global")
    e.vmq, e.lgq = sv
    st_g = Stamps(e, o.stamps); st_g.names = list(base_names)
    chain_wave(e, o, st_g, False)
    e.label("L_abort")
    e.label("L_done")
    if o.stamps:
        e("s_cmp_ge_u32 s2, 256"); e("s_cbranch_scc1 L_exit")
        fl = Stamps(e, True); fl.names = names['cw']; fl.flush()
        e.label("L_exit")
    e("s_endpgm")
    return e, names

HEAD = """; Fused two-layer decode step (attention over a cached K/V + ReGLU FFN, twice), one persistent launch.
; @launch grid=(256,1,1) block=(256,1,1) lds=%d
;
.amdgcn_target "amdgcn-amd-amdhsa--gfx950"
.text
.globl %s
.p2align 8
.type %s,@function
%s:
"""
FOOT = """
.section .rodata,"a"
.p2align 6
.amdhsa_kernel %s
  .amdhsa_next_free_vgpr 512
  .amdhsa_next_free_sgpr 102
  .amdhsa_accum_offset 256
  .amdhsa_group_segment_fixed_size 0
  .amdhsa_kernarg_size 96
  .amdhsa_user_sgpr_count 2
  .amdhsa_user_sgpr_kernarg_segment_ptr 1
  .amdhsa_system_sgpr_workgroup_id_x 1
  .amdhsa_float_denorm_mode_32 3
.end_amdhsa_kernel
"""
def build_text(o):
    e, names = generate(o)
    return HEAD % (LDS_TOTAL, NAME, NAME, NAME) + e.text() + "\n" + FOOT % NAME, names, e

if __name__ == "__main__":
    o = Opt()
    for a in sys.argv[2:]:
        k, v = a.split("=")
        cur = getattr(o, k)
        setattr(o, k, (v not in ("0", "False")) if isinstance(cur, bool) else type(cur)(v))
    txt, names, e = build_text(o)
    open(sys.argv[1], "w").write(txt)
    print("instructions:", e.ninst, "nops:", e.nops, names)
```

```python
import sys, struct
from types import SimpleNamespace as NS
from emit import Emit, vr

NAME = "interleave_layers__mha_block_cached__glu_gated_reglu__decode_kernel"

class Opt:
    NA = 24
    NA_BAR = 120
    NB = 8
    NB1 = 8
    go_at = "G1"
    NC = 56
    NA0 = 24
    NA0N = 0
    light = False
    pf = 0
    pf_all = False
    NF = 12
    NW = 24
    stamps = False
    poll_limit = 400000
    kvflags = "nt"
    wflags = "nt"
    stampset = ""
    p_sleep = 8
    mb_sleep = 0
    exp = ""
    t_sleep = 0
    early = False
    wb = 0
    prio = 0
    late_rst = False
    preGn = 0
    packed = "10,11"
    preF1 = 16
    preP0 = 0
    preP1 = 0
    direct0 = True
    preF0 = 16
    direct = True
    preF = 0
    look = 2
    NAe = 14
    NCe = 24
    late_b0 = True
    split_tok = True
    rotA = 0
    rotB = 0
    tlb = False
    pf_wave = 3
    preE = True
    preR0 = 0
    preL0 = 0
    preG0 = 0
    preR = 0
    preL = 0
    preG = 6
    flag_sleep = 0
    force_global = False

KV_BYTES = 100663296
BATCH_STRIDE = 50331648
HEAD_STRIDE = 1572864
CHUNK_STRIDE = 196608
TILE_B = 3072
SW_TILES, CW_TILES = 20, 4
OOB = 0x7fff0000

LDS_SW = 51200
SB = 153600
PART = SB
ML = SB + 6144
QARR = SB + 6208
ACT_O = SB + 6976
ACT_X = SB + 7744
ACT_H = SB + 8320
DUMMY = SB + 8576
WFLAG = SB + 10208
LDS_TOTAL = 163840
ST_WQ, ST_WG, ST_WU, ST_WO, ST_WD = 0, 30720, 38400, 51200, 81920

RG = 262144
R1_REG = {0: 0, '1a': 1, '1b': 2, 2: 3}
R3_REG = {'P': 4, 0: 7, 1: 8}
R2_REG = {'P': 9, 0: 10, 1: 11, 2: 12}
L_REG = lambda inst, k: 13 + 2 * inst + k
G_OFF = lambda inst, k: 19 * RG + (2 * inst + k) * 65536
STAMP_OFF = 22 * RG
WS_REC = 24 * RG

CSCALE = (192 ** -0.5) * 1.4426950408889634
EPS = 1e-5
def f2u(x): return struct.unpack("<I", struct.pack("<f", x))[0]
def lit(x): return "0x%08x" % f2u(x)
def mask64(lanes):
    m = 0
    for l in lanes: m |= 1 << l
    return m
def set_exec(e, m):
    if m == (1 << 64) - 1: e("s_mov_b64 exec, -1"); return
    e(f"s_mov_b32 exec_lo, 0x{m & 0xffffffff:08x}")
    e(f"s_mov_b32 exec_hi, 0x{m >> 32:08x}")

S_X, S_K, S_V, S_WQ, S_WO, S_BX, S_WG, S_WU, S_WD, S_OUT, S_DBG, S_WS = 4, 6, 8, 10, 12, 14, 16, 18, 20, 22, 24, 26
S_XC, S_HQ, S_J, S_H = 28, 29, 30, 31
SRD_K, SRD_V = 32, 36
S_KV0, S_KV1, S_SOFF, S_LDSB = 40, 41, 42, 43
SRD_T = 44
SRD_WS = 48
SRD_DBG = 52
S_C = 56
S_ROWN, S_RGRP, S_LOWN, S_LGRP, S_GOWN, S_GGRP = 57, 58, 59, 60, 61, 62
S_A, S_B, S_CNT, S_T0, S_T1, S_T2 = 63, 64, 65, 66, 67, 68
S_PB = 69
S_HI32 = 70
S_MLB = 72
S_GA, S_GB = 100, 101
S_WAVE = 3
S_STAMP = 76

def make_srd(e, srd, ptr, nbytes):
    e(f"s_mov_b32 s{srd}, s{ptr}")
    e(f"s_and_b32 s{srd+1}, s{ptr+1}, 0xffff")
    e(f"s_mov_b32 s{srd+2}, {nbytes}")
    e(f"s_mov_b32 s{srd+3}, 0x20000")

class Stamps:
    select = None
    def __init__(self, e, on): self.e, self.on, self.names = e, on, []
    def __call__(self, name):
        if not self.on: return
        if Stamps.select is not None and not any(name.startswith(p) for p in Stamps.select): return
        if Stamps.select is None and "." in name: return
        n = len(self.names); assert n < 12, "too many stamps"
        self.e(f"s_memrealtime s[{S_STAMP+2*n}:{S_STAMP+2*n+1}]")
        self.e.lg_all(force=True)
        self.names.append(name)
    def rounds(self, name):
        if not self.on: return
        if Stamps.select is None or not any(name.startswith(p) for p in Stamps.select): return
        n = len(self.names); assert n < 12
        self.e(f"s_mov_b32 s{S_STAMP+2*n}, s{S_CNT}"); self.e(f"s_mov_b32 s{S_STAMP+2*n+1}, 0")
        self.names.append(name)
    def flush(self):
        if not self.on: return
        e = self.e
        e("s_mov_b64 exec, 1")
        e(f"s_lshl_b32 s{S_T0}, s2, 2"); e(f"s_add_u32 s{S_T0}, s{S_T0}, s{S_WAVE}"); e(f"s_lshl_b32 s{S_T0}, s{S_T0}, 7")
        e(f"s_add_u32 s{S_T0}, s{S_T0}, {STAMP_OFF}")
        e("v_mov_b32 v0, 0")
        for i in range(len(self.names)):
            e(f"v_mov_b32 v2, s{S_STAMP+2*i}"); e(f"v_mov_b32 v3, s{S_STAMP+2*i+1}")
            e(f"buffer_store_dwordx2 v[2:3], v0, s[{SRD_WS}:{SRD_WS+3}], s{S_T0} offen offset:{8*i}")
            e("s_waitcnt vmcnt(0)")

def lane_id(e, dst):
    e(f"v_mbcnt_lo_u32_b32 {vr(dst)}, -1, 0")
    e(f"v_mbcnt_hi_u32_b32 {vr(dst)}, -1, {vr(dst)}")

def attn_load_offsets(e, R, lane, t):
    i, g, u, w = t, t + 1, t + 2, t + 3
    e(f"v_and_b32 {vr(i)}, 15, {vr(lane)}")
    e(f"v_lshrrev_b32 {vr(g)}, 4, {vr(lane)}")
    e(f"v_and_b32 {vr(u)}, 7, {vr(i)}")
    e(f"v_lshrrev_b32 {vr(w)}, 3, {vr(i)}")
    e(f"v_mul_u32_u24 {vr(R.voffK)}, 384, {vr(u)}")
    e(f"v_lshl_add_u32 {vr(R.voffK)}, {vr(g)}, 4, {vr(R.voffK)}")
    e(f"v_lshl_add_u32 {vr(R.voffK)}, {vr(w)}, 6, {vr(R.voffK)}")
    e(f"v_mul_u32_u24 {vr(R.voffX)}, 768, {vr(g)}")
    e(f"v_mul_u32_u24 {vr(w)}, 384, {vr(w)}")
    e(f"v_add_u32 {vr(R.voffY)}, {vr(R.voffX)}, {vr(w)}")
    e(f"v_lshl_add_u32 {vr(R.voffY)}, {vr(u)}, 4, {vr(R.voffY)}")
    e(f"v_add_u32 {vr(R.voffY)}, 256, {vr(R.voffY)}")
    e(f"v_lshl_add_u32 {vr(R.voffX)}, {vr(i)}, 4, {vr(R.voffX)}")

def attn_selectors(e, R, lane, t):
    i, u, lo, hi = t, t + 1, t + 2, t + 3
    e(f"v_and_b32 {vr(i)}, 15, {vr(lane)}")
    e(f"v_lshrrev_b32 {vr(u)}, 3, {vr(i)}")
    e(f"v_mul_u32_u24 {vr(u)}, 0x202, {vr(u)}")
    e(f"v_add_u32 {vr(u)}, 0x100, {vr(u)}")
    e(f"v_or_b32 {vr(lo)}, 0x0c0c0000, {vr(u)}")
    e(f"v_lshlrev_b32 {vr(hi)}, 16, {vr(u)}")
    e(f"v_or_b32 {vr(hi)}, 0x0c0c, {vr(hi)}")
    e(f"v_and_b32 {vr(u)}, 1, {vr(i)}")
    e(f"v_cmp_eq_u32 vcc, 1, {vr(u)}")
    e(f"v_cndmask_b32 {vr(lo)}, {vr(lo)}, {vr(hi)}, vcc")
    e(f"v_bfe_u32 {vr(u)}, {vr(i)}, 1, 2")
    e(f"v_mov_b32 {vr(hi)}, 0x0c0c0c0c")
    for r in range(4):
        e(f"v_cmp_eq_u32 vcc, {r}, {vr(u)}")
        e(f"v_cndmask_b32 {vr(R.sel+r)}, {vr(hi)}, {vr(lo)}, vcc")

def allreduce_list(reg, tmp, op):
    out = [f"v_{op}_f32_dpp {vr(reg)}, {vr(reg)}, {vr(reg)} row_ror:{k} row_mask:0xf bank_mask:0xf" for k in (8, 4, 2, 1)]
    out += [f"v_mov_b32 {vr(tmp)}, {vr(reg)}", f"v_permlane16_swap_b32 {vr(reg)}, {vr(tmp)}", f"v_{op}_f32 {vr(reg)}, {vr(reg)}, {vr(tmp)}",
            f"v_mov_b32 {vr(tmp)}, {vr(reg)}", f"v_permlane32_swap_b32 {vr(reg)}, {vr(tmp)}", f"v_{op}_f32 {vr(reg)}, {vr(reg)}, {vr(tmp)}"]
    return out

def allreduce(e, reg, tmp, op):
    for k in (8, 4, 2, 1):
        e(f"v_{op}_f32_dpp {vr(reg)}, {vr(reg)}, {vr(reg)} row_ror:{k} row_mask:0xf bank_mask:0xf")
    e(f"v_mov_b32 {vr(tmp)}, {vr(reg)}")
    e(f"v_permlane16_swap_b32 {vr(reg)}, {vr(tmp)}")
    e(f"v_{op}_f32 {vr(reg)}, {vr(reg)}, {vr(tmp)}")
    e(f"v_mov_b32 {vr(tmp)}, {vr(reg)}")
    e(f"v_permlane32_swap_b32 {vr(reg)}, {vr(tmp)}")
    e(f"v_{op}_f32 {vr(reg)}, {vr(reg)}, {vr(tmp)}")

def attn_pre(e, R, ntiles):
    L = R.tmp
    lane_id(e, L)
    e(f"v_and_b32 {vr(L+1)}, 1, {vr(L)}")
    e(f"v_lshrrev_b32 {vr(L+2)}, 4, {vr(L)}")
    e(f"v_lshlrev_b32 {vr(L+2)}, 4, {vr(L+2)}")
    e(f"v_lshl_add_u32 {vr(L+1)}, {vr(L+1)}, 6, {vr(L+2)}")
    e(f"v_add_u32 {vr(L+1)}, {QARR}, {vr(L+1)}")
    e(f"v_add_u32 {vr(R.vpp)}, s{S_PB}, {vr(L+2)}")
    W = R.vpw; t = L + 2
    e(f"v_lshrrev_b32 {vr(t)}, 5, {vr(L)}"); e(f"v_lshlrev_b32 {vr(W)}, 6, {vr(t)}")
    e(f"v_bfe_u32 {vr(t)}, {vr(L)}, 1, 2"); e(f"v_lshl_add_u32 {vr(W)}, {vr(t)}, 4, {vr(W)}")
    e(f"v_bfe_u32 {vr(t)}, {vr(L)}, 3, 2"); e(f"v_lshl_add_u32 {vr(W)}, {vr(t)}, 2, {vr(W)}")
    e(f"v_and_b32 {vr(t)}, 1, {vr(L)}"); e(f"v_lshl_add_u32 {vr(W)}, {vr(t)}, 1, {vr(W)}")
    e(f"v_add_u32 {vr(W)}, s{S_PB}, {vr(W)}")
    nsc = (ntiles + 7) // 8
    for r in range(nsc):
        if (r + 1) * 8 > ntiles: e(f"v_mov_b32 {vr(R.sc+r)}, 0xff800000")

def attn_pass(e, R, ntiles, qrow, Kfrag, Vfrag, part_sreg, ml_off, k_wait=None, qk_hook=None, mid_hook=None,
              v_wait=None, pv_hook=None, stage=None, pre_done=False, mark=None, look=2):
    L = R.tmp
    if not pre_done: attn_pre(e, R, ntiles)
    for s in range(3):
        e.lg(f"ds_read_b128 {vr(R.qA+4*s,4)}, {vr(L+1)} offset:{qrow*384 + 128*s}", ("q", s))
    W = R.vpw
    nsc = (ntiles + 7) // 8
    stg = {}
    def stage_k(T):
        if T >= ntiles: return
        for s in range(3):
            f = Kfrag(T, s)
            if isinstance(f, tuple):
                reg = stage[(3 * T + s) % len(stage)]
                e.lg(f"ds_read_b128 {vr(reg,4)}, {vr(R.vlds)} offset:{f[1]}", ("k", T, s))
                stg[(T, s)] = vr(reg, 4)
    LOOK = look
    if k_wait: k_wait(-1)
    for T in range(min(LOOK, ntiles)): stage_k(T)
    e.lg_wait(("q", 2))
    def dpp_add(T):
        D = R.D + 4 * (T % 3)
        dst = vr(R.sc + (T >> 3)); rm = 1 << ((T >> 1) & 3)
        if T % 2 == 0: e(f"v_add_f32_dpp {dst}, {vr(D+1)}, {vr(D)} row_ror:8 row_mask:0x{rm:x} bank_mask:0x3")
        else:          e(f"v_add_f32_dpp {dst}, {vr(D)}, {vr(D+1)} row_ror:8 row_mask:0x{rm:x} bank_mask:0xc")
    for T in range(ntiles):
        if k_wait: k_wait(T)
        D = vr(R.D + 4 * (T % 3), 4)
        for s in range(3):
            f = Kfrag(T, s)
            if isinstance(f, tuple):
                e.lg_wait(("k", T, s)); f = stg[(T, s)]
            e(f"v_mfma_f32_16x16x32_bf16 {D}, {vr(R.qA+4*s,4)}, {f}, {'0' if s == 0 else D}")
        stage_k(T + LOOK)
        if qk_hook: qk_hook(T)
        if T >= 2: dpp_add(T - 2)
    for T in range(max(0, ntiles - 2), ntiles): dpp_add(T)
    if mark: mark("qk")
    t0, t1 = R.D, R.D + 1
    if nsc == 1: e(f"v_mov_b32 {vr(t0)}, {vr(R.sc)}")
    elif nsc == 2: e(f"v_max_f32 {vr(t0)}, {vr(R.sc)}, {vr(R.sc+1)}")
    else: e(f"v_max3_f32 {vr(t0)}, {vr(R.sc)}, {vr(R.sc+1)}, {vr(R.sc+2)}")
    allreduce(e, t0, t1, "max")
    e(f"v_mul_f32 {vr(R.vm)}, s{S_C}, {vr(t0)}")
    for r in range(nsc): e(f"v_fma_f32 {vr(R.sc+r)}, {vr(R.sc+r)}, s{S_C}, -{vr(R.vm)}")
    for r in range(nsc): e(f"v_exp_f32 {vr(R.sc+r)}, {vr(R.sc+r)}")
    for r in range(nsc): e(f"v_cvt_pk_bf16_f32 {vr(R.D+2+r)}, {vr(R.sc+r)}, {vr(R.sc+r)}")
    for r in range(nsc): e.lg(f"ds_write_b16 {vr(W)}, {vr(R.D+2+r)} offset:{128*r}", ("pw", r))
    nq = (ntiles + 3) // 4
    ppreg = lambda q: R.pp + 4 * (q % 2)
    if nsc == 1: e(f"v_mov_b32 {vr(R.vl)}, {vr(R.sc)}")
    else:
        e(f"v_add_f32 {vr(R.vl)}, {vr(R.sc)}, {vr(R.sc+1)}")
        if nsc == 3: e(f"v_add_f32 {vr(R.vl)}, {vr(R.vl)}, {vr(R.sc+2)}")
    e.lg(f"ds_read_b128 {vr(ppreg(0),4)}, {vr(R.vpp)}", ("pp", 0))
    if nq > 1: e.lg(f"ds_read_b128 {vr(ppreg(1),4)}, {vr(R.vpp)} offset:64", ("pp", 1))
    lred = allreduce_list(R.vl, R.vlt, "add")
    if ntiles < 12:
        for ins in lred: e(ins)
        lred = []
    if mid_hook: mid_hook()
    if mark: mark("sm")
    X1, X2, Y = R.acc, R.acc + 4, R.acc + 8
    def build_A(T):
        q = T >> 2
        e.lg_wait(("pp", q))
        A = R.A + 4 * (T % 2); src = vr(ppreg(q) + (T & 3))
        return [f"v_perm_b32 {vr(A+r)}, {src}, {src}, {vr(R.sel+r)}" for r in range(4)]
    for ins in build_A(0): e(ins)
    for T in range(ntiles):
        A = vr(R.A + 4 * (T % 2), 4)
        nxt = build_A(T + 1) if T + 1 < ntiles else []
        if v_wait: v_wait(T, 0)
        e(f"v_mfma_f32_16x16x32_bf16 {vr(X1,4)}, {A}, {Vfrag(T,0)}, {'0' if T == 0 else vr(X1,4)}")
        for ins in nxt[:2]: e(ins)
        if v_wait: v_wait(T, 1)
        e(f"v_mfma_f32_16x16x32_bf16 {vr(X2,4)}, {A}, {Vfrag(T,1)}, {'0' if T == 0 else vr(X2,4)}")
        for ins in nxt[2:]: e(ins)
        if v_wait: v_wait(T, 2)
        e(f"v_mfma_f32_16x16x32_bf16 {vr(Y,4)}, {A}, {Vfrag(T,2)}, {'0' if T == 0 else vr(Y,4)}")
        if (T & 3) == 2 and (T >> 2) + 2 < nq:
            q2 = (T >> 2) + 2
            e.lg(f"ds_read_b128 {vr(ppreg(q2),4)}, {vr(R.vpp)} offset:{64*q2}", ("pp", q2))
        if lred and T >= 1: e(lred.pop(0))
        if pv_hook: pv_hook(T)
    assert not lred
    if mark: mark("pv")
    p = R.pp
    lane_id(e, p)
    e(f"v_and_b32 {vr(p+1)}, 15, {vr(p)}")
    e(f"v_lshrrev_b32 {vr(p+2)}, 4, {vr(p)}")
    e(f"v_and_b32 {vr(p+3)}, 1, {vr(p+2)}")
    e(f"v_lshrrev_b32 {vr(p+2)}, 1, {vr(p+2)}")
    e(f"v_mul_u32_u24 {vr(p+2)}, 768, {vr(p+2)}")
    e(f"v_lshl_add_u32 {vr(p+2)}, {vr(p+3)}, 4, {vr(p+2)}")
    e(f"v_add_u32 {vr(p+2)}, s{part_sreg}, {vr(p+2)}")
    e(f"v_lshl_add_u32 {vr(p+4)}, {vr(p+1)}, 5, {vr(p+2)}")
    e(f"v_and_b32 {vr(p+1)}, 7, {vr(p+1)}")
    e(f"v_lshl_add_u32 {vr(p+5)}, {vr(p+1)}, 5, {vr(p+2)}")
    e(f"v_mov_b32 {vr(p+6)}, s{S_MLB}")
    e(f"v_mov_b32 {vr(R.A)}, {vr(R.vm)}"); e(f"v_mov_b32 {vr(R.A+1)}, {vr(R.vl)}")
    for r in range(4):
        e(f"v_cndmask_b32 {vr(X1+r)}, {vr(X1+r)}, {vr(X2+r)}, s[{S_HI32}:{S_HI32+1}]")
    e.lg(f"ds_write_b128 {vr(p+4)}, {vr(X1,4)}", "px")
    set_exec(e, 0xFF00FF0000FF00FF)
    e.lg(f"ds_write_b128 {vr(p+5)}, {vr(Y,4)} offset:512", "py")
    e("s_mov_b64 exec, 1")
    e.lg(f"ds_write_b64 {vr(p+6)}, {vr(R.A,2)} offset:{ml_off}", "pm")
    e("s_mov_b64 exec, -1")
    e.lg_all()

S_ROT, S_RT = 74, 75
rot_on = [False]
def kv_soff(e, base_sreg, T):
    if rot_on[0]:
        span = SW_TILES * TILE_B
        e(f"s_add_u32 s{S_SOFF}, s{S_ROT}, {T*TILE_B}")
        e(f"s_cmp_ge_u32 s{S_SOFF}, {span}"); e(f"s_cselect_b32 s{S_RT}, {span}, 0")
        e(f"s_sub_u32 s{S_SOFF}, s{S_SOFF}, s{S_RT}"); e(f"s_add_u32 s{S_SOFF}, s{S_SOFF}, s{base_sreg}")
    else: e(f"s_add_u32 s{S_SOFF}, s{base_sreg}, {T*TILE_B}")
def ld_k(e, R, dst, s, tag, o):
    e.vm(f"buffer_load_dwordx4 {dst}, {vr(R.voffK)}, s[{SRD_K}:{SRD_K+3}], s{S_SOFF} offen offset:{128*s} {o.kvflags}", tag)
def ld_v(e, R, dst, w, tag, o):
    vo = R.voffY if w == 2 else R.voffX
    off = 384 if w == 1 else 0
    e.vm(f"buffer_load_dwordx4 {dst}, {vr(vo)}, s[{SRD_V}:{SRD_V+3}], s{S_SOFF} offen offset:{off} {o.kvflags}", tag)
def dma_k(e, R, slot, s, tag, o):
    e(f"s_add_u32 m0, s{S_LDSB}, {slot*1024 - 128*s + 0}") if slot*1024 - 128*s >= 0 else e(f"s_sub_u32 m0, s{S_LDSB}, {128*s - slot*1024}")
    e.vm(f"buffer_load_dwordx4 {vr(R.voffK)}, s[{SRD_K}:{SRD_K+3}], s{S_SOFF} offen offset:{128*s} {o.kvflags} lds", tag)
def dma_v(e, R, slot, w, tag, o):
    vo = R.voffY if w == 2 else R.voffX
    off = 384 if w == 1 else 0
    e(f"s_add_u32 m0, s{S_LDSB}, {slot*1024 - off}")
    e.vm(f"buffer_load_dwordx4 {vr(vo)}, s[{SRD_V}:{SRD_V+3}], s{S_SOFF} offen offset:{off} {o.kvflags} lds", tag)

def slot_reg(k):
    assert 0 <= k < 118
    return f"a[{4*k}:{4*k+3}]" if k < 64 else f"v[{40+4*(k-64)}:{40+4*(k-64)+3}]"

def weight_dma(e, o):
    L, t, u = 8, 20, 21
    def dma_block(ptr, nbytes, lanes_per_row, magic, shift, nlanes, row_stride, rows_per_instr, ninstr, so, lds0, bar=False):
        make_srd(e, SRD_T, ptr, nbytes)
        e(f"v_mul_u32_u24 v{t}, {magic}, v{L}"); e(f"v_lshrrev_b32 v{t}, {shift}, v{t}")
        e(f"v_mul_u32_u24 v{u}, {lanes_per_row}, v{t}"); e(f"v_sub_u32 v{u}, v{L}, v{u}")
        e(f"s_mov_b32 s{S_T1}, {row_stride}")
        e(f"v_mul_lo_u32 v{t}, v{t}, s{S_T1}"); e(f"v_lshl_add_u32 v{t}, v{u}, 4, v{t}")
        rreg, rmul, creg, cmul = so
        e(f"s_mul_i32 s{S_SOFF}, s{rreg}, {rmul*row_stride}")
        e(f"s_mul_i32 s{S_T1}, s{creg}, {cmul}"); e(f"s_add_u32 s{S_SOFF}, s{S_SOFF}, s{S_T1}")
        set_exec(e, mask64(range(nlanes)))
        for i in range(ninstr):
            e(f"s_mov_b32 m0, {lds0 + i*nlanes*16}")
            if i: e(f"s_add_u32 s{S_SOFF}, s{S_SOFF}, {rows_per_instr*row_stride}")
            else: e("s_nop 0")
            e.vm_depth(o.NW - 1)
            e.vm(f"buffer_load_dwordx4 v{t}, s[{SRD_T}:{SRD_T+3}], s{S_SOFF} offen {o.wflags} lds", "w")
        e("s_mov_b64 exec, -1")
    l2, l3, end = e.newlabel("w2"), e.newlabel("w3"), e.newlabel("wend")
    e(f"s_cmp_eq_u32 s{S_WAVE}, 2"); e(f"s_cbranch_scc1 {l2}")
    e(f"s_cmp_eq_u32 s{S_WAVE}, 3"); e(f"s_cbranch_scc1 {l3}")
    base_q = list(e.vmq)
    dma_block(S_WQ, 7864320, 24, 43, 10, 48, 12288, 2, 40, (S_J, 80, S_H, 384), ST_WQ, bar=True)
    e(f"s_branch {end}")
    e.label(l2); e.vmq = list(base_q)
    dma_block(S_WO, 7864320, 10, 103, 10, 60, 1280, 6, 32, (S_H, 192, S_J, 160), ST_WO, bar=True)
    e(f"s_branch {end}")
    e.label(l3); e.vmq = list(base_q)
    dma_block(S_WG, 1966080, 6, 43, 8, 60, 3072, 10, 8, (S_J, 80, S_H, 96), ST_WG, bar=True)
    dma_block(S_WU, 1966080, 6, 43, 8, 60, 3072, 10, 8, (S_J, 80, S_H, 96), ST_WU)
    dma_block(S_WD, 1966080, 10, 103, 10, 60, 1280, 6, 8, (S_H, 48, S_J, 160), ST_WD)
    e.label(end)
    e.vmq = ["w"] * o.NW

S_XPAR = 15
def par_depth(e, n):
    lab = e.newlabel("par")
    e(f"s_cmp_lg_u32 s{S_XPAR}, 0"); e(f"s_cbranch_scc1 {lab}")
    e(f"s_waitcnt vmcnt({n-1})")
    e.label(lab)

def emit_wb(e):
    skip = e.newlabel("nowb")
    e(f"s_cmp_lg_u32 s{S_WAVE}, 1"); e(f"s_cbranch_scc1 {skip}")
    e("s_cmp_ge_u32 s2, 8"); e(f"s_cbranch_scc1 {skip}")
    e("buffer_wbl2 sc1")
    e("s_waitcnt vmcnt(0)")
    e.label(skip)

def stream_wave(e, o, st):
    if o.rotA or o.rotB:
        e(f"s_mul_i32 s{S_ROT}, s2, {o.rotA}"); e(f"s_mul_i32 s{S_RT}, s{S_WAVE}, {o.rotB}"); e(f"s_add_u32 s{S_ROT}, s{S_ROT}, s{S_RT}")
        e(f"s_mul_i32 s{S_RT}, s{S_ROT}, 52429"); e(f"s_lshr_b32 s{S_RT}, s{S_RT}, 20"); e(f"s_mul_i32 s{S_RT}, s{S_RT}, 20")
        e(f"s_sub_u32 s{S_ROT}, s{S_ROT}, s{S_RT}"); e(f"s_mul_i32 s{S_ROT}, s{S_ROT}, {TILE_B}")
        rot_on[0] = True
    _stream_wave(e, o, st)
    rot_on[0] = False

def _stream_wave(e, o, st):
    R = NS(vlds=0, voffK=1, voffX=2, voffY=3, sel=4, qA=8, D=20, sc=32, tmp=20, vpw=35, acc=8, A=20, pp=28, vpp=36, vm=38, vl=39, vlt=37)
    loads = []
    for T in range(SW_TILES):
        for s in range(3): loads.append(('K', T, s))
    for T in range(SW_TILES):
        for w in range(3): loads.append(('V', T, w))
    def k0slot(T, s): return 3 * T + s
    def v0slot(T, w): return 60 + 3 * T + w
    cur = [None]
    def issue0(item):
        kind, T, x = item
        if cur[0] != (kind, T, 0):
            kv_soff(e, S_KV0, T); cur[0] = (kind, T, 0)
        if kind == 'K': ld_k(e, R, slot_reg(k0slot(T, x)), x, ('K0', T, x), o)
        else:
            sl = v0slot(T, x)
            if sl < 118: ld_v(e, R, slot_reg(sl), x, ('V0', T, x), o)
            else: dma_v(e, R, 48 + sl - 118, x, ('V0', T, x), o)
    for item in loads[:o.NF]: issue0(item)
    late_common(e)
    e(f"s_add_u32 s{S_KV1}, s{S_KV0}, {BATCH_STRIDE}")
    e(f"s_sub_u32 s{S_T0}, s{S_WAVE}, 1"); e(f"s_mul_i32 s{S_LDSB}, s{S_T0}, {LDS_SW}")
    if o.pf:
        skip = e.newlabel("nopf")
        e(f"s_cmp_lg_u32 s{S_WAVE}, {o.pf_wave}"); e(f"s_cbranch_scc1 {skip}")
        if not o.pf_all:
            e(f"s_cmp_lg_u32 s{S_J}, 0"); e(f"s_cbranch_scc1 {skip}")
        e(f"s_getpc_b64 s[{SRD_T}:{SRD_T+1}]")
        e.label("L_pc")
        e(f"s_sub_u32 s{SRD_T}, s{SRD_T}, (L_pc - {NAME})"); e(f"s_subb_u32 s{SRD_T+1}, s{SRD_T+1}, 0")
        e("v_lshlrev_b32 v20, 7, v8")
        for i in range(o.pf):
            e(f"global_load_dword v39, v20, s[{SRD_T}:{SRD_T+1}]")
            e("v_add_u32 v20, 0x2000, v20")
        e.label(skip)
    if o.tlb:
        e("v_mov_b32 v20, 0")
        e.vm(f"buffer_load_dword v39, v20, s[{SRD_V}:{SRD_V+3}], s{S_KV0} offen nt", "tlb")
        e.vm(f"buffer_load_dword v39, v20, s[{SRD_K}:{SRD_K+3}], s{S_KV1} offen nt", "tlb")
        e.vm(f"buffer_load_dword v39, v20, s[{SRD_V}:{SRD_V+3}], s{S_KV1} offen nt", "tlb")
    if o.NAe or o.NCe:
        e(f"s_getreg_b32 s{S_T0}, hwreg(HW_REG_XCC_ID)"); e(f"s_and_b32 s{S_XPAR}, s{S_T0}, 1")
    nf = list(e.vmq)
    if "now" not in o.exp: weight_dma(e, o)
    e.vmq = nf + ["w"] * o.NW if len(nf) + o.NW <= 60 else ["w"] * 60
    cur[0] = None
    st("s.wiss")
    e(f"v_lshlrev_b32 {vr(R.vlds)}, 4, v8")
    e(f"v_add_u32 {vr(R.vlds)}, s{S_LDSB}, {vr(R.vlds)}")
    attn_selectors(e, R, 8, 10)
    for idx, item in enumerate(loads[:o.NA_BAR]):
        if idx < o.NF: continue
        na = o.NA0 if idx < o.NA0N else o.NA
        e.vm_depth(na - 1)
        if o.NAe: par_depth(e, o.NAe)
        if idx == o.NF + max(o.NA, o.NA0):
            e(f"s_lshl_b32 s{S_T0}, s{S_WAVE}, 2"); e(f"s_add_u32 s{S_T0}, s{S_T0}, {WFLAG-4}")
            e(f"v_mov_b32 v20, s{S_T0}"); e("v_mov_b32 v21, 1")
            e.lg("ds_write_b32 v20, v21", "wf")
            st("s.wland")
        if idx == 60: st("s.k0iss")
        if idx == 90: st("s.v30")
        issue0(item)
    st("A_issued")
    attn_pre(e, R, SW_TILES)
    e("s_barrier")
    st("bar1")
    if "nocw" in o.exp or "cw" in o.exp or "stopA" in o.exp:
        e.vm_all(); st("s.alland"); st.flush(); e("s_endpgm")
    pend = [('0', it) for it in loads[o.NA_BAR:]]
    for T in range(16):
        for s in range(3): pend.append(('1', T, s))
    cur1 = [None]
    def issue_pend():
        it = pend.pop(0)
        if it[0] == '0': cur1[0] = None; issue0(it[1])
        else:
            _, T, s = it
            if cur1[0] != T:
                kv_soff(e, S_KV1, T); cur1[0] = T; cur[0] = None
            dma_k(e, R, 3 * T + s, s, ('K1', T, s), o)
    while pend[0][0] == '0': issue_pend()
    def Kf0(T, s): return slot_reg(k0slot(T, s))
    def Vf0(T, w):
        sl = v0slot(T, w)
        if sl < 118: return slot_reg(sl)
        return "v[32:35]" if w == 1 else "v[28:31]"
    def k_wait_A(T):
        if T == -1: e.vm_wait(('K0', SW_TILES - 1, 2))
    def pv_hook_A(T):
        left = SW_TILES - 1 - T
        target = max(o.NB1, min(o.NA, 3 * left + o.NB1)) if o.NB1 else 0
        if T == SW_TILES - 2:
            e.vm_wait(('V0', SW_TILES - 1, 2))
            e.lg(f"ds_read_b128 v[32:35], {vr(R.vlds)} offset:{48*1024}", ("vo", 1))
            e.lg(f"ds_read_b128 v[28:31], {vr(R.vlds)} offset:{49*1024}", ("vo", 2))
            target = o.NB1
        while pend and len(e.vmq) < target: issue_pend()
    def vwait_A(T, w):
        e.vm_wait(('V0', T, w))
        if T == SW_TILES - 1 and w >= 1: e.lg_wait(("vo", w))
    attn_pass(e, R, SW_TILES, 0, Kf0, Vf0, S_PB, 0, k_wait=k_wait_A, v_wait=vwait_A, pv_hook=pv_hook_A, pre_done=True)
    st("A_done")
    e("s_barrier")
    if o.NB1 == o.NB:
        while pend:
            e.vm_depth(o.NB - 1)
            issue_pend()
    else:
        items = list(pend); pend.clear()
        q0 = list(e.vmq); c0 = cur1[0]
        fast = {i: e.newlabel("fastB") for i in range(len(items))}
        done = e.newlabel("doneB")
        e(f"v_mov_b32 v20, {WFLAG + 12}")
        def emit_item(it, force_soff):
            _, T, s = it
            if cur1[0] != T or force_soff:
                kv_soff(e, S_KV1, T); cur1[0] = T
            dma_k(e, R, 3 * T + s, s, ('K1', T, s), o)
        marks = [i for i, it in enumerate(items) if it[2] == 0]
        if o.NB1 == 0:
            spin = e.newlabel("spinB")
            e(f"s_mov_b32 s{S_CNT}, {o.poll_limit*8}")
            e.label(spin)
            e(f"s_sub_u32 s{S_CNT}, s{S_CNT}, 1"); e(f"s_cbranch_scc1 {fast[0]}")
            e.lg("ds_read_b32 v21, v20", "go"); e.lg_all()
            e(f"v_readfirstlane_b32 s{S_T0}, v21")
            e(f"s_cmp_lg_u32 s{S_T0}, 0"); e(f"s_cbranch_scc1 {fast[0]}")
            e("s_sleep 2"); e(f"s_branch {spin}")
        for i, it in enumerate(items if o.NB1 else []):
            if i in marks:
                e.lg("ds_read_b32 v21, v20", "go"); e.lg_all()
                e(f"v_readfirstlane_b32 s{S_T0}, v21")
                e(f"s_cmp_lg_u32 s{S_T0}, 0"); e(f"s_cbranch_scc1 {fast[i]}")
            e.vm_depth(o.NB1 - 1)
            emit_item(it, False)
        e(f"s_branch {done}")
        e.vmq = list(q0); cur1[0] = c0
        for i, it in enumerate(items):
            if i in marks: e.label(fast[i])
            e.vm_depth(o.NB - 1)
            emit_item(it, i in marks)
        e.label(done)
    st("B_issued")
    attn_pre(e, R, SW_TILES)
    e("s_barrier")
    st("bar3")
    pend1 = []
    for T in range(16, SW_TILES):
        for s in range(3): pend1.append(('K', T, s))
    for T in range(SW_TILES):
        for w in range(3): pend1.append(('V', T, w))
    slot_of = {it: i for i, it in enumerate(pend1)}
    freed = [0]
    issued1 = [0]
    cur2 = [None]
    def issue1():
        it = pend1[issued1[0]]; kind, T, x = it
        if cur2[0] != (kind, T):
            kv_soff(e, S_KV1, T); cur2[0] = (kind, T)
        e.vm_depth(o.NC - 1)
        if o.NCe: par_depth(e, o.NCe)
        if kind == 'K': ld_k(e, R, slot_reg(slot_of[it]), x, ('K1', T, x), o)
        else: ld_v(e, R, slot_reg(slot_of[it]), x, ('V1', T, x), o)
        issued1[0] += 1
    def refill():
        while issued1[0] < len(pend1) and issued1[0] < freed[0]: issue1()
    def qk_hook_C1(T):
        freed[0] = 3 * (T + 1); refill()
    def pv_hook_C1(T):
        freed[0] = min(118, 60 + 3 * (T + 1)); refill(); ovf_hook_C(T)
    def ovf_hook_C(T):
        if T == SW_TILES - 2:
            e.lg(f"ds_read_b128 v[32:35], {vr(R.vlds)} offset:{48*1024}", ("vo", 1))
            e.lg(f"ds_read_b128 v[28:31], {vr(R.vlds)} offset:{49*1024}", ("vo", 2))
    def vwait_C1(T, w):
        if T == SW_TILES - 1 and w >= 1: e.lg_wait(("vo", w))
    e(f"s_add_u32 s{S_T2}, s{S_LDSB}, {48*1024}")
    attn_pass(e, R, SW_TILES, 0, Kf0, Vf0, S_T2, 32, qk_hook=qk_hook_C1, v_wait=vwait_C1, pv_hook=pv_hook_C1, pre_done=True)
    refill()
    assert issued1[0] == len(pend1)
    st("C1_done")
    e("s_barrier")
    stage = [40 + 4 * (k - 64) for k in range(100, 112)]
    def Kf1(T, s):
        if T < 16: return ('lds', (3 * T + s) * 1024)
        return slot_reg(slot_of[('K', T, s)])
    def Vf1(T, w): return slot_reg(slot_of[('V', T, w)])
    def k_wait_C2(T):
        if T == -1: e.vm_wait(('K1', 15, 2))
        elif T >= 16: e.vm_wait(('K1', T, 2))
    def vwait_C2(T, w): e.vm_wait(('V1', T, w))
    attn_pass(e, R, SW_TILES, 1, Kf1, Vf1, S_PB, 0, k_wait=k_wait_C2, v_wait=vwait_C2, stage=stage, look=o.look)
    st("C2_done")
    e("s_barrier")
    if o.wb == 2: emit_wb(e)
    if o.preE:
        def eslot(T, s): return 72 + 3 * T + s
        for T in range(15):
            for s in range(3):
                e.lg(f"ds_read_b128 {slot_reg(eslot(T, s))}, {vr(R.vlds)} offset:{(3*T+s)*1024}", ("pre", T, s))
                if len(e.lgq) >= 12: e.lg_wait_n(4)
        e.lg(f"ds_read_b128 {slot_reg(117)}, {vr(R.vlds)} offset:{45*1024}", ("pre", 15, 0))
        e.lg_all()
        def KfE(T, s):
            if T < 15: return slot_reg(eslot(T, s))
            if T == 15: return slot_reg(117) if s == 0 else slot_reg(eslot(0, s - 1))
            return slot_reg(slot_of[('K', T, s)])
        def qk_hook_E(T):
            if T == 0:
                for s in (1, 2): e.lg(f"ds_read_b128 {slot_reg(eslot(0, s - 1))}, {vr(R.vlds)} offset:{(45+s)*1024}", ("pre2", s))
        def k_wait_E(T):
            if T == 15: e.lg_wait(("pre2", 2))
    attn_pre(e, R, SW_TILES)
    e("s_barrier")
    st("bar7")
    if o.preE: attn_pass(e, R, SW_TILES, 1, KfE, Vf1, S_PB, 0, pre_done=True, mark=lambda n: st("e." + n), qk_hook=qk_hook_E, k_wait=k_wait_E)
    else: attn_pass(e, R, SW_TILES, 1, Kf1, Vf1, S_PB, 0, stage=stage, pre_done=True, mark=lambda n: st("e." + n), look=o.look)
    st("E_done")
    e("s_barrier")
    if o.wb == 1: emit_wb(e)
    st.flush()
    e("s_endpgm")

V_LANE, V_LG, V_R, V_PL, V_PG, V_PQ = 0, 4, 5, 6, 7, 8
V_BO, V_BX, V_BX8, V_BH, V_BH8, V_AS, V_AS8 = 9, 10, 11, 12, 13, 14, 15
V_XR, V_CSQ, V_CSG = 16, 20, 24
V_W8, V_WX, V_WH, V_ML = 28, 29, 30, 31
W0 = 32
V_SEL, V_R2, V_ST2, V_PS, V_PSQ, V_L16 = 75, 79, 80, 81, 82, 83
V_T = 84
V_GL, V_LL = 72, 73
V_DA, V_DB = 72, 73
CW_K, CW_V = 86, 134
S_N1 = 74

_off3 = (2, 6, 0)
def wq_frag(t, s): return ("a", 10 * t + _off3[s])
def wo_frag(t, s): return ("a", 120 + 24 * t + 4 * s)
def wd_frag(t, s):
    if s == 0: return ("a", 240 + 4 * t) if t < 4 else ("v", 182)
    return ("v", 186 + 2 * t)
def wg_frag(t, s): return ("v", 196 + 10 * t + _off3[s])
def wu_frag(t, s): return ("v", 226 + 10 * t + _off3[s])
def win(fr): return f"{fr[0]}[{fr[1]}:{fr[1]+3}]"

V_OOB = 74
def selmask(e, dst, val, mask, other=None):
    e(f"s_mov_b32 vcc_lo, 0x{mask & 0xffffffff:08x}"); e(f"s_mov_b32 vcc_hi, 0x{mask >> 32:08x}")
    if other is None: e(f"v_cndmask_b32 {vr(dst)}, v{V_OOB}, {vr(val)}, vcc")
    else:
        assert dst != val
        e(f"v_mov_b32 {vr(dst)}, 0x{other:08x}")
        e(f"v_cndmask_b32 {vr(dst)}, {vr(dst)}, {vr(val)}, vcc")

def rows_mask(live, n): return mask64([32 * r + g for r in live for g in range(n)])
def cols_mask(live, alist=range(4)): return mask64([16 * a + n for a in alist for n in live])

def instance_offsets(e, live, pub_live=None, q_live=None):
    pub_live = live if pub_live is None else pub_live
    q_live = pub_live if q_live is None else q_live
    t, u = V_T, V_T + 1
    e(f"v_and_b32 {vr(t)}, 31, v{V_LANE}"); e(f"v_lshlrev_b32 {vr(t)}, 4, {vr(t)}")
    e(f"v_lshrrev_b32 {vr(u)}, 5, v{V_LANE}"); e(f"v_lshl_add_u32 {vr(t)}, {vr(u)}, 9, {vr(t)}")
    selmask(e, V_LG, t, rows_mask(live, 20))
    selmask(e, V_R2, t, rows_mask(live, 24))
    if o_packed[0]:
        row = live[-1]
        e(f"v_lshrrev_b32 {vr(t)}, 4, v{V_LANE}"); e(f"v_and_b32 {vr(u)}, 15, v{V_LANE}")
        e(f"v_lshlrev_b32 v{V_DA}, 10, {vr(t)}"); e(f"v_lshl_add_u32 v{V_DA}, {vr(u)}, 4, v{V_DA}"); e(f"v_add_u32 v{V_DA}, {512*row}, v{V_DA}")
        e(f"v_lshlrev_b32 v{V_DB}, 15, {vr(t)}"); e(f"v_bfe_u32 {vr(u)}, v{V_LANE}, 2, 2"); e(f"v_lshl_add_u32 v{V_DB}, {vr(u)}, 10, v{V_DB}")
        e(f"v_and_b32 {vr(u)}, 3, v{V_LANE}"); e(f"v_lshl_add_u32 v{V_DB}, {vr(u)}, 4, v{V_DB}"); e(f"v_add_u32 v{V_DB}, {512*row + 256}, v{V_DB}")
        e(f"v_lshrrev_b32 {vr(u)}, 5, v{V_LANE}")
    else:
        e(f"v_and_b32 v{V_GL}, 7, v{V_LANE}"); e(f"v_lshlrev_b32 v{V_GL}, 10, v{V_GL}"); e(f"v_add_u32 v{V_GL}, {512*live[-1] + 19*16}, v{V_GL}")
        e(f"v_and_b32 v{V_LL}, 3, v{V_LANE}"); e(f"v_lshlrev_b32 v{V_LL}, 10, v{V_LL}"); e(f"v_add_u32 v{V_LL}, {512*live[-1] + 19*16}, v{V_LL}")
    e(f"v_and_b32 {vr(t)}, 7, v{V_LANE}"); e(f"v_lshlrev_b32 {vr(t)}, 10, {vr(t)}")
    e(f"v_lshl_add_u32 {vr(t)}, {vr(u)}, 9, {vr(t)}"); e(f"v_add_u32 {vr(t)}, 384, {vr(t)}")
    selmask(e, V_ST2, t, rows_mask(live, 32))
    e(f"v_and_b32 {vr(t)}, 15, v{V_LANE}"); e(f"v_lshrrev_b32 {vr(u)}, 4, v{V_LANE}")
    e(f"v_lshlrev_b32 v{V_PL}, 9, {vr(t)}")
    e(f"v_lshl_add_u32 v{V_PG}, {vr(u)}, 5, v{V_PL}")
    e(f"v_add_u32 v{V_PS}, 384, v{V_PL}")
    e(f"v_lshl_add_u32 v{V_PL}, {vr(u)}, 4, v{V_PL}")
    e(f"v_lshlrev_b32 v{V_PQ}, 18, {vr(t)}")
    e(f"v_add_u32 v{V_PSQ}, 768, v{V_PQ}")
    e(f"v_lshl_add_u32 v{V_PQ}, {vr(u)}, 4, v{V_PQ}")
    cm = cols_mask(pub_live)
    e(f"s_mov_b32 vcc_lo, 0x{cm & 0xffffffff:08x}"); e(f"s_mov_b32 vcc_hi, 0x{cm >> 32:08x}")
    for r in (V_PL, V_PG): e(f"v_cndmask_b32 v{r}, v{V_OOB}, v{r}, vcc")
    selmask(e, V_PS, V_PS, cols_mask(pub_live, [0]))
    selmask(e, V_PQ, V_PQ, cols_mask(q_live))
    selmask(e, V_PSQ, V_PSQ, cols_mask(q_live, [0]))

def soffs(e, off_sreg, const, two=True):
    e(f"s_add_u32 s{S_A}, s{off_sreg}, {const}")
    if two: e(f"s_add_u32 s{S_B}, s{S_A}, 4096")

def poll(e, o, loads, abort, sleep=0):
    lab = e.newlabel("poll")
    e(f"s_mov_b32 s{S_CNT}, {o.poll_limit}")
    e.label(lab)
    for d, vo, s, imm in loads:
        e(f"buffer_load_dwordx4 {vr(d,4)}, v{vo}, s[{SRD_WS}:{SRD_WS+3}], s{s} offen offset:{imm} sc1")
    e(f"s_sub_u32 s{S_CNT}, s{S_CNT}, 1")
    e(f"s_cbranch_scc1 {abort}")
    e("s_waitcnt vmcnt(0)")
    vals = []
    for d, _, _, _ in loads: vals += [d + 1, d + 3]
    t = V_T
    e(f"v_max3_u32 v{t}, v{vals[0]}, v{vals[1]}, v{vals[2]}")
    i = 3
    while i < len(vals):
        if i + 1 < len(vals): e(f"v_max3_u32 v{t}, v{t}, v{vals[i]}, v{vals[i+1]}"); i += 2
        else: e(f"v_max_u32 v{t}, v{t}, v{vals[i]}"); i += 1
    e(f"v_cmp_eq_u32 vcc, -1, v{t}")
    if sleep:
        ok = e.newlabel("pok"); e(f"s_cbranch_vccz {ok}"); e(f"s_sleep {sleep}"); e(f"s_branch {lab}"); e.label(ok)
    else: e(f"s_cbranch_vccnz {lab}")
    e.vmq = []

def gather8(e, o, vo, abort, extra=None, n=8, base=W0):
    loads = [(base + 4 * k, vo, S_A if k < 4 else S_B, (k % 4) * 1024) for k in range(n)]
    if extra: loads.append((base + 4 * n, extra, S_A, 0))
    poll(e, o, loads, abort)

def sum_loads(e, n, base=W0):
    step = 1
    while step < n:
        for k in range(0, n, 2 * step):
            if k + step < n:
                a, b = base + 4 * k, base + 4 * (k + step)
                e(f"v_pk_add_f32 {vr(a,2)}, {vr(a,2)}, {vr(b,2)}")
                e(f"v_pk_add_f32 {vr(a+2,2)}, {vr(a+2,2)}, {vr(b+2,2)}")
        step *= 2

def dpp8(e, reg, op):
    for m in ("quad_perm:[1,0,3,2]", "quad_perm:[2,3,0,1]", "row_half_mirror"):
        e(f"v_{op}_f32_dpp v{reg}, v{reg}, v{reg} {m} row_mask:0xf bank_mask:0xf")
def dpp8x2(e, r0, r1, op):
    for m in ("quad_perm:[1,0,3,2]", "quad_perm:[2,3,0,1]", "row_half_mirror"):
        e(f"v_{op}_f32_dpp v{r0}, v{r0}, v{r0} {m} row_mask:0xf bank_mask:0xf")
        e(f"v_{op}_f32_dpp v{r1}, v{r1}, v{r1} {m} row_mask:0xf bank_mask:0xf")

def ln_from_stats(e, s1, s2, mean, rstd):
    e(f"v_mul_f32 v{mean}, {lit(1/640)}, v{s1}")
    e(f"v_mul_f32 v{s2}, {lit(1/640)}, v{s2}")
    e(f"v_fma_f32 v{s2}, -v{mean}, v{mean}, v{s2}")
    e(f"v_max_f32 v{s2}, 0, v{s2}")
    e(f"v_add_f32 v{s2}, {lit(EPS)}, v{s2}")
    e(f"v_rsq_f32 v{rstd}, v{s2}")

def pub(e, D, vo, sreg, imm, fl, tag):
    e.vm(f"buffer_store_dwordx4 {vr(D,4)}, v{vo}, s[{SRD_WS}:{SRD_WS+3}], s{sreg} offen offset:{imm} {fl}", tag)

def run_tiles(e, tiles, accs, store, btags=None, twait=None):
    n = len(accs); lag = n - 1
    for i, (tid, steps) in enumerate(tiles):
        D = vr(accs[i % n], 4)
        if twait and tid in twait: e.lg_wait(twait[tid])
        for s, (A, B) in enumerate(steps):
            if i == 0 and btags: e.lg_wait(btags[s])
            e(f"v_mfma_f32_16x16x32_bf16 {D}, {A}, {B}, {'0' if s == 0 else D}")
        if i >= lag: store(tiles[i - lag][0], accs[(i - lag) % n])
    for i in range(max(0, len(tiles) - lag), len(tiles)): store(tiles[i][0], accs[i % n])

def read_bx(e, B):
    e.lg(f"ds_read_b128 {vr(B,4)}, v{V_BX}", "b0"); e.lg(f"ds_read_b128 {vr(B+4,4)}, v{V_BX} offset:64", "b1")
    e.lg(f"ds_read_b64 {vr(B+8,2)}, v{V_BX8}", "b2")
    e(f"v_mov_b32 v{B+10}, 0"); e(f"v_mov_b32 v{B+11}, 0")
def read_as(e, A):
    e.lg(f"ds_read_b128 {vr(A,4)}, v{V_AS}", "a0"); e.lg(f"ds_read_b128 {vr(A+4,4)}, v{V_AS} offset:64", "a1")
    e.lg(f"ds_read_b64 {vr(A+8,2)}, v{V_AS8}", "a2")
    e(f"v_mov_b32 v{A+10}, 0"); e(f"v_mov_b32 v{A+11}, 0")

def stage_Q(e, fl, reg_index, shadow=None):
    B, A = W0 + 8, W0 + 20
    read_bx(e, B); read_as(e, A)
    e(f"s_add_u32 s{S_A}, s{S_ROWN}, {reg_index*RG}")
    if shadow: shadow()
    tiles = [(t, [(win(wq_frag(t, s)), vr(B + 4 * s, 4)) for s in range(3)]) for t in range(12)]
    tiles.insert(1, (12, [(vr(A + 4 * s, 4), vr(B + 4 * s, 4)) for s in range(3)]))
    SD = W0 + 4
    def store(t, D): pub(e, D, V_PQ, S_A, 64 * t, fl, ("pq", t))
    first, stats, rest = tiles[0], tiles[1], tiles[2:]
    run_tiles(e, [first], [W0 + 32, W0 + 36], lambda t, D: None, btags=["b0", "b1", "b2"])
    e.lg_wait("a2")
    for s, (Aop, Bop) in enumerate(stats[1]):
        e(f"v_mfma_f32_16x16x32_bf16 {vr(SD,4)}, {Aop}, {Bop}, {'0' if s == 0 else vr(SD,4)}")
    accs = [W0 + 36, W0, W0 + 20, W0 + 32]
    pend = [(0, W0 + 32)]
    for i, (t, steps) in enumerate(rest):
        D = accs[i % 4]
        for s, (Aop, Bop) in enumerate(steps):
            e(f"v_mfma_f32_16x16x32_bf16 {vr(D,4)}, {Aop}, {Bop}, {'0' if s == 0 else vr(D,4)}")
        pend.append((t, D))
        if i >= 2: store(*pend.pop(0))
    e(f"v_cndmask_b32 v{SD+1}, v{SD+1}, v{SD+2}, s[{S_N1}:{S_N1+1}]")
    while pend: store(*pend.pop(0))
    pub(e, SD, V_PSQ, S_A, 0, fl, "pqs")

def stage_GU(e, fl, const, with_stats=True, shadow=None):
    B, A = W0 + 8, W0 + 20
    read_bx(e, B)
    if with_stats: read_as(e, A)
    e(f"s_add_u32 s{S_A}, s{S_ROWN}, {const}" if const >= 0 else f"s_sub_u32 s{S_A}, s{S_ROWN}, {-const}")
    if shadow: shadow()
    def tile(d, f, waits=None):
        d = vr(d, 4)
        for s in range(3):
            if waits: e.lg_wait(waits[s])
            e(f"v_mfma_f32_16x16x32_bf16 {d}, {f(s)}, {vr(B+4*s,4)}, {'0' if s == 0 else d}")
    def store(t, G, U):
        e(f"v_swap_b32 v{G+2}, v{U}"); e(f"v_swap_b32 v{G+3}, v{U+1}")
        pub(e, G, V_PG, S_A, 128 * t, fl, ("pg", t, 0))
        pub(e, U, V_PG, S_A, 128 * t + 16, fl, ("pg", t, 1))
    g = lambda t: (lambda s: win(wg_frag(t, s)))
    u = lambda t: (lambda s: win(wu_frag(t, s)))
    P0, P1, S = (W0 + 32, W0 + 36), (W0 + 20, W0 + 24), W0
    tile(P0[0], g(0), waits=["b0", "b1", "b2"]); tile(P0[1], u(0))
    if with_stats:
        e.lg_wait("a2")
        tile(S, lambda s: vr(A + 4 * s, 4))
    tile(P1[0], g(1)); tile(P1[1], u(1))
    store(0, *P0)
    if with_stats: e(f"v_cndmask_b32 v{S+1}, v{S+1}, v{S+2}, s[{S_N1}:{S_N1+1}]")
    tile(P0[0], g(2)); tile(P0[1], u(2))
    store(1, *P1)
    store(2, *P0)
    if with_stats: pub(e, S, V_PS, S_A, 0, fl, "pgs")

def stage_WO(e, fl, region, shadow=None):
    B = W0
    for s in range(6): e.lg(f"ds_read_b128 {vr(B+4*s,4)}, v{V_BO} offset:{64*s}", ("o", s))
    e(f"s_add_u32 s{S_A}, s{S_LOWN}, {region*RG}")
    if shadow: shadow()
    tiles = [(t, [(win(wo_frag(t, s)), vr(B+4*s,4)) for s in range(6)]) for t in range(5)]
    run_tiles(e, tiles, [W0 + 24, W0 + 28, W0 + 32], lambda t, D: pub(e, D, V_PL, S_A, 64 * t, fl, ("po", t)), btags=[("o", s) for s in range(6)])

def stage_D(e, fl, region):
    B = W0
    e.lg(f"ds_read_b128 {vr(B,4)}, v{V_BH}", "h0"); e.lg(f"ds_read_b64 {vr(B+4,2)}, v{V_BH8}", "h1")
    e(f"v_mov_b32 v{B+6}, 0"); e(f"v_mov_b32 v{B+7}, 0")
    e(f"s_add_u32 s{S_A}, s{S_LOWN}, {region*RG}")
    tiles = [(t, [(win(wd_frag(t, 0)), vr(B,4)), (win(wd_frag(t, 1)), vr(B+4,4))]) for t in range(5)]
    run_tiles(e, tiles, [W0 + 8 + 4 * i for i in range(5)], lambda t, D: pub(e, D, V_PL, S_A, 64 * t, fl, ("pd", t)), btags=["h0", "h1"])

def fast_gather(e, o, loads, body, abort, pre=0, early=False):
    n = len(loads); t = V_T
    lab = e.newlabel("fpoll")
    e(f"s_mov_b32 s{S_CNT}, {o.poll_limit}")
    if pre: e(f"s_sleep {pre}")
    e.label(lab)
    for d, vo, s, imm in loads:
        e(f"buffer_load_dwordx4 {vr(d,4)}, v{vo}, s[{SRD_WS}:{SRD_WS+3}], s{s} offen offset:{imm} sc1")
    e(f"s_sub_u32 s{S_CNT}, s{S_CNT}, 1")
    e(f"s_cbranch_scc1 {abort}")
    first = [True]
    if early:
        d = loads[0][0]
        e(f"s_waitcnt vmcnt({n-1})")
        e(f"v_max_u32 v{t}, v{d+1}, v{d+3}")
        e(f"v_cmp_eq_u32 vcc, -1, v{t}")
        e(f"s_cbranch_vccnz {lab}")
        first[0] = False
    def wait(k): e(f"s_waitcnt vmcnt({n-1-k})")
    def chk(k):
        d = loads[k][0]
        if first[0]: e(f"v_max_u32 v{t}, v{d+1}, v{d+3}"); first[0] = False
        else: e(f"v_max3_u32 v{t}, v{t}, v{d+1}, v{d+3}")
    body(wait, chk)
    e(f"v_cmp_eq_u32 vcc, -1, v{t}")
    e(f"s_cbranch_vccnz {lab}")
    e.vmq = []

def padd(e, a, b, neg=False):
    m = " neg_lo:[0,1] neg_hi:[0,1]" if neg else ""
    e(f"v_pk_add_f32 {vr(a,2)}, {vr(a,2)}, {vr(b,2)}{m}"); e(f"v_pk_add_f32 {vr(a+2,2)}, {vr(a+2,2)}, {vr(b+2,2)}{m}")

def g_soffs(e, off_sreg, const, two=True):
    e(f"s_add_u32 s{S_GA}, s{off_sreg}, {const}")
    if two: e(f"s_add_u32 s{S_GB}, s{S_GA}, 4096")
def g_loads(vo, n=8, base=W0): return [(base + 4 * k, vo, S_GA if k < 4 else S_GB, (k % 4) * 1024) for k in range(n)]

def hop_LG(e, o, inst, k, abort, final_only=False):
    skip = e.newlabel("notleader")
    e(f"s_cmp_lg_u32 s{S_HQ}, 0"); e(f"s_cbranch_scc1 {skip}")
    g_soffs(e, S_LGRP, L_REG(inst, k) * RG, two=False)
    e(f"s_add_u32 s{S_A}, s{S_GOWN}, {G_OFF(inst,k)}")
    X = W0 + 32
    off = 1 if o.early else 0
    def body4(wait, chk):
        wait(off + 1); chk(off); chk(off + 1); padd(e, W0, W0 + 4)
        wait(off + 2); chk(off + 2); padd(e, W0, W0 + 8)
        wait(off + 3); chk(off + 3); padd(e, W0, W0 + 12)
    fast_gather(e, o, ([(X, V_LL, S_GA, 0)] if o.early else []) + g_loads(V_LG, 4), body4, abort, pre=o.preL, early=o.early)
    e(f"buffer_store_dwordx4 {vr(W0,4)}, v{V_LG}, s[{SRD_WS}:{SRD_WS+3}], s{S_A} offen sc1")
    if o.preGn:
        join = e.newlabel("lgjoin")
        e(f"s_branch {join}")
        e.label(skip)
        if not final_only: e(f"s_sleep {o.preGn}")
        e.label(join)
    else: e.label(skip)
    if final_only:
        e(f"s_cmp_lg_u32 s{S_H}, 0"); e(f"s_cbranch_scc1 L_done")
    g_soffs(e, S_GGRP, G_OFF(inst, k))
    e.vmq = []
    def body8(wait, chk):
        c = lambda k: chk(off + k)
        w = lambda k: wait(off + k)
        w(1); c(0); c(1); padd(e, W0, V_XR); padd(e, W0, W0 + 4)
        w(3); c(2); c(3); padd(e, W0 + 8, W0 + 12); padd(e, W0, W0 + 8)
        w(5); c(4); c(5); padd(e, W0 + 16, W0 + 20); padd(e, W0, W0 + 16)
        w(6); c(6); padd(e, W0, W0 + 24)
        w(7); c(7); padd(e, W0, W0 + 28)
    fast_gather(e, o, ([(X, V_GL, S_GA, 0)] if o.early else []) + g_loads(V_LG, 8), body8, abort, pre=o.preG, early=o.early)

def hop_packed(e, o, abort, inst, k, pre):
    if inst == 2 and k == 1:
        e(f"s_cmp_lg_u32 s{S_H}, 0"); e(f"s_cbranch_scc1 L_done")
    e(f"s_lshl_b32 s{S_T0}, s{S_J}, 12"); e(f"s_add_u32 s{S_T0}, s{S_T0}, {L_REG(inst,k)*RG}")
    for x in range(8): e(f"s_add_u32 s{SW8[x]}, s{S_T0}, {32768*x}")
    B0 = W0 + 32
    loads = [(B0, V_DB, SW8[0], 0), (B0 + 4, V_DB, SW8[4], 0)] + [(W0 + 4 * x, V_DA, SW8[x], 0) for x in range(8)]
    T = V_T + 1
    def xrow(a):
        for sw in ("v_permlane16_swap_b32", "v_permlane32_swap_b32"):
            for r in range(4):
                t = B0 + 4 + r
                e(f"v_mov_b32 v{t}, v{a+r}")
            for r in range(4): e(f"{sw} v{a+r}, v{B0+4+r}")
            for h in range(2): e(f"v_pk_add_f32 {vr(a+2*h,2)}, {vr(a+2*h,2)}, {vr(B0+4+2*h,2)}")
    def body(wait, chk):
        wait(1); chk(0); chk(1); padd(e, B0, B0 + 4)
        for m in ("row_ror:4", "row_ror:8"):
            for r in range(4): e(f"v_add_f32_dpp v{B0+r}, v{B0+r}, v{B0+r} {m} row_mask:0xf bank_mask:0xf")
        wait(3); chk(2); chk(3); padd(e, W0, W0 + 4)
        xrow(B0)
        wait(5); chk(4); chk(5); padd(e, W0 + 8, W0 + 12); padd(e, W0, W0 + 8)
        wait(7); chk(6); chk(7); padd(e, W0 + 16, W0 + 20); padd(e, W0, W0 + 16)
        wait(8); chk(8); padd(e, W0, W0 + 24)
        wait(9); chk(9); padd(e, W0, W0 + 28)
    fast_gather(e, o, loads, body, abort, pre=pre)
    xrow(W0)
    e("s_mov_b32 vcc_lo, 0xffff0000"); e("s_mov_b32 vcc_hi, 0xffff0000")
    for r in range(4): e(f"v_cndmask_b32 v{W0+r}, v{W0+r}, v{B0+r}, vcc")
    m = rows_mask([LIVE[inst][-1]], 20)
    e(f"s_mov_b32 vcc_lo, 0x{m & 0xffffffff:08x}"); e(f"s_mov_b32 vcc_hi, 0x{m >> 32:08x}")
    for r in range(4): e(f"v_cndmask_b32 v{W0+r}, 0, v{W0+r}, vcc")
    padd(e, W0, V_XR)

def hop_final(e, o, abort, k=1):
    if k == 1:
        e(f"s_cmp_lg_u32 s{S_H}, 0"); e(f"s_cbranch_scc1 L_done")
    e(f"s_lshl_b32 s{S_T0}, s{S_J}, 12"); e(f"s_add_u32 s{S_T0}, s{S_T0}, {L_REG(2,k)*RG}")
    for x in range(8): e(f"s_add_u32 s{SW8[x]}, s{S_T0}, {32768*x}")
    dst = [W0 + 4 * k for k in range(8)] + [CW_K + 4 * k for k in range(24)]
    loads = [(dst[4 * x + q], V_LG, SW8[x], 1024 * q) for x in range(8) for q in range(4)]
    A0, A1 = loads[0][0], loads[1][0]
    def body(wait, chk):
        wait(1); chk(0); chk(1); padd(e, A0, V_XR)
        for k in range(2, 32):
            if k % 2 == 0: wait(min(k + 1, 31)); chk(k); chk(k + 1)
            padd(e, A0 if k % 2 == 0 else A1, loads[k][0])
        padd(e, A0, A1)
    fast_gather(e, o, loads, body, abort, pre=o.preF if k == 1 else o.preF0)

def residual_update(e):
    e(f"v_cvt_pk_bf16_f32 v{W0+4}, v{W0}, v{W0+1}")
    e(f"v_cvt_pk_bf16_f32 v{W0+5}, v{W0+2}, v{W0+3}")
    e.lg(f"ds_write_b64 v{V_WX}, {vr(W0+4,2)}", "wx")
def residual_unpack(e, p):
    e(f"v_lshlrev_b32 v{V_XR}, 16, v{p}"); e(f"v_and_b32 v{V_XR+1}, 0xffff0000, v{p}")
    e(f"v_lshlrev_b32 v{V_XR+2}, 16, v{p+1}"); e(f"v_and_b32 v{V_XR+3}, 0xffff0000, v{p+1}")

def store_out(e, row, only=True):
    skip = e.newlabel("noout")
    e(f"s_cmp_lg_u32 s{S_H}, 0"); e(f"s_cbranch_scc1 {skip}")
    make_srd(e, SRD_T, S_OUT, 2560)
    e(f"v_and_b32 v{V_T}, 31, v{V_LANE}"); e(f"v_lshlrev_b32 v{V_T}, 3, v{V_T}")
    e(f"s_mul_i32 s{S_T0}, s{S_J}, 160"); e(f"s_add_u32 s{S_T0}, s{S_T0}, {row*1280}")
    selmask(e, V_T, V_T, rows_mask([row], 20))
    e(f"buffer_store_dwordx2 {vr(W0+4,2)}, v{V_T}, s[{SRD_T}:{SRD_T+3}], s{S_T0} offen")
    e.label(skip)

def combine_publish(e, fl, parts, mlbase, region):
    T = W0
    e(f"v_mov_b32 v{V_T}, {mlbase}")
    e.lg(f"ds_read_b128 {vr(T,4)}, v{V_T}", "ml0"); e.lg(f"ds_read_b128 {vr(T+4,4)}, v{V_T} offset:16", "ml1")
    P = T + 8
    cur = None
    for w in range(4):
        if cur is None or not (0 <= parts[w] - cur < 60000):
            e(f"v_add_u32 v{V_T+1}, {parts[w]}, v{V_L16}"); cur = parts[w]
        for par in range(2):
            e.lg(f"ds_read_b128 {vr(P+8*w+4*par,4)}, v{V_T+1} offset:{parts[w] - cur + 768*par}", ("p", w, par))
    e(f"s_add_u32 s{S_A}, s{S_ROWN}, {region*RG}")
    e.lg_wait("ml1")
    m = [T, T + 2, T + 4, T + 6]; l = [T + 1, T + 3, T + 5, T + 7]
    M, Ls = V_T, V_T + 1
    e(f"v_max3_f32 v{M}, v{m[0]}, v{m[1]}, v{m[2]}"); e(f"v_max_f32 v{M}, v{M}, v{m[3]}")
    for w in range(4): e(f"v_sub_f32 v{m[w]}, v{m[w]}, v{M}")
    for w in range(4): e(f"v_exp_f32 v{m[w]}, v{m[w]}")
    e(f"v_mul_f32 v{Ls}, v{m[0]}, v{l[0]}")
    for w in range(1, 4): e(f"v_fma_f32 v{Ls}, v{m[w]}, v{l[w]}, v{Ls}")
    for w in range(4):
        e.lg_wait(("p", w, 1))
        a = P + 8 * w
        e(f"v_pk_add_f32 {vr(a,2)}, {vr(a,2)}, {vr(a+4,2)}"); e(f"v_pk_add_f32 {vr(a+2,2)}, {vr(a+2,2)}, {vr(a+6,2)}")
        for r in range(4):
            if w == 0: e(f"v_mul_f32 v{P+r}, v{m[0]}, v{P+r}")
            else: e(f"v_fmac_f32 v{P+r}, v{m[w]}, v{a+r}")
    e(f"s_mov_b32 vcc_lo, 0"); e(f"s_mov_b32 vcc_hi, 0x00010000")
    e(f"v_cndmask_b32 v{P}, v{P}, v{M}, vcc"); e(f"v_cndmask_b32 v{P+1}, v{P+1}, v{Ls}, vcc")
    pub(e, P, V_R, S_A, 0, fl, "r1")

SW8 = [4, 6, 8, 10, 12, 16, 18, 20]
def hop_R1(e, o, region, row, abort):
    g_soffs(e, S_RGRP, region * RG)
    X = W0 + 32
    M, wv = X + 2, X + 3
    acc = W0 + 36
    loads = [(X, V_ML, S_GA, 0)] + g_loads(V_R)
    def body(wait, chk):
        if not o.early: wait(0); chk(0)
        e(f"v_mov_b32 v{M}, v{X}")
        dpp8(e, M, "max")
        e(f"v_sub_f32 v{wv}, v{X}, v{M}"); e(f"v_exp_f32 v{wv}, v{wv}")
        wait(4); chk(1); chk(2)
        e(f"v_mul_f32 v{X+1}, v{wv}, v{X+1}")
        chk(3); chk(4)
        e(f"v_add_f32_dpp v{X+1}, v{X+1}, v{X+1} quad_perm:[1,0,3,2] row_mask:0xf bank_mask:0xf")
        wait(8); chk(5); chk(6)
        e(f"v_add_f32_dpp v{X+1}, v{X+1}, v{X+1} quad_perm:[2,3,0,1] row_mask:0xf bank_mask:0xf")
        chk(7); chk(8)
        e(f"v_add_f32_dpp v{X+1}, v{X+1}, v{X+1} row_half_mirror row_mask:0xf bank_mask:0xf")
        e(f"v_rcp_f32 v{X+1}, v{X+1}")
        e(f"v_mul_f32 v{wv}, v{wv}, v{X+1}")
        for k in range(8): e(f"v_readlane_b32 s{SW8[k]}, v{wv}, {k}")
        for k in range(8):
            for h in range(2):
                a, m = acc + 2 * h, W0 + 4 * k + 2 * h
                sp = f"s[{SW8[k]}:{SW8[k]+1}]"
                if k == 0: e(f"v_pk_mul_f32 {vr(a,2)}, {vr(m,2)}, {sp} op_sel_hi:[1,0]")
                else: e(f"v_pk_fma_f32 {vr(a,2)}, {vr(m,2)}, {sp}, {vr(a,2)} op_sel_hi:[1,0,1]")
    fast_gather(e, o, loads, body, abort, pre=o.preR, early=o.early)
    e(f"v_cvt_pk_bf16_f32 v{acc}, v{acc}, v{acc+1}"); e(f"v_cvt_pk_bf16_f32 v{acc+1}, v{acc+2}, v{acc+3}")
    e.lg(f"ds_write_b64 v{V_W8}, {vr(acc,2)} offset:{ACT_O - SB + 384*row}", "wo")

def ln_gather(e, o, vo, vstat, cs, abort):
    X = W0 + 32; mean, rstd = X + 2, X + 3; T = W0 + 36
    loads = [(X, vstat, S_GA, 0)] + g_loads(vo)
    q = lambda r, m: e(f"v_add_f32_dpp v{r}, v{r}, v{r} {m} row_mask:0xf bank_mask:0xf")
    def body(wait, chk):
        if not o.early: wait(0); chk(0)
        q(X, "quad_perm:[1,0,3,2]"); q(X + 1, "quad_perm:[1,0,3,2]")
        wait(2); chk(1)
        q(X, "quad_perm:[2,3,0,1]"); q(X + 1, "quad_perm:[2,3,0,1]")
        chk(2)
        q(X, "row_half_mirror"); q(X + 1, "row_half_mirror")
        padd(e, W0, W0 + 4)
        e(f"v_mul_f32 v{mean}, {lit(1/640)}, v{X}"); e(f"v_mul_f32 v{X+1}, {lit(1/640)}, v{X+1}")
        wait(4); chk(3); chk(4)
        e(f"v_fma_f32 v{X+1}, -v{mean}, v{mean}, v{X+1}")
        padd(e, W0 + 8, W0 + 12)
        e(f"v_max_f32 v{X+1}, 0, v{X+1}"); e(f"v_add_f32 v{X+1}, {lit(EPS)}, v{X+1}")
        padd(e, W0, W0 + 8)
        e(f"v_rsq_f32 v{rstd}, v{X+1}")
        wait(6); chk(5); chk(6)
        e(f"v_pk_mul_f32 {vr(T,2)}, {vr(cs,2)}, {vr(mean,2)} op_sel_hi:[1,0]"); e(f"v_pk_mul_f32 {vr(T+2,2)}, {vr(cs+2,2)}, {vr(mean,2)} op_sel_hi:[1,0]")
        padd(e, W0 + 16, W0 + 20); padd(e, W0, T, neg=True); padd(e, W0, W0 + 16)
        wait(7); chk(7); padd(e, W0, W0 + 24)
        wait(8); chk(8); padd(e, W0, W0 + 28)
    fast_gather(e, o, loads, body, abort, pre=o.preR, early=o.early)
    e(f"v_pk_mul_f32 {vr(W0,2)}, {vr(W0,2)}, {vr(mean,2)} op_sel:[0,1] op_sel_hi:[1,1]")
    e(f"v_pk_mul_f32 {vr(W0+2,2)}, {vr(W0+2,2)}, {vr(mean,2)} op_sel:[0,1] op_sel_hi:[1,1]")

def hop_R2(e, o, inst, abort):
    ln_gather(e, o, V_R2, V_ST2, V_CSG, abort)
    e(f"v_max_f32 v{W0}, 0, v{W0}"); e(f"v_max_f32 v{W0+1}, 0, v{W0+1}")
    e(f"v_pk_mul_f32 {vr(W0,2)}, {vr(W0,2)}, {vr(W0+2,2)}")
    e(f"v_cvt_pk_bf16_f32 v{W0}, v{W0}, v{W0+1}")
    e.lg(f"ds_write_b32 v{V_WH}, v{W0}", "wh")

def q_consume(e, base, X, row):
    dpp8x2(e, X, X + 1, "add")
    sum_loads(e, 8, base)
    mean, rstd = X + 2, X + 3
    ln_from_stats(e, X, X + 1, mean, rstd)
    for r in range(4): e(f"v_fma_f32 v{base+r}, -v{mean}, v{V_CSQ+r}, v{base+r}")
    for r in range(4): e(f"v_mul_f32 v{base+r}, v{rstd}, v{base+r}")
    e(f"v_cvt_pk_bf16_f32 v{base}, v{base}, v{base+1}"); e(f"v_cvt_pk_bf16_f32 v{base+1}, v{base+2}, v{base+3}")
    e.lg(f"ds_write_b64 v{V_W8}, {vr(base,2)} offset:{QARR - SB + 384*row}", "wq")

def hop_R3(e, o, region, row, abort):
    ln_gather(e, o, V_R, V_ML, V_CSQ, abort)
    e(f"v_cvt_pk_bf16_f32 v{W0}, v{W0}, v{W0+1}"); e(f"v_cvt_pk_bf16_f32 v{W0+1}, v{W0+2}, v{W0+3}")
    e.lg(f"ds_write_b64 v{V_W8}, {vr(W0,2)} offset:{QARR - SB + 384*row}", "wq")

def go_flag(e):
    e(f"v_mov_b32 v{V_T}, {WFLAG + 12}"); e(f"v_mov_b32 v{V_T+1}, 1")
    e.lg(f"ds_write_b32 v{V_T}, v{V_T+1}", "go")

def chain(e, o, fl, inst, live, abort, st):
    c = f"c{inst}."
    if inst == 0 and o.NB1 != o.NB and o.go_at == "R1": go_flag(e)
    if inst == 0: o._save = (o.preR, o.preL, o.preG); o.preL, o.preG = o.preL + o.preL0, o.preG + o.preG0
    st.rounds(f"n{inst}.R1")
    st(c + "R1")
    pk = o.packed.split(",") if o.packed else []
    if inst == 0 and o.split_tok:
        TO, TD = W0 + 38, W0 + 36
        omask = 0xffffffff00ff0000
        def shadow():
            tok2_offsets(e, TO, W0 + 24, others_only=True)
            e(f"s_mov_b32 s{S_B}, {TOK2}")
            set_exec(e, omask)
            e.vm(f"buffer_load_dwordx2 {vr(TD,2)}, v{TO}, s[{SRD_WS}:{SRD_WS+3}], s{S_B} offen sc1", "tok2b")
            e("s_mov_b64 exec, -1")
        stage_WO(e, "sc1" if "00" in pk else fl, L_REG(inst, 0), shadow=shadow)
        ok, lab = e.newlabel("tok2ok"), e.newlabel("tok2re")
        e.vm_wait("tok2b")
        set_exec(e, omask)
        e(f"v_cmp_ne_u32 vcc, s{S_TAG}, v{TD}")
        e(f"s_cbranch_vccz {ok}")
        e(f"s_mov_b32 s{S_CNT}, {o.poll_limit}")
        e.label(lab)
        e(f"buffer_load_dwordx2 {vr(TD,2)}, v{TO}, s[{SRD_WS}:{SRD_WS+3}], s{S_B} offen sc1")
        e(f"s_sub_u32 s{S_CNT}, s{S_CNT}, 1"); e(f"s_cbranch_scc1 {abort}")
        e("s_waitcnt vmcnt(0)")
        e(f"v_cmp_ne_u32 vcc, s{S_TAG}, v{TD}")
        e(f"s_cbranch_vccnz {lab}")
        e.label(ok)
        e("s_mov_b64 exec, -1")
        st(c + "WO")
        if "00" in pk: hop_packed(e, o, abort, inst, 0, o.preP0)
        else: hop_LG(e, o, inst, 0, abort)
    elif f"{inst}0" in pk:
        stage_WO(e, "sc1", L_REG(inst, 0))
        st(c + "WO")
        hop_packed(e, o, abort, inst, 0, o.preP0 if inst == 0 else o.preF0)
    elif inst == 2 and o.direct0:
        stage_WO(e, "sc1", L_REG(inst, 0))
        st(c + "WO")
        hop_final(e, o, abort, k=0)
    else:
        stage_WO(e, fl, L_REG(inst, 0))
        st(c + "WO")
        hop_LG(e, o, inst, 0, abort)
    if inst == 0 and o.NB1 != o.NB and o.go_at == "G1": go_flag(e)
    if inst == 0: o.preR, o.preL, o.preG = o._save
    st.rounds(f"n{inst}.G1")
    st(c + "G1")
    residual_update(e)
    def sh_gu():
        residual_unpack(e, W0 + 4); g_soffs(e, S_RGRP, R2_REG[inst] * RG)
    stage_GU(e, fl, R2_REG[inst] * RG, shadow=sh_gu)
    st(c + "GU")
    hop_R2(e, o, inst, abort)
    st.rounds(f"n{inst}.R2")
    st(c + "R2")
    if f"{inst}1" in pk:
        stage_D(e, "sc1", L_REG(inst, 1))
        st(c + "D")
        hop_packed(e, o, abort, inst, 1, o.preP1 if inst == 0 else (o.preF if inst == 2 else o.preF1))
    elif inst == 2 and o.direct:
        stage_D(e, "sc1", L_REG(inst, 1))
        st(c + "D")
        hop_final(e, o, abort)
    else:
        stage_D(e, fl, L_REG(inst, 1))
        st(c + "D")
        hop_LG(e, o, inst, 1, abort, final_only=(inst == 2))
    st.rounds(f"n{inst}.G2")
    st(c + "G2")
    if inst == 2:
        e(f"v_cvt_pk_bf16_f32 v{W0+4}, v{W0}, v{W0+1}"); e(f"v_cvt_pk_bf16_f32 v{W0+5}, v{W0+2}, v{W0+3}")
        for r in LIVE[2]: store_out(e, r, only=len(LIVE[2]) == 1)
        e("s_cmp_lg_u32 s2, 0"); e("s_cbranch_scc1 L_done")
        e(f"v_mov_b32 v{V_T}, s{S_TAG}"); e(f"v_mov_b32 v{V_T+1}, {EPOCH_OFF}")
        e("s_mov_b64 exec, 1")
        e(f"buffer_store_dword v{V_T}, v{V_T+1}, s[{SRD_WS}:{SRD_WS+3}], 0 offen sc1")
        e("s_mov_b64 exec, -1")
        return
    residual_update(e)
    qrow = 0 if inst == 0 else 1
    def sh_q():
        residual_unpack(e, W0 + 4); g_soffs(e, S_RGRP, R3_REG[inst] * RG)
        if inst == 1 and 0 in LIVE[1]:
            store_out(e, 0)
            cm = cols_mask([1]); e(f"s_mov_b32 vcc_lo, 0x{cm & 0xffffffff:08x}"); e(f"s_mov_b32 vcc_hi, 0x{cm >> 32:08x}")
            e(f"v_cndmask_b32 v{V_PQ}, v{V_OOB}, v{V_PQ}, vcc"); e(f"v_cndmask_b32 v{V_PSQ}, v{V_OOB}, v{V_PSQ}, vcc")
    stage_Q(e, fl, R3_REG[inst] - qrow, shadow=sh_q)
    st(c + "Q")
    hop_R3(e, o, R3_REG[inst], qrow, abort)
    e.lg_all()
    st.rounds(f"n{inst}.R3")
    st(c + "R3")

TOK1 = 21 * RG
TOK2 = TOK1 + 32768
EPOCH_OFF = 896
S_TAG = 73

LIVE = {0: [0], 1: [0, 1], 2: [1]}
o_direct = [True, False]
o_packed = [False]
o_exp = ['']
o_dset = set()
def emit_resets_P(e):
    e(f"v_mov_b32 v{W0}, -1"); e(f"v_mov_b32 v{W0+1}, -1"); e(f"v_mov_b32 v{W0+2}, -1"); e(f"v_mov_b32 v{W0+3}, -1")
    for r in [4, 5, 6]:
        e(f"s_add_u32 s{S_A}, s{S_ROWN}, {r*RG}")
        e.vm(f"buffer_store_dwordx4 {vr(W0,4)}, v{V_R}, s[{SRD_WS}:{SRD_WS+3}], s{S_A} offen sc1", "rstp")
    e(f"v_lshlrev_b32 v{V_T}, 4, v{V_LANE}")
    selmask(e, W0 + 4, V_T, rows_mask([0], 24))
    e(f"s_add_u32 s{S_A}, s{S_ROWN}, {R2_REG['P']*RG}")
    e.vm(f"buffer_store_dwordx4 {vr(W0,4)}, v{W0+4}, s[{SRD_WS}:{SRD_WS+3}], s{S_A} offen sc1", "rstp")

def emit_resets(e, f):
    e(f"v_mov_b32 v{W0}, -1"); e(f"v_mov_b32 v{W0+1}, -1"); e(f"v_mov_b32 v{W0+2}, -1"); e(f"v_mov_b32 v{W0+3}, -1")
    def reset(vo, sreg, const):
        e(f"s_add_u32 s{S_A}, s{sreg}, {const}")
        e.vm(f"buffer_store_dwordx4 {vr(W0,4)}, v{vo}, s[{SRD_WS}:{SRD_WS+3}], s{S_A} offen {f}", "rst")
    e(f"v_and_b32 v{V_T}, 31, v{V_LANE}"); e(f"v_lshlrev_b32 v{V_T}, 4, v{V_T}")
    e(f"v_lshrrev_b32 v{V_T+1}, 5, v{V_LANE}"); e(f"v_lshl_add_u32 v{V_T}, v{V_T+1}, 9, v{V_T}")
    liv = dict(LIVE); liv['P'] = [0]
    skip = e.newlabel("norstg")
    e(f"s_cmp_lg_u32 s{S_HQ}, 0"); e(f"s_cbranch_scc1 {skip}")
    for inst in (0, 1, 2):
        ks = [k for k in range(2) if (inst, k) not in o_dset]
        if not ks: continue
        selmask(e, W0 + 4, V_T, rows_mask(liv[inst], 20))
        for k in ks:
            e(f"s_add_u32 s{S_A}, s{S_GOWN}, {G_OFF(inst,k)}")
            e(f"buffer_store_dwordx4 {vr(W0,4)}, v{W0+4}, s[{SRD_WS}:{SRD_WS+3}], s{S_A} offen sc1")
    e.label(skip)
    for r in [7, 8] + list(R1_REG.values()): reset(V_R, S_ROWN, r * RG)
    for inst in (0, 1, 2):
        selmask(e, W0 + 4, V_T, rows_mask(liv[inst], 25))
        reset(W0 + 4, S_ROWN, R2_REG[inst] * RG)
        selmask(e, W0 + 4, V_T, rows_mask(liv[inst], 20))
        for k in range(2):
            if (inst, k) in o_dset:
                if o_exp[0] and "noLrst" in o_exp[0]: continue
                e(f"s_add_u32 s{S_A}, s{S_LOWN}, {L_REG(inst, k) * RG}")
                e.vm(f"buffer_store_dwordx4 {vr(W0,4)}, v{W0+4}, s[{SRD_WS}:{SRD_WS+3}], s{S_A} offen sc1", "rst")
            else: reset(W0 + 4, S_LOWN, L_REG(inst, k) * RG)

def token_store(e, base, second):
    e(f"s_lshl_b32 s{S_A}, s2, 7"); e(f"s_add_u32 s{S_A}, s{S_A}, {base}")
    e(f"v_mov_b32 v{W0+40}, s{S_TAG}"); e(f"v_mov_b32 v{W0+41}, {second}"); e(f"v_mov_b32 v{V_T}, 0")
    e("s_mov_b64 exec, 1")
    e.vm(f"buffer_store_dwordx2 {vr(W0+40,2)}, v{V_T}, s[{SRD_WS}:{SRD_WS+3}], s{S_A} offen sc1", "tok")
    e("s_mov_b64 exec, -1")

def token_gather(e, o, base, vo, mask, sleep=0, dst=W0, between=None):
    lab = e.newlabel("tok"); chk = e.newlabel("tokchk")
    if between:
        e(f"s_mov_b32 s{S_B}, {base}")
        set_exec(e, mask)
        e(f"buffer_load_dwordx2 {vr(dst,2)}, v{vo}, s[{SRD_WS}:{SRD_WS+3}], s{S_B} offen sc1")
        e("s_mov_b64 exec, -1")
        between()
        e(f"s_mov_b32 s{S_A}, {base}")
        set_exec(e, mask)
        e(f"s_mov_b32 s{S_CNT}, {o.poll_limit}")
        e(f"s_branch {chk}")
    else:
        e(f"s_mov_b32 s{S_A}, {base}")
        set_exec(e, mask)
        e(f"s_mov_b32 s{S_CNT}, {o.poll_limit}")
    e.label(lab)
    e(f"buffer_load_dwordx2 {vr(dst,2)}, v{vo}, s[{SRD_WS}:{SRD_WS+3}], s{S_A} offen sc1")
    e(f"s_sub_u32 s{S_CNT}, s{S_CNT}, 1"); e(f"s_cbranch_scc1 L_abort")
    e.label(chk)
    e("s_waitcnt vmcnt(0)")
    e(f"v_cmp_ne_u32 vcc, s{S_TAG}, v{dst}")
    if sleep:
        ok = e.newlabel("tokok"); e(f"s_cbranch_vccz {ok}"); e(f"s_sleep {sleep}"); e(f"s_branch {lab}"); e.label(ok)
    else: e(f"s_cbranch_vccnz {lab}")
    e.vmq = []

def tr_block(e, items):
    i, g, r, c, t = W0, W0 + 1, W0 + 2, W0 + 3, W0 + 4
    a32, a16 = W0 + 6, W0 + 7
    def tr_setup():
        e(f"v_and_b32 v{i}, 15, v{V_LANE}"); e(f"v_lshrrev_b32 v{g}, 4, v{V_LANE}")
        e(f"v_lshrrev_b32 v{r}, 2, v{i}"); e(f"v_and_b32 v{c}, 3, v{i}")
    def trbase(dst, stride, rows_per_g, base):
        e(f"v_mul_u32_u24 v{t}, {rows_per_g}, v{g}"); e(f"v_add_u32 v{t}, v{t}, v{r}")
        e(f"v_mul_u32_u24 v{t}, {stride}, v{t}"); e(f"v_lshl_add_u32 v{dst}, v{c}, 3, v{t}")
        if base: e(f"v_add_u32 v{dst}, {base}, v{dst}")
    def tr(frag, addr, off, k16, stride):
        f, lo = frag
        e.lg(f"ds_read_b64_tr_b16 {f}[{lo}:{lo+1}], v{addr} offset:{off}", "tr")
        if not k16: e.lg(f"ds_read_b64_tr_b16 {f}[{lo+2}:{lo+3}], v{addr} offset:{off+4*stride}", "tr")
        if len(e.lgq) >= 12: e.lg_wait_n(4)
    if True:
        tr_setup()
        for frag, nt, stride, base, ks in items:
            trbase(a32, stride, 8, base); trbase(a16, stride, 4, base)
            nk = len(ks)
            for tt in range(nt):
                for s, k0 in enumerate(ks):
                    k16 = (frag is not wo_frag) and s == nk - 1
                    tr(frag(tt, s), a16 if k16 else a32, k0 * stride + 32 * tt, k16, stride)
        e.lg_all()

def prologue_weights(e, o, st):
    abort = "L_abort"
    e(f"v_mov_b32 v{W0+2}, 0x3f803f80"); e(f"v_mov_b32 v{W0+3}, 0x3f803f80")
    e(f"v_lshlrev_b32 v{W0+4}, 3, v{V_LANE}"); e(f"v_add_u32 v{W0+4}, {ACT_X+384}, v{W0+4}")
    set_exec(e, mask64(range(24)))
    e.lg(f"ds_write_b64 v{W0+4}, {vr(W0+2,2)}", "ones")
    e("s_mov_b64 exec, -1")
    e.lg(f"ds_write_b64 v{V_WX}, {vr(V_XR,2)}", "wx")
    e(f"v_lshlrev_b32 v{V_XR+2}, 16, v{V_XR+1}"); e(f"v_and_b32 v{V_XR+3}, 0xffff0000, v{V_XR+1}")
    e(f"v_and_b32 v{V_XR+1}, 0xffff0000, v{V_XR}"); e(f"v_lshlrev_b32 v{V_XR}, 16, v{V_XR}")
    e.lg_all()
    lab = e.newlabel("wflag")
    e(f"v_mov_b32 v{V_T+1}, {WFLAG}")
    e(f"s_mov_b32 s{S_CNT}, {o.poll_limit*8}")
    e.label(lab)
    e(f"ds_read_b96 {vr(W0,3)}, v{V_T+1}")
    e(f"s_sub_u32 s{S_CNT}, s{S_CNT}, 1"); e(f"s_cbranch_scc1 {abort}")
    e("s_waitcnt lgkmcnt(0)")
    e(f"v_and_b32 v{W0}, v{W0}, v{W0+1}"); e(f"v_and_b32 v{W0}, v{W0}, v{W0+2}")
    e(f"v_cmp_ne_u32 vcc, 1, v{W0}")
    e(f"s_cbranch_vccnz {lab}")
    st("p.wland")
    tr_block(e, [(wq_frag, 12, 384, ST_WQ, (0, 32, 64)), (wg_frag, 3, 96, ST_WG, (0, 32, 64)), (wu_frag, 3, 96, ST_WU, (0, 32, 64))])
    st("p.weights")

def tok2_offsets(e, TO, tmp, others_only=False):
    L = V_LANE; t, u, a, b, c = tmp, tmp + 1, tmp + 2, tmp + 3, tmp + 4
    e(f"v_and_b32 v{t}, 7, v{L}")
    e(f"s_lshl_b32 s{S_T1}, s{S_J}, 3")
    e(f"v_add_u32 v{c}, s{S_T1}, v{t}")
    if not others_only:
        e(f"v_lshlrev_b32 v{u}, 3, v{t}")
        e(f"s_lshl_b32 s{S_T0}, s{S_HQ}, 6"); e(f"s_add_u32 s{S_T0}, s{S_T0}, s{S_XC}"); e(f"v_add_u32 v{a}, s{S_T0}, v{u}")
        e(f"v_lshlrev_b32 v{u}, 6, v{t}")
        e(f"s_add_u32 s{S_T0}, s{S_T1}, s{S_XC}"); e(f"v_add_u32 v{b}, s{S_T0}, v{u}")
        e("s_mov_b32 vcc_lo, 0x00000f00"); e("s_mov_b32 vcc_hi, 0"); e(f"v_cndmask_b32 v{a}, v{a}, v{b}, vcc")
        e("s_mov_b32 vcc_lo, 0x00ff0000"); e(f"v_cndmask_b32 v{a}, v{a}, v{c}, vcc")
    else: e(f"v_mov_b32 v{a}, v{c}")
    e(f"v_bfe_u32 v{u}, v{L}, 3, 2"); e(f"v_lshlrev_b32 v{u}, 6, v{u}"); e(f"v_add_u32 v{c}, v{c}, v{u}")
    e("s_mov_b32 vcc_lo, 0"); e("s_mov_b32 vcc_hi, -1"); e(f"v_cndmask_b32 v{a}, v{a}, v{c}, vcc")
    e(f"v_lshlrev_b32 v{TO}, 7, v{a}")

def cw_load_tiles(e, o, base):
    R = NS(voffK=1, voffX=2, voffY=3)
    for T in range(CW_TILES):
        kv_soff(e, base, T)
        for s in range(3): ld_k(e, R, vr(CW_K + 12 * T + 4 * s, 4), s, ('K', T, s), o)
    for T in range(CW_TILES):
        kv_soff(e, base, T)
        for w in range(3): ld_v(e, R, vr(CW_V + 12 * T + 4 * w, 4), w, ('V', T, w), o)

def chain_wave(e, o, st, local):
    fl = "" if local else "sc1"
    abort = "L_abort"
    R = NS(vlds=V_L16, voffK=1, voffX=2, voffY=3, sel=V_SEL, qA=32, D=44, sc=56, tmp=57, vpw=62, acc=32, A=44, pp=52, vpp=63, vm=60, vl=61, vlt=59)
    instance_offsets(e, [0, 1], pub_live=[2], q_live=[0, 1, 2])
    stage_Q(e, fl, R3_REG['P'])
    stage_GU(e, fl, R2_REG['P'] * RG - 1024, with_stats=False)
    st("p.pub")
    emit_resets(e, fl)
    st("reset")
    tr_block(e, [(wo_frag, 5, 160, ST_WO, (0, 32, 64, 96, 128, 160)), (wd_frag, 5, 160, ST_WD, (0, 32))])
    GA = CW_K
    e(f"v_and_b32 v{V_T}, 31, v{V_LANE}"); e(f"v_lshlrev_b32 v{V_T}, 4, v{V_T}")
    selmask(e, W0 + 40, V_T, rows_mask([0, 1], 24))
    sr = list(range(10, 18))
    for k, reg in enumerate((4, 5, 6, R2_REG['P'])):
        e(f"s_add_u32 s{sr[2*k]}, s{S_RGRP}, {reg*RG}"); e(f"s_add_u32 s{sr[2*k+1]}, s{sr[2*k]}, 4096")
    loads = []
    for row in range(3):
        loads += [(GA + 32 * row + 4 * k, V_R, sr[2*row + (k >= 4)], (k % 4) * 1024) for k in range(8)]
    loads += [(W0 + 32, V_ML, sr[0], 0), (W0 + 36, V_ML, sr[2], 0)]
    loads += [(W0 + 4 * k, W0 + 40, sr[6 + (k >= 4)], (k % 4) * 1024) for k in range(8)]
    poll(e, o, loads, abort, sleep=o.p_sleep)
    token_store(e, TOK2, 0)
    st("p.gather")
    sum_loads(e, 8, GA + 64)
    for rr in range(4): e(f"v_mov_b32 v{V_CSQ+rr}, v{GA+64+rr}")
    sum_loads(e, 8, W0)
    for rr in range(4): e(f"v_mov_b32 v{V_CSG+rr}, v{W0+rr}")
    for row in range(2):
        q_consume(e, GA + 32 * row, W0 + 32 + 4 * row, row)
    st("q1")
    def load_tiles(base): cw_load_tiles(e, o, base)
    load_tiles(S_KV0)
    instance_offsets(e, [0])
    TO, TD = W0 + 38, W0 + 36
    tok2_offsets(e, TO, W0 + 2)
    tmask = 0x00000fff if o.split_tok else (0xffffffff00ff0fff if o.direct else 0x00ff0fff)
    def first_pass():
        e.vmq.append("tok2")
        e.lg_all()
        st("pro_done")
        e("s_barrier")
        if "stopA" in o.exp: e("s_branch L_done")
        def kw(T):
            if T >= 0: e.vm_wait(('K', T, 2))
        def vw(T, w): e.vm_wait(('V', T, w))
        attn_pass(e, R, CW_TILES, 0, Kf, Vf, S_PB, 0, k_wait=kw, v_wait=vw)
    Kf = lambda T, s: vr(CW_K + 12 * T + 4 * s, 4)
    Vf = lambda T, w: vr(CW_V + 12 * T + 4 * w, 4)
    token_gather(e, o, TOK2, TO, tmask, sleep=o.t_sleep, dst=TD, between=first_pass)
    e("s_mov_b64 exec, -1")
    st("p.tok2g")
    e("s_barrier")
    st("bar2")
    parts = [PART + 1536 * w for w in range(4)]
    combine_publish(e, fl, parts, ML, R1_REG[0])
    st("c0.cmb")
    sv = o.preR; o.preR = sv + o.preR0
    hop_R1(e, o, R1_REG[0], 0, abort)
    o.preR = sv
    chain(e, o, fl, 0, [0], abort, st)
    st("chain0")
    e("s_barrier")
    attn_pass(e, R, CW_TILES, 0, Kf, Vf, S_PB, 32)
    e("s_barrier")
    parts_early = [PART] + [LDS_SW * s + 48 * 1024 for s in range(3)]
    combine_publish(e, fl, parts_early, ML + 32, R1_REG['1a'])
    load_tiles(S_KV1)
    instance_offsets(e, LIVE[1])
    hop_R1(e, o, R1_REG['1a'], 0, abort)
    e.vmq = []
    attn_pass(e, R, CW_TILES, 1, Kf, Vf, S_PB, 0)
    e("s_barrier")
    st("bar6")
    combine_publish(e, fl, parts, ML, R1_REG['1b'])
    st("c1.cmb")
    hop_R1(e, o, R1_REG['1b'], 1, abort)
    chain(e, o, fl, 1, [0, 1], abort, st)
    st("chain1")
    e("s_barrier")
    attn_pass(e, R, CW_TILES, 1, Kf, Vf, S_PB, 0)
    instance_offsets(e, LIVE[2])
    e("s_barrier")
    st("bar8")
    combine_publish(e, fl, parts, ML, R1_REG[2])
    st("c2.cmb")
    hop_R1(e, o, R1_REG[2], 1, abort)
    chain(e, o, fl, 2, [1], abort, st)
    st("chain2")
    e("s_branch L_done")

def chain_wave_setup(e, o, st):
    L = V_LANE
    if o.prio: e(f"s_setprio {o.prio}")
    lane_id(e, L)
    e(f"v_mov_b32 v{V_OOB}, 0x{OOB:08x}")
    e(f"s_lshl_b32 s{S_RGRP}, s{S_H}, 13"); e(f"s_lshl_b32 s{S_T0}, s{S_J}, 10"); e(f"s_add_u32 s{S_ROWN}, s{S_RGRP}, s{S_T0}")
    e(f"s_lshl_b32 s{S_LGRP}, s{S_XC}, 3"); e(f"s_add_u32 s{S_LGRP}, s{S_LGRP}, s{S_J}"); e(f"s_lshl_b32 s{S_LGRP}, s{S_LGRP}, 12")
    e(f"s_lshl_b32 s{S_T0}, s{S_HQ}, 10"); e(f"s_add_u32 s{S_LOWN}, s{S_LGRP}, s{S_T0}")
    e(f"s_lshl_b32 s{S_GGRP}, s{S_J}, 13"); e(f"s_lshl_b32 s{S_T0}, s{S_XC}, 10"); e(f"s_add_u32 s{S_GOWN}, s{S_GGRP}, s{S_T0}")
    late_common(e)
    if "nocw" in o.exp:
        e("s_barrier")
        st("bar1x")
        e("s_branch L_done")
    e(f"v_lshlrev_b32 v{V_L16}, 4, v{L}")
    selmask(e, V_R, V_L16, mask64(range(49)))
    e(f"s_load_dword s{S_TAG}, s[{S_WS}:{S_WS+1}], {EPOCH_OFF}")
    if "noPrst" not in o.exp: emit_resets_P(e)
    e(f"s_getreg_b32 s{S_T2}, hwreg(HW_REG_XCC_ID)"); e(f"s_and_b32 s{S_T2}, s{S_T2}, 0xf")
    make_srd(e, SRD_T, S_X, 2560)
    e(f"v_and_b32 v{V_T}, 31, v{L}"); e(f"v_lshlrev_b32 v{V_T}, 3, v{V_T}")
    e(f"v_lshrrev_b32 v{V_T+1}, 5, v{L}"); e(f"v_mul_u32_u24 v{V_T+1}, 1280, v{V_T+1}"); e(f"v_add_u32 v{V_T}, v{V_T}, v{V_T+1}")
    selmask(e, V_T, V_T, rows_mask([0, 1], 20))
    e(f"s_mul_i32 s{S_T0}, s{S_J}, 160")
    e.vm(f"buffer_load_dwordx2 {vr(V_XR,2)}, v{V_T}, s[{SRD_T}:{SRD_T+3}], s{S_T0} offen", "x")
    e(f"s_add_u32 s{S_KV1}, s{S_KV0}, {BATCH_STRIDE}")
    R = NS(voffK=1, voffX=2, voffY=3, sel=V_SEL)
    attn_selectors(e, R, L, W0)
    n, g, x = W0, W0 + 1, W0 + 2
    e(f"v_mov_b32 v{W0+3}, v{V_L16}"); selmask(e, V_L16, W0 + 3, mask64(range(48)), other=0)
    e(f"v_and_b32 v{n}, 15, v{L}"); e(f"v_lshrrev_b32 v{g}, 4, v{L}")
    e(f"v_min_u32 v{x}, 1, v{n}")
    e(f"v_mul_u32_u24 v{V_BO}, 384, v{x}"); e(f"v_lshl_add_u32 v{V_BO}, v{g}, 4, v{V_BO}"); e(f"v_add_u32 v{V_BO}, {ACT_O}, v{V_BO}")
    e(f"v_lshlrev_b32 v{V_BH}, 7, v{x}"); e(f"v_lshl_add_u32 v{V_BH8}, v{g}, 3, v{V_BH}"); e(f"v_add_u32 v{V_BH8}, {ACT_H+64}, v{V_BH8}")
    e(f"v_lshl_add_u32 v{V_BH}, v{g}, 4, v{V_BH}"); e(f"v_add_u32 v{V_BH}, {ACT_H}, v{V_BH}")
    e(f"v_min_u32 v{x}, 2, v{n}")
    e(f"v_mul_u32_u24 v{V_BX}, 192, v{x}"); e(f"v_lshl_add_u32 v{V_BX8}, v{g}, 3, v{V_BX}"); e(f"v_add_u32 v{V_BX8}, {ACT_X+128}, v{V_BX8}")
    e(f"v_lshl_add_u32 v{V_BX}, v{g}, 4, v{V_BX}"); e(f"v_add_u32 v{V_BX}, {ACT_X}, v{V_BX}")
    e(f"v_subrev_u32 v{x}, 1, v{n}"); e(f"v_min_u32 v{x}, 2, v{x}")
    e(f"v_mul_u32_u24 v{V_AS}, 192, v{x}"); e(f"v_lshl_add_u32 v{V_AS8}, v{g}, 3, v{V_AS}"); e(f"v_add_u32 v{V_AS8}, {ACT_X+128}, v{V_AS8}")
    e(f"v_lshl_add_u32 v{V_AS}, v{g}, 4, v{V_AS}"); e(f"v_add_u32 v{V_AS}, {ACT_X}, v{V_AS}")
    e(f"v_lshlrev_b32 v{x}, 3, v{L}"); e(f"v_add_u32 v{x}, {SB}, v{x}"); selmask(e, V_W8, x, mask64(range(48)), other=SB+2560)
    e(f"v_and_b32 v{n}, 31, v{L}"); e(f"v_lshrrev_b32 v{g}, 5, v{L}")
    e(f"v_mul_u32_u24 v{x}, 192, v{g}"); e(f"v_lshl_add_u32 v{x}, v{n}, 3, v{x}"); e(f"v_add_u32 v{x}, {ACT_X}, v{x}")
    selmask(e, V_WX, x, rows_mask([0, 1], 20), other=DUMMY)
    e(f"v_lshlrev_b32 v{x}, 7, v{g}"); e(f"v_lshl_add_u32 v{x}, v{n}, 2, v{x}"); e(f"v_add_u32 v{x}, {ACT_H}, v{x}")
    selmask(e, V_WH, x, rows_mask([0, 1], 24), other=DUMMY)
    e(f"v_and_b32 v{x}, 7, v{L}"); e(f"v_lshlrev_b32 v{x}, 10, v{x}"); e(f"v_add_u32 v{V_ML}, 768, v{x}")
    m = mask64([16 * a + 1 for a in range(4)])
    e(f"s_mov_b32 s{S_N1}, 0x{m & 0xffffffff:08x}"); e(f"s_mov_b32 s{S_N1+1}, 0x{m >> 32:08x}")
    e("s_waitcnt lgkmcnt(0)")
    e(f"s_add_u32 s{S_TAG}, s{S_TAG}, 1")
    e.vm_all(force=True)
    token_store(e, TOK1, f"s{S_T2}")
    st("p.tok1")
    TO, TD = W0 + 38, W0 + 36
    e(f"v_lshlrev_b32 v{TO}, 10, v{L}"); e(f"s_lshl_b32 s{S_T0}, s{S_XC}, 7"); e(f"v_add_u32 v{TO}, s{S_T0}, v{TO}")
    token_gather(e, o, TOK1, TO, 0xffffffff, sleep=o.t_sleep, dst=TD, between=lambda: prologue_weights(e, o, st))
    e(f"v_cmp_ne_u32 vcc, s{S_T2}, v{TD+1}")
    e("s_mov_b64 exec, -1")
    st("p.mode")
    e("s_nop 3")
    e("s_cmp_lg_u32 vcc_lo, 0")

def late_common(e):
    make_srd(e, SRD_V, S_V, KV_BYTES); make_srd(e, SRD_WS, S_WS, WS_REC)
    e(f"s_mov_b32 s{S_C}, {lit(CSCALE)}")
    e(f"s_mov_b32 s{S_HI32}, 0"); e(f"s_mov_b32 s{S_HI32+1}, -1")
    e(f"s_mul_i32 s{S_PB}, s{S_WAVE}, 1536"); e(f"s_add_u32 s{S_PB}, s{S_PB}, {PART}")
    e(f"s_lshl_b32 s{S_MLB}, s{S_WAVE}, 3"); e(f"s_add_u32 s{S_MLB}, s{S_MLB}, {ML}")

def generate(o):
    Stamps.select = o.stampset.split(",") if o.stampset else None
    o_direct[0] = o.direct; o_direct[1] = o.direct0
    LIVE.update({1: [1], 2: [0, 1]} if o.late_b0 else {1: [0, 1], 2: [1]})
    o_packed[0] = bool(o.packed)
    o_exp[0] = o.exp
    o_dset.clear()
    if o.packed: o_dset.update({(int(c[0]), int(c[1])) for c in o.packed.split(",")})
    if o.direct: o_dset.add((2, 1))
    if o.direct0: o_dset.add((2, 0))
    e = Emit()
    e("s_cmp_ge_u32 s2, 256"); e("s_cbranch_scc1 L_done")
    e("s_load_dwordx16 s[4:19], s[0:1], 0"); e("s_load_dwordx8 s[20:27], s[0:1], 64")
    e("v_lshrrev_b32 v1, 6, v0")
    e(f"s_and_b32 s{S_XC}, s2, 7"); e(f"s_lshr_b32 s{S_HQ}, s2, 6")
    e(f"v_readfirstlane_b32 s{S_WAVE}, v1")
    e(f"s_lshr_b32 s{S_J}, s2, 3"); e(f"s_and_b32 s{S_J}, s{S_J}, 7")
    e(f"s_lshl_b32 s{S_H}, s{S_XC}, 2"); e(f"s_add_u32 s{S_H}, s{S_H}, s{S_HQ}")
    e(f"s_mul_i32 s{S_KV0}, s{S_H}, {HEAD_STRIDE}"); e(f"s_mul_i32 s{S_T0}, s{S_J}, {CHUNK_STRIDE}"); e(f"s_add_u32 s{S_KV0}, s{S_KV0}, s{S_T0}")
    e(f"s_add_u32 s{S_T0}, s{S_WAVE}, 3"); e(f"s_and_b32 s{S_T0}, s{S_T0}, 3")
    e(f"s_mul_i32 s{S_T1}, s{S_T0}, {SW_TILES*TILE_B}"); e(f"s_add_u32 s{S_KV0}, s{S_KV0}, s{S_T1}")
    lane_id(e, 8)
    e("v_mov_b32 v14, 0"); e(f"v_mov_b32 v15, {WFLAG}"); e("v_lshl_add_u32 v15, v8, 2, v15")
    e("s_mov_b64 exec, 15")
    e("ds_write_b32 v15, v14")
    e("s_mov_b64 exec, -1")
    attn_load_offsets(e, NS(voffK=1, voffX=2, voffY=3), 8, 10)
    e("s_waitcnt lgkmcnt(0)")
    e("s_barrier")
    make_srd(e, SRD_K, S_K, KV_BYTES)
    e(f"s_cmp_eq_u32 s{S_WAVE}, 0"); e("s_cbranch_scc1 L_chain")
    st_s = Stamps(e, o.stamps); st_s("start")
    stream_wave(e, o, st_s)
    e.label("L_chain")
    e.vmq = []; e.lgq = []
    st_c = Stamps(e, o.stamps); st_c("start")
    chain_wave_setup(e, o, st_c)
    names = {}
    if o.force_global: e("s_branch L_global")
    else: e("s_cbranch_scc1 L_global")
    base_names = list(st_c.names)
    sv = (list(e.vmq), list(e.lgq))
    chain_wave(e, o, st_c, True)
    names['cw'] = list(st_c.names); names['sw'] = list(st_s.names)
    e.label("L_global")
    e.vmq, e.lgq = sv
    st_g = Stamps(e, o.stamps); st_g.names = list(base_names)
    chain_wave(e, o, st_g, False)
    e.label("L_abort")
    e.label("L_done")
    if o.stamps:
        e("s_cmp_ge_u32 s2, 256"); e("s_cbranch_scc1 L_exit")
        fl = Stamps(e, True); fl.names = names['cw']; fl.flush()
        e.label("L_exit")
    e("s_endpgm")
    return e, names

HEAD = """; Fused two-layer decode step (attention over a cached K/V + ReGLU FFN, twice), one persistent launch.
; @launch grid=(256,1,1) block=(256,1,1) lds=%d
;
.amdgcn_target "amdgcn-amd-amdhsa--gfx950"
.text
.globl %s
.p2align 8
.type %s,@function
%s:
"""
FOOT = """
.section .rodata,"a"
.p2align 6
.amdhsa_kernel %s
  .amdhsa_next_free_vgpr 512
  .amdhsa_next_free_sgpr 102
  .amdhsa_accum_offset 256
  .amdhsa_group_segment_fixed_size 0
  .amdhsa_kernarg_size 96
  .amdhsa_user_sgpr_count 2
  .amdhsa_user_sgpr_kernarg_segment_ptr 1
  .amdhsa_system_sgpr_workgroup_id_x 1
  .amdhsa_float_denorm_mode_32 3
.end_amdhsa_kernel
"""
def build_text(o):
    e, names = generate(o)
    return HEAD % (LDS_TOTAL, NAME, NAME, NAME) + e.text() + "\n" + FOOT % NAME, names, e

if __name__ == "__main__":
    o = Opt()
    for a in sys.argv[2:]:
        k, v = a.split("=")
        cur = getattr(o, k)
        setattr(o, k, (v not in ("0", "False")) if isinstance(cur, bool) else type(cur)(v))
    txt, names, e = build_text(o)
    open(sys.argv[1], "w").write(txt)
    print("instructions:", e.ninst, "nops:", e.nops, names)
```

```python
import sys, struct
from types import SimpleNamespace as NS
from emit import Emit, vr

NAME = "interleave_layers__mha_block_cached__glu_gated_reglu__decode_kernel"

class Opt:
    NA = 24
    NA_BAR = 120
    NB = 8
    NB1 = 8
    go_at = "G1"
    NC = 56
    NA0 = 24
    NA0N = 0
    light = False
    pf = 0
    pf_all = False
    NF = 12
    NW = 24
    stamps = False
    poll_limit = 400000
    kvflags = "nt"
    wflags = "nt"
    woflags = "nt"
    wgflags = "nt"
    stampset = ""
    p_sleep = 8
    mb_sleep = 0
    exp = ""
    t_sleep = 0
    early = False
    wb = 0
    prio = 0
    late_rst = False
    preGn = 0
    packed = "10,11"
    preF1 = 16
    preP0 = 0
    preP1 = 0
    direct0 = True
    preF0 = 16
    direct = True
    preF = 0
    look = 2
    NAe = 14
    NCe = 24
    late_b0 = True
    split_tok = True
    rotA = 0
    rotB = 0
    tlb = False
    pf_wave = 3
    preE = True
    preR0 = 0
    preL0 = 0
    preG0 = 0
    preR = 0
    preL = 0
    preG = 6
    flag_sleep = 0
    force_global = False

KV_BYTES = 100663296
BATCH_STRIDE = 50331648
HEAD_STRIDE = 1572864
CHUNK_STRIDE = 196608
TILE_B = 3072
SW_TILES, CW_TILES = 20, 4
OOB = 0x7fff0000

LDS_SW = 51200
SB = 153600
PART = SB
ML = SB + 6144
QARR = SB + 6208
ACT_O = SB + 6976
ACT_X = SB + 7744
ACT_H = SB + 8320
DUMMY = SB + 8576
WFLAG = SB + 10208
LDS_TOTAL = 163840
ST_WQ, ST_WG, ST_WU, ST_WO, ST_WD = 0, 30720, 38400, 51200, 81920

RG = 262144
R1_REG = {0: 0, '1a': 1, '1b': 2, 2: 3}
R3_REG = {'P': 4, 0: 7, 1: 8}
R2_REG = {'P': 9, 0: 10, 1: 11, 2: 12}
L_REG = lambda inst, k: 13 + 2 * inst + k
G_OFF = lambda inst, k: 19 * RG + (2 * inst + k) * 65536
STAMP_OFF = 22 * RG
WS_REC = 24 * RG

CSCALE = (192 ** -0.5) * 1.4426950408889634
EPS = 1e-5
def f2u(x): return struct.unpack("<I", struct.pack("<f", x))[0]
def lit(x): return "0x%08x" % f2u(x)
def mask64(lanes):
    m = 0
    for l in lanes: m |= 1 << l
    return m
def set_exec(e, m):
    if m == (1 << 64) - 1: e("s_mov_b64 exec, -1"); return
    e(f"s_mov_b32 exec_lo, 0x{m & 0xffffffff:08x}")
    e(f"s_mov_b32 exec_hi, 0x{m >> 32:08x}")

S_X, S_K, S_V, S_WQ, S_WO, S_BX, S_WG, S_WU, S_WD, S_OUT, S_DBG, S_WS = 4, 6, 8, 10, 12, 14, 16, 18, 20, 22, 24, 26
S_XC, S_HQ, S_J, S_H = 28, 29, 30, 31
SRD_K, SRD_V = 32, 36
S_KV0, S_KV1, S_SOFF, S_LDSB = 40, 41, 42, 43
SRD_T = 44
SRD_WS = 48
SRD_DBG = 52
S_C = 56
S_ROWN, S_RGRP, S_LOWN, S_LGRP, S_GOWN, S_GGRP = 57, 58, 59, 60, 61, 62
S_A, S_B, S_CNT, S_T0, S_T1, S_T2 = 63, 64, 65, 66, 67, 68
S_PB = 69
S_HI32 = 70
S_MLB = 72
S_GA, S_GB = 100, 101
S_WAVE = 3
S_STAMP = 76

def make_srd(e, srd, ptr, nbytes):
    e(f"s_mov_b32 s{srd}, s{ptr}")
    e(f"s_and_b32 s{srd+1}, s{ptr+1}, 0xffff")
    e(f"s_mov_b32 s{srd+2}, {nbytes}")
    e(f"s_mov_b32 s{srd+3}, 0x20000")

class Stamps:
    select = None
    def __init__(self, e, on): self.e, self.on, self.names = e, on, []
    def __call__(self, name):
        if not self.on: return
        if Stamps.select is not None and not any(name.startswith(p) for p in Stamps.select): return
        if Stamps.select is None and "." in name: return
        n = len(self.names); assert n < 12, "too many stamps"
        self.e(f"s_memrealtime s[{S_STAMP+2*n}:{S_STAMP+2*n+1}]")
        self.e.lg_all(force=True)
        self.names.append(name)
    def rounds(self, name):
        if not self.on: return
        if Stamps.select is None or not any(name.startswith(p) for p in Stamps.select): return
        n = len(self.names); assert n < 12
        self.e(f"s_mov_b32 s{S_STAMP+2*n}, s{S_CNT}"); self.e(f"s_mov_b32 s{S_STAMP+2*n+1}, 0")
        self.names.append(name)
    def flush(self):
        if not self.on: return
        e = self.e
        e("s_mov_b64 exec, 1")
        e(f"s_lshl_b32 s{S_T0}, s2, 2"); e(f"s_add_u32 s{S_T0}, s{S_T0}, s{S_WAVE}"); e(f"s_lshl_b32 s{S_T0}, s{S_T0}, 7")
        e(f"s_add_u32 s{S_T0}, s{S_T0}, {STAMP_OFF}")
        e("v_mov_b32 v0, 0")
        for i in range(len(self.names)):
            e(f"v_mov_b32 v2, s{S_STAMP+2*i}"); e(f"v_mov_b32 v3, s{S_STAMP+2*i+1}")
            e(f"buffer_store_dwordx2 v[2:3], v0, s[{SRD_WS}:{SRD_WS+3}], s{S_T0} offen offset:{8*i}")
            e("s_waitcnt vmcnt(0)")

def lane_id(e, dst):
    e(f"v_mbcnt_lo_u32_b32 {vr(dst)}, -1, 0")
    e(f"v_mbcnt_hi_u32_b32 {vr(dst)}, -1, {vr(dst)}")

def attn_load_offsets(e, R, lane, t):
    i, g, u, w = t, t + 1, t + 2, t + 3
    e(f"v_and_b32 {vr(i)}, 15, {vr(lane)}")
    e(f"v_lshrrev_b32 {vr(g)}, 4, {vr(lane)}")
    e(f"v_and_b32 {vr(u)}, 7, {vr(i)}")
    e(f"v_lshrrev_b32 {vr(w)}, 3, {vr(i)}")
    e(f"v_mul_u32_u24 {vr(R.voffK)}, 384, {vr(u)}")
    e(f"v_lshl_add_u32 {vr(R.voffK)}, {vr(g)}, 4, {vr(R.voffK)}")
    e(f"v_lshl_add_u32 {vr(R.voffK)}, {vr(w)}, 6, {vr(R.voffK)}")
    e(f"v_mul_u32_u24 {vr(R.voffX)}, 768, {vr(g)}")
    e(f"v_mul_u32_u24 {vr(w)}, 384, {vr(w)}")
    e(f"v_add_u32 {vr(R.voffY)}, {vr(R.voffX)}, {vr(w)}")
    e(f"v_lshl_add_u32 {vr(R.voffY)}, {vr(u)}, 4, {vr(R.voffY)}")
    e(f"v_add_u32 {vr(R.voffY)}, 256, {vr(R.voffY)}")
    e(f"v_lshl_add_u32 {vr(R.voffX)}, {vr(i)}, 4, {vr(R.voffX)}")

def attn_selectors(e, R, lane, t):
    i, u, lo, hi = t, t + 1, t + 2, t + 3
    e(f"v_and_b32 {vr(i)}, 15, {vr(lane)}")
    e(f"v_lshrrev_b32 {vr(u)}, 3, {vr(i)}")
    e(f"v_mul_u32_u24 {vr(u)}, 0x202, {vr(u)}")
    e(f"v_add_u32 {vr(u)}, 0x100, {vr(u)}")
    e(f"v_or_b32 {vr(lo)}, 0x0c0c0000, {vr(u)}")
    e(f"v_lshlrev_b32 {vr(hi)}, 16, {vr(u)}")
    e(f"v_or_b32 {vr(hi)}, 0x0c0c, {vr(hi)}")
    e(f"v_and_b32 {vr(u)}, 1, {vr(i)}")
    e(f"v_cmp_eq_u32 vcc, 1, {vr(u)}")
    e(f"v_cndmask_b32 {vr(lo)}, {vr(lo)}, {vr(hi)}, vcc")
    e(f"v_bfe_u32 {vr(u)}, {vr(i)}, 1, 2")
    e(f"v_mov_b32 {vr(hi)}, 0x0c0c0c0c")
    for r in range(4):
        e(f"v_cmp_eq_u32 vcc, {r}, {vr(u)}")
        e(f"v_cndmask_b32 {vr(R.sel+r)}, {vr(hi)}, {vr(lo)}, vcc")

def allreduce_list(reg, tmp, op):
    out = [f"v_{op}_f32_dpp {vr(reg)}, {vr(reg)}, {vr(reg)} row_ror:{k} row_mask:0xf bank_mask:0xf" for k in (8, 4, 2, 1)]
    out += [f"v_mov_b32 {vr(tmp)}, {vr(reg)}", f"v_permlane16_swap_b32 {vr(reg)}, {vr(tmp)}", f"v_{op}_f32 {vr(reg)}, {vr(reg)}, {vr(tmp)}",
            f"v_mov_b32 {vr(tmp)}, {vr(reg)}", f"v_permlane32_swap_b32 {vr(reg)}, {vr(tmp)}", f"v_{op}_f32 {vr(reg)}, {vr(reg)}, {vr(tmp)}"]
    return out

def allreduce(e, reg, tmp, op):
    for k in (8, 4, 2, 1):
        e(f"v_{op}_f32_dpp {vr(reg)}, {vr(reg)}, {vr(reg)} row_ror:{k} row_mask:0xf bank_mask:0xf")
    e(f"v_mov_b32 {vr(tmp)}, {vr(reg)}")
    e(f"v_permlane16_swap_b32 {vr(reg)}, {vr(tmp)}")
    e(f"v_{op}_f32 {vr(reg)}, {vr(reg)}, {vr(tmp)}")
    e(f"v_mov_b32 {vr(tmp)}, {vr(reg)}")
    e(f"v_permlane32_swap_b32 {vr(reg)}, {vr(tmp)}")
    e(f"v_{op}_f32 {vr(reg)}, {vr(reg)}, {vr(tmp)}")

def attn_pre(e, R, ntiles):
    L = R.tmp
    lane_id(e, L)
    e(f"v_and_b32 {vr(L+1)}, 1, {vr(L)}")
    e(f"v_lshrrev_b32 {vr(L+2)}, 4, {vr(L)}")
    e(f"v_lshlrev_b32 {vr(L+2)}, 4, {vr(L+2)}")
    e(f"v_lshl_add_u32 {vr(L+1)}, {vr(L+1)}, 6, {vr(L+2)}")
    e(f"v_add_u32 {vr(L+1)}, {QARR}, {vr(L+1)}")
    e(f"v_add_u32 {vr(R.vpp)}, s{S_PB}, {vr(L+2)}")
    W = R.vpw; t = L + 2
    e(f"v_lshrrev_b32 {vr(t)}, 5, {vr(L)}"); e(f"v_lshlrev_b32 {vr(W)}, 6, {vr(t)}")
    e(f"v_bfe_u32 {vr(t)}, {vr(L)}, 1, 2"); e(f"v_lshl_add_u32 {vr(W)}, {vr(t)}, 4, {vr(W)}")
    e(f"v_bfe_u32 {vr(t)}, {vr(L)}, 3, 2"); e(f"v_lshl_add_u32 {vr(W)}, {vr(t)}, 2, {vr(W)}")
    e(f"v_and_b32 {vr(t)}, 1, {vr(L)}"); e(f"v_lshl_add_u32 {vr(W)}, {vr(t)}, 1, {vr(W)}")
    e(f"v_add_u32 {vr(W)}, s{S_PB}, {vr(W)}")
    nsc = (ntiles + 7) // 8
    for r in range(nsc):
        if (r + 1) * 8 > ntiles: e(f"v_mov_b32 {vr(R.sc+r)}, 0xff800000")

def attn_pass(e, R, ntiles, qrow, Kfrag, Vfrag, part_sreg, ml_off, k_wait=None, qk_hook=None, mid_hook=None,
              v_wait=None, pv_hook=None, stage=None, pre_done=False, mark=None, look=2):
    L = R.tmp
    if not pre_done: attn_pre(e, R, ntiles)
    for s in range(3):
        e.lg(f"ds_read_b128 {vr(R.qA+4*s,4)}, {vr(L+1)} offset:{qrow*384 + 128*s}", ("q", s))
    W = R.vpw
    nsc = (ntiles + 7) // 8
    stg = {}
    def stage_k(T):
        if T >= ntiles: return
        for s in range(3):
            f = Kfrag(T, s)
            if isinstance(f, tuple):
                reg = stage[(3 * T + s) % len(stage)]
                e.lg(f"ds_read_b128 {vr(reg,4)}, {vr(R.vlds)} offset:{f[1]}", ("k", T, s))
                stg[(T, s)] = vr(reg, 4)
    LOOK = look
    if k_wait: k_wait(-1)
    for T in range(min(LOOK, ntiles)): stage_k(T)
    e.lg_wait(("q", 2))
    def dpp_add(T):
        D = R.D + 4 * (T % 3)
        dst = vr(R.sc + (T >> 3)); rm = 1 << ((T >> 1) & 3)
        if T % 2 == 0: e(f"v_add_f32_dpp {dst}, {vr(D+1)}, {vr(D)} row_ror:8 row_mask:0x{rm:x} bank_mask:0x3")
        else:          e(f"v_add_f32_dpp {dst}, {vr(D)}, {vr(D+1)} row_ror:8 row_mask:0x{rm:x} bank_mask:0xc")
    for T in range(ntiles):
        if k_wait: k_wait(T)
        D = vr(R.D + 4 * (T % 3), 4)
        for s in range(3):
            f = Kfrag(T, s)
            if isinstance(f, tuple):
                e.lg_wait(("k", T, s)); f = stg[(T, s)]
            e(f"v_mfma_f32_16x16x32_bf16 {D}, {vr(R.qA+4*s,4)}, {f}, {'0' if s == 0 else D}")
        stage_k(T + LOOK)
        if qk_hook: qk_hook(T)
        if T >= 2: dpp_add(T - 2)
    for T in range(max(0, ntiles - 2), ntiles): dpp_add(T)
    if mark: mark("qk")
    t0, t1 = R.D, R.D + 1
    if nsc == 1: e(f"v_mov_b32 {vr(t0)}, {vr(R.sc)}")
    elif nsc == 2: e(f"v_max_f32 {vr(t0)}, {vr(R.sc)}, {vr(R.sc+1)}")
    else: e(f"v_max3_f32 {vr(t0)}, {vr(R.sc)}, {vr(R.sc+1)}, {vr(R.sc+2)}")
    allreduce(e, t0, t1, "max")
    e(f"v_mul_f32 {vr(R.vm)}, s{S_C}, {vr(t0)}")
    for r in range(nsc): e(f"v_fma_f32 {vr(R.sc+r)}, {vr(R.sc+r)}, s{S_C}, -{vr(R.vm)}")
    for r in range(nsc): e(f"v_exp_f32 {vr(R.sc+r)}, {vr(R.sc+r)}")
    for r in range(nsc): e(f"v_cvt_pk_bf16_f32 {vr(R.D+2+r)}, {vr(R.sc+r)}, {vr(R.sc+r)}")
    for r in range(nsc): e.lg(f"ds_write_b16 {vr(W)}, {vr(R.D+2+r)} offset:{128*r}", ("pw", r))
    nq = (ntiles + 3) // 4
    ppreg = lambda q: R.pp + 4 * (q % 2)
    if nsc == 1: e(f"v_mov_b32 {vr(R.vl)}, {vr(R.sc)}")
    else:
        e(f"v_add_f32 {vr(R.vl)}, {vr(R.sc)}, {vr(R.sc+1)}")
        if nsc == 3: e(f"v_add_f32 {vr(R.vl)}, {vr(R.vl)}, {vr(R.sc+2)}")
    e.lg(f"ds_read_b128 {vr(ppreg(0),4)}, {vr(R.vpp)}", ("pp", 0))
    if nq > 1: e.lg(f"ds_read_b128 {vr(ppreg(1),4)}, {vr(R.vpp)} offset:64", ("pp", 1))
    lred = allreduce_list(R.vl, R.vlt, "add")
    if ntiles < 12:
        for ins in lred: e(ins)
        lred = []
    if mid_hook: mid_hook()
    if mark: mark("sm")
    X1, X2, Y = R.acc, R.acc + 4, R.acc + 8
    def build_A(T):
        q = T >> 2
        e.lg_wait(("pp", q))
        A = R.A + 4 * (T % 2); src = vr(ppreg(q) + (T & 3))
        return [f"v_perm_b32 {vr(A+r)}, {src}, {src}, {vr(R.sel+r)}" for r in range(4)]
    for ins in build_A(0): e(ins)
    for T in range(ntiles):
        A = vr(R.A + 4 * (T % 2), 4)
        nxt = build_A(T + 1) if T + 1 < ntiles else []
        if v_wait: v_wait(T, 0)
        e(f"v_mfma_f32_16x16x32_bf16 {vr(X1,4)}, {A}, {Vfrag(T,0)}, {'0' if T == 0 else vr(X1,4)}")
        for ins in nxt[:2]: e(ins)
        if v_wait: v_wait(T, 1)
        e(f"v_mfma_f32_16x16x32_bf16 {vr(X2,4)}, {A}, {Vfrag(T,1)}, {'0' if T == 0 else vr(X2,4)}")
        for ins in nxt[2:]: e(ins)
        if v_wait: v_wait(T, 2)
        e(f"v_mfma_f32_16x16x32_bf16 {vr(Y,4)}, {A}, {Vfrag(T,2)}, {'0' if T == 0 else vr(Y,4)}")
        if (T & 3) == 2 and (T >> 2) + 2 < nq:
            q2 = (T >> 2) + 2
            e.lg(f"ds_read_b128 {vr(ppreg(q2),4)}, {vr(R.vpp)} offset:{64*q2}", ("pp", q2))
        if lred and T >= 1: e(lred.pop(0))
        if pv_hook: pv_hook(T)
    assert not lred
    if mark: mark("pv")
    p = R.pp
    lane_id(e, p)
    e(f"v_and_b32 {vr(p+1)}, 15, {vr(p)}")
    e(f"v_lshrrev_b32 {vr(p+2)}, 4, {vr(p)}")
    e(f"v_and_b32 {vr(p+3)}, 1, {vr(p+2)}")
    e(f"v_lshrrev_b32 {vr(p+2)}, 1, {vr(p+2)}")
    e(f"v_mul_u32_u24 {vr(p+2)}, 768, {vr(p+2)}")
    e(f"v_lshl_add_u32 {vr(p+2)}, {vr(p+3)}, 4, {vr(p+2)}")
    e(f"v_add_u32 {vr(p+2)}, s{part_sreg}, {vr(p+2)}")
    e(f"v_lshl_add_u32 {vr(p+4)}, {vr(p+1)}, 5, {vr(p+2)}")
    e(f"v_and_b32 {vr(p+1)}, 7, {vr(p+1)}")
    e(f"v_lshl_add_u32 {vr(p+5)}, {vr(p+1)}, 5, {vr(p+2)}")
    e(f"v_mov_b32 {vr(p+6)}, s{S_MLB}")
    e(f"v_mov_b32 {vr(R.A)}, {vr(R.vm)}"); e(f"v_mov_b32 {vr(R.A+1)}, {vr(R.vl)}")
    for r in range(4):
        e(f"v_cndmask_b32 {vr(X1+r)}, {vr(X1+r)}, {vr(X2+r)}, s[{S_HI32}:{S_HI32+1}]")
    e.lg(f"ds_write_b128 {vr(p+4)}, {vr(X1,4)}", "px")
    set_exec(e, 0xFF00FF0000FF00FF)
    e.lg(f"ds_write_b128 {vr(p+5)}, {vr(Y,4)} offset:512", "py")
    e("s_mov_b64 exec, 1")
    e.lg(f"ds_write_b64 {vr(p+6)}, {vr(R.A,2)} offset:{ml_off}", "pm")
    e("s_mov_b64 exec, -1")
    e.lg_all()

S_ROT, S_RT = 74, 75
rot_on = [False]
def kv_soff(e, base_sreg, T):
    if rot_on[0]:
        span = SW_TILES * TILE_B
        e(f"s_add_u32 s{S_SOFF}, s{S_ROT}, {T*TILE_B}")
        e(f"s_cmp_ge_u32 s{S_SOFF}, {span}"); e(f"s_cselect_b32 s{S_RT}, {span}, 0")
        e(f"s_sub_u32 s{S_SOFF}, s{S_SOFF}, s{S_RT}"); e(f"s_add_u32 s{S_SOFF}, s{S_SOFF}, s{base_sreg}")
    else: e(f"s_add_u32 s{S_SOFF}, s{base_sreg}, {T*TILE_B}")
def ld_k(e, R, dst, s, tag, o):
    e.vm(f"buffer_load_dwordx4 {dst}, {vr(R.voffK)}, s[{SRD_K}:{SRD_K+3}], s{S_SOFF} offen offset:{128*s} {o.kvflags}", tag)
def ld_v(e, R, dst, w, tag, o):
    vo = R.voffY if w == 2 else R.voffX
    off = 384 if w == 1 else 0
    e.vm(f"buffer_load_dwordx4 {dst}, {vr(vo)}, s[{SRD_V}:{SRD_V+3}], s{S_SOFF} offen offset:{off} {o.kvflags}", tag)
def dma_k(e, R, slot, s, tag, o):
    e(f"s_add_u32 m0, s{S_LDSB}, {slot*1024 - 128*s + 0}") if slot*1024 - 128*s >= 0 else e(f"s_sub_u32 m0, s{S_LDSB}, {128*s - slot*1024}")
    e.vm(f"buffer_load_dwordx4 {vr(R.voffK)}, s[{SRD_K}:{SRD_K+3}], s{S_SOFF} offen offset:{128*s} {o.kvflags} lds", tag)
def dma_v(e, R, slot, w, tag, o):
    vo = R.voffY if w == 2 else R.voffX
    off = 384 if w == 1 else 0
    e(f"s_add_u32 m0, s{S_LDSB}, {slot*1024 - off}")
    e.vm(f"buffer_load_dwordx4 {vr(vo)}, s[{SRD_V}:{SRD_V+3}], s{S_SOFF} offen offset:{off} {o.kvflags} lds", tag)

def slot_reg(k):
    assert 0 <= k < 118
    return f"a[{4*k}:{4*k+3}]" if k < 64 else f"v[{40+4*(k-64)}:{40+4*(k-64)+3}]"

def weight_dma(e, o):
    L, t, u = 8, 20, 21
    def dma_block(ptr, nbytes, lanes_per_row, magic, shift, nlanes, row_stride, rows_per_instr, ninstr, so, lds0, bar=False, flags=None):
        make_srd(e, SRD_T, ptr, nbytes)
        e(f"v_mul_u32_u24 v{t}, {magic}, v{L}"); e(f"v_lshrrev_b32 v{t}, {shift}, v{t}")
        e(f"v_mul_u32_u24 v{u}, {lanes_per_row}, v{t}"); e(f"v_sub_u32 v{u}, v{L}, v{u}")
        e(f"s_mov_b32 s{S_T1}, {row_stride}")
        e(f"v_mul_lo_u32 v{t}, v{t}, s{S_T1}"); e(f"v_lshl_add_u32 v{t}, v{u}, 4, v{t}")
        rreg, rmul, creg, cmul = so
        e(f"s_mul_i32 s{S_SOFF}, s{rreg}, {rmul*row_stride}")
        e(f"s_mul_i32 s{S_T1}, s{creg}, {cmul}"); e(f"s_add_u32 s{S_SOFF}, s{S_SOFF}, s{S_T1}")
        set_exec(e, mask64(range(nlanes)))
        for i in range(ninstr):
            e(f"s_mov_b32 m0, {lds0 + i*nlanes*16}")
            if i: e(f"s_add_u32 s{S_SOFF}, s{S_SOFF}, {rows_per_instr*row_stride}")
            else: e("s_nop 0")
            e.vm_depth(o.NW - 1)
            e.vm(f"buffer_load_dwordx4 v{t}, s[{SRD_T}:{SRD_T+3}], s{S_SOFF} offen {o.wflags if flags is None else flags} lds", "w")
        e("s_mov_b64 exec, -1")
    l2, l3, end = e.newlabel("w2"), e.newlabel("w3"), e.newlabel("wend")
    e(f"s_cmp_eq_u32 s{S_WAVE}, 2"); e(f"s_cbranch_scc1 {l2}")
    e(f"s_cmp_eq_u32 s{S_WAVE}, 3"); e(f"s_cbranch_scc1 {l3}")
    base_q = list(e.vmq)
    dma_block(S_WQ, 7864320, 24, 43, 10, 48, 12288, 2, 40, (S_J, 80, S_H, 384), ST_WQ, bar=True)
    e(f"s_branch {end}")
    e.label(l2); e.vmq = list(base_q)
    if "nowo" not in o.exp: dma_block(S_WO, 7864320, 10, 103, 10, 60, 1280, 6, 32, (S_H, 192, S_J, 160), ST_WO, bar=True, flags=o.woflags.replace('_', ' '))
    e(f"s_branch {end}")
    e.label(l3); e.vmq = list(base_q)
    dma_block(S_WG, 1966080, 6, 43, 8, 60, 3072, 10, 8, (S_J, 80, S_H, 96), ST_WG, bar=True, flags=o.wgflags.replace('_', ' '))
    dma_block(S_WU, 1966080, 6, 43, 8, 60, 3072, 10, 8, (S_J, 80, S_H, 96), ST_WU, flags=o.wgflags.replace('_', ' '))
    if "nowo" not in o.exp: dma_block(S_WD, 1966080, 10, 103, 10, 60, 1280, 6, 8, (S_H, 48, S_J, 160), ST_WD, flags=o.woflags.replace('_', ' '))
    e.label(end)
    e.vmq = ["w"] * o.NW

S_XPAR = 15
def par_depth(e, n):
    lab = e.newlabel("par")
    e(f"s_cmp_lg_u32 s{S_XPAR}, 0"); e(f"s_cbranch_scc1 {lab}")
    e(f"s_waitcnt vmcnt({n-1})")
    e.label(lab)

def emit_wb(e):
    skip = e.newlabel("nowb")
    e(f"s_cmp_lg_u32 s{S_WAVE}, 1"); e(f"s_cbranch_scc1 {skip}")
    e("s_cmp_ge_u32 s2, 8"); e(f"s_cbranch_scc1 {skip}")
    e("buffer_wbl2 sc1")
    e("s_waitcnt vmcnt(0)")
    e.label(skip)

def stream_wave(e, o, st):
    if o.rotA or o.rotB:
        e(f"s_mul_i32 s{S_ROT}, s2, {o.rotA}"); e(f"s_mul_i32 s{S_RT}, s{S_WAVE}, {o.rotB}"); e(f"s_add_u32 s{S_ROT}, s{S_ROT}, s{S_RT}")
        e(f"s_mul_i32 s{S_RT}, s{S_ROT}, 52429"); e(f"s_lshr_b32 s{S_RT}, s{S_RT}, 20"); e(f"s_mul_i32 s{S_RT}, s{S_RT}, 20")
        e(f"s_sub_u32 s{S_ROT}, s{S_ROT}, s{S_RT}"); e(f"s_mul_i32 s{S_ROT}, s{S_ROT}, {TILE_B}")
        rot_on[0] = True
    _stream_wave(e, o, st)
    rot_on[0] = False

def _stream_wave(e, o, st):
    R = NS(vlds=0, voffK=1, voffX=2, voffY=3, sel=4, qA=8, D=20, sc=32, tmp=20, vpw=35, acc=8, A=20, pp=28, vpp=36, vm=38, vl=39, vlt=37)
    loads = []
    for T in range(SW_TILES):
        for s in range(3): loads.append(('K', T, s))
    for T in range(SW_TILES):
        for w in range(3): loads.append(('V', T, w))
    def k0slot(T, s): return 3 * T + s
    def v0slot(T, w): return 60 + 3 * T + w
    cur = [None]
    def issue0(item):
        kind, T, x = item
        if cur[0] != (kind, T, 0):
            kv_soff(e, S_KV0, T); cur[0] = (kind, T, 0)
        if kind == 'K': ld_k(e, R, slot_reg(k0slot(T, x)), x, ('K0', T, x), o)
        else:
            sl = v0slot(T, x)
            if sl < 118: ld_v(e, R, slot_reg(sl), x, ('V0', T, x), o)
            else: dma_v(e, R, 48 + sl - 118, x, ('V0', T, x), o)
    for item in loads[:o.NF]: issue0(item)
    late_common(e)
    e(f"s_add_u32 s{S_KV1}, s{S_KV0}, {BATCH_STRIDE}")
    e(f"s_sub_u32 s{S_T0}, s{S_WAVE}, 1"); e(f"s_mul_i32 s{S_LDSB}, s{S_T0}, {LDS_SW}")
    if o.pf:
        skip = e.newlabel("nopf")
        e(f"s_cmp_lg_u32 s{S_WAVE}, {o.pf_wave}"); e(f"s_cbranch_scc1 {skip}")
        if not o.pf_all:
            e(f"s_cmp_lg_u32 s{S_J}, 0"); e(f"s_cbranch_scc1 {skip}")
        e(f"s_getpc_b64 s[{SRD_T}:{SRD_T+1}]")
        e.label("L_pc")
        e(f"s_sub_u32 s{SRD_T}, s{SRD_T}, (L_pc - {NAME})"); e(f"s_subb_u32 s{SRD_T+1}, s{SRD_T+1}, 0")
        e("v_lshlrev_b32 v20, 7, v8")
        for i in range(o.pf):
            e(f"global_load_dword v39, v20, s[{SRD_T}:{SRD_T+1}]")
            e("v_add_u32 v20, 0x2000, v20")
        e.label(skip)
    if o.tlb:
        e("v_mov_b32 v20, 0")
        e.vm(f"buffer_load_dword v39, v20, s[{SRD_V}:{SRD_V+3}], s{S_KV0} offen nt", "tlb")
        e.vm(f"buffer_load_dword v39, v20, s[{SRD_K}:{SRD_K+3}], s{S_KV1} offen nt", "tlb")
        e.vm(f"buffer_load_dword v39, v20, s[{SRD_V}:{SRD_V+3}], s{S_KV1} offen nt", "tlb")
    if o.NAe or o.NCe:
        e(f"s_getreg_b32 s{S_T0}, hwreg(HW_REG_XCC_ID)"); e(f"s_and_b32 s{S_XPAR}, s{S_T0}, 1")
    nf = list(e.vmq)
    if "now" not in o.exp: weight_dma(e, o)
    e.vmq = nf + ["w"] * o.NW if len(nf) + o.NW <= 60 else ["w"] * 60
    cur[0] = None
    st("s.wiss")
    e(f"v_lshlrev_b32 {vr(R.vlds)}, 4, v8")
    e(f"v_add_u32 {vr(R.vlds)}, s{S_LDSB}, {vr(R.vlds)}")
    attn_selectors(e, R, 8, 10)
    for idx, item in enumerate(loads[:o.NA_BAR]):
        if idx < o.NF: continue
        na = o.NA0 if idx < o.NA0N else o.NA
        e.vm_depth(na - 1)
        if o.NAe: par_depth(e, o.NAe)
        if idx == o.NF + max(o.NA, o.NA0):
            e(f"s_lshl_b32 s{S_T0}, s{S_WAVE}, 2"); e(f"s_add_u32 s{S_T0}, s{S_T0}, {WFLAG-4}")
            e(f"v_mov_b32 v20, s{S_T0}"); e("v_mov_b32 v21, 1")
            e.lg("ds_write_b32 v20, v21", "wf")
            st("s.wland")
        if idx == 60: st("s.k0iss")
        if idx == 90: st("s.v30")
        issue0(item)
    st("A_issued")
    attn_pre(e, R, SW_TILES)
    e("s_barrier")
    st("bar1")
    if "nocw" in o.exp or "cw" in o.exp or "stopA" in o.exp:
        e.vm_all(); st("s.alland"); st.flush(); e("s_endpgm")
    pend = [('0', it) for it in loads[o.NA_BAR:]]
    for T in range(16):
        for s in range(3): pend.append(('1', T, s))
    cur1 = [None]
    def issue_pend():
        it = pend.pop(0)
        if it[0] == '0': cur1[0] = None; issue0(it[1])
        else:
            _, T, s = it
            if cur1[0] != T:
                kv_soff(e, S_KV1, T); cur1[0] = T; cur[0] = None
            dma_k(e, R, 3 * T + s, s, ('K1', T, s), o)
    while pend[0][0] == '0': issue_pend()
    def Kf0(T, s): return slot_reg(k0slot(T, s))
    def Vf0(T, w):
        sl = v0slot(T, w)
        if sl < 118: return slot_reg(sl)
        return "v[32:35]" if w == 1 else "v[28:31]"
    def k_wait_A(T):
        if T == -1: e.vm_wait(('K0', SW_TILES - 1, 2))
    def pv_hook_A(T):
        left = SW_TILES - 1 - T
        target = max(o.NB1, min(o.NA, 3 * left + o.NB1)) if o.NB1 else 0
        if T == SW_TILES - 2:
            e.vm_wait(('V0', SW_TILES - 1, 2))
            e.lg(f"ds_read_b128 v[32:35], {vr(R.vlds)} offset:{48*1024}", ("vo", 1))
            e.lg(f"ds_read_b128 v[28:31], {vr(R.vlds)} offset:{49*1024}", ("vo", 2))
            target = o.NB1
        while pend and len(e.vmq) < target: issue_pend()
    def vwait_A(T, w):
        e.vm_wait(('V0', T, w))
        if T == SW_TILES - 1 and w >= 1: e.lg_wait(("vo", w))
    attn_pass(e, R, SW_TILES, 0, Kf0, Vf0, S_PB, 0, k_wait=k_wait_A, v_wait=vwait_A, pv_hook=pv_hook_A, pre_done=True)
    st("A_done")
    e("s_barrier")
    if o.NB1 == o.NB:
        while pend:
            e.vm_depth(o.NB - 1)
            issue_pend()
    else:
        items = list(pend); pend.clear()
        q0 = list(e.vmq); c0 = cur1[0]
        fast = {i: e.newlabel("fastB") for i in range(len(items))}
        done = e.newlabel("doneB")
        e(f"v_mov_b32 v20, {WFLAG + 12}")
        def emit_item(it, force_soff):
            _, T, s = it
            if cur1[0] != T or force_soff:
                kv_soff(e, S_KV1, T); cur1[0] = T
            dma_k(e, R, 3 * T + s, s, ('K1', T, s), o)
        marks = [i for i, it in enumerate(items) if it[2] == 0]
        if o.NB1 == 0:
            spin = e.newlabel("spinB")
            e(f"s_mov_b32 s{S_CNT}, {o.poll_limit*8}")
            e.label(spin)
            e(f"s_sub_u32 s{S_CNT}, s{S_CNT}, 1"); e(f"s_cbranch_scc1 {fast[0]}")
            e.lg("ds_read_b32 v21, v20", "go"); e.lg_all()
            e(f"v_readfirstlane_b32 s{S_T0}, v21")
            e(f"s_cmp_lg_u32 s{S_T0}, 0"); e(f"s_cbranch_scc1 {fast[0]}")
            e("s_sleep 2"); e(f"s_branch {spin}")
        for i, it in enumerate(items if o.NB1 else []):
            if i in marks:
                e.lg("ds_read_b32 v21, v20", "go"); e.lg_all()
                e(f"v_readfirstlane_b32 s{S_T0}, v21")
                e(f"s_cmp_lg_u32 s{S_T0}, 0"); e(f"s_cbranch_scc1 {fast[i]}")
            e.vm_depth(o.NB1 - 1)
            emit_item(it, False)
        e(f"s_branch {done}")
        e.vmq = list(q0); cur1[0] = c0
        for i, it in enumerate(items):
            if i in marks: e.label(fast[i])
            e.vm_depth(o.NB - 1)
            emit_item(it, i in marks)
        e.label(done)
    st("B_issued")
    attn_pre(e, R, SW_TILES)
    e("s_barrier")
    st("bar3")
    pend1 = []
    for T in range(16, SW_TILES):
        for s in range(3): pend1.append(('K', T, s))
    for T in range(SW_TILES):
        for w in range(3): pend1.append(('V', T, w))
    slot_of = {it: i for i, it in enumerate(pend1)}
    freed = [0]
    issued1 = [0]
    cur2 = [None]
    def issue1():
        it = pend1[issued1[0]]; kind, T, x = it
        if cur2[0] != (kind, T):
            kv_soff(e, S_KV1, T); cur2[0] = (kind, T)
        e.vm_depth(o.NC - 1)
        if o.NCe: par_depth(e, o.NCe)
        if kind == 'K': ld_k(e, R, slot_reg(slot_of[it]), x, ('K1', T, x), o)
        else: ld_v(e, R, slot_reg(slot_of[it]), x, ('V1', T, x), o)
        issued1[0] += 1
    def refill():
        while issued1[0] < len(pend1) and issued1[0] < freed[0]: issue1()
    def qk_hook_C1(T):
        freed[0] = 3 * (T + 1); refill()
    def pv_hook_C1(T):
        freed[0] = min(118, 60 + 3 * (T + 1)); refill(); ovf_hook_C(T)
    def ovf_hook_C(T):
        if T == SW_TILES - 2:
            e.lg(f"ds_read_b128 v[32:35], {vr(R.vlds)} offset:{48*1024}", ("vo", 1))
            e.lg(f"ds_read_b128 v[28:31], {vr(R.vlds)} offset:{49*1024}", ("vo", 2))
    def vwait_C1(T, w):
        if T == SW_TILES - 1 and w >= 1: e.lg_wait(("vo", w))
    e(f"s_add_u32 s{S_T2}, s{S_LDSB}, {48*1024}")
    attn_pass(e, R, SW_TILES, 0, Kf0, Vf0, S_T2, 32, qk_hook=qk_hook_C1, v_wait=vwait_C1, pv_hook=pv_hook_C1, pre_done=True)
    refill()
    assert issued1[0] == len(pend1)
    st("C1_done")
    e("s_barrier")
    stage = [40 + 4 * (k - 64) for k in range(100, 112)]
    def Kf1(T, s):
        if T < 16: return ('lds', (3 * T + s) * 1024)
        return slot_reg(slot_of[('K', T, s)])
    def Vf1(T, w): return slot_reg(slot_of[('V', T, w)])
    def k_wait_C2(T):
        if T == -1: e.vm_wait(('K1', 15, 2))
        elif T >= 16: e.vm_wait(('K1', T, 2))
    def vwait_C2(T, w): e.vm_wait(('V1', T, w))
    attn_pass(e, R, SW_TILES, 1, Kf1, Vf1, S_PB, 0, k_wait=k_wait_C2, v_wait=vwait_C2, stage=stage, look=o.look)
    st("C2_done")
    e("s_barrier")
    if o.wb == 2: emit_wb(e)
    if o.preE:
        def eslot(T, s): return 72 + 3 * T + s
        for T in range(15):
            for s in range(3):
                e.lg(f"ds_read_b128 {slot_reg(eslot(T, s))}, {vr(R.vlds)} offset:{(3*T+s)*1024}", ("pre", T, s))
                if len(e.lgq) >= 12: e.lg_wait_n(4)
        e.lg(f"ds_read_b128 {slot_reg(117)}, {vr(R.vlds)} offset:{45*1024}", ("pre", 15, 0))
        e.lg_all()
        def KfE(T, s):
            if T < 15: return slot_reg(eslot(T, s))
            if T == 15: return slot_reg(117) if s == 0 else slot_reg(eslot(0, s - 1))
            return slot_reg(slot_of[('K', T, s)])
        def qk_hook_E(T):
            if T == 0:
                for s in (1, 2): e.lg(f"ds_read_b128 {slot_reg(eslot(0, s - 1))}, {vr(R.vlds)} offset:{(45+s)*1024}", ("pre2", s))
        def k_wait_E(T):
            if T == 15: e.lg_wait(("pre2", 2))
    attn_pre(e, R, SW_TILES)
    e("s_barrier")
    st("bar7")
    if o.preE: attn_pass(e, R, SW_TILES, 1, KfE, Vf1, S_PB, 0, pre_done=True, mark=lambda n: st("e." + n), qk_hook=qk_hook_E, k_wait=k_wait_E)
    else: attn_pass(e, R, SW_TILES, 1, Kf1, Vf1, S_PB, 0, stage=stage, pre_done=True, mark=lambda n: st("e." + n), look=o.look)
    st("E_done")
    e("s_barrier")
    if o.wb == 1: emit_wb(e)
    st.flush()
    e("s_endpgm")

V_LANE, V_LG, V_R, V_PL, V_PG, V_PQ = 0, 4, 5, 6, 7, 8
V_BO, V_BX, V_BX8, V_BH, V_BH8, V_AS, V_AS8 = 9, 10, 11, 12, 13, 14, 15
V_XR, V_CSQ, V_CSG = 16, 20, 24
V_W8, V_WX, V_WH, V_ML = 28, 29, 30, 31
W0 = 32
V_SEL, V_R2, V_ST2, V_PS, V_PSQ, V_L16 = 75, 79, 80, 81, 82, 83
V_T = 84
V_GL, V_LL = 72, 73
V_DA, V_DB = 72, 73
CW_K, CW_V = 86, 134
S_N1 = 74

_off3 = (2, 6, 0)
def wq_frag(t, s): return ("a", 10 * t + _off3[s])
def wo_frag(t, s): return ("a", 120 + 24 * t + 4 * s)
def wd_frag(t, s):
    if s == 0: return ("a", 240 + 4 * t) if t < 4 else ("v", 182)
    return ("v", 186 + 2 * t)
def wg_frag(t, s): return ("v", 196 + 10 * t + _off3[s])
def wu_frag(t, s): return ("v", 226 + 10 * t + _off3[s])
def win(fr): return f"{fr[0]}[{fr[1]}:{fr[1]+3}]"

V_OOB = 74
def selmask(e, dst, val, mask, other=None):
    e(f"s_mov_b32 vcc_lo, 0x{mask & 0xffffffff:08x}"); e(f"s_mov_b32 vcc_hi, 0x{mask >> 32:08x}")
    if other is None: e(f"v_cndmask_b32 {vr(dst)}, v{V_OOB}, {vr(val)}, vcc")
    else:
        assert dst != val
        e(f"v_mov_b32 {vr(dst)}, 0x{other:08x}")
        e(f"v_cndmask_b32 {vr(dst)}, {vr(dst)}, {vr(val)}, vcc")

def rows_mask(live, n): return mask64([32 * r + g for r in live for g in range(n)])
def cols_mask(live, alist=range(4)): return mask64([16 * a + n for a in alist for n in live])

def instance_offsets(e, live, pub_live=None, q_live=None):
    pub_live = live if pub_live is None else pub_live
    q_live = pub_live if q_live is None else q_live
    t, u = V_T, V_T + 1
    e(f"v_and_b32 {vr(t)}, 31, v{V_LANE}"); e(f"v_lshlrev_b32 {vr(t)}, 4, {vr(t)}")
    e(f"v_lshrrev_b32 {vr(u)}, 5, v{V_LANE}"); e(f"v_lshl_add_u32 {vr(t)}, {vr(u)}, 9, {vr(t)}")
    selmask(e, V_LG, t, rows_mask(live, 20))
    selmask(e, V_R2, t, rows_mask(live, 24))
    if o_packed[0]:
        row = live[-1]
        e(f"v_lshrrev_b32 {vr(t)}, 4, v{V_LANE}"); e(f"v_and_b32 {vr(u)}, 15, v{V_LANE}")
        e(f"v_lshlrev_b32 v{V_DA}, 10, {vr(t)}"); e(f"v_lshl_add_u32 v{V_DA}, {vr(u)}, 4, v{V_DA}"); e(f"v_add_u32 v{V_DA}, {512*row}, v{V_DA}")
        e(f"v_lshlrev_b32 v{V_DB}, 15, {vr(t)}"); e(f"v_bfe_u32 {vr(u)}, v{V_LANE}, 2, 2"); e(f"v_lshl_add_u32 v{V_DB}, {vr(u)}, 10, v{V_DB}")
        e(f"v_and_b32 {vr(u)}, 3, v{V_LANE}"); e(f"v_lshl_add_u32 v{V_DB}, {vr(u)}, 4, v{V_DB}"); e(f"v_add_u32 v{V_DB}, {512*row + 256}, v{V_DB}")
        e(f"v_lshrrev_b32 {vr(u)}, 5, v{V_LANE}")
    else:
        e(f"v_and_b32 v{V_GL}, 7, v{V_LANE}"); e(f"v_lshlrev_b32 v{V_GL}, 10, v{V_GL}"); e(f"v_add_u32 v{V_GL}, {512*live[-1] + 19*16}, v{V_GL}")
        e(f"v_and_b32 v{V_LL}, 3, v{V_LANE}"); e(f"v_lshlrev_b32 v{V_LL}, 10, v{V_LL}"); e(f"v_add_u32 v{V_LL}, {512*live[-1] + 19*16}, v{V_LL}")
    e(f"v_and_b32 {vr(t)}, 7, v{V_LANE}"); e(f"v_lshlrev_b32 {vr(t)}, 10, {vr(t)}")
    e(f"v_lshl_add_u32 {vr(t)}, {vr(u)}, 9, {vr(t)}"); e(f"v_add_u32 {vr(t)}, 384, {vr(t)}")
    selmask(e, V_ST2, t, rows_mask(live, 32))
    e(f"v_and_b32 {vr(t)}, 15, v{V_LANE}"); e(f"v_lshrrev_b32 {vr(u)}, 4, v{V_LANE}")
    e(f"v_lshlrev_b32 v{V_PL}, 9, {vr(t)}")
    e(f"v_lshl_add_u32 v{V_PG}, {vr(u)}, 5, v{V_PL}")
    e(f"v_add_u32 v{V_PS}, 384, v{V_PL}")
    e(f"v_lshl_add_u32 v{V_PL}, {vr(u)}, 4, v{V_PL}")
    e(f"v_lshlrev_b32 v{V_PQ}, 18, {vr(t)}")
    e(f"v_add_u32 v{V_PSQ}, 768, v{V_PQ}")
    e(f"v_lshl_add_u32 v{V_PQ}, {vr(u)}, 4, v{V_PQ}")
    cm = cols_mask(pub_live)
    e(f"s_mov_b32 vcc_lo, 0x{cm & 0xffffffff:08x}"); e(f"s_mov_b32 vcc_hi, 0x{cm >> 32:08x}")
    for r in (V_PL, V_PG): e(f"v_cndmask_b32 v{r}, v{V_OOB}, v{r}, vcc")
    selmask(e, V_PS, V_PS, cols_mask(pub_live, [0]))
    selmask(e, V_PQ, V_PQ, cols_mask(q_live))
    selmask(e, V_PSQ, V_PSQ, cols_mask(q_live, [0]))

def soffs(e, off_sreg, const, two=True):
    e(f"s_add_u32 s{S_A}, s{off_sreg}, {const}")
    if two: e(f"s_add_u32 s{S_B}, s{S_A}, 4096")

def poll(e, o, loads, abort, sleep=0):
    lab = e.newlabel("poll")
    e(f"s_mov_b32 s{S_CNT}, {o.poll_limit}")
    e.label(lab)
    for d, vo, s, imm in loads:
        e(f"buffer_load_dwordx4 {vr(d,4)}, v{vo}, s[{SRD_WS}:{SRD_WS+3}], s{s} offen offset:{imm} sc1")
    e(f"s_sub_u32 s{S_CNT}, s{S_CNT}, 1")
    e(f"s_cbranch_scc1 {abort}")
    e("s_waitcnt vmcnt(0)")
    vals = []
    for d, _, _, _ in loads: vals += [d + 1, d + 3]
    t = V_T
    e(f"v_max3_u32 v{t}, v{vals[0]}, v{vals[1]}, v{vals[2]}")
    i = 3
    while i < len(vals):
        if i + 1 < len(vals): e(f"v_max3_u32 v{t}, v{t}, v{vals[i]}, v{vals[i+1]}"); i += 2
        else: e(f"v_max_u32 v{t}, v{t}, v{vals[i]}"); i += 1
    e(f"v_cmp_eq_u32 vcc, -1, v{t}")
    if sleep:
        ok = e.newlabel("pok"); e(f"s_cbranch_vccz {ok}"); e(f"s_sleep {sleep}"); e(f"s_branch {lab}"); e.label(ok)
    else: e(f"s_cbranch_vccnz {lab}")
    e.vmq = []

def gather8(e, o, vo, abort, extra=None, n=8, base=W0):
    loads = [(base + 4 * k, vo, S_A if k < 4 else S_B, (k % 4) * 1024) for k in range(n)]
    if extra: loads.append((base + 4 * n, extra, S_A, 0))
    poll(e, o, loads, abort)

def sum_loads(e, n, base=W0):
    step = 1
    while step < n:
        for k in range(0, n, 2 * step):
            if k + step < n:
                a, b = base + 4 * k, base + 4 * (k + step)
                e(f"v_pk_add_f32 {vr(a,2)}, {vr(a,2)}, {vr(b,2)}")
                e(f"v_pk_add_f32 {vr(a+2,2)}, {vr(a+2,2)}, {vr(b+2,2)}")
        step *= 2

def dpp8(e, reg, op):
    for m in ("quad_perm:[1,0,3,2]", "quad_perm:[2,3,0,1]", "row_half_mirror"):
        e(f"v_{op}_f32_dpp v{reg}, v{reg}, v{reg} {m} row_mask:0xf bank_mask:0xf")
def dpp8x2(e, r0, r1, op):
    for m in ("quad_perm:[1,0,3,2]", "quad_perm:[2,3,0,1]", "row_half_mirror"):
        e(f"v_{op}_f32_dpp v{r0}, v{r0}, v{r0} {m} row_mask:0xf bank_mask:0xf")
        e(f"v_{op}_f32_dpp v{r1}, v{r1}, v{r1} {m} row_mask:0xf bank_mask:0xf")

def ln_from_stats(e, s1, s2, mean, rstd):
    e(f"v_mul_f32 v{mean}, {lit(1/640)}, v{s1}")
    e(f"v_mul_f32 v{s2}, {lit(1/640)}, v{s2}")
    e(f"v_fma_f32 v{s2}, -v{mean}, v{mean}, v{s2}")
    e(f"v_max_f32 v{s2}, 0, v{s2}")
    e(f"v_add_f32 v{s2}, {lit(EPS)}, v{s2}")
    e(f"v_rsq_f32 v{rstd}, v{s2}")

def pub(e, D, vo, sreg, imm, fl, tag):
    e.vm(f"buffer_store_dwordx4 {vr(D,4)}, v{vo}, s[{SRD_WS}:{SRD_WS+3}], s{sreg} offen offset:{imm} {fl}", tag)

def run_tiles(e, tiles, accs, store, btags=None, twait=None):
    n = len(accs); lag = n - 1
    for i, (tid, steps) in enumerate(tiles):
        D = vr(accs[i % n], 4)
        if twait and tid in twait: e.lg_wait(twait[tid])
        for s, (A, B) in enumerate(steps):
            if i == 0 and btags: e.lg_wait(btags[s])
            e(f"v_mfma_f32_16x16x32_bf16 {D}, {A}, {B}, {'0' if s == 0 else D}")
        if i >= lag: store(tiles[i - lag][0], accs[(i - lag) % n])
    for i in range(max(0, len(tiles) - lag), len(tiles)): store(tiles[i][0], accs[i % n])

def read_bx(e, B):
    e.lg(f"ds_read_b128 {vr(B,4)}, v{V_BX}", "b0"); e.lg(f"ds_read_b128 {vr(B+4,4)}, v{V_BX} offset:64", "b1")
    e.lg(f"ds_read_b64 {vr(B+8,2)}, v{V_BX8}", "b2")
    e(f"v_mov_b32 v{B+10}, 0"); e(f"v_mov_b32 v{B+11}, 0")
def read_as(e, A):
    e.lg(f"ds_read_b128 {vr(A,4)}, v{V_AS}", "a0"); e.lg(f"ds_read_b128 {vr(A+4,4)}, v{V_AS} offset:64", "a1")
    e.lg(f"ds_read_b64 {vr(A+8,2)}, v{V_AS8}", "a2")
    e(f"v_mov_b32 v{A+10}, 0"); e(f"v_mov_b32 v{A+11}, 0")

def stage_Q(e, fl, reg_index, shadow=None):
    B, A = W0 + 8, W0 + 20
    read_bx(e, B); read_as(e, A)
    e(f"s_add_u32 s{S_A}, s{S_ROWN}, {reg_index*RG}")
    if shadow: shadow()
    tiles = [(t, [(win(wq_frag(t, s)), vr(B + 4 * s, 4)) for s in range(3)]) for t in range(12)]
    tiles.insert(1, (12, [(vr(A + 4 * s, 4), vr(B + 4 * s, 4)) for s in range(3)]))
    SD = W0 + 4
    def store(t, D): pub(e, D, V_PQ, S_A, 64 * t, fl, ("pq", t))
    first, stats, rest = tiles[0], tiles[1], tiles[2:]
    run_tiles(e, [first], [W0 + 32, W0 + 36], lambda t, D: None, btags=["b0", "b1", "b2"])
    e.lg_wait("a2")
    for s, (Aop, Bop) in enumerate(stats[1]):
        e(f"v_mfma_f32_16x16x32_bf16 {vr(SD,4)}, {Aop}, {Bop}, {'0' if s == 0 else vr(SD,4)}")
    accs = [W0 + 36, W0, W0 + 20, W0 + 32]
    pend = [(0, W0 + 32)]
    for i, (t, steps) in enumerate(rest):
        D = accs[i % 4]
        for s, (Aop, Bop) in enumerate(steps):
            e(f"v_mfma_f32_16x16x32_bf16 {vr(D,4)}, {Aop}, {Bop}, {'0' if s == 0 else vr(D,4)}")
        pend.append((t, D))
        if i >= 2: store(*pend.pop(0))
    e(f"v_cndmask_b32 v{SD+1}, v{SD+1}, v{SD+2}, s[{S_N1}:{S_N1+1}]")
    while pend: store(*pend.pop(0))
    pub(e, SD, V_PSQ, S_A, 0, fl, "pqs")

def stage_GU(e, fl, const, with_stats=True, shadow=None):
    B, A = W0 + 8, W0 + 20
    read_bx(e, B)
    if with_stats: read_as(e, A)
    e(f"s_add_u32 s{S_A}, s{S_ROWN}, {const}" if const >= 0 else f"s_sub_u32 s{S_A}, s{S_ROWN}, {-const}")
    if shadow: shadow()
    def tile(d, f, waits=None):
        d = vr(d, 4)
        for s in range(3):
            if waits: e.lg_wait(waits[s])
            e(f"v_mfma_f32_16x16x32_bf16 {d}, {f(s)}, {vr(B+4*s,4)}, {'0' if s == 0 else d}")
    def store(t, G, U):
        e(f"v_swap_b32 v{G+2}, v{U}"); e(f"v_swap_b32 v{G+3}, v{U+1}")
        pub(e, G, V_PG, S_A, 128 * t, fl, ("pg", t, 0))
        pub(e, U, V_PG, S_A, 128 * t + 16, fl, ("pg", t, 1))
    g = lambda t: (lambda s: win(wg_frag(t, s)))
    u = lambda t: (lambda s: win(wu_frag(t, s)))
    P0, P1, S = (W0 + 32, W0 + 36), (W0 + 20, W0 + 24), W0
    tile(P0[0], g(0), waits=["b0", "b1", "b2"]); tile(P0[1], u(0))
    if with_stats:
        e.lg_wait("a2")
        tile(S, lambda s: vr(A + 4 * s, 4))
    tile(P1[0], g(1)); tile(P1[1], u(1))
    store(0, *P0)
    if with_stats: e(f"v_cndmask_b32 v{S+1}, v{S+1}, v{S+2}, s[{S_N1}:{S_N1+1}]")
    tile(P0[0], g(2)); tile(P0[1], u(2))
    store(1, *P1)
    store(2, *P0)
    if with_stats: pub(e, S, V_PS, S_A, 0, fl, "pgs")

def stage_WO(e, fl, region, shadow=None):
    B = W0
    for s in range(6): e.lg(f"ds_read_b128 {vr(B+4*s,4)}, v{V_BO} offset:{64*s}", ("o", s))
    e(f"s_add_u32 s{S_A}, s{S_LOWN}, {region*RG}")
    if shadow: shadow()
    tiles = [(t, [(win(wo_frag(t, s)), vr(B+4*s,4)) for s in range(6)]) for t in range(5)]
    run_tiles(e, tiles, [W0 + 24, W0 + 28, W0 + 32], lambda t, D: pub(e, D, V_PL, S_A, 64 * t, fl, ("po", t)), btags=[("o", s) for s in range(6)])

def stage_D(e, fl, region):
    B = W0
    e.lg(f"ds_read_b128 {vr(B,4)}, v{V_BH}", "h0"); e.lg(f"ds_read_b64 {vr(B+4,2)}, v{V_BH8}", "h1")
    e(f"v_mov_b32 v{B+6}, 0"); e(f"v_mov_b32 v{B+7}, 0")
    e(f"s_add_u32 s{S_A}, s{S_LOWN}, {region*RG}")
    tiles = [(t, [(win(wd_frag(t, 0)), vr(B,4)), (win(wd_frag(t, 1)), vr(B+4,4))]) for t in range(5)]
    run_tiles(e, tiles, [W0 + 8 + 4 * i for i in range(5)], lambda t, D: pub(e, D, V_PL, S_A, 64 * t, fl, ("pd", t)), btags=["h0", "h1"])

def fast_gather(e, o, loads, body, abort, pre=0, early=False):
    n = len(loads); t = V_T
    lab = e.newlabel("fpoll")
    e(f"s_mov_b32 s{S_CNT}, {o.poll_limit}")
    if pre: e(f"s_sleep {pre}")
    e.label(lab)
    for d, vo, s, imm in loads:
        e(f"buffer_load_dwordx4 {vr(d,4)}, v{vo}, s[{SRD_WS}:{SRD_WS+3}], s{s} offen offset:{imm} sc1")
    e(f"s_sub_u32 s{S_CNT}, s{S_CNT}, 1")
    e(f"s_cbranch_scc1 {abort}")
    first = [True]
    if early:
        d = loads[0][0]
        e(f"s_waitcnt vmcnt({n-1})")
        e(f"v_max_u32 v{t}, v{d+1}, v{d+3}")
        e(f"v_cmp_eq_u32 vcc, -1, v{t}")
        e(f"s_cbranch_vccnz {lab}")
        first[0] = False
    def wait(k): e(f"s_waitcnt vmcnt({n-1-k})")
    def chk(k):
        d = loads[k][0]
        if first[0]: e(f"v_max_u32 v{t}, v{d+1}, v{d+3}"); first[0] = False
        else: e(f"v_max3_u32 v{t}, v{t}, v{d+1}, v{d+3}")
    body(wait, chk)
    e(f"v_cmp_eq_u32 vcc, -1, v{t}")
    e(f"s_cbranch_vccnz {lab}")
    e.vmq = []

def padd(e, a, b, neg=False):
    m = " neg_lo:[0,1] neg_hi:[0,1]" if neg else ""
    e(f"v_pk_add_f32 {vr(a,2)}, {vr(a,2)}, {vr(b,2)}{m}"); e(f"v_pk_add_f32 {vr(a+2,2)}, {vr(a+2,2)}, {vr(b+2,2)}{m}")

def g_soffs(e, off_sreg, const, two=True):
    e(f"s_add_u32 s{S_GA}, s{off_sreg}, {const}")
    if two: e(f"s_add_u32 s{S_GB}, s{S_GA}, 4096")
def g_loads(vo, n=8, base=W0): return [(base + 4 * k, vo, S_GA if k < 4 else S_GB, (k % 4) * 1024) for k in range(n)]

def hop_LG(e, o, inst, k, abort, final_only=False):
    skip = e.newlabel("notleader")
    e(f"s_cmp_lg_u32 s{S_HQ}, 0"); e(f"s_cbranch_scc1 {skip}")
    g_soffs(e, S_LGRP, L_REG(inst, k) * RG, two=False)
    e(f"s_add_u32 s{S_A}, s{S_GOWN}, {G_OFF(inst,k)}")
    X = W0 + 32
    off = 1 if o.early else 0
    def body4(wait, chk):
        wait(off + 1); chk(off); chk(off + 1); padd(e, W0, W0 + 4)
        wait(off + 2); chk(off + 2); padd(e, W0, W0 + 8)
        wait(off + 3); chk(off + 3); padd(e, W0, W0 + 12)
    fast_gather(e, o, ([(X, V_LL, S_GA, 0)] if o.early else []) + g_loads(V_LG, 4), body4, abort, pre=o.preL, early=o.early)
    e(f"buffer_store_dwordx4 {vr(W0,4)}, v{V_LG}, s[{SRD_WS}:{SRD_WS+3}], s{S_A} offen sc1")
    if o.preGn:
        join = e.newlabel("lgjoin")
        e(f"s_branch {join}")
        e.label(skip)
        if not final_only: e(f"s_sleep {o.preGn}")
        e.label(join)
    else: e.label(skip)
    if final_only:
        e(f"s_cmp_lg_u32 s{S_H}, 0"); e(f"s_cbranch_scc1 L_done")
    g_soffs(e, S_GGRP, G_OFF(inst, k))
    e.vmq = []
    def body8(wait, chk):
        c = lambda k: chk(off + k)
        w = lambda k: wait(off + k)
        w(1); c(0); c(1); padd(e, W0, V_XR); padd(e, W0, W0 + 4)
        w(3); c(2); c(3); padd(e, W0 + 8, W0 + 12); padd(e, W0, W0 + 8)
        w(5); c(4); c(5); padd(e, W0 + 16, W0 + 20); padd(e, W0, W0 + 16)
        w(6); c(6); padd(e, W0, W0 + 24)
        w(7); c(7); padd(e, W0, W0 + 28)
    fast_gather(e, o, ([(X, V_GL, S_GA, 0)] if o.early else []) + g_loads(V_LG, 8), body8, abort, pre=o.preG, early=o.early)

def hop_packed(e, o, abort, inst, k, pre):
    if inst == 2 and k == 1:
        e(f"s_cmp_lg_u32 s{S_H}, 0"); e(f"s_cbranch_scc1 L_done")
    e(f"s_lshl_b32 s{S_T0}, s{S_J}, 12"); e(f"s_add_u32 s{S_T0}, s{S_T0}, {L_REG(inst,k)*RG}")
    for x in range(8): e(f"s_add_u32 s{SW8[x]}, s{S_T0}, {32768*x}")
    B0 = W0 + 32
    loads = [(B0, V_DB, SW8[0], 0), (B0 + 4, V_DB, SW8[4], 0)] + [(W0 + 4 * x, V_DA, SW8[x], 0) for x in range(8)]
    T = V_T + 1
    def xrow(a):
        for sw in ("v_permlane16_swap_b32", "v_permlane32_swap_b32"):
            for r in range(4):
                t = B0 + 4 + r
                e(f"v_mov_b32 v{t}, v{a+r}")
            for r in range(4): e(f"{sw} v{a+r}, v{B0+4+r}")
            for h in range(2): e(f"v_pk_add_f32 {vr(a+2*h,2)}, {vr(a+2*h,2)}, {vr(B0+4+2*h,2)}")
    def body(wait, chk):
        wait(1); chk(0); chk(1); padd(e, B0, B0 + 4)
        for m in ("row_ror:4", "row_ror:8"):
            for r in range(4): e(f"v_add_f32_dpp v{B0+r}, v{B0+r}, v{B0+r} {m} row_mask:0xf bank_mask:0xf")
        wait(3); chk(2); chk(3); padd(e, W0, W0 + 4)
        xrow(B0)
        wait(5); chk(4); chk(5); padd(e, W0 + 8, W0 + 12); padd(e, W0, W0 + 8)
        wait(7); chk(6); chk(7); padd(e, W0 + 16, W0 + 20); padd(e, W0, W0 + 16)
        wait(8); chk(8); padd(e, W0, W0 + 24)
        wait(9); chk(9); padd(e, W0, W0 + 28)
    fast_gather(e, o, loads, body, abort, pre=pre)
    xrow(W0)
    e("s_mov_b32 vcc_lo, 0xffff0000"); e("s_mov_b32 vcc_hi, 0xffff0000")
    for r in range(4): e(f"v_cndmask_b32 v{W0+r}, v{W0+r}, v{B0+r}, vcc")
    m = rows_mask([LIVE[inst][-1]], 20)
    e(f"s_mov_b32 vcc_lo, 0x{m & 0xffffffff:08x}"); e(f"s_mov_b32 vcc_hi, 0x{m >> 32:08x}")
    for r in range(4): e(f"v_cndmask_b32 v{W0+r}, 0, v{W0+r}, vcc")
    padd(e, W0, V_XR)

def hop_final(e, o, abort, k=1):
    if k == 1:
        e(f"s_cmp_lg_u32 s{S_H}, 0"); e(f"s_cbranch_scc1 L_done")
    e(f"s_lshl_b32 s{S_T0}, s{S_J}, 12"); e(f"s_add_u32 s{S_T0}, s{S_T0}, {L_REG(2,k)*RG}")
    for x in range(8): e(f"s_add_u32 s{SW8[x]}, s{S_T0}, {32768*x}")
    dst = [W0 + 4 * k for k in range(8)] + [CW_K + 4 * k for k in range(24)]
    loads = [(dst[4 * x + q], V_LG, SW8[x], 1024 * q) for x in range(8) for q in range(4)]
    A0, A1 = loads[0][0], loads[1][0]
    def body(wait, chk):
        wait(1); chk(0); chk(1); padd(e, A0, V_XR)
        for k in range(2, 32):
            if k % 2 == 0: wait(min(k + 1, 31)); chk(k); chk(k + 1)
            padd(e, A0 if k % 2 == 0 else A1, loads[k][0])
        padd(e, A0, A1)
    fast_gather(e, o, loads, body, abort, pre=o.preF if k == 1 else o.preF0)

def residual_update(e):
    e(f"v_cvt_pk_bf16_f32 v{W0+4}, v{W0}, v{W0+1}")
    e(f"v_cvt_pk_bf16_f32 v{W0+5}, v{W0+2}, v{W0+3}")
    e.lg(f"ds_write_b64 v{V_WX}, {vr(W0+4,2)}", "wx")
def residual_unpack(e, p):
    e(f"v_lshlrev_b32 v{V_XR}, 16, v{p}"); e(f"v_and_b32 v{V_XR+1}, 0xffff0000, v{p}")
    e(f"v_lshlrev_b32 v{V_XR+2}, 16, v{p+1}"); e(f"v_and_b32 v{V_XR+3}, 0xffff0000, v{p+1}")

def store_out(e, row, only=True):
    skip = e.newlabel("noout")
    e(f"s_cmp_lg_u32 s{S_H}, 0"); e(f"s_cbranch_scc1 {skip}")
    make_srd(e, SRD_T, S_OUT, 2560)
    e(f"v_and_b32 v{V_T}, 31, v{V_LANE}"); e(f"v_lshlrev_b32 v{V_T}, 3, v{V_T}")
    e(f"s_mul_i32 s{S_T0}, s{S_J}, 160"); e(f"s_add_u32 s{S_T0}, s{S_T0}, {row*1280}")
    selmask(e, V_T, V_T, rows_mask([row], 20))
    e(f"buffer_store_dwordx2 {vr(W0+4,2)}, v{V_T}, s[{SRD_T}:{SRD_T+3}], s{S_T0} offen")
    e.label(skip)

def combine_publish(e, fl, parts, mlbase, region):
    T = W0
    e(f"v_mov_b32 v{V_T}, {mlbase}")
    e.lg(f"ds_read_b128 {vr(T,4)}, v{V_T}", "ml0"); e.lg(f"ds_read_b128 {vr(T+4,4)}, v{V_T} offset:16", "ml1")
    P = T + 8
    cur = None
    for w in range(4):
        if cur is None or not (0 <= parts[w] - cur < 60000):
            e(f"v_add_u32 v{V_T+1}, {parts[w]}, v{V_L16}"); cur = parts[w]
        for par in range(2):
            e.lg(f"ds_read_b128 {vr(P+8*w+4*par,4)}, v{V_T+1} offset:{parts[w] - cur + 768*par}", ("p", w, par))
    e(f"s_add_u32 s{S_A}, s{S_ROWN}, {region*RG}")
    e.lg_wait("ml1")
    m = [T, T + 2, T + 4, T + 6]; l = [T + 1, T + 3, T + 5, T + 7]
    M, Ls = V_T, V_T + 1
    e(f"v_max3_f32 v{M}, v{m[0]}, v{m[1]}, v{m[2]}"); e(f"v_max_f32 v{M}, v{M}, v{m[3]}")
    for w in range(4): e(f"v_sub_f32 v{m[w]}, v{m[w]}, v{M}")
    for w in range(4): e(f"v_exp_f32 v{m[w]}, v{m[w]}")
    e(f"v_mul_f32 v{Ls}, v{m[0]}, v{l[0]}")
    for w in range(1, 4): e(f"v_fma_f32 v{Ls}, v{m[w]}, v{l[w]}, v{Ls}")
    for w in range(4):
        e.lg_wait(("p", w, 1))
        a = P + 8 * w
        e(f"v_pk_add_f32 {vr(a,2)}, {vr(a,2)}, {vr(a+4,2)}"); e(f"v_pk_add_f32 {vr(a+2,2)}, {vr(a+2,2)}, {vr(a+6,2)}")
        for r in range(4):
            if w == 0: e(f"v_mul_f32 v{P+r}, v{m[0]}, v{P+r}")
            else: e(f"v_fmac_f32 v{P+r}, v{m[w]}, v{a+r}")
    e(f"s_mov_b32 vcc_lo, 0"); e(f"s_mov_b32 vcc_hi, 0x00010000")
    e(f"v_cndmask_b32 v{P}, v{P}, v{M}, vcc"); e(f"v_cndmask_b32 v{P+1}, v{P+1}, v{Ls}, vcc")
    pub(e, P, V_R, S_A, 0, fl, "r1")

SW8 = [4, 6, 8, 10, 12, 16, 18, 20]
def hop_R1(e, o, region, row, abort):
    g_soffs(e, S_RGRP, region * RG)
    X = W0 + 32
    M, wv = X + 2, X + 3
    acc = W0 + 36
    loads = [(X, V_ML, S_GA, 0)] + g_loads(V_R)
    def body(wait, chk):
        if not o.early: wait(0); chk(0)
        e(f"v_mov_b32 v{M}, v{X}")
        dpp8(e, M, "max")
        e(f"v_sub_f32 v{wv}, v{X}, v{M}"); e(f"v_exp_f32 v{wv}, v{wv}")
        wait(4); chk(1); chk(2)
        e(f"v_mul_f32 v{X+1}, v{wv}, v{X+1}")
        chk(3); chk(4)
        e(f"v_add_f32_dpp v{X+1}, v{X+1}, v{X+1} quad_perm:[1,0,3,2] row_mask:0xf bank_mask:0xf")
        wait(8); chk(5); chk(6)
        e(f"v_add_f32_dpp v{X+1}, v{X+1}, v{X+1} quad_perm:[2,3,0,1] row_mask:0xf bank_mask:0xf")
        chk(7); chk(8)
        e(f"v_add_f32_dpp v{X+1}, v{X+1}, v{X+1} row_half_mirror row_mask:0xf bank_mask:0xf")
        e(f"v_rcp_f32 v{X+1}, v{X+1}")
        e(f"v_mul_f32 v{wv}, v{wv}, v{X+1}")
        for k in range(8): e(f"v_readlane_b32 s{SW8[k]}, v{wv}, {k}")
        for k in range(8):
            for h in range(2):
                a, m = acc + 2 * h, W0 + 4 * k + 2 * h
                sp = f"s[{SW8[k]}:{SW8[k]+1}]"
                if k == 0: e(f"v_pk_mul_f32 {vr(a,2)}, {vr(m,2)}, {sp} op_sel_hi:[1,0]")
                else: e(f"v_pk_fma_f32 {vr(a,2)}, {vr(m,2)}, {sp}, {vr(a,2)} op_sel_hi:[1,0,1]")
    fast_gather(e, o, loads, body, abort, pre=o.preR, early=o.early)
    e(f"v_cvt_pk_bf16_f32 v{acc}, v{acc}, v{acc+1}"); e(f"v_cvt_pk_bf16_f32 v{acc+1}, v{acc+2}, v{acc+3}")
    e.lg(f"ds_write_b64 v{V_W8}, {vr(acc,2)} offset:{ACT_O - SB + 384*row}", "wo")

def ln_gather(e, o, vo, vstat, cs, abort):
    X = W0 + 32; mean, rstd = X + 2, X + 3; T = W0 + 36
    loads = [(X, vstat, S_GA, 0)] + g_loads(vo)
    q = lambda r, m: e(f"v_add_f32_dpp v{r}, v{r}, v{r} {m} row_mask:0xf bank_mask:0xf")
    def body(wait, chk):
        if not o.early: wait(0); chk(0)
        q(X, "quad_perm:[1,0,3,2]"); q(X + 1, "quad_perm:[1,0,3,2]")
        wait(2); chk(1)
        q(X, "quad_perm:[2,3,0,1]"); q(X + 1, "quad_perm:[2,3,0,1]")
        chk(2)
        q(X, "row_half_mirror"); q(X + 1, "row_half_mirror")
        padd(e, W0, W0 + 4)
        e(f"v_mul_f32 v{mean}, {lit(1/640)}, v{X}"); e(f"v_mul_f32 v{X+1}, {lit(1/640)}, v{X+1}")
        wait(4); chk(3); chk(4)
        e(f"v_fma_f32 v{X+1}, -v{mean}, v{mean}, v{X+1}")
        padd(e, W0 + 8, W0 + 12)
        e(f"v_max_f32 v{X+1}, 0, v{X+1}"); e(f"v_add_f32 v{X+1}, {lit(EPS)}, v{X+1}")
        padd(e, W0, W0 + 8)
        e(f"v_rsq_f32 v{rstd}, v{X+1}")
        wait(6); chk(5); chk(6)
        e(f"v_pk_mul_f32 {vr(T,2)}, {vr(cs,2)}, {vr(mean,2)} op_sel_hi:[1,0]"); e(f"v_pk_mul_f32 {vr(T+2,2)}, {vr(cs+2,2)}, {vr(mean,2)} op_sel_hi:[1,0]")
        padd(e, W0 + 16, W0 + 20); padd(e, W0, T, neg=True); padd(e, W0, W0 + 16)
        wait(7); chk(7); padd(e, W0, W0 + 24)
        wait(8); chk(8); padd(e, W0, W0 + 28)
    fast_gather(e, o, loads, body, abort, pre=o.preR, early=o.early)
    e(f"v_pk_mul_f32 {vr(W0,2)}, {vr(W0,2)}, {vr(mean,2)} op_sel:[0,1] op_sel_hi:[1,1]")
    e(f"v_pk_mul_f32 {vr(W0+2,2)}, {vr(W0+2,2)}, {vr(mean,2)} op_sel:[0,1] op_sel_hi:[1,1]")

def hop_R2(e, o, inst, abort):
    ln_gather(e, o, V_R2, V_ST2, V_CSG, abort)
    e(f"v_max_f32 v{W0}, 0, v{W0}"); e(f"v_max_f32 v{W0+1}, 0, v{W0+1}")
    e(f"v_pk_mul_f32 {vr(W0,2)}, {vr(W0,2)}, {vr(W0+2,2)}")
    e(f"v_cvt_pk_bf16_f32 v{W0}, v{W0}, v{W0+1}")
    e.lg(f"ds_write_b32 v{V_WH}, v{W0}", "wh")

def q_consume(e, base, X, row):
    dpp8x2(e, X, X + 1, "add")
    sum_loads(e, 8, base)
    mean, rstd = X + 2, X + 3
    ln_from_stats(e, X, X + 1, mean, rstd)
    for r in range(4): e(f"v_fma_f32 v{base+r}, -v{mean}, v{V_CSQ+r}, v{base+r}")
    for r in range(4): e(f"v_mul_f32 v{base+r}, v{rstd}, v{base+r}")
    e(f"v_cvt_pk_bf16_f32 v{base}, v{base}, v{base+1}"); e(f"v_cvt_pk_bf16_f32 v{base+1}, v{base+2}, v{base+3}")
    e.lg(f"ds_write_b64 v{V_W8}, {vr(base,2)} offset:{QARR - SB + 384*row}", "wq")

def hop_R3(e, o, region, row, abort):
    ln_gather(e, o, V_R, V_ML, V_CSQ, abort)
    e(f"v_cvt_pk_bf16_f32 v{W0}, v{W0}, v{W0+1}"); e(f"v_cvt_pk_bf16_f32 v{W0+1}, v{W0+2}, v{W0+3}")
    e.lg(f"ds_write_b64 v{V_W8}, {vr(W0,2)} offset:{QARR - SB + 384*row}", "wq")

def go_flag(e):
    e(f"v_mov_b32 v{V_T}, {WFLAG + 12}"); e(f"v_mov_b32 v{V_T+1}, 1")
    e.lg(f"ds_write_b32 v{V_T}, v{V_T+1}", "go")

def chain(e, o, fl, inst, live, abort, st):
    c = f"c{inst}."
    if inst == 0 and o.NB1 != o.NB and o.go_at == "R1": go_flag(e)
    if inst == 0: o._save = (o.preR, o.preL, o.preG); o.preL, o.preG = o.preL + o.preL0, o.preG + o.preG0
    st.rounds(f"n{inst}.R1")
    st(c + "R1")
    pk = o.packed.split(",") if o.packed else []
    if inst == 0 and o.split_tok:
        TO, TD = W0 + 38, W0 + 36
        omask = 0xffffffff00ff0000
        def shadow():
            tok2_offsets(e, TO, W0 + 24, others_only=True)
            e(f"s_mov_b32 s{S_B}, {TOK2}")
            set_exec(e, omask)
            e.vm(f"buffer_load_dwordx2 {vr(TD,2)}, v{TO}, s[{SRD_WS}:{SRD_WS+3}], s{S_B} offen sc1", "tok2b")
            e("s_mov_b64 exec, -1")
        stage_WO(e, "sc1" if "00" in pk else fl, L_REG(inst, 0), shadow=shadow)
        ok, lab = e.newlabel("tok2ok"), e.newlabel("tok2re")
        e.vm_wait("tok2b")
        set_exec(e, omask)
        e(f"v_cmp_ne_u32 vcc, s{S_TAG}, v{TD}")
        e(f"s_cbranch_vccz {ok}")
        e(f"s_mov_b32 s{S_CNT}, {o.poll_limit}")
        e.label(lab)
        e(f"buffer_load_dwordx2 {vr(TD,2)}, v{TO}, s[{SRD_WS}:{SRD_WS+3}], s{S_B} offen sc1")
        e(f"s_sub_u32 s{S_CNT}, s{S_CNT}, 1"); e(f"s_cbranch_scc1 {abort}")
        e("s_waitcnt vmcnt(0)")
        e(f"v_cmp_ne_u32 vcc, s{S_TAG}, v{TD}")
        e(f"s_cbranch_vccnz {lab}")
        e.label(ok)
        e("s_mov_b64 exec, -1")
        st(c + "WO")
        if "00" in pk: hop_packed(e, o, abort, inst, 0, o.preP0)
        else: hop_LG(e, o, inst, 0, abort)
    elif f"{inst}0" in pk:
        stage_WO(e, "sc1", L_REG(inst, 0))
        st(c + "WO")
        hop_packed(e, o, abort, inst, 0, o.preP0 if inst == 0 else o.preF0)
    elif inst == 2 and o.direct0:
        stage_WO(e, "sc1", L_REG(inst, 0))
        st(c + "WO")
        hop_final(e, o, abort, k=0)
    else:
        stage_WO(e, fl, L_REG(inst, 0))
        st(c + "WO")
        hop_LG(e, o, inst, 0, abort)
    if inst == 0 and o.NB1 != o.NB and o.go_at == "G1": go_flag(e)
    if inst == 0: o.preR, o.preL, o.preG = o._save
    st.rounds(f"n{inst}.G1")
    st(c + "G1")
    residual_update(e)
    def sh_gu():
        residual_unpack(e, W0 + 4); g_soffs(e, S_RGRP, R2_REG[inst] * RG)
    stage_GU(e, fl, R2_REG[inst] * RG, shadow=sh_gu)
    st(c + "GU")
    hop_R2(e, o, inst, abort)
    st.rounds(f"n{inst}.R2")
    st(c + "R2")
    if f"{inst}1" in pk:
        stage_D(e, "sc1", L_REG(inst, 1))
        st(c + "D")
        hop_packed(e, o, abort, inst, 1, o.preP1 if inst == 0 else (o.preF if inst == 2 else o.preF1))
    elif inst == 2 and o.direct:
        stage_D(e, "sc1", L_REG(inst, 1))
        st(c + "D")
        hop_final(e, o, abort)
    else:
        stage_D(e, fl, L_REG(inst, 1))
        st(c + "D")
        hop_LG(e, o, inst, 1, abort, final_only=(inst == 2))
    st.rounds(f"n{inst}.G2")
    st(c + "G2")
    if inst == 2:
        e(f"v_cvt_pk_bf16_f32 v{W0+4}, v{W0}, v{W0+1}"); e(f"v_cvt_pk_bf16_f32 v{W0+5}, v{W0+2}, v{W0+3}")
        for r in LIVE[2]: store_out(e, r, only=len(LIVE[2]) == 1)
        e("s_cmp_lg_u32 s2, 0"); e("s_cbranch_scc1 L_done")
        e(f"v_mov_b32 v{V_T}, s{S_TAG}"); e(f"v_mov_b32 v{V_T+1}, {EPOCH_OFF}")
        e("s_mov_b64 exec, 1")
        e(f"buffer_store_dword v{V_T}, v{V_T+1}, s[{SRD_WS}:{SRD_WS+3}], 0 offen sc1")
        e("s_mov_b64 exec, -1")
        return
    residual_update(e)
    qrow = 0 if inst == 0 else 1
    def sh_q():
        residual_unpack(e, W0 + 4); g_soffs(e, S_RGRP, R3_REG[inst] * RG)
        if inst == 1 and 0 in LIVE[1]:
            store_out(e, 0)
            cm = cols_mask([1]); e(f"s_mov_b32 vcc_lo, 0x{cm & 0xffffffff:08x}"); e(f"s_mov_b32 vcc_hi, 0x{cm >> 32:08x}")
            e(f"v_cndmask_b32 v{V_PQ}, v{V_OOB}, v{V_PQ}, vcc"); e(f"v_cndmask_b32 v{V_PSQ}, v{V_OOB}, v{V_PSQ}, vcc")
    stage_Q(e, fl, R3_REG[inst] - qrow, shadow=sh_q)
    st(c + "Q")
    hop_R3(e, o, R3_REG[inst], qrow, abort)
    e.lg_all()
    st.rounds(f"n{inst}.R3")
    st(c + "R3")

TOK1 = 21 * RG
TOK2 = TOK1 + 32768
EPOCH_OFF = 896
S_TAG = 73

LIVE = {0: [0], 1: [0, 1], 2: [1]}
o_direct = [True, False]
o_packed = [False]
o_exp = ['']
o_dset = set()
def emit_resets_P(e):
    e(f"v_mov_b32 v{W0}, -1"); e(f"v_mov_b32 v{W0+1}, -1"); e(f"v_mov_b32 v{W0+2}, -1"); e(f"v_mov_b32 v{W0+3}, -1")
    for r in [4, 5, 6]:
        e(f"s_add_u32 s{S_A}, s{S_ROWN}, {r*RG}")
        e.vm(f"buffer_store_dwordx4 {vr(W0,4)}, v{V_R}, s[{SRD_WS}:{SRD_WS+3}], s{S_A} offen sc1", "rstp")
    e(f"v_lshlrev_b32 v{V_T}, 4, v{V_LANE}")
    selmask(e, W0 + 4, V_T, rows_mask([0], 24))
    e(f"s_add_u32 s{S_A}, s{S_ROWN}, {R2_REG['P']*RG}")
    e.vm(f"buffer_store_dwordx4 {vr(W0,4)}, v{W0+4}, s[{SRD_WS}:{SRD_WS+3}], s{S_A} offen sc1", "rstp")

def emit_resets(e, f):
    e(f"v_mov_b32 v{W0}, -1"); e(f"v_mov_b32 v{W0+1}, -1"); e(f"v_mov_b32 v{W0+2}, -1"); e(f"v_mov_b32 v{W0+3}, -1")
    def reset(vo, sreg, const):
        e(f"s_add_u32 s{S_A}, s{sreg}, {const}")
        e.vm(f"buffer_store_dwordx4 {vr(W0,4)}, v{vo}, s[{SRD_WS}:{SRD_WS+3}], s{S_A} offen {f}", "rst")
    e(f"v_and_b32 v{V_T}, 31, v{V_LANE}"); e(f"v_lshlrev_b32 v{V_T}, 4, v{V_T}")
    e(f"v_lshrrev_b32 v{V_T+1}, 5, v{V_LANE}"); e(f"v_lshl_add_u32 v{V_T}, v{V_T+1}, 9, v{V_T}")
    liv = dict(LIVE); liv['P'] = [0]
    skip = e.newlabel("norstg")
    e(f"s_cmp_lg_u32 s{S_HQ}, 0"); e(f"s_cbranch_scc1 {skip}")
    for inst in (0, 1, 2):
        ks = [k for k in range(2) if (inst, k) not in o_dset]
        if not ks: continue
        selmask(e, W0 + 4, V_T, rows_mask(liv[inst], 20))
        for k in ks:
            e(f"s_add_u32 s{S_A}, s{S_GOWN}, {G_OFF(inst,k)}")
            e(f"buffer_store_dwordx4 {vr(W0,4)}, v{W0+4}, s[{SRD_WS}:{SRD_WS+3}], s{S_A} offen sc1")
    e.label(skip)
    for r in [7, 8] + list(R1_REG.values()): reset(V_R, S_ROWN, r * RG)
    for inst in (0, 1, 2):
        selmask(e, W0 + 4, V_T, rows_mask(liv[inst], 25))
        reset(W0 + 4, S_ROWN, R2_REG[inst] * RG)
        selmask(e, W0 + 4, V_T, rows_mask(liv[inst], 20))
        for k in range(2):
            if (inst, k) in o_dset:
                if o_exp[0] and "noLrst" in o_exp[0]: continue
                e(f"s_add_u32 s{S_A}, s{S_LOWN}, {L_REG(inst, k) * RG}")
                e.vm(f"buffer_store_dwordx4 {vr(W0,4)}, v{W0+4}, s[{SRD_WS}:{SRD_WS+3}], s{S_A} offen sc1", "rst")
            else: reset(W0 + 4, S_LOWN, L_REG(inst, k) * RG)

def token_store(e, base, second):
    e(f"s_lshl_b32 s{S_A}, s2, 7"); e(f"s_add_u32 s{S_A}, s{S_A}, {base}")
    e(f"v_mov_b32 v{W0+40}, s{S_TAG}"); e(f"v_mov_b32 v{W0+41}, {second}"); e(f"v_mov_b32 v{V_T}, 0")
    e("s_mov_b64 exec, 1")
    e.vm(f"buffer_store_dwordx2 {vr(W0+40,2)}, v{V_T}, s[{SRD_WS}:{SRD_WS+3}], s{S_A} offen sc1", "tok")
    e("s_mov_b64 exec, -1")

def token_gather(e, o, base, vo, mask, sleep=0, dst=W0, between=None):
    lab = e.newlabel("tok"); chk = e.newlabel("tokchk")
    if between:
        e(f"s_mov_b32 s{S_B}, {base}")
        set_exec(e, mask)
        e(f"buffer_load_dwordx2 {vr(dst,2)}, v{vo}, s[{SRD_WS}:{SRD_WS+3}], s{S_B} offen sc1")
        e("s_mov_b64 exec, -1")
        between()
        e(f"s_mov_b32 s{S_A}, {base}")
        set_exec(e, mask)
        e(f"s_mov_b32 s{S_CNT}, {o.poll_limit}")
        e(f"s_branch {chk}")
    else:
        e(f"s_mov_b32 s{S_A}, {base}")
        set_exec(e, mask)
        e(f"s_mov_b32 s{S_CNT}, {o.poll_limit}")
    e.label(lab)
    e(f"buffer_load_dwordx2 {vr(dst,2)}, v{vo}, s[{SRD_WS}:{SRD_WS+3}], s{S_A} offen sc1")
    e(f"s_sub_u32 s{S_CNT}, s{S_CNT}, 1"); e(f"s_cbranch_scc1 L_abort")
    e.label(chk)
    e("s_waitcnt vmcnt(0)")
    e(f"v_cmp_ne_u32 vcc, s{S_TAG}, v{dst}")
    if sleep:
        ok = e.newlabel("tokok"); e(f"s_cbranch_vccz {ok}"); e(f"s_sleep {sleep}"); e(f"s_branch {lab}"); e.label(ok)
    else: e(f"s_cbranch_vccnz {lab}")
    e.vmq = []

def tr_block(e, items):
    i, g, r, c, t = W0, W0 + 1, W0 + 2, W0 + 3, W0 + 4
    a32, a16 = W0 + 6, W0 + 7
    def tr_setup():
        e(f"v_and_b32 v{i}, 15, v{V_LANE}"); e(f"v_lshrrev_b32 v{g}, 4, v{V_LANE}")
        e(f"v_lshrrev_b32 v{r}, 2, v{i}"); e(f"v_and_b32 v{c}, 3, v{i}")
    def trbase(dst, stride, rows_per_g, base):
        e(f"v_mul_u32_u24 v{t}, {rows_per_g}, v{g}"); e(f"v_add_u32 v{t}, v{t}, v{r}")
        e(f"v_mul_u32_u24 v{t}, {stride}, v{t}"); e(f"v_lshl_add_u32 v{dst}, v{c}, 3, v{t}")
        if base: e(f"v_add_u32 v{dst}, {base}, v{dst}")
    def tr(frag, addr, off, k16, stride):
        f, lo = frag
        e.lg(f"ds_read_b64_tr_b16 {f}[{lo}:{lo+1}], v{addr} offset:{off}", "tr")
        if not k16: e.lg(f"ds_read_b64_tr_b16 {f}[{lo+2}:{lo+3}], v{addr} offset:{off+4*stride}", "tr")
        if len(e.lgq) >= 12: e.lg_wait_n(4)
    if True:
        tr_setup()
        for frag, nt, stride, base, ks in items:
            trbase(a32, stride, 8, base); trbase(a16, stride, 4, base)
            nk = len(ks)
            for tt in range(nt):
                for s, k0 in enumerate(ks):
                    k16 = (frag is not wo_frag) and s == nk - 1
                    tr(frag(tt, s), a16 if k16 else a32, k0 * stride + 32 * tt, k16, stride)
        e.lg_all()

def prologue_weights(e, o, st):
    abort = "L_abort"
    e(f"v_mov_b32 v{W0+2}, 0x3f803f80"); e(f"v_mov_b32 v{W0+3}, 0x3f803f80")
    e(f"v_lshlrev_b32 v{W0+4}, 3, v{V_LANE}"); e(f"v_add_u32 v{W0+4}, {ACT_X+384}, v{W0+4}")
    set_exec(e, mask64(range(24)))
    e.lg(f"ds_write_b64 v{W0+4}, {vr(W0+2,2)}", "ones")
    e("s_mov_b64 exec, -1")
    e.lg(f"ds_write_b64 v{V_WX}, {vr(V_XR,2)}", "wx")
    e(f"v_lshlrev_b32 v{V_XR+2}, 16, v{V_XR+1}"); e(f"v_and_b32 v{V_XR+3}, 0xffff0000, v{V_XR+1}")
    e(f"v_and_b32 v{V_XR+1}, 0xffff0000, v{V_XR}"); e(f"v_lshlrev_b32 v{V_XR}, 16, v{V_XR}")
    e.lg_all()
    lab = e.newlabel("wflag")
    e(f"v_mov_b32 v{V_T+1}, {WFLAG}")
    e(f"s_mov_b32 s{S_CNT}, {o.poll_limit*8}")
    e.label(lab)
    e(f"ds_read_b96 {vr(W0,3)}, v{V_T+1}")
    e(f"s_sub_u32 s{S_CNT}, s{S_CNT}, 1"); e(f"s_cbranch_scc1 {abort}")
    e("s_waitcnt lgkmcnt(0)")
    e(f"v_and_b32 v{W0}, v{W0}, v{W0+1}"); e(f"v_and_b32 v{W0}, v{W0}, v{W0+2}")
    e(f"v_cmp_ne_u32 vcc, 1, v{W0}")
    e(f"s_cbranch_vccnz {lab}")
    st("p.wland")
    tr_block(e, [(wq_frag, 12, 384, ST_WQ, (0, 32, 64)), (wg_frag, 3, 96, ST_WG, (0, 32, 64)), (wu_frag, 3, 96, ST_WU, (0, 32, 64))])
    st("p.weights")

def tok2_offsets(e, TO, tmp, others_only=False):
    L = V_LANE; t, u, a, b, c = tmp, tmp + 1, tmp + 2, tmp + 3, tmp + 4
    e(f"v_and_b32 v{t}, 7, v{L}")
    e(f"s_lshl_b32 s{S_T1}, s{S_J}, 3")
    e(f"v_add_u32 v{c}, s{S_T1}, v{t}")
    if not others_only:
        e(f"v_lshlrev_b32 v{u}, 3, v{t}")
        e(f"s_lshl_b32 s{S_T0}, s{S_HQ}, 6"); e(f"s_add_u32 s{S_T0}, s{S_T0}, s{S_XC}"); e(f"v_add_u32 v{a}, s{S_T0}, v{u}")
        e(f"v_lshlrev_b32 v{u}, 6, v{t}")
        e(f"s_add_u32 s{S_T0}, s{S_T1}, s{S_XC}"); e(f"v_add_u32 v{b}, s{S_T0}, v{u}")
        e("s_mov_b32 vcc_lo, 0x00000f00"); e("s_mov_b32 vcc_hi, 0"); e(f"v_cndmask_b32 v{a}, v{a}, v{b}, vcc")
        e("s_mov_b32 vcc_lo, 0x00ff0000"); e(f"v_cndmask_b32 v{a}, v{a}, v{c}, vcc")
    else: e(f"v_mov_b32 v{a}, v{c}")
    e(f"v_bfe_u32 v{u}, v{L}, 3, 2"); e(f"v_lshlrev_b32 v{u}, 6, v{u}"); e(f"v_add_u32 v{c}, v{c}, v{u}")
    e("s_mov_b32 vcc_lo, 0"); e("s_mov_b32 vcc_hi, -1"); e(f"v_cndmask_b32 v{a}, v{a}, v{c}, vcc")
    e(f"v_lshlrev_b32 v{TO}, 7, v{a}")

def cw_load_tiles(e, o, base):
    R = NS(voffK=1, voffX=2, voffY=3)
    for T in range(CW_TILES):
        kv_soff(e, base, T)
        for s in range(3): ld_k(e, R, vr(CW_K + 12 * T + 4 * s, 4), s, ('K', T, s), o)
    for T in range(CW_TILES):
        kv_soff(e, base, T)
        for w in range(3): ld_v(e, R, vr(CW_V + 12 * T + 4 * w, 4), w, ('V', T, w), o)

def chain_wave(e, o, st, local):
    fl = "" if local else "sc1"
    abort = "L_abort"
    R = NS(vlds=V_L16, voffK=1, voffX=2, voffY=3, sel=V_SEL, qA=32, D=44, sc=56, tmp=57, vpw=62, acc=32, A=44, pp=52, vpp=63, vm=60, vl=61, vlt=59)
    instance_offsets(e, [0, 1], pub_live=[2], q_live=[0, 1, 2])
    stage_Q(e, fl, R3_REG['P'])
    stage_GU(e, fl, R2_REG['P'] * RG - 1024, with_stats=False)
    st("p.pub")
    emit_resets(e, fl)
    st("reset")
    tr_block(e, [(wo_frag, 5, 160, ST_WO, (0, 32, 64, 96, 128, 160)), (wd_frag, 5, 160, ST_WD, (0, 32))])
    GA = CW_K
    e(f"v_and_b32 v{V_T}, 31, v{V_LANE}"); e(f"v_lshlrev_b32 v{V_T}, 4, v{V_T}")
    selmask(e, W0 + 40, V_T, rows_mask([0, 1], 24))
    sr = list(range(10, 18))
    for k, reg in enumerate((4, 5, 6, R2_REG['P'])):
        e(f"s_add_u32 s{sr[2*k]}, s{S_RGRP}, {reg*RG}"); e(f"s_add_u32 s{sr[2*k+1]}, s{sr[2*k]}, 4096")
    loads = []
    for row in range(3):
        loads += [(GA + 32 * row + 4 * k, V_R, sr[2*row + (k >= 4)], (k % 4) * 1024) for k in range(8)]
    loads += [(W0 + 32, V_ML, sr[0], 0), (W0 + 36, V_ML, sr[2], 0)]
    loads += [(W0 + 4 * k, W0 + 40, sr[6 + (k >= 4)], (k % 4) * 1024) for k in range(8)]
    poll(e, o, loads, abort, sleep=o.p_sleep)
    token_store(e, TOK2, 0)
    st("p.gather")
    sum_loads(e, 8, GA + 64)
    for rr in range(4): e(f"v_mov_b32 v{V_CSQ+rr}, v{GA+64+rr}")
    sum_loads(e, 8, W0)
    for rr in range(4): e(f"v_mov_b32 v{V_CSG+rr}, v{W0+rr}")
    for row in range(2):
        q_consume(e, GA + 32 * row, W0 + 32 + 4 * row, row)
    st("q1")
    def load_tiles(base): cw_load_tiles(e, o, base)
    load_tiles(S_KV0)
    instance_offsets(e, [0])
    TO, TD = W0 + 38, W0 + 36
    tok2_offsets(e, TO, W0 + 2)
    tmask = 0x00000fff if o.split_tok else (0xffffffff00ff0fff if o.direct else 0x00ff0fff)
    def first_pass():
        e.vmq.append("tok2")
        e.lg_all()
        st("pro_done")
        e("s_barrier")
        if "stopA" in o.exp: e("s_branch L_done")
        def kw(T):
            if T >= 0: e.vm_wait(('K', T, 2))
        def vw(T, w): e.vm_wait(('V', T, w))
        attn_pass(e, R, CW_TILES, 0, Kf, Vf, S_PB, 0, k_wait=kw, v_wait=vw)
    Kf = lambda T, s: vr(CW_K + 12 * T + 4 * s, 4)
    Vf = lambda T, w: vr(CW_V + 12 * T + 4 * w, 4)
    token_gather(e, o, TOK2, TO, tmask, sleep=o.t_sleep, dst=TD, between=first_pass)
    e("s_mov_b64 exec, -1")
    st("p.tok2g")
    e("s_barrier")
    st("bar2")
    parts = [PART + 1536 * w for w in range(4)]
    combine_publish(e, fl, parts, ML, R1_REG[0])
    st("c0.cmb")
    sv = o.preR; o.preR = sv + o.preR0
    hop_R1(e, o, R1_REG[0], 0, abort)
    o.preR = sv
    chain(e, o, fl, 0, [0], abort, st)
    st("chain0")
    e("s_barrier")
    attn_pass(e, R, CW_TILES, 0, Kf, Vf, S_PB, 32)
    e("s_barrier")
    parts_early = [PART] + [LDS_SW * s + 48 * 1024 for s in range(3)]
    combine_publish(e, fl, parts_early, ML + 32, R1_REG['1a'])
    load_tiles(S_KV1)
    instance_offsets(e, LIVE[1])
    hop_R1(e, o, R1_REG['1a'], 0, abort)
    e.vmq = []
    attn_pass(e, R, CW_TILES, 1, Kf, Vf, S_PB, 0)
    e("s_barrier")
    st("bar6")
    combine_publish(e, fl, parts, ML, R1_REG['1b'])
    st("c1.cmb")
    hop_R1(e, o, R1_REG['1b'], 1, abort)
    chain(e, o, fl, 1, [0, 1], abort, st)
    st("chain1")
    e("s_barrier")
    attn_pass(e, R, CW_TILES, 1, Kf, Vf, S_PB, 0)
    instance_offsets(e, LIVE[2])
    e("s_barrier")
    st("bar8")
    combine_publish(e, fl, parts, ML, R1_REG[2])
    st("c2.cmb")
    hop_R1(e, o, R1_REG[2], 1, abort)
    chain(e, o, fl, 2, [1], abort, st)
    st("chain2")
    e("s_branch L_done")

def chain_wave_setup(e, o, st):
    L = V_LANE
    if o.prio: e(f"s_setprio {o.prio}")
    lane_id(e, L)
    e(f"v_mov_b32 v{V_OOB}, 0x{OOB:08x}")
    e(f"s_lshl_b32 s{S_RGRP}, s{S_H}, 13"); e(f"s_lshl_b32 s{S_T0}, s{S_J}, 10"); e(f"s_add_u32 s{S_ROWN}, s{S_RGRP}, s{S_T0}")
    e(f"s_lshl_b32 s{S_LGRP}, s{S_XC}, 3"); e(f"s_add_u32 s{S_LGRP}, s{S_LGRP}, s{S_J}"); e(f"s_lshl_b32 s{S_LGRP}, s{S_LGRP}, 12")
    e(f"s_lshl_b32 s{S_T0}, s{S_HQ}, 10"); e(f"s_add_u32 s{S_LOWN}, s{S_LGRP}, s{S_T0}")
    e(f"s_lshl_b32 s{S_GGRP}, s{S_J}, 13"); e(f"s_lshl_b32 s{S_T0}, s{S_XC}, 10"); e(f"s_add_u32 s{S_GOWN}, s{S_GGRP}, s{S_T0}")
    late_common(e)
    if "nocw" in o.exp:
        e("s_barrier")
        st("bar1x")
        e("s_branch L_done")
    e(f"v_lshlrev_b32 v{V_L16}, 4, v{L}")
    selmask(e, V_R, V_L16, mask64(range(49)))
    e(f"s_load_dword s{S_TAG}, s[{S_WS}:{S_WS+1}], {EPOCH_OFF}")
    if "noPrst" not in o.exp: emit_resets_P(e)
    e(f"s_getreg_b32 s{S_T2}, hwreg(HW_REG_XCC_ID)"); e(f"s_and_b32 s{S_T2}, s{S_T2}, 0xf")
    make_srd(e, SRD_T, S_X, 2560)
    e(f"v_and_b32 v{V_T}, 31, v{L}"); e(f"v_lshlrev_b32 v{V_T}, 3, v{V_T}")
    e(f"v_lshrrev_b32 v{V_T+1}, 5, v{L}"); e(f"v_mul_u32_u24 v{V_T+1}, 1280, v{V_T+1}"); e(f"v_add_u32 v{V_T}, v{V_T}, v{V_T+1}")
    selmask(e, V_T, V_T, rows_mask([0, 1], 20))
    e(f"s_mul_i32 s{S_T0}, s{S_J}, 160")
    e.vm(f"buffer_load_dwordx2 {vr(V_XR,2)}, v{V_T}, s[{SRD_T}:{SRD_T+3}], s{S_T0} offen", "x")
    e(f"s_add_u32 s{S_KV1}, s{S_KV0}, {BATCH_STRIDE}")
    R = NS(voffK=1, voffX=2, voffY=3, sel=V_SEL)
    attn_selectors(e, R, L, W0)
    n, g, x = W0, W0 + 1, W0 + 2
    e(f"v_mov_b32 v{W0+3}, v{V_L16}"); selmask(e, V_L16, W0 + 3, mask64(range(48)), other=0)
    e(f"v_and_b32 v{n}, 15, v{L}"); e(f"v_lshrrev_b32 v{g}, 4, v{L}")
    e(f"v_min_u32 v{x}, 1, v{n}")
    e(f"v_mul_u32_u24 v{V_BO}, 384, v{x}"); e(f"v_lshl_add_u32 v{V_BO}, v{g}, 4, v{V_BO}"); e(f"v_add_u32 v{V_BO}, {ACT_O}, v{V_BO}")
    e(f"v_lshlrev_b32 v{V_BH}, 7, v{x}"); e(f"v_lshl_add_u32 v{V_BH8}, v{g}, 3, v{V_BH}"); e(f"v_add_u32 v{V_BH8}, {ACT_H+64}, v{V_BH8}")
    e(f"v_lshl_add_u32 v{V_BH}, v{g}, 4, v{V_BH}"); e(f"v_add_u32 v{V_BH}, {ACT_H}, v{V_BH}")
    e(f"v_min_u32 v{x}, 2, v{n}")
    e(f"v_mul_u32_u24 v{V_BX}, 192, v{x}"); e(f"v_lshl_add_u32 v{V_BX8}, v{g}, 3, v{V_BX}"); e(f"v_add_u32 v{V_BX8}, {ACT_X+128}, v{V_BX8}")
    e(f"v_lshl_add_u32 v{V_BX}, v{g}, 4, v{V_BX}"); e(f"v_add_u32 v{V_BX}, {ACT_X}, v{V_BX}")
    e(f"v_subrev_u32 v{x}, 1, v{n}"); e(f"v_min_u32 v{x}, 2, v{x}")
    e(f"v_mul_u32_u24 v{V_AS}, 192, v{x}"); e(f"v_lshl_add_u32 v{V_AS8}, v{g}, 3, v{V_AS}"); e(f"v_add_u32 v{V_AS8}, {ACT_X+128}, v{V_AS8}")
    e(f"v_lshl_add_u32 v{V_AS}, v{g}, 4, v{V_AS}"); e(f"v_add_u32 v{V_AS}, {ACT_X}, v{V_AS}")
    e(f"v_lshlrev_b32 v{x}, 3, v{L}"); e(f"v_add_u32 v{x}, {SB}, v{x}"); selmask(e, V_W8, x, mask64(range(48)), other=SB+2560)
    e(f"v_and_b32 v{n}, 31, v{L}"); e(f"v_lshrrev_b32 v{g}, 5, v{L}")
    e(f"v_mul_u32_u24 v{x}, 192, v{g}"); e(f"v_lshl_add_u32 v{x}, v{n}, 3, v{x}"); e(f"v_add_u32 v{x}, {ACT_X}, v{x}")
    selmask(e, V_WX, x, rows_mask([0, 1], 20), other=DUMMY)
    e(f"v_lshlrev_b32 v{x}, 7, v{g}"); e(f"v_lshl_add_u32 v{x}, v{n}, 2, v{x}"); e(f"v_add_u32 v{x}, {ACT_H}, v{x}")
    selmask(e, V_WH, x, rows_mask([0, 1], 24), other=DUMMY)
    e(f"v_and_b32 v{x}, 7, v{L}"); e(f"v_lshlrev_b32 v{x}, 10, v{x}"); e(f"v_add_u32 v{V_ML}, 768, v{x}")
    m = mask64([16 * a + 1 for a in range(4)])
    e(f"s_mov_b32 s{S_N1}, 0x{m & 0xffffffff:08x}"); e(f"s_mov_b32 s{S_N1+1}, 0x{m >> 32:08x}")
    e("s_waitcnt lgkmcnt(0)")
    e(f"s_add_u32 s{S_TAG}, s{S_TAG}, 1")
    e.vm_all(force=True)
    token_store(e, TOK1, f"s{S_T2}")
    st("p.tok1")
    TO, TD = W0 + 38, W0 + 36
    e(f"v_lshlrev_b32 v{TO}, 10, v{L}"); e(f"s_lshl_b32 s{S_T0}, s{S_XC}, 7"); e(f"v_add_u32 v{TO}, s{S_T0}, v{TO}")
    token_gather(e, o, TOK1, TO, 0xffffffff, sleep=o.t_sleep, dst=TD, between=lambda: prologue_weights(e, o, st))
    e(f"v_cmp_ne_u32 vcc, s{S_T2}, v{TD+1}")
    e("s_mov_b64 exec, -1")
    st("p.mode")
    e("s_nop 3")
    e("s_cmp_lg_u32 vcc_lo, 0")

def late_common(e):
    make_srd(e, SRD_V, S_V, KV_BYTES); make_srd(e, SRD_WS, S_WS, WS_REC)
    e(f"s_mov_b32 s{S_C}, {lit(CSCALE)}")
    e(f"s_mov_b32 s{S_HI32}, 0"); e(f"s_mov_b32 s{S_HI32+1}, -1")
    e(f"s_mul_i32 s{S_PB}, s{S_WAVE}, 1536"); e(f"s_add_u32 s{S_PB}, s{S_PB}, {PART}")
    e(f"s_lshl_b32 s{S_MLB}, s{S_WAVE}, 3"); e(f"s_add_u32 s{S_MLB}, s{S_MLB}, {ML}")

def generate(o):
    Stamps.select = o.stampset.split(",") if o.stampset else None
    o_direct[0] = o.direct; o_direct[1] = o.direct0
    LIVE.update({1: [1], 2: [0, 1]} if o.late_b0 else {1: [0, 1], 2: [1]})
    o_packed[0] = bool(o.packed)
    o_exp[0] = o.exp
    o_dset.clear()
    if o.packed: o_dset.update({(int(c[0]), int(c[1])) for c in o.packed.split(",")})
    if o.direct: o_dset.add((2, 1))
    if o.direct0: o_dset.add((2, 0))
    e = Emit()
    e("s_cmp_ge_u32 s2, 256"); e("s_cbranch_scc1 L_done")
    e("s_load_dwordx16 s[4:19], s[0:1], 0"); e("s_load_dwordx8 s[20:27], s[0:1], 64")
    e("v_lshrrev_b32 v1, 6, v0")
    e(f"s_and_b32 s{S_XC}, s2, 7"); e(f"s_lshr_b32 s{S_HQ}, s2, 6")
    e(f"v_readfirstlane_b32 s{S_WAVE}, v1")
    e(f"s_lshr_b32 s{S_J}, s2, 3"); e(f"s_and_b32 s{S_J}, s{S_J}, 7")
    e(f"s_lshl_b32 s{S_H}, s{S_XC}, 2"); e(f"s_add_u32 s{S_H}, s{S_H}, s{S_HQ}")
    e(f"s_mul_i32 s{S_KV0}, s{S_H}, {HEAD_STRIDE}"); e(f"s_mul_i32 s{S_T0}, s{S_J}, {CHUNK_STRIDE}"); e(f"s_add_u32 s{S_KV0}, s{S_KV0}, s{S_T0}")
    e(f"s_add_u32 s{S_T0}, s{S_WAVE}, 3"); e(f"s_and_b32 s{S_T0}, s{S_T0}, 3")
    e(f"s_mul_i32 s{S_T1}, s{S_T0}, {SW_TILES*TILE_B}"); e(f"s_add_u32 s{S_KV0}, s{S_KV0}, s{S_T1}")
    lane_id(e, 8)
    e("v_mov_b32 v14, 0"); e(f"v_mov_b32 v15, {WFLAG}"); e("v_lshl_add_u32 v15, v8, 2, v15")
    e("s_mov_b64 exec, 15")
    e("ds_write_b32 v15, v14")
    e("s_mov_b64 exec, -1")
    attn_load_offsets(e, NS(voffK=1, voffX=2, voffY=3), 8, 10)
    e("s_waitcnt lgkmcnt(0)")
    e("s_barrier")
    make_srd(e, SRD_K, S_K, KV_BYTES)
    e(f"s_cmp_eq_u32 s{S_WAVE}, 0"); e("s_cbranch_scc1 L_chain")
    st_s = Stamps(e, o.stamps); st_s("start")
    stream_wave(e, o, st_s)
    e.label("L_chain")
    e.vmq = []; e.lgq = []
    st_c = Stamps(e, o.stamps); st_c("start")
    chain_wave_setup(e, o, st_c)
    names = {}
    if o.force_global: e("s_branch L_global")
    else: e("s_cbranch_scc1 L_global")
    base_names = list(st_c.names)
    sv = (list(e.vmq), list(e.lgq))
    chain_wave(e, o, st_c, True)
    names['cw'] = list(st_c.names); names['sw'] = list(st_s.names)
    e.label("L_global")
    e.vmq, e.lgq = sv
    st_g = Stamps(e, o.stamps); st_g.names = list(base_names)
    chain_wave(e, o, st_g, False)
    e.label("L_abort")
    e.label("L_done")
    if o.stamps:
        e("s_cmp_ge_u32 s2, 256"); e("s_cbranch_scc1 L_exit")
        fl = Stamps(e, True); fl.names = names['cw']; fl.flush()
        e.label("L_exit")
    e("s_endpgm")
    return e, names

HEAD = """; Fused two-layer decode step (attention over a cached K/V + ReGLU FFN, twice), one persistent launch.
; @launch grid=(256,1,1) block=(256,1,1) lds=%d
;
.amdgcn_target "amdgcn-amd-amdhsa--gfx950"
.text
.globl %s
.p2align 8
.type %s,@function
%s:
"""
FOOT = """
.section .rodata,"a"
.p2align 6
.amdhsa_kernel %s
  .amdhsa_next_free_vgpr 512
  .amdhsa_next_free_sgpr 102
  .amdhsa_accum_offset 256
  .amdhsa_group_segment_fixed_size 0
  .amdhsa_kernarg_size 96
  .amdhsa_user_sgpr_count 2
  .amdhsa_user_sgpr_kernarg_segment_ptr 1
  .amdhsa_system_sgpr_workgroup_id_x 1
  .amdhsa_float_denorm_mode_32 3
.end_amdhsa_kernel
"""
def build_text(o):
    e, names = generate(o)
    return HEAD % (LDS_TOTAL, NAME, NAME, NAME) + e.text() + "\n" + FOOT % NAME, names, e

if __name__ == "__main__":
    o = Opt()
    for a in sys.argv[2:]:
        k, v = a.split("=")
        cur = getattr(o, k)
        setattr(o, k, (v not in ("0", "False")) if isinstance(cur, bool) else type(cur)(v))
    txt, names, e = build_text(o)
    open(sys.argv[1], "w").write(txt)
    print("instructions:", e.ninst, "nops:", e.nops, names)
```

```python
import sys, struct
from types import SimpleNamespace as NS
from emit import Emit, vr

NAME = "interleave_layers__mha_block_cached__glu_gated_reglu__decode_kernel"

class Opt:
    NA = 24
    NA_BAR = 120
    NB = 8
    NB1 = 8
    go_at = "G1"
    NC = 56
    NA0 = 24
    NA0N = 0
    light = False
    pf = 0
    pf_all = False
    NF = 12
    NW = 24
    stamps = False
    poll_limit = 400000
    kvflags = "nt"
    wflags = "nt"
    woflags = "nt"
    wgflags = "nt"
    stampset = ""
    p_sleep = 8
    mb_sleep = 0
    exp = ""
    t_sleep = 0
    early = False
    wb = 0
    prio = 0
    late_rst = False
    preGn = 0
    packed = "10,11"
    preF1 = 16
    preP0 = 0
    preP1 = 0
    direct0 = True
    preF0 = 16
    direct = True
    preF = 0
    look = 2
    NAe = 14
    NCe = 24
    late_b0 = True
    split_tok = True
    rotA = 0
    rotB = 0
    tlb = False
    pf_wave = 3
    preE = True
    defer = 0
    preR0 = 0
    preL0 = 0
    preG0 = 0
    preR = 0
    preL = 0
    preG = 6
    flag_sleep = 0
    force_global = False

KV_BYTES = 100663296
BATCH_STRIDE = 50331648
HEAD_STRIDE = 1572864
CHUNK_STRIDE = 196608
TILE_B = 3072
SW_TILES, CW_TILES = 20, 4
OOB = 0x7fff0000

LDS_SW = 51200
SB = 153600
PART = SB
ML = SB + 6144
QARR = SB + 6208
ACT_O = SB + 6976
ACT_X = SB + 7744
ACT_H = SB + 8320
DUMMY = SB + 8576
WFLAG = SB + 10192
LDS_TOTAL = 163840
ST_WQ, ST_WG, ST_WU, ST_WO, ST_WD = 0, 30720, 38400, 51200, 81920

STD_WG, STD_WU = 51200, 58880
DEF_SLOT = 35
def DEF_AREA(s): return LDS_SW * s + DEF_SLOT * 1024

RG = 262144
R1_REG = {0: 0, '1a': 1, '1b': 2, 2: 3}
R3_REG = {'P': 4, 0: 7, 1: 8}
R2_REG = {'P': 9, 0: 10, 1: 11, 2: 12}
L_REG = lambda inst, k: 13 + 2 * inst + k
G_OFF = lambda inst, k: 19 * RG + (2 * inst + k) * 65536
STAMP_OFF = 22 * RG
WS_REC = 24 * RG

CSCALE = (192 ** -0.5) * 1.4426950408889634
EPS = 1e-5
def f2u(x): return struct.unpack("<I", struct.pack("<f", x))[0]
def lit(x): return "0x%08x" % f2u(x)
def mask64(lanes):
    m = 0
    for l in lanes: m |= 1 << l
    return m
def set_exec(e, m):
    if m == (1 << 64) - 1: e("s_mov_b64 exec, -1"); return
    e(f"s_mov_b32 exec_lo, 0x{m & 0xffffffff:08x}")
    e(f"s_mov_b32 exec_hi, 0x{m >> 32:08x}")

S_X, S_K, S_V, S_WQ, S_WO, S_BX, S_WG, S_WU, S_WD, S_OUT, S_DBG, S_WS = 4, 6, 8, 10, 12, 14, 16, 18, 20, 22, 24, 26
S_XC, S_HQ, S_J, S_H = 28, 29, 30, 31
SRD_K, SRD_V = 32, 36
S_KV0, S_KV1, S_SOFF, S_LDSB = 40, 41, 42, 43
SRD_T = 44
SRD_WS = 48
SRD_DBG = 52
S_C = 56
S_ROWN, S_RGRP, S_LOWN, S_LGRP, S_GOWN, S_GGRP = 57, 58, 59, 60, 61, 62
S_A, S_B, S_CNT, S_T0, S_T1, S_T2 = 63, 64, 65, 66, 67, 68
S_PB = 69
S_HI32 = 70
S_MLB = 72
S_GA, S_GB = 100, 101
S_WAVE = 3
S_STAMP = 76

def make_srd(e, srd, ptr, nbytes):
    e(f"s_mov_b32 s{srd}, s{ptr}")
    e(f"s_and_b32 s{srd+1}, s{ptr+1}, 0xffff")
    e(f"s_mov_b32 s{srd+2}, {nbytes}")
    e(f"s_mov_b32 s{srd+3}, 0x20000")

class Stamps:
    select = None
    def __init__(self, e, on): self.e, self.on, self.names = e, on, []
    def __call__(self, name):
        if not self.on: return
        if Stamps.select is not None and not any(name.startswith(p) for p in Stamps.select): return
        if Stamps.select is None and "." in name: return
        n = len(self.names); assert n < 12, "too many stamps"
        self.e(f"s_memrealtime s[{S_STAMP+2*n}:{S_STAMP+2*n+1}]")
        self.e.lg_all(force=True)
        self.names.append(name)
    def rounds(self, name):
        if not self.on: return
        if Stamps.select is None or not any(name.startswith(p) for p in Stamps.select): return
        n = len(self.names); assert n < 12
        self.e(f"s_mov_b32 s{S_STAMP+2*n}, s{S_CNT}"); self.e(f"s_mov_b32 s{S_STAMP+2*n+1}, 0")
        self.names.append(name)
    def flush(self):
        if not self.on: return
        e = self.e
        e("s_mov_b64 exec, 1")
        e(f"s_lshl_b32 s{S_T0}, s2, 2"); e(f"s_add_u32 s{S_T0}, s{S_T0}, s{S_WAVE}"); e(f"s_lshl_b32 s{S_T0}, s{S_T0}, 7")
        e(f"s_add_u32 s{S_T0}, s{S_T0}, {STAMP_OFF}")
        e("v_mov_b32 v0, 0")
        for i in range(len(self.names)):
            e(f"v_mov_b32 v2, s{S_STAMP+2*i}"); e(f"v_mov_b32 v3, s{S_STAMP+2*i+1}")
            e(f"buffer_store_dwordx2 v[2:3], v0, s[{SRD_WS}:{SRD_WS+3}], s{S_T0} offen offset:{8*i}")
            e("s_waitcnt vmcnt(0)")

def lane_id(e, dst):
    e(f"v_mbcnt_lo_u32_b32 {vr(dst)}, -1, 0")
    e(f"v_mbcnt_hi_u32_b32 {vr(dst)}, -1, {vr(dst)}")

def attn_load_offsets(e, R, lane, t):
    i, g, u, w = t, t + 1, t + 2, t + 3
    e(f"v_and_b32 {vr(i)}, 15, {vr(lane)}")
    e(f"v_lshrrev_b32 {vr(g)}, 4, {vr(lane)}")
    e(f"v_and_b32 {vr(u)}, 7, {vr(i)}")
    e(f"v_lshrrev_b32 {vr(w)}, 3, {vr(i)}")
    e(f"v_mul_u32_u24 {vr(R.voffK)}, 384, {vr(u)}")
    e(f"v_lshl_add_u32 {vr(R.voffK)}, {vr(g)}, 4, {vr(R.voffK)}")
    e(f"v_lshl_add_u32 {vr(R.voffK)}, {vr(w)}, 6, {vr(R.voffK)}")
    e(f"v_mul_u32_u24 {vr(R.voffX)}, 768, {vr(g)}")
    e(f"v_mul_u32_u24 {vr(w)}, 384, {vr(w)}")
    e(f"v_add_u32 {vr(R.voffY)}, {vr(R.voffX)}, {vr(w)}")
    e(f"v_lshl_add_u32 {vr(R.voffY)}, {vr(u)}, 4, {vr(R.voffY)}")
    e(f"v_add_u32 {vr(R.voffY)}, 256, {vr(R.voffY)}")
    e(f"v_lshl_add_u32 {vr(R.voffX)}, {vr(i)}, 4, {vr(R.voffX)}")

def attn_selectors(e, R, lane, t):
    i, u, lo, hi = t, t + 1, t + 2, t + 3
    e(f"v_and_b32 {vr(i)}, 15, {vr(lane)}")
    e(f"v_lshrrev_b32 {vr(u)}, 3, {vr(i)}")
    e(f"v_mul_u32_u24 {vr(u)}, 0x202, {vr(u)}")
    e(f"v_add_u32 {vr(u)}, 0x100, {vr(u)}")
    e(f"v_or_b32 {vr(lo)}, 0x0c0c0000, {vr(u)}")
    e(f"v_lshlrev_b32 {vr(hi)}, 16, {vr(u)}")
    e(f"v_or_b32 {vr(hi)}, 0x0c0c, {vr(hi)}")
    e(f"v_and_b32 {vr(u)}, 1, {vr(i)}")
    e(f"v_cmp_eq_u32 vcc, 1, {vr(u)}")
    e(f"v_cndmask_b32 {vr(lo)}, {vr(lo)}, {vr(hi)}, vcc")
    e(f"v_bfe_u32 {vr(u)}, {vr(i)}, 1, 2")
    e(f"v_mov_b32 {vr(hi)}, 0x0c0c0c0c")
    for r in range(4):
        e(f"v_cmp_eq_u32 vcc, {r}, {vr(u)}")
        e(f"v_cndmask_b32 {vr(R.sel+r)}, {vr(hi)}, {vr(lo)}, vcc")

def allreduce_list(reg, tmp, op):
    out = [f"v_{op}_f32_dpp {vr(reg)}, {vr(reg)}, {vr(reg)} row_ror:{k} row_mask:0xf bank_mask:0xf" for k in (8, 4, 2, 1)]
    out += [f"v_mov_b32 {vr(tmp)}, {vr(reg)}", f"v_permlane16_swap_b32 {vr(reg)}, {vr(tmp)}", f"v_{op}_f32 {vr(reg)}, {vr(reg)}, {vr(tmp)}",
            f"v_mov_b32 {vr(tmp)}, {vr(reg)}", f"v_permlane32_swap_b32 {vr(reg)}, {vr(tmp)}", f"v_{op}_f32 {vr(reg)}, {vr(reg)}, {vr(tmp)}"]
    return out

def allreduce(e, reg, tmp, op):
    for k in (8, 4, 2, 1):
        e(f"v_{op}_f32_dpp {vr(reg)}, {vr(reg)}, {vr(reg)} row_ror:{k} row_mask:0xf bank_mask:0xf")
    e(f"v_mov_b32 {vr(tmp)}, {vr(reg)}")
    e(f"v_permlane16_swap_b32 {vr(reg)}, {vr(tmp)}")
    e(f"v_{op}_f32 {vr(reg)}, {vr(reg)}, {vr(tmp)}")
    e(f"v_mov_b32 {vr(tmp)}, {vr(reg)}")
    e(f"v_permlane32_swap_b32 {vr(reg)}, {vr(tmp)}")
    e(f"v_{op}_f32 {vr(reg)}, {vr(reg)}, {vr(tmp)}")

def attn_pre(e, R, ntiles):
    L = R.tmp
    lane_id(e, L)
    e(f"v_and_b32 {vr(L+1)}, 1, {vr(L)}")
    e(f"v_lshrrev_b32 {vr(L+2)}, 4, {vr(L)}")
    e(f"v_lshlrev_b32 {vr(L+2)}, 4, {vr(L+2)}")
    e(f"v_lshl_add_u32 {vr(L+1)}, {vr(L+1)}, 6, {vr(L+2)}")
    e(f"v_add_u32 {vr(L+1)}, {QARR}, {vr(L+1)}")
    e(f"v_add_u32 {vr(R.vpp)}, s{S_PB}, {vr(L+2)}")
    W = R.vpw; t = L + 2
    e(f"v_lshrrev_b32 {vr(t)}, 5, {vr(L)}"); e(f"v_lshlrev_b32 {vr(W)}, 6, {vr(t)}")
    e(f"v_bfe_u32 {vr(t)}, {vr(L)}, 1, 2"); e(f"v_lshl_add_u32 {vr(W)}, {vr(t)}, 4, {vr(W)}")
    e(f"v_bfe_u32 {vr(t)}, {vr(L)}, 3, 2"); e(f"v_lshl_add_u32 {vr(W)}, {vr(t)}, 2, {vr(W)}")
    e(f"v_and_b32 {vr(t)}, 1, {vr(L)}"); e(f"v_lshl_add_u32 {vr(W)}, {vr(t)}, 1, {vr(W)}")
    e(f"v_add_u32 {vr(W)}, s{S_PB}, {vr(W)}")
    nsc = (ntiles + 7) // 8
    for r in range(nsc):
        if (r + 1) * 8 > ntiles: e(f"v_mov_b32 {vr(R.sc+r)}, 0xff800000")

def attn_pass(e, R, ntiles, qrow, Kfrag, Vfrag, part_sreg, ml_off, k_wait=None, qk_hook=None, mid_hook=None,
              v_wait=None, pv_hook=None, stage=None, pre_done=False, mark=None, look=2):
    L = R.tmp
    if not pre_done: attn_pre(e, R, ntiles)
    for s in range(3):
        e.lg(f"ds_read_b128 {vr(R.qA+4*s,4)}, {vr(L+1)} offset:{qrow*384 + 128*s}", ("q", s))
    W = R.vpw
    nsc = (ntiles + 7) // 8
    stg = {}
    def stage_k(T):
        if T >= ntiles: return
        for s in range(3):
            f = Kfrag(T, s)
            if isinstance(f, tuple):
                reg = stage[(3 * T + s) % len(stage)]
                e.lg(f"ds_read_b128 {vr(reg,4)}, {vr(R.vlds)} offset:{f[1]}", ("k", T, s))
                stg[(T, s)] = vr(reg, 4)
    LOOK = look
    if k_wait: k_wait(-1)
    for T in range(min(LOOK, ntiles)): stage_k(T)
    e.lg_wait(("q", 2))
    def dpp_add(T):
        D = R.D + 4 * (T % 3)
        dst = vr(R.sc + (T >> 3)); rm = 1 << ((T >> 1) & 3)
        if T % 2 == 0: e(f"v_add_f32_dpp {dst}, {vr(D+1)}, {vr(D)} row_ror:8 row_mask:0x{rm:x} bank_mask:0x3")
        else:          e(f"v_add_f32_dpp {dst}, {vr(D)}, {vr(D+1)} row_ror:8 row_mask:0x{rm:x} bank_mask:0xc")
    for T in range(ntiles):
        if k_wait: k_wait(T)
        D = vr(R.D + 4 * (T % 3), 4)
        for s in range(3):
            f = Kfrag(T, s)
            if isinstance(f, tuple):
                e.lg_wait(("k", T, s)); f = stg[(T, s)]
            e(f"v_mfma_f32_16x16x32_bf16 {D}, {vr(R.qA+4*s,4)}, {f}, {'0' if s == 0 else D}")
        stage_k(T + LOOK)
        if qk_hook: qk_hook(T)
        if T >= 2: dpp_add(T - 2)
    for T in range(max(0, ntiles - 2), ntiles): dpp_add(T)
    if mark: mark("qk")
    t0, t1 = R.D, R.D + 1
    if nsc == 1: e(f"v_mov_b32 {vr(t0)}, {vr(R.sc)}")
    elif nsc == 2: e(f"v_max_f32 {vr(t0)}, {vr(R.sc)}, {vr(R.sc+1)}")
    else: e(f"v_max3_f32 {vr(t0)}, {vr(R.sc)}, {vr(R.sc+1)}, {vr(R.sc+2)}")
    allreduce(e, t0, t1, "max")
    e(f"v_mul_f32 {vr(R.vm)}, s{S_C}, {vr(t0)}")
    for r in range(nsc): e(f"v_fma_f32 {vr(R.sc+r)}, {vr(R.sc+r)}, s{S_C}, -{vr(R.vm)}")
    for r in range(nsc): e(f"v_exp_f32 {vr(R.sc+r)}, {vr(R.sc+r)}")
    for r in range(nsc): e(f"v_cvt_pk_bf16_f32 {vr(R.D+2+r)}, {vr(R.sc+r)}, {vr(R.sc+r)}")
    for r in range(nsc): e.lg(f"ds_write_b16 {vr(W)}, {vr(R.D+2+r)} offset:{128*r}", ("pw", r))
    nq = (ntiles + 3) // 4
    ppreg = lambda q: R.pp + 4 * (q % 2)
    if nsc == 1: e(f"v_mov_b32 {vr(R.vl)}, {vr(R.sc)}")
    else:
        e(f"v_add_f32 {vr(R.vl)}, {vr(R.sc)}, {vr(R.sc+1)}")
        if nsc == 3: e(f"v_add_f32 {vr(R.vl)}, {vr(R.vl)}, {vr(R.sc+2)}")
    e.lg(f"ds_read_b128 {vr(ppreg(0),4)}, {vr(R.vpp)}", ("pp", 0))
    if nq > 1: e.lg(f"ds_read_b128 {vr(ppreg(1),4)}, {vr(R.vpp)} offset:64", ("pp", 1))
    lred = allreduce_list(R.vl, R.vlt, "add")
    if ntiles < 12:
        for ins in lred: e(ins)
        lred = []
    if mid_hook: mid_hook()
    if mark: mark("sm")
    X1, X2, Y = R.acc, R.acc + 4, R.acc + 8
    def build_A(T):
        q = T >> 2
        e.lg_wait(("pp", q))
        A = R.A + 4 * (T % 2); src = vr(ppreg(q) + (T & 3))
        return [f"v_perm_b32 {vr(A+r)}, {src}, {src}, {vr(R.sel+r)}" for r in range(4)]
    for ins in build_A(0): e(ins)
    for T in range(ntiles):
        A = vr(R.A + 4 * (T % 2), 4)
        nxt = build_A(T + 1) if T + 1 < ntiles else []
        if v_wait: v_wait(T, 0)
        e(f"v_mfma_f32_16x16x32_bf16 {vr(X1,4)}, {A}, {Vfrag(T,0)}, {'0' if T == 0 else vr(X1,4)}")
        for ins in nxt[:2]: e(ins)
        if v_wait: v_wait(T, 1)
        e(f"v_mfma_f32_16x16x32_bf16 {vr(X2,4)}, {A}, {Vfrag(T,1)}, {'0' if T == 0 else vr(X2,4)}")
        for ins in nxt[2:]: e(ins)
        if v_wait: v_wait(T, 2)
        e(f"v_mfma_f32_16x16x32_bf16 {vr(Y,4)}, {A}, {Vfrag(T,2)}, {'0' if T == 0 else vr(Y,4)}")
        if (T & 3) == 2 and (T >> 2) + 2 < nq:
            q2 = (T >> 2) + 2
            e.lg(f"ds_read_b128 {vr(ppreg(q2),4)}, {vr(R.vpp)} offset:{64*q2}", ("pp", q2))
        if lred and T >= 1: e(lred.pop(0))
        if pv_hook: pv_hook(T)
    assert not lred
    if mark: mark("pv")
    p = R.pp
    lane_id(e, p)
    e(f"v_and_b32 {vr(p+1)}, 15, {vr(p)}")
    e(f"v_lshrrev_b32 {vr(p+2)}, 4, {vr(p)}")
    e(f"v_and_b32 {vr(p+3)}, 1, {vr(p+2)}")
    e(f"v_lshrrev_b32 {vr(p+2)}, 1, {vr(p+2)}")
    e(f"v_mul_u32_u24 {vr(p+2)}, 768, {vr(p+2)}")
    e(f"v_lshl_add_u32 {vr(p+2)}, {vr(p+3)}, 4, {vr(p+2)}")
    e(f"v_add_u32 {vr(p+2)}, s{part_sreg}, {vr(p+2)}")
    e(f"v_lshl_add_u32 {vr(p+4)}, {vr(p+1)}, 5, {vr(p+2)}")
    e(f"v_and_b32 {vr(p+1)}, 7, {vr(p+1)}")
    e(f"v_lshl_add_u32 {vr(p+5)}, {vr(p+1)}, 5, {vr(p+2)}")
    e(f"v_mov_b32 {vr(p+6)}, s{S_MLB}")
    e(f"v_mov_b32 {vr(R.A)}, {vr(R.vm)}"); e(f"v_mov_b32 {vr(R.A+1)}, {vr(R.vl)}")
    for r in range(4):
        e(f"v_cndmask_b32 {vr(X1+r)}, {vr(X1+r)}, {vr(X2+r)}, s[{S_HI32}:{S_HI32+1}]")
    e.lg(f"ds_write_b128 {vr(p+4)}, {vr(X1,4)}", "px")
    set_exec(e, 0xFF00FF0000FF00FF)
    e.lg(f"ds_write_b128 {vr(p+5)}, {vr(Y,4)} offset:512", "py")
    e("s_mov_b64 exec, 1")
    e.lg(f"ds_write_b64 {vr(p+6)}, {vr(R.A,2)} offset:{ml_off}", "pm")
    e("s_mov_b64 exec, -1")
    e.lg_all()

S_ROT, S_RT = 74, 75
rot_on = [False]
def kv_soff(e, base_sreg, T):
    if rot_on[0]:
        span = SW_TILES * TILE_B
        e(f"s_add_u32 s{S_SOFF}, s{S_ROT}, {T*TILE_B}")
        e(f"s_cmp_ge_u32 s{S_SOFF}, {span}"); e(f"s_cselect_b32 s{S_RT}, {span}, 0")
        e(f"s_sub_u32 s{S_SOFF}, s{S_SOFF}, s{S_RT}"); e(f"s_add_u32 s{S_SOFF}, s{S_SOFF}, s{base_sreg}")
    else: e(f"s_add_u32 s{S_SOFF}, s{base_sreg}, {T*TILE_B}")
def ld_k(e, R, dst, s, tag, o):
    e.vm(f"buffer_load_dwordx4 {dst}, {vr(R.voffK)}, s[{SRD_K}:{SRD_K+3}], s{S_SOFF} offen offset:{128*s} {o.kvflags}", tag)
def ld_v(e, R, dst, w, tag, o):
    vo = R.voffY if w == 2 else R.voffX
    off = 384 if w == 1 else 0
    e.vm(f"buffer_load_dwordx4 {dst}, {vr(vo)}, s[{SRD_V}:{SRD_V+3}], s{S_SOFF} offen offset:{off} {o.kvflags}", tag)
def dma_k(e, R, slot, s, tag, o):
    e(f"s_add_u32 m0, s{S_LDSB}, {slot*1024 - 128*s + 0}") if slot*1024 - 128*s >= 0 else e(f"s_sub_u32 m0, s{S_LDSB}, {128*s - slot*1024}")
    e.vm(f"buffer_load_dwordx4 {vr(R.voffK)}, s[{SRD_K}:{SRD_K+3}], s{S_SOFF} offen offset:{128*s} {o.kvflags} lds", tag)
def dma_v(e, R, slot, w, tag, o):
    vo = R.voffY if w == 2 else R.voffX
    off = 384 if w == 1 else 0
    e(f"s_add_u32 m0, s{S_LDSB}, {slot*1024 - off}")
    e.vm(f"buffer_load_dwordx4 {vr(vo)}, s[{SRD_V}:{SRD_V+3}], s{S_SOFF} offen offset:{off} {o.kvflags} lds", tag)

def slot_reg(k):
    assert 0 <= k < 118
    return f"a[{4*k}:{4*k+3}]" if k < 64 else f"v[{40+4*(k-64)}:{40+4*(k-64)+3}]"

def weight_dma(e, o):
    L, t, u = 8, 20, 21
    def dma_block(ptr, nbytes, lanes_per_row, magic, shift, nlanes, row_stride, rows_per_instr, ninstr, so, lds0, bar=False, flags=None, extra_soff=0):
        make_srd(e, SRD_T, ptr, nbytes)
        e(f"v_mul_u32_u24 v{t}, {magic}, v{L}"); e(f"v_lshrrev_b32 v{t}, {shift}, v{t}")
        e(f"v_mul_u32_u24 v{u}, {lanes_per_row}, v{t}"); e(f"v_sub_u32 v{u}, v{L}, v{u}")
        e(f"s_mov_b32 s{S_T1}, {row_stride}")
        e(f"v_mul_lo_u32 v{t}, v{t}, s{S_T1}"); e(f"v_lshl_add_u32 v{t}, v{u}, 4, v{t}")
        rreg, rmul, creg, cmul = so
        e(f"s_mul_i32 s{S_SOFF}, s{rreg}, {rmul*row_stride}")
        e(f"s_mul_i32 s{S_T1}, s{creg}, {cmul}"); e(f"s_add_u32 s{S_SOFF}, s{S_SOFF}, s{S_T1}")
        if extra_soff: e(f"s_add_u32 s{S_SOFF}, s{S_SOFF}, {extra_soff}")
        set_exec(e, mask64(range(nlanes)))
        for i in range(ninstr):
            e(f"s_mov_b32 m0, {lds0 + i*nlanes*16}")
            if i: e(f"s_add_u32 s{S_SOFF}, s{S_SOFF}, {rows_per_instr*row_stride}")
            else: e("s_nop 0")
            e.vm_depth(o.NW - 1)
            e.vm(f"buffer_load_dwordx4 v{t}, s[{SRD_T}:{SRD_T+3}], s{S_SOFF} offen {o.wflags if flags is None else flags} lds", "w")
        e("s_mov_b64 exec, -1")
    l2, l3, end = e.newlabel("w2"), e.newlabel("w3"), e.newlabel("wend")
    e(f"s_cmp_eq_u32 s{S_WAVE}, 2"); e(f"s_cbranch_scc1 {l2}")
    e(f"s_cmp_eq_u32 s{S_WAVE}, 3"); e(f"s_cbranch_scc1 {l3}")
    base_q = list(e.vmq)
    if o.defer:
        dma_block(S_WQ, 7864320, 24, 43, 10, 48, 12288, 2, 20, (S_J, 80, S_H, 384), ST_WQ)
        e(f"s_branch {end}")
        e.label(l2); e.vmq = list(base_q)
        dma_block(S_WQ, 7864320, 24, 43, 10, 48, 12288, 2, 20, (S_J, 80, S_H, 384), ST_WQ + 20 * 768, extra_soff=40 * 12288)
        e(f"s_branch {end}")
        e.label(l3); e.vmq = list(base_q)
        dma_block(S_WG, 1966080, 6, 43, 8, 60, 3072, 10, 8, (S_J, 80, S_H, 96), STD_WG, flags=o.wgflags.replace('_', ' '))
        dma_block(S_WU, 1966080, 6, 43, 8, 60, 3072, 10, 8, (S_J, 80, S_H, 96), STD_WU, flags=o.wgflags.replace('_', ' '))
        e.label(end)
        e.vmq = ["w"] * o.NW
        return
    dma_block(S_WQ, 7864320, 24, 43, 10, 48, 12288, 2, 40, (S_J, 80, S_H, 384), ST_WQ, bar=True)
    e(f"s_branch {end}")
    e.label(l2); e.vmq = list(base_q)
    if "nowo" not in o.exp: dma_block(S_WO, 7864320, 10, 103, 10, 60, 1280, 6, 32, (S_H, 192, S_J, 160), ST_WO, bar=True, flags=o.woflags.replace('_', ' '))
    e(f"s_branch {end}")
    e.label(l3); e.vmq = list(base_q)
    dma_block(S_WG, 1966080, 6, 43, 8, 60, 3072, 10, 8, (S_J, 80, S_H, 96), ST_WG, bar=True, flags=o.wgflags.replace('_', ' '))
    dma_block(S_WU, 1966080, 6, 43, 8, 60, 3072, 10, 8, (S_J, 80, S_H, 96), ST_WU, flags=o.wgflags.replace('_', ' '))
    if "nowo" not in o.exp: dma_block(S_WD, 1966080, 10, 103, 10, 60, 1280, 6, 8, (S_H, 48, S_J, 160), ST_WD, flags=o.woflags.replace('_', ' '))
    e.label(end)
    e.vmq = ["w"] * o.NW

D_VOFF = 37
def deferred_voff(e, t, u):
    L = D_VOFF
    lane_id(e, L)
    e(f"v_mul_u32_u24 v{t}, 103, v{L}"); e(f"v_lshrrev_b32 v{t}, 10, v{t}")
    e(f"v_mul_u32_u24 v{u}, 10, v{t}"); e(f"v_sub_u32 v{u}, v{L}, v{u}")
    e(f"v_mul_u32_u24 v{t}, 1280, v{t}"); e(f"v_lshl_add_u32 v{L}, v{u}, 4, v{t}")
def deferred_items():
    return [('D', 0, i) for i in range(11)] + [('D', 1, i) for i in range(3)]
S_DOFF = 16
def deferred_issue(e, o, which, i):
    ptr, nbytes, hmul, smul, nrows, ldsoff = ((S_WO, 7864320, 192, 64, 64, 0), (S_WD, 1966080, 48, 16, 16, 10240))[which]
    if i == 0:
        make_srd(e, SRD_T, ptr, nbytes)
        e(f"s_sub_u32 s{S_T0}, s{S_WAVE}, 1")
        e(f"s_mul_i32 s{S_DOFF}, s{S_H}, {hmul*1280}"); e(f"s_mul_i32 s{S_T1}, s{S_T0}, {smul*1280}"); e(f"s_add_u32 s{S_DOFF}, s{S_DOFF}, s{S_T1}")
        e(f"s_mul_i32 s{S_T1}, s{S_J}, 160"); e(f"s_add_u32 s{S_DOFF}, s{S_DOFF}, s{S_T1}")
    else: e(f"s_add_u32 s{S_DOFF}, s{S_DOFF}, {6*1280}")
    rows = min(6, nrows - 6 * i)
    e(f"s_add_u32 m0, s{S_LDSB}, {DEF_SLOT*1024 + ldsoff + 960*i}")
    set_exec(e, mask64(range(10 * rows)))
    e.vm(f"buffer_load_dwordx4 v{D_VOFF}, s[{SRD_T}:{SRD_T+3}], s{S_DOFF} offen {o.woflags.replace('_', ' ')} lds", "D")
    e("s_mov_b64 exec, -1")

def lds_flag_set(e, addr_fn, t0, t1):
    addr_fn(t0); e(f"v_mov_b32 v{t1}, 1")
    e.lg(f"ds_write_b32 v{t0}, v{t1}", "fl")

S_XPAR = 15
def par_depth(e, n):
    lab = e.newlabel("par")
    e(f"s_cmp_lg_u32 s{S_XPAR}, 0"); e(f"s_cbranch_scc1 {lab}")
    e(f"s_waitcnt vmcnt({n-1})")
    e.label(lab)

def emit_wb(e):
    skip = e.newlabel("nowb")
    e(f"s_cmp_lg_u32 s{S_WAVE}, 1"); e(f"s_cbranch_scc1 {skip}")
    e("s_cmp_ge_u32 s2, 8"); e(f"s_cbranch_scc1 {skip}")
    e("buffer_wbl2 sc1")
    e("s_waitcnt vmcnt(0)")
    e.label(skip)

def stream_wave(e, o, st):
    if o.rotA or o.rotB:
        e(f"s_mul_i32 s{S_ROT}, s2, {o.rotA}"); e(f"s_mul_i32 s{S_RT}, s{S_WAVE}, {o.rotB}"); e(f"s_add_u32 s{S_ROT}, s{S_ROT}, s{S_RT}")
        e(f"s_mul_i32 s{S_RT}, s{S_ROT}, 52429"); e(f"s_lshr_b32 s{S_RT}, s{S_RT}, 20"); e(f"s_mul_i32 s{S_RT}, s{S_RT}, 20")
        e(f"s_sub_u32 s{S_ROT}, s{S_ROT}, s{S_RT}"); e(f"s_mul_i32 s{S_ROT}, s{S_ROT}, {TILE_B}")
        rot_on[0] = True
    _stream_wave(e, o, st)
    rot_on[0] = False

def _stream_wave(e, o, st):
    R = NS(vlds=0, voffK=1, voffX=2, voffY=3, sel=4, qA=8, D=20, sc=32, tmp=20, vpw=35, acc=8, A=20, pp=28, vpp=36, vm=38, vl=39, vlt=37)
    loads = []
    for T in range(SW_TILES):
        for s in range(3): loads.append(('K', T, s))
    for T in range(SW_TILES):
        for w in range(3): loads.append(('V', T, w))
    def k0slot(T, s): return 3 * T + s
    def v0slot(T, w): return 60 + 3 * T + w
    cur = [None]
    def issue0(item):
        kind, T, x = item
        if cur[0] != (kind, T, 0):
            kv_soff(e, S_KV0, T); cur[0] = (kind, T, 0)
        if kind == 'K': ld_k(e, R, slot_reg(k0slot(T, x)), x, ('K0', T, x), o)
        else:
            sl = v0slot(T, x)
            if sl < 118: ld_v(e, R, slot_reg(sl), x, ('V0', T, x), o)
            else: dma_v(e, R, 48 + sl - 118, x, ('V0', T, x), o)
    for item in loads[:o.NF]: issue0(item)
    late_common(e)
    e(f"s_add_u32 s{S_KV1}, s{S_KV0}, {BATCH_STRIDE}")
    e(f"s_sub_u32 s{S_T0}, s{S_WAVE}, 1"); e(f"s_mul_i32 s{S_LDSB}, s{S_T0}, {LDS_SW}")
    if o.pf:
        skip = e.newlabel("nopf")
        e(f"s_cmp_lg_u32 s{S_WAVE}, {o.pf_wave}"); e(f"s_cbranch_scc1 {skip}")
        if not o.pf_all:
            e(f"s_cmp_lg_u32 s{S_J}, 0"); e(f"s_cbranch_scc1 {skip}")
        e(f"s_getpc_b64 s[{SRD_T}:{SRD_T+1}]")
        e.label("L_pc")
        e(f"s_sub_u32 s{SRD_T}, s{SRD_T}, (L_pc - {NAME})"); e(f"s_subb_u32 s{SRD_T+1}, s{SRD_T+1}, 0")
        e("v_lshlrev_b32 v20, 7, v8")
        for i in range(o.pf):
            e(f"global_load_dword v39, v20, s[{SRD_T}:{SRD_T+1}]")
            e("v_add_u32 v20, 0x2000, v20")
        e.label(skip)
    if o.tlb:
        e("v_mov_b32 v20, 0")
        e.vm(f"buffer_load_dword v39, v20, s[{SRD_V}:{SRD_V+3}], s{S_KV0} offen nt", "tlb")
        e.vm(f"buffer_load_dword v39, v20, s[{SRD_K}:{SRD_K+3}], s{S_KV1} offen nt", "tlb")
        e.vm(f"buffer_load_dword v39, v20, s[{SRD_V}:{SRD_V+3}], s{S_KV1} offen nt", "tlb")
    if o.NAe or o.NCe:
        e(f"s_getreg_b32 s{S_T0}, hwreg(HW_REG_XCC_ID)"); e(f"s_and_b32 s{S_XPAR}, s{S_T0}, 1")
    nf = list(e.vmq)
    if "now" not in o.exp: weight_dma(e, o)
    e.vmq = nf + ["w"] * o.NW if len(nf) + o.NW <= 60 else ["w"] * 60
    cur[0] = None
    st("s.wiss")
    e(f"v_lshlrev_b32 {vr(R.vlds)}, 4, v8")
    e(f"v_add_u32 {vr(R.vlds)}, s{S_LDSB}, {vr(R.vlds)}")
    attn_selectors(e, R, 8, 10)
    for idx, item in enumerate(loads[:o.NA_BAR]):
        if idx < o.NF: continue
        na = o.NA0 if idx < o.NA0N else o.NA
        e.vm_depth(na - 1)
        if o.NAe: par_depth(e, o.NAe)
        if idx == o.NF + max(o.NA, o.NA0):
            e(f"s_lshl_b32 s{S_T0}, s{S_WAVE}, 2"); e(f"s_add_u32 s{S_T0}, s{S_T0}, {WFLAG-4}")
            e(f"v_mov_b32 v20, s{S_T0}"); e("v_mov_b32 v21, 1")
            e.lg("ds_write_b32 v20, v21", "wf")
            st("s.wland")
        if idx == 60: st("s.k0iss")
        if idx == 90: st("s.v30")
        issue0(item)
    st("A_issued")
    attn_pre(e, R, SW_TILES)
    e("s_barrier")
    st("bar1")
    if "nocw" in o.exp or "cw" in o.exp or "stopA" in o.exp:
        e.vm_all(); st("s.alland"); st.flush(); e("s_endpgm")
    pend = [('0', it) for it in loads[o.NA_BAR:]]
    if o.defer: pend += deferred_items()
    for T in range(16):
        for s in range(3): pend.append(('1', T, s))
    cur1 = [None]
    def issue_pend():
        it = pend.pop(0)
        if it[0] == '0': cur1[0] = None; issue0(it[1])
        elif it[0] == 'D': deferred_issue(e, o, it[1], it[2])
        else:
            _, T, s = it
            if cur1[0] != T:
                kv_soff(e, S_KV1, T); cur1[0] = T; cur[0] = None
            dma_k(e, R, 3 * T + s, s, ('K1', T, s), o)
    while pend[0][0] == '0': issue_pend()
    def Kf0(T, s): return slot_reg(k0slot(T, s))
    def Vf0(T, w):
        sl = v0slot(T, w)
        if sl < 118: return slot_reg(sl)
        return "v[32:35]" if w == 1 else "v[28:31]"
    def k_wait_A(T):
        if T == -1: e.vm_wait(('K0', SW_TILES - 1, 2))
    def pv_hook_A(T):
        left = SW_TILES - 1 - T
        target = max(o.NB1, min(o.NA, 3 * left + o.NB1)) if o.NB1 else 0
        if o.defer:
            if T < 15: return
            if T == 15: deferred_voff(e, 32, 33)
        if T == SW_TILES - 2:
            e.vm_wait(('V0', SW_TILES - 1, 2))
            e.lg(f"ds_read_b128 v[32:35], {vr(R.vlds)} offset:{48*1024}", ("vo", 1))
            e.lg(f"ds_read_b128 v[28:31], {vr(R.vlds)} offset:{49*1024}", ("vo", 2))
            target = o.NB1
        while pend and len(e.vmq) < target: issue_pend()
    def vwait_A(T, w):
        e.vm_wait(('V0', T, w))
        if T == SW_TILES - 1 and w >= 1: e.lg_wait(("vo", w))
    attn_pass(e, R, SW_TILES, 0, Kf0, Vf0, S_PB, 0, k_wait=k_wait_A, v_wait=vwait_A, pv_hook=pv_hook_A, pre_done=True)
    st("A_done")
    e("s_barrier")
    if o.NB1 == o.NB:
        flagged = not o.defer; freed = not o.defer
        def w2flag():
            e(f"s_lshl_b32 s{S_T0}, s{S_WAVE}, 2"); e(f"s_add_u32 s{S_T0}, s{S_T0}, {WFLAG + 12}")
            e(f"v_mov_b32 v20, s{S_T0}"); e("v_mov_b32 v21, 1")
            e.lg("ds_write_b32 v20, v21", "wf2")
        while pend:
            e.vm_depth(o.NB - 1)
            if not flagged and "D" not in e.vmq and not any(p[0] == 'D' for p in pend):
                w2flag(); flagged = True
            it = pend[0]
            if not freed and it[0] == '1' and 3 * it[1] + it[2] >= DEF_SLOT:
                if not flagged:
                    e.vm_wait("D"); w2flag(); flagged = True
                spin, ok = e.newlabel("spinF"), e.newlabel("okF")
                e(f"v_mov_b32 v20, {WFLAG + 28}")
                e(f"s_mov_b32 s{S_CNT}, {o.poll_limit*8}")
                e.label(spin)
                e(f"s_sub_u32 s{S_CNT}, s{S_CNT}, 1"); e(f"s_cbranch_scc1 {ok}")
                e.lg("ds_read_b32 v21, v20", "fr"); e.lg_all()
                e(f"v_readfirstlane_b32 s{S_T0}, v21")
                e(f"s_cmp_eq_u32 s{S_T0}, 0"); e(f"s_cbranch_scc1 {spin}")
                e.label(ok)
                cur1[0] = None
                freed = True
            issue_pend()
        assert flagged and freed
    else:
        items = list(pend); pend.clear()
        q0 = list(e.vmq); c0 = cur1[0]
        fast = {i: e.newlabel("fastB") for i in range(len(items))}
        done = e.newlabel("doneB")
        e(f"v_mov_b32 v20, {WFLAG + 12}")
        def emit_item(it, force_soff):
            _, T, s = it
            if cur1[0] != T or force_soff:
                kv_soff(e, S_KV1, T); cur1[0] = T
            dma_k(e, R, 3 * T + s, s, ('K1', T, s), o)
        marks = [i for i, it in enumerate(items) if it[2] == 0]
        if o.NB1 == 0:
            spin = e.newlabel("spinB")
            e(f"s_mov_b32 s{S_CNT}, {o.poll_limit*8}")
            e.label(spin)
            e(f"s_sub_u32 s{S_CNT}, s{S_CNT}, 1"); e(f"s_cbranch_scc1 {fast[0]}")
            e.lg("ds_read_b32 v21, v20", "go"); e.lg_all()
            e(f"v_readfirstlane_b32 s{S_T0}, v21")
            e(f"s_cmp_lg_u32 s{S_T0}, 0"); e(f"s_cbranch_scc1 {fast[0]}")
            e("s_sleep 2"); e(f"s_branch {spin}")
        for i, it in enumerate(items if o.NB1 else []):
            if i in marks:
                e.lg("ds_read_b32 v21, v20", "go"); e.lg_all()
                e(f"v_readfirstlane_b32 s{S_T0}, v21")
                e(f"s_cmp_lg_u32 s{S_T0}, 0"); e(f"s_cbranch_scc1 {fast[i]}")
            e.vm_depth(o.NB1 - 1)
            emit_item(it, False)
        e(f"s_branch {done}")
        e.vmq = list(q0); cur1[0] = c0
        for i, it in enumerate(items):
            if i in marks: e.label(fast[i])
            e.vm_depth(o.NB - 1)
            emit_item(it, i in marks)
        e.label(done)
    st("B_issued")
    attn_pre(e, R, SW_TILES)
    e("s_barrier")
    st("bar3")
    pend1 = []
    for T in range(16, SW_TILES):
        for s in range(3): pend1.append(('K', T, s))
    for T in range(SW_TILES):
        for w in range(3): pend1.append(('V', T, w))
    slot_of = {it: i for i, it in enumerate(pend1)}
    freed = [0]
    issued1 = [0]
    cur2 = [None]
    def issue1():
        it = pend1[issued1[0]]; kind, T, x = it
        if cur2[0] != (kind, T):
            kv_soff(e, S_KV1, T); cur2[0] = (kind, T)
        e.vm_depth(o.NC - 1)
        if o.NCe: par_depth(e, o.NCe)
        if kind == 'K': ld_k(e, R, slot_reg(slot_of[it]), x, ('K1', T, x), o)
        else: ld_v(e, R, slot_reg(slot_of[it]), x, ('V1', T, x), o)
        issued1[0] += 1
    def refill():
        while issued1[0] < len(pend1) and issued1[0] < freed[0]: issue1()
    def qk_hook_C1(T):
        freed[0] = 3 * (T + 1); refill()
    def pv_hook_C1(T):
        freed[0] = min(118, 60 + 3 * (T + 1)); refill(); ovf_hook_C(T)
    def ovf_hook_C(T):
        if T == SW_TILES - 2:
            e.lg(f"ds_read_b128 v[32:35], {vr(R.vlds)} offset:{48*1024}", ("vo", 1))
            e.lg(f"ds_read_b128 v[28:31], {vr(R.vlds)} offset:{49*1024}", ("vo", 2))
    def vwait_C1(T, w):
        if T == SW_TILES - 1 and w >= 1: e.lg_wait(("vo", w))
    e(f"s_add_u32 s{S_T2}, s{S_LDSB}, {48*1024}")
    attn_pass(e, R, SW_TILES, 0, Kf0, Vf0, S_T2, 32, qk_hook=qk_hook_C1, v_wait=vwait_C1, pv_hook=pv_hook_C1, pre_done=True)
    refill()
    assert issued1[0] == len(pend1)
    st("C1_done")
    e("s_barrier")
    stage = [40 + 4 * (k - 64) for k in range(100, 112)]
    def Kf1(T, s):
        if T < 16: return ('lds', (3 * T + s) * 1024)
        return slot_reg(slot_of[('K', T, s)])
    def Vf1(T, w): return slot_reg(slot_of[('V', T, w)])
    def k_wait_C2(T):
        if T == -1: e.vm_wait(('K1', 15, 2))
        elif T >= 16: e.vm_wait(('K1', T, 2))
    def vwait_C2(T, w): e.vm_wait(('V1', T, w))
    attn_pass(e, R, SW_TILES, 1, Kf1, Vf1, S_PB, 0, k_wait=k_wait_C2, v_wait=vwait_C2, stage=stage, look=o.look)
    st("C2_done")
    e("s_barrier")
    if o.wb == 2: emit_wb(e)
    if o.preE:
        def eslot(T, s): return 72 + 3 * T + s
        for T in range(15):
            for s in range(3):
                e.lg(f"ds_read_b128 {slot_reg(eslot(T, s))}, {vr(R.vlds)} offset:{(3*T+s)*1024}", ("pre", T, s))
                if len(e.lgq) >= 12: e.lg_wait_n(4)
        e.lg(f"ds_read_b128 {slot_reg(117)}, {vr(R.vlds)} offset:{45*1024}", ("pre", 15, 0))
        e.lg_all()
        def KfE(T, s):
            if T < 15: return slot_reg(eslot(T, s))
            if T == 15: return slot_reg(117) if s == 0 else slot_reg(eslot(0, s - 1))
            return slot_reg(slot_of[('K', T, s)])
        def qk_hook_E(T):
            if T == 0:
                for s in (1, 2): e.lg(f"ds_read_b128 {slot_reg(eslot(0, s - 1))}, {vr(R.vlds)} offset:{(45+s)*1024}", ("pre2", s))
        def k_wait_E(T):
            if T == 15: e.lg_wait(("pre2", 2))
    attn_pre(e, R, SW_TILES)
    e("s_barrier")
    st("bar7")
    if o.preE: attn_pass(e, R, SW_TILES, 1, KfE, Vf1, S_PB, 0, pre_done=True, mark=lambda n: st("e." + n), qk_hook=qk_hook_E, k_wait=k_wait_E)
    else: attn_pass(e, R, SW_TILES, 1, Kf1, Vf1, S_PB, 0, stage=stage, pre_done=True, mark=lambda n: st("e." + n), look=o.look)
    st("E_done")
    e("s_barrier")
    if o.wb == 1: emit_wb(e)
    st.flush()
    e("s_endpgm")

V_LANE, V_LG, V_R, V_PL, V_PG, V_PQ = 0, 4, 5, 6, 7, 8
V_BO, V_BX, V_BX8, V_BH, V_BH8, V_AS, V_AS8 = 9, 10, 11, 12, 13, 14, 15
V_XR, V_CSQ, V_CSG = 16, 20, 24
V_W8, V_WX, V_WH, V_ML = 28, 29, 30, 31
W0 = 32
V_SEL, V_R2, V_ST2, V_PS, V_PSQ, V_L16 = 75, 79, 80, 81, 82, 83
V_T = 84
V_GL, V_LL = 72, 73
V_DA, V_DB = 72, 73
CW_K, CW_V = 86, 134
S_N1 = 74

_off3 = (2, 6, 0)
def wq_frag(t, s): return ("a", 10 * t + _off3[s])
def wo_frag(t, s): return ("a", 120 + 24 * t + 4 * s)
def wd_frag(t, s):
    if s == 0: return ("a", 240 + 4 * t) if t < 4 else ("v", 182)
    return ("v", 186 + 2 * t)
def wg_frag(t, s): return ("v", 196 + 10 * t + _off3[s])
def wu_frag(t, s): return ("v", 226 + 10 * t + _off3[s])
def win(fr): return f"{fr[0]}[{fr[1]}:{fr[1]+3}]"

V_OOB = 74
def selmask(e, dst, val, mask, other=None):
    e(f"s_mov_b32 vcc_lo, 0x{mask & 0xffffffff:08x}"); e(f"s_mov_b32 vcc_hi, 0x{mask >> 32:08x}")
    if other is None: e(f"v_cndmask_b32 {vr(dst)}, v{V_OOB}, {vr(val)}, vcc")
    else:
        assert dst != val
        e(f"v_mov_b32 {vr(dst)}, 0x{other:08x}")
        e(f"v_cndmask_b32 {vr(dst)}, {vr(dst)}, {vr(val)}, vcc")

def rows_mask(live, n): return mask64([32 * r + g for r in live for g in range(n)])
def cols_mask(live, alist=range(4)): return mask64([16 * a + n for a in alist for n in live])

def instance_offsets(e, live, pub_live=None, q_live=None):
    pub_live = live if pub_live is None else pub_live
    q_live = pub_live if q_live is None else q_live
    t, u = V_T, V_T + 1
    e(f"v_and_b32 {vr(t)}, 31, v{V_LANE}"); e(f"v_lshlrev_b32 {vr(t)}, 4, {vr(t)}")
    e(f"v_lshrrev_b32 {vr(u)}, 5, v{V_LANE}"); e(f"v_lshl_add_u32 {vr(t)}, {vr(u)}, 9, {vr(t)}")
    selmask(e, V_LG, t, rows_mask(live, 20))
    selmask(e, V_R2, t, rows_mask(live, 24))
    if o_packed[0]:
        row = live[-1]
        e(f"v_lshrrev_b32 {vr(t)}, 4, v{V_LANE}"); e(f"v_and_b32 {vr(u)}, 15, v{V_LANE}")
        e(f"v_lshlrev_b32 v{V_DA}, 10, {vr(t)}"); e(f"v_lshl_add_u32 v{V_DA}, {vr(u)}, 4, v{V_DA}"); e(f"v_add_u32 v{V_DA}, {512*row}, v{V_DA}")
        e(f"v_lshlrev_b32 v{V_DB}, 15, {vr(t)}"); e(f"v_bfe_u32 {vr(u)}, v{V_LANE}, 2, 2"); e(f"v_lshl_add_u32 v{V_DB}, {vr(u)}, 10, v{V_DB}")
        e(f"v_and_b32 {vr(u)}, 3, v{V_LANE}"); e(f"v_lshl_add_u32 v{V_DB}, {vr(u)}, 4, v{V_DB}"); e(f"v_add_u32 v{V_DB}, {512*row + 256}, v{V_DB}")
        e(f"v_lshrrev_b32 {vr(u)}, 5, v{V_LANE}")
    else:
        e(f"v_and_b32 v{V_GL}, 7, v{V_LANE}"); e(f"v_lshlrev_b32 v{V_GL}, 10, v{V_GL}"); e(f"v_add_u32 v{V_GL}, {512*live[-1] + 19*16}, v{V_GL}")
        e(f"v_and_b32 v{V_LL}, 3, v{V_LANE}"); e(f"v_lshlrev_b32 v{V_LL}, 10, v{V_LL}"); e(f"v_add_u32 v{V_LL}, {512*live[-1] + 19*16}, v{V_LL}")
    e(f"v_and_b32 {vr(t)}, 7, v{V_LANE}"); e(f"v_lshlrev_b32 {vr(t)}, 10, {vr(t)}")
    e(f"v_lshl_add_u32 {vr(t)}, {vr(u)}, 9, {vr(t)}"); e(f"v_add_u32 {vr(t)}, 384, {vr(t)}")
    selmask(e, V_ST2, t, rows_mask(live, 32))
    e(f"v_and_b32 {vr(t)}, 15, v{V_LANE}"); e(f"v_lshrrev_b32 {vr(u)}, 4, v{V_LANE}")
    e(f"v_lshlrev_b32 v{V_PL}, 9, {vr(t)}")
    e(f"v_lshl_add_u32 v{V_PG}, {vr(u)}, 5, v{V_PL}")
    e(f"v_add_u32 v{V_PS}, 384, v{V_PL}")
    e(f"v_lshl_add_u32 v{V_PL}, {vr(u)}, 4, v{V_PL}")
    e(f"v_lshlrev_b32 v{V_PQ}, 18, {vr(t)}")
    e(f"v_add_u32 v{V_PSQ}, 768, v{V_PQ}")
    e(f"v_lshl_add_u32 v{V_PQ}, {vr(u)}, 4, v{V_PQ}")
    cm = cols_mask(pub_live)
    e(f"s_mov_b32 vcc_lo, 0x{cm & 0xffffffff:08x}"); e(f"s_mov_b32 vcc_hi, 0x{cm >> 32:08x}")
    for r in (V_PL, V_PG): e(f"v_cndmask_b32 v{r}, v{V_OOB}, v{r}, vcc")
    selmask(e, V_PS, V_PS, cols_mask(pub_live, [0]))
    selmask(e, V_PQ, V_PQ, cols_mask(q_live))
    selmask(e, V_PSQ, V_PSQ, cols_mask(q_live, [0]))

def soffs(e, off_sreg, const, two=True):
    e(f"s_add_u32 s{S_A}, s{off_sreg}, {const}")
    if two: e(f"s_add_u32 s{S_B}, s{S_A}, 4096")

def poll(e, o, loads, abort, sleep=0):
    lab = e.newlabel("poll")
    e(f"s_mov_b32 s{S_CNT}, {o.poll_limit}")
    e.label(lab)
    for d, vo, s, imm in loads:
        e(f"buffer_load_dwordx4 {vr(d,4)}, v{vo}, s[{SRD_WS}:{SRD_WS+3}], s{s} offen offset:{imm} sc1")
    e(f"s_sub_u32 s{S_CNT}, s{S_CNT}, 1")
    e(f"s_cbranch_scc1 {abort}")
    e("s_waitcnt vmcnt(0)")
    vals = []
    for d, _, _, _ in loads: vals += [d + 1, d + 3]
    t = V_T
    e(f"v_max3_u32 v{t}, v{vals[0]}, v{vals[1]}, v{vals[2]}")
    i = 3
    while i < len(vals):
        if i + 1 < len(vals): e(f"v_max3_u32 v{t}, v{t}, v{vals[i]}, v{vals[i+1]}"); i += 2
        else: e(f"v_max_u32 v{t}, v{t}, v{vals[i]}"); i += 1
    e(f"v_cmp_eq_u32 vcc, -1, v{t}")
    if sleep:
        ok = e.newlabel("pok"); e(f"s_cbranch_vccz {ok}"); e(f"s_sleep {sleep}"); e(f"s_branch {lab}"); e.label(ok)
    else: e(f"s_cbranch_vccnz {lab}")
    e.vmq = []

def gather8(e, o, vo, abort, extra=None, n=8, base=W0):
    loads = [(base + 4 * k, vo, S_A if k < 4 else S_B, (k % 4) * 1024) for k in range(n)]
    if extra: loads.append((base + 4 * n, extra, S_A, 0))
    poll(e, o, loads, abort)

def sum_loads(e, n, base=W0):
    step = 1
    while step < n:
        for k in range(0, n, 2 * step):
            if k + step < n:
                a, b = base + 4 * k, base + 4 * (k + step)
                e(f"v_pk_add_f32 {vr(a,2)}, {vr(a,2)}, {vr(b,2)}")
                e(f"v_pk_add_f32 {vr(a+2,2)}, {vr(a+2,2)}, {vr(b+2,2)}")
        step *= 2

def dpp8(e, reg, op):
    for m in ("quad_perm:[1,0,3,2]", "quad_perm:[2,3,0,1]", "row_half_mirror"):
        e(f"v_{op}_f32_dpp v{reg}, v{reg}, v{reg} {m} row_mask:0xf bank_mask:0xf")
def dpp8x2(e, r0, r1, op):
    for m in ("quad_perm:[1,0,3,2]", "quad_perm:[2,3,0,1]", "row_half_mirror"):
        e(f"v_{op}_f32_dpp v{r0}, v{r0}, v{r0} {m} row_mask:0xf bank_mask:0xf")
        e(f"v_{op}_f32_dpp v{r1}, v{r1}, v{r1} {m} row_mask:0xf bank_mask:0xf")

def ln_from_stats(e, s1, s2, mean, rstd):
    e(f"v_mul_f32 v{mean}, {lit(1/640)}, v{s1}")
    e(f"v_mul_f32 v{s2}, {lit(1/640)}, v{s2}")
    e(f"v_fma_f32 v{s2}, -v{mean}, v{mean}, v{s2}")
    e(f"v_max_f32 v{s2}, 0, v{s2}")
    e(f"v_add_f32 v{s2}, {lit(EPS)}, v{s2}")
    e(f"v_rsq_f32 v{rstd}, v{s2}")

def pub(e, D, vo, sreg, imm, fl, tag):
    e.vm(f"buffer_store_dwordx4 {vr(D,4)}, v{vo}, s[{SRD_WS}:{SRD_WS+3}], s{sreg} offen offset:{imm} {fl}", tag)

def run_tiles(e, tiles, accs, store, btags=None, twait=None):
    n = len(accs); lag = n - 1
    for i, (tid, steps) in enumerate(tiles):
        D = vr(accs[i % n], 4)
        if twait and tid in twait: e.lg_wait(twait[tid])
        for s, (A, B) in enumerate(steps):
            if i == 0 and btags: e.lg_wait(btags[s])
            e(f"v_mfma_f32_16x16x32_bf16 {D}, {A}, {B}, {'0' if s == 0 else D}")
        if i >= lag: store(tiles[i - lag][0], accs[(i - lag) % n])
    for i in range(max(0, len(tiles) - lag), len(tiles)): store(tiles[i][0], accs[i % n])

def read_bx(e, B):
    e.lg(f"ds_read_b128 {vr(B,4)}, v{V_BX}", "b0"); e.lg(f"ds_read_b128 {vr(B+4,4)}, v{V_BX} offset:64", "b1")
    e.lg(f"ds_read_b64 {vr(B+8,2)}, v{V_BX8}", "b2")
    e(f"v_mov_b32 v{B+10}, 0"); e(f"v_mov_b32 v{B+11}, 0")
def read_as(e, A):
    e.lg(f"ds_read_b128 {vr(A,4)}, v{V_AS}", "a0"); e.lg(f"ds_read_b128 {vr(A+4,4)}, v{V_AS} offset:64", "a1")
    e.lg(f"ds_read_b64 {vr(A+8,2)}, v{V_AS8}", "a2")
    e(f"v_mov_b32 v{A+10}, 0"); e(f"v_mov_b32 v{A+11}, 0")

def stage_Q(e, fl, reg_index, shadow=None):
    B, A = W0 + 8, W0 + 20
    read_bx(e, B); read_as(e, A)
    e(f"s_add_u32 s{S_A}, s{S_ROWN}, {reg_index*RG}")
    if shadow: shadow()
    tiles = [(t, [(win(wq_frag(t, s)), vr(B + 4 * s, 4)) for s in range(3)]) for t in range(12)]
    tiles.insert(1, (12, [(vr(A + 4 * s, 4), vr(B + 4 * s, 4)) for s in range(3)]))
    SD = W0 + 4
    def store(t, D): pub(e, D, V_PQ, S_A, 64 * t, fl, ("pq", t))
    first, stats, rest = tiles[0], tiles[1], tiles[2:]
    run_tiles(e, [first], [W0 + 32, W0 + 36], lambda t, D: None, btags=["b0", "b1", "b2"])
    e.lg_wait("a2")
    for s, (Aop, Bop) in enumerate(stats[1]):
        e(f"v_mfma_f32_16x16x32_bf16 {vr(SD,4)}, {Aop}, {Bop}, {'0' if s == 0 else vr(SD,4)}")
    accs = [W0 + 36, W0, W0 + 20, W0 + 32]
    pend = [(0, W0 + 32)]
    for i, (t, steps) in enumerate(rest):
        D = accs[i % 4]
        for s, (Aop, Bop) in enumerate(steps):
            e(f"v_mfma_f32_16x16x32_bf16 {vr(D,4)}, {Aop}, {Bop}, {'0' if s == 0 else vr(D,4)}")
        pend.append((t, D))
        if i >= 2: store(*pend.pop(0))
    e(f"v_cndmask_b32 v{SD+1}, v{SD+1}, v{SD+2}, s[{S_N1}:{S_N1+1}]")
    while pend: store(*pend.pop(0))
    pub(e, SD, V_PSQ, S_A, 0, fl, "pqs")

def stage_GU(e, fl, const, with_stats=True, shadow=None):
    B, A = W0 + 8, W0 + 20
    read_bx(e, B)
    if with_stats: read_as(e, A)
    e(f"s_add_u32 s{S_A}, s{S_ROWN}, {const}" if const >= 0 else f"s_sub_u32 s{S_A}, s{S_ROWN}, {-const}")
    if shadow: shadow()
    def tile(d, f, waits=None):
        d = vr(d, 4)
        for s in range(3):
            if waits: e.lg_wait(waits[s])
            e(f"v_mfma_f32_16x16x32_bf16 {d}, {f(s)}, {vr(B+4*s,4)}, {'0' if s == 0 else d}")
    def store(t, G, U):
        e(f"v_swap_b32 v{G+2}, v{U}"); e(f"v_swap_b32 v{G+3}, v{U+1}")
        pub(e, G, V_PG, S_A, 128 * t, fl, ("pg", t, 0))
        pub(e, U, V_PG, S_A, 128 * t + 16, fl, ("pg", t, 1))
    g = lambda t: (lambda s: win(wg_frag(t, s)))
    u = lambda t: (lambda s: win(wu_frag(t, s)))
    P0, P1, S = (W0 + 32, W0 + 36), (W0 + 20, W0 + 24), W0
    tile(P0[0], g(0), waits=["b0", "b1", "b2"]); tile(P0[1], u(0))
    if with_stats:
        e.lg_wait("a2")
        tile(S, lambda s: vr(A + 4 * s, 4))
    tile(P1[0], g(1)); tile(P1[1], u(1))
    store(0, *P0)
    if with_stats: e(f"v_cndmask_b32 v{S+1}, v{S+1}, v{S+2}, s[{S_N1}:{S_N1+1}]")
    tile(P0[0], g(2)); tile(P0[1], u(2))
    store(1, *P1)
    store(2, *P0)
    if with_stats: pub(e, S, V_PS, S_A, 0, fl, "pgs")

def stage_WO(e, fl, region, shadow=None):
    B = W0
    for s in range(6): e.lg(f"ds_read_b128 {vr(B+4*s,4)}, v{V_BO} offset:{64*s}", ("o", s))
    e(f"s_add_u32 s{S_A}, s{S_LOWN}, {region*RG}")
    if shadow: shadow()
    tiles = [(t, [(win(wo_frag(t, s)), vr(B+4*s,4)) for s in range(6)]) for t in range(5)]
    run_tiles(e, tiles, [W0 + 24, W0 + 28, W0 + 32], lambda t, D: pub(e, D, V_PL, S_A, 64 * t, fl, ("po", t)), btags=[("o", s) for s in range(6)])

def stage_D(e, fl, region):
    B = W0
    e.lg(f"ds_read_b128 {vr(B,4)}, v{V_BH}", "h0"); e.lg(f"ds_read_b64 {vr(B+4,2)}, v{V_BH8}", "h1")
    e(f"v_mov_b32 v{B+6}, 0"); e(f"v_mov_b32 v{B+7}, 0")
    e(f"s_add_u32 s{S_A}, s{S_LOWN}, {region*RG}")
    tiles = [(t, [(win(wd_frag(t, 0)), vr(B,4)), (win(wd_frag(t, 1)), vr(B+4,4))]) for t in range(5)]
    run_tiles(e, tiles, [W0 + 8 + 4 * i for i in range(5)], lambda t, D: pub(e, D, V_PL, S_A, 64 * t, fl, ("pd", t)), btags=["h0", "h1"])

def fast_gather(e, o, loads, body, abort, pre=0, early=False):
    n = len(loads); t = V_T
    lab = e.newlabel("fpoll")
    e(f"s_mov_b32 s{S_CNT}, {o.poll_limit}")
    if pre: e(f"s_sleep {pre}")
    e.label(lab)
    for d, vo, s, imm in loads:
        e(f"buffer_load_dwordx4 {vr(d,4)}, v{vo}, s[{SRD_WS}:{SRD_WS+3}], s{s} offen offset:{imm} sc1")
    e(f"s_sub_u32 s{S_CNT}, s{S_CNT}, 1")
    e(f"s_cbranch_scc1 {abort}")
    first = [True]
    if early:
        d = loads[0][0]
        e(f"s_waitcnt vmcnt({n-1})")
        e(f"v_max_u32 v{t}, v{d+1}, v{d+3}")
        e(f"v_cmp_eq_u32 vcc, -1, v{t}")
        e(f"s_cbranch_vccnz {lab}")
        first[0] = False
    def wait(k): e(f"s_waitcnt vmcnt({n-1-k})")
    def chk(k):
        d = loads[k][0]
        if first[0]: e(f"v_max_u32 v{t}, v{d+1}, v{d+3}"); first[0] = False
        else: e(f"v_max3_u32 v{t}, v{t}, v{d+1}, v{d+3}")
    body(wait, chk)
    e(f"v_cmp_eq_u32 vcc, -1, v{t}")
    e(f"s_cbranch_vccnz {lab}")
    e.vmq = []

def padd(e, a, b, neg=False):
    m = " neg_lo:[0,1] neg_hi:[0,1]" if neg else ""
    e(f"v_pk_add_f32 {vr(a,2)}, {vr(a,2)}, {vr(b,2)}{m}"); e(f"v_pk_add_f32 {vr(a+2,2)}, {vr(a+2,2)}, {vr(b+2,2)}{m}")

def g_soffs(e, off_sreg, const, two=True):
    e(f"s_add_u32 s{S_GA}, s{off_sreg}, {const}")
    if two: e(f"s_add_u32 s{S_GB}, s{S_GA}, 4096")
def g_loads(vo, n=8, base=W0): return [(base + 4 * k, vo, S_GA if k < 4 else S_GB, (k % 4) * 1024) for k in range(n)]

def hop_LG(e, o, inst, k, abort, final_only=False):
    skip = e.newlabel("notleader")
    e(f"s_cmp_lg_u32 s{S_HQ}, 0"); e(f"s_cbranch_scc1 {skip}")
    g_soffs(e, S_LGRP, L_REG(inst, k) * RG, two=False)
    e(f"s_add_u32 s{S_A}, s{S_GOWN}, {G_OFF(inst,k)}")
    X = W0 + 32
    off = 1 if o.early else 0
    def body4(wait, chk):
        wait(off + 1); chk(off); chk(off + 1); padd(e, W0, W0 + 4)
        wait(off + 2); chk(off + 2); padd(e, W0, W0 + 8)
        wait(off + 3); chk(off + 3); padd(e, W0, W0 + 12)
    fast_gather(e, o, ([(X, V_LL, S_GA, 0)] if o.early else []) + g_loads(V_LG, 4), body4, abort, pre=o.preL, early=o.early)
    e(f"buffer_store_dwordx4 {vr(W0,4)}, v{V_LG}, s[{SRD_WS}:{SRD_WS+3}], s{S_A} offen sc1")
    if o.preGn:
        join = e.newlabel("lgjoin")
        e(f"s_branch {join}")
        e.label(skip)
        if not final_only: e(f"s_sleep {o.preGn}")
        e.label(join)
    else: e.label(skip)
    if final_only:
        e(f"s_cmp_lg_u32 s{S_H}, 0"); e(f"s_cbranch_scc1 L_done")
    g_soffs(e, S_GGRP, G_OFF(inst, k))
    e.vmq = []
    def body8(wait, chk):
        c = lambda k: chk(off + k)
        w = lambda k: wait(off + k)
        w(1); c(0); c(1); padd(e, W0, V_XR); padd(e, W0, W0 + 4)
        w(3); c(2); c(3); padd(e, W0 + 8, W0 + 12); padd(e, W0, W0 + 8)
        w(5); c(4); c(5); padd(e, W0 + 16, W0 + 20); padd(e, W0, W0 + 16)
        w(6); c(6); padd(e, W0, W0 + 24)
        w(7); c(7); padd(e, W0, W0 + 28)
    fast_gather(e, o, ([(X, V_GL, S_GA, 0)] if o.early else []) + g_loads(V_LG, 8), body8, abort, pre=o.preG, early=o.early)

def hop_packed(e, o, abort, inst, k, pre):
    if inst == 2 and k == 1:
        e(f"s_cmp_lg_u32 s{S_H}, 0"); e(f"s_cbranch_scc1 L_done")
    e(f"s_lshl_b32 s{S_T0}, s{S_J}, 12"); e(f"s_add_u32 s{S_T0}, s{S_T0}, {L_REG(inst,k)*RG}")
    for x in range(8): e(f"s_add_u32 s{SW8[x]}, s{S_T0}, {32768*x}")
    B0 = W0 + 32
    loads = [(B0, V_DB, SW8[0], 0), (B0 + 4, V_DB, SW8[4], 0)] + [(W0 + 4 * x, V_DA, SW8[x], 0) for x in range(8)]
    T = V_T + 1
    def xrow(a):
        for sw in ("v_permlane16_swap_b32", "v_permlane32_swap_b32"):
            for r in range(4):
                t = B0 + 4 + r
                e(f"v_mov_b32 v{t}, v{a+r}")
            for r in range(4): e(f"{sw} v{a+r}, v{B0+4+r}")
            for h in range(2): e(f"v_pk_add_f32 {vr(a+2*h,2)}, {vr(a+2*h,2)}, {vr(B0+4+2*h,2)}")
    def body(wait, chk):
        wait(1); chk(0); chk(1); padd(e, B0, B0 + 4)
        for m in ("row_ror:4", "row_ror:8"):
            for r in range(4): e(f"v_add_f32_dpp v{B0+r}, v{B0+r}, v{B0+r} {m} row_mask:0xf bank_mask:0xf")
        wait(3); chk(2); chk(3); padd(e, W0, W0 + 4)
        xrow(B0)
        wait(5); chk(4); chk(5); padd(e, W0 + 8, W0 + 12); padd(e, W0, W0 + 8)
        wait(7); chk(6); chk(7); padd(e, W0 + 16, W0 + 20); padd(e, W0, W0 + 16)
        wait(8); chk(8); padd(e, W0, W0 + 24)
        wait(9); chk(9); padd(e, W0, W0 + 28)
    fast_gather(e, o, loads, body, abort, pre=pre)
    xrow(W0)
    e("s_mov_b32 vcc_lo, 0xffff0000"); e("s_mov_b32 vcc_hi, 0xffff0000")
    for r in range(4): e(f"v_cndmask_b32 v{W0+r}, v{W0+r}, v{B0+r}, vcc")
    m = rows_mask([LIVE[inst][-1]], 20)
    e(f"s_mov_b32 vcc_lo, 0x{m & 0xffffffff:08x}"); e(f"s_mov_b32 vcc_hi, 0x{m >> 32:08x}")
    for r in range(4): e(f"v_cndmask_b32 v{W0+r}, 0, v{W0+r}, vcc")
    padd(e, W0, V_XR)

def hop_final(e, o, abort, k=1):
    if k == 1:
        e(f"s_cmp_lg_u32 s{S_H}, 0"); e(f"s_cbranch_scc1 L_done")
    e(f"s_lshl_b32 s{S_T0}, s{S_J}, 12"); e(f"s_add_u32 s{S_T0}, s{S_T0}, {L_REG(2,k)*RG}")
    for x in range(8): e(f"s_add_u32 s{SW8[x]}, s{S_T0}, {32768*x}")
    dst = [W0 + 4 * k for k in range(8)] + [CW_K + 4 * k for k in range(24)]
    loads = [(dst[4 * x + q], V_LG, SW8[x], 1024 * q) for x in range(8) for q in range(4)]
    A0, A1 = loads[0][0], loads[1][0]
    def body(wait, chk):
        wait(1); chk(0); chk(1); padd(e, A0, V_XR)
        for k in range(2, 32):
            if k % 2 == 0: wait(min(k + 1, 31)); chk(k); chk(k + 1)
            padd(e, A0 if k % 2 == 0 else A1, loads[k][0])
        padd(e, A0, A1)
    fast_gather(e, o, loads, body, abort, pre=o.preF if k == 1 else o.preF0)

def residual_update(e):
    e(f"v_cvt_pk_bf16_f32 v{W0+4}, v{W0}, v{W0+1}")
    e(f"v_cvt_pk_bf16_f32 v{W0+5}, v{W0+2}, v{W0+3}")
    e.lg(f"ds_write_b64 v{V_WX}, {vr(W0+4,2)}", "wx")
def residual_unpack(e, p):
    e(f"v_lshlrev_b32 v{V_XR}, 16, v{p}"); e(f"v_and_b32 v{V_XR+1}, 0xffff0000, v{p}")
    e(f"v_lshlrev_b32 v{V_XR+2}, 16, v{p+1}"); e(f"v_and_b32 v{V_XR+3}, 0xffff0000, v{p+1}")

def store_out(e, row, only=True):
    skip = e.newlabel("noout")
    e(f"s_cmp_lg_u32 s{S_H}, 0"); e(f"s_cbranch_scc1 {skip}")
    make_srd(e, SRD_T, S_OUT, 2560)
    e(f"v_and_b32 v{V_T}, 31, v{V_LANE}"); e(f"v_lshlrev_b32 v{V_T}, 3, v{V_T}")
    e(f"s_mul_i32 s{S_T0}, s{S_J}, 160"); e(f"s_add_u32 s{S_T0}, s{S_T0}, {row*1280}")
    selmask(e, V_T, V_T, rows_mask([row], 20))
    e(f"buffer_store_dwordx2 {vr(W0+4,2)}, v{V_T}, s[{SRD_T}:{SRD_T+3}], s{S_T0} offen")
    e.label(skip)

def combine_publish(e, fl, parts, mlbase, region):
    T = W0
    e(f"v_mov_b32 v{V_T}, {mlbase}")
    e.lg(f"ds_read_b128 {vr(T,4)}, v{V_T}", "ml0"); e.lg(f"ds_read_b128 {vr(T+4,4)}, v{V_T} offset:16", "ml1")
    P = T + 8
    cur = None
    for w in range(4):
        if cur is None or not (0 <= parts[w] - cur < 60000):
            e(f"v_add_u32 v{V_T+1}, {parts[w]}, v{V_L16}"); cur = parts[w]
        for par in range(2):
            e.lg(f"ds_read_b128 {vr(P+8*w+4*par,4)}, v{V_T+1} offset:{parts[w] - cur + 768*par}", ("p", w, par))
    e(f"s_add_u32 s{S_A}, s{S_ROWN}, {region*RG}")
    e.lg_wait("ml1")
    m = [T, T + 2, T + 4, T + 6]; l = [T + 1, T + 3, T + 5, T + 7]
    M, Ls = V_T, V_T + 1
    e(f"v_max3_f32 v{M}, v{m[0]}, v{m[1]}, v{m[2]}"); e(f"v_max_f32 v{M}, v{M}, v{m[3]}")
    for w in range(4): e(f"v_sub_f32 v{m[w]}, v{m[w]}, v{M}")
    for w in range(4): e(f"v_exp_f32 v{m[w]}, v{m[w]}")
    e(f"v_mul_f32 v{Ls}, v{m[0]}, v{l[0]}")
    for w in range(1, 4): e(f"v_fma_f32 v{Ls}, v{m[w]}, v{l[w]}, v{Ls}")
    for w in range(4):
        e.lg_wait(("p", w, 1))
        a = P + 8 * w
        e(f"v_pk_add_f32 {vr(a,2)}, {vr(a,2)}, {vr(a+4,2)}"); e(f"v_pk_add_f32 {vr(a+2,2)}, {vr(a+2,2)}, {vr(a+6,2)}")
        for r in range(4):
            if w == 0: e(f"v_mul_f32 v{P+r}, v{m[0]}, v{P+r}")
            else: e(f"v_fmac_f32 v{P+r}, v{m[w]}, v{a+r}")
    e(f"s_mov_b32 vcc_lo, 0"); e(f"s_mov_b32 vcc_hi, 0x00010000")
    e(f"v_cndmask_b32 v{P}, v{P}, v{M}, vcc"); e(f"v_cndmask_b32 v{P+1}, v{P+1}, v{Ls}, vcc")
    pub(e, P, V_R, S_A, 0, fl, "r1")

SW8 = [4, 6, 8, 10, 12, 16, 18, 20]
def hop_R1(e, o, region, row, abort):
    g_soffs(e, S_RGRP, region * RG)
    X = W0 + 32
    M, wv = X + 2, X + 3
    acc = W0 + 36
    loads = [(X, V_ML, S_GA, 0)] + g_loads(V_R)
    def body(wait, chk):
        if not o.early: wait(0); chk(0)
        e(f"v_mov_b32 v{M}, v{X}")
        dpp8(e, M, "max")
        e(f"v_sub_f32 v{wv}, v{X}, v{M}"); e(f"v_exp_f32 v{wv}, v{wv}")
        wait(4); chk(1); chk(2)
        e(f"v_mul_f32 v{X+1}, v{wv}, v{X+1}")
        chk(3); chk(4)
        e(f"v_add_f32_dpp v{X+1}, v{X+1}, v{X+1} quad_perm:[1,0,3,2] row_mask:0xf bank_mask:0xf")
        wait(8); chk(5); chk(6)
        e(f"v_add_f32_dpp v{X+1}, v{X+1}, v{X+1} quad_perm:[2,3,0,1] row_mask:0xf bank_mask:0xf")
        chk(7); chk(8)
        e(f"v_add_f32_dpp v{X+1}, v{X+1}, v{X+1} row_half_mirror row_mask:0xf bank_mask:0xf")
        e(f"v_rcp_f32 v{X+1}, v{X+1}")
        e(f"v_mul_f32 v{wv}, v{wv}, v{X+1}")
        for k in range(8): e(f"v_readlane_b32 s{SW8[k]}, v{wv}, {k}")
        for k in range(8):
            for h in range(2):
                a, m = acc + 2 * h, W0 + 4 * k + 2 * h
                sp = f"s[{SW8[k]}:{SW8[k]+1}]"
                if k == 0: e(f"v_pk_mul_f32 {vr(a,2)}, {vr(m,2)}, {sp} op_sel_hi:[1,0]")
                else: e(f"v_pk_fma_f32 {vr(a,2)}, {vr(m,2)}, {sp}, {vr(a,2)} op_sel_hi:[1,0,1]")
    fast_gather(e, o, loads, body, abort, pre=o.preR, early=o.early)
    e(f"v_cvt_pk_bf16_f32 v{acc}, v{acc}, v{acc+1}"); e(f"v_cvt_pk_bf16_f32 v{acc+1}, v{acc+2}, v{acc+3}")
    e.lg(f"ds_write_b64 v{V_W8}, {vr(acc,2)} offset:{ACT_O - SB + 384*row}", "wo")

def ln_gather(e, o, vo, vstat, cs, abort):
    X = W0 + 32; mean, rstd = X + 2, X + 3; T = W0 + 36
    loads = [(X, vstat, S_GA, 0)] + g_loads(vo)
    q = lambda r, m: e(f"v_add_f32_dpp v{r}, v{r}, v{r} {m} row_mask:0xf bank_mask:0xf")
    def body(wait, chk):
        if not o.early: wait(0); chk(0)
        q(X, "quad_perm:[1,0,3,2]"); q(X + 1, "quad_perm:[1,0,3,2]")
        wait(2); chk(1)
        q(X, "quad_perm:[2,3,0,1]"); q(X + 1, "quad_perm:[2,3,0,1]")
        chk(2)
        q(X, "row_half_mirror"); q(X + 1, "row_half_mirror")
        padd(e, W0, W0 + 4)
        e(f"v_mul_f32 v{mean}, {lit(1/640)}, v{X}"); e(f"v_mul_f32 v{X+1}, {lit(1/640)}, v{X+1}")
        wait(4); chk(3); chk(4)
        e(f"v_fma_f32 v{X+1}, -v{mean}, v{mean}, v{X+1}")
        padd(e, W0 + 8, W0 + 12)
        e(f"v_max_f32 v{X+1}, 0, v{X+1}"); e(f"v_add_f32 v{X+1}, {lit(EPS)}, v{X+1}")
        padd(e, W0, W0 + 8)
        e(f"v_rsq_f32 v{rstd}, v{X+1}")
        wait(6); chk(5); chk(6)
        e(f"v_pk_mul_f32 {vr(T,2)}, {vr(cs,2)}, {vr(mean,2)} op_sel_hi:[1,0]"); e(f"v_pk_mul_f32 {vr(T+2,2)}, {vr(cs+2,2)}, {vr(mean,2)} op_sel_hi:[1,0]")
        padd(e, W0 + 16, W0 + 20); padd(e, W0, T, neg=True); padd(e, W0, W0 + 16)
        wait(7); chk(7); padd(e, W0, W0 + 24)
        wait(8); chk(8); padd(e, W0, W0 + 28)
    fast_gather(e, o, loads, body, abort, pre=o.preR, early=o.early)
    e(f"v_pk_mul_f32 {vr(W0,2)}, {vr(W0,2)}, {vr(mean,2)} op_sel:[0,1] op_sel_hi:[1,1]")
    e(f"v_pk_mul_f32 {vr(W0+2,2)}, {vr(W0+2,2)}, {vr(mean,2)} op_sel:[0,1] op_sel_hi:[1,1]")

def hop_R2(e, o, inst, abort):
    ln_gather(e, o, V_R2, V_ST2, V_CSG, abort)
    e(f"v_max_f32 v{W0}, 0, v{W0}"); e(f"v_max_f32 v{W0+1}, 0, v{W0+1}")
    e(f"v_pk_mul_f32 {vr(W0,2)}, {vr(W0,2)}, {vr(W0+2,2)}")
    e(f"v_cvt_pk_bf16_f32 v{W0}, v{W0}, v{W0+1}")
    e.lg(f"ds_write_b32 v{V_WH}, v{W0}", "wh")

def q_consume(e, base, X, row):
    dpp8x2(e, X, X + 1, "add")
    sum_loads(e, 8, base)
    mean, rstd = X + 2, X + 3
    ln_from_stats(e, X, X + 1, mean, rstd)
    for r in range(4): e(f"v_fma_f32 v{base+r}, -v{mean}, v{V_CSQ+r}, v{base+r}")
    for r in range(4): e(f"v_mul_f32 v{base+r}, v{rstd}, v{base+r}")
    e(f"v_cvt_pk_bf16_f32 v{base}, v{base}, v{base+1}"); e(f"v_cvt_pk_bf16_f32 v{base+1}, v{base+2}, v{base+3}")
    e.lg(f"ds_write_b64 v{V_W8}, {vr(base,2)} offset:{QARR - SB + 384*row}", "wq")

def hop_R3(e, o, region, row, abort):
    ln_gather(e, o, V_R, V_ML, V_CSQ, abort)
    e(f"v_cvt_pk_bf16_f32 v{W0}, v{W0}, v{W0+1}"); e(f"v_cvt_pk_bf16_f32 v{W0+1}, v{W0+2}, v{W0+3}")
    e.lg(f"ds_write_b64 v{V_W8}, {vr(W0,2)} offset:{QARR - SB + 384*row}", "wq")

def go_flag(e):
    e(f"v_mov_b32 v{V_T}, {WFLAG + 12}"); e(f"v_mov_b32 v{V_T+1}, 1")
    e.lg(f"ds_write_b32 v{V_T}, v{V_T+1}", "go")

def chain(e, o, fl, inst, live, abort, st):
    c = f"c{inst}."
    if inst == 0 and o.NB1 != o.NB and o.go_at == "R1": go_flag(e)
    if inst == 0: o._save = (o.preR, o.preL, o.preG); o.preL, o.preG = o.preL + o.preL0, o.preG + o.preG0
    st.rounds(f"n{inst}.R1")
    st(c + "R1")
    pk = o.packed.split(",") if o.packed else []
    if inst == 0 and o.split_tok:
        TO, TD = W0 + 38, W0 + 36
        omask = 0xffffffff00ff0000
        def shadow():
            tok2_offsets(e, TO, W0 + 24, others_only=True)
            e(f"s_mov_b32 s{S_B}, {TOK2}")
            set_exec(e, omask)
            e.vm(f"buffer_load_dwordx2 {vr(TD,2)}, v{TO}, s[{SRD_WS}:{SRD_WS+3}], s{S_B} offen sc1", "tok2b")
            e("s_mov_b64 exec, -1")
        stage_WO(e, "sc1" if "00" in pk else fl, L_REG(inst, 0), shadow=shadow)
        ok, lab = e.newlabel("tok2ok"), e.newlabel("tok2re")
        e.vm_wait("tok2b")
        set_exec(e, omask)
        e(f"v_cmp_ne_u32 vcc, s{S_TAG}, v{TD}")
        e(f"s_cbranch_vccz {ok}")
        e(f"s_mov_b32 s{S_CNT}, {o.poll_limit}")
        e.label(lab)
        e(f"buffer_load_dwordx2 {vr(TD,2)}, v{TO}, s[{SRD_WS}:{SRD_WS+3}], s{S_B} offen sc1")
        e(f"s_sub_u32 s{S_CNT}, s{S_CNT}, 1"); e(f"s_cbranch_scc1 {abort}")
        e("s_waitcnt vmcnt(0)")
        e(f"v_cmp_ne_u32 vcc, s{S_TAG}, v{TD}")
        e(f"s_cbranch_vccnz {lab}")
        e.label(ok)
        e("s_mov_b64 exec, -1")
        st(c + "WO")
        if "00" in pk: hop_packed(e, o, abort, inst, 0, o.preP0)
        else: hop_LG(e, o, inst, 0, abort)
    elif f"{inst}0" in pk:
        stage_WO(e, "sc1", L_REG(inst, 0))
        st(c + "WO")
        hop_packed(e, o, abort, inst, 0, o.preP0 if inst == 0 else o.preF0)
    elif inst == 2 and o.direct0:
        stage_WO(e, "sc1", L_REG(inst, 0))
        st(c + "WO")
        hop_final(e, o, abort, k=0)
    else:
        stage_WO(e, fl, L_REG(inst, 0))
        st(c + "WO")
        hop_LG(e, o, inst, 0, abort)
    if inst == 0 and o.NB1 != o.NB and o.go_at == "G1": go_flag(e)
    if inst == 0: o.preR, o.preL, o.preG = o._save
    st.rounds(f"n{inst}.G1")
    st(c + "G1")
    residual_update(e)
    def sh_gu():
        residual_unpack(e, W0 + 4); g_soffs(e, S_RGRP, R2_REG[inst] * RG)
    stage_GU(e, fl, R2_REG[inst] * RG, shadow=sh_gu)
    st(c + "GU")
    hop_R2(e, o, inst, abort)
    st.rounds(f"n{inst}.R2")
    st(c + "R2")
    if f"{inst}1" in pk:
        stage_D(e, "sc1", L_REG(inst, 1))
        st(c + "D")
        hop_packed(e, o, abort, inst, 1, o.preP1 if inst == 0 else (o.preF if inst == 2 else o.preF1))
    elif inst == 2 and o.direct:
        stage_D(e, "sc1", L_REG(inst, 1))
        st(c + "D")
        hop_final(e, o, abort)
    else:
        stage_D(e, fl, L_REG(inst, 1))
        st(c + "D")
        hop_LG(e, o, inst, 1, abort, final_only=(inst == 2))
    st.rounds(f"n{inst}.G2")
    st(c + "G2")
    if inst == 2:
        e(f"v_cvt_pk_bf16_f32 v{W0+4}, v{W0}, v{W0+1}"); e(f"v_cvt_pk_bf16_f32 v{W0+5}, v{W0+2}, v{W0+3}")
        for r in LIVE[2]: store_out(e, r, only=len(LIVE[2]) == 1)
        e("s_cmp_lg_u32 s2, 0"); e("s_cbranch_scc1 L_done")
        e(f"v_mov_b32 v{V_T}, s{S_TAG}"); e(f"v_mov_b32 v{V_T+1}, {EPOCH_OFF}")
        e("s_mov_b64 exec, 1")
        e(f"buffer_store_dword v{V_T}, v{V_T+1}, s[{SRD_WS}:{SRD_WS+3}], 0 offen sc1")
        e("s_mov_b64 exec, -1")
        return
    residual_update(e)
    qrow = 0 if inst == 0 else 1
    def sh_q():
        residual_unpack(e, W0 + 4); g_soffs(e, S_RGRP, R3_REG[inst] * RG)
        if inst == 1 and 0 in LIVE[1]:
            store_out(e, 0)
            cm = cols_mask([1]); e(f"s_mov_b32 vcc_lo, 0x{cm & 0xffffffff:08x}"); e(f"s_mov_b32 vcc_hi, 0x{cm >> 32:08x}")
            e(f"v_cndmask_b32 v{V_PQ}, v{V_OOB}, v{V_PQ}, vcc"); e(f"v_cndmask_b32 v{V_PSQ}, v{V_OOB}, v{V_PSQ}, vcc")
    stage_Q(e, fl, R3_REG[inst] - qrow, shadow=sh_q)
    st(c + "Q")
    hop_R3(e, o, R3_REG[inst], qrow, abort)
    e.lg_all()
    st.rounds(f"n{inst}.R3")
    st(c + "R3")

TOK1 = 21 * RG
TOK2 = TOK1 + 32768
EPOCH_OFF = 896
S_TAG = 73

LIVE = {0: [0], 1: [0, 1], 2: [1]}
o_direct = [True, False]
o_packed = [False]
o_exp = ['']
o_dset = set()
def emit_resets_P(e):
    e(f"v_mov_b32 v{W0}, -1"); e(f"v_mov_b32 v{W0+1}, -1"); e(f"v_mov_b32 v{W0+2}, -1"); e(f"v_mov_b32 v{W0+3}, -1")
    for r in [4, 5, 6]:
        e(f"s_add_u32 s{S_A}, s{S_ROWN}, {r*RG}")
        e.vm(f"buffer_store_dwordx4 {vr(W0,4)}, v{V_R}, s[{SRD_WS}:{SRD_WS+3}], s{S_A} offen sc1", "rstp")
    e(f"v_lshlrev_b32 v{V_T}, 4, v{V_LANE}")
    selmask(e, W0 + 4, V_T, rows_mask([0], 24))
    e(f"s_add_u32 s{S_A}, s{S_ROWN}, {R2_REG['P']*RG}")
    e.vm(f"buffer_store_dwordx4 {vr(W0,4)}, v{W0+4}, s[{SRD_WS}:{SRD_WS+3}], s{S_A} offen sc1", "rstp")

def emit_resets(e, f):
    e(f"v_mov_b32 v{W0}, -1"); e(f"v_mov_b32 v{W0+1}, -1"); e(f"v_mov_b32 v{W0+2}, -1"); e(f"v_mov_b32 v{W0+3}, -1")
    def reset(vo, sreg, const):
        e(f"s_add_u32 s{S_A}, s{sreg}, {const}")
        e.vm(f"buffer_store_dwordx4 {vr(W0,4)}, v{vo}, s[{SRD_WS}:{SRD_WS+3}], s{S_A} offen {f}", "rst")
    e(f"v_and_b32 v{V_T}, 31, v{V_LANE}"); e(f"v_lshlrev_b32 v{V_T}, 4, v{V_T}")
    e(f"v_lshrrev_b32 v{V_T+1}, 5, v{V_LANE}"); e(f"v_lshl_add_u32 v{V_T}, v{V_T+1}, 9, v{V_T}")
    liv = dict(LIVE); liv['P'] = [0]
    skip = e.newlabel("norstg")
    e(f"s_cmp_lg_u32 s{S_HQ}, 0"); e(f"s_cbranch_scc1 {skip}")
    for inst in (0, 1, 2):
        ks = [k for k in range(2) if (inst, k) not in o_dset]
        if not ks: continue
        selmask(e, W0 + 4, V_T, rows_mask(liv[inst], 20))
        for k in ks:
            e(f"s_add_u32 s{S_A}, s{S_GOWN}, {G_OFF(inst,k)}")
            e(f"buffer_store_dwordx4 {vr(W0,4)}, v{W0+4}, s[{SRD_WS}:{SRD_WS+3}], s{S_A} offen sc1")
    e.label(skip)
    for r in [7, 8] + list(R1_REG.values()): reset(V_R, S_ROWN, r * RG)
    for inst in (0, 1, 2):
        selmask(e, W0 + 4, V_T, rows_mask(liv[inst], 25))
        reset(W0 + 4, S_ROWN, R2_REG[inst] * RG)
        selmask(e, W0 + 4, V_T, rows_mask(liv[inst], 20))
        for k in range(2):
            if (inst, k) in o_dset:
                if o_exp[0] and "noLrst" in o_exp[0]: continue
                e(f"s_add_u32 s{S_A}, s{S_LOWN}, {L_REG(inst, k) * RG}")
                e.vm(f"buffer_store_dwordx4 {vr(W0,4)}, v{W0+4}, s[{SRD_WS}:{SRD_WS+3}], s{S_A} offen sc1", "rst")
            else: reset(W0 + 4, S_LOWN, L_REG(inst, k) * RG)

def token_store(e, base, second):
    e(f"s_lshl_b32 s{S_A}, s2, 7"); e(f"s_add_u32 s{S_A}, s{S_A}, {base}")
    e(f"v_mov_b32 v{W0+40}, s{S_TAG}"); e(f"v_mov_b32 v{W0+41}, {second}"); e(f"v_mov_b32 v{V_T}, 0")
    e("s_mov_b64 exec, 1")
    e.vm(f"buffer_store_dwordx2 {vr(W0+40,2)}, v{V_T}, s[{SRD_WS}:{SRD_WS+3}], s{S_A} offen sc1", "tok")
    e("s_mov_b64 exec, -1")

def token_gather(e, o, base, vo, mask, sleep=0, dst=W0, between=None):
    lab = e.newlabel("tok"); chk = e.newlabel("tokchk")
    if between:
        e(f"s_mov_b32 s{S_B}, {base}")
        set_exec(e, mask)
        e(f"buffer_load_dwordx2 {vr(dst,2)}, v{vo}, s[{SRD_WS}:{SRD_WS+3}], s{S_B} offen sc1")
        e("s_mov_b64 exec, -1")
        between()
        e(f"s_mov_b32 s{S_A}, {base}")
        set_exec(e, mask)
        e(f"s_mov_b32 s{S_CNT}, {o.poll_limit}")
        e(f"s_branch {chk}")
    else:
        e(f"s_mov_b32 s{S_A}, {base}")
        set_exec(e, mask)
        e(f"s_mov_b32 s{S_CNT}, {o.poll_limit}")
    e.label(lab)
    e(f"buffer_load_dwordx2 {vr(dst,2)}, v{vo}, s[{SRD_WS}:{SRD_WS+3}], s{S_A} offen sc1")
    e(f"s_sub_u32 s{S_CNT}, s{S_CNT}, 1"); e(f"s_cbranch_scc1 L_abort")
    e.label(chk)
    e("s_waitcnt vmcnt(0)")
    e(f"v_cmp_ne_u32 vcc, s{S_TAG}, v{dst}")
    if sleep:
        ok = e.newlabel("tokok"); e(f"s_cbranch_vccz {ok}"); e(f"s_sleep {sleep}"); e(f"s_branch {lab}"); e.label(ok)
    else: e(f"s_cbranch_vccnz {lab}")
    e.vmq = []

def tr_block(e, items):
    i, g, r, c, t = W0, W0 + 1, W0 + 2, W0 + 3, W0 + 4
    a32, a16 = W0 + 6, W0 + 7
    def tr_setup():
        e(f"v_and_b32 v{i}, 15, v{V_LANE}"); e(f"v_lshrrev_b32 v{g}, 4, v{V_LANE}")
        e(f"v_lshrrev_b32 v{r}, 2, v{i}"); e(f"v_and_b32 v{c}, 3, v{i}")
    def trbase(dst, stride, rows_per_g, base):
        e(f"v_mul_u32_u24 v{t}, {rows_per_g}, v{g}"); e(f"v_add_u32 v{t}, v{t}, v{r}")
        e(f"v_mul_u32_u24 v{t}, {stride}, v{t}"); e(f"v_lshl_add_u32 v{dst}, v{c}, 3, v{t}")
        if base: e(f"v_add_u32 v{dst}, {base}, v{dst}")
    def tr(frag, addr, off, k16, stride):
        f, lo = frag
        e.lg(f"ds_read_b64_tr_b16 {f}[{lo}:{lo+1}], v{addr} offset:{off}", "tr")
        if not k16: e.lg(f"ds_read_b64_tr_b16 {f}[{lo+2}:{lo+3}], v{addr} offset:{off+4*stride}", "tr")
        if len(e.lgq) >= 12: e.lg_wait_n(4)
    if True:
        tr_setup()
        for frag, nt, stride, base, ks in items:
            trbase(a32, stride, 8, base); trbase(a16, stride, 4, base)
            nk = len(ks)
            for tt in range(nt):
                for s, k0 in enumerate(ks):
                    k16 = (frag is not wo_frag) and s == nk - 1
                    tr(frag(tt, s), a16 if k16 else a32, k0 * stride + 32 * tt, k16, stride)
        e.lg_all()

def prologue_weights(e, o, st):
    abort = "L_abort"
    e(f"v_mov_b32 v{W0+2}, 0x3f803f80"); e(f"v_mov_b32 v{W0+3}, 0x3f803f80")
    e(f"v_lshlrev_b32 v{W0+4}, 3, v{V_LANE}"); e(f"v_add_u32 v{W0+4}, {ACT_X+384}, v{W0+4}")
    set_exec(e, mask64(range(24)))
    e.lg(f"ds_write_b64 v{W0+4}, {vr(W0+2,2)}", "ones")
    e("s_mov_b64 exec, -1")
    e.lg(f"ds_write_b64 v{V_WX}, {vr(V_XR,2)}", "wx")
    e(f"v_lshlrev_b32 v{V_XR+2}, 16, v{V_XR+1}"); e(f"v_and_b32 v{V_XR+3}, 0xffff0000, v{V_XR+1}")
    e(f"v_and_b32 v{V_XR+1}, 0xffff0000, v{V_XR}"); e(f"v_lshlrev_b32 v{V_XR}, 16, v{V_XR}")
    e.lg_all()
    lab = e.newlabel("wflag")
    e(f"v_mov_b32 v{V_T+1}, {WFLAG}")
    e(f"s_mov_b32 s{S_CNT}, {o.poll_limit*8}")
    e.label(lab)
    e(f"ds_read_b96 {vr(W0,3)}, v{V_T+1}")
    e(f"s_sub_u32 s{S_CNT}, s{S_CNT}, 1"); e(f"s_cbranch_scc1 {abort}")
    e("s_waitcnt lgkmcnt(0)")
    e(f"v_and_b32 v{W0}, v{W0}, v{W0+1}"); e(f"v_and_b32 v{W0}, v{W0}, v{W0+2}")
    e(f"v_cmp_ne_u32 vcc, 1, v{W0}")
    e(f"s_cbranch_vccnz {lab}")
    st("p.wland")
    wg0, wu0 = (STD_WG, STD_WU) if o.defer else (ST_WG, ST_WU)
    tr_block(e, [(wq_frag, 12, 384, ST_WQ, (0, 32, 64)), (wg_frag, 3, 96, wg0, (0, 32, 64)), (wu_frag, 3, 96, wu0, (0, 32, 64))])
    st("p.weights")

def deferred_weights(e, o, st):
    lab = e.newlabel("w2flag")
    e(f"v_mov_b32 v{V_T+1}, {WFLAG + 16}")
    e(f"s_mov_b32 s{S_CNT}, {o.poll_limit*8}")
    e.label(lab)
    e(f"ds_read_b96 {vr(W0,3)}, v{V_T+1}")
    e(f"s_sub_u32 s{S_CNT}, s{S_CNT}, 1"); e(f"s_cbranch_scc1 L_abort")
    e("s_waitcnt lgkmcnt(0)")
    e(f"v_and_b32 v{W0}, v{W0}, v{W0+1}"); e(f"v_and_b32 v{W0}, v{W0}, v{W0+2}")
    e(f"v_cmp_ne_u32 vcc, 1, v{W0}")
    e(f"s_cbranch_vccnz {lab}")
    st("c0.wland")
    i, g, r, c, t, a, b = W0, W0 + 1, W0 + 2, W0 + 3, W0 + 4, W0 + 6, W0 + 7
    e(f"v_and_b32 v{i}, 15, v{V_LANE}"); e(f"v_lshrrev_b32 v{g}, 4, v{V_LANE}")
    e(f"v_lshrrev_b32 v{r}, 2, v{i}"); e(f"v_and_b32 v{c}, 3, v{i}")
    def tr(frag, addr, off, k16):
        f, lo = frag
        e.lg(f"ds_read_b64_tr_b16 {f}[{lo}:{lo+1}], v{addr} offset:{off}", "tr")
        if not k16: e.lg(f"ds_read_b64_tr_b16 {f}[{lo+2}:{lo+3}], v{addr} offset:{off+4*160}", "tr")
        if len(e.lgq) >= 12: e.lg_wait_n(4)
    e(f"v_lshl_add_u32 v{t}, v{g}, 3, v{r}"); e(f"v_mul_u32_u24 v{t}, 160, v{t}"); e(f"v_lshl_add_u32 v{b}, v{c}, 3, v{t}")
    for ar in range(3):
        e(f"v_add_u32 v{a}, {DEF_AREA(ar)}, v{b}")
        for tt in range(5):
            for half in range(2): tr(wo_frag(tt, 2 * ar + half), a, 32 * half * 160 + 32 * tt, False)
    e(f"v_lshl_add_u32 v{t}, v{g}, 3, v{r}"); e(f"v_and_b32 v{t}, 15, v{t}"); e(f"v_mul_u32_u24 v{t}, 160, v{t}")
    e(f"v_lshrrev_b32 v{a}, 1, v{g}"); e(f"v_mul_u32_u24 v{a}, {LDS_SW}, v{a}"); e(f"v_add_u32 v{a}, v{a}, v{t}")
    e(f"v_lshl_add_u32 v{a}, v{c}, 3, v{a}"); e(f"v_add_u32 v{a}, {DEF_AREA(0) + 10240}, v{a}")
    for tt in range(5): tr(wd_frag(tt, 0), a, 32 * tt, False)
    e(f"v_lshl_add_u32 v{t}, v{g}, 2, v{r}"); e(f"v_mul_u32_u24 v{t}, 160, v{t}"); e(f"v_lshl_add_u32 v{b}, v{c}, 3, v{t}")
    e(f"v_add_u32 v{b}, {DEF_AREA(2) + 10240}, v{b}")
    for tt in range(5): tr(wd_frag(tt, 1), b, 32 * tt, True)
    e.lg_all()
    e(f"v_mov_b32 v{W0}, {WFLAG + 28}"); e(f"v_mov_b32 v{W0+1}, 1")
    e.lg(f"ds_write_b32 v{W0}, v{W0+1}", "free")

def tok2_offsets(e, TO, tmp, others_only=False):
    L = V_LANE; t, u, a, b, c = tmp, tmp + 1, tmp + 2, tmp + 3, tmp + 4
    e(f"v_and_b32 v{t}, 7, v{L}")
    e(f"s_lshl_b32 s{S_T1}, s{S_J}, 3")
    e(f"v_add_u32 v{c}, s{S_T1}, v{t}")
    if not others_only:
        e(f"v_lshlrev_b32 v{u}, 3, v{t}")
        e(f"s_lshl_b32 s{S_T0}, s{S_HQ}, 6"); e(f"s_add_u32 s{S_T0}, s{S_T0}, s{S_XC}"); e(f"v_add_u32 v{a}, s{S_T0}, v{u}")
        e(f"v_lshlrev_b32 v{u}, 6, v{t}")
        e(f"s_add_u32 s{S_T0}, s{S_T1}, s{S_XC}"); e(f"v_add_u32 v{b}, s{S_T0}, v{u}")
        e("s_mov_b32 vcc_lo, 0x00000f00"); e("s_mov_b32 vcc_hi, 0"); e(f"v_cndmask_b32 v{a}, v{a}, v{b}, vcc")
        e("s_mov_b32 vcc_lo, 0x00ff0000"); e(f"v_cndmask_b32 v{a}, v{a}, v{c}, vcc")
    else: e(f"v_mov_b32 v{a}, v{c}")
    e(f"v_bfe_u32 v{u}, v{L}, 3, 2"); e(f"v_lshlrev_b32 v{u}, 6, v{u}"); e(f"v_add_u32 v{c}, v{c}, v{u}")
    e("s_mov_b32 vcc_lo, 0"); e("s_mov_b32 vcc_hi, -1"); e(f"v_cndmask_b32 v{a}, v{a}, v{c}, vcc")
    e(f"v_lshlrev_b32 v{TO}, 7, v{a}")

def cw_load_tiles(e, o, base):
    R = NS(voffK=1, voffX=2, voffY=3)
    for T in range(CW_TILES):
        kv_soff(e, base, T)
        for s in range(3): ld_k(e, R, vr(CW_K + 12 * T + 4 * s, 4), s, ('K', T, s), o)
    for T in range(CW_TILES):
        kv_soff(e, base, T)
        for w in range(3): ld_v(e, R, vr(CW_V + 12 * T + 4 * w, 4), w, ('V', T, w), o)

def chain_wave(e, o, st, local):
    fl = "" if local else "sc1"
    abort = "L_abort"
    R = NS(vlds=V_L16, voffK=1, voffX=2, voffY=3, sel=V_SEL, qA=32, D=44, sc=56, tmp=57, vpw=62, acc=32, A=44, pp=52, vpp=63, vm=60, vl=61, vlt=59)
    instance_offsets(e, [0, 1], pub_live=[2], q_live=[0, 1, 2])
    stage_Q(e, fl, R3_REG['P'])
    stage_GU(e, fl, R2_REG['P'] * RG - 1024, with_stats=False)
    st("p.pub")
    emit_resets(e, fl)
    st("reset")
    if not o.defer: tr_block(e, [(wo_frag, 5, 160, ST_WO, (0, 32, 64, 96, 128, 160)), (wd_frag, 5, 160, ST_WD, (0, 32))])
    GA = CW_K
    e(f"v_and_b32 v{V_T}, 31, v{V_LANE}"); e(f"v_lshlrev_b32 v{V_T}, 4, v{V_T}")
    selmask(e, W0 + 40, V_T, rows_mask([0, 1], 24))
    sr = list(range(10, 18))
    for k, reg in enumerate((4, 5, 6, R2_REG['P'])):
        e(f"s_add_u32 s{sr[2*k]}, s{S_RGRP}, {reg*RG}"); e(f"s_add_u32 s{sr[2*k+1]}, s{sr[2*k]}, 4096")
    loads = []
    for row in range(3):
        loads += [(GA + 32 * row + 4 * k, V_R, sr[2*row + (k >= 4)], (k % 4) * 1024) for k in range(8)]
    loads += [(W0 + 32, V_ML, sr[0], 0), (W0 + 36, V_ML, sr[2], 0)]
    loads += [(W0 + 4 * k, W0 + 40, sr[6 + (k >= 4)], (k % 4) * 1024) for k in range(8)]
    poll(e, o, loads, abort, sleep=o.p_sleep)
    token_store(e, TOK2, 0)
    st("p.gather")
    sum_loads(e, 8, GA + 64)
    for rr in range(4): e(f"v_mov_b32 v{V_CSQ+rr}, v{GA+64+rr}")
    sum_loads(e, 8, W0)
    for rr in range(4): e(f"v_mov_b32 v{V_CSG+rr}, v{W0+rr}")
    for row in range(2):
        q_consume(e, GA + 32 * row, W0 + 32 + 4 * row, row)
    st("q1")
    def load_tiles(base): cw_load_tiles(e, o, base)
    load_tiles(S_KV0)
    instance_offsets(e, [0])
    TO, TD = W0 + 38, W0 + 36
    tok2_offsets(e, TO, W0 + 2)
    tmask = 0x00000fff if o.split_tok else (0xffffffff00ff0fff if o.direct else 0x00ff0fff)
    def first_pass():
        e.vmq.append("tok2")
        e.lg_all()
        st("pro_done")
        e("s_barrier")
        if "stopA" in o.exp: e("s_branch L_done")
        def kw(T):
            if T >= 0: e.vm_wait(('K', T, 2))
        def vw(T, w): e.vm_wait(('V', T, w))
        attn_pass(e, R, CW_TILES, 0, Kf, Vf, S_PB, 0, k_wait=kw, v_wait=vw)
    Kf = lambda T, s: vr(CW_K + 12 * T + 4 * s, 4)
    Vf = lambda T, w: vr(CW_V + 12 * T + 4 * w, 4)
    token_gather(e, o, TOK2, TO, tmask, sleep=o.t_sleep, dst=TD, between=first_pass)
    e("s_mov_b64 exec, -1")
    st("p.tok2g")
    e("s_barrier")
    st("bar2")
    parts = [PART + 1536 * w for w in range(4)]
    combine_publish(e, fl, parts, ML, R1_REG[0])
    if o.defer == 1: deferred_weights(e, o, st)
    st("c0.cmb")
    sv = o.preR; o.preR = sv + o.preR0
    hop_R1(e, o, R1_REG[0], 0, abort)
    o.preR = sv
    if o.defer == 2: deferred_weights(e, o, st)
    chain(e, o, fl, 0, [0], abort, st)
    st("chain0")
    e("s_barrier")
    attn_pass(e, R, CW_TILES, 0, Kf, Vf, S_PB, 32)
    e("s_barrier")
    parts_early = [PART] + [LDS_SW * s + 48 * 1024 for s in range(3)]
    combine_publish(e, fl, parts_early, ML + 32, R1_REG['1a'])
    load_tiles(S_KV1)
    instance_offsets(e, LIVE[1])
    hop_R1(e, o, R1_REG['1a'], 0, abort)
    e.vmq = []
    attn_pass(e, R, CW_TILES, 1, Kf, Vf, S_PB, 0)
    e("s_barrier")
    st("bar6")
    combine_publish(e, fl, parts, ML, R1_REG['1b'])
    st("c1.cmb")
    hop_R1(e, o, R1_REG['1b'], 1, abort)
    chain(e, o, fl, 1, [0, 1], abort, st)
    st("chain1")
    e("s_barrier")
    attn_pass(e, R, CW_TILES, 1, Kf, Vf, S_PB, 0)
    instance_offsets(e, LIVE[2])
    e("s_barrier")
    st("bar8")
    combine_publish(e, fl, parts, ML, R1_REG[2])
    st("c2.cmb")
    hop_R1(e, o, R1_REG[2], 1, abort)
    chain(e, o, fl, 2, [1], abort, st)
    st("chain2")
    e("s_branch L_done")

def chain_wave_setup(e, o, st):
    L = V_LANE
    if o.prio: e(f"s_setprio {o.prio}")
    lane_id(e, L)
    e(f"v_mov_b32 v{V_OOB}, 0x{OOB:08x}")
    e(f"s_lshl_b32 s{S_RGRP}, s{S_H}, 13"); e(f"s_lshl_b32 s{S_T0}, s{S_J}, 10"); e(f"s_add_u32 s{S_ROWN}, s{S_RGRP}, s{S_T0}")
    e(f"s_lshl_b32 s{S_LGRP}, s{S_XC}, 3"); e(f"s_add_u32 s{S_LGRP}, s{S_LGRP}, s{S_J}"); e(f"s_lshl_b32 s{S_LGRP}, s{S_LGRP}, 12")
    e(f"s_lshl_b32 s{S_T0}, s{S_HQ}, 10"); e(f"s_add_u32 s{S_LOWN}, s{S_LGRP}, s{S_T0}")
    e(f"s_lshl_b32 s{S_GGRP}, s{S_J}, 13"); e(f"s_lshl_b32 s{S_T0}, s{S_XC}, 10"); e(f"s_add_u32 s{S_GOWN}, s{S_GGRP}, s{S_T0}")
    late_common(e)
    if "nocw" in o.exp:
        e("s_barrier")
        st("bar1x")
        e("s_branch L_done")
    e(f"v_lshlrev_b32 v{V_L16}, 4, v{L}")
    selmask(e, V_R, V_L16, mask64(range(49)))
    e(f"s_load_dword s{S_TAG}, s[{S_WS}:{S_WS+1}], {EPOCH_OFF}")
    if "noPrst" not in o.exp: emit_resets_P(e)
    e(f"s_getreg_b32 s{S_T2}, hwreg(HW_REG_XCC_ID)"); e(f"s_and_b32 s{S_T2}, s{S_T2}, 0xf")
    make_srd(e, SRD_T, S_X, 2560)
    e(f"v_and_b32 v{V_T}, 31, v{L}"); e(f"v_lshlrev_b32 v{V_T}, 3, v{V_T}")
    e(f"v_lshrrev_b32 v{V_T+1}, 5, v{L}"); e(f"v_mul_u32_u24 v{V_T+1}, 1280, v{V_T+1}"); e(f"v_add_u32 v{V_T}, v{V_T}, v{V_T+1}")
    selmask(e, V_T, V_T, rows_mask([0, 1], 20))
    e(f"s_mul_i32 s{S_T0}, s{S_J}, 160")
    e.vm(f"buffer_load_dwordx2 {vr(V_XR,2)}, v{V_T}, s[{SRD_T}:{SRD_T+3}], s{S_T0} offen", "x")
    e(f"s_add_u32 s{S_KV1}, s{S_KV0}, {BATCH_STRIDE}")
    R = NS(voffK=1, voffX=2, voffY=3, sel=V_SEL)
    attn_selectors(e, R, L, W0)
    n, g, x = W0, W0 + 1, W0 + 2
    e(f"v_mov_b32 v{W0+3}, v{V_L16}"); selmask(e, V_L16, W0 + 3, mask64(range(48)), other=0)
    e(f"v_and_b32 v{n}, 15, v{L}"); e(f"v_lshrrev_b32 v{g}, 4, v{L}")
    e(f"v_min_u32 v{x}, 1, v{n}")
    e(f"v_mul_u32_u24 v{V_BO}, 384, v{x}"); e(f"v_lshl_add_u32 v{V_BO}, v{g}, 4, v{V_BO}"); e(f"v_add_u32 v{V_BO}, {ACT_O}, v{V_BO}")
    e(f"v_lshlrev_b32 v{V_BH}, 7, v{x}"); e(f"v_lshl_add_u32 v{V_BH8}, v{g}, 3, v{V_BH}"); e(f"v_add_u32 v{V_BH8}, {ACT_H+64}, v{V_BH8}")
    e(f"v_lshl_add_u32 v{V_BH}, v{g}, 4, v{V_BH}"); e(f"v_add_u32 v{V_BH}, {ACT_H}, v{V_BH}")
    e(f"v_min_u32 v{x}, 2, v{n}")
    e(f"v_mul_u32_u24 v{V_BX}, 192, v{x}"); e(f"v_lshl_add_u32 v{V_BX8}, v{g}, 3, v{V_BX}"); e(f"v_add_u32 v{V_BX8}, {ACT_X+128}, v{V_BX8}")
    e(f"v_lshl_add_u32 v{V_BX}, v{g}, 4, v{V_BX}"); e(f"v_add_u32 v{V_BX}, {ACT_X}, v{V_BX}")
    e(f"v_subrev_u32 v{x}, 1, v{n}"); e(f"v_min_u32 v{x}, 2, v{x}")
    e(f"v_mul_u32_u24 v{V_AS}, 192, v{x}"); e(f"v_lshl_add_u32 v{V_AS8}, v{g}, 3, v{V_AS}"); e(f"v_add_u32 v{V_AS8}, {ACT_X+128}, v{V_AS8}")
    e(f"v_lshl_add_u32 v{V_AS}, v{g}, 4, v{V_AS}"); e(f"v_add_u32 v{V_AS}, {ACT_X}, v{V_AS}")
    e(f"v_lshlrev_b32 v{x}, 3, v{L}"); e(f"v_add_u32 v{x}, {SB}, v{x}"); selmask(e, V_W8, x, mask64(range(48)), other=SB+2560)
    e(f"v_and_b32 v{n}, 31, v{L}"); e(f"v_lshrrev_b32 v{g}, 5, v{L}")
    e(f"v_mul_u32_u24 v{x}, 192, v{g}"); e(f"v_lshl_add_u32 v{x}, v{n}, 3, v{x}"); e(f"v_add_u32 v{x}, {ACT_X}, v{x}")
    selmask(e, V_WX, x, rows_mask([0, 1], 20), other=DUMMY)
    e(f"v_lshlrev_b32 v{x}, 7, v{g}"); e(f"v_lshl_add_u32 v{x}, v{n}, 2, v{x}"); e(f"v_add_u32 v{x}, {ACT_H}, v{x}")
    selmask(e, V_WH, x, rows_mask([0, 1], 24), other=DUMMY)
    e(f"v_and_b32 v{x}, 7, v{L}"); e(f"v_lshlrev_b32 v{x}, 10, v{x}"); e(f"v_add_u32 v{V_ML}, 768, v{x}")
    m = mask64([16 * a + 1 for a in range(4)])
    e(f"s_mov_b32 s{S_N1}, 0x{m & 0xffffffff:08x}"); e(f"s_mov_b32 s{S_N1+1}, 0x{m >> 32:08x}")
    e("s_waitcnt lgkmcnt(0)")
    e(f"s_add_u32 s{S_TAG}, s{S_TAG}, 1")
    e.vm_all(force=True)
    token_store(e, TOK1, f"s{S_T2}")
    st("p.tok1")
    TO, TD = W0 + 38, W0 + 36
    e(f"v_lshlrev_b32 v{TO}, 10, v{L}"); e(f"s_lshl_b32 s{S_T0}, s{S_XC}, 7"); e(f"v_add_u32 v{TO}, s{S_T0}, v{TO}")
    token_gather(e, o, TOK1, TO, 0xffffffff, sleep=o.t_sleep, dst=TD, between=lambda: prologue_weights(e, o, st))
    e(f"v_cmp_ne_u32 vcc, s{S_T2}, v{TD+1}")
    e("s_mov_b64 exec, -1")
    st("p.mode")
    e("s_nop 3")
    e("s_cmp_lg_u32 vcc_lo, 0")

def late_common(e):
    make_srd(e, SRD_V, S_V, KV_BYTES); make_srd(e, SRD_WS, S_WS, WS_REC)
    e(f"s_mov_b32 s{S_C}, {lit(CSCALE)}")
    e(f"s_mov_b32 s{S_HI32}, 0"); e(f"s_mov_b32 s{S_HI32+1}, -1")
    e(f"s_mul_i32 s{S_PB}, s{S_WAVE}, 1536"); e(f"s_add_u32 s{S_PB}, s{S_PB}, {PART}")
    e(f"s_lshl_b32 s{S_MLB}, s{S_WAVE}, 3"); e(f"s_add_u32 s{S_MLB}, s{S_MLB}, {ML}")

def generate(o):
    Stamps.select = o.stampset.split(",") if o.stampset else None
    o_direct[0] = o.direct; o_direct[1] = o.direct0
    LIVE.update({1: [1], 2: [0, 1]} if o.late_b0 else {1: [0, 1], 2: [1]})
    o_packed[0] = bool(o.packed)
    o_exp[0] = o.exp
    o_dset.clear()
    if o.packed: o_dset.update({(int(c[0]), int(c[1])) for c in o.packed.split(",")})
    if o.direct: o_dset.add((2, 1))
    if o.direct0: o_dset.add((2, 0))
    e = Emit()
    e("s_cmp_ge_u32 s2, 256"); e("s_cbranch_scc1 L_done")
    e("s_load_dwordx16 s[4:19], s[0:1], 0"); e("s_load_dwordx8 s[20:27], s[0:1], 64")
    e("v_lshrrev_b32 v1, 6, v0")
    e(f"s_and_b32 s{S_XC}, s2, 7"); e(f"s_lshr_b32 s{S_HQ}, s2, 6")
    e(f"v_readfirstlane_b32 s{S_WAVE}, v1")
    e(f"s_lshr_b32 s{S_J}, s2, 3"); e(f"s_and_b32 s{S_J}, s{S_J}, 7")
    e(f"s_lshl_b32 s{S_H}, s{S_XC}, 2"); e(f"s_add_u32 s{S_H}, s{S_H}, s{S_HQ}")
    e(f"s_mul_i32 s{S_KV0}, s{S_H}, {HEAD_STRIDE}"); e(f"s_mul_i32 s{S_T0}, s{S_J}, {CHUNK_STRIDE}"); e(f"s_add_u32 s{S_KV0}, s{S_KV0}, s{S_T0}")
    e(f"s_add_u32 s{S_T0}, s{S_WAVE}, 3"); e(f"s_and_b32 s{S_T0}, s{S_T0}, 3")
    e(f"s_mul_i32 s{S_T1}, s{S_T0}, {SW_TILES*TILE_B}"); e(f"s_add_u32 s{S_KV0}, s{S_KV0}, s{S_T1}")
    lane_id(e, 8)
    e("v_mov_b32 v14, 0"); e(f"v_mov_b32 v15, {WFLAG}"); e("v_lshl_add_u32 v15, v8, 2, v15")
    e("s_mov_b32 exec_lo, 0xff"); e("s_mov_b32 exec_hi, 0")
    e("ds_write_b32 v15, v14")
    e("s_mov_b64 exec, -1")
    attn_load_offsets(e, NS(voffK=1, voffX=2, voffY=3), 8, 10)
    e("s_waitcnt lgkmcnt(0)")
    e("s_barrier")
    make_srd(e, SRD_K, S_K, KV_BYTES)
    e(f"s_cmp_eq_u32 s{S_WAVE}, 0"); e("s_cbranch_scc1 L_chain")
    st_s = Stamps(e, o.stamps); st_s("start")
    stream_wave(e, o, st_s)
    e.label("L_chain")
    e.vmq = []; e.lgq = []
    st_c = Stamps(e, o.stamps); st_c("start")
    chain_wave_setup(e, o, st_c)
    names = {}
    if o.force_global: e("s_branch L_global")
    else: e("s_cbranch_scc1 L_global")
    base_names = list(st_c.names)
    sv = (list(e.vmq), list(e.lgq))
    chain_wave(e, o, st_c, True)
    names['cw'] = list(st_c.names); names['sw'] = list(st_s.names)
    e.label("L_global")
    e.vmq, e.lgq = sv
    st_g = Stamps(e, o.stamps); st_g.names = list(base_names)
    chain_wave(e, o, st_g, False)
    e.label("L_abort")
    e.label("L_done")
    if o.stamps:
        e("s_cmp_ge_u32 s2, 256"); e("s_cbranch_scc1 L_exit")
        fl = Stamps(e, True); fl.names = names['cw']; fl.flush()
        e.label("L_exit")
    e("s_endpgm")
    return e, names

HEAD = """; Fused two-layer decode step (attention over a cached K/V + ReGLU FFN, twice), one persistent launch.
; @launch grid=(256,1,1) block=(256,1,1) lds=%d
;
.amdgcn_target "amdgcn-amd-amdhsa--gfx950"
.text
.globl %s
.p2align 8
.type %s,@function
%s:
"""
FOOT = """
.section .rodata,"a"
.p2align 6
.amdhsa_kernel %s
  .amdhsa_next_free_vgpr 512
  .amdhsa_next_free_sgpr 102
  .amdhsa_accum_offset 256
  .amdhsa_group_segment_fixed_size 0
  .amdhsa_kernarg_size 96
  .amdhsa_user_sgpr_count 2
  .amdhsa_user_sgpr_kernarg_segment_ptr 1
  .amdhsa_system_sgpr_workgroup_id_x 1
  .amdhsa_float_denorm_mode_32 3
.end_amdhsa_kernel
"""
def build_text(o):
    e, names = generate(o)
    return HEAD % (LDS_TOTAL, NAME, NAME, NAME) + e.text() + "\n" + FOOT % NAME, names, e

if __name__ == "__main__":
    o = Opt()
    for a in sys.argv[2:]:
        k, v = a.split("=")
        cur = getattr(o, k)
        setattr(o, k, (v not in ("0", "False")) if isinstance(cur, bool) else type(cur)(v))
    txt, names, e = build_text(o)
    open(sys.argv[1], "w").write(txt)
    print("instructions:", e.ninst, "nops:", e.nops, names)
```

```python
import sys, struct
from types import SimpleNamespace as NS
from emit import Emit, vr

NAME = "interleave_layers__mha_block_cached__glu_gated_reglu__decode_kernel"

class Opt:
    NA = 24
    NA_BAR = 120
    NB = 8
    NB1 = 8
    go_at = "G1"
    NC = 56
    NA0 = 24
    NA0N = 0
    light = False
    pf = 0
    pf_all = False
    NF = 12
    NW = 24
    stamps = False
    poll_limit = 400000
    kvflags = "nt"
    wflags = "nt"
    woflags = "nt"
    wgflags = "nt"
    stampset = ""
    p_sleep = 8
    mb_sleep = 0
    exp = ""
    t_sleep = 0
    early = False
    wb = 0
    prio = 0
    late_rst = False
    preGn = 0
    packed = "10,11"
    preF1 = 16
    preP0 = 0
    preP1 = 0
    direct0 = True
    preF0 = 16
    direct = True
    preF = 0
    look = 2
    NAe = 14
    NCe = 24
    late_b0 = True
    split_tok = True
    rotA = 0
    rotB = 0
    tlb = False
    pf_wave = 3
    preE = True
    D_AT = 64
    defer = 3
    preR0 = 0
    preL0 = 0
    preG0 = 0
    preR = 0
    preL = 0
    preG = 6
    flag_sleep = 0
    force_global = False

KV_BYTES = 100663296
BATCH_STRIDE = 50331648
HEAD_STRIDE = 1572864
CHUNK_STRIDE = 196608
TILE_B = 3072
SW_TILES, CW_TILES = 20, 4
OOB = 0x7fff0000

LDS_SW = 51200
SB = 153600
PART = SB
ML = SB + 6144
QARR = SB + 6208
ACT_O = SB + 6976
ACT_X = SB + 7744
ACT_H = SB + 8320
DUMMY = SB + 8576
WFLAG = SB + 10192
LDS_TOTAL = 163840
ST_WQ, ST_WG, ST_WU, ST_WO, ST_WD = 0, 30720, 38400, 51200, 81920

STD_WG, STD_WU = 51200, 58880
DEF_SLOT = 35
def DEF_AREA(s): return LDS_SW * s + DEF_SLOT * 1024

RG = 262144
R1_REG = {0: 0, '1a': 1, '1b': 2, 2: 3}
R3_REG = {'P': 4, 0: 7, 1: 8}
R2_REG = {'P': 9, 0: 10, 1: 11, 2: 12}
L_REG = lambda inst, k: 13 + 2 * inst + k
G_OFF = lambda inst, k: 19 * RG + (2 * inst + k) * 65536
STAMP_OFF = 22 * RG
WS_REC = 24 * RG

CSCALE = (192 ** -0.5) * 1.4426950408889634
EPS = 1e-5
def f2u(x): return struct.unpack("<I", struct.pack("<f", x))[0]
def lit(x): return "0x%08x" % f2u(x)
def mask64(lanes):
    m = 0
    for l in lanes: m |= 1 << l
    return m
def set_exec(e, m):
    if m == (1 << 64) - 1: e("s_mov_b64 exec, -1"); return
    e(f"s_mov_b32 exec_lo, 0x{m & 0xffffffff:08x}")
    e(f"s_mov_b32 exec_hi, 0x{m >> 32:08x}")

S_X, S_K, S_V, S_WQ, S_WO, S_BX, S_WG, S_WU, S_WD, S_OUT, S_DBG, S_WS = 4, 6, 8, 10, 12, 14, 16, 18, 20, 22, 24, 26
S_XC, S_HQ, S_J, S_H = 28, 29, 30, 31
SRD_K, SRD_V = 32, 36
S_KV0, S_KV1, S_SOFF, S_LDSB = 40, 41, 42, 43
SRD_T = 44
SRD_WS = 48
SRD_DBG = 52
S_C = 56
S_ROWN, S_RGRP, S_LOWN, S_LGRP, S_GOWN, S_GGRP = 57, 58, 59, 60, 61, 62
S_A, S_B, S_CNT, S_T0, S_T1, S_T2 = 63, 64, 65, 66, 67, 68
S_PB = 69
S_HI32 = 70
S_MLB = 72
S_GA, S_GB = 100, 101
S_WAVE = 3
S_STAMP = 76

def make_srd(e, srd, ptr, nbytes):
    e(f"s_mov_b32 s{srd}, s{ptr}")
    e(f"s_and_b32 s{srd+1}, s{ptr+1}, 0xffff")
    e(f"s_mov_b32 s{srd+2}, {nbytes}")
    e(f"s_mov_b32 s{srd+3}, 0x20000")

class Stamps:
    select = None
    def __init__(self, e, on): self.e, self.on, self.names = e, on, []
    def __call__(self, name):
        if not self.on: return
        if Stamps.select is not None and not any(name.startswith(p) for p in Stamps.select): return
        if Stamps.select is None and "." in name: return
        n = len(self.names); assert n < 12, "too many stamps"
        self.e(f"s_memrealtime s[{S_STAMP+2*n}:{S_STAMP+2*n+1}]")
        self.e.lg_all(force=True)
        self.names.append(name)
    def rounds(self, name):
        if not self.on: return
        if Stamps.select is None or not any(name.startswith(p) for p in Stamps.select): return
        n = len(self.names); assert n < 12
        self.e(f"s_mov_b32 s{S_STAMP+2*n}, s{S_CNT}"); self.e(f"s_mov_b32 s{S_STAMP+2*n+1}, 0")
        self.names.append(name)
    def flush(self):
        if not self.on: return
        e = self.e
        e("s_mov_b64 exec, 1")
        e(f"s_lshl_b32 s{S_T0}, s2, 2"); e(f"s_add_u32 s{S_T0}, s{S_T0}, s{S_WAVE}"); e(f"s_lshl_b32 s{S_T0}, s{S_T0}, 7")
        e(f"s_add_u32 s{S_T0}, s{S_T0}, {STAMP_OFF}")
        e("v_mov_b32 v0, 0")
        for i in range(len(self.names)):
            e(f"v_mov_b32 v2, s{S_STAMP+2*i}"); e(f"v_mov_b32 v3, s{S_STAMP+2*i+1}")
            e(f"buffer_store_dwordx2 v[2:3], v0, s[{SRD_WS}:{SRD_WS+3}], s{S_T0} offen offset:{8*i}")
            e("s_waitcnt vmcnt(0)")

def lane_id(e, dst):
    e(f"v_mbcnt_lo_u32_b32 {vr(dst)}, -1, 0")
    e(f"v_mbcnt_hi_u32_b32 {vr(dst)}, -1, {vr(dst)}")

def attn_load_offsets(e, R, lane, t):
    i, g, u, w = t, t + 1, t + 2, t + 3
    e(f"v_and_b32 {vr(i)}, 15, {vr(lane)}")
    e(f"v_lshrrev_b32 {vr(g)}, 4, {vr(lane)}")
    e(f"v_and_b32 {vr(u)}, 7, {vr(i)}")
    e(f"v_lshrrev_b32 {vr(w)}, 3, {vr(i)}")
    e(f"v_mul_u32_u24 {vr(R.voffK)}, 384, {vr(u)}")
    e(f"v_lshl_add_u32 {vr(R.voffK)}, {vr(g)}, 4, {vr(R.voffK)}")
    e(f"v_lshl_add_u32 {vr(R.voffK)}, {vr(w)}, 6, {vr(R.voffK)}")
    e(f"v_mul_u32_u24 {vr(R.voffX)}, 768, {vr(g)}")
    e(f"v_mul_u32_u24 {vr(w)}, 384, {vr(w)}")
    e(f"v_add_u32 {vr(R.voffY)}, {vr(R.voffX)}, {vr(w)}")
    e(f"v_lshl_add_u32 {vr(R.voffY)}, {vr(u)}, 4, {vr(R.voffY)}")
    e(f"v_add_u32 {vr(R.voffY)}, 256, {vr(R.voffY)}")
    e(f"v_lshl_add_u32 {vr(R.voffX)}, {vr(i)}, 4, {vr(R.voffX)}")

def attn_selectors(e, R, lane, t):
    i, u, lo, hi = t, t + 1, t + 2, t + 3
    e(f"v_and_b32 {vr(i)}, 15, {vr(lane)}")
    e(f"v_lshrrev_b32 {vr(u)}, 3, {vr(i)}")
    e(f"v_mul_u32_u24 {vr(u)}, 0x202, {vr(u)}")
    e(f"v_add_u32 {vr(u)}, 0x100, {vr(u)}")
    e(f"v_or_b32 {vr(lo)}, 0x0c0c0000, {vr(u)}")
    e(f"v_lshlrev_b32 {vr(hi)}, 16, {vr(u)}")
    e(f"v_or_b32 {vr(hi)}, 0x0c0c, {vr(hi)}")
    e(f"v_and_b32 {vr(u)}, 1, {vr(i)}")
    e(f"v_cmp_eq_u32 vcc, 1, {vr(u)}")
    e(f"v_cndmask_b32 {vr(lo)}, {vr(lo)}, {vr(hi)}, vcc")
    e(f"v_bfe_u32 {vr(u)}, {vr(i)}, 1, 2")
    e(f"v_mov_b32 {vr(hi)}, 0x0c0c0c0c")
    for r in range(4):
        e(f"v_cmp_eq_u32 vcc, {r}, {vr(u)}")
        e(f"v_cndmask_b32 {vr(R.sel+r)}, {vr(hi)}, {vr(lo)}, vcc")

def allreduce_list(reg, tmp, op):
    out = [f"v_{op}_f32_dpp {vr(reg)}, {vr(reg)}, {vr(reg)} row_ror:{k} row_mask:0xf bank_mask:0xf" for k in (8, 4, 2, 1)]
    out += [f"v_mov_b32 {vr(tmp)}, {vr(reg)}", f"v_permlane16_swap_b32 {vr(reg)}, {vr(tmp)}", f"v_{op}_f32 {vr(reg)}, {vr(reg)}, {vr(tmp)}",
            f"v_mov_b32 {vr(tmp)}, {vr(reg)}", f"v_permlane32_swap_b32 {vr(reg)}, {vr(tmp)}", f"v_{op}_f32 {vr(reg)}, {vr(reg)}, {vr(tmp)}"]
    return out

def allreduce(e, reg, tmp, op):
    for k in (8, 4, 2, 1):
        e(f"v_{op}_f32_dpp {vr(reg)}, {vr(reg)}, {vr(reg)} row_ror:{k} row_mask:0xf bank_mask:0xf")
    e(f"v_mov_b32 {vr(tmp)}, {vr(reg)}")
    e(f"v_permlane16_swap_b32 {vr(reg)}, {vr(tmp)}")
    e(f"v_{op}_f32 {vr(reg)}, {vr(reg)}, {vr(tmp)}")
    e(f"v_mov_b32 {vr(tmp)}, {vr(reg)}")
    e(f"v_permlane32_swap_b32 {vr(reg)}, {vr(tmp)}")
    e(f"v_{op}_f32 {vr(reg)}, {vr(reg)}, {vr(tmp)}")

def attn_pre(e, R, ntiles):
    L = R.tmp
    lane_id(e, L)
    e(f"v_and_b32 {vr(L+1)}, 1, {vr(L)}")
    e(f"v_lshrrev_b32 {vr(L+2)}, 4, {vr(L)}")
    e(f"v_lshlrev_b32 {vr(L+2)}, 4, {vr(L+2)}")
    e(f"v_lshl_add_u32 {vr(L+1)}, {vr(L+1)}, 6, {vr(L+2)}")
    e(f"v_add_u32 {vr(L+1)}, {QARR}, {vr(L+1)}")
    e(f"v_add_u32 {vr(R.vpp)}, s{S_PB}, {vr(L+2)}")
    W = R.vpw; t = L + 2
    e(f"v_lshrrev_b32 {vr(t)}, 5, {vr(L)}"); e(f"v_lshlrev_b32 {vr(W)}, 6, {vr(t)}")
    e(f"v_bfe_u32 {vr(t)}, {vr(L)}, 1, 2"); e(f"v_lshl_add_u32 {vr(W)}, {vr(t)}, 4, {vr(W)}")
    e(f"v_bfe_u32 {vr(t)}, {vr(L)}, 3, 2"); e(f"v_lshl_add_u32 {vr(W)}, {vr(t)}, 2, {vr(W)}")
    e(f"v_and_b32 {vr(t)}, 1, {vr(L)}"); e(f"v_lshl_add_u32 {vr(W)}, {vr(t)}, 1, {vr(W)}")
    e(f"v_add_u32 {vr(W)}, s{S_PB}, {vr(W)}")
    nsc = (ntiles + 7) // 8
    for r in range(nsc):
        if (r + 1) * 8 > ntiles: e(f"v_mov_b32 {vr(R.sc+r)}, 0xff800000")

def attn_pass(e, R, ntiles, qrow, Kfrag, Vfrag, part_sreg, ml_off, k_wait=None, qk_hook=None, mid_hook=None,
              v_wait=None, pv_hook=None, stage=None, pre_done=False, mark=None, look=2):
    L = R.tmp
    if not pre_done: attn_pre(e, R, ntiles)
    for s in range(3):
        e.lg(f"ds_read_b128 {vr(R.qA+4*s,4)}, {vr(L+1)} offset:{qrow*384 + 128*s}", ("q", s))
    W = R.vpw
    nsc = (ntiles + 7) // 8
    stg = {}
    def stage_k(T):
        if T >= ntiles: return
        for s in range(3):
            f = Kfrag(T, s)
            if isinstance(f, tuple):
                reg = stage[(3 * T + s) % len(stage)]
                e.lg(f"ds_read_b128 {vr(reg,4)}, {vr(R.vlds)} offset:{f[1]}", ("k", T, s))
                stg[(T, s)] = vr(reg, 4)
    LOOK = look
    if k_wait: k_wait(-1)
    for T in range(min(LOOK, ntiles)): stage_k(T)
    e.lg_wait(("q", 2))
    def dpp_add(T):
        D = R.D + 4 * (T % 3)
        dst = vr(R.sc + (T >> 3)); rm = 1 << ((T >> 1) & 3)
        if T % 2 == 0: e(f"v_add_f32_dpp {dst}, {vr(D+1)}, {vr(D)} row_ror:8 row_mask:0x{rm:x} bank_mask:0x3")
        else:          e(f"v_add_f32_dpp {dst}, {vr(D)}, {vr(D+1)} row_ror:8 row_mask:0x{rm:x} bank_mask:0xc")
    for T in range(ntiles):
        if k_wait: k_wait(T)
        D = vr(R.D + 4 * (T % 3), 4)
        for s in range(3):
            f = Kfrag(T, s)
            if isinstance(f, tuple):
                e.lg_wait(("k", T, s)); f = stg[(T, s)]
            e(f"v_mfma_f32_16x16x32_bf16 {D}, {vr(R.qA+4*s,4)}, {f}, {'0' if s == 0 else D}")
        stage_k(T + LOOK)
        if qk_hook: qk_hook(T)
        if T >= 2: dpp_add(T - 2)
    for T in range(max(0, ntiles - 2), ntiles): dpp_add(T)
    if mark: mark("qk")
    t0, t1 = R.D, R.D + 1
    if nsc == 1: e(f"v_mov_b32 {vr(t0)}, {vr(R.sc)}")
    elif nsc == 2: e(f"v_max_f32 {vr(t0)}, {vr(R.sc)}, {vr(R.sc+1)}")
    else: e(f"v_max3_f32 {vr(t0)}, {vr(R.sc)}, {vr(R.sc+1)}, {vr(R.sc+2)}")
    allreduce(e, t0, t1, "max")
    e(f"v_mul_f32 {vr(R.vm)}, s{S_C}, {vr(t0)}")
    for r in range(nsc): e(f"v_fma_f32 {vr(R.sc+r)}, {vr(R.sc+r)}, s{S_C}, -{vr(R.vm)}")
    for r in range(nsc): e(f"v_exp_f32 {vr(R.sc+r)}, {vr(R.sc+r)}")
    for r in range(nsc): e(f"v_cvt_pk_bf16_f32 {vr(R.D+2+r)}, {vr(R.sc+r)}, {vr(R.sc+r)}")
    for r in range(nsc): e.lg(f"ds_write_b16 {vr(W)}, {vr(R.D+2+r)} offset:{128*r}", ("pw", r))
    nq = (ntiles + 3) // 4
    ppreg = lambda q: R.pp + 4 * (q % 2)
    if nsc == 1: e(f"v_mov_b32 {vr(R.vl)}, {vr(R.sc)}")
    else:
        e(f"v_add_f32 {vr(R.vl)}, {vr(R.sc)}, {vr(R.sc+1)}")
        if nsc == 3: e(f"v_add_f32 {vr(R.vl)}, {vr(R.vl)}, {vr(R.sc+2)}")
    e.lg(f"ds_read_b128 {vr(ppreg(0),4)}, {vr(R.vpp)}", ("pp", 0))
    if nq > 1: e.lg(f"ds_read_b128 {vr(ppreg(1),4)}, {vr(R.vpp)} offset:64", ("pp", 1))
    lred = allreduce_list(R.vl, R.vlt, "add")
    if ntiles < 12:
        for ins in lred: e(ins)
        lred = []
    if mid_hook: mid_hook()
    if mark: mark("sm")
    X1, X2, Y = R.acc, R.acc + 4, R.acc + 8
    def build_A(T):
        q = T >> 2
        e.lg_wait(("pp", q))
        A = R.A + 4 * (T % 2); src = vr(ppreg(q) + (T & 3))
        return [f"v_perm_b32 {vr(A+r)}, {src}, {src}, {vr(R.sel+r)}" for r in range(4)]
    for ins in build_A(0): e(ins)
    for T in range(ntiles):
        A = vr(R.A + 4 * (T % 2), 4)
        nxt = build_A(T + 1) if T + 1 < ntiles else []
        if v_wait: v_wait(T, 0)
        e(f"v_mfma_f32_16x16x32_bf16 {vr(X1,4)}, {A}, {Vfrag(T,0)}, {'0' if T == 0 else vr(X1,4)}")
        for ins in nxt[:2]: e(ins)
        if v_wait: v_wait(T, 1)
        e(f"v_mfma_f32_16x16x32_bf16 {vr(X2,4)}, {A}, {Vfrag(T,1)}, {'0' if T == 0 else vr(X2,4)}")
        for ins in nxt[2:]: e(ins)
        if v_wait: v_wait(T, 2)
        e(f"v_mfma_f32_16x16x32_bf16 {vr(Y,4)}, {A}, {Vfrag(T,2)}, {'0' if T == 0 else vr(Y,4)}")
        if (T & 3) == 2 and (T >> 2) + 2 < nq:
            q2 = (T >> 2) + 2
            e.lg(f"ds_read_b128 {vr(ppreg(q2),4)}, {vr(R.vpp)} offset:{64*q2}", ("pp", q2))
        if lred and T >= 1: e(lred.pop(0))
        if pv_hook: pv_hook(T)
    assert not lred
    if mark: mark("pv")
    p = R.pp
    lane_id(e, p)
    e(f"v_and_b32 {vr(p+1)}, 15, {vr(p)}")
    e(f"v_lshrrev_b32 {vr(p+2)}, 4, {vr(p)}")
    e(f"v_and_b32 {vr(p+3)}, 1, {vr(p+2)}")
    e(f"v_lshrrev_b32 {vr(p+2)}, 1, {vr(p+2)}")
    e(f"v_mul_u32_u24 {vr(p+2)}, 768, {vr(p+2)}")
    e(f"v_lshl_add_u32 {vr(p+2)}, {vr(p+3)}, 4, {vr(p+2)}")
    e(f"v_add_u32 {vr(p+2)}, s{part_sreg}, {vr(p+2)}")
    e(f"v_lshl_add_u32 {vr(p+4)}, {vr(p+1)}, 5, {vr(p+2)}")
    e(f"v_and_b32 {vr(p+1)}, 7, {vr(p+1)}")
    e(f"v_lshl_add_u32 {vr(p+5)}, {vr(p+1)}, 5, {vr(p+2)}")
    e(f"v_mov_b32 {vr(p+6)}, s{S_MLB}")
    e(f"v_mov_b32 {vr(R.A)}, {vr(R.vm)}"); e(f"v_mov_b32 {vr(R.A+1)}, {vr(R.vl)}")
    for r in range(4):
        e(f"v_cndmask_b32 {vr(X1+r)}, {vr(X1+r)}, {vr(X2+r)}, s[{S_HI32}:{S_HI32+1}]")
    e.lg(f"ds_write_b128 {vr(p+4)}, {vr(X1,4)}", "px")
    set_exec(e, 0xFF00FF0000FF00FF)
    e.lg(f"ds_write_b128 {vr(p+5)}, {vr(Y,4)} offset:512", "py")
    e("s_mov_b64 exec, 1")
    e.lg(f"ds_write_b64 {vr(p+6)}, {vr(R.A,2)} offset:{ml_off}", "pm")
    e("s_mov_b64 exec, -1")
    e.lg_all()

S_ROT, S_RT = 74, 75
rot_on = [False]
def kv_soff(e, base_sreg, T):
    if rot_on[0]:
        span = SW_TILES * TILE_B
        e(f"s_add_u32 s{S_SOFF}, s{S_ROT}, {T*TILE_B}")
        e(f"s_cmp_ge_u32 s{S_SOFF}, {span}"); e(f"s_cselect_b32 s{S_RT}, {span}, 0")
        e(f"s_sub_u32 s{S_SOFF}, s{S_SOFF}, s{S_RT}"); e(f"s_add_u32 s{S_SOFF}, s{S_SOFF}, s{base_sreg}")
    else: e(f"s_add_u32 s{S_SOFF}, s{base_sreg}, {T*TILE_B}")
def ld_k(e, R, dst, s, tag, o):
    e.vm(f"buffer_load_dwordx4 {dst}, {vr(R.voffK)}, s[{SRD_K}:{SRD_K+3}], s{S_SOFF} offen offset:{128*s} {o.kvflags}", tag)
def ld_v(e, R, dst, w, tag, o):
    vo = R.voffY if w == 2 else R.voffX
    off = 384 if w == 1 else 0
    e.vm(f"buffer_load_dwordx4 {dst}, {vr(vo)}, s[{SRD_V}:{SRD_V+3}], s{S_SOFF} offen offset:{off} {o.kvflags}", tag)
def dma_k(e, R, slot, s, tag, o):
    e(f"s_add_u32 m0, s{S_LDSB}, {slot*1024 - 128*s + 0}") if slot*1024 - 128*s >= 0 else e(f"s_sub_u32 m0, s{S_LDSB}, {128*s - slot*1024}")
    e.vm(f"buffer_load_dwordx4 {vr(R.voffK)}, s[{SRD_K}:{SRD_K+3}], s{S_SOFF} offen offset:{128*s} {o.kvflags} lds", tag)
def dma_v(e, R, slot, w, tag, o):
    vo = R.voffY if w == 2 else R.voffX
    off = 384 if w == 1 else 0
    e(f"s_add_u32 m0, s{S_LDSB}, {slot*1024 - off}")
    e.vm(f"buffer_load_dwordx4 {vr(vo)}, s[{SRD_V}:{SRD_V+3}], s{S_SOFF} offen offset:{off} {o.kvflags} lds", tag)

def slot_reg(k):
    assert 0 <= k < 118
    return f"a[{4*k}:{4*k+3}]" if k < 64 else f"v[{40+4*(k-64)}:{40+4*(k-64)+3}]"

def weight_dma(e, o):
    L, t, u = 8, 20, 21
    def dma_block(ptr, nbytes, lanes_per_row, magic, shift, nlanes, row_stride, rows_per_instr, ninstr, so, lds0, bar=False, flags=None, extra_soff=0):
        make_srd(e, SRD_T, ptr, nbytes)
        e(f"v_mul_u32_u24 v{t}, {magic}, v{L}"); e(f"v_lshrrev_b32 v{t}, {shift}, v{t}")
        e(f"v_mul_u32_u24 v{u}, {lanes_per_row}, v{t}"); e(f"v_sub_u32 v{u}, v{L}, v{u}")
        e(f"s_mov_b32 s{S_T1}, {row_stride}")
        e(f"v_mul_lo_u32 v{t}, v{t}, s{S_T1}"); e(f"v_lshl_add_u32 v{t}, v{u}, 4, v{t}")
        rreg, rmul, creg, cmul = so
        e(f"s_mul_i32 s{S_SOFF}, s{rreg}, {rmul*row_stride}")
        e(f"s_mul_i32 s{S_T1}, s{creg}, {cmul}"); e(f"s_add_u32 s{S_SOFF}, s{S_SOFF}, s{S_T1}")
        if extra_soff: e(f"s_add_u32 s{S_SOFF}, s{S_SOFF}, {extra_soff}")
        set_exec(e, mask64(range(nlanes)))
        for i in range(ninstr):
            e(f"s_mov_b32 m0, {lds0 + i*nlanes*16}")
            if i: e(f"s_add_u32 s{S_SOFF}, s{S_SOFF}, {rows_per_instr*row_stride}")
            else: e("s_nop 0")
            e.vm_depth(o.NW - 1)
            e.vm(f"buffer_load_dwordx4 v{t}, s[{SRD_T}:{SRD_T+3}], s{S_SOFF} offen {o.wflags if flags is None else flags} lds", "w")
        e("s_mov_b64 exec, -1")
    l2, l3, end = e.newlabel("w2"), e.newlabel("w3"), e.newlabel("wend")
    e(f"s_cmp_eq_u32 s{S_WAVE}, 2"); e(f"s_cbranch_scc1 {l2}")
    e(f"s_cmp_eq_u32 s{S_WAVE}, 3"); e(f"s_cbranch_scc1 {l3}")
    base_q = list(e.vmq)
    if o.defer:
        dma_block(S_WQ, 7864320, 24, 43, 10, 48, 12288, 2, 20, (S_J, 80, S_H, 384), ST_WQ)
        e(f"s_branch {end}")
        e.label(l2); e.vmq = list(base_q)
        dma_block(S_WQ, 7864320, 24, 43, 10, 48, 12288, 2, 20, (S_J, 80, S_H, 384), ST_WQ + 20 * 768, extra_soff=40 * 12288)
        e(f"s_branch {end}")
        e.label(l3); e.vmq = list(base_q)
        dma_block(S_WG, 1966080, 6, 43, 8, 60, 3072, 10, 8, (S_J, 80, S_H, 96), STD_WG, flags=o.wgflags.replace('_', ' '))
        dma_block(S_WU, 1966080, 6, 43, 8, 60, 3072, 10, 8, (S_J, 80, S_H, 96), STD_WU, flags=o.wgflags.replace('_', ' '))
        e.label(end)
        e.vmq = ["w"] * o.NW
        return
    dma_block(S_WQ, 7864320, 24, 43, 10, 48, 12288, 2, 40, (S_J, 80, S_H, 384), ST_WQ, bar=True)
    e(f"s_branch {end}")
    e.label(l2); e.vmq = list(base_q)
    if "wolin" in o.exp:
        dma_block(S_WO, 7864320, 64, 0, 0, 64, 1024, 1, 30, (S_H, 240, S_J, 30720), ST_WO)
    elif "nowo" not in o.exp: dma_block(S_WO, 7864320, 10, 103, 10, 60, 1280, 6, 32, (S_H, 192, S_J, 160), ST_WO, bar=True, flags=o.woflags.replace('_', ' '))
    e(f"s_branch {end}")
    e.label(l3); e.vmq = list(base_q)
    dma_block(S_WG, 1966080, 6, 43, 8, 60, 3072, 10, 8, (S_J, 80, S_H, 96), ST_WG, bar=True, flags=o.wgflags.replace('_', ' '))
    dma_block(S_WU, 1966080, 6, 43, 8, 60, 3072, 10, 8, (S_J, 80, S_H, 96), ST_WU, flags=o.wgflags.replace('_', ' '))
    if "wolin" in o.exp:
        dma_block(S_WD, 1966080, 64, 0, 0, 64, 1024, 1, 8, (S_H, 60, S_J, 7680), ST_WD)
    elif "nowo" not in o.exp: dma_block(S_WD, 1966080, 10, 103, 10, 60, 1280, 6, 8, (S_H, 48, S_J, 160), ST_WD, flags=o.woflags.replace('_', ' '))
    e.label(end)
    e.vmq = ["w"] * o.NW

D_VOFF = 37
def deferred_voff(e, t, u):
    L = D_VOFF
    lane_id(e, L)
    e(f"v_mul_u32_u24 v{t}, 103, v{L}"); e(f"v_lshrrev_b32 v{t}, 10, v{t}")
    e(f"v_mul_u32_u24 v{u}, 10, v{t}"); e(f"v_sub_u32 v{u}, v{L}, v{u}")
    e(f"v_mul_u32_u24 v{t}, 1280, v{t}"); e(f"v_lshl_add_u32 v{L}, v{u}, 4, v{t}")
def deferred_items():
    return [('D', 0, i) for i in range(11)] + [('D', 1, i) for i in range(3)]
S_DOFF = 16
def deferred_issue(e, o, which, i):
    ptr, nbytes, hmul, smul, nrows, ldsoff = ((S_WO, 7864320, 192, 64, 64, 0), (S_WD, 1966080, 48, 16, 16, 10240))[which]
    if i == 0:
        make_srd(e, SRD_T, ptr, nbytes)
        e(f"s_sub_u32 s{S_T0}, s{S_WAVE}, 1")
        e(f"s_mul_i32 s{S_DOFF}, s{S_H}, {hmul*1280}"); e(f"s_mul_i32 s{S_T1}, s{S_T0}, {smul*1280}"); e(f"s_add_u32 s{S_DOFF}, s{S_DOFF}, s{S_T1}")
        e(f"s_mul_i32 s{S_T1}, s{S_J}, 160"); e(f"s_add_u32 s{S_DOFF}, s{S_DOFF}, s{S_T1}")
    else: e(f"s_add_u32 s{S_DOFF}, s{S_DOFF}, {6*1280}")
    rows = min(6, nrows - 6 * i)
    e(f"s_add_u32 m0, s{S_LDSB}, {DEF_SLOT*1024 + ldsoff + 960*i}")
    set_exec(e, mask64(range(10 * rows)))
    e.vm(f"buffer_load_dwordx4 v{D_VOFF}, s[{SRD_T}:{SRD_T+3}], s{S_DOFF} offen {o.woflags.replace('_', ' ')} lds", "D")
    e("s_mov_b64 exec, -1")

def lds_flag_set(e, addr_fn, t0, t1):
    addr_fn(t0); e(f"v_mov_b32 v{t1}, 1")
    e.lg(f"ds_write_b32 v{t0}, v{t1}", "fl")

S_XPAR = 15
def par_depth(e, n):
    lab = e.newlabel("par")
    e(f"s_cmp_lg_u32 s{S_XPAR}, 0"); e(f"s_cbranch_scc1 {lab}")
    e(f"s_waitcnt vmcnt({n-1})")
    e.label(lab)

def emit_wb(e):
    skip = e.newlabel("nowb")
    e(f"s_cmp_lg_u32 s{S_WAVE}, 1"); e(f"s_cbranch_scc1 {skip}")
    e("s_cmp_ge_u32 s2, 8"); e(f"s_cbranch_scc1 {skip}")
    e("buffer_wbl2 sc1")
    e("s_waitcnt vmcnt(0)")
    e.label(skip)

def stream_wave(e, o, st):
    if o.rotA or o.rotB:
        e(f"s_mul_i32 s{S_ROT}, s2, {o.rotA}"); e(f"s_mul_i32 s{S_RT}, s{S_WAVE}, {o.rotB}"); e(f"s_add_u32 s{S_ROT}, s{S_ROT}, s{S_RT}")
        e(f"s_mul_i32 s{S_RT}, s{S_ROT}, 52429"); e(f"s_lshr_b32 s{S_RT}, s{S_RT}, 20"); e(f"s_mul_i32 s{S_RT}, s{S_RT}, 20")
        e(f"s_sub_u32 s{S_ROT}, s{S_ROT}, s{S_RT}"); e(f"s_mul_i32 s{S_ROT}, s{S_ROT}, {TILE_B}")
        rot_on[0] = True
    _stream_wave(e, o, st)
    rot_on[0] = False

def _stream_wave(e, o, st):
    R = NS(vlds=0, voffK=1, voffX=2, voffY=3, sel=4, qA=8, D=20, sc=32, tmp=20, vpw=35, acc=8, A=20, pp=28, vpp=36, vm=38, vl=39, vlt=37)
    loads = []
    for T in range(SW_TILES):
        for s in range(3): loads.append(('K', T, s))
    for T in range(SW_TILES):
        for w in range(3): loads.append(('V', T, w))
    def k0slot(T, s): return 3 * T + s
    def v0slot(T, w): return 60 + 3 * T + w
    cur = [None]
    def issue0(item):
        kind, T, x = item
        if cur[0] != (kind, T, 0):
            kv_soff(e, S_KV0, T); cur[0] = (kind, T, 0)
        if kind == 'K': ld_k(e, R, slot_reg(k0slot(T, x)), x, ('K0', T, x), o)
        else:
            sl = v0slot(T, x)
            if sl < 118: ld_v(e, R, slot_reg(sl), x, ('V0', T, x), o)
            else: dma_v(e, R, 48 + sl - 118, x, ('V0', T, x), o)
    for item in loads[:o.NF]: issue0(item)
    late_common(e)
    e(f"s_add_u32 s{S_KV1}, s{S_KV0}, {BATCH_STRIDE}")
    e(f"s_sub_u32 s{S_T0}, s{S_WAVE}, 1"); e(f"s_mul_i32 s{S_LDSB}, s{S_T0}, {LDS_SW}")
    if o.pf:
        skip = e.newlabel("nopf")
        e(f"s_cmp_lg_u32 s{S_WAVE}, {o.pf_wave}"); e(f"s_cbranch_scc1 {skip}")
        if not o.pf_all:
            e(f"s_cmp_lg_u32 s{S_J}, 0"); e(f"s_cbranch_scc1 {skip}")
        e(f"s_getpc_b64 s[{SRD_T}:{SRD_T+1}]")
        e.label("L_pc")
        e(f"s_sub_u32 s{SRD_T}, s{SRD_T}, (L_pc - {NAME})"); e(f"s_subb_u32 s{SRD_T+1}, s{SRD_T+1}, 0")
        e("v_lshlrev_b32 v20, 7, v8")
        for i in range(o.pf):
            e(f"global_load_dword v39, v20, s[{SRD_T}:{SRD_T+1}]")
            e("v_add_u32 v20, 0x2000, v20")
        e.label(skip)
    if o.tlb:
        e("v_mov_b32 v20, 0")
        e.vm(f"buffer_load_dword v39, v20, s[{SRD_V}:{SRD_V+3}], s{S_KV0} offen nt", "tlb")
        e.vm(f"buffer_load_dword v39, v20, s[{SRD_K}:{SRD_K+3}], s{S_KV1} offen nt", "tlb")
        e.vm(f"buffer_load_dword v39, v20, s[{SRD_V}:{SRD_V+3}], s{S_KV1} offen nt", "tlb")
    if o.NAe or o.NCe:
        e(f"s_getreg_b32 s{S_T0}, hwreg(HW_REG_XCC_ID)"); e(f"s_and_b32 s{S_XPAR}, s{S_T0}, 1")
    nf = list(e.vmq)
    if "now" not in o.exp: weight_dma(e, o)
    e.vmq = nf + ["w"] * o.NW if len(nf) + o.NW <= 60 else ["w"] * 60
    cur[0] = None
    st("s.wiss")
    e(f"v_lshlrev_b32 {vr(R.vlds)}, 4, v8")
    e(f"v_add_u32 {vr(R.vlds)}, s{S_LDSB}, {vr(R.vlds)}")
    attn_selectors(e, R, 8, 10)
    for idx, item in enumerate(loads[:o.NA_BAR]):
        if idx < o.NF: continue
        na = o.NA0 if idx < o.NA0N else o.NA
        e.vm_depth(na - 1)
        if o.NAe: par_depth(e, o.NAe)
        if idx == o.NF + max(o.NA, o.NA0):
            e(f"s_lshl_b32 s{S_T0}, s{S_WAVE}, 2"); e(f"s_add_u32 s{S_T0}, s{S_T0}, {WFLAG-4}")
            e(f"v_mov_b32 v20, s{S_T0}"); e("v_mov_b32 v21, 1")
            e.lg("ds_write_b32 v20, v21", "wf")
            st("s.wland")
        if o.defer == 3 and idx == o.D_AT:
            deferred_voff(e, 38, 39)
            for it in deferred_items():
                e.vm_depth(na - 1)
                deferred_issue(e, o, it[1], it[2])
            cur[0] = None
        if o.defer == 3 and idx == o.D_AT + max(o.NA, o.NA0):
            e(f"s_lshl_b32 s{S_T0}, s{S_WAVE}, 2"); e(f"s_add_u32 s{S_T0}, s{S_T0}, {WFLAG + 12}")
            e(f"v_mov_b32 v20, s{S_T0}"); e("v_mov_b32 v21, 1")
            e.lg("ds_write_b32 v20, v21", "wf2")
        if idx == 60: st("s.k0iss")
        if idx == 90: st("s.v30")
        issue0(item)
    st("A_issued")
    attn_pre(e, R, SW_TILES)
    e("s_barrier")
    st("bar1")
    if "nocw" in o.exp or "cw" in o.exp or "stopA" in o.exp:
        e.vm_all(); st("s.alland"); st.flush(); e("s_endpgm")
    pend = [('0', it) for it in loads[o.NA_BAR:]]
    if o.defer in (1, 2): pend += deferred_items()
    for T in range(16):
        for s in range(3): pend.append(('1', T, s))
    cur1 = [None]
    def issue_pend():
        it = pend.pop(0)
        if it[0] == '0': cur1[0] = None; issue0(it[1])
        elif it[0] == 'D': deferred_issue(e, o, it[1], it[2])
        else:
            _, T, s = it
            if cur1[0] != T:
                kv_soff(e, S_KV1, T); cur1[0] = T; cur[0] = None
            dma_k(e, R, 3 * T + s, s, ('K1', T, s), o)
    while pend[0][0] == '0': issue_pend()
    def Kf0(T, s): return slot_reg(k0slot(T, s))
    def Vf0(T, w):
        sl = v0slot(T, w)
        if sl < 118: return slot_reg(sl)
        return "v[32:35]" if w == 1 else "v[28:31]"
    def k_wait_A(T):
        if T == -1: e.vm_wait(('K0', SW_TILES - 1, 2))
    def pv_hook_A(T):
        left = SW_TILES - 1 - T
        target = max(o.NB1, min(o.NA, 3 * left + o.NB1)) if o.NB1 else 0
        if o.defer in (1, 2):
            if T < 15: return
            if T == 15: deferred_voff(e, 32, 33)
        if T == SW_TILES - 2:
            e.vm_wait(('V0', SW_TILES - 1, 2))
            e.lg(f"ds_read_b128 v[32:35], {vr(R.vlds)} offset:{48*1024}", ("vo", 1))
            e.lg(f"ds_read_b128 v[28:31], {vr(R.vlds)} offset:{49*1024}", ("vo", 2))
            target = o.NB1
        while pend and len(e.vmq) < target: issue_pend()
    def vwait_A(T, w):
        e.vm_wait(('V0', T, w))
        if T == SW_TILES - 1 and w >= 1: e.lg_wait(("vo", w))
    attn_pass(e, R, SW_TILES, 0, Kf0, Vf0, S_PB, 0, k_wait=k_wait_A, v_wait=vwait_A, pv_hook=pv_hook_A, pre_done=True)
    st("A_done")
    e("s_barrier")
    if o.NB1 == o.NB:
        flagged = o.defer not in (1, 2); freed = o.defer not in (1, 2)
        def w2flag():
            e(f"s_lshl_b32 s{S_T0}, s{S_WAVE}, 2"); e(f"s_add_u32 s{S_T0}, s{S_T0}, {WFLAG + 12}")
            e(f"v_mov_b32 v20, s{S_T0}"); e("v_mov_b32 v21, 1")
            e.lg("ds_write_b32 v20, v21", "wf2")
        while pend:
            e.vm_depth(o.NB - 1)
            if not flagged and "D" not in e.vmq and not any(p[0] == 'D' for p in pend):
                w2flag(); flagged = True
            it = pend[0]
            if not freed and it[0] == '1' and 3 * it[1] + it[2] >= DEF_SLOT:
                if not flagged:
                    e.vm_wait("D"); w2flag(); flagged = True
                spin, ok = e.newlabel("spinF"), e.newlabel("okF")
                e(f"v_mov_b32 v20, {WFLAG + 28}")
                e(f"s_mov_b32 s{S_CNT}, {o.poll_limit*8}")
                e.label(spin)
                e(f"s_sub_u32 s{S_CNT}, s{S_CNT}, 1"); e(f"s_cbranch_scc1 {ok}")
                e.lg("ds_read_b32 v21, v20", "fr"); e.lg_all()
                e(f"v_readfirstlane_b32 s{S_T0}, v21")
                e(f"s_cmp_eq_u32 s{S_T0}, 0"); e(f"s_cbranch_scc1 {spin}")
                e.label(ok)
                cur1[0] = None
                freed = True
            issue_pend()
        assert flagged and freed
    else:
        items = list(pend); pend.clear()
        q0 = list(e.vmq); c0 = cur1[0]
        fast = {i: e.newlabel("fastB") for i in range(len(items))}
        done = e.newlabel("doneB")
        e(f"v_mov_b32 v20, {WFLAG + 12}")
        def emit_item(it, force_soff):
            _, T, s = it
            if cur1[0] != T or force_soff:
                kv_soff(e, S_KV1, T); cur1[0] = T
            dma_k(e, R, 3 * T + s, s, ('K1', T, s), o)
        marks = [i for i, it in enumerate(items) if it[2] == 0]
        if o.NB1 == 0:
            spin = e.newlabel("spinB")
            e(f"s_mov_b32 s{S_CNT}, {o.poll_limit*8}")
            e.label(spin)
            e(f"s_sub_u32 s{S_CNT}, s{S_CNT}, 1"); e(f"s_cbranch_scc1 {fast[0]}")
            e.lg("ds_read_b32 v21, v20", "go"); e.lg_all()
            e(f"v_readfirstlane_b32 s{S_T0}, v21")
            e(f"s_cmp_lg_u32 s{S_T0}, 0"); e(f"s_cbranch_scc1 {fast[0]}")
            e("s_sleep 2"); e(f"s_branch {spin}")
        for i, it in enumerate(items if o.NB1 else []):
            if i in marks:
                e.lg("ds_read_b32 v21, v20", "go"); e.lg_all()
                e(f"v_readfirstlane_b32 s{S_T0}, v21")
                e(f"s_cmp_lg_u32 s{S_T0}, 0"); e(f"s_cbranch_scc1 {fast[i]}")
            e.vm_depth(o.NB1 - 1)
            emit_item(it, False)
        e(f"s_branch {done}")
        e.vmq = list(q0); cur1[0] = c0
        for i, it in enumerate(items):
            if i in marks: e.label(fast[i])
            e.vm_depth(o.NB - 1)
            emit_item(it, i in marks)
        e.label(done)
    st("B_issued")
    attn_pre(e, R, SW_TILES)
    e("s_barrier")
    st("bar3")
    pend1 = []
    for T in range(16, SW_TILES):
        for s in range(3): pend1.append(('K', T, s))
    for T in range(SW_TILES):
        for w in range(3): pend1.append(('V', T, w))
    slot_of = {it: i for i, it in enumerate(pend1)}
    freed = [0]
    issued1 = [0]
    cur2 = [None]
    def issue1():
        it = pend1[issued1[0]]; kind, T, x = it
        if cur2[0] != (kind, T):
            kv_soff(e, S_KV1, T); cur2[0] = (kind, T)
        e.vm_depth(o.NC - 1)
        if o.NCe: par_depth(e, o.NCe)
        if kind == 'K': ld_k(e, R, slot_reg(slot_of[it]), x, ('K1', T, x), o)
        else: ld_v(e, R, slot_reg(slot_of[it]), x, ('V1', T, x), o)
        issued1[0] += 1
    def refill():
        while issued1[0] < len(pend1) and issued1[0] < freed[0]: issue1()
    def qk_hook_C1(T):
        freed[0] = 3 * (T + 1); refill()
    def pv_hook_C1(T):
        freed[0] = min(118, 60 + 3 * (T + 1)); refill(); ovf_hook_C(T)
    def ovf_hook_C(T):
        if T == SW_TILES - 2:
            e.lg(f"ds_read_b128 v[32:35], {vr(R.vlds)} offset:{48*1024}", ("vo", 1))
            e.lg(f"ds_read_b128 v[28:31], {vr(R.vlds)} offset:{49*1024}", ("vo", 2))
    def vwait_C1(T, w):
        if T == SW_TILES - 1 and w >= 1: e.lg_wait(("vo", w))
    e(f"s_add_u32 s{S_T2}, s{S_LDSB}, {48*1024}")
    attn_pass(e, R, SW_TILES, 0, Kf0, Vf0, S_T2, 32, qk_hook=qk_hook_C1, v_wait=vwait_C1, pv_hook=pv_hook_C1, pre_done=True)
    refill()
    assert issued1[0] == len(pend1)
    st("C1_done")
    e("s_barrier")
    stage = [40 + 4 * (k - 64) for k in range(100, 112)]
    def Kf1(T, s):
        if T < 16: return ('lds', (3 * T + s) * 1024)
        return slot_reg(slot_of[('K', T, s)])
    def Vf1(T, w): return slot_reg(slot_of[('V', T, w)])
    def k_wait_C2(T):
        if T == -1: e.vm_wait(('K1', 15, 2))
        elif T >= 16: e.vm_wait(('K1', T, 2))
    def vwait_C2(T, w): e.vm_wait(('V1', T, w))
    attn_pass(e, R, SW_TILES, 1, Kf1, Vf1, S_PB, 0, k_wait=k_wait_C2, v_wait=vwait_C2, stage=stage, look=o.look)
    st("C2_done")
    e("s_barrier")
    if o.wb == 2: emit_wb(e)
    if o.preE:
        def eslot(T, s): return 72 + 3 * T + s
        for T in range(15):
            for s in range(3):
                e.lg(f"ds_read_b128 {slot_reg(eslot(T, s))}, {vr(R.vlds)} offset:{(3*T+s)*1024}", ("pre", T, s))
                if len(e.lgq) >= 12: e.lg_wait_n(4)
        e.lg(f"ds_read_b128 {slot_reg(117)}, {vr(R.vlds)} offset:{45*1024}", ("pre", 15, 0))
        e.lg_all()
        def KfE(T, s):
            if T < 15: return slot_reg(eslot(T, s))
            if T == 15: return slot_reg(117) if s == 0 else slot_reg(eslot(0, s - 1))
            return slot_reg(slot_of[('K', T, s)])
        def qk_hook_E(T):
            if T == 0:
                for s in (1, 2): e.lg(f"ds_read_b128 {slot_reg(eslot(0, s - 1))}, {vr(R.vlds)} offset:{(45+s)*1024}", ("pre2", s))
        def k_wait_E(T):
            if T == 15: e.lg_wait(("pre2", 2))
    attn_pre(e, R, SW_TILES)
    e("s_barrier")
    st("bar7")
    if o.preE: attn_pass(e, R, SW_TILES, 1, KfE, Vf1, S_PB, 0, pre_done=True, mark=lambda n: st("e." + n), qk_hook=qk_hook_E, k_wait=k_wait_E)
    else: attn_pass(e, R, SW_TILES, 1, Kf1, Vf1, S_PB, 0, stage=stage, pre_done=True, mark=lambda n: st("e." + n), look=o.look)
    st("E_done")
    e("s_barrier")
    if o.wb == 1: emit_wb(e)
    st.flush()
    e("s_endpgm")

V_LANE, V_LG, V_R, V_PL, V_PG, V_PQ = 0, 4, 5, 6, 7, 8
V_BO, V_BX, V_BX8, V_BH, V_BH8, V_AS, V_AS8 = 9, 10, 11, 12, 13, 14, 15
V_XR, V_CSQ, V_CSG = 16, 20, 24
V_W8, V_WX, V_WH, V_ML = 28, 29, 30, 31
W0 = 32
V_SEL, V_R2, V_ST2, V_PS, V_PSQ, V_L16 = 75, 79, 80, 81, 82, 83
V_T = 84
V_GL, V_LL = 72, 73
V_DA, V_DB = 72, 73
CW_K, CW_V = 86, 134
S_N1 = 74

_off3 = (2, 6, 0)
def wq_frag(t, s): return ("a", 10 * t + _off3[s])
def wo_frag(t, s): return ("a", 120 + 24 * t + 4 * s)
def wd_frag(t, s):
    if s == 0: return ("a", 240 + 4 * t) if t < 4 else ("v", 182)
    return ("v", 186 + 2 * t)
def wg_frag(t, s): return ("v", 196 + 10 * t + _off3[s])
def wu_frag(t, s): return ("v", 226 + 10 * t + _off3[s])
def win(fr): return f"{fr[0]}[{fr[1]}:{fr[1]+3}]"

V_OOB = 74
def selmask(e, dst, val, mask, other=None):
    e(f"s_mov_b32 vcc_lo, 0x{mask & 0xffffffff:08x}"); e(f"s_mov_b32 vcc_hi, 0x{mask >> 32:08x}")
    if other is None: e(f"v_cndmask_b32 {vr(dst)}, v{V_OOB}, {vr(val)}, vcc")
    else:
        assert dst != val
        e(f"v_mov_b32 {vr(dst)}, 0x{other:08x}")
        e(f"v_cndmask_b32 {vr(dst)}, {vr(dst)}, {vr(val)}, vcc")

def rows_mask(live, n): return mask64([32 * r + g for r in live for g in range(n)])
def cols_mask(live, alist=range(4)): return mask64([16 * a + n for a in alist for n in live])

def instance_offsets(e, live, pub_live=None, q_live=None):
    pub_live = live if pub_live is None else pub_live
    q_live = pub_live if q_live is None else q_live
    t, u = V_T, V_T + 1
    e(f"v_and_b32 {vr(t)}, 31, v{V_LANE}"); e(f"v_lshlrev_b32 {vr(t)}, 4, {vr(t)}")
    e(f"v_lshrrev_b32 {vr(u)}, 5, v{V_LANE}"); e(f"v_lshl_add_u32 {vr(t)}, {vr(u)}, 9, {vr(t)}")
    selmask(e, V_LG, t, rows_mask(live, 20))
    selmask(e, V_R2, t, rows_mask(live, 24))
    if o_packed[0]:
        row = live[-1]
        e(f"v_lshrrev_b32 {vr(t)}, 4, v{V_LANE}"); e(f"v_and_b32 {vr(u)}, 15, v{V_LANE}")
        e(f"v_lshlrev_b32 v{V_DA}, 10, {vr(t)}"); e(f"v_lshl_add_u32 v{V_DA}, {vr(u)}, 4, v{V_DA}"); e(f"v_add_u32 v{V_DA}, {512*row}, v{V_DA}")
        e(f"v_lshlrev_b32 v{V_DB}, 15, {vr(t)}"); e(f"v_bfe_u32 {vr(u)}, v{V_LANE}, 2, 2"); e(f"v_lshl_add_u32 v{V_DB}, {vr(u)}, 10, v{V_DB}")
        e(f"v_and_b32 {vr(u)}, 3, v{V_LANE}"); e(f"v_lshl_add_u32 v{V_DB}, {vr(u)}, 4, v{V_DB}"); e(f"v_add_u32 v{V_DB}, {512*row + 256}, v{V_DB}")
        e(f"v_lshrrev_b32 {vr(u)}, 5, v{V_LANE}")
    else:
        e(f"v_and_b32 v{V_GL}, 7, v{V_LANE}"); e(f"v_lshlrev_b32 v{V_GL}, 10, v{V_GL}"); e(f"v_add_u32 v{V_GL}, {512*live[-1] + 19*16}, v{V_GL}")
        e(f"v_and_b32 v{V_LL}, 3, v{V_LANE}"); e(f"v_lshlrev_b32 v{V_LL}, 10, v{V_LL}"); e(f"v_add_u32 v{V_LL}, {512*live[-1] + 19*16}, v{V_LL}")
    e(f"v_and_b32 {vr(t)}, 7, v{V_LANE}"); e(f"v_lshlrev_b32 {vr(t)}, 10, {vr(t)}")
    e(f"v_lshl_add_u32 {vr(t)}, {vr(u)}, 9, {vr(t)}"); e(f"v_add_u32 {vr(t)}, 384, {vr(t)}")
    selmask(e, V_ST2, t, rows_mask(live, 32))
    e(f"v_and_b32 {vr(t)}, 15, v{V_LANE}"); e(f"v_lshrrev_b32 {vr(u)}, 4, v{V_LANE}")
    e(f"v_lshlrev_b32 v{V_PL}, 9, {vr(t)}")
    e(f"v_lshl_add_u32 v{V_PG}, {vr(u)}, 5, v{V_PL}")
    e(f"v_add_u32 v{V_PS}, 384, v{V_PL}")
    e(f"v_lshl_add_u32 v{V_PL}, {vr(u)}, 4, v{V_PL}")
    e(f"v_lshlrev_b32 v{V_PQ}, 18, {vr(t)}")
    e(f"v_add_u32 v{V_PSQ}, 768, v{V_PQ}")
    e(f"v_lshl_add_u32 v{V_PQ}, {vr(u)}, 4, v{V_PQ}")
    cm = cols_mask(pub_live)
    e(f"s_mov_b32 vcc_lo, 0x{cm & 0xffffffff:08x}"); e(f"s_mov_b32 vcc_hi, 0x{cm >> 32:08x}")
    for r in (V_PL, V_PG): e(f"v_cndmask_b32 v{r}, v{V_OOB}, v{r}, vcc")
    selmask(e, V_PS, V_PS, cols_mask(pub_live, [0]))
    selmask(e, V_PQ, V_PQ, cols_mask(q_live))
    selmask(e, V_PSQ, V_PSQ, cols_mask(q_live, [0]))

def soffs(e, off_sreg, const, two=True):
    e(f"s_add_u32 s{S_A}, s{off_sreg}, {const}")
    if two: e(f"s_add_u32 s{S_B}, s{S_A}, 4096")

def poll(e, o, loads, abort, sleep=0):
    lab = e.newlabel("poll")
    e(f"s_mov_b32 s{S_CNT}, {o.poll_limit}")
    e.label(lab)
    for d, vo, s, imm in loads:
        e(f"buffer_load_dwordx4 {vr(d,4)}, v{vo}, s[{SRD_WS}:{SRD_WS+3}], s{s} offen offset:{imm} sc1")
    e(f"s_sub_u32 s{S_CNT}, s{S_CNT}, 1")
    e(f"s_cbranch_scc1 {abort}")
    e("s_waitcnt vmcnt(0)")
    vals = []
    for d, _, _, _ in loads: vals += [d + 1, d + 3]
    t = V_T
    e(f"v_max3_u32 v{t}, v{vals[0]}, v{vals[1]}, v{vals[2]}")
    i = 3
    while i < len(vals):
        if i + 1 < len(vals): e(f"v_max3_u32 v{t}, v{t}, v{vals[i]}, v{vals[i+1]}"); i += 2
        else: e(f"v_max_u32 v{t}, v{t}, v{vals[i]}"); i += 1
    e(f"v_cmp_eq_u32 vcc, -1, v{t}")
    if sleep:
        ok = e.newlabel("pok"); e(f"s_cbranch_vccz {ok}"); e(f"s_sleep {sleep}"); e(f"s_branch {lab}"); e.label(ok)
    else: e(f"s_cbranch_vccnz {lab}")
    e.vmq = []

def gather8(e, o, vo, abort, extra=None, n=8, base=W0):
    loads = [(base + 4 * k, vo, S_A if k < 4 else S_B, (k % 4) * 1024) for k in range(n)]
    if extra: loads.append((base + 4 * n, extra, S_A, 0))
    poll(e, o, loads, abort)

def sum_loads(e, n, base=W0):
    step = 1
    while step < n:
        for k in range(0, n, 2 * step):
            if k + step < n:
                a, b = base + 4 * k, base + 4 * (k + step)
                e(f"v_pk_add_f32 {vr(a,2)}, {vr(a,2)}, {vr(b,2)}")
                e(f"v_pk_add_f32 {vr(a+2,2)}, {vr(a+2,2)}, {vr(b+2,2)}")
        step *= 2

def dpp8(e, reg, op):
    for m in ("quad_perm:[1,0,3,2]", "quad_perm:[2,3,0,1]", "row_half_mirror"):
        e(f"v_{op}_f32_dpp v{reg}, v{reg}, v{reg} {m} row_mask:0xf bank_mask:0xf")
def dpp8x2(e, r0, r1, op):
    for m in ("quad_perm:[1,0,3,2]", "quad_perm:[2,3,0,1]", "row_half_mirror"):
        e(f"v_{op}_f32_dpp v{r0}, v{r0}, v{r0} {m} row_mask:0xf bank_mask:0xf")
        e(f"v_{op}_f32_dpp v{r1}, v{r1}, v{r1} {m} row_mask:0xf bank_mask:0xf")

def ln_from_stats(e, s1, s2, mean, rstd):
    e(f"v_mul_f32 v{mean}, {lit(1/640)}, v{s1}")
    e(f"v_mul_f32 v{s2}, {lit(1/640)}, v{s2}")
    e(f"v_fma_f32 v{s2}, -v{mean}, v{mean}, v{s2}")
    e(f"v_max_f32 v{s2}, 0, v{s2}")
    e(f"v_add_f32 v{s2}, {lit(EPS)}, v{s2}")
    e(f"v_rsq_f32 v{rstd}, v{s2}")

def pub(e, D, vo, sreg, imm, fl, tag):
    e.vm(f"buffer_store_dwordx4 {vr(D,4)}, v{vo}, s[{SRD_WS}:{SRD_WS+3}], s{sreg} offen offset:{imm} {fl}", tag)

def run_tiles(e, tiles, accs, store, btags=None, twait=None):
    n = len(accs); lag = n - 1
    for i, (tid, steps) in enumerate(tiles):
        D = vr(accs[i % n], 4)
        if twait and tid in twait: e.lg_wait(twait[tid])
        for s, (A, B) in enumerate(steps):
            if i == 0 and btags: e.lg_wait(btags[s])
            e(f"v_mfma_f32_16x16x32_bf16 {D}, {A}, {B}, {'0' if s == 0 else D}")
        if i >= lag: store(tiles[i - lag][0], accs[(i - lag) % n])
    for i in range(max(0, len(tiles) - lag), len(tiles)): store(tiles[i][0], accs[i % n])

def read_bx(e, B):
    e.lg(f"ds_read_b128 {vr(B,4)}, v{V_BX}", "b0"); e.lg(f"ds_read_b128 {vr(B+4,4)}, v{V_BX} offset:64", "b1")
    e.lg(f"ds_read_b64 {vr(B+8,2)}, v{V_BX8}", "b2")
    e(f"v_mov_b32 v{B+10}, 0"); e(f"v_mov_b32 v{B+11}, 0")
def read_as(e, A):
    e.lg(f"ds_read_b128 {vr(A,4)}, v{V_AS}", "a0"); e.lg(f"ds_read_b128 {vr(A+4,4)}, v{V_AS} offset:64", "a1")
    e.lg(f"ds_read_b64 {vr(A+8,2)}, v{V_AS8}", "a2")
    e(f"v_mov_b32 v{A+10}, 0"); e(f"v_mov_b32 v{A+11}, 0")

def stage_Q(e, fl, reg_index, shadow=None):
    B, A = W0 + 8, W0 + 20
    read_bx(e, B); read_as(e, A)
    e(f"s_add_u32 s{S_A}, s{S_ROWN}, {reg_index*RG}")
    if shadow: shadow()
    tiles = [(t, [(win(wq_frag(t, s)), vr(B + 4 * s, 4)) for s in range(3)]) for t in range(12)]
    tiles.insert(1, (12, [(vr(A + 4 * s, 4), vr(B + 4 * s, 4)) for s in range(3)]))
    SD = W0 + 4
    def store(t, D): pub(e, D, V_PQ, S_A, 64 * t, fl, ("pq", t))
    first, stats, rest = tiles[0], tiles[1], tiles[2:]
    run_tiles(e, [first], [W0 + 32, W0 + 36], lambda t, D: None, btags=["b0", "b1", "b2"])
    e.lg_wait("a2")
    for s, (Aop, Bop) in enumerate(stats[1]):
        e(f"v_mfma_f32_16x16x32_bf16 {vr(SD,4)}, {Aop}, {Bop}, {'0' if s == 0 else vr(SD,4)}")
    accs = [W0 + 36, W0, W0 + 20, W0 + 32]
    pend = [(0, W0 + 32)]
    for i, (t, steps) in enumerate(rest):
        D = accs[i % 4]
        for s, (Aop, Bop) in enumerate(steps):
            e(f"v_mfma_f32_16x16x32_bf16 {vr(D,4)}, {Aop}, {Bop}, {'0' if s == 0 else vr(D,4)}")
        pend.append((t, D))
        if i >= 2: store(*pend.pop(0))
    e(f"v_cndmask_b32 v{SD+1}, v{SD+1}, v{SD+2}, s[{S_N1}:{S_N1+1}]")
    while pend: store(*pend.pop(0))
    pub(e, SD, V_PSQ, S_A, 0, fl, "pqs")

def stage_GU(e, fl, const, with_stats=True, shadow=None):
    B, A = W0 + 8, W0 + 20
    read_bx(e, B)
    if with_stats: read_as(e, A)
    e(f"s_add_u32 s{S_A}, s{S_ROWN}, {const}" if const >= 0 else f"s_sub_u32 s{S_A}, s{S_ROWN}, {-const}")
    if shadow: shadow()
    def tile(d, f, waits=None):
        d = vr(d, 4)
        for s in range(3):
            if waits: e.lg_wait(waits[s])
            e(f"v_mfma_f32_16x16x32_bf16 {d}, {f(s)}, {vr(B+4*s,4)}, {'0' if s == 0 else d}")
    def store(t, G, U):
        e(f"v_swap_b32 v{G+2}, v{U}"); e(f"v_swap_b32 v{G+3}, v{U+1}")
        pub(e, G, V_PG, S_A, 128 * t, fl, ("pg", t, 0))
        pub(e, U, V_PG, S_A, 128 * t + 16, fl, ("pg", t, 1))
    g = lambda t: (lambda s: win(wg_frag(t, s)))
    u = lambda t: (lambda s: win(wu_frag(t, s)))
    P0, P1, S = (W0 + 32, W0 + 36), (W0 + 20, W0 + 24), W0
    tile(P0[0], g(0), waits=["b0", "b1", "b2"]); tile(P0[1], u(0))
    if with_stats:
        e.lg_wait("a2")
        tile(S, lambda s: vr(A + 4 * s, 4))
    tile(P1[0], g(1)); tile(P1[1], u(1))
    store(0, *P0)
    if with_stats: e(f"v_cndmask_b32 v{S+1}, v{S+1}, v{S+2}, s[{S_N1}:{S_N1+1}]")
    tile(P0[0], g(2)); tile(P0[1], u(2))
    store(1, *P1)
    store(2, *P0)
    if with_stats: pub(e, S, V_PS, S_A, 0, fl, "pgs")

def stage_WO(e, fl, region, shadow=None):
    B = W0
    for s in range(6): e.lg(f"ds_read_b128 {vr(B+4*s,4)}, v{V_BO} offset:{64*s}", ("o", s))
    e(f"s_add_u32 s{S_A}, s{S_LOWN}, {region*RG}")
    if shadow: shadow()
    tiles = [(t, [(win(wo_frag(t, s)), vr(B+4*s,4)) for s in range(6)]) for t in range(5)]
    run_tiles(e, tiles, [W0 + 24, W0 + 28, W0 + 32], lambda t, D: pub(e, D, V_PL, S_A, 64 * t, fl, ("po", t)), btags=[("o", s) for s in range(6)])

def stage_D(e, fl, region):
    B = W0
    e.lg(f"ds_read_b128 {vr(B,4)}, v{V_BH}", "h0"); e.lg(f"ds_read_b64 {vr(B+4,2)}, v{V_BH8}", "h1")
    e(f"v_mov_b32 v{B+6}, 0"); e(f"v_mov_b32 v{B+7}, 0")
    e(f"s_add_u32 s{S_A}, s{S_LOWN}, {region*RG}")
    tiles = [(t, [(win(wd_frag(t, 0)), vr(B,4)), (win(wd_frag(t, 1)), vr(B+4,4))]) for t in range(5)]
    run_tiles(e, tiles, [W0 + 8 + 4 * i for i in range(5)], lambda t, D: pub(e, D, V_PL, S_A, 64 * t, fl, ("pd", t)), btags=["h0", "h1"])

def fast_gather(e, o, loads, body, abort, pre=0, early=False):
    n = len(loads); t = V_T
    lab = e.newlabel("fpoll")
    e(f"s_mov_b32 s{S_CNT}, {o.poll_limit}")
    if pre: e(f"s_sleep {pre}")
    e.label(lab)
    for d, vo, s, imm in loads:
        e(f"buffer_load_dwordx4 {vr(d,4)}, v{vo}, s[{SRD_WS}:{SRD_WS+3}], s{s} offen offset:{imm} sc1")
    e(f"s_sub_u32 s{S_CNT}, s{S_CNT}, 1")
    e(f"s_cbranch_scc1 {abort}")
    first = [True]
    if early:
        d = loads[0][0]
        e(f"s_waitcnt vmcnt({n-1})")
        e(f"v_max_u32 v{t}, v{d+1}, v{d+3}")
        e(f"v_cmp_eq_u32 vcc, -1, v{t}")
        e(f"s_cbranch_vccnz {lab}")
        first[0] = False
    def wait(k): e(f"s_waitcnt vmcnt({n-1-k})")
    def chk(k):
        d = loads[k][0]
        if first[0]: e(f"v_max_u32 v{t}, v{d+1}, v{d+3}"); first[0] = False
        else: e(f"v_max3_u32 v{t}, v{t}, v{d+1}, v{d+3}")
    body(wait, chk)
    e(f"v_cmp_eq_u32 vcc, -1, v{t}")
    e(f"s_cbranch_vccnz {lab}")
    e.vmq = []

def padd(e, a, b, neg=False):
    m = " neg_lo:[0,1] neg_hi:[0,1]" if neg else ""
    e(f"v_pk_add_f32 {vr(a,2)}, {vr(a,2)}, {vr(b,2)}{m}"); e(f"v_pk_add_f32 {vr(a+2,2)}, {vr(a+2,2)}, {vr(b+2,2)}{m}")

def g_soffs(e, off_sreg, const, two=True):
    e(f"s_add_u32 s{S_GA}, s{off_sreg}, {const}")
    if two: e(f"s_add_u32 s{S_GB}, s{S_GA}, 4096")
def g_loads(vo, n=8, base=W0): return [(base + 4 * k, vo, S_GA if k < 4 else S_GB, (k % 4) * 1024) for k in range(n)]

def hop_LG(e, o, inst, k, abort, final_only=False):
    skip = e.newlabel("notleader")
    e(f"s_cmp_lg_u32 s{S_HQ}, 0"); e(f"s_cbranch_scc1 {skip}")
    g_soffs(e, S_LGRP, L_REG(inst, k) * RG, two=False)
    e(f"s_add_u32 s{S_A}, s{S_GOWN}, {G_OFF(inst,k)}")
    X = W0 + 32
    off = 1 if o.early else 0
    def body4(wait, chk):
        wait(off + 1); chk(off); chk(off + 1); padd(e, W0, W0 + 4)
        wait(off + 2); chk(off + 2); padd(e, W0, W0 + 8)
        wait(off + 3); chk(off + 3); padd(e, W0, W0 + 12)
    fast_gather(e, o, ([(X, V_LL, S_GA, 0)] if o.early else []) + g_loads(V_LG, 4), body4, abort, pre=o.preL, early=o.early)
    e(f"buffer_store_dwordx4 {vr(W0,4)}, v{V_LG}, s[{SRD_WS}:{SRD_WS+3}], s{S_A} offen sc1")
    if o.preGn:
        join = e.newlabel("lgjoin")
        e(f"s_branch {join}")
        e.label(skip)
        if not final_only: e(f"s_sleep {o.preGn}")
        e.label(join)
    else: e.label(skip)
    if final_only:
        e(f"s_cmp_lg_u32 s{S_H}, 0"); e(f"s_cbranch_scc1 L_done")
    g_soffs(e, S_GGRP, G_OFF(inst, k))
    e.vmq = []
    def body8(wait, chk):
        c = lambda k: chk(off + k)
        w = lambda k: wait(off + k)
        w(1); c(0); c(1); padd(e, W0, V_XR); padd(e, W0, W0 + 4)
        w(3); c(2); c(3); padd(e, W0 + 8, W0 + 12); padd(e, W0, W0 + 8)
        w(5); c(4); c(5); padd(e, W0 + 16, W0 + 20); padd(e, W0, W0 + 16)
        w(6); c(6); padd(e, W0, W0 + 24)
        w(7); c(7); padd(e, W0, W0 + 28)
    fast_gather(e, o, ([(X, V_GL, S_GA, 0)] if o.early else []) + g_loads(V_LG, 8), body8, abort, pre=o.preG, early=o.early)

def hop_packed(e, o, abort, inst, k, pre):
    if inst == 2 and k == 1:
        e(f"s_cmp_lg_u32 s{S_H}, 0"); e(f"s_cbranch_scc1 L_done")
    e(f"s_lshl_b32 s{S_T0}, s{S_J}, 12"); e(f"s_add_u32 s{S_T0}, s{S_T0}, {L_REG(inst,k)*RG}")
    for x in range(8): e(f"s_add_u32 s{SW8[x]}, s{S_T0}, {32768*x}")
    B0 = W0 + 32
    loads = [(B0, V_DB, SW8[0], 0), (B0 + 4, V_DB, SW8[4], 0)] + [(W0 + 4 * x, V_DA, SW8[x], 0) for x in range(8)]
    T = V_T + 1
    def xrow(a):
        for sw in ("v_permlane16_swap_b32", "v_permlane32_swap_b32"):
            for r in range(4):
                t = B0 + 4 + r
                e(f"v_mov_b32 v{t}, v{a+r}")
            for r in range(4): e(f"{sw} v{a+r}, v{B0+4+r}")
            for h in range(2): e(f"v_pk_add_f32 {vr(a+2*h,2)}, {vr(a+2*h,2)}, {vr(B0+4+2*h,2)}")
    def body(wait, chk):
        wait(1); chk(0); chk(1); padd(e, B0, B0 + 4)
        for m in ("row_ror:4", "row_ror:8"):
            for r in range(4): e(f"v_add_f32_dpp v{B0+r}, v{B0+r}, v{B0+r} {m} row_mask:0xf bank_mask:0xf")
        wait(3); chk(2); chk(3); padd(e, W0, W0 + 4)
        xrow(B0)
        wait(5); chk(4); chk(5); padd(e, W0 + 8, W0 + 12); padd(e, W0, W0 + 8)
        wait(7); chk(6); chk(7); padd(e, W0 + 16, W0 + 20); padd(e, W0, W0 + 16)
        wait(8); chk(8); padd(e, W0, W0 + 24)
        wait(9); chk(9); padd(e, W0, W0 + 28)
    fast_gather(e, o, loads, body, abort, pre=pre)
    xrow(W0)
    e("s_mov_b32 vcc_lo, 0xffff0000"); e("s_mov_b32 vcc_hi, 0xffff0000")
    for r in range(4): e(f"v_cndmask_b32 v{W0+r}, v{W0+r}, v{B0+r}, vcc")
    m = rows_mask([LIVE[inst][-1]], 20)
    e(f"s_mov_b32 vcc_lo, 0x{m & 0xffffffff:08x}"); e(f"s_mov_b32 vcc_hi, 0x{m >> 32:08x}")
    for r in range(4): e(f"v_cndmask_b32 v{W0+r}, 0, v{W0+r}, vcc")
    padd(e, W0, V_XR)

def hop_final(e, o, abort, k=1):
    if k == 1:
        e(f"s_cmp_lg_u32 s{S_H}, 0"); e(f"s_cbranch_scc1 L_done")
    e(f"s_lshl_b32 s{S_T0}, s{S_J}, 12"); e(f"s_add_u32 s{S_T0}, s{S_T0}, {L_REG(2,k)*RG}")
    for x in range(8): e(f"s_add_u32 s{SW8[x]}, s{S_T0}, {32768*x}")
    dst = [W0 + 4 * k for k in range(8)] + [CW_K + 4 * k for k in range(24)]
    loads = [(dst[4 * x + q], V_LG, SW8[x], 1024 * q) for x in range(8) for q in range(4)]
    A0, A1 = loads[0][0], loads[1][0]
    def body(wait, chk):
        wait(1); chk(0); chk(1); padd(e, A0, V_XR)
        for k in range(2, 32):
            if k % 2 == 0: wait(min(k + 1, 31)); chk(k); chk(k + 1)
            padd(e, A0 if k % 2 == 0 else A1, loads[k][0])
        padd(e, A0, A1)
    fast_gather(e, o, loads, body, abort, pre=o.preF if k == 1 else o.preF0)

def residual_update(e):
    e(f"v_cvt_pk_bf16_f32 v{W0+4}, v{W0}, v{W0+1}")
    e(f"v_cvt_pk_bf16_f32 v{W0+5}, v{W0+2}, v{W0+3}")
    e.lg(f"ds_write_b64 v{V_WX}, {vr(W0+4,2)}", "wx")
def residual_unpack(e, p):
    e(f"v_lshlrev_b32 v{V_XR}, 16, v{p}"); e(f"v_and_b32 v{V_XR+1}, 0xffff0000, v{p}")
    e(f"v_lshlrev_b32 v{V_XR+2}, 16, v{p+1}"); e(f"v_and_b32 v{V_XR+3}, 0xffff0000, v{p+1}")

def store_out(e, row, only=True):
    skip = e.newlabel("noout")
    e(f"s_cmp_lg_u32 s{S_H}, 0"); e(f"s_cbranch_scc1 {skip}")
    make_srd(e, SRD_T, S_OUT, 2560)
    e(f"v_and_b32 v{V_T}, 31, v{V_LANE}"); e(f"v_lshlrev_b32 v{V_T}, 3, v{V_T}")
    e(f"s_mul_i32 s{S_T0}, s{S_J}, 160"); e(f"s_add_u32 s{S_T0}, s{S_T0}, {row*1280}")
    selmask(e, V_T, V_T, rows_mask([row], 20))
    e(f"buffer_store_dwordx2 {vr(W0+4,2)}, v{V_T}, s[{SRD_T}:{SRD_T+3}], s{S_T0} offen")
    e.label(skip)

def combine_publish(e, fl, parts, mlbase, region):
    T = W0
    e(f"v_mov_b32 v{V_T}, {mlbase}")
    e.lg(f"ds_read_b128 {vr(T,4)}, v{V_T}", "ml0"); e.lg(f"ds_read_b128 {vr(T+4,4)}, v{V_T} offset:16", "ml1")
    P = T + 8
    cur = None
    for w in range(4):
        if cur is None or not (0 <= parts[w] - cur < 60000):
            e(f"v_add_u32 v{V_T+1}, {parts[w]}, v{V_L16}"); cur = parts[w]
        for par in range(2):
            e.lg(f"ds_read_b128 {vr(P+8*w+4*par,4)}, v{V_T+1} offset:{parts[w] - cur + 768*par}", ("p", w, par))
    e(f"s_add_u32 s{S_A}, s{S_ROWN}, {region*RG}")
    e.lg_wait("ml1")
    m = [T, T + 2, T + 4, T + 6]; l = [T + 1, T + 3, T + 5, T + 7]
    M, Ls = V_T, V_T + 1
    e(f"v_max3_f32 v{M}, v{m[0]}, v{m[1]}, v{m[2]}"); e(f"v_max_f32 v{M}, v{M}, v{m[3]}")
    for w in range(4): e(f"v_sub_f32 v{m[w]}, v{m[w]}, v{M}")
    for w in range(4): e(f"v_exp_f32 v{m[w]}, v{m[w]}")
    e(f"v_mul_f32 v{Ls}, v{m[0]}, v{l[0]}")
    for w in range(1, 4): e(f"v_fma_f32 v{Ls}, v{m[w]}, v{l[w]}, v{Ls}")
    for w in range(4):
        e.lg_wait(("p", w, 1))
        a = P + 8 * w
        e(f"v_pk_add_f32 {vr(a,2)}, {vr(a,2)}, {vr(a+4,2)}"); e(f"v_pk_add_f32 {vr(a+2,2)}, {vr(a+2,2)}, {vr(a+6,2)}")
        for r in range(4):
            if w == 0: e(f"v_mul_f32 v{P+r}, v{m[0]}, v{P+r}")
            else: e(f"v_fmac_f32 v{P+r}, v{m[w]}, v{a+r}")
    e(f"s_mov_b32 vcc_lo, 0"); e(f"s_mov_b32 vcc_hi, 0x00010000")
    e(f"v_cndmask_b32 v{P}, v{P}, v{M}, vcc"); e(f"v_cndmask_b32 v{P+1}, v{P+1}, v{Ls}, vcc")
    pub(e, P, V_R, S_A, 0, fl, "r1")

SW8 = [4, 6, 8, 10, 12, 16, 18, 20]
def hop_R1(e, o, region, row, abort):
    g_soffs(e, S_RGRP, region * RG)
    X = W0 + 32
    M, wv = X + 2, X + 3
    acc = W0 + 36
    loads = [(X, V_ML, S_GA, 0)] + g_loads(V_R)
    def body(wait, chk):
        if not o.early: wait(0); chk(0)
        e(f"v_mov_b32 v{M}, v{X}")
        dpp8(e, M, "max")
        e(f"v_sub_f32 v{wv}, v{X}, v{M}"); e(f"v_exp_f32 v{wv}, v{wv}")
        wait(4); chk(1); chk(2)
        e(f"v_mul_f32 v{X+1}, v{wv}, v{X+1}")
        chk(3); chk(4)
        e(f"v_add_f32_dpp v{X+1}, v{X+1}, v{X+1} quad_perm:[1,0,3,2] row_mask:0xf bank_mask:0xf")
        wait(8); chk(5); chk(6)
        e(f"v_add_f32_dpp v{X+1}, v{X+1}, v{X+1} quad_perm:[2,3,0,1] row_mask:0xf bank_mask:0xf")
        chk(7); chk(8)
        e(f"v_add_f32_dpp v{X+1}, v{X+1}, v{X+1} row_half_mirror row_mask:0xf bank_mask:0xf")
        e(f"v_rcp_f32 v{X+1}, v{X+1}")
        e(f"v_mul_f32 v{wv}, v{wv}, v{X+1}")
        for k in range(8): e(f"v_readlane_b32 s{SW8[k]}, v{wv}, {k}")
        for k in range(8):
            for h in range(2):
                a, m = acc + 2 * h, W0 + 4 * k + 2 * h
                sp = f"s[{SW8[k]}:{SW8[k]+1}]"
                if k == 0: e(f"v_pk_mul_f32 {vr(a,2)}, {vr(m,2)}, {sp} op_sel_hi:[1,0]")
                else: e(f"v_pk_fma_f32 {vr(a,2)}, {vr(m,2)}, {sp}, {vr(a,2)} op_sel_hi:[1,0,1]")
    fast_gather(e, o, loads, body, abort, pre=o.preR, early=o.early)
    e(f"v_cvt_pk_bf16_f32 v{acc}, v{acc}, v{acc+1}"); e(f"v_cvt_pk_bf16_f32 v{acc+1}, v{acc+2}, v{acc+3}")
    e.lg(f"ds_write_b64 v{V_W8}, {vr(acc,2)} offset:{ACT_O - SB + 384*row}", "wo")

def ln_gather(e, o, vo, vstat, cs, abort):
    X = W0 + 32; mean, rstd = X + 2, X + 3; T = W0 + 36
    loads = [(X, vstat, S_GA, 0)] + g_loads(vo)
    q = lambda r, m: e(f"v_add_f32_dpp v{r}, v{r}, v{r} {m} row_mask:0xf bank_mask:0xf")
    def body(wait, chk):
        if not o.early: wait(0); chk(0)
        q(X, "quad_perm:[1,0,3,2]"); q(X + 1, "quad_perm:[1,0,3,2]")
        wait(2); chk(1)
        q(X, "quad_perm:[2,3,0,1]"); q(X + 1, "quad_perm:[2,3,0,1]")
        chk(2)
        q(X, "row_half_mirror"); q(X + 1, "row_half_mirror")
        padd(e, W0, W0 + 4)
        e(f"v_mul_f32 v{mean}, {lit(1/640)}, v{X}"); e(f"v_mul_f32 v{X+1}, {lit(1/640)}, v{X+1}")
        wait(4); chk(3); chk(4)
        e(f"v_fma_f32 v{X+1}, -v{mean}, v{mean}, v{X+1}")
        padd(e, W0 + 8, W0 + 12)
        e(f"v_max_f32 v{X+1}, 0, v{X+1}"); e(f"v_add_f32 v{X+1}, {lit(EPS)}, v{X+1}")
        padd(e, W0, W0 + 8)
        e(f"v_rsq_f32 v{rstd}, v{X+1}")
        wait(6); chk(5); chk(6)
        e(f"v_pk_mul_f32 {vr(T,2)}, {vr(cs,2)}, {vr(mean,2)} op_sel_hi:[1,0]"); e(f"v_pk_mul_f32 {vr(T+2,2)}, {vr(cs+2,2)}, {vr(mean,2)} op_sel_hi:[1,0]")
        padd(e, W0 + 16, W0 + 20); padd(e, W0, T, neg=True); padd(e, W0, W0 + 16)
        wait(7); chk(7); padd(e, W0, W0 + 24)
        wait(8); chk(8); padd(e, W0, W0 + 28)
    fast_gather(e, o, loads, body, abort, pre=o.preR, early=o.early)
    e(f"v_pk_mul_f32 {vr(W0,2)}, {vr(W0,2)}, {vr(mean,2)} op_sel:[0,1] op_sel_hi:[1,1]")
    e(f"v_pk_mul_f32 {vr(W0+2,2)}, {vr(W0+2,2)}, {vr(mean,2)} op_sel:[0,1] op_sel_hi:[1,1]")

def hop_R2(e, o, inst, abort):
    ln_gather(e, o, V_R2, V_ST2, V_CSG, abort)
    e(f"v_max_f32 v{W0}, 0, v{W0}"); e(f"v_max_f32 v{W0+1}, 0, v{W0+1}")
    e(f"v_pk_mul_f32 {vr(W0,2)}, {vr(W0,2)}, {vr(W0+2,2)}")
    e(f"v_cvt_pk_bf16_f32 v{W0}, v{W0}, v{W0+1}")
    e.lg(f"ds_write_b32 v{V_WH}, v{W0}", "wh")

def q_consume(e, base, X, row):
    dpp8x2(e, X, X + 1, "add")
    sum_loads(e, 8, base)
    mean, rstd = X + 2, X + 3
    ln_from_stats(e, X, X + 1, mean, rstd)
    for r in range(4): e(f"v_fma_f32 v{base+r}, -v{mean}, v{V_CSQ+r}, v{base+r}")
    for r in range(4): e(f"v_mul_f32 v{base+r}, v{rstd}, v{base+r}")
    e(f"v_cvt_pk_bf16_f32 v{base}, v{base}, v{base+1}"); e(f"v_cvt_pk_bf16_f32 v{base+1}, v{base+2}, v{base+3}")
    e.lg(f"ds_write_b64 v{V_W8}, {vr(base,2)} offset:{QARR - SB + 384*row}", "wq")

def hop_R3(e, o, region, row, abort):
    ln_gather(e, o, V_R, V_ML, V_CSQ, abort)
    e(f"v_cvt_pk_bf16_f32 v{W0}, v{W0}, v{W0+1}"); e(f"v_cvt_pk_bf16_f32 v{W0+1}, v{W0+2}, v{W0+3}")
    e.lg(f"ds_write_b64 v{V_W8}, {vr(W0,2)} offset:{QARR - SB + 384*row}", "wq")

def go_flag(e):
    e(f"v_mov_b32 v{V_T}, {WFLAG + 12}"); e(f"v_mov_b32 v{V_T+1}, 1")
    e.lg(f"ds_write_b32 v{V_T}, v{V_T+1}", "go")

def chain(e, o, fl, inst, live, abort, st):
    c = f"c{inst}."
    if inst == 0 and o.NB1 != o.NB and o.go_at == "R1": go_flag(e)
    if inst == 0: o._save = (o.preR, o.preL, o.preG); o.preL, o.preG = o.preL + o.preL0, o.preG + o.preG0
    st.rounds(f"n{inst}.R1")
    st(c + "R1")
    pk = o.packed.split(",") if o.packed else []
    if inst == 0 and o.split_tok:
        TO, TD = W0 + 38, W0 + 36
        omask = 0xffffffff00ff0000
        def shadow():
            tok2_offsets(e, TO, W0 + 24, others_only=True)
            e(f"s_mov_b32 s{S_B}, {TOK2}")
            set_exec(e, omask)
            e.vm(f"buffer_load_dwordx2 {vr(TD,2)}, v{TO}, s[{SRD_WS}:{SRD_WS+3}], s{S_B} offen sc1", "tok2b")
            e("s_mov_b64 exec, -1")
        stage_WO(e, "sc1" if "00" in pk else fl, L_REG(inst, 0), shadow=shadow)
        ok, lab = e.newlabel("tok2ok"), e.newlabel("tok2re")
        e.vm_wait("tok2b")
        set_exec(e, omask)
        e(f"v_cmp_ne_u32 vcc, s{S_TAG}, v{TD}")
        e(f"s_cbranch_vccz {ok}")
        e(f"s_mov_b32 s{S_CNT}, {o.poll_limit}")
        e.label(lab)
        e(f"buffer_load_dwordx2 {vr(TD,2)}, v{TO}, s[{SRD_WS}:{SRD_WS+3}], s{S_B} offen sc1")
        e(f"s_sub_u32 s{S_CNT}, s{S_CNT}, 1"); e(f"s_cbranch_scc1 {abort}")
        e("s_waitcnt vmcnt(0)")
        e(f"v_cmp_ne_u32 vcc, s{S_TAG}, v{TD}")
        e(f"s_cbranch_vccnz {lab}")
        e.label(ok)
        e("s_mov_b64 exec, -1")
        st(c + "WO")
        if "00" in pk: hop_packed(e, o, abort, inst, 0, o.preP0)
        else: hop_LG(e, o, inst, 0, abort)
    elif f"{inst}0" in pk:
        stage_WO(e, "sc1", L_REG(inst, 0))
        st(c + "WO")
        hop_packed(e, o, abort, inst, 0, o.preP0 if inst == 0 else o.preF0)
    elif inst == 2 and o.direct0:
        stage_WO(e, "sc1", L_REG(inst, 0))
        st(c + "WO")
        hop_final(e, o, abort, k=0)
    else:
        stage_WO(e, fl, L_REG(inst, 0))
        st(c + "WO")
        hop_LG(e, o, inst, 0, abort)
    if inst == 0 and o.NB1 != o.NB and o.go_at == "G1": go_flag(e)
    if inst == 0: o.preR, o.preL, o.preG = o._save
    st.rounds(f"n{inst}.G1")
    st(c + "G1")
    residual_update(e)
    def sh_gu():
        residual_unpack(e, W0 + 4); g_soffs(e, S_RGRP, R2_REG[inst] * RG)
    stage_GU(e, fl, R2_REG[inst] * RG, shadow=sh_gu)
    st(c + "GU")
    hop_R2(e, o, inst, abort)
    st.rounds(f"n{inst}.R2")
    st(c + "R2")
    if f"{inst}1" in pk:
        stage_D(e, "sc1", L_REG(inst, 1))
        st(c + "D")
        hop_packed(e, o, abort, inst, 1, o.preP1 if inst == 0 else (o.preF if inst == 2 else o.preF1))
    elif inst == 2 and o.direct:
        stage_D(e, "sc1", L_REG(inst, 1))
        st(c + "D")
        hop_final(e, o, abort)
    else:
        stage_D(e, fl, L_REG(inst, 1))
        st(c + "D")
        hop_LG(e, o, inst, 1, abort, final_only=(inst == 2))
    st.rounds(f"n{inst}.G2")
    st(c + "G2")
    if inst == 2:
        e(f"v_cvt_pk_bf16_f32 v{W0+4}, v{W0}, v{W0+1}"); e(f"v_cvt_pk_bf16_f32 v{W0+5}, v{W0+2}, v{W0+3}")
        for r in LIVE[2]: store_out(e, r, only=len(LIVE[2]) == 1)
        e("s_cmp_lg_u32 s2, 0"); e("s_cbranch_scc1 L_done")
        e(f"v_mov_b32 v{V_T}, s{S_TAG}"); e(f"v_mov_b32 v{V_T+1}, {EPOCH_OFF}")
        e("s_mov_b64 exec, 1")
        e(f"buffer_store_dword v{V_T}, v{V_T+1}, s[{SRD_WS}:{SRD_WS+3}], 0 offen sc1")
        e("s_mov_b64 exec, -1")
        return
    residual_update(e)
    qrow = 0 if inst == 0 else 1
    def sh_q():
        residual_unpack(e, W0 + 4); g_soffs(e, S_RGRP, R3_REG[inst] * RG)
        if inst == 1 and 0 in LIVE[1]:
            store_out(e, 0)
            cm = cols_mask([1]); e(f"s_mov_b32 vcc_lo, 0x{cm & 0xffffffff:08x}"); e(f"s_mov_b32 vcc_hi, 0x{cm >> 32:08x}")
            e(f"v_cndmask_b32 v{V_PQ}, v{V_OOB}, v{V_PQ}, vcc"); e(f"v_cndmask_b32 v{V_PSQ}, v{V_OOB}, v{V_PSQ}, vcc")
    stage_Q(e, fl, R3_REG[inst] - qrow, shadow=sh_q)
    st(c + "Q")
    hop_R3(e, o, R3_REG[inst], qrow, abort)
    e.lg_all()
    st.rounds(f"n{inst}.R3")
    st(c + "R3")

TOK1 = 21 * RG
TOK2 = TOK1 + 32768
EPOCH_OFF = 896
S_TAG = 73

LIVE = {0: [0], 1: [0, 1], 2: [1]}
o_direct = [True, False]
o_packed = [False]
o_exp = ['']
o_dset = set()
def emit_resets_P(e):
    e(f"v_mov_b32 v{W0}, -1"); e(f"v_mov_b32 v{W0+1}, -1"); e(f"v_mov_b32 v{W0+2}, -1"); e(f"v_mov_b32 v{W0+3}, -1")
    for r in [4, 5, 6]:
        e(f"s_add_u32 s{S_A}, s{S_ROWN}, {r*RG}")
        e.vm(f"buffer_store_dwordx4 {vr(W0,4)}, v{V_R}, s[{SRD_WS}:{SRD_WS+3}], s{S_A} offen sc1", "rstp")
    e(f"v_lshlrev_b32 v{V_T}, 4, v{V_LANE}")
    selmask(e, W0 + 4, V_T, rows_mask([0], 24))
    e(f"s_add_u32 s{S_A}, s{S_ROWN}, {R2_REG['P']*RG}")
    e.vm(f"buffer_store_dwordx4 {vr(W0,4)}, v{W0+4}, s[{SRD_WS}:{SRD_WS+3}], s{S_A} offen sc1", "rstp")

def emit_resets(e, f):
    e(f"v_mov_b32 v{W0}, -1"); e(f"v_mov_b32 v{W0+1}, -1"); e(f"v_mov_b32 v{W0+2}, -1"); e(f"v_mov_b32 v{W0+3}, -1")
    def reset(vo, sreg, const):
        e(f"s_add_u32 s{S_A}, s{sreg}, {const}")
        e.vm(f"buffer_store_dwordx4 {vr(W0,4)}, v{vo}, s[{SRD_WS}:{SRD_WS+3}], s{S_A} offen {f}", "rst")
    e(f"v_and_b32 v{V_T}, 31, v{V_LANE}"); e(f"v_lshlrev_b32 v{V_T}, 4, v{V_T}")
    e(f"v_lshrrev_b32 v{V_T+1}, 5, v{V_LANE}"); e(f"v_lshl_add_u32 v{V_T}, v{V_T+1}, 9, v{V_T}")
    liv = dict(LIVE); liv['P'] = [0]
    skip = e.newlabel("norstg")
    e(f"s_cmp_lg_u32 s{S_HQ}, 0"); e(f"s_cbranch_scc1 {skip}")
    for inst in (0, 1, 2):
        ks = [k for k in range(2) if (inst, k) not in o_dset]
        if not ks: continue
        selmask(e, W0 + 4, V_T, rows_mask(liv[inst], 20))
        for k in ks:
            e(f"s_add_u32 s{S_A}, s{S_GOWN}, {G_OFF(inst,k)}")
            e(f"buffer_store_dwordx4 {vr(W0,4)}, v{W0+4}, s[{SRD_WS}:{SRD_WS+3}], s{S_A} offen sc1")
    e.label(skip)
    for r in [7, 8] + list(R1_REG.values()): reset(V_R, S_ROWN, r * RG)
    for inst in (0, 1, 2):
        selmask(e, W0 + 4, V_T, rows_mask(liv[inst], 25))
        reset(W0 + 4, S_ROWN, R2_REG[inst] * RG)
        selmask(e, W0 + 4, V_T, rows_mask(liv[inst], 20))
        for k in range(2):
            if (inst, k) in o_dset:
                if o_exp[0] and "noLrst" in o_exp[0]: continue
                e(f"s_add_u32 s{S_A}, s{S_LOWN}, {L_REG(inst, k) * RG}")
                e.vm(f"buffer_store_dwordx4 {vr(W0,4)}, v{W0+4}, s[{SRD_WS}:{SRD_WS+3}], s{S_A} offen sc1", "rst")
            else: reset(W0 + 4, S_LOWN, L_REG(inst, k) * RG)

def token_store(e, base, second):
    e(f"s_lshl_b32 s{S_A}, s2, 7"); e(f"s_add_u32 s{S_A}, s{S_A}, {base}")
    e(f"v_mov_b32 v{W0+40}, s{S_TAG}"); e(f"v_mov_b32 v{W0+41}, {second}"); e(f"v_mov_b32 v{V_T}, 0")
    e("s_mov_b64 exec, 1")
    e.vm(f"buffer_store_dwordx2 {vr(W0+40,2)}, v{V_T}, s[{SRD_WS}:{SRD_WS+3}], s{S_A} offen sc1", "tok")
    e("s_mov_b64 exec, -1")

def token_gather(e, o, base, vo, mask, sleep=0, dst=W0, between=None):
    lab = e.newlabel("tok"); chk = e.newlabel("tokchk")
    if between:
        e(f"s_mov_b32 s{S_B}, {base}")
        set_exec(e, mask)
        e(f"buffer_load_dwordx2 {vr(dst,2)}, v{vo}, s[{SRD_WS}:{SRD_WS+3}], s{S_B} offen sc1")
        e("s_mov_b64 exec, -1")
        between()
        e(f"s_mov_b32 s{S_A}, {base}")
        set_exec(e, mask)
        e(f"s_mov_b32 s{S_CNT}, {o.poll_limit}")
        e(f"s_branch {chk}")
    else:
        e(f"s_mov_b32 s{S_A}, {base}")
        set_exec(e, mask)
        e(f"s_mov_b32 s{S_CNT}, {o.poll_limit}")
    e.label(lab)
    e(f"buffer_load_dwordx2 {vr(dst,2)}, v{vo}, s[{SRD_WS}:{SRD_WS+3}], s{S_A} offen sc1")
    e(f"s_sub_u32 s{S_CNT}, s{S_CNT}, 1"); e(f"s_cbranch_scc1 L_abort")
    e.label(chk)
    e("s_waitcnt vmcnt(0)")
    e(f"v_cmp_ne_u32 vcc, s{S_TAG}, v{dst}")
    if sleep:
        ok = e.newlabel("tokok"); e(f"s_cbranch_vccz {ok}"); e(f"s_sleep {sleep}"); e(f"s_branch {lab}"); e.label(ok)
    else: e(f"s_cbranch_vccnz {lab}")
    e.vmq = []

def tr_block(e, items):
    i, g, r, c, t = W0, W0 + 1, W0 + 2, W0 + 3, W0 + 4
    a32, a16 = W0 + 6, W0 + 7
    def tr_setup():
        e(f"v_and_b32 v{i}, 15, v{V_LANE}"); e(f"v_lshrrev_b32 v{g}, 4, v{V_LANE}")
        e(f"v_lshrrev_b32 v{r}, 2, v{i}"); e(f"v_and_b32 v{c}, 3, v{i}")
    def trbase(dst, stride, rows_per_g, base):
        e(f"v_mul_u32_u24 v{t}, {rows_per_g}, v{g}"); e(f"v_add_u32 v{t}, v{t}, v{r}")
        e(f"v_mul_u32_u24 v{t}, {stride}, v{t}"); e(f"v_lshl_add_u32 v{dst}, v{c}, 3, v{t}")
        if base: e(f"v_add_u32 v{dst}, {base}, v{dst}")
    def tr(frag, addr, off, k16, stride):
        f, lo = frag
        e.lg(f"ds_read_b64_tr_b16 {f}[{lo}:{lo+1}], v{addr} offset:{off}", "tr")
        if not k16: e.lg(f"ds_read_b64_tr_b16 {f}[{lo+2}:{lo+3}], v{addr} offset:{off+4*stride}", "tr")
        if len(e.lgq) >= 12: e.lg_wait_n(4)
    if True:
        tr_setup()
        for frag, nt, stride, base, ks in items:
            trbase(a32, stride, 8, base); trbase(a16, stride, 4, base)
            nk = len(ks)
            for tt in range(nt):
                for s, k0 in enumerate(ks):
                    k16 = (frag is not wo_frag) and s == nk - 1
                    tr(frag(tt, s), a16 if k16 else a32, k0 * stride + 32 * tt, k16, stride)
        e.lg_all()

def prologue_weights(e, o, st):
    abort = "L_abort"
    e(f"v_mov_b32 v{W0+2}, 0x3f803f80"); e(f"v_mov_b32 v{W0+3}, 0x3f803f80")
    e(f"v_lshlrev_b32 v{W0+4}, 3, v{V_LANE}"); e(f"v_add_u32 v{W0+4}, {ACT_X+384}, v{W0+4}")
    set_exec(e, mask64(range(24)))
    e.lg(f"ds_write_b64 v{W0+4}, {vr(W0+2,2)}", "ones")
    e("s_mov_b64 exec, -1")
    e.lg(f"ds_write_b64 v{V_WX}, {vr(V_XR,2)}", "wx")
    e(f"v_lshlrev_b32 v{V_XR+2}, 16, v{V_XR+1}"); e(f"v_and_b32 v{V_XR+3}, 0xffff0000, v{V_XR+1}")
    e(f"v_and_b32 v{V_XR+1}, 0xffff0000, v{V_XR}"); e(f"v_lshlrev_b32 v{V_XR}, 16, v{V_XR}")
    e.lg_all()
    lab = e.newlabel("wflag")
    e(f"v_mov_b32 v{V_T+1}, {WFLAG}")
    e(f"s_mov_b32 s{S_CNT}, {o.poll_limit*8}")
    e.label(lab)
    e(f"ds_read_b96 {vr(W0,3)}, v{V_T+1}")
    e(f"s_sub_u32 s{S_CNT}, s{S_CNT}, 1"); e(f"s_cbranch_scc1 {abort}")
    e("s_waitcnt lgkmcnt(0)")
    e(f"v_and_b32 v{W0}, v{W0}, v{W0+1}"); e(f"v_and_b32 v{W0}, v{W0}, v{W0+2}")
    e(f"v_cmp_ne_u32 vcc, 1, v{W0}")
    e(f"s_cbranch_vccnz {lab}")
    st("p.wland")
    wg0, wu0 = (STD_WG, STD_WU) if o.defer else (ST_WG, ST_WU)
    tr_block(e, [(wq_frag, 12, 384, ST_WQ, (0, 32, 64)), (wg_frag, 3, 96, wg0, (0, 32, 64)), (wu_frag, 3, 96, wu0, (0, 32, 64))])
    st("p.weights")

def deferred_weights(e, o, st):
    lab = e.newlabel("w2flag")
    e(f"v_mov_b32 v{V_T+1}, {WFLAG + 16}")
    e(f"s_mov_b32 s{S_CNT}, {o.poll_limit*8}")
    e.label(lab)
    e(f"ds_read_b96 {vr(W0,3)}, v{V_T+1}")
    e(f"s_sub_u32 s{S_CNT}, s{S_CNT}, 1"); e(f"s_cbranch_scc1 L_abort")
    e("s_waitcnt lgkmcnt(0)")
    e(f"v_and_b32 v{W0}, v{W0}, v{W0+1}"); e(f"v_and_b32 v{W0}, v{W0}, v{W0+2}")
    e(f"v_cmp_ne_u32 vcc, 1, v{W0}")
    e(f"s_cbranch_vccnz {lab}")
    st("c0.wland")
    i, g, r, c, t, a, b = W0, W0 + 1, W0 + 2, W0 + 3, W0 + 4, W0 + 6, W0 + 7
    e(f"v_and_b32 v{i}, 15, v{V_LANE}"); e(f"v_lshrrev_b32 v{g}, 4, v{V_LANE}")
    e(f"v_lshrrev_b32 v{r}, 2, v{i}"); e(f"v_and_b32 v{c}, 3, v{i}")
    def tr(frag, addr, off, k16):
        f, lo = frag
        e.lg(f"ds_read_b64_tr_b16 {f}[{lo}:{lo+1}], v{addr} offset:{off}", "tr")
        if not k16: e.lg(f"ds_read_b64_tr_b16 {f}[{lo+2}:{lo+3}], v{addr} offset:{off+4*160}", "tr")
        if len(e.lgq) >= 12: e.lg_wait_n(4)
    e(f"v_lshl_add_u32 v{t}, v{g}, 3, v{r}"); e(f"v_mul_u32_u24 v{t}, 160, v{t}"); e(f"v_lshl_add_u32 v{b}, v{c}, 3, v{t}")
    for ar in range(3):
        e(f"v_add_u32 v{a}, {DEF_AREA(ar)}, v{b}")
        for tt in range(5):
            for half in range(2): tr(wo_frag(tt, 2 * ar + half), a, 32 * half * 160 + 32 * tt, False)
    e(f"v_lshl_add_u32 v{t}, v{g}, 3, v{r}"); e(f"v_and_b32 v{t}, 15, v{t}"); e(f"v_mul_u32_u24 v{t}, 160, v{t}")
    e(f"v_lshrrev_b32 v{a}, 1, v{g}"); e(f"v_mul_u32_u24 v{a}, {LDS_SW}, v{a}"); e(f"v_add_u32 v{a}, v{a}, v{t}")
    e(f"v_lshl_add_u32 v{a}, v{c}, 3, v{a}"); e(f"v_add_u32 v{a}, {DEF_AREA(0) + 10240}, v{a}")
    for tt in range(5): tr(wd_frag(tt, 0), a, 32 * tt, False)
    e(f"v_lshl_add_u32 v{t}, v{g}, 2, v{r}"); e(f"v_mul_u32_u24 v{t}, 160, v{t}"); e(f"v_lshl_add_u32 v{b}, v{c}, 3, v{t}")
    e(f"v_add_u32 v{b}, {DEF_AREA(2) + 10240}, v{b}")
    for tt in range(5): tr(wd_frag(tt, 1), b, 32 * tt, True)
    e.lg_all()
    e(f"v_mov_b32 v{W0}, {WFLAG + 28}"); e(f"v_mov_b32 v{W0+1}, 1")
    e.lg(f"ds_write_b32 v{W0}, v{W0+1}", "free")

def tok2_offsets(e, TO, tmp, others_only=False):
    L = V_LANE; t, u, a, b, c = tmp, tmp + 1, tmp + 2, tmp + 3, tmp + 4
    e(f"v_and_b32 v{t}, 7, v{L}")
    e(f"s_lshl_b32 s{S_T1}, s{S_J}, 3")
    e(f"v_add_u32 v{c}, s{S_T1}, v{t}")
    if not others_only:
        e(f"v_lshlrev_b32 v{u}, 3, v{t}")
        e(f"s_lshl_b32 s{S_T0}, s{S_HQ}, 6"); e(f"s_add_u32 s{S_T0}, s{S_T0}, s{S_XC}"); e(f"v_add_u32 v{a}, s{S_T0}, v{u}")
        e(f"v_lshlrev_b32 v{u}, 6, v{t}")
        e(f"s_add_u32 s{S_T0}, s{S_T1}, s{S_XC}"); e(f"v_add_u32 v{b}, s{S_T0}, v{u}")
        e("s_mov_b32 vcc_lo, 0x00000f00"); e("s_mov_b32 vcc_hi, 0"); e(f"v_cndmask_b32 v{a}, v{a}, v{b}, vcc")
        e("s_mov_b32 vcc_lo, 0x00ff0000"); e(f"v_cndmask_b32 v{a}, v{a}, v{c}, vcc")
    else: e(f"v_mov_b32 v{a}, v{c}")
    e(f"v_bfe_u32 v{u}, v{L}, 3, 2"); e(f"v_lshlrev_b32 v{u}, 6, v{u}"); e(f"v_add_u32 v{c}, v{c}, v{u}")
    e("s_mov_b32 vcc_lo, 0"); e("s_mov_b32 vcc_hi, -1"); e(f"v_cndmask_b32 v{a}, v{a}, v{c}, vcc")
    e(f"v_lshlrev_b32 v{TO}, 7, v{a}")

def cw_load_tiles(e, o, base):
    R = NS(voffK=1, voffX=2, voffY=3)
    for T in range(CW_TILES):
        kv_soff(e, base, T)
        for s in range(3): ld_k(e, R, vr(CW_K + 12 * T + 4 * s, 4), s, ('K', T, s), o)
    for T in range(CW_TILES):
        kv_soff(e, base, T)
        for w in range(3): ld_v(e, R, vr(CW_V + 12 * T + 4 * w, 4), w, ('V', T, w), o)

def chain_wave(e, o, st, local):
    fl = "" if local else "sc1"
    abort = "L_abort"
    R = NS(vlds=V_L16, voffK=1, voffX=2, voffY=3, sel=V_SEL, qA=32, D=44, sc=56, tmp=57, vpw=62, acc=32, A=44, pp=52, vpp=63, vm=60, vl=61, vlt=59)
    instance_offsets(e, [0, 1], pub_live=[2], q_live=[0, 1, 2])
    stage_Q(e, fl, R3_REG['P'])
    stage_GU(e, fl, R2_REG['P'] * RG - 1024, with_stats=False)
    st("p.pub")
    emit_resets(e, fl)
    st("reset")
    if not o.defer: tr_block(e, [(wo_frag, 5, 160, ST_WO, (0, 32, 64, 96, 128, 160)), (wd_frag, 5, 160, ST_WD, (0, 32))])
    GA = CW_K
    e(f"v_and_b32 v{V_T}, 31, v{V_LANE}"); e(f"v_lshlrev_b32 v{V_T}, 4, v{V_T}")
    selmask(e, W0 + 40, V_T, rows_mask([0, 1], 24))
    sr = list(range(10, 18))
    for k, reg in enumerate((4, 5, 6, R2_REG['P'])):
        e(f"s_add_u32 s{sr[2*k]}, s{S_RGRP}, {reg*RG}"); e(f"s_add_u32 s{sr[2*k+1]}, s{sr[2*k]}, 4096")
    loads = []
    for row in range(3):
        loads += [(GA + 32 * row + 4 * k, V_R, sr[2*row + (k >= 4)], (k % 4) * 1024) for k in range(8)]
    loads += [(W0 + 32, V_ML, sr[0], 0), (W0 + 36, V_ML, sr[2], 0)]
    loads += [(W0 + 4 * k, W0 + 40, sr[6 + (k >= 4)], (k % 4) * 1024) for k in range(8)]
    poll(e, o, loads, abort, sleep=o.p_sleep)
    token_store(e, TOK2, 0)
    st("p.gather")
    sum_loads(e, 8, GA + 64)
    for rr in range(4): e(f"v_mov_b32 v{V_CSQ+rr}, v{GA+64+rr}")
    sum_loads(e, 8, W0)
    for rr in range(4): e(f"v_mov_b32 v{V_CSG+rr}, v{W0+rr}")
    for row in range(2):
        q_consume(e, GA + 32 * row, W0 + 32 + 4 * row, row)
    st("q1")
    def load_tiles(base): cw_load_tiles(e, o, base)
    load_tiles(S_KV0)
    if o.defer == 3: deferred_weights(e, o, st)
    instance_offsets(e, [0])
    TO, TD = W0 + 38, W0 + 36
    tok2_offsets(e, TO, W0 + 2)
    tmask = 0x00000fff if o.split_tok else (0xffffffff00ff0fff if o.direct else 0x00ff0fff)
    def first_pass():
        e.vmq.append("tok2")
        e.lg_all()
        st("pro_done")
        e("s_barrier")
        if "stopA" in o.exp: e("s_branch L_done")
        def kw(T):
            if T >= 0: e.vm_wait(('K', T, 2))
        def vw(T, w): e.vm_wait(('V', T, w))
        attn_pass(e, R, CW_TILES, 0, Kf, Vf, S_PB, 0, k_wait=kw, v_wait=vw)
    Kf = lambda T, s: vr(CW_K + 12 * T + 4 * s, 4)
    Vf = lambda T, w: vr(CW_V + 12 * T + 4 * w, 4)
    token_gather(e, o, TOK2, TO, tmask, sleep=o.t_sleep, dst=TD, between=first_pass)
    e("s_mov_b64 exec, -1")
    st("p.tok2g")
    e("s_barrier")
    st("bar2")
    parts = [PART + 1536 * w for w in range(4)]
    combine_publish(e, fl, parts, ML, R1_REG[0])
    if o.defer == 1: deferred_weights(e, o, st)
    st("c0.cmb")
    sv = o.preR; o.preR = sv + o.preR0
    hop_R1(e, o, R1_REG[0], 0, abort)
    o.preR = sv
    if o.defer == 2: deferred_weights(e, o, st)
    chain(e, o, fl, 0, [0], abort, st)
    st("chain0")
    e("s_barrier")
    attn_pass(e, R, CW_TILES, 0, Kf, Vf, S_PB, 32)
    e("s_barrier")
    parts_early = [PART] + [LDS_SW * s + 48 * 1024 for s in range(3)]
    combine_publish(e, fl, parts_early, ML + 32, R1_REG['1a'])
    load_tiles(S_KV1)
    instance_offsets(e, LIVE[1])
    hop_R1(e, o, R1_REG['1a'], 0, abort)
    e.vmq = []
    attn_pass(e, R, CW_TILES, 1, Kf, Vf, S_PB, 0)
    e("s_barrier")
    st("bar6")
    combine_publish(e, fl, parts, ML, R1_REG['1b'])
    st("c1.cmb")
    hop_R1(e, o, R1_REG['1b'], 1, abort)
    chain(e, o, fl, 1, [0, 1], abort, st)
    st("chain1")
    e("s_barrier")
    attn_pass(e, R, CW_TILES, 1, Kf, Vf, S_PB, 0)
    instance_offsets(e, LIVE[2])
    e("s_barrier")
    st("bar8")
    combine_publish(e, fl, parts, ML, R1_REG[2])
    st("c2.cmb")
    hop_R1(e, o, R1_REG[2], 1, abort)
    chain(e, o, fl, 2, [1], abort, st)
    st("chain2")
    e("s_branch L_done")

def chain_wave_setup(e, o, st):
    L = V_LANE
    if o.prio: e(f"s_setprio {o.prio}")
    lane_id(e, L)
    e(f"v_mov_b32 v{V_OOB}, 0x{OOB:08x}")
    e(f"s_lshl_b32 s{S_RGRP}, s{S_H}, 13"); e(f"s_lshl_b32 s{S_T0}, s{S_J}, 10"); e(f"s_add_u32 s{S_ROWN}, s{S_RGRP}, s{S_T0}")
    e(f"s_lshl_b32 s{S_LGRP}, s{S_XC}, 3"); e(f"s_add_u32 s{S_LGRP}, s{S_LGRP}, s{S_J}"); e(f"s_lshl_b32 s{S_LGRP}, s{S_LGRP}, 12")
    e(f"s_lshl_b32 s{S_T0}, s{S_HQ}, 10"); e(f"s_add_u32 s{S_LOWN}, s{S_LGRP}, s{S_T0}")
    e(f"s_lshl_b32 s{S_GGRP}, s{S_J}, 13"); e(f"s_lshl_b32 s{S_T0}, s{S_XC}, 10"); e(f"s_add_u32 s{S_GOWN}, s{S_GGRP}, s{S_T0}")
    late_common(e)
    if "nocw" in o.exp:
        e("s_barrier")
        st("bar1x")
        e("s_branch L_done")
    e(f"v_lshlrev_b32 v{V_L16}, 4, v{L}")
    selmask(e, V_R, V_L16, mask64(range(49)))
    e(f"s_load_dword s{S_TAG}, s[{S_WS}:{S_WS+1}], {EPOCH_OFF}")
    if "noPrst" not in o.exp: emit_resets_P(e)
    e(f"s_getreg_b32 s{S_T2}, hwreg(HW_REG_XCC_ID)"); e(f"s_and_b32 s{S_T2}, s{S_T2}, 0xf")
    make_srd(e, SRD_T, S_X, 2560)
    e(f"v_and_b32 v{V_T}, 31, v{L}"); e(f"v_lshlrev_b32 v{V_T}, 3, v{V_T}")
    e(f"v_lshrrev_b32 v{V_T+1}, 5, v{L}"); e(f"v_mul_u32_u24 v{V_T+1}, 1280, v{V_T+1}"); e(f"v_add_u32 v{V_T}, v{V_T}, v{V_T+1}")
    selmask(e, V_T, V_T, rows_mask([0, 1], 20))
    e(f"s_mul_i32 s{S_T0}, s{S_J}, 160")
    e.vm(f"buffer_load_dwordx2 {vr(V_XR,2)}, v{V_T}, s[{SRD_T}:{SRD_T+3}], s{S_T0} offen", "x")
    e(f"s_add_u32 s{S_KV1}, s{S_KV0}, {BATCH_STRIDE}")
    R = NS(voffK=1, voffX=2, voffY=3, sel=V_SEL)
    attn_selectors(e, R, L, W0)
    n, g, x = W0, W0 + 1, W0 + 2
    e(f"v_mov_b32 v{W0+3}, v{V_L16}"); selmask(e, V_L16, W0 + 3, mask64(range(48)), other=0)
    e(f"v_and_b32 v{n}, 15, v{L}"); e(f"v_lshrrev_b32 v{g}, 4, v{L}")
    e(f"v_min_u32 v{x}, 1, v{n}")
    e(f"v_mul_u32_u24 v{V_BO}, 384, v{x}"); e(f"v_lshl_add_u32 v{V_BO}, v{g}, 4, v{V_BO}"); e(f"v_add_u32 v{V_BO}, {ACT_O}, v{V_BO}")
    e(f"v_lshlrev_b32 v{V_BH}, 7, v{x}"); e(f"v_lshl_add_u32 v{V_BH8}, v{g}, 3, v{V_BH}"); e(f"v_add_u32 v{V_BH8}, {ACT_H+64}, v{V_BH8}")
    e(f"v_lshl_add_u32 v{V_BH}, v{g}, 4, v{V_BH}"); e(f"v_add_u32 v{V_BH}, {ACT_H}, v{V_BH}")
    e(f"v_min_u32 v{x}, 2, v{n}")
    e(f"v_mul_u32_u24 v{V_BX}, 192, v{x}"); e(f"v_lshl_add_u32 v{V_BX8}, v{g}, 3, v{V_BX}"); e(f"v_add_u32 v{V_BX8}, {ACT_X+128}, v{V_BX8}")
    e(f"v_lshl_add_u32 v{V_BX}, v{g}, 4, v{V_BX}"); e(f"v_add_u32 v{V_BX}, {ACT_X}, v{V_BX}")
    e(f"v_subrev_u32 v{x}, 1, v{n}"); e(f"v_min_u32 v{x}, 2, v{x}")
    e(f"v_mul_u32_u24 v{V_AS}, 192, v{x}"); e(f"v_lshl_add_u32 v{V_AS8}, v{g}, 3, v{V_AS}"); e(f"v_add_u32 v{V_AS8}, {ACT_X+128}, v{V_AS8}")
    e(f"v_lshl_add_u32 v{V_AS}, v{g}, 4, v{V_AS}"); e(f"v_add_u32 v{V_AS}, {ACT_X}, v{V_AS}")
    e(f"v_lshlrev_b32 v{x}, 3, v{L}"); e(f"v_add_u32 v{x}, {SB}, v{x}"); selmask(e, V_W8, x, mask64(range(48)), other=SB+2560)
    e(f"v_and_b32 v{n}, 31, v{L}"); e(f"v_lshrrev_b32 v{g}, 5, v{L}")
    e(f"v_mul_u32_u24 v{x}, 192, v{g}"); e(f"v_lshl_add_u32 v{x}, v{n}, 3, v{x}"); e(f"v_add_u32 v{x}, {ACT_X}, v{x}")
    selmask(e, V_WX, x, rows_mask([0, 1], 20), other=DUMMY)
    e(f"v_lshlrev_b32 v{x}, 7, v{g}"); e(f"v_lshl_add_u32 v{x}, v{n}, 2, v{x}"); e(f"v_add_u32 v{x}, {ACT_H}, v{x}")
    selmask(e, V_WH, x, rows_mask([0, 1], 24), other=DUMMY)
    e(f"v_and_b32 v{x}, 7, v{L}"); e(f"v_lshlrev_b32 v{x}, 10, v{x}"); e(f"v_add_u32 v{V_ML}, 768, v{x}")
    m = mask64([16 * a + 1 for a in range(4)])
    e(f"s_mov_b32 s{S_N1}, 0x{m & 0xffffffff:08x}"); e(f"s_mov_b32 s{S_N1+1}, 0x{m >> 32:08x}")
    e("s_waitcnt lgkmcnt(0)")
    e(f"s_add_u32 s{S_TAG}, s{S_TAG}, 1")
    e.vm_all(force=True)
    token_store(e, TOK1, f"s{S_T2}")
    st("p.tok1")
    TO, TD = W0 + 38, W0 + 36
    e(f"v_lshlrev_b32 v{TO}, 10, v{L}"); e(f"s_lshl_b32 s{S_T0}, s{S_XC}, 7"); e(f"v_add_u32 v{TO}, s{S_T0}, v{TO}")
    token_gather(e, o, TOK1, TO, 0xffffffff, sleep=o.t_sleep, dst=TD, between=lambda: prologue_weights(e, o, st))
    e(f"v_cmp_ne_u32 vcc, s{S_T2}, v{TD+1}")
    e("s_mov_b64 exec, -1")
    st("p.mode")
    e("s_nop 3")
    e("s_cmp_lg_u32 vcc_lo, 0")

def late_common(e):
    make_srd(e, SRD_V, S_V, KV_BYTES); make_srd(e, SRD_WS, S_WS, WS_REC)
    e(f"s_mov_b32 s{S_C}, {lit(CSCALE)}")
    e(f"s_mov_b32 s{S_HI32}, 0"); e(f"s_mov_b32 s{S_HI32+1}, -1")
    e(f"s_mul_i32 s{S_PB}, s{S_WAVE}, 1536"); e(f"s_add_u32 s{S_PB}, s{S_PB}, {PART}")
    e(f"s_lshl_b32 s{S_MLB}, s{S_WAVE}, 3"); e(f"s_add_u32 s{S_MLB}, s{S_MLB}, {ML}")

def generate(o):
    Stamps.select = o.stampset.split(",") if o.stampset else None
    o_direct[0] = o.direct; o_direct[1] = o.direct0
    LIVE.update({1: [1], 2: [0, 1]} if o.late_b0 else {1: [0, 1], 2: [1]})
    o_packed[0] = bool(o.packed)
    o_exp[0] = o.exp
    o_dset.clear()
    if o.packed: o_dset.update({(int(c[0]), int(c[1])) for c in o.packed.split(",")})
    if o.direct: o_dset.add((2, 1))
    if o.direct0: o_dset.add((2, 0))
    e = Emit()
    e("s_cmp_ge_u32 s2, 256"); e("s_cbranch_scc1 L_done")
    e("s_load_dwordx16 s[4:19], s[0:1], 0"); e("s_load_dwordx8 s[20:27], s[0:1], 64")
    e("v_lshrrev_b32 v1, 6, v0")
    e(f"s_and_b32 s{S_XC}, s2, 7"); e(f"s_lshr_b32 s{S_HQ}, s2, 6")
    e(f"v_readfirstlane_b32 s{S_WAVE}, v1")
    e(f"s_lshr_b32 s{S_J}, s2, 3"); e(f"s_and_b32 s{S_J}, s{S_J}, 7")
    e(f"s_lshl_b32 s{S_H}, s{S_XC}, 2"); e(f"s_add_u32 s{S_H}, s{S_H}, s{S_HQ}")
    e(f"s_mul_i32 s{S_KV0}, s{S_H}, {HEAD_STRIDE}"); e(f"s_mul_i32 s{S_T0}, s{S_J}, {CHUNK_STRIDE}"); e(f"s_add_u32 s{S_KV0}, s{S_KV0}, s{S_T0}")
    e(f"s_add_u32 s{S_T0}, s{S_WAVE}, 3"); e(f"s_and_b32 s{S_T0}, s{S_T0}, 3")
    e(f"s_mul_i32 s{S_T1}, s{S_T0}, {SW_TILES*TILE_B}"); e(f"s_add_u32 s{S_KV0}, s{S_KV0}, s{S_T1}")
    lane_id(e, 8)
    e("v_mov_b32 v14, 0"); e(f"v_mov_b32 v15, {WFLAG}"); e("v_lshl_add_u32 v15, v8, 2, v15")
    e("s_mov_b32 exec_lo, 0xff"); e("s_mov_b32 exec_hi, 0")
    e("ds_write_b32 v15, v14")
    e("s_mov_b64 exec, -1")
    attn_load_offsets(e, NS(voffK=1, voffX=2, voffY=3), 8, 10)
    e("s_waitcnt lgkmcnt(0)")
    e("s_barrier")
    make_srd(e, SRD_K, S_K, KV_BYTES)
    e(f"s_cmp_eq_u32 s{S_WAVE}, 0"); e("s_cbranch_scc1 L_chain")
    st_s = Stamps(e, o.stamps); st_s("start")
    stream_wave(e, o, st_s)
    e.label("L_chain")
    e.vmq = []; e.lgq = []
    st_c = Stamps(e, o.stamps); st_c("start")
    chain_wave_setup(e, o, st_c)
    names = {}
    if o.force_global: e("s_branch L_global")
    else: e("s_cbranch_scc1 L_global")
    base_names = list(st_c.names)
    sv = (list(e.vmq), list(e.lgq))
    chain_wave(e, o, st_c, True)
    names['cw'] = list(st_c.names); names['sw'] = list(st_s.names)
    e.label("L_global")
    e.vmq, e.lgq = sv
    st_g = Stamps(e, o.stamps); st_g.names = list(base_names)
    chain_wave(e, o, st_g, False)
    e.label("L_abort")
    e.label("L_done")
    if o.stamps:
        e("s_cmp_ge_u32 s2, 256"); e("s_cbranch_scc1 L_exit")
        fl = Stamps(e, True); fl.names = names['cw']; fl.flush()
        e.label("L_exit")
    e("s_endpgm")
    return e, names

HEAD = """; Fused two-layer decode step (attention over a cached K/V + ReGLU FFN, twice), one persistent launch.
; @launch grid=(256,1,1) block=(256,1,1) lds=%d
;
.amdgcn_target "amdgcn-amd-amdhsa--gfx950"
.text
.globl %s
.p2align 8
.type %s,@function
%s:
"""
FOOT = """
.section .rodata,"a"
.p2align 6
.amdhsa_kernel %s
  .amdhsa_next_free_vgpr 512
  .amdhsa_next_free_sgpr 102
  .amdhsa_accum_offset 256
  .amdhsa_group_segment_fixed_size 0
  .amdhsa_kernarg_size 96
  .amdhsa_user_sgpr_count 2
  .amdhsa_user_sgpr_kernarg_segment_ptr 1
  .amdhsa_system_sgpr_workgroup_id_x 1
  .amdhsa_float_denorm_mode_32 3
.end_amdhsa_kernel
"""
def build_text(o):
    e, names = generate(o)
    return HEAD % (LDS_TOTAL, NAME, NAME, NAME) + e.text() + "\n" + FOOT % NAME, names, e

if __name__ == "__main__":
    o = Opt()
    for a in sys.argv[2:]:
        k, v = a.split("=")
        cur = getattr(o, k)
        setattr(o, k, (v not in ("0", "False")) if isinstance(cur, bool) else type(cur)(v))
    txt, names, e = build_text(o)
    open(sys.argv[1], "w").write(txt)
    print("instructions:", e.ninst, "nops:", e.nops, names)
```
